```python
import torch

def _softmax(x, axis=-1):
    return torch.softmax(x, dim=axis)
def _gelu(x):
    return torch.nn.functional.gelu(x, approximate="tanh")
def _silu(x):
    return torch.nn.functional.silu(x)
def _sigmoid(x):
    return torch.sigmoid(x)
def _layernorm(x, axis=-1, eps=1e-5):
    m = x.mean(dim=axis, keepdim=True)
    v = x.var(dim=axis, keepdim=True, unbiased=False)
    return (x - m) / torch.sqrt(v + eps)
def _scatter_add(tgt, idx, src, axis=0):
    return tgt.clone().index_add_(axis, idx, src)
def _segment_sum(src, seg, n):
    out = torch.zeros((n,) + src.shape[1:], dtype=src.dtype)
    return out.index_add_(0, seg, src)
def _pad(x, pw):
    flat = tuple(v for pair in reversed(pw) for v in pair)
    return torch.nn.functional.pad(x, flat)

kernel_name = 'gated_mix__sliding_block__mixer_channel_mlp__prompt'

def setup_inputs():

    _w = (lambda a: (lambda t: t.to(torch.bfloat16) if t.is_floating_point() else t)(torch.as_tensor(a)))
    def _A_setup():
        B, S, D = 1, 2048, 640
        return {
            "x": _w((lambda *s: torch.randn(*s, dtype=torch.bfloat16) * 0.05)(B, S, D)),
            "wqkv": _w((lambda *s: torch.randn(*s, dtype=torch.bfloat16) * 0.8)(D, 3 * D)),
            "wo": _w((lambda *s: torch.randn(*s, dtype=torch.bfloat16) * 0.05)(D, D)),
        }
    _A_in = _A_setup()

    def _B_setup():
        B, S, D, F = 1, 2048, 640, 1728
        return {
            "x": _w((lambda *s: torch.randn(*s, dtype=torch.bfloat16) * 0.05)(B, S, D)),
            "w1": _w((lambda *s: torch.randn(*s, dtype=torch.bfloat16) * 3.2)(D, F) * (D ** -0.5)),
            "b1": _w((lambda *s: torch.randn(*s, dtype=torch.bfloat16) * 1.6)(F)),
            "w2": _w((lambda *s: torch.randn(*s, dtype=torch.bfloat16) * 0.2)(F, D) * (F ** -0.5)),
            "b2": _w((lambda *s: torch.randn(*s, dtype=torch.bfloat16) * 0.2)(D)),
        }
    _B_in = _B_setup()

    return {
        "A_x": _A_in["x"],
        "A_wqkv": _A_in["wqkv"],
        "A_wo": _A_in["wo"],
        "B_x": _B_in["x"],
        "B_w1": _B_in["w1"],
        "B_b1": _B_in["b1"],
        "B_w2": _B_in["w2"],
        "B_b2": _B_in["b2"],
        "gate_w": _w((lambda *s: torch.randn(*s, dtype=torch.bfloat16) * 0.05)(640) * 16.0),
    }

def reference(A_x, A_wqkv, A_wo, B_x, B_w1, B_b1, B_w2, B_b2, gate_w):
    def _A_ref(x, wqkv, wo):
        B, S, D = x.shape
        H = 32; Dh = D // H; W = 256
        qkv = (lambda x, *d: x.permute(*d))((x @ wqkv).reshape(B, S, 3, H, Dh), 2, 0, 3, 1, 4)
        q, k, v = qkv[0], qkv[1], qkv[2]
        scores = torch.einsum("bhqd,bhkd->bhqk", q, k) * (Dh ** -0.5)
        idx = torch.arange(S)
        mask = (idx[:, None] - idx[None, :] >= 0) & (idx[:, None] - idx[None, :] < W)
        scores = torch.where(mask[None, None], scores, -1e9)
        p = _softmax(scores, axis=-1)
        o = torch.einsum("bhqk,bhkd->bhqd", p, v)
        return (lambda x, *d: x.permute(*d))(o, 0, 2, 1, 3).reshape(B, S, D) @ wo

    def _B_ref(x, w1, b1, w2, b2):
        y = _layernorm(x, axis=-1)
        h = _gelu(torch.einsum("bsd,df->bsf", y, w1) + b1)
        return torch.einsum("bsf,fd->bsd", h, w2) + b2

    x = A_x
    g = _sigmoid((x * gate_w).sum(-1, keepdims=True))
    a = _A_ref(x, A_wqkv, A_wo)
    b = _B_ref(x, B_w1, B_b1, B_w2, B_b2)
    return g * a + (1 - g) * b
```

```python
import re

_REG = re.compile(r'(?<![\w.])(-?)(?:abs\()?([vas])(?:\[(\d+):(\d+)\]|(\d+))(?![\w])')

def regs_of(op):
    op = op.strip()
    out = set()
    if op in ('vcc', 'vcc_lo', 'vcc_hi'):
        return {('s', 'vcc')}
    if op in ('exec', 'exec_lo', 'exec_hi'):
        return {('s', 'exec')}
    if op == 'm0':
        return {('s', 'm0')}
    m = _REG.fullmatch(op) or _REG.match(op)
    if m and m.start() == 0:
        k = m.group(2)
        if m.group(3) is not None:
            for i in range(int(m.group(3)), int(m.group(4)) + 1):
                out.add((k, i))
        else:
            out.add((k, int(m.group(5))))
    return out

TRANS = ('v_exp_f32', 'v_log_f32', 'v_rcp_f32', 'v_rsq_f32', 'v_sqrt_f32', 'v_sin_f32', 'v_cos_f32', 'v_exp_f16', 'v_rcp_iflag_f32')

class Ins:
    __slots__ = ('text', 'mn', 'ops', 'cls', 'wr', 'rd', 'states', 'passes', 'mods')

def split_ops(rest):
    ops, cur, depth = [], '', 0
    for ch in rest:
        if ch == '[': depth += 1
        if ch == ']': depth -= 1
        if ch == ',' and depth == 0:
            ops.append(cur.strip()); cur = ''
        else:
            cur += ch
    if cur.strip(): ops.append(cur.strip())
    return ops

def parse(text):
    t = text.split(';')[0].strip()
    ins = Ins(); ins.text = text; ins.wr = set(); ins.rd = set(); ins.states = 1; ins.passes = 0; ins.mods = ''
    if not t or t.endswith(':') or t.startswith('.'):
        ins.mn = ''; ins.cls = 'none'; ins.states = 0; ins.ops = []
        return ins
    parts = t.split(None, 1)
    mn = parts[0]; ins.mn = mn
    rest = parts[1] if len(parts) > 1 else ''
    ops = split_ops(rest)
    if ops:
        last = ops[-1].split()
        ops[-1] = last[0] if last else ''
        ins.mods = ' '.join(last[1:])
    ins.ops = ops
    R = [regs_of(o) for o in ops]
    allr = lambda idx: set().union(*[R[i] for i in idx if i < len(R)]) if idx else set()
    n = len(ops)
    if mn.startswith('v_mfma'):
        ins.cls = 'mfma'
        ins.wr = R[0]; ins.rd = allr(range(1, n))
        ins.passes = 8 if '32x32' in mn else 4
    elif mn.startswith('v_'):
        ins.cls = 'valu'
        base = mn.replace('_e32', '').replace('_e64', '').replace('_dpp', '')
        if base.startswith('v_cmp'):
            ins.wr = set(R[0]); ins.rd = allr(range(1, n))
            if base.startswith('v_cmpx'): ins.wr.add(('s', 'exec'))
        elif base.startswith('v_permlane') and 'swap' in base:
            ins.wr = R[0] | R[1]; ins.rd = R[0] | R[1]
        elif base in ('v_add_co_u32', 'v_sub_co_u32', 'v_addc_co_u32', 'v_subrev_co_u32'):
            ins.wr = R[0] | R[1]; ins.rd = allr(range(2, n))
        else:
            ins.wr = set(R[0]); ins.rd = allr(range(1, n))
            if base in ('v_fmac_f32', 'v_dot2c_f32_bf16', 'v_writelane_b32', 'v_pk_fmac_f16'):
                ins.rd |= R[0]
            if base == 'v_cndmask_b32' and n == 3:
                ins.rd.add(('s', 'vcc'))
    elif mn.startswith('ds_'):
        ins.cls = 'ds'
        if mn.startswith('ds_read') or mn.startswith('ds_bpermute') or mn.startswith('ds_swizzle') or mn.startswith('ds_permute'):
            ins.wr = R[0]; ins.rd = allr(range(1, n))
        else:
            ins.rd = allr(range(n))
    elif mn.startswith('buffer_') or mn.startswith('global_') :
        ins.cls = 'vmem'
        lds = ' lds' in (' ' + ins.mods) or 'load_lds' in mn
        if mn in ('buffer_inv', 'buffer_wbl2'):
            pass
        elif 'load' in mn and not lds:
            ins.wr = R[0]; ins.rd = allr(range(1, n))
        elif 'load' in mn:
            ins.rd = allr(range(n)) | {('s', 'm0')}
        elif mn.startswith('buffer_store'):
            ins.rd = allr(range(n))
        elif mn.startswith('global_store'):
            ins.rd = allr(range(n))
        elif 'atomic' in mn:
            ins.rd = allr(range(n))
            if 'sc0' in ins.mods: ins.wr = R[0]
        else:
            ins.rd = allr(range(n))
    elif mn.startswith('s_'):
        ins.cls = 'salu'
        if mn == 's_nop':
            ins.states = int(ops[0], 0) + 1
        elif mn.startswith(('s_cmp', 's_cbranch', 's_branch', 's_waitcnt', 's_barrier', 's_sleep', 's_setprio', 's_endpgm', 's_bitcmp')):
            ins.rd = allr(range(n))
        elif mn.startswith('s_load') or mn.startswith('s_mem'):
            ins.cls = 'smem'
            ins.wr = R[0]; ins.rd = allr(range(1, n))
        else:
            ins.wr = set(R[0]) if R else set(); ins.rd = allr(range(1, n))
            if 'saveexec' in mn: ins.wr.add(('s', 'exec')); ins.rd.add(('s', 'exec'))
    else:
        raise ValueError('unknown instruction: ' + text)
    return ins

def is_trans(i):
    return i.cls == 'valu' and i.mn.replace('_e32', '').replace('_e64', '') in TRANS

def vv(s):
    return {r for r in s if r[0] in 'va'}
def ss(s):
    return {r for r in s if r[0] == 's'}

def store_data(i):
    if i.cls != 'vmem' or 'store' not in i.mn or not (i.mn.endswith('x4') or i.mn.endswith('x3')):
        return set()
    idx = 0 if i.mn.startswith('buffer') else 1
    return regs_of(i.ops[idx])

def need(prev, cur):
    n = 0
    pw, cw, cr = prev.wr, cur.wr, cur.rd
    if prev.cls == 'valu':
        pv = vv(pw); ps = ss(pw)
        if pv:
            if cur.cls == 'mfma' and pv & vv(cr): n = max(n, 2)
            if cur.cls == 'valu':
                if ('dpp' in cur.mn or 'row_' in cur.mods or 'quad_perm' in cur.mods) and pv & vv(cr): n = max(n, 2)
                if cur.mn.startswith(('v_readlane', 'v_readfirstlane')) and pv & vv(cr): n = max(n, 1)
                if cur.mn.startswith('v_permlane') and pv & vv(cr): n = max(n, 2)
                if is_trans(prev) and not is_trans(cur) and pv & (vv(cr)): n = max(n, 1)
        if ps:
            if cur.cls == 'vmem' and ps & cr: n = max(n, 5)
            if cur.cls in ('valu', 'mfma') and ps & cr:
                n = max(n, 4 if cur.mn.startswith(('v_readlane', 'v_writelane')) else 2)
            if ('s', 'exec') in ps:
                if cur.cls == 'mfma': n = max(n, 4)
                if cur.cls == 'valu' and (cur.mn.startswith(('v_readlane', 'v_readfirstlane', 'v_writelane', 'v_permlane'))): n = max(n, 4)
                if cur.cls == 'valu' and ('dpp' in cur.mn or 'row_' in cur.mods): n = max(n, 5)
            if cur.cls == 'salu' and ps & cr: n = max(n, 1)
    if prev.cls == 'mfma':
        d = vv(pw); p = prev.passes
        if cur.cls == 'mfma':
            a = regs_of(cur.ops[1]) | regs_of(cur.ops[2]); c = regs_of(cur.ops[3])
            if d & a: n = max(n, {4: 8, 8: 12}[p])
            if d & c and not (c == d and cur.passes == p): n = max(n, {4: 6, 8: 10}[p])
            if d & vv(cw) and not (vv(cw) == d and c == d and cur.passes == p):
                n = max(n, {4: 6, 8: 10}[p])
        elif cur.cls in ('valu', 'ds', 'vmem'):
            if d & (vv(cr) | vv(cw)): n = max(n, {4: 8, 8: 12}[p])
        if cur.cls == 'valu':
            c = regs_of(prev.ops[3])
            if c & vv(cw): n = max(n, {4: 3, 8: 7}[p])
    if prev.cls == 'salu':
        if ('s', 'm0') in pw and cur.cls == 'vmem' and ('s', 'm0') in cr: n = max(n, 1)
        if ('s', 'exec') in pw and cur.cls == 'valu' and ('dpp' in cur.mn or 'row_' in cur.mods): n = max(n, 0)
    sd = store_data(prev)
    if sd:
        if cur.cls == 'valu' and sd & vv(cw): n = max(n, 2)
        elif sd & vv(cw): n = max(n, 1)
    return n

class Asm:
    def __init__(self):
        self.out = []
        self.vm = []
        self.lg = []
        self.nops = 0
        self.check = True

    def raw(self, text):
        i = Ins(); i.text = text; i.mn = ''; i.cls = 'none'; i.states = 0; i.ops = []; i.wr = set(); i.rd = set(); i.passes = 0; i.mods = ''
        self.out.append(i)

    def label(self, name):
        self.raw(name + ':')

    def comment(self, t):
        self.raw('    ; ' + t)

    def __call__(self, text, tag=None):
        for line in text.strip('\n').split('\n'):
            line = line.strip()
            if not line or line.startswith(';'):
                continue
            if line.endswith(':'):
                self.raw(line); continue
            self.emit(line, tag)

    def emit(self, line, tag=None):
        cur = parse(line)
        if self.check:
            dist = 0; req = 0
            for prev in reversed(self.out):
                if prev.cls == 'none':
                    continue
                r = need(prev, cur)
                if r > dist: req = max(req, r - dist)
                dist += prev.states
                if dist >= 12: break
            while req > 0:
                k = min(req, 16)
                nop = parse(f's_nop {k-1}'); nop.text = '    ' + nop.text
                self.out.append(nop); self.nops += 1; req -= k
        cur.text = '    ' + line
        self.out.append(cur)
        if cur.cls == 'vmem':
            self.vm.append(tag)
        elif cur.cls == 'ds':
            self.lg.append(tag)
        elif cur.mn == 's_waitcnt':
            m = re.search(r'vmcnt\((\d+)\)', line)
            if m:
                k = int(m.group(1)); self.vm = self.vm[len(self.vm) - k:] if k and k < len(self.vm) else (self.vm if k >= len(self.vm) and k else [])
            m = re.search(r'lgkmcnt\((\d+)\)', line)
            if m:
                k = int(m.group(1)); self.lg = self.lg[len(self.lg) - k:] if k and k < len(self.lg) else (self.lg if k >= len(self.lg) and k else [])

    def _count_after(self, lst, tags):
        if not isinstance(tags, (list, set)): tags = [tags]
        last = -1
        for i, t in enumerate(lst):
            if t in tags: last = i
        if last < 0: return None
        return len(lst) - 1 - last

    def wait_vm(self, tags, extra=''):
        n = self._count_after(self.vm, tags)
        if n is None: return
        self.emit(f's_waitcnt vmcnt({min(n, 63)})')

    def wait_lg(self, tags):
        n = self._count_after(self.lg, tags)
        if n is None: return
        self.emit(f's_waitcnt lgkmcnt({min(n, 15)})')

    def wait_all(self):
        self.emit('s_waitcnt vmcnt(0) lgkmcnt(0)')

    def reset_counters(self):
        self.vm = []; self.lg = []

    def text(self):
        return '\n'.join(i.text for i in self.out) + '\n'
```

```python
import sys
from asmlib import Asm

NAME = "gated_mix__sliding_block__mixer_channel_mlp__prompt"

WS_Y    = 0x0000000
WS_G    = 0x0280000
WS_QKV  = 0x0300000
WS_H    = 0x0B00000
WS_O    = 0x1200000
WS_WF   = 0x1500000
WS_FLAG = 0x1800000
WS_SIZE = 0x1900000
WF_TILE = 2368 * 160

P_AX, P_WQKV, P_WO, P_BX, P_W1, P_B1, P_W2, P_B2 = 4, 6, 8, 10, 12, 14, 16, 18
P_GW, P_OUT, P_DBG, P_WS = 20, 22, 24, 26
SRD_A, SRD_B, SRD_WS, SRD_C = 28, 32, 36, 40
S_W, S_IDX, S_X, S_I = 44, 45, 46, 47
T0, T1, T2, T3, T4, T5, T6, T7 = 48, 49, 50, 51, 52, 53, 54, 55
S_RB, S_CJ = 56, 57
S_KX, S_KW, S_M0 = 58, 59, 60
S_MASK = 64
S_NONCE = 96

SIZES = dict(AX=2048*640*2, WQKV=640*1920*2, WO=640*640*2, BX=2048*640*2, W1=640*1728*2, B1=1728*2,
             W2=1728*640*2, B2=640*2, GW=640*2, OUT=2048*640*2)

def srd(a, dst, ptr, size):
    a(f"s_mov_b32 s{dst}, s{ptr}")
    a(f"s_and_b32 s{dst+1}, s{ptr+1}, 0xffff")
    a(f"s_mov_b32 s{dst+2}, {size}")
    a(f"s_mov_b32 s{dst+3}, 0x20000")

def vr(b, n=1):
    return f"v{b}" if n == 1 else f"v[{b}:{b+n-1}]"

def prologue(a):
    a("s_load_dwordx16 s[4:19], s[0:1], 0")
    a("s_load_dwordx8 s[20:27], s[0:1], 64")
    a("v_lshrrev_b32 v2, 6, v0")
    a("v_and_b32 v1, 63, v0")
    a(f"v_readfirstlane_b32 s{S_W}, v2")
    a(f"s_and_b32 s{S_IDX}, s2, 255")
    a(f"s_and_b32 s{S_X}, s2, 7")
    a(f"s_lshr_b32 s{S_I}, s{S_IDX}, 3")
    a("s_waitcnt lgkmcnt(0)")
    srd(a, SRD_WS, P_WS, WS_SIZE)

def stage_qkv(a, lbl):
    XS = [0, 16384, 32768]
    WB = 49152
    a(f"s_lshr_b32 s{T0}, s{S_X}, 1")
    a(f"s_lshl_b32 s{T0}, s{T0}, 2")
    a(f"s_and_b32 s{T1}, s{S_I}, 3")
    a(f"s_add_u32 s{S_RB}, s{T0}, s{T1}")
    a(f"s_and_b32 s{T0}, s{S_X}, 1")
    a(f"s_lshl_b32 s{T0}, s{T0}, 3")
    a(f"s_lshr_b32 s{T1}, s{S_I}, 2")
    a(f"s_add_u32 s{S_CJ}, s{T0}, s{T1}")
    a(f"s_cmp_ge_u32 s{S_CJ}, 15")
    a(f"s_cbranch_scc1 {lbl}_skip")
    srd(a, SRD_A, P_AX, SIZES['AX'])
    srd(a, SRD_B, P_WQKV, SIZES['WQKV'])
    VXD, VWD = 2, 6
    VXF, VWF = 8, 12
    VT = 14
    FB = [20, 36]
    ACC = 64
    t0, t1, t2, t3 = VT, VT+1, VT+2, VT+3
    a(f"s_lshl_b32 s{T0}, s{S_RB}, 7")
    a(f"s_lshl_b32 s{T1}, s{S_W}, 5")
    a(f"s_add_u32 s{T0}, s{T0}, s{T1}")
    a(f"v_lshrrev_b32 v{t0}, 3, v1")
    a(f"v_add_u32 v{t0}, s{T0}, v{t0}")
    a(f"s_movk_i32 s{T2}, 1280")
    a(f"v_mul_lo_u32 v{t0}, v{t0}, s{T2}")
    a(f"v_lshrrev_b32 v{t1}, 4, v1")
    a(f"v_and_b32 v{t2}, 7, v1")
    a(f"v_xor_b32 v{t2}, v{t2}, v{t1}")
    a(f"v_xor_b32 v{t3}, 4, v{t2}")
    for i in range(4):
        src = t2 if i % 2 == 0 else t3
        a(f"v_lshl_add_u32 v{VXD+i}, v{src}, 4, v{t0}")
        if i:
            a(f"v_add_u32 v{VXD+i}, {i*(8*1280-1024)}, v{VXD+i}")
    a(f"s_lshl_b32 s{T0}, s{S_W}, 3")
    a(f"v_lshrrev_b32 v{t0}, 4, v1")
    a(f"v_add_u32 v{t1}, s{T0}, v{t0}")
    a(f"s_movk_i32 s{T2}, 3840")
    a(f"v_mul_lo_u32 v{t1}, v{t1}, s{T2}")
    a(f"v_bfe_u32 v{t2}, v1, 2, 2")
    a(f"v_xor_b32 v{t2}, v{t2}, v{t0}")
    a(f"v_and_b32 v{t3}, 3, v1")
    a(f"v_lshl_add_u32 v{t2}, v{t2}, 2, v{t3}")
    a(f"v_lshl_add_u32 v{t1}, v{t2}, 4, v{t1}")
    a(f"s_lshl_b32 s{T0}, s{S_CJ}, 8")
    a(f"v_add_u32 v{VWD}, s{T0}, v{t1}")
    a(f"v_add_u32 v{VWD+1}, {4*3840-1024}, v{VWD}")
    a(f"s_lshl_b32 s{T6}, s{S_W}, 12")
    a(f"s_lshl_b32 s{T7}, s{S_W}, 11")
    def dma_x(b):
        a(f"s_add_u32 m0, s{T6}, {XS[b % 3]}")
        a(f"s_movk_i32 s{S_KX}, {b*128}")
        for i in range(4):
            a(f"buffer_load_dwordx4 v{VXD+i}, s[{SRD_A}:{SRD_A+3}], s{S_KX} offen offset:{i*1024} lds", tag=('X', b))
    def dma_w(h):
        a(f"s_add_u32 m0, s{T7}, {WB + (h % 3)*8192}")
        a(f"s_mov_b32 s{S_KW}, {h*32*3840}")
        for i in range(2):
            a(f"buffer_load_dwordx4 v{VWD+i}, s[{SRD_B}:{SRD_B+3}], s{S_KW} offen offset:{i*1024} lds", tag=('W', h))
    dma_x(0); dma_w(0); dma_w(1); dma_x(1)
    a(f"s_and_b32 s{T0}, s{S_W}, 1")
    a(f"s_lshl_b32 s{T0}, s{T0}, 13")
    a(f"v_and_b32 v{t0}, 31, v1")
    a(f"v_lshrrev_b32 v{t1}, 5, v1")
    a(f"v_bfe_u32 v{t2}, v1, 1, 3")
    a(f"v_lshlrev_b32 v{t0}, 7, v{t0}")
    a(f"v_add_u32 v{t0}, s{T0}, v{t0}")
    for s in range(4):
        a(f"v_or_b32 v{t3}, {2*s}, v{t1}")
        a(f"v_xor_b32 v{t3}, v{t3}, v{t2}")
        a(f"v_lshl_add_u32 v{VXF+s}, v{t3}, 4, v{t0}")
    a(f"v_bfe_u32 v{t0}, v1, 2, 2")
    a(f"v_lshl_add_u32 v{t1}, v{t1}, 3, v{t0}")
    a(f"v_lshlrev_b32 v{t1}, 8, v{t1}")
    a(f"v_bfe_u32 v{t2}, v1, 4, 1")
    a(f"v_lshl_add_u32 v{t1}, v{t2}, 5, v{t1}")
    a(f"v_and_b32 v{t2}, 3, v1")
    a(f"v_lshl_add_u32 v{t1}, v{t2}, 3, v{t1}")
    a(f"v_add_u32 v{t1}, {WB}, v{t1}")
    a(f"s_and_b32 s{T0}, s{S_W}, 2")
    for ft in range(2):
        a(f"s_or_b32 s{T1}, s{T0}, {ft}")
        a(f"v_xor_b32 v{t2}, s{T1}, v{t0}")
        a(f"v_lshl_add_u32 v{VWF+ft}, v{t2}, 6, v{t1}")
    def rd_b(st, hh, sp, tt):
        xb = hh >> 1; sx = 2*(hh & 1) + sp
        a(f"ds_read_b128 {vr(FB[st]+4*tt,4)}, v{VXF+sx} offset:{XS[xb % 3] + tt*4096}", tag=('f', hh, sp))
    def rd_a(st, hh, sp, ft, rd):
        a(f"ds_read_b64_tr_b16 {vr(FB[st]+8+4*ft+2*rd,2)}, v{VWF+ft} offset:{(hh % 3)*8192 + sp*4096 + rd*1024}", tag=('f', hh, sp))
    def mf(st, tt, ft, first):
        d = vr(ACC+16*(2*tt+ft), 16)
        c = "0" if first else d
        a(f"v_mfma_f32_32x32x16_bf16 {d}, {vr(FB[st]+8+4*ft,4)}, {vr(FB[st]+4*tt,4)}, {c}")
    NH = 20
    for hh in range(NH):
        a.wait_vm([('W', hh), ('X', hh >> 1)])
        a("s_waitcnt lgkmcnt(0)")
        a("s_barrier")
        prev = hh > 0
        rd_b(0, hh, 0, 0); rd_a(0, hh, 0, 0, 0)
        if prev: mf(1, 0, 0, False)
        rd_a(0, hh, 0, 0, 1); rd_b(0, hh, 0, 1); rd_a(0, hh, 0, 1, 0)
        if prev: mf(1, 1, 0, False)
        rd_a(0, hh, 0, 1, 1)
        if hh + 2 < NH: dma_w(hh + 2)
        if prev: mf(1, 0, 1, False)
        if hh % 2 == 0 and hh // 2 + 2 < 10: dma_x(hh // 2 + 2)
        if prev: mf(1, 1, 1, False)
        first = hh == 0
        rd_b(1, hh, 1, 0); rd_a(1, hh, 1, 0, 0); rd_a(1, hh, 1, 0, 1)
        a(f"s_waitcnt lgkmcnt(6)")
        mf(0, 0, 0, first)
        rd_b(1, hh, 1, 1); rd_a(1, hh, 1, 1, 0); rd_a(1, hh, 1, 1, 1)
        a(f"s_waitcnt lgkmcnt(6)")
        mf(0, 1, 0, first); mf(0, 0, 1, first); mf(0, 1, 1, first)
    a("s_waitcnt lgkmcnt(0)")
    mf(1, 0, 0, False); mf(1, 1, 0, False); mf(1, 0, 1, False); mf(1, 1, 1, False)
    a(f"v_lshrrev_b32 v{t0}, 5, v1")
    a(f"s_lshr_b32 s{T0}, s{S_W}, 1")
    a(f"s_lshl_b32 s{T0}, s{T0}, 4")
    a(f"v_add_u32 v{t0}, s{T0}, v{t0}")
    a(f"v_lshlrev_b32 v{t0}, 14, v{t0}")
    a(f"s_and_b32 s{T0}, s{S_W}, 1")
    a(f"s_lshl_b32 s{T0}, s{T0}, 6")
    a(f"v_and_b32 v{t1}, 31, v1")
    a(f"v_add_u32 v{t1}, s{T0}, v{t1}")
    a(f"v_lshl_add_u32 v{t0}, v{t1}, 3, v{t0}")
    a(f"s_lshl_b32 s{T0}, s{S_CJ}, 19")
    a(f"s_lshl_b32 s{T1}, s{S_RB}, 10")
    a(f"s_add_u32 s{T0}, s{T0}, s{T1}")
    a(f"s_add_u32 s{T0}, s{T0}, {WS_QKV}")
    k = 0
    for ft in range(2):
        for j in range(4):
            a(f"s_add_u32 s{T1}, s{T0}, {(8*ft+2*j)*16384}")
            for tt in range(2):
                base = ACC + 16*(2*tt+ft) + 4*j
                d = FB[0] + 2*(k % 16); k += 1
                a(f"v_cvt_pk_bf16_f32 v{d}, v{base}, v{base+1}")
                a(f"v_cvt_pk_bf16_f32 v{d+1}, v{base+2}, v{base+3}")
                a(f"buffer_store_dwordx2 {vr(d,2)}, v{t0}, s[{SRD_WS}:{SRD_WS+3}], s{T1} offen offset:{tt*256} sc1")
    a.label(f"{lbl}_skip")
    a.reset_counters()

def kernel_text(name, body, grid, lds):
    s  = f".globl {name}\n.p2align 8\n.type {name},@function\n{name}:\n"
    s += body
    s += "    s_endpgm\n"
    return s

def descriptor(name, vgpr=256):
    return f""".amdhsa_kernel {name}
  .amdhsa_next_free_vgpr {vgpr}
  .amdhsa_next_free_sgpr 102
  .amdhsa_accum_offset {vgpr}
  .amdhsa_group_segment_fixed_size 0
  .amdhsa_kernarg_size 96
  .amdhsa_user_sgpr_count 2
  .amdhsa_user_sgpr_kernarg_segment_ptr 1
  .amdhsa_system_sgpr_workgroup_id_x 1
.end_amdhsa_kernel
"""

def dpp_sum16(a, v):
    for r in (8, 4, 2, 1):
        a(f"v_add_f32_dpp v{v}, v{v}, v{v} row_ror:{r} row_mask:0xf bank_mask:0xf")

def stage_ln(a, lbl):
    VO, VT = 2, 4
    X, F = 20, 40
    t0, t1, t2, t3, t4 = VT, VT+1, VT+2, VT+3, VT+4
    a(f"s_and_b32 s{T0}, s{S_W}, 1")
    a(f"s_lshl_b32 s{T0}, s{T0}, 2")
    a(f"s_lshl_b32 s{T1}, s{S_IDX}, 3")
    a(f"s_add_u32 s{T0}, s{T0}, s{T1}")
    a(f"v_lshrrev_b32 v{t0}, 4, v1")
    a(f"v_add_u32 v{t0}, s{T0}, v{t0}")
    a(f"v_and_b32 v{t1}, 15, v1")
    a(f"s_movk_i32 s{T2}, 1280")
    a(f"v_mul_lo_u32 v{VO}, v{t0}, s{T2}")
    a(f"v_lshl_add_u32 v{VO}, v{t1}, 4, v{VO}")
    a(f"s_cmp_ge_u32 s{S_W}, 2")
    a(f"s_cbranch_scc1 {lbl}_gate")
    srd(a, SRD_A, P_AX, SIZES['AX'])
    for i in range(5):
        a(f"buffer_load_dwordx4 {vr(X+4*i,4)}, v{VO}, s[{SRD_A}:{SRD_A+3}], 0 offen offset:{256*i}", tag='lnx')
    a(f"v_lshrrev_b32 v{t2}, 5, v{t0}")
    a(f"v_mul_u32_u24 v{t2}, 40, v{t2}")
    a(f"v_lshrrev_b32 v{t3}, 1, v{t1}")
    a(f"v_add_u32 v{t2}, v{t2}, v{t3}")
    a(f"v_lshlrev_b32 v{t2}, 10, v{t2}")
    a(f"v_and_b32 v{t3}, 1, v{t1}")
    a(f"v_lshl_add_u32 v{t2}, v{t3}, 9, v{t2}")
    a(f"v_and_b32 v{t3}, 31, v{t0}")
    a(f"v_lshl_add_u32 v{VO+1}, v{t3}, 4, v{t2}")
    a.wait_vm('lnx')
    for d in range(20):
        a(f"v_lshlrev_b32 v{F+2*d}, 16, v{X+d}")
        a(f"v_and_b32 v{F+2*d+1}, 0xffff0000, v{X+d}")
    for k in range(4):
        a(f"v_add_f32 v{t0+k}, v{F+k}, v{F+4+k}")
    for d in range(8, 40):
        a(f"v_add_f32 v{t0+(d%4)}, v{t0+(d%4)}, v{F+d}")
    a(f"v_add_f32 v{t0}, v{t0}, v{t1}")
    a(f"v_add_f32 v{t2}, v{t2}, v{t3}")
    a(f"v_add_f32 v{t0}, v{t0}, v{t2}")
    dpp_sum16(a, t0)
    a(f"v_mul_f32 v{t0}, 0x3acccccd, v{t0}")
    for d in range(40):
        a(f"v_sub_f32 v{F+d}, v{F+d}, v{t0}")
    for k in range(4):
        a(f"v_mul_f32 v{t0+k}, v{F+k}, v{F+k}")
    for d in range(4, 40):
        a(f"v_fmac_f32 v{t0+(d%4)}, v{F+d}, v{F+d}")
    a(f"v_add_f32 v{t0}, v{t0}, v{t1}")
    a(f"v_add_f32 v{t2}, v{t2}, v{t3}")
    a(f"v_add_f32 v{t0}, v{t0}, v{t2}")
    dpp_sum16(a, t0)
    a(f"v_mov_b32 v{t1}, 0x3727c5ac")
    a(f"v_fmac_f32 v{t1}, 0x3acccccd, v{t0}")
    a(f"v_rsq_f32 v{t1}, v{t1}")
    for d in range(40):
        a(f"v_mul_f32 v{F+d}, v{F+d}, v{t1}")
    for d in range(20):
        a(f"v_cvt_pk_bf16_f32 v{X+d}, v{F+2*d}, v{F+2*d+1}")
    for i in range(5):
        a(f"buffer_store_dwordx4 {vr(X+4*i,4)}, v{VO+1}, s[{SRD_WS}:{SRD_WS+3}], 0 offen sc1")
        if i < 4:
            a(f"v_add_u32 v{VO+1}, 8192, v{VO+1}")
    a(f"s_branch {lbl}_done")
    a.label(f"{lbl}_gate")
    a.reset_counters()
    srd(a, SRD_A, P_AX, SIZES['AX'])
    srd(a, SRD_B, P_GW, SIZES['GW'])
    G = 40
    a(f"v_lshlrev_b32 v{VO+1}, 4, v{t1}")
    for i in range(5):
        a(f"buffer_load_dwordx4 {vr(X+4*i,4)}, v{VO}, s[{SRD_A}:{SRD_A+3}], 0 offen offset:{256*i}", tag='gx')
        a(f"buffer_load_dwordx4 {vr(G+4*i,4)}, v{VO+1}, s[{SRD_B}:{SRD_B+3}], 0 offen offset:{256*i}", tag='gx')
    a(f"v_lshlrev_b32 v{t2}, 2, v{t0}")
    a(f"v_add_u32 v{t2}, {WS_G}, v{t2}")
    a(f"v_mov_b32 v{t3}, 0x7ffffff0")
    a(f"v_cmp_eq_u32 s[{T4}:{T4+1}], 0, v{t1}")
    a(f"v_cndmask_b32 v{VO}, v{t3}, v{t2}, s[{T4}:{T4+1}]")
    a(f"v_mov_b32 v{t0}, 0")
    a(f"v_mov_b32 v{t1}, 0")
    a.wait_vm('gx')
    U = 60
    for d in range(20):
        u = U + 4*(d % 4)
        a(f"v_lshlrev_b32 v{u}, 16, v{X+d}")
        a(f"v_lshlrev_b32 v{u+1}, 16, v{G+d}")
        a(f"v_and_b32 v{u+2}, 0xffff0000, v{X+d}")
        a(f"v_and_b32 v{u+3}, 0xffff0000, v{G+d}")
        a(f"v_fmac_f32 v{t0}, v{u}, v{u+1}")
        a(f"v_fmac_f32 v{t1}, v{u+2}, v{u+3}")
    a(f"v_add_f32 v{t0}, v{t0}, v{t1}")
    dpp_sum16(a, t0)
    a(f"v_mul_f32 v{t0}, 0xbfb8aa3b, v{t0}")
    a(f"v_exp_f32 v{t0}, v{t0}")
    a(f"v_add_f32 v{t0}, 1.0, v{t0}")
    a(f"v_rcp_f32 v{t0}, v{t0}")
    a(f"s_nop 0")
    a(f"buffer_store_dword v{t0}, v{VO}, s[{SRD_WS}:{SRD_WS+3}], 0 offen sc1")
    a.label(f"{lbl}_done")
    a.reset_counters()

def stage_repack(a, lbl):
    VT = 2
    t0, t1, t2, t3, t4, t5 = range(VT, VT+6)
    VS, VD, D = 8, 12, 16
    a(f"s_and_b32 s{T0}, s{S_IDX}, 7")
    a(f"s_lshr_b32 s{T1}, s{S_IDX}, 3")
    a(f"s_mul_i32 s{T2}, s{T0}, 160")
    a(f"s_mul_i32 s{T3}, s{T0}, {WF_TILE}")
    a(f"s_add_u32 s{T3}, s{T3}, {WS_WF}")
    a(f"s_movk_i32 s{T6}, 6554")
    a(f"s_movk_i32 s{T7}, 1280")
    a(f"s_cmp_ge_u32 s{T1}, 24")
    a(f"s_cbranch_scc1 {lbl}_wo")
    srd(a, SRD_A, P_W2, SIZES['W2'])
    a(f"s_mul_i32 s{T4}, s{T1}, 72")
    a(f"s_mul_i32 s{T5}, s{T4}, 160")
    a(f"s_add_u32 s{T3}, s{T3}, s{T5}")
    a(f"s_movk_i32 s{T5}, 720")
    for u in range(4):
        a(f"v_add_u32 v{t0}, {256*u}, v0")
        a(f"v_mul_u32_u24 v{t1}, s{T6}, v{t0}")
        a(f"v_lshrrev_b32 v{t1}, 16, v{t1}")
        a(f"v_mul_u32_u24 v{t2}, 10, v{t1}")
        a(f"v_sub_u32 v{t2}, v{t0}, v{t2}")
        a(f"v_add_u32 v{t1}, s{T4}, v{t1}")
        a(f"v_mul_lo_u32 v{t1}, v{t1}, s{T7}")
        a(f"v_lshl_add_u32 v{t1}, v{t2}, 4, v{t1}")
        a(f"v_add_u32 v{t1}, s{T2}, v{t1}")
        a(f"v_lshlrev_b32 v{t3}, 4, v{t0}")
        a(f"v_add_u32 v{t3}, s{T3}, v{t3}")
        a(f"v_mov_b32 v{t4}, 0x7ffffff0")
        a(f"v_cmp_gt_u32 vcc, s{T5}, v{t0}")
        a(f"v_cndmask_b32 v{VS+u}, v{t4}, v{t1}, vcc")
        a(f"v_cndmask_b32 v{VD+u}, v{t4}, v{t3}, vcc")
    a(f"s_branch {lbl}_go")
    a.label(f"{lbl}_wo")
    srd(a, SRD_A, P_WO, SIZES['WO'])
    a(f"s_sub_u32 s{T1}, s{T1}, 24")
    a(f"s_mul_i32 s{T4}, s{T1}, 80")
    a(f"s_add_u32 s{T5}, s{T4}, 1728")
    a(f"s_mul_i32 s{T5}, s{T5}, 160")
    a(f"s_add_u32 s{T3}, s{T3}, s{T5}")
    a(f"s_movk_i32 s{T5}, 800")
    for u in range(4):
        a(f"v_add_u32 v{t0}, {256*u}, v0")
        a(f"v_mul_u32_u24 v{t1}, s{T6}, v{t0}")
        a(f"v_lshrrev_b32 v{t1}, 16, v{t1}")
        a(f"v_mul_u32_u24 v{t2}, 10, v{t1}")
        a(f"v_sub_u32 v{t2}, v{t0}, v{t2}")
        a(f"v_add_u32 v{t1}, s{T4}, v{t1}")
        a(f"v_lshrrev_b32 v{t3}, 4, v{t1}")
        a(f"v_and_b32 v{t1}, 15, v{t1}")
        a(f"v_mul_u32_u24 v{t4}, 20, v{t3}")
        a(f"v_add_u32 v{t4}, v{t4}, v{t1}")
        a(f"v_subrev_u32 v{t5}, 32, v{t3}")
        a(f"v_lshlrev_b32 v{t5}, 2, v{t5}")
        a(f"v_bfe_u32 v{VS+u}, v{t1}, 2, 1")
        a(f"v_lshl_add_u32 v{t5}, v{VS+u}, 1, v{t5}")
        a(f"v_lshrrev_b32 v{VS+u}, 3, v{t1}")
        a(f"v_add_u32 v{t5}, v{t5}, v{VS+u}")
        a(f"v_mul_u32_u24 v{t5}, 20, v{t5}")
        a(f"v_and_b32 v{t1}, 3, v{t1}")
        a(f"v_add3_u32 v{t5}, v{t5}, v{t1}, 16")
        a(f"v_cmp_gt_u32 vcc, 32, v{t3}")
        a(f"v_cndmask_b32 v{t1}, v{t5}, v{t4}, vcc")
        a(f"v_mul_lo_u32 v{t1}, v{t1}, s{T7}")
        a(f"v_lshl_add_u32 v{t1}, v{t2}, 4, v{t1}")
        a(f"v_add_u32 v{t1}, s{T2}, v{t1}")
        a(f"v_lshlrev_b32 v{t3}, 4, v{t0}")
        a(f"v_add_u32 v{t3}, s{T3}, v{t3}")
        a(f"v_mov_b32 v{t4}, 0x7ffffff0")
        a(f"v_cmp_gt_u32 vcc, s{T5}, v{t0}")
        a(f"v_cndmask_b32 v{VS+u}, v{t4}, v{t1}, vcc")
        a(f"v_cndmask_b32 v{VD+u}, v{t4}, v{t3}, vcc")
    a.label(f"{lbl}_go")
    for u in range(4):
        a(f"buffer_load_dwordx4 {vr(D+4*u,4)}, v{VS+u}, s[{SRD_A}:{SRD_A+3}], 0 offen", tag=('rp', u))
    for u in range(4):
        a.wait_vm(('rp', u))
        a(f"buffer_store_dwordx4 {vr(D+4*u,4)}, v{VD+u}, s[{SRD_WS}:{SRD_WS+3}], 0 offen sc1")
    a.reset_counters()

def stage_ffn1(a, lbl):
    a(f"s_lshr_b32 s{T0}, s{S_X}, 1")
    a(f"s_lshl_b32 s{T0}, s{T0}, 2")
    a(f"s_and_b32 s{T1}, s{S_I}, 3")
    a(f"s_add_u32 s{S_RB}, s{T0}, s{T1}")
    a(f"s_and_b32 s{T0}, s{S_X}, 1")
    a(f"s_mul_i32 s{T0}, s{T0}, 7")
    a(f"s_lshr_b32 s{T1}, s{S_I}, 2")
    a(f"s_add_u32 s{S_CJ}, s{T0}, s{T1}")
    a(f"s_cmp_ge_u32 s{T1}, 7")
    a(f"s_cbranch_scc1 {lbl}_skip")
    srd(a, SRD_A, P_B1, SIZES['B1'])
    srd(a, SRD_B, P_W1, SIZES['W1'])
    VWD, VWF, VY, VT = 2, 6, 10, 12
    AS = [20, 36, 52]
    ACC = 68
    YR = 132; NY = 16; YD = 12
    t0, t1, t2, t3 = VT, VT+1, VT+2, VT+3
    a(f"s_lshl_b32 s{T0}, s{S_W}, 4")
    a(f"v_lshrrev_b32 v{t0}, 4, v1")
    a(f"v_add_u32 v{t1}, s{T0}, v{t0}")
    a(f"s_movk_i32 s{T2}, 3456")
    a(f"v_mul_lo_u32 v{t1}, v{t1}, s{T2}")
    a(f"v_bfe_u32 v{t2}, v1, 2, 2")
    a(f"v_xor_b32 v{t2}, v{t2}, v{t0}")
    a(f"v_and_b32 v{t3}, 3, v1")
    a(f"v_lshl_add_u32 v{t2}, v{t2}, 2, v{t3}")
    a(f"v_lshl_add_u32 v{t1}, v{t2}, 4, v{t1}")
    a(f"s_lshl_b32 s{T0}, s{S_CJ}, 8")
    a(f"v_add_u32 v{VWD}, s{T0}, v{t1}")
    for i in range(1, 4):
        a(f"v_add_u32 v{VWD+i}, {i*(4*3456-1024)}, v{VWD}")
    a(f"s_lshl_b32 s{T6}, s{S_W}, 12")
    def dma_w(b):
        a(f"s_add_u32 m0, s{T6}, {(b % 4)*16384}")
        a(f"s_mov_b32 s{S_KW}, {b*64*3456}")
        for i in range(4):
            a(f"buffer_load_dwordx4 v{VWD+i}, s[{SRD_B}:{SRD_B+3}], s{S_KW} offen offset:{i*1024} lds", tag=('W', b))
    dma_w(0)
    a(f"v_lshrrev_b32 v{t0}, 5, v1")
    a(f"v_lshlrev_b32 v{t1}, 3, v{t0}")
    a(f"s_lshl_b32 s{T0}, s{S_CJ}, 8")
    a(f"v_add_u32 v{t1}, s{T0}, v{t1}")
    for T in range(4):
        for j in range(4):
            a(f"buffer_load_dwordx2 {vr(AS[0]+2*(4*T+j),2)}, v{t1}, s[{SRD_A}:{SRD_A+3}], 0 offen offset:{64*T+16*j}", tag='bias')
    dma_w(1); dma_w(2)
    a(f"s_lshl_b32 s{T0}, s{S_RB}, 2")
    a(f"s_add_u32 s{T0}, s{T0}, s{S_W}")
    a(f"s_mul_i32 s{T1}, s{T0}, {40*1024}")
    a(f"s_add_u32 s{S_KX}, s{T1}, {WS_Y}")
    a(f"v_lshlrev_b32 v{VY}, 4, v1")
    def ld_y(s):
        if s % 4 == 0 and s > 0:
            a(f"s_add_u32 s{S_KX}, s{S_KX}, 4096")
        a(f"buffer_load_dwordx4 {vr(YR+4*(s % NY),4)}, v{VY}, s[{SRD_WS}:{SRD_WS+3}], s{S_KX} offen offset:{(s % 4)*1024} sc1", tag=('Y', s))
    for s in range(YD): ld_y(s)
    a(f"v_bfe_u32 v{t2}, v1, 2, 2")
    a(f"v_lshl_add_u32 v{t1}, v{t0}, 3, v{t2}")
    a(f"v_lshlrev_b32 v{t1}, 8, v{t1}")
    a(f"v_bfe_u32 v{t3}, v1, 4, 1")
    a(f"v_lshl_add_u32 v{t1}, v{t3}, 5, v{t1}")
    a(f"v_and_b32 v{t3}, 3, v1")
    a(f"v_lshl_add_u32 v{t1}, v{t3}, 3, v{t1}")
    for ft in range(4):
        a(f"v_xor_b32 v{t3}, {ft}, v{t2}")
        a(f"v_lshl_add_u32 v{VWF+ft}, v{t3}, 6, v{t1}")
    a.wait_vm('bias')
    for T in range(4):
        for j in range(4):
            s_ = AS[0] + 2*(4*T+j); d = ACC + 16*T + 4*j
            a(f"v_lshlrev_b32 v{d}, 16, v{s_}")
            a(f"v_and_b32 v{d+1}, 0xffff0000, v{s_}")
            a(f"v_lshlrev_b32 v{d+2}, 16, v{s_+1}")
            a(f"v_and_b32 v{d+3}, 0xffff0000, v{s_+1}")
    def rd_a(s, ft, rd):
        b = s >> 2; u = s & 3
        a(f"ds_read_b64_tr_b16 {vr(AS[s % 3]+4*ft+2*rd,2)}, v{VWF+ft} offset:{(b % 4)*16384 + u*4096 + rd*1024}", tag=('A', s, ft))
    a.wait_vm(('W', 0))
    a("s_barrier")
    for s in range(2):
        for ft in range(4):
            rd_a(s, ft, 0); rd_a(s, ft, 1)
    NS = 40
    for s in range(NS):
        b = s >> 2; u = s & 3
        if u == 2 and b + 1 < 10:
            a.wait_vm(('W', b + 1))
            a("s_barrier")
            if b + 3 < 10: dma_w(b + 3)
        a.wait_vm(('Y', s))
        for ft in range(4):
            a.wait_lg(('A', s, ft))
            d = vr(ACC+16*ft, 16)
            a(f"v_mfma_f32_32x32x16_bf16 {d}, {vr(AS[s % 3]+4*ft,4)}, {vr(YR+4*(s % NY),4)}, {d}")
            if s + 2 < NS:
                rd_a(s + 2, ft, 0); rd_a(s + 2, ft, 1)
            if ft == 1 and s + YD < NS:
                ld_y(s + YD)
    C0, C1 = 2, 3
    a(f"v_mov_b32 v{C0}, 0xc0135761")
    a(f"v_mov_b32 v{C1}, 0xbdd2d3e8")
    a(f"s_lshl_b32 s{T0}, s{S_RB}, 2")
    a(f"s_add_u32 s{T0}, s{T0}, s{S_W}")
    a(f"s_mul_i32 s{T0}, s{T0}, 108")
    a(f"s_lshl_b32 s{T1}, s{S_CJ}, 3")
    a(f"s_add_u32 s{T0}, s{T0}, s{T1}")
    a(f"s_lshl_b32 s{T0}, s{T0}, 10")
    a(f"s_add_u32 s{T0}, s{T0}, {WS_H}")
    a(f"s_add_u32 s{T1}, s{T0}, 4096")
    TU, TE = 20, 28
    k = 0
    for T in range(4):
        if T == 2:
            a(f"s_cmp_eq_u32 s{S_CJ}, 13")
            a(f"s_cbranch_scc1 {lbl}_skip")
        for jj in range(2):
            x = ACC + 16*T + 8*jj
            for e in range(8): a(f"v_mul_f32 v{TU+e}, v{x+e}, v{x+e}")
            for e in range(8): a(f"v_fma_f32 v{TU+e}, v{TU+e}, v{C1}, v{C0}")
            for e in range(8): a(f"v_mul_f32 v{TU+e}, v{TU+e}, v{x+e}")
            for e in range(8): a(f"v_exp_f32 v{TE+e}, v{TU+e}")
            for e in range(8): a(f"v_add_f32 v{TE+e}, 1.0, v{TE+e}")
            for e in range(8): a(f"v_rcp_f32 v{TE+e}, v{TE+e}")
            for e in range(8): a(f"v_mul_f32 v{TE+e}, v{TE+e}, v{x+e}")
            d = 40 + 4*(k % 4); k += 1
            for e in range(4): a(f"v_cvt_pk_bf16_f32 v{d+e}, v{TE+2*e}, v{TE+2*e+1}")
            so = T0 if T < 2 else T1
            a(f"buffer_store_dwordx4 {vr(d,4)}, v{VY}, s[{SRD_WS}:{SRD_WS+3}], s{so} offen offset:{((2*T+jj) % 4)*1024} sc1")
    a.label(f"{lbl}_skip")
    a.reset_counters()

PST = 3104
LK, LV, LONES = 0, 10*PST, 20*PST
def stage_attn(a, lbl):
    a(f"s_lshl_b32 s{T0}, s{S_X}, 1")
    a(f"s_and_b32 s{T1}, s{S_I}, 1")
    a(f"s_add_u32 s{S_CJ}, s{T0}, s{T1}")
    a(f"s_lshr_b32 s{S_RB}, s{S_I}, 1")
    HP = S_CJ
    VD, VK, VV, VT = 2, 3, 4, 6
    t0, t1, t2, t3, t4 = VT, VT+1, VT+2, VT+3, VT+4
    MK = 12
    Q0, Q1 = 20, 24
    KF = [28, 36]
    VF = [44, 48, 52, 56]
    PF = [60, 64, 68, 72]
    OA = 76
    LO = 92
    CS, NM = 96, 97
    MX = 98
    S = 104
    QH = 248
    a(f"s_sub_u32 s{T0}, s{S_RB}, 2")
    a(f"s_lshl_b32 s{T0}, s{T0}, 7")
    a(f"s_mul_i32 s{T1}, s{S_W}, 96")
    a(f"s_add_u32 s{T0}, s{T0}, s{T1}")
    a(f"v_lshlrev_b32 v{t0}, 1, v1")
    a(f"v_add_u32 v{t0}, s{T0}, v{t0}")
    a(f"v_lshlrev_b32 v{t1}, 3, v{t0}")
    a(f"v_mov_b32 v{t2}, 0x7ffffff0")
    a(f"v_cmp_le_i32 s[{T4}:{T4+1}], 0, v{t0}")
    a(f"v_cndmask_b32 v{VD}, v{t2}, v{t1}, s[{T4}:{T4+1}]")
    a(f"s_mul_i32 s{T2}, s{HP}, {10*16384}")
    a(f"s_add_u32 s{T2}, s{T2}, {WS_QKV + 160*16384}")
    a(f"s_mul_i32 s{T3}, s{S_W}, 768")
    a("s_mov_b32 exec_hi, 0xffff")
    for ty in range(2):
        for p in range(10):
            a(f"s_add_u32 m0, s{T3}, {(LK if ty == 0 else LV) + p*PST}")
            a(f"s_add_u32 s{S_KX}, s{T2}, {(ty*160 + p)*16384}")
            a(f"buffer_load_dwordx4 v{VD}, s[{SRD_WS}:{SRD_WS+3}], s{S_KX} offen sc1 lds", tag=('kv', ty))
    a("s_mov_b32 exec_hi, -1")
    a(f"s_lshl_b32 s{T0}, s{S_RB}, 2")
    a(f"s_add_u32 s{T0}, s{T0}, s{S_W}")
    S_QB = 61
    a(f"s_mov_b32 s{S_QB}, s{T0}")
    a(f"v_and_b32 v{t0}, 31, v1")
    a(f"v_lshrrev_b32 v{t1}, 5, v1")
    a(f"s_lshl_b32 s{T1}, s{T0}, 8")
    a(f"v_lshlrev_b32 v{t2}, 3, v{t0}")
    a(f"v_add_u32 v{t2}, s{T1}, v{t2}")
    a(f"v_lshl_add_u32 v{t3}, v{t1}, 15, v{t2}")
    a(f"s_mul_i32 s{T2}, s{HP}, {10*16384}")
    a(f"s_add_u32 s{T2}, s{T2}, {WS_QKV}")
    QR = [Q0, QH]
    for hh in range(2):
        q0 = Q0 if hh == 0 else QH
        q1 = Q1 if hh == 0 else QH + 4
        a(f"s_add_u32 s{T1}, s{T2}, {hh*5*16384}")
        a(f"buffer_load_dwordx2 {vr(q0,2)}, v{t3}, s[{SRD_WS}:{SRD_WS+3}], s{T1} offen sc1", tag='q')
        a(f"s_add_u32 s{T1}, s{T1}, 16384")
        a(f"buffer_load_dwordx2 {vr(q0+2,2)}, v{t3}, s[{SRD_WS}:{SRD_WS+3}], s{T1} offen sc1", tag='q')
        a(f"s_add_u32 s{T1}, s{T1}, {3*16384}")
        a(f"buffer_load_dwordx2 {vr(q1,2)}, v{t2}, s[{SRD_WS}:{SRD_WS+3}], s{T1} offen sc1", tag='q')
    a(f"v_mov_b32 v{KF[0]}, 0x3f803f80")
    for r in range(1, 4): a(f"v_mov_b32 v{KF[0]+r}, 0x3f803f80")
    a(f"v_lshlrev_b32 v{t4}, 4, v0")
    a(f"v_add_u32 v{t4}, {LONES}, v{t4}")
    a(f"v_cmp_gt_u32 vcc, 208, v0")
    a(f"s_and_saveexec_b64 s[{T4}:{T4+1}], vcc")
    a(f"ds_write_b128 v{t4}, {vr(KF[0],4)}")
    a(f"s_mov_b64 exec, s[{T4}:{T4+1}]")
    a(f"v_lshlrev_b32 v{t2}, 2, v{t1}")
    a(f"v_sub_u32 v{t2}, v{t0}, v{t2}")
    for r in range(16):
        a(f"v_cmp_le_i32 s[{S_MASK+2*r}:{S_MASK+2*r+1}], {8*(r >> 2) + (r & 3)}, v{t2}")
    a(f"v_mov_b32 v{t3}, 0xffff")
    a(f"v_mov_b32 v{t4}, 0xffff0000")
    for q in range(8):
        a(f"v_cndmask_b32 v{MK+q}, 0, v{t3}, s[{S_MASK+4*q}:{S_MASK+4*q+1}]")
        a(f"v_cndmask_b32 v{KF[1]}, 0, v{t4}, s[{S_MASK+4*q+2}:{S_MASK+4*q+3}]")
        a(f"v_or_b32 v{MK+q}, v{MK+q}, v{KF[1]}")
    a(f"s_lshl_b32 s{T0}, s{S_W}, 8")
    a(f"v_lshlrev_b32 v{t2}, 3, v{t0}")
    a(f"v_add_u32 v{t2}, s{T0}, v{t2}")
    a(f"s_movk_i32 s{T1}, {2*PST}")
    a(f"v_mul_lo_u32 v{t3}, v{t1}, s{T1}")
    a(f"v_add_u32 v{VK}, v{t2}, v{t3}")
    VKX = 11
    a(f"v_add_u32 v{VKX}, {4*PST}, v{t2}")
    a(f"v_bfe_u32 v{t2}, v1, 4, 1")
    a(f"v_and_b32 v{t3}, 3, v1")
    a(f"v_lshl_add_u32 v{t2}, v{t2}, 2, v{t3}")
    a(f"v_bfe_u32 v{t3}, v1, 2, 2")
    a(f"v_lshl_add_u32 v{t3}, v{t1}, 2, v{t3}")
    a(f"v_lshlrev_b32 v{t3}, 3, v{t3}")
    a(f"v_add_u32 v{t3}, s{T0}, v{t3}")
    a(f"s_movk_i32 s{T1}, {PST}")
    a(f"v_mul_lo_u32 v{t4}, v{t2}, s{T1}")
    a(f"v_cmp_gt_u32 s[{T4}:{T4+1}], 5, v{t2}")
    for hh in range(2):
        vb = LV + hh*5*PST
        a(f"v_lshlrev_b32 v{KF[0]}, 5, v{t2}")
        a(f"v_add_u32 v{KF[0]}, {(vb - LONES) % 256}, v{KF[0]}")
        a(f"v_and_b32 v{KF[0]}, 255, v{KF[0]}")
        a(f"v_add_u32 v{KF[0]}, {LONES}, v{KF[0]}")
        a(f"v_add_u32 v{KF[0]+1}, {vb}, v{t4}")
        a(f"v_cndmask_b32 v{KF[0]}, v{KF[0]}, v{KF[0]+1}, s[{T4}:{T4+1}]")
        a(f"v_add_u32 v{VV+hh}, v{KF[0]}, v{t3}")
    a(f"v_mov_b32 v{CS}, 0x3ea52b5c")
    for st in range(2):
        a(f"v_mov_b32 v{KF[st]+6}, 0"); a(f"v_mov_b32 v{KF[st]+7}, 0")
    a(f"v_mov_b32 v{Q1+2}, 0"); a(f"v_mov_b32 v{Q1+3}, 0")
    a.wait_vm('q')
    a(f"v_cmp_gt_u32 s[{T4}:{T4+1}], 32, v1")
    for q in (Q1, Q1+1, QH+4, QH+5):
        a(f"v_cndmask_b32 v{q}, 0, v{q}, s[{T4}:{T4+1}]")
    a("s_waitcnt vmcnt(0) lgkmcnt(0)")
    a("s_barrier")
    a.reset_counters()
    NEG = 0xf149f2ca
    for hh in range(2):
        if hh == 1:
            for r in range(4): a(f"v_mov_b32 v{Q0+r}, v{QH+r}")
            a(f"v_mov_b32 v{Q1}, v{QH+4}"); a(f"v_mov_b32 v{Q1+1}, v{QH+5}")
        ko = hh*5*PST
        def rd_k(tl):
            st = KF[tl % 2]
            a(f"ds_read_b64 {vr(st,2)}, v{VK} offset:{ko + tl*256}", tag=('k', tl))
            a(f"ds_read_b64 {vr(st+2,2)}, v{VK} offset:{ko + PST + tl*256}", tag=('k', tl))
            a(f"ds_read_b64 {vr(st+4,2)}, v{VKX} offset:{ko + tl*256}", tag=('k', tl))
        rd_k(0)
        for tl in range(9):
            if tl + 1 < 9: rd_k(tl + 1)
            a.wait_lg(('k', tl))
            st = KF[tl % 2]; d = vr(S+16*tl, 16)
            a(f"v_mfma_f32_32x32x16_bf16 {d}, {vr(st,4)}, {vr(Q0,4)}, 0")
            a(f"v_mfma_f32_32x32x16_bf16 {d}, {vr(st+4,4)}, {vr(Q1,4)}, {d}")
        a(f"s_cmp_ge_u32 s{S_QB}, 8")
        a(f"s_cbranch_scc1 {lbl}_full{hh}")
        for tl in range(8):
            a(f"s_cmp_ge_u32 s{S_QB}, {8-tl}")
            a(f"s_cbranch_scc1 {lbl}_full{hh}")
            a("s_nop 7"); a("s_nop 7")
            for r in range(16): a(f"v_mov_b32 v{S+16*tl+r}, {hex(NEG)}")
        a.label(f"{lbl}_full{hh}")
        a("s_nop 7"); a("s_nop 3")
        for r in range(16):
            a(f"v_cndmask_b32 v{S+r}, v{S+r}, v{S+128+r}, s[{S_MASK+2*r}:{S_MASK+2*r+1}]")
        for c in range(4):
            a(f"v_max3_f32 v{MX+c}, v{S+32*c}, v{S+32*c+1}, v{S+32*c+2}")
        for k in range(3, 31, 2):
            for c in range(4):
                a(f"v_max3_f32 v{MX+c}, v{MX+c}, v{S+32*c+k}, v{S+32*c+k+1}")
        for c in range(4):
            a(f"v_max_f32 v{MX+c}, v{MX+c}, v{S+32*c+31}")
        a(f"v_max3_f32 v{MX}, v{MX}, v{MX+1}, v{MX+2}")
        a(f"v_max_f32 v{MX}, v{MX}, v{MX+3}")
        a(f"v_mov_b32 v{MX+1}, v{MX}")
        a(f"v_permlane32_swap_b32 v{MX}, v{MX+1}")
        a(f"v_max_f32 v{MX}, v{MX}, v{MX+1}")
        a(f"v_mul_f32 v{NM}, v{CS}, v{MX}")
        a(f"v_sub_f32 v{NM}, 0, v{NM}")
        def rd_v(tl, kk, slot):
            for rd in range(2):
                a(f"ds_read_b64_tr_b16 {vr(VF[slot]+2*rd,2)}, v{VV+hh} offset:{tl*256 + kk*128 + rd*64}", tag=('v', tl, kk))
        seq = [(1 + q // 2, q % 2) for q in range(14)]
        nv = 0
        vq = []
        def next_v(tl, kk):
            nonlocal nv
            slot = nv % 4; nv += 1
            rd_v(tl, kk, slot); return slot
        first = True
        pslot = 0
        def softmax_frag(src):
            nonlocal pslot
            p = PF[pslot % 4]; pslot += 1
            for e in range(8): a(f"v_fma_f32 v{src+e}, v{src+e}, v{CS}, v{NM}")
            for e in range(8): a(f"v_exp_f32 v{src+e}, v{src+e}")
            for e in range(4): a(f"v_cvt_pk_bf16_f32 v{p+e}, v{src+2*e}, v{src+2*e+1}")
            return p
        def pv(p, slot, tag):
            nonlocal first
            a.wait_lg(tag)
            c = "0" if first else vr(OA,16)
            a(f"v_mfma_f32_32x32x16_bf16 {vr(OA,16)}, {vr(VF[slot],4)}, {vr(p,4)}, {c}")
            first = False
        for (tl, kk) in seq:
            slot = next_v(tl, kk)
            p = softmax_frag(S + 16*tl + 8*kk)
            pv(p, slot, ('v', tl, kk))
        for kk in range(2):
            s0 = next_v(0, kk); s8 = next_v(8, kk)
            p = softmax_frag(S + 8*kk)
            p8 = PF[pslot % 4]; pslot += 1
            for e in range(4):
                a(f"v_and_b32 v{p8+e}, v{p+e}, v{MK+4*kk+e}")
            for e in range(4):
                a(f"v_xor_b32 v{p+e}, v{p+e}, v{p8+e}")
            pv(p, s0, ('v', 0, kk))
            pv(p8, s8, ('v', 8, kk))
        a(f"v_rcp_f32 v{NM}, v{OA+12}")
        for r in range(12): a(f"v_mul_f32 v{OA+r}, v{OA+r}, v{NM}")
        for e in range(4): a(f"v_cvt_pk_bf16_f32 v{PF[0]+e}, v{OA+2*e}, v{OA+2*e+1}")
        a(f"v_cvt_pk_bf16_f32 v{LO+2*hh}, v{OA+8}, v{OA+9}")
        a(f"v_cvt_pk_bf16_f32 v{LO+2*hh+1}, v{OA+10}, v{OA+11}")
        a(f"s_mul_i32 s{T0}, s{S_QB}, 40")
        a(f"s_lshl_b32 s{T1}, s{HP}, 1")
        a(f"s_add_u32 s{T1}, s{T1}, {hh}")
        a(f"s_add_u32 s{T0}, s{T0}, s{T1}")
        a(f"s_lshl_b32 s{T0}, s{T0}, 10")
        a(f"s_add_u32 s{T0}, s{T0}, {WS_O}")
        a(f"v_lshlrev_b32 v{t0}, 4, v1")
        a(f"buffer_store_dwordx4 {vr(PF[0],4)}, v{t0}, s[{SRD_WS}:{SRD_WS+3}], s{T0} offen sc1")
    a(f"s_mul_i32 s{T0}, s{S_QB}, 40")
    a(f"s_lshr_b32 s{T1}, s{HP}, 1")
    a(f"s_add_u32 s{T0}, s{T0}, s{T1}")
    a(f"s_add_u32 s{T0}, s{T0}, 32")
    a(f"s_lshl_b32 s{T0}, s{T0}, 10")
    a(f"s_and_b32 s{T1}, s{HP}, 1")
    a(f"s_lshl_b32 s{T1}, s{T1}, 9")
    a(f"s_add_u32 s{T0}, s{T0}, s{T1}")
    a(f"s_add_u32 s{T0}, s{T0}, {WS_O}")
    a("s_mov_b32 exec_hi, 0")
    a(f"buffer_store_dwordx4 {vr(LO,4)}, v{t0}, s[{SRD_WS}:{SRD_WS+3}], s{T0} offen sc1")
    a("s_mov_b32 exec_hi, -1")
    a.reset_counters()

def stage_final(a, lbl):
    a(f"s_lshr_b32 s{T0}, s{S_X}, 1")
    a(f"s_lshl_b32 s{T0}, s{T0}, 3")
    a(f"s_and_b32 s{T1}, s{S_I}, 7")
    a(f"s_add_u32 s{S_RB}, s{T0}, s{T1}")
    a(f"s_and_b32 s{T0}, s{S_X}, 1")
    a(f"s_lshl_b32 s{T0}, s{T0}, 2")
    a(f"s_lshr_b32 s{T1}, s{S_I}, 3")
    a(f"s_add_u32 s{S_CJ}, s{T0}, s{T1}")
    srd(a, SRD_A, P_B2, SIZES['B2'])
    srd(a, SRD_B, P_OUT, SIZES['OUT'])
    VW, VA, VB, VT = 2, 3, 4, 6
    t0, t1, t2, t3 = VT, VT+1, VT+2, VT+3
    VG = 10
    AS = [20, 40, 60]
    ACB, ACA = 80, 100
    TR = 120; NT = 24; TD = 16
    NSTEP = 74; HS = 54
    STG = 20480
    a(f"v_lshlrev_b32 v{VW}, 4, v1")
    a(f"s_mul_i32 s{T0}, s{S_CJ}, {WF_TILE}")
    a(f"s_mul_i32 s{T6}, s{S_W}, 5120")
    a(f"s_add_u32 s{T0}, s{T0}, s{T6}")
    a(f"s_add_u32 s{T7}, s{T0}, {WS_WF}")
    def dma_w(g):
        if 4*g + 3 >= NSTEP:
            pass
        a(f"s_add_u32 m0, s{T6}, {(g % 3)*STG}")
        a(f"s_add_u32 s{S_KW}, s{T7}, {g*STG}")
        for n in range(4):
            a(f"buffer_load_dwordx4 v{VW}, s[{SRD_WS}:{SRD_WS+3}], s{S_KW} offen offset:{n*1024} sc1 lds", tag=('W', g))
        a(f"s_add_u32 m0, m0, 4096")
        a(f"s_add_u32 s{S_KW}, s{S_KW}, 4096")
        a(f"buffer_load_dwordx4 v{VW}, s[{SRD_WS}:{SRD_WS+3}], s{S_KW} offen sc1 lds", tag=('W', g))
    dma_w(0)
    a(f"v_lshrrev_b32 v{t0}, 4, v1")
    a(f"v_lshlrev_b32 v{t1}, 3, v{t0}")
    a(f"s_mul_i32 s{T0}, s{S_CJ}, 160")
    a(f"v_add_u32 v{t1}, s{T0}, v{t1}")
    for F in range(5):
        a(f"buffer_load_dwordx2 {vr(AS[0]+2*F,2)}, v{t1}, s[{SRD_A}:{SRD_A+3}], 0 offen offset:{32*F}", tag='bias')
    dma_w(1)
    a(f"v_lshrrev_b32 v{t1}, 5, v1")
    a(f"v_bfe_u32 v{t2}, v1, 4, 1")
    a(f"v_lshlrev_b32 v{t1}, 10, v{t1}")
    a(f"v_lshl_add_u32 v{t1}, v{t2}, 9, v{t1}")
    a(f"v_and_b32 v{t2}, 15, v1")
    a(f"s_and_b32 s{T0}, s{S_W}, 1")
    a(f"s_lshl_b32 s{T0}, s{T0}, 4")
    a(f"v_add_u32 v{t3}, s{T0}, v{t2}")
    a(f"v_lshl_add_u32 v{VB}, v{t3}, 4, v{t1}")
    a(f"s_lshl_b32 s{T0}, s{S_RB}, 1")
    a(f"s_lshr_b32 s{T1}, s{S_W}, 1")
    a(f"s_add_u32 s{T0}, s{T0}, s{T1}")
    S_HB, S_OB = 62, 63
    a(f"s_mul_i32 s{T1}, s{T0}, {108*1024}")
    a(f"s_add_u32 s{S_HB}, s{T1}, {WS_H}")
    a(f"s_mul_i32 s{T1}, s{T0}, {40*1024}")
    a(f"s_add_u32 s{S_OB}, s{T1}, {WS_O}")
    def ld_t(s):
        if s < HS: sb, k = S_HB, s
        else: sb, k = S_OB, s - HS
        if k % 2 == 0 and k > 0:
            a(f"s_add_u32 s{sb}, s{sb}, 4096")
        a(f"buffer_load_dwordx4 {vr(TR+4*(s % NT),4)}, v{VB}, s[{SRD_WS}:{SRD_WS+3}], s{sb} offen offset:{(k % 2)*2048} sc1", tag=('T', s))
    for s in range(TD): ld_t(s)
    a(f"s_lshl_b32 s{T0}, s{S_RB}, 6")
    a(f"s_lshl_b32 s{T1}, s{S_W}, 4")
    a(f"s_add_u32 s{T0}, s{T0}, s{T1}")
    a(f"v_add_u32 v{t2}, s{T0}, v{t2}")
    a(f"v_lshlrev_b32 v{t3}, 2, v{t2}")
    a(f"v_add_u32 v{t3}, {WS_G}, v{t3}")
    a(f"buffer_load_dword v{VG}, v{t3}, s[{SRD_WS}:{SRD_WS+3}], 0 offen sc1", tag='g')
    a(f"s_movk_i32 s{T1}, 1280")
    a(f"v_mul_lo_u32 v{t2}, v{t2}, s{T1}")
    a(f"s_mul_i32 s{T0}, s{S_CJ}, 160")
    a(f"v_lshl_add_u32 v{t2}, v{t0}, 3, v{t2}")
    VO = 11
    a(f"v_add_u32 v{VO}, s{T0}, v{t2}")
    a(f"v_lshrrev_b32 v{t1}, 5, v1")
    a(f"v_bfe_u32 v{t2}, v1, 4, 1")
    a(f"v_lshlrev_b32 v{t1}, 4, v{t1}")
    a(f"v_lshl_add_u32 v{t1}, v{t2}, 2, v{t1}")
    a(f"v_bfe_u32 v{t2}, v1, 2, 2")
    a(f"v_add_u32 v{t1}, v{t1}, v{t2}")
    a(f"v_mul_u32_u24 v{t1}, 160, v{t1}")
    a(f"v_and_b32 v{t2}, 3, v1")
    a(f"v_lshl_add_u32 v{VA}, v{t2}, 3, v{t1}")
    a.wait_vm('bias')
    for F in range(5):
        s_ = AS[0] + 2*F; d = ACB + 4*F
        a(f"v_lshlrev_b32 v{d}, 16, v{s_}")
        a(f"v_and_b32 v{d+1}, 0xffff0000, v{s_}")
        a(f"v_lshlrev_b32 v{d+2}, 16, v{s_+1}")
        a(f"v_and_b32 v{d+3}, 0xffff0000, v{s_+1}")
    def rd_a(s, F, rd):
        g = s >> 2; u = s & 3
        a(f"ds_read_b64_tr_b16 {vr(AS[s % 3]+4*F+2*rd,2)}, v{VA} offset:{(g % 3)*STG + u*5120 + rd*1280 + F*32}", tag=('A', s, F))
    NG = (NSTEP + 3)//4
    a.wait_vm(('W', 0))
    a("s_barrier")
    for s in range(2):
        for F in range(5):
            rd_a(s, F, 0); rd_a(s, F, 1)
    for s in range(NSTEP):
        g = s >> 2; u = s & 3
        if u == 2 and g + 1 < NG:
            a.wait_vm(('W', g + 1))
            a("s_barrier")
            if g + 2 < NG: dma_w(g + 2)
        a.wait_vm(('T', s))
        for F in range(5):
            a.wait_lg(('A', s, F))
            acc = (ACB if s < HS else ACA) + 4*F
            d = vr(acc, 4)
            c = "0" if s == HS else d
            a(f"v_mfma_f32_16x16x32_bf16 {d}, {vr(AS[s % 3]+4*F,4)}, {vr(TR+4*(s % NT),4)}, {c}")
            if s + 2 < NSTEP:
                rd_a(s + 2, F, 0); rd_a(s + 2, F, 1)
            if F == 2 and s + TD < NSTEP:
                ld_t(s + TD)
    a.wait_vm('g')
    a(f"v_sub_f32 v{t0}, 1.0, v{VG}")
    for r in range(20):
        a(f"v_mul_f32 v{ACB+r}, v{ACB+r}, v{t0}")
    for r in range(20):
        a(f"v_fmac_f32 v{ACB+r}, v{ACA+r}, v{VG}")
    for F in range(5):
        d = AS[0] + 2*F
        a(f"v_cvt_pk_bf16_f32 v{d}, v{ACB+4*F}, v{ACB+4*F+1}")
        a(f"v_cvt_pk_bf16_f32 v{d+1}, v{ACB+4*F+2}, v{ACB+4*F+3}")
        a(f"buffer_store_dwordx2 {vr(d,2)}, v{VO}, s[{SRD_B}:{SRD_B+3}], 0 offen offset:{32*F}")
    a.reset_counters()

def build_multi():
    LDS = 73728
    ks = []
    def mk(name, fa, fb):
        a = Asm()
        a("s_cmp_ge_u32 s2, 512")
        a(f"s_cbranch_scc1 {name}_end")
        prologue(a)
        a("s_cmp_ge_u32 s2, 256")
        a(f"s_cbranch_scc1 {name}_b")
        for f in fa: f(a, name + "_" + f.__name__)
        a(f"s_branch {name}_end")
        a.label(f"{name}_b")
        a.reset_counters()
        for f in fb: f(a, name + "_" + f.__name__)
        a.label(f"{name}_end")
        ks.append((name, a.text()))
    mk("k1_kernel", [stage_qkv], [stage_ln, stage_repack])
    mk("k2_kernel", [stage_attn], [stage_ffn1])
    mk("k3_kernel", [], [stage_final])
    return ks, LDS

def header_comment():
    ref = open("cdna_kernels/" + NAME + ".s.ref").read().split("\n")
    return [l for l in ref if l.startswith(";") and "@launch" not in l and "Override" not in l and "grid=ceil" not in l]

def emit(ks, LDS, grid=512):
    s = "\n".join(header_comment()) + "\n"
    for name, _ in ks:
        s += f"; @launch kernel={name} grid=({grid},1,1) block=(256,1,1) lds={LDS}\n"
    s += '.amdgcn_target "amdgcn-amd-amdhsa--gfx950"\n.text\n'
    for name, body in ks:
        s += kernel_text(name, body, grid, LDS)
    s += '.section .rodata,"a"\n'
    for name, _ in ks:
        s += ".p2align 6\n" + descriptor(name)
    return s

if __name__ == "__main__":
    mode = sys.argv[1] if len(sys.argv) > 1 else "multi"
    if mode == "multi":
        ks, LDS = build_multi()
        sys.stdout.write(emit(ks, LDS))
```

```python
import sys
from asmlib import Asm

NAME = "gated_mix__sliding_block__mixer_channel_mlp__prompt"

WS_Y    = 0x0000000
WS_G    = 0x0280000
WS_QKV  = 0x0300000
WS_H    = 0x0B00000
WS_O    = 0x1200000
WS_WF   = 0x1500000
WS_FLAG = 0x1800000
WS_STAMP = 0x1900000
WS_SIZE = 0x1A00000
WF_TILE = 2368 * 160
FY, FW, FQ, FH, FO = 0, 2048, 3072, 5120, 7168
OPT = dict(mega=False, rot=True, pf_code=True, pf_w1=True, pf_wf=True, tlb=True)

P_AX, P_WQKV, P_WO, P_BX, P_W1, P_B1, P_W2, P_B2 = 4, 6, 8, 10, 12, 14, 16, 18
P_GW, P_OUT, P_DBG, P_WS = 20, 22, 24, 26
SRD_A, SRD_B, SRD_WS, SRD_C = 28, 32, 36, 40
S_W, S_IDX, S_X, S_I = 44, 45, 46, 47
T0, T1, T2, T3, T4, T5, T6, T7 = 48, 49, 50, 51, 52, 53, 54, 55
S_RB, S_CJ = 56, 57
S_KX, S_KW, S_M0 = 58, 59, 60
S_MASK = 64
S_NONCE = 96
S_KO = 62

SIZES = dict(AX=2048*640*2, WQKV=640*1920*2, WO=640*640*2, BX=2048*640*2, W1=640*1728*2, B1=1728*2,
             W2=1728*640*2, B2=640*2, GW=640*2, OUT=2048*640*2)

def srd(a, dst, ptr, size):
    a(f"s_mov_b32 s{dst}, s{ptr}")
    a(f"s_and_b32 s{dst+1}, s{ptr+1}, 0xffff")
    a(f"s_mov_b32 s{dst+2}, {size}")
    a(f"s_mov_b32 s{dst+3}, 0x20000")

def vr(b, n=1):
    return f"v{b}" if n == 1 else f"v[{b}:{b+n-1}]"

def prologue(a):
    a("s_load_dwordx16 s[4:19], s[0:1], 0")
    a("s_load_dwordx8 s[20:27], s[0:1], 64")
    a("v_lshrrev_b32 v2, 6, v0")
    a("v_and_b32 v1, 63, v0")
    a(f"v_readfirstlane_b32 s{S_W}, v2")
    a(f"s_and_b32 s{S_IDX}, s2, 255")
    a(f"s_and_b32 s{S_X}, s2, 7")
    a(f"s_lshr_b32 s{S_I}, s{S_IDX}, 3")
    a("s_waitcnt lgkmcnt(0)")
    srd(a, SRD_WS, P_WS, WS_SIZE)


_uid = [0]
def uid(p):
    _uid[0] += 1
    return f"{p}_{_uid[0]}"

def nonce_post(a):
    L = uid("np")
    a(f"s_or_b32 s{T0}, s2, s{S_W}")
    a(f"s_cmp_lg_u32 s{T0}, 0")
    a(f"s_cbranch_scc1 {L}")
    a(f"s_memrealtime s[{T4}:{T4+1}]")
    a("s_waitcnt lgkmcnt(0)")
    a(f"s_or_b32 s{T4}, s{T4}, 1")
    a(f"v_mov_b32 v2, s{T4}")
    a("v_mov_b32 v3, 0")
    a("s_mov_b64 exec, 1")
    a(f"global_store_dword v3, v2, s[{P_DBG}:{P_DBG+1}] sc1")
    a("s_mov_b64 exec, -1")
    a.vm.pop()
    a.label(L)

def nonce_load(a, v):
    a(f"v_mov_b32 v{v+1}, 0")
    a(f"global_load_dword v{v}, v{v+1}, s[{P_DBG}:{P_DBG+1}] sc1", tag='nonce')

def nonce_get(a, v):
    L = uid("ng")
    a.wait_vm('nonce')
    a.label(L)
    a(f"v_readfirstlane_b32 s{S_NONCE}, v{v}")
    a(f"s_cmp_lg_u32 s{S_NONCE}, 0")
    a(f"s_cbranch_scc1 {L}_ok")
    a("s_sleep 2")
    a(f"global_load_dword v{v}, v{v+1}, s[{P_DBG}:{P_DBG+1}] sc1")
    a("s_waitcnt vmcnt(0)")
    a(f"s_branch {L}")
    a.label(f"{L}_ok")

def publish(a, sflag, v):
    L = uid("pub")
    a("s_waitcnt vmcnt(0)")
    a("s_barrier")
    a(f"s_cmp_lg_u32 s{S_W}, 0")
    a(f"s_cbranch_scc1 {L}")
    a(f"v_mov_b32 v{v}, s{S_NONCE}")
    a("s_mov_b64 exec, 1")
    a(f"buffer_store_dword v{v}, off, s[{SRD_WS}:{SRD_WS+3}], s{sflag} sc1")
    a("s_mov_b64 exec, -1")
    a.label(L)
    a.reset_counters()

def wait_flags(a, voff, vtmp, smask):
    L = uid("wf")
    a(f"s_cmp_lg_u32 s{S_W}, 0")
    a(f"s_cbranch_scc1 {L}_done")
    a(f"s_mov_b64 exec, s[{smask}:{smask+1}]")
    a.label(L)
    a(f"buffer_load_dword v{vtmp}, v{voff}, s[{SRD_WS}:{SRD_WS+3}], 0 offen sc1")
    a("s_waitcnt vmcnt(0)")
    a(f"v_cmp_ne_u32 vcc, s{S_NONCE}, v{vtmp}")
    a("s_nop 4")
    a(f"s_cbranch_vccz {L}_ok")
    a("s_sleep 1")
    a(f"s_branch {L}")
    a.label(f"{L}_ok")
    a("s_mov_b64 exec, -1")
    a.label(f"{L}_done")
    a("s_barrier")
    a.reset_counters()

def touch_lines(a, srd_, vbase, n, stride, dst, soff='0', sc=''):
    for k in range(n):
        a(f"buffer_load_dword v{dst}, v{vbase}, s[{srd_}:{srd_+3}], {soff} offen {sc}".rstrip(), tag='touch')
        if k + 1 < n: a(f"v_add_u32 v{vbase}, {stride}, v{vbase}")

def prefetch_code(a, lbl_end, per):
    L = uid("pc")
    a(f"s_getpc_b64 s[{T4}:{T4+1}]")
    a.label(L)
    a(f"s_mul_i32 s{T0}, s{S_W}, {per*8192}")
    a("v_lshlrev_b32 v252, 7, v1")
    a(f"v_add_u32 v252, s{T0}, v252")
    for k in range(per):
        a(f"v_min_u32 v251, {lbl_end}-{L}-4, v252")
        a(f"global_load_dword v253, v251, s[{T4}:{T4+1}]", tag='touch')
        if k + 1 < per: a("v_add_u32 v252, 8192, v252")

def stage_qkv(a, lbl):
    XS = [0, 16384, 32768]
    WB = 49152
    a(f"s_lshr_b32 s{T0}, s{S_X}, 1")
    a(f"s_lshl_b32 s{T0}, s{T0}, 2")
    a(f"s_and_b32 s{T1}, s{S_I}, 3")
    a(f"s_add_u32 s{S_RB}, s{T0}, s{T1}")
    a(f"s_and_b32 s{T0}, s{S_X}, 1")
    a(f"s_lshl_b32 s{T0}, s{T0}, 3")
    a(f"s_lshr_b32 s{T1}, s{S_I}, 2")
    a(f"s_add_u32 s{S_CJ}, s{T0}, s{T1}")
    a(f"s_cmp_ge_u32 s{S_CJ}, 15")
    a(f"s_cbranch_scc1 {lbl}_skip")
    srd(a, SRD_A, P_AX, SIZES['AX'])
    srd(a, SRD_B, P_WQKV, SIZES['WQKV'])
    VXD, VWD = 2, 6
    VXF, VWF = 8, 12
    VT = 14
    FB = [20, 36]
    ACC = 64
    t0, t1, t2, t3 = VT, VT+1, VT+2, VT+3
    a(f"s_lshl_b32 s{T0}, s{S_RB}, 7")
    a(f"s_lshl_b32 s{T1}, s{S_W}, 5")
    a(f"s_add_u32 s{T0}, s{T0}, s{T1}")
    a(f"v_lshrrev_b32 v{t0}, 3, v1")
    a(f"v_add_u32 v{t0}, s{T0}, v{t0}")
    a(f"s_movk_i32 s{T2}, 1280")
    a(f"v_mul_lo_u32 v{t0}, v{t0}, s{T2}")
    a(f"v_lshrrev_b32 v{t1}, 4, v1")
    a(f"v_and_b32 v{t2}, 7, v1")
    a(f"v_xor_b32 v{t2}, v{t2}, v{t1}")
    a(f"v_xor_b32 v{t3}, 4, v{t2}")
    for i in range(4):
        src = t2 if i % 2 == 0 else t3
        a(f"v_lshl_add_u32 v{VXD+i}, v{src}, 4, v{t0}")
        if i:
            a(f"v_add_u32 v{VXD+i}, {i*(8*1280-1024)}, v{VXD+i}")
    a(f"s_lshl_b32 s{T0}, s{S_W}, 3")
    a(f"v_lshrrev_b32 v{t0}, 4, v1")
    a(f"v_add_u32 v{t1}, s{T0}, v{t0}")
    a(f"s_movk_i32 s{T2}, 3840")
    a(f"v_mul_lo_u32 v{t1}, v{t1}, s{T2}")
    a(f"v_bfe_u32 v{t2}, v1, 2, 2")
    a(f"v_xor_b32 v{t2}, v{t2}, v{t0}")
    a(f"v_and_b32 v{t3}, 3, v1")
    a(f"v_lshl_add_u32 v{t2}, v{t2}, 2, v{t3}")
    a(f"v_lshl_add_u32 v{t1}, v{t2}, 4, v{t1}")
    a(f"s_lshl_b32 s{T0}, s{S_CJ}, 8")
    a(f"v_add_u32 v{VWD}, s{T0}, v{t1}")
    a(f"v_add_u32 v{VWD+1}, {4*3840-1024}, v{VWD}")
    a(f"s_lshl_b32 s{T6}, s{S_W}, 12")
    a(f"s_lshl_b32 s{T7}, s{S_W}, 11")
    if OPT['rot']:
        a(f"s_and_b32 s{T0}, s{S_I}, 3")
        a(f"s_mul_i32 s{T0}, s{T0}, 10")
        a(f"s_lshr_b32 s{T1}, s{S_I}, 2")
        a(f"s_mul_i32 s{T1}, s{T1}, 5")
        a(f"s_add_u32 s{T0}, s{T0}, s{T1}")
        a(f"s_lshr_b32 s{T0}, s{T0}, 2")
        a(f"s_sub_u32 s{T1}, s{T0}, 10")
        a(f"s_cmp_ge_u32 s{T0}, 10")
        a(f"s_cselect_b32 s{T0}, s{T1}, s{T0}")
        a(f"s_lshl_b32 s{S_KX}, s{T0}, 7")
        a(f"s_mul_i32 s{S_KW}, s{T0}, {64*3840}")
    else:
        a(f"s_mov_b32 s{S_KX}, 0")
        a(f"s_mov_b32 s{S_KW}, 0")
    def adv(sreg, step, wrap):
        a(f"s_add_u32 s{sreg}, s{sreg}, {step}")
        a(f"s_cmp_eq_u32 s{sreg}, {wrap}")
        a(f"s_cselect_b32 s{sreg}, 0, s{sreg}")
    def dma_x(b):
        a(f"s_add_u32 m0, s{T6}, {XS[b % 3]}")
        if b > 0: adv(S_KX, 128, 1280)
        for i in range(4):
            a(f"buffer_load_dwordx4 v{VXD+i}, s[{SRD_A}:{SRD_A+3}], s{S_KX} offen offset:{i*1024} lds", tag=('X', b))
    def dma_w(h):
        a(f"s_add_u32 m0, s{T7}, {WB + (h % 3)*8192}")
        if h > 0: adv(S_KW, 32*3840, 640*3840)
        for i in range(2):
            a(f"buffer_load_dwordx4 v{VWD+i}, s[{SRD_B}:{SRD_B+3}], s{S_KW} offen offset:{i*1024} lds", tag=('W', h))
    dma_x(0); dma_w(0); dma_w(1); dma_x(1)
    if OPT['mega']: start_prefetch(a, 'A')
    a(f"s_and_b32 s{T0}, s{S_W}, 1")
    a(f"s_lshl_b32 s{T0}, s{T0}, 13")
    a(f"v_and_b32 v{t0}, 31, v1")
    a(f"v_lshrrev_b32 v{t1}, 5, v1")
    a(f"v_bfe_u32 v{t2}, v1, 1, 3")
    a(f"v_lshlrev_b32 v{t0}, 7, v{t0}")
    a(f"v_add_u32 v{t0}, s{T0}, v{t0}")
    for s in range(4):
        a(f"v_or_b32 v{t3}, {2*s}, v{t1}")
        a(f"v_xor_b32 v{t3}, v{t3}, v{t2}")
        a(f"v_lshl_add_u32 v{VXF+s}, v{t3}, 4, v{t0}")
    a(f"v_bfe_u32 v{t0}, v1, 2, 2")
    a(f"v_lshl_add_u32 v{t1}, v{t1}, 3, v{t0}")
    a(f"v_lshlrev_b32 v{t1}, 8, v{t1}")
    a(f"v_bfe_u32 v{t2}, v1, 4, 1")
    a(f"v_lshl_add_u32 v{t1}, v{t2}, 5, v{t1}")
    a(f"v_and_b32 v{t2}, 3, v1")
    a(f"v_lshl_add_u32 v{t1}, v{t2}, 3, v{t1}")
    a(f"v_add_u32 v{t1}, {WB}, v{t1}")
    a(f"s_and_b32 s{T0}, s{S_W}, 2")
    for ft in range(2):
        a(f"s_or_b32 s{T1}, s{T0}, {ft}")
        a(f"v_xor_b32 v{t2}, s{T1}, v{t0}")
        a(f"v_lshl_add_u32 v{VWF+ft}, v{t2}, 6, v{t1}")
    def rd_b(st, hh, sp, tt):
        xb = hh >> 1; sx = 2*(hh & 1) + sp
        a(f"ds_read_b128 {vr(FB[st]+4*tt,4)}, v{VXF+sx} offset:{XS[xb % 3] + tt*4096}", tag=('f', hh, sp))
    def rd_a(st, hh, sp, ft, rd):
        a(f"ds_read_b64_tr_b16 {vr(FB[st]+8+4*ft+2*rd,2)}, v{VWF+ft} offset:{(hh % 3)*8192 + sp*4096 + rd*1024}", tag=('f', hh, sp))
    def mf(st, tt, ft, first):
        d = vr(ACC+16*(2*tt+ft), 16)
        c = "0" if first else d
        a(f"v_mfma_f32_32x32x16_bf16 {d}, {vr(FB[st]+8+4*ft,4)}, {vr(FB[st]+4*tt,4)}, {c}")
    NH = 20
    for hh in range(NH):
        if hh == 1: mark(a)
        a.wait_vm([('W', hh), ('X', hh >> 1)])
        a("s_waitcnt lgkmcnt(0)")
        a("s_barrier")
        prev = hh > 0
        rd_b(0, hh, 0, 0); rd_a(0, hh, 0, 0, 0)
        if prev: mf(1, 0, 0, False)
        rd_a(0, hh, 0, 0, 1); rd_b(0, hh, 0, 1); rd_a(0, hh, 0, 1, 0)
        if prev: mf(1, 1, 0, False)
        rd_a(0, hh, 0, 1, 1)
        if hh + 2 < NH: dma_w(hh + 2)
        if prev: mf(1, 0, 1, False)
        if hh % 2 == 0 and hh // 2 + 2 < 10: dma_x(hh // 2 + 2)
        if prev: mf(1, 1, 1, False)
        first = hh == 0
        rd_b(1, hh, 1, 0); rd_a(1, hh, 1, 0, 0); rd_a(1, hh, 1, 0, 1)
        a(f"s_waitcnt lgkmcnt(6)")
        mf(0, 0, 0, first)
        rd_b(1, hh, 1, 1); rd_a(1, hh, 1, 1, 0); rd_a(1, hh, 1, 1, 1)
        a(f"s_waitcnt lgkmcnt(6)")
        mf(0, 1, 0, first); mf(0, 0, 1, first); mf(0, 1, 1, first)
    a("s_waitcnt lgkmcnt(0)")
    mf(1, 0, 0, False); mf(1, 1, 0, False); mf(1, 0, 1, False); mf(1, 1, 1, False)
    mark(a)
    a(f"v_lshrrev_b32 v{t0}, 5, v1")
    a(f"s_lshr_b32 s{T0}, s{S_W}, 1")
    a(f"s_lshl_b32 s{T0}, s{T0}, 4")
    a(f"v_add_u32 v{t0}, s{T0}, v{t0}")
    a(f"v_lshlrev_b32 v{t0}, 14, v{t0}")
    a(f"s_and_b32 s{T0}, s{S_W}, 1")
    a(f"s_lshl_b32 s{T0}, s{T0}, 6")
    a(f"v_and_b32 v{t1}, 31, v1")
    a(f"v_add_u32 v{t1}, s{T0}, v{t1}")
    a(f"v_lshl_add_u32 v{t0}, v{t1}, 3, v{t0}")
    a(f"s_lshl_b32 s{T0}, s{S_CJ}, 19")
    a(f"s_lshl_b32 s{T1}, s{S_RB}, 10")
    a(f"s_add_u32 s{T0}, s{T0}, s{T1}")
    a(f"s_add_u32 s{T0}, s{T0}, {WS_QKV}")
    if OPT['mega']: nonce_load(a, 16)
    k = 0
    for ft in range(2):
        for j in range(4):
            a(f"s_add_u32 s{T1}, s{T0}, {(8*ft+2*j)*16384}")
            for tt in range(2):
                base = ACC + 16*(2*tt+ft) + 4*j
                d = FB[0] + 2*(k % 16); k += 1
                a(f"v_cvt_pk_bf16_f32 v{d}, v{base}, v{base+1}")
                a(f"v_cvt_pk_bf16_f32 v{d+1}, v{base+2}, v{base+3}")
                a(f"buffer_store_dwordx2 {vr(d,2)}, v{t0}, s[{SRD_WS}:{SRD_WS+3}], s{T1} offen offset:{tt*256} sc1")
    mark(a)
    if OPT['mega']:
        nonce_get(a, 16)
        a(f"s_lshl_b32 s{T0}, s{S_RB}, 7")
        a(f"s_lshl_b32 s{T1}, s{S_CJ}, 2")
        a(f"s_add_u32 s{T0}, s{T0}, s{T1}")
        a(f"s_add_u32 s{T0}, s{T0}, {WS_FLAG + FQ}")
        publish(a, T0, 16)
        a(f"s_branch {lbl}_end")
    a.label(f"{lbl}_skip")
    if OPT['mega']:
        a.reset_counters()
        nonce_load(a, 16)
        nonce_get(a, 16)
        a.label(f"{lbl}_end")
    a.reset_counters()

STAMPS = False
CTX = dict(k=0, slot=0)
def mark(a):
    if not STAMPS: return
    CTX['slot'] += 1
    stamp(a, CTX['k'], CTX['slot'])
def stamp(a, kidx, slot):
    if not STAMPS: return
    stamp.n = getattr(stamp, 'n', 0) + 1
    L = f"stamp_{stamp.n}"
    a(f"s_cmp_lg_u32 s{S_W}, 0")
    a(f"s_cbranch_scc1 {L}")
    a("s_memrealtime s[98:99]")
    a("s_memtime s[100:101]")
    a("s_waitcnt lgkmcnt(0)")
    a(f"s_lshl_b32 s97, s2, 7")
    a(f"s_add_u32 s97, s97, {WS_STAMP + kidx*(1024*128) + slot*4}")
    a("s_mov_b64 exec, 1")
    a("v_mov_b32 v254, s98")
    a("v_mov_b32 v255, s100")
    vm = list(a.vm)
    a(f"buffer_store_dword v254, off, s[{SRD_WS}:{SRD_WS+3}], s97")
    a(f"buffer_store_dword v255, off, s[{SRD_WS}:{SRD_WS+3}], s97 offset:64")
    a("s_mov_b64 exec, -1")
    a.vm = vm
    a.label(L)

def kernel_text(name, body, grid, lds):
    s  = f".globl {name}\n.p2align 8\n.type {name},@function\n{name}:\n"
    s += body
    s += "    s_endpgm\n"
    return s

def descriptor(name, vgpr=256):
    return f""".amdhsa_kernel {name}
  .amdhsa_next_free_vgpr {vgpr}
  .amdhsa_next_free_sgpr 102
  .amdhsa_accum_offset {vgpr}
  .amdhsa_group_segment_fixed_size 0
  .amdhsa_kernarg_size 96
  .amdhsa_user_sgpr_count 2
  .amdhsa_user_sgpr_kernarg_segment_ptr 1
  .amdhsa_system_sgpr_workgroup_id_x 1
.end_amdhsa_kernel
"""

def dpp_sum16(a, v):
    for r in (8, 4, 2, 1):
        a(f"v_add_f32_dpp v{v}, v{v}, v{v} row_ror:{r} row_mask:0xf bank_mask:0xf")

def stage_ln(a, lbl):
    VO, VT = 2, 4
    X, F = 20, 40
    t0, t1, t2, t3, t4 = VT, VT+1, VT+2, VT+3, VT+4
    a(f"s_and_b32 s{T0}, s{S_W}, 1")
    a(f"s_lshl_b32 s{T0}, s{T0}, 2")
    a(f"s_lshl_b32 s{T1}, s{S_IDX}, 3")
    a(f"s_add_u32 s{T0}, s{T0}, s{T1}")
    a(f"v_lshrrev_b32 v{t0}, 4, v1")
    a(f"v_add_u32 v{t0}, s{T0}, v{t0}")
    a(f"v_and_b32 v{t1}, 15, v1")
    a(f"s_movk_i32 s{T2}, 1280")
    a(f"v_mul_lo_u32 v{VO}, v{t0}, s{T2}")
    a(f"v_lshl_add_u32 v{VO}, v{t1}, 4, v{VO}")
    a(f"s_cmp_ge_u32 s{S_W}, 2")
    a(f"s_cbranch_scc1 {lbl}_gate")
    srd(a, SRD_A, P_AX, SIZES['AX'])
    for i in range(5):
        a(f"buffer_load_dwordx4 {vr(X+4*i,4)}, v{VO}, s[{SRD_A}:{SRD_A+3}], 0 offen offset:{256*i}", tag='lnx')
    if OPT['mega']: start_prefetch(a, 'B')
    a(f"v_lshrrev_b32 v{t2}, 5, v{t0}")
    a(f"v_mul_u32_u24 v{t2}, 40, v{t2}")
    a(f"v_lshrrev_b32 v{t3}, 1, v{t1}")
    a(f"v_add_u32 v{t2}, v{t2}, v{t3}")
    a(f"v_lshlrev_b32 v{t2}, 10, v{t2}")
    a(f"v_and_b32 v{t3}, 1, v{t1}")
    a(f"v_lshl_add_u32 v{t2}, v{t3}, 9, v{t2}")
    a(f"v_and_b32 v{t3}, 31, v{t0}")
    a(f"v_lshl_add_u32 v{VO+1}, v{t3}, 4, v{t2}")
    a.wait_vm('lnx')
    for d in range(20):
        a(f"v_lshlrev_b32 v{F+2*d}, 16, v{X+d}")
        a(f"v_and_b32 v{F+2*d+1}, 0xffff0000, v{X+d}")
    for k in range(4):
        a(f"v_add_f32 v{t0+k}, v{F+k}, v{F+4+k}")
    for d in range(8, 40):
        a(f"v_add_f32 v{t0+(d%4)}, v{t0+(d%4)}, v{F+d}")
    a(f"v_add_f32 v{t0}, v{t0}, v{t1}")
    a(f"v_add_f32 v{t2}, v{t2}, v{t3}")
    a(f"v_add_f32 v{t0}, v{t0}, v{t2}")
    dpp_sum16(a, t0)
    a(f"v_mul_f32 v{t0}, 0x3acccccd, v{t0}")
    for d in range(40):
        a(f"v_sub_f32 v{F+d}, v{F+d}, v{t0}")
    for k in range(4):
        a(f"v_mul_f32 v{t0+k}, v{F+k}, v{F+k}")
    for d in range(4, 40):
        a(f"v_fmac_f32 v{t0+(d%4)}, v{F+d}, v{F+d}")
    a(f"v_add_f32 v{t0}, v{t0}, v{t1}")
    a(f"v_add_f32 v{t2}, v{t2}, v{t3}")
    a(f"v_add_f32 v{t0}, v{t0}, v{t2}")
    dpp_sum16(a, t0)
    a(f"v_mov_b32 v{t1}, 0x3727c5ac")
    a(f"v_fmac_f32 v{t1}, 0x3acccccd, v{t0}")
    a(f"v_rsq_f32 v{t1}, v{t1}")
    for d in range(40):
        a(f"v_mul_f32 v{F+d}, v{F+d}, v{t1}")
    for d in range(20):
        a(f"v_cvt_pk_bf16_f32 v{X+d}, v{F+2*d}, v{F+2*d+1}")
    if OPT['mega']: nonce_load(a, 10)
    for i in range(5):
        a(f"buffer_store_dwordx4 {vr(X+4*i,4)}, v{VO+1}, s[{SRD_WS}:{SRD_WS+3}], 0 offen sc1")
        if i < 4:
            a(f"v_add_u32 v{VO+1}, 8192, v{VO+1}")
    a(f"s_branch {lbl}_done")
    a.label(f"{lbl}_gate")
    a.reset_counters()
    srd(a, SRD_A, P_AX, SIZES['AX'])
    srd(a, SRD_B, P_GW, SIZES['GW'])
    G = 40
    a(f"v_lshlrev_b32 v{VO+1}, 4, v{t1}")
    for i in range(5):
        a(f"buffer_load_dwordx4 {vr(X+4*i,4)}, v{VO}, s[{SRD_A}:{SRD_A+3}], 0 offen offset:{256*i}", tag='gx')
        a(f"buffer_load_dwordx4 {vr(G+4*i,4)}, v{VO+1}, s[{SRD_B}:{SRD_B+3}], 0 offen offset:{256*i}", tag='gx')
    if OPT['mega']: start_prefetch(a, 'B')
    a(f"v_lshlrev_b32 v{t2}, 2, v{t0}")
    a(f"v_add_u32 v{t2}, {WS_G}, v{t2}")
    a(f"v_mov_b32 v{t3}, 0x7ffffff0")
    a(f"v_cmp_eq_u32 s[{T4}:{T4+1}], 0, v{t1}")
    a(f"v_cndmask_b32 v{VO}, v{t3}, v{t2}, s[{T4}:{T4+1}]")
    a(f"v_mov_b32 v{t0}, 0")
    a(f"v_mov_b32 v{t1}, 0")
    a.wait_vm('gx')
    U = 60
    for d in range(20):
        u = U + 4*(d % 4)
        a(f"v_lshlrev_b32 v{u}, 16, v{X+d}")
        a(f"v_lshlrev_b32 v{u+1}, 16, v{G+d}")
        a(f"v_and_b32 v{u+2}, 0xffff0000, v{X+d}")
        a(f"v_and_b32 v{u+3}, 0xffff0000, v{G+d}")
        a(f"v_fmac_f32 v{t0}, v{u}, v{u+1}")
        a(f"v_fmac_f32 v{t1}, v{u+2}, v{u+3}")
    a(f"v_add_f32 v{t0}, v{t0}, v{t1}")
    dpp_sum16(a, t0)
    a(f"v_mul_f32 v{t0}, 0xbfb8aa3b, v{t0}")
    a(f"v_exp_f32 v{t0}, v{t0}")
    a(f"v_add_f32 v{t0}, 1.0, v{t0}")
    a(f"v_rcp_f32 v{t0}, v{t0}")
    a(f"s_nop 0")
    if OPT['mega']: nonce_load(a, 10)
    a(f"buffer_store_dword v{t0}, v{VO}, s[{SRD_WS}:{SRD_WS+3}], 0 offen sc1")
    a.label(f"{lbl}_done")
    a.reset_counters()
    if OPT['mega']:
        a("s_waitcnt vmcnt(0)")
        nonce_get(a, 10)
        a(f"s_lshr_b32 s{T0}, s{S_IDX}, 4")
        a(f"s_lshl_b32 s{T0}, s{T0}, 7")
        a(f"s_and_b32 s{T1}, s{S_IDX}, 15")
        a(f"s_lshl_b32 s{T1}, s{T1}, 2")
        a(f"s_add_u32 s{T0}, s{T0}, s{T1}")
        a(f"s_add_u32 s{T0}, s{T0}, {WS_FLAG + FY}")
        publish(a, T0, 10)

def stage_repack(a, lbl):
    VT = 2
    t0, t1, t2, t3, t4, t5 = range(VT, VT+6)
    VS, VD, D = 8, 12, 16
    a(f"s_and_b32 s{T0}, s{S_IDX}, 7")
    a(f"s_lshr_b32 s{T1}, s{S_IDX}, 3")
    a(f"s_mul_i32 s{T2}, s{T0}, 160")
    a(f"s_mul_i32 s{T3}, s{T0}, {WF_TILE}")
    a(f"s_add_u32 s{T3}, s{T3}, {WS_WF}")
    a(f"s_movk_i32 s{T6}, 6554")
    a(f"s_movk_i32 s{T7}, 1280")
    a(f"s_cmp_ge_u32 s{T1}, 24")
    a(f"s_cbranch_scc1 {lbl}_wo")
    srd(a, SRD_A, P_W2, SIZES['W2'])
    a(f"s_mul_i32 s{T4}, s{T1}, 72")
    a(f"s_mul_i32 s{T5}, s{T4}, 160")
    a(f"s_add_u32 s{T3}, s{T3}, s{T5}")
    a(f"s_movk_i32 s{T5}, 720")
    for u in range(4):
        a(f"v_add_u32 v{t0}, {256*u}, v0")
        a(f"v_mul_u32_u24 v{t1}, s{T6}, v{t0}")
        a(f"v_lshrrev_b32 v{t1}, 16, v{t1}")
        a(f"v_mul_u32_u24 v{t2}, 10, v{t1}")
        a(f"v_sub_u32 v{t2}, v{t0}, v{t2}")
        a(f"v_add_u32 v{t1}, s{T4}, v{t1}")
        a(f"v_mul_lo_u32 v{t1}, v{t1}, s{T7}")
        a(f"v_lshl_add_u32 v{t1}, v{t2}, 4, v{t1}")
        a(f"v_add_u32 v{t1}, s{T2}, v{t1}")
        a(f"v_lshlrev_b32 v{t3}, 4, v{t0}")
        a(f"v_add_u32 v{t3}, s{T3}, v{t3}")
        a(f"v_mov_b32 v{t4}, 0x7ffffff0")
        a(f"v_cmp_gt_u32 vcc, s{T5}, v{t0}")
        a(f"v_cndmask_b32 v{VS+u}, v{t4}, v{t1}, vcc")
        a(f"v_cndmask_b32 v{VD+u}, v{t4}, v{t3}, vcc")
    a(f"s_branch {lbl}_go")
    a.label(f"{lbl}_wo")
    srd(a, SRD_A, P_WO, SIZES['WO'])
    a(f"s_sub_u32 s{T1}, s{T1}, 24")
    a(f"s_mul_i32 s{T4}, s{T1}, 80")
    a(f"s_add_u32 s{T5}, s{T4}, 1728")
    a(f"s_mul_i32 s{T5}, s{T5}, 160")
    a(f"s_add_u32 s{T3}, s{T3}, s{T5}")
    a(f"s_movk_i32 s{T5}, 800")
    for u in range(4):
        a(f"v_add_u32 v{t0}, {256*u}, v0")
        a(f"v_mul_u32_u24 v{t1}, s{T6}, v{t0}")
        a(f"v_lshrrev_b32 v{t1}, 16, v{t1}")
        a(f"v_mul_u32_u24 v{t2}, 10, v{t1}")
        a(f"v_sub_u32 v{t2}, v{t0}, v{t2}")
        a(f"v_add_u32 v{t1}, s{T4}, v{t1}")
        a(f"v_lshrrev_b32 v{t3}, 4, v{t1}")
        a(f"v_and_b32 v{t1}, 15, v{t1}")
        a(f"v_mul_u32_u24 v{t4}, 20, v{t3}")
        a(f"v_add_u32 v{t4}, v{t4}, v{t1}")
        a(f"v_subrev_u32 v{t5}, 32, v{t3}")
        a(f"v_lshlrev_b32 v{t5}, 2, v{t5}")
        a(f"v_bfe_u32 v{VS+u}, v{t1}, 2, 1")
        a(f"v_lshl_add_u32 v{t5}, v{VS+u}, 1, v{t5}")
        a(f"v_lshrrev_b32 v{VS+u}, 3, v{t1}")
        a(f"v_add_u32 v{t5}, v{t5}, v{VS+u}")
        a(f"v_mul_u32_u24 v{t5}, 20, v{t5}")
        a(f"v_and_b32 v{t1}, 3, v{t1}")
        a(f"v_add3_u32 v{t5}, v{t5}, v{t1}, 16")
        a(f"v_cmp_gt_u32 vcc, 32, v{t3}")
        a(f"v_cndmask_b32 v{t1}, v{t5}, v{t4}, vcc")
        a(f"v_mul_lo_u32 v{t1}, v{t1}, s{T7}")
        a(f"v_lshl_add_u32 v{t1}, v{t2}, 4, v{t1}")
        a(f"v_add_u32 v{t1}, s{T2}, v{t1}")
        a(f"v_lshlrev_b32 v{t3}, 4, v{t0}")
        a(f"v_add_u32 v{t3}, s{T3}, v{t3}")
        a(f"v_mov_b32 v{t4}, 0x7ffffff0")
        a(f"v_cmp_gt_u32 vcc, s{T5}, v{t0}")
        a(f"v_cndmask_b32 v{VS+u}, v{t4}, v{t1}, vcc")
        a(f"v_cndmask_b32 v{VD+u}, v{t4}, v{t3}, vcc")
    a.label(f"{lbl}_go")
    for u in range(4):
        a(f"buffer_load_dwordx4 {vr(D+4*u,4)}, v{VS+u}, s[{SRD_A}:{SRD_A+3}], 0 offen", tag=('rp', u))
    for u in range(4):
        a.wait_vm(('rp', u))
        a(f"buffer_store_dwordx4 {vr(D+4*u,4)}, v{VD+u}, s[{SRD_WS}:{SRD_WS+3}], 0 offen sc1")
    if OPT['mega']:
        a(f"s_and_b32 s{T0}, s{S_IDX}, 7")
        a(f"s_lshl_b32 s{T0}, s{T0}, 7")
        a(f"s_lshr_b32 s{T1}, s{S_IDX}, 3")
        a(f"s_lshl_b32 s{T1}, s{T1}, 2")
        a(f"s_add_u32 s{T0}, s{T0}, s{T1}")
        a(f"s_add_u32 s{T0}, s{T0}, {WS_FLAG + FW}")
        publish(a, T0, 10)
    a.reset_counters()

def stage_ffn1(a, lbl):
    a(f"s_lshr_b32 s{T0}, s{S_X}, 1")
    a(f"s_lshl_b32 s{T0}, s{T0}, 2")
    a(f"s_and_b32 s{T1}, s{S_I}, 3")
    a(f"s_add_u32 s{S_RB}, s{T0}, s{T1}")
    a(f"s_and_b32 s{T0}, s{S_X}, 1")
    a(f"s_mul_i32 s{T0}, s{T0}, 7")
    a(f"s_lshr_b32 s{T1}, s{S_I}, 2")
    a(f"s_add_u32 s{S_CJ}, s{T0}, s{T1}")
    a(f"s_cmp_ge_u32 s{T1}, 7")
    a(f"s_cbranch_scc1 {lbl}_skip")
    srd(a, SRD_A, P_B1, SIZES['B1'])
    srd(a, SRD_B, P_W1, SIZES['W1'])
    VWD, VWF, VY, VT = 2, 6, 10, 12
    AS = [20, 36, 52]
    ACC = 68
    YR = 132; NY = 16; YD = 12
    t0, t1, t2, t3 = VT, VT+1, VT+2, VT+3
    a(f"s_lshl_b32 s{T0}, s{S_W}, 4")
    a(f"v_lshrrev_b32 v{t0}, 4, v1")
    a(f"v_add_u32 v{t1}, s{T0}, v{t0}")
    a(f"s_movk_i32 s{T2}, 3456")
    a(f"v_mul_lo_u32 v{t1}, v{t1}, s{T2}")
    a(f"v_bfe_u32 v{t2}, v1, 2, 2")
    a(f"v_xor_b32 v{t2}, v{t2}, v{t0}")
    a(f"v_and_b32 v{t3}, 3, v1")
    a(f"v_lshl_add_u32 v{t2}, v{t2}, 2, v{t3}")
    a(f"v_lshl_add_u32 v{t1}, v{t2}, 4, v{t1}")
    a(f"s_lshl_b32 s{T0}, s{S_CJ}, 8")
    a(f"v_add_u32 v{VWD}, s{T0}, v{t1}")
    for i in range(1, 4):
        a(f"v_add_u32 v{VWD+i}, {i*(4*3456-1024)}, v{VWD}")
    a(f"s_lshl_b32 s{T6}, s{S_W}, 12")
    def dma_w(b):
        a(f"s_add_u32 m0, s{T6}, {(b % 4)*16384}")
        a(f"s_mov_b32 s{S_KW}, {b*64*3456}")
        for i in range(4):
            a(f"buffer_load_dwordx4 v{VWD+i}, s[{SRD_B}:{SRD_B+3}], s{S_KW} offen offset:{i*1024} lds", tag=('W', b))
    dma_w(0)
    a(f"v_lshrrev_b32 v{t0}, 5, v1")
    a(f"v_lshlrev_b32 v{t1}, 3, v{t0}")
    a(f"s_lshl_b32 s{T0}, s{S_CJ}, 8")
    a(f"v_add_u32 v{t1}, s{T0}, v{t1}")
    for T in range(4):
        for j in range(4):
            a(f"buffer_load_dwordx2 {vr(AS[0]+2*(4*T+j),2)}, v{t1}, s[{SRD_A}:{SRD_A+3}], 0 offen offset:{64*T+16*j}", tag='bias')
    dma_w(1); dma_w(2)
    if OPT['mega']:
        a(f"s_lshl_b32 s{T0}, s{S_RB}, 7")
        a(f"s_add_u32 s{T0}, s{T0}, {WS_FLAG + FY}")
        a(f"v_lshlrev_b32 v{t2}, 2, v1")
        a(f"v_add_u32 v{t2}, s{T0}, v{t2}")
        a(f"s_mov_b64 s[{T4}:{T4+1}], 0xffff")
        vm = list(a.vm)
        wait_flags(a, t2, t3, T4)
        a.vm = vm
    a(f"s_lshl_b32 s{T0}, s{S_RB}, 2")
    a(f"s_add_u32 s{T0}, s{T0}, s{S_W}")
    a(f"s_mul_i32 s{T1}, s{T0}, {40*1024}")
    a(f"s_add_u32 s{S_KX}, s{T1}, {WS_Y}")
    a(f"v_lshlrev_b32 v{VY}, 4, v1")
    def ld_y(s):
        if s % 4 == 0 and s > 0:
            a(f"s_add_u32 s{S_KX}, s{S_KX}, 4096")
        a(f"buffer_load_dwordx4 {vr(YR+4*(s % NY),4)}, v{VY}, s[{SRD_WS}:{SRD_WS+3}], s{S_KX} offen offset:{(s % 4)*1024} sc1", tag=('Y', s))
    for s in range(YD): ld_y(s)
    a(f"v_bfe_u32 v{t2}, v1, 2, 2")
    a(f"v_lshl_add_u32 v{t1}, v{t0}, 3, v{t2}")
    a(f"v_lshlrev_b32 v{t1}, 8, v{t1}")
    a(f"v_bfe_u32 v{t3}, v1, 4, 1")
    a(f"v_lshl_add_u32 v{t1}, v{t3}, 5, v{t1}")
    a(f"v_and_b32 v{t3}, 3, v1")
    a(f"v_lshl_add_u32 v{t1}, v{t3}, 3, v{t1}")
    for ft in range(4):
        a(f"v_xor_b32 v{t3}, {ft}, v{t2}")
        a(f"v_lshl_add_u32 v{VWF+ft}, v{t3}, 6, v{t1}")
    a.wait_vm('bias')
    for T in range(4):
        for j in range(4):
            s_ = AS[0] + 2*(4*T+j); d = ACC + 16*T + 4*j
            a(f"v_lshlrev_b32 v{d}, 16, v{s_}")
            a(f"v_and_b32 v{d+1}, 0xffff0000, v{s_}")
            a(f"v_lshlrev_b32 v{d+2}, 16, v{s_+1}")
            a(f"v_and_b32 v{d+3}, 0xffff0000, v{s_+1}")
    def rd_a(s, ft, rd):
        b = s >> 2; u = s & 3
        a(f"ds_read_b64_tr_b16 {vr(AS[s % 3]+4*ft+2*rd,2)}, v{VWF+ft} offset:{(b % 4)*16384 + u*4096 + rd*1024}", tag=('A', s, ft))
    a.wait_vm(('W', 0))
    a("s_barrier")
    for s in range(2):
        for ft in range(4):
            rd_a(s, ft, 0); rd_a(s, ft, 1)
    NS = 40
    mark(a)
    for s in range(NS):
        b = s >> 2; u = s & 3
        if u == 2 and b + 1 < 10:
            a.wait_vm(('W', b + 1))
            a("s_barrier")
            if b + 3 < 10: dma_w(b + 3)
        a.wait_vm(('Y', s))
        for ft in range(4):
            a.wait_lg(('A', s, ft))
            d = vr(ACC+16*ft, 16)
            a(f"v_mfma_f32_32x32x16_bf16 {d}, {vr(AS[s % 3]+4*ft,4)}, {vr(YR+4*(s % NY),4)}, {d}")
            if s + 2 < NS:
                rd_a(s + 2, ft, 0); rd_a(s + 2, ft, 1)
            if ft == 1 and s + YD < NS:
                ld_y(s + YD)
    mark(a)
    C0, C1 = 2, 3
    a(f"v_mov_b32 v{C0}, 0xc0135761")
    a(f"v_mov_b32 v{C1}, 0xbdd2d3e8")
    a(f"s_lshl_b32 s{T0}, s{S_RB}, 2")
    a(f"s_add_u32 s{T0}, s{T0}, s{S_W}")
    a(f"s_mul_i32 s{T0}, s{T0}, 108")
    a(f"s_lshl_b32 s{T1}, s{S_CJ}, 3")
    a(f"s_add_u32 s{T0}, s{T0}, s{T1}")
    a(f"s_lshl_b32 s{T0}, s{T0}, 10")
    a(f"s_add_u32 s{T0}, s{T0}, {WS_H}")
    a(f"s_add_u32 s{T1}, s{T0}, 4096")
    TU, TE = 20, 28
    k = 0
    for T in range(4):
        if T == 2:
            a(f"s_cmp_eq_u32 s{S_CJ}, 13")
            a(f"s_cbranch_scc1 {lbl}_pub")
        for jj in range(2):
            x = ACC + 16*T + 8*jj
            for e in range(8): a(f"v_mul_f32 v{TU+e}, v{x+e}, v{x+e}")
            for e in range(8): a(f"v_fma_f32 v{TU+e}, v{TU+e}, v{C1}, v{C0}")
            for e in range(8): a(f"v_mul_f32 v{TU+e}, v{TU+e}, v{x+e}")
            for e in range(8): a(f"v_exp_f32 v{TE+e}, v{TU+e}")
            for e in range(8): a(f"v_add_f32 v{TE+e}, 1.0, v{TE+e}")
            for e in range(8): a(f"v_rcp_f32 v{TE+e}, v{TE+e}")
            for e in range(8): a(f"v_mul_f32 v{TE+e}, v{TE+e}, v{x+e}")
            d = 40 + 4*(k % 4); k += 1
            for e in range(4): a(f"v_cvt_pk_bf16_f32 v{d+e}, v{TE+2*e}, v{TE+2*e+1}")
            so = T0 if T < 2 else T1
            a(f"buffer_store_dwordx4 {vr(d,4)}, v{VY}, s[{SRD_WS}:{SRD_WS+3}], s{so} offen offset:{((2*T+jj) % 4)*1024} sc1")
    a.label(f"{lbl}_pub")
    mark(a)
    if OPT['mega']:
        a(f"s_lshl_b32 s{T0}, s{S_RB}, 7")
        a(f"s_lshl_b32 s{T1}, s{S_CJ}, 2")
        a(f"s_add_u32 s{T0}, s{T0}, s{T1}")
        a(f"s_add_u32 s{T0}, s{T0}, {WS_FLAG + FH}")
        publish(a, T0, 12)
    a.label(f"{lbl}_skip")
    a.reset_counters()

PST = 3104
LK, LV, LONES = 0, 10*PST, 20*PST
def stage_attn(a, lbl):
    a(f"s_lshl_b32 s{T0}, s{S_X}, 1")
    a(f"s_and_b32 s{T1}, s{S_I}, 1")
    a(f"s_add_u32 s{S_CJ}, s{T0}, s{T1}")
    a(f"s_lshr_b32 s{S_RB}, s{S_I}, 1")
    HP = S_CJ
    VD, VK, VV, VT = 2, 3, 4, 6
    t0, t1, t2, t3, t4 = VT, VT+1, VT+2, VT+3, VT+4
    MK = 12
    Q0, Q1 = 20, 24
    KF = [28, 36]
    VF = [44, 48, 52, 56]
    PF = [60, 64, 68, 72]
    OA = 76
    LO = 92
    CS, NM = 96, 97
    MX = 98
    S = 104
    QH = 248
    if OPT['mega']:
        a(f"v_lshrrev_b32 v{t0}, 4, v1")
        a(f"s_sub_u32 s{T0}, s{S_RB}, 2")
        a(f"v_add_u32 v{t0}, s{T0}, v{t0}")
        a(f"v_and_b32 v{t1}, 15, v1")
        a(f"v_cmp_le_i32 s[{T4}:{T4+1}], 0, v{t0}")
        a(f"v_cmp_gt_u32 s[{T2}:{T2+1}], 15, v{t1}")
        a(f"s_and_b64 s[{T4}:{T4+1}], s[{T4}:{T4+1}], s[{T2}:{T2+1}]")
        a(f"s_mov_b64 s[{T2}:{T2+1}], 0xffffffffffff") if False else None
        a(f"s_mov_b32 s{T2}, -1")
        a(f"s_mov_b32 s{T2+1}, 0xffff")
        a(f"s_and_b64 s[{T4}:{T4+1}], s[{T4}:{T4+1}], s[{T2}:{T2+1}]")
        a(f"v_lshlrev_b32 v{t0}, 7, v{t0}")
        a(f"v_lshl_add_u32 v{t0}, v{t1}, 2, v{t0}")
        a(f"v_add_u32 v{t0}, {WS_FLAG + FQ}, v{t0}")
        wait_flags(a, t0, t1, T4)
    a(f"s_sub_u32 s{T0}, s{S_RB}, 2")
    a(f"s_lshl_b32 s{T0}, s{T0}, 7")
    a(f"s_mul_i32 s{T1}, s{S_W}, 96")
    a(f"s_add_u32 s{T0}, s{T0}, s{T1}")
    a(f"v_lshlrev_b32 v{t0}, 1, v1")
    a(f"v_add_u32 v{t0}, s{T0}, v{t0}")
    a(f"v_lshlrev_b32 v{t1}, 3, v{t0}")
    a(f"v_mov_b32 v{t2}, 0x7ffffff0")
    a(f"v_cmp_le_i32 s[{T4}:{T4+1}], 0, v{t0}")
    a(f"v_cndmask_b32 v{VD}, v{t2}, v{t1}, s[{T4}:{T4+1}]")
    a(f"s_mul_i32 s{T2}, s{HP}, {10*16384}")
    a(f"s_add_u32 s{T2}, s{T2}, {WS_QKV + 160*16384}")
    a(f"s_mul_i32 s{T3}, s{S_W}, 768")
    a("s_mov_b32 exec_hi, 0xffff")
    for ty in range(2):
        for p in range(10):
            a(f"s_add_u32 m0, s{T3}, {(LK if ty == 0 else LV) + p*PST}")
            a(f"s_add_u32 s{S_KX}, s{T2}, {(ty*160 + p)*16384}")
            a(f"buffer_load_dwordx4 v{VD}, s[{SRD_WS}:{SRD_WS+3}], s{S_KX} offen sc1 lds", tag=('kv', ty))
    a("s_mov_b32 exec_hi, -1")
    a(f"s_lshl_b32 s{T0}, s{S_RB}, 2")
    a(f"s_add_u32 s{T0}, s{T0}, s{S_W}")
    S_QB = 61
    a(f"s_mov_b32 s{S_QB}, s{T0}")
    a(f"v_and_b32 v{t0}, 31, v1")
    a(f"v_lshrrev_b32 v{t1}, 5, v1")
    a(f"s_lshl_b32 s{T1}, s{T0}, 8")
    a(f"v_lshlrev_b32 v{t2}, 3, v{t0}")
    a(f"v_add_u32 v{t2}, s{T1}, v{t2}")
    a(f"v_lshl_add_u32 v{t3}, v{t1}, 15, v{t2}")
    a(f"s_mul_i32 s{T2}, s{HP}, {10*16384}")
    a(f"s_add_u32 s{T2}, s{T2}, {WS_QKV}")
    QR = [Q0, QH]
    for hh in range(2):
        q0 = Q0 if hh == 0 else QH
        q1 = Q1 if hh == 0 else QH + 4
        a(f"s_add_u32 s{T1}, s{T2}, {hh*5*16384}")
        a(f"buffer_load_dwordx2 {vr(q0,2)}, v{t3}, s[{SRD_WS}:{SRD_WS+3}], s{T1} offen sc1", tag='q')
        a(f"s_add_u32 s{T1}, s{T1}, 16384")
        a(f"buffer_load_dwordx2 {vr(q0+2,2)}, v{t3}, s[{SRD_WS}:{SRD_WS+3}], s{T1} offen sc1", tag='q')
        a(f"s_add_u32 s{T1}, s{T1}, {3*16384}")
        a(f"buffer_load_dwordx2 {vr(q1,2)}, v{t2}, s[{SRD_WS}:{SRD_WS+3}], s{T1} offen sc1", tag='q')
    a(f"v_mov_b32 v{KF[0]}, 0x3f803f80")
    for r in range(1, 4): a(f"v_mov_b32 v{KF[0]+r}, 0x3f803f80")
    a(f"v_lshlrev_b32 v{t4}, 4, v0")
    a(f"v_add_u32 v{t4}, {LONES}, v{t4}")
    a(f"v_cmp_gt_u32 vcc, 208, v0")
    a(f"s_and_saveexec_b64 s[{T4}:{T4+1}], vcc")
    a(f"ds_write_b128 v{t4}, {vr(KF[0],4)}")
    a(f"s_mov_b64 exec, s[{T4}:{T4+1}]")
    a(f"v_lshlrev_b32 v{t2}, 2, v{t1}")
    a(f"v_sub_u32 v{t2}, v{t0}, v{t2}")
    for r in range(16):
        a(f"v_cmp_le_i32 s[{S_MASK+2*r}:{S_MASK+2*r+1}], {8*(r >> 2) + (r & 3)}, v{t2}")
    a(f"v_mov_b32 v{t3}, 0xffff")
    a(f"v_mov_b32 v{t4}, 0xffff0000")
    for q in range(8):
        a(f"v_cndmask_b32 v{MK+q}, 0, v{t3}, s[{S_MASK+4*q}:{S_MASK+4*q+1}]")
        a(f"v_cndmask_b32 v{KF[1]}, 0, v{t4}, s[{S_MASK+4*q+2}:{S_MASK+4*q+3}]")
        a(f"v_or_b32 v{MK+q}, v{MK+q}, v{KF[1]}")
    a(f"s_lshl_b32 s{T0}, s{S_W}, 8")
    a(f"v_lshlrev_b32 v{t2}, 3, v{t0}")
    a(f"v_add_u32 v{t2}, s{T0}, v{t2}")
    a(f"s_movk_i32 s{T1}, {2*PST}")
    a(f"v_mul_lo_u32 v{t3}, v{t1}, s{T1}")
    a(f"v_add_u32 v{VK}, v{t2}, v{t3}")
    VKX = 11
    a(f"v_add_u32 v{VKX}, {4*PST}, v{t2}")
    a(f"v_bfe_u32 v{t2}, v1, 4, 1")
    a(f"v_and_b32 v{t3}, 3, v1")
    a(f"v_lshl_add_u32 v{t2}, v{t2}, 2, v{t3}")
    a(f"v_bfe_u32 v{t3}, v1, 2, 2")
    a(f"v_lshl_add_u32 v{t3}, v{t1}, 2, v{t3}")
    a(f"v_lshlrev_b32 v{t3}, 3, v{t3}")
    a(f"v_add_u32 v{t3}, s{T0}, v{t3}")
    a(f"s_movk_i32 s{T1}, {PST}")
    a(f"v_mul_lo_u32 v{t4}, v{t2}, s{T1}")
    a(f"v_cmp_gt_u32 s[{T4}:{T4+1}], 5, v{t2}")
    for hh in range(2):
        vb = LV + hh*5*PST
        a(f"v_lshlrev_b32 v{KF[0]}, 5, v{t2}")
        a(f"v_add_u32 v{KF[0]}, {(vb - LONES) % 256}, v{KF[0]}")
        a(f"v_and_b32 v{KF[0]}, 255, v{KF[0]}")
        a(f"v_add_u32 v{KF[0]}, {LONES}, v{KF[0]}")
        a(f"v_add_u32 v{KF[0]+1}, {vb}, v{t4}")
        a(f"v_cndmask_b32 v{KF[0]}, v{KF[0]}, v{KF[0]+1}, s[{T4}:{T4+1}]")
        a(f"v_add_u32 v{VV+hh}, v{KF[0]}, v{t3}")
    a(f"v_mov_b32 v{CS}, 0x3ea52b5c")
    for st in range(2):
        a(f"v_mov_b32 v{KF[st]+6}, 0"); a(f"v_mov_b32 v{KF[st]+7}, 0")
    a(f"v_mov_b32 v{Q1+2}, 0"); a(f"v_mov_b32 v{Q1+3}, 0")
    a.wait_vm('q')
    a(f"v_cmp_gt_u32 s[{T4}:{T4+1}], 32, v1")
    for q in (Q1, Q1+1, QH+4, QH+5):
        a(f"v_cndmask_b32 v{q}, 0, v{q}, s[{T4}:{T4+1}]")
    a("s_waitcnt vmcnt(0) lgkmcnt(0)")
    a("s_barrier")
    a.reset_counters()
    mark(a)
    NEG = 0xf149f2ca
    for hh in range(2):
        if hh == 1:
            for r in range(4): a(f"v_mov_b32 v{Q0+r}, v{QH+r}")
            a(f"v_mov_b32 v{Q1}, v{QH+4}"); a(f"v_mov_b32 v{Q1+1}, v{QH+5}")
        ko = hh*5*PST
        def rd_k(tl):
            st = KF[tl % 2]
            a(f"ds_read_b64 {vr(st,2)}, v{VK} offset:{ko + tl*256}", tag=('k', tl))
            a(f"ds_read_b64 {vr(st+2,2)}, v{VK} offset:{ko + PST + tl*256}", tag=('k', tl))
            a(f"ds_read_b64 {vr(st+4,2)}, v{VKX} offset:{ko + tl*256}", tag=('k', tl))
        rd_k(0)
        for tl in range(9):
            if tl + 1 < 9: rd_k(tl + 1)
            a.wait_lg(('k', tl))
            st = KF[tl % 2]; d = vr(S+16*tl, 16)
            a(f"v_mfma_f32_32x32x16_bf16 {d}, {vr(st,4)}, {vr(Q0,4)}, 0")
            a(f"v_mfma_f32_32x32x16_bf16 {d}, {vr(st+4,4)}, {vr(Q1,4)}, {d}")
        a(f"s_cmp_ge_u32 s{S_QB}, 8")
        a(f"s_cbranch_scc1 {lbl}_full{hh}")
        for tl in range(8):
            a(f"s_cmp_ge_u32 s{S_QB}, {8-tl}")
            a(f"s_cbranch_scc1 {lbl}_full{hh}")
            a("s_nop 7"); a("s_nop 7")
            for r in range(16): a(f"v_mov_b32 v{S+16*tl+r}, {hex(NEG)}")
        a.label(f"{lbl}_full{hh}")
        a("s_nop 7"); a("s_nop 3")
        for r in range(16):
            a(f"v_cndmask_b32 v{S+r}, v{S+r}, v{S+128+r}, s[{S_MASK+2*r}:{S_MASK+2*r+1}]")
        for c in range(4):
            a(f"v_max3_f32 v{MX+c}, v{S+32*c}, v{S+32*c+1}, v{S+32*c+2}")
        for k in range(3, 31, 2):
            for c in range(4):
                a(f"v_max3_f32 v{MX+c}, v{MX+c}, v{S+32*c+k}, v{S+32*c+k+1}")
        for c in range(4):
            a(f"v_max_f32 v{MX+c}, v{MX+c}, v{S+32*c+31}")
        a(f"v_max3_f32 v{MX}, v{MX}, v{MX+1}, v{MX+2}")
        a(f"v_max_f32 v{MX}, v{MX}, v{MX+3}")
        a(f"v_mov_b32 v{MX+1}, v{MX}")
        a(f"v_permlane32_swap_b32 v{MX}, v{MX+1}")
        a(f"v_max_f32 v{MX}, v{MX}, v{MX+1}")
        a(f"v_mul_f32 v{NM}, v{CS}, v{MX}")
        a(f"v_sub_f32 v{NM}, 0, v{NM}")
        mark(a)
        def rd_v(tl, kk, slot):
            for rd in range(2):
                a(f"ds_read_b64_tr_b16 {vr(VF[slot]+2*rd,2)}, v{VV+hh} offset:{tl*256 + kk*128 + rd*64}", tag=('v', tl, kk))
        seq = [(1 + q // 2, q % 2) for q in range(14)]
        nv = 0
        vq = []
        def next_v(tl, kk):
            nonlocal nv
            slot = nv % 4; nv += 1
            rd_v(tl, kk, slot); return slot
        first = True
        pslot = 0
        def softmax_frag(src):
            nonlocal pslot
            p = PF[pslot % 4]; pslot += 1
            for e in range(8): a(f"v_fma_f32 v{src+e}, v{src+e}, v{CS}, v{NM}")
            for e in range(8): a(f"v_exp_f32 v{src+e}, v{src+e}")
            for e in range(4): a(f"v_cvt_pk_bf16_f32 v{p+e}, v{src+2*e}, v{src+2*e+1}")
            return p
        def pv(p, slot, tag):
            nonlocal first
            a.wait_lg(tag)
            c = "0" if first else vr(OA,16)
            a(f"v_mfma_f32_32x32x16_bf16 {vr(OA,16)}, {vr(VF[slot],4)}, {vr(p,4)}, {c}")
            first = False
        for (tl, kk) in seq:
            slot = next_v(tl, kk)
            p = softmax_frag(S + 16*tl + 8*kk)
            pv(p, slot, ('v', tl, kk))
        for kk in range(2):
            s0 = next_v(0, kk); s8 = next_v(8, kk)
            p = softmax_frag(S + 8*kk)
            p8 = PF[pslot % 4]; pslot += 1
            for e in range(4):
                a(f"v_and_b32 v{p8+e}, v{p+e}, v{MK+4*kk+e}")
            for e in range(4):
                a(f"v_xor_b32 v{p+e}, v{p+e}, v{p8+e}")
            pv(p, s0, ('v', 0, kk))
            pv(p8, s8, ('v', 8, kk))
        a(f"v_rcp_f32 v{NM}, v{OA+12}")
        for r in range(12): a(f"v_mul_f32 v{OA+r}, v{OA+r}, v{NM}")
        for e in range(4): a(f"v_cvt_pk_bf16_f32 v{PF[0]+e}, v{OA+2*e}, v{OA+2*e+1}")
        a(f"v_cvt_pk_bf16_f32 v{LO+2*hh}, v{OA+8}, v{OA+9}")
        a(f"v_cvt_pk_bf16_f32 v{LO+2*hh+1}, v{OA+10}, v{OA+11}")
        a(f"s_mul_i32 s{T0}, s{S_QB}, 40")
        a(f"s_lshl_b32 s{T1}, s{HP}, 1")
        a(f"s_add_u32 s{T1}, s{T1}, {hh}")
        a(f"s_add_u32 s{T0}, s{T0}, s{T1}")
        a(f"s_lshl_b32 s{T0}, s{T0}, 10")
        a(f"s_add_u32 s{T0}, s{T0}, {WS_O}")
        a(f"v_lshlrev_b32 v{t0}, 4, v1")
        a(f"buffer_store_dwordx4 {vr(PF[0],4)}, v{t0}, s[{SRD_WS}:{SRD_WS+3}], s{T0} offen sc1")
    mark(a)
    a(f"s_mul_i32 s{T0}, s{S_QB}, 40")
    a(f"s_lshr_b32 s{T1}, s{HP}, 1")
    a(f"s_add_u32 s{T0}, s{T0}, s{T1}")
    a(f"s_add_u32 s{T0}, s{T0}, 32")
    a(f"s_lshl_b32 s{T0}, s{T0}, 10")
    a(f"s_and_b32 s{T1}, s{HP}, 1")
    a(f"s_lshl_b32 s{T1}, s{T1}, 9")
    a(f"s_add_u32 s{T0}, s{T0}, s{T1}")
    a(f"s_add_u32 s{T0}, s{T0}, {WS_O}")
    a("s_mov_b32 exec_hi, 0")
    a(f"buffer_store_dwordx4 {vr(LO,4)}, v{t0}, s[{SRD_WS}:{SRD_WS+3}], s{T0} offen sc1")
    a("s_mov_b32 exec_hi, -1")
    if OPT['mega']:
        a(f"s_lshl_b32 s{T0}, s{S_RB}, 7")
        a(f"s_lshl_b32 s{T1}, s{HP}, 2")
        a(f"s_add_u32 s{T0}, s{T0}, s{T1}")
        a(f"s_add_u32 s{T0}, s{T0}, {WS_FLAG + FO}")
        publish(a, T0, t1)
    a.reset_counters()

def stage_final(a, lbl):
    a(f"s_lshr_b32 s{T0}, s{S_X}, 1")
    a(f"s_lshl_b32 s{T0}, s{T0}, 3")
    a(f"s_and_b32 s{T1}, s{S_I}, 7")
    a(f"s_add_u32 s{S_RB}, s{T0}, s{T1}")
    a(f"s_and_b32 s{T0}, s{S_X}, 1")
    a(f"s_lshl_b32 s{T0}, s{T0}, 2")
    a(f"s_lshr_b32 s{T1}, s{S_I}, 3")
    a(f"s_add_u32 s{S_CJ}, s{T0}, s{T1}")
    srd(a, SRD_A, P_B2, SIZES['B2'])
    srd(a, SRD_B, P_OUT, SIZES['OUT'])
    VW, VA, VB, VT = 2, 3, 4, 6
    t0, t1, t2, t3 = VT, VT+1, VT+2, VT+3
    VG, VO, VF = 10, 11, 12
    AS = [20, 40, 60]
    ACB, ACA = 80, 100
    TR = 120; NT = 28; TD = 20
    NSTEP = 74; HS = 54
    PAIR = 10240; NSL = 7
    NP = NSTEP // 2
    if OPT['mega']:
        a(f"s_lshl_b32 s{T0}, s{S_CJ}, 7")
        a(f"s_add_u32 s{T0}, s{T0}, {WS_FLAG + FW}")
        a(f"v_lshlrev_b32 v{t2}, 2, v1")
        a(f"v_add_u32 v{t2}, s{T0}, v{t2}")
        a(f"s_mov_b32 s{T4}, -1")
        a(f"s_mov_b32 s{T4+1}, 0")
        wait_flags(a, t2, t3, T4)
    a(f"v_lshlrev_b32 v{VW}, 4, v1")
    a(f"s_mul_i32 s{T0}, s{S_CJ}, {WF_TILE}")
    a(f"s_mul_i32 s{T6}, s{S_W}, 2560")
    a(f"s_add_u32 s{T0}, s{T0}, s{T6}")
    a(f"s_add_u32 s{T7}, s{T0}, {WS_WF}")
    def dma_w(p):
        a(f"s_add_u32 m0, s{T6}, {(p % NSL)*PAIR}")
        a(f"s_add_u32 s{S_KW}, s{T7}, {p*PAIR}")
        a(f"buffer_load_dwordx4 v{VW}, s[{SRD_WS}:{SRD_WS+3}], s{S_KW} offen sc1 lds", tag=('W', p))
        a(f"buffer_load_dwordx4 v{VW}, s[{SRD_WS}:{SRD_WS+3}], s{S_KW} offen offset:1024 sc1 lds", tag=('W', p))
        a("s_mov_b32 exec_hi, 0")
        a(f"buffer_load_dwordx4 v{VW}, s[{SRD_WS}:{SRD_WS+3}], s{S_KW} offen offset:2048 sc1 lds", tag=('W', p))
        a("s_mov_b32 exec_hi, -1")
    for p in range(NSL - 1): dma_w(p)
    if OPT['mega'] and OPT['pf_wf']:
        nl = (WF_TILE - (NSL-1)*PAIR) // 128
        per = (nl + 7) // 8
        a(f"s_and_b32 s{T0}, s{S_I}, 7")
        a(f"s_mul_i32 s{T0}, s{T0}, {per*128}")
        a(f"s_mul_i32 s{T1}, s{S_CJ}, {WF_TILE}")
        a(f"s_add_u32 s{T0}, s{T0}, s{T1}")
        a(f"s_add_u32 s{T0}, s{T0}, {WS_WF + (NSL-1)*PAIR}")
        a(f"v_lshlrev_b32 v{t2}, 7, v0")
        a(f"v_add_u32 v{t2}, s{T0}, v{t2}")
        a(f"v_mov_b32 v{t3}, 0x7ffffff0")
        a(f"s_movk_i32 s{T1}, {per}")
        for k in range((per + 255) // 256):
            a(f"v_add_u32 v{t1}, {256*k}, v0")
            a(f"v_cmp_gt_u32 s[{T4}:{T4+1}], s{T1}, v{t1}")
            a(f"v_cndmask_b32 v{t1}, v{t3}, v{t2}, s[{T4}:{T4+1}]")
            a(f"buffer_load_dword v14, v{t1}, s[{SRD_WS}:{SRD_WS+3}], 0 offen sc1", tag='touch')
            a(f"v_add_u32 v{t2}, {256*128}, v{t2}")
    a(f"v_lshrrev_b32 v{t0}, 4, v1")
    a(f"v_lshlrev_b32 v{t1}, 3, v{t0}")
    a(f"s_mul_i32 s{T0}, s{S_CJ}, 160")
    a(f"v_add_u32 v{t1}, s{T0}, v{t1}")
    for F in range(5):
        a(f"buffer_load_dwordx2 {vr(AS[0]+2*F,2)}, v{t1}, s[{SRD_A}:{SRD_A+3}], 0 offen offset:{32*F}", tag='bias')
    if OPT['mega']:
        a(f"s_lshr_b32 s{T0}, s{S_RB}, 1")
        a(f"s_lshl_b32 s{T0}, s{T0}, 7")
        a(f"s_add_u32 s{T1}, s{T0}, {WS_FLAG + FH}")
        a(f"v_lshlrev_b32 v{t2}, 2, v1")
        a(f"v_add_u32 v{t2}, s{T1}, v{t2}")
        a(f"s_mov_b64 s[{T4}:{T4+1}], 0x3fff")
        a(f"s_add_u32 s{T1}, s{T0}, {WS_FLAG + FO}")
        a(f"v_and_b32 v{VF}, 15, v1")
        a(f"v_lshlrev_b32 v{VF}, 2, v{VF}")
        a(f"v_add_u32 v{VF}, s{T1}, v{VF}")
        vm = list(a.vm)
        wait_flags(a, t2, t3, T4)
        a.vm = vm
    a(f"v_lshrrev_b32 v{t1}, 5, v1")
    a(f"v_bfe_u32 v{t2}, v1, 4, 1")
    a(f"v_lshlrev_b32 v{t1}, 10, v{t1}")
    a(f"v_lshl_add_u32 v{t1}, v{t2}, 9, v{t1}")
    a(f"v_and_b32 v{t2}, 15, v1")
    a(f"s_and_b32 s{T0}, s{S_W}, 1")
    a(f"s_lshl_b32 s{T0}, s{T0}, 4")
    a(f"v_add_u32 v{t3}, s{T0}, v{t2}")
    a(f"v_lshl_add_u32 v{VB}, v{t3}, 4, v{t1}")
    a(f"s_lshl_b32 s{T0}, s{S_RB}, 1")
    a(f"s_lshr_b32 s{T1}, s{S_W}, 1")
    a(f"s_add_u32 s{T0}, s{T0}, s{T1}")
    S_HB, S_OB = 62, 63
    a(f"s_mul_i32 s{T1}, s{T0}, {108*1024}")
    a(f"s_add_u32 s{S_HB}, s{T1}, {WS_H}")
    a(f"s_mul_i32 s{T1}, s{T0}, {40*1024}")
    a(f"s_add_u32 s{S_OB}, s{T1}, {WS_O}")
    def ld_t(s):
        if s < HS: sb, k = S_HB, s
        else: sb, k = S_OB, s - HS
        if k % 2 == 0 and k > 0:
            a(f"s_add_u32 s{sb}, s{sb}, 4096")
        a(f"buffer_load_dwordx4 {vr(TR+4*(s % NT),4)}, v{VB}, s[{SRD_WS}:{SRD_WS+3}], s{sb} offen offset:{(k % 2)*2048} sc1", tag=('T', s))
    for s in range(TD): ld_t(s)
    a(f"s_lshl_b32 s{T0}, s{S_RB}, 6")
    a(f"s_lshl_b32 s{T1}, s{S_W}, 4")
    a(f"s_add_u32 s{T0}, s{T0}, s{T1}")
    a(f"v_add_u32 v{t2}, s{T0}, v{t2}")
    a(f"v_lshlrev_b32 v{t3}, 2, v{t2}")
    a(f"v_add_u32 v{t3}, {WS_G}, v{t3}")
    a(f"buffer_load_dword v{VG}, v{t3}, s[{SRD_WS}:{SRD_WS+3}], 0 offen sc1", tag='g')
    a(f"s_movk_i32 s{T1}, 1280")
    a(f"v_mul_lo_u32 v{t2}, v{t2}, s{T1}")
    a(f"s_mul_i32 s{T0}, s{S_CJ}, 160")
    a(f"v_lshl_add_u32 v{t2}, v{t0}, 3, v{t2}")
    a(f"v_add_u32 v{VO}, s{T0}, v{t2}")
    a(f"v_lshrrev_b32 v{t1}, 5, v1")
    a(f"v_bfe_u32 v{t2}, v1, 4, 1")
    a(f"v_lshlrev_b32 v{t1}, 4, v{t1}")
    a(f"v_lshl_add_u32 v{t1}, v{t2}, 2, v{t1}")
    a(f"v_bfe_u32 v{t2}, v1, 2, 2")
    a(f"v_add_u32 v{t1}, v{t1}, v{t2}")
    a(f"v_mul_u32_u24 v{t1}, 160, v{t1}")
    a(f"v_and_b32 v{t2}, 3, v1")
    a(f"v_lshl_add_u32 v{VA}, v{t2}, 3, v{t1}")
    VA2 = 5
    a(f"v_add_u32 v{VA2}, {4*PAIR}, v{VA}")
    a.wait_vm('bias')
    for F in range(5):
        s_ = AS[0] + 2*F; d = ACB + 4*F
        a(f"v_lshlrev_b32 v{d}, 16, v{s_}")
        a(f"v_and_b32 v{d+1}, 0xffff0000, v{s_}")
        a(f"v_lshlrev_b32 v{d+2}, 16, v{s_+1}")
        a(f"v_and_b32 v{d+3}, 0xffff0000, v{s_+1}")
    def rd_a(s, F, rd):
        p = s >> 1; u = s & 1
        sl = p % NSL
        base, off = (VA, sl*PAIR) if sl < 4 else (VA2, (sl-4)*PAIR)
        a(f"ds_read_b64_tr_b16 {vr(AS[s % 3]+4*F+2*rd,2)}, v{base} offset:{off + u*5120 + rd*1280 + F*32}", tag=('A', s, F))
    a.wait_vm(('W', 0))
    a("s_barrier")
    for s in range(2):
        for F in range(5):
            rd_a(s, F, 0); rd_a(s, F, 1)
    mark(a)
    POLL = HS - TD - 6
    for s in range(NSTEP):
        p = s >> 1; u = s & 1
        if s == HS: mark(a)
        if u == 0 and p + 1 < NP:
            a.wait_vm(('W', p + 1))
            a("s_barrier")
            if p + NSL - 1 < NP: dma_w(p + NSL - 1)
        if OPT['mega'] and s == POLL:
            a(f"buffer_load_dword v{VF+1}, v{VF}, s[{SRD_WS}:{SRD_WS+3}], 0 offen sc1", tag='fo')
        if OPT['mega'] and s + TD == HS:
            L = uid("fo")
            a.wait_vm('fo')
            vm_keep = list(a.vm)
            a.label(L)
            a(f"v_cmp_ne_u32 vcc, s{S_NONCE}, v{VF+1}")
            a("s_nop 4")
            a(f"s_cbranch_vccz {L}_ok")
            a("s_sleep 1")
            a(f"buffer_load_dword v{VF+1}, v{VF}, s[{SRD_WS}:{SRD_WS+3}], 0 offen sc1")
            a("s_waitcnt vmcnt(0)")
            a(f"s_branch {L}")
            a.label(f"{L}_ok")
            a.vm = vm_keep
        a.wait_vm(('T', s))
        for F in range(5):
            a.wait_lg(('A', s, F))
            acc = (ACB if s < HS else ACA) + 4*F
            d = vr(acc, 4)
            c = "0" if s == HS else d
            a(f"v_mfma_f32_16x16x32_bf16 {d}, {vr(AS[s % 3]+4*F,4)}, {vr(TR+4*(s % NT),4)}, {c}")
            if s + 2 < NSTEP:
                rd_a(s + 2, F, 0); rd_a(s + 2, F, 1)
            if F == 2 and s + TD < NSTEP:
                ld_t(s + TD)
    mark(a)
    a.wait_vm('g')
    a(f"v_sub_f32 v{t0}, 1.0, v{VG}")
    for r in range(20):
        a(f"v_mul_f32 v{ACB+r}, v{ACB+r}, v{t0}")
    for r in range(20):
        a(f"v_fmac_f32 v{ACB+r}, v{ACA+r}, v{VG}")
    for F in range(5):
        d = AS[0] + 2*F
        a(f"v_cvt_pk_bf16_f32 v{d}, v{ACB+4*F}, v{ACB+4*F+1}")
        a(f"v_cvt_pk_bf16_f32 v{d+1}, v{ACB+4*F+2}, v{ACB+4*F+3}")
        a(f"buffer_store_dwordx2 {vr(d,2)}, v{VO}, s[{SRD_B}:{SRD_B+3}], 0 offen offset:{32*F}")
    a.reset_counters()

def start_prefetch(a, role):
    if OPT['pf_code']:
        prefetch_code(a, "L_endA" if role == 'A' else "L_endB", 1 if role == 'A' else 2)
    if role == 'B' and OPT['pf_w1']:
        L = uid("pw")
        a(f"s_lshr_b32 s{T1}, s{S_I}, 2")
        a(f"s_cmp_ge_u32 s{T1}, 7")
        a(f"s_cbranch_scc1 {L}")
        a(f"s_and_b32 s{T0}, s{S_X}, 1")
        a(f"s_mul_i32 s{T0}, s{T0}, 7")
        a(f"s_add_u32 s{T0}, s{T0}, s{T1}")
        a(f"s_lshl_b32 s{T0}, s{T0}, 8")
        a(f"s_and_b32 s{T1}, s{S_I}, 3")
        a(f"s_mul_i32 s{T1}, s{T1}, {160*3456}")
        a(f"s_add_u32 s{T0}, s{T0}, s{T1}")
        srd(a, SRD_C, P_W1, SIZES['W1'])
        a("v_lshrrev_b32 v250, 1, v0")
        a(f"s_movk_i32 s{T1}, 3456")
        a(f"v_mul_lo_u32 v250, v250, s{T1}")
        a("v_and_b32 v251, 1, v0")
        a("v_lshl_add_u32 v250, v251, 7, v250")
        a(f"v_add_u32 v250, s{T0}, v250")
        vm = list(a.vm)
        a(f"buffer_load_dword v253, v250, s[{SRD_C}:{SRD_C+3}], 0 offen")
        a(f"v_add_u32 v250, {128*3456}, v250")
        a("v_mov_b32 v251, 0x7ffffff0")
        a(f"v_cmp_gt_u32 s[{T4}:{T4+1}], 64, v0")
        a(f"v_cndmask_b32 v250, v251, v250, s[{T4}:{T4+1}]")
        a(f"buffer_load_dword v253, v250, s[{SRD_C}:{SRD_C+3}], 0 offen")
        a.vm = vm
        a.label(L)

def build_multi():
    LDS = 73728
    ks = []
    def mk(name, fa, fb):
        a = Asm()
        a("s_cmp_ge_u32 s2, 512")
        a(f"s_cbranch_scc1 {name}_end")
        prologue(a)
        kidx = len(ks)
        stamp(a, kidx, 0)
        CTX['k'] = kidx; CTX['slot'] = 0
        a("s_cmp_ge_u32 s2, 256")
        a(f"s_cbranch_scc1 {name}_b")
        for n, f in enumerate(fa):
            f(a, name + "_" + f.__name__)
            if STAMPS: a("s_waitcnt vmcnt(0)"); mark(a)
        a(f"s_branch {name}_end")
        a.label(f"{name}_b")
        a.reset_counters()
        CTX['slot'] = 0
        for n, f in enumerate(fb):
            f(a, name + "_" + f.__name__)
            if STAMPS: a("s_waitcnt vmcnt(0)"); mark(a)
        a.label(f"{name}_end")
        ks.append((name, a.text()))
    if OPT.get('split'):
        mk("k1_kernel", [stage_qkv], [])
        mk("k2_kernel", [], [stage_ln, stage_repack])
        mk("k3_kernel", [stage_attn], [])
        mk("k4_kernel", [], [stage_ffn1])
        mk("k5_kernel", [], [stage_final])
        return ks, LDS
    mk("k1_kernel", [stage_qkv], [stage_ln, stage_repack])
    mk("k2_kernel", [stage_attn], [stage_ffn1])
    mk("k3_kernel", [], [stage_final])
    return ks, LDS

def build_mega():
    OPT['mega'] = True
    LDS = 73728
    name = NAME + "_kernel"
    a = Asm()
    a("s_cmp_ge_u32 s2, 512")
    a("s_cbranch_scc1 L_end")
    prologue(a)
    nonce_post(a)
    stamp(a, 0, 0); CTX['k'] = 0; CTX['slot'] = 0
    a("s_cmp_ge_u32 s2, 256")
    a("s_cbranch_scc1 L_roleB")
    stage_qkv(a, "qkv"); mark(a)
    stage_attn(a, "attn"); mark(a)
    a("s_endpgm")
    a.label("L_endA")
    a.label("L_roleB")
    a.reset_counters(); CTX['slot'] = 0
    stage_ln(a, "ln"); mark(a)
    stage_repack(a, "rp"); mark(a)
    stage_ffn1(a, "ffn1"); mark(a)
    stage_final(a, "fin")
    if STAMPS: a("s_waitcnt vmcnt(0)")
    mark(a)
    a.label("L_endB")
    a.label("L_end")
    return [(name, a.text())], LDS

def header_comment():
    ref = open("cdna_kernels/" + NAME + ".s.ref").read().split("\n")
    return [l for l in ref if l.startswith(";") and "@launch" not in l and "Override" not in l and "grid=ceil" not in l]

def emit(ks, LDS, grid=512):
    s = "\n".join(header_comment()) + "\n"
    if len(ks) == 1:
        s += f"; @launch grid=({grid},1,1) block=(256,1,1) lds={LDS}\n"
    else:
        for name, _ in ks:
            s += f"; @launch kernel={name} grid=({grid},1,1) block=(256,1,1) lds={LDS}\n"
    s += '.amdgcn_target "amdgcn-amd-amdhsa--gfx950"\n.text\n'
    for name, body in ks:
        s += kernel_text(name, body, grid, LDS)
    s += '.section .rodata,"a"\n'
    for name, _ in ks:
        s += ".p2align 6\n" + descriptor(name)
    return s

if __name__ == "__main__":
    mode = sys.argv[1] if len(sys.argv) > 1 else "multi"
    if "stamps" in sys.argv: STAMPS = True
    for arg in sys.argv[2:]:
        if "=" in arg:
            k, v = arg.split("="); OPT[k] = int(v)
    ks, LDS = build_multi() if mode == "multi" else build_mega()
    sys.stdout.write(emit(ks, LDS))
```

```python
import sys
from asmlib import Asm

NAME = "gated_mix__sliding_block__mixer_channel_mlp__prompt"

WS_Y    = 0x0000000
WS_G    = 0x0280000
WS_QKV  = 0x0300000
WS_H    = 0x0B00000
WS_O    = 0x1200000
WS_WF   = 0x1500000
WS_FLAG = 0x1800000
WS_STAMP = 0x1900000
WS_SIZE = 0x1A00000
WF_TILE = 2368 * 160
FY, FW, FQ, FH, FO = 0, 2048, 3072, 5120, 7168
OPT = dict(mega=False, rot=True, pf_code=True, pf_w1=True, pf_wf=True, tlb=True)

P_AX, P_WQKV, P_WO, P_BX, P_W1, P_B1, P_W2, P_B2 = 4, 6, 8, 10, 12, 14, 16, 18
P_GW, P_OUT, P_DBG, P_WS = 20, 22, 24, 26
SRD_A, SRD_B, SRD_WS, SRD_C = 28, 32, 36, 40
S_W, S_IDX, S_X, S_I = 44, 45, 46, 47
T0, T1, T2, T3, T4, T5, T6, T7 = 48, 49, 50, 51, 52, 53, 54, 55
S_RB, S_CJ = 56, 57
S_KX, S_KW, S_M0 = 58, 59, 60
S_MASK = 64
S_NONCE = 96
S_KO = 62

SIZES = dict(AX=2048*640*2, WQKV=640*1920*2, WO=640*640*2, BX=2048*640*2, W1=640*1728*2, B1=1728*2,
             W2=1728*640*2, B2=640*2, GW=640*2, OUT=2048*640*2)

def srd(a, dst, ptr, size):
    a(f"s_mov_b32 s{dst}, s{ptr}")
    a(f"s_and_b32 s{dst+1}, s{ptr+1}, 0xffff")
    a(f"s_mov_b32 s{dst+2}, {size}")
    a(f"s_mov_b32 s{dst+3}, 0x20000")

def vr(b, n=1):
    return f"v{b}" if n == 1 else f"v[{b}:{b+n-1}]"

def prologue(a):
    a("s_load_dwordx16 s[4:19], s[0:1], 0")
    a("s_load_dwordx8 s[20:27], s[0:1], 64")
    a("v_lshrrev_b32 v2, 6, v0")
    a("v_and_b32 v1, 63, v0")
    a(f"v_readfirstlane_b32 s{S_W}, v2")
    a(f"s_and_b32 s{S_IDX}, s2, 255")
    a(f"s_and_b32 s{S_X}, s2, 7")
    a(f"s_lshr_b32 s{S_I}, s{S_IDX}, 3")
    a("s_waitcnt lgkmcnt(0)")
    srd(a, SRD_WS, P_WS, WS_SIZE)


_uid = [0]
def uid(p):
    _uid[0] += 1
    return f"{p}_{_uid[0]}"

def nonce_post(a):
    L = uid("np")
    a(f"s_or_b32 s{T0}, s2, s{S_W}")
    a(f"s_cmp_lg_u32 s{T0}, 0")
    a(f"s_cbranch_scc1 {L}")
    a(f"s_memrealtime s[{T4}:{T4+1}]")
    a("s_waitcnt lgkmcnt(0)")
    a(f"s_or_b32 s{T4}, s{T4}, 1")
    a(f"v_mov_b32 v2, s{T4}")
    a("v_mov_b32 v3, 0")
    a("s_mov_b64 exec, 1")
    a(f"global_store_dword v3, v2, s[{P_DBG}:{P_DBG+1}] sc1")
    a("s_mov_b64 exec, -1")
    a.vm.pop()
    a.label(L)

def nonce_load(a, v):
    a(f"v_mov_b32 v{v+1}, 0")
    a(f"global_load_dword v{v}, v{v+1}, s[{P_DBG}:{P_DBG+1}] sc1", tag='nonce')

def nonce_get(a, v):
    L = uid("ng")
    a.wait_vm('nonce')
    a.label(L)
    a(f"v_readfirstlane_b32 s{S_NONCE}, v{v}")
    a(f"s_cmp_lg_u32 s{S_NONCE}, 0")
    a(f"s_cbranch_scc1 {L}_ok")
    a("s_sleep 2")
    a(f"global_load_dword v{v}, v{v+1}, s[{P_DBG}:{P_DBG+1}] sc1")
    a("s_waitcnt vmcnt(0)")
    a(f"s_branch {L}")
    a.label(f"{L}_ok")

def publish(a, sflag, v):
    L = uid("pub")
    a("s_waitcnt vmcnt(0)")
    a("s_barrier")
    a(f"s_cmp_lg_u32 s{S_W}, 0")
    a(f"s_cbranch_scc1 {L}")
    a(f"v_mov_b32 v{v}, s{S_NONCE}")
    a("s_mov_b64 exec, 1")
    a(f"buffer_store_dword v{v}, off, s[{SRD_WS}:{SRD_WS+3}], s{sflag} sc1")
    a("s_mov_b64 exec, -1")
    a.label(L)
    a.reset_counters()

def wait_flags(a, voff, vtmp, smask):
    L = uid("wf")
    a(f"s_cmp_lg_u32 s{S_W}, 0")
    a(f"s_cbranch_scc1 {L}_done")
    a(f"s_mov_b64 exec, s[{smask}:{smask+1}]")
    a.label(L)
    a(f"buffer_load_dword v{vtmp}, v{voff}, s[{SRD_WS}:{SRD_WS+3}], 0 offen sc1")
    a("s_waitcnt vmcnt(0)")
    a(f"v_cmp_ne_u32 vcc, s{S_NONCE}, v{vtmp}")
    a("s_nop 4")
    a(f"s_cbranch_vccz {L}_ok")
    a("s_sleep 1")
    a(f"s_branch {L}")
    a.label(f"{L}_ok")
    a("s_mov_b64 exec, -1")
    a.label(f"{L}_done")
    a("s_barrier")
    a.reset_counters()

def touch_lines(a, srd_, vbase, n, stride, dst, soff='0', sc=''):
    for k in range(n):
        a(f"buffer_load_dword v{dst}, v{vbase}, s[{srd_}:{srd_+3}], {soff} offen {sc}".rstrip(), tag='touch')
        if k + 1 < n: a(f"v_add_u32 v{vbase}, {stride}, v{vbase}")

def prefetch_code(a, lbl_end, per):
    L = uid("pc")
    a(f"s_getpc_b64 s[{T4}:{T4+1}]")
    a.label(L)
    a(f"s_mul_i32 s{T0}, s{S_W}, {per*8192}")
    a("v_lshlrev_b32 v252, 7, v1")
    a(f"v_add_u32 v252, s{T0}, v252")
    for k in range(per):
        a(f"v_min_u32 v251, {lbl_end}-{L}-4, v252")
        a(f"global_load_dword v253, v251, s[{T4}:{T4+1}]", tag='touch')
        if k + 1 < per: a("v_add_u32 v252, 8192, v252")

def stage_qkv(a, lbl):
    XS = [0, 16384, 32768]
    WB = 49152
    a(f"s_lshr_b32 s{T0}, s{S_X}, 1")
    a(f"s_lshl_b32 s{T0}, s{T0}, 2")
    a(f"s_and_b32 s{T1}, s{S_I}, 3")
    a(f"s_add_u32 s{S_RB}, s{T0}, s{T1}")
    a(f"s_and_b32 s{T0}, s{S_X}, 1")
    a(f"s_lshl_b32 s{T0}, s{T0}, 3")
    a(f"s_lshr_b32 s{T1}, s{S_I}, 2")
    a(f"s_add_u32 s{S_CJ}, s{T0}, s{T1}")
    a(f"s_cmp_ge_u32 s{S_CJ}, 15")
    a(f"s_cbranch_scc1 {lbl}_skip")
    srd(a, SRD_A, P_AX, SIZES['AX'])
    srd(a, SRD_B, P_WQKV, SIZES['WQKV'])
    VXD, VWD = 2, 6
    VXF, VWF = 8, 12
    VT = 14
    FB = [20, 36]
    ACC = 64
    t0, t1, t2, t3 = VT, VT+1, VT+2, VT+3
    a(f"s_lshl_b32 s{T0}, s{S_RB}, 7")
    a(f"s_lshl_b32 s{T1}, s{S_W}, 5")
    a(f"s_add_u32 s{T0}, s{T0}, s{T1}")
    a(f"v_lshrrev_b32 v{t0}, 3, v1")
    a(f"v_add_u32 v{t0}, s{T0}, v{t0}")
    a(f"s_movk_i32 s{T2}, 1280")
    a(f"v_mul_lo_u32 v{t0}, v{t0}, s{T2}")
    a(f"v_lshrrev_b32 v{t1}, 4, v1")
    a(f"v_and_b32 v{t2}, 7, v1")
    a(f"v_xor_b32 v{t2}, v{t2}, v{t1}")
    a(f"v_xor_b32 v{t3}, 4, v{t2}")
    for i in range(4):
        src = t2 if i % 2 == 0 else t3
        a(f"v_lshl_add_u32 v{VXD+i}, v{src}, 4, v{t0}")
        if i:
            a(f"v_add_u32 v{VXD+i}, {i*(8*1280-1024)}, v{VXD+i}")
    a(f"s_lshl_b32 s{T0}, s{S_W}, 3")
    a(f"v_lshrrev_b32 v{t0}, 4, v1")
    a(f"v_add_u32 v{t1}, s{T0}, v{t0}")
    a(f"s_movk_i32 s{T2}, 3840")
    a(f"v_mul_lo_u32 v{t1}, v{t1}, s{T2}")
    a(f"v_bfe_u32 v{t2}, v1, 2, 2")
    a(f"v_xor_b32 v{t2}, v{t2}, v{t0}")
    a(f"v_and_b32 v{t3}, 3, v1")
    a(f"v_lshl_add_u32 v{t2}, v{t2}, 2, v{t3}")
    a(f"v_lshl_add_u32 v{t1}, v{t2}, 4, v{t1}")
    a(f"s_lshl_b32 s{T0}, s{S_CJ}, 8")
    a(f"v_add_u32 v{VWD}, s{T0}, v{t1}")
    a(f"v_add_u32 v{VWD+1}, {4*3840-1024}, v{VWD}")
    a(f"s_lshl_b32 s{T6}, s{S_W}, 12")
    a(f"s_lshl_b32 s{T7}, s{S_W}, 11")
    if OPT['rot']:
        a(f"s_and_b32 s{T0}, s{S_I}, 3")
        a(f"s_mul_i32 s{T0}, s{T0}, 10")
        a(f"s_lshr_b32 s{T1}, s{S_I}, 2")
        a(f"s_mul_i32 s{T1}, s{T1}, 5")
        a(f"s_add_u32 s{T0}, s{T0}, s{T1}")
        a(f"s_lshr_b32 s{T0}, s{T0}, 2")
        a(f"s_sub_u32 s{T1}, s{T0}, 10")
        a(f"s_cmp_ge_u32 s{T0}, 10")
        a(f"s_cselect_b32 s{T0}, s{T1}, s{T0}")
        a(f"s_lshl_b32 s{S_KX}, s{T0}, 7")
        a(f"s_mul_i32 s{S_KW}, s{T0}, {64*3840}")
    else:
        a(f"s_mov_b32 s{S_KX}, 0")
        a(f"s_mov_b32 s{S_KW}, 0")
    def adv(sreg, step, wrap):
        a(f"s_add_u32 s{sreg}, s{sreg}, {step}")
        a(f"s_cmp_eq_u32 s{sreg}, {wrap}")
        a(f"s_cselect_b32 s{sreg}, 0, s{sreg}")
    def dma_x(b):
        a(f"s_add_u32 m0, s{T6}, {XS[b % 3]}")
        if b > 0: adv(S_KX, 128, 1280)
        for i in range(4):
            a(f"buffer_load_dwordx4 v{VXD+i}, s[{SRD_A}:{SRD_A+3}], s{S_KX} offen offset:{i*1024} lds", tag=('X', b))
    def dma_w(h):
        a(f"s_add_u32 m0, s{T7}, {WB + (h % 3)*8192}")
        if h > 0: adv(S_KW, 32*3840, 640*3840)
        for i in range(2):
            a(f"buffer_load_dwordx4 v{VWD+i}, s[{SRD_B}:{SRD_B+3}], s{S_KW} offen offset:{i*1024} lds", tag=('W', h))
    dma_x(0); dma_w(0); dma_w(1); dma_x(1)
    if OPT['mega']: start_prefetch(a, 'A')
    a(f"s_and_b32 s{T0}, s{S_W}, 1")
    a(f"s_lshl_b32 s{T0}, s{T0}, 13")
    a(f"v_and_b32 v{t0}, 31, v1")
    a(f"v_lshrrev_b32 v{t1}, 5, v1")
    a(f"v_bfe_u32 v{t2}, v1, 1, 3")
    a(f"v_lshlrev_b32 v{t0}, 7, v{t0}")
    a(f"v_add_u32 v{t0}, s{T0}, v{t0}")
    for s in range(4):
        a(f"v_or_b32 v{t3}, {2*s}, v{t1}")
        a(f"v_xor_b32 v{t3}, v{t3}, v{t2}")
        a(f"v_lshl_add_u32 v{VXF+s}, v{t3}, 4, v{t0}")
    a(f"v_bfe_u32 v{t0}, v1, 2, 2")
    a(f"v_lshl_add_u32 v{t1}, v{t1}, 3, v{t0}")
    a(f"v_lshlrev_b32 v{t1}, 8, v{t1}")
    a(f"v_bfe_u32 v{t2}, v1, 4, 1")
    a(f"v_lshl_add_u32 v{t1}, v{t2}, 5, v{t1}")
    a(f"v_and_b32 v{t2}, 3, v1")
    a(f"v_lshl_add_u32 v{t1}, v{t2}, 3, v{t1}")
    a(f"v_add_u32 v{t1}, {WB}, v{t1}")
    a(f"s_and_b32 s{T0}, s{S_W}, 2")
    for ft in range(2):
        a(f"s_or_b32 s{T1}, s{T0}, {ft}")
        a(f"v_xor_b32 v{t2}, s{T1}, v{t0}")
        a(f"v_lshl_add_u32 v{VWF+ft}, v{t2}, 6, v{t1}")
    def rd_b(st, hh, sp, tt):
        xb = hh >> 1; sx = 2*(hh & 1) + sp
        a(f"ds_read_b128 {vr(FB[st]+4*tt,4)}, v{VXF+sx} offset:{XS[xb % 3] + tt*4096}", tag=('f', hh, sp))
    def rd_a(st, hh, sp, ft, rd):
        a(f"ds_read_b64_tr_b16 {vr(FB[st]+8+4*ft+2*rd,2)}, v{VWF+ft} offset:{(hh % 3)*8192 + sp*4096 + rd*1024}", tag=('f', hh, sp))
    def mf(st, tt, ft, first):
        d = vr(ACC+16*(2*tt+ft), 16)
        c = "0" if first else d
        a(f"v_mfma_f32_32x32x16_bf16 {d}, {vr(FB[st]+8+4*ft,4)}, {vr(FB[st]+4*tt,4)}, {c}")
    NH = 20
    for hh in range(NH):
        if hh == 1: mark(a)
        a.wait_vm([('W', hh), ('X', hh >> 1)])
        a("s_waitcnt lgkmcnt(0)")
        a("s_barrier")
        prev = hh > 0
        rd_b(0, hh, 0, 0); rd_a(0, hh, 0, 0, 0)
        if prev: mf(1, 0, 0, False)
        rd_a(0, hh, 0, 0, 1); rd_b(0, hh, 0, 1); rd_a(0, hh, 0, 1, 0)
        if prev: mf(1, 1, 0, False)
        rd_a(0, hh, 0, 1, 1)
        if hh + 2 < NH: dma_w(hh + 2)
        if prev: mf(1, 0, 1, False)
        if hh % 2 == 0 and hh // 2 + 2 < 10: dma_x(hh // 2 + 2)
        if prev: mf(1, 1, 1, False)
        first = hh == 0
        rd_b(1, hh, 1, 0); rd_a(1, hh, 1, 0, 0); rd_a(1, hh, 1, 0, 1)
        a(f"s_waitcnt lgkmcnt(6)")
        mf(0, 0, 0, first)
        rd_b(1, hh, 1, 1); rd_a(1, hh, 1, 1, 0); rd_a(1, hh, 1, 1, 1)
        a(f"s_waitcnt lgkmcnt(6)")
        mf(0, 1, 0, first); mf(0, 0, 1, first); mf(0, 1, 1, first)
    a("s_waitcnt lgkmcnt(0)")
    mf(1, 0, 0, False); mf(1, 1, 0, False); mf(1, 0, 1, False); mf(1, 1, 1, False)
    mark(a)
    a(f"v_lshrrev_b32 v{t0}, 5, v1")
    a(f"s_lshr_b32 s{T0}, s{S_W}, 1")
    a(f"s_lshl_b32 s{T0}, s{T0}, 4")
    a(f"v_add_u32 v{t0}, s{T0}, v{t0}")
    a(f"v_lshlrev_b32 v{t0}, 14, v{t0}")
    a(f"s_and_b32 s{T0}, s{S_W}, 1")
    a(f"s_lshl_b32 s{T0}, s{T0}, 6")
    a(f"v_and_b32 v{t1}, 31, v1")
    a(f"v_add_u32 v{t1}, s{T0}, v{t1}")
    a(f"v_lshl_add_u32 v{t0}, v{t1}, 3, v{t0}")
    a(f"s_lshl_b32 s{T0}, s{S_CJ}, 19")
    a(f"s_lshl_b32 s{T1}, s{S_RB}, 10")
    a(f"s_add_u32 s{T0}, s{T0}, s{T1}")
    a(f"s_add_u32 s{T0}, s{T0}, {WS_QKV}")
    if OPT['mega']: nonce_load(a, 16)
    k = 0
    for ft in range(2):
        for j in range(4):
            a(f"s_add_u32 s{T1}, s{T0}, {(8*ft+2*j)*16384}")
            for tt in range(2):
                base = ACC + 16*(2*tt+ft) + 4*j
                d = FB[0] + 2*(k % 16); k += 1
                a(f"v_cvt_pk_bf16_f32 v{d}, v{base}, v{base+1}")
                a(f"v_cvt_pk_bf16_f32 v{d+1}, v{base+2}, v{base+3}")
                a(f"buffer_store_dwordx2 {vr(d,2)}, v{t0}, s[{SRD_WS}:{SRD_WS+3}], s{T1} offen offset:{tt*256} sc1")
    mark(a)
    if OPT['mega']:
        nonce_get(a, 16)
        a(f"s_lshl_b32 s{T0}, s{S_RB}, 7")
        a(f"s_lshl_b32 s{T1}, s{S_CJ}, 2")
        a(f"s_add_u32 s{T0}, s{T0}, s{T1}")
        a(f"s_add_u32 s{T0}, s{T0}, {WS_FLAG + FQ}")
        publish(a, T0, 16)
        a(f"s_branch {lbl}_end")
    a.label(f"{lbl}_skip")
    if OPT['mega']:
        a.reset_counters()
        nonce_load(a, 16)
        nonce_get(a, 16)
        a.label(f"{lbl}_end")
    a.reset_counters()

STAMPS = False
CTX = dict(k=0, slot=0)
def mark(a):
    if not STAMPS: return
    CTX['slot'] += 1
    stamp(a, CTX['k'], CTX['slot'])
def stamp(a, kidx, slot):
    if not STAMPS: return
    stamp.n = getattr(stamp, 'n', 0) + 1
    L = f"stamp_{stamp.n}"
    a(f"s_cmp_lg_u32 s{S_W}, 0")
    a(f"s_cbranch_scc1 {L}")
    a("s_memrealtime s[98:99]")
    a("s_memtime s[100:101]")
    a("s_waitcnt lgkmcnt(0)")
    a(f"s_lshl_b32 s97, s2, 7")
    a(f"s_add_u32 s97, s97, {WS_STAMP + kidx*(1024*128) + slot*4}")
    a("s_mov_b64 exec, 1")
    a("v_mov_b32 v254, s98")
    a("v_mov_b32 v255, s100")
    vm = list(a.vm)
    a(f"buffer_store_dword v254, off, s[{SRD_WS}:{SRD_WS+3}], s97")
    a(f"buffer_store_dword v255, off, s[{SRD_WS}:{SRD_WS+3}], s97 offset:64")
    a("s_mov_b64 exec, -1")
    a.vm = vm
    a.label(L)

def dbgtime(a, slot, invert=False):
    if not OPT.get('dbgtime'): return
    L = uid("dt")
    a(f"s_cmp_lg_u32 s{S_W}, 0")
    a(f"s_cbranch_scc1 {L}")
    a("s_memrealtime s[98:99]")
    a("s_waitcnt lgkmcnt(0)")
    if invert: a("s_not_b32 s98, s98")
    a("s_mov_b64 exec, 1")
    a("v_mov_b32 v254, s98")
    a(f"v_mov_b32 v255, {slot*4}")
    vm = list(a.vm)
    a(f"global_atomic_umax v255, v254, s[{P_DBG}:{P_DBG+1}] sc1")
    a("s_mov_b64 exec, -1")
    a.vm = vm
    a.label(L)

def kernel_text(name, body, grid, lds):
    s  = f".globl {name}\n.p2align 8\n.type {name},@function\n{name}:\n"
    s += body
    s += "    s_endpgm\n"
    return s

def descriptor(name, vgpr=256):
    return f""".amdhsa_kernel {name}
  .amdhsa_next_free_vgpr {vgpr}
  .amdhsa_next_free_sgpr 102
  .amdhsa_accum_offset {vgpr}
  .amdhsa_group_segment_fixed_size 0
  .amdhsa_kernarg_size 96
  .amdhsa_user_sgpr_count 2
  .amdhsa_user_sgpr_kernarg_segment_ptr 1
  .amdhsa_system_sgpr_workgroup_id_x 1
.end_amdhsa_kernel
"""

def dpp_sum16(a, v):
    for r in (8, 4, 2, 1):
        a(f"v_add_f32_dpp v{v}, v{v}, v{v} row_ror:{r} row_mask:0xf bank_mask:0xf")

def stage_ln(a, lbl):
    VO, VT = 2, 4
    X, F = 20, 40
    t0, t1, t2, t3, t4 = VT, VT+1, VT+2, VT+3, VT+4
    a(f"s_and_b32 s{T0}, s{S_W}, 1")
    a(f"s_lshl_b32 s{T0}, s{T0}, 2")
    a(f"s_lshl_b32 s{T1}, s{S_IDX}, 3")
    a(f"s_add_u32 s{T0}, s{T0}, s{T1}")
    a(f"v_lshrrev_b32 v{t0}, 4, v1")
    a(f"v_add_u32 v{t0}, s{T0}, v{t0}")
    a(f"v_and_b32 v{t1}, 15, v1")
    a(f"s_movk_i32 s{T2}, 1280")
    a(f"v_mul_lo_u32 v{VO}, v{t0}, s{T2}")
    a(f"v_lshl_add_u32 v{VO}, v{t1}, 4, v{VO}")
    a(f"s_cmp_ge_u32 s{S_W}, 2")
    a(f"s_cbranch_scc1 {lbl}_gate")
    srd(a, SRD_A, P_AX, SIZES['AX'])
    for i in range(5):
        a(f"buffer_load_dwordx4 {vr(X+4*i,4)}, v{VO}, s[{SRD_A}:{SRD_A+3}], 0 offen offset:{256*i}", tag='lnx')
    if OPT['mega']: start_prefetch(a, 'B')
    a(f"v_lshrrev_b32 v{t2}, 5, v{t0}")
    a(f"v_mul_u32_u24 v{t2}, 40, v{t2}")
    a(f"v_lshrrev_b32 v{t3}, 1, v{t1}")
    a(f"v_add_u32 v{t2}, v{t2}, v{t3}")
    a(f"v_lshlrev_b32 v{t2}, 10, v{t2}")
    a(f"v_and_b32 v{t3}, 1, v{t1}")
    a(f"v_lshl_add_u32 v{t2}, v{t3}, 9, v{t2}")
    a(f"v_and_b32 v{t3}, 31, v{t0}")
    a(f"v_lshl_add_u32 v{VO+1}, v{t3}, 4, v{t2}")
    a.wait_vm('lnx')
    for d in range(20):
        a(f"v_lshlrev_b32 v{F+2*d}, 16, v{X+d}")
        a(f"v_and_b32 v{F+2*d+1}, 0xffff0000, v{X+d}")
    for k in range(4):
        a(f"v_add_f32 v{t0+k}, v{F+k}, v{F+4+k}")
    for d in range(8, 40):
        a(f"v_add_f32 v{t0+(d%4)}, v{t0+(d%4)}, v{F+d}")
    a(f"v_add_f32 v{t0}, v{t0}, v{t1}")
    a(f"v_add_f32 v{t2}, v{t2}, v{t3}")
    a(f"v_add_f32 v{t0}, v{t0}, v{t2}")
    dpp_sum16(a, t0)
    a(f"v_mul_f32 v{t0}, 0x3acccccd, v{t0}")
    for d in range(40):
        a(f"v_sub_f32 v{F+d}, v{F+d}, v{t0}")
    for k in range(4):
        a(f"v_mul_f32 v{t0+k}, v{F+k}, v{F+k}")
    for d in range(4, 40):
        a(f"v_fmac_f32 v{t0+(d%4)}, v{F+d}, v{F+d}")
    a(f"v_add_f32 v{t0}, v{t0}, v{t1}")
    a(f"v_add_f32 v{t2}, v{t2}, v{t3}")
    a(f"v_add_f32 v{t0}, v{t0}, v{t2}")
    dpp_sum16(a, t0)
    a(f"v_mov_b32 v{t1}, 0x3727c5ac")
    a(f"v_fmac_f32 v{t1}, 0x3acccccd, v{t0}")
    a(f"v_rsq_f32 v{t1}, v{t1}")
    for d in range(40):
        a(f"v_mul_f32 v{F+d}, v{F+d}, v{t1}")
    for d in range(20):
        a(f"v_cvt_pk_bf16_f32 v{X+d}, v{F+2*d}, v{F+2*d+1}")
    if OPT['mega']: nonce_load(a, 10)
    for i in range(5):
        a(f"buffer_store_dwordx4 {vr(X+4*i,4)}, v{VO+1}, s[{SRD_WS}:{SRD_WS+3}], 0 offen sc1")
        if i < 4:
            a(f"v_add_u32 v{VO+1}, 8192, v{VO+1}")
    a(f"s_branch {lbl}_done")
    a.label(f"{lbl}_gate")
    a.reset_counters()
    srd(a, SRD_A, P_AX, SIZES['AX'])
    srd(a, SRD_B, P_GW, SIZES['GW'])
    G = 40
    a(f"v_lshlrev_b32 v{VO+1}, 4, v{t1}")
    for i in range(5):
        a(f"buffer_load_dwordx4 {vr(X+4*i,4)}, v{VO}, s[{SRD_A}:{SRD_A+3}], 0 offen offset:{256*i}", tag='gx')
        a(f"buffer_load_dwordx4 {vr(G+4*i,4)}, v{VO+1}, s[{SRD_B}:{SRD_B+3}], 0 offen offset:{256*i}", tag='gx')
    if OPT['mega']: start_prefetch(a, 'B')
    a(f"v_lshlrev_b32 v{t2}, 2, v{t0}")
    a(f"v_add_u32 v{t2}, {WS_G}, v{t2}")
    a(f"v_mov_b32 v{t3}, 0x7ffffff0")
    a(f"v_cmp_eq_u32 s[{T4}:{T4+1}], 0, v{t1}")
    a(f"v_cndmask_b32 v{VO}, v{t3}, v{t2}, s[{T4}:{T4+1}]")
    a(f"v_mov_b32 v{t0}, 0")
    a(f"v_mov_b32 v{t1}, 0")
    a.wait_vm('gx')
    U = 60
    for d in range(20):
        u = U + 4*(d % 4)
        a(f"v_lshlrev_b32 v{u}, 16, v{X+d}")
        a(f"v_lshlrev_b32 v{u+1}, 16, v{G+d}")
        a(f"v_and_b32 v{u+2}, 0xffff0000, v{X+d}")
        a(f"v_and_b32 v{u+3}, 0xffff0000, v{G+d}")
        a(f"v_fmac_f32 v{t0}, v{u}, v{u+1}")
        a(f"v_fmac_f32 v{t1}, v{u+2}, v{u+3}")
    a(f"v_add_f32 v{t0}, v{t0}, v{t1}")
    dpp_sum16(a, t0)
    a(f"v_mul_f32 v{t0}, 0xbfb8aa3b, v{t0}")
    a(f"v_exp_f32 v{t0}, v{t0}")
    a(f"v_add_f32 v{t0}, 1.0, v{t0}")
    a(f"v_rcp_f32 v{t0}, v{t0}")
    a(f"s_nop 0")
    if OPT['mega']: nonce_load(a, 10)
    a(f"buffer_store_dword v{t0}, v{VO}, s[{SRD_WS}:{SRD_WS+3}], 0 offen sc1")
    a.label(f"{lbl}_done")
    a.reset_counters()
    if OPT['mega']:
        a("s_waitcnt vmcnt(0)")
        nonce_get(a, 10)
        a(f"s_lshr_b32 s{T0}, s{S_IDX}, 4")
        a(f"s_lshl_b32 s{T0}, s{T0}, 7")
        a(f"s_and_b32 s{T1}, s{S_IDX}, 15")
        a(f"s_lshl_b32 s{T1}, s{T1}, 2")
        a(f"s_add_u32 s{T0}, s{T0}, s{T1}")
        a(f"s_add_u32 s{T0}, s{T0}, {WS_FLAG + FY}")
        publish(a, T0, 10)

def stage_repack(a, lbl):
    VT = 2
    t0, t1, t2, t3, t4, t5 = range(VT, VT+6)
    VS, VD, D = 8, 12, 16
    a(f"s_and_b32 s{T0}, s{S_IDX}, 7")
    a(f"s_lshr_b32 s{T1}, s{S_IDX}, 3")
    a(f"s_mul_i32 s{T2}, s{T0}, 160")
    a(f"s_mul_i32 s{T3}, s{T0}, {WF_TILE}")
    a(f"s_add_u32 s{T3}, s{T3}, {WS_WF}")
    a(f"s_movk_i32 s{T6}, 6554")
    a(f"s_movk_i32 s{T7}, 1280")
    a(f"s_cmp_ge_u32 s{T1}, 24")
    a(f"s_cbranch_scc1 {lbl}_wo")
    srd(a, SRD_A, P_W2, SIZES['W2'])
    a(f"s_mul_i32 s{T4}, s{T1}, 72")
    a(f"s_mul_i32 s{T5}, s{T4}, 160")
    a(f"s_add_u32 s{T3}, s{T3}, s{T5}")
    a(f"s_movk_i32 s{T5}, 720")
    for u in range(4):
        a(f"v_add_u32 v{t0}, {256*u}, v0")
        a(f"v_mul_u32_u24 v{t1}, s{T6}, v{t0}")
        a(f"v_lshrrev_b32 v{t1}, 16, v{t1}")
        a(f"v_mul_u32_u24 v{t2}, 10, v{t1}")
        a(f"v_sub_u32 v{t2}, v{t0}, v{t2}")
        a(f"v_add_u32 v{t1}, s{T4}, v{t1}")
        a(f"v_mul_lo_u32 v{t1}, v{t1}, s{T7}")
        a(f"v_lshl_add_u32 v{t1}, v{t2}, 4, v{t1}")
        a(f"v_add_u32 v{t1}, s{T2}, v{t1}")
        a(f"v_lshlrev_b32 v{t3}, 4, v{t0}")
        a(f"v_add_u32 v{t3}, s{T3}, v{t3}")
        a(f"v_mov_b32 v{t4}, 0x7ffffff0")
        a(f"v_cmp_gt_u32 vcc, s{T5}, v{t0}")
        a(f"v_cndmask_b32 v{VS+u}, v{t4}, v{t1}, vcc")
        a(f"v_cndmask_b32 v{VD+u}, v{t4}, v{t3}, vcc")
    a(f"s_branch {lbl}_go")
    a.label(f"{lbl}_wo")
    srd(a, SRD_A, P_WO, SIZES['WO'])
    a(f"s_sub_u32 s{T1}, s{T1}, 24")
    a(f"s_mul_i32 s{T4}, s{T1}, 80")
    a(f"s_add_u32 s{T5}, s{T4}, 1728")
    a(f"s_mul_i32 s{T5}, s{T5}, 160")
    a(f"s_add_u32 s{T3}, s{T3}, s{T5}")
    a(f"s_movk_i32 s{T5}, 800")
    for u in range(4):
        a(f"v_add_u32 v{t0}, {256*u}, v0")
        a(f"v_mul_u32_u24 v{t1}, s{T6}, v{t0}")
        a(f"v_lshrrev_b32 v{t1}, 16, v{t1}")
        a(f"v_mul_u32_u24 v{t2}, 10, v{t1}")
        a(f"v_sub_u32 v{t2}, v{t0}, v{t2}")
        a(f"v_add_u32 v{t1}, s{T4}, v{t1}")
        a(f"v_lshrrev_b32 v{t3}, 4, v{t1}")
        a(f"v_and_b32 v{t1}, 15, v{t1}")
        a(f"v_mul_u32_u24 v{t4}, 20, v{t3}")
        a(f"v_add_u32 v{t4}, v{t4}, v{t1}")
        a(f"v_subrev_u32 v{t5}, 32, v{t3}")
        a(f"v_lshlrev_b32 v{t5}, 2, v{t5}")
        a(f"v_bfe_u32 v{VS+u}, v{t1}, 2, 1")
        a(f"v_lshl_add_u32 v{t5}, v{VS+u}, 1, v{t5}")
        a(f"v_lshrrev_b32 v{VS+u}, 3, v{t1}")
        a(f"v_add_u32 v{t5}, v{t5}, v{VS+u}")
        a(f"v_mul_u32_u24 v{t5}, 20, v{t5}")
        a(f"v_and_b32 v{t1}, 3, v{t1}")
        a(f"v_add3_u32 v{t5}, v{t5}, v{t1}, 16")
        a(f"v_cmp_gt_u32 vcc, 32, v{t3}")
        a(f"v_cndmask_b32 v{t1}, v{t5}, v{t4}, vcc")
        a(f"v_mul_lo_u32 v{t1}, v{t1}, s{T7}")
        a(f"v_lshl_add_u32 v{t1}, v{t2}, 4, v{t1}")
        a(f"v_add_u32 v{t1}, s{T2}, v{t1}")
        a(f"v_lshlrev_b32 v{t3}, 4, v{t0}")
        a(f"v_add_u32 v{t3}, s{T3}, v{t3}")
        a(f"v_mov_b32 v{t4}, 0x7ffffff0")
        a(f"v_cmp_gt_u32 vcc, s{T5}, v{t0}")
        a(f"v_cndmask_b32 v{VS+u}, v{t4}, v{t1}, vcc")
        a(f"v_cndmask_b32 v{VD+u}, v{t4}, v{t3}, vcc")
    a.label(f"{lbl}_go")
    for u in range(4):
        a(f"buffer_load_dwordx4 {vr(D+4*u,4)}, v{VS+u}, s[{SRD_A}:{SRD_A+3}], 0 offen", tag=('rp', u))
    for u in range(4):
        a.wait_vm(('rp', u))
        a(f"buffer_store_dwordx4 {vr(D+4*u,4)}, v{VD+u}, s[{SRD_WS}:{SRD_WS+3}], 0 offen sc1")
    if OPT['mega']:
        a(f"s_and_b32 s{T0}, s{S_IDX}, 7")
        a(f"s_lshl_b32 s{T0}, s{T0}, 7")
        a(f"s_lshr_b32 s{T1}, s{S_IDX}, 3")
        a(f"s_lshl_b32 s{T1}, s{T1}, 2")
        a(f"s_add_u32 s{T0}, s{T0}, s{T1}")
        a(f"s_add_u32 s{T0}, s{T0}, {WS_FLAG + FW}")
        publish(a, T0, 10)
    a.reset_counters()

def stage_ffn1(a, lbl):
    a(f"s_lshr_b32 s{T0}, s{S_X}, 1")
    a(f"s_lshl_b32 s{T0}, s{T0}, 2")
    a(f"s_and_b32 s{T1}, s{S_I}, 3")
    a(f"s_add_u32 s{S_RB}, s{T0}, s{T1}")
    a(f"s_and_b32 s{T0}, s{S_X}, 1")
    a(f"s_mul_i32 s{T0}, s{T0}, 7")
    a(f"s_lshr_b32 s{T1}, s{S_I}, 2")
    a(f"s_add_u32 s{S_CJ}, s{T0}, s{T1}")
    a(f"s_cmp_ge_u32 s{T1}, 7")
    a(f"s_cbranch_scc1 {lbl}_skip")
    srd(a, SRD_A, P_B1, SIZES['B1'])
    srd(a, SRD_B, P_W1, SIZES['W1'])
    VWD, VWF, VY, VT = 2, 6, 10, 12
    AS = [20, 36, 52]
    ACC = 68
    YR = 132; NY = 16; YD = 12
    t0, t1, t2, t3 = VT, VT+1, VT+2, VT+3
    a(f"s_lshl_b32 s{T0}, s{S_W}, 4")
    a(f"v_lshrrev_b32 v{t0}, 4, v1")
    a(f"v_add_u32 v{t1}, s{T0}, v{t0}")
    a(f"s_movk_i32 s{T2}, 3456")
    a(f"v_mul_lo_u32 v{t1}, v{t1}, s{T2}")
    a(f"v_bfe_u32 v{t2}, v1, 2, 2")
    a(f"v_xor_b32 v{t2}, v{t2}, v{t0}")
    a(f"v_and_b32 v{t3}, 3, v1")
    a(f"v_lshl_add_u32 v{t2}, v{t2}, 2, v{t3}")
    a(f"v_lshl_add_u32 v{t1}, v{t2}, 4, v{t1}")
    a(f"s_lshl_b32 s{T0}, s{S_CJ}, 8")
    a(f"v_add_u32 v{VWD}, s{T0}, v{t1}")
    for i in range(1, 4):
        a(f"v_add_u32 v{VWD+i}, {i*(4*3456-1024)}, v{VWD}")
    a(f"s_lshl_b32 s{T6}, s{S_W}, 12")
    def dma_w(b):
        a(f"s_add_u32 m0, s{T6}, {(b % 4)*16384}")
        a(f"s_mov_b32 s{S_KW}, {b*64*3456}")
        for i in range(4):
            a(f"buffer_load_dwordx4 v{VWD+i}, s[{SRD_B}:{SRD_B+3}], s{S_KW} offen offset:{i*1024} lds", tag=('W', b))
    dma_w(0)
    a(f"v_lshrrev_b32 v{t0}, 5, v1")
    a(f"v_lshlrev_b32 v{t1}, 3, v{t0}")
    a(f"s_lshl_b32 s{T0}, s{S_CJ}, 8")
    a(f"v_add_u32 v{t1}, s{T0}, v{t1}")
    for T in range(4):
        for j in range(4):
            a(f"buffer_load_dwordx2 {vr(AS[0]+2*(4*T+j),2)}, v{t1}, s[{SRD_A}:{SRD_A+3}], 0 offen offset:{64*T+16*j}", tag='bias')
    dma_w(1); dma_w(2)
    if OPT['mega']:
        a(f"s_lshl_b32 s{T0}, s{S_RB}, 7")
        a(f"s_add_u32 s{T0}, s{T0}, {WS_FLAG + FY}")
        a(f"v_lshlrev_b32 v{t2}, 2, v1")
        a(f"v_add_u32 v{t2}, s{T0}, v{t2}")
        a(f"s_mov_b64 s[{T4}:{T4+1}], 0xffff")
        vm = list(a.vm)
        wait_flags(a, t2, t3, T4)
        a.vm = vm
    a(f"s_lshl_b32 s{T0}, s{S_RB}, 2")
    a(f"s_add_u32 s{T0}, s{T0}, s{S_W}")
    a(f"s_mul_i32 s{T1}, s{T0}, {40*1024}")
    a(f"s_add_u32 s{S_KX}, s{T1}, {WS_Y}")
    a(f"v_lshlrev_b32 v{VY}, 4, v1")
    def ld_y(s):
        if s % 4 == 0 and s > 0:
            a(f"s_add_u32 s{S_KX}, s{S_KX}, 4096")
        a(f"buffer_load_dwordx4 {vr(YR+4*(s % NY),4)}, v{VY}, s[{SRD_WS}:{SRD_WS+3}], s{S_KX} offen offset:{(s % 4)*1024} sc1", tag=('Y', s))
    for s in range(YD): ld_y(s)
    a(f"v_bfe_u32 v{t2}, v1, 2, 2")
    a(f"v_lshl_add_u32 v{t1}, v{t0}, 3, v{t2}")
    a(f"v_lshlrev_b32 v{t1}, 8, v{t1}")
    a(f"v_bfe_u32 v{t3}, v1, 4, 1")
    a(f"v_lshl_add_u32 v{t1}, v{t3}, 5, v{t1}")
    a(f"v_and_b32 v{t3}, 3, v1")
    a(f"v_lshl_add_u32 v{t1}, v{t3}, 3, v{t1}")
    for ft in range(4):
        a(f"v_xor_b32 v{t3}, {ft}, v{t2}")
        a(f"v_lshl_add_u32 v{VWF+ft}, v{t3}, 6, v{t1}")
    a.wait_vm('bias')
    for T in range(4):
        for j in range(4):
            s_ = AS[0] + 2*(4*T+j); d = ACC + 16*T + 4*j
            a(f"v_lshlrev_b32 v{d}, 16, v{s_}")
            a(f"v_and_b32 v{d+1}, 0xffff0000, v{s_}")
            a(f"v_lshlrev_b32 v{d+2}, 16, v{s_+1}")
            a(f"v_and_b32 v{d+3}, 0xffff0000, v{s_+1}")
    def rd_a(s, ft, rd):
        b = s >> 2; u = s & 3
        a(f"ds_read_b64_tr_b16 {vr(AS[s % 3]+4*ft+2*rd,2)}, v{VWF+ft} offset:{(b % 4)*16384 + u*4096 + rd*1024}", tag=('A', s, ft))
    a.wait_vm(('W', 0))
    a("s_barrier")
    for s in range(2):
        for ft in range(4):
            rd_a(s, ft, 0); rd_a(s, ft, 1)
    NS = 40
    mark(a)
    for s in range(NS):
        b = s >> 2; u = s & 3
        if u == 2 and b + 1 < 10:
            a.wait_vm(('W', b + 1))
            a("s_barrier")
            if b + 3 < 10: dma_w(b + 3)
        a.wait_vm(('Y', s))
        for ft in range(4):
            a.wait_lg(('A', s, ft))
            d = vr(ACC+16*ft, 16)
            a(f"v_mfma_f32_32x32x16_bf16 {d}, {vr(AS[s % 3]+4*ft,4)}, {vr(YR+4*(s % NY),4)}, {d}")
            if s + 2 < NS:
                rd_a(s + 2, ft, 0); rd_a(s + 2, ft, 1)
            if ft == 1 and s + YD < NS:
                ld_y(s + YD)
    mark(a)
    C0, C1 = 2, 3
    a(f"v_mov_b32 v{C0}, 0xc0135761")
    a(f"v_mov_b32 v{C1}, 0xbdd2d3e8")
    a(f"s_lshl_b32 s{T0}, s{S_RB}, 2")
    a(f"s_add_u32 s{T0}, s{T0}, s{S_W}")
    a(f"s_mul_i32 s{T0}, s{T0}, 108")
    a(f"s_lshl_b32 s{T1}, s{S_CJ}, 3")
    a(f"s_add_u32 s{T0}, s{T0}, s{T1}")
    a(f"s_lshl_b32 s{T0}, s{T0}, 10")
    a(f"s_add_u32 s{T0}, s{T0}, {WS_H}")
    a(f"s_add_u32 s{T1}, s{T0}, 4096")
    TU, TE = 20, 28
    k = 0
    for T in range(4):
        if T == 2:
            a(f"s_cmp_eq_u32 s{S_CJ}, 13")
            a(f"s_cbranch_scc1 {lbl}_pub")
        for jj in range(2):
            x = ACC + 16*T + 8*jj
            for e in range(8): a(f"v_mul_f32 v{TU+e}, v{x+e}, v{x+e}")
            for e in range(8): a(f"v_fma_f32 v{TU+e}, v{TU+e}, v{C1}, v{C0}")
            for e in range(8): a(f"v_mul_f32 v{TU+e}, v{TU+e}, v{x+e}")
            for e in range(8): a(f"v_exp_f32 v{TE+e}, v{TU+e}")
            for e in range(8): a(f"v_add_f32 v{TE+e}, 1.0, v{TE+e}")
            for e in range(8): a(f"v_rcp_f32 v{TE+e}, v{TE+e}")
            for e in range(8): a(f"v_mul_f32 v{TE+e}, v{TE+e}, v{x+e}")
            d = 40 + 4*(k % 4); k += 1
            for e in range(4): a(f"v_cvt_pk_bf16_f32 v{d+e}, v{TE+2*e}, v{TE+2*e+1}")
            so = T0 if T < 2 else T1
            a(f"buffer_store_dwordx4 {vr(d,4)}, v{VY}, s[{SRD_WS}:{SRD_WS+3}], s{so} offen offset:{((2*T+jj) % 4)*1024} sc1")
    a.label(f"{lbl}_pub")
    mark(a)
    if OPT['mega']:
        a(f"s_lshl_b32 s{T0}, s{S_RB}, 7")
        a(f"s_lshl_b32 s{T1}, s{S_CJ}, 2")
        a(f"s_add_u32 s{T0}, s{T0}, s{T1}")
        a(f"s_add_u32 s{T0}, s{T0}, {WS_FLAG + FH}")
        publish(a, T0, 12)
    a.label(f"{lbl}_skip")
    a.reset_counters()

PST = 3104
LK, LV, LONES = 0, 10*PST, 20*PST
def stage_attn(a, lbl):
    a(f"s_lshl_b32 s{T0}, s{S_X}, 1")
    a(f"s_and_b32 s{T1}, s{S_I}, 1")
    a(f"s_add_u32 s{S_CJ}, s{T0}, s{T1}")
    a(f"s_lshr_b32 s{S_RB}, s{S_I}, 1")
    HP = S_CJ
    VD, VK, VV, VT = 2, 3, 4, 6
    t0, t1, t2, t3, t4 = VT, VT+1, VT+2, VT+3, VT+4
    MK = 12
    Q0, Q1 = 20, 24
    KF = [28, 36]
    VF = [44, 48, 52, 56]
    PF = [60, 64, 68, 72]
    OA = 76
    LO = 92
    CS, NM = 96, 97
    MX = 98
    S = 104
    QH = 248
    if OPT['mega']:
        a(f"v_lshrrev_b32 v{t0}, 4, v1")
        a(f"s_sub_u32 s{T0}, s{S_RB}, 2")
        a(f"v_add_u32 v{t0}, s{T0}, v{t0}")
        a(f"v_and_b32 v{t1}, 15, v1")
        a(f"v_cmp_le_i32 s[{T4}:{T4+1}], 0, v{t0}")
        a(f"v_cmp_gt_u32 s[{T2}:{T2+1}], 15, v{t1}")
        a(f"s_and_b64 s[{T4}:{T4+1}], s[{T4}:{T4+1}], s[{T2}:{T2+1}]")
        a(f"s_mov_b64 s[{T2}:{T2+1}], 0xffffffffffff") if False else None
        a(f"s_mov_b32 s{T2}, -1")
        a(f"s_mov_b32 s{T2+1}, 0xffff")
        a(f"s_and_b64 s[{T4}:{T4+1}], s[{T4}:{T4+1}], s[{T2}:{T2+1}]")
        a(f"v_lshlrev_b32 v{t0}, 7, v{t0}")
        a(f"v_lshl_add_u32 v{t0}, v{t1}, 2, v{t0}")
        a(f"v_add_u32 v{t0}, {WS_FLAG + FQ}, v{t0}")
        wait_flags(a, t0, t1, T4)
    a(f"s_sub_u32 s{T0}, s{S_RB}, 2")
    a(f"s_lshl_b32 s{T0}, s{T0}, 7")
    a(f"s_mul_i32 s{T1}, s{S_W}, 96")
    a(f"s_add_u32 s{T0}, s{T0}, s{T1}")
    a(f"v_lshlrev_b32 v{t0}, 1, v1")
    a(f"v_add_u32 v{t0}, s{T0}, v{t0}")
    a(f"v_lshlrev_b32 v{t1}, 3, v{t0}")
    a(f"v_mov_b32 v{t2}, 0x7ffffff0")
    a(f"v_cmp_le_i32 s[{T4}:{T4+1}], 0, v{t0}")
    a(f"v_cndmask_b32 v{VD}, v{t2}, v{t1}, s[{T4}:{T4+1}]")
    a(f"s_mul_i32 s{T2}, s{HP}, {10*16384}")
    a(f"s_add_u32 s{T2}, s{T2}, {WS_QKV + 160*16384}")
    a(f"s_mul_i32 s{T3}, s{S_W}, 768")
    a("s_mov_b32 exec_hi, 0xffff")
    for ty in range(2):
        for p in range(10):
            a(f"s_add_u32 m0, s{T3}, {(LK if ty == 0 else LV) + p*PST}")
            a(f"s_add_u32 s{S_KX}, s{T2}, {(ty*160 + p)*16384}")
            a(f"buffer_load_dwordx4 v{VD}, s[{SRD_WS}:{SRD_WS+3}], s{S_KX} offen sc1 lds", tag=('kv', ty))
    a("s_mov_b32 exec_hi, -1")
    a(f"s_lshl_b32 s{T0}, s{S_RB}, 2")
    a(f"s_add_u32 s{T0}, s{T0}, s{S_W}")
    S_QB = 61
    a(f"s_mov_b32 s{S_QB}, s{T0}")
    a(f"v_and_b32 v{t0}, 31, v1")
    a(f"v_lshrrev_b32 v{t1}, 5, v1")
    a(f"s_lshl_b32 s{T1}, s{T0}, 8")
    a(f"v_lshlrev_b32 v{t2}, 3, v{t0}")
    a(f"v_add_u32 v{t2}, s{T1}, v{t2}")
    a(f"v_lshl_add_u32 v{t3}, v{t1}, 15, v{t2}")
    a(f"s_mul_i32 s{T2}, s{HP}, {10*16384}")
    a(f"s_add_u32 s{T2}, s{T2}, {WS_QKV}")
    QR = [Q0, QH]
    for hh in range(2):
        q0 = Q0 if hh == 0 else QH
        q1 = Q1 if hh == 0 else QH + 4
        a(f"s_add_u32 s{T1}, s{T2}, {hh*5*16384}")
        a(f"buffer_load_dwordx2 {vr(q0,2)}, v{t3}, s[{SRD_WS}:{SRD_WS+3}], s{T1} offen sc1", tag='q')
        a(f"s_add_u32 s{T1}, s{T1}, 16384")
        a(f"buffer_load_dwordx2 {vr(q0+2,2)}, v{t3}, s[{SRD_WS}:{SRD_WS+3}], s{T1} offen sc1", tag='q')
        a(f"s_add_u32 s{T1}, s{T1}, {3*16384}")
        a(f"buffer_load_dwordx2 {vr(q1,2)}, v{t2}, s[{SRD_WS}:{SRD_WS+3}], s{T1} offen sc1", tag='q')
    a(f"v_mov_b32 v{KF[0]}, 0x3f803f80")
    for r in range(1, 4): a(f"v_mov_b32 v{KF[0]+r}, 0x3f803f80")
    a(f"v_lshlrev_b32 v{t4}, 4, v0")
    a(f"v_add_u32 v{t4}, {LONES}, v{t4}")
    a(f"v_cmp_gt_u32 vcc, 208, v0")
    a(f"s_and_saveexec_b64 s[{T4}:{T4+1}], vcc")
    a(f"ds_write_b128 v{t4}, {vr(KF[0],4)}")
    a(f"s_mov_b64 exec, s[{T4}:{T4+1}]")
    a(f"v_lshlrev_b32 v{t2}, 2, v{t1}")
    a(f"v_sub_u32 v{t2}, v{t0}, v{t2}")
    for r in range(16):
        a(f"v_cmp_le_i32 s[{S_MASK+2*r}:{S_MASK+2*r+1}], {8*(r >> 2) + (r & 3)}, v{t2}")
    a(f"v_mov_b32 v{t3}, 0xffff")
    a(f"v_mov_b32 v{t4}, 0xffff0000")
    for q in range(8):
        a(f"v_cndmask_b32 v{MK+q}, 0, v{t3}, s[{S_MASK+4*q}:{S_MASK+4*q+1}]")
        a(f"v_cndmask_b32 v{KF[1]}, 0, v{t4}, s[{S_MASK+4*q+2}:{S_MASK+4*q+3}]")
        a(f"v_or_b32 v{MK+q}, v{MK+q}, v{KF[1]}")
    a(f"s_lshl_b32 s{T0}, s{S_W}, 8")
    a(f"v_lshlrev_b32 v{t2}, 3, v{t0}")
    a(f"v_add_u32 v{t2}, s{T0}, v{t2}")
    a(f"s_movk_i32 s{T1}, {2*PST}")
    a(f"v_mul_lo_u32 v{t3}, v{t1}, s{T1}")
    a(f"v_add_u32 v{VK}, v{t2}, v{t3}")
    VKX = 11
    a(f"v_add_u32 v{VKX}, {4*PST}, v{t2}")
    a(f"v_bfe_u32 v{t2}, v1, 4, 1")
    a(f"v_and_b32 v{t3}, 3, v1")
    a(f"v_lshl_add_u32 v{t2}, v{t2}, 2, v{t3}")
    a(f"v_bfe_u32 v{t3}, v1, 2, 2")
    a(f"v_lshl_add_u32 v{t3}, v{t1}, 2, v{t3}")
    a(f"v_lshlrev_b32 v{t3}, 3, v{t3}")
    a(f"v_add_u32 v{t3}, s{T0}, v{t3}")
    a(f"s_movk_i32 s{T1}, {PST}")
    a(f"v_mul_lo_u32 v{t4}, v{t2}, s{T1}")
    a(f"v_cmp_gt_u32 s[{T4}:{T4+1}], 5, v{t2}")
    for hh in range(2):
        vb = LV + hh*5*PST
        a(f"v_lshlrev_b32 v{KF[0]}, 5, v{t2}")
        a(f"v_add_u32 v{KF[0]}, {(vb - LONES) % 256}, v{KF[0]}")
        a(f"v_and_b32 v{KF[0]}, 255, v{KF[0]}")
        a(f"v_add_u32 v{KF[0]}, {LONES}, v{KF[0]}")
        a(f"v_add_u32 v{KF[0]+1}, {vb}, v{t4}")
        a(f"v_cndmask_b32 v{KF[0]}, v{KF[0]}, v{KF[0]+1}, s[{T4}:{T4+1}]")
        a(f"v_add_u32 v{VV+hh}, v{KF[0]}, v{t3}")
    a(f"v_mov_b32 v{CS}, 0x3ea52b5c")
    for st in range(2):
        a(f"v_mov_b32 v{KF[st]+6}, 0"); a(f"v_mov_b32 v{KF[st]+7}, 0")
    a(f"v_mov_b32 v{Q1+2}, 0"); a(f"v_mov_b32 v{Q1+3}, 0")
    a.wait_vm('q')
    a(f"v_cmp_gt_u32 s[{T4}:{T4+1}], 32, v1")
    for q in (Q1, Q1+1, QH+4, QH+5):
        a(f"v_cndmask_b32 v{q}, 0, v{q}, s[{T4}:{T4+1}]")
    a("s_waitcnt vmcnt(0) lgkmcnt(0)")
    a("s_barrier")
    a.reset_counters()
    mark(a)
    NEG = 0xf149f2ca
    for hh in range(2):
        if hh == 1:
            for r in range(4): a(f"v_mov_b32 v{Q0+r}, v{QH+r}")
            a(f"v_mov_b32 v{Q1}, v{QH+4}"); a(f"v_mov_b32 v{Q1+1}, v{QH+5}")
        ko = hh*5*PST
        def rd_k(tl):
            st = KF[tl % 2]
            a(f"ds_read_b64 {vr(st,2)}, v{VK} offset:{ko + tl*256}", tag=('k', tl))
            a(f"ds_read_b64 {vr(st+2,2)}, v{VK} offset:{ko + PST + tl*256}", tag=('k', tl))
            a(f"ds_read_b64 {vr(st+4,2)}, v{VKX} offset:{ko + tl*256}", tag=('k', tl))
        rd_k(0)
        for tl in range(9):
            if tl + 1 < 9: rd_k(tl + 1)
            a.wait_lg(('k', tl))
            st = KF[tl % 2]; d = vr(S+16*tl, 16)
            a(f"v_mfma_f32_32x32x16_bf16 {d}, {vr(st,4)}, {vr(Q0,4)}, 0")
            a(f"v_mfma_f32_32x32x16_bf16 {d}, {vr(st+4,4)}, {vr(Q1,4)}, {d}")
        a(f"s_cmp_ge_u32 s{S_QB}, 8")
        a(f"s_cbranch_scc1 {lbl}_full{hh}")
        for tl in range(8):
            a(f"s_cmp_ge_u32 s{S_QB}, {8-tl}")
            a(f"s_cbranch_scc1 {lbl}_full{hh}")
            a("s_nop 7"); a("s_nop 7")
            for r in range(16): a(f"v_mov_b32 v{S+16*tl+r}, {hex(NEG)}")
        a.label(f"{lbl}_full{hh}")
        a("s_nop 7"); a("s_nop 3")
        for r in range(16):
            a(f"v_cndmask_b32 v{S+r}, v{S+r}, v{S+128+r}, s[{S_MASK+2*r}:{S_MASK+2*r+1}]")
        for c in range(4):
            a(f"v_max3_f32 v{MX+c}, v{S+32*c}, v{S+32*c+1}, v{S+32*c+2}")
        for k in range(3, 31, 2):
            for c in range(4):
                a(f"v_max3_f32 v{MX+c}, v{MX+c}, v{S+32*c+k}, v{S+32*c+k+1}")
        for c in range(4):
            a(f"v_max_f32 v{MX+c}, v{MX+c}, v{S+32*c+31}")
        a(f"v_max3_f32 v{MX}, v{MX}, v{MX+1}, v{MX+2}")
        a(f"v_max_f32 v{MX}, v{MX}, v{MX+3}")
        a(f"v_mov_b32 v{MX+1}, v{MX}")
        a(f"v_permlane32_swap_b32 v{MX}, v{MX+1}")
        a(f"v_max_f32 v{MX}, v{MX}, v{MX+1}")
        a(f"v_mul_f32 v{NM}, v{CS}, v{MX}")
        a(f"v_sub_f32 v{NM}, 0, v{NM}")
        mark(a)
        def rd_v(tl, kk, slot):
            for rd in range(2):
                a(f"ds_read_b64_tr_b16 {vr(VF[slot]+2*rd,2)}, v{VV+hh} offset:{tl*256 + kk*128 + rd*64}", tag=('v', tl, kk))
        seq = [(1 + q // 2, q % 2) for q in range(14)]
        nv = 0
        vq = []
        def next_v(tl, kk):
            nonlocal nv
            slot = nv % 4; nv += 1
            rd_v(tl, kk, slot); return slot
        first = True
        pslot = 0
        def softmax_frag(src):
            nonlocal pslot
            p = PF[pslot % 4]; pslot += 1
            for e in range(8): a(f"v_fma_f32 v{src+e}, v{src+e}, v{CS}, v{NM}")
            for e in range(8): a(f"v_exp_f32 v{src+e}, v{src+e}")
            for e in range(4): a(f"v_cvt_pk_bf16_f32 v{p+e}, v{src+2*e}, v{src+2*e+1}")
            return p
        def pv(p, slot, tag):
            nonlocal first
            a.wait_lg(tag)
            c = "0" if first else vr(OA,16)
            a(f"v_mfma_f32_32x32x16_bf16 {vr(OA,16)}, {vr(VF[slot],4)}, {vr(p,4)}, {c}")
            first = False
        for (tl, kk) in seq:
            slot = next_v(tl, kk)
            p = softmax_frag(S + 16*tl + 8*kk)
            pv(p, slot, ('v', tl, kk))
        for kk in range(2):
            s0 = next_v(0, kk); s8 = next_v(8, kk)
            p = softmax_frag(S + 8*kk)
            p8 = PF[pslot % 4]; pslot += 1
            for e in range(4):
                a(f"v_and_b32 v{p8+e}, v{p+e}, v{MK+4*kk+e}")
            for e in range(4):
                a(f"v_xor_b32 v{p+e}, v{p+e}, v{p8+e}")
            pv(p, s0, ('v', 0, kk))
            pv(p8, s8, ('v', 8, kk))
        a(f"v_rcp_f32 v{NM}, v{OA+12}")
        for r in range(12): a(f"v_mul_f32 v{OA+r}, v{OA+r}, v{NM}")
        for e in range(4): a(f"v_cvt_pk_bf16_f32 v{PF[0]+e}, v{OA+2*e}, v{OA+2*e+1}")
        a(f"v_cvt_pk_bf16_f32 v{LO+2*hh}, v{OA+8}, v{OA+9}")
        a(f"v_cvt_pk_bf16_f32 v{LO+2*hh+1}, v{OA+10}, v{OA+11}")
        a(f"s_mul_i32 s{T0}, s{S_QB}, 40")
        a(f"s_lshl_b32 s{T1}, s{HP}, 1")
        a(f"s_add_u32 s{T1}, s{T1}, {hh}")
        a(f"s_add_u32 s{T0}, s{T0}, s{T1}")
        a(f"s_lshl_b32 s{T0}, s{T0}, 10")
        a(f"s_add_u32 s{T0}, s{T0}, {WS_O}")
        a(f"v_lshlrev_b32 v{t0}, 4, v1")
        a(f"buffer_store_dwordx4 {vr(PF[0],4)}, v{t0}, s[{SRD_WS}:{SRD_WS+3}], s{T0} offen sc1")
    mark(a)
    a(f"s_mul_i32 s{T0}, s{S_QB}, 40")
    a(f"s_lshr_b32 s{T1}, s{HP}, 1")
    a(f"s_add_u32 s{T0}, s{T0}, s{T1}")
    a(f"s_add_u32 s{T0}, s{T0}, 32")
    a(f"s_lshl_b32 s{T0}, s{T0}, 10")
    a(f"s_and_b32 s{T1}, s{HP}, 1")
    a(f"s_lshl_b32 s{T1}, s{T1}, 9")
    a(f"s_add_u32 s{T0}, s{T0}, s{T1}")
    a(f"s_add_u32 s{T0}, s{T0}, {WS_O}")
    a("s_mov_b32 exec_hi, 0")
    a(f"buffer_store_dwordx4 {vr(LO,4)}, v{t0}, s[{SRD_WS}:{SRD_WS+3}], s{T0} offen sc1")
    a("s_mov_b32 exec_hi, -1")
    if OPT['mega']:
        a(f"s_lshl_b32 s{T0}, s{S_RB}, 7")
        a(f"s_lshl_b32 s{T1}, s{HP}, 2")
        a(f"s_add_u32 s{T0}, s{T0}, s{T1}")
        a(f"s_add_u32 s{T0}, s{T0}, {WS_FLAG + FO}")
        publish(a, T0, t1)
    a.reset_counters()

def stage_final(a, lbl):
    a(f"s_lshr_b32 s{T0}, s{S_X}, 1")
    a(f"s_lshl_b32 s{T0}, s{T0}, 3")
    a(f"s_and_b32 s{T1}, s{S_I}, 7")
    a(f"s_add_u32 s{S_RB}, s{T0}, s{T1}")
    a(f"s_and_b32 s{T0}, s{S_X}, 1")
    a(f"s_lshl_b32 s{T0}, s{T0}, 2")
    a(f"s_lshr_b32 s{T1}, s{S_I}, 3")
    a(f"s_add_u32 s{S_CJ}, s{T0}, s{T1}")
    srd(a, SRD_A, P_B2, SIZES['B2'])
    srd(a, SRD_B, P_OUT, SIZES['OUT'])
    VW, VA, VB, VT = 2, 3, 4, 6
    t0, t1, t2, t3 = VT, VT+1, VT+2, VT+3
    VG, VO, VF = 10, 11, 12
    AS = [20, 40, 60]
    ACB, ACA = 80, 100
    TR = 120; NT = 28; TD = 20
    NSTEP = 74; HS = 54
    PAIR = 10240; NSL = 7
    NP = NSTEP // 2
    if OPT['mega']:
        a(f"s_lshl_b32 s{T0}, s{S_CJ}, 7")
        a(f"s_add_u32 s{T0}, s{T0}, {WS_FLAG + FW}")
        a(f"v_lshlrev_b32 v{t2}, 2, v1")
        a(f"v_add_u32 v{t2}, s{T0}, v{t2}")
        a(f"s_mov_b32 s{T4}, -1")
        a(f"s_mov_b32 s{T4+1}, 0")
        wait_flags(a, t2, t3, T4)
    a(f"v_lshlrev_b32 v{VW}, 4, v1")
    a(f"s_mul_i32 s{T0}, s{S_CJ}, {WF_TILE}")
    a(f"s_mul_i32 s{T6}, s{S_W}, 2560")
    a(f"s_add_u32 s{T0}, s{T0}, s{T6}")
    a(f"s_add_u32 s{T7}, s{T0}, {WS_WF}")
    def dma_w(p):
        a(f"s_add_u32 m0, s{T6}, {(p % NSL)*PAIR}")
        a(f"s_add_u32 s{S_KW}, s{T7}, {p*PAIR}")
        a(f"buffer_load_dwordx4 v{VW}, s[{SRD_WS}:{SRD_WS+3}], s{S_KW} offen sc1 lds", tag=('W', p))
        a(f"buffer_load_dwordx4 v{VW}, s[{SRD_WS}:{SRD_WS+3}], s{S_KW} offen offset:1024 sc1 lds", tag=('W', p))
        a("s_mov_b32 exec_hi, 0")
        a(f"buffer_load_dwordx4 v{VW}, s[{SRD_WS}:{SRD_WS+3}], s{S_KW} offen offset:2048 sc1 lds", tag=('W', p))
        a("s_mov_b32 exec_hi, -1")
    for p in range(NSL - 1): dma_w(p)
    if OPT['mega'] and OPT['pf_wf']:
        nl = (WF_TILE - (NSL-1)*PAIR) // 128
        per = (nl + 7) // 8
        a(f"s_and_b32 s{T0}, s{S_I}, 7")
        a(f"s_mul_i32 s{T0}, s{T0}, {per*128}")
        a(f"s_mul_i32 s{T1}, s{S_CJ}, {WF_TILE}")
        a(f"s_add_u32 s{T0}, s{T0}, s{T1}")
        a(f"s_add_u32 s{T0}, s{T0}, {WS_WF + (NSL-1)*PAIR}")
        a(f"v_lshlrev_b32 v{t2}, 7, v0")
        a(f"v_add_u32 v{t2}, s{T0}, v{t2}")
        a(f"v_mov_b32 v{t3}, 0x7ffffff0")
        a(f"s_movk_i32 s{T1}, {per}")
        for k in range((per + 255) // 256):
            a(f"v_add_u32 v{t1}, {256*k}, v0")
            a(f"v_cmp_gt_u32 s[{T4}:{T4+1}], s{T1}, v{t1}")
            a(f"v_cndmask_b32 v{t1}, v{t3}, v{t2}, s[{T4}:{T4+1}]")
            a(f"buffer_load_dword v14, v{t1}, s[{SRD_WS}:{SRD_WS+3}], 0 offen sc1", tag='touch')
            a(f"v_add_u32 v{t2}, {256*128}, v{t2}")
    a(f"v_lshrrev_b32 v{t0}, 4, v1")
    a(f"v_lshlrev_b32 v{t1}, 3, v{t0}")
    a(f"s_mul_i32 s{T0}, s{S_CJ}, 160")
    a(f"v_add_u32 v{t1}, s{T0}, v{t1}")
    for F in range(5):
        a(f"buffer_load_dwordx2 {vr(AS[0]+2*F,2)}, v{t1}, s[{SRD_A}:{SRD_A+3}], 0 offen offset:{32*F}", tag='bias')
    if OPT['mega']:
        a(f"s_lshr_b32 s{T0}, s{S_RB}, 1")
        a(f"s_lshl_b32 s{T0}, s{T0}, 7")
        a(f"s_add_u32 s{T1}, s{T0}, {WS_FLAG + FH}")
        a(f"v_lshlrev_b32 v{t2}, 2, v1")
        a(f"v_add_u32 v{t2}, s{T1}, v{t2}")
        a(f"s_mov_b64 s[{T4}:{T4+1}], 0x3fff")
        a(f"s_add_u32 s{T1}, s{T0}, {WS_FLAG + FO}")
        a(f"v_and_b32 v{VF}, 15, v1")
        a(f"v_lshlrev_b32 v{VF}, 2, v{VF}")
        a(f"v_add_u32 v{VF}, s{T1}, v{VF}")
        vm = list(a.vm)
        wait_flags(a, t2, t3, T4)
        a.vm = vm
    a(f"v_lshrrev_b32 v{t1}, 5, v1")
    a(f"v_bfe_u32 v{t2}, v1, 4, 1")
    a(f"v_lshlrev_b32 v{t1}, 10, v{t1}")
    a(f"v_lshl_add_u32 v{t1}, v{t2}, 9, v{t1}")
    a(f"v_and_b32 v{t2}, 15, v1")
    a(f"s_and_b32 s{T0}, s{S_W}, 1")
    a(f"s_lshl_b32 s{T0}, s{T0}, 4")
    a(f"v_add_u32 v{t3}, s{T0}, v{t2}")
    a(f"v_lshl_add_u32 v{VB}, v{t3}, 4, v{t1}")
    a(f"s_lshl_b32 s{T0}, s{S_RB}, 1")
    a(f"s_lshr_b32 s{T1}, s{S_W}, 1")
    a(f"s_add_u32 s{T0}, s{T0}, s{T1}")
    S_HB, S_OB = 62, 63
    a(f"s_mul_i32 s{T1}, s{T0}, {108*1024}")
    a(f"s_add_u32 s{S_HB}, s{T1}, {WS_H}")
    a(f"s_mul_i32 s{T1}, s{T0}, {40*1024}")
    a(f"s_add_u32 s{S_OB}, s{T1}, {WS_O}")
    def ld_t(s):
        if s < HS: sb, k = S_HB, s
        else: sb, k = S_OB, s - HS
        if k % 2 == 0 and k > 0:
            a(f"s_add_u32 s{sb}, s{sb}, 4096")
        a(f"buffer_load_dwordx4 {vr(TR+4*(s % NT),4)}, v{VB}, s[{SRD_WS}:{SRD_WS+3}], s{sb} offen offset:{(k % 2)*2048} sc1", tag=('T', s))
    for s in range(TD): ld_t(s)
    a(f"s_lshl_b32 s{T0}, s{S_RB}, 6")
    a(f"s_lshl_b32 s{T1}, s{S_W}, 4")
    a(f"s_add_u32 s{T0}, s{T0}, s{T1}")
    a(f"v_add_u32 v{t2}, s{T0}, v{t2}")
    a(f"v_lshlrev_b32 v{t3}, 2, v{t2}")
    a(f"v_add_u32 v{t3}, {WS_G}, v{t3}")
    a(f"buffer_load_dword v{VG}, v{t3}, s[{SRD_WS}:{SRD_WS+3}], 0 offen sc1", tag='g')
    a(f"s_movk_i32 s{T1}, 1280")
    a(f"v_mul_lo_u32 v{t2}, v{t2}, s{T1}")
    a(f"s_mul_i32 s{T0}, s{S_CJ}, 160")
    a(f"v_lshl_add_u32 v{t2}, v{t0}, 3, v{t2}")
    a(f"v_add_u32 v{VO}, s{T0}, v{t2}")
    a(f"v_lshrrev_b32 v{t1}, 5, v1")
    a(f"v_bfe_u32 v{t2}, v1, 4, 1")
    a(f"v_lshlrev_b32 v{t1}, 4, v{t1}")
    a(f"v_lshl_add_u32 v{t1}, v{t2}, 2, v{t1}")
    a(f"v_bfe_u32 v{t2}, v1, 2, 2")
    a(f"v_add_u32 v{t1}, v{t1}, v{t2}")
    a(f"v_mul_u32_u24 v{t1}, 160, v{t1}")
    a(f"v_and_b32 v{t2}, 3, v1")
    a(f"v_lshl_add_u32 v{VA}, v{t2}, 3, v{t1}")
    VA2 = 5
    a(f"v_add_u32 v{VA2}, {4*PAIR}, v{VA}")
    a.wait_vm('bias')
    for F in range(5):
        s_ = AS[0] + 2*F; d = ACB + 4*F
        a(f"v_lshlrev_b32 v{d}, 16, v{s_}")
        a(f"v_and_b32 v{d+1}, 0xffff0000, v{s_}")
        a(f"v_lshlrev_b32 v{d+2}, 16, v{s_+1}")
        a(f"v_and_b32 v{d+3}, 0xffff0000, v{s_+1}")
    def rd_a(s, F, rd):
        p = s >> 1; u = s & 1
        sl = p % NSL
        base, off = (VA, sl*PAIR) if sl < 4 else (VA2, (sl-4)*PAIR)
        a(f"ds_read_b64_tr_b16 {vr(AS[s % 3]+4*F+2*rd,2)}, v{base} offset:{off + u*5120 + rd*1280 + F*32}", tag=('A', s, F))
    a.wait_vm(('W', 0))
    a("s_barrier")
    for s in range(2):
        for F in range(5):
            rd_a(s, F, 0); rd_a(s, F, 1)
    mark(a)
    POLL = HS - TD - 6
    for s in range(NSTEP):
        p = s >> 1; u = s & 1
        if s == HS: mark(a)
        if u == 0 and p + 1 < NP:
            a.wait_vm(('W', p + 1))
            a("s_barrier")
            if p + NSL - 1 < NP: dma_w(p + NSL - 1)
        if OPT['mega'] and s == POLL:
            a(f"buffer_load_dword v{VF+1}, v{VF}, s[{SRD_WS}:{SRD_WS+3}], 0 offen sc1", tag='fo')
        if OPT['mega'] and s + TD == HS:
            L = uid("fo")
            a.wait_vm('fo')
            vm_keep = list(a.vm)
            a.label(L)
            a(f"v_cmp_ne_u32 vcc, s{S_NONCE}, v{VF+1}")
            a("s_nop 4")
            a(f"s_cbranch_vccz {L}_ok")
            a("s_sleep 1")
            a(f"buffer_load_dword v{VF+1}, v{VF}, s[{SRD_WS}:{SRD_WS+3}], 0 offen sc1")
            a("s_waitcnt vmcnt(0)")
            a(f"s_branch {L}")
            a.label(f"{L}_ok")
            a.vm = vm_keep
        a.wait_vm(('T', s))
        for F in range(5):
            a.wait_lg(('A', s, F))
            acc = (ACB if s < HS else ACA) + 4*F
            d = vr(acc, 4)
            c = "0" if s == HS else d
            a(f"v_mfma_f32_16x16x32_bf16 {d}, {vr(AS[s % 3]+4*F,4)}, {vr(TR+4*(s % NT),4)}, {c}")
            if s + 2 < NSTEP:
                rd_a(s + 2, F, 0); rd_a(s + 2, F, 1)
            if F == 2 and s + TD < NSTEP:
                ld_t(s + TD)
    mark(a)
    a.wait_vm('g')
    a(f"v_sub_f32 v{t0}, 1.0, v{VG}")
    for r in range(20):
        a(f"v_mul_f32 v{ACB+r}, v{ACB+r}, v{t0}")
    for r in range(20):
        a(f"v_fmac_f32 v{ACB+r}, v{ACA+r}, v{VG}")
    for F in range(5):
        d = AS[0] + 2*F
        a(f"v_cvt_pk_bf16_f32 v{d}, v{ACB+4*F}, v{ACB+4*F+1}")
        a(f"v_cvt_pk_bf16_f32 v{d+1}, v{ACB+4*F+2}, v{ACB+4*F+3}")
        a(f"buffer_store_dwordx2 {vr(d,2)}, v{VO}, s[{SRD_B}:{SRD_B+3}], 0 offen offset:{32*F}")
    a.reset_counters()

def start_prefetch(a, role):
    if OPT['pf_code']:
        prefetch_code(a, "L_endA" if role == 'A' else "L_endB", 1 if role == 'A' else 2)
    if role == 'B' and OPT['pf_w1']:
        L = uid("pw")
        a(f"s_lshr_b32 s{T1}, s{S_I}, 2")
        a(f"s_cmp_ge_u32 s{T1}, 7")
        a(f"s_cbranch_scc1 {L}")
        a(f"s_and_b32 s{T0}, s{S_X}, 1")
        a(f"s_mul_i32 s{T0}, s{T0}, 7")
        a(f"s_add_u32 s{T0}, s{T0}, s{T1}")
        a(f"s_lshl_b32 s{T0}, s{T0}, 8")
        a(f"s_and_b32 s{T1}, s{S_I}, 3")
        a(f"s_mul_i32 s{T1}, s{T1}, {160*3456}")
        a(f"s_add_u32 s{T0}, s{T0}, s{T1}")
        srd(a, SRD_C, P_W1, SIZES['W1'])
        a("v_lshrrev_b32 v250, 1, v0")
        a(f"s_movk_i32 s{T1}, 3456")
        a(f"v_mul_lo_u32 v250, v250, s{T1}")
        a("v_and_b32 v251, 1, v0")
        a("v_lshl_add_u32 v250, v251, 7, v250")
        a(f"v_add_u32 v250, s{T0}, v250")
        vm = list(a.vm)
        a(f"buffer_load_dword v253, v250, s[{SRD_C}:{SRD_C+3}], 0 offen")
        a(f"v_add_u32 v250, {128*3456}, v250")
        a("v_mov_b32 v251, 0x7ffffff0")
        a(f"v_cmp_gt_u32 s[{T4}:{T4+1}], 64, v0")
        a(f"v_cndmask_b32 v250, v251, v250, s[{T4}:{T4+1}]")
        a(f"buffer_load_dword v253, v250, s[{SRD_C}:{SRD_C+3}], 0 offen")
        a.vm = vm
        a.label(L)

def build_multi():
    LDS = 73728
    ks = []
    def mk(name, fa, fb):
        a = Asm()
        a("s_cmp_ge_u32 s2, 512")
        a(f"s_cbranch_scc1 {name}_end")
        prologue(a)
        kidx = len(ks)
        stamp(a, kidx, 0)
        CTX['k'] = kidx; CTX['slot'] = 0
        a("s_cmp_ge_u32 s2, 256")
        a(f"s_cbranch_scc1 {name}_b")
        for n, f in enumerate(fa):
            f(a, name + "_" + f.__name__)
            if STAMPS: a("s_waitcnt vmcnt(0)"); mark(a)
        a(f"s_branch {name}_end")
        a.label(f"{name}_b")
        a.reset_counters()
        CTX['slot'] = 0
        for n, f in enumerate(fb):
            f(a, name + "_" + f.__name__)
            if STAMPS: a("s_waitcnt vmcnt(0)"); mark(a)
        a.label(f"{name}_end")
        ks.append((name, a.text()))
    if OPT.get('split'):
        mk("k1_kernel", [stage_qkv], [])
        mk("k2_kernel", [], [stage_ln, stage_repack])
        mk("k3_kernel", [stage_attn], [])
        mk("k4_kernel", [], [stage_ffn1])
        mk("k5_kernel", [], [stage_final])
        return ks, LDS
    mk("k1_kernel", [stage_qkv], [stage_ln, stage_repack])
    mk("k2_kernel", [stage_attn], [stage_ffn1])
    mk("k3_kernel", [], [stage_final])
    return ks, LDS

def build_mega():
    OPT['mega'] = True
    LDS = 73728
    name = NAME + "_kernel"
    a = Asm()
    a("s_cmp_ge_u32 s2, 512")
    a("s_cbranch_scc1 L_end")
    prologue(a)
    nonce_post(a)
    stamp(a, 0, 0); CTX['k'] = 0; CTX['slot'] = 0
    dbgtime(a, 1, True); dbgtime(a, 2)
    a("s_cmp_ge_u32 s2, 256")
    a("s_cbranch_scc1 L_roleB")
    stage_qkv(a, "qkv"); mark(a); dbgtime(a, 3)
    stage_attn(a, "attn"); mark(a); dbgtime(a, 4)
    a("s_endpgm")
    a.label("L_endA")
    a.label("L_roleB")
    a.reset_counters(); CTX['slot'] = 0
    stage_ln(a, "ln"); mark(a); dbgtime(a, 5)
    stage_repack(a, "rp"); mark(a); dbgtime(a, 6)
    stage_ffn1(a, "ffn1"); mark(a); dbgtime(a, 7)
    stage_final(a, "fin")
    if STAMPS or OPT.get('dbgtime'): a("s_waitcnt vmcnt(0)")
    mark(a); dbgtime(a, 8)
    a.label("L_endB")
    a.label("L_end")
    return [(name, a.text())], LDS

def header_comment():
    ref = open("cdna_kernels/" + NAME + ".s.ref").read().split("\n")
    return [l for l in ref if l.startswith(";") and "@launch" not in l and "Override" not in l and "grid=ceil" not in l]

def emit(ks, LDS, grid=512):
    s = "\n".join(header_comment()) + "\n"
    if len(ks) == 1:
        s += f"; @launch grid=({grid},1,1) block=(256,1,1) lds={LDS}\n"
    else:
        for name, _ in ks:
            s += f"; @launch kernel={name} grid=({grid},1,1) block=(256,1,1) lds={LDS}\n"
    s += '.amdgcn_target "amdgcn-amd-amdhsa--gfx950"\n.text\n'
    for name, body in ks:
        s += kernel_text(name, body, grid, LDS)
    s += '.section .rodata,"a"\n'
    for name, _ in ks:
        s += ".p2align 6\n" + descriptor(name)
    return s

if __name__ == "__main__":
    mode = sys.argv[1] if len(sys.argv) > 1 else "multi"
    if "stamps" in sys.argv: STAMPS = True
    for arg in sys.argv[2:]:
        if "=" in arg:
            k, v = arg.split("="); OPT[k] = int(v)
    ks, LDS = build_multi() if mode == "multi" else build_mega()
    sys.stdout.write(emit(ks, LDS))
```

```python
import sys
from asmlib import Asm

NAME = "gated_mix__sliding_block__mixer_channel_mlp__prompt"

WS_Y    = 0x0000000
WS_G    = 0x0280000
WS_QKV  = 0x0300000
WS_H    = 0x0B00000
WS_O    = 0x1200000
WS_WF   = 0x1500000
WS_FLAG = 0x1800000
WS_STAMP = 0x1900000
WS_SIZE = 0x1A00000
WF_TILE = 2368 * 160
FY, FW, FQ, FH, FO = 0, 2048, 3072, 5120, 7168
OPT = dict(mega=False, rot=True, pf_code=True, pf_w1=True, pf_wf=True, tlb=True)

P_AX, P_WQKV, P_WO, P_BX, P_W1, P_B1, P_W2, P_B2 = 4, 6, 8, 10, 12, 14, 16, 18
P_GW, P_OUT, P_DBG, P_WS = 20, 22, 24, 26
SRD_A, SRD_B, SRD_WS, SRD_C = 28, 32, 36, 40
S_W, S_IDX, S_X, S_I = 44, 45, 46, 47
T0, T1, T2, T3, T4, T5, T6, T7 = 48, 49, 50, 51, 52, 53, 54, 55
S_RB, S_CJ = 56, 57
S_KX, S_KW, S_M0 = 58, 59, 60
S_MASK = 64
S_NONCE = 96
S_KO = 62

SIZES = dict(AX=2048*640*2, WQKV=640*1920*2, WO=640*640*2, BX=2048*640*2, W1=640*1728*2, B1=1728*2,
             W2=1728*640*2, B2=640*2, GW=640*2, OUT=2048*640*2)

def srd(a, dst, ptr, size):
    a(f"s_mov_b32 s{dst}, s{ptr}")
    a(f"s_and_b32 s{dst+1}, s{ptr+1}, 0xffff")
    a(f"s_mov_b32 s{dst+2}, {size}")
    a(f"s_mov_b32 s{dst+3}, 0x20000")

def vr(b, n=1):
    return f"v{b}" if n == 1 else f"v[{b}:{b+n-1}]"

def prologue(a):
    a("s_load_dwordx16 s[4:19], s[0:1], 0")
    a("s_load_dwordx8 s[20:27], s[0:1], 64")
    a("v_lshrrev_b32 v2, 6, v0")
    a("v_and_b32 v1, 63, v0")
    a(f"v_readfirstlane_b32 s{S_W}, v2")
    a(f"s_and_b32 s{S_IDX}, s2, 255")
    a(f"s_and_b32 s{S_X}, s2, 7")
    a(f"s_lshr_b32 s{S_I}, s{S_IDX}, 3")
    a("s_waitcnt lgkmcnt(0)")
    srd(a, SRD_WS, P_WS, WS_SIZE)


_uid = [0]
def uid(p):
    _uid[0] += 1
    return f"{p}_{_uid[0]}"

def nonce_post(a):
    L = uid("np")
    a(f"s_or_b32 s{T0}, s2, s{S_W}")
    a(f"s_cmp_lg_u32 s{T0}, 0")
    a(f"s_cbranch_scc1 {L}")
    a(f"s_memrealtime s[{T4}:{T4+1}]")
    a("s_waitcnt lgkmcnt(0)")
    a(f"s_or_b32 s{T4}, s{T4}, 1")
    a(f"v_mov_b32 v2, s{T4}")
    a("v_mov_b32 v3, 0")
    a("s_mov_b64 exec, 1")
    a(f"global_store_dword v3, v2, s[{P_DBG}:{P_DBG+1}] sc1")
    a("s_mov_b64 exec, -1")
    a.vm.pop()
    a.label(L)

def nonce_load(a, v):
    a(f"v_mov_b32 v{v+1}, 0")
    a(f"global_load_dword v{v}, v{v+1}, s[{P_DBG}:{P_DBG+1}] sc1", tag='nonce')

def nonce_get(a, v):
    L = uid("ng")
    a.wait_vm('nonce')
    a.label(L)
    a(f"v_readfirstlane_b32 s{S_NONCE}, v{v}")
    a(f"s_cmp_lg_u32 s{S_NONCE}, 0")
    a(f"s_cbranch_scc1 {L}_ok")
    a("s_sleep 2")
    a(f"global_load_dword v{v}, v{v+1}, s[{P_DBG}:{P_DBG+1}] sc1")
    a("s_waitcnt vmcnt(0)")
    a(f"s_branch {L}")
    a.label(f"{L}_ok")

def publish(a, sflag, v):
    L = uid("pub")
    a("s_waitcnt vmcnt(0)")
    a("s_barrier")
    a(f"s_cmp_lg_u32 s{S_W}, 0")
    a(f"s_cbranch_scc1 {L}")
    a(f"v_mov_b32 v{v}, s{S_NONCE}")
    a("s_mov_b64 exec, 1")
    a(f"buffer_store_dword v{v}, off, s[{SRD_WS}:{SRD_WS+3}], s{sflag} sc1")
    a("s_mov_b64 exec, -1")
    a.label(L)
    a.reset_counters()

def wait_flags(a, voff, vtmp, smask):
    L = uid("wf")
    a(f"s_cmp_lg_u32 s{S_W}, 0")
    a(f"s_cbranch_scc1 {L}_done")
    a(f"s_mov_b64 exec, s[{smask}:{smask+1}]")
    a.label(L)
    a(f"buffer_load_dword v{vtmp}, v{voff}, s[{SRD_WS}:{SRD_WS+3}], 0 offen sc1")
    a("s_waitcnt vmcnt(0)")
    a(f"v_cmp_ne_u32 vcc, s{S_NONCE}, v{vtmp}")
    a("s_nop 4")
    a(f"s_cbranch_vccz {L}_ok")
    a("s_sleep 1")
    a(f"s_branch {L}")
    a.label(f"{L}_ok")
    a("s_mov_b64 exec, -1")
    a.label(f"{L}_done")
    a("s_barrier")
    a.reset_counters()

def touch_lines(a, srd_, vbase, n, stride, dst, soff='0', sc=''):
    for k in range(n):
        a(f"buffer_load_dword v{dst}, v{vbase}, s[{srd_}:{srd_+3}], {soff} offen {sc}".rstrip(), tag='touch')
        if k + 1 < n: a(f"v_add_u32 v{vbase}, {stride}, v{vbase}")

def prefetch_code(a, lbl_end, per):
    L = uid("pc")
    a(f"s_getpc_b64 s[{T4}:{T4+1}]")
    a.label(L)
    a(f"s_mul_i32 s{T0}, s{S_W}, {per*8192}")
    a("v_lshlrev_b32 v252, 7, v1")
    a(f"v_add_u32 v252, s{T0}, v252")
    for k in range(per):
        a(f"v_min_u32 v251, {lbl_end}-{L}-4, v252")
        a(f"global_load_dword v253, v251, s[{T4}:{T4+1}]", tag='touch')
        if k + 1 < per: a("v_add_u32 v252, 8192, v252")

def stage_qkv(a, lbl):
    XS = [0, 16384, 32768]
    WB = 49152
    a(f"s_lshr_b32 s{T0}, s{S_X}, 1")
    a(f"s_lshl_b32 s{T0}, s{T0}, 2")
    a(f"s_and_b32 s{T1}, s{S_I}, 3")
    a(f"s_add_u32 s{S_RB}, s{T0}, s{T1}")
    a(f"s_and_b32 s{T0}, s{S_X}, 1")
    a(f"s_lshl_b32 s{T0}, s{T0}, 3")
    a(f"s_lshr_b32 s{T1}, s{S_I}, 2")
    a(f"s_add_u32 s{S_CJ}, s{T0}, s{T1}")
    a(f"s_cmp_ge_u32 s{S_CJ}, 15")
    a(f"s_cbranch_scc1 {lbl}_skip")
    srd(a, SRD_A, P_AX, SIZES['AX'])
    srd(a, SRD_B, P_WQKV, SIZES['WQKV'])
    VXD, VWD = 2, 6
    VXF, VWF = 8, 12
    VT = 14
    FB = [20, 36]
    ACC = 64
    t0, t1, t2, t3 = VT, VT+1, VT+2, VT+3
    a(f"s_lshl_b32 s{T0}, s{S_RB}, 7")
    a(f"s_lshl_b32 s{T1}, s{S_W}, 5")
    a(f"s_add_u32 s{T0}, s{T0}, s{T1}")
    a(f"v_lshrrev_b32 v{t0}, 3, v1")
    a(f"v_add_u32 v{t0}, s{T0}, v{t0}")
    a(f"s_movk_i32 s{T2}, 1280")
    a(f"v_mul_lo_u32 v{t0}, v{t0}, s{T2}")
    a(f"v_lshrrev_b32 v{t1}, 4, v1")
    a(f"v_and_b32 v{t2}, 7, v1")
    a(f"v_xor_b32 v{t2}, v{t2}, v{t1}")
    a(f"v_xor_b32 v{t3}, 4, v{t2}")
    for i in range(4):
        src = t2 if i % 2 == 0 else t3
        a(f"v_lshl_add_u32 v{VXD+i}, v{src}, 4, v{t0}")
        if i:
            a(f"v_add_u32 v{VXD+i}, {i*(8*1280-1024)}, v{VXD+i}")
    a(f"s_lshl_b32 s{T0}, s{S_W}, 3")
    a(f"v_lshrrev_b32 v{t0}, 4, v1")
    a(f"v_add_u32 v{t1}, s{T0}, v{t0}")
    a(f"s_movk_i32 s{T2}, 3840")
    a(f"v_mul_lo_u32 v{t1}, v{t1}, s{T2}")
    a(f"v_bfe_u32 v{t2}, v1, 2, 2")
    a(f"v_xor_b32 v{t2}, v{t2}, v{t0}")
    a(f"v_and_b32 v{t3}, 3, v1")
    a(f"v_lshl_add_u32 v{t2}, v{t2}, 2, v{t3}")
    a(f"v_lshl_add_u32 v{t1}, v{t2}, 4, v{t1}")
    a(f"s_lshl_b32 s{T0}, s{S_CJ}, 8")
    a(f"v_add_u32 v{VWD}, s{T0}, v{t1}")
    a(f"v_add_u32 v{VWD+1}, {4*3840-1024}, v{VWD}")
    a(f"s_lshl_b32 s{T6}, s{S_W}, 12")
    a(f"s_lshl_b32 s{T7}, s{S_W}, 11")
    if OPT['rot']:
        a(f"s_and_b32 s{T0}, s{S_I}, 3")
        a(f"s_mul_i32 s{T0}, s{T0}, 10")
        a(f"s_lshr_b32 s{T1}, s{S_I}, 2")
        a(f"s_mul_i32 s{T1}, s{T1}, 5")
        a(f"s_add_u32 s{T0}, s{T0}, s{T1}")
        a(f"s_lshr_b32 s{T0}, s{T0}, 2")
        a(f"s_sub_u32 s{T1}, s{T0}, 10")
        a(f"s_cmp_ge_u32 s{T0}, 10")
        a(f"s_cselect_b32 s{T0}, s{T1}, s{T0}")
        a(f"s_lshl_b32 s{S_KX}, s{T0}, 7")
        a(f"s_mul_i32 s{S_KW}, s{T0}, {64*3840}")
    else:
        a(f"s_mov_b32 s{S_KX}, 0")
        a(f"s_mov_b32 s{S_KW}, 0")
    def adv(sreg, step, wrap):
        a(f"s_add_u32 s{sreg}, s{sreg}, {step}")
        a(f"s_cmp_eq_u32 s{sreg}, {wrap}")
        a(f"s_cselect_b32 s{sreg}, 0, s{sreg}")
    def dma_x(b):
        a(f"s_add_u32 m0, s{T6}, {XS[b % 3]}")
        if b > 0: adv(S_KX, 128, 1280)
        for i in range(4):
            a(f"buffer_load_dwordx4 v{VXD+i}, s[{SRD_A}:{SRD_A+3}], s{S_KX} offen offset:{i*1024} lds", tag=('X', b))
    def dma_w(h):
        a(f"s_add_u32 m0, s{T7}, {WB + (h % 3)*8192}")
        if h > 0: adv(S_KW, 32*3840, 640*3840)
        for i in range(2):
            a(f"buffer_load_dwordx4 v{VWD+i}, s[{SRD_B}:{SRD_B+3}], s{S_KW} offen offset:{i*1024} lds", tag=('W', h))
    dma_x(0); dma_w(0); dma_w(1); dma_x(1)
    if OPT['mega']: start_prefetch(a, 'A')
    a(f"s_and_b32 s{T0}, s{S_W}, 1")
    a(f"s_lshl_b32 s{T0}, s{T0}, 13")
    a(f"v_and_b32 v{t0}, 31, v1")
    a(f"v_lshrrev_b32 v{t1}, 5, v1")
    a(f"v_bfe_u32 v{t2}, v1, 1, 3")
    a(f"v_lshlrev_b32 v{t0}, 7, v{t0}")
    a(f"v_add_u32 v{t0}, s{T0}, v{t0}")
    for s in range(4):
        a(f"v_or_b32 v{t3}, {2*s}, v{t1}")
        a(f"v_xor_b32 v{t3}, v{t3}, v{t2}")
        a(f"v_lshl_add_u32 v{VXF+s}, v{t3}, 4, v{t0}")
    a(f"v_bfe_u32 v{t0}, v1, 2, 2")
    a(f"v_lshl_add_u32 v{t1}, v{t1}, 3, v{t0}")
    a(f"v_lshlrev_b32 v{t1}, 8, v{t1}")
    a(f"v_bfe_u32 v{t2}, v1, 4, 1")
    a(f"v_lshl_add_u32 v{t1}, v{t2}, 5, v{t1}")
    a(f"v_and_b32 v{t2}, 3, v1")
    a(f"v_lshl_add_u32 v{t1}, v{t2}, 3, v{t1}")
    a(f"v_add_u32 v{t1}, {WB}, v{t1}")
    a(f"s_and_b32 s{T0}, s{S_W}, 2")
    for ft in range(2):
        a(f"s_or_b32 s{T1}, s{T0}, {ft}")
        a(f"v_xor_b32 v{t2}, s{T1}, v{t0}")
        a(f"v_lshl_add_u32 v{VWF+ft}, v{t2}, 6, v{t1}")
    def rd_b(st, hh, sp, tt):
        xb = hh >> 1; sx = 2*(hh & 1) + sp
        a(f"ds_read_b128 {vr(FB[st]+4*tt,4)}, v{VXF+sx} offset:{XS[xb % 3] + tt*4096}", tag=('f', hh, sp))
    def rd_a(st, hh, sp, ft, rd):
        a(f"ds_read_b64_tr_b16 {vr(FB[st]+8+4*ft+2*rd,2)}, v{VWF+ft} offset:{(hh % 3)*8192 + sp*4096 + rd*1024}", tag=('f', hh, sp))
    def mf(st, tt, ft, first):
        d = vr(ACC+16*(2*tt+ft), 16)
        c = "0" if first else d
        a(f"v_mfma_f32_32x32x16_bf16 {d}, {vr(FB[st]+8+4*ft,4)}, {vr(FB[st]+4*tt,4)}, {c}")
    NH = 20
    for hh in range(NH):
        if hh == 1: mark(a)
        a.wait_vm([('W', hh), ('X', hh >> 1)])
        a("s_waitcnt lgkmcnt(0)")
        a("s_barrier")
        prev = hh > 0
        rd_b(0, hh, 0, 0); rd_a(0, hh, 0, 0, 0)
        if prev: mf(1, 0, 0, False)
        rd_a(0, hh, 0, 0, 1); rd_b(0, hh, 0, 1); rd_a(0, hh, 0, 1, 0)
        if prev: mf(1, 1, 0, False)
        rd_a(0, hh, 0, 1, 1)
        if hh + 2 < NH: dma_w(hh + 2)
        if prev: mf(1, 0, 1, False)
        if hh % 2 == 0 and hh // 2 + 2 < 10: dma_x(hh // 2 + 2)
        if prev: mf(1, 1, 1, False)
        first = hh == 0
        rd_b(1, hh, 1, 0); rd_a(1, hh, 1, 0, 0); rd_a(1, hh, 1, 0, 1)
        a(f"s_waitcnt lgkmcnt(6)")
        mf(0, 0, 0, first)
        rd_b(1, hh, 1, 1); rd_a(1, hh, 1, 1, 0); rd_a(1, hh, 1, 1, 1)
        a(f"s_waitcnt lgkmcnt(6)")
        mf(0, 1, 0, first); mf(0, 0, 1, first); mf(0, 1, 1, first)
    a("s_waitcnt lgkmcnt(0)")
    mf(1, 0, 0, False); mf(1, 1, 0, False); mf(1, 0, 1, False); mf(1, 1, 1, False)
    mark(a)
    a(f"v_lshrrev_b32 v{t0}, 5, v1")
    a(f"s_lshr_b32 s{T0}, s{S_W}, 1")
    a(f"s_lshl_b32 s{T0}, s{T0}, 4")
    a(f"v_add_u32 v{t0}, s{T0}, v{t0}")
    a(f"v_lshlrev_b32 v{t0}, 14, v{t0}")
    a(f"s_and_b32 s{T0}, s{S_W}, 1")
    a(f"s_lshl_b32 s{T0}, s{T0}, 6")
    a(f"v_and_b32 v{t1}, 31, v1")
    a(f"v_add_u32 v{t1}, s{T0}, v{t1}")
    a(f"v_lshl_add_u32 v{t0}, v{t1}, 3, v{t0}")
    a(f"s_lshl_b32 s{T0}, s{S_CJ}, 19")
    a(f"s_lshl_b32 s{T1}, s{S_RB}, 10")
    a(f"s_add_u32 s{T0}, s{T0}, s{T1}")
    a(f"s_add_u32 s{T0}, s{T0}, {WS_QKV}")
    if OPT['mega']: nonce_load(a, 16)
    k = 0
    for ft in range(2):
        for j in range(4):
            a(f"s_add_u32 s{T1}, s{T0}, {(8*ft+2*j)*16384}")
            for tt in range(2):
                base = ACC + 16*(2*tt+ft) + 4*j
                d = FB[0] + 2*(k % 16); k += 1
                a(f"v_cvt_pk_bf16_f32 v{d}, v{base}, v{base+1}")
                a(f"v_cvt_pk_bf16_f32 v{d+1}, v{base+2}, v{base+3}")
                a(f"buffer_store_dwordx2 {vr(d,2)}, v{t0}, s[{SRD_WS}:{SRD_WS+3}], s{T1} offen offset:{tt*256} sc1")
    mark(a)
    if OPT['mega']:
        nonce_get(a, 16)
        a(f"s_lshl_b32 s{T0}, s{S_RB}, 7")
        a(f"s_lshl_b32 s{T1}, s{S_CJ}, 2")
        a(f"s_add_u32 s{T0}, s{T0}, s{T1}")
        a(f"s_add_u32 s{T0}, s{T0}, {WS_FLAG + FQ}")
        publish(a, T0, 16)
        a(f"s_branch {lbl}_end")
    a.label(f"{lbl}_skip")
    if OPT['mega']:
        a.reset_counters()
        nonce_load(a, 16)
        nonce_get(a, 16)
        a.label(f"{lbl}_end")
    a.reset_counters()

STAMPS = False
CTX = dict(k=0, slot=0)
def mark(a):
    if not STAMPS: return
    CTX['slot'] += 1
    stamp(a, CTX['k'], CTX['slot'])
def stamp(a, kidx, slot):
    if not STAMPS: return
    stamp.n = getattr(stamp, 'n', 0) + 1
    L = f"stamp_{stamp.n}"
    a(f"s_cmp_lg_u32 s{S_W}, 0")
    a(f"s_cbranch_scc1 {L}")
    a("s_memrealtime s[98:99]")
    a("s_memtime s[100:101]")
    a("s_waitcnt lgkmcnt(0)")
    a(f"s_lshl_b32 s97, s2, 7")
    a(f"s_add_u32 s97, s97, {WS_STAMP + kidx*(1024*128) + slot*4}")
    a("s_mov_b64 exec, 1")
    a("v_mov_b32 v254, s98")
    a("v_mov_b32 v255, s100")
    vm = list(a.vm)
    a(f"buffer_store_dword v254, off, s[{SRD_WS}:{SRD_WS+3}], s97")
    a(f"buffer_store_dword v255, off, s[{SRD_WS}:{SRD_WS+3}], s97 offset:64")
    a("s_mov_b64 exec, -1")
    a.vm = vm
    a.label(L)

def dbgtime(a, slot, wg):
    if not OPT.get('dbgtime'): return
    L = uid("dt")
    a(f"s_cmp_lg_u32 s{S_W}, 0")
    a(f"s_cbranch_scc1 {L}")
    a(f"s_cmp_lg_u32 s2, {wg}")
    a(f"s_cbranch_scc1 {L}")
    a("s_memrealtime s[98:99]")
    a("s_waitcnt lgkmcnt(0)")
    a("s_mov_b64 exec, 1")
    a("v_mov_b32 v254, s98")
    a(f"v_mov_b32 v255, {slot*4}")
    vm = list(a.vm)
    a(f"global_store_dword v255, v254, s[{P_DBG}:{P_DBG+1}]")
    a("s_mov_b64 exec, -1")
    a.vm = vm
    a.label(L)

def kernel_text(name, body, grid, lds):
    s  = f".globl {name}\n.p2align 8\n.type {name},@function\n{name}:\n"
    s += body
    s += "    s_endpgm\n"
    return s

def descriptor(name, vgpr=256):
    return f""".amdhsa_kernel {name}
  .amdhsa_next_free_vgpr {vgpr}
  .amdhsa_next_free_sgpr 102
  .amdhsa_accum_offset {vgpr}
  .amdhsa_group_segment_fixed_size 0
  .amdhsa_kernarg_size 96
  .amdhsa_user_sgpr_count 2
  .amdhsa_user_sgpr_kernarg_segment_ptr 1
  .amdhsa_system_sgpr_workgroup_id_x 1
.end_amdhsa_kernel
"""

def dpp_sum16(a, v):
    for r in (8, 4, 2, 1):
        a(f"v_add_f32_dpp v{v}, v{v}, v{v} row_ror:{r} row_mask:0xf bank_mask:0xf")

def stage_ln(a, lbl):
    VO, VT = 2, 4
    X, F = 20, 40
    t0, t1, t2, t3, t4 = VT, VT+1, VT+2, VT+3, VT+4
    a(f"s_and_b32 s{T0}, s{S_W}, 1")
    a(f"s_lshl_b32 s{T0}, s{T0}, 2")
    a(f"s_lshl_b32 s{T1}, s{S_IDX}, 3")
    a(f"s_add_u32 s{T0}, s{T0}, s{T1}")
    a(f"v_lshrrev_b32 v{t0}, 4, v1")
    a(f"v_add_u32 v{t0}, s{T0}, v{t0}")
    a(f"v_and_b32 v{t1}, 15, v1")
    a(f"s_movk_i32 s{T2}, 1280")
    a(f"v_mul_lo_u32 v{VO}, v{t0}, s{T2}")
    a(f"v_lshl_add_u32 v{VO}, v{t1}, 4, v{VO}")
    a(f"s_cmp_ge_u32 s{S_W}, 2")
    a(f"s_cbranch_scc1 {lbl}_gate")
    srd(a, SRD_A, P_AX, SIZES['AX'])
    for i in range(5):
        a(f"buffer_load_dwordx4 {vr(X+4*i,4)}, v{VO}, s[{SRD_A}:{SRD_A+3}], 0 offen offset:{256*i}", tag='lnx')
    if OPT['mega']: start_prefetch(a, 'B')
    a(f"v_lshrrev_b32 v{t2}, 5, v{t0}")
    a(f"v_mul_u32_u24 v{t2}, 40, v{t2}")
    a(f"v_lshrrev_b32 v{t3}, 1, v{t1}")
    a(f"v_add_u32 v{t2}, v{t2}, v{t3}")
    a(f"v_lshlrev_b32 v{t2}, 10, v{t2}")
    a(f"v_and_b32 v{t3}, 1, v{t1}")
    a(f"v_lshl_add_u32 v{t2}, v{t3}, 9, v{t2}")
    a(f"v_and_b32 v{t3}, 31, v{t0}")
    a(f"v_lshl_add_u32 v{VO+1}, v{t3}, 4, v{t2}")
    a.wait_vm('lnx')
    for d in range(20):
        a(f"v_lshlrev_b32 v{F+2*d}, 16, v{X+d}")
        a(f"v_and_b32 v{F+2*d+1}, 0xffff0000, v{X+d}")
    for k in range(4):
        a(f"v_add_f32 v{t0+k}, v{F+k}, v{F+4+k}")
    for d in range(8, 40):
        a(f"v_add_f32 v{t0+(d%4)}, v{t0+(d%4)}, v{F+d}")
    a(f"v_add_f32 v{t0}, v{t0}, v{t1}")
    a(f"v_add_f32 v{t2}, v{t2}, v{t3}")
    a(f"v_add_f32 v{t0}, v{t0}, v{t2}")
    dpp_sum16(a, t0)
    a(f"v_mul_f32 v{t0}, 0x3acccccd, v{t0}")
    for d in range(40):
        a(f"v_sub_f32 v{F+d}, v{F+d}, v{t0}")
    for k in range(4):
        a(f"v_mul_f32 v{t0+k}, v{F+k}, v{F+k}")
    for d in range(4, 40):
        a(f"v_fmac_f32 v{t0+(d%4)}, v{F+d}, v{F+d}")
    a(f"v_add_f32 v{t0}, v{t0}, v{t1}")
    a(f"v_add_f32 v{t2}, v{t2}, v{t3}")
    a(f"v_add_f32 v{t0}, v{t0}, v{t2}")
    dpp_sum16(a, t0)
    a(f"v_mov_b32 v{t1}, 0x3727c5ac")
    a(f"v_fmac_f32 v{t1}, 0x3acccccd, v{t0}")
    a(f"v_rsq_f32 v{t1}, v{t1}")
    for d in range(40):
        a(f"v_mul_f32 v{F+d}, v{F+d}, v{t1}")
    for d in range(20):
        a(f"v_cvt_pk_bf16_f32 v{X+d}, v{F+2*d}, v{F+2*d+1}")
    if OPT['mega']: nonce_load(a, 10)
    for i in range(5):
        a(f"buffer_store_dwordx4 {vr(X+4*i,4)}, v{VO+1}, s[{SRD_WS}:{SRD_WS+3}], 0 offen sc1")
        if i < 4:
            a(f"v_add_u32 v{VO+1}, 8192, v{VO+1}")
    a(f"s_branch {lbl}_done")
    a.label(f"{lbl}_gate")
    a.reset_counters()
    srd(a, SRD_A, P_AX, SIZES['AX'])
    srd(a, SRD_B, P_GW, SIZES['GW'])
    G = 40
    a(f"v_lshlrev_b32 v{VO+1}, 4, v{t1}")
    for i in range(5):
        a(f"buffer_load_dwordx4 {vr(X+4*i,4)}, v{VO}, s[{SRD_A}:{SRD_A+3}], 0 offen offset:{256*i}", tag='gx')
        a(f"buffer_load_dwordx4 {vr(G+4*i,4)}, v{VO+1}, s[{SRD_B}:{SRD_B+3}], 0 offen offset:{256*i}", tag='gx')
    if OPT['mega']: start_prefetch(a, 'B')
    a(f"v_lshlrev_b32 v{t2}, 2, v{t0}")
    a(f"v_add_u32 v{t2}, {WS_G}, v{t2}")
    a(f"v_mov_b32 v{t3}, 0x7ffffff0")
    a(f"v_cmp_eq_u32 s[{T4}:{T4+1}], 0, v{t1}")
    a(f"v_cndmask_b32 v{VO}, v{t3}, v{t2}, s[{T4}:{T4+1}]")
    a(f"v_mov_b32 v{t0}, 0")
    a(f"v_mov_b32 v{t1}, 0")
    a.wait_vm('gx')
    U = 60
    for d in range(20):
        u = U + 4*(d % 4)
        a(f"v_lshlrev_b32 v{u}, 16, v{X+d}")
        a(f"v_lshlrev_b32 v{u+1}, 16, v{G+d}")
        a(f"v_and_b32 v{u+2}, 0xffff0000, v{X+d}")
        a(f"v_and_b32 v{u+3}, 0xffff0000, v{G+d}")
        a(f"v_fmac_f32 v{t0}, v{u}, v{u+1}")
        a(f"v_fmac_f32 v{t1}, v{u+2}, v{u+3}")
    a(f"v_add_f32 v{t0}, v{t0}, v{t1}")
    dpp_sum16(a, t0)
    a(f"v_mul_f32 v{t0}, 0xbfb8aa3b, v{t0}")
    a(f"v_exp_f32 v{t0}, v{t0}")
    a(f"v_add_f32 v{t0}, 1.0, v{t0}")
    a(f"v_rcp_f32 v{t0}, v{t0}")
    a(f"s_nop 0")
    if OPT['mega']: nonce_load(a, 10)
    a(f"buffer_store_dword v{t0}, v{VO}, s[{SRD_WS}:{SRD_WS+3}], 0 offen sc1")
    a.label(f"{lbl}_done")
    a.reset_counters()
    if OPT['mega']:
        a("s_waitcnt vmcnt(0)")
        nonce_get(a, 10)
        a(f"s_lshr_b32 s{T0}, s{S_IDX}, 4")
        a(f"s_lshl_b32 s{T0}, s{T0}, 7")
        a(f"s_and_b32 s{T1}, s{S_IDX}, 15")
        a(f"s_lshl_b32 s{T1}, s{T1}, 2")
        a(f"s_add_u32 s{T0}, s{T0}, s{T1}")
        a(f"s_add_u32 s{T0}, s{T0}, {WS_FLAG + FY}")
        publish(a, T0, 10)

def stage_repack(a, lbl):
    VT = 2
    t0, t1, t2, t3, t4, t5 = range(VT, VT+6)
    VS, VD, D = 8, 12, 16
    a(f"s_and_b32 s{T0}, s{S_IDX}, 7")
    a(f"s_lshr_b32 s{T1}, s{S_IDX}, 3")
    a(f"s_mul_i32 s{T2}, s{T0}, 160")
    a(f"s_mul_i32 s{T3}, s{T0}, {WF_TILE}")
    a(f"s_add_u32 s{T3}, s{T3}, {WS_WF}")
    a(f"s_movk_i32 s{T6}, 6554")
    a(f"s_movk_i32 s{T7}, 1280")
    a(f"s_cmp_ge_u32 s{T1}, 24")
    a(f"s_cbranch_scc1 {lbl}_wo")
    srd(a, SRD_A, P_W2, SIZES['W2'])
    a(f"s_mul_i32 s{T4}, s{T1}, 72")
    a(f"s_mul_i32 s{T5}, s{T4}, 160")
    a(f"s_add_u32 s{T3}, s{T3}, s{T5}")
    a(f"s_movk_i32 s{T5}, 720")
    for u in range(4):
        a(f"v_add_u32 v{t0}, {256*u}, v0")
        a(f"v_mul_u32_u24 v{t1}, s{T6}, v{t0}")
        a(f"v_lshrrev_b32 v{t1}, 16, v{t1}")
        a(f"v_mul_u32_u24 v{t2}, 10, v{t1}")
        a(f"v_sub_u32 v{t2}, v{t0}, v{t2}")
        a(f"v_add_u32 v{t1}, s{T4}, v{t1}")
        a(f"v_mul_lo_u32 v{t1}, v{t1}, s{T7}")
        a(f"v_lshl_add_u32 v{t1}, v{t2}, 4, v{t1}")
        a(f"v_add_u32 v{t1}, s{T2}, v{t1}")
        a(f"v_lshlrev_b32 v{t3}, 4, v{t0}")
        a(f"v_add_u32 v{t3}, s{T3}, v{t3}")
        a(f"v_mov_b32 v{t4}, 0x7ffffff0")
        a(f"v_cmp_gt_u32 vcc, s{T5}, v{t0}")
        a(f"v_cndmask_b32 v{VS+u}, v{t4}, v{t1}, vcc")
        a(f"v_cndmask_b32 v{VD+u}, v{t4}, v{t3}, vcc")
    a(f"s_branch {lbl}_go")
    a.label(f"{lbl}_wo")
    srd(a, SRD_A, P_WO, SIZES['WO'])
    a(f"s_sub_u32 s{T1}, s{T1}, 24")
    a(f"s_mul_i32 s{T4}, s{T1}, 80")
    a(f"s_add_u32 s{T5}, s{T4}, 1728")
    a(f"s_mul_i32 s{T5}, s{T5}, 160")
    a(f"s_add_u32 s{T3}, s{T3}, s{T5}")
    a(f"s_movk_i32 s{T5}, 800")
    for u in range(4):
        a(f"v_add_u32 v{t0}, {256*u}, v0")
        a(f"v_mul_u32_u24 v{t1}, s{T6}, v{t0}")
        a(f"v_lshrrev_b32 v{t1}, 16, v{t1}")
        a(f"v_mul_u32_u24 v{t2}, 10, v{t1}")
        a(f"v_sub_u32 v{t2}, v{t0}, v{t2}")
        a(f"v_add_u32 v{t1}, s{T4}, v{t1}")
        a(f"v_lshrrev_b32 v{t3}, 4, v{t1}")
        a(f"v_and_b32 v{t1}, 15, v{t1}")
        a(f"v_mul_u32_u24 v{t4}, 20, v{t3}")
        a(f"v_add_u32 v{t4}, v{t4}, v{t1}")
        a(f"v_subrev_u32 v{t5}, 32, v{t3}")
        a(f"v_lshlrev_b32 v{t5}, 2, v{t5}")
        a(f"v_bfe_u32 v{VS+u}, v{t1}, 2, 1")
        a(f"v_lshl_add_u32 v{t5}, v{VS+u}, 1, v{t5}")
        a(f"v_lshrrev_b32 v{VS+u}, 3, v{t1}")
        a(f"v_add_u32 v{t5}, v{t5}, v{VS+u}")
        a(f"v_mul_u32_u24 v{t5}, 20, v{t5}")
        a(f"v_and_b32 v{t1}, 3, v{t1}")
        a(f"v_add3_u32 v{t5}, v{t5}, v{t1}, 16")
        a(f"v_cmp_gt_u32 vcc, 32, v{t3}")
        a(f"v_cndmask_b32 v{t1}, v{t5}, v{t4}, vcc")
        a(f"v_mul_lo_u32 v{t1}, v{t1}, s{T7}")
        a(f"v_lshl_add_u32 v{t1}, v{t2}, 4, v{t1}")
        a(f"v_add_u32 v{t1}, s{T2}, v{t1}")
        a(f"v_lshlrev_b32 v{t3}, 4, v{t0}")
        a(f"v_add_u32 v{t3}, s{T3}, v{t3}")
        a(f"v_mov_b32 v{t4}, 0x7ffffff0")
        a(f"v_cmp_gt_u32 vcc, s{T5}, v{t0}")
        a(f"v_cndmask_b32 v{VS+u}, v{t4}, v{t1}, vcc")
        a(f"v_cndmask_b32 v{VD+u}, v{t4}, v{t3}, vcc")
    a.label(f"{lbl}_go")
    for u in range(4):
        a(f"buffer_load_dwordx4 {vr(D+4*u,4)}, v{VS+u}, s[{SRD_A}:{SRD_A+3}], 0 offen", tag=('rp', u))
    for u in range(4):
        a.wait_vm(('rp', u))
        a(f"buffer_store_dwordx4 {vr(D+4*u,4)}, v{VD+u}, s[{SRD_WS}:{SRD_WS+3}], 0 offen sc1")
    if OPT['mega']:
        a(f"s_and_b32 s{T0}, s{S_IDX}, 7")
        a(f"s_lshl_b32 s{T0}, s{T0}, 7")
        a(f"s_lshr_b32 s{T1}, s{S_IDX}, 3")
        a(f"s_lshl_b32 s{T1}, s{T1}, 2")
        a(f"s_add_u32 s{T0}, s{T0}, s{T1}")
        a(f"s_add_u32 s{T0}, s{T0}, {WS_FLAG + FW}")
        publish(a, T0, 10)
    a.reset_counters()

def stage_ffn1(a, lbl):
    a(f"s_lshr_b32 s{T0}, s{S_X}, 1")
    a(f"s_lshl_b32 s{T0}, s{T0}, 2")
    a(f"s_and_b32 s{T1}, s{S_I}, 3")
    a(f"s_add_u32 s{S_RB}, s{T0}, s{T1}")
    a(f"s_and_b32 s{T0}, s{S_X}, 1")
    a(f"s_mul_i32 s{T0}, s{T0}, 7")
    a(f"s_lshr_b32 s{T1}, s{S_I}, 2")
    a(f"s_add_u32 s{S_CJ}, s{T0}, s{T1}")
    a(f"s_cmp_ge_u32 s{T1}, 7")
    a(f"s_cbranch_scc1 {lbl}_skip")
    srd(a, SRD_A, P_B1, SIZES['B1'])
    srd(a, SRD_B, P_W1, SIZES['W1'])
    VWD, VWF, VY, VT = 2, 6, 10, 12
    AS = [20, 36, 52]
    ACC = 68
    YR = 132; NY = 16; YD = 12
    t0, t1, t2, t3 = VT, VT+1, VT+2, VT+3
    a(f"s_lshl_b32 s{T0}, s{S_W}, 4")
    a(f"v_lshrrev_b32 v{t0}, 4, v1")
    a(f"v_add_u32 v{t1}, s{T0}, v{t0}")
    a(f"s_movk_i32 s{T2}, 3456")
    a(f"v_mul_lo_u32 v{t1}, v{t1}, s{T2}")
    a(f"v_bfe_u32 v{t2}, v1, 2, 2")
    a(f"v_xor_b32 v{t2}, v{t2}, v{t0}")
    a(f"v_and_b32 v{t3}, 3, v1")
    a(f"v_lshl_add_u32 v{t2}, v{t2}, 2, v{t3}")
    a(f"v_lshl_add_u32 v{t1}, v{t2}, 4, v{t1}")
    a(f"s_lshl_b32 s{T0}, s{S_CJ}, 8")
    a(f"v_add_u32 v{VWD}, s{T0}, v{t1}")
    for i in range(1, 4):
        a(f"v_add_u32 v{VWD+i}, {i*(4*3456-1024)}, v{VWD}")
    a(f"s_lshl_b32 s{T6}, s{S_W}, 12")
    def dma_w(b):
        a(f"s_add_u32 m0, s{T6}, {(b % 4)*16384}")
        a(f"s_mov_b32 s{S_KW}, {b*64*3456}")
        for i in range(4):
            a(f"buffer_load_dwordx4 v{VWD+i}, s[{SRD_B}:{SRD_B+3}], s{S_KW} offen offset:{i*1024} lds", tag=('W', b))
    dma_w(0)
    a(f"v_lshrrev_b32 v{t0}, 5, v1")
    a(f"v_lshlrev_b32 v{t1}, 3, v{t0}")
    a(f"s_lshl_b32 s{T0}, s{S_CJ}, 8")
    a(f"v_add_u32 v{t1}, s{T0}, v{t1}")
    for T in range(4):
        for j in range(4):
            a(f"buffer_load_dwordx2 {vr(AS[0]+2*(4*T+j),2)}, v{t1}, s[{SRD_A}:{SRD_A+3}], 0 offen offset:{64*T+16*j}", tag='bias')
    dma_w(1); dma_w(2)
    if OPT['mega']:
        a(f"s_lshl_b32 s{T0}, s{S_RB}, 7")
        a(f"s_add_u32 s{T0}, s{T0}, {WS_FLAG + FY}")
        a(f"v_lshlrev_b32 v{t2}, 2, v1")
        a(f"v_add_u32 v{t2}, s{T0}, v{t2}")
        a(f"s_mov_b64 s[{T4}:{T4+1}], 0xffff")
        vm = list(a.vm)
        wait_flags(a, t2, t3, T4)
        a.vm = vm
    a(f"s_lshl_b32 s{T0}, s{S_RB}, 2")
    a(f"s_add_u32 s{T0}, s{T0}, s{S_W}")
    a(f"s_mul_i32 s{T1}, s{T0}, {40*1024}")
    a(f"s_add_u32 s{S_KX}, s{T1}, {WS_Y}")
    a(f"v_lshlrev_b32 v{VY}, 4, v1")
    def ld_y(s):
        if s % 4 == 0 and s > 0:
            a(f"s_add_u32 s{S_KX}, s{S_KX}, 4096")
        a(f"buffer_load_dwordx4 {vr(YR+4*(s % NY),4)}, v{VY}, s[{SRD_WS}:{SRD_WS+3}], s{S_KX} offen offset:{(s % 4)*1024} sc1", tag=('Y', s))
    for s in range(YD): ld_y(s)
    a(f"v_bfe_u32 v{t2}, v1, 2, 2")
    a(f"v_lshl_add_u32 v{t1}, v{t0}, 3, v{t2}")
    a(f"v_lshlrev_b32 v{t1}, 8, v{t1}")
    a(f"v_bfe_u32 v{t3}, v1, 4, 1")
    a(f"v_lshl_add_u32 v{t1}, v{t3}, 5, v{t1}")
    a(f"v_and_b32 v{t3}, 3, v1")
    a(f"v_lshl_add_u32 v{t1}, v{t3}, 3, v{t1}")
    for ft in range(4):
        a(f"v_xor_b32 v{t3}, {ft}, v{t2}")
        a(f"v_lshl_add_u32 v{VWF+ft}, v{t3}, 6, v{t1}")
    a.wait_vm('bias')
    for T in range(4):
        for j in range(4):
            s_ = AS[0] + 2*(4*T+j); d = ACC + 16*T + 4*j
            a(f"v_lshlrev_b32 v{d}, 16, v{s_}")
            a(f"v_and_b32 v{d+1}, 0xffff0000, v{s_}")
            a(f"v_lshlrev_b32 v{d+2}, 16, v{s_+1}")
            a(f"v_and_b32 v{d+3}, 0xffff0000, v{s_+1}")
    def rd_a(s, ft, rd):
        b = s >> 2; u = s & 3
        a(f"ds_read_b64_tr_b16 {vr(AS[s % 3]+4*ft+2*rd,2)}, v{VWF+ft} offset:{(b % 4)*16384 + u*4096 + rd*1024}", tag=('A', s, ft))
    a.wait_vm(('W', 0))
    a("s_barrier")
    for s in range(2):
        for ft in range(4):
            rd_a(s, ft, 0); rd_a(s, ft, 1)
    NS = 40
    mark(a)
    for s in range(NS):
        b = s >> 2; u = s & 3
        if u == 2 and b + 1 < 10:
            a.wait_vm(('W', b + 1))
            a("s_barrier")
            if b + 3 < 10: dma_w(b + 3)
        a.wait_vm(('Y', s))
        for ft in range(4):
            a.wait_lg(('A', s, ft))
            d = vr(ACC+16*ft, 16)
            a(f"v_mfma_f32_32x32x16_bf16 {d}, {vr(AS[s % 3]+4*ft,4)}, {vr(YR+4*(s % NY),4)}, {d}")
            if s + 2 < NS:
                rd_a(s + 2, ft, 0); rd_a(s + 2, ft, 1)
            if ft == 1 and s + YD < NS:
                ld_y(s + YD)
    mark(a)
    C0, C1 = 2, 3
    a(f"v_mov_b32 v{C0}, 0xc0135761")
    a(f"v_mov_b32 v{C1}, 0xbdd2d3e8")
    a(f"s_lshl_b32 s{T0}, s{S_RB}, 2")
    a(f"s_add_u32 s{T0}, s{T0}, s{S_W}")
    a(f"s_mul_i32 s{T0}, s{T0}, 108")
    a(f"s_lshl_b32 s{T1}, s{S_CJ}, 3")
    a(f"s_add_u32 s{T0}, s{T0}, s{T1}")
    a(f"s_lshl_b32 s{T0}, s{T0}, 10")
    a(f"s_add_u32 s{T0}, s{T0}, {WS_H}")
    a(f"s_add_u32 s{T1}, s{T0}, 4096")
    TU, TE = 20, 28
    k = 0
    for T in range(4):
        if T == 2:
            a(f"s_cmp_eq_u32 s{S_CJ}, 13")
            a(f"s_cbranch_scc1 {lbl}_pub")
        for jj in range(2):
            x = ACC + 16*T + 8*jj
            for e in range(8): a(f"v_mul_f32 v{TU+e}, v{x+e}, v{x+e}")
            for e in range(8): a(f"v_fma_f32 v{TU+e}, v{TU+e}, v{C1}, v{C0}")
            for e in range(8): a(f"v_mul_f32 v{TU+e}, v{TU+e}, v{x+e}")
            for e in range(8): a(f"v_exp_f32 v{TE+e}, v{TU+e}")
            for e in range(8): a(f"v_add_f32 v{TE+e}, 1.0, v{TE+e}")
            for e in range(8): a(f"v_rcp_f32 v{TE+e}, v{TE+e}")
            for e in range(8): a(f"v_mul_f32 v{TE+e}, v{TE+e}, v{x+e}")
            d = 40 + 4*(k % 4); k += 1
            for e in range(4): a(f"v_cvt_pk_bf16_f32 v{d+e}, v{TE+2*e}, v{TE+2*e+1}")
            so = T0 if T < 2 else T1
            a(f"buffer_store_dwordx4 {vr(d,4)}, v{VY}, s[{SRD_WS}:{SRD_WS+3}], s{so} offen offset:{((2*T+jj) % 4)*1024} sc1")
    a.label(f"{lbl}_pub")
    mark(a)
    if OPT['mega']:
        a(f"s_lshl_b32 s{T0}, s{S_RB}, 7")
        a(f"s_lshl_b32 s{T1}, s{S_CJ}, 2")
        a(f"s_add_u32 s{T0}, s{T0}, s{T1}")
        a(f"s_add_u32 s{T0}, s{T0}, {WS_FLAG + FH}")
        publish(a, T0, 12)
    a.label(f"{lbl}_skip")
    a.reset_counters()

PST = 3104
LK, LV, LONES = 0, 10*PST, 20*PST
def stage_attn(a, lbl):
    a(f"s_lshl_b32 s{T0}, s{S_X}, 1")
    a(f"s_and_b32 s{T1}, s{S_I}, 1")
    a(f"s_add_u32 s{S_CJ}, s{T0}, s{T1}")
    a(f"s_lshr_b32 s{S_RB}, s{S_I}, 1")
    HP = S_CJ
    VD, VK, VV, VT = 2, 3, 4, 6
    t0, t1, t2, t3, t4 = VT, VT+1, VT+2, VT+3, VT+4
    MK = 12
    Q0, Q1 = 20, 24
    KF = [28, 36]
    VF = [44, 48, 52, 56]
    PF = [60, 64, 68, 72]
    OA = 76
    LO = 92
    CS, NM = 96, 97
    MX = 98
    S = 104
    QH = 248
    if OPT['mega']:
        a(f"v_lshrrev_b32 v{t0}, 4, v1")
        a(f"s_sub_u32 s{T0}, s{S_RB}, 2")
        a(f"v_add_u32 v{t0}, s{T0}, v{t0}")
        a(f"v_and_b32 v{t1}, 15, v1")
        a(f"v_cmp_le_i32 s[{T4}:{T4+1}], 0, v{t0}")
        a(f"v_cmp_gt_u32 s[{T2}:{T2+1}], 15, v{t1}")
        a(f"s_and_b64 s[{T4}:{T4+1}], s[{T4}:{T4+1}], s[{T2}:{T2+1}]")
        a(f"s_mov_b64 s[{T2}:{T2+1}], 0xffffffffffff") if False else None
        a(f"s_mov_b32 s{T2}, -1")
        a(f"s_mov_b32 s{T2+1}, 0xffff")
        a(f"s_and_b64 s[{T4}:{T4+1}], s[{T4}:{T4+1}], s[{T2}:{T2+1}]")
        a(f"v_lshlrev_b32 v{t0}, 7, v{t0}")
        a(f"v_lshl_add_u32 v{t0}, v{t1}, 2, v{t0}")
        a(f"v_add_u32 v{t0}, {WS_FLAG + FQ}, v{t0}")
        wait_flags(a, t0, t1, T4)
    a(f"s_sub_u32 s{T0}, s{S_RB}, 2")
    a(f"s_lshl_b32 s{T0}, s{T0}, 7")
    a(f"s_mul_i32 s{T1}, s{S_W}, 96")
    a(f"s_add_u32 s{T0}, s{T0}, s{T1}")
    a(f"v_lshlrev_b32 v{t0}, 1, v1")
    a(f"v_add_u32 v{t0}, s{T0}, v{t0}")
    a(f"v_lshlrev_b32 v{t1}, 3, v{t0}")
    a(f"v_mov_b32 v{t2}, 0x7ffffff0")
    a(f"v_cmp_le_i32 s[{T4}:{T4+1}], 0, v{t0}")
    a(f"v_cndmask_b32 v{VD}, v{t2}, v{t1}, s[{T4}:{T4+1}]")
    a(f"s_mul_i32 s{T2}, s{HP}, {10*16384}")
    a(f"s_add_u32 s{T2}, s{T2}, {WS_QKV + 160*16384}")
    a(f"s_mul_i32 s{T3}, s{S_W}, 768")
    a("s_mov_b32 exec_hi, 0xffff")
    for ty in range(2):
        for p in range(10):
            a(f"s_add_u32 m0, s{T3}, {(LK if ty == 0 else LV) + p*PST}")
            a(f"s_add_u32 s{S_KX}, s{T2}, {(ty*160 + p)*16384}")
            a(f"buffer_load_dwordx4 v{VD}, s[{SRD_WS}:{SRD_WS+3}], s{S_KX} offen sc1 lds", tag=('kv', ty))
    a("s_mov_b32 exec_hi, -1")
    a(f"s_lshl_b32 s{T0}, s{S_RB}, 2")
    a(f"s_add_u32 s{T0}, s{T0}, s{S_W}")
    S_QB = 61
    a(f"s_mov_b32 s{S_QB}, s{T0}")
    a(f"v_and_b32 v{t0}, 31, v1")
    a(f"v_lshrrev_b32 v{t1}, 5, v1")
    a(f"s_lshl_b32 s{T1}, s{T0}, 8")
    a(f"v_lshlrev_b32 v{t2}, 3, v{t0}")
    a(f"v_add_u32 v{t2}, s{T1}, v{t2}")
    a(f"v_lshl_add_u32 v{t3}, v{t1}, 15, v{t2}")
    a(f"s_mul_i32 s{T2}, s{HP}, {10*16384}")
    a(f"s_add_u32 s{T2}, s{T2}, {WS_QKV}")
    QR = [Q0, QH]
    for hh in range(2):
        q0 = Q0 if hh == 0 else QH
        q1 = Q1 if hh == 0 else QH + 4
        a(f"s_add_u32 s{T1}, s{T2}, {hh*5*16384}")
        a(f"buffer_load_dwordx2 {vr(q0,2)}, v{t3}, s[{SRD_WS}:{SRD_WS+3}], s{T1} offen sc1", tag='q')
        a(f"s_add_u32 s{T1}, s{T1}, 16384")
        a(f"buffer_load_dwordx2 {vr(q0+2,2)}, v{t3}, s[{SRD_WS}:{SRD_WS+3}], s{T1} offen sc1", tag='q')
        a(f"s_add_u32 s{T1}, s{T1}, {3*16384}")
        a(f"buffer_load_dwordx2 {vr(q1,2)}, v{t2}, s[{SRD_WS}:{SRD_WS+3}], s{T1} offen sc1", tag='q')
    a(f"v_mov_b32 v{KF[0]}, 0x3f803f80")
    for r in range(1, 4): a(f"v_mov_b32 v{KF[0]+r}, 0x3f803f80")
    a(f"v_lshlrev_b32 v{t4}, 4, v0")
    a(f"v_add_u32 v{t4}, {LONES}, v{t4}")
    a(f"v_cmp_gt_u32 vcc, 208, v0")
    a(f"s_and_saveexec_b64 s[{T4}:{T4+1}], vcc")
    a(f"ds_write_b128 v{t4}, {vr(KF[0],4)}")
    a(f"s_mov_b64 exec, s[{T4}:{T4+1}]")
    a(f"v_lshlrev_b32 v{t2}, 2, v{t1}")
    a(f"v_sub_u32 v{t2}, v{t0}, v{t2}")
    for r in range(16):
        a(f"v_cmp_le_i32 s[{S_MASK+2*r}:{S_MASK+2*r+1}], {8*(r >> 2) + (r & 3)}, v{t2}")
    a(f"v_mov_b32 v{t3}, 0xffff")
    a(f"v_mov_b32 v{t4}, 0xffff0000")
    for q in range(8):
        a(f"v_cndmask_b32 v{MK+q}, 0, v{t3}, s[{S_MASK+4*q}:{S_MASK+4*q+1}]")
        a(f"v_cndmask_b32 v{KF[1]}, 0, v{t4}, s[{S_MASK+4*q+2}:{S_MASK+4*q+3}]")
        a(f"v_or_b32 v{MK+q}, v{MK+q}, v{KF[1]}")
    a(f"s_lshl_b32 s{T0}, s{S_W}, 8")
    a(f"v_lshlrev_b32 v{t2}, 3, v{t0}")
    a(f"v_add_u32 v{t2}, s{T0}, v{t2}")
    a(f"s_movk_i32 s{T1}, {2*PST}")
    a(f"v_mul_lo_u32 v{t3}, v{t1}, s{T1}")
    a(f"v_add_u32 v{VK}, v{t2}, v{t3}")
    VKX = 11
    a(f"v_add_u32 v{VKX}, {4*PST}, v{t2}")
    a(f"v_bfe_u32 v{t2}, v1, 4, 1")
    a(f"v_and_b32 v{t3}, 3, v1")
    a(f"v_lshl_add_u32 v{t2}, v{t2}, 2, v{t3}")
    a(f"v_bfe_u32 v{t3}, v1, 2, 2")
    a(f"v_lshl_add_u32 v{t3}, v{t1}, 2, v{t3}")
    a(f"v_lshlrev_b32 v{t3}, 3, v{t3}")
    a(f"v_add_u32 v{t3}, s{T0}, v{t3}")
    a(f"s_movk_i32 s{T1}, {PST}")
    a(f"v_mul_lo_u32 v{t4}, v{t2}, s{T1}")
    a(f"v_cmp_gt_u32 s[{T4}:{T4+1}], 5, v{t2}")
    for hh in range(2):
        vb = LV + hh*5*PST
        a(f"v_lshlrev_b32 v{KF[0]}, 5, v{t2}")
        a(f"v_add_u32 v{KF[0]}, {(vb - LONES) % 256}, v{KF[0]}")
        a(f"v_and_b32 v{KF[0]}, 255, v{KF[0]}")
        a(f"v_add_u32 v{KF[0]}, {LONES}, v{KF[0]}")
        a(f"v_add_u32 v{KF[0]+1}, {vb}, v{t4}")
        a(f"v_cndmask_b32 v{KF[0]}, v{KF[0]}, v{KF[0]+1}, s[{T4}:{T4+1}]")
        a(f"v_add_u32 v{VV+hh}, v{KF[0]}, v{t3}")
    a(f"v_mov_b32 v{CS}, 0x3ea52b5c")
    for st in range(2):
        a(f"v_mov_b32 v{KF[st]+6}, 0"); a(f"v_mov_b32 v{KF[st]+7}, 0")
    a(f"v_mov_b32 v{Q1+2}, 0"); a(f"v_mov_b32 v{Q1+3}, 0")
    a.wait_vm('q')
    a(f"v_cmp_gt_u32 s[{T4}:{T4+1}], 32, v1")
    for q in (Q1, Q1+1, QH+4, QH+5):
        a(f"v_cndmask_b32 v{q}, 0, v{q}, s[{T4}:{T4+1}]")
    a("s_waitcnt vmcnt(0) lgkmcnt(0)")
    a("s_barrier")
    a.reset_counters()
    mark(a)
    NEG = 0xf149f2ca
    for hh in range(2):
        if hh == 1:
            for r in range(4): a(f"v_mov_b32 v{Q0+r}, v{QH+r}")
            a(f"v_mov_b32 v{Q1}, v{QH+4}"); a(f"v_mov_b32 v{Q1+1}, v{QH+5}")
        ko = hh*5*PST
        def rd_k(tl):
            st = KF[tl % 2]
            a(f"ds_read_b64 {vr(st,2)}, v{VK} offset:{ko + tl*256}", tag=('k', tl))
            a(f"ds_read_b64 {vr(st+2,2)}, v{VK} offset:{ko + PST + tl*256}", tag=('k', tl))
            a(f"ds_read_b64 {vr(st+4,2)}, v{VKX} offset:{ko + tl*256}", tag=('k', tl))
        rd_k(0)
        for tl in range(9):
            if tl + 1 < 9: rd_k(tl + 1)
            a.wait_lg(('k', tl))
            st = KF[tl % 2]; d = vr(S+16*tl, 16)
            a(f"v_mfma_f32_32x32x16_bf16 {d}, {vr(st,4)}, {vr(Q0,4)}, 0")
            a(f"v_mfma_f32_32x32x16_bf16 {d}, {vr(st+4,4)}, {vr(Q1,4)}, {d}")
        a(f"s_cmp_ge_u32 s{S_QB}, 8")
        a(f"s_cbranch_scc1 {lbl}_full{hh}")
        for tl in range(8):
            a(f"s_cmp_ge_u32 s{S_QB}, {8-tl}")
            a(f"s_cbranch_scc1 {lbl}_full{hh}")
            a("s_nop 7"); a("s_nop 7")
            for r in range(16): a(f"v_mov_b32 v{S+16*tl+r}, {hex(NEG)}")
        a.label(f"{lbl}_full{hh}")
        a("s_nop 7"); a("s_nop 3")
        for r in range(16):
            a(f"v_cndmask_b32 v{S+r}, v{S+r}, v{S+128+r}, s[{S_MASK+2*r}:{S_MASK+2*r+1}]")
        for c in range(4):
            a(f"v_max3_f32 v{MX+c}, v{S+32*c}, v{S+32*c+1}, v{S+32*c+2}")
        for k in range(3, 31, 2):
            for c in range(4):
                a(f"v_max3_f32 v{MX+c}, v{MX+c}, v{S+32*c+k}, v{S+32*c+k+1}")
        for c in range(4):
            a(f"v_max_f32 v{MX+c}, v{MX+c}, v{S+32*c+31}")
        a(f"v_max3_f32 v{MX}, v{MX}, v{MX+1}, v{MX+2}")
        a(f"v_max_f32 v{MX}, v{MX}, v{MX+3}")
        a(f"v_mov_b32 v{MX+1}, v{MX}")
        a(f"v_permlane32_swap_b32 v{MX}, v{MX+1}")
        a(f"v_max_f32 v{MX}, v{MX}, v{MX+1}")
        a(f"v_mul_f32 v{NM}, v{CS}, v{MX}")
        a(f"v_sub_f32 v{NM}, 0, v{NM}")
        mark(a)
        def rd_v(tl, kk, slot):
            for rd in range(2):
                a(f"ds_read_b64_tr_b16 {vr(VF[slot]+2*rd,2)}, v{VV+hh} offset:{tl*256 + kk*128 + rd*64}", tag=('v', tl, kk))
        seq = [(1 + q // 2, q % 2) for q in range(14)]
        nv = 0
        vq = []
        def next_v(tl, kk):
            nonlocal nv
            slot = nv % 4; nv += 1
            rd_v(tl, kk, slot); return slot
        first = True
        pslot = 0
        def softmax_frag(src):
            nonlocal pslot
            p = PF[pslot % 4]; pslot += 1
            for e in range(8): a(f"v_fma_f32 v{src+e}, v{src+e}, v{CS}, v{NM}")
            for e in range(8): a(f"v_exp_f32 v{src+e}, v{src+e}")
            for e in range(4): a(f"v_cvt_pk_bf16_f32 v{p+e}, v{src+2*e}, v{src+2*e+1}")
            return p
        def pv(p, slot, tag):
            nonlocal first
            a.wait_lg(tag)
            c = "0" if first else vr(OA,16)
            a(f"v_mfma_f32_32x32x16_bf16 {vr(OA,16)}, {vr(VF[slot],4)}, {vr(p,4)}, {c}")
            first = False
        for (tl, kk) in seq:
            slot = next_v(tl, kk)
            p = softmax_frag(S + 16*tl + 8*kk)
            pv(p, slot, ('v', tl, kk))
        for kk in range(2):
            s0 = next_v(0, kk); s8 = next_v(8, kk)
            p = softmax_frag(S + 8*kk)
            p8 = PF[pslot % 4]; pslot += 1
            for e in range(4):
                a(f"v_and_b32 v{p8+e}, v{p+e}, v{MK+4*kk+e}")
            for e in range(4):
                a(f"v_xor_b32 v{p+e}, v{p+e}, v{p8+e}")
            pv(p, s0, ('v', 0, kk))
            pv(p8, s8, ('v', 8, kk))
        a(f"v_rcp_f32 v{NM}, v{OA+12}")
        for r in range(12): a(f"v_mul_f32 v{OA+r}, v{OA+r}, v{NM}")
        for e in range(4): a(f"v_cvt_pk_bf16_f32 v{PF[0]+e}, v{OA+2*e}, v{OA+2*e+1}")
        a(f"v_cvt_pk_bf16_f32 v{LO+2*hh}, v{OA+8}, v{OA+9}")
        a(f"v_cvt_pk_bf16_f32 v{LO+2*hh+1}, v{OA+10}, v{OA+11}")
        a(f"s_mul_i32 s{T0}, s{S_QB}, 40")
        a(f"s_lshl_b32 s{T1}, s{HP}, 1")
        a(f"s_add_u32 s{T1}, s{T1}, {hh}")
        a(f"s_add_u32 s{T0}, s{T0}, s{T1}")
        a(f"s_lshl_b32 s{T0}, s{T0}, 10")
        a(f"s_add_u32 s{T0}, s{T0}, {WS_O}")
        a(f"v_lshlrev_b32 v{t0}, 4, v1")
        a(f"buffer_store_dwordx4 {vr(PF[0],4)}, v{t0}, s[{SRD_WS}:{SRD_WS+3}], s{T0} offen sc1")
    mark(a)
    a(f"s_mul_i32 s{T0}, s{S_QB}, 40")
    a(f"s_lshr_b32 s{T1}, s{HP}, 1")
    a(f"s_add_u32 s{T0}, s{T0}, s{T1}")
    a(f"s_add_u32 s{T0}, s{T0}, 32")
    a(f"s_lshl_b32 s{T0}, s{T0}, 10")
    a(f"s_and_b32 s{T1}, s{HP}, 1")
    a(f"s_lshl_b32 s{T1}, s{T1}, 9")
    a(f"s_add_u32 s{T0}, s{T0}, s{T1}")
    a(f"s_add_u32 s{T0}, s{T0}, {WS_O}")
    a("s_mov_b32 exec_hi, 0")
    a(f"buffer_store_dwordx4 {vr(LO,4)}, v{t0}, s[{SRD_WS}:{SRD_WS+3}], s{T0} offen sc1")
    a("s_mov_b32 exec_hi, -1")
    if OPT['mega']:
        a(f"s_lshl_b32 s{T0}, s{S_RB}, 7")
        a(f"s_lshl_b32 s{T1}, s{HP}, 2")
        a(f"s_add_u32 s{T0}, s{T0}, s{T1}")
        a(f"s_add_u32 s{T0}, s{T0}, {WS_FLAG + FO}")
        publish(a, T0, t1)
    a.reset_counters()

def stage_final(a, lbl):
    a(f"s_lshr_b32 s{T0}, s{S_X}, 1")
    a(f"s_lshl_b32 s{T0}, s{T0}, 3")
    a(f"s_and_b32 s{T1}, s{S_I}, 7")
    a(f"s_add_u32 s{S_RB}, s{T0}, s{T1}")
    a(f"s_and_b32 s{T0}, s{S_X}, 1")
    a(f"s_lshl_b32 s{T0}, s{T0}, 2")
    a(f"s_lshr_b32 s{T1}, s{S_I}, 3")
    a(f"s_add_u32 s{S_CJ}, s{T0}, s{T1}")
    srd(a, SRD_A, P_B2, SIZES['B2'])
    srd(a, SRD_B, P_OUT, SIZES['OUT'])
    VW, VA, VB, VT = 2, 3, 4, 6
    t0, t1, t2, t3 = VT, VT+1, VT+2, VT+3
    VG, VO, VF = 10, 11, 12
    AS = [20, 40, 60]
    ACB, ACA = 80, 100
    TR = 120; NT = 28; TD = 20
    NSTEP = 74; HS = 54
    PAIR = 10240; NSL = 7
    NP = NSTEP // 2
    if OPT['mega']:
        a(f"s_lshl_b32 s{T0}, s{S_CJ}, 7")
        a(f"s_add_u32 s{T0}, s{T0}, {WS_FLAG + FW}")
        a(f"v_lshlrev_b32 v{t2}, 2, v1")
        a(f"v_add_u32 v{t2}, s{T0}, v{t2}")
        a(f"s_mov_b32 s{T4}, -1")
        a(f"s_mov_b32 s{T4+1}, 0")
        wait_flags(a, t2, t3, T4)
    a(f"v_lshlrev_b32 v{VW}, 4, v1")
    a(f"s_mul_i32 s{T0}, s{S_CJ}, {WF_TILE}")
    a(f"s_mul_i32 s{T6}, s{S_W}, 2560")
    a(f"s_add_u32 s{T0}, s{T0}, s{T6}")
    a(f"s_add_u32 s{T7}, s{T0}, {WS_WF}")
    def dma_w(p):
        a(f"s_add_u32 m0, s{T6}, {(p % NSL)*PAIR}")
        a(f"s_add_u32 s{S_KW}, s{T7}, {p*PAIR}")
        a(f"buffer_load_dwordx4 v{VW}, s[{SRD_WS}:{SRD_WS+3}], s{S_KW} offen sc1 lds", tag=('W', p))
        a(f"buffer_load_dwordx4 v{VW}, s[{SRD_WS}:{SRD_WS+3}], s{S_KW} offen offset:1024 sc1 lds", tag=('W', p))
        a("s_mov_b32 exec_hi, 0")
        a(f"buffer_load_dwordx4 v{VW}, s[{SRD_WS}:{SRD_WS+3}], s{S_KW} offen offset:2048 sc1 lds", tag=('W', p))
        a("s_mov_b32 exec_hi, -1")
    for p in range(NSL - 1): dma_w(p)
    if OPT['mega'] and OPT['pf_wf']:
        nl = (WF_TILE - (NSL-1)*PAIR) // 128
        per = (nl + 7) // 8
        a(f"s_and_b32 s{T0}, s{S_I}, 7")
        a(f"s_mul_i32 s{T0}, s{T0}, {per*128}")
        a(f"s_mul_i32 s{T1}, s{S_CJ}, {WF_TILE}")
        a(f"s_add_u32 s{T0}, s{T0}, s{T1}")
        a(f"s_add_u32 s{T0}, s{T0}, {WS_WF + (NSL-1)*PAIR}")
        a(f"v_lshlrev_b32 v{t2}, 7, v0")
        a(f"v_add_u32 v{t2}, s{T0}, v{t2}")
        a(f"v_mov_b32 v{t3}, 0x7ffffff0")
        a(f"s_movk_i32 s{T1}, {per}")
        for k in range((per + 255) // 256):
            a(f"v_add_u32 v{t1}, {256*k}, v0")
            a(f"v_cmp_gt_u32 s[{T4}:{T4+1}], s{T1}, v{t1}")
            a(f"v_cndmask_b32 v{t1}, v{t3}, v{t2}, s[{T4}:{T4+1}]")
            a(f"buffer_load_dword v14, v{t1}, s[{SRD_WS}:{SRD_WS+3}], 0 offen sc1", tag='touch')
            a(f"v_add_u32 v{t2}, {256*128}, v{t2}")
    a(f"v_lshrrev_b32 v{t0}, 4, v1")
    a(f"v_lshlrev_b32 v{t1}, 3, v{t0}")
    a(f"s_mul_i32 s{T0}, s{S_CJ}, 160")
    a(f"v_add_u32 v{t1}, s{T0}, v{t1}")
    for F in range(5):
        a(f"buffer_load_dwordx2 {vr(AS[0]+2*F,2)}, v{t1}, s[{SRD_A}:{SRD_A+3}], 0 offen offset:{32*F}", tag='bias')
    if OPT['mega']:
        a(f"s_lshr_b32 s{T0}, s{S_RB}, 1")
        a(f"s_lshl_b32 s{T0}, s{T0}, 7")
        a(f"s_add_u32 s{T1}, s{T0}, {WS_FLAG + FH}")
        a(f"v_lshlrev_b32 v{t2}, 2, v1")
        a(f"v_add_u32 v{t2}, s{T1}, v{t2}")
        a(f"s_mov_b64 s[{T4}:{T4+1}], 0x3fff")
        a(f"s_add_u32 s{T1}, s{T0}, {WS_FLAG + FO}")
        a(f"v_and_b32 v{VF}, 15, v1")
        a(f"v_lshlrev_b32 v{VF}, 2, v{VF}")
        a(f"v_add_u32 v{VF}, s{T1}, v{VF}")
        vm = list(a.vm)
        wait_flags(a, t2, t3, T4)
        a.vm = vm
    a(f"v_lshrrev_b32 v{t1}, 5, v1")
    a(f"v_bfe_u32 v{t2}, v1, 4, 1")
    a(f"v_lshlrev_b32 v{t1}, 10, v{t1}")
    a(f"v_lshl_add_u32 v{t1}, v{t2}, 9, v{t1}")
    a(f"v_and_b32 v{t2}, 15, v1")
    a(f"s_and_b32 s{T0}, s{S_W}, 1")
    a(f"s_lshl_b32 s{T0}, s{T0}, 4")
    a(f"v_add_u32 v{t3}, s{T0}, v{t2}")
    a(f"v_lshl_add_u32 v{VB}, v{t3}, 4, v{t1}")
    a(f"s_lshl_b32 s{T0}, s{S_RB}, 1")
    a(f"s_lshr_b32 s{T1}, s{S_W}, 1")
    a(f"s_add_u32 s{T0}, s{T0}, s{T1}")
    S_HB, S_OB = 62, 63
    a(f"s_mul_i32 s{T1}, s{T0}, {108*1024}")
    a(f"s_add_u32 s{S_HB}, s{T1}, {WS_H}")
    a(f"s_mul_i32 s{T1}, s{T0}, {40*1024}")
    a(f"s_add_u32 s{S_OB}, s{T1}, {WS_O}")
    def ld_t(s):
        if s < HS: sb, k = S_HB, s
        else: sb, k = S_OB, s - HS
        if k % 2 == 0 and k > 0:
            a(f"s_add_u32 s{sb}, s{sb}, 4096")
        a(f"buffer_load_dwordx4 {vr(TR+4*(s % NT),4)}, v{VB}, s[{SRD_WS}:{SRD_WS+3}], s{sb} offen offset:{(k % 2)*2048} sc1", tag=('T', s))
    for s in range(TD): ld_t(s)
    a(f"s_lshl_b32 s{T0}, s{S_RB}, 6")
    a(f"s_lshl_b32 s{T1}, s{S_W}, 4")
    a(f"s_add_u32 s{T0}, s{T0}, s{T1}")
    a(f"v_add_u32 v{t2}, s{T0}, v{t2}")
    a(f"v_lshlrev_b32 v{t3}, 2, v{t2}")
    a(f"v_add_u32 v{t3}, {WS_G}, v{t3}")
    a(f"buffer_load_dword v{VG}, v{t3}, s[{SRD_WS}:{SRD_WS+3}], 0 offen sc1", tag='g')
    a(f"s_movk_i32 s{T1}, 1280")
    a(f"v_mul_lo_u32 v{t2}, v{t2}, s{T1}")
    a(f"s_mul_i32 s{T0}, s{S_CJ}, 160")
    a(f"v_lshl_add_u32 v{t2}, v{t0}, 3, v{t2}")
    a(f"v_add_u32 v{VO}, s{T0}, v{t2}")
    a(f"v_lshrrev_b32 v{t1}, 5, v1")
    a(f"v_bfe_u32 v{t2}, v1, 4, 1")
    a(f"v_lshlrev_b32 v{t1}, 4, v{t1}")
    a(f"v_lshl_add_u32 v{t1}, v{t2}, 2, v{t1}")
    a(f"v_bfe_u32 v{t2}, v1, 2, 2")
    a(f"v_add_u32 v{t1}, v{t1}, v{t2}")
    a(f"v_mul_u32_u24 v{t1}, 160, v{t1}")
    a(f"v_and_b32 v{t2}, 3, v1")
    a(f"v_lshl_add_u32 v{VA}, v{t2}, 3, v{t1}")
    VA2 = 5
    a(f"v_add_u32 v{VA2}, {4*PAIR}, v{VA}")
    a.wait_vm('bias')
    for F in range(5):
        s_ = AS[0] + 2*F; d = ACB + 4*F
        a(f"v_lshlrev_b32 v{d}, 16, v{s_}")
        a(f"v_and_b32 v{d+1}, 0xffff0000, v{s_}")
        a(f"v_lshlrev_b32 v{d+2}, 16, v{s_+1}")
        a(f"v_and_b32 v{d+3}, 0xffff0000, v{s_+1}")
    def rd_a(s, F, rd):
        p = s >> 1; u = s & 1
        sl = p % NSL
        base, off = (VA, sl*PAIR) if sl < 4 else (VA2, (sl-4)*PAIR)
        a(f"ds_read_b64_tr_b16 {vr(AS[s % 3]+4*F+2*rd,2)}, v{base} offset:{off + u*5120 + rd*1280 + F*32}", tag=('A', s, F))
    a.wait_vm(('W', 0))
    a("s_barrier")
    for s in range(2):
        for F in range(5):
            rd_a(s, F, 0); rd_a(s, F, 1)
    mark(a)
    POLL = HS - TD - 6
    for s in range(NSTEP):
        p = s >> 1; u = s & 1
        if s == HS: mark(a)
        if u == 0 and p + 1 < NP:
            a.wait_vm(('W', p + 1))
            a("s_barrier")
            if p + NSL - 1 < NP: dma_w(p + NSL - 1)
        if OPT['mega'] and s == POLL:
            a(f"buffer_load_dword v{VF+1}, v{VF}, s[{SRD_WS}:{SRD_WS+3}], 0 offen sc1", tag='fo')
        if OPT['mega'] and s + TD == HS:
            L = uid("fo")
            a.wait_vm('fo')
            vm_keep = list(a.vm)
            a.label(L)
            a(f"v_cmp_ne_u32 vcc, s{S_NONCE}, v{VF+1}")
            a("s_nop 4")
            a(f"s_cbranch_vccz {L}_ok")
            a("s_sleep 1")
            a(f"buffer_load_dword v{VF+1}, v{VF}, s[{SRD_WS}:{SRD_WS+3}], 0 offen sc1")
            a("s_waitcnt vmcnt(0)")
            a(f"s_branch {L}")
            a.label(f"{L}_ok")
            a.vm = vm_keep
        a.wait_vm(('T', s))
        for F in range(5):
            a.wait_lg(('A', s, F))
            acc = (ACB if s < HS else ACA) + 4*F
            d = vr(acc, 4)
            c = "0" if s == HS else d
            a(f"v_mfma_f32_16x16x32_bf16 {d}, {vr(AS[s % 3]+4*F,4)}, {vr(TR+4*(s % NT),4)}, {c}")
            if s + 2 < NSTEP:
                rd_a(s + 2, F, 0); rd_a(s + 2, F, 1)
            if F == 2 and s + TD < NSTEP:
                ld_t(s + TD)
    mark(a)
    a.wait_vm('g')
    a(f"v_sub_f32 v{t0}, 1.0, v{VG}")
    for r in range(20):
        a(f"v_mul_f32 v{ACB+r}, v{ACB+r}, v{t0}")
    for r in range(20):
        a(f"v_fmac_f32 v{ACB+r}, v{ACA+r}, v{VG}")
    for F in range(5):
        d = AS[0] + 2*F
        a(f"v_cvt_pk_bf16_f32 v{d}, v{ACB+4*F}, v{ACB+4*F+1}")
        a(f"v_cvt_pk_bf16_f32 v{d+1}, v{ACB+4*F+2}, v{ACB+4*F+3}")
        a(f"buffer_store_dwordx2 {vr(d,2)}, v{VO}, s[{SRD_B}:{SRD_B+3}], 0 offen offset:{32*F}")
    a.reset_counters()

def start_prefetch(a, role):
    if OPT['pf_code']:
        prefetch_code(a, "L_endA" if role == 'A' else "L_endB", 1 if role == 'A' else 2)
    if role == 'B' and OPT['pf_w1']:
        L = uid("pw")
        a(f"s_lshr_b32 s{T1}, s{S_I}, 2")
        a(f"s_cmp_ge_u32 s{T1}, 7")
        a(f"s_cbranch_scc1 {L}")
        a(f"s_and_b32 s{T0}, s{S_X}, 1")
        a(f"s_mul_i32 s{T0}, s{T0}, 7")
        a(f"s_add_u32 s{T0}, s{T0}, s{T1}")
        a(f"s_lshl_b32 s{T0}, s{T0}, 8")
        a(f"s_and_b32 s{T1}, s{S_I}, 3")
        a(f"s_mul_i32 s{T1}, s{T1}, {160*3456}")
        a(f"s_add_u32 s{T0}, s{T0}, s{T1}")
        srd(a, SRD_C, P_W1, SIZES['W1'])
        a("v_lshrrev_b32 v250, 1, v0")
        a(f"s_movk_i32 s{T1}, 3456")
        a(f"v_mul_lo_u32 v250, v250, s{T1}")
        a("v_and_b32 v251, 1, v0")
        a("v_lshl_add_u32 v250, v251, 7, v250")
        a(f"v_add_u32 v250, s{T0}, v250")
        vm = list(a.vm)
        a(f"buffer_load_dword v253, v250, s[{SRD_C}:{SRD_C+3}], 0 offen")
        a(f"v_add_u32 v250, {128*3456}, v250")
        a("v_mov_b32 v251, 0x7ffffff0")
        a(f"v_cmp_gt_u32 s[{T4}:{T4+1}], 64, v0")
        a(f"v_cndmask_b32 v250, v251, v250, s[{T4}:{T4+1}]")
        a(f"buffer_load_dword v253, v250, s[{SRD_C}:{SRD_C+3}], 0 offen")
        a.vm = vm
        a.label(L)

def build_multi():
    LDS = 73728
    ks = []
    def mk(name, fa, fb):
        a = Asm()
        a("s_cmp_ge_u32 s2, 512")
        a(f"s_cbranch_scc1 {name}_end")
        prologue(a)
        kidx = len(ks)
        stamp(a, kidx, 0)
        CTX['k'] = kidx; CTX['slot'] = 0
        a("s_cmp_ge_u32 s2, 256")
        a(f"s_cbranch_scc1 {name}_b")
        for n, f in enumerate(fa):
            f(a, name + "_" + f.__name__)
            if STAMPS: a("s_waitcnt vmcnt(0)"); mark(a)
        a(f"s_branch {name}_end")
        a.label(f"{name}_b")
        a.reset_counters()
        CTX['slot'] = 0
        for n, f in enumerate(fb):
            f(a, name + "_" + f.__name__)
            if STAMPS: a("s_waitcnt vmcnt(0)"); mark(a)
        a.label(f"{name}_end")
        ks.append((name, a.text()))
    if OPT.get('split'):
        mk("k1_kernel", [stage_qkv], [])
        mk("k2_kernel", [], [stage_ln, stage_repack])
        mk("k3_kernel", [stage_attn], [])
        mk("k4_kernel", [], [stage_ffn1])
        mk("k5_kernel", [], [stage_final])
        return ks, LDS
    mk("k1_kernel", [stage_qkv], [stage_ln, stage_repack])
    mk("k2_kernel", [stage_attn], [stage_ffn1])
    mk("k3_kernel", [], [stage_final])
    return ks, LDS

def build_mega():
    OPT['mega'] = True
    LDS = 73728
    name = NAME + "_kernel"
    a = Asm()
    a("s_cmp_ge_u32 s2, 512")
    a("s_cbranch_scc1 L_end")
    prologue(a)
    nonce_post(a)
    stamp(a, 0, 0); CTX['k'] = 0; CTX['slot'] = 0
    dbgtime(a, 1, OPT.get('wa', 0)); dbgtime(a, 7, OPT.get('wb', 256))
    a("s_cmp_ge_u32 s2, 256")
    a("s_cbranch_scc1 L_roleB")
    stage_qkv(a, "qkv"); mark(a); dbgtime(a, 2, OPT.get('wa', 0))
    stage_attn(a, "attn"); mark(a); dbgtime(a, 3, OPT.get('wa', 0))
    a("s_endpgm")
    a.label("L_endA")
    a.label("L_roleB")
    a.reset_counters(); CTX['slot'] = 0
    stage_ln(a, "ln"); mark(a); dbgtime(a, 8, OPT.get('wb', 256))
    stage_repack(a, "rp"); mark(a); dbgtime(a, 9, OPT.get('wb', 256))
    stage_ffn1(a, "ffn1"); mark(a); dbgtime(a, 10, OPT.get('wb', 256))
    stage_final(a, "fin")
    if STAMPS or OPT.get('dbgtime'): a("s_waitcnt vmcnt(0)")
    mark(a); dbgtime(a, 11, OPT.get('wb', 256))
    a.label("L_endB")
    a.label("L_end")
    return [(name, a.text())], LDS

def header_comment():
    ref = open("cdna_kernels/" + NAME + ".s.ref").read().split("\n")
    return [l for l in ref if l.startswith(";") and "@launch" not in l and "Override" not in l and "grid=ceil" not in l]

def emit(ks, LDS, grid=512):
    s = "\n".join(header_comment()) + "\n"
    if len(ks) == 1:
        s += f"; @launch grid=({grid},1,1) block=(256,1,1) lds={LDS}\n"
    else:
        for name, _ in ks:
            s += f"; @launch kernel={name} grid=({grid},1,1) block=(256,1,1) lds={LDS}\n"
    s += '.amdgcn_target "amdgcn-amd-amdhsa--gfx950"\n.text\n'
    for name, body in ks:
        s += kernel_text(name, body, grid, LDS)
    s += '.section .rodata,"a"\n'
    for name, _ in ks:
        s += ".p2align 6\n" + descriptor(name)
    return s

if __name__ == "__main__":
    mode = sys.argv[1] if len(sys.argv) > 1 else "multi"
    if "stamps" in sys.argv: STAMPS = True
    for arg in sys.argv[2:]:
        if "=" in arg:
            k, v = arg.split("="); OPT[k] = int(v)
    ks, LDS = build_multi() if mode == "multi" else build_mega()
    sys.stdout.write(emit(ks, LDS))
```

```python
import sys
from asmlib import Asm

NAME = "gated_mix__sliding_block__mixer_channel_mlp__prompt"

WS_Y    = 0x0000000
WS_G    = 0x0280000
WS_QKV  = 0x0300000
WS_H    = 0x0B00000
WS_O    = 0x1200000
WS_WF   = 0x1500000
WS_FLAG = 0x1800000
WS_STAMP = 0x1900000
WS_SIZE = 0x1A00000
WF_TILE = 2368 * 160
FY, FW, FQ, FH, FO = 0, 2048, 3072, 5120, 7168
OPT = dict(mega=False, rot=True, pf_code=True, pf_w1=True, pf_wf=True, tlb=True)

P_AX, P_WQKV, P_WO, P_BX, P_W1, P_B1, P_W2, P_B2 = 4, 6, 8, 10, 12, 14, 16, 18
P_GW, P_OUT, P_DBG, P_WS = 20, 22, 24, 26
SRD_A, SRD_B, SRD_WS, SRD_C = 28, 32, 36, 40
S_W, S_IDX, S_X, S_I = 44, 45, 46, 47
T0, T1, T2, T3, T4, T5, T6, T7 = 48, 49, 50, 51, 52, 53, 54, 55
S_RB, S_CJ = 56, 57
S_KX, S_KW, S_M0 = 58, 59, 60
S_MASK = 64
S_NONCE = 96
S_KO = 62

SIZES = dict(AX=2048*640*2, WQKV=640*1920*2, WO=640*640*2, BX=2048*640*2, W1=640*1728*2, B1=1728*2,
             W2=1728*640*2, B2=640*2, GW=640*2, OUT=2048*640*2)

def srd(a, dst, ptr, size):
    a(f"s_mov_b32 s{dst}, s{ptr}")
    a(f"s_and_b32 s{dst+1}, s{ptr+1}, 0xffff")
    a(f"s_mov_b32 s{dst+2}, {size}")
    a(f"s_mov_b32 s{dst+3}, 0x20000")

def vr(b, n=1):
    return f"v{b}" if n == 1 else f"v[{b}:{b+n-1}]"

def prologue(a):
    a("s_load_dwordx16 s[4:19], s[0:1], 0")
    a("s_load_dwordx8 s[20:27], s[0:1], 64")
    a("v_lshrrev_b32 v2, 6, v0")
    a("v_and_b32 v1, 63, v0")
    a(f"v_readfirstlane_b32 s{S_W}, v2")
    a(f"s_and_b32 s{S_IDX}, s2, 255")
    if OPT.get('xperm'):
        a(f"s_add_u32 s{S_X}, s2, {OPT['xperm']}")
        a(f"s_and_b32 s{S_X}, s{S_X}, 7")
    else:
        a(f"s_and_b32 s{S_X}, s2, 7")
    a(f"s_lshr_b32 s{S_I}, s{S_IDX}, 3")
    a("s_waitcnt lgkmcnt(0)")
    srd(a, SRD_WS, P_WS, WS_SIZE)


_uid = [0]
def uid(p):
    _uid[0] += 1
    return f"{p}_{_uid[0]}"

def nonce_post(a):
    L = uid("np")
    a(f"s_or_b32 s{T0}, s2, s{S_W}")
    a(f"s_cmp_lg_u32 s{T0}, 0")
    a(f"s_cbranch_scc1 {L}")
    a(f"s_memrealtime s[{T4}:{T4+1}]")
    a("s_waitcnt lgkmcnt(0)")
    a(f"s_or_b32 s{T4}, s{T4}, 1")
    a(f"v_mov_b32 v2, s{T4}")
    a("v_mov_b32 v3, 0")
    a("s_mov_b64 exec, 1")
    a(f"global_store_dword v3, v2, s[{P_DBG}:{P_DBG+1}] sc1")
    a("s_mov_b64 exec, -1")
    a.vm.pop()
    a.label(L)

def nonce_load(a, v):
    a(f"v_mov_b32 v{v+1}, 0")
    a(f"global_load_dword v{v}, v{v+1}, s[{P_DBG}:{P_DBG+1}] sc1", tag='nonce')

def nonce_get(a, v):
    L = uid("ng")
    a.wait_vm('nonce')
    a.label(L)
    a(f"v_readfirstlane_b32 s{S_NONCE}, v{v}")
    a(f"s_cmp_lg_u32 s{S_NONCE}, 0")
    a(f"s_cbranch_scc1 {L}_ok")
    a("s_sleep 2")
    a(f"global_load_dword v{v}, v{v+1}, s[{P_DBG}:{P_DBG+1}] sc1")
    a("s_waitcnt vmcnt(0)")
    a(f"s_branch {L}")
    a.label(f"{L}_ok")

def publish(a, sflag, v):
    L = uid("pub")
    a("s_waitcnt vmcnt(0)")
    a("s_barrier")
    a(f"s_cmp_lg_u32 s{S_W}, 0")
    a(f"s_cbranch_scc1 {L}")
    a(f"v_mov_b32 v{v}, s{S_NONCE}")
    a("s_mov_b64 exec, 1")
    a(f"buffer_store_dword v{v}, off, s[{SRD_WS}:{SRD_WS+3}], s{sflag} sc1")
    a("s_mov_b64 exec, -1")
    a.label(L)
    a.reset_counters()

def wait_flags(a, voff, vtmp, smask):
    L = uid("wf")
    a(f"s_cmp_lg_u32 s{S_W}, 0")
    a(f"s_cbranch_scc1 {L}_done")
    a(f"s_mov_b64 exec, s[{smask}:{smask+1}]")
    a.label(L)
    a(f"buffer_load_dword v{vtmp}, v{voff}, s[{SRD_WS}:{SRD_WS+3}], 0 offen sc1")
    a("s_waitcnt vmcnt(0)")
    a(f"v_cmp_ne_u32 vcc, s{S_NONCE}, v{vtmp}")
    a("s_nop 4")
    a(f"s_cbranch_vccz {L}_ok")
    a("s_sleep 1")
    a(f"s_branch {L}")
    a.label(f"{L}_ok")
    a("s_mov_b64 exec, -1")
    a.label(f"{L}_done")
    a("s_barrier")
    a.reset_counters()

def touch_lines(a, srd_, vbase, n, stride, dst, soff='0', sc=''):
    for k in range(n):
        a(f"buffer_load_dword v{dst}, v{vbase}, s[{srd_}:{srd_+3}], {soff} offen {sc}".rstrip(), tag='touch')
        if k + 1 < n: a(f"v_add_u32 v{vbase}, {stride}, v{vbase}")

def prefetch_code(a, lbl_end, per):
    L = uid("pc")
    a(f"s_getpc_b64 s[{T4}:{T4+1}]")
    a.label(L)
    a(f"s_mul_i32 s{T0}, s{S_W}, {per*8192}")
    a("v_lshlrev_b32 v252, 7, v1")
    a(f"v_add_u32 v252, s{T0}, v252")
    for k in range(per):
        a(f"v_min_u32 v251, {lbl_end}-{L}-4, v252")
        a(f"global_load_dword v253, v251, s[{T4}:{T4+1}]", tag='touch')
        if k + 1 < per: a("v_add_u32 v252, 8192, v252")

def stage_qkv(a, lbl):
    XS = [0, 16384, 32768]
    WB = 49152
    a(f"s_lshr_b32 s{T0}, s{S_X}, 1")
    a(f"s_lshl_b32 s{T0}, s{T0}, 2")
    a(f"s_and_b32 s{T1}, s{S_I}, 3")
    a(f"s_add_u32 s{S_RB}, s{T0}, s{T1}")
    a(f"s_and_b32 s{T0}, s{S_X}, 1")
    a(f"s_lshl_b32 s{T0}, s{T0}, 3")
    a(f"s_lshr_b32 s{T1}, s{S_I}, 2")
    a(f"s_add_u32 s{S_CJ}, s{T0}, s{T1}")
    a(f"s_cmp_ge_u32 s{S_CJ}, 15")
    a(f"s_cbranch_scc1 {lbl}_skip")
    srd(a, SRD_A, P_AX, SIZES['AX'])
    srd(a, SRD_B, P_WQKV, SIZES['WQKV'])
    VXD, VWD = 2, 6
    VXF, VWF = 8, 12
    VT = 14
    FB = [20, 36]
    ACC = 64
    t0, t1, t2, t3 = VT, VT+1, VT+2, VT+3
    a(f"s_lshl_b32 s{T0}, s{S_RB}, 7")
    a(f"s_lshl_b32 s{T1}, s{S_W}, 5")
    a(f"s_add_u32 s{T0}, s{T0}, s{T1}")
    a(f"v_lshrrev_b32 v{t0}, 3, v1")
    a(f"v_add_u32 v{t0}, s{T0}, v{t0}")
    a(f"s_movk_i32 s{T2}, 1280")
    a(f"v_mul_lo_u32 v{t0}, v{t0}, s{T2}")
    a(f"v_lshrrev_b32 v{t1}, 4, v1")
    a(f"v_and_b32 v{t2}, 7, v1")
    a(f"v_xor_b32 v{t2}, v{t2}, v{t1}")
    a(f"v_xor_b32 v{t3}, 4, v{t2}")
    for i in range(4):
        src = t2 if i % 2 == 0 else t3
        a(f"v_lshl_add_u32 v{VXD+i}, v{src}, 4, v{t0}")
        if i:
            a(f"v_add_u32 v{VXD+i}, {i*(8*1280-1024)}, v{VXD+i}")
    a(f"s_lshl_b32 s{T0}, s{S_W}, 3")
    a(f"v_lshrrev_b32 v{t0}, 4, v1")
    a(f"v_add_u32 v{t1}, s{T0}, v{t0}")
    a(f"s_movk_i32 s{T2}, 3840")
    a(f"v_mul_lo_u32 v{t1}, v{t1}, s{T2}")
    a(f"v_bfe_u32 v{t2}, v1, 2, 2")
    a(f"v_xor_b32 v{t2}, v{t2}, v{t0}")
    a(f"v_and_b32 v{t3}, 3, v1")
    a(f"v_lshl_add_u32 v{t2}, v{t2}, 2, v{t3}")
    a(f"v_lshl_add_u32 v{t1}, v{t2}, 4, v{t1}")
    a(f"s_lshl_b32 s{T0}, s{S_CJ}, 8")
    a(f"v_add_u32 v{VWD}, s{T0}, v{t1}")
    a(f"v_add_u32 v{VWD+1}, {4*3840-1024}, v{VWD}")
    a(f"s_lshl_b32 s{T6}, s{S_W}, 12")
    a(f"s_lshl_b32 s{T7}, s{S_W}, 11")
    if OPT['rot']:
        a(f"s_and_b32 s{T0}, s{S_I}, 3")
        a(f"s_mul_i32 s{T0}, s{T0}, 10")
        a(f"s_lshr_b32 s{T1}, s{S_I}, 2")
        a(f"s_mul_i32 s{T1}, s{T1}, 5")
        a(f"s_add_u32 s{T0}, s{T0}, s{T1}")
        a(f"s_lshr_b32 s{T0}, s{T0}, 2")
        a(f"s_sub_u32 s{T1}, s{T0}, 10")
        a(f"s_cmp_ge_u32 s{T0}, 10")
        a(f"s_cselect_b32 s{T0}, s{T1}, s{T0}")
        a(f"s_lshl_b32 s{S_KX}, s{T0}, 7")
        a(f"s_mul_i32 s{S_KW}, s{T0}, {64*3840}")
    else:
        a(f"s_mov_b32 s{S_KX}, 0")
        a(f"s_mov_b32 s{S_KW}, 0")
    def adv(sreg, step, wrap):
        if OPT.get('hot'): return
        a(f"s_add_u32 s{sreg}, s{sreg}, {step}")
        a(f"s_cmp_eq_u32 s{sreg}, {wrap}")
        a(f"s_cselect_b32 s{sreg}, 0, s{sreg}")
    def dma_x(b):
        a(f"s_add_u32 m0, s{T6}, {XS[b % 3]}")
        if b > 0: adv(S_KX, 128, 1280)
        for i in range(4):
            a(f"buffer_load_dwordx4 v{VXD+i}, s[{SRD_A}:{SRD_A+3}], s{S_KX} offen offset:{i*1024} lds", tag=('X', b))
    def dma_w(h):
        a(f"s_add_u32 m0, s{T7}, {WB + (h % 3)*8192}")
        if h > 0: adv(S_KW, 32*3840, 640*3840)
        for i in range(2):
            a(f"buffer_load_dwordx4 v{VWD+i}, s[{SRD_B}:{SRD_B+3}], s{S_KW} offen offset:{i*1024} lds", tag=('W', h))
    dma_x(0); dma_w(0); dma_w(1); dma_x(1)
    if OPT['mega']: start_prefetch(a, 'A')
    a(f"s_and_b32 s{T0}, s{S_W}, 1")
    a(f"s_lshl_b32 s{T0}, s{T0}, 13")
    a(f"v_and_b32 v{t0}, 31, v1")
    a(f"v_lshrrev_b32 v{t1}, 5, v1")
    a(f"v_bfe_u32 v{t2}, v1, 1, 3")
    a(f"v_lshlrev_b32 v{t0}, 7, v{t0}")
    a(f"v_add_u32 v{t0}, s{T0}, v{t0}")
    for s in range(4):
        a(f"v_or_b32 v{t3}, {2*s}, v{t1}")
        a(f"v_xor_b32 v{t3}, v{t3}, v{t2}")
        a(f"v_lshl_add_u32 v{VXF+s}, v{t3}, 4, v{t0}")
    a(f"v_bfe_u32 v{t0}, v1, 2, 2")
    a(f"v_lshl_add_u32 v{t1}, v{t1}, 3, v{t0}")
    a(f"v_lshlrev_b32 v{t1}, 8, v{t1}")
    a(f"v_bfe_u32 v{t2}, v1, 4, 1")
    a(f"v_lshl_add_u32 v{t1}, v{t2}, 5, v{t1}")
    a(f"v_and_b32 v{t2}, 3, v1")
    a(f"v_lshl_add_u32 v{t1}, v{t2}, 3, v{t1}")
    a(f"v_add_u32 v{t1}, {WB}, v{t1}")
    a(f"s_and_b32 s{T0}, s{S_W}, 2")
    for ft in range(2):
        a(f"s_or_b32 s{T1}, s{T0}, {ft}")
        a(f"v_xor_b32 v{t2}, s{T1}, v{t0}")
        a(f"v_lshl_add_u32 v{VWF+ft}, v{t2}, 6, v{t1}")
    def rd_b(st, hh, sp, tt):
        xb = hh >> 1; sx = 2*(hh & 1) + sp
        a(f"ds_read_b128 {vr(FB[st]+4*tt,4)}, v{VXF+sx} offset:{XS[xb % 3] + tt*4096}", tag=('f', hh, sp))
    def rd_a(st, hh, sp, ft, rd):
        a(f"ds_read_b64_tr_b16 {vr(FB[st]+8+4*ft+2*rd,2)}, v{VWF+ft} offset:{(hh % 3)*8192 + sp*4096 + rd*1024}", tag=('f', hh, sp))
    def mf(st, tt, ft, first):
        d = vr(ACC+16*(2*tt+ft), 16)
        c = "0" if first else d
        a(f"v_mfma_f32_32x32x16_bf16 {d}, {vr(FB[st]+8+4*ft,4)}, {vr(FB[st]+4*tt,4)}, {c}")
    NH = 20
    for hh in range(NH):
        if hh == 1: mark(a)
        a.wait_vm([('W', hh), ('X', hh >> 1)])
        a("s_waitcnt lgkmcnt(0)")
        if not OPT.get('nobar'): a("s_barrier")
        prev = hh > 0
        rd_b(0, hh, 0, 0); rd_a(0, hh, 0, 0, 0)
        if prev: mf(1, 0, 0, False)
        rd_a(0, hh, 0, 0, 1); rd_b(0, hh, 0, 1); rd_a(0, hh, 0, 1, 0)
        if prev: mf(1, 1, 0, False)
        rd_a(0, hh, 0, 1, 1)
        if hh + 2 < NH and not OPT.get('nodma'): dma_w(hh + 2)
        if prev: mf(1, 0, 1, False)
        if hh % 2 == 0 and hh // 2 + 2 < 10 and not OPT.get('nodma'): dma_x(hh // 2 + 2)
        if prev: mf(1, 1, 1, False)
        first = hh == 0
        rd_b(1, hh, 1, 0); rd_a(1, hh, 1, 0, 0); rd_a(1, hh, 1, 0, 1)
        a(f"s_waitcnt lgkmcnt(6)")
        mf(0, 0, 0, first)
        rd_b(1, hh, 1, 1); rd_a(1, hh, 1, 1, 0); rd_a(1, hh, 1, 1, 1)
        a(f"s_waitcnt lgkmcnt(6)")
        mf(0, 1, 0, first); mf(0, 0, 1, first); mf(0, 1, 1, first)
    a("s_waitcnt lgkmcnt(0)")
    mf(1, 0, 0, False); mf(1, 1, 0, False); mf(1, 0, 1, False); mf(1, 1, 1, False)
    mark(a)
    a(f"v_lshrrev_b32 v{t0}, 5, v1")
    a(f"s_lshr_b32 s{T0}, s{S_W}, 1")
    a(f"s_lshl_b32 s{T0}, s{T0}, 4")
    a(f"v_add_u32 v{t0}, s{T0}, v{t0}")
    a(f"v_lshlrev_b32 v{t0}, 14, v{t0}")
    a(f"s_and_b32 s{T0}, s{S_W}, 1")
    a(f"s_lshl_b32 s{T0}, s{T0}, 6")
    a(f"v_and_b32 v{t1}, 31, v1")
    a(f"v_add_u32 v{t1}, s{T0}, v{t1}")
    a(f"v_lshl_add_u32 v{t0}, v{t1}, 3, v{t0}")
    a(f"s_lshl_b32 s{T0}, s{S_CJ}, 19")
    a(f"s_lshl_b32 s{T1}, s{S_RB}, 10")
    a(f"s_add_u32 s{T0}, s{T0}, s{T1}")
    a(f"s_add_u32 s{T0}, s{T0}, {WS_QKV}")
    if OPT['mega']: nonce_load(a, 16)
    k = 0
    for ft in range(2):
        for j in range(4):
            a(f"s_add_u32 s{T1}, s{T0}, {(8*ft+2*j)*16384}")
            for tt in range(2):
                base = ACC + 16*(2*tt+ft) + 4*j
                d = FB[0] + 2*(k % 16); k += 1
                a(f"v_cvt_pk_bf16_f32 v{d}, v{base}, v{base+1}")
                a(f"v_cvt_pk_bf16_f32 v{d+1}, v{base+2}, v{base+3}")
                a(f"buffer_store_dwordx2 {vr(d,2)}, v{t0}, s[{SRD_WS}:{SRD_WS+3}], s{T1} offen offset:{tt*256} sc1")
    mark(a)
    if OPT['mega']:
        nonce_get(a, 16)
        a(f"s_lshl_b32 s{T0}, s{S_RB}, 7")
        a(f"s_lshl_b32 s{T1}, s{S_CJ}, 2")
        a(f"s_add_u32 s{T0}, s{T0}, s{T1}")
        a(f"s_add_u32 s{T0}, s{T0}, {WS_FLAG + FQ}")
        publish(a, T0, 16)
        a(f"s_branch {lbl}_end")
    a.label(f"{lbl}_skip")
    if OPT['mega']:
        a.reset_counters()
        a(f"s_lshr_b32 s{S_KO}, s{S_X}, 1")
        a(f"s_lshl_b32 s{S_KO}, s{S_KO}, 2")
        a(f"s_and_b32 s{T0}, s{S_I}, 3")
        a(f"s_add_u32 s{S_KO}, s{S_KO}, s{T0}")
        stage_repack(a, lbl + "_rp", S_KO)
        a.label(f"{lbl}_end")
    a.reset_counters()

STAMPS = False
CTX = dict(k=0, slot=0)
def mark(a):
    if not STAMPS: return
    CTX['slot'] += 1
    stamp(a, CTX['k'], CTX['slot'])
def stamp(a, kidx, slot):
    if not STAMPS: return
    stamp.n = getattr(stamp, 'n', 0) + 1
    L = f"stamp_{stamp.n}"
    a(f"s_cmp_lg_u32 s{S_W}, 0")
    a(f"s_cbranch_scc1 {L}")
    a("s_memrealtime s[98:99]")
    a("s_memtime s[100:101]")
    a("s_waitcnt lgkmcnt(0)")
    a(f"s_lshl_b32 s97, s2, 7")
    a(f"s_add_u32 s97, s97, {WS_STAMP + kidx*(1024*128) + slot*4}")
    a("s_mov_b64 exec, 1")
    a("v_mov_b32 v254, s98")
    a("v_mov_b32 v255, s100")
    vm = list(a.vm)
    a(f"buffer_store_dword v254, off, s[{SRD_WS}:{SRD_WS+3}], s97")
    a(f"buffer_store_dword v255, off, s[{SRD_WS}:{SRD_WS+3}], s97 offset:64")
    a("s_mov_b64 exec, -1")
    a.vm = vm
    a.label(L)

def dbgtime(a, slot, wg):
    if not OPT.get('dbgtime'): return
    L = uid("dt")
    a(f"s_cmp_lg_u32 s{S_W}, 0")
    a(f"s_cbranch_scc1 {L}")
    a(f"s_cmp_lg_u32 s2, {wg}")
    a(f"s_cbranch_scc1 {L}")
    a("s_memrealtime s[98:99]")
    a("s_waitcnt lgkmcnt(0)")
    a("s_mov_b64 exec, 1")
    a("v_mov_b32 v254, s98")
    a(f"v_mov_b32 v255, {slot*4}")
    vm = list(a.vm)
    a(f"global_store_dword v255, v254, s[{P_DBG}:{P_DBG+1}]")
    a("s_mov_b64 exec, -1")
    a.vm = vm
    a.label(L)

def kernel_text(name, body, grid, lds):
    s  = f".globl {name}\n.p2align 8\n.type {name},@function\n{name}:\n"
    s += body
    s += "    s_endpgm\n"
    return s

def descriptor(name, vgpr=256):
    return f""".amdhsa_kernel {name}
  .amdhsa_next_free_vgpr {vgpr}
  .amdhsa_next_free_sgpr 102
  .amdhsa_accum_offset {vgpr}
  .amdhsa_group_segment_fixed_size 0
  .amdhsa_kernarg_size 96
  .amdhsa_user_sgpr_count 2
  .amdhsa_user_sgpr_kernarg_segment_ptr 1
  .amdhsa_system_sgpr_workgroup_id_x 1
.end_amdhsa_kernel
"""

def dpp_sum16(a, v):
    for r in (8, 4, 2, 1):
        a(f"v_add_f32_dpp v{v}, v{v}, v{v} row_ror:{r} row_mask:0xf bank_mask:0xf")

def stage_ln(a, lbl):
    VO, VT = 2, 4
    X, F = 20, 40
    t0, t1, t2, t3, t4 = VT, VT+1, VT+2, VT+3, VT+4
    a(f"s_and_b32 s{T0}, s{S_W}, 1")
    a(f"s_lshl_b32 s{T0}, s{T0}, 2")
    a(f"s_lshl_b32 s{T1}, s{S_IDX}, 3")
    a(f"s_add_u32 s{T0}, s{T0}, s{T1}")
    a(f"v_lshrrev_b32 v{t0}, 4, v1")
    a(f"v_add_u32 v{t0}, s{T0}, v{t0}")
    a(f"v_and_b32 v{t1}, 15, v1")
    a(f"s_movk_i32 s{T2}, 1280")
    a(f"v_mul_lo_u32 v{VO}, v{t0}, s{T2}")
    a(f"v_lshl_add_u32 v{VO}, v{t1}, 4, v{VO}")
    a(f"s_cmp_ge_u32 s{S_W}, 2")
    a(f"s_cbranch_scc1 {lbl}_gate")
    srd(a, SRD_A, P_AX, SIZES['AX'])
    for i in range(5):
        a(f"buffer_load_dwordx4 {vr(X+4*i,4)}, v{VO}, s[{SRD_A}:{SRD_A+3}], 0 offen offset:{256*i}", tag='lnx')
    if OPT['mega']: start_prefetch(a, 'B')
    a(f"v_lshrrev_b32 v{t2}, 5, v{t0}")
    a(f"v_mul_u32_u24 v{t2}, 40, v{t2}")
    a(f"v_lshrrev_b32 v{t3}, 1, v{t1}")
    a(f"v_add_u32 v{t2}, v{t2}, v{t3}")
    a(f"v_lshlrev_b32 v{t2}, 10, v{t2}")
    a(f"v_and_b32 v{t3}, 1, v{t1}")
    a(f"v_lshl_add_u32 v{t2}, v{t3}, 9, v{t2}")
    a(f"v_and_b32 v{t3}, 31, v{t0}")
    a(f"v_lshl_add_u32 v{VO+1}, v{t3}, 4, v{t2}")
    a.wait_vm('lnx')
    for d in range(20):
        a(f"v_lshlrev_b32 v{F+2*d}, 16, v{X+d}")
        a(f"v_and_b32 v{F+2*d+1}, 0xffff0000, v{X+d}")
    for k in range(4):
        a(f"v_add_f32 v{t0+k}, v{F+k}, v{F+4+k}")
    for d in range(8, 40):
        a(f"v_add_f32 v{t0+(d%4)}, v{t0+(d%4)}, v{F+d}")
    a(f"v_add_f32 v{t0}, v{t0}, v{t1}")
    a(f"v_add_f32 v{t2}, v{t2}, v{t3}")
    a(f"v_add_f32 v{t0}, v{t0}, v{t2}")
    dpp_sum16(a, t0)
    a(f"v_mul_f32 v{t0}, 0x3acccccd, v{t0}")
    for d in range(40):
        a(f"v_sub_f32 v{F+d}, v{F+d}, v{t0}")
    for k in range(4):
        a(f"v_mul_f32 v{t0+k}, v{F+k}, v{F+k}")
    for d in range(4, 40):
        a(f"v_fmac_f32 v{t0+(d%4)}, v{F+d}, v{F+d}")
    a(f"v_add_f32 v{t0}, v{t0}, v{t1}")
    a(f"v_add_f32 v{t2}, v{t2}, v{t3}")
    a(f"v_add_f32 v{t0}, v{t0}, v{t2}")
    dpp_sum16(a, t0)
    a(f"v_mov_b32 v{t1}, 0x3727c5ac")
    a(f"v_fmac_f32 v{t1}, 0x3acccccd, v{t0}")
    a(f"v_rsq_f32 v{t1}, v{t1}")
    for d in range(40):
        a(f"v_mul_f32 v{F+d}, v{F+d}, v{t1}")
    for d in range(20):
        a(f"v_cvt_pk_bf16_f32 v{X+d}, v{F+2*d}, v{F+2*d+1}")
    if OPT['mega']: nonce_load(a, 10)
    for i in range(5):
        a(f"buffer_store_dwordx4 {vr(X+4*i,4)}, v{VO+1}, s[{SRD_WS}:{SRD_WS+3}], 0 offen sc1")
        if i < 4:
            a(f"v_add_u32 v{VO+1}, 8192, v{VO+1}")
    a(f"s_branch {lbl}_done")
    a.label(f"{lbl}_gate")
    a.reset_counters()
    srd(a, SRD_A, P_AX, SIZES['AX'])
    srd(a, SRD_B, P_GW, SIZES['GW'])
    G = 40
    a(f"v_lshlrev_b32 v{VO+1}, 4, v{t1}")
    for i in range(5):
        a(f"buffer_load_dwordx4 {vr(X+4*i,4)}, v{VO}, s[{SRD_A}:{SRD_A+3}], 0 offen offset:{256*i}", tag='gx')
        a(f"buffer_load_dwordx4 {vr(G+4*i,4)}, v{VO+1}, s[{SRD_B}:{SRD_B+3}], 0 offen offset:{256*i}", tag='gx')
    if OPT['mega']: start_prefetch(a, 'B')
    a(f"v_lshlrev_b32 v{t2}, 2, v{t0}")
    a(f"v_add_u32 v{t2}, {WS_G}, v{t2}")
    a(f"v_mov_b32 v{t3}, 0x7ffffff0")
    a(f"v_cmp_eq_u32 s[{T4}:{T4+1}], 0, v{t1}")
    a(f"v_cndmask_b32 v{VO}, v{t3}, v{t2}, s[{T4}:{T4+1}]")
    a(f"v_mov_b32 v{t0}, 0")
    a(f"v_mov_b32 v{t1}, 0")
    a.wait_vm('gx')
    U = 60
    for d in range(20):
        u = U + 4*(d % 4)
        a(f"v_lshlrev_b32 v{u}, 16, v{X+d}")
        a(f"v_lshlrev_b32 v{u+1}, 16, v{G+d}")
        a(f"v_and_b32 v{u+2}, 0xffff0000, v{X+d}")
        a(f"v_and_b32 v{u+3}, 0xffff0000, v{G+d}")
        a(f"v_fmac_f32 v{t0}, v{u}, v{u+1}")
        a(f"v_fmac_f32 v{t1}, v{u+2}, v{u+3}")
    a(f"v_add_f32 v{t0}, v{t0}, v{t1}")
    dpp_sum16(a, t0)
    a(f"v_mul_f32 v{t0}, 0xbfb8aa3b, v{t0}")
    a(f"v_exp_f32 v{t0}, v{t0}")
    a(f"v_add_f32 v{t0}, 1.0, v{t0}")
    a(f"v_rcp_f32 v{t0}, v{t0}")
    a(f"s_nop 0")
    if OPT['mega']: nonce_load(a, 10)
    a(f"buffer_store_dword v{t0}, v{VO}, s[{SRD_WS}:{SRD_WS+3}], 0 offen sc1")
    a.label(f"{lbl}_done")
    a.reset_counters()
    if OPT['mega']:
        a("s_waitcnt vmcnt(0)")
        nonce_get(a, 10)
        a(f"s_lshr_b32 s{T0}, s{S_IDX}, 4")
        a(f"s_lshl_b32 s{T0}, s{T0}, 7")
        a(f"s_and_b32 s{T1}, s{S_IDX}, 15")
        a(f"s_lshl_b32 s{T1}, s{T1}, 2")
        a(f"s_add_u32 s{T0}, s{T0}, s{T1}")
        a(f"s_add_u32 s{T0}, s{T0}, {WS_FLAG + FY}")
        publish(a, T0, 10)

NRP = 48
RPQ = 395
def stage_repack(a, lbl, sn):
    t0, t1, t2, t3, t4, t5, t6 = range(2, 9)
    NU = 16
    VS, VD, D = 10, 26, 44
    MS = 64
    srd(a, SRD_A, P_W2, SIZES['W2'])
    srd(a, SRD_B, P_WO, SIZES['WO'])
    a(f"s_mul_i32 s{T0}, s{sn}, {RPQ}")
    a(f"s_mul_i32 s{T3}, s{T0}, 160")
    a(f"s_add_u32 s{T3}, s{T3}, {WS_WF}")
    a(f"s_movk_i32 s{T6}, 6554")
    a(f"s_movk_i32 s{T7}, 1280")
    a(f"s_mov_b32 s{T1}, 1813754")
    a(f"s_movk_i32 s{T2}, 2368")
    a(f"s_movk_i32 s{T4}, 18944")
    a(f"s_movk_i32 s{T5}, {RPQ*10}")
    for u in range(NU):
        a(f"v_add_u32 v{t0}, {256*u}, v0")
        a(f"v_mul_u32_u24 v{t1}, s{T6}, v{t0}")
        a(f"v_lshrrev_b32 v{t1}, 16, v{t1}")
        a(f"v_mul_u32_u24 v{t2}, 10, v{t1}")
        a(f"v_sub_u32 v{t2}, v{t0}, v{t2}")
        a(f"v_add_u32 v{t1}, s{T0}, v{t1}")
        a(f"v_mul_hi_u32 v{t3}, v{t1}, s{T1}")
        a(f"v_mul_lo_u32 v{t4}, v{t3}, s{T2}")
        a(f"v_sub_u32 v{t4}, v{t1}, v{t4}")
        a(f"v_cmp_gt_u32 s[98:99], s{T4}, v{t1}")
        a(f"v_cmp_gt_u32 s[100:101], s{T5}, v{t0}")
        a("s_and_b64 s[98:99], s[98:99], s[100:101]")
        a(f"v_mul_u32_u24 v{t3}, 160, v{t3}")
        a(f"v_lshl_add_u32 v{t2}, v{t2}, 4, v{t3}")
        a(f"v_subrev_u32 v{t1}, 1728, v{t4}")
        a(f"v_lshrrev_b32 v{t3}, 4, v{t1}")
        a(f"v_and_b32 v{t1}, 15, v{t1}")
        a(f"v_mul_u32_u24 v{t5}, 20, v{t3}")
        a(f"v_add_u32 v{t5}, v{t5}, v{t1}")
        a(f"v_cmp_gt_u32 s[100:101], 32, v{t3}")
        a(f"v_subrev_u32 v{t3}, 32, v{t3}")
        a(f"v_lshlrev_b32 v{t3}, 2, v{t3}")
        a(f"v_bfe_u32 v{t6}, v{t1}, 2, 1")
        a(f"v_lshl_add_u32 v{t3}, v{t6}, 1, v{t3}")
        a(f"v_lshrrev_b32 v{t6}, 3, v{t1}")
        a(f"v_add_u32 v{t3}, v{t3}, v{t6}")
        a(f"v_mul_u32_u24 v{t3}, 20, v{t3}")
        a(f"v_and_b32 v{t1}, 3, v{t1}")
        a(f"v_add3_u32 v{t3}, v{t3}, v{t1}, 16")
        a(f"v_cndmask_b32 v{t3}, v{t3}, v{t5}, s[100:101]")
        a(f"v_cmp_gt_u32 s[{MS+2*u}:{MS+2*u+1}], 0x6c0, v{t4}") if False else None
        a(f"v_mov_b32 v{t5}, 1728")
        a(f"v_cmp_gt_u32 s[{MS+2*u}:{MS+2*u+1}], v{t5}, v{t4}")
        a(f"v_cndmask_b32 v{t3}, v{t3}, v{t4}, s[{MS+2*u}:{MS+2*u+1}]")
        a(f"v_mul_lo_u32 v{t3}, v{t3}, s{T7}")
        a(f"v_add_u32 v{t3}, v{t3}, v{t2}")
        a(f"v_lshlrev_b32 v{t5}, 4, v{t0}")
        a(f"v_add_u32 v{t5}, s{T3}, v{t5}")
        a(f"v_mov_b32 v{t6}, 0x7ffffff0")
        a(f"v_cndmask_b32 v{VS+u}, v{t6}, v{t3}, s[98:99]")
        a(f"v_cndmask_b32 v{VD+u}, v{t6}, v{t5}, s[98:99]")
    for u in range(NU):
        a(f"v_mov_b32 v{t6}, 0x7ffffff0")
        a(f"v_cndmask_b32 v{t0}, v{t6}, v{VS+u}, s[{MS+2*u}:{MS+2*u+1}]")
        a(f"v_cndmask_b32 v{t1}, v{VS+u}, v{t6}, s[{MS+2*u}:{MS+2*u+1}]")
        a(f"s_mov_b64 exec, s[{MS+2*u}:{MS+2*u+1}]")
        a(f"buffer_load_dwordx4 {vr(D+4*u,4)}, v{t0}, s[{SRD_A}:{SRD_A+3}], 0 offen", tag=('rp', u))
        a(f"s_not_b64 exec, s[{MS+2*u}:{MS+2*u+1}]")
        a(f"buffer_load_dwordx4 {vr(D+4*u,4)}, v{t1}, s[{SRD_B}:{SRD_B+3}], 0 offen", tag=('rp', u))
        a("s_mov_b64 exec, -1")
    for u in range(NU):
        a.wait_vm(('rp', u))
        a(f"buffer_store_dwordx4 {vr(D+4*u,4)}, v{VD+u}, s[{SRD_WS}:{SRD_WS+3}], 0 offen sc1")
    if OPT['mega']:
        nonce_load(a, 2)
        nonce_get(a, 2)
        a(f"s_lshl_b32 s{T0}, s{sn}, 2")
        a(f"s_add_u32 s{T0}, s{T0}, {WS_FLAG + FW}")
        publish(a, T0, 2)
    a.reset_counters()

def stage_ffn1(a, lbl):
    a(f"s_lshr_b32 s{T0}, s{S_X}, 1")
    a(f"s_lshl_b32 s{T0}, s{T0}, 2")
    a(f"s_and_b32 s{T1}, s{S_I}, 3")
    a(f"s_add_u32 s{S_RB}, s{T0}, s{T1}")
    a(f"s_and_b32 s{T0}, s{S_X}, 1")
    a(f"s_mul_i32 s{T0}, s{T0}, 7")
    a(f"s_lshr_b32 s{T1}, s{S_I}, 2")
    a(f"s_add_u32 s{S_CJ}, s{T0}, s{T1}")
    a(f"s_cmp_ge_u32 s{T1}, 7")
    a(f"s_cbranch_scc1 {lbl}_skip")
    srd(a, SRD_A, P_B1, SIZES['B1'])
    srd(a, SRD_B, P_W1, SIZES['W1'])
    VWD, VWF, VY, VT = 2, 6, 10, 12
    AS = [20, 36, 52]
    ACC = 68
    YR = 132; NY = 16; YD = 12
    t0, t1, t2, t3 = VT, VT+1, VT+2, VT+3
    a(f"s_lshl_b32 s{T0}, s{S_W}, 4")
    a(f"v_lshrrev_b32 v{t0}, 4, v1")
    a(f"v_add_u32 v{t1}, s{T0}, v{t0}")
    a(f"s_movk_i32 s{T2}, 3456")
    a(f"v_mul_lo_u32 v{t1}, v{t1}, s{T2}")
    a(f"v_bfe_u32 v{t2}, v1, 2, 2")
    a(f"v_xor_b32 v{t2}, v{t2}, v{t0}")
    a(f"v_and_b32 v{t3}, 3, v1")
    a(f"v_lshl_add_u32 v{t2}, v{t2}, 2, v{t3}")
    a(f"v_lshl_add_u32 v{t1}, v{t2}, 4, v{t1}")
    a(f"s_lshl_b32 s{T0}, s{S_CJ}, 8")
    a(f"v_add_u32 v{VWD}, s{T0}, v{t1}")
    for i in range(1, 4):
        a(f"v_add_u32 v{VWD+i}, {i*(4*3456-1024)}, v{VWD}")
    a(f"s_lshl_b32 s{T6}, s{S_W}, 12")
    def dma_w(b):
        a(f"s_add_u32 m0, s{T6}, {(b % 4)*16384}")
        a(f"s_mov_b32 s{S_KW}, {b*64*3456}")
        for i in range(4):
            a(f"buffer_load_dwordx4 v{VWD+i}, s[{SRD_B}:{SRD_B+3}], s{S_KW} offen offset:{i*1024} lds", tag=('W', b))
    dma_w(0)
    a(f"v_lshrrev_b32 v{t0}, 5, v1")
    a(f"v_lshlrev_b32 v{t1}, 3, v{t0}")
    a(f"s_lshl_b32 s{T0}, s{S_CJ}, 8")
    a(f"v_add_u32 v{t1}, s{T0}, v{t1}")
    for T in range(4):
        for j in range(4):
            a(f"buffer_load_dwordx2 {vr(AS[0]+2*(4*T+j),2)}, v{t1}, s[{SRD_A}:{SRD_A+3}], 0 offen offset:{64*T+16*j}", tag='bias')
    dma_w(1); dma_w(2)
    if OPT['mega']:
        a(f"s_lshl_b32 s{T0}, s{S_RB}, 7")
        a(f"s_add_u32 s{T0}, s{T0}, {WS_FLAG + FY}")
        a(f"v_lshlrev_b32 v{t2}, 2, v1")
        a(f"v_add_u32 v{t2}, s{T0}, v{t2}")
        a(f"s_mov_b64 s[{T4}:{T4+1}], 0xffff")
        vm = list(a.vm)
        wait_flags(a, t2, t3, T4)
        a.vm = vm
        if OPT.get('fine'): mark(a)
    a(f"s_lshl_b32 s{T0}, s{S_RB}, 2")
    a(f"s_add_u32 s{T0}, s{T0}, s{S_W}")
    a(f"s_mul_i32 s{T1}, s{T0}, {40*1024}")
    a(f"s_add_u32 s{S_KX}, s{T1}, {WS_Y}")
    a(f"v_lshlrev_b32 v{VY}, 4, v1")
    def ld_y(s):
        if s % 4 == 0 and s > 0:
            a(f"s_add_u32 s{S_KX}, s{S_KX}, 4096")
        a(f"buffer_load_dwordx4 {vr(YR+4*(s % NY),4)}, v{VY}, s[{SRD_WS}:{SRD_WS+3}], s{S_KX} offen offset:{(s % 4)*1024} sc1", tag=('Y', s))
    for s in range(YD): ld_y(s)
    a(f"v_bfe_u32 v{t2}, v1, 2, 2")
    a(f"v_lshl_add_u32 v{t1}, v{t0}, 3, v{t2}")
    a(f"v_lshlrev_b32 v{t1}, 8, v{t1}")
    a(f"v_bfe_u32 v{t3}, v1, 4, 1")
    a(f"v_lshl_add_u32 v{t1}, v{t3}, 5, v{t1}")
    a(f"v_and_b32 v{t3}, 3, v1")
    a(f"v_lshl_add_u32 v{t1}, v{t3}, 3, v{t1}")
    for ft in range(4):
        a(f"v_xor_b32 v{t3}, {ft}, v{t2}")
        a(f"v_lshl_add_u32 v{VWF+ft}, v{t3}, 6, v{t1}")
    a.wait_vm('bias')
    for T in range(4):
        for j in range(4):
            s_ = AS[0] + 2*(4*T+j); d = ACC + 16*T + 4*j
            a(f"v_lshlrev_b32 v{d}, 16, v{s_}")
            a(f"v_and_b32 v{d+1}, 0xffff0000, v{s_}")
            a(f"v_lshlrev_b32 v{d+2}, 16, v{s_+1}")
            a(f"v_and_b32 v{d+3}, 0xffff0000, v{s_+1}")
    def rd_a(s, ft, rd):
        b = s >> 2; u = s & 3
        a(f"ds_read_b64_tr_b16 {vr(AS[s % 3]+4*ft+2*rd,2)}, v{VWF+ft} offset:{(b % 4)*16384 + u*4096 + rd*1024}", tag=('A', s, ft))
    a.wait_vm(('W', 0))
    a("s_barrier")
    for s in range(2):
        for ft in range(4):
            rd_a(s, ft, 0); rd_a(s, ft, 1)
    NS = 40
    mark(a)
    for s in range(NS):
        b = s >> 2; u = s & 3
        if OPT.get('fine') and u == 0 and b in (2, 4, 6, 8): mark(a)
        if u == 2 and b + 1 < 10:
            a.wait_vm(('W', b + 1))
            a("s_barrier")
            if b + 3 < 10: dma_w(b + 3)
        a.wait_vm(('Y', s))
        for ft in range(4):
            a.wait_lg(('A', s, ft))
            d = vr(ACC+16*ft, 16)
            a(f"v_mfma_f32_32x32x16_bf16 {d}, {vr(AS[s % 3]+4*ft,4)}, {vr(YR+4*(s % NY),4)}, {d}")
            if s + 2 < NS:
                rd_a(s + 2, ft, 0); rd_a(s + 2, ft, 1)
            if ft == 1 and s + YD < NS:
                ld_y(s + YD)
    mark(a)
    C0, C1 = 2, 3
    a(f"v_mov_b32 v{C0}, 0xc0135761")
    a(f"v_mov_b32 v{C1}, 0xbdd2d3e8")
    a(f"s_lshl_b32 s{T0}, s{S_RB}, 2")
    a(f"s_add_u32 s{T0}, s{T0}, s{S_W}")
    a(f"s_mul_i32 s{T0}, s{T0}, 108")
    a(f"s_lshl_b32 s{T1}, s{S_CJ}, 3")
    a(f"s_add_u32 s{T0}, s{T0}, s{T1}")
    a(f"s_lshl_b32 s{T0}, s{T0}, 10")
    a(f"s_add_u32 s{T0}, s{T0}, {WS_H}")
    a(f"s_add_u32 s{T1}, s{T0}, 4096")
    TU, TE = 20, 28
    k = 0
    for T in range(4):
        if T == 2:
            a(f"s_cmp_eq_u32 s{S_CJ}, 13")
            a(f"s_cbranch_scc1 {lbl}_pub")
        for jj in range(2):
            x = ACC + 16*T + 8*jj
            for e in range(8): a(f"v_mul_f32 v{TU+e}, v{x+e}, v{x+e}")
            for e in range(8): a(f"v_fma_f32 v{TU+e}, v{TU+e}, v{C1}, v{C0}")
            for e in range(8): a(f"v_mul_f32 v{TU+e}, v{TU+e}, v{x+e}")
            for e in range(8): a(f"v_exp_f32 v{TE+e}, v{TU+e}")
            for e in range(8): a(f"v_add_f32 v{TE+e}, 1.0, v{TE+e}")
            for e in range(8): a(f"v_rcp_f32 v{TE+e}, v{TE+e}")
            for e in range(8): a(f"v_mul_f32 v{TE+e}, v{TE+e}, v{x+e}")
            d = 40 + 4*(k % 4); k += 1
            for e in range(4): a(f"v_cvt_pk_bf16_f32 v{d+e}, v{TE+2*e}, v{TE+2*e+1}")
            so = T0 if T < 2 else T1
            a(f"buffer_store_dwordx4 {vr(d,4)}, v{VY}, s[{SRD_WS}:{SRD_WS+3}], s{so} offen offset:{((2*T+jj) % 4)*1024} sc1")
    a.label(f"{lbl}_pub")
    mark(a)
    if OPT['mega']:
        a(f"s_lshl_b32 s{T0}, s{S_RB}, 7")
        a(f"s_lshl_b32 s{T1}, s{S_CJ}, 2")
        a(f"s_add_u32 s{T0}, s{T0}, s{T1}")
        a(f"s_add_u32 s{T0}, s{T0}, {WS_FLAG + FH}")
        publish(a, T0, 12)
        a(f"s_branch {lbl}_end")
    a.label(f"{lbl}_skip")
    if OPT['mega']:
        a.reset_counters()
        a(f"s_lshl_b32 s{S_KO}, s{S_X}, 2")
        a(f"s_and_b32 s{T0}, s{S_I}, 3")
        a(f"s_add_u32 s{S_KO}, s{S_KO}, s{T0}")
        a(f"s_add_u32 s{S_KO}, s{S_KO}, 16")
        stage_repack(a, lbl + "_rp", S_KO)
        a.label(f"{lbl}_end")
    a.reset_counters()

PST = 3104
LK, LV, LONES = 0, 10*PST, 20*PST
def stage_attn(a, lbl):
    a(f"s_lshl_b32 s{T0}, s{S_X}, 1")
    a(f"s_and_b32 s{T1}, s{S_I}, 1")
    a(f"s_add_u32 s{S_CJ}, s{T0}, s{T1}")
    a(f"s_lshr_b32 s{S_RB}, s{S_I}, 1")
    HP = S_CJ
    VD, VK, VV, VT = 2, 3, 4, 6
    t0, t1, t2, t3, t4 = VT, VT+1, VT+2, VT+3, VT+4
    MK = 12
    Q0, Q1 = 20, 24
    KF = [28, 36]
    VF = [44, 48, 52, 56]
    PF = [60, 64, 68, 72]
    OA = 76
    LO = 92
    CS, NM = 96, 97
    MX = 98
    S = 104
    QH = 248
    if OPT['mega']:
        a(f"v_lshrrev_b32 v{t0}, 4, v1")
        a(f"s_sub_u32 s{T0}, s{S_RB}, 2")
        a(f"v_add_u32 v{t0}, s{T0}, v{t0}")
        a(f"v_and_b32 v{t1}, 15, v1")
        a(f"v_cmp_le_i32 s[{T4}:{T4+1}], 0, v{t0}")
        a(f"v_cmp_gt_u32 s[{T2}:{T2+1}], 15, v{t1}")
        a(f"s_and_b64 s[{T4}:{T4+1}], s[{T4}:{T4+1}], s[{T2}:{T2+1}]")
        a(f"s_mov_b64 s[{T2}:{T2+1}], 0xffffffffffff") if False else None
        a(f"s_mov_b32 s{T2}, -1")
        a(f"s_mov_b32 s{T2+1}, 0xffff")
        a(f"s_and_b64 s[{T4}:{T4+1}], s[{T4}:{T4+1}], s[{T2}:{T2+1}]")
        a(f"v_lshlrev_b32 v{t0}, 7, v{t0}")
        a(f"v_lshl_add_u32 v{t0}, v{t1}, 2, v{t0}")
        a(f"v_add_u32 v{t0}, {WS_FLAG + FQ}, v{t0}")
        wait_flags(a, t0, t1, T4)
        if OPT.get('fine'): mark(a)
    a(f"s_sub_u32 s{T0}, s{S_RB}, 2")
    a(f"s_lshl_b32 s{T0}, s{T0}, 7")
    a(f"s_mul_i32 s{T1}, s{S_W}, 96")
    a(f"s_add_u32 s{T0}, s{T0}, s{T1}")
    a(f"v_lshlrev_b32 v{t0}, 1, v1")
    a(f"v_add_u32 v{t0}, s{T0}, v{t0}")
    a(f"v_lshlrev_b32 v{t1}, 3, v{t0}")
    a(f"v_mov_b32 v{t2}, 0x7ffffff0")
    a(f"v_cmp_le_i32 s[{T4}:{T4+1}], 0, v{t0}")
    a(f"v_cndmask_b32 v{VD}, v{t2}, v{t1}, s[{T4}:{T4+1}]")
    a(f"s_mul_i32 s{T2}, s{HP}, {10*16384}")
    a(f"s_add_u32 s{T2}, s{T2}, {WS_QKV + 160*16384}")
    a(f"s_mul_i32 s{T3}, s{S_W}, 768")
    a("s_mov_b32 exec_hi, 0xffff")
    for ty in range(2):
        for p in range(10):
            a(f"s_add_u32 m0, s{T3}, {(LK if ty == 0 else LV) + p*PST}")
            a(f"s_add_u32 s{S_KX}, s{T2}, {(ty*160 + p)*16384}")
            a(f"buffer_load_dwordx4 v{VD}, s[{SRD_WS}:{SRD_WS+3}], s{S_KX} offen sc1 lds", tag=('kv', ty))
    a("s_mov_b32 exec_hi, -1")
    a(f"s_lshl_b32 s{T0}, s{S_RB}, 2")
    a(f"s_add_u32 s{T0}, s{T0}, s{S_W}")
    S_QB = 61
    a(f"s_mov_b32 s{S_QB}, s{T0}")
    a(f"v_and_b32 v{t0}, 31, v1")
    a(f"v_lshrrev_b32 v{t1}, 5, v1")
    a(f"s_lshl_b32 s{T1}, s{T0}, 8")
    a(f"v_lshlrev_b32 v{t2}, 3, v{t0}")
    a(f"v_add_u32 v{t2}, s{T1}, v{t2}")
    a(f"v_lshl_add_u32 v{t3}, v{t1}, 15, v{t2}")
    a(f"s_mul_i32 s{T2}, s{HP}, {10*16384}")
    a(f"s_add_u32 s{T2}, s{T2}, {WS_QKV}")
    QR = [Q0, QH]
    for hh in range(2):
        q0 = Q0 if hh == 0 else QH
        q1 = Q1 if hh == 0 else QH + 4
        a(f"s_add_u32 s{T1}, s{T2}, {hh*5*16384}")
        a(f"buffer_load_dwordx2 {vr(q0,2)}, v{t3}, s[{SRD_WS}:{SRD_WS+3}], s{T1} offen sc1", tag='q')
        a(f"s_add_u32 s{T1}, s{T1}, 16384")
        a(f"buffer_load_dwordx2 {vr(q0+2,2)}, v{t3}, s[{SRD_WS}:{SRD_WS+3}], s{T1} offen sc1", tag='q')
        a(f"s_add_u32 s{T1}, s{T1}, {3*16384}")
        a(f"buffer_load_dwordx2 {vr(q1,2)}, v{t2}, s[{SRD_WS}:{SRD_WS+3}], s{T1} offen sc1", tag='q')
    a(f"v_mov_b32 v{KF[0]}, 0x3f803f80")
    for r in range(1, 4): a(f"v_mov_b32 v{KF[0]+r}, 0x3f803f80")
    a(f"v_lshlrev_b32 v{t4}, 4, v0")
    a(f"v_add_u32 v{t4}, {LONES}, v{t4}")
    a(f"v_cmp_gt_u32 vcc, 208, v0")
    a(f"s_and_saveexec_b64 s[{T4}:{T4+1}], vcc")
    a(f"ds_write_b128 v{t4}, {vr(KF[0],4)}")
    a(f"s_mov_b64 exec, s[{T4}:{T4+1}]")
    a(f"v_lshlrev_b32 v{t2}, 2, v{t1}")
    a(f"v_sub_u32 v{t2}, v{t0}, v{t2}")
    for r in range(16):
        a(f"v_cmp_le_i32 s[{S_MASK+2*r}:{S_MASK+2*r+1}], {8*(r >> 2) + (r & 3)}, v{t2}")
    a(f"v_mov_b32 v{t3}, 0xffff")
    a(f"v_mov_b32 v{t4}, 0xffff0000")
    for q in range(8):
        a(f"v_cndmask_b32 v{MK+q}, 0, v{t3}, s[{S_MASK+4*q}:{S_MASK+4*q+1}]")
        a(f"v_cndmask_b32 v{KF[1]}, 0, v{t4}, s[{S_MASK+4*q+2}:{S_MASK+4*q+3}]")
        a(f"v_or_b32 v{MK+q}, v{MK+q}, v{KF[1]}")
    a(f"s_lshl_b32 s{T0}, s{S_W}, 8")
    a(f"v_lshlrev_b32 v{t2}, 3, v{t0}")
    a(f"v_add_u32 v{t2}, s{T0}, v{t2}")
    a(f"s_movk_i32 s{T1}, {2*PST}")
    a(f"v_mul_lo_u32 v{t3}, v{t1}, s{T1}")
    a(f"v_add_u32 v{VK}, v{t2}, v{t3}")
    VKX = 11
    a(f"v_add_u32 v{VKX}, {4*PST}, v{t2}")
    a(f"v_bfe_u32 v{t2}, v1, 4, 1")
    a(f"v_and_b32 v{t3}, 3, v1")
    a(f"v_lshl_add_u32 v{t2}, v{t2}, 2, v{t3}")
    a(f"v_bfe_u32 v{t3}, v1, 2, 2")
    a(f"v_lshl_add_u32 v{t3}, v{t1}, 2, v{t3}")
    a(f"v_lshlrev_b32 v{t3}, 3, v{t3}")
    a(f"v_add_u32 v{t3}, s{T0}, v{t3}")
    a(f"s_movk_i32 s{T1}, {PST}")
    a(f"v_mul_lo_u32 v{t4}, v{t2}, s{T1}")
    a(f"v_cmp_gt_u32 s[{T4}:{T4+1}], 5, v{t2}")
    for hh in range(2):
        vb = LV + hh*5*PST
        a(f"v_lshlrev_b32 v{KF[0]}, 5, v{t2}")
        a(f"v_add_u32 v{KF[0]}, {(vb - LONES) % 256}, v{KF[0]}")
        a(f"v_and_b32 v{KF[0]}, 255, v{KF[0]}")
        a(f"v_add_u32 v{KF[0]}, {LONES}, v{KF[0]}")
        a(f"v_add_u32 v{KF[0]+1}, {vb}, v{t4}")
        a(f"v_cndmask_b32 v{KF[0]}, v{KF[0]}, v{KF[0]+1}, s[{T4}:{T4+1}]")
        a(f"v_add_u32 v{VV+hh}, v{KF[0]}, v{t3}")
    a(f"v_mov_b32 v{CS}, 0x3ea52b5c")
    for st in range(2):
        a(f"v_mov_b32 v{KF[st]+6}, 0"); a(f"v_mov_b32 v{KF[st]+7}, 0")
    a(f"v_mov_b32 v{Q1+2}, 0"); a(f"v_mov_b32 v{Q1+3}, 0")
    a.wait_vm('q')
    a(f"v_cmp_gt_u32 s[{T4}:{T4+1}], 32, v1")
    for q in (Q1, Q1+1, QH+4, QH+5):
        a(f"v_cndmask_b32 v{q}, 0, v{q}, s[{T4}:{T4+1}]")
    a("s_waitcnt vmcnt(0) lgkmcnt(0)")
    a("s_barrier")
    a.reset_counters()
    mark(a)
    NEG = 0xf149f2ca
    for hh in range(2):
        if hh == 1:
            for r in range(4): a(f"v_mov_b32 v{Q0+r}, v{QH+r}")
            a(f"v_mov_b32 v{Q1}, v{QH+4}"); a(f"v_mov_b32 v{Q1+1}, v{QH+5}")
        ko = hh*5*PST
        def rd_k(tl):
            st = KF[tl % 2]
            a(f"ds_read_b64 {vr(st,2)}, v{VK} offset:{ko + tl*256}", tag=('k', tl))
            a(f"ds_read_b64 {vr(st+2,2)}, v{VK} offset:{ko + PST + tl*256}", tag=('k', tl))
            a(f"ds_read_b64 {vr(st+4,2)}, v{VKX} offset:{ko + tl*256}", tag=('k', tl))
        rd_k(0)
        for tl in range(9):
            if tl + 1 < 9: rd_k(tl + 1)
            a.wait_lg(('k', tl))
            st = KF[tl % 2]; d = vr(S+16*tl, 16)
            a(f"v_mfma_f32_32x32x16_bf16 {d}, {vr(st,4)}, {vr(Q0,4)}, 0")
            a(f"v_mfma_f32_32x32x16_bf16 {d}, {vr(st+4,4)}, {vr(Q1,4)}, {d}")
        a(f"s_cmp_ge_u32 s{S_QB}, 8")
        a(f"s_cbranch_scc1 {lbl}_full{hh}")
        for tl in range(8):
            a(f"s_cmp_ge_u32 s{S_QB}, {8-tl}")
            a(f"s_cbranch_scc1 {lbl}_full{hh}")
            a("s_nop 7"); a("s_nop 7")
            for r in range(16): a(f"v_mov_b32 v{S+16*tl+r}, {hex(NEG)}")
        a.label(f"{lbl}_full{hh}")
        a("s_nop 7"); a("s_nop 3")
        for r in range(16):
            a(f"v_cndmask_b32 v{S+r}, v{S+r}, v{S+128+r}, s[{S_MASK+2*r}:{S_MASK+2*r+1}]")
        for c in range(4):
            a(f"v_max3_f32 v{MX+c}, v{S+32*c}, v{S+32*c+1}, v{S+32*c+2}")
        for k in range(3, 31, 2):
            for c in range(4):
                a(f"v_max3_f32 v{MX+c}, v{MX+c}, v{S+32*c+k}, v{S+32*c+k+1}")
        for c in range(4):
            a(f"v_max_f32 v{MX+c}, v{MX+c}, v{S+32*c+31}")
        a(f"v_max3_f32 v{MX}, v{MX}, v{MX+1}, v{MX+2}")
        a(f"v_max_f32 v{MX}, v{MX}, v{MX+3}")
        a(f"v_mov_b32 v{MX+1}, v{MX}")
        a(f"v_permlane32_swap_b32 v{MX}, v{MX+1}")
        a(f"v_max_f32 v{MX}, v{MX}, v{MX+1}")
        a(f"v_mul_f32 v{NM}, v{CS}, v{MX}")
        a(f"v_sub_f32 v{NM}, 0, v{NM}")
        mark(a)
        def rd_v(tl, kk, slot):
            for rd in range(2):
                a(f"ds_read_b64_tr_b16 {vr(VF[slot]+2*rd,2)}, v{VV+hh} offset:{tl*256 + kk*128 + rd*64}", tag=('v', tl, kk))
        seq = [(1 + q // 2, q % 2) for q in range(14)]
        nv = 0
        vq = []
        def next_v(tl, kk):
            nonlocal nv
            slot = nv % 4; nv += 1
            rd_v(tl, kk, slot); return slot
        first = True
        pslot = 0
        def softmax_frag(src):
            nonlocal pslot
            p = PF[pslot % 4]; pslot += 1
            for e in range(8): a(f"v_fma_f32 v{src+e}, v{src+e}, v{CS}, v{NM}")
            for e in range(8): a(f"v_exp_f32 v{src+e}, v{src+e}")
            for e in range(4): a(f"v_cvt_pk_bf16_f32 v{p+e}, v{src+2*e}, v{src+2*e+1}")
            return p
        def pv(p, slot, tag):
            nonlocal first
            a.wait_lg(tag)
            c = "0" if first else vr(OA,16)
            a(f"v_mfma_f32_32x32x16_bf16 {vr(OA,16)}, {vr(VF[slot],4)}, {vr(p,4)}, {c}")
            first = False
        for (tl, kk) in seq:
            slot = next_v(tl, kk)
            p = softmax_frag(S + 16*tl + 8*kk)
            pv(p, slot, ('v', tl, kk))
        for kk in range(2):
            s0 = next_v(0, kk); s8 = next_v(8, kk)
            p = softmax_frag(S + 8*kk)
            p8 = PF[pslot % 4]; pslot += 1
            for e in range(4):
                a(f"v_and_b32 v{p8+e}, v{p+e}, v{MK+4*kk+e}")
            for e in range(4):
                a(f"v_xor_b32 v{p+e}, v{p+e}, v{p8+e}")
            pv(p, s0, ('v', 0, kk))
            pv(p8, s8, ('v', 8, kk))
        a(f"v_rcp_f32 v{NM}, v{OA+12}")
        for r in range(12): a(f"v_mul_f32 v{OA+r}, v{OA+r}, v{NM}")
        for e in range(4): a(f"v_cvt_pk_bf16_f32 v{PF[0]+e}, v{OA+2*e}, v{OA+2*e+1}")
        a(f"v_cvt_pk_bf16_f32 v{LO+2*hh}, v{OA+8}, v{OA+9}")
        a(f"v_cvt_pk_bf16_f32 v{LO+2*hh+1}, v{OA+10}, v{OA+11}")
        a(f"s_mul_i32 s{T0}, s{S_QB}, 40")
        a(f"s_lshl_b32 s{T1}, s{HP}, 1")
        a(f"s_add_u32 s{T1}, s{T1}, {hh}")
        a(f"s_add_u32 s{T0}, s{T0}, s{T1}")
        a(f"s_lshl_b32 s{T0}, s{T0}, 10")
        a(f"s_add_u32 s{T0}, s{T0}, {WS_O}")
        a(f"v_lshlrev_b32 v{t0}, 4, v1")
        a(f"buffer_store_dwordx4 {vr(PF[0],4)}, v{t0}, s[{SRD_WS}:{SRD_WS+3}], s{T0} offen sc1")
    mark(a)
    a(f"s_mul_i32 s{T0}, s{S_QB}, 40")
    a(f"s_lshr_b32 s{T1}, s{HP}, 1")
    a(f"s_add_u32 s{T0}, s{T0}, s{T1}")
    a(f"s_add_u32 s{T0}, s{T0}, 32")
    a(f"s_lshl_b32 s{T0}, s{T0}, 10")
    a(f"s_and_b32 s{T1}, s{HP}, 1")
    a(f"s_lshl_b32 s{T1}, s{T1}, 9")
    a(f"s_add_u32 s{T0}, s{T0}, s{T1}")
    a(f"s_add_u32 s{T0}, s{T0}, {WS_O}")
    a("s_mov_b32 exec_hi, 0")
    a(f"buffer_store_dwordx4 {vr(LO,4)}, v{t0}, s[{SRD_WS}:{SRD_WS+3}], s{T0} offen sc1")
    a("s_mov_b32 exec_hi, -1")
    if OPT['mega']:
        a(f"s_lshl_b32 s{T0}, s{S_RB}, 7")
        a(f"s_lshl_b32 s{T1}, s{HP}, 2")
        a(f"s_add_u32 s{T0}, s{T0}, s{T1}")
        a(f"s_add_u32 s{T0}, s{T0}, {WS_FLAG + FO}")
        publish(a, T0, t1)
    a.reset_counters()

def stage_final(a, lbl):
    a(f"s_lshr_b32 s{T0}, s{S_X}, 1")
    a(f"s_lshl_b32 s{T0}, s{T0}, 3")
    a(f"s_and_b32 s{T1}, s{S_I}, 7")
    a(f"s_add_u32 s{S_RB}, s{T0}, s{T1}")
    a(f"s_and_b32 s{T0}, s{S_X}, 1")
    a(f"s_lshl_b32 s{T0}, s{T0}, 2")
    a(f"s_lshr_b32 s{T1}, s{S_I}, 3")
    a(f"s_add_u32 s{S_CJ}, s{T0}, s{T1}")
    srd(a, SRD_A, P_B2, SIZES['B2'])
    srd(a, SRD_B, P_OUT, SIZES['OUT'])
    VW, VA, VB, VT = 2, 3, 4, 6
    t0, t1, t2, t3 = VT, VT+1, VT+2, VT+3
    VG, VO, VF = 10, 11, 12
    AS = [20, 40, 60]
    ACB, ACA = 80, 100
    TR = 120; NT = 28; TD = 20
    NSTEP = 74; HS = 54
    PAIR = 10240; NSL = 7
    NP = NSTEP // 2
    if OPT['mega']:
        a(f"v_lshlrev_b32 v{t2}, 2, v1")
        a(f"v_add_u32 v{t2}, {WS_FLAG + FW}, v{t2}")
        a(f"s_mov_b32 s{T4}, -1")
        a(f"s_mov_b32 s{T4+1}, 0xffff")
        wait_flags(a, t2, t3, T4)
    a(f"v_lshlrev_b32 v{VW}, 4, v1")
    a(f"s_mul_i32 s{T0}, s{S_CJ}, {WF_TILE}")
    a(f"s_mul_i32 s{T6}, s{S_W}, 2560")
    a(f"s_add_u32 s{T0}, s{T0}, s{T6}")
    a(f"s_add_u32 s{T7}, s{T0}, {WS_WF}")
    def dma_w(p):
        a(f"s_add_u32 m0, s{T6}, {(p % NSL)*PAIR}")
        a(f"s_add_u32 s{S_KW}, s{T7}, {p*PAIR}")
        a(f"buffer_load_dwordx4 v{VW}, s[{SRD_WS}:{SRD_WS+3}], s{S_KW} offen sc1 lds", tag=('W', p))
        a(f"buffer_load_dwordx4 v{VW}, s[{SRD_WS}:{SRD_WS+3}], s{S_KW} offen offset:1024 sc1 lds", tag=('W', p))
        a("s_mov_b32 exec_hi, 0")
        a(f"buffer_load_dwordx4 v{VW}, s[{SRD_WS}:{SRD_WS+3}], s{S_KW} offen offset:2048 sc1 lds", tag=('W', p))
        a("s_mov_b32 exec_hi, -1")
    for p in range(NSL - 1): dma_w(p)
    if OPT['mega'] and OPT['pf_wf']:
        nl = (WF_TILE - (NSL-1)*PAIR) // 128
        per = (nl + 7) // 8
        a(f"s_and_b32 s{T0}, s{S_I}, 7")
        a(f"s_mul_i32 s{T0}, s{T0}, {per*128}")
        a(f"s_mul_i32 s{T1}, s{S_CJ}, {WF_TILE}")
        a(f"s_add_u32 s{T0}, s{T0}, s{T1}")
        a(f"s_add_u32 s{T0}, s{T0}, {WS_WF + (NSL-1)*PAIR}")
        a(f"v_lshlrev_b32 v{t2}, 7, v0")
        a(f"v_add_u32 v{t2}, s{T0}, v{t2}")
        a(f"v_mov_b32 v{t3}, 0x7ffffff0")
        a(f"s_movk_i32 s{T1}, {per}")
        for k in range((per + 255) // 256):
            a(f"v_add_u32 v{t1}, {256*k}, v0")
            a(f"v_cmp_gt_u32 s[{T4}:{T4+1}], s{T1}, v{t1}")
            a(f"v_cndmask_b32 v{t1}, v{t3}, v{t2}, s[{T4}:{T4+1}]")
            a(f"buffer_load_dword v14, v{t1}, s[{SRD_WS}:{SRD_WS+3}], 0 offen sc1", tag='touch')
            a(f"v_add_u32 v{t2}, {256*128}, v{t2}")
    a(f"v_lshrrev_b32 v{t0}, 4, v1")
    a(f"v_lshlrev_b32 v{t1}, 3, v{t0}")
    a(f"s_mul_i32 s{T0}, s{S_CJ}, 160")
    a(f"v_add_u32 v{t1}, s{T0}, v{t1}")
    for F in range(5):
        a(f"buffer_load_dwordx2 {vr(AS[0]+2*F,2)}, v{t1}, s[{SRD_A}:{SRD_A+3}], 0 offen offset:{32*F}", tag='bias')
    if OPT['mega']:
        a(f"s_lshr_b32 s{T0}, s{S_RB}, 1")
        a(f"s_lshl_b32 s{T0}, s{T0}, 7")
        a(f"s_add_u32 s{T1}, s{T0}, {WS_FLAG + FH}")
        a(f"v_lshlrev_b32 v{t2}, 2, v1")
        a(f"v_add_u32 v{t2}, s{T1}, v{t2}")
        a(f"s_mov_b64 s[{T4}:{T4+1}], 0x3fff")
        a(f"s_add_u32 s{T1}, s{T0}, {WS_FLAG + FO}")
        a(f"v_and_b32 v{VF}, 15, v1")
        a(f"v_lshlrev_b32 v{VF}, 2, v{VF}")
        a(f"v_add_u32 v{VF}, s{T1}, v{VF}")
        vm = list(a.vm)
        wait_flags(a, t2, t3, T4)
        a.vm = vm
        if OPT.get('fine'): mark(a)
    a(f"v_lshrrev_b32 v{t1}, 5, v1")
    a(f"v_bfe_u32 v{t2}, v1, 4, 1")
    a(f"v_lshlrev_b32 v{t1}, 10, v{t1}")
    a(f"v_lshl_add_u32 v{t1}, v{t2}, 9, v{t1}")
    a(f"v_and_b32 v{t2}, 15, v1")
    a(f"s_and_b32 s{T0}, s{S_W}, 1")
    a(f"s_lshl_b32 s{T0}, s{T0}, 4")
    a(f"v_add_u32 v{t3}, s{T0}, v{t2}")
    a(f"v_lshl_add_u32 v{VB}, v{t3}, 4, v{t1}")
    a(f"s_lshl_b32 s{T0}, s{S_RB}, 1")
    a(f"s_lshr_b32 s{T1}, s{S_W}, 1")
    a(f"s_add_u32 s{T0}, s{T0}, s{T1}")
    S_HB, S_OB = 62, 63
    a(f"s_mul_i32 s{T1}, s{T0}, {108*1024}")
    a(f"s_add_u32 s{S_HB}, s{T1}, {WS_H}")
    a(f"s_mul_i32 s{T1}, s{T0}, {40*1024}")
    a(f"s_add_u32 s{S_OB}, s{T1}, {WS_O}")
    def ld_t(s):
        if s < HS: sb, k = S_HB, s
        else: sb, k = S_OB, s - HS
        if k % 2 == 0 and k > 0:
            a(f"s_add_u32 s{sb}, s{sb}, 4096")
        a(f"buffer_load_dwordx4 {vr(TR+4*(s % NT),4)}, v{VB}, s[{SRD_WS}:{SRD_WS+3}], s{sb} offen offset:{(k % 2)*2048} sc1", tag=('T', s))
    for s in range(TD): ld_t(s)
    a(f"s_lshl_b32 s{T0}, s{S_RB}, 6")
    a(f"s_lshl_b32 s{T1}, s{S_W}, 4")
    a(f"s_add_u32 s{T0}, s{T0}, s{T1}")
    a(f"v_add_u32 v{t2}, s{T0}, v{t2}")
    a(f"v_lshlrev_b32 v{t3}, 2, v{t2}")
    a(f"v_add_u32 v{t3}, {WS_G}, v{t3}")
    a(f"buffer_load_dword v{VG}, v{t3}, s[{SRD_WS}:{SRD_WS+3}], 0 offen sc1", tag='g')
    a(f"s_movk_i32 s{T1}, 1280")
    a(f"v_mul_lo_u32 v{t2}, v{t2}, s{T1}")
    a(f"s_mul_i32 s{T0}, s{S_CJ}, 160")
    a(f"v_lshl_add_u32 v{t2}, v{t0}, 3, v{t2}")
    a(f"v_add_u32 v{VO}, s{T0}, v{t2}")
    a(f"v_lshrrev_b32 v{t1}, 5, v1")
    a(f"v_bfe_u32 v{t2}, v1, 4, 1")
    a(f"v_lshlrev_b32 v{t1}, 4, v{t1}")
    a(f"v_lshl_add_u32 v{t1}, v{t2}, 2, v{t1}")
    a(f"v_bfe_u32 v{t2}, v1, 2, 2")
    a(f"v_add_u32 v{t1}, v{t1}, v{t2}")
    a(f"v_mul_u32_u24 v{t1}, 160, v{t1}")
    a(f"v_and_b32 v{t2}, 3, v1")
    a(f"v_lshl_add_u32 v{VA}, v{t2}, 3, v{t1}")
    VA2 = 5
    a(f"v_add_u32 v{VA2}, {4*PAIR}, v{VA}")
    a.wait_vm('bias')
    for F in range(5):
        s_ = AS[0] + 2*F; d = ACB + 4*F
        a(f"v_lshlrev_b32 v{d}, 16, v{s_}")
        a(f"v_and_b32 v{d+1}, 0xffff0000, v{s_}")
        a(f"v_lshlrev_b32 v{d+2}, 16, v{s_+1}")
        a(f"v_and_b32 v{d+3}, 0xffff0000, v{s_+1}")
    def rd_a(s, F, rd):
        p = s >> 1; u = s & 1
        sl = p % NSL
        base, off = (VA, sl*PAIR) if sl < 4 else (VA2, (sl-4)*PAIR)
        a(f"ds_read_b64_tr_b16 {vr(AS[s % 3]+4*F+2*rd,2)}, v{base} offset:{off + u*5120 + rd*1280 + F*32}", tag=('A', s, F))
    a.wait_vm(('W', 0))
    a("s_barrier")
    for s in range(2):
        for F in range(5):
            rd_a(s, F, 0); rd_a(s, F, 1)
    mark(a)
    POLL = HS - TD - 6
    for s in range(NSTEP):
        p = s >> 1; u = s & 1
        if s == HS: mark(a)
        if u == 0 and p + 1 < NP:
            a.wait_vm(('W', p + 1))
            a("s_barrier")
            if p + NSL - 1 < NP: dma_w(p + NSL - 1)
        if OPT['mega'] and s == POLL:
            a(f"buffer_load_dword v{VF+1}, v{VF}, s[{SRD_WS}:{SRD_WS+3}], 0 offen sc1", tag='fo')
        if OPT['mega'] and s + TD == HS:
            L = uid("fo")
            a.wait_vm('fo')
            vm_keep = list(a.vm)
            a.label(L)
            a(f"v_cmp_ne_u32 vcc, s{S_NONCE}, v{VF+1}")
            a("s_nop 4")
            a(f"s_cbranch_vccz {L}_ok")
            a("s_sleep 1")
            a(f"buffer_load_dword v{VF+1}, v{VF}, s[{SRD_WS}:{SRD_WS+3}], 0 offen sc1")
            a("s_waitcnt vmcnt(0)")
            a(f"s_branch {L}")
            a.label(f"{L}_ok")
            a.vm = vm_keep
        a.wait_vm(('T', s))
        for F in range(5):
            a.wait_lg(('A', s, F))
            acc = (ACB if s < HS else ACA) + 4*F
            d = vr(acc, 4)
            c = "0" if s == HS else d
            a(f"v_mfma_f32_16x16x32_bf16 {d}, {vr(AS[s % 3]+4*F,4)}, {vr(TR+4*(s % NT),4)}, {c}")
            if s + 2 < NSTEP:
                rd_a(s + 2, F, 0); rd_a(s + 2, F, 1)
            if F == 2 and s + TD < NSTEP:
                ld_t(s + TD)
    mark(a)
    a.wait_vm('g')
    a(f"v_sub_f32 v{t0}, 1.0, v{VG}")
    for r in range(20):
        a(f"v_mul_f32 v{ACB+r}, v{ACB+r}, v{t0}")
    for r in range(20):
        a(f"v_fmac_f32 v{ACB+r}, v{ACA+r}, v{VG}")
    for F in range(5):
        d = AS[0] + 2*F
        a(f"v_cvt_pk_bf16_f32 v{d}, v{ACB+4*F}, v{ACB+4*F+1}")
        a(f"v_cvt_pk_bf16_f32 v{d+1}, v{ACB+4*F+2}, v{ACB+4*F+3}")
        a(f"buffer_store_dwordx2 {vr(d,2)}, v{VO}, s[{SRD_B}:{SRD_B+3}], 0 offen offset:{32*F}")
    a.reset_counters()

def start_prefetch(a, role):
    if OPT['pf_code']:
        prefetch_code(a, "L_endA" if role == 'A' else "L_endB", 1 if role == 'A' else 2)
    if role == 'B' and OPT['pf_w1']:
        L = uid("pw")
        a(f"s_lshr_b32 s{T1}, s{S_I}, 2")
        a(f"s_cmp_ge_u32 s{T1}, 7")
        a(f"s_cbranch_scc1 {L}")
        a(f"s_and_b32 s{T0}, s{S_X}, 1")
        a(f"s_mul_i32 s{T0}, s{T0}, 7")
        a(f"s_add_u32 s{T0}, s{T0}, s{T1}")
        a(f"s_lshl_b32 s{T0}, s{T0}, 8")
        a(f"s_and_b32 s{T1}, s{S_I}, 3")
        a(f"s_mul_i32 s{T1}, s{T1}, {160*3456}")
        a(f"s_add_u32 s{T0}, s{T0}, s{T1}")
        srd(a, SRD_C, P_W1, SIZES['W1'])
        a("v_lshrrev_b32 v250, 1, v0")
        a(f"s_movk_i32 s{T1}, 3456")
        a(f"v_mul_lo_u32 v250, v250, s{T1}")
        a("v_and_b32 v251, 1, v0")
        a("v_lshl_add_u32 v250, v251, 7, v250")
        a(f"v_add_u32 v250, s{T0}, v250")
        vm = list(a.vm)
        a(f"buffer_load_dword v253, v250, s[{SRD_C}:{SRD_C+3}], 0 offen")
        a(f"v_add_u32 v250, {128*3456}, v250")
        a("v_mov_b32 v251, 0x7ffffff0")
        a(f"v_cmp_gt_u32 s[{T4}:{T4+1}], 64, v0")
        a(f"v_cndmask_b32 v250, v251, v250, s[{T4}:{T4+1}]")
        a(f"buffer_load_dword v253, v250, s[{SRD_C}:{SRD_C+3}], 0 offen")
        a.vm = vm
        a.label(L)

def build_multi():
    LDS = 73728
    ks = []
    def mk(name, fa, fb):
        a = Asm()
        a("s_cmp_ge_u32 s2, 512")
        a(f"s_cbranch_scc1 {name}_end")
        prologue(a)
        kidx = len(ks)
        stamp(a, kidx, 0)
        CTX['k'] = kidx; CTX['slot'] = 0
        a("s_cmp_ge_u32 s2, 256")
        a(f"s_cbranch_scc1 {name}_b")
        for n, f in enumerate(fa):
            f(a, name + "_" + f.__name__)
            if STAMPS: a("s_waitcnt vmcnt(0)"); mark(a)
        a(f"s_branch {name}_end")
        a.label(f"{name}_b")
        a.reset_counters()
        CTX['slot'] = 0
        for n, f in enumerate(fb):
            f(a, name + "_" + f.__name__)
            if STAMPS: a("s_waitcnt vmcnt(0)"); mark(a)
        a.label(f"{name}_end")
        ks.append((name, a.text()))
    def rp_multi(a, lbl):
        a(f"s_cmp_ge_u32 s{S_IDX}, {NRP}")
        a(f"s_cbranch_scc1 {lbl}_no")
        a(f"s_mov_b32 s{S_KO}, s{S_IDX}")
        stage_repack(a, lbl, S_KO)
        a.label(f"{lbl}_no")
    if OPT.get('split'):
        mk("k1_kernel", [stage_qkv], [])
        mk("k2_kernel", [], [stage_ln, rp_multi])
        mk("k3_kernel", [stage_attn], [])
        mk("k4_kernel", [], [stage_ffn1])
        mk("k5_kernel", [], [stage_final])
        return ks, LDS
    mk("k1_kernel", [stage_qkv], [stage_ln, rp_multi])
    mk("k2_kernel", [stage_attn], [stage_ffn1])
    mk("k3_kernel", [], [stage_final])
    return ks, LDS

def build_mega():
    OPT['mega'] = True
    LDS = OPT.get('lds', 73728)
    name = NAME + "_kernel"
    a = Asm()
    a("s_cmp_ge_u32 s2, 512")
    a("s_cbranch_scc1 L_end")
    prologue(a)
    nonce_post(a)
    stamp(a, 0, 0); CTX['k'] = 0; CTX['slot'] = 0
    if STAMPS:
        a("s_getreg_b32 s98, hwreg(HW_REG_HW_ID)")
        a("s_getreg_b32 s99, hwreg(HW_REG_XCC_ID)")
        a("s_and_b32 s98, s98, 0xffff")
        a("s_and_b32 s99, s99, 0xf")
        a("s_lshl_b32 s99, s99, 16")
        a("s_or_b32 s98, s98, s99")
        a("s_lshl_b32 s97, s2, 7")
        a(f"s_add_u32 s97, s97, {WS_STAMP + 15*4}")
        a("v_mov_b32 v254, s98")
        a(f"buffer_store_dword v254, off, s[{SRD_WS}:{SRD_WS+3}], s97")
        a.vm.pop()
    dbgtime(a, 1, OPT.get('wa', 0)); dbgtime(a, 7, OPT.get('wb', 256))
    a("s_cmp_ge_u32 s2, 256")
    a("s_cbranch_scc1 L_roleB")
    if OPT.get('prioA'): a(f"s_setprio {OPT['prioA']}")
    stage_qkv(a, "qkv"); mark(a); dbgtime(a, 2, OPT.get('wa', 0))
    if OPT.get('prioA'): a(f"s_setprio {OPT.get('prioA2', 0)}")
    stage_attn(a, "attn"); mark(a); dbgtime(a, 3, OPT.get('wa', 0))
    a("s_endpgm")
    a.label("L_endA")
    a.label("L_roleB")
    a.reset_counters(); CTX['slot'] = 0
    if OPT.get('prioB'): a(f"s_setprio {OPT['prioB']}")
    stage_ln(a, "ln"); mark(a); dbgtime(a, 8, OPT.get('wb', 256))
    stage_ffn1(a, "ffn1"); mark(a); dbgtime(a, 10, OPT.get('wb', 256))
    stage_final(a, "fin")
    if STAMPS or OPT.get('dbgtime'): a("s_waitcnt vmcnt(0)")
    mark(a); dbgtime(a, 11, OPT.get('wb', 256))
    a.label("L_endB")
    a.label("L_end")
    return [(name, a.text())], LDS

def header_comment():
    ref = open("cdna_kernels/" + NAME + ".s.ref").read().split("\n")
    return [l for l in ref if l.startswith(";") and "@launch" not in l and "Override" not in l and "grid=ceil" not in l]

def emit(ks, LDS, grid=512):
    s = "\n".join(header_comment()) + "\n"
    if len(ks) == 1:
        s += f"; @launch grid=({grid},1,1) block=(256,1,1) lds={LDS}\n"
    else:
        for name, _ in ks:
            s += f"; @launch kernel={name} grid=({grid},1,1) block=(256,1,1) lds={LDS}\n"
    s += '.amdgcn_target "amdgcn-amd-amdhsa--gfx950"\n.text\n'
    for name, body in ks:
        s += kernel_text(name, body, grid, LDS)
    s += '.section .rodata,"a"\n'
    for name, _ in ks:
        s += ".p2align 6\n" + descriptor(name)
    return s

if __name__ == "__main__":
    mode = sys.argv[1] if len(sys.argv) > 1 else "multi"
    if "stamps" in sys.argv: STAMPS = True
    for arg in sys.argv[2:]:
        if "=" in arg:
            k, v = arg.split("="); OPT[k] = int(v)
    ks, LDS = build_multi() if mode == "multi" else build_mega()
    sys.stdout.write(emit(ks, LDS))
```

```python
import sys
from asmlib import Asm

NAME = "gated_mix__sliding_block__mixer_channel_mlp__prompt"

WS_Y    = 0x0000000
WS_G    = 0x0280000
WS_QKV  = 0x0300000
WS_H    = 0x0B00000
WS_O    = 0x1200000
WS_WF   = 0x1500000
WS_FLAG = 0x1800000
WS_STAMP = 0x1900000
WS_SIZE = 0x1A00000
WF_TILE = 2368 * 160
FY, FW, FQ, FH, FO = 0, 2048, 3072, 5120, 7168
OPT = dict(mega=False, rot=True, pf_code=True, pf_w1=True, pf_wf=True, tlb=True)

P_AX, P_WQKV, P_WO, P_BX, P_W1, P_B1, P_W2, P_B2 = 4, 6, 8, 10, 12, 14, 16, 18
P_GW, P_OUT, P_DBG, P_WS = 20, 22, 24, 26
SRD_A, SRD_B, SRD_WS, SRD_C = 28, 32, 36, 40
S_W, S_IDX, S_X, S_I = 44, 45, 46, 47
T0, T1, T2, T3, T4, T5, T6, T7 = 48, 49, 50, 51, 52, 53, 54, 55
S_RB, S_CJ = 56, 57
S_KX, S_KW, S_M0 = 58, 59, 60
S_MASK = 64
S_NONCE = 96
S_KO = 62

SIZES = dict(AX=2048*640*2, WQKV=640*1920*2, WO=640*640*2, BX=2048*640*2, W1=640*1728*2, B1=1728*2,
             W2=1728*640*2, B2=640*2, GW=640*2, OUT=2048*640*2)

def srd(a, dst, ptr, size):
    a(f"s_mov_b32 s{dst}, s{ptr}")
    a(f"s_and_b32 s{dst+1}, s{ptr+1}, 0xffff")
    a(f"s_mov_b32 s{dst+2}, {size}")
    a(f"s_mov_b32 s{dst+3}, 0x20000")

def vr(b, n=1):
    return f"v{b}" if n == 1 else f"v[{b}:{b+n-1}]"

def prologue(a):
    a("s_load_dwordx16 s[4:19], s[0:1], 0")
    a("s_load_dwordx8 s[20:27], s[0:1], 64")
    a("v_lshrrev_b32 v2, 6, v0")
    a("v_and_b32 v1, 63, v0")
    a(f"v_readfirstlane_b32 s{S_W}, v2")
    a(f"s_and_b32 s{S_IDX}, s2, 255")
    if OPT.get('xperm'):
        a(f"s_add_u32 s{S_X}, s2, {OPT['xperm']}")
        a(f"s_and_b32 s{S_X}, s{S_X}, 7")
    else:
        a(f"s_and_b32 s{S_X}, s2, 7")
    a(f"s_lshr_b32 s{S_I}, s{S_IDX}, 3")
    a("s_waitcnt lgkmcnt(0)")
    srd(a, SRD_WS, P_WS, WS_SIZE)


_uid = [0]
def uid(p):
    _uid[0] += 1
    return f"{p}_{_uid[0]}"

def nonce_post(a):
    L = uid("np")
    a(f"s_or_b32 s{T0}, s2, s{S_W}")
    a(f"s_cmp_lg_u32 s{T0}, 0")
    a(f"s_cbranch_scc1 {L}")
    a(f"s_memrealtime s[{T4}:{T4+1}]")
    a("s_waitcnt lgkmcnt(0)")
    a(f"s_or_b32 s{T4}, s{T4}, 1")
    a(f"v_mov_b32 v2, s{T4}")
    a("v_mov_b32 v3, 0")
    a("s_mov_b64 exec, 1")
    a(f"global_store_dword v3, v2, s[{P_DBG}:{P_DBG+1}] sc1")
    a("s_mov_b64 exec, -1")
    a.vm.pop()
    a.label(L)

def nonce_load(a, v):
    a(f"v_mov_b32 v{v+1}, 0")
    a(f"global_load_dword v{v}, v{v+1}, s[{P_DBG}:{P_DBG+1}] sc1", tag='nonce')

def nonce_get(a, v):
    L = uid("ng")
    a.wait_vm('nonce')
    a.label(L)
    a(f"v_readfirstlane_b32 s{S_NONCE}, v{v}")
    a(f"s_cmp_lg_u32 s{S_NONCE}, 0")
    a(f"s_cbranch_scc1 {L}_ok")
    a("s_sleep 2")
    a(f"global_load_dword v{v}, v{v+1}, s[{P_DBG}:{P_DBG+1}] sc1")
    a("s_waitcnt vmcnt(0)")
    a(f"s_branch {L}")
    a.label(f"{L}_ok")

def publish(a, sflag, v):
    L = uid("pub")
    a("s_waitcnt vmcnt(0)")
    a("s_barrier")
    a(f"s_cmp_lg_u32 s{S_W}, 0")
    a(f"s_cbranch_scc1 {L}")
    a(f"v_mov_b32 v{v}, s{S_NONCE}")
    a("s_mov_b64 exec, 1")
    a(f"buffer_store_dword v{v}, off, s[{SRD_WS}:{SRD_WS+3}], s{sflag} sc1")
    a("s_mov_b64 exec, -1")
    a.label(L)
    a.reset_counters()

def wait_flags(a, voff, vtmp, smask):
    L = uid("wf")
    a(f"s_cmp_lg_u32 s{S_W}, 0")
    a(f"s_cbranch_scc1 {L}_done")
    a(f"s_mov_b64 exec, s[{smask}:{smask+1}]")
    a.label(L)
    a(f"buffer_load_dword v{vtmp}, v{voff}, s[{SRD_WS}:{SRD_WS+3}], 0 offen sc1")
    a("s_waitcnt vmcnt(0)")
    a(f"v_cmp_ne_u32 vcc, s{S_NONCE}, v{vtmp}")
    a("s_nop 4")
    a(f"s_cbranch_vccz {L}_ok")
    a("s_sleep 1")
    a(f"s_branch {L}")
    a.label(f"{L}_ok")
    a("s_mov_b64 exec, -1")
    a.label(f"{L}_done")
    a("s_barrier")
    a.reset_counters()

def touch_lines(a, srd_, vbase, n, stride, dst, soff='0', sc=''):
    for k in range(n):
        a(f"buffer_load_dword v{dst}, v{vbase}, s[{srd_}:{srd_+3}], {soff} offen {sc}".rstrip(), tag='touch')
        if k + 1 < n: a(f"v_add_u32 v{vbase}, {stride}, v{vbase}")

def prefetch_code(a, lbl_end, per):
    L = uid("pc")
    a(f"s_getpc_b64 s[{T4}:{T4+1}]")
    a.label(L)
    a(f"s_mul_i32 s{T0}, s{S_W}, {per*8192}")
    a("v_lshlrev_b32 v252, 7, v1")
    a(f"v_add_u32 v252, s{T0}, v252")
    for k in range(per):
        a(f"v_min_u32 v251, {lbl_end}-{L}-4, v252")
        a(f"global_load_dword v253, v251, s[{T4}:{T4+1}]", tag='touch')
        if k + 1 < per: a("v_add_u32 v252, 8192, v252")

def stage_qkv(a, lbl):
    XS = [0, 16384, 32768]
    WB = 49152
    a(f"s_lshr_b32 s{T0}, s{S_X}, 1")
    a(f"s_lshl_b32 s{T0}, s{T0}, 2")
    a(f"s_and_b32 s{T1}, s{S_I}, 3")
    a(f"s_add_u32 s{S_RB}, s{T0}, s{T1}")
    a(f"s_and_b32 s{T0}, s{S_X}, 1")
    a(f"s_lshl_b32 s{T0}, s{T0}, 3")
    a(f"s_lshr_b32 s{T1}, s{S_I}, 2")
    a(f"s_add_u32 s{S_CJ}, s{T0}, s{T1}")
    a(f"s_cmp_ge_u32 s{S_CJ}, 15")
    a(f"s_cbranch_scc1 {lbl}_skip")
    srd(a, SRD_A, P_AX, SIZES['AX'])
    srd(a, SRD_B, P_WQKV, SIZES['WQKV'])
    VXD, VWD = 2, 6
    VXF, VWF = 8, 12
    VT = 14
    FB = [20, 36]
    ACC = 64
    t0, t1, t2, t3 = VT, VT+1, VT+2, VT+3
    a(f"s_lshl_b32 s{T0}, s{S_RB}, 7")
    a(f"s_lshl_b32 s{T1}, s{S_W}, 5")
    a(f"s_add_u32 s{T0}, s{T0}, s{T1}")
    a(f"v_lshrrev_b32 v{t0}, 3, v1")
    a(f"v_add_u32 v{t0}, s{T0}, v{t0}")
    a(f"s_movk_i32 s{T2}, 1280")
    a(f"v_mul_lo_u32 v{t0}, v{t0}, s{T2}")
    a(f"v_lshrrev_b32 v{t1}, 4, v1")
    a(f"v_and_b32 v{t2}, 7, v1")
    a(f"v_xor_b32 v{t2}, v{t2}, v{t1}")
    a(f"v_xor_b32 v{t3}, 4, v{t2}")
    for i in range(4):
        src = t2 if i % 2 == 0 else t3
        a(f"v_lshl_add_u32 v{VXD+i}, v{src}, 4, v{t0}")
        if i:
            a(f"v_add_u32 v{VXD+i}, {i*(8*1280-1024)}, v{VXD+i}")
    a(f"s_lshl_b32 s{T0}, s{S_W}, 3")
    a(f"v_lshrrev_b32 v{t0}, 4, v1")
    a(f"v_add_u32 v{t1}, s{T0}, v{t0}")
    a(f"s_movk_i32 s{T2}, 3840")
    a(f"v_mul_lo_u32 v{t1}, v{t1}, s{T2}")
    a(f"v_bfe_u32 v{t2}, v1, 2, 2")
    a(f"v_xor_b32 v{t2}, v{t2}, v{t0}")
    a(f"v_and_b32 v{t3}, 3, v1")
    a(f"v_lshl_add_u32 v{t2}, v{t2}, 2, v{t3}")
    a(f"v_lshl_add_u32 v{t1}, v{t2}, 4, v{t1}")
    a(f"s_lshl_b32 s{T0}, s{S_CJ}, 8")
    a(f"v_add_u32 v{VWD}, s{T0}, v{t1}")
    a(f"v_add_u32 v{VWD+1}, {4*3840-1024}, v{VWD}")
    a(f"s_lshl_b32 s{T6}, s{S_W}, 12")
    a(f"s_lshl_b32 s{T7}, s{S_W}, 11")
    if OPT['rot']:
        a(f"s_and_b32 s{T0}, s{S_I}, 3")
        a(f"s_mul_i32 s{T0}, s{T0}, 10")
        a(f"s_lshr_b32 s{T1}, s{S_I}, 2")
        a(f"s_mul_i32 s{T1}, s{T1}, 5")
        a(f"s_add_u32 s{T0}, s{T0}, s{T1}")
        a(f"s_lshr_b32 s{T0}, s{T0}, 2")
        a(f"s_sub_u32 s{T1}, s{T0}, 10")
        a(f"s_cmp_ge_u32 s{T0}, 10")
        a(f"s_cselect_b32 s{T0}, s{T1}, s{T0}")
        a(f"s_lshl_b32 s{S_KX}, s{T0}, 7")
        a(f"s_mul_i32 s{S_KW}, s{T0}, {64*3840}")
    else:
        a(f"s_mov_b32 s{S_KX}, 0")
        a(f"s_mov_b32 s{S_KW}, 0")
    def adv(sreg, step, wrap):
        if OPT.get('hot'): return
        a(f"s_add_u32 s{sreg}, s{sreg}, {step}")
        a(f"s_cmp_eq_u32 s{sreg}, {wrap}")
        a(f"s_cselect_b32 s{sreg}, 0, s{sreg}")
    def dma_x(b):
        a(f"s_add_u32 m0, s{T6}, {XS[b % 3]}")
        if b > 0: adv(S_KX, 128, 1280)
        for i in range(4):
            a(f"buffer_load_dwordx4 v{VXD+i}, s[{SRD_A}:{SRD_A+3}], s{S_KX} offen offset:{i*1024} lds", tag=('X', b))
    def dma_w(h):
        a(f"s_add_u32 m0, s{T7}, {WB + (h % 3)*8192}")
        if h > 0: adv(S_KW, 32*3840, 640*3840)
        for i in range(2):
            a(f"buffer_load_dwordx4 v{VWD+i}, s[{SRD_B}:{SRD_B+3}], s{S_KW} offen offset:{i*1024} lds", tag=('W', h))
    dma_x(0); dma_w(0); dma_w(1); dma_x(1)
    if OPT['mega']: start_prefetch(a, 'A')
    a(f"s_and_b32 s{T0}, s{S_W}, 1")
    a(f"s_lshl_b32 s{T0}, s{T0}, 13")
    a(f"v_and_b32 v{t0}, 31, v1")
    a(f"v_lshrrev_b32 v{t1}, 5, v1")
    a(f"v_bfe_u32 v{t2}, v1, 1, 3")
    a(f"v_lshlrev_b32 v{t0}, 7, v{t0}")
    a(f"v_add_u32 v{t0}, s{T0}, v{t0}")
    for s in range(4):
        a(f"v_or_b32 v{t3}, {2*s}, v{t1}")
        a(f"v_xor_b32 v{t3}, v{t3}, v{t2}")
        a(f"v_lshl_add_u32 v{VXF+s}, v{t3}, 4, v{t0}")
    a(f"v_bfe_u32 v{t0}, v1, 2, 2")
    a(f"v_lshl_add_u32 v{t1}, v{t1}, 3, v{t0}")
    a(f"v_lshlrev_b32 v{t1}, 8, v{t1}")
    a(f"v_bfe_u32 v{t2}, v1, 4, 1")
    a(f"v_lshl_add_u32 v{t1}, v{t2}, 5, v{t1}")
    a(f"v_and_b32 v{t2}, 3, v1")
    a(f"v_lshl_add_u32 v{t1}, v{t2}, 3, v{t1}")
    a(f"v_add_u32 v{t1}, {WB}, v{t1}")
    a(f"s_and_b32 s{T0}, s{S_W}, 2")
    for ft in range(2):
        a(f"s_or_b32 s{T1}, s{T0}, {ft}")
        a(f"v_xor_b32 v{t2}, s{T1}, v{t0}")
        a(f"v_lshl_add_u32 v{VWF+ft}, v{t2}, 6, v{t1}")
    def rd_b(st, hh, sp, tt):
        xb = hh >> 1; sx = 2*(hh & 1) + sp
        a(f"ds_read_b128 {vr(FB[st]+4*tt,4)}, v{VXF+sx} offset:{XS[xb % 3] + tt*4096}", tag=('f', hh, sp))
    def rd_a(st, hh, sp, ft, rd):
        a(f"ds_read_b64_tr_b16 {vr(FB[st]+8+4*ft+2*rd,2)}, v{VWF+ft} offset:{(hh % 3)*8192 + sp*4096 + rd*1024}", tag=('f', hh, sp))
    def mf(st, tt, ft, first):
        d = vr(ACC+16*(2*tt+ft), 16)
        c = "0" if first else d
        a(f"v_mfma_f32_32x32x16_bf16 {d}, {vr(FB[st]+8+4*ft,4)}, {vr(FB[st]+4*tt,4)}, {c}")
    NH = 20
    for hh in range(NH):
        if hh == 1: mark(a)
        a.wait_vm([('W', hh), ('X', hh >> 1)])
        a("s_waitcnt lgkmcnt(0)")
        if not OPT.get('nobar'): a("s_barrier")
        prev = hh > 0
        rd_b(0, hh, 0, 0); rd_a(0, hh, 0, 0, 0)
        if prev: mf(1, 0, 0, False)
        rd_a(0, hh, 0, 0, 1); rd_b(0, hh, 0, 1); rd_a(0, hh, 0, 1, 0)
        if prev: mf(1, 1, 0, False)
        rd_a(0, hh, 0, 1, 1)
        if hh + 2 < NH and not OPT.get('nodma'): dma_w(hh + 2)
        if prev: mf(1, 0, 1, False)
        if hh % 2 == 0 and hh // 2 + 2 < 10 and not OPT.get('nodma'): dma_x(hh // 2 + 2)
        if prev: mf(1, 1, 1, False)
        first = hh == 0
        rd_b(1, hh, 1, 0); rd_a(1, hh, 1, 0, 0); rd_a(1, hh, 1, 0, 1)
        a(f"s_waitcnt lgkmcnt(6)")
        mf(0, 0, 0, first)
        rd_b(1, hh, 1, 1); rd_a(1, hh, 1, 1, 0); rd_a(1, hh, 1, 1, 1)
        a(f"s_waitcnt lgkmcnt(6)")
        mf(0, 1, 0, first); mf(0, 0, 1, first); mf(0, 1, 1, first)
    a("s_waitcnt lgkmcnt(0)")
    mf(1, 0, 0, False); mf(1, 1, 0, False); mf(1, 0, 1, False); mf(1, 1, 1, False)
    mark(a)
    a(f"v_lshrrev_b32 v{t0}, 5, v1")
    a(f"s_lshr_b32 s{T0}, s{S_W}, 1")
    a(f"s_lshl_b32 s{T0}, s{T0}, 4")
    a(f"v_add_u32 v{t0}, s{T0}, v{t0}")
    a(f"v_lshlrev_b32 v{t0}, 14, v{t0}")
    a(f"s_and_b32 s{T0}, s{S_W}, 1")
    a(f"s_lshl_b32 s{T0}, s{T0}, 6")
    a(f"v_and_b32 v{t1}, 31, v1")
    a(f"v_add_u32 v{t1}, s{T0}, v{t1}")
    a(f"v_lshl_add_u32 v{t0}, v{t1}, 3, v{t0}")
    a(f"s_lshl_b32 s{T0}, s{S_CJ}, 19")
    a(f"s_lshl_b32 s{T1}, s{S_RB}, 10")
    a(f"s_add_u32 s{T0}, s{T0}, s{T1}")
    a(f"s_add_u32 s{T0}, s{T0}, {WS_QKV}")
    if OPT['mega']: nonce_load(a, 16)
    k = 0
    for ft in range(2):
        for j in range(4):
            a(f"s_add_u32 s{T1}, s{T0}, {(8*ft+2*j)*16384}")
            for tt in range(2):
                base = ACC + 16*(2*tt+ft) + 4*j
                d = FB[0] + 2*(k % 16); k += 1
                a(f"v_cvt_pk_bf16_f32 v{d}, v{base}, v{base+1}")
                a(f"v_cvt_pk_bf16_f32 v{d+1}, v{base+2}, v{base+3}")
                a(f"buffer_store_dwordx2 {vr(d,2)}, v{t0}, s[{SRD_WS}:{SRD_WS+3}], s{T1} offen offset:{tt*256} sc1")
    mark(a)
    if OPT['mega']:
        nonce_get(a, 16)
        a(f"s_lshl_b32 s{T0}, s{S_RB}, 7")
        a(f"s_lshl_b32 s{T1}, s{S_CJ}, 2")
        a(f"s_add_u32 s{T0}, s{T0}, s{T1}")
        a(f"s_add_u32 s{T0}, s{T0}, {WS_FLAG + FQ}")
        publish(a, T0, 16)
        a(f"s_branch {lbl}_end")
    a.label(f"{lbl}_skip")
    if OPT['mega']:
        a.reset_counters()
        a(f"s_lshr_b32 s{S_KO}, s{S_X}, 1")
        a(f"s_lshl_b32 s{S_KO}, s{S_KO}, 2")
        a(f"s_and_b32 s{T0}, s{S_I}, 3")
        a(f"s_add_u32 s{S_KO}, s{S_KO}, s{T0}")
        stage_repack(a, lbl + "_rp", S_KO)
        a.label(f"{lbl}_end")
    a.reset_counters()

STAMPS = False
CTX = dict(k=0, slot=0)
def mark(a):
    if not STAMPS: return
    CTX['slot'] += 1
    stamp(a, CTX['k'], CTX['slot'])
def stamp(a, kidx, slot):
    if not STAMPS: return
    stamp.n = getattr(stamp, 'n', 0) + 1
    L = f"stamp_{stamp.n}"
    a(f"s_cmp_lg_u32 s{S_W}, 0")
    a(f"s_cbranch_scc1 {L}")
    a("s_memrealtime s[98:99]")
    a("s_memtime s[100:101]")
    a("s_waitcnt lgkmcnt(0)")
    a(f"s_lshl_b32 s97, s2, 7")
    a(f"s_add_u32 s97, s97, {WS_STAMP + kidx*(1024*128) + slot*4}")
    a("s_mov_b64 exec, 1")
    a("v_mov_b32 v254, s98")
    a("v_mov_b32 v255, s100")
    vm = list(a.vm)
    a(f"buffer_store_dword v254, off, s[{SRD_WS}:{SRD_WS+3}], s97")
    a(f"buffer_store_dword v255, off, s[{SRD_WS}:{SRD_WS+3}], s97 offset:64")
    a("s_mov_b64 exec, -1")
    a.vm = vm
    a.label(L)

def dbgtime(a, slot, wg):
    if not OPT.get('dbgtime'): return
    L = uid("dt")
    a(f"s_cmp_lg_u32 s{S_W}, 0")
    a(f"s_cbranch_scc1 {L}")
    a(f"s_cmp_lg_u32 s2, {wg}")
    a(f"s_cbranch_scc1 {L}")
    a("s_memrealtime s[98:99]")
    a("s_waitcnt lgkmcnt(0)")
    a("s_mov_b64 exec, 1")
    a("v_mov_b32 v254, s98")
    a(f"v_mov_b32 v255, {slot*4}")
    vm = list(a.vm)
    a(f"global_store_dword v255, v254, s[{P_DBG}:{P_DBG+1}]")
    a("s_mov_b64 exec, -1")
    a.vm = vm
    a.label(L)

def kernel_text(name, body, grid, lds):
    s  = f".globl {name}\n.p2align 8\n.type {name},@function\n{name}:\n"
    s += body
    s += "    s_endpgm\n"
    return s

def descriptor(name, vgpr=256):
    return f""".amdhsa_kernel {name}
  .amdhsa_next_free_vgpr {vgpr}
  .amdhsa_next_free_sgpr 102
  .amdhsa_accum_offset {vgpr}
  .amdhsa_group_segment_fixed_size 0
  .amdhsa_kernarg_size 96
  .amdhsa_user_sgpr_count 2
  .amdhsa_user_sgpr_kernarg_segment_ptr 1
  .amdhsa_system_sgpr_workgroup_id_x 1
.end_amdhsa_kernel
"""

def dpp_sum16(a, v):
    for r in (8, 4, 2, 1):
        a(f"v_add_f32_dpp v{v}, v{v}, v{v} row_ror:{r} row_mask:0xf bank_mask:0xf")

def stage_ln(a, lbl):
    VO, VT = 2, 4
    X, F = 20, 40
    t0, t1, t2, t3, t4 = VT, VT+1, VT+2, VT+3, VT+4
    a(f"s_and_b32 s{T0}, s{S_W}, 1")
    a(f"s_lshl_b32 s{T0}, s{T0}, 2")
    a(f"s_lshl_b32 s{T1}, s{S_IDX}, 3")
    a(f"s_add_u32 s{T0}, s{T0}, s{T1}")
    a(f"v_lshrrev_b32 v{t0}, 4, v1")
    a(f"v_add_u32 v{t0}, s{T0}, v{t0}")
    a(f"v_and_b32 v{t1}, 15, v1")
    a(f"s_movk_i32 s{T2}, 1280")
    a(f"v_mul_lo_u32 v{VO}, v{t0}, s{T2}")
    a(f"v_lshl_add_u32 v{VO}, v{t1}, 4, v{VO}")
    a(f"s_cmp_ge_u32 s{S_W}, 2")
    a(f"s_cbranch_scc1 {lbl}_gate")
    srd(a, SRD_A, P_AX, SIZES['AX'])
    for i in range(5):
        a(f"buffer_load_dwordx4 {vr(X+4*i,4)}, v{VO}, s[{SRD_A}:{SRD_A+3}], 0 offen offset:{256*i}", tag='lnx')
    if OPT['mega']: start_prefetch(a, 'B')
    a(f"v_lshrrev_b32 v{t2}, 5, v{t0}")
    a(f"v_mul_u32_u24 v{t2}, 40, v{t2}")
    a(f"v_lshrrev_b32 v{t3}, 1, v{t1}")
    a(f"v_add_u32 v{t2}, v{t2}, v{t3}")
    a(f"v_lshlrev_b32 v{t2}, 10, v{t2}")
    a(f"v_and_b32 v{t3}, 1, v{t1}")
    a(f"v_lshl_add_u32 v{t2}, v{t3}, 9, v{t2}")
    a(f"v_and_b32 v{t3}, 31, v{t0}")
    a(f"v_lshl_add_u32 v{VO+1}, v{t3}, 4, v{t2}")
    a.wait_vm('lnx')
    for d in range(20):
        a(f"v_lshlrev_b32 v{F+2*d}, 16, v{X+d}")
        a(f"v_and_b32 v{F+2*d+1}, 0xffff0000, v{X+d}")
    for k in range(4):
        a(f"v_add_f32 v{t0+k}, v{F+k}, v{F+4+k}")
    for d in range(8, 40):
        a(f"v_add_f32 v{t0+(d%4)}, v{t0+(d%4)}, v{F+d}")
    a(f"v_add_f32 v{t0}, v{t0}, v{t1}")
    a(f"v_add_f32 v{t2}, v{t2}, v{t3}")
    a(f"v_add_f32 v{t0}, v{t0}, v{t2}")
    dpp_sum16(a, t0)
    a(f"v_mul_f32 v{t0}, 0x3acccccd, v{t0}")
    for d in range(40):
        a(f"v_sub_f32 v{F+d}, v{F+d}, v{t0}")
    for k in range(4):
        a(f"v_mul_f32 v{t0+k}, v{F+k}, v{F+k}")
    for d in range(4, 40):
        a(f"v_fmac_f32 v{t0+(d%4)}, v{F+d}, v{F+d}")
    a(f"v_add_f32 v{t0}, v{t0}, v{t1}")
    a(f"v_add_f32 v{t2}, v{t2}, v{t3}")
    a(f"v_add_f32 v{t0}, v{t0}, v{t2}")
    dpp_sum16(a, t0)
    a(f"v_mov_b32 v{t1}, 0x3727c5ac")
    a(f"v_fmac_f32 v{t1}, 0x3acccccd, v{t0}")
    a(f"v_rsq_f32 v{t1}, v{t1}")
    for d in range(40):
        a(f"v_mul_f32 v{F+d}, v{F+d}, v{t1}")
    for d in range(20):
        a(f"v_cvt_pk_bf16_f32 v{X+d}, v{F+2*d}, v{F+2*d+1}")
    if OPT['mega']: nonce_load(a, 10)
    for i in range(5):
        a(f"buffer_store_dwordx4 {vr(X+4*i,4)}, v{VO+1}, s[{SRD_WS}:{SRD_WS+3}], 0 offen sc1")
        if i < 4:
            a(f"v_add_u32 v{VO+1}, 8192, v{VO+1}")
    a(f"s_branch {lbl}_done")
    a.label(f"{lbl}_gate")
    a.reset_counters()
    srd(a, SRD_A, P_AX, SIZES['AX'])
    srd(a, SRD_B, P_GW, SIZES['GW'])
    G = 40
    a(f"v_lshlrev_b32 v{VO+1}, 4, v{t1}")
    for i in range(5):
        a(f"buffer_load_dwordx4 {vr(X+4*i,4)}, v{VO}, s[{SRD_A}:{SRD_A+3}], 0 offen offset:{256*i}", tag='gx')
        a(f"buffer_load_dwordx4 {vr(G+4*i,4)}, v{VO+1}, s[{SRD_B}:{SRD_B+3}], 0 offen offset:{256*i}", tag='gx')
    if OPT['mega']: start_prefetch(a, 'B')
    a(f"v_lshlrev_b32 v{t2}, 2, v{t0}")
    a(f"v_add_u32 v{t2}, {WS_G}, v{t2}")
    a(f"v_mov_b32 v{t3}, 0x7ffffff0")
    a(f"v_cmp_eq_u32 s[{T4}:{T4+1}], 0, v{t1}")
    a(f"v_cndmask_b32 v{VO}, v{t3}, v{t2}, s[{T4}:{T4+1}]")
    a(f"v_mov_b32 v{t0}, 0")
    a(f"v_mov_b32 v{t1}, 0")
    a.wait_vm('gx')
    U = 60
    for d in range(20):
        u = U + 4*(d % 4)
        a(f"v_lshlrev_b32 v{u}, 16, v{X+d}")
        a(f"v_lshlrev_b32 v{u+1}, 16, v{G+d}")
        a(f"v_and_b32 v{u+2}, 0xffff0000, v{X+d}")
        a(f"v_and_b32 v{u+3}, 0xffff0000, v{G+d}")
        a(f"v_fmac_f32 v{t0}, v{u}, v{u+1}")
        a(f"v_fmac_f32 v{t1}, v{u+2}, v{u+3}")
    a(f"v_add_f32 v{t0}, v{t0}, v{t1}")
    dpp_sum16(a, t0)
    a(f"v_mul_f32 v{t0}, 0xbfb8aa3b, v{t0}")
    a(f"v_exp_f32 v{t0}, v{t0}")
    a(f"v_add_f32 v{t0}, 1.0, v{t0}")
    a(f"v_rcp_f32 v{t0}, v{t0}")
    a(f"s_nop 0")
    if OPT['mega']: nonce_load(a, 10)
    a(f"buffer_store_dword v{t0}, v{VO}, s[{SRD_WS}:{SRD_WS+3}], 0 offen sc1")
    a.label(f"{lbl}_done")
    a.reset_counters()
    if OPT['mega']:
        a("s_waitcnt vmcnt(0)")
        nonce_get(a, 10)
        a(f"s_lshr_b32 s{T0}, s{S_IDX}, 4")
        a(f"s_lshl_b32 s{T0}, s{T0}, 7")
        a(f"s_and_b32 s{T1}, s{S_IDX}, 15")
        a(f"s_lshl_b32 s{T1}, s{T1}, 2")
        a(f"s_add_u32 s{T0}, s{T0}, s{T1}")
        a(f"s_add_u32 s{T0}, s{T0}, {WS_FLAG + FY}")
        publish(a, T0, 10)

NRP = 48
RPQ = 395
def stage_repack(a, lbl, sn):
    t0, t1, t2, t3, t4, t5, t6 = range(2, 9)
    NU = 16
    VS, VD, D = 10, 26, 44
    MS = 64
    srd(a, SRD_A, P_W2, SIZES['W2'])
    srd(a, SRD_B, P_WO, SIZES['WO'])
    a(f"s_mul_i32 s{T0}, s{sn}, {RPQ}")
    a(f"s_mul_i32 s{T3}, s{T0}, 160")
    a(f"s_add_u32 s{T3}, s{T3}, {WS_WF}")
    a(f"s_movk_i32 s{T6}, 6554")
    a(f"s_movk_i32 s{T7}, 1280")
    a(f"s_mov_b32 s{T1}, 1813754")
    a(f"s_movk_i32 s{T2}, 2368")
    a(f"s_movk_i32 s{T4}, 18944")
    a(f"s_movk_i32 s{T5}, {RPQ*10}")
    for u in range(NU):
        a(f"v_add_u32 v{t0}, {256*u}, v0")
        a(f"v_mul_u32_u24 v{t1}, s{T6}, v{t0}")
        a(f"v_lshrrev_b32 v{t1}, 16, v{t1}")
        a(f"v_mul_u32_u24 v{t2}, 10, v{t1}")
        a(f"v_sub_u32 v{t2}, v{t0}, v{t2}")
        a(f"v_add_u32 v{t1}, s{T0}, v{t1}")
        a(f"v_mul_hi_u32 v{t3}, v{t1}, s{T1}")
        a(f"v_mul_lo_u32 v{t4}, v{t3}, s{T2}")
        a(f"v_sub_u32 v{t4}, v{t1}, v{t4}")
        a(f"v_cmp_gt_u32 s[98:99], s{T4}, v{t1}")
        a(f"v_cmp_gt_u32 s[100:101], s{T5}, v{t0}")
        a("s_and_b64 s[98:99], s[98:99], s[100:101]")
        a(f"v_mul_u32_u24 v{t3}, 160, v{t3}")
        a(f"v_lshl_add_u32 v{t2}, v{t2}, 4, v{t3}")
        a(f"v_subrev_u32 v{t1}, 1728, v{t4}")
        a(f"v_lshrrev_b32 v{t3}, 4, v{t1}")
        a(f"v_and_b32 v{t1}, 15, v{t1}")
        a(f"v_mul_u32_u24 v{t5}, 20, v{t3}")
        a(f"v_add_u32 v{t5}, v{t5}, v{t1}")
        a(f"v_cmp_gt_u32 s[100:101], 32, v{t3}")
        a(f"v_subrev_u32 v{t3}, 32, v{t3}")
        a(f"v_lshlrev_b32 v{t3}, 2, v{t3}")
        a(f"v_bfe_u32 v{t6}, v{t1}, 2, 1")
        a(f"v_lshl_add_u32 v{t3}, v{t6}, 1, v{t3}")
        a(f"v_lshrrev_b32 v{t6}, 3, v{t1}")
        a(f"v_add_u32 v{t3}, v{t3}, v{t6}")
        a(f"v_mul_u32_u24 v{t3}, 20, v{t3}")
        a(f"v_and_b32 v{t1}, 3, v{t1}")
        a(f"v_add3_u32 v{t3}, v{t3}, v{t1}, 16")
        a(f"v_cndmask_b32 v{t3}, v{t3}, v{t5}, s[100:101]")
        a(f"v_cmp_gt_u32 s[{MS+2*u}:{MS+2*u+1}], 0x6c0, v{t4}") if False else None
        a(f"v_mov_b32 v{t5}, 1728")
        a(f"v_cmp_gt_u32 s[{MS+2*u}:{MS+2*u+1}], v{t5}, v{t4}")
        a(f"v_cndmask_b32 v{t3}, v{t3}, v{t4}, s[{MS+2*u}:{MS+2*u+1}]")
        a(f"v_mul_lo_u32 v{t3}, v{t3}, s{T7}")
        a(f"v_add_u32 v{t3}, v{t3}, v{t2}")
        a(f"v_lshlrev_b32 v{t5}, 4, v{t0}")
        a(f"v_add_u32 v{t5}, s{T3}, v{t5}")
        a(f"v_mov_b32 v{t6}, 0x7ffffff0")
        a(f"v_cndmask_b32 v{VS+u}, v{t6}, v{t3}, s[98:99]")
        a(f"v_cndmask_b32 v{VD+u}, v{t6}, v{t5}, s[98:99]")
    for u in range(NU):
        a(f"v_mov_b32 v{t6}, 0x7ffffff0")
        a(f"v_cndmask_b32 v{t0}, v{t6}, v{VS+u}, s[{MS+2*u}:{MS+2*u+1}]")
        a(f"v_cndmask_b32 v{t1}, v{VS+u}, v{t6}, s[{MS+2*u}:{MS+2*u+1}]")
        a(f"s_mov_b64 exec, s[{MS+2*u}:{MS+2*u+1}]")
        a(f"buffer_load_dwordx4 {vr(D+4*u,4)}, v{t0}, s[{SRD_A}:{SRD_A+3}], 0 offen", tag=('rp', u))
        a(f"s_not_b64 exec, s[{MS+2*u}:{MS+2*u+1}]")
        a(f"buffer_load_dwordx4 {vr(D+4*u,4)}, v{t1}, s[{SRD_B}:{SRD_B+3}], 0 offen", tag=('rp', u))
        a("s_mov_b64 exec, -1")
    for u in range(NU):
        a.wait_vm(('rp', u))
        a(f"buffer_store_dwordx4 {vr(D+4*u,4)}, v{VD+u}, s[{SRD_WS}:{SRD_WS+3}], 0 offen sc1")
    if OPT['mega']:
        nonce_load(a, 2)
        nonce_get(a, 2)
        a(f"s_lshl_b32 s{T0}, s{sn}, 2")
        a(f"s_add_u32 s{T0}, s{T0}, {WS_FLAG + FW}")
        publish(a, T0, 2)
    a.reset_counters()

def stage_ffn1(a, lbl):
    a(f"s_lshr_b32 s{T0}, s{S_X}, 1")
    a(f"s_lshl_b32 s{T0}, s{T0}, 2")
    a(f"s_and_b32 s{T1}, s{S_I}, 3")
    a(f"s_add_u32 s{S_RB}, s{T0}, s{T1}")
    a(f"s_and_b32 s{T0}, s{S_X}, 1")
    a(f"s_mul_i32 s{T0}, s{T0}, 7")
    a(f"s_lshr_b32 s{T1}, s{S_I}, 2")
    a(f"s_add_u32 s{S_CJ}, s{T0}, s{T1}")
    a(f"s_cmp_ge_u32 s{T1}, 7")
    a(f"s_cbranch_scc1 {lbl}_skip")
    srd(a, SRD_A, P_B1, SIZES['B1'])
    srd(a, SRD_B, P_W1, SIZES['W1'])
    VWD, VWF, VY, VT = 2, 6, 10, 12
    AS = [20, 36, 52]
    ACC = 68
    YR = 132; NY = 16; YD = 12
    t0, t1, t2, t3 = VT, VT+1, VT+2, VT+3
    a(f"s_lshl_b32 s{T0}, s{S_W}, 4")
    a(f"v_lshrrev_b32 v{t0}, 4, v1")
    a(f"v_add_u32 v{t1}, s{T0}, v{t0}")
    a(f"s_movk_i32 s{T2}, 3456")
    a(f"v_mul_lo_u32 v{t1}, v{t1}, s{T2}")
    a(f"v_bfe_u32 v{t2}, v1, 2, 2")
    a(f"v_xor_b32 v{t2}, v{t2}, v{t0}")
    a(f"v_and_b32 v{t3}, 3, v1")
    a(f"v_lshl_add_u32 v{t2}, v{t2}, 2, v{t3}")
    a(f"v_lshl_add_u32 v{t1}, v{t2}, 4, v{t1}")
    a(f"s_lshl_b32 s{T0}, s{S_CJ}, 8")
    a(f"v_add_u32 v{VWD}, s{T0}, v{t1}")
    for i in range(1, 4):
        a(f"v_add_u32 v{VWD+i}, {i*(4*3456-1024)}, v{VWD}")
    a(f"s_lshl_b32 s{T6}, s{S_W}, 12")
    def dma_w(b):
        a(f"s_add_u32 m0, s{T6}, {(b % 4)*16384}")
        a(f"s_mov_b32 s{S_KW}, {b*64*3456}")
        for i in range(4):
            a(f"buffer_load_dwordx4 v{VWD+i}, s[{SRD_B}:{SRD_B+3}], s{S_KW} offen offset:{i*1024} lds", tag=('W', b))
    dma_w(0)
    a(f"v_lshrrev_b32 v{t0}, 5, v1")
    a(f"v_lshlrev_b32 v{t1}, 3, v{t0}")
    a(f"s_lshl_b32 s{T0}, s{S_CJ}, 8")
    a(f"v_add_u32 v{t1}, s{T0}, v{t1}")
    for T in range(4):
        for j in range(4):
            a(f"buffer_load_dwordx2 {vr(AS[0]+2*(4*T+j),2)}, v{t1}, s[{SRD_A}:{SRD_A+3}], 0 offen offset:{64*T+16*j}", tag='bias')
    dma_w(1); dma_w(2)
    if OPT['mega']:
        a(f"s_lshl_b32 s{T0}, s{S_RB}, 7")
        a(f"s_add_u32 s{T0}, s{T0}, {WS_FLAG + FY}")
        a(f"v_lshlrev_b32 v{t2}, 2, v1")
        a(f"v_add_u32 v{t2}, s{T0}, v{t2}")
        a(f"s_mov_b64 s[{T4}:{T4+1}], 0xffff")
        vm = list(a.vm)
        wait_flags(a, t2, t3, T4)
        a.vm = vm
        if OPT.get('fine'): mark(a)
    a(f"s_lshl_b32 s{T0}, s{S_RB}, 2")
    a(f"s_add_u32 s{T0}, s{T0}, s{S_W}")
    a(f"s_mul_i32 s{T1}, s{T0}, {40*1024}")
    a(f"s_add_u32 s{S_KX}, s{T1}, {WS_Y}")
    a(f"v_lshlrev_b32 v{VY}, 4, v1")
    def ld_y(s):
        if s % 4 == 0 and s > 0:
            a(f"s_add_u32 s{S_KX}, s{S_KX}, 4096")
        a(f"buffer_load_dwordx4 {vr(YR+4*(s % NY),4)}, v{VY}, s[{SRD_WS}:{SRD_WS+3}], s{S_KX} offen offset:{(s % 4)*1024} sc1", tag=('Y', s))
    for s in range(YD): ld_y(s)
    a(f"v_bfe_u32 v{t2}, v1, 2, 2")
    a(f"v_lshl_add_u32 v{t1}, v{t0}, 3, v{t2}")
    a(f"v_lshlrev_b32 v{t1}, 8, v{t1}")
    a(f"v_bfe_u32 v{t3}, v1, 4, 1")
    a(f"v_lshl_add_u32 v{t1}, v{t3}, 5, v{t1}")
    a(f"v_and_b32 v{t3}, 3, v1")
    a(f"v_lshl_add_u32 v{t1}, v{t3}, 3, v{t1}")
    for ft in range(4):
        a(f"v_xor_b32 v{t3}, {ft}, v{t2}")
        a(f"v_lshl_add_u32 v{VWF+ft}, v{t3}, 6, v{t1}")
    a.wait_vm('bias')
    for T in range(4):
        for j in range(4):
            s_ = AS[0] + 2*(4*T+j); d = ACC + 16*T + 4*j
            a(f"v_lshlrev_b32 v{d}, 16, v{s_}")
            a(f"v_and_b32 v{d+1}, 0xffff0000, v{s_}")
            a(f"v_lshlrev_b32 v{d+2}, 16, v{s_+1}")
            a(f"v_and_b32 v{d+3}, 0xffff0000, v{s_+1}")
    def rd_a(s, ft, rd):
        b = s >> 2; u = s & 3
        a(f"ds_read_b64_tr_b16 {vr(AS[s % 3]+4*ft+2*rd,2)}, v{VWF+ft} offset:{(b % 4)*16384 + u*4096 + rd*1024}", tag=('A', s, ft))
    a.wait_vm(('W', 0))
    a("s_barrier")
    for s in range(2):
        for ft in range(4):
            rd_a(s, ft, 0); rd_a(s, ft, 1)
    NS = 40
    mark(a)
    for s in range(NS):
        b = s >> 2; u = s & 3
        if OPT.get('fine') and u == 0 and b in (2, 4, 6, 8): mark(a)
        if u == 2 and b + 1 < 10:
            a.wait_vm(('W', b + 1))
            a("s_barrier")
            if b + 3 < 10: dma_w(b + 3)
        a.wait_vm(('Y', s))
        for ft in range(4):
            a.wait_lg(('A', s, ft))
            d = vr(ACC+16*ft, 16)
            a(f"v_mfma_f32_32x32x16_bf16 {d}, {vr(AS[s % 3]+4*ft,4)}, {vr(YR+4*(s % NY),4)}, {d}")
            if s + 2 < NS:
                rd_a(s + 2, ft, 0); rd_a(s + 2, ft, 1)
            if ft == 1 and s + YD < NS:
                ld_y(s + YD)
    mark(a)
    C0, C1 = 2, 3
    a(f"v_mov_b32 v{C0}, 0xc0135761")
    a(f"v_mov_b32 v{C1}, 0xbdd2d3e8")
    a(f"s_lshl_b32 s{T0}, s{S_RB}, 2")
    a(f"s_add_u32 s{T0}, s{T0}, s{S_W}")
    a(f"s_mul_i32 s{T0}, s{T0}, 108")
    a(f"s_lshl_b32 s{T1}, s{S_CJ}, 3")
    a(f"s_add_u32 s{T0}, s{T0}, s{T1}")
    a(f"s_lshl_b32 s{T0}, s{T0}, 10")
    a(f"s_add_u32 s{T0}, s{T0}, {WS_H}")
    a(f"s_add_u32 s{T1}, s{T0}, 4096")
    TU, TE = 20, 28
    k = 0
    for T in range(4):
        if T == 2:
            a(f"s_cmp_eq_u32 s{S_CJ}, 13")
            a(f"s_cbranch_scc1 {lbl}_pub")
        for jj in range(2):
            x = ACC + 16*T + 8*jj
            for e in range(8): a(f"v_mul_f32 v{TU+e}, v{x+e}, v{x+e}")
            for e in range(8): a(f"v_fma_f32 v{TU+e}, v{TU+e}, v{C1}, v{C0}")
            for e in range(8): a(f"v_mul_f32 v{TU+e}, v{TU+e}, v{x+e}")
            for e in range(8): a(f"v_exp_f32 v{TE+e}, v{TU+e}")
            for e in range(8): a(f"v_add_f32 v{TE+e}, 1.0, v{TE+e}")
            for e in range(8): a(f"v_rcp_f32 v{TE+e}, v{TE+e}")
            for e in range(8): a(f"v_mul_f32 v{TE+e}, v{TE+e}, v{x+e}")
            d = 40 + 4*(k % 4); k += 1
            for e in range(4): a(f"v_cvt_pk_bf16_f32 v{d+e}, v{TE+2*e}, v{TE+2*e+1}")
            so = T0 if T < 2 else T1
            a(f"buffer_store_dwordx4 {vr(d,4)}, v{VY}, s[{SRD_WS}:{SRD_WS+3}], s{so} offen offset:{((2*T+jj) % 4)*1024} sc1")
    a.label(f"{lbl}_pub")
    mark(a)
    if OPT['mega']:
        a(f"s_lshl_b32 s{T0}, s{S_RB}, 7")
        a(f"s_lshl_b32 s{T1}, s{S_CJ}, 2")
        a(f"s_add_u32 s{T0}, s{T0}, s{T1}")
        a(f"s_add_u32 s{T0}, s{T0}, {WS_FLAG + FH}")
        publish(a, T0, 12)
        a(f"s_branch {lbl}_end")
    a.label(f"{lbl}_skip")
    if OPT['mega']:
        a.reset_counters()
        a(f"s_lshl_b32 s{S_KO}, s{S_X}, 2")
        a(f"s_and_b32 s{T0}, s{S_I}, 3")
        a(f"s_add_u32 s{S_KO}, s{S_KO}, s{T0}")
        a(f"s_add_u32 s{S_KO}, s{S_KO}, 16")
        stage_repack(a, lbl + "_rp", S_KO)
        a.label(f"{lbl}_end")
    a.reset_counters()

PST = 3104
LK, LV, LONES = 0, 10*PST, 20*PST
def stage_attn(a, lbl):
    a(f"s_lshl_b32 s{T0}, s{S_X}, 1")
    a(f"s_and_b32 s{T1}, s{S_I}, 1")
    a(f"s_add_u32 s{S_CJ}, s{T0}, s{T1}")
    a(f"s_lshr_b32 s{S_RB}, s{S_I}, 1")
    HP = S_CJ
    VD, VK, VV, VT = 2, 3, 4, 6
    t0, t1, t2, t3, t4 = VT, VT+1, VT+2, VT+3, VT+4
    MK = 12
    Q0, Q1 = 20, 24
    KF = [28, 36]
    VF = [44, 48, 52, 56]
    PF = [60, 64, 68, 72]
    OA = 76
    LO = 92
    CS, NM = 96, 97
    MX = 98
    S = 104
    QH = 248
    if OPT['mega']:
        a(f"v_lshrrev_b32 v{t0}, 4, v1")
        a(f"s_sub_u32 s{T0}, s{S_RB}, 2")
        a(f"v_add_u32 v{t0}, s{T0}, v{t0}")
        a(f"v_and_b32 v{t1}, 15, v1")
        a(f"v_cmp_le_i32 s[{T4}:{T4+1}], 0, v{t0}")
        a(f"v_cmp_gt_u32 s[{T2}:{T2+1}], 15, v{t1}")
        a(f"s_and_b64 s[{T4}:{T4+1}], s[{T4}:{T4+1}], s[{T2}:{T2+1}]")
        a(f"s_mov_b64 s[{T2}:{T2+1}], 0xffffffffffff") if False else None
        a(f"s_mov_b32 s{T2}, -1")
        a(f"s_mov_b32 s{T2+1}, 0xffff")
        a(f"s_and_b64 s[{T4}:{T4+1}], s[{T4}:{T4+1}], s[{T2}:{T2+1}]")
        a(f"v_lshlrev_b32 v{t0}, 7, v{t0}")
        a(f"v_lshl_add_u32 v{t0}, v{t1}, 2, v{t0}")
        a(f"v_add_u32 v{t0}, {WS_FLAG + FQ}, v{t0}")
        wait_flags(a, t0, t1, T4)
        if OPT.get('fine'): mark(a)
    a(f"s_sub_u32 s{T0}, s{S_RB}, 2")
    a(f"s_lshl_b32 s{T0}, s{T0}, 7")
    a(f"s_mul_i32 s{T1}, s{S_W}, 96")
    a(f"s_add_u32 s{T0}, s{T0}, s{T1}")
    a(f"v_lshlrev_b32 v{t0}, 1, v1")
    a(f"v_add_u32 v{t0}, s{T0}, v{t0}")
    a(f"v_lshlrev_b32 v{t1}, 3, v{t0}")
    a(f"v_mov_b32 v{t2}, 0x7ffffff0")
    a(f"v_cmp_le_i32 s[{T4}:{T4+1}], 0, v{t0}")
    a(f"v_cndmask_b32 v{VD}, v{t2}, v{t1}, s[{T4}:{T4+1}]")
    a(f"s_mul_i32 s{T2}, s{HP}, {10*16384}")
    a(f"s_add_u32 s{T2}, s{T2}, {WS_QKV + 160*16384}")
    a(f"s_mul_i32 s{T3}, s{S_W}, 768")
    a("s_mov_b32 exec_hi, 0xffff")
    for ty in range(2):
        for p in range(10):
            a(f"s_add_u32 m0, s{T3}, {(LK if ty == 0 else LV) + p*PST}")
            a(f"s_add_u32 s{S_KX}, s{T2}, {(ty*160 + p)*16384}")
            a(f"buffer_load_dwordx4 v{VD}, s[{SRD_WS}:{SRD_WS+3}], s{S_KX} offen sc1 lds", tag=('kv', ty))
    a("s_mov_b32 exec_hi, -1")
    a(f"s_lshl_b32 s{T0}, s{S_RB}, 2")
    a(f"s_add_u32 s{T0}, s{T0}, s{S_W}")
    S_QB = 61
    a(f"s_mov_b32 s{S_QB}, s{T0}")
    a(f"v_and_b32 v{t0}, 31, v1")
    a(f"v_lshrrev_b32 v{t1}, 5, v1")
    a(f"s_lshl_b32 s{T1}, s{T0}, 8")
    a(f"v_lshlrev_b32 v{t2}, 3, v{t0}")
    a(f"v_add_u32 v{t2}, s{T1}, v{t2}")
    a(f"v_lshl_add_u32 v{t3}, v{t1}, 15, v{t2}")
    a(f"s_mul_i32 s{T2}, s{HP}, {10*16384}")
    a(f"s_add_u32 s{T2}, s{T2}, {WS_QKV}")
    QR = [Q0, QH]
    for hh in range(2):
        q0 = Q0 if hh == 0 else QH
        q1 = Q1 if hh == 0 else QH + 4
        a(f"s_add_u32 s{T1}, s{T2}, {hh*5*16384}")
        a(f"buffer_load_dwordx2 {vr(q0,2)}, v{t3}, s[{SRD_WS}:{SRD_WS+3}], s{T1} offen sc1", tag='q')
        a(f"s_add_u32 s{T1}, s{T1}, 16384")
        a(f"buffer_load_dwordx2 {vr(q0+2,2)}, v{t3}, s[{SRD_WS}:{SRD_WS+3}], s{T1} offen sc1", tag='q')
        a(f"s_add_u32 s{T1}, s{T1}, {3*16384}")
        a(f"buffer_load_dwordx2 {vr(q1,2)}, v{t2}, s[{SRD_WS}:{SRD_WS+3}], s{T1} offen sc1", tag='q')
    a(f"v_mov_b32 v{KF[0]}, 0x3f803f80")
    for r in range(1, 4): a(f"v_mov_b32 v{KF[0]+r}, 0x3f803f80")
    a(f"v_lshlrev_b32 v{t4}, 4, v0")
    a(f"v_add_u32 v{t4}, {LONES}, v{t4}")
    a(f"v_cmp_gt_u32 vcc, 208, v0")
    a(f"s_and_saveexec_b64 s[{T4}:{T4+1}], vcc")
    a(f"ds_write_b128 v{t4}, {vr(KF[0],4)}")
    a(f"s_mov_b64 exec, s[{T4}:{T4+1}]")
    a(f"v_lshlrev_b32 v{t2}, 2, v{t1}")
    a(f"v_sub_u32 v{t2}, v{t0}, v{t2}")
    for r in range(16):
        a(f"v_cmp_le_i32 s[{S_MASK+2*r}:{S_MASK+2*r+1}], {8*(r >> 2) + (r & 3)}, v{t2}")
    a(f"v_mov_b32 v{t3}, 0xffff")
    a(f"v_mov_b32 v{t4}, 0xffff0000")
    for q in range(8):
        a(f"v_cndmask_b32 v{MK+q}, 0, v{t3}, s[{S_MASK+4*q}:{S_MASK+4*q+1}]")
        a(f"v_cndmask_b32 v{KF[1]}, 0, v{t4}, s[{S_MASK+4*q+2}:{S_MASK+4*q+3}]")
        a(f"v_or_b32 v{MK+q}, v{MK+q}, v{KF[1]}")
    a(f"s_lshl_b32 s{T0}, s{S_W}, 8")
    a(f"v_lshlrev_b32 v{t2}, 3, v{t0}")
    a(f"v_add_u32 v{t2}, s{T0}, v{t2}")
    a(f"s_movk_i32 s{T1}, {2*PST}")
    a(f"v_mul_lo_u32 v{t3}, v{t1}, s{T1}")
    a(f"v_add_u32 v{VK}, v{t2}, v{t3}")
    VKX = 11
    a(f"v_add_u32 v{VKX}, {4*PST}, v{t2}")
    a(f"v_bfe_u32 v{t2}, v1, 4, 1")
    a(f"v_and_b32 v{t3}, 3, v1")
    a(f"v_lshl_add_u32 v{t2}, v{t2}, 2, v{t3}")
    a(f"v_bfe_u32 v{t3}, v1, 2, 2")
    a(f"v_lshl_add_u32 v{t3}, v{t1}, 2, v{t3}")
    a(f"v_lshlrev_b32 v{t3}, 3, v{t3}")
    a(f"v_add_u32 v{t3}, s{T0}, v{t3}")
    a(f"s_movk_i32 s{T1}, {PST}")
    a(f"v_mul_lo_u32 v{t4}, v{t2}, s{T1}")
    a(f"v_cmp_gt_u32 s[{T4}:{T4+1}], 5, v{t2}")
    for hh in range(2):
        vb = LV + hh*5*PST
        a(f"v_lshlrev_b32 v{KF[0]}, 5, v{t2}")
        a(f"v_add_u32 v{KF[0]}, {(vb - LONES) % 256}, v{KF[0]}")
        a(f"v_and_b32 v{KF[0]}, 255, v{KF[0]}")
        a(f"v_add_u32 v{KF[0]}, {LONES}, v{KF[0]}")
        a(f"v_add_u32 v{KF[0]+1}, {vb}, v{t4}")
        a(f"v_cndmask_b32 v{KF[0]}, v{KF[0]}, v{KF[0]+1}, s[{T4}:{T4+1}]")
        a(f"v_add_u32 v{VV+hh}, v{KF[0]}, v{t3}")
    a(f"v_mov_b32 v{CS}, 0x3ea52b5c")
    for st in range(2):
        a(f"v_mov_b32 v{KF[st]+6}, 0"); a(f"v_mov_b32 v{KF[st]+7}, 0")
    a(f"v_mov_b32 v{Q1+2}, 0"); a(f"v_mov_b32 v{Q1+3}, 0")
    a.wait_vm('q')
    a(f"v_cmp_gt_u32 s[{T4}:{T4+1}], 32, v1")
    for q in (Q1, Q1+1, QH+4, QH+5):
        a(f"v_cndmask_b32 v{q}, 0, v{q}, s[{T4}:{T4+1}]")
    a("s_waitcnt vmcnt(0) lgkmcnt(0)")
    a("s_barrier")
    a.reset_counters()
    mark(a)
    NEG = 0xf149f2ca
    for hh in range(2):
        if hh == 1:
            for r in range(4): a(f"v_mov_b32 v{Q0+r}, v{QH+r}")
            a(f"v_mov_b32 v{Q1}, v{QH+4}"); a(f"v_mov_b32 v{Q1+1}, v{QH+5}")
        ko = hh*5*PST
        def rd_k(tl):
            st = KF[tl % 2]
            a(f"ds_read_b64 {vr(st,2)}, v{VK} offset:{ko + tl*256}", tag=('k', tl))
            a(f"ds_read_b64 {vr(st+2,2)}, v{VK} offset:{ko + PST + tl*256}", tag=('k', tl))
            a(f"ds_read_b64 {vr(st+4,2)}, v{VKX} offset:{ko + tl*256}", tag=('k', tl))
        rd_k(0)
        for tl in range(9):
            if tl + 1 < 9: rd_k(tl + 1)
            a.wait_lg(('k', tl))
            st = KF[tl % 2]; d = vr(S+16*tl, 16)
            a(f"v_mfma_f32_32x32x16_bf16 {d}, {vr(st,4)}, {vr(Q0,4)}, 0")
            a(f"v_mfma_f32_32x32x16_bf16 {d}, {vr(st+4,4)}, {vr(Q1,4)}, {d}")
        a(f"s_cmp_ge_u32 s{S_QB}, 8")
        a(f"s_cbranch_scc1 {lbl}_full{hh}")
        for tl in range(8):
            a(f"s_cmp_ge_u32 s{S_QB}, {8-tl}")
            a(f"s_cbranch_scc1 {lbl}_full{hh}")
            a("s_nop 7"); a("s_nop 7")
            for r in range(16): a(f"v_mov_b32 v{S+16*tl+r}, {hex(NEG)}")
        a.label(f"{lbl}_full{hh}")
        a("s_nop 7"); a("s_nop 3")
        for r in range(16):
            a(f"v_cndmask_b32 v{S+r}, v{S+r}, v{S+128+r}, s[{S_MASK+2*r}:{S_MASK+2*r+1}]")
        for c in range(4):
            a(f"v_max3_f32 v{MX+c}, v{S+32*c}, v{S+32*c+1}, v{S+32*c+2}")
        for k in range(3, 31, 2):
            for c in range(4):
                a(f"v_max3_f32 v{MX+c}, v{MX+c}, v{S+32*c+k}, v{S+32*c+k+1}")
        for c in range(4):
            a(f"v_max_f32 v{MX+c}, v{MX+c}, v{S+32*c+31}")
        a(f"v_max3_f32 v{MX}, v{MX}, v{MX+1}, v{MX+2}")
        a(f"v_max_f32 v{MX}, v{MX}, v{MX+3}")
        a(f"v_mov_b32 v{MX+1}, v{MX}")
        a(f"v_permlane32_swap_b32 v{MX}, v{MX+1}")
        a(f"v_max_f32 v{MX}, v{MX}, v{MX+1}")
        a(f"v_mul_f32 v{NM}, v{CS}, v{MX}")
        a(f"v_sub_f32 v{NM}, 0, v{NM}")
        mark(a)
        def rd_v(tl, kk, slot):
            for rd in range(2):
                a(f"ds_read_b64_tr_b16 {vr(VF[slot]+2*rd,2)}, v{VV+hh} offset:{tl*256 + kk*128 + rd*64}", tag=('v', tl, kk))
        seq = [(1 + q // 2, q % 2) for q in range(14)]
        nv = 0
        vq = []
        def next_v(tl, kk):
            nonlocal nv
            slot = nv % 4; nv += 1
            rd_v(tl, kk, slot); return slot
        first = True
        pslot = 0
        def softmax_frag(src):
            nonlocal pslot
            p = PF[pslot % 4]; pslot += 1
            for e in range(8): a(f"v_fma_f32 v{src+e}, v{src+e}, v{CS}, v{NM}")
            for e in range(8): a(f"v_exp_f32 v{src+e}, v{src+e}")
            for e in range(4): a(f"v_cvt_pk_bf16_f32 v{p+e}, v{src+2*e}, v{src+2*e+1}")
            return p
        def pv(p, slot, tag):
            nonlocal first
            a.wait_lg(tag)
            c = "0" if first else vr(OA,16)
            a(f"v_mfma_f32_32x32x16_bf16 {vr(OA,16)}, {vr(VF[slot],4)}, {vr(p,4)}, {c}")
            first = False
        for (tl, kk) in seq:
            slot = next_v(tl, kk)
            p = softmax_frag(S + 16*tl + 8*kk)
            pv(p, slot, ('v', tl, kk))
        for kk in range(2):
            s0 = next_v(0, kk); s8 = next_v(8, kk)
            p = softmax_frag(S + 8*kk)
            p8 = PF[pslot % 4]; pslot += 1
            for e in range(4):
                a(f"v_and_b32 v{p8+e}, v{p+e}, v{MK+4*kk+e}")
            for e in range(4):
                a(f"v_xor_b32 v{p+e}, v{p+e}, v{p8+e}")
            pv(p, s0, ('v', 0, kk))
            pv(p8, s8, ('v', 8, kk))
        a(f"v_rcp_f32 v{NM}, v{OA+12}")
        for r in range(12): a(f"v_mul_f32 v{OA+r}, v{OA+r}, v{NM}")
        for e in range(4): a(f"v_cvt_pk_bf16_f32 v{PF[0]+e}, v{OA+2*e}, v{OA+2*e+1}")
        a(f"v_cvt_pk_bf16_f32 v{LO+2*hh}, v{OA+8}, v{OA+9}")
        a(f"v_cvt_pk_bf16_f32 v{LO+2*hh+1}, v{OA+10}, v{OA+11}")
        a(f"s_mul_i32 s{T0}, s{S_QB}, 40")
        a(f"s_lshl_b32 s{T1}, s{HP}, 1")
        a(f"s_add_u32 s{T1}, s{T1}, {hh}")
        a(f"s_add_u32 s{T0}, s{T0}, s{T1}")
        a(f"s_lshl_b32 s{T0}, s{T0}, 10")
        a(f"s_add_u32 s{T0}, s{T0}, {WS_O}")
        a(f"v_lshlrev_b32 v{t0}, 4, v1")
        a(f"buffer_store_dwordx4 {vr(PF[0],4)}, v{t0}, s[{SRD_WS}:{SRD_WS+3}], s{T0} offen sc1")
    mark(a)
    a(f"s_mul_i32 s{T0}, s{S_QB}, 40")
    a(f"s_lshr_b32 s{T1}, s{HP}, 1")
    a(f"s_add_u32 s{T0}, s{T0}, s{T1}")
    a(f"s_add_u32 s{T0}, s{T0}, 32")
    a(f"s_lshl_b32 s{T0}, s{T0}, 10")
    a(f"s_and_b32 s{T1}, s{HP}, 1")
    a(f"s_lshl_b32 s{T1}, s{T1}, 9")
    a(f"s_add_u32 s{T0}, s{T0}, s{T1}")
    a(f"s_add_u32 s{T0}, s{T0}, {WS_O}")
    a("s_mov_b32 exec_hi, 0")
    a(f"buffer_store_dwordx4 {vr(LO,4)}, v{t0}, s[{SRD_WS}:{SRD_WS+3}], s{T0} offen sc1")
    a("s_mov_b32 exec_hi, -1")
    if OPT['mega']:
        a(f"s_lshl_b32 s{T0}, s{S_RB}, 7")
        a(f"s_lshl_b32 s{T1}, s{HP}, 2")
        a(f"s_add_u32 s{T0}, s{T0}, s{T1}")
        a(f"s_add_u32 s{T0}, s{T0}, {WS_FLAG + FO}")
        publish(a, T0, t1)
    a.reset_counters()

def stage_final(a, lbl):
    a(f"s_lshr_b32 s{T0}, s{S_X}, 1")
    a(f"s_lshl_b32 s{T0}, s{T0}, 3")
    a(f"s_and_b32 s{T1}, s{S_I}, 7")
    a(f"s_add_u32 s{S_RB}, s{T0}, s{T1}")
    a(f"s_and_b32 s{T0}, s{S_X}, 1")
    a(f"s_lshl_b32 s{T0}, s{T0}, 2")
    a(f"s_lshr_b32 s{T1}, s{S_I}, 3")
    a(f"s_add_u32 s{S_CJ}, s{T0}, s{T1}")
    srd(a, SRD_A, P_B2, SIZES['B2'])
    srd(a, SRD_B, P_OUT, SIZES['OUT'])
    VW, VA, VB, VT = 2, 3, 4, 6
    t0, t1, t2, t3 = VT, VT+1, VT+2, VT+3
    VG, VO, VF = 10, 11, 12
    AS = [20, 40, 60]
    ACB, ACA = 80, 100
    TR = 120; NT = 28; TD = 20
    NSTEP = 74; HS = 54
    PAIR = 10240; NSL = 7
    NP = NSTEP // 2
    if OPT['mega']:
        a(f"v_lshlrev_b32 v{t2}, 2, v1")
        a(f"v_add_u32 v{t2}, {WS_FLAG + FW}, v{t2}")
        a(f"s_mov_b32 s{T4}, -1")
        a(f"s_mov_b32 s{T4+1}, 0xffff")
        wait_flags(a, t2, t3, T4)
    a(f"v_lshlrev_b32 v{VW}, 4, v1")
    a(f"s_mul_i32 s{T0}, s{S_CJ}, {WF_TILE}")
    a(f"s_mul_i32 s{T6}, s{S_W}, 2560")
    a(f"s_add_u32 s{T0}, s{T0}, s{T6}")
    a(f"s_add_u32 s{T7}, s{T0}, {WS_WF}")
    def dma_w(p):
        a(f"s_add_u32 m0, s{T6}, {(p % NSL)*PAIR}")
        a(f"s_add_u32 s{S_KW}, s{T7}, {p*PAIR}")
        a(f"buffer_load_dwordx4 v{VW}, s[{SRD_WS}:{SRD_WS+3}], s{S_KW} offen sc1 lds", tag=('W', p))
        a(f"buffer_load_dwordx4 v{VW}, s[{SRD_WS}:{SRD_WS+3}], s{S_KW} offen offset:1024 sc1 lds", tag=('W', p))
        a("s_mov_b32 exec_hi, 0")
        a(f"buffer_load_dwordx4 v{VW}, s[{SRD_WS}:{SRD_WS+3}], s{S_KW} offen offset:2048 sc1 lds", tag=('W', p))
        a("s_mov_b32 exec_hi, -1")
    for p in range(NSL - 1): dma_w(p)
    if OPT['mega'] and OPT['pf_wf']:
        nl = (WF_TILE - (NSL-1)*PAIR) // 128
        per = (nl + 7) // 8
        a(f"s_and_b32 s{T0}, s{S_I}, 7")
        a(f"s_mul_i32 s{T0}, s{T0}, {per*128}")
        a(f"s_mul_i32 s{T1}, s{S_CJ}, {WF_TILE}")
        a(f"s_add_u32 s{T0}, s{T0}, s{T1}")
        a(f"s_add_u32 s{T0}, s{T0}, {WS_WF + (NSL-1)*PAIR}")
        a(f"v_lshlrev_b32 v{t2}, 7, v0")
        a(f"v_add_u32 v{t2}, s{T0}, v{t2}")
        a(f"v_mov_b32 v{t3}, 0x7ffffff0")
        a(f"s_movk_i32 s{T1}, {per}")
        for k in range((per + 255) // 256):
            a(f"v_add_u32 v{t1}, {256*k}, v0")
            a(f"v_cmp_gt_u32 s[{T4}:{T4+1}], s{T1}, v{t1}")
            a(f"v_cndmask_b32 v{t1}, v{t3}, v{t2}, s[{T4}:{T4+1}]")
            a(f"buffer_load_dword v14, v{t1}, s[{SRD_WS}:{SRD_WS+3}], 0 offen sc1", tag='touch')
            a(f"v_add_u32 v{t2}, {256*128}, v{t2}")
    a(f"v_lshrrev_b32 v{t0}, 4, v1")
    a(f"v_lshlrev_b32 v{t1}, 3, v{t0}")
    a(f"s_mul_i32 s{T0}, s{S_CJ}, 160")
    a(f"v_add_u32 v{t1}, s{T0}, v{t1}")
    for F in range(5):
        a(f"buffer_load_dwordx2 {vr(AS[0]+2*F,2)}, v{t1}, s[{SRD_A}:{SRD_A+3}], 0 offen offset:{32*F}", tag='bias')
    if OPT['mega']:
        a(f"s_lshr_b32 s{T0}, s{S_RB}, 1")
        a(f"s_lshl_b32 s{T0}, s{T0}, 7")
        a(f"s_add_u32 s{T1}, s{T0}, {WS_FLAG + FH}")
        a(f"v_lshlrev_b32 v{t2}, 2, v1")
        a(f"v_add_u32 v{t2}, s{T1}, v{t2}")
        a(f"s_mov_b64 s[{T4}:{T4+1}], 0x3fff")
        a(f"s_add_u32 s{T1}, s{T0}, {WS_FLAG + FO}")
        a(f"v_and_b32 v{VF}, 15, v1")
        a(f"v_lshlrev_b32 v{VF}, 2, v{VF}")
        a(f"v_add_u32 v{VF}, s{T1}, v{VF}")
        vm = list(a.vm)
        wait_flags(a, t2, t3, T4)
        a.vm = vm
        if OPT.get('fine'): mark(a)
    a(f"v_lshrrev_b32 v{t1}, 5, v1")
    a(f"v_bfe_u32 v{t2}, v1, 4, 1")
    a(f"v_lshlrev_b32 v{t1}, 10, v{t1}")
    a(f"v_lshl_add_u32 v{t1}, v{t2}, 9, v{t1}")
    a(f"v_and_b32 v{t2}, 15, v1")
    a(f"s_and_b32 s{T0}, s{S_W}, 1")
    a(f"s_lshl_b32 s{T0}, s{T0}, 4")
    a(f"v_add_u32 v{t3}, s{T0}, v{t2}")
    a(f"v_lshl_add_u32 v{VB}, v{t3}, 4, v{t1}")
    a(f"s_lshl_b32 s{T0}, s{S_RB}, 1")
    a(f"s_lshr_b32 s{T1}, s{S_W}, 1")
    a(f"s_add_u32 s{T0}, s{T0}, s{T1}")
    S_HB, S_OB = 62, 63
    a(f"s_mul_i32 s{T1}, s{T0}, {108*1024}")
    a(f"s_add_u32 s{S_HB}, s{T1}, {WS_H}")
    a(f"s_mul_i32 s{T1}, s{T0}, {40*1024}")
    a(f"s_add_u32 s{S_OB}, s{T1}, {WS_O}")
    def ld_t(s):
        if s < HS: sb, k = S_HB, s
        else: sb, k = S_OB, s - HS
        if k % 2 == 0 and k > 0:
            a(f"s_add_u32 s{sb}, s{sb}, 4096")
        a(f"buffer_load_dwordx4 {vr(TR+4*(s % NT),4)}, v{VB}, s[{SRD_WS}:{SRD_WS+3}], s{sb} offen offset:{(k % 2)*2048} sc1", tag=('T', s))
    for s in range(TD): ld_t(s)
    a(f"s_lshl_b32 s{T0}, s{S_RB}, 6")
    a(f"s_lshl_b32 s{T1}, s{S_W}, 4")
    a(f"s_add_u32 s{T0}, s{T0}, s{T1}")
    a(f"v_add_u32 v{t2}, s{T0}, v{t2}")
    a(f"v_lshlrev_b32 v{t3}, 2, v{t2}")
    a(f"v_add_u32 v{t3}, {WS_G}, v{t3}")
    a(f"buffer_load_dword v{VG}, v{t3}, s[{SRD_WS}:{SRD_WS+3}], 0 offen sc1", tag='g')
    a(f"s_movk_i32 s{T1}, 1280")
    a(f"v_mul_lo_u32 v{t2}, v{t2}, s{T1}")
    a(f"s_mul_i32 s{T0}, s{S_CJ}, 160")
    a(f"v_lshl_add_u32 v{t2}, v{t0}, 3, v{t2}")
    a(f"v_add_u32 v{VO}, s{T0}, v{t2}")
    a(f"v_lshrrev_b32 v{t1}, 5, v1")
    a(f"v_bfe_u32 v{t2}, v1, 4, 1")
    a(f"v_lshlrev_b32 v{t1}, 4, v{t1}")
    a(f"v_lshl_add_u32 v{t1}, v{t2}, 2, v{t1}")
    a(f"v_bfe_u32 v{t2}, v1, 2, 2")
    a(f"v_add_u32 v{t1}, v{t1}, v{t2}")
    a(f"v_mul_u32_u24 v{t1}, 160, v{t1}")
    a(f"v_and_b32 v{t2}, 3, v1")
    a(f"v_lshl_add_u32 v{VA}, v{t2}, 3, v{t1}")
    VA2 = 5
    a(f"v_add_u32 v{VA2}, {4*PAIR}, v{VA}")
    a.wait_vm('bias')
    for F in range(5):
        s_ = AS[0] + 2*F; d = ACB + 4*F
        a(f"v_lshlrev_b32 v{d}, 16, v{s_}")
        a(f"v_and_b32 v{d+1}, 0xffff0000, v{s_}")
        a(f"v_lshlrev_b32 v{d+2}, 16, v{s_+1}")
        a(f"v_and_b32 v{d+3}, 0xffff0000, v{s_+1}")
    def rd_a(s, F, rd):
        p = s >> 1; u = s & 1
        sl = p % NSL
        base, off = (VA, sl*PAIR) if sl < 4 else (VA2, (sl-4)*PAIR)
        a(f"ds_read_b64_tr_b16 {vr(AS[s % 3]+4*F+2*rd,2)}, v{base} offset:{off + u*5120 + rd*1280 + F*32}", tag=('A', s, F))
    a.wait_vm(('W', 0))
    a("s_barrier")
    for s in range(2):
        for F in range(5):
            rd_a(s, F, 0); rd_a(s, F, 1)
    mark(a)
    POLL = HS - TD - 6
    for s in range(NSTEP):
        p = s >> 1; u = s & 1
        if s == HS: mark(a)
        if u == 0 and p + 1 < NP:
            a.wait_vm(('W', p + 1))
            a("s_barrier")
            if p + NSL - 1 < NP: dma_w(p + NSL - 1)
        if OPT['mega'] and s == POLL:
            a(f"buffer_load_dword v{VF+1}, v{VF}, s[{SRD_WS}:{SRD_WS+3}], 0 offen sc1", tag='fo')
        if OPT['mega'] and s + TD == HS:
            L = uid("fo")
            a.wait_vm('fo')
            vm_keep = list(a.vm)
            a.label(L)
            a(f"v_cmp_ne_u32 vcc, s{S_NONCE}, v{VF+1}")
            a("s_nop 4")
            a(f"s_cbranch_vccz {L}_ok")
            a("s_sleep 1")
            a(f"buffer_load_dword v{VF+1}, v{VF}, s[{SRD_WS}:{SRD_WS+3}], 0 offen sc1")
            a("s_waitcnt vmcnt(0)")
            a(f"s_branch {L}")
            a.label(f"{L}_ok")
            a.vm = vm_keep
        a.wait_vm(('T', s))
        for F in range(5):
            a.wait_lg(('A', s, F))
            acc = (ACB if s < HS else ACA) + 4*F
            d = vr(acc, 4)
            c = "0" if s == HS else d
            a(f"v_mfma_f32_16x16x32_bf16 {d}, {vr(AS[s % 3]+4*F,4)}, {vr(TR+4*(s % NT),4)}, {c}")
            if s + 2 < NSTEP:
                rd_a(s + 2, F, 0); rd_a(s + 2, F, 1)
            if F == 2 and s + TD < NSTEP:
                ld_t(s + TD)
    mark(a)
    a.wait_vm('g')
    a(f"v_sub_f32 v{t0}, 1.0, v{VG}")
    for r in range(20):
        a(f"v_mul_f32 v{ACB+r}, v{ACB+r}, v{t0}")
    for r in range(20):
        a(f"v_fmac_f32 v{ACB+r}, v{ACA+r}, v{VG}")
    for F in range(5):
        d = AS[0] + 2*F
        a(f"v_cvt_pk_bf16_f32 v{d}, v{ACB+4*F}, v{ACB+4*F+1}")
        a(f"v_cvt_pk_bf16_f32 v{d+1}, v{ACB+4*F+2}, v{ACB+4*F+3}")
        a(f"buffer_store_dwordx2 {vr(d,2)}, v{VO}, s[{SRD_B}:{SRD_B+3}], 0 offen offset:{32*F}")
    a.reset_counters()

def start_prefetch(a, role):
    if OPT['pf_code']:
        prefetch_code(a, "L_endA" if role == 'A' else "L_endB", 1 if role == 'A' else 2)
    if role == 'B' and OPT['pf_w1']:
        L = uid("pw")
        a(f"s_lshr_b32 s{T1}, s{S_I}, 2")
        a(f"s_cmp_ge_u32 s{T1}, 7")
        a(f"s_cbranch_scc1 {L}")
        a(f"s_and_b32 s{T0}, s{S_X}, 1")
        a(f"s_mul_i32 s{T0}, s{T0}, 7")
        a(f"s_add_u32 s{T0}, s{T0}, s{T1}")
        a(f"s_lshl_b32 s{T0}, s{T0}, 8")
        a(f"s_and_b32 s{T1}, s{S_I}, 3")
        a(f"s_mul_i32 s{T1}, s{T1}, {160*3456}")
        a(f"s_add_u32 s{T0}, s{T0}, s{T1}")
        srd(a, SRD_C, P_W1, SIZES['W1'])
        a("v_lshrrev_b32 v250, 1, v0")
        a(f"s_movk_i32 s{T1}, 3456")
        a(f"v_mul_lo_u32 v250, v250, s{T1}")
        a("v_and_b32 v251, 1, v0")
        a("v_lshl_add_u32 v250, v251, 7, v250")
        a(f"v_add_u32 v250, s{T0}, v250")
        vm = list(a.vm)
        a(f"buffer_load_dword v253, v250, s[{SRD_C}:{SRD_C+3}], 0 offen")
        a(f"v_add_u32 v250, {128*3456}, v250")
        a("v_mov_b32 v251, 0x7ffffff0")
        a(f"v_cmp_gt_u32 s[{T4}:{T4+1}], 64, v0")
        a(f"v_cndmask_b32 v250, v251, v250, s[{T4}:{T4+1}]")
        a(f"buffer_load_dword v253, v250, s[{SRD_C}:{SRD_C+3}], 0 offen")
        a.vm = vm
        a.label(L)

def build_multi():
    LDS = 73728
    ks = []
    def mk(name, fa, fb):
        a = Asm()
        a("s_cmp_ge_u32 s2, 512")
        a(f"s_cbranch_scc1 {name}_end")
        prologue(a)
        kidx = len(ks)
        stamp(a, kidx, 0)
        CTX['k'] = kidx; CTX['slot'] = 0
        a("s_cmp_ge_u32 s2, 256")
        a(f"s_cbranch_scc1 {name}_b")
        for n, f in enumerate(fa):
            f(a, name + "_" + f.__name__)
            if STAMPS: a("s_waitcnt vmcnt(0)"); mark(a)
        a(f"s_branch {name}_end")
        a.label(f"{name}_b")
        a.reset_counters()
        CTX['slot'] = 0
        for n, f in enumerate(fb):
            f(a, name + "_" + f.__name__)
            if STAMPS: a("s_waitcnt vmcnt(0)"); mark(a)
        a.label(f"{name}_end")
        ks.append((name, a.text()))
    def rp_multi(a, lbl):
        a(f"s_cmp_ge_u32 s{S_IDX}, {NRP}")
        a(f"s_cbranch_scc1 {lbl}_no")
        a(f"s_mov_b32 s{S_KO}, s{S_IDX}")
        stage_repack(a, lbl, S_KO)
        a.label(f"{lbl}_no")
    if OPT.get('split'):
        mk("k1_kernel", [stage_qkv], [])
        mk("k2_kernel", [], [stage_ln, rp_multi])
        mk("k3_kernel", [stage_attn], [])
        mk("k4_kernel", [], [stage_ffn1])
        mk("k5_kernel", [], [stage_final])
        return ks, LDS
    mk("k1_kernel", [stage_qkv], [stage_ln, rp_multi])
    mk("k2_kernel", [stage_attn], [stage_ffn1])
    mk("k3_kernel", [], [stage_final])
    return ks, LDS

def build_mega():
    OPT['mega'] = True
    LDS = OPT.get('lds', 73728)
    name = NAME + "_kernel"
    a = Asm()
    a("s_cmp_ge_u32 s2, 512")
    a("s_cbranch_scc1 L_end")
    prologue(a)
    nonce_post(a)
    if OPT.get('spin'):
        a("s_memrealtime s[94:95]")
        a("s_waitcnt lgkmcnt(0)")
        a("s_mov_b32 s63, s94") if False else None
        a("v_mov_b32 v249, s94")
    stamp(a, 0, 0); CTX['k'] = 0; CTX['slot'] = 0
    if STAMPS:
        a("s_getreg_b32 s98, hwreg(HW_REG_HW_ID)")
        a("s_getreg_b32 s99, hwreg(HW_REG_XCC_ID)")
        a("s_and_b32 s98, s98, 0xffff")
        a("s_and_b32 s99, s99, 0xf")
        a("s_lshl_b32 s99, s99, 16")
        a("s_or_b32 s98, s98, s99")
        a("s_lshl_b32 s97, s2, 7")
        a(f"s_add_u32 s97, s97, {WS_STAMP + 15*4}")
        a("v_mov_b32 v254, s98")
        a(f"buffer_store_dword v254, off, s[{SRD_WS}:{SRD_WS+3}], s97")
        a.vm.pop()
    dbgtime(a, 1, OPT.get('wa', 0)); dbgtime(a, 7, OPT.get('wb', 256))
    a("s_cmp_ge_u32 s2, 256")
    a("s_cbranch_scc1 L_roleB")
    if OPT.get('prioA'): a(f"s_setprio {OPT['prioA']}")
    stage_qkv(a, "qkv"); mark(a); dbgtime(a, 2, OPT.get('wa', 0))
    if OPT.get('prioA'): a(f"s_setprio {OPT.get('prioA2', 0)}")
    stage_attn(a, "attn"); mark(a); dbgtime(a, 3, OPT.get('wa', 0))
    a("s_endpgm")
    a.label("L_endA")
    a.label("L_roleB")
    a.reset_counters(); CTX['slot'] = 0
    if OPT.get('prioB'): a(f"s_setprio {OPT['prioB']}")
    stage_ln(a, "ln"); mark(a); dbgtime(a, 8, OPT.get('wb', 256))
    stage_ffn1(a, "ffn1"); mark(a); dbgtime(a, 10, OPT.get('wb', 256))
    stage_final(a, "fin")
    if STAMPS or OPT.get('dbgtime'): a("s_waitcnt vmcnt(0)")
    mark(a); dbgtime(a, 11, OPT.get('wb', 256))
    if OPT.get('spin'):
        a("s_cmp_lg_u32 s2, 256")
        a("s_cbranch_scc1 L_endB")
        a("s_waitcnt vmcnt(0)")
        a("v_readfirstlane_b32 s90, v249")
        a("s_memrealtime s[92:93]")
        a("s_waitcnt lgkmcnt(0)")
        a("s_sub_u32 s91, s92, s90")
        a(f"s_mul_i32 s91, s91, {OPT['spin'] + 1}")
        a.label("L_spin")
        a("s_memrealtime s[92:93]")
        a("s_waitcnt lgkmcnt(0)")
        a("s_sub_u32 s93, s92, s90")
        a("s_cmp_lt_u32 s93, s91")
        a("s_cbranch_scc1 L_spin")
    a.label("L_endB")
    a.label("L_end")
    return [(name, a.text())], LDS

def header_comment():
    ref = open("cdna_kernels/" + NAME + ".s.ref").read().split("\n")
    return [l for l in ref if l.startswith(";") and "@launch" not in l and "Override" not in l and "grid=ceil" not in l]

def emit(ks, LDS, grid=512):
    s = "\n".join(header_comment()) + "\n"
    if len(ks) == 1:
        s += f"; @launch grid=({grid},1,1) block=(256,1,1) lds={LDS}\n"
    else:
        for name, _ in ks:
            s += f"; @launch kernel={name} grid=({grid},1,1) block=(256,1,1) lds={LDS}\n"
    s += '.amdgcn_target "amdgcn-amd-amdhsa--gfx950"\n.text\n'
    for name, body in ks:
        s += kernel_text(name, body, grid, LDS)
    s += '.section .rodata,"a"\n'
    for name, _ in ks:
        s += ".p2align 6\n" + descriptor(name)
    return s

if __name__ == "__main__":
    mode = sys.argv[1] if len(sys.argv) > 1 else "multi"
    if "stamps" in sys.argv: STAMPS = True
    for arg in sys.argv[2:]:
        if "=" in arg:
            k, v = arg.split("="); OPT[k] = int(v)
    ks, LDS = build_multi() if mode == "multi" else build_mega()
    sys.stdout.write(emit(ks, LDS))
```

```python
import re

_REG = re.compile(r'(?<![\w.])(-?)(?:abs\()?([vas])(?:\[(\d+):(\d+)\]|(\d+))(?![\w])')

def regs_of(op):
    op = op.strip()
    out = set()
    if op in ('vcc', 'vcc_lo', 'vcc_hi'):
        return {('s', 'vcc')}
    if op in ('exec', 'exec_lo', 'exec_hi'):
        return {('s', 'exec')}
    if op == 'm0':
        return {('s', 'm0')}
    m = _REG.fullmatch(op) or _REG.match(op)
    if m and m.start() == 0:
        k = m.group(2)
        if m.group(3) is not None:
            for i in range(int(m.group(3)), int(m.group(4)) + 1):
                out.add((k, i))
        else:
            out.add((k, int(m.group(5))))
    return out

TRANS = ('v_exp_f32', 'v_log_f32', 'v_rcp_f32', 'v_rsq_f32', 'v_sqrt_f32', 'v_sin_f32', 'v_cos_f32', 'v_exp_f16', 'v_rcp_iflag_f32')

class Ins:
    __slots__ = ('text', 'mn', 'ops', 'cls', 'wr', 'rd', 'states', 'passes', 'mods')

def split_ops(rest):
    ops, cur, depth = [], '', 0
    for ch in rest:
        if ch == '[': depth += 1
        if ch == ']': depth -= 1
        if ch == ',' and depth == 0:
            ops.append(cur.strip()); cur = ''
        else:
            cur += ch
    if cur.strip(): ops.append(cur.strip())
    return ops

def parse(text):
    t = text.split(';')[0].strip()
    ins = Ins(); ins.text = text; ins.wr = set(); ins.rd = set(); ins.states = 1; ins.passes = 0; ins.mods = ''
    if not t or t.endswith(':') or t.startswith('.'):
        ins.mn = ''; ins.cls = 'none'; ins.states = 0; ins.ops = []
        return ins
    parts = t.split(None, 1)
    mn = parts[0]; ins.mn = mn
    rest = parts[1] if len(parts) > 1 else ''
    ops = split_ops(rest)
    if ops:
        last = ops[-1].split()
        ops[-1] = last[0] if last else ''
        ins.mods = ' '.join(last[1:])
    ins.ops = ops
    R = [regs_of(o) for o in ops]
    allr = lambda idx: set().union(*[R[i] for i in idx if i < len(R)]) if idx else set()
    n = len(ops)
    if mn.startswith('v_mfma'):
        ins.cls = 'mfma'
        ins.wr = R[0]; ins.rd = allr(range(1, n))
        ins.passes = 8 if '32x32' in mn else 4
    elif mn.startswith('v_'):
        ins.cls = 'valu'
        base = mn.replace('_e32', '').replace('_e64', '').replace('_dpp', '')
        if base.startswith('v_cmp'):
            ins.wr = set(R[0]); ins.rd = allr(range(1, n))
            if base.startswith('v_cmpx'): ins.wr.add(('s', 'exec'))
        elif base.startswith('v_permlane') and 'swap' in base:
            ins.wr = R[0] | R[1]; ins.rd = R[0] | R[1]
        elif base in ('v_add_co_u32', 'v_sub_co_u32', 'v_addc_co_u32', 'v_subrev_co_u32'):
            ins.wr = R[0] | R[1]; ins.rd = allr(range(2, n))
        else:
            ins.wr = set(R[0]); ins.rd = allr(range(1, n))
            if base in ('v_fmac_f32', 'v_dot2c_f32_bf16', 'v_writelane_b32', 'v_pk_fmac_f16'):
                ins.rd |= R[0]
            if base == 'v_cndmask_b32' and n == 3:
                ins.rd.add(('s', 'vcc'))
    elif mn.startswith('ds_'):
        ins.cls = 'ds'
        if mn.startswith('ds_read') or mn.startswith('ds_bpermute') or mn.startswith('ds_swizzle') or mn.startswith('ds_permute'):
            ins.wr = R[0]; ins.rd = allr(range(1, n))
        else:
            ins.rd = allr(range(n))
    elif mn.startswith('buffer_') or mn.startswith('global_') :
        ins.cls = 'vmem'
        lds = ' lds' in (' ' + ins.mods) or 'load_lds' in mn
        if mn in ('buffer_inv', 'buffer_wbl2'):
            pass
        elif 'load' in mn and not lds:
            ins.wr = R[0]; ins.rd = allr(range(1, n))
        elif 'load' in mn:
            ins.rd = allr(range(n)) | {('s', 'm0')}
        elif mn.startswith('buffer_store'):
            ins.rd = allr(range(n))
        elif mn.startswith('global_store'):
            ins.rd = allr(range(n))
        elif 'atomic' in mn:
            ins.rd = allr(range(n))
            if 'sc0' in ins.mods: ins.wr = R[0]
        else:
            ins.rd = allr(range(n))
    elif mn.startswith('s_'):
        ins.cls = 'salu'
        if mn == 's_nop':
            ins.states = int(ops[0], 0) + 1
        elif mn.startswith(('s_cmp', 's_cbranch', 's_branch', 's_waitcnt', 's_barrier', 's_sleep', 's_setprio', 's_endpgm', 's_bitcmp')):
            ins.rd = allr(range(n))
        elif mn.startswith('s_load') or mn.startswith('s_mem'):
            ins.cls = 'smem'
            ins.wr = R[0]; ins.rd = allr(range(1, n))
        else:
            ins.wr = set(R[0]) if R else set(); ins.rd = allr(range(1, n))
            if 'saveexec' in mn: ins.wr.add(('s', 'exec')); ins.rd.add(('s', 'exec'))
    else:
        raise ValueError('unknown instruction: ' + text)
    return ins

def is_trans(i):
    return i.cls == 'valu' and i.mn.replace('_e32', '').replace('_e64', '') in TRANS

def vv(s):
    return {r for r in s if r[0] in 'va'}
def ss(s):
    return {r for r in s if r[0] == 's'}

def store_data(i):
    if i.cls != 'vmem' or 'store' not in i.mn or not (i.mn.endswith('x4') or i.mn.endswith('x3')):
        return set()
    idx = 0 if i.mn.startswith('buffer') else 1
    return regs_of(i.ops[idx])

def need(prev, cur):
    n = 0
    pw, cw, cr = prev.wr, cur.wr, cur.rd
    if prev.cls == 'valu':
        pv = vv(pw); ps = ss(pw)
        if pv:
            if cur.cls == 'mfma' and pv & vv(cr): n = max(n, 2)
            if cur.cls == 'valu':
                if ('dpp' in cur.mn or 'row_' in cur.mods or 'quad_perm' in cur.mods) and pv & vv(cr): n = max(n, 2)
                if cur.mn.startswith(('v_readlane', 'v_readfirstlane')) and pv & vv(cr): n = max(n, 1)
                if cur.mn.startswith('v_permlane') and pv & vv(cr): n = max(n, 2)
                if is_trans(prev) and not is_trans(cur) and pv & (vv(cr)): n = max(n, 1)
        if ps:
            if cur.cls == 'vmem' and ps & cr: n = max(n, 5)
            if cur.cls in ('valu', 'mfma') and ps & cr:
                n = max(n, 4 if cur.mn.startswith(('v_readlane', 'v_writelane')) else 2)
            if ('s', 'exec') in ps:
                if cur.cls == 'mfma': n = max(n, 4)
                if cur.cls == 'valu' and (cur.mn.startswith(('v_readlane', 'v_readfirstlane', 'v_writelane', 'v_permlane'))): n = max(n, 4)
                if cur.cls == 'valu' and ('dpp' in cur.mn or 'row_' in cur.mods): n = max(n, 5)
            if cur.cls == 'salu' and ps & cr: n = max(n, 1)
    if prev.cls == 'valu' and prev.mn.startswith('v_dot'):
        pv = vv(pw)
        if cur.mn == prev.mn:
            srcs = set().union(*[regs_of(o) for o in cur.ops[1:3]])
            if pv & vv(srcs): n = max(n, 3)
        elif pv & (vv(cr) | vv(cw)): n = max(n, 3)
    if prev.cls == 'mfma':
        d = vv(pw); p = prev.passes
        if cur.cls == 'mfma':
            a = regs_of(cur.ops[1]) | regs_of(cur.ops[2]); c = regs_of(cur.ops[3])
            if d & a: n = max(n, {4: 8, 8: 12}[p])
            if d & c and not (c == d and cur.passes == p): n = max(n, {4: 6, 8: 10}[p])
            if d & vv(cw) and not (vv(cw) == d and c == d and cur.passes == p):
                n = max(n, {4: 6, 8: 10}[p])
        elif cur.cls in ('valu', 'ds', 'vmem'):
            if d & (vv(cr) | vv(cw)): n = max(n, {4: 8, 8: 12}[p])
        if cur.cls == 'valu':
            c = regs_of(prev.ops[3])
            if c & vv(cw): n = max(n, {4: 3, 8: 7}[p])
    if prev.cls == 'salu':
        if ('s', 'm0') in pw and cur.cls == 'vmem' and ('s', 'm0') in cr: n = max(n, 1)
        if ('s', 'exec') in pw and cur.cls == 'valu' and ('dpp' in cur.mn or 'row_' in cur.mods): n = max(n, 0)
    sd = store_data(prev)
    if sd:
        if cur.cls == 'valu' and sd & vv(cw): n = max(n, 2)
        elif sd & vv(cw): n = max(n, 1)
    return n

class Asm:
    def __init__(self):
        self.out = []
        self.vm = []
        self.lg = []
        self.nops = 0
        self.check = True

    def raw(self, text):
        i = Ins(); i.text = text; i.mn = ''; i.cls = 'none'; i.states = 0; i.ops = []; i.wr = set(); i.rd = set(); i.passes = 0; i.mods = ''
        self.out.append(i)

    def label(self, name):
        self.raw(name + ':')

    def comment(self, t):
        self.raw('    ; ' + t)

    def __call__(self, text, tag=None):
        for line in text.strip('\n').split('\n'):
            line = line.strip()
            if not line or line.startswith(';'):
                continue
            if line.endswith(':'):
                self.raw(line); continue
            self.emit(line, tag)

    def emit(self, line, tag=None):
        cur = parse(line)
        if self.check:
            dist = 0; req = 0
            for prev in reversed(self.out):
                if prev.cls == 'none':
                    continue
                r = need(prev, cur)
                if r > dist: req = max(req, r - dist)
                dist += prev.states
                if dist >= 12: break
            while req > 0:
                k = min(req, 16)
                nop = parse(f's_nop {k-1}'); nop.text = '    ' + nop.text
                self.out.append(nop); self.nops += 1; req -= k
        cur.text = '    ' + line
        self.out.append(cur)
        if cur.cls == 'vmem':
            self.vm.append(tag)
        elif cur.cls == 'ds':
            self.lg.append(tag)
        elif cur.mn == 's_waitcnt':
            m = re.search(r'vmcnt\((\d+)\)', line)
            if m:
                k = int(m.group(1)); self.vm = self.vm[len(self.vm) - k:] if k and k < len(self.vm) else (self.vm if k >= len(self.vm) and k else [])
            m = re.search(r'lgkmcnt\((\d+)\)', line)
            if m:
                k = int(m.group(1)); self.lg = self.lg[len(self.lg) - k:] if k and k < len(self.lg) else (self.lg if k >= len(self.lg) and k else [])

    def _count_after(self, lst, tags):
        if not isinstance(tags, (list, set)): tags = [tags]
        last = -1
        for i, t in enumerate(lst):
            if t in tags: last = i
        if last < 0: return None
        return len(lst) - 1 - last

    def wait_vm(self, tags, extra=''):
        n = self._count_after(self.vm, tags)
        if n is None: return
        self.emit(f's_waitcnt vmcnt({min(n, 63)})')

    def wait_lg(self, tags):
        n = self._count_after(self.lg, tags)
        if n is None: return
        self.emit(f's_waitcnt lgkmcnt({min(n, 15)})')

    def wait_all(self):
        self.emit('s_waitcnt vmcnt(0) lgkmcnt(0)')

    def reset_counters(self):
        self.vm = []; self.lg = []

    def text(self):
        return '\n'.join(i.text for i in self.out) + '\n'
```

```python
import sys
from asmlib import Asm

NAME = "gated_mix__sliding_block__mixer_channel_mlp__prompt"

WS_Y    = 0x0000000
WS_G    = 0x0280000
WS_QKV  = 0x0300000
WS_H    = 0x0B00000
WS_O    = 0x1200000
WS_WF   = 0x1500000
WS_FLAG = 0x1800000
WS_STAMP = 0x1900000
WS_SIZE = 0x1A00000
WF_TILE = 2368 * 160
FY, FW, FQ, FH, FO = 0, 2048, 3072, 5120, 7168
OPT = dict(mega=False, rot=True, pf_code=True, pf_w1=True, pf_wf=True, tlb=True)

P_AX, P_WQKV, P_WO, P_BX, P_W1, P_B1, P_W2, P_B2 = 4, 6, 8, 10, 12, 14, 16, 18
P_GW, P_OUT, P_DBG, P_WS = 20, 22, 24, 26
SRD_A, SRD_B, SRD_WS, SRD_C = 28, 32, 36, 40
S_W, S_IDX, S_X, S_I = 44, 45, 46, 47
T0, T1, T2, T3, T4, T5, T6, T7 = 48, 49, 50, 51, 52, 53, 54, 55
S_RB, S_CJ = 56, 57
S_KX, S_KW, S_M0 = 58, 59, 60
S_MASK = 64
S_NONCE = 96
S_KO = 62

SIZES = dict(AX=2048*640*2, WQKV=640*1920*2, WO=640*640*2, BX=2048*640*2, W1=640*1728*2, B1=1728*2,
             W2=1728*640*2, B2=640*2, GW=640*2, OUT=2048*640*2)

def srd(a, dst, ptr, size):
    a(f"s_mov_b32 s{dst}, s{ptr}")
    a(f"s_and_b32 s{dst+1}, s{ptr+1}, 0xffff")
    a(f"s_mov_b32 s{dst+2}, {size}")
    a(f"s_mov_b32 s{dst+3}, 0x20000")

def vr(b, n=1):
    return f"v{b}" if n == 1 else f"v[{b}:{b+n-1}]"

def prologue(a):
    a("s_load_dwordx16 s[4:19], s[0:1], 0")
    a("s_load_dwordx8 s[20:27], s[0:1], 64")
    a("v_lshrrev_b32 v2, 6, v0")
    a("v_and_b32 v1, 63, v0")
    a(f"v_readfirstlane_b32 s{S_W}, v2")
    a(f"s_and_b32 s{S_IDX}, s2, 255")
    if OPT.get('xperm'):
        a(f"s_add_u32 s{S_X}, s2, {OPT['xperm']}")
        a(f"s_and_b32 s{S_X}, s{S_X}, 7")
    else:
        a(f"s_and_b32 s{S_X}, s2, 7")
    a(f"s_lshr_b32 s{S_I}, s{S_IDX}, 3")
    a("s_waitcnt lgkmcnt(0)")
    srd(a, SRD_WS, P_WS, WS_SIZE)


_uid = [0]
def uid(p):
    _uid[0] += 1
    return f"{p}_{_uid[0]}"

def nonce_post(a):
    L = uid("np")
    a(f"s_or_b32 s{T0}, s2, s{S_W}")
    a(f"s_cmp_lg_u32 s{T0}, 0")
    a(f"s_cbranch_scc1 {L}")
    a(f"s_memrealtime s[{T4}:{T4+1}]")
    a("s_waitcnt lgkmcnt(0)")
    a(f"s_or_b32 s{T4}, s{T4}, 1")
    a(f"v_mov_b32 v2, s{T4}")
    a("v_mov_b32 v3, 0")
    a("s_mov_b64 exec, 1")
    a(f"global_store_dword v3, v2, s[{P_DBG}:{P_DBG+1}] sc1")
    a("s_mov_b64 exec, -1")
    a.vm.pop()
    a.label(L)

def nonce_load(a, v):
    a(f"v_mov_b32 v{v+1}, 0")
    a(f"global_load_dword v{v}, v{v+1}, s[{P_DBG}:{P_DBG+1}] sc1", tag='nonce')

def nonce_get(a, v):
    L = uid("ng")
    a.wait_vm('nonce')
    a.label(L)
    a(f"v_readfirstlane_b32 s{S_NONCE}, v{v}")
    a(f"s_cmp_lg_u32 s{S_NONCE}, 0")
    a(f"s_cbranch_scc1 {L}_ok")
    a("s_sleep 2")
    a(f"global_load_dword v{v}, v{v+1}, s[{P_DBG}:{P_DBG+1}] sc1")
    a("s_waitcnt vmcnt(0)")
    a(f"s_branch {L}")
    a.label(f"{L}_ok")

def publish(a, sflag, v):
    L = uid("pub")
    a("s_waitcnt vmcnt(0)")
    a("s_barrier")
    a(f"s_cmp_lg_u32 s{S_W}, 0")
    a(f"s_cbranch_scc1 {L}")
    a(f"v_mov_b32 v{v}, s{S_NONCE}")
    a("s_mov_b64 exec, 1")
    a(f"buffer_store_dword v{v}, off, s[{SRD_WS}:{SRD_WS+3}], s{sflag} sc1")
    a("s_mov_b64 exec, -1")
    a.label(L)
    a.reset_counters()

def wait_flags(a, voff, vtmp, smask):
    L = uid("wf")
    keep = list(a.vm)
    a(f"s_cmp_lg_u32 s{S_W}, 0")
    a(f"s_cbranch_scc1 {L}_done")
    a(f"s_mov_b64 exec, s[{smask}:{smask+1}]")
    a.label(L)
    a(f"buffer_load_dword v{vtmp}, v{voff}, s[{SRD_WS}:{SRD_WS+3}], 0 offen sc1")
    a("s_waitcnt vmcnt(0)")
    a(f"v_cmp_ne_u32 vcc, s{S_NONCE}, v{vtmp}")
    a("s_nop 4")
    a(f"s_cbranch_vccz {L}_ok")
    a("s_sleep 1")
    a(f"s_branch {L}")
    a.label(f"{L}_ok")
    a("s_mov_b64 exec, -1")
    a.label(f"{L}_done")
    a("s_barrier")
    a.vm = keep

def touch_lines(a, srd_, vbase, n, stride, dst, soff='0', sc=''):
    for k in range(n):
        a(f"buffer_load_dword v{dst}, v{vbase}, s[{srd_}:{srd_+3}], {soff} offen {sc}".rstrip(), tag='touch')
        if k + 1 < n: a(f"v_add_u32 v{vbase}, {stride}, v{vbase}")

def prefetch_code(a, lbl_end, per):
    L = uid("pc")
    a(f"s_getpc_b64 s[{T4}:{T4+1}]")
    a.label(L)
    a(f"s_mul_i32 s{T0}, s{S_W}, {per*8192}")
    a("v_lshlrev_b32 v252, 7, v1")
    a(f"v_add_u32 v252, s{T0}, v252")
    for k in range(per):
        a(f"v_min_u32 v251, {lbl_end}-{L}-4, v252")
        a(f"global_load_dword v253, v251, s[{T4}:{T4+1}]", tag='touch')
        if k + 1 < per: a("v_add_u32 v252, 8192, v252")

def stage_qkv(a, lbl):
    XS = [0, 16384, 32768]
    WB = 49152
    a(f"s_lshr_b32 s{T0}, s{S_X}, 1")
    a(f"s_lshl_b32 s{T0}, s{T0}, 2")
    a(f"s_and_b32 s{T1}, s{S_I}, 3")
    a(f"s_add_u32 s{S_RB}, s{T0}, s{T1}")
    a(f"s_and_b32 s{T0}, s{S_X}, 1")
    a(f"s_lshl_b32 s{T0}, s{T0}, 3")
    a(f"s_lshr_b32 s{T1}, s{S_I}, 2")
    a(f"s_add_u32 s{S_CJ}, s{T0}, s{T1}")
    a(f"s_cmp_ge_u32 s{S_CJ}, 15")
    a(f"s_cbranch_scc1 {lbl}_skip")
    srd(a, SRD_A, P_AX, SIZES['AX'])
    srd(a, SRD_B, P_WQKV, SIZES['WQKV'])
    VXD, VWD = 2, 6
    VXF, VWF = 8, 12
    VT = 14
    FB = [20, 36]
    ACC = 64
    t0, t1, t2, t3 = VT, VT+1, VT+2, VT+3
    a(f"s_lshl_b32 s{T0}, s{S_RB}, 7")
    a(f"s_lshr_b32 s{T1}, s{S_W}, 1")
    a(f"s_lshl_b32 s{T1}, s{T1}, 6")
    a(f"s_add_u32 s{T0}, s{T0}, s{T1}")
    a(f"s_and_b32 s{T1}, s{S_W}, 1")
    a(f"s_add_u32 s{T0}, s{T0}, s{T1}")
    a(f"v_lshrrev_b32 v{t0}, 3, v1")
    a(f"v_lshlrev_b32 v{t0}, 1, v{t0}")
    a(f"v_add_u32 v{t0}, s{T0}, v{t0}")
    a(f"s_movk_i32 s{T2}, 1280")
    a(f"v_mul_lo_u32 v{t0}, v{t0}, s{T2}")
    a(f"v_lshrrev_b32 v{t1}, 4, v1")
    a(f"v_and_b32 v{t2}, 7, v1")
    a(f"v_xor_b32 v{t2}, v{t2}, v{t1}")
    a(f"v_xor_b32 v{t3}, 4, v{t2}")
    for i in range(4):
        src = t2 if i % 2 == 0 else t3
        a(f"v_lshl_add_u32 v{VXD+i}, v{src}, 4, v{t0}")
        if i:
            a(f"v_add_u32 v{VXD+i}, {i*(16*1280-1024)}, v{VXD+i}")
    a(f"s_lshl_b32 s{T0}, s{S_W}, 3")
    a(f"v_lshrrev_b32 v{t0}, 4, v1")
    a(f"v_add_u32 v{t1}, s{T0}, v{t0}")
    a(f"s_movk_i32 s{T2}, 3840")
    a(f"v_mul_lo_u32 v{t1}, v{t1}, s{T2}")
    a(f"v_bfe_u32 v{t2}, v1, 2, 2")
    a(f"v_xor_b32 v{t2}, v{t2}, v{t0}")
    a(f"v_and_b32 v{t3}, 3, v1")
    a(f"v_lshl_add_u32 v{t2}, v{t2}, 2, v{t3}")
    a(f"v_lshl_add_u32 v{t1}, v{t2}, 4, v{t1}")
    a(f"s_lshl_b32 s{T0}, s{S_CJ}, 8")
    a(f"v_add_u32 v{VWD}, s{T0}, v{t1}")
    a(f"v_add_u32 v{VWD+1}, {4*3840-1024}, v{VWD}")
    a(f"s_lshl_b32 s{T6}, s{S_W}, 12")
    a(f"s_lshl_b32 s{T7}, s{S_W}, 11")
    if OPT['rot']:
        a(f"s_and_b32 s{T0}, s{S_I}, 3")
        a(f"s_mul_i32 s{T0}, s{T0}, 10")
        a(f"s_lshr_b32 s{T1}, s{S_I}, 2")
        a(f"s_mul_i32 s{T1}, s{T1}, 5")
        a(f"s_add_u32 s{T0}, s{T0}, s{T1}")
        a(f"s_lshr_b32 s{T0}, s{T0}, 2")
        a(f"s_sub_u32 s{T1}, s{T0}, 10")
        a(f"s_cmp_ge_u32 s{T0}, 10")
        a(f"s_cselect_b32 s{T0}, s{T1}, s{T0}")
        a(f"s_lshl_b32 s{S_KX}, s{T0}, 7")
        a(f"s_mul_i32 s{S_KW}, s{T0}, {64*3840}")
    else:
        a(f"s_mov_b32 s{S_KX}, 0")
        a(f"s_mov_b32 s{S_KW}, 0")
    def adv(sreg, step, wrap):
        if OPT.get('hot'): return
        a(f"s_add_u32 s{sreg}, s{sreg}, {step}")
        a(f"s_cmp_eq_u32 s{sreg}, {wrap}")
        a(f"s_cselect_b32 s{sreg}, 0, s{sreg}")
    NWS = OPT.get('nws', 4)
    def dma_x(b, part=None):
        a(f"s_add_u32 m0, s{T6}, {XS[b % 3]}")
        if b > 0 and part in (None, 0): adv(S_KX, 128, 1280)
        for i in (range(4) if part is None else range(2*part, 2*part+2)):
            a(f"buffer_load_dwordx4 v{VXD+i}, s[{SRD_A}:{SRD_A+3}], s{S_KX} offen offset:{i*1024} lds", tag=('X', b))
    def dma_w(h):
        a(f"s_add_u32 m0, s{T7}, {WB + (h % NWS)*8192}")
        if h > 0: adv(S_KW, 32*3840, 640*3840)
        for i in range(2):
            a(f"buffer_load_dwordx4 v{VWD+i}, s[{SRD_B}:{SRD_B+3}], s{S_KW} offen offset:{i*1024} lds", tag=('W', h))
    dma_x(0); dma_w(0); dma_w(1); dma_x(1)
    for h in range(2, NWS - 1): dma_w(h)
    if OPT['mega']: start_prefetch(a, 'A')
    a(f"s_and_b32 s{T0}, s{S_W}, 1")
    a(f"s_lshl_b32 s{T0}, s{T0}, 13")
    a(f"v_and_b32 v{t0}, 31, v1")
    a(f"v_lshrrev_b32 v{t1}, 5, v1")
    a(f"v_bfe_u32 v{t2}, v1, 1, 3")
    a(f"v_lshlrev_b32 v{t0}, 7, v{t0}")
    a(f"v_add_u32 v{t0}, s{T0}, v{t0}")
    for s in range(4):
        a(f"v_or_b32 v{t3}, {2*s}, v{t1}")
        a(f"v_xor_b32 v{t3}, v{t3}, v{t2}")
        a(f"v_lshl_add_u32 v{VXF+s}, v{t3}, 4, v{t0}")
    a(f"v_bfe_u32 v{t0}, v1, 2, 2")
    a(f"v_lshl_add_u32 v{t1}, v{t1}, 3, v{t0}")
    a(f"v_lshlrev_b32 v{t1}, 8, v{t1}")
    a(f"v_bfe_u32 v{t2}, v1, 4, 1")
    a(f"v_lshl_add_u32 v{t1}, v{t2}, 5, v{t1}")
    a(f"v_and_b32 v{t2}, 3, v1")
    a(f"v_lshl_add_u32 v{t1}, v{t2}, 3, v{t1}")
    a(f"v_add_u32 v{t1}, {WB}, v{t1}")
    a(f"s_and_b32 s{T0}, s{S_W}, 2")
    for ft in range(2):
        a(f"s_or_b32 s{T1}, s{T0}, {ft}")
        a(f"v_xor_b32 v{t2}, s{T1}, v{t0}")
        a(f"v_lshl_add_u32 v{VWF+ft}, v{t2}, 6, v{t1}")
    def rd_b(st, hh, sp, tt):
        xb = hh >> 1; sx = 2*(hh & 1) + sp
        a(f"ds_read_b128 {vr(FB[st]+4*tt,4)}, v{VXF+sx} offset:{XS[xb % 3] + tt*4096}", tag=('f', hh, sp))
    def rd_a(st, hh, sp, ft, rd):
        a(f"ds_read_b64_tr_b16 {vr(FB[st]+8+4*ft+2*rd,2)}, v{VWF+ft} offset:{(hh % NWS)*8192 + sp*4096 + rd*1024}", tag=('f', hh, sp))
    def mf(st, tt, ft, first):
        d = vr(ACC+16*(2*tt+ft), 16)
        c = "0" if first else d
        a(f"v_mfma_f32_32x32x16_bf16 {d}, {vr(FB[st]+8+4*ft,4)}, {vr(FB[st]+4*tt,4)}, {c}")
    NH = 20
    def w_pre(h):
        a(f"s_add_u32 m0, s{T7}, {WB + (h % NWS)*8192}")
        adv(S_KW, 32*3840, 640*3840)
    def w_one(h, i):
        a(f"buffer_load_dwordx4 v{VWD+i}, s[{SRD_B}:{SRD_B+3}], s{S_KW} offen offset:{i*1024} lds", tag=('W', h))
    def x_pre(b, part):
        a(f"s_add_u32 m0, s{T6}, {XS[b % 3]}")
        if part == 0: adv(S_KX, 128, 1280)
    def x_one(b, i):
        a(f"buffer_load_dwordx4 v{VXD+i}, s[{SRD_A}:{SRD_A+3}], s{S_KX} offen offset:{i*1024} lds", tag=('X', b))
    spread = OPT.get('spread', 1)
    for hh in range(NH):
        if hh == 1: mark(a)
        a.wait_vm([('W', hh), ('X', hh >> 1)])
        a("s_waitcnt lgkmcnt(0)")
        if not OPT.get('nobar'): a("s_barrier")
        prev = hh > 0
        dw = hh + NWS - 1 < NH and not OPT.get('nodma')
        dx = hh // 2 + 2 < 10 and not OPT.get('nodma')
        hw, bx, px = hh + NWS - 1, hh // 2 + 2, hh % 2
        rd_b(0, hh, 0, 0); rd_a(0, hh, 0, 0, 0)
        if prev: mf(1, 0, 0, False)
        rd_a(0, hh, 0, 0, 1); rd_b(0, hh, 0, 1); rd_a(0, hh, 0, 1, 0)
        if spread and dw: w_pre(hw); w_one(hw, 0)
        if prev: mf(1, 1, 0, False)
        rd_a(0, hh, 0, 1, 1)
        if not spread and dw: dma_w(hw)
        if prev: mf(1, 0, 1, False)
        if spread and dw: w_one(hw, 1)
        if not spread and dx: dma_x(bx, px)
        if prev: mf(1, 1, 1, False)
        first = hh == 0
        rd_b(1, hh, 1, 0); rd_a(1, hh, 1, 0, 0); rd_a(1, hh, 1, 0, 1)
        a(f"s_waitcnt lgkmcnt(6)")
        mf(0, 0, 0, first)
        rd_b(1, hh, 1, 1); rd_a(1, hh, 1, 1, 0); rd_a(1, hh, 1, 1, 1)
        if spread and dx: x_pre(bx, px); x_one(bx, 2*px)
        a(f"s_waitcnt lgkmcnt(6)")
        mf(0, 1, 0, first); mf(0, 0, 1, first)
        if spread and dx: x_one(bx, 2*px + 1)
        mf(0, 1, 1, first)
    a("s_waitcnt lgkmcnt(0)")
    mf(1, 0, 0, False); mf(1, 1, 0, False); mf(1, 0, 1, False); mf(1, 1, 1, False)
    mark(a)
    a(f"v_lshrrev_b32 v{t0}, 5, v1")
    a(f"s_lshr_b32 s{T0}, s{S_W}, 1")
    a(f"s_lshl_b32 s{T0}, s{T0}, 4")
    a(f"v_add_u32 v{t0}, s{T0}, v{t0}")
    a(f"v_lshlrev_b32 v{t0}, 14, v{t0}")
    a(f"s_and_b32 s{T0}, s{S_W}, 1")
    a(f"s_lshl_b32 s{T0}, s{T0}, 9")
    a(f"v_and_b32 v{t1}, 31, v1")
    a(f"v_lshl_add_u32 v{t0}, v{t1}, 4, v{t0}")
    a(f"v_add_u32 v{t0}, s{T0}, v{t0}")
    a(f"s_lshl_b32 s{T0}, s{S_CJ}, 19")
    a(f"s_lshl_b32 s{T1}, s{S_RB}, 10")
    a(f"s_add_u32 s{T0}, s{T0}, s{T1}")
    a(f"s_add_u32 s{T0}, s{T0}, {WS_QKV}")
    if OPT['mega']: nonce_load(a, 16)
    k = 0
    for ft in range(2):
        for j in range(4):
            a(f"s_add_u32 s{T1}, s{T0}, {(8*ft+2*j)*16384}")
            d = FB[0] + 4*(k % 8); k += 1
            for tt in range(2):
                base = ACC + 16*(2*tt+ft) + 4*j
                a(f"v_cvt_pk_bf16_f32 v{d+2*tt}, v{base}, v{base+1}")
                a(f"v_cvt_pk_bf16_f32 v{d+2*tt+1}, v{base+2}, v{base+3}")
            a(f"buffer_store_dwordx4 {vr(d,4)}, v{t0}, s[{SRD_WS}:{SRD_WS+3}], s{T1} offen sc1")
    mark(a)
    if OPT['mega']:
        nonce_get(a, 16)
        a(f"s_lshl_b32 s{T0}, s{S_RB}, 7")
        a(f"s_lshl_b32 s{T1}, s{S_CJ}, 2")
        a(f"s_add_u32 s{T0}, s{T0}, s{T1}")
        a(f"s_add_u32 s{T0}, s{T0}, {WS_FLAG + FQ}")
        publish(a, T0, 16)
        a(f"s_branch {lbl}_end")
    a.label(f"{lbl}_skip")
    if OPT['mega']:
        a.reset_counters()
        a(f"s_lshr_b32 s{S_KO}, s{S_X}, 1")
        a(f"s_lshl_b32 s{S_KO}, s{S_KO}, 2")
        a(f"s_and_b32 s{T0}, s{S_I}, 3")
        a(f"s_add_u32 s{S_KO}, s{S_KO}, s{T0}")
        stage_repack(a, lbl + "_rp", S_KO)
        a.label(f"{lbl}_end")
    a.reset_counters()

STAMPS = False
CTX = dict(k=0, slot=0)
def mark(a):
    if not STAMPS: return
    CTX['slot'] += 1
    if CTX['slot'] > 14: return
    stamp(a, CTX['k'], CTX['slot'])
def stamp(a, kidx, slot):
    if not STAMPS: return
    stamp.n = getattr(stamp, 'n', 0) + 1
    L = f"stamp_{stamp.n}"
    a(f"s_cmp_lg_u32 s{S_W}, 0")
    a(f"s_cbranch_scc1 {L}")
    a("s_memrealtime s[98:99]")
    a("s_memtime s[100:101]")
    a("s_waitcnt lgkmcnt(0)")
    a(f"s_lshl_b32 s97, s2, 7")
    a(f"s_add_u32 s97, s97, {WS_STAMP + kidx*(1024*128) + slot*4}")
    a("s_mov_b64 exec, 1")
    a("v_mov_b32 v254, s98")
    a("v_mov_b32 v255, s100")
    vm = list(a.vm)
    a(f"buffer_store_dword v254, off, s[{SRD_WS}:{SRD_WS+3}], s97")
    a(f"buffer_store_dword v255, off, s[{SRD_WS}:{SRD_WS+3}], s97 offset:64")
    a("s_mov_b64 exec, -1")
    a.vm = vm
    a.label(L)

def dbgtime(a, slot, wg):
    if not OPT.get('dbgtime'): return
    L = uid("dt")
    a(f"s_cmp_lg_u32 s{S_W}, 0")
    a(f"s_cbranch_scc1 {L}")
    a(f"s_cmp_lg_u32 s2, {wg}")
    a(f"s_cbranch_scc1 {L}")
    a("s_memrealtime s[98:99]")
    a("s_waitcnt lgkmcnt(0)")
    a("s_mov_b64 exec, 1")
    a("v_mov_b32 v254, s98")
    a(f"v_mov_b32 v255, {slot*4}")
    vm = list(a.vm)
    a(f"global_store_dword v255, v254, s[{P_DBG}:{P_DBG+1}]")
    a("s_mov_b64 exec, -1")
    a.vm = vm
    a.label(L)

def kernel_text(name, body, grid, lds):
    s  = f".globl {name}\n.p2align 8\n.type {name},@function\n{name}:\n"
    s += body
    s += "    s_endpgm\n"
    return s

def descriptor(name, vgpr=256):
    return f""".amdhsa_kernel {name}
  .amdhsa_next_free_vgpr {vgpr}
  .amdhsa_next_free_sgpr 102
  .amdhsa_accum_offset {vgpr}
  .amdhsa_group_segment_fixed_size 0
  .amdhsa_kernarg_size 96
  .amdhsa_user_sgpr_count 2
  .amdhsa_user_sgpr_kernarg_segment_ptr 1
  .amdhsa_system_sgpr_workgroup_id_x 1
.end_amdhsa_kernel
"""

def dpp_sum16(a, v):
    for r in (8, 4, 2, 1):
        a(f"v_add_f32_dpp v{v}, v{v}, v{v} row_ror:{r} row_mask:0xf bank_mask:0xf")

def stage_ln(a, lbl):
    VO, VT = 2, 4
    X, F = 20, 40
    t0, t1, t2, t3, t4 = VT, VT+1, VT+2, VT+3, VT+4
    a(f"s_and_b32 s{T0}, s{S_W}, 1")
    a(f"s_lshl_b32 s{T0}, s{T0}, 2")
    a(f"s_lshl_b32 s{T1}, s{S_IDX}, 3")
    a(f"s_add_u32 s{T0}, s{T0}, s{T1}")
    a(f"v_lshrrev_b32 v{t0}, 4, v1")
    a(f"v_add_u32 v{t0}, s{T0}, v{t0}")
    a(f"v_and_b32 v{t1}, 15, v1")
    a(f"s_movk_i32 s{T2}, 1280")
    a(f"v_mul_lo_u32 v{VO}, v{t0}, s{T2}")
    a(f"v_lshl_add_u32 v{VO}, v{t1}, 4, v{VO}")
    a(f"s_cmp_ge_u32 s{S_W}, 2")
    a(f"s_cbranch_scc1 {lbl}_gate")
    srd(a, SRD_A, P_AX, SIZES['AX'])
    for i in range(5):
        a(f"buffer_load_dwordx4 {vr(X+4*i,4)}, v{VO}, s[{SRD_A}:{SRD_A+3}], 0 offen offset:{256*i}", tag='lnx')
    if OPT['mega']: start_prefetch(a, 'B')
    a(f"v_lshrrev_b32 v{t2}, 5, v{t0}")
    a(f"v_mul_u32_u24 v{t2}, 40, v{t2}")
    a(f"v_lshrrev_b32 v{t3}, 1, v{t1}")
    a(f"v_add_u32 v{t2}, v{t2}, v{t3}")
    a(f"v_lshlrev_b32 v{t2}, 10, v{t2}")
    a(f"v_and_b32 v{t3}, 1, v{t1}")
    a(f"v_lshl_add_u32 v{t2}, v{t3}, 9, v{t2}")
    a(f"v_and_b32 v{t3}, 31, v{t0}")
    a(f"v_lshl_add_u32 v{VO+1}, v{t3}, 4, v{t2}")
    a.wait_vm('lnx')
    for d in range(20):
        a(f"v_lshlrev_b32 v{F+2*d}, 16, v{X+d}")
        a(f"v_and_b32 v{F+2*d+1}, 0xffff0000, v{X+d}")
    for k in range(4):
        a(f"v_add_f32 v{t0+k}, v{F+k}, v{F+4+k}")
    for d in range(8, 40):
        a(f"v_add_f32 v{t0+(d%4)}, v{t0+(d%4)}, v{F+d}")
    a(f"v_add_f32 v{t0}, v{t0}, v{t1}")
    a(f"v_add_f32 v{t2}, v{t2}, v{t3}")
    a(f"v_add_f32 v{t0}, v{t0}, v{t2}")
    dpp_sum16(a, t0)
    a(f"v_mul_f32 v{t0}, 0x3acccccd, v{t0}")
    for d in range(40):
        a(f"v_sub_f32 v{F+d}, v{F+d}, v{t0}")
    for k in range(4):
        a(f"v_mul_f32 v{t0+k}, v{F+k}, v{F+k}")
    for d in range(4, 40):
        a(f"v_fmac_f32 v{t0+(d%4)}, v{F+d}, v{F+d}")
    a(f"v_add_f32 v{t0}, v{t0}, v{t1}")
    a(f"v_add_f32 v{t2}, v{t2}, v{t3}")
    a(f"v_add_f32 v{t0}, v{t0}, v{t2}")
    dpp_sum16(a, t0)
    a(f"v_mov_b32 v{t1}, 0x3727c5ac")
    a(f"v_fmac_f32 v{t1}, 0x3acccccd, v{t0}")
    a(f"v_rsq_f32 v{t1}, v{t1}")
    for d in range(40):
        a(f"v_mul_f32 v{F+d}, v{F+d}, v{t1}")
    for d in range(20):
        a(f"v_cvt_pk_bf16_f32 v{X+d}, v{F+2*d}, v{F+2*d+1}")
    if OPT['mega']: nonce_load(a, 10)
    for i in range(5):
        a(f"buffer_store_dwordx4 {vr(X+4*i,4)}, v{VO+1}, s[{SRD_WS}:{SRD_WS+3}], 0 offen sc1")
        if i < 4:
            a(f"v_add_u32 v{VO+1}, 8192, v{VO+1}")
    a(f"s_branch {lbl}_done")
    a.label(f"{lbl}_gate")
    a.reset_counters()
    srd(a, SRD_A, P_AX, SIZES['AX'])
    srd(a, SRD_B, P_GW, SIZES['GW'])
    G = 40
    a(f"v_lshlrev_b32 v{VO+1}, 4, v{t1}")
    for i in range(5):
        a(f"buffer_load_dwordx4 {vr(X+4*i,4)}, v{VO}, s[{SRD_A}:{SRD_A+3}], 0 offen offset:{256*i}", tag='gx')
        a(f"buffer_load_dwordx4 {vr(G+4*i,4)}, v{VO+1}, s[{SRD_B}:{SRD_B+3}], 0 offen offset:{256*i}", tag='gx')
    if OPT['mega']: start_prefetch(a, 'B')
    a(f"v_lshlrev_b32 v{t2}, 2, v{t0}")
    a(f"v_add_u32 v{t2}, {WS_G}, v{t2}")
    a(f"v_mov_b32 v{t3}, 0x7ffffff0")
    a(f"v_cmp_eq_u32 s[{T4}:{T4+1}], 0, v{t1}")
    a(f"v_cndmask_b32 v{VO}, v{t3}, v{t2}, s[{T4}:{T4+1}]")
    a(f"v_mov_b32 v{t0}, 0")
    a(f"v_mov_b32 v{t1}, 0")
    a.wait_vm('gx')
    U = 60
    for d in range(20):
        u = U + 4*(d % 4)
        a(f"v_lshlrev_b32 v{u}, 16, v{X+d}")
        a(f"v_lshlrev_b32 v{u+1}, 16, v{G+d}")
        a(f"v_and_b32 v{u+2}, 0xffff0000, v{X+d}")
        a(f"v_and_b32 v{u+3}, 0xffff0000, v{G+d}")
        a(f"v_fmac_f32 v{t0}, v{u}, v{u+1}")
        a(f"v_fmac_f32 v{t1}, v{u+2}, v{u+3}")
    a(f"v_add_f32 v{t0}, v{t0}, v{t1}")
    dpp_sum16(a, t0)
    a(f"v_mul_f32 v{t0}, 0xbfb8aa3b, v{t0}")
    a(f"v_exp_f32 v{t0}, v{t0}")
    a(f"v_add_f32 v{t0}, 1.0, v{t0}")
    a(f"v_rcp_f32 v{t0}, v{t0}")
    a(f"s_nop 0")
    if OPT['mega']: nonce_load(a, 10)
    a(f"buffer_store_dword v{t0}, v{VO}, s[{SRD_WS}:{SRD_WS+3}], 0 offen sc1")
    a.label(f"{lbl}_done")
    a.reset_counters()
    if OPT['mega']:
        a("s_waitcnt vmcnt(0)")
        nonce_get(a, 10)
        a(f"s_lshr_b32 s{T0}, s{S_IDX}, 4")
        a(f"s_lshl_b32 s{T0}, s{T0}, 7")
        a(f"s_and_b32 s{T1}, s{S_IDX}, 15")
        a(f"s_lshl_b32 s{T1}, s{T1}, 2")
        a(f"s_add_u32 s{T0}, s{T0}, s{T1}")
        a(f"s_add_u32 s{T0}, s{T0}, {WS_FLAG + FY}")
        publish(a, T0, 10)

NRP = 48
RPQ = 395
def stage_repack(a, lbl, sn):
    t0, t1, t2, t3, t4, t5, t6 = range(2, 9)
    NU = 16
    VS, VD, D = 10, 26, 44
    MS = 64
    srd(a, SRD_A, P_W2, SIZES['W2'])
    srd(a, SRD_B, P_WO, SIZES['WO'])
    a(f"s_mul_i32 s{T0}, s{sn}, {RPQ}")
    a(f"s_mul_i32 s{T3}, s{T0}, 160")
    a(f"s_add_u32 s{T3}, s{T3}, {WS_WF}")
    a(f"s_movk_i32 s{T6}, 6554")
    a(f"s_movk_i32 s{T7}, 1280")
    a(f"s_mov_b32 s{T1}, 1813754")
    a(f"s_movk_i32 s{T2}, 2368")
    a(f"s_movk_i32 s{T4}, 18944")
    a(f"s_movk_i32 s{T5}, {RPQ*10}")
    for u in range(NU):
        a(f"v_add_u32 v{t0}, {256*u}, v0")
        a(f"v_mul_u32_u24 v{t1}, s{T6}, v{t0}")
        a(f"v_lshrrev_b32 v{t1}, 16, v{t1}")
        a(f"v_mul_u32_u24 v{t2}, 10, v{t1}")
        a(f"v_sub_u32 v{t2}, v{t0}, v{t2}")
        a(f"v_add_u32 v{t1}, s{T0}, v{t1}")
        a(f"v_mul_hi_u32 v{t3}, v{t1}, s{T1}")
        a(f"v_mul_lo_u32 v{t4}, v{t3}, s{T2}")
        a(f"v_sub_u32 v{t4}, v{t1}, v{t4}")
        a(f"v_cmp_gt_u32 s[98:99], s{T4}, v{t1}")
        a(f"v_cmp_gt_u32 s[100:101], s{T5}, v{t0}")
        a("s_and_b64 s[98:99], s[98:99], s[100:101]")
        a(f"v_mul_u32_u24 v{t3}, 160, v{t3}")
        a(f"v_lshl_add_u32 v{t2}, v{t2}, 4, v{t3}")
        a(f"v_subrev_u32 v{t1}, 1728, v{t4}")
        a(f"v_lshrrev_b32 v{t3}, 4, v{t1}")
        a(f"v_and_b32 v{t1}, 15, v{t1}")
        a(f"v_mul_u32_u24 v{t5}, 20, v{t3}")
        a(f"v_add_u32 v{t5}, v{t5}, v{t1}")
        a(f"v_cmp_gt_u32 s[100:101], 32, v{t3}")
        a(f"v_subrev_u32 v{t3}, 32, v{t3}")
        a(f"v_lshlrev_b32 v{t3}, 2, v{t3}")
        a(f"v_bfe_u32 v{t6}, v{t1}, 2, 1")
        a(f"v_lshl_add_u32 v{t3}, v{t6}, 1, v{t3}")
        a(f"v_lshrrev_b32 v{t6}, 3, v{t1}")
        a(f"v_add_u32 v{t3}, v{t3}, v{t6}")
        a(f"v_mul_u32_u24 v{t3}, 20, v{t3}")
        a(f"v_and_b32 v{t1}, 3, v{t1}")
        a(f"v_add3_u32 v{t3}, v{t3}, v{t1}, 16")
        a(f"v_cndmask_b32 v{t3}, v{t3}, v{t5}, s[100:101]")
        a(f"v_cmp_gt_u32 s[{MS+2*u}:{MS+2*u+1}], 0x6c0, v{t4}") if False else None
        a(f"v_mov_b32 v{t5}, 1728")
        a(f"v_cmp_gt_u32 s[{MS+2*u}:{MS+2*u+1}], v{t5}, v{t4}")
        a(f"v_cndmask_b32 v{t3}, v{t3}, v{t4}, s[{MS+2*u}:{MS+2*u+1}]")
        a(f"v_mul_lo_u32 v{t3}, v{t3}, s{T7}")
        a(f"v_add_u32 v{t3}, v{t3}, v{t2}")
        a(f"v_lshlrev_b32 v{t5}, 4, v{t0}")
        a(f"v_add_u32 v{t5}, s{T3}, v{t5}")
        a(f"v_mov_b32 v{t6}, 0x7ffffff0")
        a(f"v_cndmask_b32 v{VS+u}, v{t6}, v{t3}, s[98:99]")
        a(f"v_cndmask_b32 v{VD+u}, v{t6}, v{t5}, s[98:99]")
    for u in range(NU):
        a(f"v_mov_b32 v{t6}, 0x7ffffff0")
        a(f"v_cndmask_b32 v{t0}, v{t6}, v{VS+u}, s[{MS+2*u}:{MS+2*u+1}]")
        a(f"v_cndmask_b32 v{t1}, v{VS+u}, v{t6}, s[{MS+2*u}:{MS+2*u+1}]")
        a(f"s_mov_b64 exec, s[{MS+2*u}:{MS+2*u+1}]")
        a(f"buffer_load_dwordx4 {vr(D+4*u,4)}, v{t0}, s[{SRD_A}:{SRD_A+3}], 0 offen", tag=('rp', u))
        a(f"s_not_b64 exec, s[{MS+2*u}:{MS+2*u+1}]")
        a(f"buffer_load_dwordx4 {vr(D+4*u,4)}, v{t1}, s[{SRD_B}:{SRD_B+3}], 0 offen", tag=('rp', u))
        a("s_mov_b64 exec, -1")
    for u in range(NU):
        a.wait_vm(('rp', u))
        a(f"buffer_store_dwordx4 {vr(D+4*u,4)}, v{VD+u}, s[{SRD_WS}:{SRD_WS+3}], 0 offen sc1")
    if OPT['mega']:
        nonce_load(a, 2)
        nonce_get(a, 2)
        a(f"s_lshl_b32 s{T0}, s{sn}, 2")
        a(f"s_add_u32 s{T0}, s{T0}, {WS_FLAG + FW}")
        publish(a, T0, 2)
    a.reset_counters()

def stage_ffn1(a, lbl):
    a(f"s_lshr_b32 s{T0}, s{S_X}, 1")
    a(f"s_lshl_b32 s{T0}, s{T0}, 2")
    a(f"s_and_b32 s{T1}, s{S_I}, 3")
    a(f"s_add_u32 s{S_RB}, s{T0}, s{T1}")
    a(f"s_and_b32 s{T0}, s{S_X}, 1")
    a(f"s_mul_i32 s{T0}, s{T0}, 7")
    a(f"s_lshr_b32 s{T1}, s{S_I}, 2")
    a(f"s_add_u32 s{S_CJ}, s{T0}, s{T1}")
    a(f"s_cmp_ge_u32 s{T1}, 7")
    a(f"s_cbranch_scc1 {lbl}_skip")
    srd(a, SRD_A, P_B1, SIZES['B1'])
    srd(a, SRD_B, P_W1, SIZES['W1'])
    VWD, VWF, VY, VT = 2, 6, 10, 12
    AS = [20, 36, 52]
    ACC = 68
    YR = 132; NY = 16; YD = 12
    t0, t1, t2, t3 = VT, VT+1, VT+2, VT+3
    a(f"s_lshl_b32 s{T0}, s{S_W}, 4")
    a(f"v_lshrrev_b32 v{t0}, 4, v1")
    a(f"v_add_u32 v{t1}, s{T0}, v{t0}")
    a(f"s_movk_i32 s{T2}, 3456")
    a(f"v_mul_lo_u32 v{t1}, v{t1}, s{T2}")
    a(f"v_bfe_u32 v{t2}, v1, 2, 2")
    a(f"v_xor_b32 v{t2}, v{t2}, v{t0}")
    a(f"v_and_b32 v{t3}, 3, v1")
    a(f"v_lshl_add_u32 v{t2}, v{t2}, 2, v{t3}")
    a(f"v_lshl_add_u32 v{t1}, v{t2}, 4, v{t1}")
    a(f"s_lshl_b32 s{T0}, s{S_CJ}, 8")
    a(f"v_add_u32 v{VWD}, s{T0}, v{t1}")
    for i in range(1, 4):
        a(f"v_add_u32 v{VWD+i}, {i*(4*3456-1024)}, v{VWD}")
    a(f"s_lshl_b32 s{T6}, s{S_W}, 12")
    def dma_w(b):
        a(f"s_add_u32 m0, s{T6}, {(b % 4)*16384}")
        a(f"s_mov_b32 s{S_KW}, {b*64*3456}")
        for i in range(4):
            a(f"buffer_load_dwordx4 v{VWD+i}, s[{SRD_B}:{SRD_B+3}], s{S_KW} offen offset:{i*1024} lds", tag=('W', b))
    dma_w(0)
    a(f"v_lshrrev_b32 v{t0}, 5, v1")
    a(f"v_lshlrev_b32 v{t1}, 3, v{t0}")
    a(f"s_lshl_b32 s{T0}, s{S_CJ}, 8")
    a(f"v_add_u32 v{t1}, s{T0}, v{t1}")
    for T in range(4):
        for j in range(4):
            a(f"buffer_load_dwordx2 {vr(AS[0]+2*(4*T+j),2)}, v{t1}, s[{SRD_A}:{SRD_A+3}], 0 offen offset:{64*T+16*j}", tag='bias')
    dma_w(1); dma_w(2)
    if OPT['mega']:
        a(f"s_lshl_b32 s{T0}, s{S_RB}, 7")
        a(f"s_add_u32 s{T0}, s{T0}, {WS_FLAG + FY}")
        a(f"v_lshlrev_b32 v{t2}, 2, v1")
        a(f"v_add_u32 v{t2}, s{T0}, v{t2}")
        a(f"s_mov_b64 s[{T4}:{T4+1}], 0xffff")
        vm = list(a.vm)
        wait_flags(a, t2, t3, T4)
        a.vm = vm
        if OPT.get('fine'): mark(a)
    a(f"s_lshl_b32 s{T0}, s{S_RB}, 2")
    a(f"s_add_u32 s{T0}, s{T0}, s{S_W}")
    a(f"s_mul_i32 s{T1}, s{T0}, {40*1024}")
    a(f"s_add_u32 s{S_KX}, s{T1}, {WS_Y}")
    a(f"v_lshlrev_b32 v{VY}, 4, v1")
    def ld_y(s):
        if s % 4 == 0 and s > 0:
            a(f"s_add_u32 s{S_KX}, s{S_KX}, 4096")
        a(f"buffer_load_dwordx4 {vr(YR+4*(s % NY),4)}, v{VY}, s[{SRD_WS}:{SRD_WS+3}], s{S_KX} offen offset:{(s % 4)*1024} sc1", tag=('Y', s))
    for s in range(YD): ld_y(s)
    a(f"v_bfe_u32 v{t2}, v1, 2, 2")
    a(f"v_lshl_add_u32 v{t1}, v{t0}, 3, v{t2}")
    a(f"v_lshlrev_b32 v{t1}, 8, v{t1}")
    a(f"v_bfe_u32 v{t3}, v1, 4, 1")
    a(f"v_lshl_add_u32 v{t1}, v{t3}, 5, v{t1}")
    a(f"v_and_b32 v{t3}, 3, v1")
    a(f"v_lshl_add_u32 v{t1}, v{t3}, 3, v{t1}")
    for ft in range(4):
        a(f"v_xor_b32 v{t3}, {ft}, v{t2}")
        a(f"v_lshl_add_u32 v{VWF+ft}, v{t3}, 6, v{t1}")
    a.wait_vm('bias')
    for T in range(4):
        for j in range(4):
            s_ = AS[0] + 2*(4*T+j); d = ACC + 16*T + 4*j
            a(f"v_lshlrev_b32 v{d}, 16, v{s_}")
            a(f"v_and_b32 v{d+1}, 0xffff0000, v{s_}")
            a(f"v_lshlrev_b32 v{d+2}, 16, v{s_+1}")
            a(f"v_and_b32 v{d+3}, 0xffff0000, v{s_+1}")
    def rd_a(s, ft, rd):
        b = s >> 2; u = s & 3
        a(f"ds_read_b64_tr_b16 {vr(AS[s % 3]+4*ft+2*rd,2)}, v{VWF+ft} offset:{(b % 4)*16384 + u*4096 + rd*1024}", tag=('A', s, ft))
    a.wait_vm(('W', 0))
    a("s_barrier")
    for s in range(2):
        for ft in range(4):
            rd_a(s, ft, 0); rd_a(s, ft, 1)
    NS = 40
    mark(a)
    for s in range(NS):
        b = s >> 2; u = s & 3
        if OPT.get('fine') and u == 0 and b in (2, 4, 6, 8): mark(a)
        if u == 2 and b + 1 < 10:
            a.wait_vm(('W', b + 1))
            a("s_barrier")
            if b + 3 < 10: dma_w(b + 3)
        a.wait_vm(('Y', s))
        for ft in range(4):
            a.wait_lg(('A', s, ft))
            d = vr(ACC+16*ft, 16)
            a(f"v_mfma_f32_32x32x16_bf16 {d}, {vr(AS[s % 3]+4*ft,4)}, {vr(YR+4*(s % NY),4)}, {d}")
            if s + 2 < NS:
                rd_a(s + 2, ft, 0); rd_a(s + 2, ft, 1)
            if ft == 1 and s + YD < NS:
                ld_y(s + YD)
    mark(a)
    C0, C1 = 2, 3
    a(f"v_mov_b32 v{C0}, 0xc0135761")
    a(f"v_mov_b32 v{C1}, 0xbdd2d3e8")
    a(f"s_lshl_b32 s{T0}, s{S_RB}, 2")
    a(f"s_add_u32 s{T0}, s{T0}, s{S_W}")
    a(f"s_mul_i32 s{T0}, s{T0}, 108")
    a(f"s_lshl_b32 s{T1}, s{S_CJ}, 3")
    a(f"s_add_u32 s{T0}, s{T0}, s{T1}")
    a(f"s_lshl_b32 s{T0}, s{T0}, 10")
    a(f"s_add_u32 s{T0}, s{T0}, {WS_H}")
    a(f"s_add_u32 s{T1}, s{T0}, 4096")
    TU, TE = 20, 28
    k = 0
    for T in range(4):
        if T == 2:
            a(f"s_cmp_eq_u32 s{S_CJ}, 13")
            a(f"s_cbranch_scc1 {lbl}_pub")
        for jj in range(2):
            x = ACC + 16*T + 8*jj
            for e in range(8): a(f"v_mul_f32 v{TU+e}, v{x+e}, v{x+e}")
            for e in range(8): a(f"v_fma_f32 v{TU+e}, v{TU+e}, v{C1}, v{C0}")
            for e in range(8): a(f"v_mul_f32 v{TU+e}, v{TU+e}, v{x+e}")
            for e in range(8): a(f"v_exp_f32 v{TE+e}, v{TU+e}")
            for e in range(8): a(f"v_add_f32 v{TE+e}, 1.0, v{TE+e}")
            for e in range(8): a(f"v_rcp_f32 v{TE+e}, v{TE+e}")
            for e in range(8): a(f"v_mul_f32 v{TE+e}, v{TE+e}, v{x+e}")
            d = 40 + 4*(k % 4); k += 1
            for e in range(4): a(f"v_cvt_pk_bf16_f32 v{d+e}, v{TE+2*e}, v{TE+2*e+1}")
            so = T0 if T < 2 else T1
            a(f"buffer_store_dwordx4 {vr(d,4)}, v{VY}, s[{SRD_WS}:{SRD_WS+3}], s{so} offen offset:{((2*T+jj) % 4)*1024} sc1")
    a.label(f"{lbl}_pub")
    mark(a)
    if OPT['mega']:
        a(f"s_lshl_b32 s{T0}, s{S_RB}, 7")
        a(f"s_lshl_b32 s{T1}, s{S_CJ}, 2")
        a(f"s_add_u32 s{T0}, s{T0}, s{T1}")
        a(f"s_add_u32 s{T0}, s{T0}, {WS_FLAG + FH}")
        publish(a, T0, 12)
        a(f"s_branch {lbl}_end")
    a.label(f"{lbl}_skip")
    if OPT['mega']:
        a.reset_counters()
        a(f"s_lshl_b32 s{S_KO}, s{S_X}, 2")
        a(f"s_and_b32 s{T0}, s{S_I}, 3")
        a(f"s_add_u32 s{S_KO}, s{S_KO}, s{T0}")
        a(f"s_add_u32 s{S_KO}, s{S_KO}, 16")
        stage_repack(a, lbl + "_rp", S_KO)
        a.label(f"{lbl}_end")
    a.reset_counters()

PST = 3104
LK, LV, LONES = 0, 10*PST, 20*PST
def stage_attn(a, lbl):
    a(f"s_lshl_b32 s{T0}, s{S_X}, 1")
    a(f"s_and_b32 s{T1}, s{S_I}, 1")
    a(f"s_add_u32 s{S_CJ}, s{T0}, s{T1}")
    a(f"s_lshr_b32 s{S_RB}, s{S_I}, 1")
    HP = S_CJ
    VD, VK, VV, VT = 2, 3, 4, 6
    t0, t1, t2, t3, t4 = VT, VT+1, VT+2, VT+3, VT+4
    MK = 12
    Q0, Q1 = 20, 24
    KF = [28, 36]
    VF = [44, 48, 52, 56]
    PF = [60, 64, 68, 72]
    OA = 76
    LO = 92
    CS, NM = 96, 97
    MX = 98
    S = 104
    QH = 248
    if OPT['mega']:
        a(f"v_lshrrev_b32 v{t0}, 4, v1")
        a(f"s_sub_u32 s{T0}, s{S_RB}, 2")
        a(f"v_add_u32 v{t0}, s{T0}, v{t0}")
        a(f"v_and_b32 v{t1}, 15, v1")
        a(f"v_cmp_le_i32 s[{T4}:{T4+1}], 0, v{t0}")
        a(f"v_cmp_gt_u32 s[{T2}:{T2+1}], 15, v{t1}")
        a(f"s_and_b64 s[{T4}:{T4+1}], s[{T4}:{T4+1}], s[{T2}:{T2+1}]")
        a(f"s_mov_b64 s[{T2}:{T2+1}], 0xffffffffffff") if False else None
        a(f"s_mov_b32 s{T2}, -1")
        a(f"s_mov_b32 s{T2+1}, 0xffff")
        a(f"s_and_b64 s[{T4}:{T4+1}], s[{T4}:{T4+1}], s[{T2}:{T2+1}]")
        a(f"v_lshlrev_b32 v{t0}, 7, v{t0}")
        a(f"v_lshl_add_u32 v{t0}, v{t1}, 2, v{t0}")
        a(f"v_add_u32 v{t0}, {WS_FLAG + FQ}, v{t0}")
        wait_flags(a, t0, t1, T4)
        if OPT.get('fine'): mark(a)
    a(f"s_sub_u32 s{T0}, s{S_RB}, 2")
    a(f"s_lshl_b32 s{T0}, s{T0}, 7")
    a(f"s_mul_i32 s{T1}, s{S_W}, 96")
    a(f"s_add_u32 s{T0}, s{T0}, s{T1}")
    a(f"v_lshlrev_b32 v{t0}, 1, v1")
    a(f"v_add_u32 v{t0}, s{T0}, v{t0}")
    a(f"v_lshlrev_b32 v{t1}, 3, v{t0}")
    a(f"v_mov_b32 v{t2}, 0x7ffffff0")
    a(f"v_cmp_le_i32 s[{T4}:{T4+1}], 0, v{t0}")
    a(f"v_cndmask_b32 v{VD}, v{t2}, v{t1}, s[{T4}:{T4+1}]")
    a(f"s_mul_i32 s{T2}, s{HP}, {10*16384}")
    a(f"s_add_u32 s{T2}, s{T2}, {WS_QKV + 160*16384}")
    a(f"s_mul_i32 s{T3}, s{S_W}, 768")
    a("s_mov_b32 exec_hi, 0xffff")
    for ty in range(2):
        for p in range(10):
            a(f"s_add_u32 m0, s{T3}, {(LK if ty == 0 else LV) + p*PST}")
            a(f"s_add_u32 s{S_KX}, s{T2}, {(ty*160 + p)*16384}")
            a(f"buffer_load_dwordx4 v{VD}, s[{SRD_WS}:{SRD_WS+3}], s{S_KX} offen sc1 lds", tag=('kv', ty))
    a("s_mov_b32 exec_hi, -1")
    a(f"s_lshl_b32 s{T0}, s{S_RB}, 2")
    a(f"s_add_u32 s{T0}, s{T0}, s{S_W}")
    S_QB = 61
    a(f"s_mov_b32 s{S_QB}, s{T0}")
    a(f"v_and_b32 v{t0}, 31, v1")
    a(f"v_lshrrev_b32 v{t1}, 5, v1")
    a(f"s_lshl_b32 s{T1}, s{T0}, 8")
    a(f"v_lshlrev_b32 v{t2}, 3, v{t0}")
    a(f"v_add_u32 v{t2}, s{T1}, v{t2}")
    a(f"v_lshl_add_u32 v{t3}, v{t1}, 15, v{t2}")
    a(f"s_mul_i32 s{T2}, s{HP}, {10*16384}")
    a(f"s_add_u32 s{T2}, s{T2}, {WS_QKV}")
    QR = [Q0, QH]
    for hh in range(2):
        q0 = Q0 if hh == 0 else QH
        q1 = Q1 if hh == 0 else QH + 4
        a(f"s_add_u32 s{T1}, s{T2}, {hh*5*16384}")
        a(f"buffer_load_dwordx2 {vr(q0,2)}, v{t3}, s[{SRD_WS}:{SRD_WS+3}], s{T1} offen sc1", tag='q')
        a(f"s_add_u32 s{T1}, s{T1}, 16384")
        a(f"buffer_load_dwordx2 {vr(q0+2,2)}, v{t3}, s[{SRD_WS}:{SRD_WS+3}], s{T1} offen sc1", tag='q')
        a(f"s_add_u32 s{T1}, s{T1}, {3*16384}")
        a(f"buffer_load_dwordx2 {vr(q1,2)}, v{t2}, s[{SRD_WS}:{SRD_WS+3}], s{T1} offen sc1", tag='q')
    a(f"v_mov_b32 v{KF[0]}, 0x3f803f80")
    for r in range(1, 4): a(f"v_mov_b32 v{KF[0]+r}, 0x3f803f80")
    a(f"v_lshlrev_b32 v{t4}, 4, v0")
    a(f"v_add_u32 v{t4}, {LONES}, v{t4}")
    a(f"v_cmp_gt_u32 vcc, 208, v0")
    a(f"s_and_saveexec_b64 s[{T4}:{T4+1}], vcc")
    a(f"ds_write_b128 v{t4}, {vr(KF[0],4)}")
    a(f"s_mov_b64 exec, s[{T4}:{T4+1}]")
    a(f"v_lshlrev_b32 v{t2}, 2, v{t1}")
    a(f"v_sub_u32 v{t2}, v{t0}, v{t2}")
    for r in range(16):
        a(f"v_cmp_le_i32 s[{S_MASK+2*r}:{S_MASK+2*r+1}], {8*(r >> 2) + (r & 3)}, v{t2}")
    a(f"v_mov_b32 v{t3}, 0xffff")
    a(f"v_mov_b32 v{t4}, 0xffff0000")
    for q in range(8):
        a(f"v_cndmask_b32 v{MK+q}, 0, v{t3}, s[{S_MASK+4*q}:{S_MASK+4*q+1}]")
        a(f"v_cndmask_b32 v{KF[1]}, 0, v{t4}, s[{S_MASK+4*q+2}:{S_MASK+4*q+3}]")
        a(f"v_or_b32 v{MK+q}, v{MK+q}, v{KF[1]}")
    a(f"s_lshl_b32 s{T0}, s{S_W}, 8")
    a(f"v_lshlrev_b32 v{t2}, 3, v{t0}")
    a(f"v_add_u32 v{t2}, s{T0}, v{t2}")
    a(f"s_movk_i32 s{T1}, {2*PST}")
    a(f"v_mul_lo_u32 v{t3}, v{t1}, s{T1}")
    a(f"v_add_u32 v{VK}, v{t2}, v{t3}")
    VKX = 11
    a(f"v_add_u32 v{VKX}, {4*PST}, v{t2}")
    a(f"v_bfe_u32 v{t2}, v1, 4, 1")
    a(f"v_and_b32 v{t3}, 3, v1")
    a(f"v_lshl_add_u32 v{t2}, v{t2}, 2, v{t3}")
    a(f"v_bfe_u32 v{t3}, v1, 2, 2")
    a(f"v_lshl_add_u32 v{t3}, v{t1}, 2, v{t3}")
    a(f"v_lshlrev_b32 v{t3}, 3, v{t3}")
    a(f"v_add_u32 v{t3}, s{T0}, v{t3}")
    a(f"s_movk_i32 s{T1}, {PST}")
    a(f"v_mul_lo_u32 v{t4}, v{t2}, s{T1}")
    a(f"v_cmp_gt_u32 s[{T4}:{T4+1}], 5, v{t2}")
    for hh in range(2):
        vb = LV + hh*5*PST
        a(f"v_lshlrev_b32 v{KF[0]}, 5, v{t2}")
        a(f"v_add_u32 v{KF[0]}, {(vb - LONES) % 256}, v{KF[0]}")
        a(f"v_and_b32 v{KF[0]}, 255, v{KF[0]}")
        a(f"v_add_u32 v{KF[0]}, {LONES}, v{KF[0]}")
        a(f"v_add_u32 v{KF[0]+1}, {vb}, v{t4}")
        a(f"v_cndmask_b32 v{KF[0]}, v{KF[0]}, v{KF[0]+1}, s[{T4}:{T4+1}]")
        a(f"v_add_u32 v{VV+hh}, v{KF[0]}, v{t3}")
    a(f"v_mov_b32 v{CS}, 0x3ea52b5c")
    for st in range(2):
        a(f"v_mov_b32 v{KF[st]+6}, 0"); a(f"v_mov_b32 v{KF[st]+7}, 0")
    a(f"v_mov_b32 v{Q1+2}, 0"); a(f"v_mov_b32 v{Q1+3}, 0")
    a.wait_vm('q')
    a(f"v_cmp_gt_u32 s[{T4}:{T4+1}], 32, v1")
    for q in (Q1, Q1+1, QH+4, QH+5):
        a(f"v_cndmask_b32 v{q}, 0, v{q}, s[{T4}:{T4+1}]")
    a("s_waitcnt vmcnt(0) lgkmcnt(0)")
    a("s_barrier")
    a.reset_counters()
    mark(a)
    NEG = 0xf149f2ca
    for hh in range(2):
        if hh == 1:
            for r in range(4): a(f"v_mov_b32 v{Q0+r}, v{QH+r}")
            a(f"v_mov_b32 v{Q1}, v{QH+4}"); a(f"v_mov_b32 v{Q1+1}, v{QH+5}")
        ko = hh*5*PST
        def rd_k(tl):
            st = KF[tl % 2]
            a(f"ds_read_b64 {vr(st,2)}, v{VK} offset:{ko + tl*256}", tag=('k', tl))
            a(f"ds_read_b64 {vr(st+2,2)}, v{VK} offset:{ko + PST + tl*256}", tag=('k', tl))
            a(f"ds_read_b64 {vr(st+4,2)}, v{VKX} offset:{ko + tl*256}", tag=('k', tl))
        rd_k(0)
        for tl in range(9):
            if tl + 1 < 9: rd_k(tl + 1)
            a.wait_lg(('k', tl))
            st = KF[tl % 2]; d = vr(S+16*tl, 16)
            a(f"v_mfma_f32_32x32x16_bf16 {d}, {vr(st,4)}, {vr(Q0,4)}, 0")
            a(f"v_mfma_f32_32x32x16_bf16 {d}, {vr(st+4,4)}, {vr(Q1,4)}, {d}")
        a(f"s_cmp_ge_u32 s{S_QB}, 8")
        a(f"s_cbranch_scc1 {lbl}_full{hh}")
        for tl in range(8):
            a(f"s_cmp_ge_u32 s{S_QB}, {8-tl}")
            a(f"s_cbranch_scc1 {lbl}_full{hh}")
            a("s_nop 7"); a("s_nop 7")
            for r in range(16): a(f"v_mov_b32 v{S+16*tl+r}, {hex(NEG)}")
        a.label(f"{lbl}_full{hh}")
        a("s_nop 7"); a("s_nop 3")
        for r in range(16):
            a(f"v_cndmask_b32 v{S+r}, v{S+r}, v{S+128+r}, s[{S_MASK+2*r}:{S_MASK+2*r+1}]")
        for c in range(4):
            a(f"v_max3_f32 v{MX+c}, v{S+32*c}, v{S+32*c+1}, v{S+32*c+2}")
        for k in range(3, 31, 2):
            for c in range(4):
                a(f"v_max3_f32 v{MX+c}, v{MX+c}, v{S+32*c+k}, v{S+32*c+k+1}")
        for c in range(4):
            a(f"v_max_f32 v{MX+c}, v{MX+c}, v{S+32*c+31}")
        a(f"v_max3_f32 v{MX}, v{MX}, v{MX+1}, v{MX+2}")
        a(f"v_max_f32 v{MX}, v{MX}, v{MX+3}")
        a(f"v_mov_b32 v{MX+1}, v{MX}")
        a(f"v_permlane32_swap_b32 v{MX}, v{MX+1}")
        a(f"v_max_f32 v{MX}, v{MX}, v{MX+1}")
        a(f"v_mul_f32 v{NM}, v{CS}, v{MX}")
        a(f"v_sub_f32 v{NM}, 0, v{NM}")
        mark(a)
        def rd_v(tl, kk, slot):
            for rd in range(2):
                a(f"ds_read_b64_tr_b16 {vr(VF[slot]+2*rd,2)}, v{VV+hh} offset:{tl*256 + kk*128 + rd*64}", tag=('v', tl, kk))
        seq = [(1 + q // 2, q % 2) for q in range(14)]
        nv = 0
        vq = []
        def next_v(tl, kk):
            nonlocal nv
            slot = nv % 4; nv += 1
            rd_v(tl, kk, slot); return slot
        first = True
        pslot = 0
        def softmax_frag(src):
            nonlocal pslot
            p = PF[pslot % 4]; pslot += 1
            for e in range(8): a(f"v_fma_f32 v{src+e}, v{src+e}, v{CS}, v{NM}")
            for e in range(8): a(f"v_exp_f32 v{src+e}, v{src+e}")
            for e in range(4): a(f"v_cvt_pk_bf16_f32 v{p+e}, v{src+2*e}, v{src+2*e+1}")
            return p
        def pv(p, slot, tag):
            nonlocal first
            a.wait_lg(tag)
            c = "0" if first else vr(OA,16)
            a(f"v_mfma_f32_32x32x16_bf16 {vr(OA,16)}, {vr(VF[slot],4)}, {vr(p,4)}, {c}")
            first = False
        for (tl, kk) in seq:
            slot = next_v(tl, kk)
            p = softmax_frag(S + 16*tl + 8*kk)
            pv(p, slot, ('v', tl, kk))
        for kk in range(2):
            s0 = next_v(0, kk); s8 = next_v(8, kk)
            p = softmax_frag(S + 8*kk)
            p8 = PF[pslot % 4]; pslot += 1
            for e in range(4):
                a(f"v_and_b32 v{p8+e}, v{p+e}, v{MK+4*kk+e}")
            for e in range(4):
                a(f"v_xor_b32 v{p+e}, v{p+e}, v{p8+e}")
            pv(p, s0, ('v', 0, kk))
            pv(p8, s8, ('v', 8, kk))
        a(f"v_rcp_f32 v{NM}, v{OA+12}")
        for r in range(12): a(f"v_mul_f32 v{OA+r}, v{OA+r}, v{NM}")
        for e in range(4): a(f"v_cvt_pk_bf16_f32 v{PF[0]+e}, v{OA+2*e}, v{OA+2*e+1}")
        a(f"v_cvt_pk_bf16_f32 v{LO+2*hh}, v{OA+8}, v{OA+9}")
        a(f"v_cvt_pk_bf16_f32 v{LO+2*hh+1}, v{OA+10}, v{OA+11}")
        a(f"s_mul_i32 s{T0}, s{S_QB}, 40")
        a(f"s_lshl_b32 s{T1}, s{HP}, 1")
        a(f"s_add_u32 s{T1}, s{T1}, {hh}")
        a(f"s_add_u32 s{T0}, s{T0}, s{T1}")
        a(f"s_lshl_b32 s{T0}, s{T0}, 10")
        a(f"s_add_u32 s{T0}, s{T0}, {WS_O}")
        a(f"v_lshlrev_b32 v{t0}, 4, v1")
        a(f"buffer_store_dwordx4 {vr(PF[0],4)}, v{t0}, s[{SRD_WS}:{SRD_WS+3}], s{T0} offen sc1")
    mark(a)
    a(f"s_mul_i32 s{T0}, s{S_QB}, 40")
    a(f"s_lshr_b32 s{T1}, s{HP}, 1")
    a(f"s_add_u32 s{T0}, s{T0}, s{T1}")
    a(f"s_add_u32 s{T0}, s{T0}, 32")
    a(f"s_lshl_b32 s{T0}, s{T0}, 10")
    a(f"s_and_b32 s{T1}, s{HP}, 1")
    a(f"s_lshl_b32 s{T1}, s{T1}, 9")
    a(f"s_add_u32 s{T0}, s{T0}, s{T1}")
    a(f"s_add_u32 s{T0}, s{T0}, {WS_O}")
    a("s_mov_b32 exec_hi, 0")
    a(f"buffer_store_dwordx4 {vr(LO,4)}, v{t0}, s[{SRD_WS}:{SRD_WS+3}], s{T0} offen sc1")
    a("s_mov_b32 exec_hi, -1")
    if OPT['mega']:
        a(f"s_lshl_b32 s{T0}, s{S_RB}, 7")
        a(f"s_lshl_b32 s{T1}, s{HP}, 2")
        a(f"s_add_u32 s{T0}, s{T0}, s{T1}")
        a(f"s_add_u32 s{T0}, s{T0}, {WS_FLAG + FO}")
        publish(a, T0, t1)
    a.reset_counters()

def stage_final(a, lbl):
    a(f"s_lshr_b32 s{T0}, s{S_X}, 1")
    a(f"s_lshl_b32 s{T0}, s{T0}, 3")
    a(f"s_and_b32 s{T1}, s{S_I}, 7")
    a(f"s_add_u32 s{S_RB}, s{T0}, s{T1}")
    a(f"s_and_b32 s{T0}, s{S_X}, 1")
    a(f"s_lshl_b32 s{T0}, s{T0}, 2")
    a(f"s_lshr_b32 s{T1}, s{S_I}, 3")
    a(f"s_add_u32 s{S_CJ}, s{T0}, s{T1}")
    srd(a, SRD_A, P_B2, SIZES['B2'])
    srd(a, SRD_B, P_OUT, SIZES['OUT'])
    VW, VA, VB, VT = 2, 3, 4, 6
    t0, t1, t2, t3 = VT, VT+1, VT+2, VT+3
    VG, VO, VF = 10, 11, 12
    AS = [20, 40, 60]
    ACB, ACA = 80, 100
    TR = 120; NT = 28; TD = 20
    NSTEP = 74; HS = 54
    PAIR = 10240; NSL = 7
    NP = NSTEP // 2
    if OPT['mega']:
        a(f"v_lshlrev_b32 v{t2}, 2, v1")
        a(f"v_add_u32 v{t2}, {WS_FLAG + FW}, v{t2}")
        a(f"s_mov_b32 s{T4}, -1")
        a(f"s_mov_b32 s{T4+1}, 0xffff")
        wait_flags(a, t2, t3, T4)
    a(f"v_lshlrev_b32 v{VW}, 4, v1")
    a(f"s_mul_i32 s{T0}, s{S_CJ}, {WF_TILE}")
    a(f"s_mul_i32 s{T6}, s{S_W}, 2560")
    a(f"s_add_u32 s{T0}, s{T0}, s{T6}")
    a(f"s_add_u32 s{T7}, s{T0}, {WS_WF}")
    def dma_w(p):
        a(f"s_add_u32 m0, s{T6}, {(p % NSL)*PAIR}")
        a(f"s_add_u32 s{S_KW}, s{T7}, {p*PAIR}")
        a(f"buffer_load_dwordx4 v{VW}, s[{SRD_WS}:{SRD_WS+3}], s{S_KW} offen sc1 lds", tag=('W', p))
        a(f"buffer_load_dwordx4 v{VW}, s[{SRD_WS}:{SRD_WS+3}], s{S_KW} offen offset:1024 sc1 lds", tag=('W', p))
        a("s_mov_b32 exec_hi, 0")
        a(f"buffer_load_dwordx4 v{VW}, s[{SRD_WS}:{SRD_WS+3}], s{S_KW} offen offset:2048 sc1 lds", tag=('W', p))
        a("s_mov_b32 exec_hi, -1")
    for p in range(NSL - 1): dma_w(p)
    if OPT['mega'] and OPT['pf_wf']:
        nl = (WF_TILE - (NSL-1)*PAIR) // 128
        per = (nl + 7) // 8
        a(f"s_and_b32 s{T0}, s{S_I}, 7")
        a(f"s_mul_i32 s{T0}, s{T0}, {per*128}")
        a(f"s_mul_i32 s{T1}, s{S_CJ}, {WF_TILE}")
        a(f"s_add_u32 s{T0}, s{T0}, s{T1}")
        a(f"s_add_u32 s{T0}, s{T0}, {WS_WF + (NSL-1)*PAIR}")
        a(f"v_lshlrev_b32 v{t2}, 7, v0")
        a(f"v_add_u32 v{t2}, s{T0}, v{t2}")
        a(f"v_mov_b32 v{t3}, 0x7ffffff0")
        a(f"s_movk_i32 s{T1}, {per}")
        for k in range((per + 255) // 256):
            a(f"v_add_u32 v{t1}, {256*k}, v0")
            a(f"v_cmp_gt_u32 s[{T4}:{T4+1}], s{T1}, v{t1}")
            a(f"v_cndmask_b32 v{t1}, v{t3}, v{t2}, s[{T4}:{T4+1}]")
            a(f"buffer_load_dword v14, v{t1}, s[{SRD_WS}:{SRD_WS+3}], 0 offen sc1", tag='touch')
            a(f"v_add_u32 v{t2}, {256*128}, v{t2}")
    a(f"v_lshrrev_b32 v{t0}, 4, v1")
    a(f"v_lshlrev_b32 v{t1}, 3, v{t0}")
    a(f"s_mul_i32 s{T0}, s{S_CJ}, 160")
    a(f"v_add_u32 v{t1}, s{T0}, v{t1}")
    for F in range(5):
        a(f"buffer_load_dwordx2 {vr(AS[0]+2*F,2)}, v{t1}, s[{SRD_A}:{SRD_A+3}], 0 offen offset:{32*F}", tag='bias')
    if OPT['mega']:
        a(f"s_lshr_b32 s{T0}, s{S_RB}, 1")
        a(f"s_lshl_b32 s{T0}, s{T0}, 7")
        a(f"s_add_u32 s{T1}, s{T0}, {WS_FLAG + FH}")
        a(f"v_lshlrev_b32 v{t2}, 2, v1")
        a(f"v_add_u32 v{t2}, s{T1}, v{t2}")
        a(f"s_mov_b64 s[{T4}:{T4+1}], 0x3fff")
        a(f"s_add_u32 s{T1}, s{T0}, {WS_FLAG + FO}")
        a(f"v_and_b32 v{VF}, 15, v1")
        a(f"v_lshlrev_b32 v{VF}, 2, v{VF}")
        a(f"v_add_u32 v{VF}, s{T1}, v{VF}")
        vm = list(a.vm)
        wait_flags(a, t2, t3, T4)
        a.vm = vm
        if OPT.get('fine'): mark(a)
    a(f"v_lshrrev_b32 v{t1}, 5, v1")
    a(f"v_bfe_u32 v{t2}, v1, 4, 1")
    a(f"v_lshlrev_b32 v{t1}, 10, v{t1}")
    a(f"v_lshl_add_u32 v{t1}, v{t2}, 9, v{t1}")
    a(f"v_and_b32 v{t2}, 15, v1")
    a(f"s_and_b32 s{T0}, s{S_W}, 1")
    a(f"s_lshl_b32 s{T0}, s{T0}, 4")
    a(f"v_add_u32 v{t3}, s{T0}, v{t2}")
    a(f"v_lshl_add_u32 v{VB}, v{t3}, 4, v{t1}")
    a(f"s_lshl_b32 s{T0}, s{S_RB}, 1")
    a(f"s_lshr_b32 s{T1}, s{S_W}, 1")
    a(f"s_add_u32 s{T0}, s{T0}, s{T1}")
    S_HB, S_OB = 62, 63
    a(f"s_mul_i32 s{T1}, s{T0}, {108*1024}")
    a(f"s_add_u32 s{S_HB}, s{T1}, {WS_H}")
    a(f"s_mul_i32 s{T1}, s{T0}, {40*1024}")
    a(f"s_add_u32 s{S_OB}, s{T1}, {WS_O}")
    def ld_t(s):
        if s < HS: sb, k = S_HB, s
        else: sb, k = S_OB, s - HS
        if k % 2 == 0 and k > 0:
            a(f"s_add_u32 s{sb}, s{sb}, 4096")
        a(f"buffer_load_dwordx4 {vr(TR+4*(s % NT),4)}, v{VB}, s[{SRD_WS}:{SRD_WS+3}], s{sb} offen offset:{(k % 2)*2048} sc1", tag=('T', s))
    for s in range(TD): ld_t(s)
    a(f"s_lshl_b32 s{T0}, s{S_RB}, 6")
    a(f"s_lshl_b32 s{T1}, s{S_W}, 4")
    a(f"s_add_u32 s{T0}, s{T0}, s{T1}")
    a(f"v_add_u32 v{t2}, s{T0}, v{t2}")
    a(f"v_lshlrev_b32 v{t3}, 2, v{t2}")
    a(f"v_add_u32 v{t3}, {WS_G}, v{t3}")
    a(f"buffer_load_dword v{VG}, v{t3}, s[{SRD_WS}:{SRD_WS+3}], 0 offen sc1", tag='g')
    a(f"s_movk_i32 s{T1}, 1280")
    a(f"v_mul_lo_u32 v{t2}, v{t2}, s{T1}")
    a(f"s_mul_i32 s{T0}, s{S_CJ}, 160")
    a(f"v_lshl_add_u32 v{t2}, v{t0}, 3, v{t2}")
    a(f"v_add_u32 v{VO}, s{T0}, v{t2}")
    a(f"v_lshrrev_b32 v{t1}, 5, v1")
    a(f"v_bfe_u32 v{t2}, v1, 4, 1")
    a(f"v_lshlrev_b32 v{t1}, 4, v{t1}")
    a(f"v_lshl_add_u32 v{t1}, v{t2}, 2, v{t1}")
    a(f"v_bfe_u32 v{t2}, v1, 2, 2")
    a(f"v_add_u32 v{t1}, v{t1}, v{t2}")
    a(f"v_mul_u32_u24 v{t1}, 160, v{t1}")
    a(f"v_and_b32 v{t2}, 3, v1")
    a(f"v_lshl_add_u32 v{VA}, v{t2}, 3, v{t1}")
    VA2 = 5
    a(f"v_add_u32 v{VA2}, {4*PAIR}, v{VA}")
    a.wait_vm('bias')
    for F in range(5):
        s_ = AS[0] + 2*F; d = ACB + 4*F
        a(f"v_lshlrev_b32 v{d}, 16, v{s_}")
        a(f"v_and_b32 v{d+1}, 0xffff0000, v{s_}")
        a(f"v_lshlrev_b32 v{d+2}, 16, v{s_+1}")
        a(f"v_and_b32 v{d+3}, 0xffff0000, v{s_+1}")
    def rd_a(s, F, rd):
        p = s >> 1; u = s & 1
        sl = p % NSL
        base, off = (VA, sl*PAIR) if sl < 4 else (VA2, (sl-4)*PAIR)
        a(f"ds_read_b64_tr_b16 {vr(AS[s % 3]+4*F+2*rd,2)}, v{base} offset:{off + u*5120 + rd*1280 + F*32}", tag=('A', s, F))
    a.wait_vm(('W', 0))
    a("s_barrier")
    for s in range(2):
        for F in range(5):
            rd_a(s, F, 0); rd_a(s, F, 1)
    mark(a)
    POLL = HS - TD - 6
    for s in range(NSTEP):
        p = s >> 1; u = s & 1
        if s == HS: mark(a)
        if u == 0 and p + 1 < NP:
            a.wait_vm(('W', p + 1))
            a("s_barrier")
            if p + NSL - 1 < NP: dma_w(p + NSL - 1)
        if OPT['mega'] and s == POLL:
            a(f"buffer_load_dword v{VF+1}, v{VF}, s[{SRD_WS}:{SRD_WS+3}], 0 offen sc1", tag='fo')
        if OPT['mega'] and s + TD == HS:
            L = uid("fo")
            a.wait_vm('fo')
            vm_keep = list(a.vm)
            a.label(L)
            a(f"v_cmp_ne_u32 vcc, s{S_NONCE}, v{VF+1}")
            a("s_nop 4")
            a(f"s_cbranch_vccz {L}_ok")
            a("s_sleep 1")
            a(f"buffer_load_dword v{VF+1}, v{VF}, s[{SRD_WS}:{SRD_WS+3}], 0 offen sc1")
            a("s_waitcnt vmcnt(0)")
            a(f"s_branch {L}")
            a.label(f"{L}_ok")
            a.vm = vm_keep
        a.wait_vm(('T', s))
        for F in range(5):
            a.wait_lg(('A', s, F))
            acc = (ACB if s < HS else ACA) + 4*F
            d = vr(acc, 4)
            c = "0" if s == HS else d
            a(f"v_mfma_f32_16x16x32_bf16 {d}, {vr(AS[s % 3]+4*F,4)}, {vr(TR+4*(s % NT),4)}, {c}")
            if s + 2 < NSTEP:
                rd_a(s + 2, F, 0); rd_a(s + 2, F, 1)
            if F == 2 and s + TD < NSTEP:
                ld_t(s + TD)
    mark(a)
    a.wait_vm('g')
    a(f"v_sub_f32 v{t0}, 1.0, v{VG}")
    for r in range(20):
        a(f"v_mul_f32 v{ACB+r}, v{ACB+r}, v{t0}")
    for r in range(20):
        a(f"v_fmac_f32 v{ACB+r}, v{ACA+r}, v{VG}")
    for F in range(5):
        d = AS[0] + 2*F
        a(f"v_cvt_pk_bf16_f32 v{d}, v{ACB+4*F}, v{ACB+4*F+1}")
        a(f"v_cvt_pk_bf16_f32 v{d+1}, v{ACB+4*F+2}, v{ACB+4*F+3}")
        a(f"buffer_store_dwordx2 {vr(d,2)}, v{VO}, s[{SRD_B}:{SRD_B+3}], 0 offen offset:{32*F}")
    a.reset_counters()

def tlb_touch(a):
    a("v_lshlrev_b32 v250, 21, v1")
    a(f"v_add_u32 v250, {0x1FFF80}, v250")
    a(f"v_mov_b32 v251, 0x7ffffff0")
    a(f"v_cmp_gt_u32 s[{T4}:{T4+1}], 12, v1")
    a(f"v_cndmask_b32 v250, v251, v250, s[{T4}:{T4+1}]")
    a(f"buffer_load_dword v253, v250, s[{SRD_WS}:{SRD_WS+3}], 0 offen", tag='touch')
    a("v_and_b32 v250, 1, v1")
    a("v_lshlrev_b32 v250, 21, v250")
    for p in (P_OUT, P_W1, P_W2):
        a(f"global_load_dword v253, v250, s[{p}:{p+1}]", tag='touch')
    a("v_mov_b32 v250, 0")
    for p in (P_WO, P_B1, P_B2):
        a(f"global_load_dword v253, v250, s[{p}:{p+1}]", tag='touch')

def start_prefetch(a, role):
    if OPT.get('tlbt'): tlb_touch(a)
    if OPT['pf_code']:
        prefetch_code(a, "L_endA" if role == 'A' else "L_endB", 1 if role == 'A' else 2)
    if role == 'B' and OPT['pf_w1']:
        L = uid("pw")
        a(f"s_lshr_b32 s{T1}, s{S_I}, 2")
        a(f"s_cmp_ge_u32 s{T1}, 7")
        a(f"s_cbranch_scc1 {L}")
        a(f"s_and_b32 s{T0}, s{S_X}, 1")
        a(f"s_mul_i32 s{T0}, s{T0}, 7")
        a(f"s_add_u32 s{T0}, s{T0}, s{T1}")
        a(f"s_lshl_b32 s{T0}, s{T0}, 8")
        a(f"s_and_b32 s{T1}, s{S_I}, 3")
        a(f"s_mul_i32 s{T1}, s{T1}, {160*3456}")
        a(f"s_add_u32 s{T0}, s{T0}, s{T1}")
        srd(a, SRD_C, P_W1, SIZES['W1'])
        a("v_lshrrev_b32 v250, 1, v0")
        a(f"s_movk_i32 s{T1}, 3456")
        a(f"v_mul_lo_u32 v250, v250, s{T1}")
        a("v_and_b32 v251, 1, v0")
        a("v_lshl_add_u32 v250, v251, 7, v250")
        a(f"v_add_u32 v250, s{T0}, v250")
        vm = list(a.vm)
        a(f"buffer_load_dword v253, v250, s[{SRD_C}:{SRD_C+3}], 0 offen")
        a(f"v_add_u32 v250, {128*3456}, v250")
        a("v_mov_b32 v251, 0x7ffffff0")
        a(f"v_cmp_gt_u32 s[{T4}:{T4+1}], 64, v0")
        a(f"v_cndmask_b32 v250, v251, v250, s[{T4}:{T4+1}]")
        a(f"buffer_load_dword v253, v250, s[{SRD_C}:{SRD_C+3}], 0 offen")
        a.vm = vm
        a.label(L)

def build_multi():
    LDS = 81920
    ks = []
    def mk(name, fa, fb):
        a = Asm()
        a("s_cmp_ge_u32 s2, 512")
        a(f"s_cbranch_scc1 {name}_end")
        prologue(a)
        kidx = len(ks)
        stamp(a, kidx, 0)
        CTX['k'] = kidx; CTX['slot'] = 0
        a("s_cmp_ge_u32 s2, 256")
        a(f"s_cbranch_scc1 {name}_b")
        for n, f in enumerate(fa):
            f(a, name + "_" + f.__name__)
            if STAMPS: a("s_waitcnt vmcnt(0)"); mark(a)
        a(f"s_branch {name}_end")
        a.label(f"{name}_b")
        a.reset_counters()
        CTX['slot'] = 0
        for n, f in enumerate(fb):
            f(a, name + "_" + f.__name__)
            if STAMPS: a("s_waitcnt vmcnt(0)"); mark(a)
        a.label(f"{name}_end")
        ks.append((name, a.text()))
    def rp_multi(a, lbl):
        a(f"s_cmp_ge_u32 s{S_IDX}, {NRP}")
        a(f"s_cbranch_scc1 {lbl}_no")
        a(f"s_mov_b32 s{S_KO}, s{S_IDX}")
        stage_repack(a, lbl, S_KO)
        a.label(f"{lbl}_no")
    if OPT.get('split'):
        mk("k1_kernel", [stage_qkv], [])
        mk("k2_kernel", [], [stage_ln, rp_multi])
        mk("k3_kernel", [stage_attn], [])
        mk("k4_kernel", [], [stage_ffn1])
        mk("k5_kernel", [], [stage_final])
        return ks, LDS
    mk("k1_kernel", [stage_qkv], [stage_ln, rp_multi])
    mk("k2_kernel", [stage_attn], [stage_ffn1])
    mk("k3_kernel", [], [stage_final])
    return ks, LDS

def build_mega():
    OPT['mega'] = True
    LDS = OPT.get('lds', 81920)
    name = NAME + "_kernel"
    a = Asm()
    a("s_cmp_ge_u32 s2, 512")
    a("s_cbranch_scc1 L_end")
    prologue(a)
    nonce_post(a)
    if OPT.get('spin'):
        a("s_memrealtime s[94:95]")
        a("s_waitcnt lgkmcnt(0)")
        a("s_mov_b32 s63, s94") if False else None
        a("v_mov_b32 v249, s94")
    stamp(a, 0, 0); CTX['k'] = 0; CTX['slot'] = 0
    if STAMPS:
        a("s_getreg_b32 s98, hwreg(HW_REG_HW_ID)")
        a("s_getreg_b32 s99, hwreg(HW_REG_XCC_ID)")
        a("s_and_b32 s98, s98, 0xffff")
        a("s_and_b32 s99, s99, 0xf")
        a("s_lshl_b32 s99, s99, 16")
        a("s_or_b32 s98, s98, s99")
        a("s_lshl_b32 s97, s2, 7")
        a(f"s_add_u32 s97, s97, {WS_STAMP + 15*4}")
        a("v_mov_b32 v254, s98")
        a(f"buffer_store_dword v254, off, s[{SRD_WS}:{SRD_WS+3}], s97")
        a.vm.pop()
    dbgtime(a, 1, OPT.get('wa', 0)); dbgtime(a, 7, OPT.get('wb', 256))
    a("s_cmp_ge_u32 s2, 256")
    a("s_cbranch_scc1 L_roleB")
    if OPT.get('prioA'): a(f"s_setprio {OPT['prioA']}")
    stage_qkv(a, "qkv"); mark(a); dbgtime(a, 2, OPT.get('wa', 0))
    if OPT.get('prioA'): a(f"s_setprio {OPT.get('prioA2', 0)}")
    stage_attn(a, "attn"); mark(a); dbgtime(a, 3, OPT.get('wa', 0))
    a("s_endpgm")
    a.label("L_endA")
    a.label("L_roleB")
    a.reset_counters(); CTX['slot'] = 0
    if OPT.get('prioB'): a(f"s_setprio {OPT['prioB']}")
    stage_ln(a, "ln"); mark(a); dbgtime(a, 8, OPT.get('wb', 256))
    stage_ffn1(a, "ffn1"); mark(a); dbgtime(a, 10, OPT.get('wb', 256))
    stage_final(a, "fin")
    if STAMPS or OPT.get('dbgtime'): a("s_waitcnt vmcnt(0)")
    mark(a); dbgtime(a, 11, OPT.get('wb', 256))
    if OPT.get('spin'):
        a("s_cmp_lg_u32 s2, 256")
        a("s_cbranch_scc1 L_endB")
        a("s_waitcnt vmcnt(0)")
        a("v_readfirstlane_b32 s90, v249")
        a("s_memrealtime s[92:93]")
        a("s_waitcnt lgkmcnt(0)")
        a("s_sub_u32 s91, s92, s90")
        a(f"s_mul_i32 s91, s91, {OPT['spin'] + 1}")
        a.label("L_spin")
        a("s_memrealtime s[92:93]")
        a("s_waitcnt lgkmcnt(0)")
        a("s_sub_u32 s93, s92, s90")
        a("s_cmp_lt_u32 s93, s91")
        a("s_cbranch_scc1 L_spin")
    a.label("L_endB")
    a.label("L_end")
    return [(name, a.text())], LDS

def header_comment():
    ref = open("cdna_kernels/" + NAME + ".s.ref").read().split("\n")
    return [l for l in ref if l.startswith(";") and "@launch" not in l and "Override" not in l and "grid=ceil" not in l]

def emit(ks, LDS, grid=512):
    s = "\n".join(header_comment()) + "\n"
    if len(ks) == 1:
        s += f"; @launch grid=({grid},1,1) block=(256,1,1) lds={LDS}\n"
    else:
        for name, _ in ks:
            s += f"; @launch kernel={name} grid=({grid},1,1) block=(256,1,1) lds={LDS}\n"
    s += '.amdgcn_target "amdgcn-amd-amdhsa--gfx950"\n.text\n'
    for name, body in ks:
        s += kernel_text(name, body, grid, LDS)
    s += '.section .rodata,"a"\n'
    for name, _ in ks:
        s += ".p2align 6\n" + descriptor(name)
    return s

if __name__ == "__main__":
    mode = sys.argv[1] if len(sys.argv) > 1 else "multi"
    if "stamps" in sys.argv: STAMPS = True
    for arg in sys.argv[2:]:
        if "=" in arg:
            k, v = arg.split("="); OPT[k] = int(v)
    ks, LDS = build_multi() if mode == "multi" else build_mega()
    sys.stdout.write(emit(ks, LDS))
```

```python
import sys
import gen as G
from gen import (Asm, NAME, SIZES, srd, vr, uid, OPT, mark, stamp, CTX, dpp_sum16, WF_TILE,
                 P_AX, P_WQKV, P_WO, P_W1, P_B1, P_W2, P_B2, P_GW, P_OUT, P_DBG, P_WS,
                 SRD_A, SRD_B, SRD_WS, SRD_C, S_W, S_IDX, S_X, S_I, T0, T1, T2, T3, T4, T5, T6, T7,
                 S_RB, S_CJ, S_MASK, S_NONCE, nonce_post, nonce_get, publish, wait_flags)

WS_ST   = 0x0000000
WS_CS   = 0x0010000
WS_B1   = 0x0012000
WS_G    = G.WS_G
WS_QKV  = G.WS_QKV
WS_H, WS_O, WS_WF, WS_FLAG = G.WS_H, G.WS_O, G.WS_WF, G.WS_FLAG
FS, FW, FQ, FH, FO, FC = 0, 2048, 3072, 5120, 7168, 9216
PST = 3104
LB = 98304
LK, LV, LONES = LB, LB + 10*PST, LB + 20*PST
RING = [0, 40960, 81920, 122880]
WSLOT = 40960
SRD_D = 60
S_KX, S_KQ, S_K1 = 58, 59, 80
S_QB = 61
S_FHO, S_HBO = 86, 87
S_ARB, S_AHP, S_LW = 88, 89, 90

V_FLG = 250
def flag_setup(a):
    a(f"v_mov_b32 v{V_FLG}, 0x7ffffff0")
    a(f"v_cmp_eq_u32 s[{T4}:{T4+1}], 0, v0")
    a(f"v_cndmask_b32 v{V_FLG}, v{V_FLG}, 0, s[{T4}:{T4+1}]")

def flag_store(a, sflag, v):
    a(f"v_mov_b32 v{v}, s{S_NONCE}")
    a(f"buffer_store_dword v{v}, v{V_FLG}, s[{SRD_WS}:{SRD_WS+3}], s{sflag} offen sc1", tag='flag')

def poll_issue(a, voff, vval, tag):
    a(f"buffer_load_dword v{vval}, v{voff}, s[{SRD_WS}:{SRD_WS+3}], 0 offen sc1", tag=tag)

def poll_check(a, voff, vval, tag):
    L = uid("pc")
    a.wait_vm(tag)
    keep = list(a.vm)
    a.label(L)
    a(f"v_cmp_ne_u32 vcc, s{S_NONCE}, v{vval}")
    a("s_nop 4")
    a(f"s_cbranch_vccz {L}_ok")
    a("s_sleep 1")
    a(f"buffer_load_dword v{vval}, v{voff}, s[{SRD_WS}:{SRD_WS+3}], 0 offen sc1")
    a("s_waitcnt vmcnt(0)")
    a(f"s_branch {L}")
    a.label(f"{L}_ok")
    a.vm = keep

def poll_recheck(a, voff, vval):
    L = uid("pr")
    keep = list(a.vm)
    a.label(L)
    a(f"v_cmp_ne_u32 vcc, s{S_NONCE}, v{vval}")
    a("s_nop 4")
    a(f"s_cbranch_vccz {L}_ok")
    a("s_sleep 1")
    a(f"buffer_load_dword v{vval}, v{voff}, s[{SRD_WS}:{SRD_WS+3}], 0 offen sc1")
    a("s_waitcnt vmcnt(0)")
    a(f"s_branch {L}")
    a.label(f"{L}_ok")
    a.vm = keep

def prologue(a):
    a("s_load_dwordx16 s[4:19], s[0:1], 0")
    a("s_load_dwordx8 s[20:27], s[0:1], 64")
    a("v_lshrrev_b32 v2, 6, v0")
    a("v_and_b32 v1, 63, v0")
    a(f"v_readfirstlane_b32 s{S_W}, v2")
    a(f"s_and_b32 s{S_X}, s2, 7")
    a(f"s_lshr_b32 s{S_I}, s2, 3")
    a(f"s_lshr_b32 s{T0}, s{S_X}, 2")
    a(f"s_lshl_b32 s{T0}, s{T0}, 3")
    a(f"s_and_b32 s{T1}, s{S_I}, 7")
    a(f"s_add_u32 s{S_RB}, s{T0}, s{T1}")
    a(f"s_and_b32 s{T0}, s{S_X}, 3")
    a(f"s_lshl_b32 s{T0}, s{T0}, 2")
    a(f"s_lshr_b32 s{T1}, s{S_I}, 3")
    a(f"s_add_u32 s{S_CJ}, s{T0}, s{T1}")
    a("s_waitcnt lgkmcnt(0)")
    srd(a, SRD_WS, P_WS, G.WS_SIZE)
    flag_setup(a)

RX, RG, RT, RO = 160, 168, 176, 186
VS = 128
S_ST, S_RPO, S_RPM = 82, 83, 84

def pre_address(a, lbl, two=False, rows=True):
    t0, t1, t2, t3, t4, t5 = range(RT, RT+6)
    if rows: row_address(a, two)
    repack_address(a, lbl)

def row_address(a, two):
    t0, t1, t2, t3, t4, t5 = range(RT, RT+6)
    srd(a, SRD_D, P_GW, SIZES['GW'])
    a(f"s_lshl_b32 s{T0}, s{S_RB}, 7")
    a(f"s_lshl_b32 s{T1}, s{S_CJ}, 3")
    a(f"s_add_u32 s{T0}, s{T0}, s{T1}")
    a(f"s_add_u32 s{T0}, s{T0}, s{S_W}")
    if two: a(f"s_sub_u32 s{T0}, s{T0}, 4")
    a(f"s_mul_i32 s{T1}, s{T0}, 1280")
    a(f"v_lshlrev_b32 v{RO+1}, 4, v1")
    a(f"v_add_u32 v{RO}, s{T1}, v{RO+1}")
    a(f"v_mov_b32 v{t0}, 0x7ffffff0")
    a(f"v_cmp_gt_u32 s[{T4}:{T4+1}], 16, v1")
    a(f"v_add_u32 v{t1}, 1024, v{RO}")
    a(f"v_cndmask_b32 v{RO+2}, v{t0}, v{t1}, s[{T4}:{T4+1}]")
    a(f"v_add_u32 v{t1}, 1024, v{RO+1}")
    a(f"v_cndmask_b32 v{RO+3}, v{t0}, v{t1}, s[{T4}:{T4+1}]")
    a(f"s_mov_b32 s85, s{T0}")

def repack_address(a, lbl):
    t0, t1, t2, t3, t4, t5 = range(RT, RT+6)
    a(f"s_mul_i32 s{T0}, s{S_I}, 3")
    a(f"s_lshl_b32 s{T1}, s{S_I}, 1")
    a(f"s_add_u32 s{T1}, s{T1}, 10")
    a(f"s_cmp_lt_u32 s{S_I}, 10")
    a(f"s_cselect_b32 s{T0}, s{T0}, s{T1}")
    a(f"s_cselect_b32 s{T1}, 3, 2")
    a(f"s_sub_u32 s{T2}, s{S_W}, 4")
    a(f"s_add_u32 s{S_ST}, s{T0}, s{T2}")
    a(f"s_cmp_lt_u32 s{T2}, s{T1}")
    a(f"s_cselect_b32 s{S_ST}, s{S_ST}, 0x100")
    a(f"s_cselect_b32 s{S_RPO}, 0, 0x7fff0000")
    a(f"s_mul_i32 s{T2}, s{T2}, 5120")
    a(f"s_add_u32 s{T2}, s{T2}, {RPL}")
    a(f"s_cselect_b32 s{S_RPM}, s{T2}, s{T2}") if False else None
    a(f"s_cmp_lt_u32 s{S_ST}, 74")
    a(f"s_cselect_b32 s{S_RPM}, s{T2}, {163840}")
    for n in range(5): a(f"v_mov_b32 v{VS+n}, 0")
    srd(a, SRD_C, P_W2, SIZES['W2'])
    a(f"s_cmp_ge_u32 s{S_ST}, 74")
    a(f"s_cbranch_scc1 {lbl}_go")
    a(f"s_movk_i32 s{T6}, 6554")
    a(f"s_movk_i32 s{T7}, 1280")
    a(f"s_mul_i32 s{T2}, s{S_X}, 160")
    a(f"s_cmp_ge_u32 s{S_ST}, 54")
    a(f"s_cbranch_scc1 {lbl}_wo")
    a(f"s_lshl_b32 s{T3}, s{S_ST}, 5")
    for n in range(5):
        a(f"v_add_u32 v{t0}, {64*n}, v1")
        a(f"v_mul_u32_u24 v{t1}, s{T6}, v{t0}")
        a(f"v_lshrrev_b32 v{t1}, 16, v{t1}")
        a(f"v_mul_u32_u24 v{t2}, 10, v{t1}")
        a(f"v_sub_u32 v{t2}, v{t0}, v{t2}")
        a(f"v_add_u32 v{t1}, s{T3}, v{t1}")
        a(f"v_mul_lo_u32 v{t1}, v{t1}, s{T7}")
        a(f"v_lshl_add_u32 v{t1}, v{t2}, 4, v{t1}")
        a(f"v_add_u32 v{VS+n}, s{T2}, v{t1}")
    a(f"s_branch {lbl}_go")
    a.label(f"{lbl}_wo")
    srd(a, SRD_C, P_WO, SIZES['WO'])
    a(f"s_sub_u32 s{T3}, s{S_ST}, 54")
    a(f"s_lshl_b32 s{T3}, s{T3}, 1")
    for n in range(5):
        a(f"v_add_u32 v{t0}, {64*n}, v1")
        a(f"v_mul_u32_u24 v{t1}, s{T6}, v{t0}")
        a(f"v_lshrrev_b32 v{t1}, 16, v{t1}")
        a(f"v_mul_u32_u24 v{t2}, 10, v{t1}")
        a(f"v_sub_u32 v{t2}, v{t0}, v{t2}")
        a(f"v_lshrrev_b32 v{t3}, 4, v{t1}")
        a(f"v_add_u32 v{t3}, s{T3}, v{t3}")
        a(f"v_and_b32 v{t1}, 15, v{t1}")
        a(f"v_mul_u32_u24 v{t4}, 20, v{t3}")
        a(f"v_add_u32 v{t4}, v{t4}, v{t1}")
        a(f"v_cmp_gt_u32 s[98:99], 32, v{t3}")
        a(f"v_subrev_u32 v{t3}, 32, v{t3}")
        a(f"v_lshlrev_b32 v{t3}, 2, v{t3}")
        a(f"v_bfe_u32 v{t5}, v{t1}, 2, 1")
        a(f"v_lshl_add_u32 v{t3}, v{t5}, 1, v{t3}")
        a(f"v_lshrrev_b32 v{t5}, 3, v{t1}")
        a(f"v_add_u32 v{t3}, v{t3}, v{t5}")
        a(f"v_mul_u32_u24 v{t3}, 20, v{t3}")
        a(f"v_and_b32 v{t1}, 3, v{t1}")
        a(f"v_add3_u32 v{t3}, v{t3}, v{t1}, 16")
        a(f"v_cndmask_b32 v{t1}, v{t3}, v{t4}, s[98:99]")
        a(f"v_mul_lo_u32 v{t1}, v{t1}, s{T7}")
        a(f"v_lshl_add_u32 v{t1}, v{t2}, 4, v{t1}")
        a(f"v_add_u32 v{VS+n}, s{T2}, v{t1}")
    a.label(f"{lbl}_go")

def row_issue2(a):
    a(f"v_add_u32 v{RO}, {4*1280}, v{RO}")
    a(f"v_mov_b32 v{RT}, 0x7ffffff0")
    a(f"v_add_u32 v{RT+1}, 1024, v{RO}")
    a(f"v_cmp_gt_u32 s[100:101], 16, v1")
    a(f"v_cndmask_b32 v{RO+2}, v{RT}, v{RT+1}, s[100:101]")
    a(f"buffer_load_dwordx4 {vr(RX2,4)}, v{RO}, s[{SRD_A}:{SRD_A+3}], 0 offen", tag='pl2')
    a(f"buffer_load_dwordx4 {vr(RX2+4,4)}, v{RO+2}, s[{SRD_A}:{SRD_A+3}], 0 offen", tag='pl2')

RX2 = 192
def pre_issue(a, rows=True):
    if rows:
        a(f"buffer_load_dwordx4 {vr(RX,4)}, v{RO}, s[{SRD_A}:{SRD_A+3}], 0 offen", tag='pl')
        a(f"buffer_load_dwordx4 {vr(RX+4,4)}, v{RO+2}, s[{SRD_A}:{SRD_A+3}], 0 offen", tag='pl')
        a(f"buffer_load_dwordx4 {vr(RG,4)}, v{RO+1}, s[{SRD_D}:{SRD_D+3}], 0 offen", tag='pl')
        a(f"buffer_load_dwordx4 {vr(RG+4,4)}, v{RO+3}, s[{SRD_D}:{SRD_D+3}], 0 offen", tag='pl')
    for n in range(5):
        a(f"s_add_u32 m0, s{S_RPM}, {n*1024}")
        a(f"buffer_load_dwordx4 v{VS+n}, s[{SRD_C}:{SRD_C+3}], s{S_RPO} offen lds", tag='pl')

def pre_thunks(a, RX=RX, tag='pl', VO=RO):
    su, sq, dt, one, t0, t1, t2 = range(RT, RT+7)
    T = []
    I = lambda txt: T.append(lambda: a(txt))
    T.append(lambda: a.wait_vm(tag))
    I(f"v_mov_b32 v{one}, 0x3f803f80")
    I(f"v_mov_b32 v{su}, 0"); I(f"v_mov_b32 v{sq}, 0"); I(f"v_mov_b32 v{dt}, 0")
    for d in range(8):
        I(f"v_dot2c_f32_bf16 v{su}, v{RX+d}, v{one}")
        I(f"v_dot2c_f32_bf16 v{sq}, v{RX+d}, v{RX+d}")
        I(f"v_dot2c_f32_bf16 v{dt}, v{RX+d}, v{RG+d}")
    for r in (8, 4, 2, 1):
        for v in (su, sq, dt):
            I(f"v_add_f32_dpp v{v}, v{v}, v{v} row_ror:{r} row_mask:0xf bank_mask:0xf")
    for op in ("v_permlane16_swap_b32", "v_permlane32_swap_b32"):
        for v, t in ((su, t0), (sq, t1), (dt, t2)): I(f"v_mov_b32 v{t}, v{v}")
        for v, t in ((su, t0), (sq, t1), (dt, t2)): I(f"{op} v{v}, v{t}")
        for v, t in ((su, t0), (sq, t1), (dt, t2)): I(f"v_add_f32 v{v}, v{v}, v{t}")
    I(f"v_mul_f32 v{su}, 0x3acccccd, v{su}")
    I(f"v_mul_f32 v{sq}, 0x3acccccd, v{sq}")
    I(f"v_mul_f32 v{dt}, 0xbfb8aa3b, v{dt}")
    I(f"v_fma_f32 v{sq}, -v{su}, v{su}, v{sq}")
    I(f"v_exp_f32 v{dt}, v{dt}")
    I(f"v_add_f32 v{sq}, 0x3727c5ac, v{sq}")
    I(f"v_add_f32 v{dt}, 1.0, v{dt}")
    I(f"v_rsq_f32 v{t1}, v{sq}")
    I(f"v_rcp_f32 v{dt}, v{dt}")
    I(f"v_mul_f32 v{t0}, v{su}, v{t1}")
    I(f"v_sub_f32 v{t0}, 0, v{t0}")
    I(f"v_mov_b32 v{VO}, 0x7ffffff0")
    I(f"v_cmp_eq_u32 s[100:101], 0, v1")
    I(f"v_cndmask_b32 v{VO}, v{VO}, 0, s[100:101]")
    I(f"s_lshl_b32 s98, s85, 3")
    I(f"s_add_u32 s98, s98, {WS_ST}")
    T.append(lambda: a(f"buffer_store_dwordx2 {vr(t0,2)}, v{VO}, s[{SRD_WS}:{SRD_WS+3}], s98 offen sc1", tag='pst'))
    I(f"s_lshl_b32 s98, s85, 2")
    I(f"s_add_u32 s98, s98, {WS_G}")
    T.append(lambda: a(f"buffer_store_dword v{dt}, v{VO}, s[{SRD_WS}:{SRD_WS+3}], s98 offen sc1", tag='pst'))
    return T

def rowstats_issue(a):
    XB, GW, o0, o1, t0 = 128, 108, 96, 97, 98
    srd(a, SRD_D, P_GW, SIZES['GW'])
    a(f"s_lshl_b32 s{T0}, s{S_RB}, 7")
    a(f"s_lshl_b32 s{T1}, s{S_W}, 4")
    a(f"s_add_u32 s85, s{T0}, s{T1}")
    a(f"v_lshrrev_b32 v{t0}, 4, v1")
    a(f"v_add_u32 v{t0}, s85, v{t0}")
    a(f"s_movk_i32 s{T1}, 1280")
    a(f"v_mul_lo_u32 v{o0}, v{t0}, s{T1}")
    a(f"v_and_b32 v{o1}, 15, v1")
    a(f"v_lshlrev_b32 v{o1}, 4, v{o1}")
    a(f"v_add_u32 v{o0}, v{o0}, v{o1}")
    for i in range(5):
        a(f"buffer_load_dwordx4 {vr(GW+4*i,4)}, v{o1}, s[{SRD_D}:{SRD_D+3}], 0 offen offset:{256*i}", tag='gw')
    for q in range(4):
        a(f"s_movk_i32 s{T2}, {q*4*1280}")
        for i in range(5):
            a(f"buffer_load_dwordx4 {vr(XB+20*q+4*i,4)}, v{o0}, s[{SRD_A}:{SRD_A+3}], s{T2} offen offset:{256*i}", tag=('x', q))

def rowstats_compute(a):
    XB, GW = 128, 108
    su, sq, dt, one, t0, t1, t2 = 98, 99, 100, 101, 102, 103, 104
    NMv, RSv, GV = 106, 107, 105
    a(f"v_mov_b32 v{one}, 0x3f803f80")
    a(f"v_and_b32 v{t2}, 15, v1")
    for q in range(4):
        a.wait_vm(('x', q))
        a(f"v_mov_b32 v{su}, 0"); a(f"v_mov_b32 v{sq}, 0"); a(f"v_mov_b32 v{dt}, 0")
        for d in range(20):
            x = XB + 20*q + d
            a(f"v_dot2c_f32_bf16 v{su}, v{x}, v{one}")
            a(f"v_dot2c_f32_bf16 v{sq}, v{x}, v{x}")
            a(f"v_dot2c_f32_bf16 v{dt}, v{x}, v{GW+d}")
        for k in (8, 4, 2, 1):
            for v in (su, sq, dt):
                a(f"v_add_f32_dpp v{v}, v{v}, v{v} row_ror:{k} row_mask:0xf bank_mask:0xf")
        a(f"v_mul_f32 v{su}, 0x3acccccd, v{su}")
        a(f"v_mul_f32 v{sq}, 0x3acccccd, v{sq}")
        a(f"v_mul_f32 v{dt}, 0xbfb8aa3b, v{dt}")
        a(f"v_fma_f32 v{sq}, -v{su}, v{su}, v{sq}")
        a(f"v_exp_f32 v{dt}, v{dt}")
        a(f"v_add_f32 v{sq}, 0x3727c5ac, v{sq}")
        a(f"v_add_f32 v{dt}, 1.0, v{dt}")
        a(f"v_rsq_f32 v{t1}, v{sq}")
        a(f"v_rcp_f32 v{dt}, v{dt}")
        a(f"v_mul_f32 v{t0}, v{su}, v{t1}")
        a(f"v_sub_f32 v{t0}, 0, v{t0}")
        a(f"v_cmp_eq_u32 s[{T4}:{T4+1}], {q}, v{t2}")
        a(f"v_cndmask_b32 v{NMv}, v{NMv}, v{t0}, s[{T4}:{T4+1}]")
        a(f"v_cndmask_b32 v{RSv}, v{RSv}, v{t1}, s[{T4}:{T4+1}]")
        a(f"v_cndmask_b32 v{GV}, v{GV}, v{dt}, s[{T4}:{T4+1}]")
    a(f"v_lshrrev_b32 v{t0}, 4, v1")
    a(f"v_lshl_add_u32 v{t0}, v{t2}, 2, v{t0}")
    a(f"v_add_u32 v{t0}, s85, v{t0}")
    a(f"v_mov_b32 v{su}, 0x7ffffff0")
    a(f"v_cmp_gt_u32 s[{T4}:{T4+1}], 4, v{t2}")
    a(f"v_lshlrev_b32 v{t1}, 3, v{t0}")
    a(f"v_cndmask_b32 v{t1}, v{su}, v{t1}, s[{T4}:{T4+1}]")
    a(f"v_lshlrev_b32 v{t0}, 2, v{t0}")
    a(f"v_cndmask_b32 v{t0}, v{su}, v{t0}, s[{T4}:{T4+1}]")
    a(f"s_mov_b32 s{T0}, {WS_ST}")
    a(f"buffer_store_dwordx2 {vr(NMv,2)}, v{t1}, s[{SRD_WS}:{SRD_WS+3}], s{T0} offen sc1", tag='pst')
    a(f"s_mov_b32 s{T0}, {WS_G}")
    a(f"buffer_store_dword v{GV}, v{t0}, s[{SRD_WS}:{SRD_WS+3}], s{T0} offen sc1", tag='pst')

RPL = 147456
def repack_finish(a):
    D, VA, VD = 136, 134, 135
    L = uid("rf")
    a(f"v_mov_b32 v{VD}, 0x7ffffff0")
    a(f"s_cmp_ge_u32 s82, 74")
    a(f"s_cbranch_scc1 {L}")
    a(f"s_mul_i32 s{T0}, s{S_X}, {WF_TILE}")
    a(f"s_mul_i32 s{T1}, s82, 5120")
    a(f"s_add_u32 s{T0}, s{T0}, s{T1}")
    a(f"s_add_u32 s{T0}, s{T0}, {WS_WF}")
    a(f"v_lshlrev_b32 v{VD}, 4, v1")
    a(f"v_add_u32 v{VD}, s{T0}, v{VD}")
    a(f"v_lshrrev_b32 v{VA}, 5, v1")
    a(f"v_bfe_u32 v{D}, v1, 4, 1")
    a(f"v_lshlrev_b32 v{VA}, 4, v{VA}")
    a(f"v_lshl_add_u32 v{VA}, v{D}, 2, v{VA}")
    a(f"v_bfe_u32 v{D}, v1, 2, 2")
    a(f"v_add_u32 v{VA}, v{VA}, v{D}")
    a(f"v_mul_u32_u24 v{VA}, 160, v{VA}")
    a(f"v_and_b32 v{D}, 3, v1")
    a(f"v_lshl_add_u32 v{VA}, v{D}, 3, v{VA}")
    a(f"v_add_u32 v{VA}, s{S_RPM}, v{VA}")
    lg = list(a.lg)
    for F in range(5):
        for rd in range(2):
            a(f"ds_read_b64_tr_b16 {vr(D+4*F+2*rd,2)}, v{VA} offset:{rd*1280 + F*32}")
    a("s_waitcnt lgkmcnt(0)")
    a.lg = lg
    a.label(L)
    for F in range(5):
        a(f"s_movk_i32 s{T1}, {F*1024}")
        a(f"buffer_store_dwordx4 {vr(D+4*F,4)}, v{VD}, s[{SRD_WS}:{SRD_WS+3}], s{T1} offen sc1", tag='pst')

def nonce_issue(a, v):
    a(f"v_mov_b32 v{v+1}, 0")
    a(f"global_load_dword v{v}, v{v+1}, s[{P_DBG}:{P_DBG+1}] sc1", tag='nonce')

def nonce_check(a, v):
    L = uid("ng")
    a.wait_vm('nonce')
    keep = list(a.vm)
    a.label(L)
    a(f"v_readfirstlane_b32 s{S_NONCE}, v{v}")
    a(f"s_cmp_lg_u32 s{S_NONCE}, 0")
    a(f"s_cbranch_scc1 {L}_ok")
    a("s_sleep 2")
    a(f"global_load_dword v{v}, v{v+1}, s[{P_DBG}:{P_DBG+1}] sc1")
    a("s_waitcnt vmcnt(0)")
    a(f"s_branch {L}")
    a.label(f"{L}_ok")
    a.vm = keep

def pre_flags(a, v, stats=True):
    if stats:
        a(f"s_lshl_b32 s{T0}, s{S_RB}, 7")
        a(f"s_add_u32 s{T0}, s{T0}, {WS_FLAG + FS}")
        flag_store(a, T0, v)
    a(f"s_lshl_b32 s{T0}, s{S_X}, 7")
    a(f"s_lshl_b32 s{T1}, s{S_I}, 2")
    a(f"s_add_u32 s{T0}, s{T0}, s{T1}")
    a(f"s_add_u32 s{T0}, s{T0}, {WS_FLAG + FW}")
    flag_store(a, T0, v)

CD = 16
def colsum_issue(a):
    srd(a, SRD_B, P_W1, SIZES['W1'])
    srd(a, SRD_C, P_B1, SIZES['B1']) if False else None
    t0, t1, VO = 2, 3, 5
    a(f"v_lshrrev_b32 v{t0}, 4, v0")
    a(f"s_movk_i32 s{T0}, 3456")
    a(f"v_mul_lo_u32 v{t0}, v{t0}, s{T0}")
    a(f"v_and_b32 v{t1}, 15, v0")
    a(f"v_lshl_add_u32 v{t0}, v{t1}, 4, v{t0}")
    a(f"s_lshl_b32 s{T1}, s{S_RB}, 8")
    a(f"v_add_u32 v{VO}, s{T1}, v{t0}")
    a(f"s_cmp_lt_u32 s{S_RB}, 14")
    a(f"s_cselect_b32 s{T3}, 0, 0x7fff0000")
    for p in range(20):
        a(f"s_add_u32 s{T2}, s{T3}, {p*32*3456}")
        a(f"buffer_load_dwordx4 {vr(CD+4*p,4)}, v{VO}, s[{SRD_B}:{SRD_B+3}], s{T2} offen", tag=('cs', p))

def colsum_compute(a, lbl):
    t0, t1, t2 = 2, 3, 4
    ACC, LO, HI = 8, 6, 7
    srd(a, SRD_B, P_B1, SIZES['B1'])
    a(f"s_lshl_b32 s{T1}, s{S_RB}, 8")
    a(f"v_lshlrev_b32 v{t2}, 1, v0")
    a(f"v_add_u32 v{t2}, s{T1}, v{t2}")
    a(f"buffer_load_ushort v{t2}, v{t2}, s[{SRD_B}:{SRD_B+3}], 0 offen", tag='b1')
    a(f"v_mov_b32 v{LO}, 0x00003f80")
    a(f"v_mov_b32 v{HI}, 0x3f800000")
    for e in range(8): a(f"v_mov_b32 v{ACC+e}, 0")
    for p in range(20):
        a.wait_vm(('cs', p))
        for d in range(4):
            a(f"v_dot2c_f32_bf16 v{ACC+2*d}, v{CD+4*p+d}, v{LO}")
            a(f"v_dot2c_f32_bf16 v{ACC+2*d+1}, v{CD+4*p+d}, v{HI}")
    a(f"v_lshrrev_b32 v{t0}, 4, v0")
    a(f"v_lshlrev_b32 v{t0}, 9, v{t0}")
    a(f"v_and_b32 v{t1}, 15, v0")
    a(f"v_lshl_add_u32 v{t0}, v{t1}, 5, v{t0}")
    a(f"ds_write_b128 v{t0}, {vr(ACC,4)}")
    a(f"ds_write_b128 v{t0}, {vr(ACC+4,4)} offset:16")
    a("s_waitcnt lgkmcnt(0)")
    a("s_barrier")
    a(f"v_and_b32 v{t0}, 127, v0")
    a(f"v_lshlrev_b32 v{t0}, 2, v{t0}")
    for g in range(32):
        a(f"ds_read_b32 v{CD+g}, v{t0} offset:{g*512}")
    a("s_waitcnt lgkmcnt(0)")
    for g in range(0, 32, 2): a(f"v_add_f32 v{CD+g}, v{CD+g}, v{CD+g+1}")
    for g in range(2, 32, 2): a(f"v_add_f32 v{CD}, v{CD}, v{CD+g}")
    a.wait_vm('b1')
    a(f"v_lshlrev_b32 v{t2}, 16, v{t2}")
    a(f"s_lshl_b32 s{T1}, s{S_RB}, 9")
    a(f"v_add_u32 v{t0}, s{T1}, v{t0}")
    a(f"v_mov_b32 v{t1}, 0x7ffffff0")
    a(f"v_mov_b32 v{LO}, 128")
    a(f"v_cmp_gt_u32 s[{T4}:{T4+1}], v{LO}, v0")
    a(f"v_cndmask_b32 v{t0}, v{t1}, v{t0}, s[{T4}:{T4+1}]")
    a(f"s_mov_b32 s{T0}, 0x7fff0000")
    a(f"s_cmp_lt_u32 s{S_RB}, 14")
    a(f"s_cselect_b32 s{T2}, {WS_CS}, s{T0}")
    a(f"s_cselect_b32 s{T3}, {WS_B1}, s{T0}")
    a(f"buffer_store_dword v{CD}, v{t0}, s[{SRD_WS}:{SRD_WS+3}], s{T2} offen sc1", tag='pst')
    a(f"buffer_store_dword v{t2}, v{t0}, s[{SRD_WS}:{SRD_WS+3}], s{T3} offen sc1", tag='pst')

S_FRB, S_FCJ = 73, 74
S_WM, S_WG = 75, 76

def final_coords(a):
    a(f"s_lshr_b32 s{T0}, s{S_X}, 1")
    a(f"s_lshl_b32 s{T0}, s{T0}, 3")
    a(f"s_and_b32 s{T1}, s{S_I}, 7")
    a(f"s_add_u32 s{S_FRB}, s{T0}, s{T1}")
    a(f"s_and_b32 s{T0}, s{S_X}, 1")
    a(f"s_lshl_b32 s{T0}, s{T0}, 2")
    a(f"s_lshr_b32 s{T1}, s{S_I}, 3")
    a(f"s_add_u32 s{S_FCJ}, s{T0}, s{T1}")
    a(f"s_mul_i32 s{S_WM}, s{S_W}, 5120")
    a(f"s_mul_i32 s{T0}, s{S_FCJ}, {WF_TILE}")
    a(f"s_add_u32 s{T0}, s{T0}, s{S_WM}")
    a(f"s_add_u32 s{S_WG}, s{T0}, {WS_WF}")

def dma_wf(a, g, vw):
    S_KW = 77
    a(f"s_add_u32 m0, s{S_WM}, {RING[g % 4]}")
    a(f"s_add_u32 s{S_KW}, s{S_WG}, {g*WSLOT}")
    if g == 9:
        a(f"s_cmp_ge_u32 s{S_W}, 2")
        a(f"s_cselect_b32 s{S_KW}, 0x7fff0000, s{S_KW}")
    for n in range(4):
        a(f"buffer_load_dwordx4 v{vw}, s[{SRD_WS}:{SRD_WS+3}], s{S_KW} offen offset:{n*1024} sc1 lds", tag=('W', g))
    a(f"s_add_u32 m0, m0, 4096")
    a(f"s_add_u32 s{S_KW}, s{S_KW}, 4096")
    a(f"buffer_load_dwordx4 v{vw}, s[{SRD_WS}:{SRD_WS+3}], s{S_KW} offen sc1 lds", tag=('W', g))

SL2 = 32768
def attn_coords(a):
    a(f"s_lshl_b32 s{T0}, s{S_X}, 1")
    a(f"s_and_b32 s{T1}, s{S_I}, 1")
    a(f"s_add_u32 s{S_AHP}, s{T0}, s{T1}")
    a(f"s_lshr_b32 s{S_ARB}, s{S_I}, 1")
    a(f"s_lshr_b32 s78, s{S_W}, 2")
    a(f"s_and_b32 s79, s{S_W}, 3")

def fq_poll_offsets(a, vo, vt):
    a(f"v_lshrrev_b32 v{vo}, 4, v1")
    a(f"s_sub_u32 s{T0}, s{S_ARB}, 2")
    a(f"v_add_u32 v{vo}, s{T0}, v{vo}")
    a(f"v_and_b32 v{vt}, 15, v1")
    a(f"v_cmp_le_i32 s[{T4}:{T4+1}], 0, v{vo}")
    a(f"v_cmp_gt_u32 s[{T2}:{T2+1}], 15, v{vt}")
    a(f"s_and_b64 s[{T4}:{T4+1}], s[{T4}:{T4+1}], s[{T2}:{T2+1}]")
    a(f"s_mov_b32 s{T2}, -1")
    a(f"s_mov_b32 s{T2+1}, 0xffff")
    a(f"s_and_b64 s[{T4}:{T4+1}], s[{T4}:{T4+1}], s[{T2}:{T2+1}]")
    a(f"v_lshlrev_b32 v{vo}, 7, v{vo}")
    a(f"v_lshl_add_u32 v{vo}, v{vt}, 2, v{vo}")
    a(f"s_lshl_b32 s{T0}, s{S_ARB}, 7")
    a(f"v_mov_b32 v{vt}, s{T0}")
    a(f"v_cndmask_b32 v{vo}, v{vt}, v{vo}, s[{T4}:{T4+1}]")
    a(f"v_add_u32 v{vo}, {WS_FLAG + FQ}, v{vo}")

def attn_q_loads(a, t0, t1, t2, t3, AQ0=20, AQ1=24):
    a(f"s_lshl_b32 s{T0}, s{S_ARB}, 2")
    a(f"s_add_u32 s{S_QB}, s{T0}, s79")
    a(f"v_and_b32 v{t0}, 31, v1")
    a(f"v_lshrrev_b32 v{t1}, 5, v1")
    a(f"s_lshl_b32 s{T1}, s{S_QB}, 8")
    a(f"v_lshlrev_b32 v{t2}, 3, v{t0}")
    a(f"v_add_u32 v{t2}, s{T1}, v{t2}")
    a(f"v_lshl_add_u32 v{t3}, v{t1}, 15, v{t2}")
    a(f"s_lshl_b32 s{T2}, s{S_AHP}, 1")
    a(f"s_add_u32 s{T2}, s{T2}, s78")
    a(f"s_mul_i32 s{T2}, s{T2}, {5*16384}")
    a(f"s_add_u32 s{T1}, s{T2}, {WS_QKV}")
    a(f"buffer_load_dwordx2 {vr(AQ0,2)}, v{t3}, s[{SRD_WS}:{SRD_WS+3}], s{T1} offen sc1", tag='q')
    a(f"s_add_u32 s{T1}, s{T1}, 16384")
    a(f"buffer_load_dwordx2 {vr(AQ0+2,2)}, v{t3}, s[{SRD_WS}:{SRD_WS+3}], s{T1} offen sc1", tag='q')
    a(f"s_add_u32 s{T1}, s{T1}, {3*16384}")
    a(f"buffer_load_dwordx2 {vr(AQ1,2)}, v{t2}, s[{SRD_WS}:{SRD_WS+3}], s{T1} offen sc1", tag='q')

def attn_stage_kv(a, t0, t1, t2, vd):
    a(f"s_sub_u32 s{T0}, s{S_ARB}, 2")
    a(f"s_lshl_b32 s{T0}, s{T0}, 7")
    a(f"s_mul_i32 s{T1}, s{S_W}, 96")
    a(f"s_add_u32 s{T0}, s{T0}, s{T1}")
    a(f"v_lshlrev_b32 v{t0}, 1, v1")
    a(f"v_add_u32 v{t0}, s{T0}, v{t0}")
    a(f"v_lshlrev_b32 v{t1}, 3, v{t0}")
    a(f"v_mov_b32 v{t2}, 0x7ffffff0")
    a(f"v_cmp_le_i32 s[{T4}:{T4+1}], 0, v{t0}")
    a(f"v_cndmask_b32 v{vd}, v{t2}, v{t1}, s[{T4}:{T4+1}]")
    a(f"s_mul_i32 s{T2}, s{S_AHP}, {10*16384}")
    a(f"s_add_u32 s{T2}, s{T2}, {WS_QKV + 160*16384}")
    a(f"s_mul_i32 s{T3}, s{S_W}, 768")
    a("s_mov_b32 exec_hi, 0xffff")
    for ty in range(2):
        for p in range(10):
            a(f"s_add_u32 m0, s{T3}, {(LK if ty == 0 else LV) + p*PST}")
            a(f"s_add_u32 s{T6}, s{T2}, {(ty*160 + p)*16384}")
            a(f"buffer_load_dwordx4 v{vd}, s[{SRD_WS}:{SRD_WS+3}], s{T6} offen sc1 lds", tag=('kv', ty))
    a("s_mov_b32 exec_hi, -1")

def stage1g(a, lbl):
    SRD_E, S_M = 64, 68
    VXD, VWD, VW2 = 2, 6, 10
    VXF, VWF = 14, 22
    t0, t1, t2, t3 = 26, 27, 28, 29
    VP, VPV = 30, 31
    FB = [32, 48]
    ACC = 64
    CSR, B1R, ST, TD = 128, 160, 192, 196
    S_FQ, S_FH, S_ACT, S_HB = 69, 70, 71, 72
    attn_coords(a)
    final_coords(a)
    a(f"s_and_b32 s{S_LW}, s{S_W}, 3")
    a(f"s_cmp_ge_u32 s{S_CJ}, 15")
    a(f"s_cbranch_scc1 {lbl}_idle")
    srd(a, SRD_A, P_AX, SIZES['AX'])
    srd(a, SRD_B, P_WQKV, SIZES['WQKV'])
    srd(a, SRD_E, P_W1, SIZES['W1'])
    a(f"s_lshl_b32 s{T0}, s{S_RB}, 7")
    a(f"s_lshr_b32 s{T1}, s{S_LW}, 1")
    a(f"s_lshl_b32 s{T1}, s{T1}, 6")
    a(f"s_add_u32 s{T0}, s{T0}, s{T1}")
    a(f"s_and_b32 s{T1}, s{S_LW}, 1")
    a(f"s_add_u32 s{T0}, s{T0}, s{T1}")
    a(f"v_lshrrev_b32 v{t0}, 3, v1")
    a(f"v_lshlrev_b32 v{t0}, 1, v{t0}")
    a(f"v_add_u32 v{t0}, s{T0}, v{t0}")
    a(f"s_movk_i32 s{T2}, 1280")
    a(f"v_mul_lo_u32 v{t0}, v{t0}, s{T2}")
    a(f"v_lshrrev_b32 v{t1}, 4, v1")
    a(f"v_and_b32 v{t2}, 7, v1")
    a(f"v_xor_b32 v{t2}, v{t2}, v{t1}")
    a(f"v_xor_b32 v{t3}, 4, v{t2}")
    for i in range(4):
        a(f"v_lshl_add_u32 v{VXD+i}, v{t2 if i % 2 == 0 else t3}, 4, v{t0}")
        if i: a(f"v_add_u32 v{VXD+i}, {i*(16*1280-1024)}, v{VXD+i}")
    a(f"s_lshl_b32 s{T0}, s{S_LW}, 4")
    a(f"v_lshrrev_b32 v{t0}, 4, v1")
    a(f"v_add_u32 v{t1}, s{T0}, v{t0}")
    a(f"v_bfe_u32 v{t2}, v1, 2, 2")
    a(f"v_xor_b32 v{t2}, v{t2}, v{t0}")
    a(f"v_and_b32 v{t3}, 3, v1")
    a(f"v_lshl_add_u32 v{t2}, v{t2}, 2, v{t3}")
    a(f"v_lshlrev_b32 v{t2}, 4, v{t2}")
    a(f"s_lshl_b32 s{T0}, s{S_CJ}, 8")
    a(f"v_add_u32 v{t2}, s{T0}, v{t2}")
    for vd, pitch in ((VWD, 3840), (VW2, 3456)):
        a(f"s_movk_i32 s{T2}, {pitch}")
        a(f"v_mul_lo_u32 v{t3}, v{t1}, s{T2}")
        a(f"v_add_u32 v{vd}, v{t3}, v{t2}")
        for i in range(1, 4): a(f"v_add_u32 v{vd+i}, {i*(4*pitch-1024)}, v{vd}")
    a(f"s_lshl_b32 s{S_M}, s{S_LW}, 12")
    if OPT.get('rot', 1):
        a(f"s_lshr_b32 s{T0}, s{S_I}, 3")
        a(f"s_mul_i32 s{T0}, s{T0}, 10")
        a(f"s_and_b32 s{T1}, s{S_I}, 7")
        a(f"s_mul_i32 s{T1}, s{T1}, 5")
        a(f"s_add_u32 s{T0}, s{T0}, s{T1}")
        a(f"s_lshr_b32 s{T0}, s{T0}, 2")
        a(f"s_sub_u32 s{T1}, s{T0}, 10")
        a(f"s_cmp_ge_u32 s{T0}, 10")
        a(f"s_cselect_b32 s{T0}, s{T1}, s{T0}")
    else:
        a(f"s_mov_b32 s{T0}, 0")
    a(f"s_add_u32 s{T1}, s{T0}, 3")
    a(f"s_sub_u32 s{T2}, s{T1}, 10")
    a(f"s_cmp_ge_u32 s{T1}, 10")
    a(f"s_cselect_b32 s{T1}, s{T2}, s{T1}")
    a(f"s_cmp_ge_u32 s{S_W}, 4")
    a(f"s_cselect_b32 s{T0}, s{T0}, s{T1}")
    a(f"s_lshl_b32 s{S_KX}, s{T0}, 7")
    a(f"s_mul_i32 s{S_KQ}, s{T0}, {64*3840}")
    a(f"s_mul_i32 s{S_K1}, s{T0}, {64*3456}")
    def adv(sreg, step, wrap):
        if OPT.get('hot'): return
        a(f"s_add_u32 s{sreg}, s{sreg}, {step}")
        a(f"s_cmp_eq_u32 s{sreg}, {wrap}")
        a(f"s_cselect_b32 s{sreg}, 0, s{sreg}")
    first = {'x': True, 'q': True, '1': True}
    slot = lambda tau: (tau + 3) % 4
    def dma_list(tau):
        out = []
        if OPT.get('g_nodma') and tau >= 4: return out
        def mk(kind, i):
            def f():
                if kind == 'x': vd, sr, sk, off, step, wrap = VXD, SRD_A, S_KX, 0, 128, 1280
                elif kind == 'q': vd, sr, sk, off, step, wrap = VWD, SRD_B, S_KQ, 16384, 64*3840, 640*3840
                else: vd, sr, sk, off, step, wrap = VW2, SRD_E, S_K1, 16384, 64*3456, 640*3456
                if i == 0:
                    a(f"s_add_u32 m0, s{S_M}, {slot(tau)*SL2 + off}")
                    if not first[kind]: adv(sk, step, wrap)
                    first[kind] = False
                a(f"buffer_load_dwordx4 v{vd+i}, s[{sr}:{sr+3}], s{sk} offen offset:{i*1024} lds", tag=('B', tau))
            return f
        for i in range(4): out.append(mk('x', i))
        for i in range(4): out.append(mk('q' if tau < 10 else '1', i))
        return out
    def dma_block(tau):
        for f in dma_list(tau): f()
    def frag_bases():
        a(f"s_and_b32 s{T0}, s{S_LW}, 1")
        a(f"s_lshl_b32 s{T0}, s{T0}, 13")
        a(f"v_and_b32 v{t0}, 31, v1")
        a(f"v_lshrrev_b32 v{t1}, 5, v1")
        a(f"v_bfe_u32 v{t2}, v1, 1, 3")
        a(f"v_lshlrev_b32 v{t0}, 7, v{t0}")
        a(f"v_add_u32 v{t0}, s{T0}, v{t0}")
        for s_ in range(4):
            a(f"v_or_b32 v{t3}, {2*s_}, v{t1}")
            a(f"v_xor_b32 v{t3}, v{t3}, v{t2}")
            a(f"v_lshl_add_u32 v{VXF+s_}, v{t3}, 4, v{t0}")
            a(f"v_add_u32 v{VXF+4+s_}, {2*SL2}, v{VXF+s_}")
        a(f"v_bfe_u32 v{t0}, v1, 2, 2")
        a(f"v_lshl_add_u32 v{t1}, v{t1}, 3, v{t0}")
        a(f"v_lshlrev_b32 v{t1}, 8, v{t1}")
        a(f"v_bfe_u32 v{t2}, v1, 4, 1")
        a(f"v_lshl_add_u32 v{t1}, v{t2}, 5, v{t1}")
        a(f"v_and_b32 v{t2}, 3, v1")
        a(f"v_lshl_add_u32 v{t1}, v{t2}, 3, v{t1}")
        a(f"s_and_b32 s{T0}, s{S_LW}, 2")
        for ft in range(2):
            a(f"s_or_b32 s{T1}, s{T0}, {ft}")
            a(f"v_xor_b32 v{t2}, s{T1}, v{t0}")
            a(f"v_lshl_add_u32 v{VWF+ft}, v{t2}, 6, v{t1}")
            a(f"v_add_u32 v{VWF+2+ft}, {2*SL2}, v{VWF+ft}")
    def rd_b(st, tau, u, tt):
        sl = slot(tau)
        a(f"ds_read_b128 {vr(FB[st]+4*tt,4)}, v{VXF + u + (4 if sl >= 2 else 0)} offset:{(SL2 if sl & 1 else 0) + tt*4096}", tag=('f', tau, u, 'b', tt))
    def rd_a(st, tau, u, F, rd):
        sl = slot(tau)
        a(f"ds_read_b64_tr_b16 {vr(FB[st]+8+4*F+2*rd,2)}, v{VWF + F + (2 if sl >= 2 else 0)} offset:{(SL2 if sl & 1 else 0) + 16384 + u*4096 + rd*1024}", tag=('f', tau, u, 'a', F))
    def reads(st, tau, u):
        return [lambda: rd_b(st, tau, u, 0), lambda: rd_a(st, tau, u, 0, 0), lambda: rd_a(st, tau, u, 0, 1),
                lambda: rd_b(st, tau, u, 1), lambda: rd_a(st, tau, u, 1, 0), lambda: rd_a(st, tau, u, 1, 1)]
    def compute(t0_, hook_bar, hook_step):
        for b in range(10):
            tau = t0_ + b
            for u in range(4):
                s_ = 4*b + u; st = s_ & 1
                last = (b == 9 and u == 3)
                side = []
                if u == 3:
                    a("s_waitcnt lgkmcnt(0)")
                    hook_bar(tau)
                    a("s_barrier")
                    side = hook_step(tau, 'bar') or []
                rs = [] if last else reads(st ^ 1, *((tau, u + 1) if u < 3 else (tau + 1, 0)))
                plan = {-1: rs[0:2], 0: rs[2:5], 1: rs[5:6]}
                for r in plan[-1]: r()
                for k, (tt, F) in enumerate([(0, 0), (1, 0), (0, 1), (1, 1)]):
                    a.wait_lg([('f', tau, u, 'b', tt), ('f', tau, u, 'a', F)])
                    d = vr(ACC+16*(2*tt+F), 16)
                    a(f"v_mfma_f32_32x32x16_bf16 {d}, {vr(FB[st]+8+4*F,4)}, {vr(FB[st]+4*tt,4)}, {'0' if s_ == 0 else d}")
                    for r in plan.get(k, []): r()
                    for _ in range(2):
                        if side: side.pop(0)()
                for f in side: f()
                hook_step(tau, u)
    a(f"s_lshl_b32 s{T0}, s{S_RB}, 7")
    a(f"s_lshl_b32 s{T1}, s{S_CJ}, 2")
    a(f"s_add_u32 s{T0}, s{T0}, s{T1}")
    a(f"s_add_u32 s{S_FQ}, s{T0}, {WS_FLAG + FQ}")
    a(f"s_add_u32 s{S_FH}, s{T0}, {WS_FLAG + FH}")
    a(f"s_cmp_lt_u32 s{S_CJ}, 14")
    a(f"s_cselect_b32 s{S_FHO}, s{S_FH}, 0x7fff0000")
    a(f"s_cmp_ge_u32 s{S_W}, 4")
    a(f"s_cbranch_scc1 {lbl}_g1")
    frag_bases()
    mark(a)
    a("s_barrier")
    for r in reads(0, 0, 0): r()
    def g0_step(tau, u):
        if OPT.get('fine3') and u == 'bar' and tau in (0, 3, 6): mark(a)
        if u == 'bar' and tau == 9: return dma_list(13)
        if u == 1 and tau == 2: nonce_issue(a, 252)
        if u == 1 and tau == 4: nonce_check(a, 252)
        if u == 'bar' and tau == 8:
            pre_flags(a, t3, stats=False)
        return None
    compute(0, lambda tau: None, g0_step)
    mark(a)
    a(f"v_lshrrev_b32 v{t0}, 5, v1")
    a(f"s_lshr_b32 s{T0}, s{S_LW}, 1")
    a(f"s_lshl_b32 s{T0}, s{T0}, 4")
    a(f"v_add_u32 v{t0}, s{T0}, v{t0}")
    a(f"v_lshlrev_b32 v{t0}, 14, v{t0}")
    a(f"s_and_b32 s{T0}, s{S_LW}, 1")
    a(f"s_lshl_b32 s{T0}, s{T0}, 9")
    a(f"v_and_b32 v{t1}, 31, v1")
    a(f"v_lshl_add_u32 v{t0}, v{t1}, 4, v{t0}")
    a(f"v_add_u32 v{t0}, s{T0}, v{t0}")
    a(f"s_lshl_b32 s{T0}, s{S_CJ}, 19")
    a(f"s_lshl_b32 s{T1}, s{S_RB}, 10")
    a(f"s_add_u32 s{T0}, s{T0}, s{T1}")
    a(f"s_add_u32 s{T0}, s{T0}, {WS_QKV}")
    k = 0
    for ft in range(2):
        for j in range(4):
            a(f"s_add_u32 s{T1}, s{T0}, {(8*ft + 2*j)*16384}")
            d = 32 + 4*(k % 8); k += 1
            for tt in range(2):
                base = ACC + 16*(2*tt+ft) + 4*j
                a(f"v_cvt_pk_bf16_f32 v{d+2*tt}, v{base}, v{base+1}")
                a(f"v_cvt_pk_bf16_f32 v{d+2*tt+1}, v{base+2}, v{base+3}")
            a(f"buffer_store_dwordx4 {vr(d,4)}, v{t0}, s[{SRD_WS}:{SRD_WS+3}], s{T1} offen sc1", tag='qst')
    fq_poll_offsets(a, VP, t3)
    TQP = OPT.get('tqp', 13)
    for tau in range(10, 20):
        if 13 <= tau + 1 <= 19: a.wait_vm(('B', tau + 1))
        if tau == TQP: a.wait_vm('qst')
        a("s_barrier")
        if OPT.get('fine3') and tau in (11, 13, 16): mark(a)
        if tau == TQP: flag_store(a, S_FQ, t3)
        if tau + 4 <= 19: dma_block(tau + 4)
        if tau == 17: poll_issue(a, VP, VPV, 'pq')
        if tau == 18:
            poll_check(a, VP, VPV, 'pq')
            attn_q_loads(a, t0, t1, t2, t3)
            attn_stage_kv(a, t0, t1, t2, 2)
    mark(a)
    a.wait_vm(('kv', 0))
    a(f"s_branch {lbl}_join")
    a.label(f"{lbl}_g1")
    a.reset_counters()
    first.update({'x': True, 'q': True, '1': True})
    for tau in range(4): dma_block(tau)
    pre_address(a, lbl + "_pa", rows=False)
    frag_bases()
    a.wait_vm(('B', 0))
    a("s_barrier")
    for tau in range(0, 9):
        a.wait_vm(('B', tau + 1))
        if tau == 8: a.wait_vm('pst')
        a("s_barrier")
        dma_block(tau + 4)
        if tau == 0: pre_issue(a, rows=False)
        if tau == 4:
            a.wait_vm('pl')
            repack_finish(a)
        if tau == 7: nonce_issue(a, 252)
    nonce_check(a, 252)
    a(f"s_lshl_b32 s{T0}, s{S_RB}, 7")
    a(f"s_add_u32 s{T0}, s{T0}, {WS_FLAG + FS}")
    a(f"v_mov_b32 v{t0}, s{T0}")
    a(f"s_min_u32 s{T1}, s{S_CJ}, 13")
    a(f"s_lshl_b32 s{T1}, s{T1}, 2")
    a(f"s_add_u32 s{T1}, s{T1}, {WS_FLAG + FC}")
    a(f"v_mov_b32 v{t1}, s{T1}")
    a(f"v_cmp_gt_u32 s[{T4}:{T4+1}], 32, v1")
    a(f"v_cndmask_b32 v{VP}, v{t1}, v{t0}, s[{T4}:{T4+1}]")
    a.wait_vm(('B', 10))
    a("s_barrier")
    for r in reads(0, 10, 0): r()
    def g1_bar(tau):
        if tau in (10, 11): a.wait_vm(('B', tau + 1))
    def g1_step(tau, u):
        if tau == 14 and u == 0: poll_issue(a, VP, VPV, 'p1')
        if tau == 17 and u == 0:
            L = uid("nf")
            a(f"s_cmp_ge_u32 s{S_CJ}, 14")
            a(f"s_cbranch_scc1 {L}")
            vm0 = list(a.vm)
            poll_check(a, VP, VPV, 'p1')
            a.label(L)
            a.vm = vm0
            a(f"s_lshl_b32 s{T0}, s{S_RB}, 10")
            a(f"s_and_b32 s{T1}, s{S_LW}, 1")
            a(f"s_lshl_b32 s{T1}, s{T1}, 9")
            a(f"s_add_u32 s{T0}, s{T0}, s{T1}")
            a(f"s_add_u32 s{T0}, s{T0}, {WS_ST}")
            a(f"v_and_b32 v{t0}, 31, v1")
            a(f"v_lshlrev_b32 v{t0}, 4, v{t0}")
            a(f"buffer_load_dwordx4 {vr(ST,4)}, v{t0}, s[{SRD_WS}:{SRD_WS+3}], s{T0} offen sc1", tag='tab')
            a(f"v_lshrrev_b32 v{t0}, 5, v1")
            a(f"v_lshlrev_b32 v{t0}, 4, v{t0}")
            a(f"s_lshl_b32 s{T0}, s{S_CJ}, 9")
            a(f"s_lshr_b32 s{T1}, s{S_LW}, 1")
            a(f"s_lshl_b32 s{T1}, s{T1}, 8")
            a(f"s_add_u32 s{T0}, s{T0}, s{T1}")
            a(f"s_add_u32 s{T1}, s{T0}, {WS_B1}")
            a(f"s_add_u32 s{T0}, s{T0}, {WS_CS}")
            for ft in range(2):
                for j in range(4):
                    a(f"buffer_load_dwordx4 {vr(CSR+16*ft+4*j,4)}, v{t0}, s[{SRD_WS}:{SRD_WS+3}], s{T0} offen offset:{128*ft + 32*j} sc1", tag='tab')
                    a(f"buffer_load_dwordx4 {vr(B1R+16*ft+4*j,4)}, v{t0}, s[{SRD_WS}:{SRD_WS+3}], s{T1} offen offset:{128*ft + 32*j} sc1", tag='tab')
        if tau == 19 and u == 3:
            attn_q_loads(a, t0, t1, t2, t3, 228, 232)
        return None
    compute(10, g1_bar, g1_step)
    C0, C1, VY, ONE = 2, 3, 4, 6
    TU, TE = 32, 40
    a(f"v_mov_b32 v{ONE}, 1.0")
    a(f"v_mov_b32 v{C0}, 0xc0135761")
    a(f"v_mov_b32 v{C1}, 0xbdd2d3e8")
    a(f"v_lshlrev_b32 v{VY}, 4, v1")
    a(f"s_lshl_b32 s{T0}, s{S_CJ}, 3")
    a(f"s_lshr_b32 s{T1}, s{S_LW}, 1")
    a(f"s_lshl_b32 s{T1}, s{T1}, 2")
    a(f"s_add_u32 s{S_ACT}, s{T0}, s{T1}")
    a(f"s_lshl_b32 s{T0}, s{S_RB}, 2")
    a(f"s_and_b32 s{T1}, s{S_LW}, 1")
    a(f"s_lshl_b32 s{T1}, s{T1}, 1")
    a(f"s_add_u32 s{T0}, s{T0}, s{T1}")
    a(f"s_mul_i32 s{T0}, s{T0}, 108")
    a(f"s_add_u32 s{T0}, s{T0}, s{S_ACT}")
    a(f"s_lshl_b32 s{T0}, s{T0}, 10")
    a(f"s_add_u32 s{S_HB}, s{T0}, {WS_H}")
    a(f"s_cmp_lt_u32 s{S_ACT}, 108")
    a(f"s_cselect_b32 s{S_HB}, s{S_HB}, 0x7fff0000")
    a.wait_vm('tab')
    P = lambda b, e: vr(b + 2*e, 2)
    for tt in range(2):
        nmp = vr(ST + 2*tt, 2)
        if tt == 1: a(f"s_add_u32 s{S_HB}, s{S_HB}, {108*1024}")
        for ft in range(2):
            for jj in range(2):
                x = ACC + 16*(2*tt+ft) + 8*jj
                for e in range(4):
                    j, i = 2*jj + (e >> 1), 2*(e & 1)
                    a(f"v_pk_fma_f32 {P(TU,e)}, {nmp}, {vr(CSR+16*ft+4*j+i,2)}, {vr(B1R+16*ft+4*j+i,2)} op_sel_hi:[0,1,1]")
                for e in range(4): a(f"v_pk_fma_f32 {P(x,e)}, {nmp}, {P(x,e)}, {P(TU,e)} op_sel:[1,0,0] op_sel_hi:[1,1,1]")
                for e in range(4): a(f"v_pk_mul_f32 {P(TU,e)}, {P(x,e)}, {P(x,e)}")
                for e in range(4): a(f"v_pk_fma_f32 {P(TU,e)}, {P(TU,e)}, {vr(C0,2)}, {vr(C0,2)} op_sel:[0,1,0] op_sel_hi:[1,1,0]")
                for e in range(4): a(f"v_pk_mul_f32 {P(TU,e)}, {P(TU,e)}, {P(x,e)}")
                for e in range(8): a(f"v_exp_f32 v{TE+e}, v{TU+e}")
                for e in range(4): a(f"v_pk_add_f32 {P(TE,e)}, {P(TE,e)}, {vr(ONE,2)} op_sel_hi:[1,0]")
                for e in range(8): a(f"v_rcp_f32 v{TE+e}, v{TE+e}")
                for e in range(4): a(f"v_pk_mul_f32 {P(TE,e)}, {P(TE,e)}, {P(x,e)}")
                d = TD + 4*(4*tt + 2*ft + jj)
                for e in range(4): a(f"v_cvt_pk_bf16_f32 v{d+e}, v{TE+2*e}, v{TE+2*e+1}")
                a(f"buffer_store_dwordx4 {vr(d,4)}, v{VY}, s[{SRD_WS}:{SRD_WS+3}], s{S_HB} offen offset:{(2*ft+jj)*1024} sc1", tag='hst')
    a.wait_vm('q')
    for r in range(6): a(f"v_mov_b32 v{20+r}, v{228+r}")
    a(f"s_branch {lbl}_join")
    a.label(f"{lbl}_idle")
    a.reset_counters()
    srd(a, SRD_A, P_AX, SIZES['AX'])
    rowstats_issue(a)
    colsum_issue(a)
    nonce_issue(a, 252)
    rowstats_compute(a)
    colsum_compute(a, lbl + "_cs")
    nonce_check(a, 252)
    a("s_waitcnt vmcnt(0)")
    a("s_barrier")
    a(f"s_lshl_b32 s{T0}, s{S_RB}, 7")
    a(f"s_add_u32 s{T0}, s{T0}, {WS_FLAG + FS}")
    flag_store(a, T0, t3)
    a(f"s_lshl_b32 s{T0}, s{S_RB}, 2")
    a(f"s_add_u32 s{T0}, s{T0}, {WS_FLAG + FC}")
    flag_store(a, T0, t3)
    pre_address(a, lbl + "_pai", rows=False)
    pre_issue(a, rows=False)
    a.wait_vm('pl')
    repack_finish(a)
    a("s_waitcnt vmcnt(0)")
    a("s_barrier")
    pre_flags(a, t3, stats=False)
    a(f"s_mov_b32 s{S_FHO}, 0x7fff0000")
    fq_poll_offsets(a, VP, t3)
    a(f"s_mov_b64 s[{T4}:{T4+1}], -1")
    wait_flags(a, VP, VPV, T4)
    attn_q_loads(a, t0, t1, t2, t3)
    Li = uid("ik")
    a(f"s_cmp_ge_u32 s{S_W}, 4")
    a(f"s_cbranch_scc1 {Li}")
    attn_stage_kv(a, t0, t1, t2, 2)
    a.label(Li)
    a("s_waitcnt vmcnt(0)")
    a.label(f"{lbl}_join")
    a.reset_counters()

def stage_attn(a, lbl):
    HP, S_HH, S_QW = S_AHP, 78, 79
    VD, VK, VV, VKX, VW = 2, 3, 4, 5, 10
    t0, t1, t2, t3, t4 = 6, 7, 8, 9, 11
    MK = 12
    Q0, Q1 = 20, 24
    KF = [28, 36]
    VF = [44, 48, 52, 56]
    PF = [60, 64, 68, 72]
    OA = 76
    CS, NM, MX = 96, 97, 98
    S = 104
    VPQ, VPH = 92, 94
    a(f"v_and_b32 v{t0}, 31, v1")
    a(f"v_lshlrev_b32 v{VPH}, 2, v{t0}")
    a(f"s_lshl_b32 s{T1}, s{S_FCJ}, 7")
    a(f"s_add_u32 s{T1}, s{T1}, {WS_FLAG + FW}")
    a(f"v_add_u32 v{VPQ}, s{T1}, v{VPH}")
    a(f"v_and_b32 v{VPH}, 15, v1")
    a(f"v_min_u32 v{VPH}, 13, v{VPH}")
    a(f"v_lshlrev_b32 v{VPH}, 2, v{VPH}")
    a(f"s_lshr_b32 s{T1}, s{S_FRB}, 1")
    a(f"s_lshl_b32 s{T1}, s{T1}, 7")
    a(f"s_add_u32 s{T1}, s{T1}, {WS_FLAG + FH}")
    a(f"v_add_u32 v{VPH}, s{T1}, v{VPH}")
    poll_issue(a, VPQ, VPQ+1, 'pw')
    a(f"v_lshrrev_b32 v{t1}, 5, v1")
    for r in range(4): a(f"v_mov_b32 v{KF[0]+r}, 0x3f803f80")
    a(f"v_lshlrev_b32 v{t4}, 4, v0")
    a(f"v_add_u32 v{t4}, {LONES}, v{t4}")
    a(f"v_mov_b32 v{KF[1]}, 208")
    a(f"v_cmp_gt_u32 vcc, v{KF[1]}, v0")
    L = uid("on")
    a(f"s_and_saveexec_b64 s[{T4}:{T4+1}], vcc")
    a(f"s_cbranch_execz {L}")
    a(f"ds_write_b128 v{t4}, {vr(KF[0],4)}")
    a.label(L)
    a(f"s_mov_b64 exec, s[{T4}:{T4+1}]")
    SM = 98
    a(f"v_lshlrev_b32 v{t2}, 2, v{t1}")
    a(f"v_sub_u32 v{t2}, v{t0}, v{t2}")
    VM = 248
    a(f"v_mov_b32 v{VM}, v{t2}")
    a(f"v_mov_b32 v{t3}, 0xffff")
    a(f"v_mov_b32 v{t4}, 0xffff0000")
    for q in range(8):
        r0, r1 = 2*q, 2*q + 1
        a(f"v_cmp_le_i32 s[98:99], {8*(r0 >> 2) + (r0 & 3)}, v{VM}")
        a(f"v_cmp_le_i32 s[100:101], {8*(r1 >> 2) + (r1 & 3)}, v{VM}")
        a(f"v_cndmask_b32 v{MK+q}, 0, v{t3}, s[98:99]")
        a(f"v_cndmask_b32 v{KF[1]}, 0, v{t4}, s[100:101]")
        a(f"v_or_b32 v{MK+q}, v{MK+q}, v{KF[1]}")
    a(f"s_lshl_b32 s{T0}, s{S_QW}, 8")
    a(f"s_mul_i32 s{T3}, s{S_HH}, {5*PST}")
    a(f"s_add_u32 s{T2}, s{T0}, s{T3}")
    a(f"s_add_u32 s{T2}, s{T2}, {LK}")
    a(f"v_lshlrev_b32 v{t2}, 3, v{t0}")
    a(f"v_add_u32 v{t2}, s{T2}, v{t2}")
    a(f"s_movk_i32 s{T1}, {2*PST}")
    a(f"v_mul_lo_u32 v{t3}, v{t1}, s{T1}")
    a(f"v_add_u32 v{VK}, v{t2}, v{t3}")
    a(f"v_add_u32 v{VKX}, {4*PST}, v{t2}")
    a(f"v_bfe_u32 v{t2}, v1, 4, 1")
    a(f"v_and_b32 v{t3}, 3, v1")
    a(f"v_lshl_add_u32 v{t2}, v{t2}, 2, v{t3}")
    a(f"v_bfe_u32 v{t3}, v1, 2, 2")
    a(f"v_lshl_add_u32 v{t3}, v{t1}, 2, v{t3}")
    a(f"v_lshlrev_b32 v{t3}, 3, v{t3}")
    a(f"v_add_u32 v{t3}, s{T0}, v{t3}")
    a(f"s_movk_i32 s{T1}, {PST}")
    a(f"v_mul_lo_u32 v{t4}, v{t2}, s{T1}")
    a(f"v_cmp_gt_u32 s[{T4}:{T4+1}], 5, v{t2}")
    a(f"s_add_u32 s{T3}, s{T3}, {LV}")
    a(f"s_sub_u32 s{T2}, s{T3}, {LONES}")
    a(f"v_lshlrev_b32 v{KF[0]}, 5, v{t2}")
    a(f"v_add_u32 v{KF[0]}, s{T2}, v{KF[0]}")
    a(f"v_and_b32 v{KF[0]}, 255, v{KF[0]}")
    a(f"v_add_u32 v{KF[0]}, {LONES}, v{KF[0]}")
    a(f"v_add_u32 v{KF[0]+1}, s{T3}, v{t4}")
    a(f"v_cndmask_b32 v{KF[0]}, v{KF[0]}, v{KF[0]+1}, s[{T4}:{T4+1}]")
    a(f"v_add_u32 v{VV}, v{KF[0]}, v{t3}")
    a(f"v_mov_b32 v{CS}, 0x3ea52b5c")
    for st in range(2):
        a(f"v_mov_b32 v{KF[st]+6}, 0"); a(f"v_mov_b32 v{KF[st]+7}, 0")
    a(f"v_mov_b32 v{Q1+2}, 0"); a(f"v_mov_b32 v{Q1+3}, 0")
    a(f"v_lshlrev_b32 v{VW}, 4, v1")
    a(f"v_cmp_gt_u32 s[{T4}:{T4+1}], 32, v1")
    for q in (Q1, Q1+1):
        a(f"v_cndmask_b32 v{q}, 0, v{q}, s[{T4}:{T4+1}]")
    a("s_waitcnt lgkmcnt(0)")
    a("s_barrier")
    mark(a)
    NEG = 0xf149f2ca
    def rd_k(tl):
        st = KF[tl % 2]
        a(f"ds_read_b64 {vr(st,2)}, v{VK} offset:{tl*256}", tag=('k', tl))
        a(f"ds_read_b64 {vr(st+2,2)}, v{VK} offset:{PST + tl*256}", tag=('k', tl))
        a(f"ds_read_b64 {vr(st+4,2)}, v{VKX} offset:{tl*256}", tag=('k', tl))
    rd_k(0)
    for tl in range(9):
        if tl + 1 < 9: rd_k(tl + 1)
        a.wait_lg(('k', tl))
        st = KF[tl % 2]; d = vr(S+16*tl, 16)
        a(f"v_mfma_f32_32x32x16_bf16 {d}, {vr(st,4)}, {vr(Q0,4)}, 0")
        a(f"v_mfma_f32_32x32x16_bf16 {d}, {vr(st+4,4)}, {vr(Q1,4)}, {d}")
    a(f"s_cmp_ge_u32 s{S_QB}, 8")
    a(f"s_cbranch_scc1 {lbl}_full")
    for tl in range(8):
        a(f"s_cmp_ge_u32 s{S_QB}, {8-tl}")
        a(f"s_cbranch_scc1 {lbl}_full")
        a("s_nop 7"); a("s_nop 7")
        for r in range(16): a(f"v_mov_b32 v{S+16*tl+r}, {hex(NEG)}")
    a.label(f"{lbl}_full")
    a("s_nop 7"); a("s_nop 3")
    for r in range(0, 16, 2):
        a(f"v_cmp_le_i32 s[98:99], {8*(r >> 2) + (r & 3)}, v{VM}")
        a(f"v_cmp_le_i32 s[100:101], {8*((r+1) >> 2) + ((r+1) & 3)}, v{VM}")
        a(f"v_cndmask_b32 v{S+r}, v{S+r}, v{S+128+r}, s[98:99]")
        a(f"v_cndmask_b32 v{S+r+1}, v{S+r+1}, v{S+128+r+1}, s[100:101]")
    for c in range(4):
        a(f"v_max3_f32 v{MX+c}, v{S+32*c}, v{S+32*c+1}, v{S+32*c+2}")
    for k in range(3, 31, 2):
        for c in range(4):
            a(f"v_max3_f32 v{MX+c}, v{MX+c}, v{S+32*c+k}, v{S+32*c+k+1}")
    for c in range(4):
        a(f"v_max_f32 v{MX+c}, v{MX+c}, v{S+32*c+31}")
    a(f"v_max3_f32 v{MX}, v{MX}, v{MX+1}, v{MX+2}")
    a(f"v_max_f32 v{MX}, v{MX}, v{MX+3}")
    a(f"v_mov_b32 v{MX+1}, v{MX}")
    a(f"v_permlane32_swap_b32 v{MX}, v{MX+1}")
    a(f"v_max_f32 v{MX}, v{MX}, v{MX+1}")
    a(f"v_mul_f32 v{NM}, v{CS}, v{MX}")
    a(f"v_sub_f32 v{NM}, 0, v{NM}")
    a("s_waitcnt vmcnt(0)")
    a("s_barrier")
    flag_store(a, S_FHO, t3)
    L = uid("pw")
    a.vm = ['pw'] if False else a.vm
    poll_recheck(a, VPQ, VPQ+1)
    dma_wf(a, 0, VW); dma_wf(a, 1, VW)
    mark(a)
    nv = [0]; ps = [0]; first = [True]
    def rd_v(tl, kk):
        slot = nv[0] % 4; nv[0] += 1
        for rd in range(2):
            a(f"ds_read_b64_tr_b16 {vr(VF[slot]+2*rd,2)}, v{VV} offset:{tl*256 + kk*128 + rd*64}", tag=('v', tl, kk))
        return slot
    def frag(src):
        p = PF[ps[0] % 4]; ps[0] += 1
        for e in range(8): a(f"v_fma_f32 v{src+e}, v{src+e}, v{CS}, v{NM}")
        for e in range(8): a(f"v_exp_f32 v{src+e}, v{src+e}")
        for e in range(4): a(f"v_cvt_pk_bf16_f32 v{p+e}, v{src+2*e}, v{src+2*e+1}")
        return p
    def pv(p, slot, tag):
        a.wait_lg(tag)
        a(f"v_mfma_f32_32x32x16_bf16 {vr(OA,16)}, {vr(VF[slot],4)}, {vr(p,4)}, {'0' if first[0] else vr(OA,16)}")
        first[0] = False
    pending = None
    for q in range(14):
        tl, kk = 1 + q // 2, q % 2
        slot = rd_v(tl, kk)
        p = frag(S + 16*tl + 8*kk)
        if pending: pv(*pending)
        pending = (p, slot, ('v', tl, kk))
        if q == OPT.get('qpoll', 3): poll_issue(a, VPH, VPH+1, 'ph')
        if q == OPT.get('qtok', 8):
            fin = final_setup(a, VPH)
    for kk in range(2):
        s0 = rd_v(0, kk); s8 = rd_v(8, kk)
        p = frag(S + 8*kk)
        if pending: pv(*pending); pending = None
        p8 = PF[ps[0] % 4]; ps[0] += 1
        for e in range(4): a(f"v_and_b32 v{p8+e}, v{p+e}, v{MK+4*kk+e}")
        for e in range(4): a(f"v_xor_b32 v{p+e}, v{p+e}, v{p8+e}")
        pv(p, s0, ('v', 0, kk))
        pv(p8, s8, ('v', 8, kk))
    a(f"v_and_b32 v{t0}, 1, v1")
    a(f"v_mul_u32_u24 v{t0}, {40*1024}, v{t0}")
    a(f"v_bfe_u32 v{t1}, v1, 1, 4")
    a(f"v_lshl_add_u32 v{t0}, v{t1}, 4, v{t0}")
    a(f"s_and_b32 s{T0}, s{S_QB}, 1")
    a(f"s_lshl_b32 s{T0}, s{T0}, 8")
    a(f"s_lshr_b32 s{T1}, s{S_QB}, 1")
    a(f"s_mul_i32 s{T1}, s{T1}, {80*1024}")
    a(f"s_add_u32 s{T0}, s{T0}, s{T1}")
    a(f"s_add_u32 s{T0}, s{T0}, {WS_O}")
    a(f"v_lshrrev_b32 v{t1}, 5, v1")
    a(f"v_lshl_add_u32 v{t2}, v{t1}, 9, v{t0}")
    a(f"v_rcp_f32 v{NM}, v{OA+12}")
    for r in range(12): a(f"v_mul_f32 v{OA+r}, v{OA+r}, v{NM}")
    for e in range(4): a(f"v_cvt_pk_bf16_f32 v{PF[0]+e}, v{OA+2*e}, v{OA+2*e+1}")
    a(f"v_cvt_pk_bf16_f32 v{PF[1]}, v{OA+8}, v{OA+9}")
    a(f"v_cvt_pk_bf16_f32 v{PF[1]+1}, v{OA+10}, v{OA+11}")
    a(f"s_lshl_b32 s{T1}, s{HP}, 1")
    a(f"s_add_u32 s{T1}, s{T1}, s{S_HH}")
    a(f"s_lshl_b32 s{T1}, s{T1}, 10")
    a(f"s_add_u32 s{T1}, s{T1}, s{T0}")
    a(f"buffer_store_dwordx4 {vr(PF[0],4)}, v{t2}, s[{SRD_WS}:{SRD_WS+3}], s{T1} offen sc1", tag='ost')
    a(f"s_lshr_b32 s{T1}, s{HP}, 1")
    a(f"s_add_u32 s{T1}, s{T1}, 32")
    a(f"s_lshl_b32 s{T1}, s{T1}, 10")
    a(f"s_and_b32 s{T2}, s{HP}, 1")
    a(f"s_lshl_b32 s{T2}, s{T2}, 9")
    a(f"s_add_u32 s{T1}, s{T1}, s{T2}")
    a(f"s_lshl_b32 s{T2}, s{S_HH}, 3")
    a(f"s_add_u32 s{T1}, s{T1}, s{T2}")
    a(f"s_add_u32 s{T1}, s{T1}, s{T0}")
    a("s_mov_b32 exec_hi, 0")
    a(f"buffer_store_dwordx2 {vr(PF[1],2)}, v{t0}, s[{SRD_WS}:{SRD_WS+3}], s{T1} offen sc1", tag='ost')
    a("s_mov_b32 exec_hi, -1")
    S_FO = 78
    a(f"s_lshl_b32 s{T0}, s{S_ARB}, 7")
    a(f"s_lshl_b32 s{T1}, s{HP}, 2")
    a(f"s_add_u32 s{T0}, s{T0}, s{T1}")
    a(f"s_add_u32 s{S_FO}, s{T0}, {WS_FLAG + FO}")
    mark(a)
    return dict(VPH=VPH, VW=VW, S_FO=S_FO, fin=fin)

TR, NT, HM, NM_ = 120, 24, 27, 37
F_HB, F_OB, F_TG, F_KG = 70, 71, 72, 81
F_VB = 11
def final_setup(a, VPH):
    TD = OPT.get('td', 16)
    t1, t2, t3 = 6, 7, 8
    a(f"s_and_b32 s{F_TG}, s{S_W}, 3")
    a(f"s_lshr_b32 s{F_KG}, s{S_W}, 2")
    poll_check(a, VPH, VPH+1, 'ph')
    a(f"v_lshrrev_b32 v{t1}, 5, v1")
    a(f"v_bfe_u32 v{t2}, v1, 4, 1")
    a(f"v_lshlrev_b32 v{t1}, 10, v{t1}")
    a(f"v_lshl_add_u32 v{t1}, v{t2}, 9, v{t1}")
    a(f"v_and_b32 v{t2}, 15, v1")
    a(f"s_and_b32 s{T0}, s{F_TG}, 1")
    a(f"s_lshl_b32 s{T0}, s{T0}, 4")
    a(f"v_add_u32 v{t3}, s{T0}, v{t2}")
    a(f"v_lshl_add_u32 v{F_VB}, v{t3}, 4, v{t1}")
    a(f"s_lshl_b32 s{T0}, s{S_FRB}, 1")
    a(f"s_lshr_b32 s{T1}, s{F_TG}, 1")
    a(f"s_add_u32 s{T0}, s{T0}, s{T1}")
    a(f"s_lshl_b32 s{T2}, s{F_KG}, 11")
    a(f"s_mul_i32 s{T1}, s{T0}, {108*1024}")
    a(f"s_add_u32 s{T1}, s{T1}, s{T2}")
    a(f"s_add_u32 s{F_HB}, s{T1}, {WS_H}")
    a(f"s_mul_i32 s{T1}, s{T0}, {40*1024}")
    a(f"s_add_u32 s{T1}, s{T1}, s{T2}")
    a(f"s_add_u32 s{F_OB}, s{T1}, {WS_O}")
    def ld_t(m):
        sb, k = (F_HB, m) if m < HM else (F_OB, m - HM)
        if k > 0: a(f"s_add_u32 s{sb}, s{sb}, 4096")
        a(f"buffer_load_dwordx4 {vr(TR+4*(m % NT),4)}, v{F_VB}, s[{SRD_WS}:{SRD_WS+3}], s{sb} offen sc1", tag=('T', m))
    for m in range(TD): ld_t(m)
    return ld_t

def stage_final(a, lbl, st):
    VPH, S_FO = st['VPH'], st['S_FO']
    VW = st['VW']; ld_t = st['fin']
    VG, VO, VF = 3, 4, 6
    VA = 12
    t0, t1, t2, t3 = 16, 17, 18, 19
    AS = [20, 40, 60]
    ACB, ACA, BI = 100, 216, 80
    TD = OPT.get('td', 16)
    NM = NM_
    S_TG, S_KG = F_TG, F_KG
    srd(a, SRD_A, P_B2, SIZES['B2'])
    srd(a, SRD_B, P_OUT, SIZES['OUT'])
    a(f"s_mul_i32 s{T0}, s{S_KG}, 5120")
    a(f"v_lshlrev_b32 v{t1}, 4, v1")
    a(f"v_add_u32 v{t1}, s{T0}, v{t1}")
    for k in range(4): a(f"v_add_u32 v{VA+k}, {RING[k]}, v{t1}")
    def rd_a(m, F):
        g, u = m >> 2, m & 3
        a(f"ds_read_b128 {vr(AS[m % 3]+4*F,4)}, v{VA + g % 4} offset:{u*10240 + F*1024}", tag=('A', m, F))
    a.wait_vm(('W', 0))
    a("s_barrier")
    for m in range(2):
        for F in range(5): rd_a(m, F)
    dma_wf(a, 2, VW)
    a(f"s_lshl_b32 s{T0}, s{S_FRB}, 6")
    a(f"s_lshr_b32 s{T1}, s{S_TG}, 1")
    a(f"s_add_u32 s{T0}, s{T0}, s{T1}")
    a(f"s_and_b32 s{T1}, s{S_TG}, 1")
    a(f"s_lshl_b32 s{T1}, s{T1}, 5")
    a(f"s_add_u32 s{T0}, s{T0}, s{T1}")
    a(f"v_and_b32 v{t3}, 15, v1")
    a(f"v_lshlrev_b32 v{t3}, 1, v{t3}")
    a(f"v_add_u32 v{t3}, s{T0}, v{t3}")
    a(f"v_lshlrev_b32 v{t1}, 2, v{t3}")
    a(f"v_add_u32 v{t1}, {WS_G}, v{t1}")
    a(f"buffer_load_dword v{VG}, v{t1}, s[{SRD_WS}:{SRD_WS+3}], 0 offen sc1", tag='g')
    a(f"v_lshrrev_b32 v{t0}, 4, v1")
    a(f"s_movk_i32 s{T1}, 1280")
    a(f"v_mul_lo_u32 v{t3}, v{t3}, s{T1}")
    a(f"s_mul_i32 s{T0}, s{S_FCJ}, 160")
    a(f"v_lshl_add_u32 v{t3}, v{t0}, 3, v{t3}")
    a(f"v_add_u32 v{VO}, s{T0}, v{t3}")
    a(f"v_lshlrev_b32 v{t1}, 3, v{t0}")
    a(f"v_add_u32 v{t1}, s{T0}, v{t1}")
    for F in range(5):
        a(f"buffer_load_dwordx2 {vr(BI+2*F,2)}, v{t1}, s[{SRD_A}:{SRD_A+3}], 0 offen offset:{32*F}", tag='g')
    a(f"s_lshr_b32 s{T0}, s{S_FRB}, 1")
    a(f"s_lshl_b32 s{T0}, s{T0}, 7")
    a(f"s_add_u32 s{T0}, s{T0}, {WS_FLAG + FO}")
    a(f"v_and_b32 v{VF}, 15, v1")
    a(f"v_lshlrev_b32 v{VF}, 2, v{VF}")
    a(f"v_add_u32 v{VF}, s{T0}, v{VF}")
    mark(a)
    NG = 10
    POLL = HM - TD - 4
    for m in range(NM):
        g, u = m >> 2, m & 3
        if m == HM: mark(a)
        if u == 2 and g + 1 < NG:
            if g == 0: a.wait_vm(['ost', ('W', 1)])
            else: a.wait_vm(('W', g + 1))
            a("s_barrier")
            if g == 0:
                flag_store(a, S_FO, t1)
                dma_wf(a, 3, VW)
            elif g + 3 < NG and not OPT.get('f_nodma'): dma_wf(a, g + 3, VW)
        if m == POLL: poll_issue(a, VF, VF+1, 'fo')
        if m + TD == HM: poll_check(a, VF, VF+1, 'fo')
        a.wait_vm(('T', m))
        for F in range(5):
            a.wait_lg(('A', m, F))
            acc = (ACB if m < HM else ACA) + 4*F
            d = vr(acc, 4)
            a(f"v_mfma_f32_16x16x32_bf16 {d}, {vr(AS[m % 3]+4*F,4)}, {vr(TR+4*(m % NT),4)}, {'0' if m in (0, HM) else d}")
            if m + 2 < NM and not OPT.get('f_nolds'):
                rd_a(m + 2, F)
            if F == 2 and m + TD < NM and not OPT.get('f_notok'):
                ld_t(m + TD)
    mark(a)
    a.wait_vm('g')
    a(f"v_sub_f32 v{t0}, 1.0, v{VG}")
    Lb = uid("bi")
    a(f"s_cmp_lg_u32 s{S_KG}, 0")
    a(f"s_cbranch_scc1 {Lb}")
    for F in range(5):
        for e in range(2):
            a(f"v_lshlrev_b32 v{t2}, 16, v{BI+2*F+e}")
            a(f"v_and_b32 v{t3}, 0xffff0000, v{BI+2*F+e}")
            a(f"v_add_f32 v{ACB+4*F+2*e}, v{ACB+4*F+2*e}, v{t2}")
            a(f"v_add_f32 v{ACB+4*F+2*e+1}, v{ACB+4*F+2*e+1}, v{t3}")
    a.label(Lb)
    for r in range(20): a(f"v_mul_f32 v{ACB+r}, v{ACB+r}, v{t0}")
    for r in range(20): a(f"v_fmac_f32 v{ACB+r}, v{ACA+r}, v{VG}")
    a(f"v_lshlrev_b32 v{t1}, 4, v1")
    a(f"s_mul_i32 s{T0}, s{S_TG}, 5120")
    a(f"s_add_u32 s{T0}, s{T0}, {RING[2]}")
    a(f"v_add_u32 v{t1}, s{T0}, v{t1}")
    L = uid("rd")
    a(f"s_cmp_eq_u32 s{S_KG}, 0")
    a(f"s_cbranch_scc1 {L}")
    for F in range(5):
        a(f"ds_write_b128 v{t1}, {vr(ACB+4*F,4)} offset:{F*1024}")
    a("s_waitcnt lgkmcnt(0)")
    a("s_barrier")
    a("s_endpgm")
    a.label(L)
    a("s_barrier")
    for F in range(5):
        a(f"ds_read_b128 {vr(ACA+4*F,4)}, v{t1} offset:{F*1024}")
    a("s_waitcnt lgkmcnt(0)")
    for r in range(20): a(f"v_add_f32 v{ACB+r}, v{ACB+r}, v{ACA+r}")
    for F in range(5):
        d = AS[0] + 2*F
        a(f"v_cvt_pk_bf16_f32 v{d}, v{ACB+4*F}, v{ACB+4*F+1}")
        a(f"v_cvt_pk_bf16_f32 v{d+1}, v{ACB+4*F+2}, v{ACB+4*F+3}")
        a(f"buffer_store_dwordx2 {vr(d,2)}, v{VO}, s[{SRD_B}:{SRD_B+3}], 0 offen offset:{32*F}")
    a.reset_counters()

def build():
    if OPT.get('fine2'):
        G_mark = G.mark
    OPT['mega'] = True
    LDS = 163840
    name = NAME + "_kernel"
    a = Asm()
    a("s_cmp_ge_u32 s2, 256")
    a("s_cbranch_scc1 L_end")
    prologue(a)
    nonce_post(a)
    stamp(a, 0, 0); CTX['k'] = 0; CTX['slot'] = 0
    if OPT.get('prio'): a(f"s_setprio {OPT['prio']}")
    stage1g(a, "s1"); mark(a)
    st = stage_attn(a, "attn")
    stage_final(a, "fin", st)
    if G.STAMPS: a("s_waitcnt vmcnt(0)")
    mark(a)
    a.label("L_end")
    return [(name, a.text())], LDS

def emit(ks, LDS):
    s = "\n".join(G.header_comment()) + "\n"
    s += f"; @launch grid=(256,1,1) block=(512,1,1) lds={LDS}\n"
    s += '.amdgcn_target "amdgcn-amd-amdhsa--gfx950"\n.text\n'
    for name, body in ks:
        s += G.kernel_text(name, body, 256, LDS)
    s += '.section .rodata,"a"\n'
    for name, _ in ks:
        s += ".p2align 6\n" + G.descriptor(name)
    return s

if __name__ == "__main__":
    if "stamps" in sys.argv: G.STAMPS = True
    for arg in sys.argv[1:]:
        if "=" in arg:
            k, v = arg.split("="); OPT[k] = int(v)
    ks, LDS = build()
    sys.stdout.write(emit(ks, LDS))
```

```python
import sys
from asmlib import Asm

NAME = "gated_mix__sliding_block__mixer_channel_mlp__prompt"

WS_Y    = 0x0000000
WS_G    = 0x0280000
WS_QKV  = 0x0300000
WS_H    = 0x0B00000
WS_O    = 0x1200000
WS_WF   = 0x1500000
WS_FLAG = 0x1800000
WS_STAMP = 0x1900000
WS_SIZE = 0x1A00000
WF_TILE = 2368 * 160
FY, FW, FQ, FH, FO = 0, 2048, 3072, 5120, 7168
OPT = dict(mega=False, rot=True, pf_code=True, pf_w1=True, pf_wf=True, tlb=True)

P_AX, P_WQKV, P_WO, P_BX, P_W1, P_B1, P_W2, P_B2 = 4, 6, 8, 10, 12, 14, 16, 18
P_GW, P_OUT, P_DBG, P_WS = 20, 22, 24, 26
SRD_A, SRD_B, SRD_WS, SRD_C = 28, 32, 36, 40
S_W, S_IDX, S_X, S_I = 44, 45, 46, 47
T0, T1, T2, T3, T4, T5, T6, T7 = 48, 49, 50, 51, 52, 53, 54, 55
S_RB, S_CJ = 56, 57
S_KX, S_KW, S_M0 = 58, 59, 60
S_MASK = 64
S_NONCE = 96
S_KO = 62

SIZES = dict(AX=2048*640*2, WQKV=640*1920*2, WO=640*640*2, BX=2048*640*2, W1=640*1728*2, B1=1728*2,
             W2=1728*640*2, B2=640*2, GW=640*2, OUT=2048*640*2)

def srd(a, dst, ptr, size):
    a(f"s_mov_b32 s{dst}, s{ptr}")
    a(f"s_and_b32 s{dst+1}, s{ptr+1}, 0xffff")
    a(f"s_mov_b32 s{dst+2}, {size}")
    a(f"s_mov_b32 s{dst+3}, 0x20000")

def vr(b, n=1):
    return f"v{b}" if n == 1 else f"v[{b}:{b+n-1}]"

def prologue(a):
    a("s_load_dwordx16 s[4:19], s[0:1], 0")
    a("s_load_dwordx8 s[20:27], s[0:1], 64")
    a("v_lshrrev_b32 v2, 6, v0")
    a("v_and_b32 v1, 63, v0")
    a(f"v_readfirstlane_b32 s{S_W}, v2")
    a(f"s_and_b32 s{S_IDX}, s2, 255")
    if OPT.get('xperm'):
        a(f"s_add_u32 s{S_X}, s2, {OPT['xperm']}")
        a(f"s_and_b32 s{S_X}, s{S_X}, 7")
    else:
        a(f"s_and_b32 s{S_X}, s2, 7")
    a(f"s_lshr_b32 s{S_I}, s{S_IDX}, 3")
    a("s_waitcnt lgkmcnt(0)")
    srd(a, SRD_WS, P_WS, WS_SIZE)


_uid = [0]
def uid(p):
    _uid[0] += 1
    return f"{p}_{_uid[0]}"

def nonce_post(a):
    L = uid("np")
    a(f"s_or_b32 s{T0}, s2, s{S_W}")
    a(f"s_cmp_lg_u32 s{T0}, 0")
    a(f"s_cbranch_scc1 {L}")
    a(f"s_memrealtime s[{T4}:{T4+1}]")
    a("s_waitcnt lgkmcnt(0)")
    a(f"s_or_b32 s{T4}, s{T4}, 1")
    a(f"v_mov_b32 v2, s{T4}")
    a("v_mov_b32 v3, 0")
    a("s_mov_b64 exec, 1")
    a(f"global_store_dword v3, v2, s[{P_DBG}:{P_DBG+1}] sc1")
    a("s_mov_b64 exec, -1")
    a.vm.pop()
    a.label(L)

def nonce_load(a, v):
    a(f"v_mov_b32 v{v+1}, 0")
    a(f"global_load_dword v{v}, v{v+1}, s[{P_DBG}:{P_DBG+1}] sc1", tag='nonce')

def nonce_get(a, v):
    L = uid("ng")
    a.wait_vm('nonce')
    a.label(L)
    a(f"v_readfirstlane_b32 s{S_NONCE}, v{v}")
    a(f"s_cmp_lg_u32 s{S_NONCE}, 0")
    a(f"s_cbranch_scc1 {L}_ok")
    a("s_sleep 2")
    a(f"global_load_dword v{v}, v{v+1}, s[{P_DBG}:{P_DBG+1}] sc1")
    a("s_waitcnt vmcnt(0)")
    a(f"s_branch {L}")
    a.label(f"{L}_ok")

def publish(a, sflag, v):
    L = uid("pub")
    a("s_waitcnt vmcnt(0)")
    a("s_barrier")
    a(f"s_cmp_lg_u32 s{S_W}, 0")
    a(f"s_cbranch_scc1 {L}")
    a(f"v_mov_b32 v{v}, s{S_NONCE}")
    a("s_mov_b64 exec, 1")
    a(f"buffer_store_dword v{v}, off, s[{SRD_WS}:{SRD_WS+3}], s{sflag} sc1")
    a("s_mov_b64 exec, -1")
    a.label(L)
    a.reset_counters()

def wait_flags(a, voff, vtmp, smask):
    L = uid("wf")
    keep = list(a.vm)
    a(f"s_cmp_lg_u32 s{S_W}, 0")
    a(f"s_cbranch_scc1 {L}_done")
    a(f"s_mov_b64 exec, s[{smask}:{smask+1}]")
    a.label(L)
    a(f"buffer_load_dword v{vtmp}, v{voff}, s[{SRD_WS}:{SRD_WS+3}], 0 offen sc1")
    a("s_waitcnt vmcnt(0)")
    a(f"v_cmp_ne_u32 vcc, s{S_NONCE}, v{vtmp}")
    a("s_nop 4")
    a(f"s_cbranch_vccz {L}_ok")
    a("s_sleep 1")
    a(f"s_branch {L}")
    a.label(f"{L}_ok")
    a("s_mov_b64 exec, -1")
    a.label(f"{L}_done")
    a("s_barrier")
    a.vm = keep

def touch_lines(a, srd_, vbase, n, stride, dst, soff='0', sc=''):
    for k in range(n):
        a(f"buffer_load_dword v{dst}, v{vbase}, s[{srd_}:{srd_+3}], {soff} offen {sc}".rstrip(), tag='touch')
        if k + 1 < n: a(f"v_add_u32 v{vbase}, {stride}, v{vbase}")

def prefetch_code(a, lbl_end, per):
    L = uid("pc")
    a(f"s_getpc_b64 s[{T4}:{T4+1}]")
    a.label(L)
    a(f"s_mul_i32 s{T0}, s{S_W}, {per*8192}")
    a("v_lshlrev_b32 v252, 7, v1")
    a(f"v_add_u32 v252, s{T0}, v252")
    for k in range(per):
        a(f"v_min_u32 v251, {lbl_end}-{L}-4, v252")
        a(f"global_load_dword v253, v251, s[{T4}:{T4+1}]", tag='touch')
        if k + 1 < per: a("v_add_u32 v252, 8192, v252")

def stage_qkv(a, lbl):
    XS = [0, 16384, 32768]
    WB = 49152
    a(f"s_lshr_b32 s{T0}, s{S_X}, 1")
    a(f"s_lshl_b32 s{T0}, s{T0}, 2")
    a(f"s_and_b32 s{T1}, s{S_I}, 3")
    a(f"s_add_u32 s{S_RB}, s{T0}, s{T1}")
    a(f"s_and_b32 s{T0}, s{S_X}, 1")
    a(f"s_lshl_b32 s{T0}, s{T0}, 3")
    a(f"s_lshr_b32 s{T1}, s{S_I}, 2")
    a(f"s_add_u32 s{S_CJ}, s{T0}, s{T1}")
    a(f"s_cmp_ge_u32 s{S_CJ}, 15")
    a(f"s_cbranch_scc1 {lbl}_skip")
    srd(a, SRD_A, P_AX, SIZES['AX'])
    srd(a, SRD_B, P_WQKV, SIZES['WQKV'])
    VXD, VWD = 2, 6
    VXF, VWF = 8, 12
    VT = 14
    FB = [20, 36]
    ACC = 64
    t0, t1, t2, t3 = VT, VT+1, VT+2, VT+3
    a(f"s_lshl_b32 s{T0}, s{S_RB}, 7")
    a(f"s_lshr_b32 s{T1}, s{S_W}, 1")
    a(f"s_lshl_b32 s{T1}, s{T1}, 6")
    a(f"s_add_u32 s{T0}, s{T0}, s{T1}")
    a(f"s_and_b32 s{T1}, s{S_W}, 1")
    a(f"s_add_u32 s{T0}, s{T0}, s{T1}")
    a(f"v_lshrrev_b32 v{t0}, 3, v1")
    a(f"v_lshlrev_b32 v{t0}, 1, v{t0}")
    a(f"v_add_u32 v{t0}, s{T0}, v{t0}")
    a(f"s_movk_i32 s{T2}, 1280")
    a(f"v_mul_lo_u32 v{t0}, v{t0}, s{T2}")
    a(f"v_lshrrev_b32 v{t1}, 4, v1")
    a(f"v_and_b32 v{t2}, 7, v1")
    a(f"v_xor_b32 v{t2}, v{t2}, v{t1}")
    a(f"v_xor_b32 v{t3}, 4, v{t2}")
    for i in range(4):
        src = t2 if i % 2 == 0 else t3
        a(f"v_lshl_add_u32 v{VXD+i}, v{src}, 4, v{t0}")
        if i:
            a(f"v_add_u32 v{VXD+i}, {i*(16*1280-1024)}, v{VXD+i}")
    a(f"s_lshl_b32 s{T0}, s{S_W}, 3")
    a(f"v_lshrrev_b32 v{t0}, 4, v1")
    a(f"v_add_u32 v{t1}, s{T0}, v{t0}")
    a(f"s_movk_i32 s{T2}, 3840")
    a(f"v_mul_lo_u32 v{t1}, v{t1}, s{T2}")
    a(f"v_bfe_u32 v{t2}, v1, 2, 2")
    a(f"v_xor_b32 v{t2}, v{t2}, v{t0}")
    a(f"v_and_b32 v{t3}, 3, v1")
    a(f"v_lshl_add_u32 v{t2}, v{t2}, 2, v{t3}")
    a(f"v_lshl_add_u32 v{t1}, v{t2}, 4, v{t1}")
    a(f"s_lshl_b32 s{T0}, s{S_CJ}, 8")
    a(f"v_add_u32 v{VWD}, s{T0}, v{t1}")
    a(f"v_add_u32 v{VWD+1}, {4*3840-1024}, v{VWD}")
    a(f"s_lshl_b32 s{T6}, s{S_W}, 12")
    a(f"s_lshl_b32 s{T7}, s{S_W}, 11")
    if OPT['rot']:
        a(f"s_and_b32 s{T0}, s{S_I}, 3")
        a(f"s_mul_i32 s{T0}, s{T0}, 10")
        a(f"s_lshr_b32 s{T1}, s{S_I}, 2")
        a(f"s_mul_i32 s{T1}, s{T1}, 5")
        a(f"s_add_u32 s{T0}, s{T0}, s{T1}")
        a(f"s_lshr_b32 s{T0}, s{T0}, 2")
        a(f"s_sub_u32 s{T1}, s{T0}, 10")
        a(f"s_cmp_ge_u32 s{T0}, 10")
        a(f"s_cselect_b32 s{T0}, s{T1}, s{T0}")
        a(f"s_lshl_b32 s{S_KX}, s{T0}, 7")
        a(f"s_mul_i32 s{S_KW}, s{T0}, {64*3840}")
    else:
        a(f"s_mov_b32 s{S_KX}, 0")
        a(f"s_mov_b32 s{S_KW}, 0")
    def adv(sreg, step, wrap):
        if OPT.get('hot'): return
        a(f"s_add_u32 s{sreg}, s{sreg}, {step}")
        a(f"s_cmp_eq_u32 s{sreg}, {wrap}")
        a(f"s_cselect_b32 s{sreg}, 0, s{sreg}")
    NWS = OPT.get('nws', 4)
    def dma_x(b, part=None):
        a(f"s_add_u32 m0, s{T6}, {XS[b % 3]}")
        if b > 0 and part in (None, 0): adv(S_KX, 128, 1280)
        for i in (range(4) if part is None else range(2*part, 2*part+2)):
            a(f"buffer_load_dwordx4 v{VXD+i}, s[{SRD_A}:{SRD_A+3}], s{S_KX} offen offset:{i*1024} lds", tag=('X', b))
    def dma_w(h):
        a(f"s_add_u32 m0, s{T7}, {WB + (h % NWS)*8192}")
        if h > 0: adv(S_KW, 32*3840, 640*3840)
        for i in range(2):
            a(f"buffer_load_dwordx4 v{VWD+i}, s[{SRD_B}:{SRD_B+3}], s{S_KW} offen offset:{i*1024} lds", tag=('W', h))
    dma_x(0); dma_w(0); dma_w(1); dma_x(1)
    for h in range(2, NWS - 1): dma_w(h)
    if OPT['mega']: start_prefetch(a, 'A')
    a(f"s_and_b32 s{T0}, s{S_W}, 1")
    a(f"s_lshl_b32 s{T0}, s{T0}, 13")
    a(f"v_and_b32 v{t0}, 31, v1")
    a(f"v_lshrrev_b32 v{t1}, 5, v1")
    a(f"v_bfe_u32 v{t2}, v1, 1, 3")
    a(f"v_lshlrev_b32 v{t0}, 7, v{t0}")
    a(f"v_add_u32 v{t0}, s{T0}, v{t0}")
    for s in range(4):
        a(f"v_or_b32 v{t3}, {2*s}, v{t1}")
        a(f"v_xor_b32 v{t3}, v{t3}, v{t2}")
        a(f"v_lshl_add_u32 v{VXF+s}, v{t3}, 4, v{t0}")
    a(f"v_bfe_u32 v{t0}, v1, 2, 2")
    a(f"v_lshl_add_u32 v{t1}, v{t1}, 3, v{t0}")
    a(f"v_lshlrev_b32 v{t1}, 8, v{t1}")
    a(f"v_bfe_u32 v{t2}, v1, 4, 1")
    a(f"v_lshl_add_u32 v{t1}, v{t2}, 5, v{t1}")
    a(f"v_and_b32 v{t2}, 3, v1")
    a(f"v_lshl_add_u32 v{t1}, v{t2}, 3, v{t1}")
    a(f"v_add_u32 v{t1}, {WB}, v{t1}")
    a(f"s_and_b32 s{T0}, s{S_W}, 2")
    for ft in range(2):
        a(f"s_or_b32 s{T1}, s{T0}, {ft}")
        a(f"v_xor_b32 v{t2}, s{T1}, v{t0}")
        a(f"v_lshl_add_u32 v{VWF+ft}, v{t2}, 6, v{t1}")
    def rd_b(st, hh, sp, tt):
        xb = hh >> 1; sx = 2*(hh & 1) + sp
        a(f"ds_read_b128 {vr(FB[st]+4*tt,4)}, v{VXF+sx} offset:{XS[xb % 3] + tt*4096}", tag=('f', hh, sp))
    def rd_a(st, hh, sp, ft, rd):
        a(f"ds_read_b64_tr_b16 {vr(FB[st]+8+4*ft+2*rd,2)}, v{VWF+ft} offset:{(hh % NWS)*8192 + sp*4096 + rd*1024}", tag=('f', hh, sp))
    def mf(st, tt, ft, first):
        d = vr(ACC+16*(2*tt+ft), 16)
        c = "0" if first else d
        a(f"v_mfma_f32_32x32x16_bf16 {d}, {vr(FB[st]+8+4*ft,4)}, {vr(FB[st]+4*tt,4)}, {c}")
    NH = 20
    def w_pre(h):
        a(f"s_add_u32 m0, s{T7}, {WB + (h % NWS)*8192}")
        adv(S_KW, 32*3840, 640*3840)
    def w_one(h, i):
        a(f"buffer_load_dwordx4 v{VWD+i}, s[{SRD_B}:{SRD_B+3}], s{S_KW} offen offset:{i*1024} lds", tag=('W', h))
    def x_pre(b, part):
        a(f"s_add_u32 m0, s{T6}, {XS[b % 3]}")
        if part == 0: adv(S_KX, 128, 1280)
    def x_one(b, i):
        a(f"buffer_load_dwordx4 v{VXD+i}, s[{SRD_A}:{SRD_A+3}], s{S_KX} offen offset:{i*1024} lds", tag=('X', b))
    spread = OPT.get('spread', 1)
    for hh in range(NH):
        if hh == 1: mark(a)
        a.wait_vm([('W', hh), ('X', hh >> 1)])
        a("s_waitcnt lgkmcnt(0)")
        if not OPT.get('nobar'): a("s_barrier")
        prev = hh > 0
        dw = hh + NWS - 1 < NH and not OPT.get('nodma')
        dx = hh // 2 + 2 < 10 and not OPT.get('nodma')
        hw, bx, px = hh + NWS - 1, hh // 2 + 2, hh % 2
        rd_b(0, hh, 0, 0); rd_a(0, hh, 0, 0, 0)
        if prev: mf(1, 0, 0, False)
        rd_a(0, hh, 0, 0, 1); rd_b(0, hh, 0, 1); rd_a(0, hh, 0, 1, 0)
        if spread and dw: w_pre(hw); w_one(hw, 0)
        if prev: mf(1, 1, 0, False)
        rd_a(0, hh, 0, 1, 1)
        if not spread and dw: dma_w(hw)
        if prev: mf(1, 0, 1, False)
        if spread and dw: w_one(hw, 1)
        if not spread and dx: dma_x(bx, px)
        if prev: mf(1, 1, 1, False)
        first = hh == 0
        rd_b(1, hh, 1, 0); rd_a(1, hh, 1, 0, 0); rd_a(1, hh, 1, 0, 1)
        a(f"s_waitcnt lgkmcnt(6)")
        mf(0, 0, 0, first)
        rd_b(1, hh, 1, 1); rd_a(1, hh, 1, 1, 0); rd_a(1, hh, 1, 1, 1)
        if spread and dx: x_pre(bx, px); x_one(bx, 2*px)
        a(f"s_waitcnt lgkmcnt(6)")
        mf(0, 1, 0, first); mf(0, 0, 1, first)
        if spread and dx: x_one(bx, 2*px + 1)
        mf(0, 1, 1, first)
    a("s_waitcnt lgkmcnt(0)")
    mf(1, 0, 0, False); mf(1, 1, 0, False); mf(1, 0, 1, False); mf(1, 1, 1, False)
    mark(a)
    a(f"v_lshrrev_b32 v{t0}, 5, v1")
    a(f"s_lshr_b32 s{T0}, s{S_W}, 1")
    a(f"s_lshl_b32 s{T0}, s{T0}, 4")
    a(f"v_add_u32 v{t0}, s{T0}, v{t0}")
    a(f"v_lshlrev_b32 v{t0}, 14, v{t0}")
    a(f"s_and_b32 s{T0}, s{S_W}, 1")
    a(f"s_lshl_b32 s{T0}, s{T0}, 9")
    a(f"v_and_b32 v{t1}, 31, v1")
    a(f"v_lshl_add_u32 v{t0}, v{t1}, 4, v{t0}")
    a(f"v_add_u32 v{t0}, s{T0}, v{t0}")
    a(f"s_lshl_b32 s{T0}, s{S_CJ}, 19")
    a(f"s_lshl_b32 s{T1}, s{S_RB}, 10")
    a(f"s_add_u32 s{T0}, s{T0}, s{T1}")
    a(f"s_add_u32 s{T0}, s{T0}, {WS_QKV}")
    if OPT['mega']: nonce_load(a, 16)
    k = 0
    for ft in range(2):
        for j in range(4):
            a(f"s_add_u32 s{T1}, s{T0}, {(8*ft+2*j)*16384}")
            d = FB[0] + 4*(k % 8); k += 1
            for tt in range(2):
                base = ACC + 16*(2*tt+ft) + 4*j
                a(f"v_cvt_pk_bf16_f32 v{d+2*tt}, v{base}, v{base+1}")
                a(f"v_cvt_pk_bf16_f32 v{d+2*tt+1}, v{base+2}, v{base+3}")
            a(f"buffer_store_dwordx4 {vr(d,4)}, v{t0}, s[{SRD_WS}:{SRD_WS+3}], s{T1} offen sc1")
    mark(a)
    if OPT['mega']:
        nonce_get(a, 16)
        a(f"s_lshl_b32 s{T0}, s{S_RB}, 7")
        a(f"s_lshl_b32 s{T1}, s{S_CJ}, 2")
        a(f"s_add_u32 s{T0}, s{T0}, s{T1}")
        a(f"s_add_u32 s{T0}, s{T0}, {WS_FLAG + FQ}")
        publish(a, T0, 16)
        a(f"s_branch {lbl}_end")
    a.label(f"{lbl}_skip")
    if OPT['mega']:
        a.reset_counters()
        a(f"s_lshr_b32 s{S_KO}, s{S_X}, 1")
        a(f"s_lshl_b32 s{S_KO}, s{S_KO}, 2")
        a(f"s_and_b32 s{T0}, s{S_I}, 3")
        a(f"s_add_u32 s{S_KO}, s{S_KO}, s{T0}")
        stage_repack(a, lbl + "_rp", S_KO)
        a.label(f"{lbl}_end")
    a.reset_counters()

STAMPS = False
CTX = dict(k=0, slot=0)
def mark(a):
    if not STAMPS: return
    CTX['slot'] += 1
    if CTX['slot'] > 14: return
    stamp(a, CTX['k'], CTX['slot'])
CTX4 = dict(slot=0)
def mark4(a, first=False):
    if not STAMPS: return
    if first: CTX4['slot'] = -1
    CTX4['slot'] += 1
    if CTX4['slot'] > 14: return
    stamp(a, 0, CTX4['slot'], wave=4, add=256*128)

def stamp(a, kidx, slot, wave=0, add=0):
    if not STAMPS: return
    stamp.n = getattr(stamp, 'n', 0) + 1
    L = f"stamp_{stamp.n}"
    a(f"s_cmp_lg_u32 s{S_W}, {wave}")
    a(f"s_cbranch_scc1 {L}")
    a("s_memrealtime s[98:99]")
    a("s_memtime s[100:101]")
    a("s_waitcnt lgkmcnt(0)")
    a(f"s_lshl_b32 s97, s2, 7")
    a(f"s_add_u32 s97, s97, {WS_STAMP + kidx*(1024*128) + slot*4 + add}")
    a("s_mov_b64 exec, 1")
    a("v_mov_b32 v254, s98")
    a("v_mov_b32 v255, s100")
    vm = list(a.vm)
    a(f"buffer_store_dword v254, off, s[{SRD_WS}:{SRD_WS+3}], s97")
    a(f"buffer_store_dword v255, off, s[{SRD_WS}:{SRD_WS+3}], s97 offset:64")
    a("s_mov_b64 exec, -1")
    a.vm = vm
    a.label(L)

def dbgtime(a, slot, wg):
    if not OPT.get('dbgtime'): return
    L = uid("dt")
    a(f"s_cmp_lg_u32 s{S_W}, 0")
    a(f"s_cbranch_scc1 {L}")
    a(f"s_cmp_lg_u32 s2, {wg}")
    a(f"s_cbranch_scc1 {L}")
    a("s_memrealtime s[98:99]")
    a("s_waitcnt lgkmcnt(0)")
    a("s_mov_b64 exec, 1")
    a("v_mov_b32 v254, s98")
    a(f"v_mov_b32 v255, {slot*4}")
    vm = list(a.vm)
    a(f"global_store_dword v255, v254, s[{P_DBG}:{P_DBG+1}]")
    a("s_mov_b64 exec, -1")
    a.vm = vm
    a.label(L)

def kernel_text(name, body, grid, lds):
    s  = f".globl {name}\n.p2align 8\n.type {name},@function\n{name}:\n"
    s += body
    s += "    s_endpgm\n"
    return s

def descriptor(name, vgpr=256):
    return f""".amdhsa_kernel {name}
  .amdhsa_next_free_vgpr {vgpr}
  .amdhsa_next_free_sgpr 102
  .amdhsa_accum_offset {vgpr}
  .amdhsa_group_segment_fixed_size 0
  .amdhsa_kernarg_size 96
  .amdhsa_user_sgpr_count 2
  .amdhsa_user_sgpr_kernarg_segment_ptr 1
  .amdhsa_system_sgpr_workgroup_id_x 1
.end_amdhsa_kernel
"""

def dpp_sum16(a, v):
    for r in (8, 4, 2, 1):
        a(f"v_add_f32_dpp v{v}, v{v}, v{v} row_ror:{r} row_mask:0xf bank_mask:0xf")

def stage_ln(a, lbl):
    VO, VT = 2, 4
    X, F = 20, 40
    t0, t1, t2, t3, t4 = VT, VT+1, VT+2, VT+3, VT+4
    a(f"s_and_b32 s{T0}, s{S_W}, 1")
    a(f"s_lshl_b32 s{T0}, s{T0}, 2")
    a(f"s_lshl_b32 s{T1}, s{S_IDX}, 3")
    a(f"s_add_u32 s{T0}, s{T0}, s{T1}")
    a(f"v_lshrrev_b32 v{t0}, 4, v1")
    a(f"v_add_u32 v{t0}, s{T0}, v{t0}")
    a(f"v_and_b32 v{t1}, 15, v1")
    a(f"s_movk_i32 s{T2}, 1280")
    a(f"v_mul_lo_u32 v{VO}, v{t0}, s{T2}")
    a(f"v_lshl_add_u32 v{VO}, v{t1}, 4, v{VO}")
    a(f"s_cmp_ge_u32 s{S_W}, 2")
    a(f"s_cbranch_scc1 {lbl}_gate")
    srd(a, SRD_A, P_AX, SIZES['AX'])
    for i in range(5):
        a(f"buffer_load_dwordx4 {vr(X+4*i,4)}, v{VO}, s[{SRD_A}:{SRD_A+3}], 0 offen offset:{256*i}", tag='lnx')
    if OPT['mega']: start_prefetch(a, 'B')
    a(f"v_lshrrev_b32 v{t2}, 5, v{t0}")
    a(f"v_mul_u32_u24 v{t2}, 40, v{t2}")
    a(f"v_lshrrev_b32 v{t3}, 1, v{t1}")
    a(f"v_add_u32 v{t2}, v{t2}, v{t3}")
    a(f"v_lshlrev_b32 v{t2}, 10, v{t2}")
    a(f"v_and_b32 v{t3}, 1, v{t1}")
    a(f"v_lshl_add_u32 v{t2}, v{t3}, 9, v{t2}")
    a(f"v_and_b32 v{t3}, 31, v{t0}")
    a(f"v_lshl_add_u32 v{VO+1}, v{t3}, 4, v{t2}")
    a.wait_vm('lnx')
    for d in range(20):
        a(f"v_lshlrev_b32 v{F+2*d}, 16, v{X+d}")
        a(f"v_and_b32 v{F+2*d+1}, 0xffff0000, v{X+d}")
    for k in range(4):
        a(f"v_add_f32 v{t0+k}, v{F+k}, v{F+4+k}")
    for d in range(8, 40):
        a(f"v_add_f32 v{t0+(d%4)}, v{t0+(d%4)}, v{F+d}")
    a(f"v_add_f32 v{t0}, v{t0}, v{t1}")
    a(f"v_add_f32 v{t2}, v{t2}, v{t3}")
    a(f"v_add_f32 v{t0}, v{t0}, v{t2}")
    dpp_sum16(a, t0)
    a(f"v_mul_f32 v{t0}, 0x3acccccd, v{t0}")
    for d in range(40):
        a(f"v_sub_f32 v{F+d}, v{F+d}, v{t0}")
    for k in range(4):
        a(f"v_mul_f32 v{t0+k}, v{F+k}, v{F+k}")
    for d in range(4, 40):
        a(f"v_fmac_f32 v{t0+(d%4)}, v{F+d}, v{F+d}")
    a(f"v_add_f32 v{t0}, v{t0}, v{t1}")
    a(f"v_add_f32 v{t2}, v{t2}, v{t3}")
    a(f"v_add_f32 v{t0}, v{t0}, v{t2}")
    dpp_sum16(a, t0)
    a(f"v_mov_b32 v{t1}, 0x3727c5ac")
    a(f"v_fmac_f32 v{t1}, 0x3acccccd, v{t0}")
    a(f"v_rsq_f32 v{t1}, v{t1}")
    for d in range(40):
        a(f"v_mul_f32 v{F+d}, v{F+d}, v{t1}")
    for d in range(20):
        a(f"v_cvt_pk_bf16_f32 v{X+d}, v{F+2*d}, v{F+2*d+1}")
    if OPT['mega']: nonce_load(a, 10)
    for i in range(5):
        a(f"buffer_store_dwordx4 {vr(X+4*i,4)}, v{VO+1}, s[{SRD_WS}:{SRD_WS+3}], 0 offen sc1")
        if i < 4:
            a(f"v_add_u32 v{VO+1}, 8192, v{VO+1}")
    a(f"s_branch {lbl}_done")
    a.label(f"{lbl}_gate")
    a.reset_counters()
    srd(a, SRD_A, P_AX, SIZES['AX'])
    srd(a, SRD_B, P_GW, SIZES['GW'])
    G = 40
    a(f"v_lshlrev_b32 v{VO+1}, 4, v{t1}")
    for i in range(5):
        a(f"buffer_load_dwordx4 {vr(X+4*i,4)}, v{VO}, s[{SRD_A}:{SRD_A+3}], 0 offen offset:{256*i}", tag='gx')
        a(f"buffer_load_dwordx4 {vr(G+4*i,4)}, v{VO+1}, s[{SRD_B}:{SRD_B+3}], 0 offen offset:{256*i}", tag='gx')
    if OPT['mega']: start_prefetch(a, 'B')
    a(f"v_lshlrev_b32 v{t2}, 2, v{t0}")
    a(f"v_add_u32 v{t2}, {WS_G}, v{t2}")
    a(f"v_mov_b32 v{t3}, 0x7ffffff0")
    a(f"v_cmp_eq_u32 s[{T4}:{T4+1}], 0, v{t1}")
    a(f"v_cndmask_b32 v{VO}, v{t3}, v{t2}, s[{T4}:{T4+1}]")
    a(f"v_mov_b32 v{t0}, 0")
    a(f"v_mov_b32 v{t1}, 0")
    a.wait_vm('gx')
    U = 60
    for d in range(20):
        u = U + 4*(d % 4)
        a(f"v_lshlrev_b32 v{u}, 16, v{X+d}")
        a(f"v_lshlrev_b32 v{u+1}, 16, v{G+d}")
        a(f"v_and_b32 v{u+2}, 0xffff0000, v{X+d}")
        a(f"v_and_b32 v{u+3}, 0xffff0000, v{G+d}")
        a(f"v_fmac_f32 v{t0}, v{u}, v{u+1}")
        a(f"v_fmac_f32 v{t1}, v{u+2}, v{u+3}")
    a(f"v_add_f32 v{t0}, v{t0}, v{t1}")
    dpp_sum16(a, t0)
    a(f"v_mul_f32 v{t0}, 0xbfb8aa3b, v{t0}")
    a(f"v_exp_f32 v{t0}, v{t0}")
    a(f"v_add_f32 v{t0}, 1.0, v{t0}")
    a(f"v_rcp_f32 v{t0}, v{t0}")
    a(f"s_nop 0")
    if OPT['mega']: nonce_load(a, 10)
    a(f"buffer_store_dword v{t0}, v{VO}, s[{SRD_WS}:{SRD_WS+3}], 0 offen sc1")
    a.label(f"{lbl}_done")
    a.reset_counters()
    if OPT['mega']:
        a("s_waitcnt vmcnt(0)")
        nonce_get(a, 10)
        a(f"s_lshr_b32 s{T0}, s{S_IDX}, 4")
        a(f"s_lshl_b32 s{T0}, s{T0}, 7")
        a(f"s_and_b32 s{T1}, s{S_IDX}, 15")
        a(f"s_lshl_b32 s{T1}, s{T1}, 2")
        a(f"s_add_u32 s{T0}, s{T0}, s{T1}")
        a(f"s_add_u32 s{T0}, s{T0}, {WS_FLAG + FY}")
        publish(a, T0, 10)

NRP = 48
RPQ = 395
def stage_repack(a, lbl, sn):
    t0, t1, t2, t3, t4, t5, t6 = range(2, 9)
    NU = 16
    VS, VD, D = 10, 26, 44
    MS = 64
    srd(a, SRD_A, P_W2, SIZES['W2'])
    srd(a, SRD_B, P_WO, SIZES['WO'])
    a(f"s_mul_i32 s{T0}, s{sn}, {RPQ}")
    a(f"s_mul_i32 s{T3}, s{T0}, 160")
    a(f"s_add_u32 s{T3}, s{T3}, {WS_WF}")
    a(f"s_movk_i32 s{T6}, 6554")
    a(f"s_movk_i32 s{T7}, 1280")
    a(f"s_mov_b32 s{T1}, 1813754")
    a(f"s_movk_i32 s{T2}, 2368")
    a(f"s_movk_i32 s{T4}, 18944")
    a(f"s_movk_i32 s{T5}, {RPQ*10}")
    for u in range(NU):
        a(f"v_add_u32 v{t0}, {256*u}, v0")
        a(f"v_mul_u32_u24 v{t1}, s{T6}, v{t0}")
        a(f"v_lshrrev_b32 v{t1}, 16, v{t1}")
        a(f"v_mul_u32_u24 v{t2}, 10, v{t1}")
        a(f"v_sub_u32 v{t2}, v{t0}, v{t2}")
        a(f"v_add_u32 v{t1}, s{T0}, v{t1}")
        a(f"v_mul_hi_u32 v{t3}, v{t1}, s{T1}")
        a(f"v_mul_lo_u32 v{t4}, v{t3}, s{T2}")
        a(f"v_sub_u32 v{t4}, v{t1}, v{t4}")
        a(f"v_cmp_gt_u32 s[98:99], s{T4}, v{t1}")
        a(f"v_cmp_gt_u32 s[100:101], s{T5}, v{t0}")
        a("s_and_b64 s[98:99], s[98:99], s[100:101]")
        a(f"v_mul_u32_u24 v{t3}, 160, v{t3}")
        a(f"v_lshl_add_u32 v{t2}, v{t2}, 4, v{t3}")
        a(f"v_subrev_u32 v{t1}, 1728, v{t4}")
        a(f"v_lshrrev_b32 v{t3}, 4, v{t1}")
        a(f"v_and_b32 v{t1}, 15, v{t1}")
        a(f"v_mul_u32_u24 v{t5}, 20, v{t3}")
        a(f"v_add_u32 v{t5}, v{t5}, v{t1}")
        a(f"v_cmp_gt_u32 s[100:101], 32, v{t3}")
        a(f"v_subrev_u32 v{t3}, 32, v{t3}")
        a(f"v_lshlrev_b32 v{t3}, 2, v{t3}")
        a(f"v_bfe_u32 v{t6}, v{t1}, 2, 1")
        a(f"v_lshl_add_u32 v{t3}, v{t6}, 1, v{t3}")
        a(f"v_lshrrev_b32 v{t6}, 3, v{t1}")
        a(f"v_add_u32 v{t3}, v{t3}, v{t6}")
        a(f"v_mul_u32_u24 v{t3}, 20, v{t3}")
        a(f"v_and_b32 v{t1}, 3, v{t1}")
        a(f"v_add3_u32 v{t3}, v{t3}, v{t1}, 16")
        a(f"v_cndmask_b32 v{t3}, v{t3}, v{t5}, s[100:101]")
        a(f"v_cmp_gt_u32 s[{MS+2*u}:{MS+2*u+1}], 0x6c0, v{t4}") if False else None
        a(f"v_mov_b32 v{t5}, 1728")
        a(f"v_cmp_gt_u32 s[{MS+2*u}:{MS+2*u+1}], v{t5}, v{t4}")
        a(f"v_cndmask_b32 v{t3}, v{t3}, v{t4}, s[{MS+2*u}:{MS+2*u+1}]")
        a(f"v_mul_lo_u32 v{t3}, v{t3}, s{T7}")
        a(f"v_add_u32 v{t3}, v{t3}, v{t2}")
        a(f"v_lshlrev_b32 v{t5}, 4, v{t0}")
        a(f"v_add_u32 v{t5}, s{T3}, v{t5}")
        a(f"v_mov_b32 v{t6}, 0x7ffffff0")
        a(f"v_cndmask_b32 v{VS+u}, v{t6}, v{t3}, s[98:99]")
        a(f"v_cndmask_b32 v{VD+u}, v{t6}, v{t5}, s[98:99]")
    for u in range(NU):
        a(f"v_mov_b32 v{t6}, 0x7ffffff0")
        a(f"v_cndmask_b32 v{t0}, v{t6}, v{VS+u}, s[{MS+2*u}:{MS+2*u+1}]")
        a(f"v_cndmask_b32 v{t1}, v{VS+u}, v{t6}, s[{MS+2*u}:{MS+2*u+1}]")
        a(f"s_mov_b64 exec, s[{MS+2*u}:{MS+2*u+1}]")
        a(f"buffer_load_dwordx4 {vr(D+4*u,4)}, v{t0}, s[{SRD_A}:{SRD_A+3}], 0 offen", tag=('rp', u))
        a(f"s_not_b64 exec, s[{MS+2*u}:{MS+2*u+1}]")
        a(f"buffer_load_dwordx4 {vr(D+4*u,4)}, v{t1}, s[{SRD_B}:{SRD_B+3}], 0 offen", tag=('rp', u))
        a("s_mov_b64 exec, -1")
    for u in range(NU):
        a.wait_vm(('rp', u))
        a(f"buffer_store_dwordx4 {vr(D+4*u,4)}, v{VD+u}, s[{SRD_WS}:{SRD_WS+3}], 0 offen sc1")
    if OPT['mega']:
        nonce_load(a, 2)
        nonce_get(a, 2)
        a(f"s_lshl_b32 s{T0}, s{sn}, 2")
        a(f"s_add_u32 s{T0}, s{T0}, {WS_FLAG + FW}")
        publish(a, T0, 2)
    a.reset_counters()

def stage_ffn1(a, lbl):
    a(f"s_lshr_b32 s{T0}, s{S_X}, 1")
    a(f"s_lshl_b32 s{T0}, s{T0}, 2")
    a(f"s_and_b32 s{T1}, s{S_I}, 3")
    a(f"s_add_u32 s{S_RB}, s{T0}, s{T1}")
    a(f"s_and_b32 s{T0}, s{S_X}, 1")
    a(f"s_mul_i32 s{T0}, s{T0}, 7")
    a(f"s_lshr_b32 s{T1}, s{S_I}, 2")
    a(f"s_add_u32 s{S_CJ}, s{T0}, s{T1}")
    a(f"s_cmp_ge_u32 s{T1}, 7")
    a(f"s_cbranch_scc1 {lbl}_skip")
    srd(a, SRD_A, P_B1, SIZES['B1'])
    srd(a, SRD_B, P_W1, SIZES['W1'])
    VWD, VWF, VY, VT = 2, 6, 10, 12
    AS = [20, 36, 52]
    ACC = 68
    YR = 132; NY = 16; YD = 12
    t0, t1, t2, t3 = VT, VT+1, VT+2, VT+3
    a(f"s_lshl_b32 s{T0}, s{S_W}, 4")
    a(f"v_lshrrev_b32 v{t0}, 4, v1")
    a(f"v_add_u32 v{t1}, s{T0}, v{t0}")
    a(f"s_movk_i32 s{T2}, 3456")
    a(f"v_mul_lo_u32 v{t1}, v{t1}, s{T2}")
    a(f"v_bfe_u32 v{t2}, v1, 2, 2")
    a(f"v_xor_b32 v{t2}, v{t2}, v{t0}")
    a(f"v_and_b32 v{t3}, 3, v1")
    a(f"v_lshl_add_u32 v{t2}, v{t2}, 2, v{t3}")
    a(f"v_lshl_add_u32 v{t1}, v{t2}, 4, v{t1}")
    a(f"s_lshl_b32 s{T0}, s{S_CJ}, 8")
    a(f"v_add_u32 v{VWD}, s{T0}, v{t1}")
    for i in range(1, 4):
        a(f"v_add_u32 v{VWD+i}, {i*(4*3456-1024)}, v{VWD}")
    a(f"s_lshl_b32 s{T6}, s{S_W}, 12")
    def dma_w(b):
        a(f"s_add_u32 m0, s{T6}, {(b % 4)*16384}")
        a(f"s_mov_b32 s{S_KW}, {b*64*3456}")
        for i in range(4):
            a(f"buffer_load_dwordx4 v{VWD+i}, s[{SRD_B}:{SRD_B+3}], s{S_KW} offen offset:{i*1024} lds", tag=('W', b))
    dma_w(0)
    a(f"v_lshrrev_b32 v{t0}, 5, v1")
    a(f"v_lshlrev_b32 v{t1}, 3, v{t0}")
    a(f"s_lshl_b32 s{T0}, s{S_CJ}, 8")
    a(f"v_add_u32 v{t1}, s{T0}, v{t1}")
    for T in range(4):
        for j in range(4):
            a(f"buffer_load_dwordx2 {vr(AS[0]+2*(4*T+j),2)}, v{t1}, s[{SRD_A}:{SRD_A+3}], 0 offen offset:{64*T+16*j}", tag='bias')
    dma_w(1); dma_w(2)
    if OPT['mega']:
        a(f"s_lshl_b32 s{T0}, s{S_RB}, 7")
        a(f"s_add_u32 s{T0}, s{T0}, {WS_FLAG + FY}")
        a(f"v_lshlrev_b32 v{t2}, 2, v1")
        a(f"v_add_u32 v{t2}, s{T0}, v{t2}")
        a(f"s_mov_b64 s[{T4}:{T4+1}], 0xffff")
        vm = list(a.vm)
        wait_flags(a, t2, t3, T4)
        a.vm = vm
        if OPT.get('fine'): mark(a)
    a(f"s_lshl_b32 s{T0}, s{S_RB}, 2")
    a(f"s_add_u32 s{T0}, s{T0}, s{S_W}")
    a(f"s_mul_i32 s{T1}, s{T0}, {40*1024}")
    a(f"s_add_u32 s{S_KX}, s{T1}, {WS_Y}")
    a(f"v_lshlrev_b32 v{VY}, 4, v1")
    def ld_y(s):
        if s % 4 == 0 and s > 0:
            a(f"s_add_u32 s{S_KX}, s{S_KX}, 4096")
        a(f"buffer_load_dwordx4 {vr(YR+4*(s % NY),4)}, v{VY}, s[{SRD_WS}:{SRD_WS+3}], s{S_KX} offen offset:{(s % 4)*1024} sc1", tag=('Y', s))
    for s in range(YD): ld_y(s)
    a(f"v_bfe_u32 v{t2}, v1, 2, 2")
    a(f"v_lshl_add_u32 v{t1}, v{t0}, 3, v{t2}")
    a(f"v_lshlrev_b32 v{t1}, 8, v{t1}")
    a(f"v_bfe_u32 v{t3}, v1, 4, 1")
    a(f"v_lshl_add_u32 v{t1}, v{t3}, 5, v{t1}")
    a(f"v_and_b32 v{t3}, 3, v1")
    a(f"v_lshl_add_u32 v{t1}, v{t3}, 3, v{t1}")
    for ft in range(4):
        a(f"v_xor_b32 v{t3}, {ft}, v{t2}")
        a(f"v_lshl_add_u32 v{VWF+ft}, v{t3}, 6, v{t1}")
    a.wait_vm('bias')
    for T in range(4):
        for j in range(4):
            s_ = AS[0] + 2*(4*T+j); d = ACC + 16*T + 4*j
            a(f"v_lshlrev_b32 v{d}, 16, v{s_}")
            a(f"v_and_b32 v{d+1}, 0xffff0000, v{s_}")
            a(f"v_lshlrev_b32 v{d+2}, 16, v{s_+1}")
            a(f"v_and_b32 v{d+3}, 0xffff0000, v{s_+1}")
    def rd_a(s, ft, rd):
        b = s >> 2; u = s & 3
        a(f"ds_read_b64_tr_b16 {vr(AS[s % 3]+4*ft+2*rd,2)}, v{VWF+ft} offset:{(b % 4)*16384 + u*4096 + rd*1024}", tag=('A', s, ft))
    a.wait_vm(('W', 0))
    a("s_barrier")
    for s in range(2):
        for ft in range(4):
            rd_a(s, ft, 0); rd_a(s, ft, 1)
    NS = 40
    mark(a)
    for s in range(NS):
        b = s >> 2; u = s & 3
        if OPT.get('fine') and u == 0 and b in (2, 4, 6, 8): mark(a)
        if u == 2 and b + 1 < 10:
            a.wait_vm(('W', b + 1))
            a("s_barrier")
            if b + 3 < 10: dma_w(b + 3)
        a.wait_vm(('Y', s))
        for ft in range(4):
            a.wait_lg(('A', s, ft))
            d = vr(ACC+16*ft, 16)
            a(f"v_mfma_f32_32x32x16_bf16 {d}, {vr(AS[s % 3]+4*ft,4)}, {vr(YR+4*(s % NY),4)}, {d}")
            if s + 2 < NS:
                rd_a(s + 2, ft, 0); rd_a(s + 2, ft, 1)
            if ft == 1 and s + YD < NS:
                ld_y(s + YD)
    mark(a)
    C0, C1 = 2, 3
    a(f"v_mov_b32 v{C0}, 0xc0135761")
    a(f"v_mov_b32 v{C1}, 0xbdd2d3e8")
    a(f"s_lshl_b32 s{T0}, s{S_RB}, 2")
    a(f"s_add_u32 s{T0}, s{T0}, s{S_W}")
    a(f"s_mul_i32 s{T0}, s{T0}, 108")
    a(f"s_lshl_b32 s{T1}, s{S_CJ}, 3")
    a(f"s_add_u32 s{T0}, s{T0}, s{T1}")
    a(f"s_lshl_b32 s{T0}, s{T0}, 10")
    a(f"s_add_u32 s{T0}, s{T0}, {WS_H}")
    a(f"s_add_u32 s{T1}, s{T0}, 4096")
    TU, TE = 20, 28
    k = 0
    for T in range(4):
        if T == 2:
            a(f"s_cmp_eq_u32 s{S_CJ}, 13")
            a(f"s_cbranch_scc1 {lbl}_pub")
        for jj in range(2):
            x = ACC + 16*T + 8*jj
            for e in range(8): a(f"v_mul_f32 v{TU+e}, v{x+e}, v{x+e}")
            for e in range(8): a(f"v_fma_f32 v{TU+e}, v{TU+e}, v{C1}, v{C0}")
            for e in range(8): a(f"v_mul_f32 v{TU+e}, v{TU+e}, v{x+e}")
            for e in range(8): a(f"v_exp_f32 v{TE+e}, v{TU+e}")
            for e in range(8): a(f"v_add_f32 v{TE+e}, 1.0, v{TE+e}")
            for e in range(8): a(f"v_rcp_f32 v{TE+e}, v{TE+e}")
            for e in range(8): a(f"v_mul_f32 v{TE+e}, v{TE+e}, v{x+e}")
            d = 40 + 4*(k % 4); k += 1
            for e in range(4): a(f"v_cvt_pk_bf16_f32 v{d+e}, v{TE+2*e}, v{TE+2*e+1}")
            so = T0 if T < 2 else T1
            a(f"buffer_store_dwordx4 {vr(d,4)}, v{VY}, s[{SRD_WS}:{SRD_WS+3}], s{so} offen offset:{((2*T+jj) % 4)*1024} sc1")
    a.label(f"{lbl}_pub")
    mark(a)
    if OPT['mega']:
        a(f"s_lshl_b32 s{T0}, s{S_RB}, 7")
        a(f"s_lshl_b32 s{T1}, s{S_CJ}, 2")
        a(f"s_add_u32 s{T0}, s{T0}, s{T1}")
        a(f"s_add_u32 s{T0}, s{T0}, {WS_FLAG + FH}")
        publish(a, T0, 12)
        a(f"s_branch {lbl}_end")
    a.label(f"{lbl}_skip")
    if OPT['mega']:
        a.reset_counters()
        a(f"s_lshl_b32 s{S_KO}, s{S_X}, 2")
        a(f"s_and_b32 s{T0}, s{S_I}, 3")
        a(f"s_add_u32 s{S_KO}, s{S_KO}, s{T0}")
        a(f"s_add_u32 s{S_KO}, s{S_KO}, 16")
        stage_repack(a, lbl + "_rp", S_KO)
        a.label(f"{lbl}_end")
    a.reset_counters()

PST = 3104
LK, LV, LONES = 0, 10*PST, 20*PST
def stage_attn(a, lbl):
    a(f"s_lshl_b32 s{T0}, s{S_X}, 1")
    a(f"s_and_b32 s{T1}, s{S_I}, 1")
    a(f"s_add_u32 s{S_CJ}, s{T0}, s{T1}")
    a(f"s_lshr_b32 s{S_RB}, s{S_I}, 1")
    HP = S_CJ
    VD, VK, VV, VT = 2, 3, 4, 6
    t0, t1, t2, t3, t4 = VT, VT+1, VT+2, VT+3, VT+4
    MK = 12
    Q0, Q1 = 20, 24
    KF = [28, 36]
    VF = [44, 48, 52, 56]
    PF = [60, 64, 68, 72]
    OA = 76
    LO = 92
    CS, NM = 96, 97
    MX = 98
    S = 104
    QH = 248
    if OPT['mega']:
        a(f"v_lshrrev_b32 v{t0}, 4, v1")
        a(f"s_sub_u32 s{T0}, s{S_RB}, 2")
        a(f"v_add_u32 v{t0}, s{T0}, v{t0}")
        a(f"v_and_b32 v{t1}, 15, v1")
        a(f"v_cmp_le_i32 s[{T4}:{T4+1}], 0, v{t0}")
        a(f"v_cmp_gt_u32 s[{T2}:{T2+1}], 15, v{t1}")
        a(f"s_and_b64 s[{T4}:{T4+1}], s[{T4}:{T4+1}], s[{T2}:{T2+1}]")
        a(f"s_mov_b64 s[{T2}:{T2+1}], 0xffffffffffff") if False else None
        a(f"s_mov_b32 s{T2}, -1")
        a(f"s_mov_b32 s{T2+1}, 0xffff")
        a(f"s_and_b64 s[{T4}:{T4+1}], s[{T4}:{T4+1}], s[{T2}:{T2+1}]")
        a(f"v_lshlrev_b32 v{t0}, 7, v{t0}")
        a(f"v_lshl_add_u32 v{t0}, v{t1}, 2, v{t0}")
        a(f"v_add_u32 v{t0}, {WS_FLAG + FQ}, v{t0}")
        wait_flags(a, t0, t1, T4)
        if OPT.get('fine'): mark(a)
    a(f"s_sub_u32 s{T0}, s{S_RB}, 2")
    a(f"s_lshl_b32 s{T0}, s{T0}, 7")
    a(f"s_mul_i32 s{T1}, s{S_W}, 96")
    a(f"s_add_u32 s{T0}, s{T0}, s{T1}")
    a(f"v_lshlrev_b32 v{t0}, 1, v1")
    a(f"v_add_u32 v{t0}, s{T0}, v{t0}")
    a(f"v_lshlrev_b32 v{t1}, 3, v{t0}")
    a(f"v_mov_b32 v{t2}, 0x7ffffff0")
    a(f"v_cmp_le_i32 s[{T4}:{T4+1}], 0, v{t0}")
    a(f"v_cndmask_b32 v{VD}, v{t2}, v{t1}, s[{T4}:{T4+1}]")
    a(f"s_mul_i32 s{T2}, s{HP}, {10*16384}")
    a(f"s_add_u32 s{T2}, s{T2}, {WS_QKV + 160*16384}")
    a(f"s_mul_i32 s{T3}, s{S_W}, 768")
    a("s_mov_b32 exec_hi, 0xffff")
    for ty in range(2):
        for p in range(10):
            a(f"s_add_u32 m0, s{T3}, {(LK if ty == 0 else LV) + p*PST}")
            a(f"s_add_u32 s{S_KX}, s{T2}, {(ty*160 + p)*16384}")
            a(f"buffer_load_dwordx4 v{VD}, s[{SRD_WS}:{SRD_WS+3}], s{S_KX} offen sc1 lds", tag=('kv', ty))
    a("s_mov_b32 exec_hi, -1")
    a(f"s_lshl_b32 s{T0}, s{S_RB}, 2")
    a(f"s_add_u32 s{T0}, s{T0}, s{S_W}")
    S_QB = 61
    a(f"s_mov_b32 s{S_QB}, s{T0}")
    a(f"v_and_b32 v{t0}, 31, v1")
    a(f"v_lshrrev_b32 v{t1}, 5, v1")
    a(f"s_lshl_b32 s{T1}, s{T0}, 8")
    a(f"v_lshlrev_b32 v{t2}, 3, v{t0}")
    a(f"v_add_u32 v{t2}, s{T1}, v{t2}")
    a(f"v_lshl_add_u32 v{t3}, v{t1}, 15, v{t2}")
    a(f"s_mul_i32 s{T2}, s{HP}, {10*16384}")
    a(f"s_add_u32 s{T2}, s{T2}, {WS_QKV}")
    QR = [Q0, QH]
    for hh in range(2):
        q0 = Q0 if hh == 0 else QH
        q1 = Q1 if hh == 0 else QH + 4
        a(f"s_add_u32 s{T1}, s{T2}, {hh*5*16384}")
        a(f"buffer_load_dwordx2 {vr(q0,2)}, v{t3}, s[{SRD_WS}:{SRD_WS+3}], s{T1} offen sc1", tag='q')
        a(f"s_add_u32 s{T1}, s{T1}, 16384")
        a(f"buffer_load_dwordx2 {vr(q0+2,2)}, v{t3}, s[{SRD_WS}:{SRD_WS+3}], s{T1} offen sc1", tag='q')
        a(f"s_add_u32 s{T1}, s{T1}, {3*16384}")
        a(f"buffer_load_dwordx2 {vr(q1,2)}, v{t2}, s[{SRD_WS}:{SRD_WS+3}], s{T1} offen sc1", tag='q')
    a(f"v_mov_b32 v{KF[0]}, 0x3f803f80")
    for r in range(1, 4): a(f"v_mov_b32 v{KF[0]+r}, 0x3f803f80")
    a(f"v_lshlrev_b32 v{t4}, 4, v0")
    a(f"v_add_u32 v{t4}, {LONES}, v{t4}")
    a(f"v_cmp_gt_u32 vcc, 208, v0")
    a(f"s_and_saveexec_b64 s[{T4}:{T4+1}], vcc")
    a(f"ds_write_b128 v{t4}, {vr(KF[0],4)}")
    a(f"s_mov_b64 exec, s[{T4}:{T4+1}]")
    a(f"v_lshlrev_b32 v{t2}, 2, v{t1}")
    a(f"v_sub_u32 v{t2}, v{t0}, v{t2}")
    for r in range(16):
        a(f"v_cmp_le_i32 s[{S_MASK+2*r}:{S_MASK+2*r+1}], {8*(r >> 2) + (r & 3)}, v{t2}")
    a(f"v_mov_b32 v{t3}, 0xffff")
    a(f"v_mov_b32 v{t4}, 0xffff0000")
    for q in range(8):
        a(f"v_cndmask_b32 v{MK+q}, 0, v{t3}, s[{S_MASK+4*q}:{S_MASK+4*q+1}]")
        a(f"v_cndmask_b32 v{KF[1]}, 0, v{t4}, s[{S_MASK+4*q+2}:{S_MASK+4*q+3}]")
        a(f"v_or_b32 v{MK+q}, v{MK+q}, v{KF[1]}")
    a(f"s_lshl_b32 s{T0}, s{S_W}, 8")
    a(f"v_lshlrev_b32 v{t2}, 3, v{t0}")
    a(f"v_add_u32 v{t2}, s{T0}, v{t2}")
    a(f"s_movk_i32 s{T1}, {2*PST}")
    a(f"v_mul_lo_u32 v{t3}, v{t1}, s{T1}")
    a(f"v_add_u32 v{VK}, v{t2}, v{t3}")
    VKX = 11
    a(f"v_add_u32 v{VKX}, {4*PST}, v{t2}")
    a(f"v_bfe_u32 v{t2}, v1, 4, 1")
    a(f"v_and_b32 v{t3}, 3, v1")
    a(f"v_lshl_add_u32 v{t2}, v{t2}, 2, v{t3}")
    a(f"v_bfe_u32 v{t3}, v1, 2, 2")
    a(f"v_lshl_add_u32 v{t3}, v{t1}, 2, v{t3}")
    a(f"v_lshlrev_b32 v{t3}, 3, v{t3}")
    a(f"v_add_u32 v{t3}, s{T0}, v{t3}")
    a(f"s_movk_i32 s{T1}, {PST}")
    a(f"v_mul_lo_u32 v{t4}, v{t2}, s{T1}")
    a(f"v_cmp_gt_u32 s[{T4}:{T4+1}], 5, v{t2}")
    for hh in range(2):
        vb = LV + hh*5*PST
        a(f"v_lshlrev_b32 v{KF[0]}, 5, v{t2}")
        a(f"v_add_u32 v{KF[0]}, {(vb - LONES) % 256}, v{KF[0]}")
        a(f"v_and_b32 v{KF[0]}, 255, v{KF[0]}")
        a(f"v_add_u32 v{KF[0]}, {LONES}, v{KF[0]}")
        a(f"v_add_u32 v{KF[0]+1}, {vb}, v{t4}")
        a(f"v_cndmask_b32 v{KF[0]}, v{KF[0]}, v{KF[0]+1}, s[{T4}:{T4+1}]")
        a(f"v_add_u32 v{VV+hh}, v{KF[0]}, v{t3}")
    a(f"v_mov_b32 v{CS}, 0x3ea52b5c")
    for st in range(2):
        a(f"v_mov_b32 v{KF[st]+6}, 0"); a(f"v_mov_b32 v{KF[st]+7}, 0")
    a(f"v_mov_b32 v{Q1+2}, 0"); a(f"v_mov_b32 v{Q1+3}, 0")
    a.wait_vm('q')
    a(f"v_cmp_gt_u32 s[{T4}:{T4+1}], 32, v1")
    for q in (Q1, Q1+1, QH+4, QH+5):
        a(f"v_cndmask_b32 v{q}, 0, v{q}, s[{T4}:{T4+1}]")
    a("s_waitcnt vmcnt(0) lgkmcnt(0)")
    a("s_barrier")
    a.reset_counters()
    mark(a)
    NEG = 0xf149f2ca
    for hh in range(2):
        if hh == 1:
            for r in range(4): a(f"v_mov_b32 v{Q0+r}, v{QH+r}")
            a(f"v_mov_b32 v{Q1}, v{QH+4}"); a(f"v_mov_b32 v{Q1+1}, v{QH+5}")
        ko = hh*5*PST
        def rd_k(tl):
            st = KF[tl % 2]
            a(f"ds_read_b64 {vr(st,2)}, v{VK} offset:{ko + tl*256}", tag=('k', tl))
            a(f"ds_read_b64 {vr(st+2,2)}, v{VK} offset:{ko + PST + tl*256}", tag=('k', tl))
            a(f"ds_read_b64 {vr(st+4,2)}, v{VKX} offset:{ko + tl*256}", tag=('k', tl))
        rd_k(0)
        for tl in range(9):
            if tl + 1 < 9: rd_k(tl + 1)
            a.wait_lg(('k', tl))
            st = KF[tl % 2]; d = vr(S+16*tl, 16)
            a(f"v_mfma_f32_32x32x16_bf16 {d}, {vr(st,4)}, {vr(Q0,4)}, 0")
            a(f"v_mfma_f32_32x32x16_bf16 {d}, {vr(st+4,4)}, {vr(Q1,4)}, {d}")
        a(f"s_cmp_ge_u32 s{S_QB}, 8")
        a(f"s_cbranch_scc1 {lbl}_full{hh}")
        for tl in range(8):
            a(f"s_cmp_ge_u32 s{S_QB}, {8-tl}")
            a(f"s_cbranch_scc1 {lbl}_full{hh}")
            a("s_nop 7"); a("s_nop 7")
            for r in range(16): a(f"v_mov_b32 v{S+16*tl+r}, {hex(NEG)}")
        a.label(f"{lbl}_full{hh}")
        a("s_nop 7"); a("s_nop 3")
        for r in range(16):
            a(f"v_cndmask_b32 v{S+r}, v{S+r}, v{S+128+r}, s[{S_MASK+2*r}:{S_MASK+2*r+1}]")
        for c in range(4):
            a(f"v_max3_f32 v{MX+c}, v{S+32*c}, v{S+32*c+1}, v{S+32*c+2}")
        for k in range(3, 31, 2):
            for c in range(4):
                a(f"v_max3_f32 v{MX+c}, v{MX+c}, v{S+32*c+k}, v{S+32*c+k+1}")
        for c in range(4):
            a(f"v_max_f32 v{MX+c}, v{MX+c}, v{S+32*c+31}")
        a(f"v_max3_f32 v{MX}, v{MX}, v{MX+1}, v{MX+2}")
        a(f"v_max_f32 v{MX}, v{MX}, v{MX+3}")
        a(f"v_mov_b32 v{MX+1}, v{MX}")
        a(f"v_permlane32_swap_b32 v{MX}, v{MX+1}")
        a(f"v_max_f32 v{MX}, v{MX}, v{MX+1}")
        a(f"v_mul_f32 v{NM}, v{CS}, v{MX}")
        a(f"v_sub_f32 v{NM}, 0, v{NM}")
        mark(a)
        def rd_v(tl, kk, slot):
            for rd in range(2):
                a(f"ds_read_b64_tr_b16 {vr(VF[slot]+2*rd,2)}, v{VV+hh} offset:{tl*256 + kk*128 + rd*64}", tag=('v', tl, kk))
        seq = [(1 + q // 2, q % 2) for q in range(14)]
        nv = 0
        vq = []
        def next_v(tl, kk):
            nonlocal nv
            slot = nv % 4; nv += 1
            rd_v(tl, kk, slot); return slot
        first = True
        pslot = 0
        def softmax_frag(src):
            nonlocal pslot
            p = PF[pslot % 4]; pslot += 1
            for e in range(8): a(f"v_fma_f32 v{src+e}, v{src+e}, v{CS}, v{NM}")
            for e in range(8): a(f"v_exp_f32 v{src+e}, v{src+e}")
            for e in range(4): a(f"v_cvt_pk_bf16_f32 v{p+e}, v{src+2*e}, v{src+2*e+1}")
            return p
        def pv(p, slot, tag):
            nonlocal first
            a.wait_lg(tag)
            c = "0" if first else vr(OA,16)
            a(f"v_mfma_f32_32x32x16_bf16 {vr(OA,16)}, {vr(VF[slot],4)}, {vr(p,4)}, {c}")
            first = False
        for (tl, kk) in seq:
            slot = next_v(tl, kk)
            p = softmax_frag(S + 16*tl + 8*kk)
            pv(p, slot, ('v', tl, kk))
        for kk in range(2):
            s0 = next_v(0, kk); s8 = next_v(8, kk)
            p = softmax_frag(S + 8*kk)
            p8 = PF[pslot % 4]; pslot += 1
            for e in range(4):
                a(f"v_and_b32 v{p8+e}, v{p+e}, v{MK+4*kk+e}")
            for e in range(4):
                a(f"v_xor_b32 v{p+e}, v{p+e}, v{p8+e}")
            pv(p, s0, ('v', 0, kk))
            pv(p8, s8, ('v', 8, kk))
        a(f"v_rcp_f32 v{NM}, v{OA+12}")
        for r in range(12): a(f"v_mul_f32 v{OA+r}, v{OA+r}, v{NM}")
        for e in range(4): a(f"v_cvt_pk_bf16_f32 v{PF[0]+e}, v{OA+2*e}, v{OA+2*e+1}")
        a(f"v_cvt_pk_bf16_f32 v{LO+2*hh}, v{OA+8}, v{OA+9}")
        a(f"v_cvt_pk_bf16_f32 v{LO+2*hh+1}, v{OA+10}, v{OA+11}")
        a(f"s_mul_i32 s{T0}, s{S_QB}, 40")
        a(f"s_lshl_b32 s{T1}, s{HP}, 1")
        a(f"s_add_u32 s{T1}, s{T1}, {hh}")
        a(f"s_add_u32 s{T0}, s{T0}, s{T1}")
        a(f"s_lshl_b32 s{T0}, s{T0}, 10")
        a(f"s_add_u32 s{T0}, s{T0}, {WS_O}")
        a(f"v_lshlrev_b32 v{t0}, 4, v1")
        a(f"buffer_store_dwordx4 {vr(PF[0],4)}, v{t0}, s[{SRD_WS}:{SRD_WS+3}], s{T0} offen sc1")
    mark(a)
    a(f"s_mul_i32 s{T0}, s{S_QB}, 40")
    a(f"s_lshr_b32 s{T1}, s{HP}, 1")
    a(f"s_add_u32 s{T0}, s{T0}, s{T1}")
    a(f"s_add_u32 s{T0}, s{T0}, 32")
    a(f"s_lshl_b32 s{T0}, s{T0}, 10")
    a(f"s_and_b32 s{T1}, s{HP}, 1")
    a(f"s_lshl_b32 s{T1}, s{T1}, 9")
    a(f"s_add_u32 s{T0}, s{T0}, s{T1}")
    a(f"s_add_u32 s{T0}, s{T0}, {WS_O}")
    a("s_mov_b32 exec_hi, 0")
    a(f"buffer_store_dwordx4 {vr(LO,4)}, v{t0}, s[{SRD_WS}:{SRD_WS+3}], s{T0} offen sc1")
    a("s_mov_b32 exec_hi, -1")
    if OPT['mega']:
        a(f"s_lshl_b32 s{T0}, s{S_RB}, 7")
        a(f"s_lshl_b32 s{T1}, s{HP}, 2")
        a(f"s_add_u32 s{T0}, s{T0}, s{T1}")
        a(f"s_add_u32 s{T0}, s{T0}, {WS_FLAG + FO}")
        publish(a, T0, t1)
    a.reset_counters()

def stage_final(a, lbl):
    a(f"s_lshr_b32 s{T0}, s{S_X}, 1")
    a(f"s_lshl_b32 s{T0}, s{T0}, 3")
    a(f"s_and_b32 s{T1}, s{S_I}, 7")
    a(f"s_add_u32 s{S_RB}, s{T0}, s{T1}")
    a(f"s_and_b32 s{T0}, s{S_X}, 1")
    a(f"s_lshl_b32 s{T0}, s{T0}, 2")
    a(f"s_lshr_b32 s{T1}, s{S_I}, 3")
    a(f"s_add_u32 s{S_CJ}, s{T0}, s{T1}")
    srd(a, SRD_A, P_B2, SIZES['B2'])
    srd(a, SRD_B, P_OUT, SIZES['OUT'])
    VW, VA, VB, VT = 2, 3, 4, 6
    t0, t1, t2, t3 = VT, VT+1, VT+2, VT+3
    VG, VO, VF = 10, 11, 12
    AS = [20, 40, 60]
    ACB, ACA = 80, 100
    TR = 120; NT = 28; TD = 20
    NSTEP = 74; HS = 54
    PAIR = 10240; NSL = 7
    NP = NSTEP // 2
    if OPT['mega']:
        a(f"v_lshlrev_b32 v{t2}, 2, v1")
        a(f"v_add_u32 v{t2}, {WS_FLAG + FW}, v{t2}")
        a(f"s_mov_b32 s{T4}, -1")
        a(f"s_mov_b32 s{T4+1}, 0xffff")
        wait_flags(a, t2, t3, T4)
    a(f"v_lshlrev_b32 v{VW}, 4, v1")
    a(f"s_mul_i32 s{T0}, s{S_CJ}, {WF_TILE}")
    a(f"s_mul_i32 s{T6}, s{S_W}, 2560")
    a(f"s_add_u32 s{T0}, s{T0}, s{T6}")
    a(f"s_add_u32 s{T7}, s{T0}, {WS_WF}")
    def dma_w(p):
        a(f"s_add_u32 m0, s{T6}, {(p % NSL)*PAIR}")
        a(f"s_add_u32 s{S_KW}, s{T7}, {p*PAIR}")
        a(f"buffer_load_dwordx4 v{VW}, s[{SRD_WS}:{SRD_WS+3}], s{S_KW} offen sc1 lds", tag=('W', p))
        a(f"buffer_load_dwordx4 v{VW}, s[{SRD_WS}:{SRD_WS+3}], s{S_KW} offen offset:1024 sc1 lds", tag=('W', p))
        a("s_mov_b32 exec_hi, 0")
        a(f"buffer_load_dwordx4 v{VW}, s[{SRD_WS}:{SRD_WS+3}], s{S_KW} offen offset:2048 sc1 lds", tag=('W', p))
        a("s_mov_b32 exec_hi, -1")
    for p in range(NSL - 1): dma_w(p)
    if OPT['mega'] and OPT['pf_wf']:
        nl = (WF_TILE - (NSL-1)*PAIR) // 128
        per = (nl + 7) // 8
        a(f"s_and_b32 s{T0}, s{S_I}, 7")
        a(f"s_mul_i32 s{T0}, s{T0}, {per*128}")
        a(f"s_mul_i32 s{T1}, s{S_CJ}, {WF_TILE}")
        a(f"s_add_u32 s{T0}, s{T0}, s{T1}")
        a(f"s_add_u32 s{T0}, s{T0}, {WS_WF + (NSL-1)*PAIR}")
        a(f"v_lshlrev_b32 v{t2}, 7, v0")
        a(f"v_add_u32 v{t2}, s{T0}, v{t2}")
        a(f"v_mov_b32 v{t3}, 0x7ffffff0")
        a(f"s_movk_i32 s{T1}, {per}")
        for k in range((per + 255) // 256):
            a(f"v_add_u32 v{t1}, {256*k}, v0")
            a(f"v_cmp_gt_u32 s[{T4}:{T4+1}], s{T1}, v{t1}")
            a(f"v_cndmask_b32 v{t1}, v{t3}, v{t2}, s[{T4}:{T4+1}]")
            a(f"buffer_load_dword v14, v{t1}, s[{SRD_WS}:{SRD_WS+3}], 0 offen sc1", tag='touch')
            a(f"v_add_u32 v{t2}, {256*128}, v{t2}")
    a(f"v_lshrrev_b32 v{t0}, 4, v1")
    a(f"v_lshlrev_b32 v{t1}, 3, v{t0}")
    a(f"s_mul_i32 s{T0}, s{S_CJ}, 160")
    a(f"v_add_u32 v{t1}, s{T0}, v{t1}")
    for F in range(5):
        a(f"buffer_load_dwordx2 {vr(AS[0]+2*F,2)}, v{t1}, s[{SRD_A}:{SRD_A+3}], 0 offen offset:{32*F}", tag='bias')
    if OPT['mega']:
        a(f"s_lshr_b32 s{T0}, s{S_RB}, 1")
        a(f"s_lshl_b32 s{T0}, s{T0}, 7")
        a(f"s_add_u32 s{T1}, s{T0}, {WS_FLAG + FH}")
        a(f"v_lshlrev_b32 v{t2}, 2, v1")
        a(f"v_add_u32 v{t2}, s{T1}, v{t2}")
        a(f"s_mov_b64 s[{T4}:{T4+1}], 0x3fff")
        a(f"s_add_u32 s{T1}, s{T0}, {WS_FLAG + FO}")
        a(f"v_and_b32 v{VF}, 15, v1")
        a(f"v_lshlrev_b32 v{VF}, 2, v{VF}")
        a(f"v_add_u32 v{VF}, s{T1}, v{VF}")
        vm = list(a.vm)
        wait_flags(a, t2, t3, T4)
        a.vm = vm
        if OPT.get('fine'): mark(a)
    a(f"v_lshrrev_b32 v{t1}, 5, v1")
    a(f"v_bfe_u32 v{t2}, v1, 4, 1")
    a(f"v_lshlrev_b32 v{t1}, 10, v{t1}")
    a(f"v_lshl_add_u32 v{t1}, v{t2}, 9, v{t1}")
    a(f"v_and_b32 v{t2}, 15, v1")
    a(f"s_and_b32 s{T0}, s{S_W}, 1")
    a(f"s_lshl_b32 s{T0}, s{T0}, 4")
    a(f"v_add_u32 v{t3}, s{T0}, v{t2}")
    a(f"v_lshl_add_u32 v{VB}, v{t3}, 4, v{t1}")
    a(f"s_lshl_b32 s{T0}, s{S_RB}, 1")
    a(f"s_lshr_b32 s{T1}, s{S_W}, 1")
    a(f"s_add_u32 s{T0}, s{T0}, s{T1}")
    S_HB, S_OB = 62, 63
    a(f"s_mul_i32 s{T1}, s{T0}, {108*1024}")
    a(f"s_add_u32 s{S_HB}, s{T1}, {WS_H}")
    a(f"s_mul_i32 s{T1}, s{T0}, {40*1024}")
    a(f"s_add_u32 s{S_OB}, s{T1}, {WS_O}")
    def ld_t(s):
        if s < HS: sb, k = S_HB, s
        else: sb, k = S_OB, s - HS
        if k % 2 == 0 and k > 0:
            a(f"s_add_u32 s{sb}, s{sb}, 4096")
        a(f"buffer_load_dwordx4 {vr(TR+4*(s % NT),4)}, v{VB}, s[{SRD_WS}:{SRD_WS+3}], s{sb} offen offset:{(k % 2)*2048} sc1", tag=('T', s))
    for s in range(TD): ld_t(s)
    a(f"s_lshl_b32 s{T0}, s{S_RB}, 6")
    a(f"s_lshl_b32 s{T1}, s{S_W}, 4")
    a(f"s_add_u32 s{T0}, s{T0}, s{T1}")
    a(f"v_add_u32 v{t2}, s{T0}, v{t2}")
    a(f"v_lshlrev_b32 v{t3}, 2, v{t2}")
    a(f"v_add_u32 v{t3}, {WS_G}, v{t3}")
    a(f"buffer_load_dword v{VG}, v{t3}, s[{SRD_WS}:{SRD_WS+3}], 0 offen sc1", tag='g')
    a(f"s_movk_i32 s{T1}, 1280")
    a(f"v_mul_lo_u32 v{t2}, v{t2}, s{T1}")
    a(f"s_mul_i32 s{T0}, s{S_CJ}, 160")
    a(f"v_lshl_add_u32 v{t2}, v{t0}, 3, v{t2}")
    a(f"v_add_u32 v{VO}, s{T0}, v{t2}")
    a(f"v_lshrrev_b32 v{t1}, 5, v1")
    a(f"v_bfe_u32 v{t2}, v1, 4, 1")
    a(f"v_lshlrev_b32 v{t1}, 4, v{t1}")
    a(f"v_lshl_add_u32 v{t1}, v{t2}, 2, v{t1}")
    a(f"v_bfe_u32 v{t2}, v1, 2, 2")
    a(f"v_add_u32 v{t1}, v{t1}, v{t2}")
    a(f"v_mul_u32_u24 v{t1}, 160, v{t1}")
    a(f"v_and_b32 v{t2}, 3, v1")
    a(f"v_lshl_add_u32 v{VA}, v{t2}, 3, v{t1}")
    VA2 = 5
    a(f"v_add_u32 v{VA2}, {4*PAIR}, v{VA}")
    a.wait_vm('bias')
    for F in range(5):
        s_ = AS[0] + 2*F; d = ACB + 4*F
        a(f"v_lshlrev_b32 v{d}, 16, v{s_}")
        a(f"v_and_b32 v{d+1}, 0xffff0000, v{s_}")
        a(f"v_lshlrev_b32 v{d+2}, 16, v{s_+1}")
        a(f"v_and_b32 v{d+3}, 0xffff0000, v{s_+1}")
    def rd_a(s, F, rd):
        p = s >> 1; u = s & 1
        sl = p % NSL
        base, off = (VA, sl*PAIR) if sl < 4 else (VA2, (sl-4)*PAIR)
        a(f"ds_read_b64_tr_b16 {vr(AS[s % 3]+4*F+2*rd,2)}, v{base} offset:{off + u*5120 + rd*1280 + F*32}", tag=('A', s, F))
    a.wait_vm(('W', 0))
    a("s_barrier")
    for s in range(2):
        for F in range(5):
            rd_a(s, F, 0); rd_a(s, F, 1)
    mark(a)
    POLL = HS - TD - 6
    for s in range(NSTEP):
        p = s >> 1; u = s & 1
        if s == HS: mark(a)
        if u == 0 and p + 1 < NP:
            a.wait_vm(('W', p + 1))
            a("s_barrier")
            if p + NSL - 1 < NP: dma_w(p + NSL - 1)
        if OPT['mega'] and s == POLL:
            a(f"buffer_load_dword v{VF+1}, v{VF}, s[{SRD_WS}:{SRD_WS+3}], 0 offen sc1", tag='fo')
        if OPT['mega'] and s + TD == HS:
            L = uid("fo")
            a.wait_vm('fo')
            vm_keep = list(a.vm)
            a.label(L)
            a(f"v_cmp_ne_u32 vcc, s{S_NONCE}, v{VF+1}")
            a("s_nop 4")
            a(f"s_cbranch_vccz {L}_ok")
            a("s_sleep 1")
            a(f"buffer_load_dword v{VF+1}, v{VF}, s[{SRD_WS}:{SRD_WS+3}], 0 offen sc1")
            a("s_waitcnt vmcnt(0)")
            a(f"s_branch {L}")
            a.label(f"{L}_ok")
            a.vm = vm_keep
        a.wait_vm(('T', s))
        for F in range(5):
            a.wait_lg(('A', s, F))
            acc = (ACB if s < HS else ACA) + 4*F
            d = vr(acc, 4)
            c = "0" if s == HS else d
            a(f"v_mfma_f32_16x16x32_bf16 {d}, {vr(AS[s % 3]+4*F,4)}, {vr(TR+4*(s % NT),4)}, {c}")
            if s + 2 < NSTEP:
                rd_a(s + 2, F, 0); rd_a(s + 2, F, 1)
            if F == 2 and s + TD < NSTEP:
                ld_t(s + TD)
    mark(a)
    a.wait_vm('g')
    a(f"v_sub_f32 v{t0}, 1.0, v{VG}")
    for r in range(20):
        a(f"v_mul_f32 v{ACB+r}, v{ACB+r}, v{t0}")
    for r in range(20):
        a(f"v_fmac_f32 v{ACB+r}, v{ACA+r}, v{VG}")
    for F in range(5):
        d = AS[0] + 2*F
        a(f"v_cvt_pk_bf16_f32 v{d}, v{ACB+4*F}, v{ACB+4*F+1}")
        a(f"v_cvt_pk_bf16_f32 v{d+1}, v{ACB+4*F+2}, v{ACB+4*F+3}")
        a(f"buffer_store_dwordx2 {vr(d,2)}, v{VO}, s[{SRD_B}:{SRD_B+3}], 0 offen offset:{32*F}")
    a.reset_counters()

def tlb_touch(a):
    a("v_lshlrev_b32 v250, 21, v1")
    a(f"v_add_u32 v250, {0x1FFF80}, v250")
    a(f"v_mov_b32 v251, 0x7ffffff0")
    a(f"v_cmp_gt_u32 s[{T4}:{T4+1}], 12, v1")
    a(f"v_cndmask_b32 v250, v251, v250, s[{T4}:{T4+1}]")
    a(f"buffer_load_dword v253, v250, s[{SRD_WS}:{SRD_WS+3}], 0 offen", tag='touch')
    a("v_and_b32 v250, 1, v1")
    a("v_lshlrev_b32 v250, 21, v250")
    for p in (P_OUT, P_W1, P_W2):
        a(f"global_load_dword v253, v250, s[{p}:{p+1}]", tag='touch')
    a("v_mov_b32 v250, 0")
    for p in (P_WO, P_B1, P_B2):
        a(f"global_load_dword v253, v250, s[{p}:{p+1}]", tag='touch')

def start_prefetch(a, role):
    if OPT.get('tlbt'): tlb_touch(a)
    if OPT['pf_code']:
        prefetch_code(a, "L_endA" if role == 'A' else "L_endB", 1 if role == 'A' else 2)
    if role == 'B' and OPT['pf_w1']:
        L = uid("pw")
        a(f"s_lshr_b32 s{T1}, s{S_I}, 2")
        a(f"s_cmp_ge_u32 s{T1}, 7")
        a(f"s_cbranch_scc1 {L}")
        a(f"s_and_b32 s{T0}, s{S_X}, 1")
        a(f"s_mul_i32 s{T0}, s{T0}, 7")
        a(f"s_add_u32 s{T0}, s{T0}, s{T1}")
        a(f"s_lshl_b32 s{T0}, s{T0}, 8")
        a(f"s_and_b32 s{T1}, s{S_I}, 3")
        a(f"s_mul_i32 s{T1}, s{T1}, {160*3456}")
        a(f"s_add_u32 s{T0}, s{T0}, s{T1}")
        srd(a, SRD_C, P_W1, SIZES['W1'])
        a("v_lshrrev_b32 v250, 1, v0")
        a(f"s_movk_i32 s{T1}, 3456")
        a(f"v_mul_lo_u32 v250, v250, s{T1}")
        a("v_and_b32 v251, 1, v0")
        a("v_lshl_add_u32 v250, v251, 7, v250")
        a(f"v_add_u32 v250, s{T0}, v250")
        vm = list(a.vm)
        a(f"buffer_load_dword v253, v250, s[{SRD_C}:{SRD_C+3}], 0 offen")
        a(f"v_add_u32 v250, {128*3456}, v250")
        a("v_mov_b32 v251, 0x7ffffff0")
        a(f"v_cmp_gt_u32 s[{T4}:{T4+1}], 64, v0")
        a(f"v_cndmask_b32 v250, v251, v250, s[{T4}:{T4+1}]")
        a(f"buffer_load_dword v253, v250, s[{SRD_C}:{SRD_C+3}], 0 offen")
        a.vm = vm
        a.label(L)

def build_multi():
    LDS = 81920
    ks = []
    def mk(name, fa, fb):
        a = Asm()
        a("s_cmp_ge_u32 s2, 512")
        a(f"s_cbranch_scc1 {name}_end")
        prologue(a)
        kidx = len(ks)
        stamp(a, kidx, 0)
        CTX['k'] = kidx; CTX['slot'] = 0
        a("s_cmp_ge_u32 s2, 256")
        a(f"s_cbranch_scc1 {name}_b")
        for n, f in enumerate(fa):
            f(a, name + "_" + f.__name__)
            if STAMPS: a("s_waitcnt vmcnt(0)"); mark(a)
        a(f"s_branch {name}_end")
        a.label(f"{name}_b")
        a.reset_counters()
        CTX['slot'] = 0
        for n, f in enumerate(fb):
            f(a, name + "_" + f.__name__)
            if STAMPS: a("s_waitcnt vmcnt(0)"); mark(a)
        a.label(f"{name}_end")
        ks.append((name, a.text()))
    def rp_multi(a, lbl):
        a(f"s_cmp_ge_u32 s{S_IDX}, {NRP}")
        a(f"s_cbranch_scc1 {lbl}_no")
        a(f"s_mov_b32 s{S_KO}, s{S_IDX}")
        stage_repack(a, lbl, S_KO)
        a.label(f"{lbl}_no")
    if OPT.get('split'):
        mk("k1_kernel", [stage_qkv], [])
        mk("k2_kernel", [], [stage_ln, rp_multi])
        mk("k3_kernel", [stage_attn], [])
        mk("k4_kernel", [], [stage_ffn1])
        mk("k5_kernel", [], [stage_final])
        return ks, LDS
    mk("k1_kernel", [stage_qkv], [stage_ln, rp_multi])
    mk("k2_kernel", [stage_attn], [stage_ffn1])
    mk("k3_kernel", [], [stage_final])
    return ks, LDS

def build_mega():
    OPT['mega'] = True
    LDS = OPT.get('lds', 81920)
    name = NAME + "_kernel"
    a = Asm()
    a("s_cmp_ge_u32 s2, 512")
    a("s_cbranch_scc1 L_end")
    prologue(a)
    nonce_post(a)
    if OPT.get('spin'):
        a("s_memrealtime s[94:95]")
        a("s_waitcnt lgkmcnt(0)")
        a("s_mov_b32 s63, s94") if False else None
        a("v_mov_b32 v249, s94")
    stamp(a, 0, 0); CTX['k'] = 0; CTX['slot'] = 0
    if STAMPS:
        a("s_getreg_b32 s98, hwreg(HW_REG_HW_ID)")
        a("s_getreg_b32 s99, hwreg(HW_REG_XCC_ID)")
        a("s_and_b32 s98, s98, 0xffff")
        a("s_and_b32 s99, s99, 0xf")
        a("s_lshl_b32 s99, s99, 16")
        a("s_or_b32 s98, s98, s99")
        a("s_lshl_b32 s97, s2, 7")
        a(f"s_add_u32 s97, s97, {WS_STAMP + 15*4}")
        a("v_mov_b32 v254, s98")
        a(f"buffer_store_dword v254, off, s[{SRD_WS}:{SRD_WS+3}], s97")
        a.vm.pop()
    dbgtime(a, 1, OPT.get('wa', 0)); dbgtime(a, 7, OPT.get('wb', 256))
    a("s_cmp_ge_u32 s2, 256")
    a("s_cbranch_scc1 L_roleB")
    if OPT.get('prioA'): a(f"s_setprio {OPT['prioA']}")
    stage_qkv(a, "qkv"); mark(a); dbgtime(a, 2, OPT.get('wa', 0))
    if OPT.get('prioA'): a(f"s_setprio {OPT.get('prioA2', 0)}")
    stage_attn(a, "attn"); mark(a); dbgtime(a, 3, OPT.get('wa', 0))
    a("s_endpgm")
    a.label("L_endA")
    a.label("L_roleB")
    a.reset_counters(); CTX['slot'] = 0
    if OPT.get('prioB'): a(f"s_setprio {OPT['prioB']}")
    stage_ln(a, "ln"); mark(a); dbgtime(a, 8, OPT.get('wb', 256))
    stage_ffn1(a, "ffn1"); mark(a); dbgtime(a, 10, OPT.get('wb', 256))
    stage_final(a, "fin")
    if STAMPS or OPT.get('dbgtime'): a("s_waitcnt vmcnt(0)")
    mark(a); dbgtime(a, 11, OPT.get('wb', 256))
    if OPT.get('spin'):
        a("s_cmp_lg_u32 s2, 256")
        a("s_cbranch_scc1 L_endB")
        a("s_waitcnt vmcnt(0)")
        a("v_readfirstlane_b32 s90, v249")
        a("s_memrealtime s[92:93]")
        a("s_waitcnt lgkmcnt(0)")
        a("s_sub_u32 s91, s92, s90")
        a(f"s_mul_i32 s91, s91, {OPT['spin'] + 1}")
        a.label("L_spin")
        a("s_memrealtime s[92:93]")
        a("s_waitcnt lgkmcnt(0)")
        a("s_sub_u32 s93, s92, s90")
        a("s_cmp_lt_u32 s93, s91")
        a("s_cbranch_scc1 L_spin")
    a.label("L_endB")
    a.label("L_end")
    return [(name, a.text())], LDS

def header_comment():
    ref = open("cdna_kernels/" + NAME + ".s.ref").read().split("\n")
    return [l for l in ref if l.startswith(";") and "@launch" not in l and "Override" not in l and "grid=ceil" not in l]

def emit(ks, LDS, grid=512):
    s = "\n".join(header_comment()) + "\n"
    if len(ks) == 1:
        s += f"; @launch grid=({grid},1,1) block=(256,1,1) lds={LDS}\n"
    else:
        for name, _ in ks:
            s += f"; @launch kernel={name} grid=({grid},1,1) block=(256,1,1) lds={LDS}\n"
    s += '.amdgcn_target "amdgcn-amd-amdhsa--gfx950"\n.text\n'
    for name, body in ks:
        s += kernel_text(name, body, grid, LDS)
    s += '.section .rodata,"a"\n'
    for name, _ in ks:
        s += ".p2align 6\n" + descriptor(name)
    return s

if __name__ == "__main__":
    mode = sys.argv[1] if len(sys.argv) > 1 else "multi"
    if "stamps" in sys.argv: STAMPS = True
    for arg in sys.argv[2:]:
        if "=" in arg:
            k, v = arg.split("="); OPT[k] = int(v)
    ks, LDS = build_multi() if mode == "multi" else build_mega()
    sys.stdout.write(emit(ks, LDS))
```

```python
import sys
import gen as G
from gen import mark4
from gen import (Asm, NAME, SIZES, srd, vr, uid, OPT, mark, stamp, CTX, dpp_sum16, WF_TILE,
                 P_AX, P_WQKV, P_WO, P_W1, P_B1, P_W2, P_B2, P_GW, P_OUT, P_DBG, P_WS,
                 SRD_A, SRD_B, SRD_WS, SRD_C, S_W, S_IDX, S_X, S_I, T0, T1, T2, T3, T4, T5, T6, T7,
                 S_RB, S_CJ, S_MASK, S_NONCE, nonce_post, nonce_get, publish, wait_flags)

WS_ST   = 0x0000000
WS_CS   = 0x0010000
WS_B1   = 0x0012000
WS_G    = G.WS_G
WS_QKV  = G.WS_QKV
WS_H, WS_O, WS_WF, WS_FLAG = G.WS_H, G.WS_O, G.WS_WF, G.WS_FLAG
FS, FW, FQ, FH, FO, FC = 0, 2048, 3072, 5120, 7168, 9216
PST = 3104
LB = 98304
LK, LV, LONES = LB, LB + 10*PST, LB + 20*PST
RING = [0, 40960, 81920, 122880]
WSLOT = 40960
SRD_D = 60
S_KX, S_KQ, S_K1 = 58, 59, 80
S_QB = 61
S_FHO, S_HBO = 86, 87
S_ARB, S_AHP, S_LW = 88, 89, 90

V_FLG = 250
def flag_setup(a):
    a(f"v_mov_b32 v{V_FLG}, 0x7ffffff0")
    a(f"v_cmp_eq_u32 s[{T4}:{T4+1}], 0, v0")
    a(f"v_cndmask_b32 v{V_FLG}, v{V_FLG}, 0, s[{T4}:{T4+1}]")

def flag_store(a, sflag, v):
    a(f"v_mov_b32 v{v}, s{S_NONCE}")
    a(f"buffer_store_dword v{v}, v{V_FLG}, s[{SRD_WS}:{SRD_WS+3}], s{sflag} offen sc1", tag='flag')

def poll_issue(a, voff, vval, tag):
    a(f"buffer_load_dword v{vval}, v{voff}, s[{SRD_WS}:{SRD_WS+3}], 0 offen sc1", tag=tag)

def poll_check(a, voff, vval, tag):
    L = uid("pc")
    a.wait_vm(tag)
    keep = list(a.vm)
    a.label(L)
    a(f"v_cmp_ne_u32 vcc, s{S_NONCE}, v{vval}")
    a("s_nop 4")
    a(f"s_cbranch_vccz {L}_ok")
    a("s_sleep 1")
    a(f"buffer_load_dword v{vval}, v{voff}, s[{SRD_WS}:{SRD_WS+3}], 0 offen sc1")
    a("s_waitcnt vmcnt(0)")
    a(f"s_branch {L}")
    a.label(f"{L}_ok")
    a.vm = keep

def poll_recheck(a, voff, vval):
    L = uid("pr")
    keep = list(a.vm)
    a.label(L)
    a(f"v_cmp_ne_u32 vcc, s{S_NONCE}, v{vval}")
    a("s_nop 4")
    a(f"s_cbranch_vccz {L}_ok")
    a("s_sleep 1")
    a(f"buffer_load_dword v{vval}, v{voff}, s[{SRD_WS}:{SRD_WS+3}], 0 offen sc1")
    a("s_waitcnt vmcnt(0)")
    a(f"s_branch {L}")
    a.label(f"{L}_ok")
    a.vm = keep

def prologue(a):
    a("s_load_dwordx16 s[4:19], s[0:1], 0")
    a("s_load_dwordx8 s[20:27], s[0:1], 64")
    a("v_lshrrev_b32 v2, 6, v0")
    a("v_and_b32 v1, 63, v0")
    a(f"v_readfirstlane_b32 s{S_W}, v2")
    a(f"s_and_b32 s{S_X}, s2, 7")
    a(f"s_lshr_b32 s{S_I}, s2, 3")
    a(f"s_lshr_b32 s{T0}, s{S_X}, 2")
    a(f"s_lshl_b32 s{T0}, s{T0}, 3")
    a(f"s_and_b32 s{T1}, s{S_I}, 7")
    a(f"s_add_u32 s{S_RB}, s{T0}, s{T1}")
    a(f"s_and_b32 s{T0}, s{S_X}, 3")
    a(f"s_lshl_b32 s{T0}, s{T0}, 2")
    a(f"s_lshr_b32 s{T1}, s{S_I}, 3")
    a(f"s_add_u32 s{S_CJ}, s{T0}, s{T1}")
    a("s_waitcnt lgkmcnt(0)")
    srd(a, SRD_WS, P_WS, G.WS_SIZE)
    flag_setup(a)

RX, RG, RT, RO = 160, 168, 176, 186
VS = 128
S_ST, S_RPO, S_RPM = 82, 83, 84

def pre_address(a, lbl, two=False, rows=True):
    t0, t1, t2, t3, t4, t5 = range(RT, RT+6)
    if rows: row_address(a, two)
    repack_address(a, lbl)

def row_address(a, two):
    t0, t1, t2, t3, t4, t5 = range(RT, RT+6)
    srd(a, SRD_D, P_GW, SIZES['GW'])
    a(f"s_lshl_b32 s{T0}, s{S_RB}, 7")
    a(f"s_lshl_b32 s{T1}, s{S_CJ}, 3")
    a(f"s_add_u32 s{T0}, s{T0}, s{T1}")
    a(f"s_add_u32 s{T0}, s{T0}, s{S_W}")
    if two: a(f"s_sub_u32 s{T0}, s{T0}, 4")
    a(f"s_mul_i32 s{T1}, s{T0}, 1280")
    a(f"v_lshlrev_b32 v{RO+1}, 4, v1")
    a(f"v_add_u32 v{RO}, s{T1}, v{RO+1}")
    a(f"v_mov_b32 v{t0}, 0x7ffffff0")
    a(f"v_cmp_gt_u32 s[{T4}:{T4+1}], 16, v1")
    a(f"v_add_u32 v{t1}, 1024, v{RO}")
    a(f"v_cndmask_b32 v{RO+2}, v{t0}, v{t1}, s[{T4}:{T4+1}]")
    a(f"v_add_u32 v{t1}, 1024, v{RO+1}")
    a(f"v_cndmask_b32 v{RO+3}, v{t0}, v{t1}, s[{T4}:{T4+1}]")
    a(f"s_mov_b32 s85, s{T0}")

def repack_address(a, lbl):
    t0, t1, t2, t3, t4, t5 = range(RT, RT+6)
    a(f"s_mul_i32 s{T0}, s{S_I}, 3")
    a(f"s_lshl_b32 s{T1}, s{S_I}, 1")
    a(f"s_add_u32 s{T1}, s{T1}, 10")
    a(f"s_cmp_lt_u32 s{S_I}, 10")
    a(f"s_cselect_b32 s{T0}, s{T0}, s{T1}")
    a(f"s_cselect_b32 s{T1}, 3, 2")
    a(f"s_sub_u32 s{T2}, s{S_W}, 4")
    a(f"s_add_u32 s{S_ST}, s{T0}, s{T2}")
    a(f"s_cmp_lt_u32 s{T2}, s{T1}")
    a(f"s_cselect_b32 s{S_ST}, s{S_ST}, 0x100")
    a(f"s_cselect_b32 s{S_RPO}, 0, 0x7fff0000")
    a(f"s_mul_i32 s{T2}, s{T2}, 5120")
    a(f"s_add_u32 s{T2}, s{T2}, {RPL}")
    a(f"s_cselect_b32 s{S_RPM}, s{T2}, s{T2}") if False else None
    a(f"s_cmp_lt_u32 s{S_ST}, 74")
    a(f"s_cselect_b32 s{S_RPM}, s{T2}, {163840}")
    for n in range(5): a(f"v_mov_b32 v{VS+n}, 0")
    srd(a, SRD_C, P_W2, SIZES['W2'])
    a(f"s_cmp_ge_u32 s{S_ST}, 74")
    a(f"s_cbranch_scc1 {lbl}_go")
    a(f"s_movk_i32 s{T6}, 6554")
    a(f"s_movk_i32 s{T7}, 1280")
    a(f"s_mul_i32 s{T2}, s{S_X}, 160")
    a(f"s_cmp_ge_u32 s{S_ST}, 54")
    a(f"s_cbranch_scc1 {lbl}_wo")
    a(f"s_lshl_b32 s{T3}, s{S_ST}, 5")
    for n in range(5):
        a(f"v_add_u32 v{t0}, {64*n}, v1")
        a(f"v_mul_u32_u24 v{t1}, s{T6}, v{t0}")
        a(f"v_lshrrev_b32 v{t1}, 16, v{t1}")
        a(f"v_mul_u32_u24 v{t2}, 10, v{t1}")
        a(f"v_sub_u32 v{t2}, v{t0}, v{t2}")
        a(f"v_add_u32 v{t1}, s{T3}, v{t1}")
        a(f"v_mul_lo_u32 v{t1}, v{t1}, s{T7}")
        a(f"v_lshl_add_u32 v{t1}, v{t2}, 4, v{t1}")
        a(f"v_add_u32 v{VS+n}, s{T2}, v{t1}")
    a(f"s_branch {lbl}_go")
    a.label(f"{lbl}_wo")
    srd(a, SRD_C, P_WO, SIZES['WO'])
    a(f"s_sub_u32 s{T3}, s{S_ST}, 54")
    a(f"s_lshl_b32 s{T3}, s{T3}, 1")
    for n in range(5):
        a(f"v_add_u32 v{t0}, {64*n}, v1")
        a(f"v_mul_u32_u24 v{t1}, s{T6}, v{t0}")
        a(f"v_lshrrev_b32 v{t1}, 16, v{t1}")
        a(f"v_mul_u32_u24 v{t2}, 10, v{t1}")
        a(f"v_sub_u32 v{t2}, v{t0}, v{t2}")
        a(f"v_lshrrev_b32 v{t3}, 4, v{t1}")
        a(f"v_add_u32 v{t3}, s{T3}, v{t3}")
        a(f"v_and_b32 v{t1}, 15, v{t1}")
        a(f"v_mul_u32_u24 v{t4}, 20, v{t3}")
        a(f"v_add_u32 v{t4}, v{t4}, v{t1}")
        a(f"v_cmp_gt_u32 s[98:99], 32, v{t3}")
        a(f"v_subrev_u32 v{t3}, 32, v{t3}")
        a(f"v_lshlrev_b32 v{t3}, 2, v{t3}")
        a(f"v_bfe_u32 v{t5}, v{t1}, 2, 1")
        a(f"v_lshl_add_u32 v{t3}, v{t5}, 1, v{t3}")
        a(f"v_lshrrev_b32 v{t5}, 3, v{t1}")
        a(f"v_add_u32 v{t3}, v{t3}, v{t5}")
        a(f"v_mul_u32_u24 v{t3}, 20, v{t3}")
        a(f"v_and_b32 v{t1}, 3, v{t1}")
        a(f"v_add3_u32 v{t3}, v{t3}, v{t1}, 16")
        a(f"v_cndmask_b32 v{t1}, v{t3}, v{t4}, s[98:99]")
        a(f"v_mul_lo_u32 v{t1}, v{t1}, s{T7}")
        a(f"v_lshl_add_u32 v{t1}, v{t2}, 4, v{t1}")
        a(f"v_add_u32 v{VS+n}, s{T2}, v{t1}")
    a.label(f"{lbl}_go")

def row_issue2(a):
    a(f"v_add_u32 v{RO}, {4*1280}, v{RO}")
    a(f"v_mov_b32 v{RT}, 0x7ffffff0")
    a(f"v_add_u32 v{RT+1}, 1024, v{RO}")
    a(f"v_cmp_gt_u32 s[100:101], 16, v1")
    a(f"v_cndmask_b32 v{RO+2}, v{RT}, v{RT+1}, s[100:101]")
    a(f"buffer_load_dwordx4 {vr(RX2,4)}, v{RO}, s[{SRD_A}:{SRD_A+3}], 0 offen", tag='pl2')
    a(f"buffer_load_dwordx4 {vr(RX2+4,4)}, v{RO+2}, s[{SRD_A}:{SRD_A+3}], 0 offen", tag='pl2')

RX2 = 192
def pre_issue(a, rows=True):
    if rows:
        a(f"buffer_load_dwordx4 {vr(RX,4)}, v{RO}, s[{SRD_A}:{SRD_A+3}], 0 offen", tag='pl')
        a(f"buffer_load_dwordx4 {vr(RX+4,4)}, v{RO+2}, s[{SRD_A}:{SRD_A+3}], 0 offen", tag='pl')
        a(f"buffer_load_dwordx4 {vr(RG,4)}, v{RO+1}, s[{SRD_D}:{SRD_D+3}], 0 offen", tag='pl')
        a(f"buffer_load_dwordx4 {vr(RG+4,4)}, v{RO+3}, s[{SRD_D}:{SRD_D+3}], 0 offen", tag='pl')
    for n in range(5):
        a(f"s_add_u32 m0, s{S_RPM}, {n*1024}")
        a(f"buffer_load_dwordx4 v{VS+n}, s[{SRD_C}:{SRD_C+3}], s{S_RPO} offen lds", tag='pl')

def pre_thunks(a, RX=RX, tag='pl', VO=RO):
    su, sq, dt, one, t0, t1, t2 = range(RT, RT+7)
    T = []
    I = lambda txt: T.append(lambda: a(txt))
    T.append(lambda: a.wait_vm(tag))
    I(f"v_mov_b32 v{one}, 0x3f803f80")
    I(f"v_mov_b32 v{su}, 0"); I(f"v_mov_b32 v{sq}, 0"); I(f"v_mov_b32 v{dt}, 0")
    for d in range(8):
        I(f"v_dot2c_f32_bf16 v{su}, v{RX+d}, v{one}")
        I(f"v_dot2c_f32_bf16 v{sq}, v{RX+d}, v{RX+d}")
        I(f"v_dot2c_f32_bf16 v{dt}, v{RX+d}, v{RG+d}")
    for r in (8, 4, 2, 1):
        for v in (su, sq, dt):
            I(f"v_add_f32_dpp v{v}, v{v}, v{v} row_ror:{r} row_mask:0xf bank_mask:0xf")
    for op in ("v_permlane16_swap_b32", "v_permlane32_swap_b32"):
        for v, t in ((su, t0), (sq, t1), (dt, t2)): I(f"v_mov_b32 v{t}, v{v}")
        for v, t in ((su, t0), (sq, t1), (dt, t2)): I(f"{op} v{v}, v{t}")
        for v, t in ((su, t0), (sq, t1), (dt, t2)): I(f"v_add_f32 v{v}, v{v}, v{t}")
    I(f"v_mul_f32 v{su}, 0x3acccccd, v{su}")
    I(f"v_mul_f32 v{sq}, 0x3acccccd, v{sq}")
    I(f"v_mul_f32 v{dt}, 0xbfb8aa3b, v{dt}")
    I(f"v_fma_f32 v{sq}, -v{su}, v{su}, v{sq}")
    I(f"v_exp_f32 v{dt}, v{dt}")
    I(f"v_add_f32 v{sq}, 0x3727c5ac, v{sq}")
    I(f"v_add_f32 v{dt}, 1.0, v{dt}")
    I(f"v_rsq_f32 v{t1}, v{sq}")
    I(f"v_rcp_f32 v{dt}, v{dt}")
    I(f"v_mul_f32 v{t0}, v{su}, v{t1}")
    I(f"v_sub_f32 v{t0}, 0, v{t0}")
    I(f"v_mov_b32 v{VO}, 0x7ffffff0")
    I(f"v_cmp_eq_u32 s[100:101], 0, v1")
    I(f"v_cndmask_b32 v{VO}, v{VO}, 0, s[100:101]")
    I(f"s_lshl_b32 s98, s85, 3")
    I(f"s_add_u32 s98, s98, {WS_ST}")
    T.append(lambda: a(f"buffer_store_dwordx2 {vr(t0,2)}, v{VO}, s[{SRD_WS}:{SRD_WS+3}], s98 offen sc1", tag='pst'))
    I(f"s_lshl_b32 s98, s85, 2")
    I(f"s_add_u32 s98, s98, {WS_G}")
    T.append(lambda: a(f"buffer_store_dword v{dt}, v{VO}, s[{SRD_WS}:{SRD_WS+3}], s98 offen sc1", tag='pst'))
    return T

def rowstats_issue(a):
    XB, GW, o0, o1, t0 = 128, 108, 96, 97, 98
    srd(a, SRD_D, P_GW, SIZES['GW'])
    a(f"s_lshl_b32 s{T0}, s{S_RB}, 7")
    a(f"s_lshl_b32 s{T1}, s{S_W}, 4")
    a(f"s_add_u32 s85, s{T0}, s{T1}")
    a(f"v_lshrrev_b32 v{t0}, 4, v1")
    a(f"v_add_u32 v{t0}, s85, v{t0}")
    a(f"s_movk_i32 s{T1}, 1280")
    a(f"v_mul_lo_u32 v{o0}, v{t0}, s{T1}")
    a(f"v_and_b32 v{o1}, 15, v1")
    a(f"v_lshlrev_b32 v{o1}, 4, v{o1}")
    a(f"v_add_u32 v{o0}, v{o0}, v{o1}")
    for i in range(5):
        a(f"buffer_load_dwordx4 {vr(GW+4*i,4)}, v{o1}, s[{SRD_D}:{SRD_D+3}], 0 offen offset:{256*i}", tag='gw')
    for q in range(4):
        a(f"s_movk_i32 s{T2}, {q*4*1280}")
        for i in range(5):
            a(f"buffer_load_dwordx4 {vr(XB+20*q+4*i,4)}, v{o0}, s[{SRD_A}:{SRD_A+3}], s{T2} offen offset:{256*i}", tag=('x', q))

def rowstats_compute(a):
    XB, GW = 128, 108
    su, sq, dt, one, t0, t1, t2 = 98, 99, 100, 101, 102, 103, 104
    NMv, RSv, GV = 106, 107, 105
    a(f"v_mov_b32 v{one}, 0x3f803f80")
    a(f"v_and_b32 v{t2}, 15, v1")
    for q in range(4):
        a.wait_vm(('x', q))
        a(f"v_mov_b32 v{su}, 0"); a(f"v_mov_b32 v{sq}, 0"); a(f"v_mov_b32 v{dt}, 0")
        for d in range(20):
            x = XB + 20*q + d
            a(f"v_dot2c_f32_bf16 v{su}, v{x}, v{one}")
            a(f"v_dot2c_f32_bf16 v{sq}, v{x}, v{x}")
            a(f"v_dot2c_f32_bf16 v{dt}, v{x}, v{GW+d}")
        for k in (8, 4, 2, 1):
            for v in (su, sq, dt):
                a(f"v_add_f32_dpp v{v}, v{v}, v{v} row_ror:{k} row_mask:0xf bank_mask:0xf")
        a(f"v_mul_f32 v{su}, 0x3acccccd, v{su}")
        a(f"v_mul_f32 v{sq}, 0x3acccccd, v{sq}")
        a(f"v_mul_f32 v{dt}, 0xbfb8aa3b, v{dt}")
        a(f"v_fma_f32 v{sq}, -v{su}, v{su}, v{sq}")
        a(f"v_exp_f32 v{dt}, v{dt}")
        a(f"v_add_f32 v{sq}, 0x3727c5ac, v{sq}")
        a(f"v_add_f32 v{dt}, 1.0, v{dt}")
        a(f"v_rsq_f32 v{t1}, v{sq}")
        a(f"v_rcp_f32 v{dt}, v{dt}")
        a(f"v_mul_f32 v{t0}, v{su}, v{t1}")
        a(f"v_sub_f32 v{t0}, 0, v{t0}")
        a(f"v_cmp_eq_u32 s[{T4}:{T4+1}], {q}, v{t2}")
        a(f"v_cndmask_b32 v{NMv}, v{NMv}, v{t0}, s[{T4}:{T4+1}]")
        a(f"v_cndmask_b32 v{RSv}, v{RSv}, v{t1}, s[{T4}:{T4+1}]")
        a(f"v_cndmask_b32 v{GV}, v{GV}, v{dt}, s[{T4}:{T4+1}]")
    a(f"v_lshrrev_b32 v{t0}, 4, v1")
    a(f"v_lshl_add_u32 v{t0}, v{t2}, 2, v{t0}")
    a(f"v_add_u32 v{t0}, s85, v{t0}")
    a(f"v_mov_b32 v{su}, 0x7ffffff0")
    a(f"v_cmp_gt_u32 s[{T4}:{T4+1}], 4, v{t2}")
    a(f"v_lshlrev_b32 v{t1}, 3, v{t0}")
    a(f"v_cndmask_b32 v{t1}, v{su}, v{t1}, s[{T4}:{T4+1}]")
    a(f"v_lshlrev_b32 v{t0}, 2, v{t0}")
    a(f"v_cndmask_b32 v{t0}, v{su}, v{t0}, s[{T4}:{T4+1}]")
    a(f"s_mov_b32 s{T0}, {WS_ST}")
    a(f"buffer_store_dwordx2 {vr(NMv,2)}, v{t1}, s[{SRD_WS}:{SRD_WS+3}], s{T0} offen sc1", tag='pst')
    a(f"s_mov_b32 s{T0}, {WS_G}")
    a(f"buffer_store_dword v{GV}, v{t0}, s[{SRD_WS}:{SRD_WS+3}], s{T0} offen sc1", tag='pst')

RPL = 147456
def repack_finish(a):
    D, VA, VD = 136, 134, 135
    L = uid("rf")
    a(f"v_mov_b32 v{VD}, 0x7ffffff0")
    a(f"s_cmp_ge_u32 s82, 74")
    a(f"s_cbranch_scc1 {L}")
    a(f"s_mul_i32 s{T0}, s{S_X}, {WF_TILE}")
    a(f"s_mul_i32 s{T1}, s82, 5120")
    a(f"s_add_u32 s{T0}, s{T0}, s{T1}")
    a(f"s_add_u32 s{T0}, s{T0}, {WS_WF}")
    a(f"v_lshlrev_b32 v{VD}, 4, v1")
    a(f"v_add_u32 v{VD}, s{T0}, v{VD}")
    a(f"v_lshrrev_b32 v{VA}, 5, v1")
    a(f"v_bfe_u32 v{D}, v1, 4, 1")
    a(f"v_lshlrev_b32 v{VA}, 4, v{VA}")
    a(f"v_lshl_add_u32 v{VA}, v{D}, 2, v{VA}")
    a(f"v_bfe_u32 v{D}, v1, 2, 2")
    a(f"v_add_u32 v{VA}, v{VA}, v{D}")
    a(f"v_mul_u32_u24 v{VA}, 160, v{VA}")
    a(f"v_and_b32 v{D}, 3, v1")
    a(f"v_lshl_add_u32 v{VA}, v{D}, 3, v{VA}")
    a(f"v_add_u32 v{VA}, s{S_RPM}, v{VA}")
    lg = list(a.lg)
    for F in range(5):
        for rd in range(2):
            a(f"ds_read_b64_tr_b16 {vr(D+4*F+2*rd,2)}, v{VA} offset:{rd*1280 + F*32}")
    a("s_waitcnt lgkmcnt(0)")
    a.lg = lg
    a.label(L)
    for F in range(5):
        a(f"s_movk_i32 s{T1}, {F*1024}")
        a(f"buffer_store_dwordx4 {vr(D+4*F,4)}, v{VD}, s[{SRD_WS}:{SRD_WS+3}], s{T1} offen sc1", tag='pst')

def nonce_issue(a, v):
    a(f"v_mov_b32 v{v+1}, 0")
    a(f"global_load_dword v{v}, v{v+1}, s[{P_DBG}:{P_DBG+1}] sc1", tag='nonce')

def nonce_check(a, v):
    L = uid("ng")
    a.wait_vm('nonce')
    keep = list(a.vm)
    a.label(L)
    a(f"v_readfirstlane_b32 s{S_NONCE}, v{v}")
    a(f"s_cmp_lg_u32 s{S_NONCE}, 0")
    a(f"s_cbranch_scc1 {L}_ok")
    a("s_sleep 2")
    a(f"global_load_dword v{v}, v{v+1}, s[{P_DBG}:{P_DBG+1}] sc1")
    a("s_waitcnt vmcnt(0)")
    a(f"s_branch {L}")
    a.label(f"{L}_ok")
    a.vm = keep

def pre_flags(a, v, stats=True):
    if stats:
        a(f"s_lshl_b32 s{T0}, s{S_RB}, 7")
        a(f"s_add_u32 s{T0}, s{T0}, {WS_FLAG + FS}")
        flag_store(a, T0, v)
    a(f"s_lshl_b32 s{T0}, s{S_X}, 7")
    a(f"s_lshl_b32 s{T1}, s{S_I}, 2")
    a(f"s_add_u32 s{T0}, s{T0}, s{T1}")
    a(f"s_add_u32 s{T0}, s{T0}, {WS_FLAG + FW}")
    flag_store(a, T0, v)

CD = 16
def colsum_issue(a):
    srd(a, SRD_B, P_W1, SIZES['W1'])
    srd(a, SRD_C, P_B1, SIZES['B1']) if False else None
    t0, t1, VO = 2, 3, 5
    a(f"v_lshrrev_b32 v{t0}, 4, v0")
    a(f"s_movk_i32 s{T0}, 3456")
    a(f"v_mul_lo_u32 v{t0}, v{t0}, s{T0}")
    a(f"v_and_b32 v{t1}, 15, v0")
    a(f"v_lshl_add_u32 v{t0}, v{t1}, 4, v{t0}")
    a(f"s_lshl_b32 s{T1}, s{S_RB}, 8")
    a(f"v_add_u32 v{VO}, s{T1}, v{t0}")
    a(f"s_cmp_lt_u32 s{S_RB}, 14")
    a(f"s_cselect_b32 s{T3}, 0, 0x7fff0000")
    for p in range(20):
        a(f"s_add_u32 s{T2}, s{T3}, {p*32*3456}")
        a(f"buffer_load_dwordx4 {vr(CD+4*p,4)}, v{VO}, s[{SRD_B}:{SRD_B+3}], s{T2} offen", tag=('cs', p))

def colsum_compute(a, lbl):
    t0, t1, t2 = 2, 3, 4
    ACC, LO, HI = 8, 6, 7
    srd(a, SRD_B, P_B1, SIZES['B1'])
    a(f"s_lshl_b32 s{T1}, s{S_RB}, 8")
    a(f"v_lshlrev_b32 v{t2}, 1, v0")
    a(f"v_add_u32 v{t2}, s{T1}, v{t2}")
    a(f"buffer_load_ushort v{t2}, v{t2}, s[{SRD_B}:{SRD_B+3}], 0 offen", tag='b1')
    a(f"v_mov_b32 v{LO}, 0x00003f80")
    a(f"v_mov_b32 v{HI}, 0x3f800000")
    for e in range(8): a(f"v_mov_b32 v{ACC+e}, 0")
    for p in range(20):
        a.wait_vm(('cs', p))
        for d in range(4):
            a(f"v_dot2c_f32_bf16 v{ACC+2*d}, v{CD+4*p+d}, v{LO}")
            a(f"v_dot2c_f32_bf16 v{ACC+2*d+1}, v{CD+4*p+d}, v{HI}")
    a(f"v_lshrrev_b32 v{t0}, 4, v0")
    a(f"v_lshlrev_b32 v{t0}, 9, v{t0}")
    a(f"v_and_b32 v{t1}, 15, v0")
    a(f"v_lshl_add_u32 v{t0}, v{t1}, 5, v{t0}")
    a(f"ds_write_b128 v{t0}, {vr(ACC,4)}")
    a(f"ds_write_b128 v{t0}, {vr(ACC+4,4)} offset:16")
    a("s_waitcnt lgkmcnt(0)")
    a("s_barrier")
    a(f"v_and_b32 v{t0}, 127, v0")
    a(f"v_lshlrev_b32 v{t0}, 2, v{t0}")
    for g in range(32):
        a(f"ds_read_b32 v{CD+g}, v{t0} offset:{g*512}")
    a("s_waitcnt lgkmcnt(0)")
    for g in range(0, 32, 2): a(f"v_add_f32 v{CD+g}, v{CD+g}, v{CD+g+1}")
    for g in range(2, 32, 2): a(f"v_add_f32 v{CD}, v{CD}, v{CD+g}")
    a.wait_vm('b1')
    a(f"v_lshlrev_b32 v{t2}, 16, v{t2}")
    a(f"s_lshl_b32 s{T1}, s{S_RB}, 9")
    a(f"v_add_u32 v{t0}, s{T1}, v{t0}")
    a(f"v_mov_b32 v{t1}, 0x7ffffff0")
    a(f"v_mov_b32 v{LO}, 128")
    a(f"v_cmp_gt_u32 s[{T4}:{T4+1}], v{LO}, v0")
    a(f"v_cndmask_b32 v{t0}, v{t1}, v{t0}, s[{T4}:{T4+1}]")
    a(f"s_mov_b32 s{T0}, 0x7fff0000")
    a(f"s_cmp_lt_u32 s{S_RB}, 14")
    a(f"s_cselect_b32 s{T2}, {WS_CS}, s{T0}")
    a(f"s_cselect_b32 s{T3}, {WS_B1}, s{T0}")
    a(f"buffer_store_dword v{CD}, v{t0}, s[{SRD_WS}:{SRD_WS+3}], s{T2} offen sc1", tag='pst')
    a(f"buffer_store_dword v{t2}, v{t0}, s[{SRD_WS}:{SRD_WS+3}], s{T3} offen sc1", tag='pst')

S_FRB, S_FCJ = 73, 74
S_WM, S_WG = 75, 76

def final_coords(a):
    a(f"s_lshr_b32 s{T0}, s{S_X}, 1")
    a(f"s_lshl_b32 s{T0}, s{T0}, 3")
    a(f"s_and_b32 s{T1}, s{S_I}, 7")
    a(f"s_add_u32 s{S_FRB}, s{T0}, s{T1}")
    a(f"s_and_b32 s{T0}, s{S_X}, 1")
    a(f"s_lshl_b32 s{T0}, s{T0}, 2")
    a(f"s_lshr_b32 s{T1}, s{S_I}, 3")
    a(f"s_add_u32 s{S_FCJ}, s{T0}, s{T1}")
    a(f"s_mul_i32 s{S_WM}, s{S_W}, 5120")
    a(f"s_mul_i32 s{T0}, s{S_FCJ}, {WF_TILE}")
    a(f"s_add_u32 s{T0}, s{T0}, s{S_WM}")
    a(f"s_add_u32 s{S_WG}, s{T0}, {WS_WF}")

def dma_wf(a, g, vw):
    S_KW = 77
    a(f"s_add_u32 m0, s{S_WM}, {RING[g % 4]}")
    a(f"s_add_u32 s{S_KW}, s{S_WG}, {g*WSLOT}")
    if g == 9:
        a(f"s_cmp_ge_u32 s{S_W}, 2")
        a(f"s_cselect_b32 s{S_KW}, 0x7fff0000, s{S_KW}")
    for n in range(4):
        a(f"buffer_load_dwordx4 v{vw}, s[{SRD_WS}:{SRD_WS+3}], s{S_KW} offen offset:{n*1024} sc1 lds", tag=('W', g))
    a(f"s_add_u32 m0, m0, 4096")
    a(f"s_add_u32 s{S_KW}, s{S_KW}, 4096")
    a(f"buffer_load_dwordx4 v{vw}, s[{SRD_WS}:{SRD_WS+3}], s{S_KW} offen sc1 lds", tag=('W', g))

SL2 = 32768
def attn_coords(a):
    a(f"s_lshl_b32 s{T0}, s{S_X}, 1")
    a(f"s_and_b32 s{T1}, s{S_I}, 1")
    a(f"s_add_u32 s{S_AHP}, s{T0}, s{T1}")
    a(f"s_lshr_b32 s{S_ARB}, s{S_I}, 1")
    a(f"s_lshr_b32 s78, s{S_W}, 2")
    a(f"s_and_b32 s79, s{S_W}, 3")

def fq_poll_offsets(a, vo, vt):
    a(f"v_lshrrev_b32 v{vo}, 4, v1")
    a(f"s_sub_u32 s{T0}, s{S_ARB}, 2")
    a(f"v_add_u32 v{vo}, s{T0}, v{vo}")
    a(f"v_and_b32 v{vt}, 15, v1")
    a(f"v_cmp_le_i32 s[{T4}:{T4+1}], 0, v{vo}")
    a(f"v_cmp_gt_u32 s[{T2}:{T2+1}], 15, v{vt}")
    a(f"s_and_b64 s[{T4}:{T4+1}], s[{T4}:{T4+1}], s[{T2}:{T2+1}]")
    a(f"s_mov_b32 s{T2}, -1")
    a(f"s_mov_b32 s{T2+1}, 0xffff")
    a(f"s_and_b64 s[{T4}:{T4+1}], s[{T4}:{T4+1}], s[{T2}:{T2+1}]")
    a(f"v_lshlrev_b32 v{vo}, 7, v{vo}")
    a(f"v_lshl_add_u32 v{vo}, v{vt}, 2, v{vo}")
    a(f"s_lshl_b32 s{T0}, s{S_ARB}, 7")
    a(f"v_mov_b32 v{vt}, s{T0}")
    a(f"v_cndmask_b32 v{vo}, v{vt}, v{vo}, s[{T4}:{T4+1}]")
    a(f"v_add_u32 v{vo}, {WS_FLAG + FQ}, v{vo}")

def attn_q_loads(a, t0, t1, t2, t3, AQ0=20, AQ1=24):
    a(f"s_lshl_b32 s{T0}, s{S_ARB}, 2")
    a(f"s_add_u32 s{S_QB}, s{T0}, s79")
    a(f"v_and_b32 v{t0}, 31, v1")
    a(f"v_lshrrev_b32 v{t1}, 5, v1")
    a(f"s_lshl_b32 s{T1}, s{S_QB}, 8")
    a(f"v_lshlrev_b32 v{t2}, 3, v{t0}")
    a(f"v_add_u32 v{t2}, s{T1}, v{t2}")
    a(f"v_lshl_add_u32 v{t3}, v{t1}, 15, v{t2}")
    a(f"s_lshl_b32 s{T2}, s{S_AHP}, 1")
    a(f"s_add_u32 s{T2}, s{T2}, s78")
    a(f"s_mul_i32 s{T2}, s{T2}, {5*16384}")
    a(f"s_add_u32 s{T1}, s{T2}, {WS_QKV}")
    a(f"buffer_load_dwordx2 {vr(AQ0,2)}, v{t3}, s[{SRD_WS}:{SRD_WS+3}], s{T1} offen sc1", tag='q')
    a(f"s_add_u32 s{T1}, s{T1}, 16384")
    a(f"buffer_load_dwordx2 {vr(AQ0+2,2)}, v{t3}, s[{SRD_WS}:{SRD_WS+3}], s{T1} offen sc1", tag='q')
    a(f"s_add_u32 s{T1}, s{T1}, {3*16384}")
    a(f"buffer_load_dwordx2 {vr(AQ1,2)}, v{t2}, s[{SRD_WS}:{SRD_WS+3}], s{T1} offen sc1", tag='q')

def fw_poll_offsets(a, vo):
    a(f"v_and_b32 v{vo}, 31, v1")
    a(f"v_lshlrev_b32 v{vo}, 2, v{vo}")
    a(f"s_lshl_b32 s{T1}, s{S_FCJ}, 7")
    a(f"s_add_u32 s{T1}, s{T1}, {WS_FLAG + FW}")
    a(f"v_add_u32 v{vo}, s{T1}, v{vo}")

def wf_first_slots(a, vw):
    a(f"v_lshlrev_b32 v{vw}, 4, v1")
    a(f"s_mul_i32 s{T0}, s{S_W}, 10240")
    a(f"s_mul_i32 s{T1}, s{S_FCJ}, {WF_TILE}")
    a(f"s_add_u32 s{T1}, s{T1}, s{T0}")
    a(f"s_add_u32 s{T1}, s{T1}, {WS_WF}")
    for g in range(2):
        for part in range(3):
            a(f"s_add_u32 m0, s{T0}, {RING[g] + part*4096}")
            a(f"s_add_u32 s{T2}, s{T1}, {g*WSLOT + part*4096}")
            for n in range(4 if part < 2 else 2):
                a(f"buffer_load_dwordx4 v{vw}, s[{SRD_WS}:{SRD_WS+3}], s{T2} offen offset:{n*1024} sc1 lds", tag=('W', g))

QL = 81920
def attn_stage_q(a, vd):
    a(f"v_lshlrev_b32 v{vd}, 4, v1")
    a(f"s_mul_i32 s{T2}, s{S_AHP}, {10*16384}")
    a(f"s_lshl_b32 s{T0}, s{S_ARB}, 10")
    a(f"s_add_u32 s{T2}, s{T2}, s{T0}")
    a(f"s_add_u32 s{T2}, s{T2}, {WS_QKV}")
    for k in range(3):
        a(f"s_add_u32 s{T0}, s{S_W}, {4*k}")
        a(f"s_lshl_b32 s{T1}, s{T0}, 14")
        a(f"s_add_u32 s{T1}, s{T1}, s{T2}")
        a(f"s_lshl_b32 s{T3}, s{T0}, 10")
        a(f"s_add_u32 s{T3}, s{T3}, {QL}")
        if k == 2:
            a(f"s_cmp_lt_u32 s{T0}, 10")
            a(f"s_cselect_b32 s{T1}, s{T1}, 0x7fff0000")
        a(f"s_mov_b32 m0, s{T3}")
        a(f"buffer_load_dwordx4 v{vd}, s[{SRD_WS}:{SRD_WS+3}], s{T1} offen sc1 lds", tag='q')

def attn_stage_kv(a, t0, t1, t2, vd):
    a(f"s_sub_u32 s{T0}, s{S_ARB}, 2")
    a(f"s_lshl_b32 s{T0}, s{T0}, 7")
    a(f"s_mul_i32 s{T1}, s{S_W}, 96")
    a(f"s_add_u32 s{T0}, s{T0}, s{T1}")
    a(f"v_lshlrev_b32 v{t0}, 1, v1")
    a(f"v_add_u32 v{t0}, s{T0}, v{t0}")
    a(f"v_lshlrev_b32 v{t1}, 3, v{t0}")
    a(f"v_mov_b32 v{t2}, 0x7ffffff0")
    a(f"v_cmp_le_i32 s[{T4}:{T4+1}], 0, v{t0}")
    a(f"v_cndmask_b32 v{vd}, v{t2}, v{t1}, s[{T4}:{T4+1}]")
    a(f"s_mul_i32 s{T2}, s{S_AHP}, {10*16384}")
    a(f"s_add_u32 s{T2}, s{T2}, {WS_QKV + 160*16384}")
    a(f"s_mul_i32 s{T3}, s{S_W}, 768")
    a("s_mov_b32 exec_hi, 0xffff")
    for ty in range(2):
        for p in range(10):
            a(f"s_add_u32 m0, s{T3}, {(LK if ty == 0 else LV) + p*PST}")
            a(f"s_add_u32 s{T6}, s{T2}, {(ty*160 + p)*16384}")
            a(f"buffer_load_dwordx4 v{vd}, s[{SRD_WS}:{SRD_WS+3}], s{T6} offen sc1 lds", tag=('kv', ty))
    a("s_mov_b32 exec_hi, -1")

def stage1g(a, lbl):
    SRD_E, S_M = 64, 68
    VXD, VWD, VW2 = 2, 6, 10
    VXF, VWF = 14, 22
    t0, t1, t2, t3 = 26, 27, 28, 29
    VP, VPV = 30, 31
    FB = [32, 48]
    ACC = 64
    CSR, B1R, ST, TD = 128, 160, 192, 196
    S_FQ, S_FH, S_ACT, S_HB = 69, 70, 71, 72
    attn_coords(a)
    final_coords(a)
    a(f"s_and_b32 s{S_LW}, s{S_W}, 3")
    a(f"s_cmp_ge_u32 s{S_CJ}, 15")
    a(f"s_cbranch_scc1 {lbl}_idle")
    srd(a, SRD_A, P_AX, SIZES['AX'])
    srd(a, SRD_B, P_WQKV, SIZES['WQKV'])
    srd(a, SRD_E, P_W1, SIZES['W1'])
    a(f"s_lshl_b32 s{T0}, s{S_RB}, 7")
    a(f"s_lshr_b32 s{T1}, s{S_LW}, 1")
    a(f"s_lshl_b32 s{T1}, s{T1}, 6")
    a(f"s_add_u32 s{T0}, s{T0}, s{T1}")
    a(f"s_and_b32 s{T1}, s{S_LW}, 1")
    a(f"s_add_u32 s{T0}, s{T0}, s{T1}")
    a(f"v_lshrrev_b32 v{t0}, 3, v1")
    a(f"v_lshlrev_b32 v{t0}, 1, v{t0}")
    a(f"v_add_u32 v{t0}, s{T0}, v{t0}")
    a(f"s_movk_i32 s{T2}, 1280")
    a(f"v_mul_lo_u32 v{t0}, v{t0}, s{T2}")
    a(f"v_lshrrev_b32 v{t1}, 4, v1")
    a(f"v_and_b32 v{t2}, 7, v1")
    a(f"v_xor_b32 v{t2}, v{t2}, v{t1}")
    a(f"v_xor_b32 v{t3}, 4, v{t2}")
    for i in range(4):
        a(f"v_lshl_add_u32 v{VXD+i}, v{t2 if i % 2 == 0 else t3}, 4, v{t0}")
        if i: a(f"v_add_u32 v{VXD+i}, {i*(16*1280-1024)}, v{VXD+i}")
    a(f"s_lshl_b32 s{T0}, s{S_LW}, 4")
    a(f"v_lshrrev_b32 v{t0}, 4, v1")
    a(f"v_add_u32 v{t1}, s{T0}, v{t0}")
    a(f"v_bfe_u32 v{t2}, v1, 2, 2")
    a(f"v_xor_b32 v{t2}, v{t2}, v{t0}")
    a(f"v_and_b32 v{t3}, 3, v1")
    a(f"v_lshl_add_u32 v{t2}, v{t2}, 2, v{t3}")
    a(f"v_lshlrev_b32 v{t2}, 4, v{t2}")
    a(f"s_lshl_b32 s{T0}, s{S_CJ}, 8")
    a(f"v_add_u32 v{t2}, s{T0}, v{t2}")
    for vd, pitch in ((VWD, 3840), (VW2, 3456)):
        a(f"s_movk_i32 s{T2}, {pitch}")
        a(f"v_mul_lo_u32 v{t3}, v{t1}, s{T2}")
        a(f"v_add_u32 v{vd}, v{t3}, v{t2}")
        for i in range(1, 4): a(f"v_add_u32 v{vd+i}, {i*(4*pitch-1024)}, v{vd}")
    a(f"s_lshl_b32 s{S_M}, s{S_LW}, 12")
    if OPT.get('rot', 1):
        a(f"s_lshr_b32 s{T0}, s{S_I}, 3")
        a(f"s_mul_i32 s{T0}, s{T0}, 10")
        a(f"s_and_b32 s{T1}, s{S_I}, 7")
        a(f"s_mul_i32 s{T1}, s{T1}, 5")
        a(f"s_add_u32 s{T0}, s{T0}, s{T1}")
        a(f"s_lshr_b32 s{T0}, s{T0}, 2")
        a(f"s_sub_u32 s{T1}, s{T0}, 10")
        a(f"s_cmp_ge_u32 s{T0}, 10")
        a(f"s_cselect_b32 s{T0}, s{T1}, s{T0}")
    else:
        a(f"s_mov_b32 s{T0}, 0")
    a(f"s_add_u32 s{T1}, s{T0}, 3")
    a(f"s_sub_u32 s{T2}, s{T1}, 10")
    a(f"s_cmp_ge_u32 s{T1}, 10")
    a(f"s_cselect_b32 s{T1}, s{T2}, s{T1}")
    a(f"s_cmp_ge_u32 s{S_W}, 4")
    a(f"s_cselect_b32 s{T0}, s{T0}, s{T1}")
    a(f"s_lshl_b32 s{S_KX}, s{T0}, 7")
    a(f"s_mul_i32 s{S_KQ}, s{T0}, {64*3840}")
    a(f"s_mul_i32 s{S_K1}, s{T0}, {64*3456}")
    def adv(sreg, step, wrap):
        if OPT.get('hot'): return
        a(f"s_add_u32 s{sreg}, s{sreg}, {step}")
        a(f"s_cmp_eq_u32 s{sreg}, {wrap}")
        a(f"s_cselect_b32 s{sreg}, 0, s{sreg}")
    first = {'x': True, 'q': True, '1': True}
    slot = lambda tau: (tau + 3) % 4
    def dma_list(tau):
        out = []
        if OPT.get('g_nodma') and tau >= 4: return out
        if OPT.get('nodma1') and tau >= 13: return out
        def mk(kind, i):
            def f():
                if kind == 'x': vd, sr, sk, off, step, wrap = VXD, SRD_A, S_KX, 0, 128, 1280
                elif kind == 'q': vd, sr, sk, off, step, wrap = VWD, SRD_B, S_KQ, 16384, 64*3840, 640*3840
                else: vd, sr, sk, off, step, wrap = VW2, SRD_E, S_K1, 16384, 64*3456, 640*3456
                if i == 0:
                    a(f"s_add_u32 m0, s{S_M}, {slot(tau)*SL2 + off}")
                    if not first[kind] and not (OPT.get('hot1') and tau >= 10) and not (OPT.get('hotx') and kind == 'x' and tau >= 10) and not (OPT.get('hotw') and kind == '1'): adv(sk, step, wrap)
                    first[kind] = False
                a(f"buffer_load_dwordx4 v{vd+i}, s[{sr}:{sr+3}], s{sk} offen offset:{i*1024} lds", tag=('B', tau))
            return f
        for i in range(4): out.append(mk('x', i))
        for i in range(4): out.append(mk('q' if tau < 10 else '1', i))
        return out
    def dma_block(tau):
        for f in dma_list(tau): f()
    def frag_bases():
        a(f"s_and_b32 s{T0}, s{S_LW}, 1")
        a(f"s_lshl_b32 s{T0}, s{T0}, 13")
        a(f"v_and_b32 v{t0}, 31, v1")
        a(f"v_lshrrev_b32 v{t1}, 5, v1")
        a(f"v_bfe_u32 v{t2}, v1, 1, 3")
        a(f"v_lshlrev_b32 v{t0}, 7, v{t0}")
        a(f"v_add_u32 v{t0}, s{T0}, v{t0}")
        for s_ in range(4):
            a(f"v_or_b32 v{t3}, {2*s_}, v{t1}")
            a(f"v_xor_b32 v{t3}, v{t3}, v{t2}")
            a(f"v_lshl_add_u32 v{VXF+s_}, v{t3}, 4, v{t0}")
            a(f"v_add_u32 v{VXF+4+s_}, {2*SL2}, v{VXF+s_}")
        a(f"v_bfe_u32 v{t0}, v1, 2, 2")
        a(f"v_lshl_add_u32 v{t1}, v{t1}, 3, v{t0}")
        a(f"v_lshlrev_b32 v{t1}, 8, v{t1}")
        a(f"v_bfe_u32 v{t2}, v1, 4, 1")
        a(f"v_lshl_add_u32 v{t1}, v{t2}, 5, v{t1}")
        a(f"v_and_b32 v{t2}, 3, v1")
        a(f"v_lshl_add_u32 v{t1}, v{t2}, 3, v{t1}")
        a(f"s_and_b32 s{T0}, s{S_LW}, 2")
        for ft in range(2):
            a(f"s_or_b32 s{T1}, s{T0}, {ft}")
            a(f"v_xor_b32 v{t2}, s{T1}, v{t0}")
            a(f"v_lshl_add_u32 v{VWF+ft}, v{t2}, 6, v{t1}")
            a(f"v_add_u32 v{VWF+2+ft}, {2*SL2}, v{VWF+ft}")
    def rd_b(st, tau, u, tt):
        sl = slot(tau)
        a(f"ds_read_b128 {vr(FB[st]+4*tt,4)}, v{VXF + u + (4 if sl >= 2 else 0)} offset:{(SL2 if sl & 1 else 0) + tt*4096}", tag=('f', tau, u, 'b', tt))
    def rd_a(st, tau, u, F, rd):
        sl = slot(tau)
        a(f"ds_read_b64_tr_b16 {vr(FB[st]+8+4*F+2*rd,2)}, v{VWF + F + (2 if sl >= 2 else 0)} offset:{(SL2 if sl & 1 else 0) + 16384 + u*4096 + rd*1024}", tag=('f', tau, u, 'a', F))
    def reads(st, tau, u):
        return [lambda: rd_b(st, tau, u, 0), lambda: rd_a(st, tau, u, 0, 0), lambda: rd_a(st, tau, u, 0, 1),
                lambda: rd_b(st, tau, u, 1), lambda: rd_a(st, tau, u, 1, 0), lambda: rd_a(st, tau, u, 1, 1)]
    def compute(t0_, hook_bar, hook_step):
        for b in range(10):
            tau = t0_ + b
            for u in range(4):
                s_ = 4*b + u; st = s_ & 1
                last = (b == 9 and u == 3)
                side = []
                if u == 3:
                    a("s_waitcnt lgkmcnt(0)")
                    hook_bar(tau)
                    a("s_barrier")
                    side = hook_step(tau, 'bar') or []
                rs = [] if last else reads(st ^ 1, *((tau, u + 1) if u < 3 else (tau + 1, 0)))
                plan = {-1: rs[0:2], 0: rs[2:5], 1: rs[5:6]}
                for r in plan[-1]: r()
                for k, (tt, F) in enumerate([(0, 0), (1, 0), (0, 1), (1, 1)]):
                    a.wait_lg([('f', tau, u, 'b', tt), ('f', tau, u, 'a', F)])
                    d = vr(ACC+16*(2*tt+F), 16)
                    a(f"v_mfma_f32_32x32x16_bf16 {d}, {vr(FB[st]+8+4*F,4)}, {vr(FB[st]+4*tt,4)}, {'0' if s_ == 0 else d}")
                    for r in plan.get(k, []): r()
                    for _ in range(2):
                        if side: side.pop(0)()
                for f in side: f()
                hook_step(tau, u)
    a(f"s_lshl_b32 s{T0}, s{S_RB}, 7")
    a(f"s_lshl_b32 s{T1}, s{S_CJ}, 2")
    a(f"s_add_u32 s{T0}, s{T0}, s{T1}")
    a(f"s_add_u32 s{S_FQ}, s{T0}, {WS_FLAG + FQ}")
    a(f"s_add_u32 s{S_FH}, s{T0}, {WS_FLAG + FH}")
    a(f"s_cmp_lt_u32 s{S_CJ}, 14")
    a(f"s_cselect_b32 s{S_FHO}, s{S_FH}, 0x7fff0000")
    a(f"s_cmp_ge_u32 s{S_W}, 4")
    a(f"s_cbranch_scc1 {lbl}_g1")
    frag_bases()
    if OPT.get('cprio'): a(f"s_setprio {OPT['cprio']}")
    mark(a)
    a("s_barrier")
    for r in reads(0, 0, 0): r()
    def g0_step(tau, u):
        if OPT.get('fine3') and u == 'bar' and tau in (0, 3, 6): mark(a)
        if u == 'bar' and tau == 9: return dma_list(13)
        if u == 1 and tau == 2: nonce_issue(a, 252)
        if u == 1 and tau == 4: nonce_check(a, 252)
        if u == 'bar' and tau == 8:
            pre_flags(a, t3, stats=False)
        return None
    compute(0, lambda tau: None, g0_step)
    mark(a)
    if OPT.get('lprio'): a(f"s_setprio {OPT['lprio']}")
    a(f"v_lshrrev_b32 v{t0}, 5, v1")
    a(f"s_lshr_b32 s{T0}, s{S_LW}, 1")
    a(f"s_lshl_b32 s{T0}, s{T0}, 4")
    a(f"v_add_u32 v{t0}, s{T0}, v{t0}")
    a(f"v_lshlrev_b32 v{t0}, 14, v{t0}")
    a(f"s_and_b32 s{T0}, s{S_LW}, 1")
    a(f"s_lshl_b32 s{T0}, s{T0}, 9")
    a(f"v_and_b32 v{t1}, 31, v1")
    a(f"v_lshl_add_u32 v{t0}, v{t1}, 4, v{t0}")
    a(f"v_add_u32 v{t0}, s{T0}, v{t0}")
    a(f"s_lshl_b32 s{T0}, s{S_CJ}, 19")
    a(f"s_lshl_b32 s{T1}, s{S_RB}, 10")
    a(f"s_add_u32 s{T0}, s{T0}, s{T1}")
    a(f"s_add_u32 s{T0}, s{T0}, {WS_QKV}")
    k = 0
    for ft in range(2):
        for j in range(4):
            a(f"s_add_u32 s{T1}, s{T0}, {(8*ft + 2*j)*16384}")
            d = 32 + 4*(k % 8); k += 1
            for tt in range(2):
                base = ACC + 16*(2*tt+ft) + 4*j
                a(f"v_cvt_pk_bf16_f32 v{d+2*tt}, v{base}, v{base+1}")
                a(f"v_cvt_pk_bf16_f32 v{d+2*tt+1}, v{base+2}, v{base+3}")
            a(f"buffer_store_dwordx4 {vr(d,4)}, v{t0}, s[{SRD_WS}:{SRD_WS+3}], s{T1} offen sc1", tag='qst')
    fq_poll_offsets(a, VP, t3)
    TQP = OPT.get('tqp', 13)
    for tau in range(10, 20):
        if 13 <= tau + 1 <= 19: a.wait_vm(('B', tau + 1))
        if tau == TQP: a.wait_vm('qst')
        a("s_barrier")
        if OPT.get('fine3') and tau in (11, 13, 16): mark(a)
        if tau == TQP: flag_store(a, S_FQ, t3)
        if tau + 4 <= 19: dma_block(tau + 4)
        if tau == OPT.get('tpq', 18):
            poll_issue(a, VP, VPV, 'pq')
            fw_poll_offsets(a, VP+202)
            poll_issue(a, VP+202, VPV+202, 'pw')
    if OPT.get('fine4'): mark(a)
    poll_check(a, VP, VPV, 'pq')
    if OPT.get('fine4'): mark(a)
    attn_stage_q(a, 3)
    attn_stage_kv(a, t0, t1, t2, 2)
    if OPT.get('earlyw', 1):
        poll_check(a, VP+202, VPV+202, 'pw')
        wf_first_slots(a, 3)
    mark(a)
    a.wait_vm(('kv', 0))
    if OPT.get('fine4'): mark(a)
    a(f"s_branch {lbl}_join")
    a.label(f"{lbl}_g1")
    a.reset_counters()
    first.update({'x': True, 'q': True, '1': True})
    if OPT.get('lprio'): a(f"s_setprio {OPT['lprio']}")
    mark4(a, first=True)
    NI = OPT.get('init', 4)
    for tau in range(NI): dma_block(tau)
    pre_address(a, lbl + "_pa", rows=False)
    frag_bases()
    a.wait_vm(('B', 0))
    mark4(a)
    a("s_barrier")
    for tau in range(NI, 4): dma_block(tau)
    for tau in range(0, 9):
        a.wait_vm(('B', tau + 1))
        if tau == 8: a.wait_vm('pst')
        a("s_barrier")
        dma_block(tau + 4)
        if tau == 0: pre_issue(a, rows=False)
        if tau == 1 and OPT.get('pfw1', 1):
            a(f"s_and_b32 s{T0}, s{S_I}, 7")
            a(f"s_mul_i32 s{T0}, s{T0}, 80")
            a(f"s_mul_i32 s{T1}, s{S_LW}, 20")
            a(f"s_add_u32 s{T0}, s{T0}, s{T1}")
            a(f"v_lshrrev_b32 v{t0}, 1, v1")
            a(f"v_add_u32 v{t0}, s{T0}, v{t0}")
            a(f"s_movk_i32 s{T1}, 3456")
            a(f"v_mul_lo_u32 v{t0}, v{t0}, s{T1}")
            a(f"v_and_b32 v{t1}, 1, v1")
            a(f"v_lshl_add_u32 v{t0}, v{t1}, 7, v{t0}")
            a(f"s_lshl_b32 s{T0}, s{S_CJ}, 8")
            a(f"v_add_u32 v{t0}, s{T0}, v{t0}")
            a(f"v_mov_b32 v{t1}, 0x7ffffff0")
            a(f"v_cmp_gt_u32 s[{T4}:{T4+1}], 40, v1")
            a(f"v_cndmask_b32 v{t0}, v{t1}, v{t0}, s[{T4}:{T4+1}]")
            a(f"buffer_load_dword v251, v{t0}, s[{SRD_E}:{SRD_E+3}], 0 offen", tag='touch')
        if tau == OPT.get('trp', 5):
            a.wait_vm('pl')
            repack_finish(a)
        if tau == 7: nonce_issue(a, 252)
    nonce_check(a, 252)
    a(f"s_lshl_b32 s{T0}, s{S_RB}, 7")
    a(f"s_add_u32 s{T0}, s{T0}, {WS_FLAG + FS}")
    a(f"v_mov_b32 v{t0}, s{T0}")
    a(f"s_min_u32 s{T1}, s{S_CJ}, 13")
    a(f"s_lshl_b32 s{T1}, s{T1}, 2")
    a(f"s_add_u32 s{T1}, s{T1}, {WS_FLAG + FC}")
    a(f"v_mov_b32 v{t1}, s{T1}")
    a(f"v_cmp_gt_u32 s[{T4}:{T4+1}], 32, v1")
    a(f"v_cndmask_b32 v{VP}, v{t1}, v{t0}, s[{T4}:{T4+1}]")
    a.wait_vm(('B', 10))
    a("s_barrier")
    if OPT.get('lprio'): a(f"s_setprio {OPT.get('cprio', 0)}")
    mark4(a)
    for r in reads(0, 10, 0): r()
    def g1_bar(tau):
        if tau in (10, 11): a.wait_vm(('B', tau + 1))
    def g1_step(tau, u):
        if tau == 14 and u == 0: poll_issue(a, VP, VPV, 'p1')
        if tau == 17 and u == 0:
            L = uid("nf")
            a(f"s_cmp_ge_u32 s{S_CJ}, 14")
            a(f"s_cbranch_scc1 {L}")
            vm0 = list(a.vm)
            mark4(a)
            poll_check(a, VP, VPV, 'p1')
            a.label(L)
            a.vm = vm0
            mark4(a)
            a(f"s_lshl_b32 s{T0}, s{S_RB}, 10")
            a(f"s_and_b32 s{T1}, s{S_LW}, 1")
            a(f"s_lshl_b32 s{T1}, s{T1}, 9")
            a(f"s_add_u32 s{T0}, s{T0}, s{T1}")
            a(f"s_add_u32 s{T0}, s{T0}, {WS_ST}")
            a(f"v_and_b32 v{t0}, 31, v1")
            a(f"v_lshlrev_b32 v{t0}, 4, v{t0}")
            a(f"buffer_load_dwordx4 {vr(ST,4)}, v{t0}, s[{SRD_WS}:{SRD_WS+3}], s{T0} offen sc1", tag='tab')
            a(f"v_lshrrev_b32 v{t0}, 5, v1")
            a(f"v_lshlrev_b32 v{t0}, 4, v{t0}")
            a(f"s_lshl_b32 s{T0}, s{S_CJ}, 9")
            a(f"s_lshr_b32 s{T1}, s{S_LW}, 1")
            a(f"s_lshl_b32 s{T1}, s{T1}, 8")
            a(f"s_add_u32 s{T0}, s{T0}, s{T1}")
            a(f"s_add_u32 s{T1}, s{T0}, {WS_B1}")
            a(f"s_add_u32 s{T0}, s{T0}, {WS_CS}")
            for ft in range(2):
                for j in range(4):
                    a(f"buffer_load_dwordx4 {vr(CSR+16*ft+4*j,4)}, v{t0}, s[{SRD_WS}:{SRD_WS+3}], s{T0} offen offset:{128*ft + 32*j} sc1", tag='tab')
                    a(f"buffer_load_dwordx4 {vr(B1R+16*ft+4*j,4)}, v{t0}, s[{SRD_WS}:{SRD_WS+3}], s{T1} offen offset:{128*ft + 32*j} sc1", tag='tab')
        return None
    compute(10, g1_bar, g1_step)
    mark4(a)
    C0, C1, VY, ONE = 2, 3, 4, 6
    TU, TE = 32, 40
    a(f"v_mov_b32 v{ONE}, 1.0")
    a(f"v_mov_b32 v{C0}, 0xc0135761")
    a(f"v_mov_b32 v{C1}, 0xbdd2d3e8")
    a(f"v_lshlrev_b32 v{VY}, 4, v1")
    a(f"s_lshl_b32 s{T0}, s{S_CJ}, 3")
    a(f"s_lshr_b32 s{T1}, s{S_LW}, 1")
    a(f"s_lshl_b32 s{T1}, s{T1}, 2")
    a(f"s_add_u32 s{S_ACT}, s{T0}, s{T1}")
    a(f"s_lshl_b32 s{T0}, s{S_RB}, 2")
    a(f"s_and_b32 s{T1}, s{S_LW}, 1")
    a(f"s_lshl_b32 s{T1}, s{T1}, 1")
    a(f"s_add_u32 s{T0}, s{T0}, s{T1}")
    a(f"s_mul_i32 s{T0}, s{T0}, 108")
    a(f"s_add_u32 s{T0}, s{T0}, s{S_ACT}")
    a(f"s_lshl_b32 s{T0}, s{T0}, 10")
    a(f"s_add_u32 s{S_HB}, s{T0}, {WS_H}")
    a(f"s_cmp_lt_u32 s{S_ACT}, 108")
    a(f"s_cselect_b32 s{S_HB}, s{S_HB}, 0x7fff0000")
    a.wait_vm('tab')
    mark4(a)
    P = lambda b, e: vr(b + 2*e, 2)
    for tt in range(2):
        nmp = vr(ST + 2*tt, 2)
        if tt == 1: a(f"s_add_u32 s{S_HB}, s{S_HB}, {108*1024}")
        for ft in range(2):
            for jj in range(2):
                x = ACC + 16*(2*tt+ft) + 8*jj
                for e in range(4):
                    j, i = 2*jj + (e >> 1), 2*(e & 1)
                    a(f"v_pk_fma_f32 {P(TU,e)}, {nmp}, {vr(CSR+16*ft+4*j+i,2)}, {vr(B1R+16*ft+4*j+i,2)} op_sel_hi:[0,1,1]")
                for e in range(4): a(f"v_pk_fma_f32 {P(x,e)}, {nmp}, {P(x,e)}, {P(TU,e)} op_sel:[1,0,0] op_sel_hi:[1,1,1]")
                for e in range(4): a(f"v_pk_mul_f32 {P(TU,e)}, {P(x,e)}, {P(x,e)}")
                for e in range(4): a(f"v_pk_fma_f32 {P(TU,e)}, {P(TU,e)}, {vr(C0,2)}, {vr(C0,2)} op_sel:[0,1,0] op_sel_hi:[1,1,0]")
                for e in range(4): a(f"v_pk_mul_f32 {P(TU,e)}, {P(TU,e)}, {P(x,e)}")
                for e in range(8): a(f"v_exp_f32 v{TE+e}, v{TU+e}")
                for e in range(4): a(f"v_pk_add_f32 {P(TE,e)}, {P(TE,e)}, {vr(ONE,2)} op_sel_hi:[1,0]")
                for e in range(8): a(f"v_rcp_f32 v{TE+e}, v{TE+e}")
                for e in range(4): a(f"v_pk_mul_f32 {P(TE,e)}, {P(TE,e)}, {P(x,e)}")
                d = TD + 4*(4*tt + 2*ft + jj)
                for e in range(4): a(f"v_cvt_pk_bf16_f32 v{d+e}, v{TE+2*e}, v{TE+2*e+1}")
                if not OPT.get('late_h', 1):
                    a(f"buffer_store_dwordx4 {vr(d,4)}, v{VY}, s[{SRD_WS}:{SRD_WS+3}], s{S_HB} offen offset:{(2*ft+jj)*1024} sc1", tag='hst')
    if OPT.get('late_h', 1):
        a(f"s_sub_u32 s{S_HB}, s{S_HB}, {108*1024}")
        for tt in range(2):
            if tt == 1: a(f"s_add_u32 s{S_HB}, s{S_HB}, {108*1024}")
            for ft in range(2):
                for jj in range(2):
                    d = TD + 4*(4*tt + 2*ft + jj)
                    a(f"buffer_store_dwordx4 {vr(d,4)}, v{VY}, s[{SRD_WS}:{SRD_WS+3}], s{S_HB} offen offset:{(2*ft+jj)*1024} sc1", tag='hst')
    mark4(a)
    a(f"s_branch {lbl}_join")
    a.label(f"{lbl}_idle")
    a.reset_counters()
    srd(a, SRD_A, P_AX, SIZES['AX'])
    rowstats_issue(a)
    colsum_issue(a)
    nonce_issue(a, 252)
    rowstats_compute(a)
    colsum_compute(a, lbl + "_cs")
    nonce_check(a, 252)
    a("s_waitcnt vmcnt(0)")
    a("s_barrier")
    a(f"s_lshl_b32 s{T0}, s{S_RB}, 7")
    a(f"s_add_u32 s{T0}, s{T0}, {WS_FLAG + FS}")
    flag_store(a, T0, t3)
    a(f"s_lshl_b32 s{T0}, s{S_RB}, 2")
    a(f"s_add_u32 s{T0}, s{T0}, {WS_FLAG + FC}")
    flag_store(a, T0, t3)
    pre_address(a, lbl + "_pai", rows=False)
    pre_issue(a, rows=False)
    a.wait_vm('pl')
    repack_finish(a)
    a("s_waitcnt vmcnt(0)")
    a("s_barrier")
    pre_flags(a, t3, stats=False)
    a(f"s_mov_b32 s{S_FHO}, 0x7fff0000")
    fq_poll_offsets(a, VP, t3)
    a(f"s_mov_b64 s[{T4}:{T4+1}], -1")
    wait_flags(a, VP, VPV, T4)
    Li = uid("ik")
    a(f"s_cmp_ge_u32 s{S_W}, 4")
    a(f"s_cbranch_scc1 {Li}")
    attn_stage_q(a, 3)
    attn_stage_kv(a, t0, t1, t2, 2)
    if OPT.get('earlyw', 1):
        fw_poll_offsets(a, VP+202)
        poll_issue(a, VP+202, VPV+202, 'pw')
        poll_check(a, VP+202, VPV+202, 'pw')
        wf_first_slots(a, 3)
    a.label(Li)
    a("s_waitcnt vmcnt(0)")
    a.label(f"{lbl}_join")
    if OPT.get('lprio') or OPT.get('cprio'): a("s_setprio 0")
    a.reset_counters()

def stage_attn(a, lbl):
    HP, S_HH, S_QW = S_AHP, 78, 79
    VD, VK, VV, VKX, VW = 2, 3, 4, 5, 10
    t0, t1, t2, t3, t4 = 6, 7, 8, 9, 11
    MK = 12
    Q0, Q1 = 20, 24
    KF = [28, 36]
    VF = [44, 48, 52, 56]
    PF = [60, 64, 68, 72]
    OA = 76
    CS, NM, MX = 96, 97, 98
    S = 104
    VPQ, VPH = 92, 94
    a(f"v_and_b32 v{t0}, 31, v1")
    a(f"v_and_b32 v{VPH}, 15, v1")
    a(f"v_min_u32 v{VPH}, 13, v{VPH}")
    a(f"v_lshlrev_b32 v{VPH}, 2, v{VPH}")
    a(f"s_lshr_b32 s{T1}, s{S_FRB}, 1")
    a(f"s_lshl_b32 s{T1}, s{T1}, 7")
    a(f"s_add_u32 s{T1}, s{T1}, {WS_FLAG + FH}")
    a(f"v_add_u32 v{VPH}, s{T1}, v{VPH}")
    a(f"v_lshrrev_b32 v{t1}, 5, v1")
    for r in range(4): a(f"v_mov_b32 v{KF[0]+r}, 0x3f803f80")
    a(f"v_lshlrev_b32 v{t4}, 4, v0")
    a(f"v_add_u32 v{t4}, {LONES}, v{t4}")
    a(f"v_mov_b32 v{KF[1]}, 208")
    a(f"v_cmp_gt_u32 vcc, v{KF[1]}, v0")
    L = uid("on")
    a(f"s_and_saveexec_b64 s[{T4}:{T4+1}], vcc")
    a(f"s_cbranch_execz {L}")
    a(f"ds_write_b128 v{t4}, {vr(KF[0],4)}")
    a.label(L)
    a(f"s_mov_b64 exec, s[{T4}:{T4+1}]")
    SM = 98
    a(f"v_lshlrev_b32 v{t2}, 2, v{t1}")
    a(f"v_sub_u32 v{t2}, v{t0}, v{t2}")
    VM = 248
    a(f"v_mov_b32 v{VM}, v{t2}")
    a(f"v_mov_b32 v{t3}, 0xffff")
    a(f"v_mov_b32 v{t4}, 0xffff0000")
    for q in range(8):
        r0, r1 = 2*q, 2*q + 1
        a(f"v_cmp_le_i32 s[98:99], {8*(r0 >> 2) + (r0 & 3)}, v{VM}")
        a(f"v_cmp_le_i32 s[100:101], {8*(r1 >> 2) + (r1 & 3)}, v{VM}")
        a(f"v_cndmask_b32 v{MK+q}, 0, v{t3}, s[98:99]")
        a(f"v_cndmask_b32 v{KF[1]}, 0, v{t4}, s[100:101]")
        a(f"v_or_b32 v{MK+q}, v{MK+q}, v{KF[1]}")
    a(f"s_lshl_b32 s{T0}, s{S_QW}, 8")
    a(f"s_mul_i32 s{T3}, s{S_HH}, {5*PST}")
    a(f"s_add_u32 s{T2}, s{T0}, s{T3}")
    a(f"s_add_u32 s{T2}, s{T2}, {LK}")
    a(f"v_lshlrev_b32 v{t2}, 3, v{t0}")
    a(f"v_add_u32 v{t2}, s{T2}, v{t2}")
    a(f"s_movk_i32 s{T1}, {2*PST}")
    a(f"v_mul_lo_u32 v{t3}, v{t1}, s{T1}")
    a(f"v_add_u32 v{VK}, v{t2}, v{t3}")
    a(f"v_add_u32 v{VKX}, {4*PST}, v{t2}")
    a(f"v_bfe_u32 v{t2}, v1, 4, 1")
    a(f"v_and_b32 v{t3}, 3, v1")
    a(f"v_lshl_add_u32 v{t2}, v{t2}, 2, v{t3}")
    a(f"v_bfe_u32 v{t3}, v1, 2, 2")
    a(f"v_lshl_add_u32 v{t3}, v{t1}, 2, v{t3}")
    a(f"v_lshlrev_b32 v{t3}, 3, v{t3}")
    a(f"v_add_u32 v{t3}, s{T0}, v{t3}")
    a(f"s_movk_i32 s{T1}, {PST}")
    a(f"v_mul_lo_u32 v{t4}, v{t2}, s{T1}")
    a(f"v_cmp_gt_u32 s[{T4}:{T4+1}], 5, v{t2}")
    a(f"s_add_u32 s{T3}, s{T3}, {LV}")
    a(f"s_sub_u32 s{T2}, s{T3}, {LONES}")
    a(f"v_lshlrev_b32 v{KF[0]}, 5, v{t2}")
    a(f"v_add_u32 v{KF[0]}, s{T2}, v{KF[0]}")
    a(f"v_and_b32 v{KF[0]}, 255, v{KF[0]}")
    a(f"v_add_u32 v{KF[0]}, {LONES}, v{KF[0]}")
    a(f"v_add_u32 v{KF[0]+1}, s{T3}, v{t4}")
    a(f"v_cndmask_b32 v{KF[0]}, v{KF[0]}, v{KF[0]+1}, s[{T4}:{T4+1}]")
    a(f"v_add_u32 v{VV}, v{KF[0]}, v{t3}")
    a(f"v_mov_b32 v{CS}, 0x3ea52b5c")
    for st in range(2):
        a(f"v_mov_b32 v{KF[st]+6}, 0"); a(f"v_mov_b32 v{KF[st]+7}, 0")
    a(f"v_mov_b32 v{Q1+2}, 0"); a(f"v_mov_b32 v{Q1+3}, 0")
    a(f"v_lshlrev_b32 v{VW}, 4, v1")
    a(f"s_lshl_b32 s{T0}, s{S_ARB}, 2")
    a(f"s_add_u32 s{S_QB}, s{T0}, s{S_QW}")
    a(f"s_mul_i32 s{T0}, s{S_HH}, 5120")
    a(f"s_lshl_b32 s{T1}, s{S_QW}, 8")
    a(f"s_add_u32 s{T0}, s{T0}, s{T1}")
    a(f"s_add_u32 s{T0}, s{T0}, {QL}")
    a(f"v_lshlrev_b32 v{t2}, 3, v{t0}")
    a(f"v_add_u32 v{t2}, s{T0}, v{t2}")
    a(f"v_lshl_add_u32 v{t3}, v{t1}, 11, v{t2}")
    a("s_waitcnt lgkmcnt(0)")
    a("s_barrier")
    a(f"ds_read_b64 {vr(Q0,2)}, v{t3}")
    a(f"ds_read_b64 {vr(Q0+2,2)}, v{t3} offset:1024")
    a(f"ds_read_b64 {vr(Q1,2)}, v{t2} offset:4096")
    a(f"v_cmp_gt_u32 s[{T4}:{T4+1}], 32, v1")
    a("s_waitcnt lgkmcnt(0)")
    for q in (Q1, Q1+1):
        a(f"v_cndmask_b32 v{q}, 0, v{q}, s[{T4}:{T4+1}]")
    mark(a)
    NEG = 0xf149f2ca
    def rd_k(tl):
        st = KF[tl % 2]
        a(f"ds_read_b64 {vr(st,2)}, v{VK} offset:{tl*256}", tag=('k', tl))
        a(f"ds_read_b64 {vr(st+2,2)}, v{VK} offset:{PST + tl*256}", tag=('k', tl))
        a(f"ds_read_b64 {vr(st+4,2)}, v{VKX} offset:{tl*256}", tag=('k', tl))
    rd_k(0)
    for tl in range(9):
        if tl + 1 < 9: rd_k(tl + 1)
        a.wait_lg(('k', tl))
        st = KF[tl % 2]; d = vr(S+16*tl, 16)
        a(f"v_mfma_f32_32x32x16_bf16 {d}, {vr(st,4)}, {vr(Q0,4)}, 0")
        a(f"v_mfma_f32_32x32x16_bf16 {d}, {vr(st+4,4)}, {vr(Q1,4)}, {d}")
    a(f"s_cmp_ge_u32 s{S_QB}, 8")
    a(f"s_cbranch_scc1 {lbl}_full")
    for tl in range(8):
        a(f"s_cmp_ge_u32 s{S_QB}, {8-tl}")
        a(f"s_cbranch_scc1 {lbl}_full")
        a("s_nop 7"); a("s_nop 7")
        for r in range(16): a(f"v_mov_b32 v{S+16*tl+r}, {hex(NEG)}")
    a.label(f"{lbl}_full")
    a("s_nop 7"); a("s_nop 3")
    for r in range(0, 16, 2):
        a(f"v_cmp_le_i32 s[98:99], {8*(r >> 2) + (r & 3)}, v{VM}")
        a(f"v_cmp_le_i32 s[100:101], {8*((r+1) >> 2) + ((r+1) & 3)}, v{VM}")
        a(f"v_cndmask_b32 v{S+r}, v{S+r}, v{S+128+r}, s[98:99]")
        a(f"v_cndmask_b32 v{S+r+1}, v{S+r+1}, v{S+128+r+1}, s[100:101]")
    for c in range(4):
        a(f"v_max3_f32 v{MX+c}, v{S+32*c}, v{S+32*c+1}, v{S+32*c+2}")
    for k in range(3, 31, 2):
        for c in range(4):
            a(f"v_max3_f32 v{MX+c}, v{MX+c}, v{S+32*c+k}, v{S+32*c+k+1}")
    for c in range(4):
        a(f"v_max_f32 v{MX+c}, v{MX+c}, v{S+32*c+31}")
    a(f"v_max3_f32 v{MX}, v{MX}, v{MX+1}, v{MX+2}")
    a(f"v_max_f32 v{MX}, v{MX}, v{MX+3}")
    a(f"v_mov_b32 v{MX+1}, v{MX}")
    a(f"v_permlane32_swap_b32 v{MX}, v{MX+1}")
    a(f"v_max_f32 v{MX}, v{MX}, v{MX+1}")
    a(f"v_mul_f32 v{NM}, v{CS}, v{MX}")
    a(f"v_sub_f32 v{NM}, 0, v{NM}")
    Lv = uid("vb")
    a(f"s_cmp_ge_u32 s{S_W}, 4")
    a(f"s_cbranch_scc1 {Lv}_1")
    a(f"s_waitcnt vmcnt({20 if OPT.get('earlyw', 1) else 0})")
    a(f"s_branch {Lv}_2")
    a.label(f"{Lv}_1")
    a("s_waitcnt vmcnt(0)")
    a.label(f"{Lv}_2")
    a.reset_counters()
    a("s_barrier")
    flag_store(a, S_FHO, t3)
    if not OPT.get('earlyw', 1):
        fw_poll_offsets(a, VPQ)
        poll_issue(a, VPQ, VPQ+1, 'pw')
        poll_check(a, VPQ, VPQ+1, 'pw')
        dma_wf(a, 0, VW); dma_wf(a, 1, VW)
    mark(a)
    nv = [0]; ps = [0]; first = [True]
    def rd_v(tl, kk):
        slot = nv[0] % 4; nv[0] += 1
        for rd in range(2):
            a(f"ds_read_b64_tr_b16 {vr(VF[slot]+2*rd,2)}, v{VV} offset:{tl*256 + kk*128 + rd*64}", tag=('v', tl, kk))
        return slot
    def frag(src):
        p = PF[ps[0] % 4]; ps[0] += 1
        for e in range(8): a(f"v_fma_f32 v{src+e}, v{src+e}, v{CS}, v{NM}")
        for e in range(8): a(f"v_exp_f32 v{src+e}, v{src+e}")
        for e in range(4): a(f"v_cvt_pk_bf16_f32 v{p+e}, v{src+2*e}, v{src+2*e+1}")
        return p
    def pv(p, slot, tag):
        a.wait_lg(tag)
        a(f"v_mfma_f32_32x32x16_bf16 {vr(OA,16)}, {vr(VF[slot],4)}, {vr(p,4)}, {'0' if first[0] else vr(OA,16)}")
        first[0] = False
    pending = None
    for q in range(14):
        tl, kk = 1 + q // 2, q % 2
        slot = rd_v(tl, kk)
        p = frag(S + 16*tl + 8*kk)
        if pending: pv(*pending)
        pending = (p, slot, ('v', tl, kk))
        if q == OPT.get('qpoll', 3): poll_issue(a, VPH, VPH+1, 'ph')
        if q == OPT.get('qtok', 8):
            fin = final_setup(a, VPH)
    for kk in range(2):
        s0 = rd_v(0, kk); s8 = rd_v(8, kk)
        p = frag(S + 8*kk)
        if pending: pv(*pending); pending = None
        p8 = PF[ps[0] % 4]; ps[0] += 1
        for e in range(4): a(f"v_and_b32 v{p8+e}, v{p+e}, v{MK+4*kk+e}")
        for e in range(4): a(f"v_xor_b32 v{p+e}, v{p+e}, v{p8+e}")
        pv(p, s0, ('v', 0, kk))
        pv(p8, s8, ('v', 8, kk))
    a(f"v_and_b32 v{t0}, 1, v1")
    a(f"v_mul_u32_u24 v{t0}, {40*1024}, v{t0}")
    a(f"v_bfe_u32 v{t1}, v1, 1, 4")
    a(f"v_lshl_add_u32 v{t0}, v{t1}, 4, v{t0}")
    a(f"s_and_b32 s{T0}, s{S_QB}, 1")
    a(f"s_lshl_b32 s{T0}, s{T0}, 8")
    a(f"s_lshr_b32 s{T1}, s{S_QB}, 1")
    a(f"s_mul_i32 s{T1}, s{T1}, {80*1024}")
    a(f"s_add_u32 s{T0}, s{T0}, s{T1}")
    a(f"s_add_u32 s{T0}, s{T0}, {WS_O}")
    a(f"v_lshrrev_b32 v{t1}, 5, v1")
    a(f"v_lshl_add_u32 v{t2}, v{t1}, 9, v{t0}")
    a(f"v_rcp_f32 v{NM}, v{OA+12}")
    for r in range(12): a(f"v_mul_f32 v{OA+r}, v{OA+r}, v{NM}")
    for e in range(4): a(f"v_cvt_pk_bf16_f32 v{PF[0]+e}, v{OA+2*e}, v{OA+2*e+1}")
    a(f"v_cvt_pk_bf16_f32 v{PF[1]}, v{OA+8}, v{OA+9}")
    a(f"v_cvt_pk_bf16_f32 v{PF[1]+1}, v{OA+10}, v{OA+11}")
    a(f"s_lshl_b32 s{T1}, s{HP}, 1")
    a(f"s_add_u32 s{T1}, s{T1}, s{S_HH}")
    a(f"s_lshl_b32 s{T1}, s{T1}, 10")
    a(f"s_add_u32 s{T1}, s{T1}, s{T0}")
    a(f"buffer_store_dwordx4 {vr(PF[0],4)}, v{t2}, s[{SRD_WS}:{SRD_WS+3}], s{T1} offen sc1", tag='ost')
    a(f"s_lshr_b32 s{T1}, s{HP}, 1")
    a(f"s_add_u32 s{T1}, s{T1}, 32")
    a(f"s_lshl_b32 s{T1}, s{T1}, 10")
    a(f"s_and_b32 s{T2}, s{HP}, 1")
    a(f"s_lshl_b32 s{T2}, s{T2}, 9")
    a(f"s_add_u32 s{T1}, s{T1}, s{T2}")
    a(f"s_lshl_b32 s{T2}, s{S_HH}, 3")
    a(f"s_add_u32 s{T1}, s{T1}, s{T2}")
    a(f"s_add_u32 s{T1}, s{T1}, s{T0}")
    a("s_mov_b32 exec_hi, 0")
    a(f"buffer_store_dwordx2 {vr(PF[1],2)}, v{t0}, s[{SRD_WS}:{SRD_WS+3}], s{T1} offen sc1", tag='ost')
    a("s_mov_b32 exec_hi, -1")
    S_FO = 78
    a(f"s_lshl_b32 s{T0}, s{S_ARB}, 7")
    a(f"s_lshl_b32 s{T1}, s{HP}, 2")
    a(f"s_add_u32 s{T0}, s{T0}, s{T1}")
    a(f"s_add_u32 s{S_FO}, s{T0}, {WS_FLAG + FO}")
    mark(a)
    return dict(VPH=VPH, VW=VW, S_FO=S_FO, fin=fin)

TR, NT, HM, NM_ = 120, 24, 27, 37
F_HB, F_OB, F_TG, F_KG = 70, 71, 72, 81
F_VB = 11
def final_setup(a, VPH):
    TD = OPT.get('td', 16)
    t1, t2, t3 = 6, 7, 8
    a(f"s_and_b32 s{F_TG}, s{S_W}, 3")
    a(f"s_lshr_b32 s{F_KG}, s{S_W}, 2")
    poll_check(a, VPH, VPH+1, 'ph')
    a(f"v_lshrrev_b32 v{t1}, 5, v1")
    a(f"v_bfe_u32 v{t2}, v1, 4, 1")
    a(f"v_lshlrev_b32 v{t1}, 10, v{t1}")
    a(f"v_lshl_add_u32 v{t1}, v{t2}, 9, v{t1}")
    a(f"v_and_b32 v{t2}, 15, v1")
    a(f"s_and_b32 s{T0}, s{F_TG}, 1")
    a(f"s_lshl_b32 s{T0}, s{T0}, 4")
    a(f"v_add_u32 v{t3}, s{T0}, v{t2}")
    a(f"v_lshl_add_u32 v{F_VB}, v{t3}, 4, v{t1}")
    a(f"s_lshl_b32 s{T0}, s{S_FRB}, 1")
    a(f"s_lshr_b32 s{T1}, s{F_TG}, 1")
    a(f"s_add_u32 s{T0}, s{T0}, s{T1}")
    a(f"s_lshl_b32 s{T2}, s{F_KG}, 11")
    a(f"s_mul_i32 s{T1}, s{T0}, {108*1024}")
    a(f"s_add_u32 s{T1}, s{T1}, s{T2}")
    a(f"s_add_u32 s{F_HB}, s{T1}, {WS_H}")
    a(f"s_mul_i32 s{T1}, s{T0}, {40*1024}")
    a(f"s_add_u32 s{T1}, s{T1}, s{T2}")
    a(f"s_add_u32 s{F_OB}, s{T1}, {WS_O}")
    def ld_t(m):
        sb, k = (F_HB, m) if m < HM else (F_OB, m - HM)
        if k > 0: a(f"s_add_u32 s{sb}, s{sb}, 4096")
        a(f"buffer_load_dwordx4 {vr(TR+4*(m % NT),4)}, v{F_VB}, s[{SRD_WS}:{SRD_WS+3}], s{sb} offen sc1", tag=('T', m))
    for m in range(TD): ld_t(m)
    return ld_t

def stage_final(a, lbl, st):
    VPH, S_FO = st['VPH'], st['S_FO']
    VW = st['VW']; ld_t = st['fin']
    VG, VO, VF = 3, 4, 6
    VA = 12
    t0, t1, t2, t3 = 16, 17, 18, 19
    AS = [20, 40, 60]
    ACB, ACA, BI = 100, 216, 80
    TD = OPT.get('td', 16)
    NM = NM_
    S_TG, S_KG = F_TG, F_KG
    srd(a, SRD_A, P_B2, SIZES['B2'])
    srd(a, SRD_B, P_OUT, SIZES['OUT'])
    a(f"s_mul_i32 s{T0}, s{S_KG}, 5120")
    a(f"v_lshlrev_b32 v{t1}, 4, v1")
    a(f"v_add_u32 v{t1}, s{T0}, v{t1}")
    for k in range(4): a(f"v_add_u32 v{VA+k}, {RING[k]}, v{t1}")
    def rd_a(m, F):
        g, u = m >> 2, m & 3
        a(f"ds_read_b128 {vr(AS[m % 3]+4*F,4)}, v{VA + g % 4} offset:{u*10240 + F*1024}", tag=('A', m, F))
    a.wait_vm(('W', 0))
    a("s_barrier")
    for m in range(2):
        for F in range(5): rd_a(m, F)
    dma_wf(a, 2, VW)
    a(f"s_lshl_b32 s{T0}, s{S_FRB}, 6")
    a(f"s_lshr_b32 s{T1}, s{S_TG}, 1")
    a(f"s_add_u32 s{T0}, s{T0}, s{T1}")
    a(f"s_and_b32 s{T1}, s{S_TG}, 1")
    a(f"s_lshl_b32 s{T1}, s{T1}, 5")
    a(f"s_add_u32 s{T0}, s{T0}, s{T1}")
    a(f"v_and_b32 v{t3}, 15, v1")
    a(f"v_lshlrev_b32 v{t3}, 1, v{t3}")
    a(f"v_add_u32 v{t3}, s{T0}, v{t3}")
    a(f"v_lshlrev_b32 v{t1}, 2, v{t3}")
    a(f"v_add_u32 v{t1}, {WS_G}, v{t1}")
    a(f"buffer_load_dword v{VG}, v{t1}, s[{SRD_WS}:{SRD_WS+3}], 0 offen sc1", tag='g')
    a(f"v_lshrrev_b32 v{t0}, 4, v1")
    a(f"s_movk_i32 s{T1}, 1280")
    a(f"v_mul_lo_u32 v{t3}, v{t3}, s{T1}")
    a(f"s_mul_i32 s{T0}, s{S_FCJ}, 160")
    a(f"v_lshl_add_u32 v{t3}, v{t0}, 3, v{t3}")
    a(f"v_add_u32 v{VO}, s{T0}, v{t3}")
    a(f"v_lshlrev_b32 v{t1}, 3, v{t0}")
    a(f"v_add_u32 v{t1}, s{T0}, v{t1}")
    for F in range(5):
        a(f"buffer_load_dwordx2 {vr(BI+2*F,2)}, v{t1}, s[{SRD_A}:{SRD_A+3}], 0 offen offset:{32*F}", tag='g')
    a(f"s_lshr_b32 s{T0}, s{S_FRB}, 1")
    a(f"s_lshl_b32 s{T0}, s{T0}, 7")
    a(f"s_add_u32 s{T0}, s{T0}, {WS_FLAG + FO}")
    a(f"v_and_b32 v{VF}, 15, v1")
    a(f"v_lshlrev_b32 v{VF}, 2, v{VF}")
    a(f"v_add_u32 v{VF}, s{T0}, v{VF}")
    mark(a)
    NG = 10
    POLL = HM - TD - 4
    for m in range(NM):
        g, u = m >> 2, m & 3
        if m == HM: mark(a)
        if u == 2 and g + 1 < NG:
            if g == 0: a.wait_vm(['ost', ('W', 1)])
            else: a.wait_vm(('W', g + 1))
            a("s_barrier")
            if g == 0:
                flag_store(a, S_FO, t1)
                dma_wf(a, 3, VW)
            elif g + 3 < NG and not OPT.get('f_nodma'): dma_wf(a, g + 3, VW)
        if m == POLL: poll_issue(a, VF, VF+1, 'fo')
        if m + TD == HM: poll_check(a, VF, VF+1, 'fo')
        a.wait_vm(('T', m))
        for F in range(5):
            a.wait_lg(('A', m, F))
            acc = (ACB if m < HM else ACA) + 4*F
            d = vr(acc, 4)
            a(f"v_mfma_f32_16x16x32_bf16 {d}, {vr(AS[m % 3]+4*F,4)}, {vr(TR+4*(m % NT),4)}, {'0' if m in (0, HM) else d}")
            if m + 2 < NM and not OPT.get('f_nolds'):
                rd_a(m + 2, F)
            if F == 2 and m + TD < NM and not OPT.get('f_notok'):
                ld_t(m + TD)
    mark(a)
    a.wait_vm('g')
    a(f"v_sub_f32 v{t0}, 1.0, v{VG}")
    Lb = uid("bi")
    a(f"s_cmp_lg_u32 s{S_KG}, 0")
    a(f"s_cbranch_scc1 {Lb}")
    for F in range(5):
        for e in range(2):
            a(f"v_lshlrev_b32 v{t2}, 16, v{BI+2*F+e}")
            a(f"v_and_b32 v{t3}, 0xffff0000, v{BI+2*F+e}")
            a(f"v_add_f32 v{ACB+4*F+2*e}, v{ACB+4*F+2*e}, v{t2}")
            a(f"v_add_f32 v{ACB+4*F+2*e+1}, v{ACB+4*F+2*e+1}, v{t3}")
    a.label(Lb)
    for r in range(20): a(f"v_mul_f32 v{ACB+r}, v{ACB+r}, v{t0}")
    for r in range(20): a(f"v_fmac_f32 v{ACB+r}, v{ACA+r}, v{VG}")
    a(f"v_lshlrev_b32 v{t1}, 4, v1")
    a(f"s_mul_i32 s{T0}, s{S_TG}, 5120")
    a(f"s_add_u32 s{T0}, s{T0}, {RING[2]}")
    a(f"v_add_u32 v{t1}, s{T0}, v{t1}")
    L = uid("rd")
    a(f"s_cmp_eq_u32 s{S_KG}, 0")
    a(f"s_cbranch_scc1 {L}")
    for F in range(5):
        a(f"ds_write_b128 v{t1}, {vr(ACB+4*F,4)} offset:{F*1024}")
    a("s_waitcnt lgkmcnt(0)")
    a("s_barrier")
    a("s_endpgm")
    a.label(L)
    a("s_barrier")
    for F in range(5):
        a(f"ds_read_b128 {vr(ACA+4*F,4)}, v{t1} offset:{F*1024}")
    a("s_waitcnt lgkmcnt(0)")
    for r in range(20): a(f"v_add_f32 v{ACB+r}, v{ACB+r}, v{ACA+r}")
    for F in range(5):
        d = AS[0] + 2*F
        a(f"v_cvt_pk_bf16_f32 v{d}, v{ACB+4*F}, v{ACB+4*F+1}")
        a(f"v_cvt_pk_bf16_f32 v{d+1}, v{ACB+4*F+2}, v{ACB+4*F+3}")
        a(f"buffer_store_dwordx2 {vr(d,2)}, v{VO}, s[{SRD_B}:{SRD_B+3}], 0 offen offset:{32*F}")
    a.reset_counters()

def code_prefetch(a):
    L = uid("cp")
    a(f"s_cmp_lg_u32 s{S_W}, 3")
    a(f"s_cbranch_scc1 {L}_skip")
    a(f"s_getpc_b64 s[{T4}:{T4+1}]")
    a.label(L)
    a(f"s_and_b32 s{T0}, s{S_I}, 7")
    a(f"s_lshl_b32 s{T0}, s{T0}, 13")
    a("v_lshlrev_b32 v251, 7, v1")
    a(f"v_add_u32 v251, s{T0}, v251")
    a(f"v_min_u32 v251, L_end-{L}-4, v251")
    vm = list(a.vm)
    a(f"global_load_dword v251, v251, s[{T4}:{T4+1}]")
    a.vm = vm
    a.label(f"{L}_skip")

def build():
    if OPT.get('fine2'):
        G_mark = G.mark
    OPT['mega'] = True
    LDS = 163840
    name = NAME + "_kernel"
    a = Asm()
    a("s_cmp_ge_u32 s2, 256")
    a("s_cbranch_scc1 L_end")
    prologue(a)
    nonce_post(a)
    if OPT.get('cpf', 1): code_prefetch(a)
    stamp(a, 0, 0); CTX['k'] = 0; CTX['slot'] = 0
    if OPT.get('prio'): a(f"s_setprio {OPT['prio']}")
    stage1g(a, "s1"); mark(a)
    st = stage_attn(a, "attn")
    stage_final(a, "fin", st)
    if G.STAMPS: a("s_waitcnt vmcnt(0)")
    mark(a)
    a.label("L_end")
    return [(name, a.text())], LDS

def emit(ks, LDS):
    s = "\n".join(G.header_comment()) + "\n"
    s += f"; @launch grid=(256,1,1) block=(512,1,1) lds={LDS}\n"
    s += '.amdgcn_target "amdgcn-amd-amdhsa--gfx950"\n.text\n'
    for name, body in ks:
        s += G.kernel_text(name, body, 256, LDS)
    s += '.section .rodata,"a"\n'
    for name, _ in ks:
        s += ".p2align 6\n" + G.descriptor(name)
    return s

if __name__ == "__main__":
    if "stamps" in sys.argv: G.STAMPS = True
    for arg in sys.argv[1:]:
        if "=" in arg:
            k, v = arg.split("="); OPT[k] = int(v)
    ks, LDS = build()
    sys.stdout.write(emit(ks, LDS))
```

```python
import sys
import gen as G
from gen import mark4
from gen import (Asm, NAME, SIZES, srd, vr, uid, OPT, mark, stamp, CTX, dpp_sum16, WF_TILE,
                 P_AX, P_WQKV, P_WO, P_W1, P_B1, P_W2, P_B2, P_GW, P_OUT, P_DBG, P_WS,
                 SRD_A, SRD_B, SRD_WS, SRD_C, S_W, S_IDX, S_X, S_I, T0, T1, T2, T3, T4, T5, T6, T7,
                 S_RB, S_CJ, S_MASK, S_NONCE, nonce_post, nonce_get, publish, wait_flags)

WS_ST   = 0x0000000
WS_CS   = 0x0010000
WS_B1   = 0x0012000
WS_G    = G.WS_G
WS_QKV  = G.WS_QKV
WS_H, WS_O, WS_WF, WS_FLAG = G.WS_H, G.WS_O, G.WS_WF, G.WS_FLAG
FS, FW, FQ, FH, FO, FC = 0, 2048, 3072, 5120, 7168, 9216
PST = 3104
LB = 98304
LK, LV, LONES = LB, LB + 10*PST, LB + 20*PST
RING = [0, 40960, 81920, 122880]
WSLOT = 40960
SRD_D = 60
S_KX, S_KQ, S_K1 = 58, 59, 80
S_QB = 61
S_FHO, S_HBO = 86, 87
S_ARB, S_AHP, S_LW = 88, 89, 90

V_FLG = 250
def flag_setup(a):
    a(f"v_mov_b32 v{V_FLG}, 0x7ffffff0")
    a(f"v_cmp_eq_u32 s[{T4}:{T4+1}], 0, v0")
    a(f"v_cndmask_b32 v{V_FLG}, v{V_FLG}, 0, s[{T4}:{T4+1}]")

def flag_store(a, sflag, v):
    a(f"v_mov_b32 v{v}, s{S_NONCE}")
    a(f"buffer_store_dword v{v}, v{V_FLG}, s[{SRD_WS}:{SRD_WS+3}], s{sflag} offen sc1", tag='flag')

def poll_issue(a, voff, vval, tag):
    a(f"buffer_load_dword v{vval}, v{voff}, s[{SRD_WS}:{SRD_WS+3}], 0 offen sc1", tag=tag)

def poll_check(a, voff, vval, tag):
    L = uid("pc")
    a.wait_vm(tag)
    keep = list(a.vm)
    a.label(L)
    a(f"v_cmp_ne_u32 vcc, s{S_NONCE}, v{vval}")
    a("s_nop 4")
    a(f"s_cbranch_vccz {L}_ok")
    a("s_sleep 1")
    a(f"buffer_load_dword v{vval}, v{voff}, s[{SRD_WS}:{SRD_WS+3}], 0 offen sc1")
    a("s_waitcnt vmcnt(0)")
    a(f"s_branch {L}")
    a.label(f"{L}_ok")
    a.vm = keep

def poll_recheck(a, voff, vval):
    L = uid("pr")
    keep = list(a.vm)
    a.label(L)
    a(f"v_cmp_ne_u32 vcc, s{S_NONCE}, v{vval}")
    a("s_nop 4")
    a(f"s_cbranch_vccz {L}_ok")
    a("s_sleep 1")
    a(f"buffer_load_dword v{vval}, v{voff}, s[{SRD_WS}:{SRD_WS+3}], 0 offen sc1")
    a("s_waitcnt vmcnt(0)")
    a(f"s_branch {L}")
    a.label(f"{L}_ok")
    a.vm = keep

def prologue(a):
    a("s_load_dwordx16 s[4:19], s[0:1], 0")
    a("s_load_dwordx8 s[20:27], s[0:1], 64")
    a("v_lshrrev_b32 v2, 6, v0")
    a("v_and_b32 v1, 63, v0")
    a(f"v_readfirstlane_b32 s{S_W}, v2")
    a(f"s_and_b32 s{S_X}, s2, 7")
    a(f"s_lshr_b32 s{S_I}, s2, 3")
    a(f"s_lshr_b32 s{T0}, s{S_X}, 2")
    a(f"s_lshl_b32 s{T0}, s{T0}, 3")
    a(f"s_and_b32 s{T1}, s{S_I}, 7")
    a(f"s_add_u32 s{S_RB}, s{T0}, s{T1}")
    a(f"s_and_b32 s{T0}, s{S_X}, 3")
    a(f"s_lshl_b32 s{T0}, s{T0}, 2")
    a(f"s_lshr_b32 s{T1}, s{S_I}, 3")
    a(f"s_add_u32 s{S_CJ}, s{T0}, s{T1}")
    a("s_waitcnt lgkmcnt(0)")
    srd(a, SRD_WS, P_WS, G.WS_SIZE)
    flag_setup(a)

RX, RG, RT, RO = 160, 168, 176, 186
VS = 128
S_ST, S_RPO, S_RPM = 82, 83, 84

def pre_address(a, lbl, two=False, rows=True):
    t0, t1, t2, t3, t4, t5 = range(RT, RT+6)
    if rows: row_address(a, two)
    repack_address(a, lbl)

def row_address(a, two):
    t0, t1, t2, t3, t4, t5 = range(RT, RT+6)
    srd(a, SRD_D, P_GW, SIZES['GW'])
    a(f"s_lshl_b32 s{T0}, s{S_RB}, 7")
    a(f"s_lshl_b32 s{T1}, s{S_CJ}, 3")
    a(f"s_add_u32 s{T0}, s{T0}, s{T1}")
    a(f"s_add_u32 s{T0}, s{T0}, s{S_W}")
    if two: a(f"s_sub_u32 s{T0}, s{T0}, 4")
    a(f"s_mul_i32 s{T1}, s{T0}, 1280")
    a(f"v_lshlrev_b32 v{RO+1}, 4, v1")
    a(f"v_add_u32 v{RO}, s{T1}, v{RO+1}")
    a(f"v_mov_b32 v{t0}, 0x7ffffff0")
    a(f"v_cmp_gt_u32 s[{T4}:{T4+1}], 16, v1")
    a(f"v_add_u32 v{t1}, 1024, v{RO}")
    a(f"v_cndmask_b32 v{RO+2}, v{t0}, v{t1}, s[{T4}:{T4+1}]")
    a(f"v_add_u32 v{t1}, 1024, v{RO+1}")
    a(f"v_cndmask_b32 v{RO+3}, v{t0}, v{t1}, s[{T4}:{T4+1}]")
    a(f"s_mov_b32 s85, s{T0}")

def repack_address(a, lbl):
    t0, t1, t2, t3, t4, t5 = range(RT, RT+6)
    a(f"s_mul_i32 s{T0}, s{S_I}, 3")
    a(f"s_lshl_b32 s{T1}, s{S_I}, 1")
    a(f"s_add_u32 s{T1}, s{T1}, 10")
    a(f"s_cmp_lt_u32 s{S_I}, 10")
    a(f"s_cselect_b32 s{T0}, s{T0}, s{T1}")
    a(f"s_cselect_b32 s{T1}, 3, 2")
    a(f"s_sub_u32 s{T2}, s{S_W}, 4")
    a(f"s_add_u32 s{S_ST}, s{T0}, s{T2}")
    a(f"s_cmp_lt_u32 s{T2}, s{T1}")
    a(f"s_cselect_b32 s{S_ST}, s{S_ST}, 0x100")
    a(f"s_cselect_b32 s{S_RPO}, 0, 0x7fff0000")
    a(f"s_mul_i32 s{T2}, s{T2}, 5120")
    a(f"s_add_u32 s{T2}, s{T2}, {RPL}")
    a(f"s_cselect_b32 s{S_RPM}, s{T2}, s{T2}") if False else None
    a(f"s_cmp_lt_u32 s{S_ST}, 74")
    a(f"s_cselect_b32 s{S_RPM}, s{T2}, {163840}")
    for n in range(5): a(f"v_mov_b32 v{VS+n}, 0")
    srd(a, SRD_C, P_W2, SIZES['W2'])
    a(f"s_cmp_ge_u32 s{S_ST}, 74")
    a(f"s_cbranch_scc1 {lbl}_go")
    a(f"s_movk_i32 s{T6}, 6554")
    a(f"s_movk_i32 s{T7}, 1280")
    a(f"s_mul_i32 s{T2}, s{S_X}, 160")
    a(f"s_cmp_ge_u32 s{S_ST}, 54")
    a(f"s_cbranch_scc1 {lbl}_wo")
    a(f"s_lshl_b32 s{T3}, s{S_ST}, 5")
    for n in range(5):
        a(f"v_add_u32 v{t0}, {64*n}, v1")
        a(f"v_mul_u32_u24 v{t1}, s{T6}, v{t0}")
        a(f"v_lshrrev_b32 v{t1}, 16, v{t1}")
        a(f"v_mul_u32_u24 v{t2}, 10, v{t1}")
        a(f"v_sub_u32 v{t2}, v{t0}, v{t2}")
        a(f"v_add_u32 v{t1}, s{T3}, v{t1}")
        a(f"v_mul_lo_u32 v{t1}, v{t1}, s{T7}")
        a(f"v_lshl_add_u32 v{t1}, v{t2}, 4, v{t1}")
        a(f"v_add_u32 v{VS+n}, s{T2}, v{t1}")
    a(f"s_branch {lbl}_go")
    a.label(f"{lbl}_wo")
    srd(a, SRD_C, P_WO, SIZES['WO'])
    a(f"s_sub_u32 s{T3}, s{S_ST}, 54")
    a(f"s_lshl_b32 s{T3}, s{T3}, 1")
    for n in range(5):
        a(f"v_add_u32 v{t0}, {64*n}, v1")
        a(f"v_mul_u32_u24 v{t1}, s{T6}, v{t0}")
        a(f"v_lshrrev_b32 v{t1}, 16, v{t1}")
        a(f"v_mul_u32_u24 v{t2}, 10, v{t1}")
        a(f"v_sub_u32 v{t2}, v{t0}, v{t2}")
        a(f"v_lshrrev_b32 v{t3}, 4, v{t1}")
        a(f"v_add_u32 v{t3}, s{T3}, v{t3}")
        a(f"v_and_b32 v{t1}, 15, v{t1}")
        a(f"v_mul_u32_u24 v{t4}, 20, v{t3}")
        a(f"v_add_u32 v{t4}, v{t4}, v{t1}")
        a(f"v_cmp_gt_u32 s[98:99], 32, v{t3}")
        a(f"v_subrev_u32 v{t3}, 32, v{t3}")
        a(f"v_lshlrev_b32 v{t3}, 2, v{t3}")
        a(f"v_bfe_u32 v{t5}, v{t1}, 2, 1")
        a(f"v_lshl_add_u32 v{t3}, v{t5}, 1, v{t3}")
        a(f"v_lshrrev_b32 v{t5}, 3, v{t1}")
        a(f"v_add_u32 v{t3}, v{t3}, v{t5}")
        a(f"v_mul_u32_u24 v{t3}, 20, v{t3}")
        a(f"v_and_b32 v{t1}, 3, v{t1}")
        a(f"v_add3_u32 v{t3}, v{t3}, v{t1}, 16")
        a(f"v_cndmask_b32 v{t1}, v{t3}, v{t4}, s[98:99]")
        a(f"v_mul_lo_u32 v{t1}, v{t1}, s{T7}")
        a(f"v_lshl_add_u32 v{t1}, v{t2}, 4, v{t1}")
        a(f"v_add_u32 v{VS+n}, s{T2}, v{t1}")
    a.label(f"{lbl}_go")

def row_issue2(a):
    a(f"v_add_u32 v{RO}, {4*1280}, v{RO}")
    a(f"v_mov_b32 v{RT}, 0x7ffffff0")
    a(f"v_add_u32 v{RT+1}, 1024, v{RO}")
    a(f"v_cmp_gt_u32 s[100:101], 16, v1")
    a(f"v_cndmask_b32 v{RO+2}, v{RT}, v{RT+1}, s[100:101]")
    a(f"buffer_load_dwordx4 {vr(RX2,4)}, v{RO}, s[{SRD_A}:{SRD_A+3}], 0 offen", tag='pl2')
    a(f"buffer_load_dwordx4 {vr(RX2+4,4)}, v{RO+2}, s[{SRD_A}:{SRD_A+3}], 0 offen", tag='pl2')

RX2 = 192
def pre_issue(a, rows=True):
    if rows:
        a(f"buffer_load_dwordx4 {vr(RX,4)}, v{RO}, s[{SRD_A}:{SRD_A+3}], 0 offen", tag='pl')
        a(f"buffer_load_dwordx4 {vr(RX+4,4)}, v{RO+2}, s[{SRD_A}:{SRD_A+3}], 0 offen", tag='pl')
        a(f"buffer_load_dwordx4 {vr(RG,4)}, v{RO+1}, s[{SRD_D}:{SRD_D+3}], 0 offen", tag='pl')
        a(f"buffer_load_dwordx4 {vr(RG+4,4)}, v{RO+3}, s[{SRD_D}:{SRD_D+3}], 0 offen", tag='pl')
    for n in range(5):
        a(f"s_add_u32 m0, s{S_RPM}, {n*1024}")
        a(f"buffer_load_dwordx4 v{VS+n}, s[{SRD_C}:{SRD_C+3}], s{S_RPO} offen lds", tag='pl')

def pre_thunks(a, RX=RX, tag='pl', VO=RO):
    su, sq, dt, one, t0, t1, t2 = range(RT, RT+7)
    T = []
    I = lambda txt: T.append(lambda: a(txt))
    T.append(lambda: a.wait_vm(tag))
    I(f"v_mov_b32 v{one}, 0x3f803f80")
    I(f"v_mov_b32 v{su}, 0"); I(f"v_mov_b32 v{sq}, 0"); I(f"v_mov_b32 v{dt}, 0")
    for d in range(8):
        I(f"v_dot2c_f32_bf16 v{su}, v{RX+d}, v{one}")
        I(f"v_dot2c_f32_bf16 v{sq}, v{RX+d}, v{RX+d}")
        I(f"v_dot2c_f32_bf16 v{dt}, v{RX+d}, v{RG+d}")
    for r in (8, 4, 2, 1):
        for v in (su, sq, dt):
            I(f"v_add_f32_dpp v{v}, v{v}, v{v} row_ror:{r} row_mask:0xf bank_mask:0xf")
    for op in ("v_permlane16_swap_b32", "v_permlane32_swap_b32"):
        for v, t in ((su, t0), (sq, t1), (dt, t2)): I(f"v_mov_b32 v{t}, v{v}")
        for v, t in ((su, t0), (sq, t1), (dt, t2)): I(f"{op} v{v}, v{t}")
        for v, t in ((su, t0), (sq, t1), (dt, t2)): I(f"v_add_f32 v{v}, v{v}, v{t}")
    I(f"v_mul_f32 v{su}, 0x3acccccd, v{su}")
    I(f"v_mul_f32 v{sq}, 0x3acccccd, v{sq}")
    I(f"v_mul_f32 v{dt}, 0xbfb8aa3b, v{dt}")
    I(f"v_fma_f32 v{sq}, -v{su}, v{su}, v{sq}")
    I(f"v_exp_f32 v{dt}, v{dt}")
    I(f"v_add_f32 v{sq}, 0x3727c5ac, v{sq}")
    I(f"v_add_f32 v{dt}, 1.0, v{dt}")
    I(f"v_rsq_f32 v{t1}, v{sq}")
    I(f"v_rcp_f32 v{dt}, v{dt}")
    I(f"v_mul_f32 v{t0}, v{su}, v{t1}")
    I(f"v_sub_f32 v{t0}, 0, v{t0}")
    I(f"v_mov_b32 v{VO}, 0x7ffffff0")
    I(f"v_cmp_eq_u32 s[100:101], 0, v1")
    I(f"v_cndmask_b32 v{VO}, v{VO}, 0, s[100:101]")
    I(f"s_lshl_b32 s98, s85, 3")
    I(f"s_add_u32 s98, s98, {WS_ST}")
    T.append(lambda: a(f"buffer_store_dwordx2 {vr(t0,2)}, v{VO}, s[{SRD_WS}:{SRD_WS+3}], s98 offen sc1", tag='pst'))
    I(f"s_lshl_b32 s98, s85, 2")
    I(f"s_add_u32 s98, s98, {WS_G}")
    T.append(lambda: a(f"buffer_store_dword v{dt}, v{VO}, s[{SRD_WS}:{SRD_WS+3}], s98 offen sc1", tag='pst'))
    return T

def rowstats_issue(a):
    XB, GW, o0, o1, t0 = 128, 108, 96, 97, 98
    srd(a, SRD_D, P_GW, SIZES['GW'])
    a(f"s_lshl_b32 s{T0}, s{S_RB}, 7")
    a(f"s_lshl_b32 s{T1}, s{S_W}, 4")
    a(f"s_add_u32 s85, s{T0}, s{T1}")
    a(f"v_lshrrev_b32 v{t0}, 4, v1")
    a(f"v_add_u32 v{t0}, s85, v{t0}")
    a(f"s_movk_i32 s{T1}, 1280")
    a(f"v_mul_lo_u32 v{o0}, v{t0}, s{T1}")
    a(f"v_and_b32 v{o1}, 15, v1")
    a(f"v_lshlrev_b32 v{o1}, 4, v{o1}")
    a(f"v_add_u32 v{o0}, v{o0}, v{o1}")
    for i in range(5):
        a(f"buffer_load_dwordx4 {vr(GW+4*i,4)}, v{o1}, s[{SRD_D}:{SRD_D+3}], 0 offen offset:{256*i}", tag='gw')
    for q in range(4):
        a(f"s_movk_i32 s{T2}, {q*4*1280}")
        for i in range(5):
            a(f"buffer_load_dwordx4 {vr(XB+20*q+4*i,4)}, v{o0}, s[{SRD_A}:{SRD_A+3}], s{T2} offen offset:{256*i}", tag=('x', q))

def rowstats_compute(a):
    XB, GW = 128, 108
    su, sq, dt, one, t0, t1, t2 = 98, 99, 100, 101, 102, 103, 104
    NMv, RSv, GV = 106, 107, 105
    a(f"v_mov_b32 v{one}, 0x3f803f80")
    a(f"v_and_b32 v{t2}, 15, v1")
    for q in range(4):
        a.wait_vm(('x', q))
        a(f"v_mov_b32 v{su}, 0"); a(f"v_mov_b32 v{sq}, 0"); a(f"v_mov_b32 v{dt}, 0")
        for d in range(20):
            x = XB + 20*q + d
            a(f"v_dot2c_f32_bf16 v{su}, v{x}, v{one}")
            a(f"v_dot2c_f32_bf16 v{sq}, v{x}, v{x}")
            a(f"v_dot2c_f32_bf16 v{dt}, v{x}, v{GW+d}")
        for k in (8, 4, 2, 1):
            for v in (su, sq, dt):
                a(f"v_add_f32_dpp v{v}, v{v}, v{v} row_ror:{k} row_mask:0xf bank_mask:0xf")
        a(f"v_mul_f32 v{su}, 0x3acccccd, v{su}")
        a(f"v_mul_f32 v{sq}, 0x3acccccd, v{sq}")
        a(f"v_mul_f32 v{dt}, 0xbfb8aa3b, v{dt}")
        a(f"v_fma_f32 v{sq}, -v{su}, v{su}, v{sq}")
        a(f"v_exp_f32 v{dt}, v{dt}")
        a(f"v_add_f32 v{sq}, 0x3727c5ac, v{sq}")
        a(f"v_add_f32 v{dt}, 1.0, v{dt}")
        a(f"v_rsq_f32 v{t1}, v{sq}")
        a(f"v_rcp_f32 v{dt}, v{dt}")
        a(f"v_mul_f32 v{t0}, v{su}, v{t1}")
        a(f"v_sub_f32 v{t0}, 0, v{t0}")
        a(f"v_cmp_eq_u32 s[{T4}:{T4+1}], {q}, v{t2}")
        a(f"v_cndmask_b32 v{NMv}, v{NMv}, v{t0}, s[{T4}:{T4+1}]")
        a(f"v_cndmask_b32 v{RSv}, v{RSv}, v{t1}, s[{T4}:{T4+1}]")
        a(f"v_cndmask_b32 v{GV}, v{GV}, v{dt}, s[{T4}:{T4+1}]")
    a(f"v_lshrrev_b32 v{t0}, 4, v1")
    a(f"v_lshl_add_u32 v{t0}, v{t2}, 2, v{t0}")
    a(f"v_add_u32 v{t0}, s85, v{t0}")
    a(f"v_mov_b32 v{su}, 0x7ffffff0")
    a(f"v_cmp_gt_u32 s[{T4}:{T4+1}], 4, v{t2}")
    a(f"v_lshlrev_b32 v{t1}, 3, v{t0}")
    a(f"v_cndmask_b32 v{t1}, v{su}, v{t1}, s[{T4}:{T4+1}]")
    a(f"v_lshlrev_b32 v{t0}, 2, v{t0}")
    a(f"v_cndmask_b32 v{t0}, v{su}, v{t0}, s[{T4}:{T4+1}]")
    a(f"s_mov_b32 s{T0}, {WS_ST}")
    a(f"buffer_store_dwordx2 {vr(NMv,2)}, v{t1}, s[{SRD_WS}:{SRD_WS+3}], s{T0} offen sc1", tag='pst')
    a(f"s_mov_b32 s{T0}, {WS_G}")
    a(f"buffer_store_dword v{GV}, v{t0}, s[{SRD_WS}:{SRD_WS+3}], s{T0} offen sc1", tag='pst')

RPL = 147456
def repack_finish(a):
    D, VA, VD = 136, 134, 135
    L = uid("rf")
    a(f"v_mov_b32 v{VD}, 0x7ffffff0")
    a(f"s_cmp_ge_u32 s82, 74")
    a(f"s_cbranch_scc1 {L}")
    a(f"s_mul_i32 s{T0}, s{S_X}, {WF_TILE}")
    a(f"s_mul_i32 s{T1}, s82, 5120")
    a(f"s_add_u32 s{T0}, s{T0}, s{T1}")
    a(f"s_add_u32 s{T0}, s{T0}, {WS_WF}")
    a(f"v_lshlrev_b32 v{VD}, 4, v1")
    a(f"v_add_u32 v{VD}, s{T0}, v{VD}")
    a(f"v_lshrrev_b32 v{VA}, 5, v1")
    a(f"v_bfe_u32 v{D}, v1, 4, 1")
    a(f"v_lshlrev_b32 v{VA}, 4, v{VA}")
    a(f"v_lshl_add_u32 v{VA}, v{D}, 2, v{VA}")
    a(f"v_bfe_u32 v{D}, v1, 2, 2")
    a(f"v_add_u32 v{VA}, v{VA}, v{D}")
    a(f"v_mul_u32_u24 v{VA}, 160, v{VA}")
    a(f"v_and_b32 v{D}, 3, v1")
    a(f"v_lshl_add_u32 v{VA}, v{D}, 3, v{VA}")
    a(f"v_add_u32 v{VA}, s{S_RPM}, v{VA}")
    lg = list(a.lg)
    for F in range(5):
        for rd in range(2):
            a(f"ds_read_b64_tr_b16 {vr(D+4*F+2*rd,2)}, v{VA} offset:{rd*1280 + F*32}")
    a("s_waitcnt lgkmcnt(0)")
    a.lg = lg
    a.label(L)
    for F in range(5):
        a(f"s_movk_i32 s{T1}, {F*1024}")
        a(f"buffer_store_dwordx4 {vr(D+4*F,4)}, v{VD}, s[{SRD_WS}:{SRD_WS+3}], s{T1} offen sc1", tag='pst')

def nonce_issue(a, v):
    a(f"v_mov_b32 v{v+1}, 0")
    a(f"global_load_dword v{v}, v{v+1}, s[{P_DBG}:{P_DBG+1}] sc1", tag='nonce')

def nonce_check(a, v):
    L = uid("ng")
    a.wait_vm('nonce')
    keep = list(a.vm)
    a.label(L)
    a(f"v_readfirstlane_b32 s{S_NONCE}, v{v}")
    a(f"s_cmp_lg_u32 s{S_NONCE}, 0")
    a(f"s_cbranch_scc1 {L}_ok")
    a("s_sleep 2")
    a(f"global_load_dword v{v}, v{v+1}, s[{P_DBG}:{P_DBG+1}] sc1")
    a("s_waitcnt vmcnt(0)")
    a(f"s_branch {L}")
    a.label(f"{L}_ok")
    a.vm = keep

def pre_flags(a, v, stats=True):
    if stats:
        a(f"s_lshl_b32 s{T0}, s{S_RB}, 7")
        a(f"s_add_u32 s{T0}, s{T0}, {WS_FLAG + FS}")
        flag_store(a, T0, v)
    a(f"s_lshl_b32 s{T0}, s{S_X}, 7")
    a(f"s_lshl_b32 s{T1}, s{S_I}, 2")
    a(f"s_add_u32 s{T0}, s{T0}, s{T1}")
    a(f"s_add_u32 s{T0}, s{T0}, {WS_FLAG + FW}")
    flag_store(a, T0, v)

CD = 16
def colsum_issue(a):
    srd(a, SRD_B, P_W1, SIZES['W1'])
    srd(a, SRD_C, P_B1, SIZES['B1']) if False else None
    t0, t1, VO = 2, 3, 5
    a(f"v_lshrrev_b32 v{t0}, 4, v0")
    a(f"s_movk_i32 s{T0}, 3456")
    a(f"v_mul_lo_u32 v{t0}, v{t0}, s{T0}")
    a(f"v_and_b32 v{t1}, 15, v0")
    a(f"v_lshl_add_u32 v{t0}, v{t1}, 4, v{t0}")
    a(f"s_lshl_b32 s{T1}, s{S_RB}, 8")
    a(f"v_add_u32 v{VO}, s{T1}, v{t0}")
    a(f"s_cmp_lt_u32 s{S_RB}, 14")
    a(f"s_cselect_b32 s{T3}, 0, 0x7fff0000")
    for p in range(20):
        a(f"s_add_u32 s{T2}, s{T3}, {p*32*3456}")
        a(f"buffer_load_dwordx4 {vr(CD+4*p,4)}, v{VO}, s[{SRD_B}:{SRD_B+3}], s{T2} offen", tag=('cs', p))

def colsum_compute(a, lbl):
    t0, t1, t2 = 2, 3, 4
    ACC, LO, HI = 8, 6, 7
    srd(a, SRD_B, P_B1, SIZES['B1'])
    a(f"s_lshl_b32 s{T1}, s{S_RB}, 8")
    a(f"v_lshlrev_b32 v{t2}, 1, v0")
    a(f"v_add_u32 v{t2}, s{T1}, v{t2}")
    a(f"buffer_load_ushort v{t2}, v{t2}, s[{SRD_B}:{SRD_B+3}], 0 offen", tag='b1')
    a(f"v_mov_b32 v{LO}, 0x00003f80")
    a(f"v_mov_b32 v{HI}, 0x3f800000")
    for e in range(8): a(f"v_mov_b32 v{ACC+e}, 0")
    for p in range(20):
        a.wait_vm(('cs', p))
        for d in range(4):
            a(f"v_dot2c_f32_bf16 v{ACC+2*d}, v{CD+4*p+d}, v{LO}")
            a(f"v_dot2c_f32_bf16 v{ACC+2*d+1}, v{CD+4*p+d}, v{HI}")
    a(f"v_lshrrev_b32 v{t0}, 4, v0")
    a(f"v_lshlrev_b32 v{t0}, 9, v{t0}")
    a(f"v_and_b32 v{t1}, 15, v0")
    a(f"v_lshl_add_u32 v{t0}, v{t1}, 5, v{t0}")
    a(f"ds_write_b128 v{t0}, {vr(ACC,4)}")
    a(f"ds_write_b128 v{t0}, {vr(ACC+4,4)} offset:16")
    a("s_waitcnt lgkmcnt(0)")
    a("s_barrier")
    a(f"v_and_b32 v{t0}, 127, v0")
    a(f"v_lshlrev_b32 v{t0}, 2, v{t0}")
    for g in range(32):
        a(f"ds_read_b32 v{CD+g}, v{t0} offset:{g*512}")
    a("s_waitcnt lgkmcnt(0)")
    for g in range(0, 32, 2): a(f"v_add_f32 v{CD+g}, v{CD+g}, v{CD+g+1}")
    for g in range(2, 32, 2): a(f"v_add_f32 v{CD}, v{CD}, v{CD+g}")
    a.wait_vm('b1')
    a(f"v_lshlrev_b32 v{t2}, 16, v{t2}")
    a(f"s_lshl_b32 s{T1}, s{S_RB}, 9")
    a(f"v_add_u32 v{t0}, s{T1}, v{t0}")
    a(f"v_mov_b32 v{t1}, 0x7ffffff0")
    a(f"v_mov_b32 v{LO}, 128")
    a(f"v_cmp_gt_u32 s[{T4}:{T4+1}], v{LO}, v0")
    a(f"v_cndmask_b32 v{t0}, v{t1}, v{t0}, s[{T4}:{T4+1}]")
    a(f"s_mov_b32 s{T0}, 0x7fff0000")
    a(f"s_cmp_lt_u32 s{S_RB}, 14")
    a(f"s_cselect_b32 s{T2}, {WS_CS}, s{T0}")
    a(f"s_cselect_b32 s{T3}, {WS_B1}, s{T0}")
    a(f"buffer_store_dword v{CD}, v{t0}, s[{SRD_WS}:{SRD_WS+3}], s{T2} offen sc1", tag='pst')
    a(f"buffer_store_dword v{t2}, v{t0}, s[{SRD_WS}:{SRD_WS+3}], s{T3} offen sc1", tag='pst')

S_FRB, S_FCJ = 73, 74
S_WM, S_WG = 75, 76

def final_coords(a):
    a(f"s_lshr_b32 s{T0}, s{S_X}, 1")
    a(f"s_lshl_b32 s{T0}, s{T0}, 3")
    a(f"s_and_b32 s{T1}, s{S_I}, 7")
    a(f"s_add_u32 s{S_FRB}, s{T0}, s{T1}")
    a(f"s_and_b32 s{T0}, s{S_X}, 1")
    a(f"s_lshl_b32 s{T0}, s{T0}, 2")
    a(f"s_lshr_b32 s{T1}, s{S_I}, 3")
    a(f"s_add_u32 s{S_FCJ}, s{T0}, s{T1}")
    a(f"s_mul_i32 s{S_WM}, s{S_W}, 5120")
    a(f"s_mul_i32 s{T0}, s{S_FCJ}, {WF_TILE}")
    a(f"s_add_u32 s{T0}, s{T0}, s{S_WM}")
    a(f"s_add_u32 s{S_WG}, s{T0}, {WS_WF}")

def dma_wf(a, g, vw):
    S_KW = 77
    a(f"s_add_u32 m0, s{S_WM}, {RING[g % 4]}")
    a(f"s_add_u32 s{S_KW}, s{S_WG}, {g*WSLOT}")
    if g == 9:
        a(f"s_cmp_ge_u32 s{S_W}, 2")
        a(f"s_cselect_b32 s{S_KW}, 0x7fff0000, s{S_KW}")
    for n in range(4):
        a(f"buffer_load_dwordx4 v{vw}, s[{SRD_WS}:{SRD_WS+3}], s{S_KW} offen offset:{n*1024} sc1 lds", tag=('W', g))
    a(f"s_add_u32 m0, m0, 4096")
    a(f"s_add_u32 s{S_KW}, s{S_KW}, 4096")
    a(f"buffer_load_dwordx4 v{vw}, s[{SRD_WS}:{SRD_WS+3}], s{S_KW} offen sc1 lds", tag=('W', g))

SL2 = 32768
def attn_coords(a):
    a(f"s_lshl_b32 s{T0}, s{S_X}, 1")
    a(f"s_and_b32 s{T1}, s{S_I}, 1")
    a(f"s_add_u32 s{S_AHP}, s{T0}, s{T1}")
    a(f"s_lshr_b32 s{S_ARB}, s{S_I}, 1")
    a(f"s_lshr_b32 s78, s{S_W}, 2")
    a(f"s_and_b32 s79, s{S_W}, 3")

def fq_poll_offsets(a, vo, vt):
    a(f"v_lshrrev_b32 v{vo}, 4, v1")
    a(f"s_sub_u32 s{T0}, s{S_ARB}, 2")
    a(f"v_add_u32 v{vo}, s{T0}, v{vo}")
    a(f"v_and_b32 v{vt}, 15, v1")
    a(f"v_cmp_le_i32 s[{T4}:{T4+1}], 0, v{vo}")
    a(f"v_cmp_gt_u32 s[{T2}:{T2+1}], 15, v{vt}")
    a(f"s_and_b64 s[{T4}:{T4+1}], s[{T4}:{T4+1}], s[{T2}:{T2+1}]")
    a(f"s_mov_b32 s{T2}, -1")
    a(f"s_mov_b32 s{T2+1}, 0xffff")
    a(f"s_and_b64 s[{T4}:{T4+1}], s[{T4}:{T4+1}], s[{T2}:{T2+1}]")
    a(f"v_lshlrev_b32 v{vo}, 7, v{vo}")
    a(f"v_lshl_add_u32 v{vo}, v{vt}, 2, v{vo}")
    a(f"s_lshl_b32 s{T0}, s{S_ARB}, 7")
    a(f"v_mov_b32 v{vt}, s{T0}")
    a(f"v_cndmask_b32 v{vo}, v{vt}, v{vo}, s[{T4}:{T4+1}]")
    a(f"v_add_u32 v{vo}, {WS_FLAG + FQ}, v{vo}")

def attn_q_loads(a, t0, t1, t2, t3, AQ0=20, AQ1=24):
    a(f"s_lshl_b32 s{T0}, s{S_ARB}, 2")
    a(f"s_add_u32 s{S_QB}, s{T0}, s79")
    a(f"v_and_b32 v{t0}, 31, v1")
    a(f"v_lshrrev_b32 v{t1}, 5, v1")
    a(f"s_lshl_b32 s{T1}, s{S_QB}, 8")
    a(f"v_lshlrev_b32 v{t2}, 3, v{t0}")
    a(f"v_add_u32 v{t2}, s{T1}, v{t2}")
    a(f"v_lshl_add_u32 v{t3}, v{t1}, 15, v{t2}")
    a(f"s_lshl_b32 s{T2}, s{S_AHP}, 1")
    a(f"s_add_u32 s{T2}, s{T2}, s78")
    a(f"s_mul_i32 s{T2}, s{T2}, {5*16384}")
    a(f"s_add_u32 s{T1}, s{T2}, {WS_QKV}")
    a(f"buffer_load_dwordx2 {vr(AQ0,2)}, v{t3}, s[{SRD_WS}:{SRD_WS+3}], s{T1} offen sc1", tag='q')
    a(f"s_add_u32 s{T1}, s{T1}, 16384")
    a(f"buffer_load_dwordx2 {vr(AQ0+2,2)}, v{t3}, s[{SRD_WS}:{SRD_WS+3}], s{T1} offen sc1", tag='q')
    a(f"s_add_u32 s{T1}, s{T1}, {3*16384}")
    a(f"buffer_load_dwordx2 {vr(AQ1,2)}, v{t2}, s[{SRD_WS}:{SRD_WS+3}], s{T1} offen sc1", tag='q')

def fw_poll_offsets(a, vo):
    a(f"v_and_b32 v{vo}, 31, v1")
    a(f"v_lshlrev_b32 v{vo}, 2, v{vo}")
    a(f"s_lshl_b32 s{T1}, s{S_FCJ}, 7")
    a(f"s_add_u32 s{T1}, s{T1}, {WS_FLAG + FW}")
    a(f"v_add_u32 v{vo}, s{T1}, v{vo}")

def wf_first_slots(a, vw):
    a(f"v_lshlrev_b32 v{vw}, 4, v1")
    a(f"s_mul_i32 s{T0}, s{S_W}, 10240")
    a(f"s_mul_i32 s{T1}, s{S_FCJ}, {WF_TILE}")
    a(f"s_add_u32 s{T1}, s{T1}, s{T0}")
    a(f"s_add_u32 s{T1}, s{T1}, {WS_WF}")
    for g in range(2):
        for part in range(3):
            a(f"s_add_u32 m0, s{T0}, {RING[g] + part*4096}")
            a(f"s_add_u32 s{T2}, s{T1}, {g*WSLOT + part*4096}")
            for n in range(4 if part < 2 else 2):
                a(f"buffer_load_dwordx4 v{vw}, s[{SRD_WS}:{SRD_WS+3}], s{T2} offen offset:{n*1024} sc1 lds", tag=('W', g))

QL = 81920
def attn_stage_q(a, vd):
    a(f"v_lshlrev_b32 v{vd}, 4, v1")
    a(f"s_mul_i32 s{T2}, s{S_AHP}, {10*16384}")
    a(f"s_lshl_b32 s{T0}, s{S_ARB}, 10")
    a(f"s_add_u32 s{T2}, s{T2}, s{T0}")
    a(f"s_add_u32 s{T2}, s{T2}, {WS_QKV}")
    for k in range(3):
        a(f"s_add_u32 s{T0}, s{S_W}, {4*k}")
        a(f"s_lshl_b32 s{T1}, s{T0}, 14")
        a(f"s_add_u32 s{T1}, s{T1}, s{T2}")
        a(f"s_lshl_b32 s{T3}, s{T0}, 10")
        a(f"s_add_u32 s{T3}, s{T3}, {QL}")
        if k == 2:
            a(f"s_cmp_lt_u32 s{T0}, 10")
            a(f"s_cselect_b32 s{T1}, s{T1}, 0x7fff0000")
        a(f"s_mov_b32 m0, s{T3}")
        a(f"buffer_load_dwordx4 v{vd}, s[{SRD_WS}:{SRD_WS+3}], s{T1} offen sc1 lds", tag='q')

def touch_wf(a, v0_, v1_):
    a(f"s_and_b32 s{T0}, s{S_I}, 7")
    a(f"s_mul_i32 s{T0}, s{T0}, {370*128}")
    a(f"s_mul_i32 s{T1}, s{S_FCJ}, {WF_TILE}")
    a(f"s_add_u32 s{T0}, s{T0}, s{T1}")
    a(f"s_add_u32 s{T0}, s{T0}, {WS_WF}")
    a(f"v_lshlrev_b32 v{v0_}, 7, v0")
    a(f"v_mov_b32 v{v1_}, 370")
    a(f"v_cmp_gt_u32 s[{T4}:{T4+1}], v{v1_}, v0")
    a(f"v_mov_b32 v{v1_}, 0x7ffffff0")
    a(f"v_cndmask_b32 v{v0_}, v{v1_}, v{v0_}, s[{T4}:{T4+1}]")
    a(f"buffer_load_dword v251, v{v0_}, s[{SRD_WS}:{SRD_WS+3}], s{T0} offen sc1", tag='touch')

def touch_h(a, v0_, v1_):
    a(f"s_lshl_b32 s{T0}, s{S_FRB}, 1")
    a(f"s_mul_i32 s{T0}, s{T0}, {108*1024}")
    a(f"s_lshr_b32 s{T1}, s{S_I}, 3")
    a(f"s_mul_i32 s{T1}, s{T1}, {432*128}")
    a(f"s_add_u32 s{T0}, s{T0}, s{T1}")
    a(f"s_add_u32 s{T0}, s{T0}, {WS_H}")
    a(f"v_lshlrev_b32 v{v0_}, 7, v0")
    a(f"v_mov_b32 v{v1_}, 432")
    a(f"v_cmp_gt_u32 s[{T4}:{T4+1}], v{v1_}, v0")
    a(f"v_mov_b32 v{v1_}, 0x7ffffff0")
    a(f"v_cndmask_b32 v{v0_}, v{v1_}, v{v0_}, s[{T4}:{T4+1}]")
    a(f"buffer_load_dword v251, v{v0_}, s[{SRD_WS}:{SRD_WS+3}], s{T0} offen sc1", tag='touch')

def attn_stage_kv(a, t0, t1, t2, vd):
    a(f"s_sub_u32 s{T0}, s{S_ARB}, 2")
    a(f"s_lshl_b32 s{T0}, s{T0}, 7")
    a(f"s_mul_i32 s{T1}, s{S_W}, 96")
    a(f"s_add_u32 s{T0}, s{T0}, s{T1}")
    a(f"v_lshlrev_b32 v{t0}, 1, v1")
    a(f"v_add_u32 v{t0}, s{T0}, v{t0}")
    a(f"v_lshlrev_b32 v{t1}, 3, v{t0}")
    a(f"v_mov_b32 v{t2}, 0x7ffffff0")
    a(f"v_cmp_le_i32 s[{T4}:{T4+1}], 0, v{t0}")
    a(f"v_cndmask_b32 v{vd}, v{t2}, v{t1}, s[{T4}:{T4+1}]")
    a(f"s_mul_i32 s{T2}, s{S_AHP}, {10*16384}")
    a(f"s_add_u32 s{T2}, s{T2}, {WS_QKV + 160*16384}")
    a(f"s_mul_i32 s{T3}, s{S_W}, 768")
    a("s_mov_b32 exec_hi, 0xffff")
    for ty in range(2):
        for p in range(10):
            a(f"s_add_u32 m0, s{T3}, {(LK if ty == 0 else LV) + p*PST}")
            a(f"s_add_u32 s{T6}, s{T2}, {(ty*160 + p)*16384}")
            a(f"buffer_load_dwordx4 v{vd}, s[{SRD_WS}:{SRD_WS+3}], s{T6} offen sc1 lds", tag=('kv', ty))
    a("s_mov_b32 exec_hi, -1")

def stage1g(a, lbl):
    SRD_E, S_M = 64, 68
    VXD, VWD, VW2 = 2, 6, 10
    VXF, VWF = 14, 22
    t0, t1, t2, t3 = 26, 27, 28, 29
    VP, VPV = 30, 31
    FB = [32, 48]
    ACC = 64
    CSR, B1R, ST, TD = 128, 160, 192, 196
    S_FQ, S_FH, S_ACT, S_HB = 69, 70, 71, 72
    attn_coords(a)
    final_coords(a)
    a(f"s_and_b32 s{S_LW}, s{S_W}, 3")
    a(f"s_cmp_ge_u32 s{S_CJ}, 15")
    a(f"s_cbranch_scc1 {lbl}_idle")
    srd(a, SRD_A, P_AX, SIZES['AX'])
    srd(a, SRD_B, P_WQKV, SIZES['WQKV'])
    srd(a, SRD_E, P_W1, SIZES['W1'])
    a(f"s_lshl_b32 s{T0}, s{S_RB}, 7")
    a(f"s_lshr_b32 s{T1}, s{S_LW}, 1")
    a(f"s_lshl_b32 s{T1}, s{T1}, 6")
    a(f"s_add_u32 s{T0}, s{T0}, s{T1}")
    a(f"s_and_b32 s{T1}, s{S_LW}, 1")
    a(f"s_add_u32 s{T0}, s{T0}, s{T1}")
    a(f"v_lshrrev_b32 v{t0}, 3, v1")
    a(f"v_lshlrev_b32 v{t0}, 1, v{t0}")
    a(f"v_add_u32 v{t0}, s{T0}, v{t0}")
    a(f"s_movk_i32 s{T2}, 1280")
    a(f"v_mul_lo_u32 v{t0}, v{t0}, s{T2}")
    a(f"v_lshrrev_b32 v{t1}, 4, v1")
    a(f"v_and_b32 v{t2}, 7, v1")
    a(f"v_xor_b32 v{t2}, v{t2}, v{t1}")
    a(f"v_xor_b32 v{t3}, 4, v{t2}")
    for i in range(4):
        a(f"v_lshl_add_u32 v{VXD+i}, v{t2 if i % 2 == 0 else t3}, 4, v{t0}")
        if i: a(f"v_add_u32 v{VXD+i}, {i*(16*1280-1024)}, v{VXD+i}")
    a(f"s_lshl_b32 s{T0}, s{S_LW}, 4")
    a(f"v_lshrrev_b32 v{t0}, 4, v1")
    a(f"v_add_u32 v{t1}, s{T0}, v{t0}")
    a(f"v_bfe_u32 v{t2}, v1, 2, 2")
    a(f"v_xor_b32 v{t2}, v{t2}, v{t0}")
    a(f"v_and_b32 v{t3}, 3, v1")
    a(f"v_lshl_add_u32 v{t2}, v{t2}, 2, v{t3}")
    a(f"v_lshlrev_b32 v{t2}, 4, v{t2}")
    a(f"s_lshl_b32 s{T0}, s{S_CJ}, 8")
    a(f"v_add_u32 v{t2}, s{T0}, v{t2}")
    for vd, pitch in ((VWD, 3840), (VW2, 3456)):
        a(f"s_movk_i32 s{T2}, {pitch}")
        a(f"v_mul_lo_u32 v{t3}, v{t1}, s{T2}")
        a(f"v_add_u32 v{vd}, v{t3}, v{t2}")
        for i in range(1, 4): a(f"v_add_u32 v{vd+i}, {i*(4*pitch-1024)}, v{vd}")
    a(f"s_lshl_b32 s{S_M}, s{S_LW}, 12")
    if OPT.get('rot', 1):
        a(f"s_lshr_b32 s{T0}, s{S_I}, 3")
        a(f"s_mul_i32 s{T0}, s{T0}, 10")
        a(f"s_and_b32 s{T1}, s{S_I}, 7")
        a(f"s_mul_i32 s{T1}, s{T1}, 5")
        a(f"s_add_u32 s{T0}, s{T0}, s{T1}")
        a(f"s_lshr_b32 s{T0}, s{T0}, 2")
        a(f"s_sub_u32 s{T1}, s{T0}, 10")
        a(f"s_cmp_ge_u32 s{T0}, 10")
        a(f"s_cselect_b32 s{T0}, s{T1}, s{T0}")
    else:
        a(f"s_mov_b32 s{T0}, 0")
    a(f"s_add_u32 s{T1}, s{T0}, 3")
    a(f"s_sub_u32 s{T2}, s{T1}, 10")
    a(f"s_cmp_ge_u32 s{T1}, 10")
    a(f"s_cselect_b32 s{T1}, s{T2}, s{T1}")
    a(f"s_cmp_ge_u32 s{S_W}, 4")
    a(f"s_cselect_b32 s{T0}, s{T0}, s{T1}")
    a(f"s_lshl_b32 s{S_KX}, s{T0}, 7")
    a(f"s_mul_i32 s{S_KQ}, s{T0}, {64*3840}")
    a(f"s_mul_i32 s{S_K1}, s{T0}, {64*3456}")
    def adv(sreg, step, wrap):
        if OPT.get('hot'): return
        a(f"s_add_u32 s{sreg}, s{sreg}, {step}")
        a(f"s_cmp_eq_u32 s{sreg}, {wrap}")
        a(f"s_cselect_b32 s{sreg}, 0, s{sreg}")
    first = {'x': True, 'q': True, '1': True}
    slot = lambda tau: (tau + 3) % 4
    def dma_list(tau):
        out = []
        if OPT.get('g_nodma') and tau >= 4: return out
        if OPT.get('nodma1') and tau >= 13: return out
        def mk(kind, i):
            def f():
                if kind == 'x': vd, sr, sk, off, step, wrap = VXD, SRD_A, S_KX, 0, 128, 1280
                elif kind == 'q': vd, sr, sk, off, step, wrap = VWD, SRD_B, S_KQ, 16384, 64*3840, 640*3840
                else: vd, sr, sk, off, step, wrap = VW2, SRD_E, S_K1, 16384, 64*3456, 640*3456
                if i == 0:
                    a(f"s_add_u32 m0, s{S_M}, {slot(tau)*SL2 + off}")
                    if not first[kind] and not (OPT.get('hot1') and tau >= 10) and not (OPT.get('hotx') and kind == 'x' and tau >= 10) and not (OPT.get('hotw') and kind == '1'): adv(sk, step, wrap)
                    first[kind] = False
                a(f"buffer_load_dwordx4 v{vd+i}, s[{sr}:{sr+3}], s{sk} offen offset:{i*1024} lds", tag=('B', tau))
            return f
        for i in range(4): out.append(mk('x', i))
        for i in range(4): out.append(mk('q' if tau < 10 else '1', i))
        return out
    def dma_block(tau):
        for f in dma_list(tau): f()
    def frag_bases():
        a(f"s_and_b32 s{T0}, s{S_LW}, 1")
        a(f"s_lshl_b32 s{T0}, s{T0}, 13")
        a(f"v_and_b32 v{t0}, 31, v1")
        a(f"v_lshrrev_b32 v{t1}, 5, v1")
        a(f"v_bfe_u32 v{t2}, v1, 1, 3")
        a(f"v_lshlrev_b32 v{t0}, 7, v{t0}")
        a(f"v_add_u32 v{t0}, s{T0}, v{t0}")
        for s_ in range(4):
            a(f"v_or_b32 v{t3}, {2*s_}, v{t1}")
            a(f"v_xor_b32 v{t3}, v{t3}, v{t2}")
            a(f"v_lshl_add_u32 v{VXF+s_}, v{t3}, 4, v{t0}")
            a(f"v_add_u32 v{VXF+4+s_}, {2*SL2}, v{VXF+s_}")
        a(f"v_bfe_u32 v{t0}, v1, 2, 2")
        a(f"v_lshl_add_u32 v{t1}, v{t1}, 3, v{t0}")
        a(f"v_lshlrev_b32 v{t1}, 8, v{t1}")
        a(f"v_bfe_u32 v{t2}, v1, 4, 1")
        a(f"v_lshl_add_u32 v{t1}, v{t2}, 5, v{t1}")
        a(f"v_and_b32 v{t2}, 3, v1")
        a(f"v_lshl_add_u32 v{t1}, v{t2}, 3, v{t1}")
        a(f"s_and_b32 s{T0}, s{S_LW}, 2")
        for ft in range(2):
            a(f"s_or_b32 s{T1}, s{T0}, {ft}")
            a(f"v_xor_b32 v{t2}, s{T1}, v{t0}")
            a(f"v_lshl_add_u32 v{VWF+ft}, v{t2}, 6, v{t1}")
            a(f"v_add_u32 v{VWF+2+ft}, {2*SL2}, v{VWF+ft}")
    def rd_b(st, tau, u, tt):
        sl = slot(tau)
        a(f"ds_read_b128 {vr(FB[st]+4*tt,4)}, v{VXF + u + (4 if sl >= 2 else 0)} offset:{(SL2 if sl & 1 else 0) + tt*4096}", tag=('f', tau, u, 'b', tt))
    def rd_a(st, tau, u, F, rd):
        sl = slot(tau)
        a(f"ds_read_b64_tr_b16 {vr(FB[st]+8+4*F+2*rd,2)}, v{VWF + F + (2 if sl >= 2 else 0)} offset:{(SL2 if sl & 1 else 0) + 16384 + u*4096 + rd*1024}", tag=('f', tau, u, 'a', F))
    def reads(st, tau, u):
        return [lambda: rd_b(st, tau, u, 0), lambda: rd_a(st, tau, u, 0, 0), lambda: rd_a(st, tau, u, 0, 1),
                lambda: rd_b(st, tau, u, 1), lambda: rd_a(st, tau, u, 1, 0), lambda: rd_a(st, tau, u, 1, 1)]
    def compute(t0_, hook_bar, hook_step):
        for b in range(10):
            tau = t0_ + b
            for u in range(4):
                s_ = 4*b + u; st = s_ & 1
                last = (b == 9 and u == 3)
                side = []
                if u == 3:
                    a("s_waitcnt lgkmcnt(0)")
                    hook_bar(tau)
                    a("s_barrier")
                    side = hook_step(tau, 'bar') or []
                rs = [] if last else reads(st ^ 1, *((tau, u + 1) if u < 3 else (tau + 1, 0)))
                plan = {-1: rs[0:2], 0: rs[2:5], 1: rs[5:6]}
                for r in plan[-1]: r()
                for k, (tt, F) in enumerate([(0, 0), (1, 0), (0, 1), (1, 1)]):
                    a.wait_lg([('f', tau, u, 'b', tt), ('f', tau, u, 'a', F)])
                    d = vr(ACC+16*(2*tt+F), 16)
                    a(f"v_mfma_f32_32x32x16_bf16 {d}, {vr(FB[st]+8+4*F,4)}, {vr(FB[st]+4*tt,4)}, {'0' if s_ == 0 else d}")
                    for r in plan.get(k, []): r()
                    for _ in range(2):
                        if side: side.pop(0)()
                for f in side: f()
                hook_step(tau, u)
    a(f"s_lshl_b32 s{T0}, s{S_RB}, 7")
    a(f"s_lshl_b32 s{T1}, s{S_CJ}, 2")
    a(f"s_add_u32 s{T0}, s{T0}, s{T1}")
    a(f"s_add_u32 s{S_FQ}, s{T0}, {WS_FLAG + FQ}")
    a(f"s_add_u32 s{S_FH}, s{T0}, {WS_FLAG + FH}")
    a(f"s_cmp_lt_u32 s{S_CJ}, 14")
    a(f"s_cselect_b32 s{S_FHO}, s{S_FH}, 0x7fff0000")
    a(f"s_cmp_ge_u32 s{S_W}, 4")
    a(f"s_cbranch_scc1 {lbl}_g1")
    if OPT.get('pfs1', 0):
        a(f"s_lshl_b32 s{T0}, s{S_RB}, 7")
        a(f"s_lshr_b32 s{T1}, s{S_I}, 3")
        a(f"s_lshl_b32 s{T1}, s{T1}, 5")
        a(f"s_add_u32 s{T0}, s{T0}, s{T1}")
        a(f"s_lshl_b32 s{T1}, s{S_LW}, 3")
        a(f"s_add_u32 s{T0}, s{T0}, s{T1}")
        a(f"v_lshrrev_b32 v{t0}, 3, v1")
        a(f"v_add_u32 v{t0}, s{T0}, v{t0}")
        a(f"s_movk_i32 s{T1}, 1280")
        a(f"v_mul_lo_u32 v{t0}, v{t0}, s{T1}")
        a(f"v_and_b32 v{t1}, 7, v1")
        a(f"v_lshl_add_u32 v{t2}, v{t1}, 7, v{t0}")
        a(f"buffer_load_dword v251, v{t2}, s[{SRD_A}:{SRD_A+3}], 0 offen", tag='touch')
        a(f"v_and_b32 v{t1}, 1, v1")
        a(f"v_lshl_add_u32 v{t2}, v{t1}, 7, v{t0}")
        a(f"v_mov_b32 v{t3}, 0x7ffffff0")
        a(f"v_bfe_u32 v{t1}, v1, 1, 2")
        a(f"v_cmp_eq_u32 s[{T4}:{T4+1}], 0, v{t1}")
        a(f"v_cndmask_b32 v{t2}, v{t3}, v{t2}, s[{T4}:{T4+1}]")
        a(f"buffer_load_dword v251, v{t2}, s[{SRD_A}:{SRD_A+3}], 0 offen offset:1024", tag='touch')
        a(f"s_and_b32 s{T0}, s{S_I}, 7")
        a(f"s_mul_i32 s{T0}, s{T0}, 80")
        a(f"s_mul_i32 s{T1}, s{S_LW}, 20")
        a(f"s_add_u32 s{T0}, s{T0}, s{T1}")
        a(f"v_lshrrev_b32 v{t0}, 1, v1")
        a(f"v_add_u32 v{t0}, s{T0}, v{t0}")
        a(f"s_movk_i32 s{T1}, 3840")
        a(f"v_mul_lo_u32 v{t0}, v{t0}, s{T1}")
        a(f"v_and_b32 v{t1}, 1, v1")
        a(f"v_lshl_add_u32 v{t0}, v{t1}, 7, v{t0}")
        a(f"s_lshl_b32 s{T0}, s{S_CJ}, 8")
        a(f"v_add_u32 v{t0}, s{T0}, v{t0}")
        a(f"v_cmp_gt_u32 s[{T4}:{T4+1}], 40, v1")
        a(f"v_cndmask_b32 v{t0}, v{t3}, v{t0}, s[{T4}:{T4+1}]")
        a(f"buffer_load_dword v251, v{t0}, s[{SRD_B}:{SRD_B+3}], 0 offen", tag='touch')
    frag_bases()
    if OPT.get('cprio'): a(f"s_setprio {OPT['cprio']}")
    mark(a)
    a("s_barrier")
    for r in reads(0, 0, 0): r()
    def g0_step(tau, u):
        if OPT.get('fine3') == 1 and u == 'bar' and tau in (0, 2, 4, 6, 8): mark(a)
        if u == 'bar' and tau == 9: return dma_list(13)
        if u == 1 and tau == 2: nonce_issue(a, 252)
        if u == 1 and tau == 4: nonce_check(a, 252)
        if u == 'bar' and tau == 8:
            pre_flags(a, t3, stats=False)
        return None
    compute(0, lambda tau: None, g0_step)
    mark(a)
    if OPT.get('lprio'): a(f"s_setprio {OPT['lprio']}")
    a(f"v_lshrrev_b32 v{t0}, 5, v1")
    a(f"s_lshr_b32 s{T0}, s{S_LW}, 1")
    a(f"s_lshl_b32 s{T0}, s{T0}, 4")
    a(f"v_add_u32 v{t0}, s{T0}, v{t0}")
    a(f"v_lshlrev_b32 v{t0}, 14, v{t0}")
    a(f"s_and_b32 s{T0}, s{S_LW}, 1")
    a(f"s_lshl_b32 s{T0}, s{T0}, 9")
    a(f"v_and_b32 v{t1}, 31, v1")
    a(f"v_lshl_add_u32 v{t0}, v{t1}, 4, v{t0}")
    a(f"v_add_u32 v{t0}, s{T0}, v{t0}")
    a(f"s_lshl_b32 s{T0}, s{S_CJ}, 19")
    a(f"s_lshl_b32 s{T1}, s{S_RB}, 10")
    a(f"s_add_u32 s{T0}, s{T0}, s{T1}")
    a(f"s_add_u32 s{T0}, s{T0}, {WS_QKV}")
    a(f"s_cmp_lt_u32 s{S_CJ}, 5")
    a(f"s_cselect_b32 s{T2}, 0x3ea52b5c, 1.0")
    a(f"v_mov_b32 v30, s{T2}")
    for r in range(0, 64, 2):
        a(f"v_pk_mul_f32 {vr(ACC+r,2)}, {vr(ACC+r,2)}, v[30:31] op_sel_hi:[1,0]")
    k = 0
    for ft in range(2):
        for j in range(4):
            a(f"s_add_u32 s{T1}, s{T0}, {(8*ft + 2*j)*16384}")
            d = 32 + 4*(k % 8); k += 1
            for tt in range(2):
                base = ACC + 16*(2*tt+ft) + 4*j
                a(f"v_cvt_pk_bf16_f32 v{d+2*tt}, v{base}, v{base+1}")
                a(f"v_cvt_pk_bf16_f32 v{d+2*tt+1}, v{base+2}, v{base+3}")
            a(f"buffer_store_dwordx4 {vr(d,4)}, v{t0}, s[{SRD_WS}:{SRD_WS+3}], s{T1} offen sc1", tag='qst')
    fq_poll_offsets(a, VP, t3)
    TQP = OPT.get('tqp', 13)
    for tau in range(10, 20):
        if 13 <= tau + 1 <= 19: a.wait_vm(('B', tau + 1))
        if tau == TQP: a.wait_vm('qst')
        if tau == 19: a.wait_vm('tab')
        a("s_barrier")
        if OPT.get('fine3') == 2 and tau in (10, 11, 12, 13, 14, 15, 16, 17, 18, 19): mark(a)
        if tau == TQP: flag_store(a, S_FQ, t3)
        if tau + 4 <= 19: dma_block(tau + 4)
        if tau == 15:
            a(f"s_lshl_b32 s{T0}, s{S_RB}, 7")
            a(f"s_add_u32 s{T0}, s{T0}, {WS_FLAG + FS}")
            a(f"v_mov_b32 v{t0}, s{T0}")
            a(f"s_min_u32 s{T1}, s{S_CJ}, 13")
            a(f"s_lshl_b32 s{T1}, s{T1}, 2")
            a(f"s_add_u32 s{T1}, s{T1}, {WS_FLAG + FC}")
            a(f"v_mov_b32 v{t1}, s{T1}")
            a(f"v_cmp_gt_u32 s[{T4}:{T4+1}], 32, v1")
            a(f"v_cndmask_b32 v234, v{t1}, v{t0}, s[{T4}:{T4+1}]")
            poll_issue(a, 234, 235, 'p1')
        if tau == 17:
            L = uid("nf")
            a(f"s_cmp_ge_u32 s{S_CJ}, 14")
            a(f"s_cbranch_scc1 {L}")
            vm0 = list(a.vm)
            poll_check(a, 234, 235, 'p1')
            a.label(L)
            a.vm = vm0
            a(f"s_lshl_b32 s{T0}, s{S_RB}, 10")
            a(f"s_add_u32 s{T0}, s{T0}, {WS_ST}")
            a(f"s_lshl_b32 s{T1}, s{S_CJ}, 9")
            a(f"s_add_u32 s{T2}, s{T1}, {WS_CS}")
            a(f"s_add_u32 s{T1}, s{T1}, {WS_B1}")
            a(f"s_cmp_eq_u32 s{S_W}, 1")
            a(f"s_cselect_b32 s{T0}, s{T2}, s{T0}")
            a(f"s_cselect_b32 s{T3}, 1024, 0")
            a(f"s_cmp_eq_u32 s{S_W}, 2")
            a(f"s_cselect_b32 s{T0}, s{T1}, s{T0}")
            a(f"s_cselect_b32 s{T3}, 1536, s{T3}")
            a(f"s_cmp_eq_u32 s{S_W}, 3")
            a(f"s_cselect_b32 s{T0}, 0x7fff0000, s{T0}")
            a(f"s_cselect_b32 s{T3}, 2048, s{T3}")
            a(f"v_lshlrev_b32 v{t0}, 4, v1")
            a(f"v_mov_b32 v{t1}, 0x7ffffff0")
            a(f"s_cmp_eq_u32 s{S_W}, 0")
            a(f"s_cselect_b32 s{T1}, 64, 32")
            a(f"v_cmp_gt_u32 s[{T4}:{T4+1}], s{T1}, v1")
            a(f"s_mov_b64 exec, s[{T4}:{T4+1}]")
            a(f"s_mov_b32 m0, s{T3}")
            a(f"buffer_load_dwordx4 v{t0}, s[{SRD_WS}:{SRD_WS+3}], s{T0} offen sc1 lds", tag='tab')
            a("s_mov_b64 exec, -1")
        if tau == 19: pass
        if tau == OPT.get('tpq', 18):
            poll_issue(a, VP, VPV, 'pq')
            fw_poll_offsets(a, VP+202)
            poll_issue(a, VP+202, VPV+202, 'pw')
    if OPT.get('fine4'): mark(a)
    poll_check(a, VP, VPV, 'pq')
    if OPT.get('fine4'): mark(a)
    attn_stage_q(a, 3)
    attn_stage_kv(a, t0, t1, t2, 2)
    if OPT.get('earlyw', 0):
        poll_check(a, VP+202, VPV+202, 'pw')
        wf_first_slots(a, 3)
    mark(a)
    a.wait_vm(('kv', 0))
    if OPT.get('fine4'): mark(a)
    a(f"s_branch {lbl}_join")
    a.label(f"{lbl}_g1")
    a.reset_counters()
    first.update({'x': True, 'q': True, '1': True})
    if OPT.get('lprio'): a(f"s_setprio {OPT['lprio']}")
    mark4(a, first=True)
    NI = OPT.get('init', 2)
    for tau in range(NI): dma_block(tau)
    pre_address(a, lbl + "_pa", rows=False)
    frag_bases()
    a.wait_vm(('B', 0))
    mark4(a)
    a("s_barrier")
    for tau in range(NI, 4): dma_block(tau)
    for tau in range(0, 9):
        a.wait_vm(('B', tau + 1))
        if tau == 8: a.wait_vm('pst')
        a("s_barrier")
        dma_block(tau + 4)
        if tau == 0: pre_issue(a, rows=False)
        if tau == 1 and OPT.get('pfw1', 1):
            a(f"s_and_b32 s{T0}, s{S_I}, 7")
            a(f"s_mul_i32 s{T0}, s{T0}, 80")
            a(f"s_mul_i32 s{T1}, s{S_LW}, 20")
            a(f"s_add_u32 s{T0}, s{T0}, s{T1}")
            a(f"v_lshrrev_b32 v{t0}, 1, v1")
            a(f"v_add_u32 v{t0}, s{T0}, v{t0}")
            a(f"s_movk_i32 s{T1}, 3456")
            a(f"v_mul_lo_u32 v{t0}, v{t0}, s{T1}")
            a(f"v_and_b32 v{t1}, 1, v1")
            a(f"v_lshl_add_u32 v{t0}, v{t1}, 7, v{t0}")
            a(f"s_lshl_b32 s{T0}, s{S_CJ}, 8")
            a(f"v_add_u32 v{t0}, s{T0}, v{t0}")
            a(f"v_mov_b32 v{t1}, 0x7ffffff0")
            a(f"v_cmp_gt_u32 s[{T4}:{T4+1}], 40, v1")
            a(f"v_cndmask_b32 v{t0}, v{t1}, v{t0}, s[{T4}:{T4+1}]")
            a(f"buffer_load_dword v251, v{t0}, s[{SRD_E}:{SRD_E+3}], 0 offen", tag='touch')
        if tau == OPT.get('trp', 5):
            a.wait_vm('pl')
            repack_finish(a)
        if tau == 7: nonce_issue(a, 252)
    nonce_check(a, 252)
    a.wait_vm(('B', 10))
    a("s_barrier")
    if OPT.get('lprio'): a(f"s_setprio {OPT.get('cprio', 0)}")
    mark4(a)
    for r in reads(0, 10, 0): r()
    def g1_bar(tau):
        if tau in (10, 11): a.wait_vm(('B', tau + 1))
    def g1_step(tau, u):
        return None
    compute(10, g1_bar, g1_step)
    mark4(a)
    C0, C1, VY, ONE = 2, 3, 4, 6
    TU, TE = 32, 40
    a(f"v_mov_b32 v{ONE}, 1.0")
    a(f"v_mov_b32 v{C0}, 0xc0135761")
    a(f"v_mov_b32 v{C1}, 0xbdd2d3e8")
    a(f"v_lshlrev_b32 v{VY}, 4, v1")
    a(f"s_lshl_b32 s{T0}, s{S_CJ}, 3")
    a(f"s_lshr_b32 s{T1}, s{S_LW}, 1")
    a(f"s_lshl_b32 s{T1}, s{T1}, 2")
    a(f"s_add_u32 s{S_ACT}, s{T0}, s{T1}")
    a(f"s_lshl_b32 s{T0}, s{S_RB}, 2")
    a(f"s_and_b32 s{T1}, s{S_LW}, 1")
    a(f"s_lshl_b32 s{T1}, s{T1}, 1")
    a(f"s_add_u32 s{T0}, s{T0}, s{T1}")
    a(f"s_mul_i32 s{T0}, s{T0}, 108")
    a(f"s_add_u32 s{T0}, s{T0}, s{S_ACT}")
    a(f"s_lshl_b32 s{T0}, s{T0}, 10")
    a(f"s_add_u32 s{S_HB}, s{T0}, {WS_H}")
    a(f"s_cmp_lt_u32 s{S_ACT}, 108")
    a(f"s_cselect_b32 s{S_HB}, s{S_HB}, 0x7fff0000")
    a(f"v_and_b32 v{t0}, 31, v1")
    a(f"v_lshlrev_b32 v{t0}, 4, v{t0}")
    a(f"s_and_b32 s{T0}, s{S_LW}, 1")
    a(f"s_lshl_b32 s{T0}, s{T0}, 9")
    a(f"v_add_u32 v{t0}, s{T0}, v{t0}")
    a(f"ds_read_b128 {vr(ST,4)}, v{t0}")
    a(f"v_lshrrev_b32 v{t0}, 5, v1")
    a(f"v_lshlrev_b32 v{t0}, 4, v{t0}")
    a(f"s_lshr_b32 s{T0}, s{S_LW}, 1")
    a(f"s_lshl_b32 s{T0}, s{T0}, 8")
    a(f"v_add_u32 v{t0}, s{T0}, v{t0}")
    for ft in range(2):
        for j in range(4):
            a(f"ds_read_b128 {vr(CSR+16*ft+4*j,4)}, v{t0} offset:{1024 + 128*ft + 32*j}")
            a(f"ds_read_b128 {vr(B1R+16*ft+4*j,4)}, v{t0} offset:{1536 + 128*ft + 32*j}")
    a("s_waitcnt lgkmcnt(0)")
    mark4(a)
    P = lambda b, e: vr(b + 2*e, 2)
    for tt in range(2):
        nmp = vr(ST + 2*tt, 2)
        if tt == 1: a(f"s_add_u32 s{S_HB}, s{S_HB}, {108*1024}")
        for ft in range(2):
            for jj in range(2):
                x = ACC + 16*(2*tt+ft) + 8*jj
                for e in range(4):
                    j, i = 2*jj + (e >> 1), 2*(e & 1)
                    a(f"v_pk_fma_f32 {P(TU,e)}, {nmp}, {vr(CSR+16*ft+4*j+i,2)}, {vr(B1R+16*ft+4*j+i,2)} op_sel_hi:[0,1,1]")
                for e in range(4): a(f"v_pk_fma_f32 {P(x,e)}, {nmp}, {P(x,e)}, {P(TU,e)} op_sel:[1,0,0] op_sel_hi:[1,1,1]")
                for e in range(4): a(f"v_pk_mul_f32 {P(TU,e)}, {P(x,e)}, {P(x,e)}")
                for e in range(4): a(f"v_pk_fma_f32 {P(TU,e)}, {P(TU,e)}, {vr(C0,2)}, {vr(C0,2)} op_sel:[0,1,0] op_sel_hi:[1,1,0]")
                for e in range(4): a(f"v_pk_mul_f32 {P(TU,e)}, {P(TU,e)}, {P(x,e)}")
                for e in range(8): a(f"v_exp_f32 v{TE+e}, v{TU+e}")
                for e in range(4): a(f"v_pk_add_f32 {P(TE,e)}, {P(TE,e)}, {vr(ONE,2)} op_sel_hi:[1,0]")
                for e in range(8): a(f"v_rcp_f32 v{TE+e}, v{TE+e}")
                for e in range(4): a(f"v_pk_mul_f32 {P(TE,e)}, {P(TE,e)}, {P(x,e)}")
                d = TD + 4*(4*tt + 2*ft + jj)
                for e in range(4): a(f"v_cvt_pk_bf16_f32 v{d+e}, v{TE+2*e}, v{TE+2*e+1}")
                if not OPT.get('late_h', 0):
                    a(f"buffer_store_dwordx4 {vr(d,4)}, v{VY}, s[{SRD_WS}:{SRD_WS+3}], s{S_HB} offen offset:{(2*ft+jj)*1024} sc1", tag='hst')
    if OPT.get('late_h', 0):
        a(f"s_sub_u32 s{S_HB}, s{S_HB}, {108*1024}")
        for tt in range(2):
            if tt == 1: a(f"s_add_u32 s{S_HB}, s{S_HB}, {108*1024}")
            for ft in range(2):
                for jj in range(2):
                    d = TD + 4*(4*tt + 2*ft + jj)
                    a(f"buffer_store_dwordx4 {vr(d,4)}, v{VY}, s[{SRD_WS}:{SRD_WS+3}], s{S_HB} offen offset:{(2*ft+jj)*1024} sc1", tag='hst')
    mark4(a)
    a(f"s_branch {lbl}_join")
    a.label(f"{lbl}_idle")
    a.reset_counters()
    srd(a, SRD_A, P_AX, SIZES['AX'])
    rowstats_issue(a)
    colsum_issue(a)
    nonce_issue(a, 252)
    rowstats_compute(a)
    colsum_compute(a, lbl + "_cs")
    nonce_check(a, 252)
    a("s_waitcnt vmcnt(0)")
    a("s_barrier")
    a(f"s_lshl_b32 s{T0}, s{S_RB}, 7")
    a(f"s_add_u32 s{T0}, s{T0}, {WS_FLAG + FS}")
    flag_store(a, T0, t3)
    a(f"s_lshl_b32 s{T0}, s{S_RB}, 2")
    a(f"s_add_u32 s{T0}, s{T0}, {WS_FLAG + FC}")
    flag_store(a, T0, t3)
    pre_address(a, lbl + "_pai", rows=False)
    pre_issue(a, rows=False)
    a.wait_vm('pl')
    repack_finish(a)
    a("s_waitcnt vmcnt(0)")
    a("s_barrier")
    pre_flags(a, t3, stats=False)
    a(f"s_mov_b32 s{S_FHO}, 0x7fff0000")
    fq_poll_offsets(a, VP, t3)
    a(f"s_mov_b64 s[{T4}:{T4+1}], -1")
    wait_flags(a, VP, VPV, T4)
    Li = uid("ik")
    a(f"s_cmp_ge_u32 s{S_W}, 4")
    a(f"s_cbranch_scc1 {Li}")
    attn_stage_q(a, 3)
    attn_stage_kv(a, t0, t1, t2, 2)
    if OPT.get('earlyw', 0):
        fw_poll_offsets(a, VP+202)
        poll_issue(a, VP+202, VPV+202, 'pw')
        poll_check(a, VP+202, VPV+202, 'pw')
        wf_first_slots(a, 3)
    a.label(Li)
    a("s_waitcnt vmcnt(0)")
    a.label(f"{lbl}_join")
    if OPT.get('lprio') or OPT.get('cprio'): a("s_setprio 0")
    a.reset_counters()

SLOT = 49152
def stage1f(a, lbl):
    SRD_E, S_M = 64, 68
    VXD, VQD, V1D = 2, 4, 6
    VXF, VWF = 8, 16
    t0, t1, t2, t3 = 20, 21, 22, 23
    VP, VPV = 24, 25
    FB = [32, 48]
    ACC = 64
    ST, CSR, B1R, TD = 192, 128, 160, 196
    S_FQ, S_FH, S_ACT, S_HB = 69, 70, 71, 72
    attn_coords(a)
    final_coords(a)
    a(f"s_and_b32 s{S_LW}, s{S_W}, 3")
    a(f"s_cmp_ge_u32 s{S_CJ}, 15")
    a(f"s_cbranch_scc1 {lbl}_idle")
    srd(a, SRD_A, P_AX, SIZES['AX'])
    srd(a, SRD_B, P_WQKV, SIZES['WQKV'])
    srd(a, SRD_E, P_W1, SIZES['W1'])
    a(f"s_lshl_b32 s{T0}, s{S_RB}, 7")
    a(f"s_lshr_b32 s{T1}, s{S_W}, 2")
    a(f"s_lshl_b32 s{T1}, s{T1}, 6")
    a(f"s_add_u32 s{T0}, s{T0}, s{T1}")
    a(f"s_and_b32 s{T1}, s{S_W}, 1")
    a(f"s_lshl_b32 s{T1}, s{T1}, 5")
    a(f"s_add_u32 s{T0}, s{T0}, s{T1}")
    a(f"s_bfe_u32 s{T1}, s{S_W}, 0x10001")
    a(f"s_add_u32 s{T0}, s{T0}, s{T1}")
    a(f"v_lshrrev_b32 v{t0}, 3, v1")
    a(f"v_lshlrev_b32 v{t0}, 1, v{t0}")
    a(f"v_add_u32 v{t0}, s{T0}, v{t0}")
    a(f"s_movk_i32 s{T2}, 1280")
    a(f"v_mul_lo_u32 v{t0}, v{t0}, s{T2}")
    a(f"v_lshrrev_b32 v{t1}, 4, v1")
    a(f"v_and_b32 v{t2}, 7, v1")
    a(f"v_xor_b32 v{t2}, v{t2}, v{t1}")
    a(f"v_xor_b32 v{t3}, 4, v{t2}")
    a(f"v_lshl_add_u32 v{VXD}, v{t2}, 4, v{t0}")
    a(f"v_lshl_add_u32 v{VXD+1}, v{t3}, 4, v{t0}")
    a(f"v_add_u32 v{VXD+1}, {16*1280-1024}, v{VXD+1}")
    a(f"s_lshl_b32 s{T0}, s{S_W}, 3")
    a(f"v_lshrrev_b32 v{t0}, 4, v1")
    a(f"v_add_u32 v{t1}, s{T0}, v{t0}")
    a(f"v_bfe_u32 v{t2}, v1, 2, 2")
    a(f"v_xor_b32 v{t2}, v{t2}, v{t0}")
    a(f"v_and_b32 v{t3}, 3, v1")
    a(f"v_lshl_add_u32 v{t2}, v{t2}, 2, v{t3}")
    a(f"v_lshlrev_b32 v{t2}, 4, v{t2}")
    a(f"s_lshl_b32 s{T0}, s{S_CJ}, 8")
    a(f"v_add_u32 v{t2}, s{T0}, v{t2}")
    for vd, pitch in ((VQD, 3840), (V1D, 3456)):
        a(f"s_movk_i32 s{T2}, {pitch}")
        a(f"v_mul_lo_u32 v{t3}, v{t1}, s{T2}")
        a(f"v_add_u32 v{vd}, v{t3}, v{t2}")
        a(f"v_add_u32 v{vd+1}, {4*pitch-1024}, v{vd}")
    a(f"s_lshl_b32 s{S_M}, s{S_W}, 11")
    if OPT.get('rot', 1):
        a(f"s_lshr_b32 s{T0}, s{S_I}, 3")
        a(f"s_mul_i32 s{T0}, s{T0}, 10")
        a(f"s_and_b32 s{T1}, s{S_I}, 7")
        a(f"s_mul_i32 s{T1}, s{T1}, 5")
        a(f"s_add_u32 s{T0}, s{T0}, s{T1}")
        a(f"s_lshr_b32 s{T0}, s{T0}, 2")
        a(f"s_sub_u32 s{T1}, s{T0}, 10")
        a(f"s_cmp_ge_u32 s{T0}, 10")
        a(f"s_cselect_b32 s{T0}, s{T1}, s{T0}")
    else:
        a(f"s_mov_b32 s{T0}, 0")
    a(f"s_lshl_b32 s{S_KX}, s{T0}, 7")
    a(f"s_mul_i32 s{S_KQ}, s{T0}, {64*3840}")
    a(f"s_mul_i32 s{S_K1}, s{T0}, {64*3456}")
    def adv(sreg, step, wrap):
        a(f"s_add_u32 s{sreg}, s{sreg}, {step}")
        a(f"s_cmp_eq_u32 s{sreg}, {wrap}")
        a(f"s_cselect_b32 s{sreg}, 0, s{sreg}")
    parts = ((VXD, SRD_A, S_KX, 0, 128, 1280), (VQD, SRD_B, S_KQ, 16384, 64*3840, 640*3840), (V1D, SRD_E, S_K1, 32768, 64*3456, 640*3456))
    def dma(b, part, i):
        vd, sr, sk, off, step, wrap = parts[part]
        if i == 0:
            a(f"s_add_u32 m0, s{S_M}, {(b % 3)*SLOT + off}")
            if b > 0: adv(sk, step, wrap)
        a(f"buffer_load_dwordx4 v{vd+i}, s[{sr}:{sr+3}], s{sk} offen offset:{i*1024} lds", tag=('B', b))
    def dma_block(b):
        for part in range(3):
            for i in range(2): dma(b, part, i)
    NI = OPT.get('finit', 2)
    for b in range(NI): dma_block(b)
    pre_address(a, lbl + "_pa", rows=False)
    a(f"s_and_b32 s{T0}, s{S_W}, 1")
    a(f"s_lshl_b32 s{T0}, s{T0}, 13")
    a(f"v_and_b32 v{t0}, 31, v1")
    a(f"v_lshrrev_b32 v{t1}, 5, v1")
    a(f"v_bfe_u32 v{t2}, v1, 1, 3")
    a(f"v_lshlrev_b32 v{t0}, 7, v{t0}")
    a(f"v_add_u32 v{t0}, s{T0}, v{t0}")
    for s_ in range(4):
        a(f"v_or_b32 v{t3}, {2*s_}, v{t1}")
        a(f"v_xor_b32 v{t3}, v{t3}, v{t2}")
        a(f"v_lshl_add_u32 v{VXF+s_}, v{t3}, 4, v{t0}")
        a(f"v_add_u32 v{VXF+4+s_}, {2*SLOT}, v{VXF+s_}")
    a(f"v_bfe_u32 v{t0}, v1, 2, 2")
    a(f"v_lshl_add_u32 v{t1}, v{t1}, 3, v{t0}")
    a(f"v_lshlrev_b32 v{t1}, 8, v{t1}")
    a(f"v_bfe_u32 v{t2}, v1, 4, 1")
    a(f"v_lshl_add_u32 v{t1}, v{t2}, 5, v{t1}")
    a(f"v_and_b32 v{t2}, 3, v1")
    a(f"v_lshl_add_u32 v{t1}, v{t2}, 3, v{t1}")
    a(f"s_lshr_b32 s{T0}, s{S_W}, 1")
    a(f"v_xor_b32 v{t2}, s{T0}, v{t0}")
    a(f"v_lshl_add_u32 v{VWF}, v{t2}, 6, v{t1}")
    a(f"v_add_u32 v{VWF+1}, {SLOT}, v{VWF}")
    a(f"v_add_u32 v{VWF+2}, {2*SLOT}, v{VWF}")
    a(f"s_lshl_b32 s{T0}, s{S_RB}, 7")
    a(f"s_add_u32 s{T0}, s{T0}, {WS_FLAG + FS}")
    a(f"v_mov_b32 v{t0}, s{T0}")
    a(f"s_min_u32 s{T1}, s{S_CJ}, 13")
    a(f"s_lshl_b32 s{T1}, s{T1}, 2")
    a(f"s_add_u32 s{T1}, s{T1}, {WS_FLAG + FC}")
    a(f"v_mov_b32 v{t1}, s{T1}")
    a(f"v_cmp_gt_u32 s[{T4}:{T4+1}], 32, v1")
    a(f"v_cndmask_b32 v{VP}, v{t1}, v{t0}, s[{T4}:{T4+1}]")
    a(f"s_lshl_b32 s{T0}, s{S_RB}, 7")
    a(f"s_lshl_b32 s{T1}, s{S_CJ}, 2")
    a(f"s_add_u32 s{T0}, s{T0}, s{T1}")
    a(f"s_add_u32 s{S_FQ}, s{T0}, {WS_FLAG + FQ}")
    a(f"s_add_u32 s{S_FH}, s{T0}, {WS_FLAG + FH}")
    a(f"s_cmp_lt_u32 s{S_CJ}, 14")
    a(f"s_cselect_b32 s{S_FHO}, s{S_FH}, 0x7fff0000")
    def rd_b(st, b, u, tt):
        sl = b % 3
        a(f"ds_read_b128 {vr(FB[st]+4*tt,4)}, v{VXF + u + (4 if sl == 2 else 0)} offset:{(SLOT if sl == 1 else 0) + tt*4096}", tag=('f', b, u, 'b', tt))
    def rd_a(st, b, u, F, rd):
        a(f"ds_read_b64_tr_b16 {vr(FB[st]+8+4*F+2*rd,2)}, v{VWF + b % 3} offset:{16384*(F+1) + u*4096 + rd*1024}", tag=('f', b, u, 'a', F))
    def reads(st, b, u):
        return [lambda: rd_b(st, b, u, 0), lambda: rd_a(st, b, u, 0, 0), lambda: rd_a(st, b, u, 0, 1),
                lambda: rd_b(st, b, u, 1), lambda: rd_a(st, b, u, 1, 0), lambda: rd_a(st, b, u, 1, 1)]
    mark(a)
    a.wait_vm(('B', 0))
    a("s_barrier")
    for r in reads(0, 0, 0): r()
    NB = 10
    pend = [(b, p, i) for b in range(NI, 3) for p in range(3) for i in range(2)]
    for b in range(NB):
        for u in range(4):
            s_ = 4*b + u; st = s_ & 1
            last = (b == NB-1 and u == 3)
            if u == 3 and b + 1 < NB:
                while pend: dma(*pend.pop(0))
                a("s_waitcnt lgkmcnt(0)")
                a.wait_vm(('B', b + 1))
                a("s_barrier")
                if b == 3:
                    a.wait_vm('pl')
                    repack_finish(a)
                if b == 6: pre_flags(a, t3, stats=False)
                if b + 3 < NB: pend = [(b + 3, p, i) for p in range(3) for i in range(2)]
            nb, nu = (b, u + 1) if u < 3 else (b + 1, 0)
            rs = [] if last else reads(st ^ 1, nb, nu)
            plan = {-1: rs[0:2], 0: rs[2:5], 1: rs[5:6]}
            for r in plan[-1]: r()
            for k, (tt, F) in enumerate([(0, 0), (1, 0), (0, 1), (1, 1)]):
                a.wait_lg([('f', b, u, 'b', tt), ('f', b, u, 'a', F)])
                d = vr(ACC+16*(2*tt+F), 16)
                a(f"v_mfma_f32_32x32x16_bf16 {d}, {vr(FB[st]+8+4*F,4)}, {vr(FB[st]+4*tt,4)}, {'0' if s_ == 0 else d}")
                for r in plan.get(k, []): r()
                if pend and k in (1, 3): dma(*pend.pop(0))
            if b == 1 and u == 0: pre_issue(a, rows=False)
            if b == 1 and u == 1: nonce_issue(a, 252)
            if b == 3 and u == 1: nonce_check(a, 252)
            if b == 6 and u == 0: poll_issue(a, VP, VPV, 'p1')
            if b == 8 and u == 0:
                L = uid("nf")
                a(f"s_cmp_ge_u32 s{S_CJ}, 14")
                a(f"s_cbranch_scc1 {L}")
                vm0 = list(a.vm)
                poll_check(a, VP, VPV, 'p1')
                a.label(L)
                a.vm = vm0
                a(f"s_lshl_b32 s{T0}, s{S_RB}, 10")
                a(f"s_and_b32 s{T1}, s{S_W}, 1")
                a(f"s_lshl_b32 s{T1}, s{T1}, 9")
                a(f"s_add_u32 s{T0}, s{T0}, s{T1}")
                a(f"s_add_u32 s{T0}, s{T0}, {WS_ST}")
                a(f"v_and_b32 v{t0}, 31, v1")
                a(f"v_lshlrev_b32 v{t0}, 4, v{t0}")
                a(f"buffer_load_dwordx4 {vr(ST,4)}, v{t0}, s[{SRD_WS}:{SRD_WS+3}], s{T0} offen sc1", tag='tab')
                a(f"v_lshrrev_b32 v{t0}, 5, v1")
                a(f"v_lshlrev_b32 v{t0}, 4, v{t0}")
                a(f"s_lshl_b32 s{T0}, s{S_CJ}, 9")
                a(f"s_lshr_b32 s{T1}, s{S_W}, 1")
                a(f"s_lshl_b32 s{T1}, s{T1}, 7")
                a(f"s_add_u32 s{T0}, s{T0}, s{T1}")
                a(f"s_add_u32 s{T1}, s{T0}, {WS_B1}")
                a(f"s_add_u32 s{T0}, s{T0}, {WS_CS}")
                for j in range(4):
                    a(f"buffer_load_dwordx4 {vr(CSR+4*j,4)}, v{t0}, s[{SRD_WS}:{SRD_WS+3}], s{T0} offen offset:{32*j} sc1", tag='tab')
                    a(f"buffer_load_dwordx4 {vr(B1R+4*j,4)}, v{t0}, s[{SRD_WS}:{SRD_WS+3}], s{T1} offen offset:{32*j} sc1", tag='tab')
    mark(a)
    a(f"v_lshrrev_b32 v{t0}, 5, v1")
    a(f"s_lshr_b32 s{T0}, s{S_W}, 1")
    a(f"s_lshl_b32 s{T0}, s{T0}, 3")
    a(f"v_add_u32 v{t0}, s{T0}, v{t0}")
    a(f"v_lshlrev_b32 v{t0}, 14, v{t0}")
    a(f"s_and_b32 s{T0}, s{S_W}, 1")
    a(f"s_lshl_b32 s{T0}, s{T0}, 9")
    a(f"v_and_b32 v{t1}, 31, v1")
    a(f"v_lshl_add_u32 v{t0}, v{t1}, 4, v{t0}")
    a(f"v_add_u32 v{t0}, s{T0}, v{t0}")
    a(f"s_lshl_b32 s{T0}, s{S_CJ}, 19")
    a(f"s_lshl_b32 s{T1}, s{S_RB}, 10")
    a(f"s_add_u32 s{T0}, s{T0}, s{T1}")
    a(f"s_add_u32 s{T0}, s{T0}, {WS_QKV}")
    a(f"s_cmp_lt_u32 s{S_CJ}, 5")
    a(f"s_cselect_b32 s{T2}, 0x3ea52b5c, 1.0")
    a(f"v_mov_b32 v30, s{T2}")
    for tt in range(2):
        for r in range(0, 16, 2):
            a(f"v_pk_mul_f32 {vr(ACC+32*tt+r,2)}, {vr(ACC+32*tt+r,2)}, v[30:31] op_sel_hi:[1,0]")
    for j in range(4):
        a(f"s_add_u32 s{T1}, s{T0}, {2*j*16384}")
        d = FB[0] + 4*j
        for tt in range(2):
            base = ACC + 32*tt + 4*j
            a(f"v_cvt_pk_bf16_f32 v{d+2*tt}, v{base}, v{base+1}")
            a(f"v_cvt_pk_bf16_f32 v{d+2*tt+1}, v{base+2}, v{base+3}")
        a(f"buffer_store_dwordx4 {vr(d,4)}, v{t0}, s[{SRD_WS}:{SRD_WS+3}], s{T1} offen sc1", tag='qst')
    C0, C1, VY, ONE = 2, 3, 4, 6
    TU, TE = 48, 56
    a(f"v_mov_b32 v{ONE}, 1.0")
    a(f"v_mov_b32 v{C0}, 0xc0135761")
    a(f"v_mov_b32 v{C1}, 0xbdd2d3e8")
    a(f"v_lshlrev_b32 v{VY}, 4, v1")
    a(f"s_lshl_b32 s{T0}, s{S_CJ}, 3")
    a(f"s_lshr_b32 s{T1}, s{S_W}, 1")
    a(f"s_lshl_b32 s{T1}, s{T1}, 1")
    a(f"s_add_u32 s{S_ACT}, s{T0}, s{T1}")
    a(f"s_lshl_b32 s{T0}, s{S_RB}, 2")
    a(f"s_and_b32 s{T1}, s{S_W}, 1")
    a(f"s_lshl_b32 s{T1}, s{T1}, 1")
    a(f"s_add_u32 s{T0}, s{T0}, s{T1}")
    a(f"s_mul_i32 s{T0}, s{T0}, 108")
    a(f"s_add_u32 s{T0}, s{T0}, s{S_ACT}")
    a(f"s_lshl_b32 s{T0}, s{T0}, 10")
    a(f"s_add_u32 s{S_HB}, s{T0}, {WS_H}")
    a(f"s_cmp_lt_u32 s{S_ACT}, 108")
    a(f"s_cselect_b32 s{S_HB}, s{S_HB}, 0x7fff0000")
    a.wait_vm('tab')
    P = lambda b, e: vr(b + 2*e, 2)
    for tt in range(2):
        nmp = vr(ST + 2*tt, 2)
        for jj in range(2):
            x = ACC + 16*(2*tt+1) + 8*jj
            for e in range(4):
                j, i = 2*jj + (e >> 1), 2*(e & 1)
                a(f"v_pk_fma_f32 {P(TU,e)}, {nmp}, {vr(CSR+4*j+i,2)}, {vr(B1R+4*j+i,2)} op_sel_hi:[0,1,1]")
            for e in range(4): a(f"v_pk_fma_f32 {P(x,e)}, {nmp}, {P(x,e)}, {P(TU,e)} op_sel:[1,0,0] op_sel_hi:[1,1,1]")
            for e in range(4): a(f"v_pk_mul_f32 {P(TU,e)}, {P(x,e)}, {P(x,e)}")
            for e in range(4): a(f"v_pk_fma_f32 {P(TU,e)}, {P(TU,e)}, {vr(C0,2)}, {vr(C0,2)} op_sel:[0,1,0] op_sel_hi:[1,1,0]")
            for e in range(4): a(f"v_pk_mul_f32 {P(TU,e)}, {P(TU,e)}, {P(x,e)}")
            for e in range(8): a(f"v_exp_f32 v{TE+e}, v{TU+e}")
            for e in range(4): a(f"v_pk_add_f32 {P(TE,e)}, {P(TE,e)}, {vr(ONE,2)} op_sel_hi:[1,0]")
            for e in range(8): a(f"v_rcp_f32 v{TE+e}, v{TE+e}")
            for e in range(4): a(f"v_pk_mul_f32 {P(TE,e)}, {P(TE,e)}, {P(x,e)}")
            d = TD + 4*(2*tt + jj)
            for e in range(4): a(f"v_cvt_pk_bf16_f32 v{d+e}, v{TE+2*e}, v{TE+2*e+1}")
    fq_poll_offsets(a, VP, t3)
    a.wait_vm('qst')
    a("s_barrier")
    flag_store(a, S_FQ, t3)
    mark(a)
    for tt in range(2):
        if tt == 1: a(f"s_add_u32 s{S_HB}, s{S_HB}, {108*1024}")
        for jj in range(2):
            d = TD + 4*(2*tt + jj)
            a(f"buffer_store_dwordx4 {vr(d,4)}, v{VY}, s[{SRD_WS}:{SRD_WS+3}], s{S_HB} offen offset:{jj*1024} sc1", tag='hst')
    a(f"s_branch {lbl}_stage")
    a.label(f"{lbl}_idle")
    a.reset_counters()
    t3i = t3
    srd(a, SRD_A, P_AX, SIZES['AX'])
    rowstats_issue(a)
    colsum_issue(a)
    nonce_issue(a, 252)
    rowstats_compute(a)
    colsum_compute(a, lbl + "_cs")
    nonce_check(a, 252)
    a("s_waitcnt vmcnt(0)")
    a("s_barrier")
    a(f"s_lshl_b32 s{T0}, s{S_RB}, 7")
    a(f"s_add_u32 s{T0}, s{T0}, {WS_FLAG + FS}")
    flag_store(a, T0, t3)
    a(f"s_lshl_b32 s{T0}, s{S_RB}, 2")
    a(f"s_add_u32 s{T0}, s{T0}, {WS_FLAG + FC}")
    flag_store(a, T0, t3)
    pre_address(a, lbl + "_pai", rows=False)
    pre_issue(a, rows=False)
    a.wait_vm('pl')
    repack_finish(a)
    a("s_waitcnt vmcnt(0)")
    a("s_barrier")
    pre_flags(a, t3, stats=False)
    a(f"s_mov_b32 s{S_FHO}, 0x7fff0000")
    fq_poll_offsets(a, VP, t3)
    a.label(f"{lbl}_stage")
    a.reset_counters()
    a(f"s_mov_b64 s[{T4}:{T4+1}], -1")
    wait_flags(a, VP, VPV, T4)
    mark(a)
    Li = uid("ik")
    a(f"s_cmp_ge_u32 s{S_W}, 4")
    a(f"s_cbranch_scc1 {Li}")
    attn_stage_q(a, 3)
    attn_stage_kv(a, t0, t1, t2, 2)
    a.wait_vm(('kv', 0))
    a.label(Li)
    a.reset_counters()

def stage_attn(a, lbl):
    HP, S_HH, S_QW = S_AHP, 78, 79
    VD, VK, VV, VKX, VW = 2, 3, 4, 5, 10
    t0, t1, t2, t3, t4 = 6, 7, 8, 9, 11
    MK = 12
    Q0, Q1 = 20, 24
    KF = [28, 36]
    VF = [44, 48, 52, 56]
    PF = [60, 64, 68, 72]
    OA = 76
    CS, NM, MX = 96, 97, 98
    S = 104
    VPQ, VPH = 92, 94
    a(f"v_and_b32 v{t0}, 31, v1")
    a(f"v_and_b32 v{VPH}, 15, v1")
    a(f"v_min_u32 v{VPH}, 13, v{VPH}")
    a(f"v_lshlrev_b32 v{VPH}, 2, v{VPH}")
    a(f"s_lshr_b32 s{T1}, s{S_FRB}, 1")
    a(f"s_lshl_b32 s{T1}, s{T1}, 7")
    a(f"s_add_u32 s{T1}, s{T1}, {WS_FLAG + FH}")
    a(f"v_add_u32 v{VPH}, s{T1}, v{VPH}")
    a(f"v_lshrrev_b32 v{t1}, 5, v1")
    for r in range(4): a(f"v_mov_b32 v{KF[0]+r}, 0x3f803f80")
    a(f"v_lshlrev_b32 v{t4}, 4, v0")
    a(f"v_add_u32 v{t4}, {LONES}, v{t4}")
    a(f"v_mov_b32 v{KF[1]}, 208")
    a(f"v_cmp_gt_u32 vcc, v{KF[1]}, v0")
    L = uid("on")
    a(f"s_and_saveexec_b64 s[{T4}:{T4+1}], vcc")
    a(f"s_cbranch_execz {L}")
    a(f"ds_write_b128 v{t4}, {vr(KF[0],4)}")
    a.label(L)
    a(f"s_mov_b64 exec, s[{T4}:{T4+1}]")
    SM = 98
    a(f"v_lshlrev_b32 v{t2}, 2, v{t1}")
    a(f"v_sub_u32 v{t2}, v{t0}, v{t2}")
    VM = 248
    a(f"v_mov_b32 v{VM}, v{t2}")
    a(f"v_mov_b32 v{t3}, 0xffff")
    a(f"v_mov_b32 v{t4}, 0xffff0000")
    for q in range(8):
        r0, r1 = 2*q, 2*q + 1
        a(f"v_cmp_le_i32 s[98:99], {8*(r0 >> 2) + (r0 & 3)}, v{VM}")
        a(f"v_cmp_le_i32 s[100:101], {8*(r1 >> 2) + (r1 & 3)}, v{VM}")
        a(f"v_cndmask_b32 v{MK+q}, 0, v{t3}, s[98:99]")
        a(f"v_cndmask_b32 v{KF[1]}, 0, v{t4}, s[100:101]")
        a(f"v_or_b32 v{MK+q}, v{MK+q}, v{KF[1]}")
    a(f"s_lshl_b32 s{T0}, s{S_QW}, 8")
    a(f"s_mul_i32 s{T3}, s{S_HH}, {5*PST}")
    a(f"s_add_u32 s{T2}, s{T0}, s{T3}")
    a(f"s_add_u32 s{T2}, s{T2}, {LK}")
    a(f"v_lshlrev_b32 v{t2}, 3, v{t0}")
    a(f"v_add_u32 v{t2}, s{T2}, v{t2}")
    a(f"s_movk_i32 s{T1}, {2*PST}")
    a(f"v_mul_lo_u32 v{t3}, v{t1}, s{T1}")
    a(f"v_add_u32 v{VK}, v{t2}, v{t3}")
    a(f"v_add_u32 v{VKX}, {4*PST}, v{t2}")
    a(f"v_bfe_u32 v{t2}, v1, 4, 1")
    a(f"v_and_b32 v{t3}, 3, v1")
    a(f"v_lshl_add_u32 v{t2}, v{t2}, 2, v{t3}")
    a(f"v_bfe_u32 v{t3}, v1, 2, 2")
    a(f"v_lshl_add_u32 v{t3}, v{t1}, 2, v{t3}")
    a(f"v_lshlrev_b32 v{t3}, 3, v{t3}")
    a(f"v_add_u32 v{t3}, s{T0}, v{t3}")
    a(f"s_movk_i32 s{T1}, {PST}")
    a(f"v_mul_lo_u32 v{t4}, v{t2}, s{T1}")
    a(f"v_cmp_gt_u32 s[{T4}:{T4+1}], 5, v{t2}")
    a(f"s_add_u32 s{T3}, s{T3}, {LV}")
    a(f"s_sub_u32 s{T2}, s{T3}, {LONES}")
    a(f"v_lshlrev_b32 v{KF[0]}, 5, v{t2}")
    a(f"v_add_u32 v{KF[0]}, s{T2}, v{KF[0]}")
    a(f"v_and_b32 v{KF[0]}, 255, v{KF[0]}")
    a(f"v_add_u32 v{KF[0]}, {LONES}, v{KF[0]}")
    a(f"v_add_u32 v{KF[0]+1}, s{T3}, v{t4}")
    a(f"v_cndmask_b32 v{KF[0]}, v{KF[0]}, v{KF[0]+1}, s[{T4}:{T4+1}]")
    a(f"v_add_u32 v{VV}, v{KF[0]}, v{t3}")
    a(f"v_mov_b32 v{CS}, 0x3ea52b5c")
    for st in range(2):
        a(f"v_mov_b32 v{KF[st]+6}, 0"); a(f"v_mov_b32 v{KF[st]+7}, 0")
    a(f"v_mov_b32 v{Q1+2}, 0"); a(f"v_mov_b32 v{Q1+3}, 0")
    a(f"v_lshlrev_b32 v{VW}, 4, v1")
    a(f"s_lshl_b32 s{T0}, s{S_ARB}, 2")
    a(f"s_add_u32 s{S_QB}, s{T0}, s{S_QW}")
    a(f"s_mul_i32 s{T0}, s{S_HH}, 5120")
    a(f"s_lshl_b32 s{T1}, s{S_QW}, 8")
    a(f"s_add_u32 s{T0}, s{T0}, s{T1}")
    a(f"s_add_u32 s{T0}, s{T0}, {QL}")
    a(f"v_lshlrev_b32 v{t2}, 3, v{t0}")
    a(f"v_add_u32 v{t2}, s{T0}, v{t2}")
    a(f"v_lshl_add_u32 v{t3}, v{t1}, 11, v{t2}")
    a("s_waitcnt lgkmcnt(0)")
    a("s_barrier")
    a(f"ds_read_b64 {vr(Q0,2)}, v{t3}")
    a(f"ds_read_b64 {vr(Q0+2,2)}, v{t3} offset:1024")
    a(f"ds_read_b64 {vr(Q1,2)}, v{t2} offset:4096")
    a(f"v_cmp_gt_u32 s[{T4}:{T4+1}], 32, v1")
    a("s_waitcnt lgkmcnt(0)")
    for q in (Q1, Q1+1):
        a(f"v_cndmask_b32 v{q}, 0, v{q}, s[{T4}:{T4+1}]")
    mark(a)
    SB = [100, 116, 132]; NM16 = 148
    order = [0, 8, 1, 2, 3, 4, 5, 6, 7]
    a(f"v_mov_b32 v{Q1+2}, 0x3f80")
    a(f"v_cndmask_b32 v{Q1+2}, 0, v{Q1+2}, s[{T4}:{T4+1}]")
    kn = [0]
    def rd_k(tl):
        st = KF[kn[0] % 2]; kn[0] += 1
        a(f"ds_read_b64 {vr(st,2)}, v{VK} offset:{tl*256}", tag=('k', tl))
        a(f"ds_read_b64 {vr(st+2,2)}, v{VK} offset:{PST + tl*256}", tag=('k', tl))
        a(f"ds_read_b64 {vr(st+4,2)}, v{VKX} offset:{tl*256}", tag=('k', tl))
        if tl < 8:
            a(f"s_cmp_lt_u32 s{S_QB}, {8-tl}")
            a(f"s_cselect_b32 s{T0}, 0xf149, 0")
            a(f"v_mov_b32 v{st+6}, s{T0}")
        else:
            a(f"v_mov_b32 v{st+6}, 0")
        return st
    def qk(tl, st, buf, c):
        a.wait_lg(('k', tl))
        d = vr(buf, 16)
        a(f"v_mfma_f32_32x32x16_bf16 {d}, {vr(st,4)}, {vr(Q0,4)}, {c}")
        a(f"v_mfma_f32_32x32x16_bf16 {d}, {vr(st+4,4)}, {vr(Q1,4)}, {d}")
    def merge():
        for r in range(0, 16, 2):
            a(f"v_cmp_le_i32 s[98:99], {8*(r >> 2) + (r & 3)}, v{VM}")
            a(f"v_cmp_le_i32 s[100:101], {8*((r+1) >> 2) + ((r+1) & 3)}, v{VM}")
            a(f"v_cndmask_b32 v{SB[0]+r}, v{SB[0]+r}, v{SB[1]+r}, s[98:99]")
            a(f"v_cndmask_b32 v{SB[0]+r+1}, v{SB[0]+r+1}, v{SB[1]+r+1}, s[100:101]")
    bufs = {0: SB[0], 8: SB[1]}
    for n, tl in enumerate(range(1, 8)): bufs[tl] = SB[(2 - n) % 3]
    def tmax(buf, first):
        for h in range(2):
            m = MX + h
            a(f"v_max3_f32 v{m}, v{buf+8*h}, v{buf+8*h+1}, {'v%d' % (buf+8*h+2) if first else 'v%d' % m}")
            ks = range(3, 8) if first else range(2, 8)
            ks = list(ks)
            while ks:
                if len(ks) >= 2:
                    a(f"v_max3_f32 v{m}, v{m}, v{buf+8*h+ks[0]}, v{buf+8*h+ks[1]}"); ks = ks[2:]
                else:
                    a(f"v_max_f32 v{m}, v{m}, v{buf+8*h+ks[0]}"); ks = ks[1:]
    st = rd_k(0); st2 = rd_k(8)
    qk(0, st, bufs[0], "0")
    st = rd_k(1)
    qk(8, st2, bufs[8], "0")
    st2 = rd_k(2)
    qk(1, st, bufs[1], "0")
    merge()
    tmax(SB[0], True)
    cur = st2
    for tl in range(2, 8):
        nxt = rd_k(tl + 1) if tl + 1 < 8 else None
        qk(tl, cur, bufs[tl], "0")
        tmax(bufs[tl-1], False)
        cur = nxt
    tmax(bufs[7], False)
    a(f"v_max_f32 v{MX}, v{MX}, v{MX+1}")
    a(f"v_mov_b32 v{MX+1}, v{MX}")
    a(f"v_permlane32_swap_b32 v{MX}, v{MX+1}")
    a(f"v_max_f32 v{MX}, v{MX}, v{MX+1}")
    a(f"v_sub_f32 v{NM16}, 0, v{MX}")
    for r in range(1, 16): a(f"v_mov_b32 v{NM16+r}, v{NM16}")
    if OPT.get('fine5'): mark(a)
    st = rd_k(0); st2 = rd_k(8)
    Lv = uid("vb")
    a(f"s_cmp_ge_u32 s{S_W}, 4")
    a(f"s_cbranch_scc1 {Lv}_1")
    a(f"s_waitcnt vmcnt({20 if OPT.get('earlyw', 0) else 0})")
    a(f"s_branch {Lv}_2")
    a.label(f"{Lv}_1")
    a("s_waitcnt vmcnt(0)")
    a.label(f"{Lv}_2")
    a.vm = []
    a("s_barrier")
    flag_store(a, S_FHO, t3)
    if not OPT.get('earlyw', 0):
        fw_poll_offsets(a, VPQ)
        poll_issue(a, VPQ, VPQ+1, 'pw')
        poll_check(a, VPQ, VPQ+1, 'pw')
        dma_wf(a, 0, VW); dma_wf(a, 1, VW)
    mark(a)
    nv = [0]; ps = [0]
    for r in range(16): a(f"v_mov_b32 v{OA+r}, 0")
    def rd_v(tl, kk):
        slot = nv[0] % 4; nv[0] += 1
        for rd in range(2):
            a(f"ds_read_b64_tr_b16 {vr(VF[slot]+2*rd,2)}, v{VV} offset:{tl*256 + kk*128 + rd*64}", tag=('v', tl, kk))
        return slot
    def frag(src):
        p = PF[ps[0] % 4]; ps[0] += 1
        for e in range(8): a(f"v_exp_f32 v{src+e}, v{src+e}")
        for e in range(4): a(f"v_cvt_pk_bf16_f32 v{p+e}, v{src+2*e}, v{src+2*e+1}")
        return p
    def pv(p, slot, tag):
        a.wait_lg(tag)
        a(f"v_mfma_f32_32x32x16_bf16 {vr(OA,16)}, {vr(VF[slot],4)}, {vr(p,4)}, {vr(OA,16)}")
    C = vr(NM16, 16)
    qk(0, st, bufs[0], C)
    st = rd_k(1)
    qk(8, st2, bufs[8], C)
    st2 = rd_k(2)
    qk(1, st, bufs[1], C)
    merge()
    fin = None
    for kk in range(2):
        s0 = rd_v(0, kk); s8 = rd_v(8, kk)
        p = frag(SB[0] + 8*kk)
        p8 = PF[ps[0] % 4]; ps[0] += 1
        for e in range(4): a(f"v_and_b32 v{p8+e}, v{p+e}, v{MK+4*kk+e}")
        for e in range(4): a(f"v_xor_b32 v{p+e}, v{p+e}, v{p8+e}")
        pv(p, s0, ('v', 0, kk))
        pv(p8, s8, ('v', 8, kk))
    cur = st2
    for tl in range(1, 8):
        if tl + 1 < 8:
            nxt = rd_k(tl + 2) if tl + 2 < 8 else None
            qk(tl + 1, cur, bufs[tl+1], C)
            cur = nxt
        for kk in range(2):
            slot = rd_v(tl, kk)
            p = frag(bufs[tl] + 8*kk)
            pv(p, slot, ('v', tl, kk))
        if tl == OPT.get('tpoll', 2): poll_issue(a, VPH, VPH+1, 'ph')
        if tl == OPT.get('ttok', 5):
            if OPT.get('fine5'): mark(a)
            fin = final_setup(a, VPH)
            if OPT.get('fine5'): mark(a)
    a(f"v_and_b32 v{t0}, 1, v1")
    a(f"v_mul_u32_u24 v{t0}, {40*1024}, v{t0}")
    a(f"v_bfe_u32 v{t1}, v1, 1, 4")
    a(f"v_lshl_add_u32 v{t0}, v{t1}, 4, v{t0}")
    a(f"s_and_b32 s{T0}, s{S_QB}, 1")
    a(f"s_lshl_b32 s{T0}, s{T0}, 8")
    a(f"s_lshr_b32 s{T1}, s{S_QB}, 1")
    a(f"s_mul_i32 s{T1}, s{T1}, {80*1024}")
    a(f"s_add_u32 s{T0}, s{T0}, s{T1}")
    a(f"s_add_u32 s{T0}, s{T0}, {WS_O}")
    a(f"v_lshrrev_b32 v{t1}, 5, v1")
    a(f"v_lshl_add_u32 v{t2}, v{t1}, 9, v{t0}")
    a(f"v_rcp_f32 v{NM}, v{OA+12}")
    for r in range(12): a(f"v_mul_f32 v{OA+r}, v{OA+r}, v{NM}")
    for e in range(4): a(f"v_cvt_pk_bf16_f32 v{PF[0]+e}, v{OA+2*e}, v{OA+2*e+1}")
    a(f"v_cvt_pk_bf16_f32 v{PF[1]}, v{OA+8}, v{OA+9}")
    a(f"v_cvt_pk_bf16_f32 v{PF[1]+1}, v{OA+10}, v{OA+11}")
    a(f"s_lshl_b32 s{T1}, s{HP}, 1")
    a(f"s_add_u32 s{T1}, s{T1}, s{S_HH}")
    a(f"s_lshl_b32 s{T1}, s{T1}, 10")
    a(f"s_add_u32 s{T1}, s{T1}, s{T0}")
    a(f"buffer_store_dwordx4 {vr(PF[0],4)}, v{t2}, s[{SRD_WS}:{SRD_WS+3}], s{T1} offen sc1", tag='ost')
    a(f"s_lshr_b32 s{T1}, s{HP}, 1")
    a(f"s_add_u32 s{T1}, s{T1}, 32")
    a(f"s_lshl_b32 s{T1}, s{T1}, 10")
    a(f"s_and_b32 s{T2}, s{HP}, 1")
    a(f"s_lshl_b32 s{T2}, s{T2}, 9")
    a(f"s_add_u32 s{T1}, s{T1}, s{T2}")
    a(f"s_lshl_b32 s{T2}, s{S_HH}, 3")
    a(f"s_add_u32 s{T1}, s{T1}, s{T2}")
    a(f"s_add_u32 s{T1}, s{T1}, s{T0}")
    a("s_mov_b32 exec_hi, 0")
    a(f"buffer_store_dwordx2 {vr(PF[1],2)}, v{t0}, s[{SRD_WS}:{SRD_WS+3}], s{T1} offen sc1", tag='ost')
    a("s_mov_b32 exec_hi, -1")
    S_FO = 78
    a(f"s_lshl_b32 s{T0}, s{S_ARB}, 7")
    a(f"s_lshl_b32 s{T1}, s{HP}, 2")
    a(f"s_add_u32 s{T0}, s{T0}, s{T1}")
    a(f"s_add_u32 s{S_FO}, s{T0}, {WS_FLAG + FO}")
    mark(a)
    return dict(VPH=VPH, VW=VW, S_FO=S_FO, fin=fin)

TR, NT, HM, NM_ = 164, 20, 27, 37
F_HB, F_OB, F_TG, F_KG = 70, 71, 72, 81
F_VB = 11
def final_setup(a, VPH):
    TD = OPT.get('td', 16)
    t1, t2, t3 = 6, 7, 8
    a(f"s_and_b32 s{F_TG}, s{S_W}, 3")
    a(f"s_lshr_b32 s{F_KG}, s{S_W}, 2")
    poll_check(a, VPH, VPH+1, 'ph')
    if OPT.get('pfh', 0): touch_h(a, t1, t2)
    a(f"v_lshrrev_b32 v{t1}, 5, v1")
    a(f"v_bfe_u32 v{t2}, v1, 4, 1")
    a(f"v_lshlrev_b32 v{t1}, 10, v{t1}")
    a(f"v_lshl_add_u32 v{t1}, v{t2}, 9, v{t1}")
    a(f"v_and_b32 v{t2}, 15, v1")
    a(f"s_and_b32 s{T0}, s{F_TG}, 1")
    a(f"s_lshl_b32 s{T0}, s{T0}, 4")
    a(f"v_add_u32 v{t3}, s{T0}, v{t2}")
    a(f"v_lshl_add_u32 v{F_VB}, v{t3}, 4, v{t1}")
    a(f"s_lshl_b32 s{T0}, s{S_FRB}, 1")
    a(f"s_lshr_b32 s{T1}, s{F_TG}, 1")
    a(f"s_add_u32 s{T0}, s{T0}, s{T1}")
    a(f"s_lshl_b32 s{T2}, s{F_KG}, 11")
    a(f"s_mul_i32 s{T1}, s{T0}, {108*1024}")
    a(f"s_add_u32 s{T1}, s{T1}, s{T2}")
    a(f"s_add_u32 s{F_HB}, s{T1}, {WS_H}")
    a(f"s_mul_i32 s{T1}, s{T0}, {40*1024}")
    a(f"s_add_u32 s{T1}, s{T1}, s{T2}")
    a(f"s_add_u32 s{F_OB}, s{T1}, {WS_O}")
    def ld_t(m):
        sb, k = (F_HB, m) if m < HM else (F_OB, m - HM)
        if k > 0: a(f"s_add_u32 s{sb}, s{sb}, 4096")
        a(f"buffer_load_dwordx4 {vr(TR+4*(m % NT),4)}, v{F_VB}, s[{SRD_WS}:{SRD_WS+3}], s{sb} offen sc1", tag=('T', m))
    for m in range(TD): ld_t(m)
    return ld_t

def stage_final(a, lbl, st):
    VPH, S_FO = st['VPH'], st['S_FO']
    VW = st['VW']; ld_t = st['fin']
    VG, VO, VF = 3, 4, 6
    VA = 12
    t0, t1, t2, t3 = 16, 17, 18, 19
    AS = [20, 40, 60]
    ACB, ACA, BI = 100, 120, 80
    TD = OPT.get('td', 16)
    NM = NM_
    S_TG, S_KG = F_TG, F_KG
    srd(a, SRD_A, P_B2, SIZES['B2'])
    srd(a, SRD_B, P_OUT, SIZES['OUT'])
    a(f"s_mul_i32 s{T0}, s{S_KG}, 5120")
    a(f"v_lshlrev_b32 v{t1}, 4, v1")
    a(f"v_add_u32 v{t1}, s{T0}, v{t1}")
    for k in range(4): a(f"v_add_u32 v{VA+k}, {RING[k]}, v{t1}")
    def rd_a(m, F):
        g, u = m >> 2, m & 3
        a(f"ds_read_b128 {vr(AS[m % 3]+4*F,4)}, v{VA + g % 4} offset:{u*10240 + F*1024}", tag=('A', m, F))
    a.wait_vm(('W', 0))
    a("s_barrier")
    for m in range(2):
        for F in range(5): rd_a(m, F)
    dma_wf(a, 2, VW)
    a(f"s_lshl_b32 s{T0}, s{S_FRB}, 6")
    a(f"s_lshr_b32 s{T1}, s{S_TG}, 1")
    a(f"s_add_u32 s{T0}, s{T0}, s{T1}")
    a(f"s_and_b32 s{T1}, s{S_TG}, 1")
    a(f"s_lshl_b32 s{T1}, s{T1}, 5")
    a(f"s_add_u32 s{T0}, s{T0}, s{T1}")
    a(f"v_and_b32 v{t3}, 15, v1")
    a(f"v_lshlrev_b32 v{t3}, 1, v{t3}")
    a(f"v_add_u32 v{t3}, s{T0}, v{t3}")
    a(f"v_lshlrev_b32 v{t1}, 2, v{t3}")
    a(f"v_add_u32 v{t1}, {WS_G}, v{t1}")
    a(f"buffer_load_dword v{VG}, v{t1}, s[{SRD_WS}:{SRD_WS+3}], 0 offen sc1", tag='g')
    a(f"v_lshrrev_b32 v{t0}, 4, v1")
    a(f"s_movk_i32 s{T1}, 1280")
    a(f"v_mul_lo_u32 v{t3}, v{t3}, s{T1}")
    a(f"s_mul_i32 s{T0}, s{S_FCJ}, 160")
    a(f"v_lshl_add_u32 v{t3}, v{t0}, 3, v{t3}")
    a(f"v_add_u32 v{VO}, s{T0}, v{t3}")
    a(f"v_lshlrev_b32 v{t1}, 3, v{t0}")
    a(f"v_add_u32 v{t1}, s{T0}, v{t1}")
    for F in range(5):
        a(f"buffer_load_dwordx2 {vr(BI+2*F,2)}, v{t1}, s[{SRD_A}:{SRD_A+3}], 0 offen offset:{32*F}", tag='g')
    a(f"s_lshr_b32 s{T0}, s{S_FRB}, 1")
    a(f"s_lshl_b32 s{T0}, s{T0}, 7")
    a(f"s_add_u32 s{T0}, s{T0}, {WS_FLAG + FO}")
    a(f"v_and_b32 v{VF}, 15, v1")
    a(f"v_lshlrev_b32 v{VF}, 2, v{VF}")
    a(f"v_add_u32 v{VF}, s{T0}, v{VF}")
    mark(a)
    NG = 10
    POLL = HM - TD - 4
    for m in range(NM):
        g, u = m >> 2, m & 3
        if m == HM: mark(a)
        if u == 2 and g + 1 < NG:
            if g == 0: a.wait_vm(['ost', ('W', 1)])
            else: a.wait_vm(('W', g + 1))
            a("s_barrier")
            if g == 0:
                flag_store(a, S_FO, t1)
                dma_wf(a, 3, VW)
            elif g + 3 < NG and not OPT.get('f_nodma'): dma_wf(a, g + 3, VW)
        if m == POLL: poll_issue(a, VF, VF+1, 'fo')
        if m + TD == HM: poll_check(a, VF, VF+1, 'fo')
        a.wait_vm(('T', m))
        for F in range(5):
            a.wait_lg(('A', m, F))
            acc = (ACB if m < HM else ACA) + 4*F
            d = vr(acc, 4)
            a(f"v_mfma_f32_16x16x32_bf16 {d}, {vr(AS[m % 3]+4*F,4)}, {vr(TR+4*(m % NT),4)}, {'0' if m in (0, HM) else d}")
            if m + 2 < NM and not OPT.get('f_nolds'):
                rd_a(m + 2, F)
            if F == 2 and m + TD < NM and not OPT.get('f_notok'):
                ld_t(m + TD)
    mark(a)
    a.wait_vm('g')
    a(f"v_sub_f32 v{t0}, 1.0, v{VG}")
    Lb = uid("bi")
    a(f"s_cmp_lg_u32 s{S_KG}, 0")
    a(f"s_cbranch_scc1 {Lb}")
    for F in range(5):
        for e in range(2):
            a(f"v_lshlrev_b32 v{t2}, 16, v{BI+2*F+e}")
            a(f"v_and_b32 v{t3}, 0xffff0000, v{BI+2*F+e}")
            a(f"v_add_f32 v{ACB+4*F+2*e}, v{ACB+4*F+2*e}, v{t2}")
            a(f"v_add_f32 v{ACB+4*F+2*e+1}, v{ACB+4*F+2*e+1}, v{t3}")
    a.label(Lb)
    for r in range(20): a(f"v_mul_f32 v{ACB+r}, v{ACB+r}, v{t0}")
    for r in range(20): a(f"v_fmac_f32 v{ACB+r}, v{ACA+r}, v{VG}")
    a(f"v_lshlrev_b32 v{t1}, 4, v1")
    a(f"s_mul_i32 s{T0}, s{S_TG}, 5120")
    a(f"s_add_u32 s{T0}, s{T0}, {RING[2]}")
    a(f"v_add_u32 v{t1}, s{T0}, v{t1}")
    L = uid("rd")
    a(f"s_cmp_eq_u32 s{S_KG}, 0")
    a(f"s_cbranch_scc1 {L}")
    for F in range(5):
        a(f"ds_write_b128 v{t1}, {vr(ACB+4*F,4)} offset:{F*1024}")
    a("s_waitcnt lgkmcnt(0)")
    a("s_barrier")
    a("s_endpgm")
    a.label(L)
    a("s_barrier")
    for F in range(5):
        a(f"ds_read_b128 {vr(ACA+4*F,4)}, v{t1} offset:{F*1024}")
    a("s_waitcnt lgkmcnt(0)")
    for r in range(20): a(f"v_add_f32 v{ACB+r}, v{ACB+r}, v{ACA+r}")
    for F in range(5):
        d = AS[0] + 2*F
        a(f"v_cvt_pk_bf16_f32 v{d}, v{ACB+4*F}, v{ACB+4*F+1}")
        a(f"v_cvt_pk_bf16_f32 v{d+1}, v{ACB+4*F+2}, v{ACB+4*F+3}")
        a(f"buffer_store_dwordx2 {vr(d,2)}, v{VO}, s[{SRD_B}:{SRD_B+3}], 0 offen offset:{32*F}")
    a.reset_counters()

def code_prefetch(a):
    L = uid("cp")
    a(f"s_cmp_lg_u32 s{S_W}, 3")
    a(f"s_cbranch_scc1 {L}_skip")
    a(f"s_getpc_b64 s[{T4}:{T4+1}]")
    a.label(L)
    a(f"s_and_b32 s{T0}, s{S_I}, 7")
    a(f"s_lshl_b32 s{T0}, s{T0}, 13")
    a("v_lshlrev_b32 v251, 7, v1")
    a(f"v_add_u32 v251, s{T0}, v251")
    a(f"v_min_u32 v251, L_end-{L}-4, v251")
    vm = list(a.vm)
    a(f"global_load_dword v251, v251, s[{T4}:{T4+1}]")
    a.vm = vm
    a.label(f"{L}_skip")

def build():
    if OPT.get('fine2'):
        G_mark = G.mark
    OPT['mega'] = True
    LDS = 163840
    name = NAME + "_kernel"
    a = Asm()
    if G.STAMPS: a("s_memrealtime s[94:95]")
    a("s_cmp_ge_u32 s2, 256")
    a("s_cbranch_scc1 L_end")
    prologue(a)
    nonce_post(a)
    if OPT.get('cpf', 1): code_prefetch(a)
    stamp(a, 0, 0); CTX['k'] = 0; CTX['slot'] = 0
    if G.STAMPS:
        a("s_lshl_b32 s97, s2, 7")
        a(f"s_add_u32 s97, s97, {G.WS_STAMP + 15*4}")
        a("v_mov_b32 v254, s94")
        a(f"buffer_store_dword v254, off, s[{SRD_WS}:{SRD_WS+3}], s97")
        a.vm.pop()
    if OPT.get('prio'): a(f"s_setprio {OPT['prio']}")
    (stage1f if OPT.get('fused') else stage1g)(a, "s1"); mark(a)
    st = stage_attn(a, "attn")
    stage_final(a, "fin", st)
    if G.STAMPS: a("s_waitcnt vmcnt(0)")
    mark(a)
    a.label("L_end")
    return [(name, a.text())], LDS

def emit(ks, LDS):
    s = "\n".join(G.header_comment()) + "\n"
    s += f"; @launch grid=(256,1,1) block=(512,1,1) lds={LDS}\n"
    s += '.amdgcn_target "amdgcn-amd-amdhsa--gfx950"\n.text\n'
    for name, body in ks:
        s += G.kernel_text(name, body, 256, LDS)
    s += '.section .rodata,"a"\n'
    for name, _ in ks:
        s += ".p2align 6\n" + G.descriptor(name)
    return s

if __name__ == "__main__":
    if "stamps" in sys.argv: G.STAMPS = True
    for arg in sys.argv[1:]:
        if "=" in arg:
            k, v = arg.split("="); OPT[k] = int(v)
    ks, LDS = build()
    sys.stdout.write(emit(ks, LDS))
```

```python
import sys
import gen as G
from gen import mark4
from gen import (Asm, NAME, SIZES, srd, vr, uid, OPT, mark, stamp, CTX, dpp_sum16, WF_TILE,
                 P_AX, P_WQKV, P_WO, P_W1, P_B1, P_W2, P_B2, P_GW, P_OUT, P_DBG, P_WS,
                 SRD_A, SRD_B, SRD_WS, SRD_C, S_W, S_IDX, S_X, S_I, T0, T1, T2, T3, T4, T5, T6, T7,
                 S_RB, S_CJ, S_MASK, S_NONCE, nonce_post, nonce_get, publish, wait_flags)

WS_ST   = 0x0000000
WS_CS   = 0x0010000
WS_B1   = 0x0012000
WS_G    = G.WS_G
WS_QKV  = G.WS_QKV
WS_H, WS_O, WS_WF, WS_FLAG = G.WS_H, G.WS_O, G.WS_WF, G.WS_FLAG
FS, FW, FQ, FH, FO, FC = 0, 2048, 3072, 5120, 7168, 9216
PST = 3104
LB = 98304
LK, LV, LONES = LB, LB + 10*PST, LB + 20*PST
RING = [0, 40960, 81920, 122880]
WSLOT = 40960
SRD_D = 60
S_KX, S_KQ, S_K1 = 58, 59, 80
S_QB = 61
S_FHO, S_HBO = 86, 87
S_ARB, S_AHP, S_LW = 88, 89, 90

V_FLG = 250
def flag_setup(a):
    a(f"v_mov_b32 v{V_FLG}, 0x7ffffff0")
    a(f"v_cmp_eq_u32 s[{T4}:{T4+1}], 0, v0")
    a(f"v_cndmask_b32 v{V_FLG}, v{V_FLG}, 0, s[{T4}:{T4+1}]")

def flag_store(a, sflag, v):
    a(f"v_mov_b32 v{v}, s{S_NONCE}")
    a(f"buffer_store_dword v{v}, v{V_FLG}, s[{SRD_WS}:{SRD_WS+3}], s{sflag} offen sc1", tag='flag')

def poll_issue(a, voff, vval, tag):
    a(f"buffer_load_dword v{vval}, v{voff}, s[{SRD_WS}:{SRD_WS+3}], 0 offen sc1", tag=tag)

def poll_check(a, voff, vval, tag):
    L = uid("pc")
    a.wait_vm(tag)
    keep = list(a.vm)
    a.label(L)
    a(f"v_cmp_ne_u32 vcc, s{S_NONCE}, v{vval}")
    a("s_nop 4")
    a(f"s_cbranch_vccz {L}_ok")
    a("s_sleep 1")
    a(f"buffer_load_dword v{vval}, v{voff}, s[{SRD_WS}:{SRD_WS+3}], 0 offen sc1")
    a("s_waitcnt vmcnt(0)")
    a(f"s_branch {L}")
    a.label(f"{L}_ok")
    a.vm = keep

def poll_recheck(a, voff, vval):
    L = uid("pr")
    keep = list(a.vm)
    a.label(L)
    a(f"v_cmp_ne_u32 vcc, s{S_NONCE}, v{vval}")
    a("s_nop 4")
    a(f"s_cbranch_vccz {L}_ok")
    a("s_sleep 1")
    a(f"buffer_load_dword v{vval}, v{voff}, s[{SRD_WS}:{SRD_WS+3}], 0 offen sc1")
    a("s_waitcnt vmcnt(0)")
    a(f"s_branch {L}")
    a.label(f"{L}_ok")
    a.vm = keep

def prologue(a):
    a("s_load_dwordx16 s[4:19], s[0:1], 0")
    a("s_load_dwordx8 s[20:27], s[0:1], 64")
    a("v_lshrrev_b32 v2, 6, v0")
    a("v_and_b32 v1, 63, v0")
    a(f"v_readfirstlane_b32 s{S_W}, v2")
    a(f"s_and_b32 s{S_X}, s2, 7")
    a(f"s_lshr_b32 s{S_I}, s2, 3")
    a(f"s_lshr_b32 s{T0}, s{S_X}, 2")
    a(f"s_lshl_b32 s{T0}, s{T0}, 3")
    a(f"s_and_b32 s{T1}, s{S_I}, 7")
    a(f"s_add_u32 s{S_RB}, s{T0}, s{T1}")
    a(f"s_and_b32 s{T0}, s{S_X}, 3")
    a(f"s_lshl_b32 s{T0}, s{T0}, 2")
    a(f"s_lshr_b32 s{T1}, s{S_I}, 3")
    a(f"s_add_u32 s{S_CJ}, s{T0}, s{T1}")
    a("s_waitcnt lgkmcnt(0)")
    srd(a, SRD_WS, P_WS, G.WS_SIZE)
    flag_setup(a)

RX, RG, RT, RO = 160, 168, 176, 186
VS = 128
S_ST, S_RPO, S_RPM = 82, 83, 84

def pre_address(a, lbl, two=False, rows=True):
    t0, t1, t2, t3, t4, t5 = range(RT, RT+6)
    if rows: row_address(a, two)
    repack_address(a, lbl)

def row_address(a, two):
    t0, t1, t2, t3, t4, t5 = range(RT, RT+6)
    srd(a, SRD_D, P_GW, SIZES['GW'])
    a(f"s_lshl_b32 s{T0}, s{S_RB}, 7")
    a(f"s_lshl_b32 s{T1}, s{S_CJ}, 3")
    a(f"s_add_u32 s{T0}, s{T0}, s{T1}")
    a(f"s_add_u32 s{T0}, s{T0}, s{S_W}")
    if two: a(f"s_sub_u32 s{T0}, s{T0}, 4")
    a(f"s_mul_i32 s{T1}, s{T0}, 1280")
    a(f"v_lshlrev_b32 v{RO+1}, 4, v1")
    a(f"v_add_u32 v{RO}, s{T1}, v{RO+1}")
    a(f"v_mov_b32 v{t0}, 0x7ffffff0")
    a(f"v_cmp_gt_u32 s[{T4}:{T4+1}], 16, v1")
    a(f"v_add_u32 v{t1}, 1024, v{RO}")
    a(f"v_cndmask_b32 v{RO+2}, v{t0}, v{t1}, s[{T4}:{T4+1}]")
    a(f"v_add_u32 v{t1}, 1024, v{RO+1}")
    a(f"v_cndmask_b32 v{RO+3}, v{t0}, v{t1}, s[{T4}:{T4+1}]")
    a(f"s_mov_b32 s85, s{T0}")

def repack_address(a, lbl):
    t0, t1, t2, t3, t4, t5 = range(RT, RT+6)
    a(f"s_mul_i32 s{T0}, s{S_I}, 3")
    a(f"s_lshl_b32 s{T1}, s{S_I}, 1")
    a(f"s_add_u32 s{T1}, s{T1}, 10")
    a(f"s_cmp_lt_u32 s{S_I}, 10")
    a(f"s_cselect_b32 s{T0}, s{T0}, s{T1}")
    a(f"s_cselect_b32 s{T1}, 3, 2")
    a(f"s_sub_u32 s{T2}, s{S_W}, 4")
    a(f"s_add_u32 s{S_ST}, s{T0}, s{T2}")
    a(f"s_cmp_lt_u32 s{T2}, s{T1}")
    a(f"s_cselect_b32 s{S_ST}, s{S_ST}, 0x100")
    a(f"s_cselect_b32 s{S_RPO}, 0, 0x7fff0000")
    a(f"s_mul_i32 s{T2}, s{T2}, 5120")
    a(f"s_add_u32 s{T2}, s{T2}, {RPL}")
    a(f"s_cselect_b32 s{S_RPM}, s{T2}, s{T2}") if False else None
    a(f"s_cmp_lt_u32 s{S_ST}, 74")
    a(f"s_cselect_b32 s{S_RPM}, s{T2}, {163840}")
    for n in range(5): a(f"v_mov_b32 v{VS+n}, 0")
    srd(a, SRD_C, P_W2, SIZES['W2'])
    a(f"s_cmp_ge_u32 s{S_ST}, 74")
    a(f"s_cbranch_scc1 {lbl}_go")
    a(f"s_movk_i32 s{T6}, 6554")
    a(f"s_movk_i32 s{T7}, 1280")
    a(f"s_mul_i32 s{T2}, s{S_X}, 160")
    a(f"s_cmp_ge_u32 s{S_ST}, 54")
    a(f"s_cbranch_scc1 {lbl}_wo")
    a(f"s_lshl_b32 s{T3}, s{S_ST}, 5")
    for n in range(5):
        a(f"v_add_u32 v{t0}, {64*n}, v1")
        a(f"v_mul_u32_u24 v{t1}, s{T6}, v{t0}")
        a(f"v_lshrrev_b32 v{t1}, 16, v{t1}")
        a(f"v_mul_u32_u24 v{t2}, 10, v{t1}")
        a(f"v_sub_u32 v{t2}, v{t0}, v{t2}")
        a(f"v_add_u32 v{t1}, s{T3}, v{t1}")
        a(f"v_mul_lo_u32 v{t1}, v{t1}, s{T7}")
        a(f"v_lshl_add_u32 v{t1}, v{t2}, 4, v{t1}")
        a(f"v_add_u32 v{VS+n}, s{T2}, v{t1}")
    a(f"s_branch {lbl}_go")
    a.label(f"{lbl}_wo")
    srd(a, SRD_C, P_WO, SIZES['WO'])
    a(f"s_sub_u32 s{T3}, s{S_ST}, 54")
    a(f"s_lshl_b32 s{T3}, s{T3}, 1")
    for n in range(5):
        a(f"v_add_u32 v{t0}, {64*n}, v1")
        a(f"v_mul_u32_u24 v{t1}, s{T6}, v{t0}")
        a(f"v_lshrrev_b32 v{t1}, 16, v{t1}")
        a(f"v_mul_u32_u24 v{t2}, 10, v{t1}")
        a(f"v_sub_u32 v{t2}, v{t0}, v{t2}")
        a(f"v_lshrrev_b32 v{t3}, 4, v{t1}")
        a(f"v_add_u32 v{t3}, s{T3}, v{t3}")
        a(f"v_and_b32 v{t1}, 15, v{t1}")
        a(f"v_mul_u32_u24 v{t4}, 20, v{t3}")
        a(f"v_add_u32 v{t4}, v{t4}, v{t1}")
        a(f"v_cmp_gt_u32 s[98:99], 32, v{t3}")
        a(f"v_subrev_u32 v{t3}, 32, v{t3}")
        a(f"v_lshlrev_b32 v{t3}, 2, v{t3}")
        a(f"v_bfe_u32 v{t5}, v{t1}, 2, 1")
        a(f"v_lshl_add_u32 v{t3}, v{t5}, 1, v{t3}")
        a(f"v_lshrrev_b32 v{t5}, 3, v{t1}")
        a(f"v_add_u32 v{t3}, v{t3}, v{t5}")
        a(f"v_mul_u32_u24 v{t3}, 20, v{t3}")
        a(f"v_and_b32 v{t1}, 3, v{t1}")
        a(f"v_add3_u32 v{t3}, v{t3}, v{t1}, 16")
        a(f"v_cndmask_b32 v{t1}, v{t3}, v{t4}, s[98:99]")
        a(f"v_mul_lo_u32 v{t1}, v{t1}, s{T7}")
        a(f"v_lshl_add_u32 v{t1}, v{t2}, 4, v{t1}")
        a(f"v_add_u32 v{VS+n}, s{T2}, v{t1}")
    a.label(f"{lbl}_go")

def row_issue2(a):
    a(f"v_add_u32 v{RO}, {4*1280}, v{RO}")
    a(f"v_mov_b32 v{RT}, 0x7ffffff0")
    a(f"v_add_u32 v{RT+1}, 1024, v{RO}")
    a(f"v_cmp_gt_u32 s[100:101], 16, v1")
    a(f"v_cndmask_b32 v{RO+2}, v{RT}, v{RT+1}, s[100:101]")
    a(f"buffer_load_dwordx4 {vr(RX2,4)}, v{RO}, s[{SRD_A}:{SRD_A+3}], 0 offen", tag='pl2')
    a(f"buffer_load_dwordx4 {vr(RX2+4,4)}, v{RO+2}, s[{SRD_A}:{SRD_A+3}], 0 offen", tag='pl2')

RX2 = 192
def pre_issue(a, rows=True):
    if rows:
        a(f"buffer_load_dwordx4 {vr(RX,4)}, v{RO}, s[{SRD_A}:{SRD_A+3}], 0 offen", tag='pl')
        a(f"buffer_load_dwordx4 {vr(RX+4,4)}, v{RO+2}, s[{SRD_A}:{SRD_A+3}], 0 offen", tag='pl')
        a(f"buffer_load_dwordx4 {vr(RG,4)}, v{RO+1}, s[{SRD_D}:{SRD_D+3}], 0 offen", tag='pl')
        a(f"buffer_load_dwordx4 {vr(RG+4,4)}, v{RO+3}, s[{SRD_D}:{SRD_D+3}], 0 offen", tag='pl')
    for n in range(5):
        a(f"s_add_u32 m0, s{S_RPM}, {n*1024}")
        a(f"buffer_load_dwordx4 v{VS+n}, s[{SRD_C}:{SRD_C+3}], s{S_RPO} offen lds", tag='pl')

def pre_thunks(a, RX=RX, tag='pl', VO=RO):
    su, sq, dt, one, t0, t1, t2 = range(RT, RT+7)
    T = []
    I = lambda txt: T.append(lambda: a(txt))
    T.append(lambda: a.wait_vm(tag))
    I(f"v_mov_b32 v{one}, 0x3f803f80")
    I(f"v_mov_b32 v{su}, 0"); I(f"v_mov_b32 v{sq}, 0"); I(f"v_mov_b32 v{dt}, 0")
    for d in range(8):
        I(f"v_dot2c_f32_bf16 v{su}, v{RX+d}, v{one}")
        I(f"v_dot2c_f32_bf16 v{sq}, v{RX+d}, v{RX+d}")
        I(f"v_dot2c_f32_bf16 v{dt}, v{RX+d}, v{RG+d}")
    for r in (8, 4, 2, 1):
        for v in (su, sq, dt):
            I(f"v_add_f32_dpp v{v}, v{v}, v{v} row_ror:{r} row_mask:0xf bank_mask:0xf")
    for op in ("v_permlane16_swap_b32", "v_permlane32_swap_b32"):
        for v, t in ((su, t0), (sq, t1), (dt, t2)): I(f"v_mov_b32 v{t}, v{v}")
        for v, t in ((su, t0), (sq, t1), (dt, t2)): I(f"{op} v{v}, v{t}")
        for v, t in ((su, t0), (sq, t1), (dt, t2)): I(f"v_add_f32 v{v}, v{v}, v{t}")
    I(f"v_mul_f32 v{su}, 0x3acccccd, v{su}")
    I(f"v_mul_f32 v{sq}, 0x3acccccd, v{sq}")
    I(f"v_mul_f32 v{dt}, 0xbfb8aa3b, v{dt}")
    I(f"v_fma_f32 v{sq}, -v{su}, v{su}, v{sq}")
    I(f"v_exp_f32 v{dt}, v{dt}")
    I(f"v_add_f32 v{sq}, 0x3727c5ac, v{sq}")
    I(f"v_add_f32 v{dt}, 1.0, v{dt}")
    I(f"v_rsq_f32 v{t1}, v{sq}")
    I(f"v_rcp_f32 v{dt}, v{dt}")
    I(f"v_mul_f32 v{t0}, v{su}, v{t1}")
    I(f"v_sub_f32 v{t0}, 0, v{t0}")
    I(f"v_mov_b32 v{VO}, 0x7ffffff0")
    I(f"v_cmp_eq_u32 s[100:101], 0, v1")
    I(f"v_cndmask_b32 v{VO}, v{VO}, 0, s[100:101]")
    I(f"s_lshl_b32 s98, s85, 3")
    I(f"s_add_u32 s98, s98, {WS_ST}")
    T.append(lambda: a(f"buffer_store_dwordx2 {vr(t0,2)}, v{VO}, s[{SRD_WS}:{SRD_WS+3}], s98 offen sc1", tag='pst'))
    I(f"s_lshl_b32 s98, s85, 2")
    I(f"s_add_u32 s98, s98, {WS_G}")
    T.append(lambda: a(f"buffer_store_dword v{dt}, v{VO}, s[{SRD_WS}:{SRD_WS+3}], s98 offen sc1", tag='pst'))
    return T

def rowstats_issue(a):
    XB, GW, o0, o1, t0 = 128, 108, 96, 97, 98
    srd(a, SRD_D, P_GW, SIZES['GW'])
    a(f"s_lshl_b32 s{T0}, s{S_RB}, 7")
    a(f"s_lshl_b32 s{T1}, s{S_W}, 4")
    a(f"s_add_u32 s85, s{T0}, s{T1}")
    a(f"v_lshrrev_b32 v{t0}, 4, v1")
    a(f"v_add_u32 v{t0}, s85, v{t0}")
    a(f"s_movk_i32 s{T1}, 1280")
    a(f"v_mul_lo_u32 v{o0}, v{t0}, s{T1}")
    a(f"v_and_b32 v{o1}, 15, v1")
    a(f"v_lshlrev_b32 v{o1}, 4, v{o1}")
    a(f"v_add_u32 v{o0}, v{o0}, v{o1}")
    for i in range(5):
        a(f"buffer_load_dwordx4 {vr(GW+4*i,4)}, v{o1}, s[{SRD_D}:{SRD_D+3}], 0 offen offset:{256*i}", tag='gw')
    for q in range(4):
        a(f"s_movk_i32 s{T2}, {q*4*1280}")
        for i in range(5):
            a(f"buffer_load_dwordx4 {vr(XB+20*q+4*i,4)}, v{o0}, s[{SRD_A}:{SRD_A+3}], s{T2} offen offset:{256*i}", tag=('x', q))

def rowstats_compute(a):
    XB, GW = 128, 108
    su, sq, dt, one, t0, t1, t2 = 98, 99, 100, 101, 102, 103, 104
    NMv, RSv, GV = 106, 107, 105
    a(f"v_mov_b32 v{one}, 0x3f803f80")
    a(f"v_and_b32 v{t2}, 15, v1")
    for q in range(4):
        a.wait_vm(('x', q))
        a(f"v_mov_b32 v{su}, 0"); a(f"v_mov_b32 v{sq}, 0"); a(f"v_mov_b32 v{dt}, 0")
        for d in range(20):
            x = XB + 20*q + d
            a(f"v_dot2c_f32_bf16 v{su}, v{x}, v{one}")
            a(f"v_dot2c_f32_bf16 v{sq}, v{x}, v{x}")
            a(f"v_dot2c_f32_bf16 v{dt}, v{x}, v{GW+d}")
        for k in (8, 4, 2, 1):
            for v in (su, sq, dt):
                a(f"v_add_f32_dpp v{v}, v{v}, v{v} row_ror:{k} row_mask:0xf bank_mask:0xf")
        a(f"v_mul_f32 v{su}, 0x3acccccd, v{su}")
        a(f"v_mul_f32 v{sq}, 0x3acccccd, v{sq}")
        a(f"v_mul_f32 v{dt}, 0xbfb8aa3b, v{dt}")
        a(f"v_fma_f32 v{sq}, -v{su}, v{su}, v{sq}")
        a(f"v_exp_f32 v{dt}, v{dt}")
        a(f"v_add_f32 v{sq}, 0x3727c5ac, v{sq}")
        a(f"v_add_f32 v{dt}, 1.0, v{dt}")
        a(f"v_rsq_f32 v{t1}, v{sq}")
        a(f"v_rcp_f32 v{dt}, v{dt}")
        a(f"v_mul_f32 v{t0}, v{su}, v{t1}")
        a(f"v_sub_f32 v{t0}, 0, v{t0}")
        a(f"v_cmp_eq_u32 s[{T4}:{T4+1}], {q}, v{t2}")
        a(f"v_cndmask_b32 v{NMv}, v{NMv}, v{t0}, s[{T4}:{T4+1}]")
        a(f"v_cndmask_b32 v{RSv}, v{RSv}, v{t1}, s[{T4}:{T4+1}]")
        a(f"v_cndmask_b32 v{GV}, v{GV}, v{dt}, s[{T4}:{T4+1}]")
    a(f"v_lshrrev_b32 v{t0}, 4, v1")
    a(f"v_lshl_add_u32 v{t0}, v{t2}, 2, v{t0}")
    a(f"v_add_u32 v{t0}, s85, v{t0}")
    a(f"v_mov_b32 v{su}, 0x7ffffff0")
    a(f"v_cmp_gt_u32 s[{T4}:{T4+1}], 4, v{t2}")
    a(f"v_lshlrev_b32 v{t1}, 3, v{t0}")
    a(f"v_cndmask_b32 v{t1}, v{su}, v{t1}, s[{T4}:{T4+1}]")
    a(f"v_lshlrev_b32 v{t0}, 2, v{t0}")
    a(f"v_cndmask_b32 v{t0}, v{su}, v{t0}, s[{T4}:{T4+1}]")
    a(f"s_mov_b32 s{T0}, {WS_ST}")
    a(f"buffer_store_dwordx2 {vr(NMv,2)}, v{t1}, s[{SRD_WS}:{SRD_WS+3}], s{T0} offen sc1", tag='pst')
    a(f"s_mov_b32 s{T0}, {WS_G}")
    a(f"buffer_store_dword v{GV}, v{t0}, s[{SRD_WS}:{SRD_WS+3}], s{T0} offen sc1", tag='pst')

RPL = 147456
def repack_finish(a):
    D, VA, VD = 136, 134, 135
    L = uid("rf")
    a(f"v_mov_b32 v{VD}, 0x7ffffff0")
    a(f"s_cmp_ge_u32 s82, 74")
    a(f"s_cbranch_scc1 {L}")
    a(f"s_mul_i32 s{T0}, s{S_X}, {WF_TILE}")
    a(f"s_mul_i32 s{T1}, s82, 5120")
    a(f"s_add_u32 s{T0}, s{T0}, s{T1}")
    a(f"s_add_u32 s{T0}, s{T0}, {WS_WF}")
    a(f"v_lshlrev_b32 v{VD}, 4, v1")
    a(f"v_add_u32 v{VD}, s{T0}, v{VD}")
    a(f"v_lshrrev_b32 v{VA}, 5, v1")
    a(f"v_bfe_u32 v{D}, v1, 4, 1")
    a(f"v_lshlrev_b32 v{VA}, 4, v{VA}")
    a(f"v_lshl_add_u32 v{VA}, v{D}, 2, v{VA}")
    a(f"v_bfe_u32 v{D}, v1, 2, 2")
    a(f"v_add_u32 v{VA}, v{VA}, v{D}")
    a(f"v_mul_u32_u24 v{VA}, 160, v{VA}")
    a(f"v_and_b32 v{D}, 3, v1")
    a(f"v_lshl_add_u32 v{VA}, v{D}, 3, v{VA}")
    a(f"v_add_u32 v{VA}, s{S_RPM}, v{VA}")
    lg = list(a.lg)
    for F in range(5):
        for rd in range(2):
            a(f"ds_read_b64_tr_b16 {vr(D+4*F+2*rd,2)}, v{VA} offset:{rd*1280 + F*32}")
    a("s_waitcnt lgkmcnt(0)")
    a.lg = lg
    a.label(L)
    for F in range(5):
        a(f"s_movk_i32 s{T1}, {F*1024}")
        a(f"buffer_store_dwordx4 {vr(D+4*F,4)}, v{VD}, s[{SRD_WS}:{SRD_WS+3}], s{T1} offen sc1", tag='pst')

def nonce_issue(a, v):
    a(f"v_mov_b32 v{v+1}, 0")
    a(f"global_load_dword v{v}, v{v+1}, s[{P_DBG}:{P_DBG+1}] sc1", tag='nonce')

def nonce_check(a, v):
    L = uid("ng")
    a.wait_vm('nonce')
    keep = list(a.vm)
    a.label(L)
    a(f"v_readfirstlane_b32 s{S_NONCE}, v{v}")
    a(f"s_cmp_lg_u32 s{S_NONCE}, 0")
    a(f"s_cbranch_scc1 {L}_ok")
    a("s_sleep 2")
    a(f"global_load_dword v{v}, v{v+1}, s[{P_DBG}:{P_DBG+1}] sc1")
    a("s_waitcnt vmcnt(0)")
    a(f"s_branch {L}")
    a.label(f"{L}_ok")
    a.vm = keep

def pre_flags(a, v, stats=True):
    if stats:
        a(f"s_lshl_b32 s{T0}, s{S_RB}, 7")
        a(f"s_add_u32 s{T0}, s{T0}, {WS_FLAG + FS}")
        flag_store(a, T0, v)
    a(f"s_lshl_b32 s{T0}, s{S_X}, 7")
    a(f"s_lshl_b32 s{T1}, s{S_I}, 2")
    a(f"s_add_u32 s{T0}, s{T0}, s{T1}")
    a(f"s_add_u32 s{T0}, s{T0}, {WS_FLAG + FW}")
    flag_store(a, T0, v)

CD = 16
def colsum_issue(a):
    srd(a, SRD_B, P_W1, SIZES['W1'])
    srd(a, SRD_C, P_B1, SIZES['B1']) if False else None
    t0, t1, VO = 2, 3, 5
    a(f"v_lshrrev_b32 v{t0}, 4, v0")
    a(f"s_movk_i32 s{T0}, 3456")
    a(f"v_mul_lo_u32 v{t0}, v{t0}, s{T0}")
    a(f"v_and_b32 v{t1}, 15, v0")
    a(f"v_lshl_add_u32 v{t0}, v{t1}, 4, v{t0}")
    a(f"s_lshl_b32 s{T1}, s{S_RB}, 8")
    a(f"v_add_u32 v{VO}, s{T1}, v{t0}")
    a(f"s_cmp_lt_u32 s{S_RB}, 14")
    a(f"s_cselect_b32 s{T3}, 0, 0x7fff0000")
    for p in range(20):
        a(f"s_add_u32 s{T2}, s{T3}, {p*32*3456}")
        a(f"buffer_load_dwordx4 {vr(CD+4*p,4)}, v{VO}, s[{SRD_B}:{SRD_B+3}], s{T2} offen", tag=('cs', p))

def colsum_compute(a, lbl):
    t0, t1, t2 = 2, 3, 4
    ACC, LO, HI = 8, 6, 7
    srd(a, SRD_B, P_B1, SIZES['B1'])
    a(f"s_lshl_b32 s{T1}, s{S_RB}, 8")
    a(f"v_lshlrev_b32 v{t2}, 1, v0")
    a(f"v_add_u32 v{t2}, s{T1}, v{t2}")
    a(f"buffer_load_ushort v{t2}, v{t2}, s[{SRD_B}:{SRD_B+3}], 0 offen", tag='b1')
    a(f"v_mov_b32 v{LO}, 0x00003f80")
    a(f"v_mov_b32 v{HI}, 0x3f800000")
    for e in range(8): a(f"v_mov_b32 v{ACC+e}, 0")
    for p in range(20):
        a.wait_vm(('cs', p))
        for d in range(4):
            a(f"v_dot2c_f32_bf16 v{ACC+2*d}, v{CD+4*p+d}, v{LO}")
            a(f"v_dot2c_f32_bf16 v{ACC+2*d+1}, v{CD+4*p+d}, v{HI}")
    a(f"v_lshrrev_b32 v{t0}, 4, v0")
    a(f"v_lshlrev_b32 v{t0}, 9, v{t0}")
    a(f"v_and_b32 v{t1}, 15, v0")
    a(f"v_lshl_add_u32 v{t0}, v{t1}, 5, v{t0}")
    a(f"ds_write_b128 v{t0}, {vr(ACC,4)}")
    a(f"ds_write_b128 v{t0}, {vr(ACC+4,4)} offset:16")
    a("s_waitcnt lgkmcnt(0)")
    a("s_barrier")
    a(f"v_and_b32 v{t0}, 127, v0")
    a(f"v_lshlrev_b32 v{t0}, 2, v{t0}")
    for g in range(32):
        a(f"ds_read_b32 v{CD+g}, v{t0} offset:{g*512}")
    a("s_waitcnt lgkmcnt(0)")
    for g in range(0, 32, 2): a(f"v_add_f32 v{CD+g}, v{CD+g}, v{CD+g+1}")
    for g in range(2, 32, 2): a(f"v_add_f32 v{CD}, v{CD}, v{CD+g}")
    a.wait_vm('b1')
    a(f"v_lshlrev_b32 v{t2}, 16, v{t2}")
    a(f"s_lshl_b32 s{T1}, s{S_RB}, 9")
    a(f"v_add_u32 v{t0}, s{T1}, v{t0}")
    a(f"v_mov_b32 v{t1}, 0x7ffffff0")
    a(f"v_mov_b32 v{LO}, 128")
    a(f"v_cmp_gt_u32 s[{T4}:{T4+1}], v{LO}, v0")
    a(f"v_cndmask_b32 v{t0}, v{t1}, v{t0}, s[{T4}:{T4+1}]")
    a(f"s_mov_b32 s{T0}, 0x7fff0000")
    a(f"s_cmp_lt_u32 s{S_RB}, 14")
    a(f"s_cselect_b32 s{T2}, {WS_CS}, s{T0}")
    a(f"s_cselect_b32 s{T3}, {WS_B1}, s{T0}")
    a(f"buffer_store_dword v{CD}, v{t0}, s[{SRD_WS}:{SRD_WS+3}], s{T2} offen sc1", tag='pst')
    a(f"buffer_store_dword v{t2}, v{t0}, s[{SRD_WS}:{SRD_WS+3}], s{T3} offen sc1", tag='pst')

S_FRB, S_FCJ = 73, 74
S_WM, S_WG = 75, 76

def final_coords(a):
    a(f"s_lshr_b32 s{T0}, s{S_X}, 1")
    a(f"s_lshl_b32 s{T0}, s{T0}, 3")
    a(f"s_and_b32 s{T1}, s{S_I}, 7")
    a(f"s_add_u32 s{S_FRB}, s{T0}, s{T1}")
    a(f"s_and_b32 s{T0}, s{S_X}, 1")
    a(f"s_lshl_b32 s{T0}, s{T0}, 2")
    a(f"s_lshr_b32 s{T1}, s{S_I}, 3")
    a(f"s_add_u32 s{S_FCJ}, s{T0}, s{T1}")
    a(f"s_mul_i32 s{S_WM}, s{S_W}, 5120")
    a(f"s_mul_i32 s{T0}, s{S_FCJ}, {WF_TILE}")
    a(f"s_add_u32 s{T0}, s{T0}, s{S_WM}")
    a(f"s_add_u32 s{S_WG}, s{T0}, {WS_WF}")

def dma_wf(a, g, vw):
    S_KW = 77
    a(f"s_add_u32 m0, s{S_WM}, {RING[g % 4]}")
    a(f"s_add_u32 s{S_KW}, s{S_WG}, {0 if OPT.get('hotfw') else g*WSLOT}")
    if g == 9:
        a(f"s_cmp_ge_u32 s{S_W}, 2")
        a(f"s_cselect_b32 s{S_KW}, 0x7fff0000, s{S_KW}")
    for n in range(4):
        a(f"buffer_load_dwordx4 v{vw}, s[{SRD_WS}:{SRD_WS+3}], s{S_KW} offen offset:{n*1024} sc1 lds", tag=('W', g))
    a(f"s_add_u32 m0, m0, 4096")
    a(f"s_add_u32 s{S_KW}, s{S_KW}, 4096")
    a(f"buffer_load_dwordx4 v{vw}, s[{SRD_WS}:{SRD_WS+3}], s{S_KW} offen sc1 lds", tag=('W', g))

SL2 = 32768
def attn_coords(a):
    a(f"s_lshl_b32 s{T0}, s{S_X}, 1")
    a(f"s_and_b32 s{T1}, s{S_I}, 1")
    a(f"s_add_u32 s{S_AHP}, s{T0}, s{T1}")
    a(f"s_lshr_b32 s{S_ARB}, s{S_I}, 1")
    a(f"s_lshr_b32 s78, s{S_W}, 2")
    a(f"s_and_b32 s79, s{S_W}, 3")

def fq_poll_offsets(a, vo, vt):
    a(f"v_lshrrev_b32 v{vo}, 4, v1")
    a(f"s_sub_u32 s{T0}, s{S_ARB}, 2")
    a(f"v_add_u32 v{vo}, s{T0}, v{vo}")
    a(f"v_and_b32 v{vt}, 15, v1")
    a(f"v_cmp_le_i32 s[{T4}:{T4+1}], 0, v{vo}")
    a(f"v_cmp_gt_u32 s[{T2}:{T2+1}], 15, v{vt}")
    a(f"s_and_b64 s[{T4}:{T4+1}], s[{T4}:{T4+1}], s[{T2}:{T2+1}]")
    a(f"s_mov_b32 s{T2}, -1")
    a(f"s_mov_b32 s{T2+1}, 0xffff")
    a(f"s_and_b64 s[{T4}:{T4+1}], s[{T4}:{T4+1}], s[{T2}:{T2+1}]")
    a(f"v_lshlrev_b32 v{vo}, 7, v{vo}")
    a(f"v_lshl_add_u32 v{vo}, v{vt}, 2, v{vo}")
    a(f"s_lshl_b32 s{T0}, s{S_ARB}, 7")
    a(f"v_mov_b32 v{vt}, s{T0}")
    a(f"v_cndmask_b32 v{vo}, v{vt}, v{vo}, s[{T4}:{T4+1}]")
    a(f"v_add_u32 v{vo}, {WS_FLAG + FQ}, v{vo}")

def attn_q_loads(a, t0, t1, t2, t3, AQ0=20, AQ1=24):
    a(f"s_lshl_b32 s{T0}, s{S_ARB}, 2")
    a(f"s_add_u32 s{S_QB}, s{T0}, s79")
    a(f"v_and_b32 v{t0}, 31, v1")
    a(f"v_lshrrev_b32 v{t1}, 5, v1")
    a(f"s_lshl_b32 s{T1}, s{S_QB}, 8")
    a(f"v_lshlrev_b32 v{t2}, 3, v{t0}")
    a(f"v_add_u32 v{t2}, s{T1}, v{t2}")
    a(f"v_lshl_add_u32 v{t3}, v{t1}, 15, v{t2}")
    a(f"s_lshl_b32 s{T2}, s{S_AHP}, 1")
    a(f"s_add_u32 s{T2}, s{T2}, s78")
    a(f"s_mul_i32 s{T2}, s{T2}, {5*16384}")
    a(f"s_add_u32 s{T1}, s{T2}, {WS_QKV}")
    a(f"buffer_load_dwordx2 {vr(AQ0,2)}, v{t3}, s[{SRD_WS}:{SRD_WS+3}], s{T1} offen sc1", tag='q')
    a(f"s_add_u32 s{T1}, s{T1}, 16384")
    a(f"buffer_load_dwordx2 {vr(AQ0+2,2)}, v{t3}, s[{SRD_WS}:{SRD_WS+3}], s{T1} offen sc1", tag='q')
    a(f"s_add_u32 s{T1}, s{T1}, {3*16384}")
    a(f"buffer_load_dwordx2 {vr(AQ1,2)}, v{t2}, s[{SRD_WS}:{SRD_WS+3}], s{T1} offen sc1", tag='q')

def fw_poll_offsets(a, vo):
    a(f"v_and_b32 v{vo}, 31, v1")
    a(f"v_lshlrev_b32 v{vo}, 2, v{vo}")
    a(f"s_lshl_b32 s{T1}, s{S_FCJ}, 7")
    a(f"s_add_u32 s{T1}, s{T1}, {WS_FLAG + FW}")
    a(f"v_add_u32 v{vo}, s{T1}, v{vo}")

def wf_first_slots(a, vw):
    a(f"v_lshlrev_b32 v{vw}, 4, v1")
    a(f"s_mul_i32 s{T0}, s{S_W}, 10240")
    a(f"s_mul_i32 s{T1}, s{S_FCJ}, {WF_TILE}")
    a(f"s_add_u32 s{T1}, s{T1}, s{T0}")
    a(f"s_add_u32 s{T1}, s{T1}, {WS_WF}")
    for g in range(2):
        for part in range(3):
            a(f"s_add_u32 m0, s{T0}, {RING[g] + part*4096}")
            a(f"s_add_u32 s{T2}, s{T1}, {g*WSLOT + part*4096}")
            for n in range(4 if part < 2 else 2):
                a(f"buffer_load_dwordx4 v{vw}, s[{SRD_WS}:{SRD_WS+3}], s{T2} offen offset:{n*1024} sc1 lds", tag=('W', g))

QL = 81920
def attn_stage_q(a, vd):
    a(f"v_lshlrev_b32 v{vd}, 4, v1")
    a(f"s_mul_i32 s{T2}, s{S_AHP}, {10*16384}")
    a(f"s_lshl_b32 s{T0}, s{S_ARB}, 10")
    a(f"s_add_u32 s{T2}, s{T2}, s{T0}")
    a(f"s_add_u32 s{T2}, s{T2}, {WS_QKV}")
    for k in range(3):
        a(f"s_add_u32 s{T0}, s{S_W}, {4*k}")
        a(f"s_lshl_b32 s{T1}, s{T0}, 14")
        a(f"s_add_u32 s{T1}, s{T1}, s{T2}")
        a(f"s_lshl_b32 s{T3}, s{T0}, 10")
        a(f"s_add_u32 s{T3}, s{T3}, {QL}")
        if k == 2:
            a(f"s_cmp_lt_u32 s{T0}, 10")
            a(f"s_cselect_b32 s{T1}, s{T1}, 0x7fff0000")
        a(f"s_mov_b32 m0, s{T3}")
        a(f"buffer_load_dwordx4 v{vd}, s[{SRD_WS}:{SRD_WS+3}], s{T1} offen sc1 lds", tag='q')

def touch_wf(a, v0_, v1_):
    a(f"s_and_b32 s{T0}, s{S_I}, 7")
    a(f"s_mul_i32 s{T0}, s{T0}, {370*128}")
    a(f"s_mul_i32 s{T1}, s{S_FCJ}, {WF_TILE}")
    a(f"s_add_u32 s{T0}, s{T0}, s{T1}")
    a(f"s_add_u32 s{T0}, s{T0}, {WS_WF}")
    a(f"v_lshlrev_b32 v{v0_}, 7, v0")
    a(f"v_mov_b32 v{v1_}, 370")
    a(f"v_cmp_gt_u32 s[{T4}:{T4+1}], v{v1_}, v0")
    a(f"v_mov_b32 v{v1_}, 0x7ffffff0")
    a(f"v_cndmask_b32 v{v0_}, v{v1_}, v{v0_}, s[{T4}:{T4+1}]")
    a(f"buffer_load_dword v251, v{v0_}, s[{SRD_WS}:{SRD_WS+3}], s{T0} offen sc1", tag='touch')

def touch_h(a, v0_, v1_):
    a(f"s_lshl_b32 s{T0}, s{S_FRB}, 1")
    a(f"s_mul_i32 s{T0}, s{T0}, {108*1024}")
    a(f"s_lshr_b32 s{T1}, s{S_I}, 3")
    a(f"s_mul_i32 s{T1}, s{T1}, {432*128}")
    a(f"s_add_u32 s{T0}, s{T0}, s{T1}")
    a(f"s_add_u32 s{T0}, s{T0}, {WS_H}")
    a(f"v_lshlrev_b32 v{v0_}, 7, v0")
    a(f"v_mov_b32 v{v1_}, 432")
    a(f"v_cmp_gt_u32 s[{T4}:{T4+1}], v{v1_}, v0")
    a(f"v_mov_b32 v{v1_}, 0x7ffffff0")
    a(f"v_cndmask_b32 v{v0_}, v{v1_}, v{v0_}, s[{T4}:{T4+1}]")
    a(f"buffer_load_dword v251, v{v0_}, s[{SRD_WS}:{SRD_WS+3}], s{T0} offen sc1", tag='touch')

def attn_stage_kv(a, t0, t1, t2, vd):
    a(f"s_sub_u32 s{T0}, s{S_ARB}, 2")
    a(f"s_lshl_b32 s{T0}, s{T0}, 7")
    a(f"s_mul_i32 s{T1}, s{S_W}, 96")
    a(f"s_add_u32 s{T0}, s{T0}, s{T1}")
    a(f"v_lshlrev_b32 v{t0}, 1, v1")
    a(f"v_add_u32 v{t0}, s{T0}, v{t0}")
    a(f"v_lshlrev_b32 v{t1}, 3, v{t0}")
    a(f"v_mov_b32 v{t2}, 0x7ffffff0")
    a(f"v_cmp_le_i32 s[{T4}:{T4+1}], 0, v{t0}")
    a(f"v_cndmask_b32 v{vd}, v{t2}, v{t1}, s[{T4}:{T4+1}]")
    a(f"s_mul_i32 s{T2}, s{S_AHP}, {10*16384}")
    a(f"s_add_u32 s{T2}, s{T2}, {WS_QKV + 160*16384}")
    a(f"s_mul_i32 s{T3}, s{S_W}, 768")
    a("s_mov_b32 exec_hi, 0xffff")
    for ty in range(2):
        for p in range(10):
            a(f"s_add_u32 m0, s{T3}, {(LK if ty == 0 else LV) + p*PST}")
            a(f"s_add_u32 s{T6}, s{T2}, {(ty*160 + p)*16384}")
            a(f"buffer_load_dwordx4 v{vd}, s[{SRD_WS}:{SRD_WS+3}], s{T6} offen sc1 lds", tag=('kv', ty))
    a("s_mov_b32 exec_hi, -1")

def stage1g(a, lbl):
    SRD_E, S_M = 64, 68
    VXD, VWD, VW2 = 2, 6, 10
    VXF, VWF = 14, 22
    t0, t1, t2, t3 = 26, 27, 28, 29
    VP, VPV = 30, 31
    FB = [32, 48]
    ACC = 64
    CSR, B1R, ST, TD = 128, 160, 192, 196
    S_FQ, S_FH, S_ACT, S_HB = 69, 70, 71, 72
    attn_coords(a)
    final_coords(a)
    a(f"s_and_b32 s{S_LW}, s{S_W}, 3")
    a(f"s_cmp_ge_u32 s{S_CJ}, 15")
    a(f"s_cbranch_scc1 {lbl}_idle")
    srd(a, SRD_A, P_AX, SIZES['AX'])
    srd(a, SRD_B, P_WQKV, SIZES['WQKV'])
    srd(a, SRD_E, P_W1, SIZES['W1'])
    a(f"s_lshl_b32 s{T0}, s{S_RB}, 7")
    a(f"s_lshr_b32 s{T1}, s{S_LW}, 1")
    a(f"s_lshl_b32 s{T1}, s{T1}, 6")
    a(f"s_add_u32 s{T0}, s{T0}, s{T1}")
    a(f"s_and_b32 s{T1}, s{S_LW}, 1")
    a(f"s_add_u32 s{T0}, s{T0}, s{T1}")
    a(f"v_lshrrev_b32 v{t0}, 3, v1")
    a(f"v_lshlrev_b32 v{t0}, 1, v{t0}")
    a(f"v_add_u32 v{t0}, s{T0}, v{t0}")
    a(f"s_movk_i32 s{T2}, 1280")
    a(f"v_mul_lo_u32 v{t0}, v{t0}, s{T2}")
    a(f"v_lshrrev_b32 v{t1}, 4, v1")
    a(f"v_and_b32 v{t2}, 7, v1")
    a(f"v_xor_b32 v{t2}, v{t2}, v{t1}")
    a(f"v_xor_b32 v{t3}, 4, v{t2}")
    for i in range(4):
        a(f"v_lshl_add_u32 v{VXD+i}, v{t2 if i % 2 == 0 else t3}, 4, v{t0}")
        if i: a(f"v_add_u32 v{VXD+i}, {i*(16*1280-1024)}, v{VXD+i}")
    a(f"s_lshl_b32 s{T0}, s{S_LW}, 4")
    a(f"v_lshrrev_b32 v{t0}, 4, v1")
    a(f"v_add_u32 v{t1}, s{T0}, v{t0}")
    a(f"v_bfe_u32 v{t2}, v1, 2, 2")
    a(f"v_xor_b32 v{t2}, v{t2}, v{t0}")
    a(f"v_and_b32 v{t3}, 3, v1")
    a(f"v_lshl_add_u32 v{t2}, v{t2}, 2, v{t3}")
    a(f"v_lshlrev_b32 v{t2}, 4, v{t2}")
    a(f"s_lshl_b32 s{T0}, s{S_CJ}, 8")
    a(f"v_add_u32 v{t2}, s{T0}, v{t2}")
    for vd, pitch in ((VWD, 3840), (VW2, 3456)):
        a(f"s_movk_i32 s{T2}, {pitch}")
        a(f"v_mul_lo_u32 v{t3}, v{t1}, s{T2}")
        a(f"v_add_u32 v{vd}, v{t3}, v{t2}")
        for i in range(1, 4): a(f"v_add_u32 v{vd+i}, {i*(4*pitch-1024)}, v{vd}")
    a(f"s_lshl_b32 s{S_M}, s{S_LW}, 12")
    if OPT.get('rot', 1):
        a(f"s_lshr_b32 s{T0}, s{S_I}, 3")
        a(f"s_mul_i32 s{T0}, s{T0}, 10")
        a(f"s_and_b32 s{T1}, s{S_I}, 7")
        a(f"s_mul_i32 s{T1}, s{T1}, 5")
        a(f"s_add_u32 s{T0}, s{T0}, s{T1}")
        a(f"s_lshr_b32 s{T0}, s{T0}, 2")
        a(f"s_sub_u32 s{T1}, s{T0}, 10")
        a(f"s_cmp_ge_u32 s{T0}, 10")
        a(f"s_cselect_b32 s{T0}, s{T1}, s{T0}")
    else:
        a(f"s_mov_b32 s{T0}, 0")
    def addmod(dst, src, k):
        a(f"s_add_u32 s{dst}, s{src}, {k}")
        a(f"s_sub_u32 s{T2}, s{dst}, 10")
        a(f"s_cmp_ge_u32 s{dst}, 10")
        a(f"s_cselect_b32 s{dst}, s{T2}, s{dst}")
    REUSE = OPT.get('xreuse', 1)
    if REUSE:
        addmod(T1, T0, 9)
        addmod(T3, T0, 6)
        a(f"s_cmp_ge_u32 s{S_W}, 4")
        a(f"s_cselect_b32 s{T1}, s{T3}, s{T1}")
        a(f"s_mul_i32 s{S_K1}, s{T1}, {64*3456}")
        a(f"s_lshl_b32 s{S_KX}, s{T0}, 7")
        a(f"s_mul_i32 s{S_KQ}, s{T0}, {64*3840}")
    else:
        addmod(T1, T0, 3)
        a(f"s_cmp_ge_u32 s{S_W}, 4")
        a(f"s_cselect_b32 s{T0}, s{T0}, s{T1}")
        a(f"s_lshl_b32 s{S_KX}, s{T0}, 7")
        a(f"s_mul_i32 s{S_KQ}, s{T0}, {64*3840}")
        a(f"s_mul_i32 s{S_K1}, s{T0}, {64*3456}")
    def adv(sreg, step, wrap):
        if OPT.get('hot'): return
        a(f"s_add_u32 s{sreg}, s{sreg}, {step}")
        a(f"s_cmp_eq_u32 s{sreg}, {wrap}")
        a(f"s_cselect_b32 s{sreg}, 0, s{sreg}")
    first = {'x': True, 'q': True, '1': True}
    slot = lambda tau: (tau + 3) % 4
    def dma_list(tau):
        out = []
        if OPT.get('g_nodma') and tau >= 4: return out
        if OPT.get('nodma1') and tau >= 13: return out
        def mk(kind, i):
            def f():
                if kind == 'x': vd, sr, sk, off, step, wrap = VXD, SRD_A, S_KX, 0, 128, 1280
                elif kind == 'q': vd, sr, sk, off, step, wrap = VWD, SRD_B, S_KQ, 16384, 64*3840, 640*3840
                else: vd, sr, sk, off, step, wrap = VW2, SRD_E, S_K1, 16384, 64*3456, 640*3456
                if i == 0:
                    a(f"s_add_u32 m0, s{S_M}, {slot(tau)*SL2 + off}")
                    if not first[kind] and not (OPT.get('hot1') and tau >= 10) and not (OPT.get('hotx') and kind == 'x' and tau >= 10) and not (OPT.get('hotw') and kind == '1'): adv(sk, step, wrap)
                    first[kind] = False
                a(f"buffer_load_dwordx4 v{vd+i}, s[{sr}:{sr+3}], s{sk} offen offset:{i*1024} lds", tag=('B', tau))
            return f
        if not (REUSE and 10 <= tau <= 13):
            for i in range(4): out.append(mk('x', i))
        for i in range(4): out.append(mk('q' if tau < 10 else '1', i))
        return out
    def dma_block(tau):
        for f in dma_list(tau): f()
    def frag_bases():
        a(f"s_and_b32 s{T0}, s{S_LW}, 1")
        a(f"s_lshl_b32 s{T0}, s{T0}, 13")
        a(f"v_and_b32 v{t0}, 31, v1")
        a(f"v_lshrrev_b32 v{t1}, 5, v1")
        a(f"v_bfe_u32 v{t2}, v1, 1, 3")
        a(f"v_lshlrev_b32 v{t0}, 7, v{t0}")
        a(f"v_add_u32 v{t0}, s{T0}, v{t0}")
        for s_ in range(4):
            a(f"v_or_b32 v{t3}, {2*s_}, v{t1}")
            a(f"v_xor_b32 v{t3}, v{t3}, v{t2}")
            a(f"v_lshl_add_u32 v{VXF+s_}, v{t3}, 4, v{t0}")
            a(f"v_add_u32 v{VXF+4+s_}, {2*SL2}, v{VXF+s_}")
        a(f"v_bfe_u32 v{t0}, v1, 2, 2")
        a(f"v_lshl_add_u32 v{t1}, v{t1}, 3, v{t0}")
        a(f"v_lshlrev_b32 v{t1}, 8, v{t1}")
        a(f"v_bfe_u32 v{t2}, v1, 4, 1")
        a(f"v_lshl_add_u32 v{t1}, v{t2}, 5, v{t1}")
        a(f"v_and_b32 v{t2}, 3, v1")
        a(f"v_lshl_add_u32 v{t1}, v{t2}, 3, v{t1}")
        a(f"s_and_b32 s{T0}, s{S_LW}, 2")
        for ft in range(2):
            a(f"s_or_b32 s{T1}, s{T0}, {ft}")
            a(f"v_xor_b32 v{t2}, s{T1}, v{t0}")
            a(f"v_lshl_add_u32 v{VWF+ft}, v{t2}, 6, v{t1}")
            a(f"v_add_u32 v{VWF+2+ft}, {2*SL2}, v{VWF+ft}")
    def rd_b(st, tau, u, tt):
        sl = slot(tau)
        a(f"ds_read_b128 {vr(FB[st]+4*tt,4)}, v{VXF + u + (4 if sl >= 2 else 0)} offset:{(SL2 if sl & 1 else 0) + tt*4096}", tag=('f', tau, u, 'b', tt))
    def rd_a(st, tau, u, F, rd):
        sl = slot(tau)
        a(f"ds_read_b64_tr_b16 {vr(FB[st]+8+4*F+2*rd,2)}, v{VWF + F + (2 if sl >= 2 else 0)} offset:{(SL2 if sl & 1 else 0) + 16384 + u*4096 + rd*1024}", tag=('f', tau, u, 'a', F))
    def reads(st, tau, u):
        return [lambda: rd_b(st, tau, u, 0), lambda: rd_a(st, tau, u, 0, 0), lambda: rd_a(st, tau, u, 0, 1),
                lambda: rd_b(st, tau, u, 1), lambda: rd_a(st, tau, u, 1, 0), lambda: rd_a(st, tau, u, 1, 1)]
    def compute(t0_, hook_bar, hook_step):
        for b in range(10):
            tau = t0_ + b
            for u in range(4):
                s_ = 4*b + u; st = s_ & 1
                last = (b == 9 and u == 3)
                side = []
                if u == 3:
                    a("s_waitcnt lgkmcnt(0)")
                    hook_bar(tau)
                    a("s_barrier")
                    side = hook_step(tau, 'bar') or []
                rs = [] if (last or OPT.get('x_noreads')) else reads(st ^ 1, *((tau, u + 1) if u < 3 else (tau + 1, 0)))
                plan = {-1: rs[0:2], 0: rs[2:5], 1: rs[5:6]}
                for r in plan[-1]: r()
                for k, (tt, F) in enumerate([(0, 0), (1, 0), (0, 1), (1, 1)]):
                    a.wait_lg([('f', tau, u, 'b', tt), ('f', tau, u, 'a', F)])
                    d = vr(ACC+16*(2*tt+F), 16)
                    if not OPT.get('x_nomfma'):
                        a(f"v_mfma_f32_32x32x16_bf16 {d}, {vr(FB[st]+8+4*F,4)}, {vr(FB[st]+4*tt,4)}, {'0' if s_ == 0 else d}")
                    for r in plan.get(k, []): r()
                    for _ in range(2):
                        if side: side.pop(0)()
                for f in side: f()
                hook_step(tau, u)
    a(f"s_lshl_b32 s{T0}, s{S_RB}, 7")
    a(f"s_lshl_b32 s{T1}, s{S_CJ}, 2")
    a(f"s_add_u32 s{T0}, s{T0}, s{T1}")
    a(f"s_add_u32 s{S_FQ}, s{T0}, {WS_FLAG + FQ}")
    a(f"s_add_u32 s{S_FH}, s{T0}, {WS_FLAG + FH}")
    a(f"s_cmp_lt_u32 s{S_CJ}, 14")
    a(f"s_cselect_b32 s{S_FHO}, s{S_FH}, 0x7fff0000")
    a(f"s_cmp_ge_u32 s{S_W}, 4")
    a(f"s_cbranch_scc1 {lbl}_g1")
    if OPT.get('pfs1', 0):
        a(f"s_lshl_b32 s{T0}, s{S_RB}, 7")
        a(f"s_lshr_b32 s{T1}, s{S_I}, 3")
        a(f"s_lshl_b32 s{T1}, s{T1}, 5")
        a(f"s_add_u32 s{T0}, s{T0}, s{T1}")
        a(f"s_lshl_b32 s{T1}, s{S_LW}, 3")
        a(f"s_add_u32 s{T0}, s{T0}, s{T1}")
        a(f"v_lshrrev_b32 v{t0}, 3, v1")
        a(f"v_add_u32 v{t0}, s{T0}, v{t0}")
        a(f"s_movk_i32 s{T1}, 1280")
        a(f"v_mul_lo_u32 v{t0}, v{t0}, s{T1}")
        a(f"v_and_b32 v{t1}, 7, v1")
        a(f"v_lshl_add_u32 v{t2}, v{t1}, 7, v{t0}")
        a(f"buffer_load_dword v251, v{t2}, s[{SRD_A}:{SRD_A+3}], 0 offen", tag='touch')
        a(f"v_and_b32 v{t1}, 1, v1")
        a(f"v_lshl_add_u32 v{t2}, v{t1}, 7, v{t0}")
        a(f"v_mov_b32 v{t3}, 0x7ffffff0")
        a(f"v_bfe_u32 v{t1}, v1, 1, 2")
        a(f"v_cmp_eq_u32 s[{T4}:{T4+1}], 0, v{t1}")
        a(f"v_cndmask_b32 v{t2}, v{t3}, v{t2}, s[{T4}:{T4+1}]")
        a(f"buffer_load_dword v251, v{t2}, s[{SRD_A}:{SRD_A+3}], 0 offen offset:1024", tag='touch')
        a(f"s_and_b32 s{T0}, s{S_I}, 7")
        a(f"s_mul_i32 s{T0}, s{T0}, 80")
        a(f"s_mul_i32 s{T1}, s{S_LW}, 20")
        a(f"s_add_u32 s{T0}, s{T0}, s{T1}")
        a(f"v_lshrrev_b32 v{t0}, 1, v1")
        a(f"v_add_u32 v{t0}, s{T0}, v{t0}")
        a(f"s_movk_i32 s{T1}, 3840")
        a(f"v_mul_lo_u32 v{t0}, v{t0}, s{T1}")
        a(f"v_and_b32 v{t1}, 1, v1")
        a(f"v_lshl_add_u32 v{t0}, v{t1}, 7, v{t0}")
        a(f"s_lshl_b32 s{T0}, s{S_CJ}, 8")
        a(f"v_add_u32 v{t0}, s{T0}, v{t0}")
        a(f"v_cmp_gt_u32 s[{T4}:{T4+1}], 40, v1")
        a(f"v_cndmask_b32 v{t0}, v{t3}, v{t0}, s[{T4}:{T4+1}]")
        a(f"buffer_load_dword v251, v{t0}, s[{SRD_B}:{SRD_B+3}], 0 offen", tag='touch')
    frag_bases()
    if OPT.get('cprio', 3): a(f"s_setprio {OPT.get('cprio', 3)}")
    mark(a)
    a("s_barrier")
    for r in reads(0, 0, 0): r()
    def g0_step(tau, u):
        if OPT.get('fine3') == 1 and u == 'bar' and tau in (0, 2, 4, 6, 8): mark(a)
        if u == 'bar' and tau == 9: return dma_list(13)
        if u == 1 and tau == 2: nonce_issue(a, 252)
        if u == 1 and tau == 4: nonce_check(a, 252)
        if u == 'bar' and tau == 8:
            pre_flags(a, t3, stats=False)
        return None
    compute(0, lambda tau: None, g0_step)
    mark(a)
    if OPT.get('lprio', 1): a(f"s_setprio {OPT.get('lprio', 1)}")
    a(f"v_lshrrev_b32 v{t0}, 5, v1")
    a(f"s_lshr_b32 s{T0}, s{S_LW}, 1")
    a(f"s_lshl_b32 s{T0}, s{T0}, 4")
    a(f"v_add_u32 v{t0}, s{T0}, v{t0}")
    a(f"v_lshlrev_b32 v{t0}, 14, v{t0}")
    a(f"s_and_b32 s{T0}, s{S_LW}, 1")
    a(f"s_lshl_b32 s{T0}, s{T0}, 9")
    a(f"v_and_b32 v{t1}, 31, v1")
    a(f"v_lshl_add_u32 v{t0}, v{t1}, 4, v{t0}")
    a(f"v_add_u32 v{t0}, s{T0}, v{t0}")
    a(f"s_lshl_b32 s{T0}, s{S_CJ}, 19")
    a(f"s_lshl_b32 s{T1}, s{S_RB}, 10")
    a(f"s_add_u32 s{T0}, s{T0}, s{T1}")
    a(f"s_add_u32 s{T0}, s{T0}, {WS_QKV}")
    a(f"s_cmp_lt_u32 s{S_CJ}, 5")
    a(f"s_cselect_b32 s{T2}, 0x3ea52b5c, 1.0")
    a(f"v_mov_b32 v30, s{T2}")
    for r in range(0, 64, 2):
        a(f"v_pk_mul_f32 {vr(ACC+r,2)}, {vr(ACC+r,2)}, v[30:31] op_sel_hi:[1,0]")
    k = 0
    for ft in range(2):
        for j in range(4):
            a(f"s_add_u32 s{T1}, s{T0}, {(8*ft + 2*j)*16384}")
            d = 32 + 4*(k % 8); k += 1
            for tt in range(2):
                base = ACC + 16*(2*tt+ft) + 4*j
                a(f"v_cvt_pk_bf16_f32 v{d+2*tt}, v{base}, v{base+1}")
                a(f"v_cvt_pk_bf16_f32 v{d+2*tt+1}, v{base+2}, v{base+3}")
            a(f"buffer_store_dwordx4 {vr(d,4)}, v{t0}, s[{SRD_WS}:{SRD_WS+3}], s{T1} offen sc1", tag='qst')
    fq_poll_offsets(a, VP, t3)
    TQP = OPT.get('tqp', 13)
    for tau in range(10, 20):
        if 13 <= tau + 1 <= 19: a.wait_vm(('B', tau + 1))
        if tau == TQP: a.wait_vm('qst')
        if tau == 19: a.wait_vm('tab')
        a("s_barrier")
        if OPT.get('fine3') == 2 and tau in (10, 11, 12, 13, 14, 15, 16, 17, 18, 19): mark(a)
        if tau == TQP: flag_store(a, S_FQ, t3)
        if tau + 4 <= 19: dma_block(tau + 4)
        if tau == 15:
            a(f"s_lshl_b32 s{T0}, s{S_RB}, 7")
            a(f"s_add_u32 s{T0}, s{T0}, {WS_FLAG + FS}")
            a(f"v_mov_b32 v{t0}, s{T0}")
            a(f"s_min_u32 s{T1}, s{S_CJ}, 13")
            a(f"s_lshl_b32 s{T1}, s{T1}, 2")
            a(f"s_add_u32 s{T1}, s{T1}, {WS_FLAG + FC}")
            a(f"v_mov_b32 v{t1}, s{T1}")
            a(f"v_cmp_gt_u32 s[{T4}:{T4+1}], 32, v1")
            a(f"v_cndmask_b32 v234, v{t1}, v{t0}, s[{T4}:{T4+1}]")
            poll_issue(a, 234, 235, 'p1')
        if tau == 17:
            L = uid("nf")
            a(f"s_cmp_ge_u32 s{S_CJ}, 14")
            a(f"s_cbranch_scc1 {L}")
            vm0 = list(a.vm)
            poll_check(a, 234, 235, 'p1')
            a.label(L)
            a.vm = vm0
            a(f"s_lshl_b32 s{T0}, s{S_RB}, 10")
            a(f"s_add_u32 s{T0}, s{T0}, {WS_ST}")
            a(f"s_lshl_b32 s{T1}, s{S_CJ}, 9")
            a(f"s_add_u32 s{T2}, s{T1}, {WS_CS}")
            a(f"s_add_u32 s{T1}, s{T1}, {WS_B1}")
            a(f"s_cmp_eq_u32 s{S_W}, 1")
            a(f"s_cselect_b32 s{T0}, s{T2}, s{T0}")
            a(f"s_cselect_b32 s{T3}, 1024, 0")
            a(f"s_cmp_eq_u32 s{S_W}, 2")
            a(f"s_cselect_b32 s{T0}, s{T1}, s{T0}")
            a(f"s_cselect_b32 s{T3}, 1536, s{T3}")
            a(f"s_cmp_eq_u32 s{S_W}, 3")
            a(f"s_cselect_b32 s{T0}, 0x7fff0000, s{T0}")
            a(f"s_cselect_b32 s{T3}, 2048, s{T3}")
            a(f"v_lshlrev_b32 v{t0}, 4, v1")
            a(f"v_mov_b32 v{t1}, 0x7ffffff0")
            a(f"s_cmp_eq_u32 s{S_W}, 0")
            a(f"s_cselect_b32 s{T1}, 64, 32")
            a(f"v_cmp_gt_u32 s[{T4}:{T4+1}], s{T1}, v1")
            a(f"s_mov_b64 exec, s[{T4}:{T4+1}]")
            a(f"s_mov_b32 m0, s{T3}")
            a(f"buffer_load_dwordx4 v{t0}, s[{SRD_WS}:{SRD_WS+3}], s{T0} offen sc1 lds", tag='tab')
            a("s_mov_b64 exec, -1")
        if tau == 19: pass
        if tau == OPT.get('tpq', 18):
            poll_issue(a, VP, VPV, 'pq')
            fw_poll_offsets(a, VP+202)
            poll_issue(a, VP+202, VPV+202, 'pw')
    if OPT.get('fine4'): mark(a)
    poll_check(a, VP, VPV, 'pq')
    if OPT.get('fine4'): mark(a)
    attn_stage_q(a, 3)
    attn_stage_kv(a, t0, t1, t2, 2)
    poll_check(a, VP+202, VPV+202, 'pw')
    if OPT.get('earlyw', 0): wf_first_slots(a, 3)
    mark(a)
    a.wait_vm(('kv', 0))
    if OPT.get('fine4'): mark(a)
    a(f"s_branch {lbl}_join")
    a.label(f"{lbl}_g1")
    a.reset_counters()
    first.update({'x': True, 'q': True, '1': True})
    if OPT.get('lprio', 1): a(f"s_setprio {OPT.get('lprio', 1)}")
    mark4(a, first=True)
    NI = OPT.get('init', 2)
    for tau in range(NI): dma_block(tau)
    pre_address(a, lbl + "_pa", rows=False)
    frag_bases()
    a.wait_vm(('B', 0))
    mark4(a)
    a("s_barrier")
    for tau in range(NI, 4): dma_block(tau)
    for tau in range(0, 9):
        a.wait_vm(('B', tau + 1))
        if tau == 8: a.wait_vm('pst')
        a("s_barrier")
        dma_block(tau + 4)
        if tau == 0: pre_issue(a, rows=False)
        if tau == 1 and OPT.get('pfw1', 0):
            a(f"s_and_b32 s{T0}, s{S_I}, 7")
            a(f"s_mul_i32 s{T0}, s{T0}, 80")
            a(f"s_mul_i32 s{T1}, s{S_LW}, 20")
            a(f"s_add_u32 s{T0}, s{T0}, s{T1}")
            a(f"v_lshrrev_b32 v{t0}, 1, v1")
            a(f"v_add_u32 v{t0}, s{T0}, v{t0}")
            a(f"s_movk_i32 s{T1}, 3456")
            a(f"v_mul_lo_u32 v{t0}, v{t0}, s{T1}")
            a(f"v_and_b32 v{t1}, 1, v1")
            a(f"v_lshl_add_u32 v{t0}, v{t1}, 7, v{t0}")
            a(f"s_lshl_b32 s{T0}, s{S_CJ}, 8")
            a(f"v_add_u32 v{t0}, s{T0}, v{t0}")
            a(f"v_mov_b32 v{t1}, 0x7ffffff0")
            a(f"v_cmp_gt_u32 s[{T4}:{T4+1}], 40, v1")
            a(f"v_cndmask_b32 v{t0}, v{t1}, v{t0}, s[{T4}:{T4+1}]")
            a(f"buffer_load_dword v251, v{t0}, s[{SRD_E}:{SRD_E+3}], 0 offen", tag='touch')
        if tau == OPT.get('trp', 5):
            a.wait_vm('pl')
            repack_finish(a)
        if tau == 7: nonce_issue(a, 252)
    nonce_check(a, 252)
    a.wait_vm(('B', 10))
    a("s_barrier")
    if OPT.get('lprio', 1): a(f"s_setprio {OPT.get('cprio', 3)}")
    mark4(a)
    for r in reads(0, 10, 0): r()
    def g1_bar(tau):
        if tau in (10, 11): a.wait_vm(('B', tau + 1))
    def g1_step(tau, u):
        return None
    compute(10, g1_bar, g1_step)
    mark4(a)
    C0, C1, VY, ONE = 2, 3, 4, 6
    TU, TE = 32, 40
    a(f"v_mov_b32 v{ONE}, 1.0")
    a(f"v_mov_b32 v{C0}, 0xc0135761")
    a(f"v_mov_b32 v{C1}, 0xbdd2d3e8")
    a(f"v_lshlrev_b32 v{VY}, 4, v1")
    a(f"s_lshl_b32 s{T0}, s{S_CJ}, 3")
    a(f"s_lshr_b32 s{T1}, s{S_LW}, 1")
    a(f"s_lshl_b32 s{T1}, s{T1}, 2")
    a(f"s_add_u32 s{S_ACT}, s{T0}, s{T1}")
    a(f"s_lshl_b32 s{T0}, s{S_RB}, 2")
    a(f"s_and_b32 s{T1}, s{S_LW}, 1")
    a(f"s_lshl_b32 s{T1}, s{T1}, 1")
    a(f"s_add_u32 s{T0}, s{T0}, s{T1}")
    a(f"s_mul_i32 s{T0}, s{T0}, 108")
    a(f"s_add_u32 s{T0}, s{T0}, s{S_ACT}")
    a(f"s_lshl_b32 s{T0}, s{T0}, 10")
    a(f"s_add_u32 s{S_HB}, s{T0}, {WS_H}")
    a(f"s_cmp_lt_u32 s{S_ACT}, 108")
    a(f"s_cselect_b32 s{S_HB}, s{S_HB}, 0x7fff0000")
    a(f"v_and_b32 v{t0}, 31, v1")
    a(f"v_lshlrev_b32 v{t0}, 4, v{t0}")
    a(f"s_and_b32 s{T0}, s{S_LW}, 1")
    a(f"s_lshl_b32 s{T0}, s{T0}, 9")
    a(f"v_add_u32 v{t0}, s{T0}, v{t0}")
    a(f"ds_read_b128 {vr(ST,4)}, v{t0}")
    a(f"v_lshrrev_b32 v{t0}, 5, v1")
    a(f"v_lshlrev_b32 v{t0}, 4, v{t0}")
    a(f"s_lshr_b32 s{T0}, s{S_LW}, 1")
    a(f"s_lshl_b32 s{T0}, s{T0}, 8")
    a(f"v_add_u32 v{t0}, s{T0}, v{t0}")
    for ft in range(2):
        for j in range(4):
            a(f"ds_read_b128 {vr(CSR+16*ft+4*j,4)}, v{t0} offset:{1024 + 128*ft + 32*j}")
            a(f"ds_read_b128 {vr(B1R+16*ft+4*j,4)}, v{t0} offset:{1536 + 128*ft + 32*j}")
    a("s_waitcnt lgkmcnt(0)")
    mark4(a)
    P = lambda b, e: vr(b + 2*e, 2)
    for tt in range(2):
        nmp = vr(ST + 2*tt, 2)
        if tt == 1: a(f"s_add_u32 s{S_HB}, s{S_HB}, {108*1024}")
        for ft in range(2):
            for jj in range(2):
                x = ACC + 16*(2*tt+ft) + 8*jj
                for e in range(4):
                    j, i = 2*jj + (e >> 1), 2*(e & 1)
                    a(f"v_pk_fma_f32 {P(TU,e)}, {nmp}, {vr(CSR+16*ft+4*j+i,2)}, {vr(B1R+16*ft+4*j+i,2)} op_sel_hi:[0,1,1]")
                for e in range(4): a(f"v_pk_fma_f32 {P(x,e)}, {nmp}, {P(x,e)}, {P(TU,e)} op_sel:[1,0,0] op_sel_hi:[1,1,1]")
                for e in range(4): a(f"v_pk_mul_f32 {P(TU,e)}, {P(x,e)}, {P(x,e)}")
                for e in range(4): a(f"v_pk_fma_f32 {P(TU,e)}, {P(TU,e)}, {vr(C0,2)}, {vr(C0,2)} op_sel:[0,1,0] op_sel_hi:[1,1,0]")
                for e in range(4): a(f"v_pk_mul_f32 {P(TU,e)}, {P(TU,e)}, {P(x,e)}")
                for e in range(8): a(f"v_exp_f32 v{TE+e}, v{TU+e}")
                for e in range(4): a(f"v_pk_add_f32 {P(TE,e)}, {P(TE,e)}, {vr(ONE,2)} op_sel_hi:[1,0]")
                for e in range(8): a(f"v_rcp_f32 v{TE+e}, v{TE+e}")
                for e in range(4): a(f"v_pk_mul_f32 {P(TE,e)}, {P(TE,e)}, {P(x,e)}")
                d = TD + 4*(4*tt + 2*ft + jj)
                for e in range(4): a(f"v_cvt_pk_bf16_f32 v{d+e}, v{TE+2*e}, v{TE+2*e+1}")
                if not OPT.get('late_h', 0):
                    a(f"buffer_store_dwordx4 {vr(d,4)}, v{VY}, s[{SRD_WS}:{SRD_WS+3}], s{S_HB} offen offset:{(2*ft+jj)*1024} sc1", tag='hst')
    if OPT.get('late_h', 0):
        a(f"s_sub_u32 s{S_HB}, s{S_HB}, {108*1024}")
        for tt in range(2):
            if tt == 1: a(f"s_add_u32 s{S_HB}, s{S_HB}, {108*1024}")
            for ft in range(2):
                for jj in range(2):
                    d = TD + 4*(4*tt + 2*ft + jj)
                    a(f"buffer_store_dwordx4 {vr(d,4)}, v{VY}, s[{SRD_WS}:{SRD_WS+3}], s{S_HB} offen offset:{(2*ft+jj)*1024} sc1", tag='hst')
    mark4(a)
    a(f"s_branch {lbl}_join")
    a.label(f"{lbl}_idle")
    a.reset_counters()
    srd(a, SRD_A, P_AX, SIZES['AX'])
    rowstats_issue(a)
    colsum_issue(a)
    nonce_issue(a, 252)
    rowstats_compute(a)
    colsum_compute(a, lbl + "_cs")
    nonce_check(a, 252)
    a("s_waitcnt vmcnt(0)")
    a("s_barrier")
    a(f"s_lshl_b32 s{T0}, s{S_RB}, 7")
    a(f"s_add_u32 s{T0}, s{T0}, {WS_FLAG + FS}")
    flag_store(a, T0, t3)
    a(f"s_lshl_b32 s{T0}, s{S_RB}, 2")
    a(f"s_add_u32 s{T0}, s{T0}, {WS_FLAG + FC}")
    flag_store(a, T0, t3)
    pre_address(a, lbl + "_pai", rows=False)
    pre_issue(a, rows=False)
    a.wait_vm('pl')
    repack_finish(a)
    a("s_waitcnt vmcnt(0)")
    a("s_barrier")
    pre_flags(a, t3, stats=False)
    a(f"s_mov_b32 s{S_FHO}, 0x7fff0000")
    fq_poll_offsets(a, VP, t3)
    a(f"s_mov_b64 s[{T4}:{T4+1}], -1")
    wait_flags(a, VP, VPV, T4)
    Li = uid("ik")
    a(f"s_cmp_ge_u32 s{S_W}, 4")
    a(f"s_cbranch_scc1 {Li}")
    attn_stage_q(a, 3)
    attn_stage_kv(a, t0, t1, t2, 2)
    fw_poll_offsets(a, VP+202)
    poll_issue(a, VP+202, VPV+202, 'pw')
    poll_check(a, VP+202, VPV+202, 'pw')
    if OPT.get('earlyw', 0): wf_first_slots(a, 3)
    a.label(Li)
    a("s_waitcnt vmcnt(0)")
    a.label(f"{lbl}_join")
    if OPT.get('lprio', 1) or OPT.get('cprio', 3): a("s_setprio 0")
    a.reset_counters()

SLOT = 49152
def stage1f(a, lbl):
    SRD_E, S_M = 64, 68
    VXD, VQD, V1D = 2, 4, 6
    VXF, VWF = 8, 16
    t0, t1, t2, t3 = 20, 21, 22, 23
    VP, VPV = 24, 25
    FB = [32, 48]
    ACC = 64
    ST, CSR, B1R, TD = 192, 128, 160, 196
    S_FQ, S_FH, S_ACT, S_HB = 69, 70, 71, 72
    attn_coords(a)
    final_coords(a)
    a(f"s_and_b32 s{S_LW}, s{S_W}, 3")
    a(f"s_cmp_ge_u32 s{S_CJ}, 15")
    a(f"s_cbranch_scc1 {lbl}_idle")
    srd(a, SRD_A, P_AX, SIZES['AX'])
    srd(a, SRD_B, P_WQKV, SIZES['WQKV'])
    srd(a, SRD_E, P_W1, SIZES['W1'])
    a(f"s_lshl_b32 s{T0}, s{S_RB}, 7")
    a(f"s_lshr_b32 s{T1}, s{S_W}, 2")
    a(f"s_lshl_b32 s{T1}, s{T1}, 6")
    a(f"s_add_u32 s{T0}, s{T0}, s{T1}")
    a(f"s_and_b32 s{T1}, s{S_W}, 1")
    a(f"s_lshl_b32 s{T1}, s{T1}, 5")
    a(f"s_add_u32 s{T0}, s{T0}, s{T1}")
    a(f"s_bfe_u32 s{T1}, s{S_W}, 0x10001")
    a(f"s_add_u32 s{T0}, s{T0}, s{T1}")
    a(f"v_lshrrev_b32 v{t0}, 3, v1")
    a(f"v_lshlrev_b32 v{t0}, 1, v{t0}")
    a(f"v_add_u32 v{t0}, s{T0}, v{t0}")
    a(f"s_movk_i32 s{T2}, 1280")
    a(f"v_mul_lo_u32 v{t0}, v{t0}, s{T2}")
    a(f"v_lshrrev_b32 v{t1}, 4, v1")
    a(f"v_and_b32 v{t2}, 7, v1")
    a(f"v_xor_b32 v{t2}, v{t2}, v{t1}")
    a(f"v_xor_b32 v{t3}, 4, v{t2}")
    a(f"v_lshl_add_u32 v{VXD}, v{t2}, 4, v{t0}")
    a(f"v_lshl_add_u32 v{VXD+1}, v{t3}, 4, v{t0}")
    a(f"v_add_u32 v{VXD+1}, {16*1280-1024}, v{VXD+1}")
    a(f"s_lshl_b32 s{T0}, s{S_W}, 3")
    a(f"v_lshrrev_b32 v{t0}, 4, v1")
    a(f"v_add_u32 v{t1}, s{T0}, v{t0}")
    a(f"v_bfe_u32 v{t2}, v1, 2, 2")
    a(f"v_xor_b32 v{t2}, v{t2}, v{t0}")
    a(f"v_and_b32 v{t3}, 3, v1")
    a(f"v_lshl_add_u32 v{t2}, v{t2}, 2, v{t3}")
    a(f"v_lshlrev_b32 v{t2}, 4, v{t2}")
    a(f"s_lshl_b32 s{T0}, s{S_CJ}, 8")
    a(f"v_add_u32 v{t2}, s{T0}, v{t2}")
    for vd, pitch in ((VQD, 3840), (V1D, 3456)):
        a(f"s_movk_i32 s{T2}, {pitch}")
        a(f"v_mul_lo_u32 v{t3}, v{t1}, s{T2}")
        a(f"v_add_u32 v{vd}, v{t3}, v{t2}")
        a(f"v_add_u32 v{vd+1}, {4*pitch-1024}, v{vd}")
    a(f"s_lshl_b32 s{S_M}, s{S_W}, 11")
    if OPT.get('rot', 1):
        a(f"s_lshr_b32 s{T0}, s{S_I}, 3")
        a(f"s_mul_i32 s{T0}, s{T0}, 10")
        a(f"s_and_b32 s{T1}, s{S_I}, 7")
        a(f"s_mul_i32 s{T1}, s{T1}, 5")
        a(f"s_add_u32 s{T0}, s{T0}, s{T1}")
        a(f"s_lshr_b32 s{T0}, s{T0}, 2")
        a(f"s_sub_u32 s{T1}, s{T0}, 10")
        a(f"s_cmp_ge_u32 s{T0}, 10")
        a(f"s_cselect_b32 s{T0}, s{T1}, s{T0}")
    else:
        a(f"s_mov_b32 s{T0}, 0")
    a(f"s_lshl_b32 s{S_KX}, s{T0}, 7")
    a(f"s_mul_i32 s{S_KQ}, s{T0}, {64*3840}")
    a(f"s_mul_i32 s{S_K1}, s{T0}, {64*3456}")
    def adv(sreg, step, wrap):
        a(f"s_add_u32 s{sreg}, s{sreg}, {step}")
        a(f"s_cmp_eq_u32 s{sreg}, {wrap}")
        a(f"s_cselect_b32 s{sreg}, 0, s{sreg}")
    parts = ((VXD, SRD_A, S_KX, 0, 128, 1280), (VQD, SRD_B, S_KQ, 16384, 64*3840, 640*3840), (V1D, SRD_E, S_K1, 32768, 64*3456, 640*3456))
    def dma(b, part, i):
        vd, sr, sk, off, step, wrap = parts[part]
        if i == 0:
            a(f"s_add_u32 m0, s{S_M}, {(b % 3)*SLOT + off}")
            if b > 0: adv(sk, step, wrap)
        a(f"buffer_load_dwordx4 v{vd+i}, s[{sr}:{sr+3}], s{sk} offen offset:{i*1024} lds", tag=('B', b))
    def dma_block(b):
        for part in range(3):
            for i in range(2): dma(b, part, i)
    NI = OPT.get('finit', 2)
    for b in range(NI): dma_block(b)
    pre_address(a, lbl + "_pa", rows=False)
    a(f"s_and_b32 s{T0}, s{S_W}, 1")
    a(f"s_lshl_b32 s{T0}, s{T0}, 13")
    a(f"v_and_b32 v{t0}, 31, v1")
    a(f"v_lshrrev_b32 v{t1}, 5, v1")
    a(f"v_bfe_u32 v{t2}, v1, 1, 3")
    a(f"v_lshlrev_b32 v{t0}, 7, v{t0}")
    a(f"v_add_u32 v{t0}, s{T0}, v{t0}")
    for s_ in range(4):
        a(f"v_or_b32 v{t3}, {2*s_}, v{t1}")
        a(f"v_xor_b32 v{t3}, v{t3}, v{t2}")
        a(f"v_lshl_add_u32 v{VXF+s_}, v{t3}, 4, v{t0}")
        a(f"v_add_u32 v{VXF+4+s_}, {2*SLOT}, v{VXF+s_}")
    a(f"v_bfe_u32 v{t0}, v1, 2, 2")
    a(f"v_lshl_add_u32 v{t1}, v{t1}, 3, v{t0}")
    a(f"v_lshlrev_b32 v{t1}, 8, v{t1}")
    a(f"v_bfe_u32 v{t2}, v1, 4, 1")
    a(f"v_lshl_add_u32 v{t1}, v{t2}, 5, v{t1}")
    a(f"v_and_b32 v{t2}, 3, v1")
    a(f"v_lshl_add_u32 v{t1}, v{t2}, 3, v{t1}")
    a(f"s_lshr_b32 s{T0}, s{S_W}, 1")
    a(f"v_xor_b32 v{t2}, s{T0}, v{t0}")
    a(f"v_lshl_add_u32 v{VWF}, v{t2}, 6, v{t1}")
    a(f"v_add_u32 v{VWF+1}, {SLOT}, v{VWF}")
    a(f"v_add_u32 v{VWF+2}, {2*SLOT}, v{VWF}")
    a(f"s_lshl_b32 s{T0}, s{S_RB}, 7")
    a(f"s_add_u32 s{T0}, s{T0}, {WS_FLAG + FS}")
    a(f"v_mov_b32 v{t0}, s{T0}")
    a(f"s_min_u32 s{T1}, s{S_CJ}, 13")
    a(f"s_lshl_b32 s{T1}, s{T1}, 2")
    a(f"s_add_u32 s{T1}, s{T1}, {WS_FLAG + FC}")
    a(f"v_mov_b32 v{t1}, s{T1}")
    a(f"v_cmp_gt_u32 s[{T4}:{T4+1}], 32, v1")
    a(f"v_cndmask_b32 v{VP}, v{t1}, v{t0}, s[{T4}:{T4+1}]")
    a(f"s_lshl_b32 s{T0}, s{S_RB}, 7")
    a(f"s_lshl_b32 s{T1}, s{S_CJ}, 2")
    a(f"s_add_u32 s{T0}, s{T0}, s{T1}")
    a(f"s_add_u32 s{S_FQ}, s{T0}, {WS_FLAG + FQ}")
    a(f"s_add_u32 s{S_FH}, s{T0}, {WS_FLAG + FH}")
    a(f"s_cmp_lt_u32 s{S_CJ}, 14")
    a(f"s_cselect_b32 s{S_FHO}, s{S_FH}, 0x7fff0000")
    def rd_b(st, b, u, tt):
        sl = b % 3
        a(f"ds_read_b128 {vr(FB[st]+4*tt,4)}, v{VXF + u + (4 if sl == 2 else 0)} offset:{(SLOT if sl == 1 else 0) + tt*4096}", tag=('f', b, u, 'b', tt))
    def rd_a(st, b, u, F, rd):
        a(f"ds_read_b64_tr_b16 {vr(FB[st]+8+4*F+2*rd,2)}, v{VWF + b % 3} offset:{16384*(F+1) + u*4096 + rd*1024}", tag=('f', b, u, 'a', F))
    def reads(st, b, u):
        return [lambda: rd_b(st, b, u, 0), lambda: rd_a(st, b, u, 0, 0), lambda: rd_a(st, b, u, 0, 1),
                lambda: rd_b(st, b, u, 1), lambda: rd_a(st, b, u, 1, 0), lambda: rd_a(st, b, u, 1, 1)]
    mark(a)
    a.wait_vm(('B', 0))
    a("s_barrier")
    for r in reads(0, 0, 0): r()
    NB = 10
    pend = [(b, p, i) for b in range(NI, 3) for p in range(3) for i in range(2)]
    for b in range(NB):
        for u in range(4):
            s_ = 4*b + u; st = s_ & 1
            last = (b == NB-1 and u == 3)
            if u == 3 and b + 1 < NB:
                while pend: dma(*pend.pop(0))
                a("s_waitcnt lgkmcnt(0)")
                a.wait_vm(('B', b + 1))
                a("s_barrier")
                if b == 3:
                    a.wait_vm('pl')
                    repack_finish(a)
                if b == 6: pre_flags(a, t3, stats=False)
                if b + 3 < NB: pend = [(b + 3, p, i) for p in range(3) for i in range(2)]
            nb, nu = (b, u + 1) if u < 3 else (b + 1, 0)
            rs = [] if last else reads(st ^ 1, nb, nu)
            plan = {-1: rs[0:2], 0: rs[2:5], 1: rs[5:6]}
            for r in plan[-1]: r()
            for k, (tt, F) in enumerate([(0, 0), (1, 0), (0, 1), (1, 1)]):
                a.wait_lg([('f', b, u, 'b', tt), ('f', b, u, 'a', F)])
                d = vr(ACC+16*(2*tt+F), 16)
                a(f"v_mfma_f32_32x32x16_bf16 {d}, {vr(FB[st]+8+4*F,4)}, {vr(FB[st]+4*tt,4)}, {'0' if s_ == 0 else d}")
                for r in plan.get(k, []): r()
                if pend and k in (1, 3): dma(*pend.pop(0))
            if b == 1 and u == 0: pre_issue(a, rows=False)
            if b == 1 and u == 1: nonce_issue(a, 252)
            if b == 3 and u == 1: nonce_check(a, 252)
            if b == 6 and u == 0: poll_issue(a, VP, VPV, 'p1')
            if b == 8 and u == 0:
                L = uid("nf")
                a(f"s_cmp_ge_u32 s{S_CJ}, 14")
                a(f"s_cbranch_scc1 {L}")
                vm0 = list(a.vm)
                poll_check(a, VP, VPV, 'p1')
                a.label(L)
                a.vm = vm0
                a(f"s_lshl_b32 s{T0}, s{S_RB}, 10")
                a(f"s_and_b32 s{T1}, s{S_W}, 1")
                a(f"s_lshl_b32 s{T1}, s{T1}, 9")
                a(f"s_add_u32 s{T0}, s{T0}, s{T1}")
                a(f"s_add_u32 s{T0}, s{T0}, {WS_ST}")
                a(f"v_and_b32 v{t0}, 31, v1")
                a(f"v_lshlrev_b32 v{t0}, 4, v{t0}")
                a(f"buffer_load_dwordx4 {vr(ST,4)}, v{t0}, s[{SRD_WS}:{SRD_WS+3}], s{T0} offen sc1", tag='tab')
                a(f"v_lshrrev_b32 v{t0}, 5, v1")
                a(f"v_lshlrev_b32 v{t0}, 4, v{t0}")
                a(f"s_lshl_b32 s{T0}, s{S_CJ}, 9")
                a(f"s_lshr_b32 s{T1}, s{S_W}, 1")
                a(f"s_lshl_b32 s{T1}, s{T1}, 7")
                a(f"s_add_u32 s{T0}, s{T0}, s{T1}")
                a(f"s_add_u32 s{T1}, s{T0}, {WS_B1}")
                a(f"s_add_u32 s{T0}, s{T0}, {WS_CS}")
                for j in range(4):
                    a(f"buffer_load_dwordx4 {vr(CSR+4*j,4)}, v{t0}, s[{SRD_WS}:{SRD_WS+3}], s{T0} offen offset:{32*j} sc1", tag='tab')
                    a(f"buffer_load_dwordx4 {vr(B1R+4*j,4)}, v{t0}, s[{SRD_WS}:{SRD_WS+3}], s{T1} offen offset:{32*j} sc1", tag='tab')
    mark(a)
    a(f"v_lshrrev_b32 v{t0}, 5, v1")
    a(f"s_lshr_b32 s{T0}, s{S_W}, 1")
    a(f"s_lshl_b32 s{T0}, s{T0}, 3")
    a(f"v_add_u32 v{t0}, s{T0}, v{t0}")
    a(f"v_lshlrev_b32 v{t0}, 14, v{t0}")
    a(f"s_and_b32 s{T0}, s{S_W}, 1")
    a(f"s_lshl_b32 s{T0}, s{T0}, 9")
    a(f"v_and_b32 v{t1}, 31, v1")
    a(f"v_lshl_add_u32 v{t0}, v{t1}, 4, v{t0}")
    a(f"v_add_u32 v{t0}, s{T0}, v{t0}")
    a(f"s_lshl_b32 s{T0}, s{S_CJ}, 19")
    a(f"s_lshl_b32 s{T1}, s{S_RB}, 10")
    a(f"s_add_u32 s{T0}, s{T0}, s{T1}")
    a(f"s_add_u32 s{T0}, s{T0}, {WS_QKV}")
    a(f"s_cmp_lt_u32 s{S_CJ}, 5")
    a(f"s_cselect_b32 s{T2}, 0x3ea52b5c, 1.0")
    a(f"v_mov_b32 v30, s{T2}")
    for tt in range(2):
        for r in range(0, 16, 2):
            a(f"v_pk_mul_f32 {vr(ACC+32*tt+r,2)}, {vr(ACC+32*tt+r,2)}, v[30:31] op_sel_hi:[1,0]")
    for j in range(4):
        a(f"s_add_u32 s{T1}, s{T0}, {2*j*16384}")
        d = FB[0] + 4*j
        for tt in range(2):
            base = ACC + 32*tt + 4*j
            a(f"v_cvt_pk_bf16_f32 v{d+2*tt}, v{base}, v{base+1}")
            a(f"v_cvt_pk_bf16_f32 v{d+2*tt+1}, v{base+2}, v{base+3}")
        a(f"buffer_store_dwordx4 {vr(d,4)}, v{t0}, s[{SRD_WS}:{SRD_WS+3}], s{T1} offen sc1", tag='qst')
    C0, C1, VY, ONE = 2, 3, 4, 6
    TU, TE = 48, 56
    a(f"v_mov_b32 v{ONE}, 1.0")
    a(f"v_mov_b32 v{C0}, 0xc0135761")
    a(f"v_mov_b32 v{C1}, 0xbdd2d3e8")
    a(f"v_lshlrev_b32 v{VY}, 4, v1")
    a(f"s_lshl_b32 s{T0}, s{S_CJ}, 3")
    a(f"s_lshr_b32 s{T1}, s{S_W}, 1")
    a(f"s_lshl_b32 s{T1}, s{T1}, 1")
    a(f"s_add_u32 s{S_ACT}, s{T0}, s{T1}")
    a(f"s_lshl_b32 s{T0}, s{S_RB}, 2")
    a(f"s_and_b32 s{T1}, s{S_W}, 1")
    a(f"s_lshl_b32 s{T1}, s{T1}, 1")
    a(f"s_add_u32 s{T0}, s{T0}, s{T1}")
    a(f"s_mul_i32 s{T0}, s{T0}, 108")
    a(f"s_add_u32 s{T0}, s{T0}, s{S_ACT}")
    a(f"s_lshl_b32 s{T0}, s{T0}, 10")
    a(f"s_add_u32 s{S_HB}, s{T0}, {WS_H}")
    a(f"s_cmp_lt_u32 s{S_ACT}, 108")
    a(f"s_cselect_b32 s{S_HB}, s{S_HB}, 0x7fff0000")
    a.wait_vm('tab')
    P = lambda b, e: vr(b + 2*e, 2)
    for tt in range(2):
        nmp = vr(ST + 2*tt, 2)
        for jj in range(2):
            x = ACC + 16*(2*tt+1) + 8*jj
            for e in range(4):
                j, i = 2*jj + (e >> 1), 2*(e & 1)
                a(f"v_pk_fma_f32 {P(TU,e)}, {nmp}, {vr(CSR+4*j+i,2)}, {vr(B1R+4*j+i,2)} op_sel_hi:[0,1,1]")
            for e in range(4): a(f"v_pk_fma_f32 {P(x,e)}, {nmp}, {P(x,e)}, {P(TU,e)} op_sel:[1,0,0] op_sel_hi:[1,1,1]")
            for e in range(4): a(f"v_pk_mul_f32 {P(TU,e)}, {P(x,e)}, {P(x,e)}")
            for e in range(4): a(f"v_pk_fma_f32 {P(TU,e)}, {P(TU,e)}, {vr(C0,2)}, {vr(C0,2)} op_sel:[0,1,0] op_sel_hi:[1,1,0]")
            for e in range(4): a(f"v_pk_mul_f32 {P(TU,e)}, {P(TU,e)}, {P(x,e)}")
            for e in range(8): a(f"v_exp_f32 v{TE+e}, v{TU+e}")
            for e in range(4): a(f"v_pk_add_f32 {P(TE,e)}, {P(TE,e)}, {vr(ONE,2)} op_sel_hi:[1,0]")
            for e in range(8): a(f"v_rcp_f32 v{TE+e}, v{TE+e}")
            for e in range(4): a(f"v_pk_mul_f32 {P(TE,e)}, {P(TE,e)}, {P(x,e)}")
            d = TD + 4*(2*tt + jj)
            for e in range(4): a(f"v_cvt_pk_bf16_f32 v{d+e}, v{TE+2*e}, v{TE+2*e+1}")
    fq_poll_offsets(a, VP, t3)
    a.wait_vm('qst')
    a("s_barrier")
    flag_store(a, S_FQ, t3)
    mark(a)
    for tt in range(2):
        if tt == 1: a(f"s_add_u32 s{S_HB}, s{S_HB}, {108*1024}")
        for jj in range(2):
            d = TD + 4*(2*tt + jj)
            a(f"buffer_store_dwordx4 {vr(d,4)}, v{VY}, s[{SRD_WS}:{SRD_WS+3}], s{S_HB} offen offset:{jj*1024} sc1", tag='hst')
    a(f"s_branch {lbl}_stage")
    a.label(f"{lbl}_idle")
    a.reset_counters()
    t3i = t3
    srd(a, SRD_A, P_AX, SIZES['AX'])
    rowstats_issue(a)
    colsum_issue(a)
    nonce_issue(a, 252)
    rowstats_compute(a)
    colsum_compute(a, lbl + "_cs")
    nonce_check(a, 252)
    a("s_waitcnt vmcnt(0)")
    a("s_barrier")
    a(f"s_lshl_b32 s{T0}, s{S_RB}, 7")
    a(f"s_add_u32 s{T0}, s{T0}, {WS_FLAG + FS}")
    flag_store(a, T0, t3)
    a(f"s_lshl_b32 s{T0}, s{S_RB}, 2")
    a(f"s_add_u32 s{T0}, s{T0}, {WS_FLAG + FC}")
    flag_store(a, T0, t3)
    pre_address(a, lbl + "_pai", rows=False)
    pre_issue(a, rows=False)
    a.wait_vm('pl')
    repack_finish(a)
    a("s_waitcnt vmcnt(0)")
    a("s_barrier")
    pre_flags(a, t3, stats=False)
    a(f"s_mov_b32 s{S_FHO}, 0x7fff0000")
    fq_poll_offsets(a, VP, t3)
    a.label(f"{lbl}_stage")
    a.reset_counters()
    a(f"s_mov_b64 s[{T4}:{T4+1}], -1")
    wait_flags(a, VP, VPV, T4)
    mark(a)
    Li = uid("ik")
    a(f"s_cmp_ge_u32 s{S_W}, 4")
    a(f"s_cbranch_scc1 {Li}")
    attn_stage_q(a, 3)
    attn_stage_kv(a, t0, t1, t2, 2)
    a.wait_vm(('kv', 0))
    a.label(Li)
    a.reset_counters()

def stage_attn(a, lbl):
    HP, S_HH, S_QW = S_AHP, 78, 79
    VD, VK, VV, VKX, VW = 2, 3, 4, 5, 10
    t0, t1, t2, t3, t4 = 6, 7, 8, 9, 11
    MK = 12
    Q0, Q1 = 20, 24
    KF = [28, 36]
    VF = [44, 48, 52, 56]
    PF = [60, 64, 68, 72]
    OA = 76
    CS, NM, MX = 96, 97, 98
    S = 104
    VPQ, VPH = 92, 94
    a(f"v_and_b32 v{t0}, 31, v1")
    a(f"v_and_b32 v{VPH}, 15, v1")
    a(f"v_min_u32 v{VPH}, 13, v{VPH}")
    a(f"v_lshlrev_b32 v{VPH}, 2, v{VPH}")
    a(f"s_lshr_b32 s{T1}, s{S_FRB}, 1")
    a(f"s_lshl_b32 s{T1}, s{T1}, 7")
    a(f"s_add_u32 s{T1}, s{T1}, {WS_FLAG + FH}")
    a(f"v_add_u32 v{VPH}, s{T1}, v{VPH}")
    a(f"v_lshrrev_b32 v{t1}, 5, v1")
    for r in range(4): a(f"v_mov_b32 v{KF[0]+r}, 0x3f803f80")
    a(f"v_lshlrev_b32 v{t4}, 4, v0")
    a(f"v_add_u32 v{t4}, {LONES}, v{t4}")
    a(f"v_mov_b32 v{KF[1]}, 208")
    a(f"v_cmp_gt_u32 vcc, v{KF[1]}, v0")
    L = uid("on")
    a(f"s_and_saveexec_b64 s[{T4}:{T4+1}], vcc")
    a(f"s_cbranch_execz {L}")
    a(f"ds_write_b128 v{t4}, {vr(KF[0],4)}")
    a.label(L)
    a(f"s_mov_b64 exec, s[{T4}:{T4+1}]")
    SM = 98
    a(f"v_lshlrev_b32 v{t2}, 2, v{t1}")
    a(f"v_sub_u32 v{t2}, v{t0}, v{t2}")
    VM = 248
    a(f"v_mov_b32 v{VM}, v{t2}")
    a(f"v_mov_b32 v{t3}, 0xffff")
    a(f"v_mov_b32 v{t4}, 0xffff0000")
    for q in range(8):
        r0, r1 = 2*q, 2*q + 1
        a(f"v_cmp_le_i32 s[98:99], {8*(r0 >> 2) + (r0 & 3)}, v{VM}")
        a(f"v_cmp_le_i32 s[100:101], {8*(r1 >> 2) + (r1 & 3)}, v{VM}")
        a(f"v_cndmask_b32 v{MK+q}, 0, v{t3}, s[98:99]")
        a(f"v_cndmask_b32 v{KF[1]}, 0, v{t4}, s[100:101]")
        a(f"v_or_b32 v{MK+q}, v{MK+q}, v{KF[1]}")
    a(f"s_lshl_b32 s{T0}, s{S_QW}, 8")
    a(f"s_mul_i32 s{T3}, s{S_HH}, {5*PST}")
    a(f"s_add_u32 s{T2}, s{T0}, s{T3}")
    a(f"s_add_u32 s{T2}, s{T2}, {LK}")
    a(f"v_lshlrev_b32 v{t2}, 3, v{t0}")
    a(f"v_add_u32 v{t2}, s{T2}, v{t2}")
    a(f"s_movk_i32 s{T1}, {2*PST}")
    a(f"v_mul_lo_u32 v{t3}, v{t1}, s{T1}")
    a(f"v_add_u32 v{VK}, v{t2}, v{t3}")
    a(f"v_add_u32 v{VKX}, {4*PST}, v{t2}")
    a(f"v_bfe_u32 v{t2}, v1, 4, 1")
    a(f"v_and_b32 v{t3}, 3, v1")
    a(f"v_lshl_add_u32 v{t2}, v{t2}, 2, v{t3}")
    a(f"v_bfe_u32 v{t3}, v1, 2, 2")
    a(f"v_lshl_add_u32 v{t3}, v{t1}, 2, v{t3}")
    a(f"v_lshlrev_b32 v{t3}, 3, v{t3}")
    a(f"v_add_u32 v{t3}, s{T0}, v{t3}")
    a(f"s_movk_i32 s{T1}, {PST}")
    a(f"v_mul_lo_u32 v{t4}, v{t2}, s{T1}")
    a(f"v_cmp_gt_u32 s[{T4}:{T4+1}], 5, v{t2}")
    a(f"s_add_u32 s{T3}, s{T3}, {LV}")
    a(f"s_sub_u32 s{T2}, s{T3}, {LONES}")
    a(f"v_lshlrev_b32 v{KF[0]}, 5, v{t2}")
    a(f"v_add_u32 v{KF[0]}, s{T2}, v{KF[0]}")
    a(f"v_and_b32 v{KF[0]}, 255, v{KF[0]}")
    a(f"v_add_u32 v{KF[0]}, {LONES}, v{KF[0]}")
    a(f"v_add_u32 v{KF[0]+1}, s{T3}, v{t4}")
    a(f"v_cndmask_b32 v{KF[0]}, v{KF[0]}, v{KF[0]+1}, s[{T4}:{T4+1}]")
    a(f"v_add_u32 v{VV}, v{KF[0]}, v{t3}")
    a(f"v_mov_b32 v{CS}, 0x3ea52b5c")
    for st in range(2):
        a(f"v_mov_b32 v{KF[st]+6}, 0"); a(f"v_mov_b32 v{KF[st]+7}, 0")
    a(f"v_mov_b32 v{Q1+2}, 0"); a(f"v_mov_b32 v{Q1+3}, 0")
    a(f"v_lshlrev_b32 v{VW}, 4, v1")
    a(f"s_lshl_b32 s{T0}, s{S_ARB}, 2")
    a(f"s_add_u32 s{S_QB}, s{T0}, s{S_QW}")
    a(f"s_mul_i32 s{T0}, s{S_HH}, 5120")
    a(f"s_lshl_b32 s{T1}, s{S_QW}, 8")
    a(f"s_add_u32 s{T0}, s{T0}, s{T1}")
    a(f"s_add_u32 s{T0}, s{T0}, {QL}")
    a(f"v_lshlrev_b32 v{t2}, 3, v{t0}")
    a(f"v_add_u32 v{t2}, s{T0}, v{t2}")
    a(f"v_lshl_add_u32 v{t3}, v{t1}, 11, v{t2}")
    a("s_waitcnt lgkmcnt(0)")
    a("s_barrier")
    a(f"ds_read_b64 {vr(Q0,2)}, v{t3}")
    a(f"ds_read_b64 {vr(Q0+2,2)}, v{t3} offset:1024")
    a(f"ds_read_b64 {vr(Q1,2)}, v{t2} offset:4096")
    a(f"v_cmp_gt_u32 s[{T4}:{T4+1}], 32, v1")
    a("s_waitcnt lgkmcnt(0)")
    for q in (Q1, Q1+1):
        a(f"v_cndmask_b32 v{q}, 0, v{q}, s[{T4}:{T4+1}]")
    mark(a)
    SB = [100, 116, 132]; NM16 = 148
    order = [0, 8, 1, 2, 3, 4, 5, 6, 7]
    a(f"v_mov_b32 v{Q1+2}, 0x3f80")
    a(f"v_cndmask_b32 v{Q1+2}, 0, v{Q1+2}, s[{T4}:{T4+1}]")
    kn = [0]
    def rd_k(tl):
        st = KF[kn[0] % 2]; kn[0] += 1
        a(f"ds_read_b64 {vr(st,2)}, v{VK} offset:{tl*256}", tag=('k', tl))
        a(f"ds_read_b64 {vr(st+2,2)}, v{VK} offset:{PST + tl*256}", tag=('k', tl))
        a(f"ds_read_b64 {vr(st+4,2)}, v{VKX} offset:{tl*256}", tag=('k', tl))
        if tl < 8:
            a(f"s_cmp_lt_u32 s{S_QB}, {8-tl}")
            a(f"s_cselect_b32 s{T0}, 0xf149, 0")
            a(f"v_mov_b32 v{st+6}, s{T0}")
        else:
            a(f"v_mov_b32 v{st+6}, 0")
        return st
    def qk(tl, st, buf, c):
        a.wait_lg(('k', tl))
        d = vr(buf, 16)
        a(f"v_mfma_f32_32x32x16_bf16 {d}, {vr(st,4)}, {vr(Q0,4)}, {c}")
        a(f"v_mfma_f32_32x32x16_bf16 {d}, {vr(st+4,4)}, {vr(Q1,4)}, {d}")
    def merge():
        for r in range(0, 16, 2):
            a(f"v_cmp_le_i32 s[98:99], {8*(r >> 2) + (r & 3)}, v{VM}")
            a(f"v_cmp_le_i32 s[100:101], {8*((r+1) >> 2) + ((r+1) & 3)}, v{VM}")
            a(f"v_cndmask_b32 v{SB[0]+r}, v{SB[0]+r}, v{SB[1]+r}, s[98:99]")
            a(f"v_cndmask_b32 v{SB[0]+r+1}, v{SB[0]+r+1}, v{SB[1]+r+1}, s[100:101]")
    bufs = {0: SB[0], 8: SB[1]}
    for n, tl in enumerate(range(1, 8)): bufs[tl] = SB[(2 - n) % 3]
    def tmax(buf, first):
        for h in range(2):
            m = MX + h
            a(f"v_max3_f32 v{m}, v{buf+8*h}, v{buf+8*h+1}, {'v%d' % (buf+8*h+2) if first else 'v%d' % m}")
            ks = range(3, 8) if first else range(2, 8)
            ks = list(ks)
            while ks:
                if len(ks) >= 2:
                    a(f"v_max3_f32 v{m}, v{m}, v{buf+8*h+ks[0]}, v{buf+8*h+ks[1]}"); ks = ks[2:]
                else:
                    a(f"v_max_f32 v{m}, v{m}, v{buf+8*h+ks[0]}"); ks = ks[1:]
    st = rd_k(0); st2 = rd_k(8)
    qk(0, st, bufs[0], "0")
    st = rd_k(1)
    qk(8, st2, bufs[8], "0")
    st2 = rd_k(2)
    qk(1, st, bufs[1], "0")
    merge()
    tmax(SB[0], True)
    cur = st2
    for tl in range(2, 8):
        nxt = rd_k(tl + 1) if tl + 1 < 8 else None
        qk(tl, cur, bufs[tl], "0")
        tmax(bufs[tl-1], False)
        cur = nxt
    tmax(bufs[7], False)
    a(f"v_max_f32 v{MX}, v{MX}, v{MX+1}")
    a(f"v_mov_b32 v{MX+1}, v{MX}")
    a(f"v_permlane32_swap_b32 v{MX}, v{MX+1}")
    a(f"v_max_f32 v{MX}, v{MX}, v{MX+1}")
    a(f"v_sub_f32 v{NM16}, 0, v{MX}")
    for r in range(1, 16): a(f"v_mov_b32 v{NM16+r}, v{NM16}")
    if OPT.get('fine5'): mark(a)
    st = rd_k(0); st2 = rd_k(8)
    Lv = uid("vb")
    a(f"s_cmp_ge_u32 s{S_W}, 4")
    a(f"s_cbranch_scc1 {Lv}_1")
    a("s_waitcnt vmcnt(0)")
    a.label(f"{Lv}_1")
    if OPT.get('thp', -1) < 0: a("s_waitcnt vmcnt(0)")
    a.vm = []
    a("s_barrier")
    if OPT.get('thp', -1) < 0: flag_store(a, S_FHO, t3)
    dma_wf(a, 0, VW); dma_wf(a, 1, VW)
    mark(a)
    nv = [0]; ps = [0]
    for r in range(16): a(f"v_mov_b32 v{OA+r}, 0")
    def rd_v(tl, kk):
        slot = nv[0] % 4; nv[0] += 1
        for rd in range(2):
            a(f"ds_read_b64_tr_b16 {vr(VF[slot]+2*rd,2)}, v{VV} offset:{tl*256 + kk*128 + rd*64}", tag=('v', tl, kk))
        return slot
    def frag(src):
        p = PF[ps[0] % 4]; ps[0] += 1
        for e in range(8): a(f"v_exp_f32 v{src+e}, v{src+e}")
        for e in range(4): a(f"v_cvt_pk_bf16_f32 v{p+e}, v{src+2*e}, v{src+2*e+1}")
        return p
    def pv(p, slot, tag):
        a.wait_lg(tag)
        a(f"v_mfma_f32_32x32x16_bf16 {vr(OA,16)}, {vr(VF[slot],4)}, {vr(p,4)}, {vr(OA,16)}")
    C = vr(NM16, 16)
    qk(0, st, bufs[0], C)
    st = rd_k(1)
    qk(8, st2, bufs[8], C)
    st2 = rd_k(2)
    qk(1, st, bufs[1], C)
    merge()
    fin = None
    for kk in range(2):
        s0 = rd_v(0, kk); s8 = rd_v(8, kk)
        p = frag(SB[0] + 8*kk)
        p8 = PF[ps[0] % 4]; ps[0] += 1
        for e in range(4): a(f"v_and_b32 v{p8+e}, v{p+e}, v{MK+4*kk+e}")
        for e in range(4): a(f"v_xor_b32 v{p+e}, v{p+e}, v{p8+e}")
        pv(p, s0, ('v', 0, kk))
        pv(p8, s8, ('v', 8, kk))
    def publish_h():
        a("s_waitcnt vmcnt(10)")
        a("s_barrier")
        flag_store(a, S_FHO, t3)
    if OPT.get('thp', -1) == 0: publish_h()
    cur = st2
    for tl in range(1, 8):
        if tl + 1 < 8:
            nxt = rd_k(tl + 2) if tl + 2 < 8 else None
            qk(tl + 1, cur, bufs[tl+1], C)
            cur = nxt
        for kk in range(2):
            slot = rd_v(tl, kk)
            p = frag(bufs[tl] + 8*kk)
            pv(p, slot, ('v', tl, kk))
        if tl == OPT.get('thp', -1): publish_h()
        if tl == OPT.get('tpoll', 3): poll_issue(a, VPH, VPH+1, 'ph')
        if tl == OPT.get('ttok', 5):
            if OPT.get('fine5'): mark(a)
            fin = final_setup(a, VPH)
            if OPT.get('fine5'): mark(a)
    a(f"v_and_b32 v{t0}, 1, v1")
    a(f"v_mul_u32_u24 v{t0}, {40*1024}, v{t0}")
    a(f"v_bfe_u32 v{t1}, v1, 1, 4")
    a(f"v_lshl_add_u32 v{t0}, v{t1}, 4, v{t0}")
    a(f"s_and_b32 s{T0}, s{S_QB}, 1")
    a(f"s_lshl_b32 s{T0}, s{T0}, 8")
    a(f"s_lshr_b32 s{T1}, s{S_QB}, 1")
    a(f"s_mul_i32 s{T1}, s{T1}, {80*1024}")
    a(f"s_add_u32 s{T0}, s{T0}, s{T1}")
    a(f"s_add_u32 s{T0}, s{T0}, {WS_O}")
    a(f"v_lshrrev_b32 v{t1}, 5, v1")
    a(f"v_lshl_add_u32 v{t2}, v{t1}, 9, v{t0}")
    a(f"v_rcp_f32 v{NM}, v{OA+12}")
    for r in range(12): a(f"v_mul_f32 v{OA+r}, v{OA+r}, v{NM}")
    for e in range(4): a(f"v_cvt_pk_bf16_f32 v{PF[0]+e}, v{OA+2*e}, v{OA+2*e+1}")
    a(f"v_cvt_pk_bf16_f32 v{PF[1]}, v{OA+8}, v{OA+9}")
    a(f"v_cvt_pk_bf16_f32 v{PF[1]+1}, v{OA+10}, v{OA+11}")
    a(f"s_lshl_b32 s{T1}, s{HP}, 1")
    a(f"s_add_u32 s{T1}, s{T1}, s{S_HH}")
    a(f"s_lshl_b32 s{T1}, s{T1}, 10")
    a(f"s_add_u32 s{T1}, s{T1}, s{T0}")
    a(f"buffer_store_dwordx4 {vr(PF[0],4)}, v{t2}, s[{SRD_WS}:{SRD_WS+3}], s{T1} offen sc1", tag='ost')
    a(f"s_lshr_b32 s{T1}, s{HP}, 1")
    a(f"s_add_u32 s{T1}, s{T1}, 32")
    a(f"s_lshl_b32 s{T1}, s{T1}, 10")
    a(f"s_and_b32 s{T2}, s{HP}, 1")
    a(f"s_lshl_b32 s{T2}, s{T2}, 9")
    a(f"s_add_u32 s{T1}, s{T1}, s{T2}")
    a(f"s_lshl_b32 s{T2}, s{S_HH}, 3")
    a(f"s_add_u32 s{T1}, s{T1}, s{T2}")
    a(f"s_add_u32 s{T1}, s{T1}, s{T0}")
    a("s_mov_b32 exec_hi, 0")
    a(f"buffer_store_dwordx2 {vr(PF[1],2)}, v{t0}, s[{SRD_WS}:{SRD_WS+3}], s{T1} offen sc1", tag='ost')
    a("s_mov_b32 exec_hi, -1")
    S_FO = 78
    a(f"s_lshl_b32 s{T0}, s{S_ARB}, 7")
    a(f"s_lshl_b32 s{T1}, s{HP}, 2")
    a(f"s_add_u32 s{T0}, s{T0}, s{T1}")
    a(f"s_add_u32 s{S_FO}, s{T0}, {WS_FLAG + FO}")
    mark(a)
    return dict(VPH=VPH, VW=VW, S_FO=S_FO, fin=fin)

TR, NT, HM, NM_ = 164, 20, 27, 37
F_HB, F_OB, F_TG, F_KG = 70, 71, 72, 81
F_VB = 11
def final_setup(a, VPH):
    TD = OPT.get('td', 16)
    t1, t2, t3 = 6, 7, 8
    a(f"s_and_b32 s{F_TG}, s{S_W}, 3")
    a(f"s_lshr_b32 s{F_KG}, s{S_W}, 2")
    poll_check(a, VPH, VPH+1, 'ph')
    if OPT.get('pfh', 0): touch_h(a, t1, t2)
    a(f"v_lshrrev_b32 v{t1}, 5, v1")
    a(f"v_bfe_u32 v{t2}, v1, 4, 1")
    a(f"v_lshlrev_b32 v{t1}, 10, v{t1}")
    a(f"v_lshl_add_u32 v{t1}, v{t2}, 9, v{t1}")
    a(f"v_and_b32 v{t2}, 15, v1")
    a(f"s_and_b32 s{T0}, s{F_TG}, 1")
    a(f"s_lshl_b32 s{T0}, s{T0}, 4")
    a(f"v_add_u32 v{t3}, s{T0}, v{t2}")
    a(f"v_lshl_add_u32 v{F_VB}, v{t3}, 4, v{t1}")
    a(f"s_lshl_b32 s{T0}, s{S_FRB}, 1")
    a(f"s_lshr_b32 s{T1}, s{F_TG}, 1")
    a(f"s_add_u32 s{T0}, s{T0}, s{T1}")
    a(f"s_lshl_b32 s{T2}, s{F_KG}, 11")
    a(f"s_mul_i32 s{T1}, s{T0}, {108*1024}")
    a(f"s_add_u32 s{T1}, s{T1}, s{T2}")
    a(f"s_add_u32 s{F_HB}, s{T1}, {WS_H}")
    a(f"s_mul_i32 s{T1}, s{T0}, {40*1024}")
    a(f"s_add_u32 s{T1}, s{T1}, s{T2}")
    a(f"s_add_u32 s{F_OB}, s{T1}, {WS_O}")
    def ld_t(m):
        sb, k = (F_HB, m) if m < HM else (F_OB, m - HM)
        if k > 0 and not OPT.get('hotft'): a(f"s_add_u32 s{sb}, s{sb}, 4096")
        a(f"buffer_load_dwordx4 {vr(TR+4*(m % NT),4)}, v{F_VB}, s[{SRD_WS}:{SRD_WS+3}], s{sb} offen sc1", tag=('T', m))
    for m in range(TD): ld_t(m)
    return ld_t

def stage_final(a, lbl, st):
    VPH, S_FO = st['VPH'], st['S_FO']
    VW = st['VW']; ld_t = st['fin']
    VG, VO, VF = 3, 4, 6
    VA = 12
    t0, t1, t2, t3 = 16, 17, 18, 19
    AS = [20, 40, 60]
    ACB, ACA, BI = 100, 120, 80
    TD = OPT.get('td', 16)
    NM = NM_
    S_TG, S_KG = F_TG, F_KG
    srd(a, SRD_A, P_B2, SIZES['B2'])
    srd(a, SRD_B, P_OUT, SIZES['OUT'])
    a(f"s_mul_i32 s{T0}, s{S_KG}, 5120")
    a(f"v_lshlrev_b32 v{t1}, 4, v1")
    a(f"v_add_u32 v{t1}, s{T0}, v{t1}")
    for k in range(4): a(f"v_add_u32 v{VA+k}, {RING[k]}, v{t1}")
    def rd_a(m, F):
        g, u = m >> 2, m & 3
        a(f"ds_read_b128 {vr(AS[m % 3]+4*F,4)}, v{VA + g % 4} offset:{u*10240 + F*1024}", tag=('A', m, F))
    a.wait_vm(('W', 0))
    a("s_barrier")
    for m in range(2):
        for F in range(5): rd_a(m, F)
    def late_setup():
        a(f"s_lshl_b32 s{T0}, s{S_FRB}, 6")
        a(f"s_lshr_b32 s{T1}, s{S_TG}, 1")
        a(f"s_add_u32 s{T0}, s{T0}, s{T1}")
        a(f"s_and_b32 s{T1}, s{S_TG}, 1")
        a(f"s_lshl_b32 s{T1}, s{T1}, 5")
        a(f"s_add_u32 s{T0}, s{T0}, s{T1}")
        a(f"v_and_b32 v{t3}, 15, v1")
        a(f"v_lshlrev_b32 v{t3}, 1, v{t3}")
        a(f"v_add_u32 v{t3}, s{T0}, v{t3}")
        a(f"v_lshlrev_b32 v{t1}, 2, v{t3}")
        a(f"v_add_u32 v{t1}, {WS_G}, v{t1}")
        a(f"buffer_load_dword v{VG}, v{t1}, s[{SRD_WS}:{SRD_WS+3}], 0 offen sc1", tag='g')
        a(f"v_lshrrev_b32 v{t0}, 4, v1")
        a(f"s_movk_i32 s{T1}, 1280")
        a(f"v_mul_lo_u32 v{t3}, v{t3}, s{T1}")
        a(f"s_mul_i32 s{T0}, s{S_FCJ}, 160")
        a(f"v_lshl_add_u32 v{t3}, v{t0}, 3, v{t3}")
        a(f"v_add_u32 v{VO}, s{T0}, v{t3}")
        a(f"v_lshlrev_b32 v{t1}, 3, v{t0}")
        a(f"v_add_u32 v{t1}, s{T0}, v{t1}")
        for F in range(5):
            a(f"buffer_load_dwordx2 {vr(BI+2*F,2)}, v{t1}, s[{SRD_A}:{SRD_A+3}], 0 offen offset:{32*F}", tag='g')
    if not OPT.get('latef', 1):
        dma_wf(a, 2, VW); late_setup()
    a(f"s_lshr_b32 s{T0}, s{S_FRB}, 1")
    a(f"s_lshl_b32 s{T0}, s{T0}, 7")
    a(f"s_add_u32 s{T0}, s{T0}, {WS_FLAG + FO}")
    a(f"v_and_b32 v{VF}, 15, v1")
    a(f"v_lshlrev_b32 v{VF}, 2, v{VF}")
    a(f"v_add_u32 v{VF}, s{T0}, v{VF}")
    mark(a)
    NG = 10
    POLL = HM - TD - 4
    for m in range(NM):
        g, u = m >> 2, m & 3
        if m == HM: mark(a)
        if u == 2 and g + 1 < NG:
            if g == 0: a.wait_vm(['ost', ('W', 1)])
            else: a.wait_vm(('W', g + 1))
            a("s_barrier")
            if g == 0:
                flag_store(a, S_FO, t1)
                dma_wf(a, 3, VW)
            elif g + 3 < NG and not OPT.get('f_nodma'): dma_wf(a, g + 3, VW)
        if m == POLL: poll_issue(a, VF, VF+1, 'fo')
        if m + TD == HM: poll_check(a, VF, VF+1, 'fo')
        a.wait_vm(('T', m))
        for F in range(5):
            a.wait_lg(('A', m, F))
            acc = (ACB if m < HM else ACA) + 4*F
            d = vr(acc, 4)
            a(f"v_mfma_f32_16x16x32_bf16 {d}, {vr(AS[m % 3]+4*F,4)}, {vr(TR+4*(m % NT),4)}, {'0' if m in (0, HM) else d}")
            if m + 2 < NM and not OPT.get('f_nolds'):
                rd_a(m + 2, F)
            if F == 2 and m + TD < NM and not OPT.get('f_notok'):
                ld_t(m + TD)
        if m == 0 and OPT.get('latef', 1): dma_wf(a, 2, VW)
        if m == 8 and OPT.get('latef', 1): late_setup()
    mark(a)
    a.wait_vm('g')
    a(f"v_sub_f32 v{t0}, 1.0, v{VG}")
    Lb = uid("bi")
    a(f"s_cmp_lg_u32 s{S_KG}, 0")
    a(f"s_cbranch_scc1 {Lb}")
    for F in range(5):
        for e in range(2):
            a(f"v_lshlrev_b32 v{t2}, 16, v{BI+2*F+e}")
            a(f"v_and_b32 v{t3}, 0xffff0000, v{BI+2*F+e}")
            a(f"v_add_f32 v{ACB+4*F+2*e}, v{ACB+4*F+2*e}, v{t2}")
            a(f"v_add_f32 v{ACB+4*F+2*e+1}, v{ACB+4*F+2*e+1}, v{t3}")
    a.label(Lb)
    for r in range(20): a(f"v_mul_f32 v{ACB+r}, v{ACB+r}, v{t0}")
    for r in range(20): a(f"v_fmac_f32 v{ACB+r}, v{ACA+r}, v{VG}")
    a(f"v_lshlrev_b32 v{t1}, 4, v1")
    a(f"s_mul_i32 s{T0}, s{S_TG}, 5120")
    a(f"s_add_u32 s{T0}, s{T0}, {RING[2]}")
    a(f"v_add_u32 v{t1}, s{T0}, v{t1}")
    L = uid("rd")
    def finish(own, other):
        for F in other:
            a(f"ds_write_b128 v{t1}, {vr(ACB+4*F,4)} offset:{F*1024}")
        a("s_waitcnt lgkmcnt(0)")
        a("s_barrier")
        for F in own:
            a(f"ds_read_b128 {vr(ACA+4*F,4)}, v{t1} offset:{F*1024}", tag=('r', F))
        for F in own:
            a.wait_lg(('r', F))
            for r in range(4): a(f"v_add_f32 v{ACB+4*F+r}, v{ACB+4*F+r}, v{ACA+4*F+r}")
            d = AS[0] + 2*F
            a(f"v_cvt_pk_bf16_f32 v{d}, v{ACB+4*F}, v{ACB+4*F+1}")
            a(f"v_cvt_pk_bf16_f32 v{d+1}, v{ACB+4*F+2}, v{ACB+4*F+3}")
            a(f"buffer_store_dwordx2 {vr(d,2)}, v{VO}, s[{SRD_B}:{SRD_B+3}], 0 offen offset:{32*F}")
    a(f"s_cmp_eq_u32 s{S_KG}, 0")
    a(f"s_cbranch_scc1 {L}")
    finish((3, 4), (0, 1, 2))
    if G.STAMPS: a("s_waitcnt vmcnt(0)")
    a("s_endpgm")
    a.label(L)
    a.reset_counters()
    finish((0, 1, 2), (3, 4))
    a.reset_counters()

def code_prefetch(a):
    L = uid("cp")
    a(f"s_cmp_lg_u32 s{S_W}, 3")
    a(f"s_cbranch_scc1 {L}_skip")
    a(f"s_getpc_b64 s[{T4}:{T4+1}]")
    a.label(L)
    a(f"s_and_b32 s{T0}, s{S_I}, 7")
    a(f"s_lshl_b32 s{T0}, s{T0}, 13")
    a("v_lshlrev_b32 v251, 7, v1")
    a(f"v_add_u32 v251, s{T0}, v251")
    a(f"v_min_u32 v251, L_end-{L}-4, v251")
    vm = list(a.vm)
    a(f"global_load_dword v251, v251, s[{T4}:{T4+1}]")
    a.vm = vm
    a.label(f"{L}_skip")

def build():
    if OPT.get('fine2'):
        G_mark = G.mark
    OPT['mega'] = True
    LDS = 163840
    name = NAME + "_kernel"
    a = Asm()
    if G.STAMPS: a("s_memrealtime s[94:95]")
    a("s_cmp_ge_u32 s2, 256")
    a("s_cbranch_scc1 L_end")
    prologue(a)
    nonce_post(a)
    if OPT.get('cpf', 1): code_prefetch(a)
    stamp(a, 0, 0); CTX['k'] = 0; CTX['slot'] = 0
    if G.STAMPS:
        a("s_lshl_b32 s97, s2, 7")
        a(f"s_add_u32 s97, s97, {G.WS_STAMP + 15*4}")
        a("v_mov_b32 v254, s94")
        a(f"buffer_store_dword v254, off, s[{SRD_WS}:{SRD_WS+3}], s97")
        a.vm.pop()
    if OPT.get('prio'): a(f"s_setprio {OPT['prio']}")
    (stage1f if OPT.get('fused') else stage1g)(a, "s1"); mark(a)
    st = stage_attn(a, "attn")
    stage_final(a, "fin", st)
    if G.STAMPS: a("s_waitcnt vmcnt(0)")
    mark(a)
    a.label("L_end")
    return [(name, a.text())], LDS

def emit(ks, LDS):
    s = "\n".join(G.header_comment()) + "\n"
    s += f"; @launch grid=(256,1,1) block=(512,1,1) lds={LDS}\n"
    s += '.amdgcn_target "amdgcn-amd-amdhsa--gfx950"\n.text\n'
    for name, body in ks:
        s += G.kernel_text(name, body, 256, LDS)
    s += '.section .rodata,"a"\n'
    for name, _ in ks:
        s += ".p2align 6\n" + G.descriptor(name)
    return s

if __name__ == "__main__":
    if "stamps" in sys.argv: G.STAMPS = True
    for arg in sys.argv[1:]:
        if "=" in arg:
            k, v = arg.split("="); OPT[k] = int(v)
    ks, LDS = build()
    sys.stdout.write(emit(ks, LDS))
```

```python
import sys
from asmlib import Asm

NAME = "gated_mix__sliding_block__mixer_channel_mlp__prompt"

WS_Y    = 0x0000000
WS_G    = 0x0280000
WS_QKV  = 0x0300000
WS_H    = 0x0B00000
WS_O    = 0x1200000
WS_WF   = 0x1500000
WS_FLAG = 0x1800000
WS_STAMP = 0x1900000
WS_SIZE = 0x1A00000
WF_TILE = 2368 * 160
FY, FW, FQ, FH, FO = 0, 2048, 3072, 5120, 7168
OPT = dict(mega=False, rot=True, pf_code=True, pf_w1=True, pf_wf=True, tlb=True)

P_AX, P_WQKV, P_WO, P_BX, P_W1, P_B1, P_W2, P_B2 = 4, 6, 8, 10, 12, 14, 16, 18
P_GW, P_OUT, P_DBG, P_WS = 20, 22, 24, 26
SRD_A, SRD_B, SRD_WS, SRD_C = 28, 32, 36, 40
S_W, S_IDX, S_X, S_I = 44, 45, 46, 47
T0, T1, T2, T3, T4, T5, T6, T7 = 48, 49, 50, 51, 52, 53, 54, 55
S_RB, S_CJ = 56, 57
S_KX, S_KW, S_M0 = 58, 59, 60
S_MASK = 64
S_NONCE = 96
S_KO = 62

SIZES = dict(AX=2048*640*2, WQKV=640*1920*2, WO=640*640*2, BX=2048*640*2, W1=640*1728*2, B1=1728*2,
             W2=1728*640*2, B2=640*2, GW=640*2, OUT=2048*640*2)

def srd(a, dst, ptr, size):
    a(f"s_mov_b32 s{dst}, s{ptr}")
    a(f"s_and_b32 s{dst+1}, s{ptr+1}, 0xffff")
    a(f"s_mov_b32 s{dst+2}, {size}")
    a(f"s_mov_b32 s{dst+3}, 0x20000")

def vr(b, n=1):
    return f"v{b}" if n == 1 else f"v[{b}:{b+n-1}]"

def prologue(a):
    a("s_load_dwordx16 s[4:19], s[0:1], 0")
    a("s_load_dwordx8 s[20:27], s[0:1], 64")
    a("v_lshrrev_b32 v2, 6, v0")
    a("v_and_b32 v1, 63, v0")
    a(f"v_readfirstlane_b32 s{S_W}, v2")
    a(f"s_and_b32 s{S_IDX}, s2, 255")
    if OPT.get('xperm'):
        a(f"s_add_u32 s{S_X}, s2, {OPT['xperm']}")
        a(f"s_and_b32 s{S_X}, s{S_X}, 7")
    else:
        a(f"s_and_b32 s{S_X}, s2, 7")
    a(f"s_lshr_b32 s{S_I}, s{S_IDX}, 3")
    a("s_waitcnt lgkmcnt(0)")
    srd(a, SRD_WS, P_WS, WS_SIZE)


_uid = [0]
def uid(p):
    _uid[0] += 1
    return f"{p}_{_uid[0]}"

def nonce_post(a):
    L = uid("np")
    a(f"s_or_b32 s{T0}, s2, s{S_W}")
    a(f"s_cmp_lg_u32 s{T0}, 0")
    a(f"s_cbranch_scc1 {L}")
    a(f"s_memrealtime s[{T4}:{T4+1}]")
    a("s_waitcnt lgkmcnt(0)")
    a(f"s_or_b32 s{T4}, s{T4}, 1")
    a(f"v_mov_b32 v248, s{T4}")
    a("v_mov_b32 v249, 0")
    a("s_mov_b64 exec, 1")
    a(f"global_store_dword v249, v248, s[{P_DBG}:{P_DBG+1}] sc1")
    a("s_mov_b64 exec, -1")
    a.vm.pop()
    a.label(L)

def nonce_load(a, v):
    a(f"v_mov_b32 v{v+1}, 0")
    a(f"global_load_dword v{v}, v{v+1}, s[{P_DBG}:{P_DBG+1}] sc1", tag='nonce')

def nonce_get(a, v):
    L = uid("ng")
    a.wait_vm('nonce')
    a.label(L)
    a(f"v_readfirstlane_b32 s{S_NONCE}, v{v}")
    a(f"s_cmp_lg_u32 s{S_NONCE}, 0")
    a(f"s_cbranch_scc1 {L}_ok")
    a("s_sleep 2")
    a(f"global_load_dword v{v}, v{v+1}, s[{P_DBG}:{P_DBG+1}] sc1")
    a("s_waitcnt vmcnt(0)")
    a(f"s_branch {L}")
    a.label(f"{L}_ok")

def publish(a, sflag, v):
    L = uid("pub")
    a("s_waitcnt vmcnt(0)")
    a("s_barrier")
    a(f"s_cmp_lg_u32 s{S_W}, 0")
    a(f"s_cbranch_scc1 {L}")
    a(f"v_mov_b32 v{v}, s{S_NONCE}")
    a("s_mov_b64 exec, 1")
    a(f"buffer_store_dword v{v}, off, s[{SRD_WS}:{SRD_WS+3}], s{sflag} sc1")
    a("s_mov_b64 exec, -1")
    a.label(L)
    a.reset_counters()

def wait_flags(a, voff, vtmp, smask):
    L = uid("wf")
    keep = list(a.vm)
    a(f"s_cmp_lg_u32 s{S_W}, 0")
    a(f"s_cbranch_scc1 {L}_done")
    a(f"s_mov_b64 exec, s[{smask}:{smask+1}]")
    a.label(L)
    a(f"buffer_load_dword v{vtmp}, v{voff}, s[{SRD_WS}:{SRD_WS+3}], 0 offen sc1")
    a("s_waitcnt vmcnt(0)")
    a(f"v_cmp_ne_u32 vcc, s{S_NONCE}, v{vtmp}")
    a("s_nop 4")
    a(f"s_cbranch_vccz {L}_ok")
    a("s_sleep 1")
    a(f"s_branch {L}")
    a.label(f"{L}_ok")
    a("s_mov_b64 exec, -1")
    a.label(f"{L}_done")
    a("s_barrier")
    a.vm = keep

def touch_lines(a, srd_, vbase, n, stride, dst, soff='0', sc=''):
    for k in range(n):
        a(f"buffer_load_dword v{dst}, v{vbase}, s[{srd_}:{srd_+3}], {soff} offen {sc}".rstrip(), tag='touch')
        if k + 1 < n: a(f"v_add_u32 v{vbase}, {stride}, v{vbase}")

def prefetch_code(a, lbl_end, per):
    L = uid("pc")
    a(f"s_getpc_b64 s[{T4}:{T4+1}]")
    a.label(L)
    a(f"s_mul_i32 s{T0}, s{S_W}, {per*8192}")
    a("v_lshlrev_b32 v252, 7, v1")
    a(f"v_add_u32 v252, s{T0}, v252")
    for k in range(per):
        a(f"v_min_u32 v251, {lbl_end}-{L}-4, v252")
        a(f"global_load_dword v253, v251, s[{T4}:{T4+1}]", tag='touch')
        if k + 1 < per: a("v_add_u32 v252, 8192, v252")

def stage_qkv(a, lbl):
    XS = [0, 16384, 32768]
    WB = 49152
    a(f"s_lshr_b32 s{T0}, s{S_X}, 1")
    a(f"s_lshl_b32 s{T0}, s{T0}, 2")
    a(f"s_and_b32 s{T1}, s{S_I}, 3")
    a(f"s_add_u32 s{S_RB}, s{T0}, s{T1}")
    a(f"s_and_b32 s{T0}, s{S_X}, 1")
    a(f"s_lshl_b32 s{T0}, s{T0}, 3")
    a(f"s_lshr_b32 s{T1}, s{S_I}, 2")
    a(f"s_add_u32 s{S_CJ}, s{T0}, s{T1}")
    a(f"s_cmp_ge_u32 s{S_CJ}, 15")
    a(f"s_cbranch_scc1 {lbl}_skip")
    srd(a, SRD_A, P_AX, SIZES['AX'])
    srd(a, SRD_B, P_WQKV, SIZES['WQKV'])
    VXD, VWD = 2, 6
    VXF, VWF = 8, 12
    VT = 14
    FB = [20, 36]
    ACC = 64
    t0, t1, t2, t3 = VT, VT+1, VT+2, VT+3
    a(f"s_lshl_b32 s{T0}, s{S_RB}, 7")
    a(f"s_lshr_b32 s{T1}, s{S_W}, 1")
    a(f"s_lshl_b32 s{T1}, s{T1}, 6")
    a(f"s_add_u32 s{T0}, s{T0}, s{T1}")
    a(f"s_and_b32 s{T1}, s{S_W}, 1")
    a(f"s_add_u32 s{T0}, s{T0}, s{T1}")
    a(f"v_lshrrev_b32 v{t0}, 3, v1")
    a(f"v_lshlrev_b32 v{t0}, 1, v{t0}")
    a(f"v_add_u32 v{t0}, s{T0}, v{t0}")
    a(f"s_movk_i32 s{T2}, 1280")
    a(f"v_mul_lo_u32 v{t0}, v{t0}, s{T2}")
    a(f"v_lshrrev_b32 v{t1}, 4, v1")
    a(f"v_and_b32 v{t2}, 7, v1")
    a(f"v_xor_b32 v{t2}, v{t2}, v{t1}")
    a(f"v_xor_b32 v{t3}, 4, v{t2}")
    for i in range(4):
        src = t2 if i % 2 == 0 else t3
        a(f"v_lshl_add_u32 v{VXD+i}, v{src}, 4, v{t0}")
        if i:
            a(f"v_add_u32 v{VXD+i}, {i*(16*1280-1024)}, v{VXD+i}")
    a(f"s_lshl_b32 s{T0}, s{S_W}, 3")
    a(f"v_lshrrev_b32 v{t0}, 4, v1")
    a(f"v_add_u32 v{t1}, s{T0}, v{t0}")
    a(f"s_movk_i32 s{T2}, 3840")
    a(f"v_mul_lo_u32 v{t1}, v{t1}, s{T2}")
    a(f"v_bfe_u32 v{t2}, v1, 2, 2")
    a(f"v_xor_b32 v{t2}, v{t2}, v{t0}")
    a(f"v_and_b32 v{t3}, 3, v1")
    a(f"v_lshl_add_u32 v{t2}, v{t2}, 2, v{t3}")
    a(f"v_lshl_add_u32 v{t1}, v{t2}, 4, v{t1}")
    a(f"s_lshl_b32 s{T0}, s{S_CJ}, 8")
    a(f"v_add_u32 v{VWD}, s{T0}, v{t1}")
    a(f"v_add_u32 v{VWD+1}, {4*3840-1024}, v{VWD}")
    a(f"s_lshl_b32 s{T6}, s{S_W}, 12")
    a(f"s_lshl_b32 s{T7}, s{S_W}, 11")
    if OPT['rot']:
        a(f"s_and_b32 s{T0}, s{S_I}, 3")
        a(f"s_mul_i32 s{T0}, s{T0}, 10")
        a(f"s_lshr_b32 s{T1}, s{S_I}, 2")
        a(f"s_mul_i32 s{T1}, s{T1}, 5")
        a(f"s_add_u32 s{T0}, s{T0}, s{T1}")
        a(f"s_lshr_b32 s{T0}, s{T0}, 2")
        a(f"s_sub_u32 s{T1}, s{T0}, 10")
        a(f"s_cmp_ge_u32 s{T0}, 10")
        a(f"s_cselect_b32 s{T0}, s{T1}, s{T0}")
        a(f"s_lshl_b32 s{S_KX}, s{T0}, 7")
        a(f"s_mul_i32 s{S_KW}, s{T0}, {64*3840}")
    else:
        a(f"s_mov_b32 s{S_KX}, 0")
        a(f"s_mov_b32 s{S_KW}, 0")
    def adv(sreg, step, wrap):
        if OPT.get('hot'): return
        a(f"s_add_u32 s{sreg}, s{sreg}, {step}")
        a(f"s_cmp_eq_u32 s{sreg}, {wrap}")
        a(f"s_cselect_b32 s{sreg}, 0, s{sreg}")
    NWS = OPT.get('nws', 4)
    def dma_x(b, part=None):
        a(f"s_add_u32 m0, s{T6}, {XS[b % 3]}")
        if b > 0 and part in (None, 0): adv(S_KX, 128, 1280)
        for i in (range(4) if part is None else range(2*part, 2*part+2)):
            a(f"buffer_load_dwordx4 v{VXD+i}, s[{SRD_A}:{SRD_A+3}], s{S_KX} offen offset:{i*1024} lds", tag=('X', b))
    def dma_w(h):
        a(f"s_add_u32 m0, s{T7}, {WB + (h % NWS)*8192}")
        if h > 0: adv(S_KW, 32*3840, 640*3840)
        for i in range(2):
            a(f"buffer_load_dwordx4 v{VWD+i}, s[{SRD_B}:{SRD_B+3}], s{S_KW} offen offset:{i*1024} lds", tag=('W', h))
    dma_x(0); dma_w(0); dma_w(1); dma_x(1)
    for h in range(2, NWS - 1): dma_w(h)
    if OPT['mega']: start_prefetch(a, 'A')
    a(f"s_and_b32 s{T0}, s{S_W}, 1")
    a(f"s_lshl_b32 s{T0}, s{T0}, 13")
    a(f"v_and_b32 v{t0}, 31, v1")
    a(f"v_lshrrev_b32 v{t1}, 5, v1")
    a(f"v_bfe_u32 v{t2}, v1, 1, 3")
    a(f"v_lshlrev_b32 v{t0}, 7, v{t0}")
    a(f"v_add_u32 v{t0}, s{T0}, v{t0}")
    for s in range(4):
        a(f"v_or_b32 v{t3}, {2*s}, v{t1}")
        a(f"v_xor_b32 v{t3}, v{t3}, v{t2}")
        a(f"v_lshl_add_u32 v{VXF+s}, v{t3}, 4, v{t0}")
    a(f"v_bfe_u32 v{t0}, v1, 2, 2")
    a(f"v_lshl_add_u32 v{t1}, v{t1}, 3, v{t0}")
    a(f"v_lshlrev_b32 v{t1}, 8, v{t1}")
    a(f"v_bfe_u32 v{t2}, v1, 4, 1")
    a(f"v_lshl_add_u32 v{t1}, v{t2}, 5, v{t1}")
    a(f"v_and_b32 v{t2}, 3, v1")
    a(f"v_lshl_add_u32 v{t1}, v{t2}, 3, v{t1}")
    a(f"v_add_u32 v{t1}, {WB}, v{t1}")
    a(f"s_and_b32 s{T0}, s{S_W}, 2")
    for ft in range(2):
        a(f"s_or_b32 s{T1}, s{T0}, {ft}")
        a(f"v_xor_b32 v{t2}, s{T1}, v{t0}")
        a(f"v_lshl_add_u32 v{VWF+ft}, v{t2}, 6, v{t1}")
    def rd_b(st, hh, sp, tt):
        xb = hh >> 1; sx = 2*(hh & 1) + sp
        a(f"ds_read_b128 {vr(FB[st]+4*tt,4)}, v{VXF+sx} offset:{XS[xb % 3] + tt*4096}", tag=('f', hh, sp))
    def rd_a(st, hh, sp, ft, rd):
        a(f"ds_read_b64_tr_b16 {vr(FB[st]+8+4*ft+2*rd,2)}, v{VWF+ft} offset:{(hh % NWS)*8192 + sp*4096 + rd*1024}", tag=('f', hh, sp))
    def mf(st, tt, ft, first):
        d = vr(ACC+16*(2*tt+ft), 16)
        c = "0" if first else d
        a(f"v_mfma_f32_32x32x16_bf16 {d}, {vr(FB[st]+8+4*ft,4)}, {vr(FB[st]+4*tt,4)}, {c}")
    NH = 20
    def w_pre(h):
        a(f"s_add_u32 m0, s{T7}, {WB + (h % NWS)*8192}")
        adv(S_KW, 32*3840, 640*3840)
    def w_one(h, i):
        a(f"buffer_load_dwordx4 v{VWD+i}, s[{SRD_B}:{SRD_B+3}], s{S_KW} offen offset:{i*1024} lds", tag=('W', h))
    def x_pre(b, part):
        a(f"s_add_u32 m0, s{T6}, {XS[b % 3]}")
        if part == 0: adv(S_KX, 128, 1280)
    def x_one(b, i):
        a(f"buffer_load_dwordx4 v{VXD+i}, s[{SRD_A}:{SRD_A+3}], s{S_KX} offen offset:{i*1024} lds", tag=('X', b))
    spread = OPT.get('spread', 1)
    for hh in range(NH):
        if hh == 1: mark(a)
        a.wait_vm([('W', hh), ('X', hh >> 1)])
        a("s_waitcnt lgkmcnt(0)")
        if not OPT.get('nobar'): a("s_barrier")
        prev = hh > 0
        dw = hh + NWS - 1 < NH and not OPT.get('nodma')
        dx = hh // 2 + 2 < 10 and not OPT.get('nodma')
        hw, bx, px = hh + NWS - 1, hh // 2 + 2, hh % 2
        rd_b(0, hh, 0, 0); rd_a(0, hh, 0, 0, 0)
        if prev: mf(1, 0, 0, False)
        rd_a(0, hh, 0, 0, 1); rd_b(0, hh, 0, 1); rd_a(0, hh, 0, 1, 0)
        if spread and dw: w_pre(hw); w_one(hw, 0)
        if prev: mf(1, 1, 0, False)
        rd_a(0, hh, 0, 1, 1)
        if not spread and dw: dma_w(hw)
        if prev: mf(1, 0, 1, False)
        if spread and dw: w_one(hw, 1)
        if not spread and dx: dma_x(bx, px)
        if prev: mf(1, 1, 1, False)
        first = hh == 0
        rd_b(1, hh, 1, 0); rd_a(1, hh, 1, 0, 0); rd_a(1, hh, 1, 0, 1)
        a(f"s_waitcnt lgkmcnt(6)")
        mf(0, 0, 0, first)
        rd_b(1, hh, 1, 1); rd_a(1, hh, 1, 1, 0); rd_a(1, hh, 1, 1, 1)
        if spread and dx: x_pre(bx, px); x_one(bx, 2*px)
        a(f"s_waitcnt lgkmcnt(6)")
        mf(0, 1, 0, first); mf(0, 0, 1, first)
        if spread and dx: x_one(bx, 2*px + 1)
        mf(0, 1, 1, first)
    a("s_waitcnt lgkmcnt(0)")
    mf(1, 0, 0, False); mf(1, 1, 0, False); mf(1, 0, 1, False); mf(1, 1, 1, False)
    mark(a)
    a(f"v_lshrrev_b32 v{t0}, 5, v1")
    a(f"s_lshr_b32 s{T0}, s{S_W}, 1")
    a(f"s_lshl_b32 s{T0}, s{T0}, 4")
    a(f"v_add_u32 v{t0}, s{T0}, v{t0}")
    a(f"v_lshlrev_b32 v{t0}, 14, v{t0}")
    a(f"s_and_b32 s{T0}, s{S_W}, 1")
    a(f"s_lshl_b32 s{T0}, s{T0}, 9")
    a(f"v_and_b32 v{t1}, 31, v1")
    a(f"v_lshl_add_u32 v{t0}, v{t1}, 4, v{t0}")
    a(f"v_add_u32 v{t0}, s{T0}, v{t0}")
    a(f"s_lshl_b32 s{T0}, s{S_CJ}, 19")
    a(f"s_lshl_b32 s{T1}, s{S_RB}, 10")
    a(f"s_add_u32 s{T0}, s{T0}, s{T1}")
    a(f"s_add_u32 s{T0}, s{T0}, {WS_QKV}")
    if OPT['mega']: nonce_load(a, 16)
    k = 0
    for ft in range(2):
        for j in range(4):
            a(f"s_add_u32 s{T1}, s{T0}, {(8*ft+2*j)*16384}")
            d = FB[0] + 4*(k % 8); k += 1
            for tt in range(2):
                base = ACC + 16*(2*tt+ft) + 4*j
                a(f"v_cvt_pk_bf16_f32 v{d+2*tt}, v{base}, v{base+1}")
                a(f"v_cvt_pk_bf16_f32 v{d+2*tt+1}, v{base+2}, v{base+3}")
            a(f"buffer_store_dwordx4 {vr(d,4)}, v{t0}, s[{SRD_WS}:{SRD_WS+3}], s{T1} offen sc1")
    mark(a)
    if OPT['mega']:
        nonce_get(a, 16)
        a(f"s_lshl_b32 s{T0}, s{S_RB}, 7")
        a(f"s_lshl_b32 s{T1}, s{S_CJ}, 2")
        a(f"s_add_u32 s{T0}, s{T0}, s{T1}")
        a(f"s_add_u32 s{T0}, s{T0}, {WS_FLAG + FQ}")
        publish(a, T0, 16)
        a(f"s_branch {lbl}_end")
    a.label(f"{lbl}_skip")
    if OPT['mega']:
        a.reset_counters()
        a(f"s_lshr_b32 s{S_KO}, s{S_X}, 1")
        a(f"s_lshl_b32 s{S_KO}, s{S_KO}, 2")
        a(f"s_and_b32 s{T0}, s{S_I}, 3")
        a(f"s_add_u32 s{S_KO}, s{S_KO}, s{T0}")
        stage_repack(a, lbl + "_rp", S_KO)
        a.label(f"{lbl}_end")
    a.reset_counters()

STAMPS = False
CTX = dict(k=0, slot=0)
def mark(a):
    if not STAMPS: return
    CTX['slot'] += 1
    if CTX['slot'] > 14: return
    stamp(a, CTX['k'], CTX['slot'])
CTX4 = dict(slot=0)
def mark4(a, first=False):
    if not STAMPS: return
    if first: CTX4['slot'] = -1
    CTX4['slot'] += 1
    if CTX4['slot'] > 14: return
    stamp(a, 0, CTX4['slot'], wave=4, add=256*128)

def stamp(a, kidx, slot, wave=0, add=0):
    if not STAMPS: return
    stamp.n = getattr(stamp, 'n', 0) + 1
    L = f"stamp_{stamp.n}"
    a(f"s_cmp_lg_u32 s{S_W}, {wave}")
    a(f"s_cbranch_scc1 {L}")
    a("s_memrealtime s[98:99]")
    a("s_memtime s[100:101]")
    a("s_waitcnt lgkmcnt(0)")
    a(f"s_lshl_b32 s97, s2, 7")
    a(f"s_add_u32 s97, s97, {WS_STAMP + kidx*(1024*128) + slot*4 + add}")
    a("s_mov_b64 exec, 1")
    a("v_mov_b32 v254, s98")
    a("v_mov_b32 v255, s100")
    vm = list(a.vm)
    a(f"buffer_store_dword v254, off, s[{SRD_WS}:{SRD_WS+3}], s97")
    a(f"buffer_store_dword v255, off, s[{SRD_WS}:{SRD_WS+3}], s97 offset:64")
    a("s_mov_b64 exec, -1")
    a.vm = vm
    a.label(L)

def dbgtime(a, slot, wg):
    if not OPT.get('dbgtime'): return
    L = uid("dt")
    a(f"s_cmp_lg_u32 s{S_W}, 0")
    a(f"s_cbranch_scc1 {L}")
    a(f"s_cmp_lg_u32 s2, {wg}")
    a(f"s_cbranch_scc1 {L}")
    a("s_memrealtime s[98:99]")
    a("s_waitcnt lgkmcnt(0)")
    a("s_mov_b64 exec, 1")
    a("v_mov_b32 v254, s98")
    a(f"v_mov_b32 v255, {slot*4}")
    vm = list(a.vm)
    a(f"global_store_dword v255, v254, s[{P_DBG}:{P_DBG+1}]")
    a("s_mov_b64 exec, -1")
    a.vm = vm
    a.label(L)

def kernel_text(name, body, grid, lds):
    s  = f".globl {name}\n.p2align 8\n.type {name},@function\n{name}:\n"
    s += body
    s += "    s_endpgm\n"
    return s

def descriptor(name, vgpr=256):
    return f""".amdhsa_kernel {name}
  .amdhsa_next_free_vgpr {vgpr}
  .amdhsa_next_free_sgpr 102
  .amdhsa_accum_offset {vgpr}
  .amdhsa_group_segment_fixed_size 0
  .amdhsa_kernarg_size 96
  .amdhsa_user_sgpr_count 2
  .amdhsa_user_sgpr_kernarg_segment_ptr 1
  .amdhsa_system_sgpr_workgroup_id_x 1
.end_amdhsa_kernel
"""

def dpp_sum16(a, v):
    for r in (8, 4, 2, 1):
        a(f"v_add_f32_dpp v{v}, v{v}, v{v} row_ror:{r} row_mask:0xf bank_mask:0xf")

def stage_ln(a, lbl):
    VO, VT = 2, 4
    X, F = 20, 40
    t0, t1, t2, t3, t4 = VT, VT+1, VT+2, VT+3, VT+4
    a(f"s_and_b32 s{T0}, s{S_W}, 1")
    a(f"s_lshl_b32 s{T0}, s{T0}, 2")
    a(f"s_lshl_b32 s{T1}, s{S_IDX}, 3")
    a(f"s_add_u32 s{T0}, s{T0}, s{T1}")
    a(f"v_lshrrev_b32 v{t0}, 4, v1")
    a(f"v_add_u32 v{t0}, s{T0}, v{t0}")
    a(f"v_and_b32 v{t1}, 15, v1")
    a(f"s_movk_i32 s{T2}, 1280")
    a(f"v_mul_lo_u32 v{VO}, v{t0}, s{T2}")
    a(f"v_lshl_add_u32 v{VO}, v{t1}, 4, v{VO}")
    a(f"s_cmp_ge_u32 s{S_W}, 2")
    a(f"s_cbranch_scc1 {lbl}_gate")
    srd(a, SRD_A, P_AX, SIZES['AX'])
    for i in range(5):
        a(f"buffer_load_dwordx4 {vr(X+4*i,4)}, v{VO}, s[{SRD_A}:{SRD_A+3}], 0 offen offset:{256*i}", tag='lnx')
    if OPT['mega']: start_prefetch(a, 'B')
    a(f"v_lshrrev_b32 v{t2}, 5, v{t0}")
    a(f"v_mul_u32_u24 v{t2}, 40, v{t2}")
    a(f"v_lshrrev_b32 v{t3}, 1, v{t1}")
    a(f"v_add_u32 v{t2}, v{t2}, v{t3}")
    a(f"v_lshlrev_b32 v{t2}, 10, v{t2}")
    a(f"v_and_b32 v{t3}, 1, v{t1}")
    a(f"v_lshl_add_u32 v{t2}, v{t3}, 9, v{t2}")
    a(f"v_and_b32 v{t3}, 31, v{t0}")
    a(f"v_lshl_add_u32 v{VO+1}, v{t3}, 4, v{t2}")
    a.wait_vm('lnx')
    for d in range(20):
        a(f"v_lshlrev_b32 v{F+2*d}, 16, v{X+d}")
        a(f"v_and_b32 v{F+2*d+1}, 0xffff0000, v{X+d}")
    for k in range(4):
        a(f"v_add_f32 v{t0+k}, v{F+k}, v{F+4+k}")
    for d in range(8, 40):
        a(f"v_add_f32 v{t0+(d%4)}, v{t0+(d%4)}, v{F+d}")
    a(f"v_add_f32 v{t0}, v{t0}, v{t1}")
    a(f"v_add_f32 v{t2}, v{t2}, v{t3}")
    a(f"v_add_f32 v{t0}, v{t0}, v{t2}")
    dpp_sum16(a, t0)
    a(f"v_mul_f32 v{t0}, 0x3acccccd, v{t0}")
    for d in range(40):
        a(f"v_sub_f32 v{F+d}, v{F+d}, v{t0}")
    for k in range(4):
        a(f"v_mul_f32 v{t0+k}, v{F+k}, v{F+k}")
    for d in range(4, 40):
        a(f"v_fmac_f32 v{t0+(d%4)}, v{F+d}, v{F+d}")
    a(f"v_add_f32 v{t0}, v{t0}, v{t1}")
    a(f"v_add_f32 v{t2}, v{t2}, v{t3}")
    a(f"v_add_f32 v{t0}, v{t0}, v{t2}")
    dpp_sum16(a, t0)
    a(f"v_mov_b32 v{t1}, 0x3727c5ac")
    a(f"v_fmac_f32 v{t1}, 0x3acccccd, v{t0}")
    a(f"v_rsq_f32 v{t1}, v{t1}")
    for d in range(40):
        a(f"v_mul_f32 v{F+d}, v{F+d}, v{t1}")
    for d in range(20):
        a(f"v_cvt_pk_bf16_f32 v{X+d}, v{F+2*d}, v{F+2*d+1}")
    if OPT['mega']: nonce_load(a, 10)
    for i in range(5):
        a(f"buffer_store_dwordx4 {vr(X+4*i,4)}, v{VO+1}, s[{SRD_WS}:{SRD_WS+3}], 0 offen sc1")
        if i < 4:
            a(f"v_add_u32 v{VO+1}, 8192, v{VO+1}")
    a(f"s_branch {lbl}_done")
    a.label(f"{lbl}_gate")
    a.reset_counters()
    srd(a, SRD_A, P_AX, SIZES['AX'])
    srd(a, SRD_B, P_GW, SIZES['GW'])
    G = 40
    a(f"v_lshlrev_b32 v{VO+1}, 4, v{t1}")
    for i in range(5):
        a(f"buffer_load_dwordx4 {vr(X+4*i,4)}, v{VO}, s[{SRD_A}:{SRD_A+3}], 0 offen offset:{256*i}", tag='gx')
        a(f"buffer_load_dwordx4 {vr(G+4*i,4)}, v{VO+1}, s[{SRD_B}:{SRD_B+3}], 0 offen offset:{256*i}", tag='gx')
    if OPT['mega']: start_prefetch(a, 'B')
    a(f"v_lshlrev_b32 v{t2}, 2, v{t0}")
    a(f"v_add_u32 v{t2}, {WS_G}, v{t2}")
    a(f"v_mov_b32 v{t3}, 0x7ffffff0")
    a(f"v_cmp_eq_u32 s[{T4}:{T4+1}], 0, v{t1}")
    a(f"v_cndmask_b32 v{VO}, v{t3}, v{t2}, s[{T4}:{T4+1}]")
    a(f"v_mov_b32 v{t0}, 0")
    a(f"v_mov_b32 v{t1}, 0")
    a.wait_vm('gx')
    U = 60
    for d in range(20):
        u = U + 4*(d % 4)
        a(f"v_lshlrev_b32 v{u}, 16, v{X+d}")
        a(f"v_lshlrev_b32 v{u+1}, 16, v{G+d}")
        a(f"v_and_b32 v{u+2}, 0xffff0000, v{X+d}")
        a(f"v_and_b32 v{u+3}, 0xffff0000, v{G+d}")
        a(f"v_fmac_f32 v{t0}, v{u}, v{u+1}")
        a(f"v_fmac_f32 v{t1}, v{u+2}, v{u+3}")
    a(f"v_add_f32 v{t0}, v{t0}, v{t1}")
    dpp_sum16(a, t0)
    a(f"v_mul_f32 v{t0}, 0xbfb8aa3b, v{t0}")
    a(f"v_exp_f32 v{t0}, v{t0}")
    a(f"v_add_f32 v{t0}, 1.0, v{t0}")
    a(f"v_rcp_f32 v{t0}, v{t0}")
    a(f"s_nop 0")
    if OPT['mega']: nonce_load(a, 10)
    a(f"buffer_store_dword v{t0}, v{VO}, s[{SRD_WS}:{SRD_WS+3}], 0 offen sc1")
    a.label(f"{lbl}_done")
    a.reset_counters()
    if OPT['mega']:
        a("s_waitcnt vmcnt(0)")
        nonce_get(a, 10)
        a(f"s_lshr_b32 s{T0}, s{S_IDX}, 4")
        a(f"s_lshl_b32 s{T0}, s{T0}, 7")
        a(f"s_and_b32 s{T1}, s{S_IDX}, 15")
        a(f"s_lshl_b32 s{T1}, s{T1}, 2")
        a(f"s_add_u32 s{T0}, s{T0}, s{T1}")
        a(f"s_add_u32 s{T0}, s{T0}, {WS_FLAG + FY}")
        publish(a, T0, 10)

NRP = 48
RPQ = 395
def stage_repack(a, lbl, sn):
    t0, t1, t2, t3, t4, t5, t6 = range(2, 9)
    NU = 16
    VS, VD, D = 10, 26, 44
    MS = 64
    srd(a, SRD_A, P_W2, SIZES['W2'])
    srd(a, SRD_B, P_WO, SIZES['WO'])
    a(f"s_mul_i32 s{T0}, s{sn}, {RPQ}")
    a(f"s_mul_i32 s{T3}, s{T0}, 160")
    a(f"s_add_u32 s{T3}, s{T3}, {WS_WF}")
    a(f"s_movk_i32 s{T6}, 6554")
    a(f"s_movk_i32 s{T7}, 1280")
    a(f"s_mov_b32 s{T1}, 1813754")
    a(f"s_movk_i32 s{T2}, 2368")
    a(f"s_movk_i32 s{T4}, 18944")
    a(f"s_movk_i32 s{T5}, {RPQ*10}")
    for u in range(NU):
        a(f"v_add_u32 v{t0}, {256*u}, v0")
        a(f"v_mul_u32_u24 v{t1}, s{T6}, v{t0}")
        a(f"v_lshrrev_b32 v{t1}, 16, v{t1}")
        a(f"v_mul_u32_u24 v{t2}, 10, v{t1}")
        a(f"v_sub_u32 v{t2}, v{t0}, v{t2}")
        a(f"v_add_u32 v{t1}, s{T0}, v{t1}")
        a(f"v_mul_hi_u32 v{t3}, v{t1}, s{T1}")
        a(f"v_mul_lo_u32 v{t4}, v{t3}, s{T2}")
        a(f"v_sub_u32 v{t4}, v{t1}, v{t4}")
        a(f"v_cmp_gt_u32 s[98:99], s{T4}, v{t1}")
        a(f"v_cmp_gt_u32 s[100:101], s{T5}, v{t0}")
        a("s_and_b64 s[98:99], s[98:99], s[100:101]")
        a(f"v_mul_u32_u24 v{t3}, 160, v{t3}")
        a(f"v_lshl_add_u32 v{t2}, v{t2}, 4, v{t3}")
        a(f"v_subrev_u32 v{t1}, 1728, v{t4}")
        a(f"v_lshrrev_b32 v{t3}, 4, v{t1}")
        a(f"v_and_b32 v{t1}, 15, v{t1}")
        a(f"v_mul_u32_u24 v{t5}, 20, v{t3}")
        a(f"v_add_u32 v{t5}, v{t5}, v{t1}")
        a(f"v_cmp_gt_u32 s[100:101], 32, v{t3}")
        a(f"v_subrev_u32 v{t3}, 32, v{t3}")
        a(f"v_lshlrev_b32 v{t3}, 2, v{t3}")
        a(f"v_bfe_u32 v{t6}, v{t1}, 2, 1")
        a(f"v_lshl_add_u32 v{t3}, v{t6}, 1, v{t3}")
        a(f"v_lshrrev_b32 v{t6}, 3, v{t1}")
        a(f"v_add_u32 v{t3}, v{t3}, v{t6}")
        a(f"v_mul_u32_u24 v{t3}, 20, v{t3}")
        a(f"v_and_b32 v{t1}, 3, v{t1}")
        a(f"v_add3_u32 v{t3}, v{t3}, v{t1}, 16")
        a(f"v_cndmask_b32 v{t3}, v{t3}, v{t5}, s[100:101]")
        a(f"v_cmp_gt_u32 s[{MS+2*u}:{MS+2*u+1}], 0x6c0, v{t4}") if False else None
        a(f"v_mov_b32 v{t5}, 1728")
        a(f"v_cmp_gt_u32 s[{MS+2*u}:{MS+2*u+1}], v{t5}, v{t4}")
        a(f"v_cndmask_b32 v{t3}, v{t3}, v{t4}, s[{MS+2*u}:{MS+2*u+1}]")
        a(f"v_mul_lo_u32 v{t3}, v{t3}, s{T7}")
        a(f"v_add_u32 v{t3}, v{t3}, v{t2}")
        a(f"v_lshlrev_b32 v{t5}, 4, v{t0}")
        a(f"v_add_u32 v{t5}, s{T3}, v{t5}")
        a(f"v_mov_b32 v{t6}, 0x7ffffff0")
        a(f"v_cndmask_b32 v{VS+u}, v{t6}, v{t3}, s[98:99]")
        a(f"v_cndmask_b32 v{VD+u}, v{t6}, v{t5}, s[98:99]")
    for u in range(NU):
        a(f"v_mov_b32 v{t6}, 0x7ffffff0")
        a(f"v_cndmask_b32 v{t0}, v{t6}, v{VS+u}, s[{MS+2*u}:{MS+2*u+1}]")
        a(f"v_cndmask_b32 v{t1}, v{VS+u}, v{t6}, s[{MS+2*u}:{MS+2*u+1}]")
        a(f"s_mov_b64 exec, s[{MS+2*u}:{MS+2*u+1}]")
        a(f"buffer_load_dwordx4 {vr(D+4*u,4)}, v{t0}, s[{SRD_A}:{SRD_A+3}], 0 offen", tag=('rp', u))
        a(f"s_not_b64 exec, s[{MS+2*u}:{MS+2*u+1}]")
        a(f"buffer_load_dwordx4 {vr(D+4*u,4)}, v{t1}, s[{SRD_B}:{SRD_B+3}], 0 offen", tag=('rp', u))
        a("s_mov_b64 exec, -1")
    for u in range(NU):
        a.wait_vm(('rp', u))
        a(f"buffer_store_dwordx4 {vr(D+4*u,4)}, v{VD+u}, s[{SRD_WS}:{SRD_WS+3}], 0 offen sc1")
    if OPT['mega']:
        nonce_load(a, 2)
        nonce_get(a, 2)
        a(f"s_lshl_b32 s{T0}, s{sn}, 2")
        a(f"s_add_u32 s{T0}, s{T0}, {WS_FLAG + FW}")
        publish(a, T0, 2)
    a.reset_counters()

def stage_ffn1(a, lbl):
    a(f"s_lshr_b32 s{T0}, s{S_X}, 1")
    a(f"s_lshl_b32 s{T0}, s{T0}, 2")
    a(f"s_and_b32 s{T1}, s{S_I}, 3")
    a(f"s_add_u32 s{S_RB}, s{T0}, s{T1}")
    a(f"s_and_b32 s{T0}, s{S_X}, 1")
    a(f"s_mul_i32 s{T0}, s{T0}, 7")
    a(f"s_lshr_b32 s{T1}, s{S_I}, 2")
    a(f"s_add_u32 s{S_CJ}, s{T0}, s{T1}")
    a(f"s_cmp_ge_u32 s{T1}, 7")
    a(f"s_cbranch_scc1 {lbl}_skip")
    srd(a, SRD_A, P_B1, SIZES['B1'])
    srd(a, SRD_B, P_W1, SIZES['W1'])
    VWD, VWF, VY, VT = 2, 6, 10, 12
    AS = [20, 36, 52]
    ACC = 68
    YR = 132; NY = 16; YD = 12
    t0, t1, t2, t3 = VT, VT+1, VT+2, VT+3
    a(f"s_lshl_b32 s{T0}, s{S_W}, 4")
    a(f"v_lshrrev_b32 v{t0}, 4, v1")
    a(f"v_add_u32 v{t1}, s{T0}, v{t0}")
    a(f"s_movk_i32 s{T2}, 3456")
    a(f"v_mul_lo_u32 v{t1}, v{t1}, s{T2}")
    a(f"v_bfe_u32 v{t2}, v1, 2, 2")
    a(f"v_xor_b32 v{t2}, v{t2}, v{t0}")
    a(f"v_and_b32 v{t3}, 3, v1")
    a(f"v_lshl_add_u32 v{t2}, v{t2}, 2, v{t3}")
    a(f"v_lshl_add_u32 v{t1}, v{t2}, 4, v{t1}")
    a(f"s_lshl_b32 s{T0}, s{S_CJ}, 8")
    a(f"v_add_u32 v{VWD}, s{T0}, v{t1}")
    for i in range(1, 4):
        a(f"v_add_u32 v{VWD+i}, {i*(4*3456-1024)}, v{VWD}")
    a(f"s_lshl_b32 s{T6}, s{S_W}, 12")
    def dma_w(b):
        a(f"s_add_u32 m0, s{T6}, {(b % 4)*16384}")
        a(f"s_mov_b32 s{S_KW}, {b*64*3456}")
        for i in range(4):
            a(f"buffer_load_dwordx4 v{VWD+i}, s[{SRD_B}:{SRD_B+3}], s{S_KW} offen offset:{i*1024} lds", tag=('W', b))
    dma_w(0)
    a(f"v_lshrrev_b32 v{t0}, 5, v1")
    a(f"v_lshlrev_b32 v{t1}, 3, v{t0}")
    a(f"s_lshl_b32 s{T0}, s{S_CJ}, 8")
    a(f"v_add_u32 v{t1}, s{T0}, v{t1}")
    for T in range(4):
        for j in range(4):
            a(f"buffer_load_dwordx2 {vr(AS[0]+2*(4*T+j),2)}, v{t1}, s[{SRD_A}:{SRD_A+3}], 0 offen offset:{64*T+16*j}", tag='bias')
    dma_w(1); dma_w(2)
    if OPT['mega']:
        a(f"s_lshl_b32 s{T0}, s{S_RB}, 7")
        a(f"s_add_u32 s{T0}, s{T0}, {WS_FLAG + FY}")
        a(f"v_lshlrev_b32 v{t2}, 2, v1")
        a(f"v_add_u32 v{t2}, s{T0}, v{t2}")
        a(f"s_mov_b64 s[{T4}:{T4+1}], 0xffff")
        vm = list(a.vm)
        wait_flags(a, t2, t3, T4)
        a.vm = vm
        if OPT.get('fine'): mark(a)
    a(f"s_lshl_b32 s{T0}, s{S_RB}, 2")
    a(f"s_add_u32 s{T0}, s{T0}, s{S_W}")
    a(f"s_mul_i32 s{T1}, s{T0}, {40*1024}")
    a(f"s_add_u32 s{S_KX}, s{T1}, {WS_Y}")
    a(f"v_lshlrev_b32 v{VY}, 4, v1")
    def ld_y(s):
        if s % 4 == 0 and s > 0:
            a(f"s_add_u32 s{S_KX}, s{S_KX}, 4096")
        a(f"buffer_load_dwordx4 {vr(YR+4*(s % NY),4)}, v{VY}, s[{SRD_WS}:{SRD_WS+3}], s{S_KX} offen offset:{(s % 4)*1024} sc1", tag=('Y', s))
    for s in range(YD): ld_y(s)
    a(f"v_bfe_u32 v{t2}, v1, 2, 2")
    a(f"v_lshl_add_u32 v{t1}, v{t0}, 3, v{t2}")
    a(f"v_lshlrev_b32 v{t1}, 8, v{t1}")
    a(f"v_bfe_u32 v{t3}, v1, 4, 1")
    a(f"v_lshl_add_u32 v{t1}, v{t3}, 5, v{t1}")
    a(f"v_and_b32 v{t3}, 3, v1")
    a(f"v_lshl_add_u32 v{t1}, v{t3}, 3, v{t1}")
    for ft in range(4):
        a(f"v_xor_b32 v{t3}, {ft}, v{t2}")
        a(f"v_lshl_add_u32 v{VWF+ft}, v{t3}, 6, v{t1}")
    a.wait_vm('bias')
    for T in range(4):
        for j in range(4):
            s_ = AS[0] + 2*(4*T+j); d = ACC + 16*T + 4*j
            a(f"v_lshlrev_b32 v{d}, 16, v{s_}")
            a(f"v_and_b32 v{d+1}, 0xffff0000, v{s_}")
            a(f"v_lshlrev_b32 v{d+2}, 16, v{s_+1}")
            a(f"v_and_b32 v{d+3}, 0xffff0000, v{s_+1}")
    def rd_a(s, ft, rd):
        b = s >> 2; u = s & 3
        a(f"ds_read_b64_tr_b16 {vr(AS[s % 3]+4*ft+2*rd,2)}, v{VWF+ft} offset:{(b % 4)*16384 + u*4096 + rd*1024}", tag=('A', s, ft))
    a.wait_vm(('W', 0))
    a("s_barrier")
    for s in range(2):
        for ft in range(4):
            rd_a(s, ft, 0); rd_a(s, ft, 1)
    NS = 40
    mark(a)
    for s in range(NS):
        b = s >> 2; u = s & 3
        if OPT.get('fine') and u == 0 and b in (2, 4, 6, 8): mark(a)
        if u == 2 and b + 1 < 10:
            a.wait_vm(('W', b + 1))
            a("s_barrier")
            if b + 3 < 10: dma_w(b + 3)
        a.wait_vm(('Y', s))
        for ft in range(4):
            a.wait_lg(('A', s, ft))
            d = vr(ACC+16*ft, 16)
            a(f"v_mfma_f32_32x32x16_bf16 {d}, {vr(AS[s % 3]+4*ft,4)}, {vr(YR+4*(s % NY),4)}, {d}")
            if s + 2 < NS:
                rd_a(s + 2, ft, 0); rd_a(s + 2, ft, 1)
            if ft == 1 and s + YD < NS:
                ld_y(s + YD)
    mark(a)
    C0, C1 = 2, 3
    a(f"v_mov_b32 v{C0}, 0xc0135761")
    a(f"v_mov_b32 v{C1}, 0xbdd2d3e8")
    a(f"s_lshl_b32 s{T0}, s{S_RB}, 2")
    a(f"s_add_u32 s{T0}, s{T0}, s{S_W}")
    a(f"s_mul_i32 s{T0}, s{T0}, 108")
    a(f"s_lshl_b32 s{T1}, s{S_CJ}, 3")
    a(f"s_add_u32 s{T0}, s{T0}, s{T1}")
    a(f"s_lshl_b32 s{T0}, s{T0}, 10")
    a(f"s_add_u32 s{T0}, s{T0}, {WS_H}")
    a(f"s_add_u32 s{T1}, s{T0}, 4096")
    TU, TE = 20, 28
    k = 0
    for T in range(4):
        if T == 2:
            a(f"s_cmp_eq_u32 s{S_CJ}, 13")
            a(f"s_cbranch_scc1 {lbl}_pub")
        for jj in range(2):
            x = ACC + 16*T + 8*jj
            for e in range(8): a(f"v_mul_f32 v{TU+e}, v{x+e}, v{x+e}")
            for e in range(8): a(f"v_fma_f32 v{TU+e}, v{TU+e}, v{C1}, v{C0}")
            for e in range(8): a(f"v_mul_f32 v{TU+e}, v{TU+e}, v{x+e}")
            for e in range(8): a(f"v_exp_f32 v{TE+e}, v{TU+e}")
            for e in range(8): a(f"v_add_f32 v{TE+e}, 1.0, v{TE+e}")
            for e in range(8): a(f"v_rcp_f32 v{TE+e}, v{TE+e}")
            for e in range(8): a(f"v_mul_f32 v{TE+e}, v{TE+e}, v{x+e}")
            d = 40 + 4*(k % 4); k += 1
            for e in range(4): a(f"v_cvt_pk_bf16_f32 v{d+e}, v{TE+2*e}, v{TE+2*e+1}")
            so = T0 if T < 2 else T1
            a(f"buffer_store_dwordx4 {vr(d,4)}, v{VY}, s[{SRD_WS}:{SRD_WS+3}], s{so} offen offset:{((2*T+jj) % 4)*1024} sc1")
    a.label(f"{lbl}_pub")
    mark(a)
    if OPT['mega']:
        a(f"s_lshl_b32 s{T0}, s{S_RB}, 7")
        a(f"s_lshl_b32 s{T1}, s{S_CJ}, 2")
        a(f"s_add_u32 s{T0}, s{T0}, s{T1}")
        a(f"s_add_u32 s{T0}, s{T0}, {WS_FLAG + FH}")
        publish(a, T0, 12)
        a(f"s_branch {lbl}_end")
    a.label(f"{lbl}_skip")
    if OPT['mega']:
        a.reset_counters()
        a(f"s_lshl_b32 s{S_KO}, s{S_X}, 2")
        a(f"s_and_b32 s{T0}, s{S_I}, 3")
        a(f"s_add_u32 s{S_KO}, s{S_KO}, s{T0}")
        a(f"s_add_u32 s{S_KO}, s{S_KO}, 16")
        stage_repack(a, lbl + "_rp", S_KO)
        a.label(f"{lbl}_end")
    a.reset_counters()

PST = 3104
LK, LV, LONES = 0, 10*PST, 20*PST
def stage_attn(a, lbl):
    a(f"s_lshl_b32 s{T0}, s{S_X}, 1")
    a(f"s_and_b32 s{T1}, s{S_I}, 1")
    a(f"s_add_u32 s{S_CJ}, s{T0}, s{T1}")
    a(f"s_lshr_b32 s{S_RB}, s{S_I}, 1")
    HP = S_CJ
    VD, VK, VV, VT = 2, 3, 4, 6
    t0, t1, t2, t3, t4 = VT, VT+1, VT+2, VT+3, VT+4
    MK = 12
    Q0, Q1 = 20, 24
    KF = [28, 36]
    VF = [44, 48, 52, 56]
    PF = [60, 64, 68, 72]
    OA = 76
    LO = 92
    CS, NM = 96, 97
    MX = 98
    S = 104
    QH = 248
    if OPT['mega']:
        a(f"v_lshrrev_b32 v{t0}, 4, v1")
        a(f"s_sub_u32 s{T0}, s{S_RB}, 2")
        a(f"v_add_u32 v{t0}, s{T0}, v{t0}")
        a(f"v_and_b32 v{t1}, 15, v1")
        a(f"v_cmp_le_i32 s[{T4}:{T4+1}], 0, v{t0}")
        a(f"v_cmp_gt_u32 s[{T2}:{T2+1}], 15, v{t1}")
        a(f"s_and_b64 s[{T4}:{T4+1}], s[{T4}:{T4+1}], s[{T2}:{T2+1}]")
        a(f"s_mov_b64 s[{T2}:{T2+1}], 0xffffffffffff") if False else None
        a(f"s_mov_b32 s{T2}, -1")
        a(f"s_mov_b32 s{T2+1}, 0xffff")
        a(f"s_and_b64 s[{T4}:{T4+1}], s[{T4}:{T4+1}], s[{T2}:{T2+1}]")
        a(f"v_lshlrev_b32 v{t0}, 7, v{t0}")
        a(f"v_lshl_add_u32 v{t0}, v{t1}, 2, v{t0}")
        a(f"v_add_u32 v{t0}, {WS_FLAG + FQ}, v{t0}")
        wait_flags(a, t0, t1, T4)
        if OPT.get('fine'): mark(a)
    a(f"s_sub_u32 s{T0}, s{S_RB}, 2")
    a(f"s_lshl_b32 s{T0}, s{T0}, 7")
    a(f"s_mul_i32 s{T1}, s{S_W}, 96")
    a(f"s_add_u32 s{T0}, s{T0}, s{T1}")
    a(f"v_lshlrev_b32 v{t0}, 1, v1")
    a(f"v_add_u32 v{t0}, s{T0}, v{t0}")
    a(f"v_lshlrev_b32 v{t1}, 3, v{t0}")
    a(f"v_mov_b32 v{t2}, 0x7ffffff0")
    a(f"v_cmp_le_i32 s[{T4}:{T4+1}], 0, v{t0}")
    a(f"v_cndmask_b32 v{VD}, v{t2}, v{t1}, s[{T4}:{T4+1}]")
    a(f"s_mul_i32 s{T2}, s{HP}, {10*16384}")
    a(f"s_add_u32 s{T2}, s{T2}, {WS_QKV + 160*16384}")
    a(f"s_mul_i32 s{T3}, s{S_W}, 768")
    a("s_mov_b32 exec_hi, 0xffff")
    for ty in range(2):
        for p in range(10):
            a(f"s_add_u32 m0, s{T3}, {(LK if ty == 0 else LV) + p*PST}")
            a(f"s_add_u32 s{S_KX}, s{T2}, {(ty*160 + p)*16384}")
            a(f"buffer_load_dwordx4 v{VD}, s[{SRD_WS}:{SRD_WS+3}], s{S_KX} offen sc1 lds", tag=('kv', ty))
    a("s_mov_b32 exec_hi, -1")
    a(f"s_lshl_b32 s{T0}, s{S_RB}, 2")
    a(f"s_add_u32 s{T0}, s{T0}, s{S_W}")
    S_QB = 61
    a(f"s_mov_b32 s{S_QB}, s{T0}")
    a(f"v_and_b32 v{t0}, 31, v1")
    a(f"v_lshrrev_b32 v{t1}, 5, v1")
    a(f"s_lshl_b32 s{T1}, s{T0}, 8")
    a(f"v_lshlrev_b32 v{t2}, 3, v{t0}")
    a(f"v_add_u32 v{t2}, s{T1}, v{t2}")
    a(f"v_lshl_add_u32 v{t3}, v{t1}, 15, v{t2}")
    a(f"s_mul_i32 s{T2}, s{HP}, {10*16384}")
    a(f"s_add_u32 s{T2}, s{T2}, {WS_QKV}")
    QR = [Q0, QH]
    for hh in range(2):
        q0 = Q0 if hh == 0 else QH
        q1 = Q1 if hh == 0 else QH + 4
        a(f"s_add_u32 s{T1}, s{T2}, {hh*5*16384}")
        a(f"buffer_load_dwordx2 {vr(q0,2)}, v{t3}, s[{SRD_WS}:{SRD_WS+3}], s{T1} offen sc1", tag='q')
        a(f"s_add_u32 s{T1}, s{T1}, 16384")
        a(f"buffer_load_dwordx2 {vr(q0+2,2)}, v{t3}, s[{SRD_WS}:{SRD_WS+3}], s{T1} offen sc1", tag='q')
        a(f"s_add_u32 s{T1}, s{T1}, {3*16384}")
        a(f"buffer_load_dwordx2 {vr(q1,2)}, v{t2}, s[{SRD_WS}:{SRD_WS+3}], s{T1} offen sc1", tag='q')
    a(f"v_mov_b32 v{KF[0]}, 0x3f803f80")
    for r in range(1, 4): a(f"v_mov_b32 v{KF[0]+r}, 0x3f803f80")
    a(f"v_lshlrev_b32 v{t4}, 4, v0")
    a(f"v_add_u32 v{t4}, {LONES}, v{t4}")
    a(f"v_cmp_gt_u32 vcc, 208, v0")
    a(f"s_and_saveexec_b64 s[{T4}:{T4+1}], vcc")
    a(f"ds_write_b128 v{t4}, {vr(KF[0],4)}")
    a(f"s_mov_b64 exec, s[{T4}:{T4+1}]")
    a(f"v_lshlrev_b32 v{t2}, 2, v{t1}")
    a(f"v_sub_u32 v{t2}, v{t0}, v{t2}")
    for r in range(16):
        a(f"v_cmp_le_i32 s[{S_MASK+2*r}:{S_MASK+2*r+1}], {8*(r >> 2) + (r & 3)}, v{t2}")
    a(f"v_mov_b32 v{t3}, 0xffff")
    a(f"v_mov_b32 v{t4}, 0xffff0000")
    for q in range(8):
        a(f"v_cndmask_b32 v{MK+q}, 0, v{t3}, s[{S_MASK+4*q}:{S_MASK+4*q+1}]")
        a(f"v_cndmask_b32 v{KF[1]}, 0, v{t4}, s[{S_MASK+4*q+2}:{S_MASK+4*q+3}]")
        a(f"v_or_b32 v{MK+q}, v{MK+q}, v{KF[1]}")
    a(f"s_lshl_b32 s{T0}, s{S_W}, 8")
    a(f"v_lshlrev_b32 v{t2}, 3, v{t0}")
    a(f"v_add_u32 v{t2}, s{T0}, v{t2}")
    a(f"s_movk_i32 s{T1}, {2*PST}")
    a(f"v_mul_lo_u32 v{t3}, v{t1}, s{T1}")
    a(f"v_add_u32 v{VK}, v{t2}, v{t3}")
    VKX = 11
    a(f"v_add_u32 v{VKX}, {4*PST}, v{t2}")
    a(f"v_bfe_u32 v{t2}, v1, 4, 1")
    a(f"v_and_b32 v{t3}, 3, v1")
    a(f"v_lshl_add_u32 v{t2}, v{t2}, 2, v{t3}")
    a(f"v_bfe_u32 v{t3}, v1, 2, 2")
    a(f"v_lshl_add_u32 v{t3}, v{t1}, 2, v{t3}")
    a(f"v_lshlrev_b32 v{t3}, 3, v{t3}")
    a(f"v_add_u32 v{t3}, s{T0}, v{t3}")
    a(f"s_movk_i32 s{T1}, {PST}")
    a(f"v_mul_lo_u32 v{t4}, v{t2}, s{T1}")
    a(f"v_cmp_gt_u32 s[{T4}:{T4+1}], 5, v{t2}")
    for hh in range(2):
        vb = LV + hh*5*PST
        a(f"v_lshlrev_b32 v{KF[0]}, 5, v{t2}")
        a(f"v_add_u32 v{KF[0]}, {(vb - LONES) % 256}, v{KF[0]}")
        a(f"v_and_b32 v{KF[0]}, 255, v{KF[0]}")
        a(f"v_add_u32 v{KF[0]}, {LONES}, v{KF[0]}")
        a(f"v_add_u32 v{KF[0]+1}, {vb}, v{t4}")
        a(f"v_cndmask_b32 v{KF[0]}, v{KF[0]}, v{KF[0]+1}, s[{T4}:{T4+1}]")
        a(f"v_add_u32 v{VV+hh}, v{KF[0]}, v{t3}")
    a(f"v_mov_b32 v{CS}, 0x3ea52b5c")
    for st in range(2):
        a(f"v_mov_b32 v{KF[st]+6}, 0"); a(f"v_mov_b32 v{KF[st]+7}, 0")
    a(f"v_mov_b32 v{Q1+2}, 0"); a(f"v_mov_b32 v{Q1+3}, 0")
    a.wait_vm('q')
    a(f"v_cmp_gt_u32 s[{T4}:{T4+1}], 32, v1")
    for q in (Q1, Q1+1, QH+4, QH+5):
        a(f"v_cndmask_b32 v{q}, 0, v{q}, s[{T4}:{T4+1}]")
    a("s_waitcnt vmcnt(0) lgkmcnt(0)")
    a("s_barrier")
    a.reset_counters()
    mark(a)
    NEG = 0xf149f2ca
    for hh in range(2):
        if hh == 1:
            for r in range(4): a(f"v_mov_b32 v{Q0+r}, v{QH+r}")
            a(f"v_mov_b32 v{Q1}, v{QH+4}"); a(f"v_mov_b32 v{Q1+1}, v{QH+5}")
        ko = hh*5*PST
        def rd_k(tl):
            st = KF[tl % 2]
            a(f"ds_read_b64 {vr(st,2)}, v{VK} offset:{ko + tl*256}", tag=('k', tl))
            a(f"ds_read_b64 {vr(st+2,2)}, v{VK} offset:{ko + PST + tl*256}", tag=('k', tl))
            a(f"ds_read_b64 {vr(st+4,2)}, v{VKX} offset:{ko + tl*256}", tag=('k', tl))
        rd_k(0)
        for tl in range(9):
            if tl + 1 < 9: rd_k(tl + 1)
            a.wait_lg(('k', tl))
            st = KF[tl % 2]; d = vr(S+16*tl, 16)
            a(f"v_mfma_f32_32x32x16_bf16 {d}, {vr(st,4)}, {vr(Q0,4)}, 0")
            a(f"v_mfma_f32_32x32x16_bf16 {d}, {vr(st+4,4)}, {vr(Q1,4)}, {d}")
        a(f"s_cmp_ge_u32 s{S_QB}, 8")
        a(f"s_cbranch_scc1 {lbl}_full{hh}")
        for tl in range(8):
            a(f"s_cmp_ge_u32 s{S_QB}, {8-tl}")
            a(f"s_cbranch_scc1 {lbl}_full{hh}")
            a("s_nop 7"); a("s_nop 7")
            for r in range(16): a(f"v_mov_b32 v{S+16*tl+r}, {hex(NEG)}")
        a.label(f"{lbl}_full{hh}")
        a("s_nop 7"); a("s_nop 3")
        for r in range(16):
            a(f"v_cndmask_b32 v{S+r}, v{S+r}, v{S+128+r}, s[{S_MASK+2*r}:{S_MASK+2*r+1}]")
        for c in range(4):
            a(f"v_max3_f32 v{MX+c}, v{S+32*c}, v{S+32*c+1}, v{S+32*c+2}")
        for k in range(3, 31, 2):
            for c in range(4):
                a(f"v_max3_f32 v{MX+c}, v{MX+c}, v{S+32*c+k}, v{S+32*c+k+1}")
        for c in range(4):
            a(f"v_max_f32 v{MX+c}, v{MX+c}, v{S+32*c+31}")
        a(f"v_max3_f32 v{MX}, v{MX}, v{MX+1}, v{MX+2}")
        a(f"v_max_f32 v{MX}, v{MX}, v{MX+3}")
        a(f"v_mov_b32 v{MX+1}, v{MX}")
        a(f"v_permlane32_swap_b32 v{MX}, v{MX+1}")
        a(f"v_max_f32 v{MX}, v{MX}, v{MX+1}")
        a(f"v_mul_f32 v{NM}, v{CS}, v{MX}")
        a(f"v_sub_f32 v{NM}, 0, v{NM}")
        mark(a)
        def rd_v(tl, kk, slot):
            for rd in range(2):
                a(f"ds_read_b64_tr_b16 {vr(VF[slot]+2*rd,2)}, v{VV+hh} offset:{tl*256 + kk*128 + rd*64}", tag=('v', tl, kk))
        seq = [(1 + q // 2, q % 2) for q in range(14)]
        nv = 0
        vq = []
        def next_v(tl, kk):
            nonlocal nv
            slot = nv % 4; nv += 1
            rd_v(tl, kk, slot); return slot
        first = True
        pslot = 0
        def softmax_frag(src):
            nonlocal pslot
            p = PF[pslot % 4]; pslot += 1
            for e in range(8): a(f"v_fma_f32 v{src+e}, v{src+e}, v{CS}, v{NM}")
            for e in range(8): a(f"v_exp_f32 v{src+e}, v{src+e}")
            for e in range(4): a(f"v_cvt_pk_bf16_f32 v{p+e}, v{src+2*e}, v{src+2*e+1}")
            return p
        def pv(p, slot, tag):
            nonlocal first
            a.wait_lg(tag)
            c = "0" if first else vr(OA,16)
            a(f"v_mfma_f32_32x32x16_bf16 {vr(OA,16)}, {vr(VF[slot],4)}, {vr(p,4)}, {c}")
            first = False
        for (tl, kk) in seq:
            slot = next_v(tl, kk)
            p = softmax_frag(S + 16*tl + 8*kk)
            pv(p, slot, ('v', tl, kk))
        for kk in range(2):
            s0 = next_v(0, kk); s8 = next_v(8, kk)
            p = softmax_frag(S + 8*kk)
            p8 = PF[pslot % 4]; pslot += 1
            for e in range(4):
                a(f"v_and_b32 v{p8+e}, v{p+e}, v{MK+4*kk+e}")
            for e in range(4):
                a(f"v_xor_b32 v{p+e}, v{p+e}, v{p8+e}")
            pv(p, s0, ('v', 0, kk))
            pv(p8, s8, ('v', 8, kk))
        a(f"v_rcp_f32 v{NM}, v{OA+12}")
        for r in range(12): a(f"v_mul_f32 v{OA+r}, v{OA+r}, v{NM}")
        for e in range(4): a(f"v_cvt_pk_bf16_f32 v{PF[0]+e}, v{OA+2*e}, v{OA+2*e+1}")
        a(f"v_cvt_pk_bf16_f32 v{LO+2*hh}, v{OA+8}, v{OA+9}")
        a(f"v_cvt_pk_bf16_f32 v{LO+2*hh+1}, v{OA+10}, v{OA+11}")
        a(f"s_mul_i32 s{T0}, s{S_QB}, 40")
        a(f"s_lshl_b32 s{T1}, s{HP}, 1")
        a(f"s_add_u32 s{T1}, s{T1}, {hh}")
        a(f"s_add_u32 s{T0}, s{T0}, s{T1}")
        a(f"s_lshl_b32 s{T0}, s{T0}, 10")
        a(f"s_add_u32 s{T0}, s{T0}, {WS_O}")
        a(f"v_lshlrev_b32 v{t0}, 4, v1")
        a(f"buffer_store_dwordx4 {vr(PF[0],4)}, v{t0}, s[{SRD_WS}:{SRD_WS+3}], s{T0} offen sc1")
    mark(a)
    a(f"s_mul_i32 s{T0}, s{S_QB}, 40")
    a(f"s_lshr_b32 s{T1}, s{HP}, 1")
    a(f"s_add_u32 s{T0}, s{T0}, s{T1}")
    a(f"s_add_u32 s{T0}, s{T0}, 32")
    a(f"s_lshl_b32 s{T0}, s{T0}, 10")
    a(f"s_and_b32 s{T1}, s{HP}, 1")
    a(f"s_lshl_b32 s{T1}, s{T1}, 9")
    a(f"s_add_u32 s{T0}, s{T0}, s{T1}")
    a(f"s_add_u32 s{T0}, s{T0}, {WS_O}")
    a("s_mov_b32 exec_hi, 0")
    a(f"buffer_store_dwordx4 {vr(LO,4)}, v{t0}, s[{SRD_WS}:{SRD_WS+3}], s{T0} offen sc1")
    a("s_mov_b32 exec_hi, -1")
    if OPT['mega']:
        a(f"s_lshl_b32 s{T0}, s{S_RB}, 7")
        a(f"s_lshl_b32 s{T1}, s{HP}, 2")
        a(f"s_add_u32 s{T0}, s{T0}, s{T1}")
        a(f"s_add_u32 s{T0}, s{T0}, {WS_FLAG + FO}")
        publish(a, T0, t1)
    a.reset_counters()

def stage_final(a, lbl):
    a(f"s_lshr_b32 s{T0}, s{S_X}, 1")
    a(f"s_lshl_b32 s{T0}, s{T0}, 3")
    a(f"s_and_b32 s{T1}, s{S_I}, 7")
    a(f"s_add_u32 s{S_RB}, s{T0}, s{T1}")
    a(f"s_and_b32 s{T0}, s{S_X}, 1")
    a(f"s_lshl_b32 s{T0}, s{T0}, 2")
    a(f"s_lshr_b32 s{T1}, s{S_I}, 3")
    a(f"s_add_u32 s{S_CJ}, s{T0}, s{T1}")
    srd(a, SRD_A, P_B2, SIZES['B2'])
    srd(a, SRD_B, P_OUT, SIZES['OUT'])
    VW, VA, VB, VT = 2, 3, 4, 6
    t0, t1, t2, t3 = VT, VT+1, VT+2, VT+3
    VG, VO, VF = 10, 11, 12
    AS = [20, 40, 60]
    ACB, ACA = 80, 100
    TR = 120; NT = 28; TD = 20
    NSTEP = 74; HS = 54
    PAIR = 10240; NSL = 7
    NP = NSTEP // 2
    if OPT['mega']:
        a(f"v_lshlrev_b32 v{t2}, 2, v1")
        a(f"v_add_u32 v{t2}, {WS_FLAG + FW}, v{t2}")
        a(f"s_mov_b32 s{T4}, -1")
        a(f"s_mov_b32 s{T4+1}, 0xffff")
        wait_flags(a, t2, t3, T4)
    a(f"v_lshlrev_b32 v{VW}, 4, v1")
    a(f"s_mul_i32 s{T0}, s{S_CJ}, {WF_TILE}")
    a(f"s_mul_i32 s{T6}, s{S_W}, 2560")
    a(f"s_add_u32 s{T0}, s{T0}, s{T6}")
    a(f"s_add_u32 s{T7}, s{T0}, {WS_WF}")
    def dma_w(p):
        a(f"s_add_u32 m0, s{T6}, {(p % NSL)*PAIR}")
        a(f"s_add_u32 s{S_KW}, s{T7}, {p*PAIR}")
        a(f"buffer_load_dwordx4 v{VW}, s[{SRD_WS}:{SRD_WS+3}], s{S_KW} offen sc1 lds", tag=('W', p))
        a(f"buffer_load_dwordx4 v{VW}, s[{SRD_WS}:{SRD_WS+3}], s{S_KW} offen offset:1024 sc1 lds", tag=('W', p))
        a("s_mov_b32 exec_hi, 0")
        a(f"buffer_load_dwordx4 v{VW}, s[{SRD_WS}:{SRD_WS+3}], s{S_KW} offen offset:2048 sc1 lds", tag=('W', p))
        a("s_mov_b32 exec_hi, -1")
    for p in range(NSL - 1): dma_w(p)
    if OPT['mega'] and OPT['pf_wf']:
        nl = (WF_TILE - (NSL-1)*PAIR) // 128
        per = (nl + 7) // 8
        a(f"s_and_b32 s{T0}, s{S_I}, 7")
        a(f"s_mul_i32 s{T0}, s{T0}, {per*128}")
        a(f"s_mul_i32 s{T1}, s{S_CJ}, {WF_TILE}")
        a(f"s_add_u32 s{T0}, s{T0}, s{T1}")
        a(f"s_add_u32 s{T0}, s{T0}, {WS_WF + (NSL-1)*PAIR}")
        a(f"v_lshlrev_b32 v{t2}, 7, v0")
        a(f"v_add_u32 v{t2}, s{T0}, v{t2}")
        a(f"v_mov_b32 v{t3}, 0x7ffffff0")
        a(f"s_movk_i32 s{T1}, {per}")
        for k in range((per + 255) // 256):
            a(f"v_add_u32 v{t1}, {256*k}, v0")
            a(f"v_cmp_gt_u32 s[{T4}:{T4+1}], s{T1}, v{t1}")
            a(f"v_cndmask_b32 v{t1}, v{t3}, v{t2}, s[{T4}:{T4+1}]")
            a(f"buffer_load_dword v14, v{t1}, s[{SRD_WS}:{SRD_WS+3}], 0 offen sc1", tag='touch')
            a(f"v_add_u32 v{t2}, {256*128}, v{t2}")
    a(f"v_lshrrev_b32 v{t0}, 4, v1")
    a(f"v_lshlrev_b32 v{t1}, 3, v{t0}")
    a(f"s_mul_i32 s{T0}, s{S_CJ}, 160")
    a(f"v_add_u32 v{t1}, s{T0}, v{t1}")
    for F in range(5):
        a(f"buffer_load_dwordx2 {vr(AS[0]+2*F,2)}, v{t1}, s[{SRD_A}:{SRD_A+3}], 0 offen offset:{32*F}", tag='bias')
    if OPT['mega']:
        a(f"s_lshr_b32 s{T0}, s{S_RB}, 1")
        a(f"s_lshl_b32 s{T0}, s{T0}, 7")
        a(f"s_add_u32 s{T1}, s{T0}, {WS_FLAG + FH}")
        a(f"v_lshlrev_b32 v{t2}, 2, v1")
        a(f"v_add_u32 v{t2}, s{T1}, v{t2}")
        a(f"s_mov_b64 s[{T4}:{T4+1}], 0x3fff")
        a(f"s_add_u32 s{T1}, s{T0}, {WS_FLAG + FO}")
        a(f"v_and_b32 v{VF}, 15, v1")
        a(f"v_lshlrev_b32 v{VF}, 2, v{VF}")
        a(f"v_add_u32 v{VF}, s{T1}, v{VF}")
        vm = list(a.vm)
        wait_flags(a, t2, t3, T4)
        a.vm = vm
        if OPT.get('fine'): mark(a)
    a(f"v_lshrrev_b32 v{t1}, 5, v1")
    a(f"v_bfe_u32 v{t2}, v1, 4, 1")
    a(f"v_lshlrev_b32 v{t1}, 10, v{t1}")
    a(f"v_lshl_add_u32 v{t1}, v{t2}, 9, v{t1}")
    a(f"v_and_b32 v{t2}, 15, v1")
    a(f"s_and_b32 s{T0}, s{S_W}, 1")
    a(f"s_lshl_b32 s{T0}, s{T0}, 4")
    a(f"v_add_u32 v{t3}, s{T0}, v{t2}")
    a(f"v_lshl_add_u32 v{VB}, v{t3}, 4, v{t1}")
    a(f"s_lshl_b32 s{T0}, s{S_RB}, 1")
    a(f"s_lshr_b32 s{T1}, s{S_W}, 1")
    a(f"s_add_u32 s{T0}, s{T0}, s{T1}")
    S_HB, S_OB = 62, 63
    a(f"s_mul_i32 s{T1}, s{T0}, {108*1024}")
    a(f"s_add_u32 s{S_HB}, s{T1}, {WS_H}")
    a(f"s_mul_i32 s{T1}, s{T0}, {40*1024}")
    a(f"s_add_u32 s{S_OB}, s{T1}, {WS_O}")
    def ld_t(s):
        if s < HS: sb, k = S_HB, s
        else: sb, k = S_OB, s - HS
        if k % 2 == 0 and k > 0:
            a(f"s_add_u32 s{sb}, s{sb}, 4096")
        a(f"buffer_load_dwordx4 {vr(TR+4*(s % NT),4)}, v{VB}, s[{SRD_WS}:{SRD_WS+3}], s{sb} offen offset:{(k % 2)*2048} sc1", tag=('T', s))
    for s in range(TD): ld_t(s)
    a(f"s_lshl_b32 s{T0}, s{S_RB}, 6")
    a(f"s_lshl_b32 s{T1}, s{S_W}, 4")
    a(f"s_add_u32 s{T0}, s{T0}, s{T1}")
    a(f"v_add_u32 v{t2}, s{T0}, v{t2}")
    a(f"v_lshlrev_b32 v{t3}, 2, v{t2}")
    a(f"v_add_u32 v{t3}, {WS_G}, v{t3}")
    a(f"buffer_load_dword v{VG}, v{t3}, s[{SRD_WS}:{SRD_WS+3}], 0 offen sc1", tag='g')
    a(f"s_movk_i32 s{T1}, 1280")
    a(f"v_mul_lo_u32 v{t2}, v{t2}, s{T1}")
    a(f"s_mul_i32 s{T0}, s{S_CJ}, 160")
    a(f"v_lshl_add_u32 v{t2}, v{t0}, 3, v{t2}")
    a(f"v_add_u32 v{VO}, s{T0}, v{t2}")
    a(f"v_lshrrev_b32 v{t1}, 5, v1")
    a(f"v_bfe_u32 v{t2}, v1, 4, 1")
    a(f"v_lshlrev_b32 v{t1}, 4, v{t1}")
    a(f"v_lshl_add_u32 v{t1}, v{t2}, 2, v{t1}")
    a(f"v_bfe_u32 v{t2}, v1, 2, 2")
    a(f"v_add_u32 v{t1}, v{t1}, v{t2}")
    a(f"v_mul_u32_u24 v{t1}, 160, v{t1}")
    a(f"v_and_b32 v{t2}, 3, v1")
    a(f"v_lshl_add_u32 v{VA}, v{t2}, 3, v{t1}")
    VA2 = 5
    a(f"v_add_u32 v{VA2}, {4*PAIR}, v{VA}")
    a.wait_vm('bias')
    for F in range(5):
        s_ = AS[0] + 2*F; d = ACB + 4*F
        a(f"v_lshlrev_b32 v{d}, 16, v{s_}")
        a(f"v_and_b32 v{d+1}, 0xffff0000, v{s_}")
        a(f"v_lshlrev_b32 v{d+2}, 16, v{s_+1}")
        a(f"v_and_b32 v{d+3}, 0xffff0000, v{s_+1}")
    def rd_a(s, F, rd):
        p = s >> 1; u = s & 1
        sl = p % NSL
        base, off = (VA, sl*PAIR) if sl < 4 else (VA2, (sl-4)*PAIR)
        a(f"ds_read_b64_tr_b16 {vr(AS[s % 3]+4*F+2*rd,2)}, v{base} offset:{off + u*5120 + rd*1280 + F*32}", tag=('A', s, F))
    a.wait_vm(('W', 0))
    a("s_barrier")
    for s in range(2):
        for F in range(5):
            rd_a(s, F, 0); rd_a(s, F, 1)
    mark(a)
    POLL = HS - TD - 6
    for s in range(NSTEP):
        p = s >> 1; u = s & 1
        if s == HS: mark(a)
        if u == 0 and p + 1 < NP:
            a.wait_vm(('W', p + 1))
            a("s_barrier")
            if p + NSL - 1 < NP: dma_w(p + NSL - 1)
        if OPT['mega'] and s == POLL:
            a(f"buffer_load_dword v{VF+1}, v{VF}, s[{SRD_WS}:{SRD_WS+3}], 0 offen sc1", tag='fo')
        if OPT['mega'] and s + TD == HS:
            L = uid("fo")
            a.wait_vm('fo')
            vm_keep = list(a.vm)
            a.label(L)
            a(f"v_cmp_ne_u32 vcc, s{S_NONCE}, v{VF+1}")
            a("s_nop 4")
            a(f"s_cbranch_vccz {L}_ok")
            a("s_sleep 1")
            a(f"buffer_load_dword v{VF+1}, v{VF}, s[{SRD_WS}:{SRD_WS+3}], 0 offen sc1")
            a("s_waitcnt vmcnt(0)")
            a(f"s_branch {L}")
            a.label(f"{L}_ok")
            a.vm = vm_keep
        a.wait_vm(('T', s))
        for F in range(5):
            a.wait_lg(('A', s, F))
            acc = (ACB if s < HS else ACA) + 4*F
            d = vr(acc, 4)
            c = "0" if s == HS else d
            a(f"v_mfma_f32_16x16x32_bf16 {d}, {vr(AS[s % 3]+4*F,4)}, {vr(TR+4*(s % NT),4)}, {c}")
            if s + 2 < NSTEP:
                rd_a(s + 2, F, 0); rd_a(s + 2, F, 1)
            if F == 2 and s + TD < NSTEP:
                ld_t(s + TD)
    mark(a)
    a.wait_vm('g')
    a(f"v_sub_f32 v{t0}, 1.0, v{VG}")
    for r in range(20):
        a(f"v_mul_f32 v{ACB+r}, v{ACB+r}, v{t0}")
    for r in range(20):
        a(f"v_fmac_f32 v{ACB+r}, v{ACA+r}, v{VG}")
    for F in range(5):
        d = AS[0] + 2*F
        a(f"v_cvt_pk_bf16_f32 v{d}, v{ACB+4*F}, v{ACB+4*F+1}")
        a(f"v_cvt_pk_bf16_f32 v{d+1}, v{ACB+4*F+2}, v{ACB+4*F+3}")
        a(f"buffer_store_dwordx2 {vr(d,2)}, v{VO}, s[{SRD_B}:{SRD_B+3}], 0 offen offset:{32*F}")
    a.reset_counters()

def tlb_touch(a):
    a("v_lshlrev_b32 v250, 21, v1")
    a(f"v_add_u32 v250, {0x1FFF80}, v250")
    a(f"v_mov_b32 v251, 0x7ffffff0")
    a(f"v_cmp_gt_u32 s[{T4}:{T4+1}], 12, v1")
    a(f"v_cndmask_b32 v250, v251, v250, s[{T4}:{T4+1}]")
    a(f"buffer_load_dword v253, v250, s[{SRD_WS}:{SRD_WS+3}], 0 offen", tag='touch')
    a("v_and_b32 v250, 1, v1")
    a("v_lshlrev_b32 v250, 21, v250")
    for p in (P_OUT, P_W1, P_W2):
        a(f"global_load_dword v253, v250, s[{p}:{p+1}]", tag='touch')
    a("v_mov_b32 v250, 0")
    for p in (P_WO, P_B1, P_B2):
        a(f"global_load_dword v253, v250, s[{p}:{p+1}]", tag='touch')

def start_prefetch(a, role):
    if OPT.get('tlbt'): tlb_touch(a)
    if OPT['pf_code']:
        prefetch_code(a, "L_endA" if role == 'A' else "L_endB", 1 if role == 'A' else 2)
    if role == 'B' and OPT['pf_w1']:
        L = uid("pw")
        a(f"s_lshr_b32 s{T1}, s{S_I}, 2")
        a(f"s_cmp_ge_u32 s{T1}, 7")
        a(f"s_cbranch_scc1 {L}")
        a(f"s_and_b32 s{T0}, s{S_X}, 1")
        a(f"s_mul_i32 s{T0}, s{T0}, 7")
        a(f"s_add_u32 s{T0}, s{T0}, s{T1}")
        a(f"s_lshl_b32 s{T0}, s{T0}, 8")
        a(f"s_and_b32 s{T1}, s{S_I}, 3")
        a(f"s_mul_i32 s{T1}, s{T1}, {160*3456}")
        a(f"s_add_u32 s{T0}, s{T0}, s{T1}")
        srd(a, SRD_C, P_W1, SIZES['W1'])
        a("v_lshrrev_b32 v250, 1, v0")
        a(f"s_movk_i32 s{T1}, 3456")
        a(f"v_mul_lo_u32 v250, v250, s{T1}")
        a("v_and_b32 v251, 1, v0")
        a("v_lshl_add_u32 v250, v251, 7, v250")
        a(f"v_add_u32 v250, s{T0}, v250")
        vm = list(a.vm)
        a(f"buffer_load_dword v253, v250, s[{SRD_C}:{SRD_C+3}], 0 offen")
        a(f"v_add_u32 v250, {128*3456}, v250")
        a("v_mov_b32 v251, 0x7ffffff0")
        a(f"v_cmp_gt_u32 s[{T4}:{T4+1}], 64, v0")
        a(f"v_cndmask_b32 v250, v251, v250, s[{T4}:{T4+1}]")
        a(f"buffer_load_dword v253, v250, s[{SRD_C}:{SRD_C+3}], 0 offen")
        a.vm = vm
        a.label(L)

def build_multi():
    LDS = 81920
    ks = []
    def mk(name, fa, fb):
        a = Asm()
        a("s_cmp_ge_u32 s2, 512")
        a(f"s_cbranch_scc1 {name}_end")
        prologue(a)
        kidx = len(ks)
        stamp(a, kidx, 0)
        CTX['k'] = kidx; CTX['slot'] = 0
        a("s_cmp_ge_u32 s2, 256")
        a(f"s_cbranch_scc1 {name}_b")
        for n, f in enumerate(fa):
            f(a, name + "_" + f.__name__)
            if STAMPS: a("s_waitcnt vmcnt(0)"); mark(a)
        a(f"s_branch {name}_end")
        a.label(f"{name}_b")
        a.reset_counters()
        CTX['slot'] = 0
        for n, f in enumerate(fb):
            f(a, name + "_" + f.__name__)
            if STAMPS: a("s_waitcnt vmcnt(0)"); mark(a)
        a.label(f"{name}_end")
        ks.append((name, a.text()))
    def rp_multi(a, lbl):
        a(f"s_cmp_ge_u32 s{S_IDX}, {NRP}")
        a(f"s_cbranch_scc1 {lbl}_no")
        a(f"s_mov_b32 s{S_KO}, s{S_IDX}")
        stage_repack(a, lbl, S_KO)
        a.label(f"{lbl}_no")
    if OPT.get('split'):
        mk("k1_kernel", [stage_qkv], [])
        mk("k2_kernel", [], [stage_ln, rp_multi])
        mk("k3_kernel", [stage_attn], [])
        mk("k4_kernel", [], [stage_ffn1])
        mk("k5_kernel", [], [stage_final])
        return ks, LDS
    mk("k1_kernel", [stage_qkv], [stage_ln, rp_multi])
    mk("k2_kernel", [stage_attn], [stage_ffn1])
    mk("k3_kernel", [], [stage_final])
    return ks, LDS

def build_mega():
    OPT['mega'] = True
    LDS = OPT.get('lds', 81920)
    name = NAME + "_kernel"
    a = Asm()
    a("s_cmp_ge_u32 s2, 512")
    a("s_cbranch_scc1 L_end")
    prologue(a)
    nonce_post(a)
    if OPT.get('spin'):
        a("s_memrealtime s[94:95]")
        a("s_waitcnt lgkmcnt(0)")
        a("s_mov_b32 s63, s94") if False else None
        a("v_mov_b32 v249, s94")
    stamp(a, 0, 0); CTX['k'] = 0; CTX['slot'] = 0
    if STAMPS:
        a("s_getreg_b32 s98, hwreg(HW_REG_HW_ID)")
        a("s_getreg_b32 s99, hwreg(HW_REG_XCC_ID)")
        a("s_and_b32 s98, s98, 0xffff")
        a("s_and_b32 s99, s99, 0xf")
        a("s_lshl_b32 s99, s99, 16")
        a("s_or_b32 s98, s98, s99")
        a("s_lshl_b32 s97, s2, 7")
        a(f"s_add_u32 s97, s97, {WS_STAMP + 15*4}")
        a("v_mov_b32 v254, s98")
        a(f"buffer_store_dword v254, off, s[{SRD_WS}:{SRD_WS+3}], s97")
        a.vm.pop()
    dbgtime(a, 1, OPT.get('wa', 0)); dbgtime(a, 7, OPT.get('wb', 256))
    a("s_cmp_ge_u32 s2, 256")
    a("s_cbranch_scc1 L_roleB")
    if OPT.get('prioA'): a(f"s_setprio {OPT['prioA']}")
    stage_qkv(a, "qkv"); mark(a); dbgtime(a, 2, OPT.get('wa', 0))
    if OPT.get('prioA'): a(f"s_setprio {OPT.get('prioA2', 0)}")
    stage_attn(a, "attn"); mark(a); dbgtime(a, 3, OPT.get('wa', 0))
    a("s_endpgm")
    a.label("L_endA")
    a.label("L_roleB")
    a.reset_counters(); CTX['slot'] = 0
    if OPT.get('prioB'): a(f"s_setprio {OPT['prioB']}")
    stage_ln(a, "ln"); mark(a); dbgtime(a, 8, OPT.get('wb', 256))
    stage_ffn1(a, "ffn1"); mark(a); dbgtime(a, 10, OPT.get('wb', 256))
    stage_final(a, "fin")
    if STAMPS or OPT.get('dbgtime'): a("s_waitcnt vmcnt(0)")
    mark(a); dbgtime(a, 11, OPT.get('wb', 256))
    if OPT.get('spin'):
        a("s_cmp_lg_u32 s2, 256")
        a("s_cbranch_scc1 L_endB")
        a("s_waitcnt vmcnt(0)")
        a("v_readfirstlane_b32 s90, v249")
        a("s_memrealtime s[92:93]")
        a("s_waitcnt lgkmcnt(0)")
        a("s_sub_u32 s91, s92, s90")
        a(f"s_mul_i32 s91, s91, {OPT['spin'] + 1}")
        a.label("L_spin")
        a("s_memrealtime s[92:93]")
        a("s_waitcnt lgkmcnt(0)")
        a("s_sub_u32 s93, s92, s90")
        a("s_cmp_lt_u32 s93, s91")
        a("s_cbranch_scc1 L_spin")
    a.label("L_endB")
    a.label("L_end")
    return [(name, a.text())], LDS

def header_comment():
    ref = open("cdna_kernels/" + NAME + ".s.ref").read().split("\n")
    return [l for l in ref if l.startswith(";") and "@launch" not in l and "Override" not in l and "grid=ceil" not in l]

def emit(ks, LDS, grid=512):
    s = "\n".join(header_comment()) + "\n"
    if len(ks) == 1:
        s += f"; @launch grid=({grid},1,1) block=(256,1,1) lds={LDS}\n"
    else:
        for name, _ in ks:
            s += f"; @launch kernel={name} grid=({grid},1,1) block=(256,1,1) lds={LDS}\n"
    s += '.amdgcn_target "amdgcn-amd-amdhsa--gfx950"\n.text\n'
    for name, body in ks:
        s += kernel_text(name, body, grid, LDS)
    s += '.section .rodata,"a"\n'
    for name, _ in ks:
        s += ".p2align 6\n" + descriptor(name)
    return s

if __name__ == "__main__":
    mode = sys.argv[1] if len(sys.argv) > 1 else "multi"
    if "stamps" in sys.argv: STAMPS = True
    for arg in sys.argv[2:]:
        if "=" in arg:
            k, v = arg.split("="); OPT[k] = int(v)
    ks, LDS = build_multi() if mode == "multi" else build_mega()
    sys.stdout.write(emit(ks, LDS))
```

```python
import sys
import gen as G
from gen import mark4
from gen import (Asm, NAME, SIZES, srd, vr, uid, OPT, mark, stamp, CTX, dpp_sum16, WF_TILE,
                 P_AX, P_WQKV, P_WO, P_W1, P_B1, P_W2, P_B2, P_GW, P_OUT, P_DBG, P_WS,
                 SRD_A, SRD_B, SRD_WS, SRD_C, S_W, S_IDX, S_X, S_I, T0, T1, T2, T3, T4, T5, T6, T7,
                 S_RB, S_CJ, S_MASK, S_NONCE, nonce_post, nonce_get, publish, wait_flags)

WS_ST   = 0x0000000
WS_CS   = 0x0010000
WS_B1   = 0x0012000
WS_G    = G.WS_G
WS_QKV  = G.WS_QKV
WS_H, WS_O, WS_WF, WS_FLAG = G.WS_H, G.WS_O, G.WS_WF, G.WS_FLAG
FS, FW, FQ, FH, FO, FC = 0, 2048, 3072, 5120, 7168, 9216
PST = 3104
LB = 98304
LK, LV, LONES = LB, LB + 10*PST, LB + 20*PST
RING = [0, 40960, 81920, 122880]
WSLOT = 40960
SRD_D = 60
S_KX, S_KQ, S_K1 = 58, 59, 80
S_QB = 61
S_FHO, S_HBO = 86, 87
S_ARB, S_AHP, S_LW = 88, 89, 90

V_FLG = 250
def flag_setup(a):
    a(f"v_mov_b32 v{V_FLG}, 0x7ffffff0")
    a(f"v_cmp_eq_u32 s[{T4}:{T4+1}], 0, v0")
    a(f"v_cndmask_b32 v{V_FLG}, v{V_FLG}, 0, s[{T4}:{T4+1}]")

def flag_store(a, sflag, v):
    a(f"v_mov_b32 v{v}, s{S_NONCE}")
    a(f"buffer_store_dword v{v}, v{V_FLG}, s[{SRD_WS}:{SRD_WS+3}], s{sflag} offen sc1", tag='flag')

def poll_issue(a, voff, vval, tag):
    a(f"buffer_load_dword v{vval}, v{voff}, s[{SRD_WS}:{SRD_WS+3}], 0 offen sc1", tag=tag)

def poll_check(a, voff, vval, tag):
    L = uid("pc")
    a.wait_vm(tag)
    keep = list(a.vm)
    a.label(L)
    a(f"v_cmp_ne_u32 vcc, s{S_NONCE}, v{vval}")
    a("s_nop 4")
    a(f"s_cbranch_vccz {L}_ok")
    a("s_sleep 1")
    a(f"buffer_load_dword v{vval}, v{voff}, s[{SRD_WS}:{SRD_WS+3}], 0 offen sc1")
    a("s_waitcnt vmcnt(0)")
    a(f"s_branch {L}")
    a.label(f"{L}_ok")
    a.vm = keep

def poll_recheck(a, voff, vval):
    L = uid("pr")
    keep = list(a.vm)
    a.label(L)
    a(f"v_cmp_ne_u32 vcc, s{S_NONCE}, v{vval}")
    a("s_nop 4")
    a(f"s_cbranch_vccz {L}_ok")
    a("s_sleep 1")
    a(f"buffer_load_dword v{vval}, v{voff}, s[{SRD_WS}:{SRD_WS+3}], 0 offen sc1")
    a("s_waitcnt vmcnt(0)")
    a(f"s_branch {L}")
    a.label(f"{L}_ok")
    a.vm = keep

def prologue_ids(a):
    a("s_load_dwordx16 s[4:19], s[0:1], 0")
    a("s_load_dwordx8 s[20:27], s[0:1], 64")
    a("v_lshrrev_b32 v2, 6, v0")
    a("v_and_b32 v1, 63, v0")
    a(f"v_readfirstlane_b32 s{S_W}, v2")
    a(f"s_and_b32 s{S_X}, s2, 7")
    a(f"s_lshr_b32 s{S_I}, s2, 3")
    a(f"s_lshr_b32 s{T0}, s{S_X}, 2")
    a(f"s_lshl_b32 s{T0}, s{T0}, 3")
    a(f"s_and_b32 s{T1}, s{S_I}, 7")
    a(f"s_add_u32 s{S_RB}, s{T0}, s{T1}")
    a(f"s_and_b32 s{T0}, s{S_X}, 3")
    a(f"s_lshl_b32 s{T0}, s{T0}, 2")
    a(f"s_lshr_b32 s{T1}, s{S_I}, 3")
    a(f"s_add_u32 s{S_CJ}, s{T0}, s{T1}")

def prologue_rest(a):
    srd(a, SRD_WS, P_WS, G.WS_SIZE)
    flag_setup(a)
    nonce_post(a)
    if OPT.get('cpf', 1): code_prefetch(a)
    stamp(a, 0, 0)
    if G.STAMPS:
        a("s_lshl_b32 s97, s2, 7")
        a(f"s_add_u32 s97, s97, {G.WS_STAMP + 15*4}")
        a("v_mov_b32 v254, s94")
        a(f"buffer_store_dword v254, off, s[{SRD_WS}:{SRD_WS+3}], s97")
        a.vm.pop()

RX, RG, RT, RO = 160, 168, 176, 186
VS = 128
S_ST, S_RPO, S_RPM = 82, 83, 84

def pre_address(a, lbl, two=False, rows=True):
    t0, t1, t2, t3, t4, t5 = range(RT, RT+6)
    if rows: row_address(a, two)
    repack_address(a, lbl)

def row_address(a, two):
    t0, t1, t2, t3, t4, t5 = range(RT, RT+6)
    srd(a, SRD_D, P_GW, SIZES['GW'])
    a(f"s_lshl_b32 s{T0}, s{S_RB}, 7")
    a(f"s_lshl_b32 s{T1}, s{S_CJ}, 3")
    a(f"s_add_u32 s{T0}, s{T0}, s{T1}")
    a(f"s_add_u32 s{T0}, s{T0}, s{S_W}")
    if two: a(f"s_sub_u32 s{T0}, s{T0}, 4")
    a(f"s_mul_i32 s{T1}, s{T0}, 1280")
    a(f"v_lshlrev_b32 v{RO+1}, 4, v1")
    a(f"v_add_u32 v{RO}, s{T1}, v{RO+1}")
    a(f"v_mov_b32 v{t0}, 0x7ffffff0")
    a(f"v_cmp_gt_u32 s[{T4}:{T4+1}], 16, v1")
    a(f"v_add_u32 v{t1}, 1024, v{RO}")
    a(f"v_cndmask_b32 v{RO+2}, v{t0}, v{t1}, s[{T4}:{T4+1}]")
    a(f"v_add_u32 v{t1}, 1024, v{RO+1}")
    a(f"v_cndmask_b32 v{RO+3}, v{t0}, v{t1}, s[{T4}:{T4+1}]")
    a(f"s_mov_b32 s85, s{T0}")

def repack_address(a, lbl):
    t0, t1, t2, t3, t4, t5 = range(RT, RT+6)
    a(f"s_mul_i32 s{T0}, s{S_I}, 3")
    a(f"s_lshl_b32 s{T1}, s{S_I}, 1")
    a(f"s_add_u32 s{T1}, s{T1}, 10")
    a(f"s_cmp_lt_u32 s{S_I}, 10")
    a(f"s_cselect_b32 s{T0}, s{T0}, s{T1}")
    a(f"s_cselect_b32 s{T1}, 3, 2")
    a(f"s_sub_u32 s{T2}, s{S_W}, 4")
    a(f"s_add_u32 s{S_ST}, s{T0}, s{T2}")
    a(f"s_cmp_lt_u32 s{T2}, s{T1}")
    a(f"s_cselect_b32 s{S_ST}, s{S_ST}, 0x100")
    a(f"s_cselect_b32 s{S_RPO}, 0, 0x7fff0000")
    a(f"s_mul_i32 s{T2}, s{T2}, 5120")
    a(f"s_add_u32 s{T2}, s{T2}, {RPL}")
    a(f"s_cselect_b32 s{S_RPM}, s{T2}, s{T2}") if False else None
    a(f"s_cmp_lt_u32 s{S_ST}, 74")
    a(f"s_cselect_b32 s{S_RPM}, s{T2}, {163840}")
    for n in range(5): a(f"v_mov_b32 v{VS+n}, 0")
    srd(a, SRD_C, P_W2, SIZES['W2'])
    a(f"s_cmp_ge_u32 s{S_ST}, 74")
    a(f"s_cbranch_scc1 {lbl}_go")
    a(f"s_movk_i32 s{T6}, 6554")
    a(f"s_movk_i32 s{T7}, 1280")
    a(f"s_mul_i32 s{T2}, s{S_X}, 160")
    a(f"s_cmp_ge_u32 s{S_ST}, 54")
    a(f"s_cbranch_scc1 {lbl}_wo")
    a(f"s_lshl_b32 s{T3}, s{S_ST}, 5")
    for n in range(5):
        a(f"v_add_u32 v{t0}, {64*n}, v1")
        a(f"v_mul_u32_u24 v{t1}, s{T6}, v{t0}")
        a(f"v_lshrrev_b32 v{t1}, 16, v{t1}")
        a(f"v_mul_u32_u24 v{t2}, 10, v{t1}")
        a(f"v_sub_u32 v{t2}, v{t0}, v{t2}")
        a(f"v_add_u32 v{t1}, s{T3}, v{t1}")
        a(f"v_mul_lo_u32 v{t1}, v{t1}, s{T7}")
        a(f"v_lshl_add_u32 v{t1}, v{t2}, 4, v{t1}")
        a(f"v_add_u32 v{VS+n}, s{T2}, v{t1}")
    a(f"s_branch {lbl}_go")
    a.label(f"{lbl}_wo")
    srd(a, SRD_C, P_WO, SIZES['WO'])
    a(f"s_sub_u32 s{T3}, s{S_ST}, 54")
    a(f"s_lshl_b32 s{T3}, s{T3}, 1")
    for n in range(5):
        a(f"v_add_u32 v{t0}, {64*n}, v1")
        a(f"v_mul_u32_u24 v{t1}, s{T6}, v{t0}")
        a(f"v_lshrrev_b32 v{t1}, 16, v{t1}")
        a(f"v_mul_u32_u24 v{t2}, 10, v{t1}")
        a(f"v_sub_u32 v{t2}, v{t0}, v{t2}")
        a(f"v_lshrrev_b32 v{t3}, 4, v{t1}")
        a(f"v_add_u32 v{t3}, s{T3}, v{t3}")
        a(f"v_and_b32 v{t1}, 15, v{t1}")
        a(f"v_mul_u32_u24 v{t4}, 20, v{t3}")
        a(f"v_add_u32 v{t4}, v{t4}, v{t1}")
        a(f"v_cmp_gt_u32 s[98:99], 32, v{t3}")
        a(f"v_subrev_u32 v{t3}, 32, v{t3}")
        a(f"v_lshlrev_b32 v{t3}, 2, v{t3}")
        a(f"v_bfe_u32 v{t5}, v{t1}, 2, 1")
        a(f"v_lshl_add_u32 v{t3}, v{t5}, 1, v{t3}")
        a(f"v_lshrrev_b32 v{t5}, 3, v{t1}")
        a(f"v_add_u32 v{t3}, v{t3}, v{t5}")
        a(f"v_mul_u32_u24 v{t3}, 20, v{t3}")
        a(f"v_and_b32 v{t1}, 3, v{t1}")
        a(f"v_add3_u32 v{t3}, v{t3}, v{t1}, 16")
        a(f"v_cndmask_b32 v{t1}, v{t3}, v{t4}, s[98:99]")
        a(f"v_mul_lo_u32 v{t1}, v{t1}, s{T7}")
        a(f"v_lshl_add_u32 v{t1}, v{t2}, 4, v{t1}")
        a(f"v_add_u32 v{VS+n}, s{T2}, v{t1}")
    a.label(f"{lbl}_go")

def row_issue2(a):
    a(f"v_add_u32 v{RO}, {4*1280}, v{RO}")
    a(f"v_mov_b32 v{RT}, 0x7ffffff0")
    a(f"v_add_u32 v{RT+1}, 1024, v{RO}")
    a(f"v_cmp_gt_u32 s[100:101], 16, v1")
    a(f"v_cndmask_b32 v{RO+2}, v{RT}, v{RT+1}, s[100:101]")
    a(f"buffer_load_dwordx4 {vr(RX2,4)}, v{RO}, s[{SRD_A}:{SRD_A+3}], 0 offen", tag='pl2')
    a(f"buffer_load_dwordx4 {vr(RX2+4,4)}, v{RO+2}, s[{SRD_A}:{SRD_A+3}], 0 offen", tag='pl2')

RX2 = 192
def pre_issue(a, rows=True):
    if rows:
        a(f"buffer_load_dwordx4 {vr(RX,4)}, v{RO}, s[{SRD_A}:{SRD_A+3}], 0 offen", tag='pl')
        a(f"buffer_load_dwordx4 {vr(RX+4,4)}, v{RO+2}, s[{SRD_A}:{SRD_A+3}], 0 offen", tag='pl')
        a(f"buffer_load_dwordx4 {vr(RG,4)}, v{RO+1}, s[{SRD_D}:{SRD_D+3}], 0 offen", tag='pl')
        a(f"buffer_load_dwordx4 {vr(RG+4,4)}, v{RO+3}, s[{SRD_D}:{SRD_D+3}], 0 offen", tag='pl')
    for n in range(5):
        a(f"s_add_u32 m0, s{S_RPM}, {n*1024}")
        a(f"buffer_load_dwordx4 v{VS+n}, s[{SRD_C}:{SRD_C+3}], s{S_RPO} offen lds", tag='pl')

def pre_thunks(a, RX=RX, tag='pl', VO=RO):
    su, sq, dt, one, t0, t1, t2 = range(RT, RT+7)
    T = []
    I = lambda txt: T.append(lambda: a(txt))
    T.append(lambda: a.wait_vm(tag))
    I(f"v_mov_b32 v{one}, 0x3f803f80")
    I(f"v_mov_b32 v{su}, 0"); I(f"v_mov_b32 v{sq}, 0"); I(f"v_mov_b32 v{dt}, 0")
    for d in range(8):
        I(f"v_dot2c_f32_bf16 v{su}, v{RX+d}, v{one}")
        I(f"v_dot2c_f32_bf16 v{sq}, v{RX+d}, v{RX+d}")
        I(f"v_dot2c_f32_bf16 v{dt}, v{RX+d}, v{RG+d}")
    for r in (8, 4, 2, 1):
        for v in (su, sq, dt):
            I(f"v_add_f32_dpp v{v}, v{v}, v{v} row_ror:{r} row_mask:0xf bank_mask:0xf")
    for op in ("v_permlane16_swap_b32", "v_permlane32_swap_b32"):
        for v, t in ((su, t0), (sq, t1), (dt, t2)): I(f"v_mov_b32 v{t}, v{v}")
        for v, t in ((su, t0), (sq, t1), (dt, t2)): I(f"{op} v{v}, v{t}")
        for v, t in ((su, t0), (sq, t1), (dt, t2)): I(f"v_add_f32 v{v}, v{v}, v{t}")
    I(f"v_mul_f32 v{su}, 0x3acccccd, v{su}")
    I(f"v_mul_f32 v{sq}, 0x3acccccd, v{sq}")
    I(f"v_mul_f32 v{dt}, 0xbfb8aa3b, v{dt}")
    I(f"v_fma_f32 v{sq}, -v{su}, v{su}, v{sq}")
    I(f"v_exp_f32 v{dt}, v{dt}")
    I(f"v_add_f32 v{sq}, 0x3727c5ac, v{sq}")
    I(f"v_add_f32 v{dt}, 1.0, v{dt}")
    I(f"v_rsq_f32 v{t1}, v{sq}")
    I(f"v_rcp_f32 v{dt}, v{dt}")
    I(f"v_mul_f32 v{t0}, v{su}, v{t1}")
    I(f"v_sub_f32 v{t0}, 0, v{t0}")
    I(f"v_mov_b32 v{VO}, 0x7ffffff0")
    I(f"v_cmp_eq_u32 s[100:101], 0, v1")
    I(f"v_cndmask_b32 v{VO}, v{VO}, 0, s[100:101]")
    I(f"s_lshl_b32 s98, s85, 3")
    I(f"s_add_u32 s98, s98, {WS_ST}")
    T.append(lambda: a(f"buffer_store_dwordx2 {vr(t0,2)}, v{VO}, s[{SRD_WS}:{SRD_WS+3}], s98 offen sc1", tag='pst'))
    I(f"s_lshl_b32 s98, s85, 2")
    I(f"s_add_u32 s98, s98, {WS_G}")
    T.append(lambda: a(f"buffer_store_dword v{dt}, v{VO}, s[{SRD_WS}:{SRD_WS+3}], s98 offen sc1", tag='pst'))
    return T

def rowstats_issue(a):
    XB, GW, o0, o1, t0 = 128, 108, 96, 97, 98
    srd(a, SRD_D, P_GW, SIZES['GW'])
    a(f"s_lshl_b32 s{T0}, s{S_RB}, 7")
    a(f"s_lshl_b32 s{T1}, s{S_W}, 4")
    a(f"s_add_u32 s85, s{T0}, s{T1}")
    a(f"v_lshrrev_b32 v{t0}, 4, v1")
    a(f"v_add_u32 v{t0}, s85, v{t0}")
    a(f"s_movk_i32 s{T1}, 1280")
    a(f"v_mul_lo_u32 v{o0}, v{t0}, s{T1}")
    a(f"v_and_b32 v{o1}, 15, v1")
    a(f"v_lshlrev_b32 v{o1}, 4, v{o1}")
    a(f"v_add_u32 v{o0}, v{o0}, v{o1}")
    for i in range(5):
        a(f"buffer_load_dwordx4 {vr(GW+4*i,4)}, v{o1}, s[{SRD_D}:{SRD_D+3}], 0 offen offset:{256*i}", tag='gw')
    for q in range(4):
        a(f"s_movk_i32 s{T2}, {q*4*1280}")
        for i in range(5):
            a(f"buffer_load_dwordx4 {vr(XB+20*q+4*i,4)}, v{o0}, s[{SRD_A}:{SRD_A+3}], s{T2} offen offset:{256*i}", tag=('x', q))

def rowstats_compute(a):
    XB, GW = 128, 108
    su, sq, dt, one, t0, t1, t2 = 98, 99, 100, 101, 102, 103, 104
    NMv, RSv, GV = 106, 107, 105
    a(f"v_mov_b32 v{one}, 0x3f803f80")
    a(f"v_and_b32 v{t2}, 15, v1")
    for q in range(4):
        a.wait_vm(('x', q))
        a(f"v_mov_b32 v{su}, 0"); a(f"v_mov_b32 v{sq}, 0"); a(f"v_mov_b32 v{dt}, 0")
        for d in range(20):
            x = XB + 20*q + d
            a(f"v_dot2c_f32_bf16 v{su}, v{x}, v{one}")
            a(f"v_dot2c_f32_bf16 v{sq}, v{x}, v{x}")
            a(f"v_dot2c_f32_bf16 v{dt}, v{x}, v{GW+d}")
        for k in (8, 4, 2, 1):
            for v in (su, sq, dt):
                a(f"v_add_f32_dpp v{v}, v{v}, v{v} row_ror:{k} row_mask:0xf bank_mask:0xf")
        a(f"v_mul_f32 v{su}, 0x3acccccd, v{su}")
        a(f"v_mul_f32 v{sq}, 0x3acccccd, v{sq}")
        a(f"v_mul_f32 v{dt}, 0xbfb8aa3b, v{dt}")
        a(f"v_fma_f32 v{sq}, -v{su}, v{su}, v{sq}")
        a(f"v_exp_f32 v{dt}, v{dt}")
        a(f"v_add_f32 v{sq}, 0x3727c5ac, v{sq}")
        a(f"v_add_f32 v{dt}, 1.0, v{dt}")
        a(f"v_rsq_f32 v{t1}, v{sq}")
        a(f"v_rcp_f32 v{dt}, v{dt}")
        a(f"v_mul_f32 v{t0}, v{su}, v{t1}")
        a(f"v_sub_f32 v{t0}, 0, v{t0}")
        a(f"v_cmp_eq_u32 s[{T4}:{T4+1}], {q}, v{t2}")
        a(f"v_cndmask_b32 v{NMv}, v{NMv}, v{t0}, s[{T4}:{T4+1}]")
        a(f"v_cndmask_b32 v{RSv}, v{RSv}, v{t1}, s[{T4}:{T4+1}]")
        a(f"v_cndmask_b32 v{GV}, v{GV}, v{dt}, s[{T4}:{T4+1}]")
    a(f"v_lshrrev_b32 v{t0}, 4, v1")
    a(f"v_lshl_add_u32 v{t0}, v{t2}, 2, v{t0}")
    a(f"v_add_u32 v{t0}, s85, v{t0}")
    a(f"v_mov_b32 v{su}, 0x7ffffff0")
    a(f"v_cmp_gt_u32 s[{T4}:{T4+1}], 4, v{t2}")
    a(f"v_lshlrev_b32 v{t1}, 3, v{t0}")
    a(f"v_cndmask_b32 v{t1}, v{su}, v{t1}, s[{T4}:{T4+1}]")
    a(f"v_lshlrev_b32 v{t0}, 2, v{t0}")
    a(f"v_cndmask_b32 v{t0}, v{su}, v{t0}, s[{T4}:{T4+1}]")
    a(f"s_mov_b32 s{T0}, {WS_ST}")
    a(f"buffer_store_dwordx2 {vr(NMv,2)}, v{t1}, s[{SRD_WS}:{SRD_WS+3}], s{T0} offen sc1", tag='pst')
    a(f"s_mov_b32 s{T0}, {WS_G}")
    a(f"buffer_store_dword v{GV}, v{t0}, s[{SRD_WS}:{SRD_WS+3}], s{T0} offen sc1", tag='pst')

RPL = 147456
def repack_finish(a):
    D, VA, VD = 136, 134, 135
    L = uid("rf")
    a(f"v_mov_b32 v{VD}, 0x7ffffff0")
    a(f"s_cmp_ge_u32 s82, 74")
    a(f"s_cbranch_scc1 {L}")
    a(f"s_mul_i32 s{T0}, s{S_X}, {WF_TILE}")
    a(f"s_mul_i32 s{T1}, s82, 5120")
    a(f"s_add_u32 s{T0}, s{T0}, s{T1}")
    a(f"s_add_u32 s{T0}, s{T0}, {WS_WF}")
    a(f"v_lshlrev_b32 v{VD}, 4, v1")
    a(f"v_add_u32 v{VD}, s{T0}, v{VD}")
    a(f"v_lshrrev_b32 v{VA}, 5, v1")
    a(f"v_bfe_u32 v{D}, v1, 4, 1")
    a(f"v_lshlrev_b32 v{VA}, 4, v{VA}")
    a(f"v_lshl_add_u32 v{VA}, v{D}, 2, v{VA}")
    a(f"v_bfe_u32 v{D}, v1, 2, 2")
    a(f"v_add_u32 v{VA}, v{VA}, v{D}")
    a(f"v_mul_u32_u24 v{VA}, 160, v{VA}")
    a(f"v_and_b32 v{D}, 3, v1")
    a(f"v_lshl_add_u32 v{VA}, v{D}, 3, v{VA}")
    a(f"v_add_u32 v{VA}, s{S_RPM}, v{VA}")
    lg = list(a.lg)
    for F in range(5):
        for rd in range(2):
            a(f"ds_read_b64_tr_b16 {vr(D+4*F+2*rd,2)}, v{VA} offset:{rd*1280 + F*32}")
    a("s_waitcnt lgkmcnt(0)")
    a.lg = lg
    a.label(L)
    for F in range(5):
        a(f"s_movk_i32 s{T1}, {F*1024}")
        a(f"buffer_store_dwordx4 {vr(D+4*F,4)}, v{VD}, s[{SRD_WS}:{SRD_WS+3}], s{T1} offen sc1", tag='pst')

def nonce_issue(a, v):
    a(f"v_mov_b32 v{v+1}, 0")
    a(f"global_load_dword v{v}, v{v+1}, s[{P_DBG}:{P_DBG+1}] sc1", tag='nonce')

def nonce_check(a, v):
    L = uid("ng")
    a.wait_vm('nonce')
    keep = list(a.vm)
    a.label(L)
    a(f"v_readfirstlane_b32 s{S_NONCE}, v{v}")
    a(f"s_cmp_lg_u32 s{S_NONCE}, 0")
    a(f"s_cbranch_scc1 {L}_ok")
    a("s_sleep 2")
    a(f"global_load_dword v{v}, v{v+1}, s[{P_DBG}:{P_DBG+1}] sc1")
    a("s_waitcnt vmcnt(0)")
    a(f"s_branch {L}")
    a.label(f"{L}_ok")
    a.vm = keep

def pre_flags(a, v, stats=True):
    if stats:
        a(f"s_lshl_b32 s{T0}, s{S_RB}, 7")
        a(f"s_add_u32 s{T0}, s{T0}, {WS_FLAG + FS}")
        flag_store(a, T0, v)
    a(f"s_lshl_b32 s{T0}, s{S_X}, 7")
    a(f"s_lshl_b32 s{T1}, s{S_I}, 2")
    a(f"s_add_u32 s{T0}, s{T0}, s{T1}")
    a(f"s_add_u32 s{T0}, s{T0}, {WS_FLAG + FW}")
    flag_store(a, T0, v)

CD = 16
def colsum_issue(a):
    srd(a, SRD_B, P_W1, SIZES['W1'])
    srd(a, SRD_C, P_B1, SIZES['B1']) if False else None
    t0, t1, VO = 2, 3, 5
    a(f"v_lshrrev_b32 v{t0}, 4, v0")
    a(f"s_movk_i32 s{T0}, 3456")
    a(f"v_mul_lo_u32 v{t0}, v{t0}, s{T0}")
    a(f"v_and_b32 v{t1}, 15, v0")
    a(f"v_lshl_add_u32 v{t0}, v{t1}, 4, v{t0}")
    a(f"s_lshl_b32 s{T1}, s{S_RB}, 8")
    a(f"v_add_u32 v{VO}, s{T1}, v{t0}")
    a(f"s_cmp_lt_u32 s{S_RB}, 14")
    a(f"s_cselect_b32 s{T3}, 0, 0x7fff0000")
    for p in range(20):
        a(f"s_add_u32 s{T2}, s{T3}, {p*32*3456}")
        a(f"buffer_load_dwordx4 {vr(CD+4*p,4)}, v{VO}, s[{SRD_B}:{SRD_B+3}], s{T2} offen", tag=('cs', p))

def colsum_compute(a, lbl):
    t0, t1, t2 = 2, 3, 4
    ACC, LO, HI = 8, 6, 7
    srd(a, SRD_B, P_B1, SIZES['B1'])
    a(f"s_lshl_b32 s{T1}, s{S_RB}, 8")
    a(f"v_lshlrev_b32 v{t2}, 1, v0")
    a(f"v_add_u32 v{t2}, s{T1}, v{t2}")
    a(f"buffer_load_ushort v{t2}, v{t2}, s[{SRD_B}:{SRD_B+3}], 0 offen", tag='b1')
    a(f"v_mov_b32 v{LO}, 0x00003f80")
    a(f"v_mov_b32 v{HI}, 0x3f800000")
    for e in range(8): a(f"v_mov_b32 v{ACC+e}, 0")
    for p in range(20):
        a.wait_vm(('cs', p))
        for d in range(4):
            a(f"v_dot2c_f32_bf16 v{ACC+2*d}, v{CD+4*p+d}, v{LO}")
            a(f"v_dot2c_f32_bf16 v{ACC+2*d+1}, v{CD+4*p+d}, v{HI}")
    a(f"v_lshrrev_b32 v{t0}, 4, v0")
    a(f"v_lshlrev_b32 v{t0}, 9, v{t0}")
    a(f"v_and_b32 v{t1}, 15, v0")
    a(f"v_lshl_add_u32 v{t0}, v{t1}, 5, v{t0}")
    a(f"ds_write_b128 v{t0}, {vr(ACC,4)}")
    a(f"ds_write_b128 v{t0}, {vr(ACC+4,4)} offset:16")
    a("s_waitcnt lgkmcnt(0)")
    a("s_barrier")
    a(f"v_and_b32 v{t0}, 127, v0")
    a(f"v_lshlrev_b32 v{t0}, 2, v{t0}")
    for g in range(32):
        a(f"ds_read_b32 v{CD+g}, v{t0} offset:{g*512}")
    a("s_waitcnt lgkmcnt(0)")
    for g in range(0, 32, 2): a(f"v_add_f32 v{CD+g}, v{CD+g}, v{CD+g+1}")
    for g in range(2, 32, 2): a(f"v_add_f32 v{CD}, v{CD}, v{CD+g}")
    a.wait_vm('b1')
    a(f"v_lshlrev_b32 v{t2}, 16, v{t2}")
    a(f"s_lshl_b32 s{T1}, s{S_RB}, 9")
    a(f"v_add_u32 v{t0}, s{T1}, v{t0}")
    a(f"v_mov_b32 v{t1}, 0x7ffffff0")
    a(f"v_mov_b32 v{LO}, 128")
    a(f"v_cmp_gt_u32 s[{T4}:{T4+1}], v{LO}, v0")
    a(f"v_cndmask_b32 v{t0}, v{t1}, v{t0}, s[{T4}:{T4+1}]")
    a(f"s_mov_b32 s{T0}, 0x7fff0000")
    a(f"s_cmp_lt_u32 s{S_RB}, 14")
    a(f"s_cselect_b32 s{T2}, {WS_CS}, s{T0}")
    a(f"s_cselect_b32 s{T3}, {WS_B1}, s{T0}")
    a(f"buffer_store_dword v{CD}, v{t0}, s[{SRD_WS}:{SRD_WS+3}], s{T2} offen sc1", tag='pst')
    a(f"buffer_store_dword v{t2}, v{t0}, s[{SRD_WS}:{SRD_WS+3}], s{T3} offen sc1", tag='pst')

S_FRB, S_FCJ = 73, 74
S_WM, S_WG = 75, 76

def final_coords(a):
    a(f"s_lshr_b32 s{T0}, s{S_X}, 1")
    a(f"s_lshl_b32 s{T0}, s{T0}, 3")
    a(f"s_and_b32 s{T1}, s{S_I}, 7")
    a(f"s_add_u32 s{S_FRB}, s{T0}, s{T1}")
    a(f"s_and_b32 s{T0}, s{S_X}, 1")
    a(f"s_lshl_b32 s{T0}, s{T0}, 2")
    a(f"s_lshr_b32 s{T1}, s{S_I}, 3")
    a(f"s_add_u32 s{S_FCJ}, s{T0}, s{T1}")
    a(f"s_mul_i32 s{S_WM}, s{S_W}, 5120")
    a(f"s_mul_i32 s{T0}, s{S_FCJ}, {WF_TILE}")
    a(f"s_add_u32 s{T0}, s{T0}, s{S_WM}")
    a(f"s_add_u32 s{S_WG}, s{T0}, {WS_WF}")

def dma_wf(a, g, vw):
    S_KW = 77
    a(f"s_add_u32 m0, s{S_WM}, {RING[g % 4]}")
    a(f"s_add_u32 s{S_KW}, s{S_WG}, {0 if OPT.get('hotfw') else g*WSLOT}")
    if g == 9:
        a(f"s_cmp_ge_u32 s{S_W}, 2")
        a(f"s_cselect_b32 s{S_KW}, 0x7fff0000, s{S_KW}")
    for n in range(4):
        a(f"buffer_load_dwordx4 v{vw}, s[{SRD_WS}:{SRD_WS+3}], s{S_KW} offen offset:{n*1024} sc1 lds", tag=('W', g))
    a(f"s_add_u32 m0, m0, 4096")
    a(f"s_add_u32 s{S_KW}, s{S_KW}, 4096")
    a(f"buffer_load_dwordx4 v{vw}, s[{SRD_WS}:{SRD_WS+3}], s{S_KW} offen sc1 lds", tag=('W', g))

SL2 = 32768
def attn_coords(a):
    a(f"s_lshl_b32 s{T0}, s{S_X}, 1")
    a(f"s_and_b32 s{T1}, s{S_I}, 1")
    a(f"s_add_u32 s{S_AHP}, s{T0}, s{T1}")
    a(f"s_lshr_b32 s{S_ARB}, s{S_I}, 1")
    a(f"s_lshr_b32 s78, s{S_W}, 2")
    a(f"s_and_b32 s79, s{S_W}, 3")

def fq_poll_offsets(a, vo, vt):
    a(f"v_lshrrev_b32 v{vo}, 4, v1")
    a(f"s_sub_u32 s{T0}, s{S_ARB}, 2")
    a(f"v_add_u32 v{vo}, s{T0}, v{vo}")
    a(f"v_and_b32 v{vt}, 15, v1")
    a(f"v_cmp_le_i32 s[{T4}:{T4+1}], 0, v{vo}")
    a(f"v_cmp_gt_u32 s[{T2}:{T2+1}], 15, v{vt}")
    a(f"s_and_b64 s[{T4}:{T4+1}], s[{T4}:{T4+1}], s[{T2}:{T2+1}]")
    a(f"s_mov_b32 s{T2}, -1")
    a(f"s_mov_b32 s{T2+1}, 0xffff")
    a(f"s_and_b64 s[{T4}:{T4+1}], s[{T4}:{T4+1}], s[{T2}:{T2+1}]")
    a(f"v_lshlrev_b32 v{vo}, 7, v{vo}")
    a(f"v_lshl_add_u32 v{vo}, v{vt}, 2, v{vo}")
    a(f"s_lshl_b32 s{T0}, s{S_ARB}, 7")
    a(f"v_mov_b32 v{vt}, s{T0}")
    a(f"v_cndmask_b32 v{vo}, v{vt}, v{vo}, s[{T4}:{T4+1}]")
    a(f"v_add_u32 v{vo}, {WS_FLAG + FQ}, v{vo}")

def attn_q_loads(a, t0, t1, t2, t3, AQ0=20, AQ1=24):
    a(f"s_lshl_b32 s{T0}, s{S_ARB}, 2")
    a(f"s_add_u32 s{S_QB}, s{T0}, s79")
    a(f"v_and_b32 v{t0}, 31, v1")
    a(f"v_lshrrev_b32 v{t1}, 5, v1")
    a(f"s_lshl_b32 s{T1}, s{S_QB}, 8")
    a(f"v_lshlrev_b32 v{t2}, 3, v{t0}")
    a(f"v_add_u32 v{t2}, s{T1}, v{t2}")
    a(f"v_lshl_add_u32 v{t3}, v{t1}, 15, v{t2}")
    a(f"s_lshl_b32 s{T2}, s{S_AHP}, 1")
    a(f"s_add_u32 s{T2}, s{T2}, s78")
    a(f"s_mul_i32 s{T2}, s{T2}, {5*16384}")
    a(f"s_add_u32 s{T1}, s{T2}, {WS_QKV}")
    a(f"buffer_load_dwordx2 {vr(AQ0,2)}, v{t3}, s[{SRD_WS}:{SRD_WS+3}], s{T1} offen sc1", tag='q')
    a(f"s_add_u32 s{T1}, s{T1}, 16384")
    a(f"buffer_load_dwordx2 {vr(AQ0+2,2)}, v{t3}, s[{SRD_WS}:{SRD_WS+3}], s{T1} offen sc1", tag='q')
    a(f"s_add_u32 s{T1}, s{T1}, {3*16384}")
    a(f"buffer_load_dwordx2 {vr(AQ1,2)}, v{t2}, s[{SRD_WS}:{SRD_WS+3}], s{T1} offen sc1", tag='q')

def fw_poll_offsets(a, vo):
    a(f"v_and_b32 v{vo}, 31, v1")
    a(f"v_lshlrev_b32 v{vo}, 2, v{vo}")
    a(f"s_lshl_b32 s{T1}, s{S_FCJ}, 7")
    a(f"s_add_u32 s{T1}, s{T1}, {WS_FLAG + FW}")
    a(f"v_add_u32 v{vo}, s{T1}, v{vo}")

def wf_first_slots(a, vw):
    a(f"v_lshlrev_b32 v{vw}, 4, v1")
    a(f"s_mul_i32 s{T0}, s{S_W}, 10240")
    a(f"s_mul_i32 s{T1}, s{S_FCJ}, {WF_TILE}")
    a(f"s_add_u32 s{T1}, s{T1}, s{T0}")
    a(f"s_add_u32 s{T1}, s{T1}, {WS_WF}")
    for g in range(2):
        for part in range(3):
            a(f"s_add_u32 m0, s{T0}, {RING[g] + part*4096}")
            a(f"s_add_u32 s{T2}, s{T1}, {g*WSLOT + part*4096}")
            for n in range(4 if part < 2 else 2):
                a(f"buffer_load_dwordx4 v{vw}, s[{SRD_WS}:{SRD_WS+3}], s{T2} offen offset:{n*1024} sc1 lds", tag=('W', g))

QL = 81920
def attn_stage_q(a, vd):
    a(f"v_lshlrev_b32 v{vd}, 4, v1")
    a(f"s_mul_i32 s{T2}, s{S_AHP}, {10*16384}")
    a(f"s_lshl_b32 s{T0}, s{S_ARB}, 10")
    a(f"s_add_u32 s{T2}, s{T2}, s{T0}")
    a(f"s_add_u32 s{T2}, s{T2}, {WS_QKV}")
    for k in range(3):
        a(f"s_add_u32 s{T0}, s{S_W}, {4*k}")
        a(f"s_lshl_b32 s{T1}, s{T0}, 14")
        a(f"s_add_u32 s{T1}, s{T1}, s{T2}")
        a(f"s_lshl_b32 s{T3}, s{T0}, 10")
        a(f"s_add_u32 s{T3}, s{T3}, {QL}")
        if k == 2:
            a(f"s_cmp_lt_u32 s{T0}, 10")
            a(f"s_cselect_b32 s{T1}, s{T1}, 0x7fff0000")
        a(f"s_mov_b32 m0, s{T3}")
        a(f"buffer_load_dwordx4 v{vd}, s[{SRD_WS}:{SRD_WS+3}], s{T1} offen sc1 lds", tag='q')

def touch_wf(a, v0_, v1_):
    a(f"s_and_b32 s{T0}, s{S_I}, 7")
    a(f"s_mul_i32 s{T0}, s{T0}, {370*128}")
    a(f"s_mul_i32 s{T1}, s{S_FCJ}, {WF_TILE}")
    a(f"s_add_u32 s{T0}, s{T0}, s{T1}")
    a(f"s_add_u32 s{T0}, s{T0}, {WS_WF}")
    a(f"v_lshlrev_b32 v{v0_}, 7, v0")
    a(f"v_mov_b32 v{v1_}, 370")
    a(f"v_cmp_gt_u32 s[{T4}:{T4+1}], v{v1_}, v0")
    a(f"v_mov_b32 v{v1_}, 0x7ffffff0")
    a(f"v_cndmask_b32 v{v0_}, v{v1_}, v{v0_}, s[{T4}:{T4+1}]")
    a(f"buffer_load_dword v251, v{v0_}, s[{SRD_WS}:{SRD_WS+3}], s{T0} offen sc1", tag='touch')

def touch_h(a, v0_, v1_):
    a(f"s_lshl_b32 s{T0}, s{S_FRB}, 1")
    a(f"s_mul_i32 s{T0}, s{T0}, {108*1024}")
    a(f"s_lshr_b32 s{T1}, s{S_I}, 3")
    a(f"s_mul_i32 s{T1}, s{T1}, {432*128}")
    a(f"s_add_u32 s{T0}, s{T0}, s{T1}")
    a(f"s_add_u32 s{T0}, s{T0}, {WS_H}")
    a(f"v_lshlrev_b32 v{v0_}, 7, v0")
    a(f"v_mov_b32 v{v1_}, 432")
    a(f"v_cmp_gt_u32 s[{T4}:{T4+1}], v{v1_}, v0")
    a(f"v_mov_b32 v{v1_}, 0x7ffffff0")
    a(f"v_cndmask_b32 v{v0_}, v{v1_}, v{v0_}, s[{T4}:{T4+1}]")
    a(f"buffer_load_dword v251, v{v0_}, s[{SRD_WS}:{SRD_WS+3}], s{T0} offen sc1", tag='touch')

def attn_stage_kv(a, t0, t1, t2, vd):
    a(f"s_sub_u32 s{T0}, s{S_ARB}, 2")
    a(f"s_lshl_b32 s{T0}, s{T0}, 7")
    a(f"s_mul_i32 s{T1}, s{S_W}, 96")
    a(f"s_add_u32 s{T0}, s{T0}, s{T1}")
    a(f"v_lshlrev_b32 v{t0}, 1, v1")
    a(f"v_add_u32 v{t0}, s{T0}, v{t0}")
    a(f"v_lshlrev_b32 v{t1}, 3, v{t0}")
    a(f"v_mov_b32 v{t2}, 0x7ffffff0")
    a(f"v_cmp_le_i32 s[{T4}:{T4+1}], 0, v{t0}")
    a(f"v_cndmask_b32 v{vd}, v{t2}, v{t1}, s[{T4}:{T4+1}]")
    a(f"s_mul_i32 s{T2}, s{S_AHP}, {10*16384}")
    a(f"s_add_u32 s{T2}, s{T2}, {WS_QKV + 160*16384}")
    a(f"s_mul_i32 s{T3}, s{S_W}, 768")
    a("s_mov_b32 exec_hi, 0xffff")
    for ty in range(2):
        for p in range(10):
            a(f"s_add_u32 m0, s{T3}, {(LK if ty == 0 else LV) + p*PST}")
            a(f"s_add_u32 s{T6}, s{T2}, {(ty*160 + p)*16384}")
            a(f"buffer_load_dwordx4 v{vd}, s[{SRD_WS}:{SRD_WS+3}], s{T6} offen sc1 lds", tag=('kv', ty))
    a("s_mov_b32 exec_hi, -1")

def stage1g(a, lbl):
    SRD_E, S_M = 64, 68
    VXD, VWD, VW2 = 2, 6, 10
    VXF, VWF = 14, 22
    t0, t1, t2, t3 = 26, 27, 28, 29
    VP, VPV = 30, 31
    FB = [32, 48]
    ACC = 64
    CSR, B1R, ST, TD = 128, 160, 192, 196
    S_FQ, S_FH, S_ACT, S_HB = 69, 70, 71, 72
    a(f"s_and_b32 s{S_LW}, s{S_W}, 3")
    a(f"s_cmp_ge_u32 s{S_CJ}, 15")
    a(f"s_cbranch_scc1 {lbl}_idle")
    a(f"s_lshl_b32 s{T0}, s{S_RB}, 7")
    a(f"s_lshr_b32 s{T1}, s{S_LW}, 1")
    a(f"s_lshl_b32 s{T1}, s{T1}, 6")
    a(f"s_add_u32 s{T0}, s{T0}, s{T1}")
    a(f"s_and_b32 s{T1}, s{S_LW}, 1")
    a(f"s_add_u32 s{T0}, s{T0}, s{T1}")
    a(f"v_lshrrev_b32 v{t0}, 3, v1")
    a(f"v_lshlrev_b32 v{t0}, 1, v{t0}")
    a(f"v_add_u32 v{t0}, s{T0}, v{t0}")
    a(f"s_movk_i32 s{T2}, 1280")
    a(f"v_mul_lo_u32 v{t0}, v{t0}, s{T2}")
    a(f"v_lshrrev_b32 v{t1}, 4, v1")
    a(f"v_and_b32 v{t2}, 7, v1")
    a(f"v_xor_b32 v{t2}, v{t2}, v{t1}")
    a(f"v_xor_b32 v{t3}, 4, v{t2}")
    for i in range(4):
        a(f"v_lshl_add_u32 v{VXD+i}, v{t2 if i % 2 == 0 else t3}, 4, v{t0}")
        if i: a(f"v_add_u32 v{VXD+i}, {i*(16*1280-1024)}, v{VXD+i}")
    a(f"s_lshl_b32 s{T0}, s{S_LW}, 4")
    a(f"v_lshrrev_b32 v{t0}, 4, v1")
    a(f"v_add_u32 v{t1}, s{T0}, v{t0}")
    a(f"v_bfe_u32 v{t2}, v1, 2, 2")
    a(f"v_xor_b32 v{t2}, v{t2}, v{t0}")
    a(f"v_and_b32 v{t3}, 3, v1")
    a(f"v_lshl_add_u32 v{t2}, v{t2}, 2, v{t3}")
    a(f"v_lshlrev_b32 v{t2}, 4, v{t2}")
    a(f"s_lshl_b32 s{T0}, s{S_CJ}, 8")
    a(f"v_add_u32 v{t2}, s{T0}, v{t2}")
    def w_offsets(vd, pitch):
        a(f"s_movk_i32 s{T2}, {pitch}")
        a(f"v_mul_lo_u32 v{t3}, v{t1}, s{T2}")
        a(f"v_add_u32 v{vd}, v{t3}, v{t2}")
        for i in range(1, 4): a(f"v_add_u32 v{vd+i}, {i*(4*pitch-1024)}, v{vd}")
    w_offsets(VWD, 3840)
    w_offsets(VW2, 3456)
    a(f"s_lshl_b32 s{S_M}, s{S_LW}, 12")
    if OPT.get('rot', 1):
        a(f"s_lshr_b32 s{T0}, s{S_I}, 3")
        a(f"s_mul_i32 s{T0}, s{T0}, 10")
        a(f"s_and_b32 s{T1}, s{S_I}, 7")
        a(f"s_mul_i32 s{T1}, s{T1}, 5")
        a(f"s_add_u32 s{T0}, s{T0}, s{T1}")
        a(f"s_lshr_b32 s{T0}, s{T0}, 2")
        a(f"s_sub_u32 s{T1}, s{T0}, 10")
        a(f"s_cmp_ge_u32 s{T0}, 10")
        a(f"s_cselect_b32 s{T0}, s{T1}, s{T0}")
    else:
        a(f"s_mov_b32 s{T0}, 0")
    def addmod(dst, src, k):
        a(f"s_add_u32 s{dst}, s{src}, {k}")
        a(f"s_sub_u32 s{T2}, s{dst}, 10")
        a(f"s_cmp_ge_u32 s{dst}, 10")
        a(f"s_cselect_b32 s{dst}, s{T2}, s{dst}")
    REUSE = OPT.get('xreuse', 1)
    if REUSE:
        addmod(T1, T0, 9)
        addmod(T3, T0, 6)
        a(f"s_cmp_ge_u32 s{S_W}, 4")
        a(f"s_cselect_b32 s{T1}, s{T3}, s{T1}")
        a(f"s_mul_i32 s{S_K1}, s{T1}, {64*3456}")
        a(f"s_lshl_b32 s{S_KX}, s{T0}, 7")
        a(f"s_mul_i32 s{S_KQ}, s{T0}, {64*3840}")
    else:
        addmod(T1, T0, 3)
        a(f"s_cmp_ge_u32 s{S_W}, 4")
        a(f"s_cselect_b32 s{T0}, s{T0}, s{T1}")
        a(f"s_lshl_b32 s{S_KX}, s{T0}, 7")
        a(f"s_mul_i32 s{S_KQ}, s{T0}, {64*3840}")
        a(f"s_mul_i32 s{S_K1}, s{T0}, {64*3456}")
    def adv(sreg, step, wrap):
        if OPT.get('hot'): return
        a(f"s_add_u32 s{sreg}, s{sreg}, {step}")
        a(f"s_cmp_eq_u32 s{sreg}, {wrap}")
        a(f"s_cselect_b32 s{sreg}, 0, s{sreg}")
    first = {'x': True, 'q': True, '1': True}
    slot = lambda tau: (tau + 3) % 4
    def dma_list(tau):
        out = []
        if OPT.get('g_nodma') and tau >= 4: return out
        if OPT.get('nodma1') and tau >= 13: return out
        def mk(kind, i):
            def f():
                if kind == 'x': vd, sr, sk, off, step, wrap = VXD, SRD_A, S_KX, 0, 128, 1280
                elif kind == 'q': vd, sr, sk, off, step, wrap = VWD, SRD_B, S_KQ, 16384, 64*3840, 640*3840
                else: vd, sr, sk, off, step, wrap = VW2, SRD_E, S_K1, 16384, 64*3456, 640*3456
                if i == 0:
                    a(f"s_add_u32 m0, s{S_M}, {slot(tau)*SL2 + off}")
                    if not first[kind] and not (OPT.get('hot1') and tau >= 10) and not (OPT.get('hotx') and kind == 'x' and tau >= 10) and not (OPT.get('hotw') and kind == '1'): adv(sk, step, wrap)
                    first[kind] = False
                a(f"buffer_load_dwordx4 v{vd+i}, s[{sr}:{sr+3}], s{sk} offen offset:{i*1024} lds", tag=('B', tau))
            return f
        if not (REUSE and 10 <= tau <= 13):
            for i in range(4): out.append(mk('x', i))
        for i in range(4): out.append(mk('q' if tau < 10 else '1', i))
        return out
    def dma_block(tau):
        for f in dma_list(tau): f()
    def frag_bases():
        a(f"s_and_b32 s{T0}, s{S_LW}, 1")
        a(f"s_lshl_b32 s{T0}, s{T0}, 13")
        a(f"v_and_b32 v{t0}, 31, v1")
        a(f"v_lshrrev_b32 v{t1}, 5, v1")
        a(f"v_bfe_u32 v{t2}, v1, 1, 3")
        a(f"v_lshlrev_b32 v{t0}, 7, v{t0}")
        a(f"v_add_u32 v{t0}, s{T0}, v{t0}")
        for s_ in range(4):
            a(f"v_or_b32 v{t3}, {2*s_}, v{t1}")
            a(f"v_xor_b32 v{t3}, v{t3}, v{t2}")
            a(f"v_lshl_add_u32 v{VXF+s_}, v{t3}, 4, v{t0}")
            a(f"v_add_u32 v{VXF+4+s_}, {2*SL2}, v{VXF+s_}")
        a(f"v_bfe_u32 v{t0}, v1, 2, 2")
        a(f"v_lshl_add_u32 v{t1}, v{t1}, 3, v{t0}")
        a(f"v_lshlrev_b32 v{t1}, 8, v{t1}")
        a(f"v_bfe_u32 v{t2}, v1, 4, 1")
        a(f"v_lshl_add_u32 v{t1}, v{t2}, 5, v{t1}")
        a(f"v_and_b32 v{t2}, 3, v1")
        a(f"v_lshl_add_u32 v{t1}, v{t2}, 3, v{t1}")
        a(f"s_and_b32 s{T0}, s{S_LW}, 2")
        for ft in range(2):
            a(f"s_or_b32 s{T1}, s{T0}, {ft}")
            a(f"v_xor_b32 v{t2}, s{T1}, v{t0}")
            a(f"v_lshl_add_u32 v{VWF+ft}, v{t2}, 6, v{t1}")
            a(f"v_add_u32 v{VWF+2+ft}, {2*SL2}, v{VWF+ft}")
    def rd_b(st, tau, u, tt):
        sl = slot(tau)
        a(f"ds_read_b128 {vr(FB[st]+4*tt,4)}, v{VXF + u + (4 if sl >= 2 else 0)} offset:{(SL2 if sl & 1 else 0) + tt*4096}", tag=('f', tau, u, 'b', tt))
    def rd_a(st, tau, u, F, rd):
        sl = slot(tau)
        a(f"ds_read_b64_tr_b16 {vr(FB[st]+8+4*F+2*rd,2)}, v{VWF + F + (2 if sl >= 2 else 0)} offset:{(SL2 if sl & 1 else 0) + 16384 + u*4096 + rd*1024}", tag=('f', tau, u, 'a', F))
    def reads(st, tau, u):
        return [lambda: rd_b(st, tau, u, 0), lambda: rd_a(st, tau, u, 0, 0), lambda: rd_a(st, tau, u, 0, 1),
                lambda: rd_b(st, tau, u, 1), lambda: rd_a(st, tau, u, 1, 0), lambda: rd_a(st, tau, u, 1, 1)]
    def compute(t0_, hook_bar, hook_step):
        for b in range(10):
            tau = t0_ + b
            for u in range(4):
                s_ = 4*b + u; st = s_ & 1
                last = (b == 9 and u == 3)
                side = []
                if u == 3:
                    a("s_waitcnt lgkmcnt(0)")
                    hook_bar(tau)
                    a("s_barrier")
                    side = hook_step(tau, 'bar') or []
                rs = [] if (last or OPT.get('x_noreads')) else reads(st ^ 1, *((tau, u + 1) if u < 3 else (tau + 1, 0)))
                plan = {-1: rs[0:2], 0: rs[2:5], 1: rs[5:6]}
                for r in plan[-1]: r()
                for k, (tt, F) in enumerate([(0, 0), (1, 0), (0, 1), (1, 1)]):
                    a.wait_lg([('f', tau, u, 'b', tt), ('f', tau, u, 'a', F)])
                    d = vr(ACC+16*(2*tt+F), 16)
                    if not OPT.get('x_nomfma'):
                        a(f"v_mfma_f32_32x32x16_bf16 {d}, {vr(FB[st]+8+4*F,4)}, {vr(FB[st]+4*tt,4)}, {'0' if s_ == 0 else d}")
                    for r in plan.get(k, []): r()
                    for _ in range(2):
                        if side: side.pop(0)()
                for f in side: f()
                hook_step(tau, u)
    a("s_waitcnt lgkmcnt(0)")
    srd(a, SRD_A, P_AX, SIZES['AX'])
    srd(a, SRD_B, P_WQKV, SIZES['WQKV'])
    NI = OPT.get('init', 2)
    a(f"s_cmp_lt_u32 s{S_W}, 4")
    a(f"s_cbranch_scc1 {lbl}_nodma")
    for tau in range(NI): dma_block(tau)
    g1_vm = list(a.vm)
    a.label(f"{lbl}_nodma")
    a.vm = []
    srd(a, SRD_E, P_W1, SIZES['W1'])
    prologue_rest(a)
    attn_coords(a)
    final_coords(a)
    a(f"s_lshl_b32 s{T0}, s{S_RB}, 7")
    a(f"s_lshl_b32 s{T1}, s{S_CJ}, 2")
    a(f"s_add_u32 s{T0}, s{T0}, s{T1}")
    a(f"s_add_u32 s{S_FQ}, s{T0}, {WS_FLAG + FQ}")
    a(f"s_add_u32 s{S_FH}, s{T0}, {WS_FLAG + FH}")
    a(f"s_cmp_lt_u32 s{S_CJ}, 14")
    a(f"s_cselect_b32 s{S_FHO}, s{S_FH}, 0x7fff0000")
    a(f"s_cmp_lt_u32 s{S_W}, 4")
    a(f"s_cbranch_scc1 {lbl}_g0")
    a.vm = list(g1_vm)
    if OPT.get('lprio', 1): a(f"s_setprio {OPT.get('lprio', 1)}")
    mark4(a, first=True)
    pre_address(a, lbl + "_pa", rows=False)
    frag_bases()
    a.wait_vm(('B', 0))
    mark4(a)
    a("s_barrier")
    for tau in range(NI, 4): dma_block(tau)
    for tau in range(0, 9):
        a.wait_vm(('B', tau + 1))
        if tau == 8: a.wait_vm('pst')
        a("s_barrier")
        dma_block(tau + 4)
        if tau == 0: pre_issue(a, rows=False)
        if tau == 1 and OPT.get('pfw1', 0):
            a(f"s_and_b32 s{T0}, s{S_I}, 7")
            a(f"s_mul_i32 s{T0}, s{T0}, 80")
            a(f"s_mul_i32 s{T1}, s{S_LW}, 20")
            a(f"s_add_u32 s{T0}, s{T0}, s{T1}")
            a(f"v_lshrrev_b32 v{t0}, 1, v1")
            a(f"v_add_u32 v{t0}, s{T0}, v{t0}")
            a(f"s_movk_i32 s{T1}, 3456")
            a(f"v_mul_lo_u32 v{t0}, v{t0}, s{T1}")
            a(f"v_and_b32 v{t1}, 1, v1")
            a(f"v_lshl_add_u32 v{t0}, v{t1}, 7, v{t0}")
            a(f"s_lshl_b32 s{T0}, s{S_CJ}, 8")
            a(f"v_add_u32 v{t0}, s{T0}, v{t0}")
            a(f"v_mov_b32 v{t1}, 0x7ffffff0")
            a(f"v_cmp_gt_u32 s[{T4}:{T4+1}], 40, v1")
            a(f"v_cndmask_b32 v{t0}, v{t1}, v{t0}, s[{T4}:{T4+1}]")
            a(f"buffer_load_dword v251, v{t0}, s[{SRD_E}:{SRD_E+3}], 0 offen", tag='touch')
        if tau == OPT.get('trp', 5):
            a.wait_vm('pl')
            repack_finish(a)
        if tau == 7: nonce_issue(a, 252)
    nonce_check(a, 252)
    a.wait_vm(('B', 10))
    a("s_barrier")
    if OPT.get('lprio', 1): a(f"s_setprio {OPT.get('cprio', 3)}")
    mark4(a)
    for r in reads(0, 10, 0): r()
    def g1_bar(tau):
        if tau in (10, 11): a.wait_vm(('B', tau + 1))
    def g1_step(tau, u):
        return None
    compute(10, g1_bar, g1_step)
    mark4(a)
    C0, C1, VY, ONE = 2, 3, 4, 6
    TU, TE = 32, 40
    a(f"v_mov_b32 v{ONE}, 1.0")
    a(f"v_mov_b32 v{C0}, 0xc0135761")
    a(f"v_mov_b32 v{C1}, 0xbdd2d3e8")
    a(f"v_lshlrev_b32 v{VY}, 4, v1")
    a(f"s_lshl_b32 s{T0}, s{S_CJ}, 3")
    a(f"s_lshr_b32 s{T1}, s{S_LW}, 1")
    a(f"s_lshl_b32 s{T1}, s{T1}, 2")
    a(f"s_add_u32 s{S_ACT}, s{T0}, s{T1}")
    a(f"s_lshl_b32 s{T0}, s{S_RB}, 2")
    a(f"s_and_b32 s{T1}, s{S_LW}, 1")
    a(f"s_lshl_b32 s{T1}, s{T1}, 1")
    a(f"s_add_u32 s{T0}, s{T0}, s{T1}")
    a(f"s_mul_i32 s{T0}, s{T0}, 108")
    a(f"s_add_u32 s{T0}, s{T0}, s{S_ACT}")
    a(f"s_lshl_b32 s{T0}, s{T0}, 10")
    a(f"s_add_u32 s{S_HB}, s{T0}, {WS_H}")
    a(f"s_cmp_lt_u32 s{S_ACT}, 108")
    a(f"s_cselect_b32 s{S_HB}, s{S_HB}, 0x7fff0000")
    a(f"v_and_b32 v{t0}, 31, v1")
    a(f"v_lshlrev_b32 v{t0}, 4, v{t0}")
    a(f"s_and_b32 s{T0}, s{S_LW}, 1")
    a(f"s_lshl_b32 s{T0}, s{T0}, 9")
    a(f"v_add_u32 v{t0}, s{T0}, v{t0}")
    a(f"ds_read_b128 {vr(ST,4)}, v{t0}")
    a(f"v_lshrrev_b32 v{t0}, 5, v1")
    a(f"v_lshlrev_b32 v{t0}, 4, v{t0}")
    a(f"s_lshr_b32 s{T0}, s{S_LW}, 1")
    a(f"s_lshl_b32 s{T0}, s{T0}, 8")
    a(f"v_add_u32 v{t0}, s{T0}, v{t0}")
    for ft in range(2):
        for j in range(4):
            a(f"ds_read_b128 {vr(CSR+16*ft+4*j,4)}, v{t0} offset:{1024 + 128*ft + 32*j}")
            a(f"ds_read_b128 {vr(B1R+16*ft+4*j,4)}, v{t0} offset:{1536 + 128*ft + 32*j}")
    a("s_waitcnt lgkmcnt(0)")
    mark4(a)
    P = lambda b, e: vr(b + 2*e, 2)
    for tt in range(2):
        nmp = vr(ST + 2*tt, 2)
        if tt == 1: a(f"s_add_u32 s{S_HB}, s{S_HB}, {108*1024}")
        for ft in range(2):
            for jj in range(2):
                x = ACC + 16*(2*tt+ft) + 8*jj
                for e in range(4):
                    j, i = 2*jj + (e >> 1), 2*(e & 1)
                    a(f"v_pk_fma_f32 {P(TU,e)}, {nmp}, {vr(CSR+16*ft+4*j+i,2)}, {vr(B1R+16*ft+4*j+i,2)} op_sel_hi:[0,1,1]")
                for e in range(4): a(f"v_pk_fma_f32 {P(x,e)}, {nmp}, {P(x,e)}, {P(TU,e)} op_sel:[1,0,0] op_sel_hi:[1,1,1]")
                for e in range(4): a(f"v_pk_mul_f32 {P(TU,e)}, {P(x,e)}, {P(x,e)}")
                for e in range(4): a(f"v_pk_fma_f32 {P(TU,e)}, {P(TU,e)}, {vr(C0,2)}, {vr(C0,2)} op_sel:[0,1,0] op_sel_hi:[1,1,0]")
                for e in range(4): a(f"v_pk_mul_f32 {P(TU,e)}, {P(TU,e)}, {P(x,e)}")
                for e in range(8): a(f"v_exp_f32 v{TE+e}, v{TU+e}")
                for e in range(4): a(f"v_pk_add_f32 {P(TE,e)}, {P(TE,e)}, {vr(ONE,2)} op_sel_hi:[1,0]")
                for e in range(8): a(f"v_rcp_f32 v{TE+e}, v{TE+e}")
                for e in range(4): a(f"v_pk_mul_f32 {P(TE,e)}, {P(TE,e)}, {P(x,e)}")
                d = TD + 4*(4*tt + 2*ft + jj)
                for e in range(4): a(f"v_cvt_pk_bf16_f32 v{d+e}, v{TE+2*e}, v{TE+2*e+1}")
                if not OPT.get('late_h', 0):
                    a(f"buffer_store_dwordx4 {vr(d,4)}, v{VY}, s[{SRD_WS}:{SRD_WS+3}], s{S_HB} offen offset:{(2*ft+jj)*1024} sc1", tag='hst')
    if OPT.get('late_h', 0):
        a(f"s_sub_u32 s{S_HB}, s{S_HB}, {108*1024}")
        for tt in range(2):
            if tt == 1: a(f"s_add_u32 s{S_HB}, s{S_HB}, {108*1024}")
            for ft in range(2):
                for jj in range(2):
                    d = TD + 4*(4*tt + 2*ft + jj)
                    a(f"buffer_store_dwordx4 {vr(d,4)}, v{VY}, s[{SRD_WS}:{SRD_WS+3}], s{S_HB} offen offset:{(2*ft+jj)*1024} sc1", tag='hst')
    mark4(a)
    a(f"s_branch {lbl}_join")
    a.label(f"{lbl}_g0")
    a.reset_counters()
    first.update({'x': True, 'q': True, '1': True})
    if OPT.get('pfs1', 0):
        a(f"s_lshl_b32 s{T0}, s{S_RB}, 7")
        a(f"s_lshr_b32 s{T1}, s{S_I}, 3")
        a(f"s_lshl_b32 s{T1}, s{T1}, 5")
        a(f"s_add_u32 s{T0}, s{T0}, s{T1}")
        a(f"s_lshl_b32 s{T1}, s{S_LW}, 3")
        a(f"s_add_u32 s{T0}, s{T0}, s{T1}")
        a(f"v_lshrrev_b32 v{t0}, 3, v1")
        a(f"v_add_u32 v{t0}, s{T0}, v{t0}")
        a(f"s_movk_i32 s{T1}, 1280")
        a(f"v_mul_lo_u32 v{t0}, v{t0}, s{T1}")
        a(f"v_and_b32 v{t1}, 7, v1")
        a(f"v_lshl_add_u32 v{t2}, v{t1}, 7, v{t0}")
        a(f"buffer_load_dword v251, v{t2}, s[{SRD_A}:{SRD_A+3}], 0 offen", tag='touch')
        a(f"v_and_b32 v{t1}, 1, v1")
        a(f"v_lshl_add_u32 v{t2}, v{t1}, 7, v{t0}")
        a(f"v_mov_b32 v{t3}, 0x7ffffff0")
        a(f"v_bfe_u32 v{t1}, v1, 1, 2")
        a(f"v_cmp_eq_u32 s[{T4}:{T4+1}], 0, v{t1}")
        a(f"v_cndmask_b32 v{t2}, v{t3}, v{t2}, s[{T4}:{T4+1}]")
        a(f"buffer_load_dword v251, v{t2}, s[{SRD_A}:{SRD_A+3}], 0 offen offset:1024", tag='touch')
        a(f"s_and_b32 s{T0}, s{S_I}, 7")
        a(f"s_mul_i32 s{T0}, s{T0}, 80")
        a(f"s_mul_i32 s{T1}, s{S_LW}, 20")
        a(f"s_add_u32 s{T0}, s{T0}, s{T1}")
        a(f"v_lshrrev_b32 v{t0}, 1, v1")
        a(f"v_add_u32 v{t0}, s{T0}, v{t0}")
        a(f"s_movk_i32 s{T1}, 3840")
        a(f"v_mul_lo_u32 v{t0}, v{t0}, s{T1}")
        a(f"v_and_b32 v{t1}, 1, v1")
        a(f"v_lshl_add_u32 v{t0}, v{t1}, 7, v{t0}")
        a(f"s_lshl_b32 s{T0}, s{S_CJ}, 8")
        a(f"v_add_u32 v{t0}, s{T0}, v{t0}")
        a(f"v_cmp_gt_u32 s[{T4}:{T4+1}], 40, v1")
        a(f"v_cndmask_b32 v{t0}, v{t3}, v{t0}, s[{T4}:{T4+1}]")
        a(f"buffer_load_dword v251, v{t0}, s[{SRD_B}:{SRD_B+3}], 0 offen", tag='touch')
    frag_bases()
    if OPT.get('cprio', 3): a(f"s_setprio {OPT.get('cprio', 3)}")
    mark(a)
    a("s_barrier")
    for r in reads(0, 0, 0): r()
    def g0_step(tau, u):
        if OPT.get('fine3') == 1 and u == 'bar' and tau in (0, 2, 4, 6, 8): mark(a)
        if u == 'bar' and tau == 9: return dma_list(13)
        if u == 1 and tau == 2: nonce_issue(a, 252)
        if u == 1 and tau == 4: nonce_check(a, 252)
        if u == 'bar' and tau == 8:
            pre_flags(a, t3, stats=False)
        return None
    compute(0, lambda tau: None, g0_step)
    mark(a)
    if OPT.get('lprio', 1): a(f"s_setprio {OPT.get('lprio', 1)}")
    a(f"v_lshrrev_b32 v{t0}, 5, v1")
    a(f"s_lshr_b32 s{T0}, s{S_LW}, 1")
    a(f"s_lshl_b32 s{T0}, s{T0}, 4")
    a(f"v_add_u32 v{t0}, s{T0}, v{t0}")
    a(f"v_lshlrev_b32 v{t0}, 14, v{t0}")
    a(f"s_and_b32 s{T0}, s{S_LW}, 1")
    a(f"s_lshl_b32 s{T0}, s{T0}, 9")
    a(f"v_and_b32 v{t1}, 31, v1")
    a(f"v_lshl_add_u32 v{t0}, v{t1}, 4, v{t0}")
    a(f"v_add_u32 v{t0}, s{T0}, v{t0}")
    a(f"s_lshl_b32 s{T0}, s{S_CJ}, 19")
    a(f"s_lshl_b32 s{T1}, s{S_RB}, 10")
    a(f"s_add_u32 s{T0}, s{T0}, s{T1}")
    a(f"s_add_u32 s{T0}, s{T0}, {WS_QKV}")
    a(f"s_cmp_lt_u32 s{S_CJ}, 5")
    a(f"s_cselect_b32 s{T2}, 0x3ea52b5c, 1.0")
    a(f"v_mov_b32 v30, s{T2}")
    for r in range(0, 64, 2):
        a(f"v_pk_mul_f32 {vr(ACC+r,2)}, {vr(ACC+r,2)}, v[30:31] op_sel_hi:[1,0]")
    k = 0
    for ft in range(2):
        for j in range(4):
            a(f"s_add_u32 s{T1}, s{T0}, {(8*ft + 2*j)*16384}")
            d = 32 + 4*(k % 8); k += 1
            for tt in range(2):
                base = ACC + 16*(2*tt+ft) + 4*j
                a(f"v_cvt_pk_bf16_f32 v{d+2*tt}, v{base}, v{base+1}")
                a(f"v_cvt_pk_bf16_f32 v{d+2*tt+1}, v{base+2}, v{base+3}")
            a(f"buffer_store_dwordx4 {vr(d,4)}, v{t0}, s[{SRD_WS}:{SRD_WS+3}], s{T1} offen sc1", tag='qst')
    fq_poll_offsets(a, VP, t3)
    TQP = OPT.get('tqp', 13)
    for tau in range(10, 20):
        if 13 <= tau + 1 <= 19: a.wait_vm(('B', tau + 1))
        if tau == TQP: a.wait_vm('qst')
        if tau == 19: a.wait_vm('tab')
        a("s_barrier")
        if OPT.get('fine3') == 2 and tau in (10, 11, 12, 13, 14, 15, 16, 17, 18, 19): mark(a)
        if tau == TQP: flag_store(a, S_FQ, t3)
        if tau + 4 <= 19: dma_block(tau + 4)
        if tau == 15:
            a(f"s_lshl_b32 s{T0}, s{S_RB}, 7")
            a(f"s_add_u32 s{T0}, s{T0}, {WS_FLAG + FS}")
            a(f"v_mov_b32 v{t0}, s{T0}")
            a(f"s_min_u32 s{T1}, s{S_CJ}, 13")
            a(f"s_lshl_b32 s{T1}, s{T1}, 2")
            a(f"s_add_u32 s{T1}, s{T1}, {WS_FLAG + FC}")
            a(f"v_mov_b32 v{t1}, s{T1}")
            a(f"v_cmp_gt_u32 s[{T4}:{T4+1}], 32, v1")
            a(f"v_cndmask_b32 v234, v{t1}, v{t0}, s[{T4}:{T4+1}]")
            poll_issue(a, 234, 235, 'p1')
        if tau == 17:
            L = uid("nf")
            a(f"s_cmp_ge_u32 s{S_CJ}, 14")
            a(f"s_cbranch_scc1 {L}")
            vm0 = list(a.vm)
            poll_check(a, 234, 235, 'p1')
            a.label(L)
            a.vm = vm0
            a(f"s_lshl_b32 s{T0}, s{S_RB}, 10")
            a(f"s_add_u32 s{T0}, s{T0}, {WS_ST}")
            a(f"s_lshl_b32 s{T1}, s{S_CJ}, 9")
            a(f"s_add_u32 s{T2}, s{T1}, {WS_CS}")
            a(f"s_add_u32 s{T1}, s{T1}, {WS_B1}")
            a(f"s_cmp_eq_u32 s{S_W}, 1")
            a(f"s_cselect_b32 s{T0}, s{T2}, s{T0}")
            a(f"s_cselect_b32 s{T3}, 1024, 0")
            a(f"s_cmp_eq_u32 s{S_W}, 2")
            a(f"s_cselect_b32 s{T0}, s{T1}, s{T0}")
            a(f"s_cselect_b32 s{T3}, 1536, s{T3}")
            a(f"s_cmp_eq_u32 s{S_W}, 3")
            a(f"s_cselect_b32 s{T0}, 0x7fff0000, s{T0}")
            a(f"s_cselect_b32 s{T3}, 2048, s{T3}")
            a(f"v_lshlrev_b32 v{t0}, 4, v1")
            a(f"v_mov_b32 v{t1}, 0x7ffffff0")
            a(f"s_cmp_eq_u32 s{S_W}, 0")
            a(f"s_cselect_b32 s{T1}, 64, 32")
            a(f"v_cmp_gt_u32 s[{T4}:{T4+1}], s{T1}, v1")
            a(f"s_mov_b64 exec, s[{T4}:{T4+1}]")
            a(f"s_mov_b32 m0, s{T3}")
            a(f"buffer_load_dwordx4 v{t0}, s[{SRD_WS}:{SRD_WS+3}], s{T0} offen sc1 lds", tag='tab')
            a("s_mov_b64 exec, -1")
        if tau == 19: pass
        if tau == OPT.get('tpq', 18):
            poll_issue(a, VP, VPV, 'pq')
            fw_poll_offsets(a, VP+202)
            poll_issue(a, VP+202, VPV+202, 'pw')
    if OPT.get('fine4'): mark(a)
    poll_check(a, VP, VPV, 'pq')
    if OPT.get('fine4'): mark(a)
    attn_stage_q(a, 3)
    attn_stage_kv(a, t0, t1, t2, 2)
    poll_check(a, VP+202, VPV+202, 'pw')
    if OPT.get('earlyw', 0): wf_first_slots(a, 3)
    mark(a)
    a.wait_vm(('kv', 0))
    if OPT.get('fine4'): mark(a)
    a(f"s_branch {lbl}_join")
    a.label(f"{lbl}_idle")
    a.reset_counters()
    a("s_waitcnt lgkmcnt(0)")
    prologue_rest(a)
    attn_coords(a)
    final_coords(a)
    srd(a, SRD_A, P_AX, SIZES['AX'])
    rowstats_issue(a)
    colsum_issue(a)
    nonce_issue(a, 252)
    rowstats_compute(a)
    colsum_compute(a, lbl + "_cs")
    nonce_check(a, 252)
    a("s_waitcnt vmcnt(0)")
    a("s_barrier")
    a(f"s_lshl_b32 s{T0}, s{S_RB}, 7")
    a(f"s_add_u32 s{T0}, s{T0}, {WS_FLAG + FS}")
    flag_store(a, T0, t3)
    a(f"s_lshl_b32 s{T0}, s{S_RB}, 2")
    a(f"s_add_u32 s{T0}, s{T0}, {WS_FLAG + FC}")
    flag_store(a, T0, t3)
    pre_address(a, lbl + "_pai", rows=False)
    pre_issue(a, rows=False)
    a.wait_vm('pl')
    repack_finish(a)
    a("s_waitcnt vmcnt(0)")
    a("s_barrier")
    pre_flags(a, t3, stats=False)
    a(f"s_mov_b32 s{S_FHO}, 0x7fff0000")
    fq_poll_offsets(a, VP, t3)
    a(f"s_mov_b64 s[{T4}:{T4+1}], -1")
    wait_flags(a, VP, VPV, T4)
    Li = uid("ik")
    a(f"s_cmp_ge_u32 s{S_W}, 4")
    a(f"s_cbranch_scc1 {Li}")
    attn_stage_q(a, 3)
    attn_stage_kv(a, t0, t1, t2, 2)
    fw_poll_offsets(a, VP+202)
    poll_issue(a, VP+202, VPV+202, 'pw')
    poll_check(a, VP+202, VPV+202, 'pw')
    if OPT.get('earlyw', 0): wf_first_slots(a, 3)
    a.label(Li)
    a("s_waitcnt vmcnt(0)")
    a.label(f"{lbl}_join")
    if OPT.get('lprio', 1) or OPT.get('cprio', 3): a("s_setprio 0")
    a.reset_counters()

SLOT = 49152
def stage1f(a, lbl):
    SRD_E, S_M = 64, 68
    VXD, VQD, V1D = 2, 4, 6
    VXF, VWF = 8, 16
    t0, t1, t2, t3 = 20, 21, 22, 23
    VP, VPV = 24, 25
    FB = [32, 48]
    ACC = 64
    ST, CSR, B1R, TD = 192, 128, 160, 196
    S_FQ, S_FH, S_ACT, S_HB = 69, 70, 71, 72
    attn_coords(a)
    final_coords(a)
    a(f"s_and_b32 s{S_LW}, s{S_W}, 3")
    a(f"s_cmp_ge_u32 s{S_CJ}, 15")
    a(f"s_cbranch_scc1 {lbl}_idle")
    srd(a, SRD_A, P_AX, SIZES['AX'])
    srd(a, SRD_B, P_WQKV, SIZES['WQKV'])
    srd(a, SRD_E, P_W1, SIZES['W1'])
    a(f"s_lshl_b32 s{T0}, s{S_RB}, 7")
    a(f"s_lshr_b32 s{T1}, s{S_W}, 2")
    a(f"s_lshl_b32 s{T1}, s{T1}, 6")
    a(f"s_add_u32 s{T0}, s{T0}, s{T1}")
    a(f"s_and_b32 s{T1}, s{S_W}, 1")
    a(f"s_lshl_b32 s{T1}, s{T1}, 5")
    a(f"s_add_u32 s{T0}, s{T0}, s{T1}")
    a(f"s_bfe_u32 s{T1}, s{S_W}, 0x10001")
    a(f"s_add_u32 s{T0}, s{T0}, s{T1}")
    a(f"v_lshrrev_b32 v{t0}, 3, v1")
    a(f"v_lshlrev_b32 v{t0}, 1, v{t0}")
    a(f"v_add_u32 v{t0}, s{T0}, v{t0}")
    a(f"s_movk_i32 s{T2}, 1280")
    a(f"v_mul_lo_u32 v{t0}, v{t0}, s{T2}")
    a(f"v_lshrrev_b32 v{t1}, 4, v1")
    a(f"v_and_b32 v{t2}, 7, v1")
    a(f"v_xor_b32 v{t2}, v{t2}, v{t1}")
    a(f"v_xor_b32 v{t3}, 4, v{t2}")
    a(f"v_lshl_add_u32 v{VXD}, v{t2}, 4, v{t0}")
    a(f"v_lshl_add_u32 v{VXD+1}, v{t3}, 4, v{t0}")
    a(f"v_add_u32 v{VXD+1}, {16*1280-1024}, v{VXD+1}")
    a(f"s_lshl_b32 s{T0}, s{S_W}, 3")
    a(f"v_lshrrev_b32 v{t0}, 4, v1")
    a(f"v_add_u32 v{t1}, s{T0}, v{t0}")
    a(f"v_bfe_u32 v{t2}, v1, 2, 2")
    a(f"v_xor_b32 v{t2}, v{t2}, v{t0}")
    a(f"v_and_b32 v{t3}, 3, v1")
    a(f"v_lshl_add_u32 v{t2}, v{t2}, 2, v{t3}")
    a(f"v_lshlrev_b32 v{t2}, 4, v{t2}")
    a(f"s_lshl_b32 s{T0}, s{S_CJ}, 8")
    a(f"v_add_u32 v{t2}, s{T0}, v{t2}")
    for vd, pitch in ((VQD, 3840), (V1D, 3456)):
        a(f"s_movk_i32 s{T2}, {pitch}")
        a(f"v_mul_lo_u32 v{t3}, v{t1}, s{T2}")
        a(f"v_add_u32 v{vd}, v{t3}, v{t2}")
        a(f"v_add_u32 v{vd+1}, {4*pitch-1024}, v{vd}")
    a(f"s_lshl_b32 s{S_M}, s{S_W}, 11")
    if OPT.get('rot', 1):
        a(f"s_lshr_b32 s{T0}, s{S_I}, 3")
        a(f"s_mul_i32 s{T0}, s{T0}, 10")
        a(f"s_and_b32 s{T1}, s{S_I}, 7")
        a(f"s_mul_i32 s{T1}, s{T1}, 5")
        a(f"s_add_u32 s{T0}, s{T0}, s{T1}")
        a(f"s_lshr_b32 s{T0}, s{T0}, 2")
        a(f"s_sub_u32 s{T1}, s{T0}, 10")
        a(f"s_cmp_ge_u32 s{T0}, 10")
        a(f"s_cselect_b32 s{T0}, s{T1}, s{T0}")
    else:
        a(f"s_mov_b32 s{T0}, 0")
    a(f"s_lshl_b32 s{S_KX}, s{T0}, 7")
    a(f"s_mul_i32 s{S_KQ}, s{T0}, {64*3840}")
    a(f"s_mul_i32 s{S_K1}, s{T0}, {64*3456}")
    def adv(sreg, step, wrap):
        a(f"s_add_u32 s{sreg}, s{sreg}, {step}")
        a(f"s_cmp_eq_u32 s{sreg}, {wrap}")
        a(f"s_cselect_b32 s{sreg}, 0, s{sreg}")
    parts = ((VXD, SRD_A, S_KX, 0, 128, 1280), (VQD, SRD_B, S_KQ, 16384, 64*3840, 640*3840), (V1D, SRD_E, S_K1, 32768, 64*3456, 640*3456))
    def dma(b, part, i):
        vd, sr, sk, off, step, wrap = parts[part]
        if i == 0:
            a(f"s_add_u32 m0, s{S_M}, {(b % 3)*SLOT + off}")
            if b > 0: adv(sk, step, wrap)
        a(f"buffer_load_dwordx4 v{vd+i}, s[{sr}:{sr+3}], s{sk} offen offset:{i*1024} lds", tag=('B', b))
    def dma_block(b):
        for part in range(3):
            for i in range(2): dma(b, part, i)
    NI = OPT.get('finit', 2)
    for b in range(NI): dma_block(b)
    pre_address(a, lbl + "_pa", rows=False)
    a(f"s_and_b32 s{T0}, s{S_W}, 1")
    a(f"s_lshl_b32 s{T0}, s{T0}, 13")
    a(f"v_and_b32 v{t0}, 31, v1")
    a(f"v_lshrrev_b32 v{t1}, 5, v1")
    a(f"v_bfe_u32 v{t2}, v1, 1, 3")
    a(f"v_lshlrev_b32 v{t0}, 7, v{t0}")
    a(f"v_add_u32 v{t0}, s{T0}, v{t0}")
    for s_ in range(4):
        a(f"v_or_b32 v{t3}, {2*s_}, v{t1}")
        a(f"v_xor_b32 v{t3}, v{t3}, v{t2}")
        a(f"v_lshl_add_u32 v{VXF+s_}, v{t3}, 4, v{t0}")
        a(f"v_add_u32 v{VXF+4+s_}, {2*SLOT}, v{VXF+s_}")
    a(f"v_bfe_u32 v{t0}, v1, 2, 2")
    a(f"v_lshl_add_u32 v{t1}, v{t1}, 3, v{t0}")
    a(f"v_lshlrev_b32 v{t1}, 8, v{t1}")
    a(f"v_bfe_u32 v{t2}, v1, 4, 1")
    a(f"v_lshl_add_u32 v{t1}, v{t2}, 5, v{t1}")
    a(f"v_and_b32 v{t2}, 3, v1")
    a(f"v_lshl_add_u32 v{t1}, v{t2}, 3, v{t1}")
    a(f"s_lshr_b32 s{T0}, s{S_W}, 1")
    a(f"v_xor_b32 v{t2}, s{T0}, v{t0}")
    a(f"v_lshl_add_u32 v{VWF}, v{t2}, 6, v{t1}")
    a(f"v_add_u32 v{VWF+1}, {SLOT}, v{VWF}")
    a(f"v_add_u32 v{VWF+2}, {2*SLOT}, v{VWF}")
    a(f"s_lshl_b32 s{T0}, s{S_RB}, 7")
    a(f"s_add_u32 s{T0}, s{T0}, {WS_FLAG + FS}")
    a(f"v_mov_b32 v{t0}, s{T0}")
    a(f"s_min_u32 s{T1}, s{S_CJ}, 13")
    a(f"s_lshl_b32 s{T1}, s{T1}, 2")
    a(f"s_add_u32 s{T1}, s{T1}, {WS_FLAG + FC}")
    a(f"v_mov_b32 v{t1}, s{T1}")
    a(f"v_cmp_gt_u32 s[{T4}:{T4+1}], 32, v1")
    a(f"v_cndmask_b32 v{VP}, v{t1}, v{t0}, s[{T4}:{T4+1}]")
    a(f"s_lshl_b32 s{T0}, s{S_RB}, 7")
    a(f"s_lshl_b32 s{T1}, s{S_CJ}, 2")
    a(f"s_add_u32 s{T0}, s{T0}, s{T1}")
    a(f"s_add_u32 s{S_FQ}, s{T0}, {WS_FLAG + FQ}")
    a(f"s_add_u32 s{S_FH}, s{T0}, {WS_FLAG + FH}")
    a(f"s_cmp_lt_u32 s{S_CJ}, 14")
    a(f"s_cselect_b32 s{S_FHO}, s{S_FH}, 0x7fff0000")
    def rd_b(st, b, u, tt):
        sl = b % 3
        a(f"ds_read_b128 {vr(FB[st]+4*tt,4)}, v{VXF + u + (4 if sl == 2 else 0)} offset:{(SLOT if sl == 1 else 0) + tt*4096}", tag=('f', b, u, 'b', tt))
    def rd_a(st, b, u, F, rd):
        a(f"ds_read_b64_tr_b16 {vr(FB[st]+8+4*F+2*rd,2)}, v{VWF + b % 3} offset:{16384*(F+1) + u*4096 + rd*1024}", tag=('f', b, u, 'a', F))
    def reads(st, b, u):
        return [lambda: rd_b(st, b, u, 0), lambda: rd_a(st, b, u, 0, 0), lambda: rd_a(st, b, u, 0, 1),
                lambda: rd_b(st, b, u, 1), lambda: rd_a(st, b, u, 1, 0), lambda: rd_a(st, b, u, 1, 1)]
    mark(a)
    a.wait_vm(('B', 0))
    a("s_barrier")
    for r in reads(0, 0, 0): r()
    NB = 10
    pend = [(b, p, i) for b in range(NI, 3) for p in range(3) for i in range(2)]
    for b in range(NB):
        for u in range(4):
            s_ = 4*b + u; st = s_ & 1
            last = (b == NB-1 and u == 3)
            if u == 3 and b + 1 < NB:
                while pend: dma(*pend.pop(0))
                a("s_waitcnt lgkmcnt(0)")
                a.wait_vm(('B', b + 1))
                a("s_barrier")
                if b == 3:
                    a.wait_vm('pl')
                    repack_finish(a)
                if b == 6: pre_flags(a, t3, stats=False)
                if b + 3 < NB: pend = [(b + 3, p, i) for p in range(3) for i in range(2)]
            nb, nu = (b, u + 1) if u < 3 else (b + 1, 0)
            rs = [] if last else reads(st ^ 1, nb, nu)
            plan = {-1: rs[0:2], 0: rs[2:5], 1: rs[5:6]}
            for r in plan[-1]: r()
            for k, (tt, F) in enumerate([(0, 0), (1, 0), (0, 1), (1, 1)]):
                a.wait_lg([('f', b, u, 'b', tt), ('f', b, u, 'a', F)])
                d = vr(ACC+16*(2*tt+F), 16)
                a(f"v_mfma_f32_32x32x16_bf16 {d}, {vr(FB[st]+8+4*F,4)}, {vr(FB[st]+4*tt,4)}, {'0' if s_ == 0 else d}")
                for r in plan.get(k, []): r()
                if pend and k in (1, 3): dma(*pend.pop(0))
            if b == 1 and u == 0: pre_issue(a, rows=False)
            if b == 1 and u == 1: nonce_issue(a, 252)
            if b == 3 and u == 1: nonce_check(a, 252)
            if b == 6 and u == 0: poll_issue(a, VP, VPV, 'p1')
            if b == 8 and u == 0:
                L = uid("nf")
                a(f"s_cmp_ge_u32 s{S_CJ}, 14")
                a(f"s_cbranch_scc1 {L}")
                vm0 = list(a.vm)
                poll_check(a, VP, VPV, 'p1')
                a.label(L)
                a.vm = vm0
                a(f"s_lshl_b32 s{T0}, s{S_RB}, 10")
                a(f"s_and_b32 s{T1}, s{S_W}, 1")
                a(f"s_lshl_b32 s{T1}, s{T1}, 9")
                a(f"s_add_u32 s{T0}, s{T0}, s{T1}")
                a(f"s_add_u32 s{T0}, s{T0}, {WS_ST}")
                a(f"v_and_b32 v{t0}, 31, v1")
                a(f"v_lshlrev_b32 v{t0}, 4, v{t0}")
                a(f"buffer_load_dwordx4 {vr(ST,4)}, v{t0}, s[{SRD_WS}:{SRD_WS+3}], s{T0} offen sc1", tag='tab')
                a(f"v_lshrrev_b32 v{t0}, 5, v1")
                a(f"v_lshlrev_b32 v{t0}, 4, v{t0}")
                a(f"s_lshl_b32 s{T0}, s{S_CJ}, 9")
                a(f"s_lshr_b32 s{T1}, s{S_W}, 1")
                a(f"s_lshl_b32 s{T1}, s{T1}, 7")
                a(f"s_add_u32 s{T0}, s{T0}, s{T1}")
                a(f"s_add_u32 s{T1}, s{T0}, {WS_B1}")
                a(f"s_add_u32 s{T0}, s{T0}, {WS_CS}")
                for j in range(4):
                    a(f"buffer_load_dwordx4 {vr(CSR+4*j,4)}, v{t0}, s[{SRD_WS}:{SRD_WS+3}], s{T0} offen offset:{32*j} sc1", tag='tab')
                    a(f"buffer_load_dwordx4 {vr(B1R+4*j,4)}, v{t0}, s[{SRD_WS}:{SRD_WS+3}], s{T1} offen offset:{32*j} sc1", tag='tab')
    mark(a)
    a(f"v_lshrrev_b32 v{t0}, 5, v1")
    a(f"s_lshr_b32 s{T0}, s{S_W}, 1")
    a(f"s_lshl_b32 s{T0}, s{T0}, 3")
    a(f"v_add_u32 v{t0}, s{T0}, v{t0}")
    a(f"v_lshlrev_b32 v{t0}, 14, v{t0}")
    a(f"s_and_b32 s{T0}, s{S_W}, 1")
    a(f"s_lshl_b32 s{T0}, s{T0}, 9")
    a(f"v_and_b32 v{t1}, 31, v1")
    a(f"v_lshl_add_u32 v{t0}, v{t1}, 4, v{t0}")
    a(f"v_add_u32 v{t0}, s{T0}, v{t0}")
    a(f"s_lshl_b32 s{T0}, s{S_CJ}, 19")
    a(f"s_lshl_b32 s{T1}, s{S_RB}, 10")
    a(f"s_add_u32 s{T0}, s{T0}, s{T1}")
    a(f"s_add_u32 s{T0}, s{T0}, {WS_QKV}")
    a(f"s_cmp_lt_u32 s{S_CJ}, 5")
    a(f"s_cselect_b32 s{T2}, 0x3ea52b5c, 1.0")
    a(f"v_mov_b32 v30, s{T2}")
    for tt in range(2):
        for r in range(0, 16, 2):
            a(f"v_pk_mul_f32 {vr(ACC+32*tt+r,2)}, {vr(ACC+32*tt+r,2)}, v[30:31] op_sel_hi:[1,0]")
    for j in range(4):
        a(f"s_add_u32 s{T1}, s{T0}, {2*j*16384}")
        d = FB[0] + 4*j
        for tt in range(2):
            base = ACC + 32*tt + 4*j
            a(f"v_cvt_pk_bf16_f32 v{d+2*tt}, v{base}, v{base+1}")
            a(f"v_cvt_pk_bf16_f32 v{d+2*tt+1}, v{base+2}, v{base+3}")
        a(f"buffer_store_dwordx4 {vr(d,4)}, v{t0}, s[{SRD_WS}:{SRD_WS+3}], s{T1} offen sc1", tag='qst')
    C0, C1, VY, ONE = 2, 3, 4, 6
    TU, TE = 48, 56
    a(f"v_mov_b32 v{ONE}, 1.0")
    a(f"v_mov_b32 v{C0}, 0xc0135761")
    a(f"v_mov_b32 v{C1}, 0xbdd2d3e8")
    a(f"v_lshlrev_b32 v{VY}, 4, v1")
    a(f"s_lshl_b32 s{T0}, s{S_CJ}, 3")
    a(f"s_lshr_b32 s{T1}, s{S_W}, 1")
    a(f"s_lshl_b32 s{T1}, s{T1}, 1")
    a(f"s_add_u32 s{S_ACT}, s{T0}, s{T1}")
    a(f"s_lshl_b32 s{T0}, s{S_RB}, 2")
    a(f"s_and_b32 s{T1}, s{S_W}, 1")
    a(f"s_lshl_b32 s{T1}, s{T1}, 1")
    a(f"s_add_u32 s{T0}, s{T0}, s{T1}")
    a(f"s_mul_i32 s{T0}, s{T0}, 108")
    a(f"s_add_u32 s{T0}, s{T0}, s{S_ACT}")
    a(f"s_lshl_b32 s{T0}, s{T0}, 10")
    a(f"s_add_u32 s{S_HB}, s{T0}, {WS_H}")
    a(f"s_cmp_lt_u32 s{S_ACT}, 108")
    a(f"s_cselect_b32 s{S_HB}, s{S_HB}, 0x7fff0000")
    a.wait_vm('tab')
    P = lambda b, e: vr(b + 2*e, 2)
    for tt in range(2):
        nmp = vr(ST + 2*tt, 2)
        for jj in range(2):
            x = ACC + 16*(2*tt+1) + 8*jj
            for e in range(4):
                j, i = 2*jj + (e >> 1), 2*(e & 1)
                a(f"v_pk_fma_f32 {P(TU,e)}, {nmp}, {vr(CSR+4*j+i,2)}, {vr(B1R+4*j+i,2)} op_sel_hi:[0,1,1]")
            for e in range(4): a(f"v_pk_fma_f32 {P(x,e)}, {nmp}, {P(x,e)}, {P(TU,e)} op_sel:[1,0,0] op_sel_hi:[1,1,1]")
            for e in range(4): a(f"v_pk_mul_f32 {P(TU,e)}, {P(x,e)}, {P(x,e)}")
            for e in range(4): a(f"v_pk_fma_f32 {P(TU,e)}, {P(TU,e)}, {vr(C0,2)}, {vr(C0,2)} op_sel:[0,1,0] op_sel_hi:[1,1,0]")
            for e in range(4): a(f"v_pk_mul_f32 {P(TU,e)}, {P(TU,e)}, {P(x,e)}")
            for e in range(8): a(f"v_exp_f32 v{TE+e}, v{TU+e}")
            for e in range(4): a(f"v_pk_add_f32 {P(TE,e)}, {P(TE,e)}, {vr(ONE,2)} op_sel_hi:[1,0]")
            for e in range(8): a(f"v_rcp_f32 v{TE+e}, v{TE+e}")
            for e in range(4): a(f"v_pk_mul_f32 {P(TE,e)}, {P(TE,e)}, {P(x,e)}")
            d = TD + 4*(2*tt + jj)
            for e in range(4): a(f"v_cvt_pk_bf16_f32 v{d+e}, v{TE+2*e}, v{TE+2*e+1}")
    fq_poll_offsets(a, VP, t3)
    a.wait_vm('qst')
    a("s_barrier")
    flag_store(a, S_FQ, t3)
    mark(a)
    for tt in range(2):
        if tt == 1: a(f"s_add_u32 s{S_HB}, s{S_HB}, {108*1024}")
        for jj in range(2):
            d = TD + 4*(2*tt + jj)
            a(f"buffer_store_dwordx4 {vr(d,4)}, v{VY}, s[{SRD_WS}:{SRD_WS+3}], s{S_HB} offen offset:{jj*1024} sc1", tag='hst')
    a(f"s_branch {lbl}_stage")
    a.label(f"{lbl}_idle")
    a.reset_counters()
    t3i = t3
    srd(a, SRD_A, P_AX, SIZES['AX'])
    rowstats_issue(a)
    colsum_issue(a)
    nonce_issue(a, 252)
    rowstats_compute(a)
    colsum_compute(a, lbl + "_cs")
    nonce_check(a, 252)
    a("s_waitcnt vmcnt(0)")
    a("s_barrier")
    a(f"s_lshl_b32 s{T0}, s{S_RB}, 7")
    a(f"s_add_u32 s{T0}, s{T0}, {WS_FLAG + FS}")
    flag_store(a, T0, t3)
    a(f"s_lshl_b32 s{T0}, s{S_RB}, 2")
    a(f"s_add_u32 s{T0}, s{T0}, {WS_FLAG + FC}")
    flag_store(a, T0, t3)
    pre_address(a, lbl + "_pai", rows=False)
    pre_issue(a, rows=False)
    a.wait_vm('pl')
    repack_finish(a)
    a("s_waitcnt vmcnt(0)")
    a("s_barrier")
    pre_flags(a, t3, stats=False)
    a(f"s_mov_b32 s{S_FHO}, 0x7fff0000")
    fq_poll_offsets(a, VP, t3)
    a.label(f"{lbl}_stage")
    a.reset_counters()
    a(f"s_mov_b64 s[{T4}:{T4+1}], -1")
    wait_flags(a, VP, VPV, T4)
    mark(a)
    Li = uid("ik")
    a(f"s_cmp_ge_u32 s{S_W}, 4")
    a(f"s_cbranch_scc1 {Li}")
    attn_stage_q(a, 3)
    attn_stage_kv(a, t0, t1, t2, 2)
    a.wait_vm(('kv', 0))
    a.label(Li)
    a.reset_counters()

def stage_attn(a, lbl):
    HP, S_HH, S_QW = S_AHP, 78, 79
    VD, VK, VV, VKX, VW = 2, 3, 4, 5, 10
    t0, t1, t2, t3, t4 = 6, 7, 8, 9, 11
    MK = 12
    Q0, Q1 = 20, 24
    KF = [28, 36]
    VF = [44, 48, 52, 56]
    PF = [60, 64, 68, 72]
    OA = 76
    CS, NM, MX = 96, 97, 98
    S = 104
    VPQ, VPH = 92, 94
    a(f"v_and_b32 v{t0}, 31, v1")
    a(f"v_and_b32 v{VPH}, 15, v1")
    a(f"v_min_u32 v{VPH}, 13, v{VPH}")
    a(f"v_lshlrev_b32 v{VPH}, 2, v{VPH}")
    a(f"s_lshr_b32 s{T1}, s{S_FRB}, 1")
    a(f"s_lshl_b32 s{T1}, s{T1}, 7")
    a(f"s_add_u32 s{T1}, s{T1}, {WS_FLAG + FH}")
    a(f"v_add_u32 v{VPH}, s{T1}, v{VPH}")
    a(f"v_lshrrev_b32 v{t1}, 5, v1")
    for r in range(4): a(f"v_mov_b32 v{KF[0]+r}, 0x3f803f80")
    a(f"v_lshlrev_b32 v{t4}, 4, v0")
    a(f"v_add_u32 v{t4}, {LONES}, v{t4}")
    a(f"v_mov_b32 v{KF[1]}, 208")
    a(f"v_cmp_gt_u32 vcc, v{KF[1]}, v0")
    L = uid("on")
    a(f"s_and_saveexec_b64 s[{T4}:{T4+1}], vcc")
    a(f"s_cbranch_execz {L}")
    a(f"ds_write_b128 v{t4}, {vr(KF[0],4)}")
    a.label(L)
    a(f"s_mov_b64 exec, s[{T4}:{T4+1}]")
    SM = 98
    a(f"v_lshlrev_b32 v{t2}, 2, v{t1}")
    a(f"v_sub_u32 v{t2}, v{t0}, v{t2}")
    VM = 248
    a(f"v_mov_b32 v{VM}, v{t2}")
    a(f"v_mov_b32 v{t3}, 0xffff")
    a(f"v_mov_b32 v{t4}, 0xffff0000")
    for q in range(8):
        r0, r1 = 2*q, 2*q + 1
        a(f"v_cmp_le_i32 s[98:99], {8*(r0 >> 2) + (r0 & 3)}, v{VM}")
        a(f"v_cmp_le_i32 s[100:101], {8*(r1 >> 2) + (r1 & 3)}, v{VM}")
        a(f"v_cndmask_b32 v{MK+q}, 0, v{t3}, s[98:99]")
        a(f"v_cndmask_b32 v{KF[1]}, 0, v{t4}, s[100:101]")
        a(f"v_or_b32 v{MK+q}, v{MK+q}, v{KF[1]}")
    a(f"s_lshl_b32 s{T0}, s{S_QW}, 8")
    a(f"s_mul_i32 s{T3}, s{S_HH}, {5*PST}")
    a(f"s_add_u32 s{T2}, s{T0}, s{T3}")
    a(f"s_add_u32 s{T2}, s{T2}, {LK}")
    a(f"v_lshlrev_b32 v{t2}, 3, v{t0}")
    a(f"v_add_u32 v{t2}, s{T2}, v{t2}")
    a(f"s_movk_i32 s{T1}, {2*PST}")
    a(f"v_mul_lo_u32 v{t3}, v{t1}, s{T1}")
    a(f"v_add_u32 v{VK}, v{t2}, v{t3}")
    a(f"v_add_u32 v{VKX}, {4*PST}, v{t2}")
    a(f"v_bfe_u32 v{t2}, v1, 4, 1")
    a(f"v_and_b32 v{t3}, 3, v1")
    a(f"v_lshl_add_u32 v{t2}, v{t2}, 2, v{t3}")
    a(f"v_bfe_u32 v{t3}, v1, 2, 2")
    a(f"v_lshl_add_u32 v{t3}, v{t1}, 2, v{t3}")
    a(f"v_lshlrev_b32 v{t3}, 3, v{t3}")
    a(f"v_add_u32 v{t3}, s{T0}, v{t3}")
    a(f"s_movk_i32 s{T1}, {PST}")
    a(f"v_mul_lo_u32 v{t4}, v{t2}, s{T1}")
    a(f"v_cmp_gt_u32 s[{T4}:{T4+1}], 5, v{t2}")
    a(f"s_add_u32 s{T3}, s{T3}, {LV}")
    a(f"s_sub_u32 s{T2}, s{T3}, {LONES}")
    a(f"v_lshlrev_b32 v{KF[0]}, 5, v{t2}")
    a(f"v_add_u32 v{KF[0]}, s{T2}, v{KF[0]}")
    a(f"v_and_b32 v{KF[0]}, 255, v{KF[0]}")
    a(f"v_add_u32 v{KF[0]}, {LONES}, v{KF[0]}")
    a(f"v_add_u32 v{KF[0]+1}, s{T3}, v{t4}")
    a(f"v_cndmask_b32 v{KF[0]}, v{KF[0]}, v{KF[0]+1}, s[{T4}:{T4+1}]")
    a(f"v_add_u32 v{VV}, v{KF[0]}, v{t3}")
    a(f"v_mov_b32 v{CS}, 0x3ea52b5c")
    for st in range(2):
        a(f"v_mov_b32 v{KF[st]+6}, 0"); a(f"v_mov_b32 v{KF[st]+7}, 0")
    a(f"v_mov_b32 v{Q1+2}, 0"); a(f"v_mov_b32 v{Q1+3}, 0")
    a(f"v_lshlrev_b32 v{VW}, 4, v1")
    a(f"s_lshl_b32 s{T0}, s{S_ARB}, 2")
    a(f"s_add_u32 s{S_QB}, s{T0}, s{S_QW}")
    a(f"s_mul_i32 s{T0}, s{S_HH}, 5120")
    a(f"s_lshl_b32 s{T1}, s{S_QW}, 8")
    a(f"s_add_u32 s{T0}, s{T0}, s{T1}")
    a(f"s_add_u32 s{T0}, s{T0}, {QL}")
    a(f"v_lshlrev_b32 v{t2}, 3, v{t0}")
    a(f"v_add_u32 v{t2}, s{T0}, v{t2}")
    a(f"v_lshl_add_u32 v{t3}, v{t1}, 11, v{t2}")
    a("s_waitcnt lgkmcnt(0)")
    a("s_barrier")
    a(f"ds_read_b64 {vr(Q0,2)}, v{t3}")
    a(f"ds_read_b64 {vr(Q0+2,2)}, v{t3} offset:1024")
    a(f"ds_read_b64 {vr(Q1,2)}, v{t2} offset:4096")
    a(f"v_cmp_gt_u32 s[{T4}:{T4+1}], 32, v1")
    a("s_waitcnt lgkmcnt(0)")
    for q in (Q1, Q1+1):
        a(f"v_cndmask_b32 v{q}, 0, v{q}, s[{T4}:{T4+1}]")
    mark(a)
    SB = [100, 116, 132]; NM16 = 148
    order = [0, 8, 1, 2, 3, 4, 5, 6, 7]
    a(f"v_mov_b32 v{Q1+2}, 0x3f80")
    a(f"v_cndmask_b32 v{Q1+2}, 0, v{Q1+2}, s[{T4}:{T4+1}]")
    kn = [0]
    def rd_k(tl):
        st = KF[kn[0] % 2]; kn[0] += 1
        a(f"ds_read_b64 {vr(st,2)}, v{VK} offset:{tl*256}", tag=('k', tl))
        a(f"ds_read_b64 {vr(st+2,2)}, v{VK} offset:{PST + tl*256}", tag=('k', tl))
        a(f"ds_read_b64 {vr(st+4,2)}, v{VKX} offset:{tl*256}", tag=('k', tl))
        if tl < 8:
            a(f"s_cmp_lt_u32 s{S_QB}, {8-tl}")
            a(f"s_cselect_b32 s{T0}, 0xf149, 0")
            a(f"v_mov_b32 v{st+6}, s{T0}")
        else:
            a(f"v_mov_b32 v{st+6}, 0")
        return st
    def qk(tl, st, buf, c):
        a.wait_lg(('k', tl))
        d = vr(buf, 16)
        a(f"v_mfma_f32_32x32x16_bf16 {d}, {vr(st,4)}, {vr(Q0,4)}, {c}")
        a(f"v_mfma_f32_32x32x16_bf16 {d}, {vr(st+4,4)}, {vr(Q1,4)}, {d}")
    def merge():
        for r in range(0, 16, 2):
            a(f"v_cmp_le_i32 s[98:99], {8*(r >> 2) + (r & 3)}, v{VM}")
            a(f"v_cmp_le_i32 s[100:101], {8*((r+1) >> 2) + ((r+1) & 3)}, v{VM}")
            a(f"v_cndmask_b32 v{SB[0]+r}, v{SB[0]+r}, v{SB[1]+r}, s[98:99]")
            a(f"v_cndmask_b32 v{SB[0]+r+1}, v{SB[0]+r+1}, v{SB[1]+r+1}, s[100:101]")
    bufs = {0: SB[0], 8: SB[1]}
    for n, tl in enumerate(range(1, 8)): bufs[tl] = SB[(2 - n) % 3]
    def tmax(buf, first):
        for h in range(2):
            m = MX + h
            a(f"v_max3_f32 v{m}, v{buf+8*h}, v{buf+8*h+1}, {'v%d' % (buf+8*h+2) if first else 'v%d' % m}")
            ks = range(3, 8) if first else range(2, 8)
            ks = list(ks)
            while ks:
                if len(ks) >= 2:
                    a(f"v_max3_f32 v{m}, v{m}, v{buf+8*h+ks[0]}, v{buf+8*h+ks[1]}"); ks = ks[2:]
                else:
                    a(f"v_max_f32 v{m}, v{m}, v{buf+8*h+ks[0]}"); ks = ks[1:]
    st = rd_k(0); st2 = rd_k(8)
    qk(0, st, bufs[0], "0")
    st = rd_k(1)
    qk(8, st2, bufs[8], "0")
    st2 = rd_k(2)
    qk(1, st, bufs[1], "0")
    merge()
    tmax(SB[0], True)
    cur = st2
    for tl in range(2, 8):
        nxt = rd_k(tl + 1) if tl + 1 < 8 else None
        qk(tl, cur, bufs[tl], "0")
        tmax(bufs[tl-1], False)
        cur = nxt
    tmax(bufs[7], False)
    a(f"v_max_f32 v{MX}, v{MX}, v{MX+1}")
    a(f"v_mov_b32 v{MX+1}, v{MX}")
    a(f"v_permlane32_swap_b32 v{MX}, v{MX+1}")
    a(f"v_max_f32 v{MX}, v{MX}, v{MX+1}")
    a(f"v_sub_f32 v{NM16}, 0, v{MX}")
    for r in range(1, 16): a(f"v_mov_b32 v{NM16+r}, v{NM16}")
    if OPT.get('fine5'): mark(a)
    st = rd_k(0); st2 = rd_k(8)
    Lv = uid("vb")
    a(f"s_cmp_ge_u32 s{S_W}, 4")
    a(f"s_cbranch_scc1 {Lv}_1")
    a("s_waitcnt vmcnt(0)")
    a.label(f"{Lv}_1")
    if OPT.get('thp', -1) < 0: a("s_waitcnt vmcnt(0)")
    a.vm = []
    a("s_barrier")
    if OPT.get('thp', -1) < 0: flag_store(a, S_FHO, t3)
    dma_wf(a, 0, VW); dma_wf(a, 1, VW)
    mark(a)
    nv = [0]; ps = [0]
    for r in range(16): a(f"v_mov_b32 v{OA+r}, 0")
    def rd_v(tl, kk):
        slot = nv[0] % 4; nv[0] += 1
        for rd in range(2):
            a(f"ds_read_b64_tr_b16 {vr(VF[slot]+2*rd,2)}, v{VV} offset:{tl*256 + kk*128 + rd*64}", tag=('v', tl, kk))
        return slot
    def frag(src):
        p = PF[ps[0] % 4]; ps[0] += 1
        for e in range(8): a(f"v_exp_f32 v{src+e}, v{src+e}")
        for e in range(4): a(f"v_cvt_pk_bf16_f32 v{p+e}, v{src+2*e}, v{src+2*e+1}")
        return p
    def pv(p, slot, tag):
        a.wait_lg(tag)
        a(f"v_mfma_f32_32x32x16_bf16 {vr(OA,16)}, {vr(VF[slot],4)}, {vr(p,4)}, {vr(OA,16)}")
    C = vr(NM16, 16)
    qk(0, st, bufs[0], C)
    st = rd_k(1)
    qk(8, st2, bufs[8], C)
    st2 = rd_k(2)
    qk(1, st, bufs[1], C)
    merge()
    fin = None
    for kk in range(2):
        s0 = rd_v(0, kk); s8 = rd_v(8, kk)
        p = frag(SB[0] + 8*kk)
        p8 = PF[ps[0] % 4]; ps[0] += 1
        for e in range(4): a(f"v_and_b32 v{p8+e}, v{p+e}, v{MK+4*kk+e}")
        for e in range(4): a(f"v_xor_b32 v{p+e}, v{p+e}, v{p8+e}")
        pv(p, s0, ('v', 0, kk))
        pv(p8, s8, ('v', 8, kk))
    def publish_h():
        a("s_waitcnt vmcnt(10)")
        a("s_barrier")
        flag_store(a, S_FHO, t3)
    if OPT.get('thp', -1) == 0: publish_h()
    cur = st2
    for tl in range(1, 8):
        if tl + 1 < 8:
            nxt = rd_k(tl + 2) if tl + 2 < 8 else None
            qk(tl + 1, cur, bufs[tl+1], C)
            cur = nxt
        for kk in range(2):
            slot = rd_v(tl, kk)
            p = frag(bufs[tl] + 8*kk)
            pv(p, slot, ('v', tl, kk))
        if tl == OPT.get('thp', -1): publish_h()
        if tl == OPT.get('tpoll', 3): poll_issue(a, VPH, VPH+1, 'ph')
        if tl == OPT.get('ttok', 5):
            if OPT.get('fine5'): mark(a)
            fin = final_setup(a, VPH)
            if OPT.get('fine5'): mark(a)
    a(f"v_and_b32 v{t0}, 1, v1")
    a(f"v_mul_u32_u24 v{t0}, {40*1024}, v{t0}")
    a(f"v_bfe_u32 v{t1}, v1, 1, 4")
    a(f"v_lshl_add_u32 v{t0}, v{t1}, 4, v{t0}")
    a(f"s_and_b32 s{T0}, s{S_QB}, 1")
    a(f"s_lshl_b32 s{T0}, s{T0}, 8")
    a(f"s_lshr_b32 s{T1}, s{S_QB}, 1")
    a(f"s_mul_i32 s{T1}, s{T1}, {80*1024}")
    a(f"s_add_u32 s{T0}, s{T0}, s{T1}")
    a(f"s_add_u32 s{T0}, s{T0}, {WS_O}")
    a(f"v_lshrrev_b32 v{t1}, 5, v1")
    a(f"v_lshl_add_u32 v{t2}, v{t1}, 9, v{t0}")
    a(f"v_rcp_f32 v{NM}, v{OA+12}")
    for r in range(12): a(f"v_mul_f32 v{OA+r}, v{OA+r}, v{NM}")
    for e in range(4): a(f"v_cvt_pk_bf16_f32 v{PF[0]+e}, v{OA+2*e}, v{OA+2*e+1}")
    a(f"v_cvt_pk_bf16_f32 v{PF[1]}, v{OA+8}, v{OA+9}")
    a(f"v_cvt_pk_bf16_f32 v{PF[1]+1}, v{OA+10}, v{OA+11}")
    a(f"s_lshl_b32 s{T1}, s{HP}, 1")
    a(f"s_add_u32 s{T1}, s{T1}, s{S_HH}")
    a(f"s_lshl_b32 s{T1}, s{T1}, 10")
    a(f"s_add_u32 s{T1}, s{T1}, s{T0}")
    a(f"buffer_store_dwordx4 {vr(PF[0],4)}, v{t2}, s[{SRD_WS}:{SRD_WS+3}], s{T1} offen sc1", tag='ost')
    a(f"s_lshr_b32 s{T1}, s{HP}, 1")
    a(f"s_add_u32 s{T1}, s{T1}, 32")
    a(f"s_lshl_b32 s{T1}, s{T1}, 10")
    a(f"s_and_b32 s{T2}, s{HP}, 1")
    a(f"s_lshl_b32 s{T2}, s{T2}, 9")
    a(f"s_add_u32 s{T1}, s{T1}, s{T2}")
    a(f"s_lshl_b32 s{T2}, s{S_HH}, 3")
    a(f"s_add_u32 s{T1}, s{T1}, s{T2}")
    a(f"s_add_u32 s{T1}, s{T1}, s{T0}")
    a("s_mov_b32 exec_hi, 0")
    a(f"buffer_store_dwordx2 {vr(PF[1],2)}, v{t0}, s[{SRD_WS}:{SRD_WS+3}], s{T1} offen sc1", tag='ost')
    a("s_mov_b32 exec_hi, -1")
    S_FO = 78
    a(f"s_lshl_b32 s{T0}, s{S_ARB}, 7")
    a(f"s_lshl_b32 s{T1}, s{HP}, 2")
    a(f"s_add_u32 s{T0}, s{T0}, s{T1}")
    a(f"s_add_u32 s{S_FO}, s{T0}, {WS_FLAG + FO}")
    mark(a)
    return dict(VPH=VPH, VW=VW, S_FO=S_FO, fin=fin)

TR, NT, HM, NM_ = 164, 20, 27, 37
F_HB, F_OB, F_TG, F_KG = 70, 71, 72, 81
F_VB = 11
def final_setup(a, VPH):
    TD = OPT.get('td', 16)
    t1, t2, t3 = 6, 7, 8
    a(f"s_and_b32 s{F_TG}, s{S_W}, 3")
    a(f"s_lshr_b32 s{F_KG}, s{S_W}, 2")
    poll_check(a, VPH, VPH+1, 'ph')
    if OPT.get('pfh', 0): touch_h(a, t1, t2)
    a(f"v_lshrrev_b32 v{t1}, 5, v1")
    a(f"v_bfe_u32 v{t2}, v1, 4, 1")
    a(f"v_lshlrev_b32 v{t1}, 10, v{t1}")
    a(f"v_lshl_add_u32 v{t1}, v{t2}, 9, v{t1}")
    a(f"v_and_b32 v{t2}, 15, v1")
    a(f"s_and_b32 s{T0}, s{F_TG}, 1")
    a(f"s_lshl_b32 s{T0}, s{T0}, 4")
    a(f"v_add_u32 v{t3}, s{T0}, v{t2}")
    a(f"v_lshl_add_u32 v{F_VB}, v{t3}, 4, v{t1}")
    a(f"s_lshl_b32 s{T0}, s{S_FRB}, 1")
    a(f"s_lshr_b32 s{T1}, s{F_TG}, 1")
    a(f"s_add_u32 s{T0}, s{T0}, s{T1}")
    a(f"s_lshl_b32 s{T2}, s{F_KG}, 11")
    a(f"s_mul_i32 s{T1}, s{T0}, {108*1024}")
    a(f"s_add_u32 s{T1}, s{T1}, s{T2}")
    a(f"s_add_u32 s{F_HB}, s{T1}, {WS_H}")
    a(f"s_mul_i32 s{T1}, s{T0}, {40*1024}")
    a(f"s_add_u32 s{T1}, s{T1}, s{T2}")
    a(f"s_add_u32 s{F_OB}, s{T1}, {WS_O}")
    def ld_t(m):
        sb, k = (F_HB, m) if m < HM else (F_OB, m - HM)
        if k > 0 and not OPT.get('hotft'): a(f"s_add_u32 s{sb}, s{sb}, 4096")
        a(f"buffer_load_dwordx4 {vr(TR+4*(m % NT),4)}, v{F_VB}, s[{SRD_WS}:{SRD_WS+3}], s{sb} offen sc1", tag=('T', m))
    for m in range(TD): ld_t(m)
    return ld_t

def stage_final(a, lbl, st):
    VPH, S_FO = st['VPH'], st['S_FO']
    VW = st['VW']; ld_t = st['fin']
    VG, VO, VF = 3, 4, 6
    VA = 12
    t0, t1, t2, t3 = 16, 17, 18, 19
    AS = [20, 40, 60]
    ACB, ACA, BI = 100, 120, 80
    TD = OPT.get('td', 16)
    NM = NM_
    S_TG, S_KG = F_TG, F_KG
    srd(a, SRD_A, P_B2, SIZES['B2'])
    srd(a, SRD_B, P_OUT, SIZES['OUT'])
    a(f"s_mul_i32 s{T0}, s{S_KG}, 5120")
    a(f"v_lshlrev_b32 v{t1}, 4, v1")
    a(f"v_add_u32 v{t1}, s{T0}, v{t1}")
    for k in range(4): a(f"v_add_u32 v{VA+k}, {RING[k]}, v{t1}")
    def rd_a(m, F):
        g, u = m >> 2, m & 3
        a(f"ds_read_b128 {vr(AS[m % 3]+4*F,4)}, v{VA + g % 4} offset:{u*10240 + F*1024}", tag=('A', m, F))
    a.wait_vm(('W', 0))
    a("s_barrier")
    for m in range(2):
        for F in range(5): rd_a(m, F)
    def late_setup():
        a(f"s_lshl_b32 s{T0}, s{S_FRB}, 6")
        a(f"s_lshr_b32 s{T1}, s{S_TG}, 1")
        a(f"s_add_u32 s{T0}, s{T0}, s{T1}")
        a(f"s_and_b32 s{T1}, s{S_TG}, 1")
        a(f"s_lshl_b32 s{T1}, s{T1}, 5")
        a(f"s_add_u32 s{T0}, s{T0}, s{T1}")
        a(f"v_and_b32 v{t3}, 15, v1")
        a(f"v_lshlrev_b32 v{t3}, 1, v{t3}")
        a(f"v_add_u32 v{t3}, s{T0}, v{t3}")
        a(f"v_lshlrev_b32 v{t1}, 2, v{t3}")
        a(f"v_add_u32 v{t1}, {WS_G}, v{t1}")
        a(f"buffer_load_dword v{VG}, v{t1}, s[{SRD_WS}:{SRD_WS+3}], 0 offen sc1", tag='g')
        a(f"v_lshrrev_b32 v{t0}, 4, v1")
        a(f"s_movk_i32 s{T1}, 1280")
        a(f"v_mul_lo_u32 v{t3}, v{t3}, s{T1}")
        a(f"s_mul_i32 s{T0}, s{S_FCJ}, 160")
        a(f"v_lshl_add_u32 v{t3}, v{t0}, 3, v{t3}")
        a(f"v_add_u32 v{VO}, s{T0}, v{t3}")
        a(f"v_lshlrev_b32 v{t1}, 3, v{t0}")
        a(f"v_add_u32 v{t1}, s{T0}, v{t1}")
        for F in range(5):
            a(f"buffer_load_dwordx2 {vr(BI+2*F,2)}, v{t1}, s[{SRD_A}:{SRD_A+3}], 0 offen offset:{32*F}", tag='g')
    if not OPT.get('latef', 1):
        dma_wf(a, 2, VW); late_setup()
    a(f"s_lshr_b32 s{T0}, s{S_FRB}, 1")
    a(f"s_lshl_b32 s{T0}, s{T0}, 7")
    a(f"s_add_u32 s{T0}, s{T0}, {WS_FLAG + FO}")
    a(f"v_and_b32 v{VF}, 15, v1")
    a(f"v_lshlrev_b32 v{VF}, 2, v{VF}")
    a(f"v_add_u32 v{VF}, s{T0}, v{VF}")
    mark(a)
    NG = 10
    POLL = HM - TD - 4
    for m in range(NM):
        g, u = m >> 2, m & 3
        if m == HM: mark(a)
        if u == 2 and g + 1 < NG:
            if g == 0: a.wait_vm(['ost', ('W', 1)])
            else: a.wait_vm(('W', g + 1))
            a("s_barrier")
            if g == 0:
                flag_store(a, S_FO, t1)
                dma_wf(a, 3, VW)
            elif g + 3 < NG and not OPT.get('f_nodma'): dma_wf(a, g + 3, VW)
        if m == POLL: poll_issue(a, VF, VF+1, 'fo')
        if m + TD == HM: poll_check(a, VF, VF+1, 'fo')
        a.wait_vm(('T', m))
        for F in range(5):
            a.wait_lg(('A', m, F))
            acc = (ACB if m < HM else ACA) + 4*F
            d = vr(acc, 4)
            a(f"v_mfma_f32_16x16x32_bf16 {d}, {vr(AS[m % 3]+4*F,4)}, {vr(TR+4*(m % NT),4)}, {'0' if m in (0, HM) else d}")
            if m + 2 < NM and not OPT.get('f_nolds'):
                rd_a(m + 2, F)
            if F == 2 and m + TD < NM and not OPT.get('f_notok'):
                ld_t(m + TD)
        if m == 0 and OPT.get('latef', 1): dma_wf(a, 2, VW)
        if m == 8 and OPT.get('latef', 1): late_setup()
    mark(a)
    a.wait_vm('g')
    a(f"v_sub_f32 v{t0}, 1.0, v{VG}")
    Lb = uid("bi")
    a(f"s_cmp_lg_u32 s{S_KG}, 0")
    a(f"s_cbranch_scc1 {Lb}")
    for F in range(5):
        for e in range(2):
            a(f"v_lshlrev_b32 v{t2}, 16, v{BI+2*F+e}")
            a(f"v_and_b32 v{t3}, 0xffff0000, v{BI+2*F+e}")
            a(f"v_add_f32 v{ACB+4*F+2*e}, v{ACB+4*F+2*e}, v{t2}")
            a(f"v_add_f32 v{ACB+4*F+2*e+1}, v{ACB+4*F+2*e+1}, v{t3}")
    a.label(Lb)
    for r in range(20): a(f"v_mul_f32 v{ACB+r}, v{ACB+r}, v{t0}")
    for r in range(20): a(f"v_fmac_f32 v{ACB+r}, v{ACA+r}, v{VG}")
    a(f"v_lshlrev_b32 v{t1}, 4, v1")
    a(f"s_mul_i32 s{T0}, s{S_TG}, 5120")
    a(f"s_add_u32 s{T0}, s{T0}, {RING[2]}")
    a(f"v_add_u32 v{t1}, s{T0}, v{t1}")
    L = uid("rd")
    def finish(own, other):
        for F in other:
            a(f"ds_write_b128 v{t1}, {vr(ACB+4*F,4)} offset:{F*1024}")
        a("s_waitcnt lgkmcnt(0)")
        a("s_barrier")
        for F in own:
            a(f"ds_read_b128 {vr(ACA+4*F,4)}, v{t1} offset:{F*1024}", tag=('r', F))
        for F in own:
            a.wait_lg(('r', F))
            for r in range(4): a(f"v_add_f32 v{ACB+4*F+r}, v{ACB+4*F+r}, v{ACA+4*F+r}")
            d = AS[0] + 2*F
            a(f"v_cvt_pk_bf16_f32 v{d}, v{ACB+4*F}, v{ACB+4*F+1}")
            a(f"v_cvt_pk_bf16_f32 v{d+1}, v{ACB+4*F+2}, v{ACB+4*F+3}")
            a(f"buffer_store_dwordx2 {vr(d,2)}, v{VO}, s[{SRD_B}:{SRD_B+3}], 0 offen offset:{32*F}")
    a(f"s_cmp_eq_u32 s{S_KG}, 0")
    a(f"s_cbranch_scc1 {L}")
    finish((3, 4), (0, 1, 2))
    if G.STAMPS: a("s_waitcnt vmcnt(0)")
    a("s_endpgm")
    a.label(L)
    a.reset_counters()
    finish((0, 1, 2), (3, 4))
    a.reset_counters()

def code_prefetch(a):
    L = uid("cp")
    a(f"s_cmp_lg_u32 s{S_W}, 3")
    a(f"s_cbranch_scc1 {L}_skip")
    a(f"s_getpc_b64 s[{T4}:{T4+1}]")
    a.label(L)
    a(f"s_and_b32 s{T0}, s{S_I}, 7")
    a(f"s_lshl_b32 s{T0}, s{T0}, 13")
    a("v_lshlrev_b32 v251, 7, v1")
    a(f"v_add_u32 v251, s{T0}, v251")
    a(f"v_min_u32 v251, L_end-{L}-4, v251")
    vm = list(a.vm)
    a(f"global_load_dword v251, v251, s[{T4}:{T4+1}]")
    a.vm = vm
    a.label(f"{L}_skip")

def build():
    if OPT.get('fine2'):
        G_mark = G.mark
    OPT['mega'] = True
    LDS = 163840
    name = NAME + "_kernel"
    a = Asm()
    if G.STAMPS: a("s_memrealtime s[94:95]")
    a("s_cmp_ge_u32 s2, 256")
    a("s_cbranch_scc1 L_end")
    prologue_ids(a)
    CTX['k'] = 0; CTX['slot'] = 0
    stage1g(a, "s1"); mark(a)
    st = stage_attn(a, "attn")
    stage_final(a, "fin", st)
    if G.STAMPS: a("s_waitcnt vmcnt(0)")
    mark(a)
    a.label("L_end")
    return [(name, a.text())], LDS

def emit(ks, LDS):
    s = "\n".join(G.header_comment()) + "\n"
    s += f"; @launch grid=(256,1,1) block=(512,1,1) lds={LDS}\n"
    s += '.amdgcn_target "amdgcn-amd-amdhsa--gfx950"\n.text\n'
    for name, body in ks:
        s += G.kernel_text(name, body, 256, LDS)
    s += '.section .rodata,"a"\n'
    for name, _ in ks:
        s += ".p2align 6\n" + G.descriptor(name)
    return s

if __name__ == "__main__":
    if "stamps" in sys.argv: G.STAMPS = True
    for arg in sys.argv[1:]:
        if "=" in arg:
            k, v = arg.split("="); OPT[k] = int(v)
    ks, LDS = build()
    sys.stdout.write(emit(ks, LDS))
```

```python
import sys
import gen as G
from gen import mark4
from gen import (Asm, NAME, SIZES, srd, vr, uid, OPT, mark, stamp, CTX, dpp_sum16, WF_TILE,
                 P_AX, P_WQKV, P_WO, P_W1, P_B1, P_W2, P_B2, P_GW, P_OUT, P_DBG, P_WS,
                 SRD_A, SRD_B, SRD_WS, SRD_C, S_W, S_IDX, S_X, S_I, T0, T1, T2, T3, T4, T5, T6, T7,
                 S_RB, S_CJ, S_MASK, S_NONCE, nonce_post, nonce_get, publish, wait_flags)

WS_ST   = 0x0000000
WS_CS   = 0x0010000
WS_B1   = 0x0012000
WS_G    = G.WS_G
WS_QKV  = G.WS_QKV
WS_H, WS_O, WS_WF, WS_FLAG = G.WS_H, G.WS_O, G.WS_WF, G.WS_FLAG
FS, FW, FQ, FH, FO, FC = 0, 2048, 3072, 5120, 7168, 9216
PST = 3104
LB = 98304
LK, LV, LONES = LB, LB + 10*PST, LB + 20*PST
RING = [0, 40960, 81920, 122880]
WSLOT = 40960
SRD_D = 60
S_KX, S_KQ, S_K1 = 58, 59, 80
S_QB = 61
S_FHO, S_HBO = 86, 87
S_ARB, S_AHP, S_LW = 88, 89, 90

V_FLG = 250
def flag_setup(a):
    a(f"v_mov_b32 v{V_FLG}, 0x7ffffff0")
    a(f"v_cmp_eq_u32 s[{T4}:{T4+1}], 0, v0")
    a(f"v_cndmask_b32 v{V_FLG}, v{V_FLG}, 0, s[{T4}:{T4+1}]")

def flag_store(a, sflag, v):
    a(f"v_mov_b32 v{v}, s{S_NONCE}")
    a(f"buffer_store_dword v{v}, v{V_FLG}, s[{SRD_WS}:{SRD_WS+3}], s{sflag} offen sc1", tag='flag')

def poll_issue(a, voff, vval, tag):
    a(f"buffer_load_dword v{vval}, v{voff}, s[{SRD_WS}:{SRD_WS+3}], 0 offen sc1", tag=tag)

def poll_check(a, voff, vval, tag):
    L = uid("pc")
    a.wait_vm(tag)
    keep = list(a.vm)
    a.label(L)
    a(f"v_cmp_ne_u32 vcc, s{S_NONCE}, v{vval}")
    a("s_nop 4")
    a(f"s_cbranch_vccz {L}_ok")
    a("s_sleep 1")
    a(f"buffer_load_dword v{vval}, v{voff}, s[{SRD_WS}:{SRD_WS+3}], 0 offen sc1")
    a("s_waitcnt vmcnt(0)")
    a(f"s_branch {L}")
    a.label(f"{L}_ok")
    a.vm = keep

def poll_recheck(a, voff, vval):
    L = uid("pr")
    keep = list(a.vm)
    a.label(L)
    a(f"v_cmp_ne_u32 vcc, s{S_NONCE}, v{vval}")
    a("s_nop 4")
    a(f"s_cbranch_vccz {L}_ok")
    a("s_sleep 1")
    a(f"buffer_load_dword v{vval}, v{voff}, s[{SRD_WS}:{SRD_WS+3}], 0 offen sc1")
    a("s_waitcnt vmcnt(0)")
    a(f"s_branch {L}")
    a.label(f"{L}_ok")
    a.vm = keep

def prologue_ids(a):
    a("s_load_dwordx16 s[4:19], s[0:1], 0")
    a("s_load_dwordx8 s[20:27], s[0:1], 64")
    a("v_lshrrev_b32 v2, 6, v0")
    a("v_and_b32 v1, 63, v0")
    a(f"v_readfirstlane_b32 s{S_W}, v2")
    a(f"s_and_b32 s{S_X}, s2, 7")
    a(f"s_lshr_b32 s{S_I}, s2, 3")
    a(f"s_lshr_b32 s{T0}, s{S_X}, 2")
    a(f"s_lshl_b32 s{T0}, s{T0}, 3")
    a(f"s_and_b32 s{T1}, s{S_I}, 7")
    a(f"s_add_u32 s{S_RB}, s{T0}, s{T1}")
    a(f"s_and_b32 s{T0}, s{S_X}, 3")
    a(f"s_lshl_b32 s{T0}, s{T0}, 2")
    a(f"s_lshr_b32 s{T1}, s{S_I}, 3")
    a(f"s_add_u32 s{S_CJ}, s{T0}, s{T1}")

def prologue_rest(a):
    srd(a, SRD_WS, P_WS, G.WS_SIZE)
    flag_setup(a)
    nonce_post(a)
    if OPT.get('cpf', 1): code_prefetch(a)
    stamp(a, 0, 0)
    if G.STAMPS:
        a("s_lshl_b32 s97, s2, 7")
        a(f"s_add_u32 s97, s97, {G.WS_STAMP + 15*4}")
        a("v_mov_b32 v254, s94")
        a(f"buffer_store_dword v254, off, s[{SRD_WS}:{SRD_WS+3}], s97")
        a.vm.pop()

RX, RG, RT, RO = 160, 168, 176, 186
VS = 128
S_ST, S_RPO, S_RPM = 82, 83, 84

def pre_address(a, lbl, two=False, rows=True):
    t0, t1, t2, t3, t4, t5 = range(RT, RT+6)
    if rows: row_address(a, two)
    repack_address(a, lbl)

def row_address(a, two):
    t0, t1, t2, t3, t4, t5 = range(RT, RT+6)
    srd(a, SRD_D, P_GW, SIZES['GW'])
    a(f"s_lshl_b32 s{T0}, s{S_RB}, 7")
    a(f"s_lshl_b32 s{T1}, s{S_CJ}, 3")
    a(f"s_add_u32 s{T0}, s{T0}, s{T1}")
    a(f"s_add_u32 s{T0}, s{T0}, s{S_W}")
    if two: a(f"s_sub_u32 s{T0}, s{T0}, 4")
    a(f"s_mul_i32 s{T1}, s{T0}, 1280")
    a(f"v_lshlrev_b32 v{RO+1}, 4, v1")
    a(f"v_add_u32 v{RO}, s{T1}, v{RO+1}")
    a(f"v_mov_b32 v{t0}, 0x7ffffff0")
    a(f"v_cmp_gt_u32 s[{T4}:{T4+1}], 16, v1")
    a(f"v_add_u32 v{t1}, 1024, v{RO}")
    a(f"v_cndmask_b32 v{RO+2}, v{t0}, v{t1}, s[{T4}:{T4+1}]")
    a(f"v_add_u32 v{t1}, 1024, v{RO+1}")
    a(f"v_cndmask_b32 v{RO+3}, v{t0}, v{t1}, s[{T4}:{T4+1}]")
    a(f"s_mov_b32 s85, s{T0}")

def repack_address(a, lbl):
    t0, t1, t2, t3, t4, t5 = range(RT, RT+6)
    a(f"s_mul_i32 s{T0}, s{S_I}, 3")
    a(f"s_lshl_b32 s{T1}, s{S_I}, 1")
    a(f"s_add_u32 s{T1}, s{T1}, 10")
    a(f"s_cmp_lt_u32 s{S_I}, 10")
    a(f"s_cselect_b32 s{T0}, s{T0}, s{T1}")
    a(f"s_cselect_b32 s{T1}, 3, 2")
    a(f"s_sub_u32 s{T2}, s{S_W}, 4")
    a(f"s_add_u32 s{S_ST}, s{T0}, s{T2}")
    a(f"s_cmp_lt_u32 s{T2}, s{T1}")
    a(f"s_cselect_b32 s{S_ST}, s{S_ST}, 0x100")
    a(f"s_cselect_b32 s{S_RPO}, 0, 0x7fff0000")
    a(f"s_mul_i32 s{T2}, s{T2}, 5120")
    a(f"s_add_u32 s{T2}, s{T2}, {RPL}")
    a(f"s_cselect_b32 s{S_RPM}, s{T2}, s{T2}") if False else None
    a(f"s_cmp_lt_u32 s{S_ST}, 74")
    a(f"s_cselect_b32 s{S_RPM}, s{T2}, {163840}")
    for n in range(5): a(f"v_mov_b32 v{VS+n}, 0")
    srd(a, SRD_C, P_W2, SIZES['W2'])
    a(f"s_cmp_ge_u32 s{S_ST}, 74")
    a(f"s_cbranch_scc1 {lbl}_go")
    a(f"s_movk_i32 s{T6}, 6554")
    a(f"s_movk_i32 s{T7}, 1280")
    a(f"s_mul_i32 s{T2}, s{S_X}, 160")
    a(f"s_cmp_ge_u32 s{S_ST}, 54")
    a(f"s_cbranch_scc1 {lbl}_wo")
    a(f"s_lshl_b32 s{T3}, s{S_ST}, 5")
    for n in range(5):
        a(f"v_add_u32 v{t0}, {64*n}, v1")
        a(f"v_mul_u32_u24 v{t1}, s{T6}, v{t0}")
        a(f"v_lshrrev_b32 v{t1}, 16, v{t1}")
        a(f"v_mul_u32_u24 v{t2}, 10, v{t1}")
        a(f"v_sub_u32 v{t2}, v{t0}, v{t2}")
        a(f"v_add_u32 v{t1}, s{T3}, v{t1}")
        a(f"v_mul_lo_u32 v{t1}, v{t1}, s{T7}")
        a(f"v_lshl_add_u32 v{t1}, v{t2}, 4, v{t1}")
        a(f"v_add_u32 v{VS+n}, s{T2}, v{t1}")
    a(f"s_branch {lbl}_go")
    a.label(f"{lbl}_wo")
    srd(a, SRD_C, P_WO, SIZES['WO'])
    a(f"s_sub_u32 s{T3}, s{S_ST}, 54")
    a(f"s_lshl_b32 s{T3}, s{T3}, 1")
    for n in range(5):
        a(f"v_add_u32 v{t0}, {64*n}, v1")
        a(f"v_mul_u32_u24 v{t1}, s{T6}, v{t0}")
        a(f"v_lshrrev_b32 v{t1}, 16, v{t1}")
        a(f"v_mul_u32_u24 v{t2}, 10, v{t1}")
        a(f"v_sub_u32 v{t2}, v{t0}, v{t2}")
        a(f"v_lshrrev_b32 v{t3}, 4, v{t1}")
        a(f"v_add_u32 v{t3}, s{T3}, v{t3}")
        a(f"v_and_b32 v{t1}, 15, v{t1}")
        a(f"v_mul_u32_u24 v{t4}, 20, v{t3}")
        a(f"v_add_u32 v{t4}, v{t4}, v{t1}")
        a(f"v_cmp_gt_u32 s[98:99], 32, v{t3}")
        a(f"v_subrev_u32 v{t3}, 32, v{t3}")
        a(f"v_lshlrev_b32 v{t3}, 2, v{t3}")
        a(f"v_bfe_u32 v{t5}, v{t1}, 2, 1")
        a(f"v_lshl_add_u32 v{t3}, v{t5}, 1, v{t3}")
        a(f"v_lshrrev_b32 v{t5}, 3, v{t1}")
        a(f"v_add_u32 v{t3}, v{t3}, v{t5}")
        a(f"v_mul_u32_u24 v{t3}, 20, v{t3}")
        a(f"v_and_b32 v{t1}, 3, v{t1}")
        a(f"v_add3_u32 v{t3}, v{t3}, v{t1}, 16")
        a(f"v_cndmask_b32 v{t1}, v{t3}, v{t4}, s[98:99]")
        a(f"v_mul_lo_u32 v{t1}, v{t1}, s{T7}")
        a(f"v_lshl_add_u32 v{t1}, v{t2}, 4, v{t1}")
        a(f"v_add_u32 v{VS+n}, s{T2}, v{t1}")
    a.label(f"{lbl}_go")

def row_issue2(a):
    a(f"v_add_u32 v{RO}, {4*1280}, v{RO}")
    a(f"v_mov_b32 v{RT}, 0x7ffffff0")
    a(f"v_add_u32 v{RT+1}, 1024, v{RO}")
    a(f"v_cmp_gt_u32 s[100:101], 16, v1")
    a(f"v_cndmask_b32 v{RO+2}, v{RT}, v{RT+1}, s[100:101]")
    a(f"buffer_load_dwordx4 {vr(RX2,4)}, v{RO}, s[{SRD_A}:{SRD_A+3}], 0 offen", tag='pl2')
    a(f"buffer_load_dwordx4 {vr(RX2+4,4)}, v{RO+2}, s[{SRD_A}:{SRD_A+3}], 0 offen", tag='pl2')

RX2 = 192
def pre_issue(a, rows=True):
    if rows:
        a(f"buffer_load_dwordx4 {vr(RX,4)}, v{RO}, s[{SRD_A}:{SRD_A+3}], 0 offen", tag='pl')
        a(f"buffer_load_dwordx4 {vr(RX+4,4)}, v{RO+2}, s[{SRD_A}:{SRD_A+3}], 0 offen", tag='pl')
        a(f"buffer_load_dwordx4 {vr(RG,4)}, v{RO+1}, s[{SRD_D}:{SRD_D+3}], 0 offen", tag='pl')
        a(f"buffer_load_dwordx4 {vr(RG+4,4)}, v{RO+3}, s[{SRD_D}:{SRD_D+3}], 0 offen", tag='pl')
    for n in range(5):
        a(f"s_add_u32 m0, s{S_RPM}, {n*1024}")
        a(f"buffer_load_dwordx4 v{VS+n}, s[{SRD_C}:{SRD_C+3}], s{S_RPO} offen lds", tag='pl')

def pre_thunks(a, RX=RX, tag='pl', VO=RO):
    su, sq, dt, one, t0, t1, t2 = range(RT, RT+7)
    T = []
    I = lambda txt: T.append(lambda: a(txt))
    T.append(lambda: a.wait_vm(tag))
    I(f"v_mov_b32 v{one}, 0x3f803f80")
    I(f"v_mov_b32 v{su}, 0"); I(f"v_mov_b32 v{sq}, 0"); I(f"v_mov_b32 v{dt}, 0")
    for d in range(8):
        I(f"v_dot2c_f32_bf16 v{su}, v{RX+d}, v{one}")
        I(f"v_dot2c_f32_bf16 v{sq}, v{RX+d}, v{RX+d}")
        I(f"v_dot2c_f32_bf16 v{dt}, v{RX+d}, v{RG+d}")
    for r in (8, 4, 2, 1):
        for v in (su, sq, dt):
            I(f"v_add_f32_dpp v{v}, v{v}, v{v} row_ror:{r} row_mask:0xf bank_mask:0xf")
    for op in ("v_permlane16_swap_b32", "v_permlane32_swap_b32"):
        for v, t in ((su, t0), (sq, t1), (dt, t2)): I(f"v_mov_b32 v{t}, v{v}")
        for v, t in ((su, t0), (sq, t1), (dt, t2)): I(f"{op} v{v}, v{t}")
        for v, t in ((su, t0), (sq, t1), (dt, t2)): I(f"v_add_f32 v{v}, v{v}, v{t}")
    I(f"v_mul_f32 v{su}, 0x3acccccd, v{su}")
    I(f"v_mul_f32 v{sq}, 0x3acccccd, v{sq}")
    I(f"v_mul_f32 v{dt}, 0xbfb8aa3b, v{dt}")
    I(f"v_fma_f32 v{sq}, -v{su}, v{su}, v{sq}")
    I(f"v_exp_f32 v{dt}, v{dt}")
    I(f"v_add_f32 v{sq}, 0x3727c5ac, v{sq}")
    I(f"v_add_f32 v{dt}, 1.0, v{dt}")
    I(f"v_rsq_f32 v{t1}, v{sq}")
    I(f"v_rcp_f32 v{dt}, v{dt}")
    I(f"v_mul_f32 v{t0}, v{su}, v{t1}")
    I(f"v_sub_f32 v{t0}, 0, v{t0}")
    I(f"v_mov_b32 v{VO}, 0x7ffffff0")
    I(f"v_cmp_eq_u32 s[100:101], 0, v1")
    I(f"v_cndmask_b32 v{VO}, v{VO}, 0, s[100:101]")
    I(f"s_lshl_b32 s98, s85, 3")
    I(f"s_add_u32 s98, s98, {WS_ST}")
    T.append(lambda: a(f"buffer_store_dwordx2 {vr(t0,2)}, v{VO}, s[{SRD_WS}:{SRD_WS+3}], s98 offen sc1", tag='pst'))
    I(f"s_lshl_b32 s98, s85, 2")
    I(f"s_add_u32 s98, s98, {WS_G}")
    T.append(lambda: a(f"buffer_store_dword v{dt}, v{VO}, s[{SRD_WS}:{SRD_WS+3}], s98 offen sc1", tag='pst'))
    return T

def rowstats_issue(a):
    XB, GW, o0, o1, t0 = 128, 108, 96, 97, 98
    srd(a, SRD_D, P_GW, SIZES['GW'])
    a(f"s_lshl_b32 s{T0}, s{S_RB}, 7")
    a(f"s_lshl_b32 s{T1}, s{S_W}, 4")
    a(f"s_add_u32 s85, s{T0}, s{T1}")
    a(f"v_lshrrev_b32 v{t0}, 4, v1")
    a(f"v_add_u32 v{t0}, s85, v{t0}")
    a(f"s_movk_i32 s{T1}, 1280")
    a(f"v_mul_lo_u32 v{o0}, v{t0}, s{T1}")
    a(f"v_and_b32 v{o1}, 15, v1")
    a(f"v_lshlrev_b32 v{o1}, 4, v{o1}")
    a(f"v_add_u32 v{o0}, v{o0}, v{o1}")
    for i in range(5):
        a(f"buffer_load_dwordx4 {vr(GW+4*i,4)}, v{o1}, s[{SRD_D}:{SRD_D+3}], 0 offen offset:{256*i}", tag='gw')
    for q in range(4):
        a(f"s_movk_i32 s{T2}, {q*4*1280}")
        for i in range(5):
            a(f"buffer_load_dwordx4 {vr(XB+20*q+4*i,4)}, v{o0}, s[{SRD_A}:{SRD_A+3}], s{T2} offen offset:{256*i}", tag=('x', q))

def rowstats_compute(a):
    XB, GW = 128, 108
    su, sq, dt, one, t0, t1, t2 = 98, 99, 100, 101, 102, 103, 104
    NMv, RSv, GV = 106, 107, 105
    a(f"v_mov_b32 v{one}, 0x3f803f80")
    a(f"v_and_b32 v{t2}, 15, v1")
    for q in range(4):
        a.wait_vm(('x', q))
        a(f"v_mov_b32 v{su}, 0"); a(f"v_mov_b32 v{sq}, 0"); a(f"v_mov_b32 v{dt}, 0")
        for d in range(20):
            x = XB + 20*q + d
            a(f"v_dot2c_f32_bf16 v{su}, v{x}, v{one}")
            a(f"v_dot2c_f32_bf16 v{sq}, v{x}, v{x}")
            a(f"v_dot2c_f32_bf16 v{dt}, v{x}, v{GW+d}")
        for k in (8, 4, 2, 1):
            for v in (su, sq, dt):
                a(f"v_add_f32_dpp v{v}, v{v}, v{v} row_ror:{k} row_mask:0xf bank_mask:0xf")
        a(f"v_mul_f32 v{su}, 0x3acccccd, v{su}")
        a(f"v_mul_f32 v{sq}, 0x3acccccd, v{sq}")
        a(f"v_mul_f32 v{dt}, 0xbfb8aa3b, v{dt}")
        a(f"v_fma_f32 v{sq}, -v{su}, v{su}, v{sq}")
        a(f"v_exp_f32 v{dt}, v{dt}")
        a(f"v_max_f32 v{sq}, 0, v{sq}")
        a(f"v_add_f32 v{sq}, 0x3727c5ac, v{sq}")
        a(f"v_add_f32 v{dt}, 1.0, v{dt}")
        a(f"v_rsq_f32 v{t1}, v{sq}")
        a(f"v_rcp_f32 v{dt}, v{dt}")
        a(f"v_mul_f32 v{t0}, v{su}, v{t1}")
        a(f"v_sub_f32 v{t0}, 0, v{t0}")
        a(f"v_cmp_eq_u32 s[{T4}:{T4+1}], {q}, v{t2}")
        a(f"v_cndmask_b32 v{NMv}, v{NMv}, v{t0}, s[{T4}:{T4+1}]")
        a(f"v_cndmask_b32 v{RSv}, v{RSv}, v{t1}, s[{T4}:{T4+1}]")
        a(f"v_cndmask_b32 v{GV}, v{GV}, v{dt}, s[{T4}:{T4+1}]")
    a(f"v_lshrrev_b32 v{t0}, 4, v1")
    a(f"v_lshl_add_u32 v{t0}, v{t2}, 2, v{t0}")
    a(f"v_add_u32 v{t0}, s85, v{t0}")
    a(f"v_mov_b32 v{su}, 0x7ffffff0")
    a(f"v_cmp_gt_u32 s[{T4}:{T4+1}], 4, v{t2}")
    a(f"v_lshlrev_b32 v{t1}, 3, v{t0}")
    a(f"v_cndmask_b32 v{t1}, v{su}, v{t1}, s[{T4}:{T4+1}]")
    a(f"v_lshlrev_b32 v{t0}, 2, v{t0}")
    a(f"v_cndmask_b32 v{t0}, v{su}, v{t0}, s[{T4}:{T4+1}]")
    a(f"s_mov_b32 s{T0}, {WS_ST}")
    a(f"buffer_store_dwordx2 {vr(NMv,2)}, v{t1}, s[{SRD_WS}:{SRD_WS+3}], s{T0} offen sc1", tag='pst')
    a(f"s_mov_b32 s{T0}, {WS_G}")
    a(f"buffer_store_dword v{GV}, v{t0}, s[{SRD_WS}:{SRD_WS+3}], s{T0} offen sc1", tag='pst')

RPL = 147456
def repack_finish(a):
    D, VA, VD = 136, 134, 135
    L = uid("rf")
    a(f"v_mov_b32 v{VD}, 0x7ffffff0")
    a(f"s_cmp_ge_u32 s82, 74")
    a(f"s_cbranch_scc1 {L}")
    a(f"s_mul_i32 s{T0}, s{S_X}, {WF_TILE}")
    a(f"s_mul_i32 s{T1}, s82, 5120")
    a(f"s_add_u32 s{T0}, s{T0}, s{T1}")
    a(f"s_add_u32 s{T0}, s{T0}, {WS_WF}")
    a(f"v_lshlrev_b32 v{VD}, 4, v1")
    a(f"v_add_u32 v{VD}, s{T0}, v{VD}")
    a(f"v_lshrrev_b32 v{VA}, 5, v1")
    a(f"v_bfe_u32 v{D}, v1, 4, 1")
    a(f"v_lshlrev_b32 v{VA}, 4, v{VA}")
    a(f"v_lshl_add_u32 v{VA}, v{D}, 2, v{VA}")
    a(f"v_bfe_u32 v{D}, v1, 2, 2")
    a(f"v_add_u32 v{VA}, v{VA}, v{D}")
    a(f"v_mul_u32_u24 v{VA}, 160, v{VA}")
    a(f"v_and_b32 v{D}, 3, v1")
    a(f"v_lshl_add_u32 v{VA}, v{D}, 3, v{VA}")
    a(f"v_add_u32 v{VA}, s{S_RPM}, v{VA}")
    lg = list(a.lg)
    for F in range(5):
        for rd in range(2):
            a(f"ds_read_b64_tr_b16 {vr(D+4*F+2*rd,2)}, v{VA} offset:{rd*1280 + F*32}")
    a("s_waitcnt lgkmcnt(0)")
    a.lg = lg
    a.label(L)
    for F in range(5):
        a(f"s_movk_i32 s{T1}, {F*1024}")
        a(f"buffer_store_dwordx4 {vr(D+4*F,4)}, v{VD}, s[{SRD_WS}:{SRD_WS+3}], s{T1} offen sc1", tag='pst')

def nonce_issue(a, v):
    a(f"v_mov_b32 v{v+1}, 0")
    a(f"global_load_dword v{v}, v{v+1}, s[{P_DBG}:{P_DBG+1}] sc1", tag='nonce')

def nonce_check(a, v):
    L = uid("ng")
    a.wait_vm('nonce')
    keep = list(a.vm)
    a.label(L)
    a(f"v_readfirstlane_b32 s{S_NONCE}, v{v}")
    a(f"s_cmp_lg_u32 s{S_NONCE}, 0")
    a(f"s_cbranch_scc1 {L}_ok")
    a("s_sleep 2")
    a(f"global_load_dword v{v}, v{v+1}, s[{P_DBG}:{P_DBG+1}] sc1")
    a("s_waitcnt vmcnt(0)")
    a(f"s_branch {L}")
    a.label(f"{L}_ok")
    a.vm = keep

def pre_flags(a, v, stats=True):
    if stats:
        a(f"s_lshl_b32 s{T0}, s{S_RB}, 7")
        a(f"s_add_u32 s{T0}, s{T0}, {WS_FLAG + FS}")
        flag_store(a, T0, v)
    a(f"s_lshl_b32 s{T0}, s{S_X}, 7")
    a(f"s_lshl_b32 s{T1}, s{S_I}, 2")
    a(f"s_add_u32 s{T0}, s{T0}, s{T1}")
    a(f"s_add_u32 s{T0}, s{T0}, {WS_FLAG + FW}")
    flag_store(a, T0, v)

CD = 16
def colsum_issue(a):
    srd(a, SRD_B, P_W1, SIZES['W1'])
    srd(a, SRD_C, P_B1, SIZES['B1']) if False else None
    t0, t1, VO = 2, 3, 5
    a(f"v_lshrrev_b32 v{t0}, 4, v0")
    a(f"s_movk_i32 s{T0}, 3456")
    a(f"v_mul_lo_u32 v{t0}, v{t0}, s{T0}")
    a(f"v_and_b32 v{t1}, 15, v0")
    a(f"v_lshl_add_u32 v{t0}, v{t1}, 4, v{t0}")
    a(f"s_lshl_b32 s{T1}, s{S_RB}, 8")
    a(f"v_add_u32 v{VO}, s{T1}, v{t0}")
    a(f"s_cmp_lt_u32 s{S_RB}, 14")
    a(f"s_cselect_b32 s{T3}, 0, 0x7fff0000")
    for p in range(20):
        a(f"s_add_u32 s{T2}, s{T3}, {p*32*3456}")
        a(f"buffer_load_dwordx4 {vr(CD+4*p,4)}, v{VO}, s[{SRD_B}:{SRD_B+3}], s{T2} offen", tag=('cs', p))

def colsum_compute(a, lbl):
    t0, t1, t2 = 2, 3, 4
    ACC, LO, HI = 8, 6, 7
    srd(a, SRD_B, P_B1, SIZES['B1'])
    a(f"s_lshl_b32 s{T1}, s{S_RB}, 8")
    a(f"v_lshlrev_b32 v{t2}, 1, v0")
    a(f"v_add_u32 v{t2}, s{T1}, v{t2}")
    a(f"buffer_load_ushort v{t2}, v{t2}, s[{SRD_B}:{SRD_B+3}], 0 offen", tag='b1')
    a(f"v_mov_b32 v{LO}, 0x00003f80")
    a(f"v_mov_b32 v{HI}, 0x3f800000")
    for e in range(8): a(f"v_mov_b32 v{ACC+e}, 0")
    for p in range(20):
        a.wait_vm(('cs', p))
        for d in range(4):
            a(f"v_dot2c_f32_bf16 v{ACC+2*d}, v{CD+4*p+d}, v{LO}")
            a(f"v_dot2c_f32_bf16 v{ACC+2*d+1}, v{CD+4*p+d}, v{HI}")
    a(f"v_lshrrev_b32 v{t0}, 4, v0")
    a(f"v_lshlrev_b32 v{t0}, 9, v{t0}")
    a(f"v_and_b32 v{t1}, 15, v0")
    a(f"v_lshl_add_u32 v{t0}, v{t1}, 5, v{t0}")
    a(f"ds_write_b128 v{t0}, {vr(ACC,4)}")
    a(f"ds_write_b128 v{t0}, {vr(ACC+4,4)} offset:16")
    a("s_waitcnt lgkmcnt(0)")
    a("s_barrier")
    a(f"v_and_b32 v{t0}, 127, v0")
    a(f"v_lshlrev_b32 v{t0}, 2, v{t0}")
    for g in range(32):
        a(f"ds_read_b32 v{CD+g}, v{t0} offset:{g*512}")
    a("s_waitcnt lgkmcnt(0)")
    for g in range(0, 32, 2): a(f"v_add_f32 v{CD+g}, v{CD+g}, v{CD+g+1}")
    for g in range(2, 32, 2): a(f"v_add_f32 v{CD}, v{CD}, v{CD+g}")
    a.wait_vm('b1')
    a(f"v_lshlrev_b32 v{t2}, 16, v{t2}")
    a(f"s_lshl_b32 s{T1}, s{S_RB}, 9")
    a(f"v_add_u32 v{t0}, s{T1}, v{t0}")
    a(f"v_mov_b32 v{t1}, 0x7ffffff0")
    a(f"v_mov_b32 v{LO}, 128")
    a(f"v_cmp_gt_u32 s[{T4}:{T4+1}], v{LO}, v0")
    a(f"v_cndmask_b32 v{t0}, v{t1}, v{t0}, s[{T4}:{T4+1}]")
    a(f"s_mov_b32 s{T0}, 0x7fff0000")
    a(f"s_cmp_lt_u32 s{S_RB}, 14")
    a(f"s_cselect_b32 s{T2}, {WS_CS}, s{T0}")
    a(f"s_cselect_b32 s{T3}, {WS_B1}, s{T0}")
    a(f"buffer_store_dword v{CD}, v{t0}, s[{SRD_WS}:{SRD_WS+3}], s{T2} offen sc1", tag='pst')
    a(f"buffer_store_dword v{t2}, v{t0}, s[{SRD_WS}:{SRD_WS+3}], s{T3} offen sc1", tag='pst')

S_FRB, S_FCJ = 73, 74
S_WM, S_WG = 75, 76

def final_coords(a):
    a(f"s_lshr_b32 s{T0}, s{S_X}, 1")
    a(f"s_lshl_b32 s{T0}, s{T0}, 3")
    a(f"s_and_b32 s{T1}, s{S_I}, 7")
    a(f"s_add_u32 s{S_FRB}, s{T0}, s{T1}")
    a(f"s_and_b32 s{T0}, s{S_X}, 1")
    a(f"s_lshl_b32 s{T0}, s{T0}, 2")
    a(f"s_lshr_b32 s{T1}, s{S_I}, 3")
    a(f"s_add_u32 s{S_FCJ}, s{T0}, s{T1}")
    a(f"s_mul_i32 s{S_WM}, s{S_W}, 5120")
    a(f"s_mul_i32 s{T0}, s{S_FCJ}, {WF_TILE}")
    a(f"s_add_u32 s{T0}, s{T0}, s{S_WM}")
    a(f"s_add_u32 s{S_WG}, s{T0}, {WS_WF}")

def dma_wf(a, g, vw):
    S_KW = 77
    a(f"s_add_u32 m0, s{S_WM}, {RING[g % 4]}")
    a(f"s_add_u32 s{S_KW}, s{S_WG}, {0 if OPT.get('hotfw') else g*WSLOT}")
    if g == 9:
        a(f"s_cmp_ge_u32 s{S_W}, 2")
        a(f"s_cselect_b32 s{S_KW}, 0x7fff0000, s{S_KW}")
    for n in range(4):
        a(f"buffer_load_dwordx4 v{vw}, s[{SRD_WS}:{SRD_WS+3}], s{S_KW} offen offset:{n*1024} sc1 lds", tag=('W', g))
    a(f"s_add_u32 m0, m0, 4096")
    a(f"s_add_u32 s{S_KW}, s{S_KW}, 4096")
    a(f"buffer_load_dwordx4 v{vw}, s[{SRD_WS}:{SRD_WS+3}], s{S_KW} offen sc1 lds", tag=('W', g))

SL2 = 32768
def attn_coords(a):
    a(f"s_lshl_b32 s{T0}, s{S_X}, 1")
    a(f"s_and_b32 s{T1}, s{S_I}, 1")
    a(f"s_add_u32 s{S_AHP}, s{T0}, s{T1}")
    a(f"s_lshr_b32 s{S_ARB}, s{S_I}, 1")
    a(f"s_lshr_b32 s78, s{S_W}, 2")
    a(f"s_and_b32 s79, s{S_W}, 3")

def fq_poll_offsets(a, vo, vt):
    a(f"v_lshrrev_b32 v{vo}, 4, v1")
    a(f"s_sub_u32 s{T0}, s{S_ARB}, 2")
    a(f"v_add_u32 v{vo}, s{T0}, v{vo}")
    a(f"v_and_b32 v{vt}, 15, v1")
    a(f"v_cmp_le_i32 s[{T4}:{T4+1}], 0, v{vo}")
    a(f"v_cmp_gt_u32 s[{T2}:{T2+1}], 15, v{vt}")
    a(f"s_and_b64 s[{T4}:{T4+1}], s[{T4}:{T4+1}], s[{T2}:{T2+1}]")
    a(f"s_mov_b32 s{T2}, -1")
    a(f"s_mov_b32 s{T2+1}, 0xffff")
    a(f"s_and_b64 s[{T4}:{T4+1}], s[{T4}:{T4+1}], s[{T2}:{T2+1}]")
    a(f"v_lshlrev_b32 v{vo}, 7, v{vo}")
    a(f"v_lshl_add_u32 v{vo}, v{vt}, 2, v{vo}")
    a(f"s_lshl_b32 s{T0}, s{S_ARB}, 7")
    a(f"v_mov_b32 v{vt}, s{T0}")
    a(f"v_cndmask_b32 v{vo}, v{vt}, v{vo}, s[{T4}:{T4+1}]")
    a(f"v_add_u32 v{vo}, {WS_FLAG + FQ}, v{vo}")

def attn_q_loads(a, t0, t1, t2, t3, AQ0=20, AQ1=24):
    a(f"s_lshl_b32 s{T0}, s{S_ARB}, 2")
    a(f"s_add_u32 s{S_QB}, s{T0}, s79")
    a(f"v_and_b32 v{t0}, 31, v1")
    a(f"v_lshrrev_b32 v{t1}, 5, v1")
    a(f"s_lshl_b32 s{T1}, s{S_QB}, 8")
    a(f"v_lshlrev_b32 v{t2}, 3, v{t0}")
    a(f"v_add_u32 v{t2}, s{T1}, v{t2}")
    a(f"v_lshl_add_u32 v{t3}, v{t1}, 15, v{t2}")
    a(f"s_lshl_b32 s{T2}, s{S_AHP}, 1")
    a(f"s_add_u32 s{T2}, s{T2}, s78")
    a(f"s_mul_i32 s{T2}, s{T2}, {5*16384}")
    a(f"s_add_u32 s{T1}, s{T2}, {WS_QKV}")
    a(f"buffer_load_dwordx2 {vr(AQ0,2)}, v{t3}, s[{SRD_WS}:{SRD_WS+3}], s{T1} offen sc1", tag='q')
    a(f"s_add_u32 s{T1}, s{T1}, 16384")
    a(f"buffer_load_dwordx2 {vr(AQ0+2,2)}, v{t3}, s[{SRD_WS}:{SRD_WS+3}], s{T1} offen sc1", tag='q')
    a(f"s_add_u32 s{T1}, s{T1}, {3*16384}")
    a(f"buffer_load_dwordx2 {vr(AQ1,2)}, v{t2}, s[{SRD_WS}:{SRD_WS+3}], s{T1} offen sc1", tag='q')

def fw_poll_offsets(a, vo):
    a(f"v_and_b32 v{vo}, 31, v1")
    a(f"v_lshlrev_b32 v{vo}, 2, v{vo}")
    a(f"s_lshl_b32 s{T1}, s{S_FCJ}, 7")
    a(f"s_add_u32 s{T1}, s{T1}, {WS_FLAG + FW}")
    a(f"v_add_u32 v{vo}, s{T1}, v{vo}")

def wf_first_slots(a, vw):
    a(f"v_lshlrev_b32 v{vw}, 4, v1")
    a(f"s_mul_i32 s{T0}, s{S_W}, 10240")
    a(f"s_mul_i32 s{T1}, s{S_FCJ}, {WF_TILE}")
    a(f"s_add_u32 s{T1}, s{T1}, s{T0}")
    a(f"s_add_u32 s{T1}, s{T1}, {WS_WF}")
    for g in range(2):
        for part in range(3):
            a(f"s_add_u32 m0, s{T0}, {RING[g] + part*4096}")
            a(f"s_add_u32 s{T2}, s{T1}, {g*WSLOT + part*4096}")
            for n in range(4 if part < 2 else 2):
                a(f"buffer_load_dwordx4 v{vw}, s[{SRD_WS}:{SRD_WS+3}], s{T2} offen offset:{n*1024} sc1 lds", tag=('W', g))

QL = 81920
def attn_stage_q(a, vd):
    a(f"v_lshlrev_b32 v{vd}, 4, v1")
    a(f"s_mul_i32 s{T2}, s{S_AHP}, {10*16384}")
    a(f"s_lshl_b32 s{T0}, s{S_ARB}, 10")
    a(f"s_add_u32 s{T2}, s{T2}, s{T0}")
    a(f"s_add_u32 s{T2}, s{T2}, {WS_QKV}")
    for k in range(3):
        a(f"s_add_u32 s{T0}, s{S_W}, {4*k}")
        a(f"s_lshl_b32 s{T1}, s{T0}, 14")
        a(f"s_add_u32 s{T1}, s{T1}, s{T2}")
        a(f"s_lshl_b32 s{T3}, s{T0}, 10")
        a(f"s_add_u32 s{T3}, s{T3}, {QL}")
        if k == 2:
            a(f"s_cmp_lt_u32 s{T0}, 10")
            a(f"s_cselect_b32 s{T1}, s{T1}, 0x7fff0000")
        a(f"s_mov_b32 m0, s{T3}")
        a(f"buffer_load_dwordx4 v{vd}, s[{SRD_WS}:{SRD_WS+3}], s{T1} offen sc1 lds", tag='q')

def touch_wf(a, v0_, v1_):
    a(f"s_and_b32 s{T0}, s{S_I}, 7")
    a(f"s_mul_i32 s{T0}, s{T0}, {370*128}")
    a(f"s_mul_i32 s{T1}, s{S_FCJ}, {WF_TILE}")
    a(f"s_add_u32 s{T0}, s{T0}, s{T1}")
    a(f"s_add_u32 s{T0}, s{T0}, {WS_WF}")
    a(f"v_lshlrev_b32 v{v0_}, 7, v0")
    a(f"v_mov_b32 v{v1_}, 370")
    a(f"v_cmp_gt_u32 s[{T4}:{T4+1}], v{v1_}, v0")
    a(f"v_mov_b32 v{v1_}, 0x7ffffff0")
    a(f"v_cndmask_b32 v{v0_}, v{v1_}, v{v0_}, s[{T4}:{T4+1}]")
    a(f"buffer_load_dword v251, v{v0_}, s[{SRD_WS}:{SRD_WS+3}], s{T0} offen sc1", tag='touch')

def touch_h(a, v0_, v1_):
    a(f"s_lshl_b32 s{T0}, s{S_FRB}, 1")
    a(f"s_mul_i32 s{T0}, s{T0}, {108*1024}")
    a(f"s_lshr_b32 s{T1}, s{S_I}, 3")
    a(f"s_mul_i32 s{T1}, s{T1}, {432*128}")
    a(f"s_add_u32 s{T0}, s{T0}, s{T1}")
    a(f"s_add_u32 s{T0}, s{T0}, {WS_H}")
    a(f"v_lshlrev_b32 v{v0_}, 7, v0")
    a(f"v_mov_b32 v{v1_}, 432")
    a(f"v_cmp_gt_u32 s[{T4}:{T4+1}], v{v1_}, v0")
    a(f"v_mov_b32 v{v1_}, 0x7ffffff0")
    a(f"v_cndmask_b32 v{v0_}, v{v1_}, v{v0_}, s[{T4}:{T4+1}]")
    a(f"buffer_load_dword v251, v{v0_}, s[{SRD_WS}:{SRD_WS+3}], s{T0} offen sc1", tag='touch')

def attn_stage_kv(a, t0, t1, t2, vd):
    a(f"s_sub_u32 s{T0}, s{S_ARB}, 2")
    a(f"s_lshl_b32 s{T0}, s{T0}, 7")
    a(f"s_mul_i32 s{T1}, s{S_W}, 96")
    a(f"s_add_u32 s{T0}, s{T0}, s{T1}")
    a(f"v_lshlrev_b32 v{t0}, 1, v1")
    a(f"v_add_u32 v{t0}, s{T0}, v{t0}")
    a(f"v_lshlrev_b32 v{t1}, 3, v{t0}")
    a(f"v_mov_b32 v{t2}, 0x7ffffff0")
    a(f"v_cmp_le_i32 s[{T4}:{T4+1}], 0, v{t0}")
    a(f"v_cndmask_b32 v{vd}, v{t2}, v{t1}, s[{T4}:{T4+1}]")
    a(f"s_mul_i32 s{T2}, s{S_AHP}, {10*16384}")
    a(f"s_add_u32 s{T2}, s{T2}, {WS_QKV + 160*16384}")
    a(f"s_mul_i32 s{T3}, s{S_W}, 768")
    a("s_mov_b32 exec_hi, 0xffff")
    for ty in range(2):
        for p in range(10):
            a(f"s_add_u32 m0, s{T3}, {(LK if ty == 0 else LV) + p*PST}")
            a(f"s_add_u32 s{T6}, s{T2}, {(ty*160 + p)*16384}")
            a(f"buffer_load_dwordx4 v{vd}, s[{SRD_WS}:{SRD_WS+3}], s{T6} offen sc1 lds", tag=('kv', ty))
    a("s_mov_b32 exec_hi, -1")

def stage1g(a, lbl):
    SRD_E, S_M = 64, 68
    VXD, VWD, VW2 = 2, 6, 10
    VXF, VWF = 14, 22
    t0, t1, t2, t3 = 26, 27, 28, 29
    VP, VPV = 30, 31
    FB = [32, 48]
    ACC = 64
    CSR, B1R, ST, TD = 128, 160, 192, 196
    S_FQ, S_FH, S_ACT, S_HB = 69, 70, 71, 72
    a(f"s_and_b32 s{S_LW}, s{S_W}, 3")
    a(f"s_cmp_ge_u32 s{S_CJ}, 15")
    a(f"s_cbranch_scc1 {lbl}_idle")
    a(f"s_lshl_b32 s{T0}, s{S_RB}, 7")
    a(f"s_lshr_b32 s{T1}, s{S_LW}, 1")
    a(f"s_lshl_b32 s{T1}, s{T1}, 6")
    a(f"s_add_u32 s{T0}, s{T0}, s{T1}")
    a(f"s_and_b32 s{T1}, s{S_LW}, 1")
    a(f"s_add_u32 s{T0}, s{T0}, s{T1}")
    a(f"v_lshrrev_b32 v{t0}, 3, v1")
    a(f"v_lshlrev_b32 v{t0}, 1, v{t0}")
    a(f"v_add_u32 v{t0}, s{T0}, v{t0}")
    a(f"s_movk_i32 s{T2}, 1280")
    a(f"v_mul_lo_u32 v{t0}, v{t0}, s{T2}")
    a(f"v_lshrrev_b32 v{t1}, 4, v1")
    a(f"v_and_b32 v{t2}, 7, v1")
    a(f"v_xor_b32 v{t2}, v{t2}, v{t1}")
    a(f"v_xor_b32 v{t3}, 4, v{t2}")
    for i in range(4):
        a(f"v_lshl_add_u32 v{VXD+i}, v{t2 if i % 2 == 0 else t3}, 4, v{t0}")
        if i: a(f"v_add_u32 v{VXD+i}, {i*(16*1280-1024)}, v{VXD+i}")
    a(f"s_lshl_b32 s{T0}, s{S_LW}, 4")
    a(f"v_lshrrev_b32 v{t0}, 4, v1")
    a(f"v_add_u32 v{t1}, s{T0}, v{t0}")
    a(f"v_bfe_u32 v{t2}, v1, 2, 2")
    a(f"v_xor_b32 v{t2}, v{t2}, v{t0}")
    a(f"v_and_b32 v{t3}, 3, v1")
    a(f"v_lshl_add_u32 v{t2}, v{t2}, 2, v{t3}")
    a(f"v_lshlrev_b32 v{t2}, 4, v{t2}")
    a(f"s_lshl_b32 s{T0}, s{S_CJ}, 8")
    a(f"v_add_u32 v{t2}, s{T0}, v{t2}")
    def w_offsets(vd, pitch):
        a(f"s_movk_i32 s{T2}, {pitch}")
        a(f"v_mul_lo_u32 v{t3}, v{t1}, s{T2}")
        a(f"v_add_u32 v{vd}, v{t3}, v{t2}")
        for i in range(1, 4): a(f"v_add_u32 v{vd+i}, {i*(4*pitch-1024)}, v{vd}")
    w_offsets(VWD, 3840)
    w_offsets(VW2, 3456)
    a(f"s_lshl_b32 s{S_M}, s{S_LW}, 12")
    if OPT.get('rot', 1):
        a(f"s_lshr_b32 s{T0}, s{S_I}, 3")
        a(f"s_mul_i32 s{T0}, s{T0}, 10")
        a(f"s_and_b32 s{T1}, s{S_I}, 7")
        a(f"s_mul_i32 s{T1}, s{T1}, 5")
        a(f"s_add_u32 s{T0}, s{T0}, s{T1}")
        a(f"s_lshr_b32 s{T0}, s{T0}, 2")
        a(f"s_sub_u32 s{T1}, s{T0}, 10")
        a(f"s_cmp_ge_u32 s{T0}, 10")
        a(f"s_cselect_b32 s{T0}, s{T1}, s{T0}")
    else:
        a(f"s_mov_b32 s{T0}, 0")
    def addmod(dst, src, k):
        a(f"s_add_u32 s{dst}, s{src}, {k}")
        a(f"s_sub_u32 s{T2}, s{dst}, 10")
        a(f"s_cmp_ge_u32 s{dst}, 10")
        a(f"s_cselect_b32 s{dst}, s{T2}, s{dst}")
    REUSE = OPT.get('xreuse', 1)
    if REUSE:
        addmod(T1, T0, 9)
        addmod(T3, T0, 6)
        a(f"s_cmp_ge_u32 s{S_W}, 4")
        a(f"s_cselect_b32 s{T1}, s{T3}, s{T1}")
        a(f"s_mul_i32 s{S_K1}, s{T1}, {64*3456}")
        a(f"s_lshl_b32 s{S_KX}, s{T0}, 7")
        a(f"s_mul_i32 s{S_KQ}, s{T0}, {64*3840}")
    else:
        addmod(T1, T0, 3)
        a(f"s_cmp_ge_u32 s{S_W}, 4")
        a(f"s_cselect_b32 s{T0}, s{T0}, s{T1}")
        a(f"s_lshl_b32 s{S_KX}, s{T0}, 7")
        a(f"s_mul_i32 s{S_KQ}, s{T0}, {64*3840}")
        a(f"s_mul_i32 s{S_K1}, s{T0}, {64*3456}")
    def adv(sreg, step, wrap):
        if OPT.get('hot'): return
        a(f"s_add_u32 s{sreg}, s{sreg}, {step}")
        a(f"s_cmp_eq_u32 s{sreg}, {wrap}")
        a(f"s_cselect_b32 s{sreg}, 0, s{sreg}")
    first = {'x': True, 'q': True, '1': True}
    slot = lambda tau: (tau + 3) % 4
    def dma_list(tau):
        out = []
        if OPT.get('g_nodma') and tau >= 4: return out
        if OPT.get('nodma1') and tau >= 13: return out
        def mk(kind, i):
            def f():
                if kind == 'x': vd, sr, sk, off, step, wrap = VXD, SRD_A, S_KX, 0, 128, 1280
                elif kind == 'q': vd, sr, sk, off, step, wrap = VWD, SRD_B, S_KQ, 16384, 64*3840, 640*3840
                else: vd, sr, sk, off, step, wrap = VW2, SRD_E, S_K1, 16384, 64*3456, 640*3456
                if i == 0:
                    a(f"s_add_u32 m0, s{S_M}, {slot(tau)*SL2 + off}")
                    if not first[kind] and not (OPT.get('hot1') and tau >= 10) and not (OPT.get('hotx') and kind == 'x' and tau >= 10) and not (OPT.get('hotw') and kind == '1'): adv(sk, step, wrap)
                    first[kind] = False
                a(f"buffer_load_dwordx4 v{vd+i}, s[{sr}:{sr+3}], s{sk} offen offset:{i*1024} lds", tag=('B', tau))
            return f
        if not (REUSE and 10 <= tau <= 13):
            for i in range(4): out.append(mk('x', i))
        for i in range(4): out.append(mk('q' if tau < 10 else '1', i))
        return out
    def dma_block(tau):
        for f in dma_list(tau): f()
    def frag_bases():
        a(f"s_and_b32 s{T0}, s{S_LW}, 1")
        a(f"s_lshl_b32 s{T0}, s{T0}, 13")
        a(f"v_and_b32 v{t0}, 31, v1")
        a(f"v_lshrrev_b32 v{t1}, 5, v1")
        a(f"v_bfe_u32 v{t2}, v1, 1, 3")
        a(f"v_lshlrev_b32 v{t0}, 7, v{t0}")
        a(f"v_add_u32 v{t0}, s{T0}, v{t0}")
        for s_ in range(4):
            a(f"v_or_b32 v{t3}, {2*s_}, v{t1}")
            a(f"v_xor_b32 v{t3}, v{t3}, v{t2}")
            a(f"v_lshl_add_u32 v{VXF+s_}, v{t3}, 4, v{t0}")
            a(f"v_add_u32 v{VXF+4+s_}, {2*SL2}, v{VXF+s_}")
        a(f"v_bfe_u32 v{t0}, v1, 2, 2")
        a(f"v_lshl_add_u32 v{t1}, v{t1}, 3, v{t0}")
        a(f"v_lshlrev_b32 v{t1}, 8, v{t1}")
        a(f"v_bfe_u32 v{t2}, v1, 4, 1")
        a(f"v_lshl_add_u32 v{t1}, v{t2}, 5, v{t1}")
        a(f"v_and_b32 v{t2}, 3, v1")
        a(f"v_lshl_add_u32 v{t1}, v{t2}, 3, v{t1}")
        a(f"s_and_b32 s{T0}, s{S_LW}, 2")
        for ft in range(2):
            a(f"s_or_b32 s{T1}, s{T0}, {ft}")
            a(f"v_xor_b32 v{t2}, s{T1}, v{t0}")
            a(f"v_lshl_add_u32 v{VWF+ft}, v{t2}, 6, v{t1}")
            a(f"v_add_u32 v{VWF+2+ft}, {2*SL2}, v{VWF+ft}")
    def rd_b(st, tau, u, tt):
        sl = slot(tau)
        a(f"ds_read_b128 {vr(FB[st]+4*tt,4)}, v{VXF + u + (4 if sl >= 2 else 0)} offset:{(SL2 if sl & 1 else 0) + tt*4096}", tag=('f', tau, u, 'b', tt))
    def rd_a(st, tau, u, F, rd):
        sl = slot(tau)
        a(f"ds_read_b64_tr_b16 {vr(FB[st]+8+4*F+2*rd,2)}, v{VWF + F + (2 if sl >= 2 else 0)} offset:{(SL2 if sl & 1 else 0) + 16384 + u*4096 + rd*1024}", tag=('f', tau, u, 'a', F))
    def reads(st, tau, u):
        return [lambda: rd_b(st, tau, u, 0), lambda: rd_a(st, tau, u, 0, 0), lambda: rd_a(st, tau, u, 0, 1),
                lambda: rd_b(st, tau, u, 1), lambda: rd_a(st, tau, u, 1, 0), lambda: rd_a(st, tau, u, 1, 1)]
    def compute(t0_, hook_bar, hook_step):
        for b in range(10):
            tau = t0_ + b
            for u in range(4):
                s_ = 4*b + u; st = s_ & 1
                last = (b == 9 and u == 3)
                side = []
                if u == 3:
                    a("s_waitcnt lgkmcnt(0)")
                    hook_bar(tau)
                    a("s_barrier")
                    side = hook_step(tau, 'bar') or []
                rs = [] if (last or OPT.get('x_noreads')) else reads(st ^ 1, *((tau, u + 1) if u < 3 else (tau + 1, 0)))
                plan = {-1: rs[0:2], 0: rs[2:5], 1: rs[5:6]}
                for r in plan[-1]: r()
                for k, (tt, F) in enumerate([(0, 0), (1, 0), (0, 1), (1, 1)]):
                    a.wait_lg([('f', tau, u, 'b', tt), ('f', tau, u, 'a', F)])
                    d = vr(ACC+16*(2*tt+F), 16)
                    if not OPT.get('x_nomfma'):
                        a(f"v_mfma_f32_32x32x16_bf16 {d}, {vr(FB[st]+8+4*F,4)}, {vr(FB[st]+4*tt,4)}, {'0' if s_ == 0 else d}")
                    for r in plan.get(k, []): r()
                    for _ in range(2):
                        if side: side.pop(0)()
                for f in side: f()
                hook_step(tau, u)
    a("s_waitcnt lgkmcnt(0)")
    srd(a, SRD_A, P_AX, SIZES['AX'])
    srd(a, SRD_B, P_WQKV, SIZES['WQKV'])
    NI = OPT.get('init', 2)
    a(f"s_cmp_lt_u32 s{S_W}, 4")
    a(f"s_cbranch_scc1 {lbl}_nodma")
    for tau in range(NI): dma_block(tau)
    g1_vm = list(a.vm)
    a.label(f"{lbl}_nodma")
    a.vm = []
    srd(a, SRD_E, P_W1, SIZES['W1'])
    prologue_rest(a)
    attn_coords(a)
    final_coords(a)
    a(f"s_lshl_b32 s{T0}, s{S_RB}, 7")
    a(f"s_lshl_b32 s{T1}, s{S_CJ}, 2")
    a(f"s_add_u32 s{T0}, s{T0}, s{T1}")
    a(f"s_add_u32 s{S_FQ}, s{T0}, {WS_FLAG + FQ}")
    a(f"s_add_u32 s{S_FH}, s{T0}, {WS_FLAG + FH}")
    a(f"s_cmp_lt_u32 s{S_CJ}, 14")
    a(f"s_cselect_b32 s{S_FHO}, s{S_FH}, 0x7fff0000")
    a(f"s_cmp_lt_u32 s{S_W}, 4")
    a(f"s_cbranch_scc1 {lbl}_g0")
    a.vm = list(g1_vm)
    if OPT.get('lprio', 1): a(f"s_setprio {OPT.get('lprio', 1)}")
    mark4(a, first=True)
    pre_address(a, lbl + "_pa", rows=False)
    frag_bases()
    a.wait_vm(('B', 0))
    mark4(a)
    a("s_barrier")
    for tau in range(NI, 4): dma_block(tau)
    for tau in range(0, 9):
        a.wait_vm(('B', tau + 1))
        if tau == 8: a.wait_vm('pst')
        a("s_barrier")
        dma_block(tau + 4)
        if tau == 0: pre_issue(a, rows=False)
        if tau == 1 and OPT.get('pfw1', 0):
            a(f"s_and_b32 s{T0}, s{S_I}, 7")
            a(f"s_mul_i32 s{T0}, s{T0}, 80")
            a(f"s_mul_i32 s{T1}, s{S_LW}, 20")
            a(f"s_add_u32 s{T0}, s{T0}, s{T1}")
            a(f"v_lshrrev_b32 v{t0}, 1, v1")
            a(f"v_add_u32 v{t0}, s{T0}, v{t0}")
            a(f"s_movk_i32 s{T1}, 3456")
            a(f"v_mul_lo_u32 v{t0}, v{t0}, s{T1}")
            a(f"v_and_b32 v{t1}, 1, v1")
            a(f"v_lshl_add_u32 v{t0}, v{t1}, 7, v{t0}")
            a(f"s_lshl_b32 s{T0}, s{S_CJ}, 8")
            a(f"v_add_u32 v{t0}, s{T0}, v{t0}")
            a(f"v_mov_b32 v{t1}, 0x7ffffff0")
            a(f"v_cmp_gt_u32 s[{T4}:{T4+1}], 40, v1")
            a(f"v_cndmask_b32 v{t0}, v{t1}, v{t0}, s[{T4}:{T4+1}]")
            a(f"buffer_load_dword v251, v{t0}, s[{SRD_E}:{SRD_E+3}], 0 offen", tag='touch')
        if tau == OPT.get('trp', 5):
            a.wait_vm('pl')
            repack_finish(a)
        if tau == 7: nonce_issue(a, 252)
    nonce_check(a, 252)
    a.wait_vm(('B', 10))
    a("s_barrier")
    if OPT.get('lprio', 1): a(f"s_setprio {OPT.get('cprio', 3)}")
    mark4(a)
    for r in reads(0, 10, 0): r()
    def g1_bar(tau):
        if tau in (10, 11): a.wait_vm(('B', tau + 1))
    def g1_step(tau, u):
        return None
    compute(10, g1_bar, g1_step)
    mark4(a)
    C0, C1, VY, ONE = 2, 3, 4, 6
    TU, TE = 32, 40
    a(f"v_mov_b32 v{ONE}, 1.0")
    a(f"v_mov_b32 v{C0}, 0xc0135761")
    a(f"v_mov_b32 v{C1}, 0xbdd2d3e8")
    a(f"v_lshlrev_b32 v{VY}, 4, v1")
    a(f"s_lshl_b32 s{T0}, s{S_CJ}, 3")
    a(f"s_lshr_b32 s{T1}, s{S_LW}, 1")
    a(f"s_lshl_b32 s{T1}, s{T1}, 2")
    a(f"s_add_u32 s{S_ACT}, s{T0}, s{T1}")
    a(f"s_lshl_b32 s{T0}, s{S_RB}, 2")
    a(f"s_and_b32 s{T1}, s{S_LW}, 1")
    a(f"s_lshl_b32 s{T1}, s{T1}, 1")
    a(f"s_add_u32 s{T0}, s{T0}, s{T1}")
    a(f"s_mul_i32 s{T0}, s{T0}, 108")
    a(f"s_add_u32 s{T0}, s{T0}, s{S_ACT}")
    a(f"s_lshl_b32 s{T0}, s{T0}, 10")
    a(f"s_add_u32 s{S_HB}, s{T0}, {WS_H}")
    a(f"s_cmp_lt_u32 s{S_ACT}, 108")
    a(f"s_cselect_b32 s{S_HB}, s{S_HB}, 0x7fff0000")
    a(f"v_and_b32 v{t0}, 31, v1")
    a(f"v_lshlrev_b32 v{t0}, 4, v{t0}")
    a(f"s_and_b32 s{T0}, s{S_LW}, 1")
    a(f"s_lshl_b32 s{T0}, s{T0}, 9")
    a(f"v_add_u32 v{t0}, s{T0}, v{t0}")
    a(f"ds_read_b128 {vr(ST,4)}, v{t0}")
    a(f"v_lshrrev_b32 v{t0}, 5, v1")
    a(f"v_lshlrev_b32 v{t0}, 4, v{t0}")
    a(f"s_lshr_b32 s{T0}, s{S_LW}, 1")
    a(f"s_lshl_b32 s{T0}, s{T0}, 8")
    a(f"v_add_u32 v{t0}, s{T0}, v{t0}")
    for ft in range(2):
        for j in range(4):
            a(f"ds_read_b128 {vr(CSR+16*ft+4*j,4)}, v{t0} offset:{1024 + 128*ft + 32*j}")
            a(f"ds_read_b128 {vr(B1R+16*ft+4*j,4)}, v{t0} offset:{1536 + 128*ft + 32*j}")
    a("s_waitcnt lgkmcnt(0)")
    mark4(a)
    P = lambda b, e: vr(b + 2*e, 2)
    for tt in range(2):
        nmp = vr(ST + 2*tt, 2)
        if tt == 1: a(f"s_add_u32 s{S_HB}, s{S_HB}, {108*1024}")
        for ft in range(2):
            for jj in range(2):
                x = ACC + 16*(2*tt+ft) + 8*jj
                for e in range(4):
                    j, i = 2*jj + (e >> 1), 2*(e & 1)
                    a(f"v_pk_fma_f32 {P(TU,e)}, {nmp}, {vr(CSR+16*ft+4*j+i,2)}, {vr(B1R+16*ft+4*j+i,2)} op_sel_hi:[0,1,1]")
                for e in range(4): a(f"v_pk_fma_f32 {P(x,e)}, {nmp}, {P(x,e)}, {P(TU,e)} op_sel:[1,0,0] op_sel_hi:[1,1,1]")
                for e in range(4): a(f"v_pk_mul_f32 {P(TU,e)}, {P(x,e)}, {P(x,e)}")
                for e in range(4): a(f"v_pk_fma_f32 {P(TU,e)}, {P(TU,e)}, {vr(C0,2)}, {vr(C0,2)} op_sel:[0,1,0] op_sel_hi:[1,1,0]")
                for e in range(4): a(f"v_pk_mul_f32 {P(TU,e)}, {P(TU,e)}, {P(x,e)}")
                for e in range(8): a(f"v_exp_f32 v{TE+e}, v{TU+e}")
                for e in range(4): a(f"v_pk_add_f32 {P(TE,e)}, {P(TE,e)}, {vr(ONE,2)} op_sel_hi:[1,0]")
                for e in range(8): a(f"v_rcp_f32 v{TE+e}, v{TE+e}")
                for e in range(4): a(f"v_pk_mul_f32 {P(TE,e)}, {P(TE,e)}, {P(x,e)}")
                d = TD + 4*(4*tt + 2*ft + jj)
                for e in range(4): a(f"v_cvt_pk_bf16_f32 v{d+e}, v{TE+2*e}, v{TE+2*e+1}")
                if not OPT.get('late_h', 0):
                    a(f"buffer_store_dwordx4 {vr(d,4)}, v{VY}, s[{SRD_WS}:{SRD_WS+3}], s{S_HB} offen offset:{(2*ft+jj)*1024} sc1", tag='hst')
    if OPT.get('late_h', 0):
        a(f"s_sub_u32 s{S_HB}, s{S_HB}, {108*1024}")
        for tt in range(2):
            if tt == 1: a(f"s_add_u32 s{S_HB}, s{S_HB}, {108*1024}")
            for ft in range(2):
                for jj in range(2):
                    d = TD + 4*(4*tt + 2*ft + jj)
                    a(f"buffer_store_dwordx4 {vr(d,4)}, v{VY}, s[{SRD_WS}:{SRD_WS+3}], s{S_HB} offen offset:{(2*ft+jj)*1024} sc1", tag='hst')
    mark4(a)
    a(f"s_branch {lbl}_join")
    a.label(f"{lbl}_g0")
    a.reset_counters()
    first.update({'x': True, 'q': True, '1': True})
    if OPT.get('pfs1', 0):
        a(f"s_lshl_b32 s{T0}, s{S_RB}, 7")
        a(f"s_lshr_b32 s{T1}, s{S_I}, 3")
        a(f"s_lshl_b32 s{T1}, s{T1}, 5")
        a(f"s_add_u32 s{T0}, s{T0}, s{T1}")
        a(f"s_lshl_b32 s{T1}, s{S_LW}, 3")
        a(f"s_add_u32 s{T0}, s{T0}, s{T1}")
        a(f"v_lshrrev_b32 v{t0}, 3, v1")
        a(f"v_add_u32 v{t0}, s{T0}, v{t0}")
        a(f"s_movk_i32 s{T1}, 1280")
        a(f"v_mul_lo_u32 v{t0}, v{t0}, s{T1}")
        a(f"v_and_b32 v{t1}, 7, v1")
        a(f"v_lshl_add_u32 v{t2}, v{t1}, 7, v{t0}")
        a(f"buffer_load_dword v251, v{t2}, s[{SRD_A}:{SRD_A+3}], 0 offen", tag='touch')
        a(f"v_and_b32 v{t1}, 1, v1")
        a(f"v_lshl_add_u32 v{t2}, v{t1}, 7, v{t0}")
        a(f"v_mov_b32 v{t3}, 0x7ffffff0")
        a(f"v_bfe_u32 v{t1}, v1, 1, 2")
        a(f"v_cmp_eq_u32 s[{T4}:{T4+1}], 0, v{t1}")
        a(f"v_cndmask_b32 v{t2}, v{t3}, v{t2}, s[{T4}:{T4+1}]")
        a(f"buffer_load_dword v251, v{t2}, s[{SRD_A}:{SRD_A+3}], 0 offen offset:1024", tag='touch')
        a(f"s_and_b32 s{T0}, s{S_I}, 7")
        a(f"s_mul_i32 s{T0}, s{T0}, 80")
        a(f"s_mul_i32 s{T1}, s{S_LW}, 20")
        a(f"s_add_u32 s{T0}, s{T0}, s{T1}")
        a(f"v_lshrrev_b32 v{t0}, 1, v1")
        a(f"v_add_u32 v{t0}, s{T0}, v{t0}")
        a(f"s_movk_i32 s{T1}, 3840")
        a(f"v_mul_lo_u32 v{t0}, v{t0}, s{T1}")
        a(f"v_and_b32 v{t1}, 1, v1")
        a(f"v_lshl_add_u32 v{t0}, v{t1}, 7, v{t0}")
        a(f"s_lshl_b32 s{T0}, s{S_CJ}, 8")
        a(f"v_add_u32 v{t0}, s{T0}, v{t0}")
        a(f"v_cmp_gt_u32 s[{T4}:{T4+1}], 40, v1")
        a(f"v_cndmask_b32 v{t0}, v{t3}, v{t0}, s[{T4}:{T4+1}]")
        a(f"buffer_load_dword v251, v{t0}, s[{SRD_B}:{SRD_B+3}], 0 offen", tag='touch')
    frag_bases()
    if OPT.get('cprio', 3): a(f"s_setprio {OPT.get('cprio', 3)}")
    mark(a)
    a("s_barrier")
    for r in reads(0, 0, 0): r()
    def g0_step(tau, u):
        if OPT.get('fine3') == 1 and u == 'bar' and tau in (0, 2, 4, 6, 8): mark(a)
        if u == 'bar' and tau == 9: return dma_list(13)
        if u == 1 and tau == 2: nonce_issue(a, 252)
        if u == 1 and tau == 4: nonce_check(a, 252)
        if u == 'bar' and tau == 8:
            pre_flags(a, t3, stats=False)
        return None
    compute(0, lambda tau: None, g0_step)
    mark(a)
    if OPT.get('lprio', 1): a(f"s_setprio {OPT.get('lprio', 1)}")
    a(f"v_lshrrev_b32 v{t0}, 5, v1")
    a(f"s_lshr_b32 s{T0}, s{S_LW}, 1")
    a(f"s_lshl_b32 s{T0}, s{T0}, 4")
    a(f"v_add_u32 v{t0}, s{T0}, v{t0}")
    a(f"v_lshlrev_b32 v{t0}, 14, v{t0}")
    a(f"s_and_b32 s{T0}, s{S_LW}, 1")
    a(f"s_lshl_b32 s{T0}, s{T0}, 9")
    a(f"v_and_b32 v{t1}, 31, v1")
    a(f"v_lshl_add_u32 v{t0}, v{t1}, 4, v{t0}")
    a(f"v_add_u32 v{t0}, s{T0}, v{t0}")
    a(f"s_lshl_b32 s{T0}, s{S_CJ}, 19")
    a(f"s_lshl_b32 s{T1}, s{S_RB}, 10")
    a(f"s_add_u32 s{T0}, s{T0}, s{T1}")
    a(f"s_add_u32 s{T0}, s{T0}, {WS_QKV}")
    a(f"s_cmp_lt_u32 s{S_CJ}, 5")
    a(f"s_cselect_b32 s{T2}, 0x3ea52b5c, 1.0")
    a(f"v_mov_b32 v30, s{T2}")
    for r in range(0, 64, 2):
        a(f"v_pk_mul_f32 {vr(ACC+r,2)}, {vr(ACC+r,2)}, v[30:31] op_sel_hi:[1,0]")
    k = 0
    for ft in range(2):
        for j in range(4):
            a(f"s_add_u32 s{T1}, s{T0}, {(8*ft + 2*j)*16384}")
            d = 32 + 4*(k % 8); k += 1
            for tt in range(2):
                base = ACC + 16*(2*tt+ft) + 4*j
                a(f"v_cvt_pk_bf16_f32 v{d+2*tt}, v{base}, v{base+1}")
                a(f"v_cvt_pk_bf16_f32 v{d+2*tt+1}, v{base+2}, v{base+3}")
            a(f"buffer_store_dwordx4 {vr(d,4)}, v{t0}, s[{SRD_WS}:{SRD_WS+3}], s{T1} offen sc1", tag='qst')
    fq_poll_offsets(a, VP, t3)
    TQP = OPT.get('tqp', 13)
    for tau in range(10, 20):
        if 13 <= tau + 1 <= 19: a.wait_vm(('B', tau + 1))
        if tau == TQP: a.wait_vm('qst')
        if tau == 19: a.wait_vm('tab')
        a("s_barrier")
        if OPT.get('fine3') == 2 and tau in (10, 11, 12, 13, 14, 15, 16, 17, 18, 19): mark(a)
        if tau == TQP: flag_store(a, S_FQ, t3)
        if tau + 4 <= 19: dma_block(tau + 4)
        if tau == 15:
            a(f"s_lshl_b32 s{T0}, s{S_RB}, 7")
            a(f"s_add_u32 s{T0}, s{T0}, {WS_FLAG + FS}")
            a(f"v_mov_b32 v{t0}, s{T0}")
            a(f"s_min_u32 s{T1}, s{S_CJ}, 13")
            a(f"s_lshl_b32 s{T1}, s{T1}, 2")
            a(f"s_add_u32 s{T1}, s{T1}, {WS_FLAG + FC}")
            a(f"v_mov_b32 v{t1}, s{T1}")
            a(f"v_cmp_gt_u32 s[{T4}:{T4+1}], 32, v1")
            a(f"v_cndmask_b32 v234, v{t1}, v{t0}, s[{T4}:{T4+1}]")
            poll_issue(a, 234, 235, 'p1')
        if tau == 17:
            L = uid("nf")
            a(f"s_cmp_ge_u32 s{S_CJ}, 14")
            a(f"s_cbranch_scc1 {L}")
            vm0 = list(a.vm)
            poll_check(a, 234, 235, 'p1')
            a.label(L)
            a.vm = vm0
            a(f"s_lshl_b32 s{T0}, s{S_RB}, 10")
            a(f"s_add_u32 s{T0}, s{T0}, {WS_ST}")
            a(f"s_lshl_b32 s{T1}, s{S_CJ}, 9")
            a(f"s_add_u32 s{T2}, s{T1}, {WS_CS}")
            a(f"s_add_u32 s{T1}, s{T1}, {WS_B1}")
            a(f"s_cmp_eq_u32 s{S_W}, 1")
            a(f"s_cselect_b32 s{T0}, s{T2}, s{T0}")
            a(f"s_cselect_b32 s{T3}, 1024, 0")
            a(f"s_cmp_eq_u32 s{S_W}, 2")
            a(f"s_cselect_b32 s{T0}, s{T1}, s{T0}")
            a(f"s_cselect_b32 s{T3}, 1536, s{T3}")
            a(f"s_cmp_eq_u32 s{S_W}, 3")
            a(f"s_cselect_b32 s{T0}, 0x7fff0000, s{T0}")
            a(f"s_cselect_b32 s{T3}, 2048, s{T3}")
            a(f"v_lshlrev_b32 v{t0}, 4, v1")
            a(f"v_mov_b32 v{t1}, 0x7ffffff0")
            a(f"s_cmp_eq_u32 s{S_W}, 0")
            a(f"s_cselect_b32 s{T1}, 64, 32")
            a(f"v_cmp_gt_u32 s[{T4}:{T4+1}], s{T1}, v1")
            a(f"s_mov_b64 exec, s[{T4}:{T4+1}]")
            a(f"s_mov_b32 m0, s{T3}")
            a(f"buffer_load_dwordx4 v{t0}, s[{SRD_WS}:{SRD_WS+3}], s{T0} offen sc1 lds", tag='tab')
            a("s_mov_b64 exec, -1")
        if tau == 19: pass
        if tau == OPT.get('tpq', 18):
            poll_issue(a, VP, VPV, 'pq')
            fw_poll_offsets(a, VP+202)
            poll_issue(a, VP+202, VPV+202, 'pw')
    if OPT.get('fine4'): mark(a)
    poll_check(a, VP, VPV, 'pq')
    if OPT.get('fine4'): mark(a)
    attn_stage_q(a, 3)
    attn_stage_kv(a, t0, t1, t2, 2)
    poll_check(a, VP+202, VPV+202, 'pw')
    if OPT.get('earlyw', 0): wf_first_slots(a, 3)
    mark(a)
    a.wait_vm(('kv', 0))
    if OPT.get('fine4'): mark(a)
    a(f"s_branch {lbl}_join")
    a.label(f"{lbl}_idle")
    a.reset_counters()
    a("s_waitcnt lgkmcnt(0)")
    prologue_rest(a)
    attn_coords(a)
    final_coords(a)
    srd(a, SRD_A, P_AX, SIZES['AX'])
    rowstats_issue(a)
    colsum_issue(a)
    nonce_issue(a, 252)
    rowstats_compute(a)
    colsum_compute(a, lbl + "_cs")
    nonce_check(a, 252)
    a("s_waitcnt vmcnt(0)")
    a("s_barrier")
    a(f"s_lshl_b32 s{T0}, s{S_RB}, 7")
    a(f"s_add_u32 s{T0}, s{T0}, {WS_FLAG + FS}")
    flag_store(a, T0, t3)
    a(f"s_lshl_b32 s{T0}, s{S_RB}, 2")
    a(f"s_add_u32 s{T0}, s{T0}, {WS_FLAG + FC}")
    flag_store(a, T0, t3)
    pre_address(a, lbl + "_pai", rows=False)
    pre_issue(a, rows=False)
    a.wait_vm('pl')
    repack_finish(a)
    a("s_waitcnt vmcnt(0)")
    a("s_barrier")
    pre_flags(a, t3, stats=False)
    a(f"s_mov_b32 s{S_FHO}, 0x7fff0000")
    fq_poll_offsets(a, VP, t3)
    a(f"s_mov_b64 s[{T4}:{T4+1}], -1")
    wait_flags(a, VP, VPV, T4)
    Li = uid("ik")
    a(f"s_cmp_ge_u32 s{S_W}, 4")
    a(f"s_cbranch_scc1 {Li}")
    attn_stage_q(a, 3)
    attn_stage_kv(a, t0, t1, t2, 2)
    fw_poll_offsets(a, VP+202)
    poll_issue(a, VP+202, VPV+202, 'pw')
    poll_check(a, VP+202, VPV+202, 'pw')
    if OPT.get('earlyw', 0): wf_first_slots(a, 3)
    a.label(Li)
    a("s_waitcnt vmcnt(0)")
    a.label(f"{lbl}_join")
    if OPT.get('lprio', 1) or OPT.get('cprio', 3): a("s_setprio 0")
    a.reset_counters()

SLOT = 49152
def stage1f(a, lbl):
    SRD_E, S_M = 64, 68
    VXD, VQD, V1D = 2, 4, 6
    VXF, VWF = 8, 16
    t0, t1, t2, t3 = 20, 21, 22, 23
    VP, VPV = 24, 25
    FB = [32, 48]
    ACC = 64
    ST, CSR, B1R, TD = 192, 128, 160, 196
    S_FQ, S_FH, S_ACT, S_HB = 69, 70, 71, 72
    attn_coords(a)
    final_coords(a)
    a(f"s_and_b32 s{S_LW}, s{S_W}, 3")
    a(f"s_cmp_ge_u32 s{S_CJ}, 15")
    a(f"s_cbranch_scc1 {lbl}_idle")
    srd(a, SRD_A, P_AX, SIZES['AX'])
    srd(a, SRD_B, P_WQKV, SIZES['WQKV'])
    srd(a, SRD_E, P_W1, SIZES['W1'])
    a(f"s_lshl_b32 s{T0}, s{S_RB}, 7")
    a(f"s_lshr_b32 s{T1}, s{S_W}, 2")
    a(f"s_lshl_b32 s{T1}, s{T1}, 6")
    a(f"s_add_u32 s{T0}, s{T0}, s{T1}")
    a(f"s_and_b32 s{T1}, s{S_W}, 1")
    a(f"s_lshl_b32 s{T1}, s{T1}, 5")
    a(f"s_add_u32 s{T0}, s{T0}, s{T1}")
    a(f"s_bfe_u32 s{T1}, s{S_W}, 0x10001")
    a(f"s_add_u32 s{T0}, s{T0}, s{T1}")
    a(f"v_lshrrev_b32 v{t0}, 3, v1")
    a(f"v_lshlrev_b32 v{t0}, 1, v{t0}")
    a(f"v_add_u32 v{t0}, s{T0}, v{t0}")
    a(f"s_movk_i32 s{T2}, 1280")
    a(f"v_mul_lo_u32 v{t0}, v{t0}, s{T2}")
    a(f"v_lshrrev_b32 v{t1}, 4, v1")
    a(f"v_and_b32 v{t2}, 7, v1")
    a(f"v_xor_b32 v{t2}, v{t2}, v{t1}")
    a(f"v_xor_b32 v{t3}, 4, v{t2}")
    a(f"v_lshl_add_u32 v{VXD}, v{t2}, 4, v{t0}")
    a(f"v_lshl_add_u32 v{VXD+1}, v{t3}, 4, v{t0}")
    a(f"v_add_u32 v{VXD+1}, {16*1280-1024}, v{VXD+1}")
    a(f"s_lshl_b32 s{T0}, s{S_W}, 3")
    a(f"v_lshrrev_b32 v{t0}, 4, v1")
    a(f"v_add_u32 v{t1}, s{T0}, v{t0}")
    a(f"v_bfe_u32 v{t2}, v1, 2, 2")
    a(f"v_xor_b32 v{t2}, v{t2}, v{t0}")
    a(f"v_and_b32 v{t3}, 3, v1")
    a(f"v_lshl_add_u32 v{t2}, v{t2}, 2, v{t3}")
    a(f"v_lshlrev_b32 v{t2}, 4, v{t2}")
    a(f"s_lshl_b32 s{T0}, s{S_CJ}, 8")
    a(f"v_add_u32 v{t2}, s{T0}, v{t2}")
    for vd, pitch in ((VQD, 3840), (V1D, 3456)):
        a(f"s_movk_i32 s{T2}, {pitch}")
        a(f"v_mul_lo_u32 v{t3}, v{t1}, s{T2}")
        a(f"v_add_u32 v{vd}, v{t3}, v{t2}")
        a(f"v_add_u32 v{vd+1}, {4*pitch-1024}, v{vd}")
    a(f"s_lshl_b32 s{S_M}, s{S_W}, 11")
    if OPT.get('rot', 1):
        a(f"s_lshr_b32 s{T0}, s{S_I}, 3")
        a(f"s_mul_i32 s{T0}, s{T0}, 10")
        a(f"s_and_b32 s{T1}, s{S_I}, 7")
        a(f"s_mul_i32 s{T1}, s{T1}, 5")
        a(f"s_add_u32 s{T0}, s{T0}, s{T1}")
        a(f"s_lshr_b32 s{T0}, s{T0}, 2")
        a(f"s_sub_u32 s{T1}, s{T0}, 10")
        a(f"s_cmp_ge_u32 s{T0}, 10")
        a(f"s_cselect_b32 s{T0}, s{T1}, s{T0}")
    else:
        a(f"s_mov_b32 s{T0}, 0")
    a(f"s_lshl_b32 s{S_KX}, s{T0}, 7")
    a(f"s_mul_i32 s{S_KQ}, s{T0}, {64*3840}")
    a(f"s_mul_i32 s{S_K1}, s{T0}, {64*3456}")
    def adv(sreg, step, wrap):
        a(f"s_add_u32 s{sreg}, s{sreg}, {step}")
        a(f"s_cmp_eq_u32 s{sreg}, {wrap}")
        a(f"s_cselect_b32 s{sreg}, 0, s{sreg}")
    parts = ((VXD, SRD_A, S_KX, 0, 128, 1280), (VQD, SRD_B, S_KQ, 16384, 64*3840, 640*3840), (V1D, SRD_E, S_K1, 32768, 64*3456, 640*3456))
    def dma(b, part, i):
        vd, sr, sk, off, step, wrap = parts[part]
        if i == 0:
            a(f"s_add_u32 m0, s{S_M}, {(b % 3)*SLOT + off}")
            if b > 0: adv(sk, step, wrap)
        a(f"buffer_load_dwordx4 v{vd+i}, s[{sr}:{sr+3}], s{sk} offen offset:{i*1024} lds", tag=('B', b))
    def dma_block(b):
        for part in range(3):
            for i in range(2): dma(b, part, i)
    NI = OPT.get('finit', 2)
    for b in range(NI): dma_block(b)
    pre_address(a, lbl + "_pa", rows=False)
    a(f"s_and_b32 s{T0}, s{S_W}, 1")
    a(f"s_lshl_b32 s{T0}, s{T0}, 13")
    a(f"v_and_b32 v{t0}, 31, v1")
    a(f"v_lshrrev_b32 v{t1}, 5, v1")
    a(f"v_bfe_u32 v{t2}, v1, 1, 3")
    a(f"v_lshlrev_b32 v{t0}, 7, v{t0}")
    a(f"v_add_u32 v{t0}, s{T0}, v{t0}")
    for s_ in range(4):
        a(f"v_or_b32 v{t3}, {2*s_}, v{t1}")
        a(f"v_xor_b32 v{t3}, v{t3}, v{t2}")
        a(f"v_lshl_add_u32 v{VXF+s_}, v{t3}, 4, v{t0}")
        a(f"v_add_u32 v{VXF+4+s_}, {2*SLOT}, v{VXF+s_}")
    a(f"v_bfe_u32 v{t0}, v1, 2, 2")
    a(f"v_lshl_add_u32 v{t1}, v{t1}, 3, v{t0}")
    a(f"v_lshlrev_b32 v{t1}, 8, v{t1}")
    a(f"v_bfe_u32 v{t2}, v1, 4, 1")
    a(f"v_lshl_add_u32 v{t1}, v{t2}, 5, v{t1}")
    a(f"v_and_b32 v{t2}, 3, v1")
    a(f"v_lshl_add_u32 v{t1}, v{t2}, 3, v{t1}")
    a(f"s_lshr_b32 s{T0}, s{S_W}, 1")
    a(f"v_xor_b32 v{t2}, s{T0}, v{t0}")
    a(f"v_lshl_add_u32 v{VWF}, v{t2}, 6, v{t1}")
    a(f"v_add_u32 v{VWF+1}, {SLOT}, v{VWF}")
    a(f"v_add_u32 v{VWF+2}, {2*SLOT}, v{VWF}")
    a(f"s_lshl_b32 s{T0}, s{S_RB}, 7")
    a(f"s_add_u32 s{T0}, s{T0}, {WS_FLAG + FS}")
    a(f"v_mov_b32 v{t0}, s{T0}")
    a(f"s_min_u32 s{T1}, s{S_CJ}, 13")
    a(f"s_lshl_b32 s{T1}, s{T1}, 2")
    a(f"s_add_u32 s{T1}, s{T1}, {WS_FLAG + FC}")
    a(f"v_mov_b32 v{t1}, s{T1}")
    a(f"v_cmp_gt_u32 s[{T4}:{T4+1}], 32, v1")
    a(f"v_cndmask_b32 v{VP}, v{t1}, v{t0}, s[{T4}:{T4+1}]")
    a(f"s_lshl_b32 s{T0}, s{S_RB}, 7")
    a(f"s_lshl_b32 s{T1}, s{S_CJ}, 2")
    a(f"s_add_u32 s{T0}, s{T0}, s{T1}")
    a(f"s_add_u32 s{S_FQ}, s{T0}, {WS_FLAG + FQ}")
    a(f"s_add_u32 s{S_FH}, s{T0}, {WS_FLAG + FH}")
    a(f"s_cmp_lt_u32 s{S_CJ}, 14")
    a(f"s_cselect_b32 s{S_FHO}, s{S_FH}, 0x7fff0000")
    def rd_b(st, b, u, tt):
        sl = b % 3
        a(f"ds_read_b128 {vr(FB[st]+4*tt,4)}, v{VXF + u + (4 if sl == 2 else 0)} offset:{(SLOT if sl == 1 else 0) + tt*4096}", tag=('f', b, u, 'b', tt))
    def rd_a(st, b, u, F, rd):
        a(f"ds_read_b64_tr_b16 {vr(FB[st]+8+4*F+2*rd,2)}, v{VWF + b % 3} offset:{16384*(F+1) + u*4096 + rd*1024}", tag=('f', b, u, 'a', F))
    def reads(st, b, u):
        return [lambda: rd_b(st, b, u, 0), lambda: rd_a(st, b, u, 0, 0), lambda: rd_a(st, b, u, 0, 1),
                lambda: rd_b(st, b, u, 1), lambda: rd_a(st, b, u, 1, 0), lambda: rd_a(st, b, u, 1, 1)]
    mark(a)
    a.wait_vm(('B', 0))
    a("s_barrier")
    for r in reads(0, 0, 0): r()
    NB = 10
    pend = [(b, p, i) for b in range(NI, 3) for p in range(3) for i in range(2)]
    for b in range(NB):
        for u in range(4):
            s_ = 4*b + u; st = s_ & 1
            last = (b == NB-1 and u == 3)
            if u == 3 and b + 1 < NB:
                while pend: dma(*pend.pop(0))
                a("s_waitcnt lgkmcnt(0)")
                a.wait_vm(('B', b + 1))
                a("s_barrier")
                if b == 3:
                    a.wait_vm('pl')
                    repack_finish(a)
                if b == 6: pre_flags(a, t3, stats=False)
                if b + 3 < NB: pend = [(b + 3, p, i) for p in range(3) for i in range(2)]
            nb, nu = (b, u + 1) if u < 3 else (b + 1, 0)
            rs = [] if last else reads(st ^ 1, nb, nu)
            plan = {-1: rs[0:2], 0: rs[2:5], 1: rs[5:6]}
            for r in plan[-1]: r()
            for k, (tt, F) in enumerate([(0, 0), (1, 0), (0, 1), (1, 1)]):
                a.wait_lg([('f', b, u, 'b', tt), ('f', b, u, 'a', F)])
                d = vr(ACC+16*(2*tt+F), 16)
                a(f"v_mfma_f32_32x32x16_bf16 {d}, {vr(FB[st]+8+4*F,4)}, {vr(FB[st]+4*tt,4)}, {'0' if s_ == 0 else d}")
                for r in plan.get(k, []): r()
                if pend and k in (1, 3): dma(*pend.pop(0))
            if b == 1 and u == 0: pre_issue(a, rows=False)
            if b == 1 and u == 1: nonce_issue(a, 252)
            if b == 3 and u == 1: nonce_check(a, 252)
            if b == 6 and u == 0: poll_issue(a, VP, VPV, 'p1')
            if b == 8 and u == 0:
                L = uid("nf")
                a(f"s_cmp_ge_u32 s{S_CJ}, 14")
                a(f"s_cbranch_scc1 {L}")
                vm0 = list(a.vm)
                poll_check(a, VP, VPV, 'p1')
                a.label(L)
                a.vm = vm0
                a(f"s_lshl_b32 s{T0}, s{S_RB}, 10")
                a(f"s_and_b32 s{T1}, s{S_W}, 1")
                a(f"s_lshl_b32 s{T1}, s{T1}, 9")
                a(f"s_add_u32 s{T0}, s{T0}, s{T1}")
                a(f"s_add_u32 s{T0}, s{T0}, {WS_ST}")
                a(f"v_and_b32 v{t0}, 31, v1")
                a(f"v_lshlrev_b32 v{t0}, 4, v{t0}")
                a(f"buffer_load_dwordx4 {vr(ST,4)}, v{t0}, s[{SRD_WS}:{SRD_WS+3}], s{T0} offen sc1", tag='tab')
                a(f"v_lshrrev_b32 v{t0}, 5, v1")
                a(f"v_lshlrev_b32 v{t0}, 4, v{t0}")
                a(f"s_lshl_b32 s{T0}, s{S_CJ}, 9")
                a(f"s_lshr_b32 s{T1}, s{S_W}, 1")
                a(f"s_lshl_b32 s{T1}, s{T1}, 7")
                a(f"s_add_u32 s{T0}, s{T0}, s{T1}")
                a(f"s_add_u32 s{T1}, s{T0}, {WS_B1}")
                a(f"s_add_u32 s{T0}, s{T0}, {WS_CS}")
                for j in range(4):
                    a(f"buffer_load_dwordx4 {vr(CSR+4*j,4)}, v{t0}, s[{SRD_WS}:{SRD_WS+3}], s{T0} offen offset:{32*j} sc1", tag='tab')
                    a(f"buffer_load_dwordx4 {vr(B1R+4*j,4)}, v{t0}, s[{SRD_WS}:{SRD_WS+3}], s{T1} offen offset:{32*j} sc1", tag='tab')
    mark(a)
    a(f"v_lshrrev_b32 v{t0}, 5, v1")
    a(f"s_lshr_b32 s{T0}, s{S_W}, 1")
    a(f"s_lshl_b32 s{T0}, s{T0}, 3")
    a(f"v_add_u32 v{t0}, s{T0}, v{t0}")
    a(f"v_lshlrev_b32 v{t0}, 14, v{t0}")
    a(f"s_and_b32 s{T0}, s{S_W}, 1")
    a(f"s_lshl_b32 s{T0}, s{T0}, 9")
    a(f"v_and_b32 v{t1}, 31, v1")
    a(f"v_lshl_add_u32 v{t0}, v{t1}, 4, v{t0}")
    a(f"v_add_u32 v{t0}, s{T0}, v{t0}")
    a(f"s_lshl_b32 s{T0}, s{S_CJ}, 19")
    a(f"s_lshl_b32 s{T1}, s{S_RB}, 10")
    a(f"s_add_u32 s{T0}, s{T0}, s{T1}")
    a(f"s_add_u32 s{T0}, s{T0}, {WS_QKV}")
    a(f"s_cmp_lt_u32 s{S_CJ}, 5")
    a(f"s_cselect_b32 s{T2}, 0x3ea52b5c, 1.0")
    a(f"v_mov_b32 v30, s{T2}")
    for tt in range(2):
        for r in range(0, 16, 2):
            a(f"v_pk_mul_f32 {vr(ACC+32*tt+r,2)}, {vr(ACC+32*tt+r,2)}, v[30:31] op_sel_hi:[1,0]")
    for j in range(4):
        a(f"s_add_u32 s{T1}, s{T0}, {2*j*16384}")
        d = FB[0] + 4*j
        for tt in range(2):
            base = ACC + 32*tt + 4*j
            a(f"v_cvt_pk_bf16_f32 v{d+2*tt}, v{base}, v{base+1}")
            a(f"v_cvt_pk_bf16_f32 v{d+2*tt+1}, v{base+2}, v{base+3}")
        a(f"buffer_store_dwordx4 {vr(d,4)}, v{t0}, s[{SRD_WS}:{SRD_WS+3}], s{T1} offen sc1", tag='qst')
    C0, C1, VY, ONE = 2, 3, 4, 6
    TU, TE = 48, 56
    a(f"v_mov_b32 v{ONE}, 1.0")
    a(f"v_mov_b32 v{C0}, 0xc0135761")
    a(f"v_mov_b32 v{C1}, 0xbdd2d3e8")
    a(f"v_lshlrev_b32 v{VY}, 4, v1")
    a(f"s_lshl_b32 s{T0}, s{S_CJ}, 3")
    a(f"s_lshr_b32 s{T1}, s{S_W}, 1")
    a(f"s_lshl_b32 s{T1}, s{T1}, 1")
    a(f"s_add_u32 s{S_ACT}, s{T0}, s{T1}")
    a(f"s_lshl_b32 s{T0}, s{S_RB}, 2")
    a(f"s_and_b32 s{T1}, s{S_W}, 1")
    a(f"s_lshl_b32 s{T1}, s{T1}, 1")
    a(f"s_add_u32 s{T0}, s{T0}, s{T1}")
    a(f"s_mul_i32 s{T0}, s{T0}, 108")
    a(f"s_add_u32 s{T0}, s{T0}, s{S_ACT}")
    a(f"s_lshl_b32 s{T0}, s{T0}, 10")
    a(f"s_add_u32 s{S_HB}, s{T0}, {WS_H}")
    a(f"s_cmp_lt_u32 s{S_ACT}, 108")
    a(f"s_cselect_b32 s{S_HB}, s{S_HB}, 0x7fff0000")
    a.wait_vm('tab')
    P = lambda b, e: vr(b + 2*e, 2)
    for tt in range(2):
        nmp = vr(ST + 2*tt, 2)
        for jj in range(2):
            x = ACC + 16*(2*tt+1) + 8*jj
            for e in range(4):
                j, i = 2*jj + (e >> 1), 2*(e & 1)
                a(f"v_pk_fma_f32 {P(TU,e)}, {nmp}, {vr(CSR+4*j+i,2)}, {vr(B1R+4*j+i,2)} op_sel_hi:[0,1,1]")
            for e in range(4): a(f"v_pk_fma_f32 {P(x,e)}, {nmp}, {P(x,e)}, {P(TU,e)} op_sel:[1,0,0] op_sel_hi:[1,1,1]")
            for e in range(4): a(f"v_pk_mul_f32 {P(TU,e)}, {P(x,e)}, {P(x,e)}")
            for e in range(4): a(f"v_pk_fma_f32 {P(TU,e)}, {P(TU,e)}, {vr(C0,2)}, {vr(C0,2)} op_sel:[0,1,0] op_sel_hi:[1,1,0]")
            for e in range(4): a(f"v_pk_mul_f32 {P(TU,e)}, {P(TU,e)}, {P(x,e)}")
            for e in range(8): a(f"v_exp_f32 v{TE+e}, v{TU+e}")
            for e in range(4): a(f"v_pk_add_f32 {P(TE,e)}, {P(TE,e)}, {vr(ONE,2)} op_sel_hi:[1,0]")
            for e in range(8): a(f"v_rcp_f32 v{TE+e}, v{TE+e}")
            for e in range(4): a(f"v_pk_mul_f32 {P(TE,e)}, {P(TE,e)}, {P(x,e)}")
            d = TD + 4*(2*tt + jj)
            for e in range(4): a(f"v_cvt_pk_bf16_f32 v{d+e}, v{TE+2*e}, v{TE+2*e+1}")
    fq_poll_offsets(a, VP, t3)
    a.wait_vm('qst')
    a("s_barrier")
    flag_store(a, S_FQ, t3)
    mark(a)
    for tt in range(2):
        if tt == 1: a(f"s_add_u32 s{S_HB}, s{S_HB}, {108*1024}")
        for jj in range(2):
            d = TD + 4*(2*tt + jj)
            a(f"buffer_store_dwordx4 {vr(d,4)}, v{VY}, s[{SRD_WS}:{SRD_WS+3}], s{S_HB} offen offset:{jj*1024} sc1", tag='hst')
    a(f"s_branch {lbl}_stage")
    a.label(f"{lbl}_idle")
    a.reset_counters()
    t3i = t3
    srd(a, SRD_A, P_AX, SIZES['AX'])
    rowstats_issue(a)
    colsum_issue(a)
    nonce_issue(a, 252)
    rowstats_compute(a)
    colsum_compute(a, lbl + "_cs")
    nonce_check(a, 252)
    a("s_waitcnt vmcnt(0)")
    a("s_barrier")
    a(f"s_lshl_b32 s{T0}, s{S_RB}, 7")
    a(f"s_add_u32 s{T0}, s{T0}, {WS_FLAG + FS}")
    flag_store(a, T0, t3)
    a(f"s_lshl_b32 s{T0}, s{S_RB}, 2")
    a(f"s_add_u32 s{T0}, s{T0}, {WS_FLAG + FC}")
    flag_store(a, T0, t3)
    pre_address(a, lbl + "_pai", rows=False)
    pre_issue(a, rows=False)
    a.wait_vm('pl')
    repack_finish(a)
    a("s_waitcnt vmcnt(0)")
    a("s_barrier")
    pre_flags(a, t3, stats=False)
    a(f"s_mov_b32 s{S_FHO}, 0x7fff0000")
    fq_poll_offsets(a, VP, t3)
    a.label(f"{lbl}_stage")
    a.reset_counters()
    a(f"s_mov_b64 s[{T4}:{T4+1}], -1")
    wait_flags(a, VP, VPV, T4)
    mark(a)
    Li = uid("ik")
    a(f"s_cmp_ge_u32 s{S_W}, 4")
    a(f"s_cbranch_scc1 {Li}")
    attn_stage_q(a, 3)
    attn_stage_kv(a, t0, t1, t2, 2)
    a.wait_vm(('kv', 0))
    a.label(Li)
    a.reset_counters()

def stage_attn(a, lbl):
    HP, S_HH, S_QW = S_AHP, 78, 79
    VD, VK, VV, VKX, VW = 2, 3, 4, 5, 10
    t0, t1, t2, t3, t4 = 6, 7, 8, 9, 11
    MK = 12
    Q0, Q1 = 20, 24
    KF = [28, 36]
    VF = [44, 48, 52, 56]
    PF = [60, 64, 68, 72]
    OA = 76
    CS, NM, MX = 96, 97, 98
    S = 104
    VPQ, VPH = 92, 94
    a(f"v_and_b32 v{t0}, 31, v1")
    a(f"v_and_b32 v{VPH}, 15, v1")
    a(f"v_min_u32 v{VPH}, 13, v{VPH}")
    a(f"v_lshlrev_b32 v{VPH}, 2, v{VPH}")
    a(f"s_lshr_b32 s{T1}, s{S_FRB}, 1")
    a(f"s_lshl_b32 s{T1}, s{T1}, 7")
    a(f"s_add_u32 s{T1}, s{T1}, {WS_FLAG + FH}")
    a(f"v_add_u32 v{VPH}, s{T1}, v{VPH}")
    a(f"v_lshrrev_b32 v{t1}, 5, v1")
    for r in range(4): a(f"v_mov_b32 v{KF[0]+r}, 0x3f803f80")
    a(f"v_lshlrev_b32 v{t4}, 4, v0")
    a(f"v_add_u32 v{t4}, {LONES}, v{t4}")
    a(f"v_mov_b32 v{KF[1]}, 208")
    a(f"v_cmp_gt_u32 vcc, v{KF[1]}, v0")
    L = uid("on")
    a(f"s_and_saveexec_b64 s[{T4}:{T4+1}], vcc")
    a(f"s_cbranch_execz {L}")
    a(f"ds_write_b128 v{t4}, {vr(KF[0],4)}")
    a.label(L)
    a(f"s_mov_b64 exec, s[{T4}:{T4+1}]")
    SM = 98
    a(f"v_lshlrev_b32 v{t2}, 2, v{t1}")
    a(f"v_sub_u32 v{t2}, v{t0}, v{t2}")
    VM = 248
    a(f"v_mov_b32 v{VM}, v{t2}")
    a(f"v_mov_b32 v{t3}, 0xffff")
    a(f"v_mov_b32 v{t4}, 0xffff0000")
    for q in range(8):
        r0, r1 = 2*q, 2*q + 1
        a(f"v_cmp_le_i32 s[98:99], {8*(r0 >> 2) + (r0 & 3)}, v{VM}")
        a(f"v_cmp_le_i32 s[100:101], {8*(r1 >> 2) + (r1 & 3)}, v{VM}")
        a(f"v_cndmask_b32 v{MK+q}, 0, v{t3}, s[98:99]")
        a(f"v_cndmask_b32 v{KF[1]}, 0, v{t4}, s[100:101]")
        a(f"v_or_b32 v{MK+q}, v{MK+q}, v{KF[1]}")
    a(f"s_lshl_b32 s{T0}, s{S_QW}, 8")
    a(f"s_mul_i32 s{T3}, s{S_HH}, {5*PST}")
    a(f"s_add_u32 s{T2}, s{T0}, s{T3}")
    a(f"s_add_u32 s{T2}, s{T2}, {LK}")
    a(f"v_lshlrev_b32 v{t2}, 3, v{t0}")
    a(f"v_add_u32 v{t2}, s{T2}, v{t2}")
    a(f"s_movk_i32 s{T1}, {2*PST}")
    a(f"v_mul_lo_u32 v{t3}, v{t1}, s{T1}")
    a(f"v_add_u32 v{VK}, v{t2}, v{t3}")
    a(f"v_add_u32 v{VKX}, {4*PST}, v{t2}")
    a(f"v_bfe_u32 v{t2}, v1, 4, 1")
    a(f"v_and_b32 v{t3}, 3, v1")
    a(f"v_lshl_add_u32 v{t2}, v{t2}, 2, v{t3}")
    a(f"v_bfe_u32 v{t3}, v1, 2, 2")
    a(f"v_lshl_add_u32 v{t3}, v{t1}, 2, v{t3}")
    a(f"v_lshlrev_b32 v{t3}, 3, v{t3}")
    a(f"v_add_u32 v{t3}, s{T0}, v{t3}")
    a(f"s_movk_i32 s{T1}, {PST}")
    a(f"v_mul_lo_u32 v{t4}, v{t2}, s{T1}")
    a(f"v_cmp_gt_u32 s[{T4}:{T4+1}], 5, v{t2}")
    a(f"s_add_u32 s{T3}, s{T3}, {LV}")
    a(f"s_sub_u32 s{T2}, s{T3}, {LONES}")
    a(f"v_lshlrev_b32 v{KF[0]}, 5, v{t2}")
    a(f"v_add_u32 v{KF[0]}, s{T2}, v{KF[0]}")
    a(f"v_and_b32 v{KF[0]}, 255, v{KF[0]}")
    a(f"v_add_u32 v{KF[0]}, {LONES}, v{KF[0]}")
    a(f"v_add_u32 v{KF[0]+1}, s{T3}, v{t4}")
    a(f"v_cndmask_b32 v{KF[0]}, v{KF[0]}, v{KF[0]+1}, s[{T4}:{T4+1}]")
    a(f"v_add_u32 v{VV}, v{KF[0]}, v{t3}")
    a(f"v_mov_b32 v{CS}, 0x3ea52b5c")
    for st in range(2):
        a(f"v_mov_b32 v{KF[st]+6}, 0"); a(f"v_mov_b32 v{KF[st]+7}, 0")
    a(f"v_mov_b32 v{Q1+2}, 0"); a(f"v_mov_b32 v{Q1+3}, 0")
    a(f"v_lshlrev_b32 v{VW}, 4, v1")
    a(f"s_lshl_b32 s{T0}, s{S_ARB}, 2")
    a(f"s_add_u32 s{S_QB}, s{T0}, s{S_QW}")
    a(f"s_mul_i32 s{T0}, s{S_HH}, 5120")
    a(f"s_lshl_b32 s{T1}, s{S_QW}, 8")
    a(f"s_add_u32 s{T0}, s{T0}, s{T1}")
    a(f"s_add_u32 s{T0}, s{T0}, {QL}")
    a(f"v_lshlrev_b32 v{t2}, 3, v{t0}")
    a(f"v_add_u32 v{t2}, s{T0}, v{t2}")
    a(f"v_lshl_add_u32 v{t3}, v{t1}, 11, v{t2}")
    a("s_waitcnt lgkmcnt(0)")
    a("s_barrier")
    a(f"ds_read_b64 {vr(Q0,2)}, v{t3}")
    a(f"ds_read_b64 {vr(Q0+2,2)}, v{t3} offset:1024")
    a(f"ds_read_b64 {vr(Q1,2)}, v{t2} offset:4096")
    a(f"v_cmp_gt_u32 s[{T4}:{T4+1}], 32, v1")
    a("s_waitcnt lgkmcnt(0)")
    for q in (Q1, Q1+1):
        a(f"v_cndmask_b32 v{q}, 0, v{q}, s[{T4}:{T4+1}]")
    mark(a)
    SB = [100, 116, 132]; NM16 = 148
    order = [0, 8, 1, 2, 3, 4, 5, 6, 7]
    a(f"v_mov_b32 v{Q1+2}, 0x3f80")
    a(f"v_cndmask_b32 v{Q1+2}, 0, v{Q1+2}, s[{T4}:{T4+1}]")
    kn = [0]
    def rd_k(tl):
        st = KF[kn[0] % 2]; kn[0] += 1
        a(f"ds_read_b64 {vr(st,2)}, v{VK} offset:{tl*256}", tag=('k', tl))
        a(f"ds_read_b64 {vr(st+2,2)}, v{VK} offset:{PST + tl*256}", tag=('k', tl))
        a(f"ds_read_b64 {vr(st+4,2)}, v{VKX} offset:{tl*256}", tag=('k', tl))
        if tl < 8:
            a(f"s_cmp_lt_u32 s{S_QB}, {8-tl}")
            a(f"s_cselect_b32 s{T0}, 0xf149, 0")
            a(f"v_mov_b32 v{st+6}, s{T0}")
        else:
            a(f"v_mov_b32 v{st+6}, 0")
        return st
    def qk(tl, st, buf, c):
        a.wait_lg(('k', tl))
        d = vr(buf, 16)
        a(f"v_mfma_f32_32x32x16_bf16 {d}, {vr(st,4)}, {vr(Q0,4)}, {c}")
        a(f"v_mfma_f32_32x32x16_bf16 {d}, {vr(st+4,4)}, {vr(Q1,4)}, {d}")
    def merge():
        for r in range(0, 16, 2):
            a(f"v_cmp_le_i32 s[98:99], {8*(r >> 2) + (r & 3)}, v{VM}")
            a(f"v_cmp_le_i32 s[100:101], {8*((r+1) >> 2) + ((r+1) & 3)}, v{VM}")
            a(f"v_cndmask_b32 v{SB[0]+r}, v{SB[0]+r}, v{SB[1]+r}, s[98:99]")
            a(f"v_cndmask_b32 v{SB[0]+r+1}, v{SB[0]+r+1}, v{SB[1]+r+1}, s[100:101]")
    bufs = {0: SB[0], 8: SB[1]}
    for n, tl in enumerate(range(1, 8)): bufs[tl] = SB[(2 - n) % 3]
    def tmax(buf, first):
        for h in range(2):
            m = MX + h
            a(f"v_max3_f32 v{m}, v{buf+8*h}, v{buf+8*h+1}, {'v%d' % (buf+8*h+2) if first else 'v%d' % m}")
            ks = range(3, 8) if first else range(2, 8)
            ks = list(ks)
            while ks:
                if len(ks) >= 2:
                    a(f"v_max3_f32 v{m}, v{m}, v{buf+8*h+ks[0]}, v{buf+8*h+ks[1]}"); ks = ks[2:]
                else:
                    a(f"v_max_f32 v{m}, v{m}, v{buf+8*h+ks[0]}"); ks = ks[1:]
    st = rd_k(0); st2 = rd_k(8)
    qk(0, st, bufs[0], "0")
    st = rd_k(1)
    qk(8, st2, bufs[8], "0")
    st2 = rd_k(2)
    qk(1, st, bufs[1], "0")
    merge()
    tmax(SB[0], True)
    cur = st2
    for tl in range(2, 8):
        nxt = rd_k(tl + 1) if tl + 1 < 8 else None
        qk(tl, cur, bufs[tl], "0")
        tmax(bufs[tl-1], False)
        cur = nxt
    tmax(bufs[7], False)
    a(f"v_max_f32 v{MX}, v{MX}, v{MX+1}")
    a(f"v_mov_b32 v{MX+1}, v{MX}")
    a(f"v_permlane32_swap_b32 v{MX}, v{MX+1}")
    a(f"v_max_f32 v{MX}, v{MX}, v{MX+1}")
    a(f"v_sub_f32 v{NM16}, 0, v{MX}")
    for r in range(1, 16): a(f"v_mov_b32 v{NM16+r}, v{NM16}")
    if OPT.get('fine5'): mark(a)
    st = rd_k(0); st2 = rd_k(8)
    Lv = uid("vb")
    a(f"s_cmp_ge_u32 s{S_W}, 4")
    a(f"s_cbranch_scc1 {Lv}_1")
    a("s_waitcnt vmcnt(0)")
    a.label(f"{Lv}_1")
    if OPT.get('thp', -1) < 0: a("s_waitcnt vmcnt(0)")
    a.vm = []
    a("s_barrier")
    if OPT.get('thp', -1) < 0: flag_store(a, S_FHO, t3)
    dma_wf(a, 0, VW); dma_wf(a, 1, VW)
    mark(a)
    nv = [0]; ps = [0]
    for r in range(16): a(f"v_mov_b32 v{OA+r}, 0")
    def rd_v(tl, kk):
        slot = nv[0] % 4; nv[0] += 1
        for rd in range(2):
            a(f"ds_read_b64_tr_b16 {vr(VF[slot]+2*rd,2)}, v{VV} offset:{tl*256 + kk*128 + rd*64}", tag=('v', tl, kk))
        return slot
    def frag(src):
        p = PF[ps[0] % 4]; ps[0] += 1
        for e in range(8): a(f"v_exp_f32 v{src+e}, v{src+e}")
        for e in range(4): a(f"v_cvt_pk_bf16_f32 v{p+e}, v{src+2*e}, v{src+2*e+1}")
        return p
    def pv(p, slot, tag):
        a.wait_lg(tag)
        a(f"v_mfma_f32_32x32x16_bf16 {vr(OA,16)}, {vr(VF[slot],4)}, {vr(p,4)}, {vr(OA,16)}")
    C = vr(NM16, 16)
    qk(0, st, bufs[0], C)
    st = rd_k(1)
    qk(8, st2, bufs[8], C)
    st2 = rd_k(2)
    qk(1, st, bufs[1], C)
    merge()
    fin = None; ntok = [0]
    for kk in range(2):
        s0 = rd_v(0, kk); s8 = rd_v(8, kk)
        p = frag(SB[0] + 8*kk)
        p8 = PF[ps[0] % 4]; ps[0] += 1
        for e in range(4): a(f"v_and_b32 v{p8+e}, v{p+e}, v{MK+4*kk+e}")
        for e in range(4): a(f"v_xor_b32 v{p+e}, v{p+e}, v{p8+e}")
        pv(p, s0, ('v', 0, kk))
        pv(p8, s8, ('v', 8, kk))
    def publish_h():
        a("s_waitcnt vmcnt(10)")
        a("s_barrier")
        flag_store(a, S_FHO, t3)
    if OPT.get('thp', -1) == 0: publish_h()
    cur = st2
    for tl in range(1, 8):
        if tl + 1 < 8:
            nxt = rd_k(tl + 2) if tl + 2 < 8 else None
            qk(tl + 1, cur, bufs[tl+1], C)
            cur = nxt
        for kk in range(2):
            slot = rd_v(tl, kk)
            p = frag(bufs[tl] + 8*kk)
            pv(p, slot, ('v', tl, kk))
            if fin is not None and OPT.get('spread_t', 1):
                left = OPT.get('td1', 16) - ntok[0]
                nfr = 2*(7 - tl) + (1 - kk) + 1
                for _ in range(-(-left // nfr)):
                    fin(ntok[0]); ntok[0] += 1
        if tl == OPT.get('thp', -1): publish_h()
        if tl == OPT.get('tpoll', 2): poll_issue(a, VPH, VPH+1, 'ph')
        if tl == OPT.get('ttok', 4):
            if OPT.get('fine5'): mark(a)
            fin = final_setup(a, VPH)
            if OPT.get('fine5'): mark(a)
    a(f"v_and_b32 v{t0}, 1, v1")
    a(f"v_mul_u32_u24 v{t0}, {40*1024}, v{t0}")
    a(f"v_bfe_u32 v{t1}, v1, 1, 4")
    a(f"v_lshl_add_u32 v{t0}, v{t1}, 4, v{t0}")
    a(f"s_and_b32 s{T0}, s{S_QB}, 1")
    a(f"s_lshl_b32 s{T0}, s{T0}, 8")
    a(f"s_lshr_b32 s{T1}, s{S_QB}, 1")
    a(f"s_mul_i32 s{T1}, s{T1}, {80*1024}")
    a(f"s_add_u32 s{T0}, s{T0}, s{T1}")
    a(f"s_add_u32 s{T0}, s{T0}, {WS_O}")
    a(f"v_lshrrev_b32 v{t1}, 5, v1")
    a(f"v_lshl_add_u32 v{t2}, v{t1}, 9, v{t0}")
    a(f"v_rcp_f32 v{NM}, v{OA+12}")
    for r in range(12): a(f"v_mul_f32 v{OA+r}, v{OA+r}, v{NM}")
    for e in range(4): a(f"v_cvt_pk_bf16_f32 v{PF[0]+e}, v{OA+2*e}, v{OA+2*e+1}")
    a(f"v_cvt_pk_bf16_f32 v{PF[1]}, v{OA+8}, v{OA+9}")
    a(f"v_cvt_pk_bf16_f32 v{PF[1]+1}, v{OA+10}, v{OA+11}")
    a(f"s_lshl_b32 s{T1}, s{HP}, 1")
    a(f"s_add_u32 s{T1}, s{T1}, s{S_HH}")
    a(f"s_lshl_b32 s{T1}, s{T1}, 10")
    a(f"s_add_u32 s{T1}, s{T1}, s{T0}")
    a(f"buffer_store_dwordx4 {vr(PF[0],4)}, v{t2}, s[{SRD_WS}:{SRD_WS+3}], s{T1} offen sc1", tag='ost')
    a(f"s_lshr_b32 s{T1}, s{HP}, 1")
    a(f"s_add_u32 s{T1}, s{T1}, 32")
    a(f"s_lshl_b32 s{T1}, s{T1}, 10")
    a(f"s_and_b32 s{T2}, s{HP}, 1")
    a(f"s_lshl_b32 s{T2}, s{T2}, 9")
    a(f"s_add_u32 s{T1}, s{T1}, s{T2}")
    a(f"s_lshl_b32 s{T2}, s{S_HH}, 3")
    a(f"s_add_u32 s{T1}, s{T1}, s{T2}")
    a(f"s_add_u32 s{T1}, s{T1}, s{T0}")
    a("s_mov_b32 exec_hi, 0")
    a(f"buffer_store_dwordx2 {vr(PF[1],2)}, v{t0}, s[{SRD_WS}:{SRD_WS+3}], s{T1} offen sc1", tag='ost')
    a("s_mov_b32 exec_hi, -1")
    S_FO = 78
    a(f"s_lshl_b32 s{T0}, s{S_ARB}, 7")
    a(f"s_lshl_b32 s{T1}, s{HP}, 2")
    a(f"s_add_u32 s{T0}, s{T0}, s{T1}")
    a(f"s_add_u32 s{S_FO}, s{T0}, {WS_FLAG + FO}")
    mark(a)
    return dict(VPH=VPH, VW=VW, S_FO=S_FO, fin=fin)

TR, NT, HM, NM_ = 164, 20, 27, 37
F_HB, F_OB, F_TG, F_KG = 70, 71, 72, 81
F_VB = 11
def final_setup(a, VPH):
    TD = OPT.get('td', 16)
    t1, t2, t3 = 6, 7, 8
    a(f"s_and_b32 s{F_TG}, s{S_W}, 3")
    a(f"s_lshr_b32 s{F_KG}, s{S_W}, 2")
    poll_check(a, VPH, VPH+1, 'ph')
    if OPT.get('pfh', 0): touch_h(a, t1, t2)
    a(f"v_lshrrev_b32 v{t1}, 5, v1")
    a(f"v_bfe_u32 v{t2}, v1, 4, 1")
    a(f"v_lshlrev_b32 v{t1}, 10, v{t1}")
    a(f"v_lshl_add_u32 v{t1}, v{t2}, 9, v{t1}")
    a(f"v_and_b32 v{t2}, 15, v1")
    a(f"s_and_b32 s{T0}, s{F_TG}, 1")
    a(f"s_lshl_b32 s{T0}, s{T0}, 4")
    a(f"v_add_u32 v{t3}, s{T0}, v{t2}")
    a(f"v_lshl_add_u32 v{F_VB}, v{t3}, 4, v{t1}")
    a(f"s_lshl_b32 s{T0}, s{S_FRB}, 1")
    a(f"s_lshr_b32 s{T1}, s{F_TG}, 1")
    a(f"s_add_u32 s{T0}, s{T0}, s{T1}")
    a(f"s_lshl_b32 s{T2}, s{F_KG}, 11")
    a(f"s_mul_i32 s{T1}, s{T0}, {108*1024}")
    a(f"s_add_u32 s{T1}, s{T1}, s{T2}")
    a(f"s_add_u32 s{F_HB}, s{T1}, {WS_H}")
    a(f"s_mul_i32 s{T1}, s{T0}, {40*1024}")
    a(f"s_add_u32 s{T1}, s{T1}, s{T2}")
    a(f"s_add_u32 s{F_OB}, s{T1}, {WS_O}")
    def ld_t(m):
        sb, k = (F_HB, m) if m < HM else (F_OB, m - HM)
        if k > 0 and not OPT.get('hotft'): a(f"s_add_u32 s{sb}, s{sb}, 4096")
        a(f"buffer_load_dwordx4 {vr(TR+4*(m % NT),4)}, v{F_VB}, s[{SRD_WS}:{SRD_WS+3}], s{sb} offen sc1", tag=('T', m))
    if not OPT.get('spread_t', 1):
        for m in range(OPT.get('td1', 16)): ld_t(m)
    return ld_t

def stage_final(a, lbl, st):
    VPH, S_FO = st['VPH'], st['S_FO']
    VW = st['VW']; ld_t = st['fin']
    VG, VO, VF = 3, 4, 6
    VA = 12
    t0, t1, t2, t3 = 16, 17, 18, 19
    AS = [20, 40, 60]
    ACB, ACA, BI = 100, 120, 80
    TD = OPT.get('td', 16)
    NM = NM_
    S_TG, S_KG = F_TG, F_KG
    srd(a, SRD_A, P_B2, SIZES['B2'])
    srd(a, SRD_B, P_OUT, SIZES['OUT'])
    a(f"s_mul_i32 s{T0}, s{S_KG}, 5120")
    a(f"v_lshlrev_b32 v{t1}, 4, v1")
    a(f"v_add_u32 v{t1}, s{T0}, v{t1}")
    for k in range(4): a(f"v_add_u32 v{VA+k}, {RING[k]}, v{t1}")
    def rd_a(m, F):
        g, u = m >> 2, m & 3
        a(f"ds_read_b128 {vr(AS[m % 3]+4*F,4)}, v{VA + g % 4} offset:{u*10240 + F*1024}", tag=('A', m, F))
    a.wait_vm(('W', 0))
    a("s_barrier")
    for m in range(2):
        for F in range(5): rd_a(m, F)
    def late_setup():
        a(f"s_lshl_b32 s{T0}, s{S_FRB}, 6")
        a(f"s_lshr_b32 s{T1}, s{S_TG}, 1")
        a(f"s_add_u32 s{T0}, s{T0}, s{T1}")
        a(f"s_and_b32 s{T1}, s{S_TG}, 1")
        a(f"s_lshl_b32 s{T1}, s{T1}, 5")
        a(f"s_add_u32 s{T0}, s{T0}, s{T1}")
        a(f"v_and_b32 v{t3}, 15, v1")
        a(f"v_lshlrev_b32 v{t3}, 1, v{t3}")
        a(f"v_add_u32 v{t3}, s{T0}, v{t3}")
        a(f"v_lshlrev_b32 v{t1}, 2, v{t3}")
        a(f"v_add_u32 v{t1}, {WS_G}, v{t1}")
        a(f"buffer_load_dword v{VG}, v{t1}, s[{SRD_WS}:{SRD_WS+3}], 0 offen sc1", tag='g')
        a(f"v_lshrrev_b32 v{t0}, 4, v1")
        a(f"s_movk_i32 s{T1}, 1280")
        a(f"v_mul_lo_u32 v{t3}, v{t3}, s{T1}")
        a(f"s_mul_i32 s{T0}, s{S_FCJ}, 160")
        a(f"v_lshl_add_u32 v{t3}, v{t0}, 3, v{t3}")
        a(f"v_add_u32 v{VO}, s{T0}, v{t3}")
        a(f"v_lshlrev_b32 v{t1}, 3, v{t0}")
        a(f"v_add_u32 v{t1}, s{T0}, v{t1}")
        for F in range(5):
            a(f"buffer_load_dwordx2 {vr(BI+2*F,2)}, v{t1}, s[{SRD_A}:{SRD_A+3}], 0 offen offset:{32*F}", tag='g')
    if not OPT.get('latef', 1):
        dma_wf(a, 2, VW); late_setup()
    a(f"s_lshr_b32 s{T0}, s{S_FRB}, 1")
    a(f"s_lshl_b32 s{T0}, s{T0}, 7")
    a(f"s_add_u32 s{T0}, s{T0}, {WS_FLAG + FO}")
    a(f"v_and_b32 v{VF}, 15, v1")
    a(f"v_lshlrev_b32 v{VF}, 2, v{VF}")
    a(f"v_add_u32 v{VF}, s{T0}, v{VF}")
    mark(a)
    NG = 10
    MO = OPT.get('mo', 16)
    POLL = MO - 4
    nxt = [OPT.get('td1', 16)]
    for m in range(NM):
        g, u = m >> 2, m & 3
        if m == HM: mark(a)
        if u == 2 and g + 1 < NG:
            if g == 0: a.wait_vm(['ost', ('W', 1)])
            else: a.wait_vm(('W', g + 1))
            a("s_barrier")
            if g == 0:
                flag_store(a, S_FO, t1)
                dma_wf(a, 3, VW)
            elif g + 3 < NG and not OPT.get('f_nodma'): dma_wf(a, g + 3, VW)
        if m == POLL: poll_issue(a, VF, VF+1, 'fo')
        if m == MO:
            if OPT.get('fine6'): mark(a)
            poll_check(a, VF, VF+1, 'fo')
            if OPT.get('fine6'): mark(a)
        a.wait_vm(('T', m))
        for F in range(5):
            a.wait_lg(('A', m, F))
            acc = (ACB if m < HM else ACA) + 4*F
            d = vr(acc, 4)
            a(f"v_mfma_f32_16x16x32_bf16 {d}, {vr(AS[m % 3]+4*F,4)}, {vr(TR+4*(m % NT),4)}, {'0' if m in (0, HM) else d}")
            if m + 2 < NM and not OPT.get('f_nolds'):
                rd_a(m + 2, F)
            if F in (1, 3) and not OPT.get('f_notok'):
                lim = min(m + TD, NM - 1)
                if m < MO: lim = min(lim, HM - 1)
                if nxt[0] <= lim and (F == 1 or nxt[0] < lim or OPT.get('td1', 16) < TD or MO > HM - TD):
                    ld_t(nxt[0]); nxt[0] += 1
        if m == 0 and OPT.get('latef', 1): dma_wf(a, 2, VW)
        if m == 8 and OPT.get('latef', 1): late_setup()
    mark(a)
    a.wait_vm('g')
    a(f"v_sub_f32 v{t0}, 1.0, v{VG}")
    Lb = uid("bi")
    a(f"s_cmp_lg_u32 s{S_KG}, 0")
    a(f"s_cbranch_scc1 {Lb}")
    for F in range(5):
        for e in range(2):
            a(f"v_lshlrev_b32 v{t2}, 16, v{BI+2*F+e}")
            a(f"v_and_b32 v{t3}, 0xffff0000, v{BI+2*F+e}")
            a(f"v_add_f32 v{ACB+4*F+2*e}, v{ACB+4*F+2*e}, v{t2}")
            a(f"v_add_f32 v{ACB+4*F+2*e+1}, v{ACB+4*F+2*e+1}, v{t3}")
    a.label(Lb)
    for r in range(20): a(f"v_mul_f32 v{ACB+r}, v{ACB+r}, v{t0}")
    for r in range(20): a(f"v_fmac_f32 v{ACB+r}, v{ACA+r}, v{VG}")
    a(f"v_lshlrev_b32 v{t1}, 4, v1")
    a(f"s_mul_i32 s{T0}, s{S_TG}, 5120")
    a(f"s_add_u32 s{T0}, s{T0}, {RING[2]}")
    a(f"v_add_u32 v{t1}, s{T0}, v{t1}")
    L = uid("rd")
    def finish(own, other):
        for F in other:
            a(f"ds_write_b128 v{t1}, {vr(ACB+4*F,4)} offset:{F*1024}")
        a("s_waitcnt lgkmcnt(0)")
        a("s_barrier")
        for F in own:
            a(f"ds_read_b128 {vr(ACA+4*F,4)}, v{t1} offset:{F*1024}", tag=('r', F))
        for F in own:
            a.wait_lg(('r', F))
            for r in range(4): a(f"v_add_f32 v{ACB+4*F+r}, v{ACB+4*F+r}, v{ACA+4*F+r}")
            d = AS[0] + 2*F
            a(f"v_cvt_pk_bf16_f32 v{d}, v{ACB+4*F}, v{ACB+4*F+1}")
            a(f"v_cvt_pk_bf16_f32 v{d+1}, v{ACB+4*F+2}, v{ACB+4*F+3}")
            a(f"buffer_store_dwordx2 {vr(d,2)}, v{VO}, s[{SRD_B}:{SRD_B+3}], 0 offen offset:{32*F} {['', 'sc1', 'nt', 'sc0 sc1'][OPT.get('outsc', 0)]}".rstrip())
    a(f"s_cmp_eq_u32 s{S_KG}, 0")
    a(f"s_cbranch_scc1 {L}")
    finish((3, 4), (0, 1, 2))
    if G.STAMPS: a("s_waitcnt vmcnt(0)")
    a("s_endpgm")
    a.label(L)
    a.reset_counters()
    finish((0, 1, 2), (3, 4))
    a.reset_counters()

def code_prefetch(a):
    L = uid("cp")
    a(f"s_cmp_lg_u32 s{S_W}, 3")
    a(f"s_cbranch_scc1 {L}_skip")
    a(f"s_getpc_b64 s[{T4}:{T4+1}]")
    a.label(L)
    a(f"s_and_b32 s{T0}, s{S_I}, 7")
    a(f"s_lshl_b32 s{T0}, s{T0}, 13")
    a("v_lshlrev_b32 v251, 7, v1")
    a(f"v_add_u32 v251, s{T0}, v251")
    a(f"v_min_u32 v251, L_end-{L}-4, v251")
    vm = list(a.vm)
    a(f"global_load_dword v251, v251, s[{T4}:{T4+1}]")
    a.vm = vm
    a.label(f"{L}_skip")

def build():
    if OPT.get('fine2'):
        G_mark = G.mark
    OPT['mega'] = True
    LDS = 163840
    name = NAME + "_kernel"
    a = Asm()
    if G.STAMPS: a("s_memrealtime s[94:95]")
    a("s_cmp_ge_u32 s2, 256")
    a("s_cbranch_scc1 L_end")
    prologue_ids(a)
    CTX['k'] = 0; CTX['slot'] = 0
    stage1g(a, "s1"); mark(a)
    st = stage_attn(a, "attn")
    stage_final(a, "fin", st)
    if G.STAMPS: a("s_waitcnt vmcnt(0)")
    mark(a)
    a.label("L_end")
    return [(name, a.text())], LDS

def emit(ks, LDS):
    s = "\n".join(G.header_comment()) + "\n"
    s += f"; @launch grid=(256,1,1) block=(512,1,1) lds={LDS}\n"
    s += '.amdgcn_target "amdgcn-amd-amdhsa--gfx950"\n.text\n'
    for name, body in ks:
        s += G.kernel_text(name, body, 256, LDS)
    s += '.section .rodata,"a"\n'
    for name, _ in ks:
        s += ".p2align 6\n" + G.descriptor(name)
    return s

if __name__ == "__main__":
    if "stamps" in sys.argv: G.STAMPS = True
    for arg in sys.argv[1:]:
        if "=" in arg:
            k, v = arg.split("="); OPT[k] = int(v)
    ks, LDS = build()
    sys.stdout.write(emit(ks, LDS))
```

```python
import sys
import gen as G
from gen import mark4
from gen import (Asm, NAME, SIZES, srd, vr, uid, OPT, mark, stamp, CTX, dpp_sum16, WF_TILE,
                 P_AX, P_WQKV, P_WO, P_W1, P_B1, P_W2, P_B2, P_GW, P_OUT, P_DBG, P_WS,
                 SRD_A, SRD_B, SRD_WS, SRD_C, S_W, S_IDX, S_X, S_I, T0, T1, T2, T3, T4, T5, T6, T7,
                 S_RB, S_CJ, S_MASK, S_NONCE, nonce_post, nonce_get, publish, wait_flags)

WS_ST   = 0x0000000
WS_CS   = 0x0010000
WS_B1   = 0x0012000
WS_G    = G.WS_G
WS_QKV  = G.WS_QKV
WS_H, WS_O, WS_WF, WS_FLAG = G.WS_H, G.WS_O, G.WS_WF, G.WS_FLAG
FS, FW, FQ, FH, FO, FC = 0, 2048, 3072, 5120, 7168, 9216
PST = 3104
LB = 98304
LK, LV, LONES = LB, LB + 10*PST, LB + 20*PST
RING = [0, 40960, 81920, 122880]
WSLOT = 40960
SRD_D = 60
S_KX, S_KQ, S_K1 = 58, 59, 80
S_QB = 61
S_FHO, S_HBO = 86, 87
S_ARB, S_AHP, S_LW = 88, 89, 90

V_FLG = 250
def flag_setup(a):
    a(f"v_mov_b32 v{V_FLG}, 0x7ffffff0")
    a(f"v_cmp_eq_u32 s[{T4}:{T4+1}], 0, v0")
    a(f"v_cndmask_b32 v{V_FLG}, v{V_FLG}, 0, s[{T4}:{T4+1}]")

def flag_store(a, sflag, v):
    a(f"v_mov_b32 v{v}, s{S_NONCE}")
    a(f"buffer_store_dword v{v}, v{V_FLG}, s[{SRD_WS}:{SRD_WS+3}], s{sflag} offen sc1", tag='flag')

def poll_issue(a, voff, vval, tag):
    a(f"buffer_load_dword v{vval}, v{voff}, s[{SRD_WS}:{SRD_WS+3}], 0 offen sc1", tag=tag)

def poll_check(a, voff, vval, tag):
    L = uid("pc")
    a.wait_vm(tag)
    keep = list(a.vm)
    a.label(L)
    a(f"v_cmp_ne_u32 vcc, s{S_NONCE}, v{vval}")
    a("s_nop 4")
    a(f"s_cbranch_vccz {L}_ok")
    a("s_sleep 1")
    a(f"buffer_load_dword v{vval}, v{voff}, s[{SRD_WS}:{SRD_WS+3}], 0 offen sc1")
    a("s_waitcnt vmcnt(0)")
    a(f"s_branch {L}")
    a.label(f"{L}_ok")
    a.vm = keep

def poll_recheck(a, voff, vval):
    L = uid("pr")
    keep = list(a.vm)
    a.label(L)
    a(f"v_cmp_ne_u32 vcc, s{S_NONCE}, v{vval}")
    a("s_nop 4")
    a(f"s_cbranch_vccz {L}_ok")
    a("s_sleep 1")
    a(f"buffer_load_dword v{vval}, v{voff}, s[{SRD_WS}:{SRD_WS+3}], 0 offen sc1")
    a("s_waitcnt vmcnt(0)")
    a(f"s_branch {L}")
    a.label(f"{L}_ok")
    a.vm = keep

def prologue_ids(a):
    a("s_load_dwordx16 s[4:19], s[0:1], 0")
    a("s_load_dwordx8 s[20:27], s[0:1], 64")
    a("v_lshrrev_b32 v2, 6, v0")
    a("v_and_b32 v1, 63, v0")
    a(f"v_readfirstlane_b32 s{S_W}, v2")
    a(f"s_and_b32 s{S_X}, s2, 7")
    a(f"s_lshr_b32 s{S_I}, s2, 3")
    if OPT.get('cpf', 1) >= 2: code_prefetch(a)
    a(f"s_lshr_b32 s{T0}, s{S_X}, 2")
    a(f"s_lshl_b32 s{T0}, s{T0}, 3")
    a(f"s_and_b32 s{T1}, s{S_I}, 7")
    a(f"s_add_u32 s{S_RB}, s{T0}, s{T1}")
    a(f"s_and_b32 s{T0}, s{S_X}, 3")
    a(f"s_lshl_b32 s{T0}, s{T0}, 2")
    a(f"s_lshr_b32 s{T1}, s{S_I}, 3")
    a(f"s_add_u32 s{S_CJ}, s{T0}, s{T1}")

def prologue_rest(a):
    srd(a, SRD_WS, P_WS, G.WS_SIZE)
    flag_setup(a)
    nonce_post(a)
    if OPT.get('cpf', 1) == 1: code_prefetch(a)
    stamp(a, 0, 0)
    if G.STAMPS:
        a("s_lshl_b32 s97, s2, 7")
        a(f"s_add_u32 s97, s97, {G.WS_STAMP + 15*4}")
        a("v_mov_b32 v254, s94")
        a(f"buffer_store_dword v254, off, s[{SRD_WS}:{SRD_WS+3}], s97")
        a.vm.pop()

RX, RG, RT, RO = 160, 168, 176, 186
VS = 128
S_ST, S_RPO, S_RPM = 82, 83, 84

def pre_address(a, lbl, two=False, rows=True):
    t0, t1, t2, t3, t4, t5 = range(RT, RT+6)
    if rows: row_address(a, two)
    repack_address(a, lbl)

def row_address(a, two):
    t0, t1, t2, t3, t4, t5 = range(RT, RT+6)
    srd(a, SRD_D, P_GW, SIZES['GW'])
    a(f"s_lshl_b32 s{T0}, s{S_RB}, 7")
    a(f"s_lshl_b32 s{T1}, s{S_CJ}, 3")
    a(f"s_add_u32 s{T0}, s{T0}, s{T1}")
    a(f"s_add_u32 s{T0}, s{T0}, s{S_W}")
    if two: a(f"s_sub_u32 s{T0}, s{T0}, 4")
    a(f"s_mul_i32 s{T1}, s{T0}, 1280")
    a(f"v_lshlrev_b32 v{RO+1}, 4, v1")
    a(f"v_add_u32 v{RO}, s{T1}, v{RO+1}")
    a(f"v_mov_b32 v{t0}, 0x7ffffff0")
    a(f"v_cmp_gt_u32 s[{T4}:{T4+1}], 16, v1")
    a(f"v_add_u32 v{t1}, 1024, v{RO}")
    a(f"v_cndmask_b32 v{RO+2}, v{t0}, v{t1}, s[{T4}:{T4+1}]")
    a(f"v_add_u32 v{t1}, 1024, v{RO+1}")
    a(f"v_cndmask_b32 v{RO+3}, v{t0}, v{t1}, s[{T4}:{T4+1}]")
    a(f"s_mov_b32 s85, s{T0}")

def repack_address(a, lbl):
    t0, t1, t2, t3, t4, t5 = range(RT, RT+6)
    a(f"s_mul_i32 s{T0}, s{S_I}, 3")
    a(f"s_lshl_b32 s{T1}, s{S_I}, 1")
    a(f"s_add_u32 s{T1}, s{T1}, 10")
    a(f"s_cmp_lt_u32 s{S_I}, 10")
    a(f"s_cselect_b32 s{T0}, s{T0}, s{T1}")
    a(f"s_cselect_b32 s{T1}, 3, 2")
    a(f"s_sub_u32 s{T2}, s{S_W}, 4")
    a(f"s_add_u32 s{S_ST}, s{T0}, s{T2}")
    a(f"s_cmp_lt_u32 s{T2}, s{T1}")
    a(f"s_cselect_b32 s{S_ST}, s{S_ST}, 0x100")
    a(f"s_cselect_b32 s{S_RPO}, 0, 0x7fff0000")
    a(f"s_mul_i32 s{T2}, s{T2}, 5120")
    a(f"s_add_u32 s{T2}, s{T2}, {RPL}")
    a(f"s_cselect_b32 s{S_RPM}, s{T2}, s{T2}") if False else None
    a(f"s_cmp_lt_u32 s{S_ST}, 74")
    a(f"s_cselect_b32 s{S_RPM}, s{T2}, {163840}")
    for n in range(5): a(f"v_mov_b32 v{VS+n}, 0")
    srd(a, SRD_C, P_W2, SIZES['W2'])
    a(f"s_cmp_ge_u32 s{S_ST}, 74")
    a(f"s_cbranch_scc1 {lbl}_go")
    a(f"s_movk_i32 s{T6}, 6554")
    a(f"s_movk_i32 s{T7}, 1280")
    a(f"s_mul_i32 s{T2}, s{S_X}, 160")
    a(f"s_cmp_ge_u32 s{S_ST}, 54")
    a(f"s_cbranch_scc1 {lbl}_wo")
    a(f"s_lshl_b32 s{T3}, s{S_ST}, 5")
    for n in range(5):
        a(f"v_add_u32 v{t0}, {64*n}, v1")
        a(f"v_mul_u32_u24 v{t1}, s{T6}, v{t0}")
        a(f"v_lshrrev_b32 v{t1}, 16, v{t1}")
        a(f"v_mul_u32_u24 v{t2}, 10, v{t1}")
        a(f"v_sub_u32 v{t2}, v{t0}, v{t2}")
        a(f"v_add_u32 v{t1}, s{T3}, v{t1}")
        a(f"v_mul_lo_u32 v{t1}, v{t1}, s{T7}")
        a(f"v_lshl_add_u32 v{t1}, v{t2}, 4, v{t1}")
        a(f"v_add_u32 v{VS+n}, s{T2}, v{t1}")
    a(f"s_branch {lbl}_go")
    a.label(f"{lbl}_wo")
    srd(a, SRD_C, P_WO, SIZES['WO'])
    a(f"s_sub_u32 s{T3}, s{S_ST}, 54")
    a(f"s_lshl_b32 s{T3}, s{T3}, 1")
    for n in range(5):
        a(f"v_add_u32 v{t0}, {64*n}, v1")
        a(f"v_mul_u32_u24 v{t1}, s{T6}, v{t0}")
        a(f"v_lshrrev_b32 v{t1}, 16, v{t1}")
        a(f"v_mul_u32_u24 v{t2}, 10, v{t1}")
        a(f"v_sub_u32 v{t2}, v{t0}, v{t2}")
        a(f"v_lshrrev_b32 v{t3}, 4, v{t1}")
        a(f"v_add_u32 v{t3}, s{T3}, v{t3}")
        a(f"v_and_b32 v{t1}, 15, v{t1}")
        a(f"v_mul_u32_u24 v{t4}, 20, v{t3}")
        a(f"v_add_u32 v{t4}, v{t4}, v{t1}")
        a(f"v_cmp_gt_u32 s[98:99], 32, v{t3}")
        a(f"v_subrev_u32 v{t3}, 32, v{t3}")
        a(f"v_lshlrev_b32 v{t3}, 2, v{t3}")
        a(f"v_bfe_u32 v{t5}, v{t1}, 2, 1")
        a(f"v_lshl_add_u32 v{t3}, v{t5}, 1, v{t3}")
        a(f"v_lshrrev_b32 v{t5}, 3, v{t1}")
        a(f"v_add_u32 v{t3}, v{t3}, v{t5}")
        a(f"v_mul_u32_u24 v{t3}, 20, v{t3}")
        a(f"v_and_b32 v{t1}, 3, v{t1}")
        a(f"v_add3_u32 v{t3}, v{t3}, v{t1}, 16")
        a(f"v_cndmask_b32 v{t1}, v{t3}, v{t4}, s[98:99]")
        a(f"v_mul_lo_u32 v{t1}, v{t1}, s{T7}")
        a(f"v_lshl_add_u32 v{t1}, v{t2}, 4, v{t1}")
        a(f"v_add_u32 v{VS+n}, s{T2}, v{t1}")
    a.label(f"{lbl}_go")

def row_issue2(a):
    a(f"v_add_u32 v{RO}, {4*1280}, v{RO}")
    a(f"v_mov_b32 v{RT}, 0x7ffffff0")
    a(f"v_add_u32 v{RT+1}, 1024, v{RO}")
    a(f"v_cmp_gt_u32 s[100:101], 16, v1")
    a(f"v_cndmask_b32 v{RO+2}, v{RT}, v{RT+1}, s[100:101]")
    a(f"buffer_load_dwordx4 {vr(RX2,4)}, v{RO}, s[{SRD_A}:{SRD_A+3}], 0 offen", tag='pl2')
    a(f"buffer_load_dwordx4 {vr(RX2+4,4)}, v{RO+2}, s[{SRD_A}:{SRD_A+3}], 0 offen", tag='pl2')

RX2 = 192
def pre_issue(a, rows=True):
    if rows:
        a(f"buffer_load_dwordx4 {vr(RX,4)}, v{RO}, s[{SRD_A}:{SRD_A+3}], 0 offen", tag='pl')
        a(f"buffer_load_dwordx4 {vr(RX+4,4)}, v{RO+2}, s[{SRD_A}:{SRD_A+3}], 0 offen", tag='pl')
        a(f"buffer_load_dwordx4 {vr(RG,4)}, v{RO+1}, s[{SRD_D}:{SRD_D+3}], 0 offen", tag='pl')
        a(f"buffer_load_dwordx4 {vr(RG+4,4)}, v{RO+3}, s[{SRD_D}:{SRD_D+3}], 0 offen", tag='pl')
    for n in range(5):
        a(f"s_add_u32 m0, s{S_RPM}, {n*1024}")
        a(f"buffer_load_dwordx4 v{VS+n}, s[{SRD_C}:{SRD_C+3}], s{S_RPO} offen lds", tag='pl')

def pre_thunks(a, RX=RX, tag='pl', VO=RO):
    su, sq, dt, one, t0, t1, t2 = range(RT, RT+7)
    T = []
    I = lambda txt: T.append(lambda: a(txt))
    T.append(lambda: a.wait_vm(tag))
    I(f"v_mov_b32 v{one}, 0x3f803f80")
    I(f"v_mov_b32 v{su}, 0"); I(f"v_mov_b32 v{sq}, 0"); I(f"v_mov_b32 v{dt}, 0")
    for d in range(8):
        I(f"v_dot2c_f32_bf16 v{su}, v{RX+d}, v{one}")
        I(f"v_dot2c_f32_bf16 v{sq}, v{RX+d}, v{RX+d}")
        I(f"v_dot2c_f32_bf16 v{dt}, v{RX+d}, v{RG+d}")
    for r in (8, 4, 2, 1):
        for v in (su, sq, dt):
            I(f"v_add_f32_dpp v{v}, v{v}, v{v} row_ror:{r} row_mask:0xf bank_mask:0xf")
    for op in ("v_permlane16_swap_b32", "v_permlane32_swap_b32"):
        for v, t in ((su, t0), (sq, t1), (dt, t2)): I(f"v_mov_b32 v{t}, v{v}")
        for v, t in ((su, t0), (sq, t1), (dt, t2)): I(f"{op} v{v}, v{t}")
        for v, t in ((su, t0), (sq, t1), (dt, t2)): I(f"v_add_f32 v{v}, v{v}, v{t}")
    I(f"v_mul_f32 v{su}, 0x3acccccd, v{su}")
    I(f"v_mul_f32 v{sq}, 0x3acccccd, v{sq}")
    I(f"v_mul_f32 v{dt}, 0xbfb8aa3b, v{dt}")
    I(f"v_fma_f32 v{sq}, -v{su}, v{su}, v{sq}")
    I(f"v_exp_f32 v{dt}, v{dt}")
    I(f"v_add_f32 v{sq}, 0x3727c5ac, v{sq}")
    I(f"v_add_f32 v{dt}, 1.0, v{dt}")
    I(f"v_rsq_f32 v{t1}, v{sq}")
    I(f"v_rcp_f32 v{dt}, v{dt}")
    I(f"v_mul_f32 v{t0}, v{su}, v{t1}")
    I(f"v_sub_f32 v{t0}, 0, v{t0}")
    I(f"v_mov_b32 v{VO}, 0x7ffffff0")
    I(f"v_cmp_eq_u32 s[100:101], 0, v1")
    I(f"v_cndmask_b32 v{VO}, v{VO}, 0, s[100:101]")
    I(f"s_lshl_b32 s98, s85, 3")
    I(f"s_add_u32 s98, s98, {WS_ST}")
    T.append(lambda: a(f"buffer_store_dwordx2 {vr(t0,2)}, v{VO}, s[{SRD_WS}:{SRD_WS+3}], s98 offen sc1", tag='pst'))
    I(f"s_lshl_b32 s98, s85, 2")
    I(f"s_add_u32 s98, s98, {WS_G}")
    T.append(lambda: a(f"buffer_store_dword v{dt}, v{VO}, s[{SRD_WS}:{SRD_WS+3}], s98 offen sc1", tag='pst'))
    return T

def rowstats_issue(a):
    XB, GW, o0, o1, t0 = 128, 108, 96, 97, 98
    srd(a, SRD_D, P_GW, SIZES['GW'])
    a(f"s_lshl_b32 s{T0}, s{S_RB}, 7")
    a(f"s_lshl_b32 s{T1}, s{S_W}, 4")
    a(f"s_add_u32 s85, s{T0}, s{T1}")
    a(f"v_lshrrev_b32 v{t0}, 4, v1")
    a(f"v_add_u32 v{t0}, s85, v{t0}")
    a(f"s_movk_i32 s{T1}, 1280")
    a(f"v_mul_lo_u32 v{o0}, v{t0}, s{T1}")
    a(f"v_and_b32 v{o1}, 15, v1")
    a(f"v_lshlrev_b32 v{o1}, 4, v{o1}")
    a(f"v_add_u32 v{o0}, v{o0}, v{o1}")
    for i in range(5):
        a(f"buffer_load_dwordx4 {vr(GW+4*i,4)}, v{o1}, s[{SRD_D}:{SRD_D+3}], 0 offen offset:{256*i}", tag='gw')
    for q in range(4):
        a(f"s_movk_i32 s{T2}, {q*4*1280}")
        for i in range(5):
            a(f"buffer_load_dwordx4 {vr(XB+20*q+4*i,4)}, v{o0}, s[{SRD_A}:{SRD_A+3}], s{T2} offen offset:{256*i}", tag=('x', q))

def rowstats_compute(a):
    XB, GW = 128, 108
    su, sq, dt, one, t0, t1, t2 = 98, 99, 100, 101, 102, 103, 104
    NMv, RSv, GV = 106, 107, 105
    a(f"v_mov_b32 v{one}, 0x3f803f80")
    a(f"v_and_b32 v{t2}, 15, v1")
    for q in range(4):
        a.wait_vm(('x', q))
        a(f"v_mov_b32 v{su}, 0"); a(f"v_mov_b32 v{sq}, 0"); a(f"v_mov_b32 v{dt}, 0")
        for d in range(20):
            x = XB + 20*q + d
            a(f"v_dot2c_f32_bf16 v{su}, v{x}, v{one}")
            a(f"v_dot2c_f32_bf16 v{sq}, v{x}, v{x}")
            a(f"v_dot2c_f32_bf16 v{dt}, v{x}, v{GW+d}")
        for k in (8, 4, 2, 1):
            for v in (su, sq, dt):
                a(f"v_add_f32_dpp v{v}, v{v}, v{v} row_ror:{k} row_mask:0xf bank_mask:0xf")
        a(f"v_mul_f32 v{su}, 0x3acccccd, v{su}")
        a(f"v_mul_f32 v{sq}, 0x3acccccd, v{sq}")
        a(f"v_mul_f32 v{dt}, 0xbfb8aa3b, v{dt}")
        a(f"v_fma_f32 v{sq}, -v{su}, v{su}, v{sq}")
        a(f"v_exp_f32 v{dt}, v{dt}")
        a(f"v_max_f32 v{sq}, 0, v{sq}")
        a(f"v_add_f32 v{sq}, 0x3727c5ac, v{sq}")
        a(f"v_add_f32 v{dt}, 1.0, v{dt}")
        a(f"v_rsq_f32 v{t1}, v{sq}")
        a(f"v_rcp_f32 v{dt}, v{dt}")
        a(f"v_mul_f32 v{t0}, v{su}, v{t1}")
        a(f"v_sub_f32 v{t0}, 0, v{t0}")
        a(f"v_cmp_eq_u32 s[{T4}:{T4+1}], {q}, v{t2}")
        a(f"v_cndmask_b32 v{NMv}, v{NMv}, v{t0}, s[{T4}:{T4+1}]")
        a(f"v_cndmask_b32 v{RSv}, v{RSv}, v{t1}, s[{T4}:{T4+1}]")
        a(f"v_cndmask_b32 v{GV}, v{GV}, v{dt}, s[{T4}:{T4+1}]")
    a(f"v_lshrrev_b32 v{t0}, 4, v1")
    a(f"v_lshl_add_u32 v{t0}, v{t2}, 2, v{t0}")
    a(f"v_add_u32 v{t0}, s85, v{t0}")
    a(f"v_mov_b32 v{su}, 0x7ffffff0")
    a(f"v_cmp_gt_u32 s[{T4}:{T4+1}], 4, v{t2}")
    a(f"v_lshlrev_b32 v{t1}, 3, v{t0}")
    a(f"v_cndmask_b32 v{t1}, v{su}, v{t1}, s[{T4}:{T4+1}]")
    a(f"v_lshlrev_b32 v{t0}, 2, v{t0}")
    a(f"v_cndmask_b32 v{t0}, v{su}, v{t0}, s[{T4}:{T4+1}]")
    a(f"s_mov_b32 s{T0}, {WS_ST}")
    a(f"buffer_store_dwordx2 {vr(NMv,2)}, v{t1}, s[{SRD_WS}:{SRD_WS+3}], s{T0} offen sc1", tag='pst')
    a(f"s_mov_b32 s{T0}, {WS_G}")
    a(f"buffer_store_dword v{GV}, v{t0}, s[{SRD_WS}:{SRD_WS+3}], s{T0} offen sc1", tag='pst')

RPL = 147456
def repack_finish(a):
    D, VA, VD = 136, 134, 135
    L = uid("rf")
    a(f"v_mov_b32 v{VD}, 0x7ffffff0")
    a(f"s_cmp_ge_u32 s82, 74")
    a(f"s_cbranch_scc1 {L}")
    a(f"s_mul_i32 s{T0}, s{S_X}, {WF_TILE}")
    a(f"s_mul_i32 s{T1}, s82, 5120")
    a(f"s_add_u32 s{T0}, s{T0}, s{T1}")
    a(f"s_add_u32 s{T0}, s{T0}, {WS_WF}")
    a(f"v_lshlrev_b32 v{VD}, 4, v1")
    a(f"v_add_u32 v{VD}, s{T0}, v{VD}")
    a(f"v_lshrrev_b32 v{VA}, 5, v1")
    a(f"v_bfe_u32 v{D}, v1, 4, 1")
    a(f"v_lshlrev_b32 v{VA}, 4, v{VA}")
    a(f"v_lshl_add_u32 v{VA}, v{D}, 2, v{VA}")
    a(f"v_bfe_u32 v{D}, v1, 2, 2")
    a(f"v_add_u32 v{VA}, v{VA}, v{D}")
    a(f"v_mul_u32_u24 v{VA}, 160, v{VA}")
    a(f"v_and_b32 v{D}, 3, v1")
    a(f"v_lshl_add_u32 v{VA}, v{D}, 3, v{VA}")
    a(f"v_add_u32 v{VA}, s{S_RPM}, v{VA}")
    lg = list(a.lg)
    for F in range(5):
        for rd in range(2):
            a(f"ds_read_b64_tr_b16 {vr(D+4*F+2*rd,2)}, v{VA} offset:{rd*1280 + F*32}")
    a("s_waitcnt lgkmcnt(0)")
    a.lg = lg
    a.label(L)
    for F in range(5):
        a(f"s_movk_i32 s{T1}, {F*1024}")
        a(f"buffer_store_dwordx4 {vr(D+4*F,4)}, v{VD}, s[{SRD_WS}:{SRD_WS+3}], s{T1} offen sc1", tag='pst')

def nonce_issue(a, v):
    a(f"v_mov_b32 v{v+1}, 0")
    a(f"global_load_dword v{v}, v{v+1}, s[{P_DBG}:{P_DBG+1}] sc1", tag='nonce')

def nonce_check(a, v):
    L = uid("ng")
    a.wait_vm('nonce')
    keep = list(a.vm)
    a.label(L)
    a(f"v_readfirstlane_b32 s{S_NONCE}, v{v}")
    a(f"s_cmp_lg_u32 s{S_NONCE}, 0")
    a(f"s_cbranch_scc1 {L}_ok")
    a("s_sleep 2")
    a(f"global_load_dword v{v}, v{v+1}, s[{P_DBG}:{P_DBG+1}] sc1")
    a("s_waitcnt vmcnt(0)")
    a(f"s_branch {L}")
    a.label(f"{L}_ok")
    a.vm = keep

def pre_flags(a, v, stats=True):
    if stats:
        a(f"s_lshl_b32 s{T0}, s{S_RB}, 7")
        a(f"s_add_u32 s{T0}, s{T0}, {WS_FLAG + FS}")
        flag_store(a, T0, v)
    a(f"s_lshl_b32 s{T0}, s{S_X}, 7")
    a(f"s_lshl_b32 s{T1}, s{S_I}, 2")
    a(f"s_add_u32 s{T0}, s{T0}, s{T1}")
    a(f"s_add_u32 s{T0}, s{T0}, {WS_FLAG + FW}")
    flag_store(a, T0, v)

CD = 16
def colsum_issue(a):
    srd(a, SRD_B, P_W1, SIZES['W1'])
    srd(a, SRD_C, P_B1, SIZES['B1']) if False else None
    t0, t1, VO = 2, 3, 5
    a(f"v_lshrrev_b32 v{t0}, 4, v0")
    a(f"s_movk_i32 s{T0}, 3456")
    a(f"v_mul_lo_u32 v{t0}, v{t0}, s{T0}")
    a(f"v_and_b32 v{t1}, 15, v0")
    a(f"v_lshl_add_u32 v{t0}, v{t1}, 4, v{t0}")
    a(f"s_lshl_b32 s{T1}, s{S_RB}, 8")
    a(f"v_add_u32 v{VO}, s{T1}, v{t0}")
    a(f"s_cmp_lt_u32 s{S_RB}, 14")
    a(f"s_cselect_b32 s{T3}, 0, 0x7fff0000")
    for p in range(20):
        a(f"s_add_u32 s{T2}, s{T3}, {p*32*3456}")
        a(f"buffer_load_dwordx4 {vr(CD+4*p,4)}, v{VO}, s[{SRD_B}:{SRD_B+3}], s{T2} offen", tag=('cs', p))

def colsum_compute(a, lbl):
    t0, t1, t2 = 2, 3, 4
    ACC, LO, HI = 8, 6, 7
    srd(a, SRD_B, P_B1, SIZES['B1'])
    a(f"s_lshl_b32 s{T1}, s{S_RB}, 8")
    a(f"v_lshlrev_b32 v{t2}, 1, v0")
    a(f"v_add_u32 v{t2}, s{T1}, v{t2}")
    a(f"buffer_load_ushort v{t2}, v{t2}, s[{SRD_B}:{SRD_B+3}], 0 offen", tag='b1')
    a(f"v_mov_b32 v{LO}, 0x00003f80")
    a(f"v_mov_b32 v{HI}, 0x3f800000")
    for e in range(8): a(f"v_mov_b32 v{ACC+e}, 0")
    for p in range(20):
        a.wait_vm(('cs', p))
        for d in range(4):
            a(f"v_dot2c_f32_bf16 v{ACC+2*d}, v{CD+4*p+d}, v{LO}")
            a(f"v_dot2c_f32_bf16 v{ACC+2*d+1}, v{CD+4*p+d}, v{HI}")
    a(f"v_lshrrev_b32 v{t0}, 4, v0")
    a(f"v_lshlrev_b32 v{t0}, 9, v{t0}")
    a(f"v_and_b32 v{t1}, 15, v0")
    a(f"v_lshl_add_u32 v{t0}, v{t1}, 5, v{t0}")
    a(f"ds_write_b128 v{t0}, {vr(ACC,4)}")
    a(f"ds_write_b128 v{t0}, {vr(ACC+4,4)} offset:16")
    a("s_waitcnt lgkmcnt(0)")
    a("s_barrier")
    a(f"v_and_b32 v{t0}, 127, v0")
    a(f"v_lshlrev_b32 v{t0}, 2, v{t0}")
    for g in range(32):
        a(f"ds_read_b32 v{CD+g}, v{t0} offset:{g*512}")
    a("s_waitcnt lgkmcnt(0)")
    for g in range(0, 32, 2): a(f"v_add_f32 v{CD+g}, v{CD+g}, v{CD+g+1}")
    for g in range(2, 32, 2): a(f"v_add_f32 v{CD}, v{CD}, v{CD+g}")
    a.wait_vm('b1')
    a(f"v_lshlrev_b32 v{t2}, 16, v{t2}")
    a(f"s_lshl_b32 s{T1}, s{S_RB}, 9")
    a(f"v_add_u32 v{t0}, s{T1}, v{t0}")
    a(f"v_mov_b32 v{t1}, 0x7ffffff0")
    a(f"v_mov_b32 v{LO}, 128")
    a(f"v_cmp_gt_u32 s[{T4}:{T4+1}], v{LO}, v0")
    a(f"v_cndmask_b32 v{t0}, v{t1}, v{t0}, s[{T4}:{T4+1}]")
    a(f"s_mov_b32 s{T0}, 0x7fff0000")
    a(f"s_cmp_lt_u32 s{S_RB}, 14")
    a(f"s_cselect_b32 s{T2}, {WS_CS}, s{T0}")
    a(f"s_cselect_b32 s{T3}, {WS_B1}, s{T0}")
    a(f"buffer_store_dword v{CD}, v{t0}, s[{SRD_WS}:{SRD_WS+3}], s{T2} offen sc1", tag='pst')
    a(f"buffer_store_dword v{t2}, v{t0}, s[{SRD_WS}:{SRD_WS+3}], s{T3} offen sc1", tag='pst')

S_FRB, S_FCJ = 73, 74
S_WM, S_WG = 75, 76

def final_coords(a):
    a(f"s_lshr_b32 s{T0}, s{S_X}, 1")
    a(f"s_lshl_b32 s{T0}, s{T0}, 3")
    a(f"s_and_b32 s{T1}, s{S_I}, 7")
    a(f"s_add_u32 s{S_FRB}, s{T0}, s{T1}")
    a(f"s_and_b32 s{T0}, s{S_X}, 1")
    a(f"s_lshl_b32 s{T0}, s{T0}, 2")
    a(f"s_lshr_b32 s{T1}, s{S_I}, 3")
    a(f"s_add_u32 s{S_FCJ}, s{T0}, s{T1}")
    a(f"s_mul_i32 s{S_WM}, s{S_W}, 5120")
    a(f"s_mul_i32 s{T0}, s{S_FCJ}, {WF_TILE}")
    a(f"s_add_u32 s{T0}, s{T0}, s{S_WM}")
    a(f"s_add_u32 s{S_WG}, s{T0}, {WS_WF}")

def dma_wf(a, g, vw):
    S_KW = 77
    a(f"s_add_u32 m0, s{S_WM}, {RING[g % 4]}")
    a(f"s_add_u32 s{S_KW}, s{S_WG}, {0 if OPT.get('hotfw') else g*WSLOT}")
    if g == 9:
        a(f"s_cmp_ge_u32 s{S_W}, 2")
        a(f"s_cselect_b32 s{S_KW}, 0x7fff0000, s{S_KW}")
    for n in range(4):
        a(f"buffer_load_dwordx4 v{vw}, s[{SRD_WS}:{SRD_WS+3}], s{S_KW} offen offset:{n*1024} sc1 lds", tag=('W', g))
    a(f"s_add_u32 m0, m0, 4096")
    a(f"s_add_u32 s{S_KW}, s{S_KW}, 4096")
    a(f"buffer_load_dwordx4 v{vw}, s[{SRD_WS}:{SRD_WS+3}], s{S_KW} offen sc1 lds", tag=('W', g))

SL2 = 32768
def attn_coords(a):
    a(f"s_lshl_b32 s{T0}, s{S_X}, 1")
    a(f"s_and_b32 s{T1}, s{S_I}, 1")
    a(f"s_add_u32 s{S_AHP}, s{T0}, s{T1}")
    a(f"s_lshr_b32 s{S_ARB}, s{S_I}, 1")
    a(f"s_lshr_b32 s78, s{S_W}, 2")
    a(f"s_and_b32 s79, s{S_W}, 3")

def fq_poll_offsets(a, vo, vt):
    a(f"v_lshrrev_b32 v{vo}, 4, v1")
    a(f"s_sub_u32 s{T0}, s{S_ARB}, 2")
    a(f"v_add_u32 v{vo}, s{T0}, v{vo}")
    a(f"v_and_b32 v{vt}, 15, v1")
    a(f"v_cmp_le_i32 s[{T4}:{T4+1}], 0, v{vo}")
    a(f"v_cmp_gt_u32 s[{T2}:{T2+1}], 15, v{vt}")
    a(f"s_and_b64 s[{T4}:{T4+1}], s[{T4}:{T4+1}], s[{T2}:{T2+1}]")
    a(f"s_mov_b32 s{T2}, -1")
    a(f"s_mov_b32 s{T2+1}, 0xffff")
    a(f"s_and_b64 s[{T4}:{T4+1}], s[{T4}:{T4+1}], s[{T2}:{T2+1}]")
    a(f"v_lshlrev_b32 v{vo}, 7, v{vo}")
    a(f"v_lshl_add_u32 v{vo}, v{vt}, 2, v{vo}")
    a(f"s_lshl_b32 s{T0}, s{S_ARB}, 7")
    a(f"v_mov_b32 v{vt}, s{T0}")
    a(f"v_cndmask_b32 v{vo}, v{vt}, v{vo}, s[{T4}:{T4+1}]")
    a(f"v_add_u32 v{vo}, {WS_FLAG + FQ}, v{vo}")

def attn_q_loads(a, t0, t1, t2, t3, AQ0=20, AQ1=24):
    a(f"s_lshl_b32 s{T0}, s{S_ARB}, 2")
    a(f"s_add_u32 s{S_QB}, s{T0}, s79")
    a(f"v_and_b32 v{t0}, 31, v1")
    a(f"v_lshrrev_b32 v{t1}, 5, v1")
    a(f"s_lshl_b32 s{T1}, s{S_QB}, 8")
    a(f"v_lshlrev_b32 v{t2}, 3, v{t0}")
    a(f"v_add_u32 v{t2}, s{T1}, v{t2}")
    a(f"v_lshl_add_u32 v{t3}, v{t1}, 15, v{t2}")
    a(f"s_lshl_b32 s{T2}, s{S_AHP}, 1")
    a(f"s_add_u32 s{T2}, s{T2}, s78")
    a(f"s_mul_i32 s{T2}, s{T2}, {5*16384}")
    a(f"s_add_u32 s{T1}, s{T2}, {WS_QKV}")
    a(f"buffer_load_dwordx2 {vr(AQ0,2)}, v{t3}, s[{SRD_WS}:{SRD_WS+3}], s{T1} offen sc1", tag='q')
    a(f"s_add_u32 s{T1}, s{T1}, 16384")
    a(f"buffer_load_dwordx2 {vr(AQ0+2,2)}, v{t3}, s[{SRD_WS}:{SRD_WS+3}], s{T1} offen sc1", tag='q')
    a(f"s_add_u32 s{T1}, s{T1}, {3*16384}")
    a(f"buffer_load_dwordx2 {vr(AQ1,2)}, v{t2}, s[{SRD_WS}:{SRD_WS+3}], s{T1} offen sc1", tag='q')

def fw_poll_offsets(a, vo):
    a(f"v_and_b32 v{vo}, 31, v1")
    a(f"v_lshlrev_b32 v{vo}, 2, v{vo}")
    a(f"s_lshl_b32 s{T1}, s{S_FCJ}, 7")
    a(f"s_add_u32 s{T1}, s{T1}, {WS_FLAG + FW}")
    a(f"v_add_u32 v{vo}, s{T1}, v{vo}")

def wf_first_slots(a, vw):
    a(f"v_lshlrev_b32 v{vw}, 4, v1")
    a(f"s_mul_i32 s{T0}, s{S_W}, 10240")
    a(f"s_mul_i32 s{T1}, s{S_FCJ}, {WF_TILE}")
    a(f"s_add_u32 s{T1}, s{T1}, s{T0}")
    a(f"s_add_u32 s{T1}, s{T1}, {WS_WF}")
    for g in range(2):
        for part in range(3):
            a(f"s_add_u32 m0, s{T0}, {RING[g] + part*4096}")
            a(f"s_add_u32 s{T2}, s{T1}, {g*WSLOT + part*4096}")
            for n in range(4 if part < 2 else 2):
                a(f"buffer_load_dwordx4 v{vw}, s[{SRD_WS}:{SRD_WS+3}], s{T2} offen offset:{n*1024} sc1 lds", tag=('W', g))

QL = 81920
def attn_stage_q(a, vd):
    a(f"v_lshlrev_b32 v{vd}, 4, v1")
    a(f"s_mul_i32 s{T2}, s{S_AHP}, {10*16384}")
    a(f"s_lshl_b32 s{T0}, s{S_ARB}, 10")
    a(f"s_add_u32 s{T2}, s{T2}, s{T0}")
    a(f"s_add_u32 s{T2}, s{T2}, {WS_QKV}")
    for k in range(3):
        a(f"s_add_u32 s{T0}, s{S_W}, {4*k}")
        a(f"s_lshl_b32 s{T1}, s{T0}, 14")
        a(f"s_add_u32 s{T1}, s{T1}, s{T2}")
        a(f"s_lshl_b32 s{T3}, s{T0}, 10")
        a(f"s_add_u32 s{T3}, s{T3}, {QL}")
        if k == 2:
            a(f"s_cmp_lt_u32 s{T0}, 10")
            a(f"s_cselect_b32 s{T1}, s{T1}, 0x7fff0000")
        a(f"s_mov_b32 m0, s{T3}")
        a(f"buffer_load_dwordx4 v{vd}, s[{SRD_WS}:{SRD_WS+3}], s{T1} offen sc1 lds", tag='q')

def touch_wf(a, v0_, v1_):
    a(f"s_and_b32 s{T0}, s{S_I}, 7")
    a(f"s_mul_i32 s{T0}, s{T0}, {370*128}")
    a(f"s_mul_i32 s{T1}, s{S_FCJ}, {WF_TILE}")
    a(f"s_add_u32 s{T0}, s{T0}, s{T1}")
    a(f"s_add_u32 s{T0}, s{T0}, {WS_WF}")
    a(f"v_lshlrev_b32 v{v0_}, 7, v0")
    a(f"v_mov_b32 v{v1_}, 370")
    a(f"v_cmp_gt_u32 s[{T4}:{T4+1}], v{v1_}, v0")
    a(f"v_mov_b32 v{v1_}, 0x7ffffff0")
    a(f"v_cndmask_b32 v{v0_}, v{v1_}, v{v0_}, s[{T4}:{T4+1}]")
    a(f"buffer_load_dword v251, v{v0_}, s[{SRD_WS}:{SRD_WS+3}], s{T0} offen sc1", tag='touch')

def touch_h(a, v0_, v1_):
    a(f"s_lshl_b32 s{T0}, s{S_FRB}, 1")
    a(f"s_mul_i32 s{T0}, s{T0}, {108*1024}")
    a(f"s_lshr_b32 s{T1}, s{S_I}, 3")
    a(f"s_mul_i32 s{T1}, s{T1}, {432*128}")
    a(f"s_add_u32 s{T0}, s{T0}, s{T1}")
    a(f"s_add_u32 s{T0}, s{T0}, {WS_H}")
    a(f"v_lshlrev_b32 v{v0_}, 7, v0")
    a(f"v_mov_b32 v{v1_}, 432")
    a(f"v_cmp_gt_u32 s[{T4}:{T4+1}], v{v1_}, v0")
    a(f"v_mov_b32 v{v1_}, 0x7ffffff0")
    a(f"v_cndmask_b32 v{v0_}, v{v1_}, v{v0_}, s[{T4}:{T4+1}]")
    a(f"buffer_load_dword v251, v{v0_}, s[{SRD_WS}:{SRD_WS+3}], s{T0} offen sc1", tag='touch')

def attn_stage_kv(a, t0, t1, t2, vd):
    a(f"s_sub_u32 s{T0}, s{S_ARB}, 2")
    a(f"s_lshl_b32 s{T0}, s{T0}, 7")
    a(f"s_mul_i32 s{T1}, s{S_W}, 96")
    a(f"s_add_u32 s{T0}, s{T0}, s{T1}")
    a(f"v_lshlrev_b32 v{t0}, 1, v1")
    a(f"v_add_u32 v{t0}, s{T0}, v{t0}")
    a(f"v_lshlrev_b32 v{t1}, 3, v{t0}")
    a(f"v_mov_b32 v{t2}, 0x7ffffff0")
    a(f"v_cmp_le_i32 s[{T4}:{T4+1}], 0, v{t0}")
    a(f"v_cndmask_b32 v{vd}, v{t2}, v{t1}, s[{T4}:{T4+1}]")
    a(f"s_mul_i32 s{T2}, s{S_AHP}, {10*16384}")
    a(f"s_add_u32 s{T2}, s{T2}, {WS_QKV + 160*16384}")
    a(f"s_mul_i32 s{T3}, s{S_W}, 768")
    a("s_mov_b32 exec_hi, 0xffff")
    for ty in range(2):
        for p in range(10):
            a(f"s_add_u32 m0, s{T3}, {(LK if ty == 0 else LV) + p*PST}")
            a(f"s_add_u32 s{T6}, s{T2}, {(ty*160 + p)*16384}")
            a(f"buffer_load_dwordx4 v{vd}, s[{SRD_WS}:{SRD_WS+3}], s{T6} offen sc1 lds", tag=('kv', ty))
    a("s_mov_b32 exec_hi, -1")

def stage1g(a, lbl):
    SRD_E, S_M = 64, 68
    VXD, VWD, VW2 = 2, 6, 10
    VXF, VWF = 14, 22
    t0, t1, t2, t3 = 26, 27, 28, 29
    VP, VPV = 30, 31
    FB = [32, 48]
    ACC = 64
    CSR, B1R, ST, TD = 128, 160, 192, 196
    S_FQ, S_FH, S_ACT, S_HB = 69, 70, 71, 72
    a(f"s_and_b32 s{S_LW}, s{S_W}, 3")
    a(f"s_cmp_ge_u32 s{S_CJ}, 15")
    a(f"s_cbranch_scc1 {lbl}_idle")
    a(f"s_lshl_b32 s{T0}, s{S_RB}, 7")
    a(f"s_lshr_b32 s{T1}, s{S_LW}, 1")
    a(f"s_lshl_b32 s{T1}, s{T1}, 6")
    a(f"s_add_u32 s{T0}, s{T0}, s{T1}")
    a(f"s_and_b32 s{T1}, s{S_LW}, 1")
    a(f"s_add_u32 s{T0}, s{T0}, s{T1}")
    a(f"v_lshrrev_b32 v{t0}, 3, v1")
    a(f"v_lshlrev_b32 v{t0}, 1, v{t0}")
    a(f"v_add_u32 v{t0}, s{T0}, v{t0}")
    a(f"s_movk_i32 s{T2}, 1280")
    a(f"v_mul_lo_u32 v{t0}, v{t0}, s{T2}")
    a(f"v_lshrrev_b32 v{t1}, 4, v1")
    a(f"v_and_b32 v{t2}, 7, v1")
    a(f"v_xor_b32 v{t2}, v{t2}, v{t1}")
    a(f"v_xor_b32 v{t3}, 4, v{t2}")
    for i in range(4):
        a(f"v_lshl_add_u32 v{VXD+i}, v{t2 if i % 2 == 0 else t3}, 4, v{t0}")
        if i: a(f"v_add_u32 v{VXD+i}, {i*(16*1280-1024)}, v{VXD+i}")
    a(f"s_lshl_b32 s{T0}, s{S_LW}, 4")
    a(f"v_lshrrev_b32 v{t0}, 4, v1")
    a(f"v_add_u32 v{t1}, s{T0}, v{t0}")
    a(f"v_bfe_u32 v{t2}, v1, 2, 2")
    a(f"v_xor_b32 v{t2}, v{t2}, v{t0}")
    a(f"v_and_b32 v{t3}, 3, v1")
    a(f"v_lshl_add_u32 v{t2}, v{t2}, 2, v{t3}")
    a(f"v_lshlrev_b32 v{t2}, 4, v{t2}")
    a(f"s_lshl_b32 s{T0}, s{S_CJ}, 8")
    a(f"v_add_u32 v{t2}, s{T0}, v{t2}")
    def w_offsets(vd, pitch):
        a(f"s_movk_i32 s{T2}, {pitch}")
        a(f"v_mul_lo_u32 v{t3}, v{t1}, s{T2}")
        a(f"v_add_u32 v{vd}, v{t3}, v{t2}")
        for i in range(1, 4): a(f"v_add_u32 v{vd+i}, {i*(4*pitch-1024)}, v{vd}")
    w_offsets(VWD, 3840)
    w_offsets(VW2, 3456)
    a(f"s_lshl_b32 s{S_M}, s{S_LW}, 12")
    if OPT.get('rot', 1):
        a(f"s_lshr_b32 s{T0}, s{S_I}, 3")
        a(f"s_mul_i32 s{T0}, s{T0}, 10")
        a(f"s_and_b32 s{T1}, s{S_I}, 7")
        a(f"s_mul_i32 s{T1}, s{T1}, 5")
        a(f"s_add_u32 s{T0}, s{T0}, s{T1}")
        a(f"s_lshr_b32 s{T0}, s{T0}, 2")
        a(f"s_sub_u32 s{T1}, s{T0}, 10")
        a(f"s_cmp_ge_u32 s{T0}, 10")
        a(f"s_cselect_b32 s{T0}, s{T1}, s{T0}")
    else:
        a(f"s_mov_b32 s{T0}, 0")
    def addmod(dst, src, k):
        a(f"s_add_u32 s{dst}, s{src}, {k}")
        a(f"s_sub_u32 s{T2}, s{dst}, 10")
        a(f"s_cmp_ge_u32 s{dst}, 10")
        a(f"s_cselect_b32 s{dst}, s{T2}, s{dst}")
    REUSE = OPT.get('xreuse', 1)
    if REUSE:
        addmod(T1, T0, 9)
        addmod(T3, T0, 6)
        a(f"s_cmp_ge_u32 s{S_W}, 4")
        a(f"s_cselect_b32 s{T1}, s{T3}, s{T1}")
        a(f"s_mul_i32 s{S_K1}, s{T1}, {64*3456}")
        a(f"s_lshl_b32 s{S_KX}, s{T0}, 7")
        a(f"s_mul_i32 s{S_KQ}, s{T0}, {64*3840}")
    else:
        addmod(T1, T0, 3)
        a(f"s_cmp_ge_u32 s{S_W}, 4")
        a(f"s_cselect_b32 s{T0}, s{T0}, s{T1}")
        a(f"s_lshl_b32 s{S_KX}, s{T0}, 7")
        a(f"s_mul_i32 s{S_KQ}, s{T0}, {64*3840}")
        a(f"s_mul_i32 s{S_K1}, s{T0}, {64*3456}")
    def adv(sreg, step, wrap):
        if OPT.get('hot'): return
        a(f"s_add_u32 s{sreg}, s{sreg}, {step}")
        a(f"s_cmp_eq_u32 s{sreg}, {wrap}")
        a(f"s_cselect_b32 s{sreg}, 0, s{sreg}")
    first = {'x': True, 'q': True, '1': True}
    slot = lambda tau: (tau + 3) % 4
    def dma_list(tau):
        out = []
        if OPT.get('g_nodma') and tau >= 4: return out
        if OPT.get('nodma1') and tau >= 13: return out
        def mk(kind, i):
            def f():
                if kind == 'x': vd, sr, sk, off, step, wrap = VXD, SRD_A, S_KX, 0, 128, 1280
                elif kind == 'q': vd, sr, sk, off, step, wrap = VWD, SRD_B, S_KQ, 16384, 64*3840, 640*3840
                else: vd, sr, sk, off, step, wrap = VW2, SRD_E, S_K1, 16384, 64*3456, 640*3456
                if i == 0:
                    a(f"s_add_u32 m0, s{S_M}, {slot(tau)*SL2 + off}")
                    if not first[kind] and not (OPT.get('hot1') and tau >= 10) and not (OPT.get('hotx') and kind == 'x' and tau >= 10) and not (OPT.get('hotw') and kind == '1'): adv(sk, step, wrap)
                    first[kind] = False
                a(f"buffer_load_dwordx4 v{vd+i}, s[{sr}:{sr+3}], s{sk} offen offset:{i*1024} lds", tag=('B', tau))
            return f
        if not (REUSE and 10 <= tau <= 13):
            for i in range(4): out.append(mk('x', i))
        for i in range(4): out.append(mk('q' if tau < 10 else '1', i))
        return out
    def dma_block(tau):
        for f in dma_list(tau): f()
    def frag_bases():
        a(f"s_and_b32 s{T0}, s{S_LW}, 1")
        a(f"s_lshl_b32 s{T0}, s{T0}, 13")
        a(f"v_and_b32 v{t0}, 31, v1")
        a(f"v_lshrrev_b32 v{t1}, 5, v1")
        a(f"v_bfe_u32 v{t2}, v1, 1, 3")
        a(f"v_lshlrev_b32 v{t0}, 7, v{t0}")
        a(f"v_add_u32 v{t0}, s{T0}, v{t0}")
        for s_ in range(4):
            a(f"v_or_b32 v{t3}, {2*s_}, v{t1}")
            a(f"v_xor_b32 v{t3}, v{t3}, v{t2}")
            a(f"v_lshl_add_u32 v{VXF+s_}, v{t3}, 4, v{t0}")
            a(f"v_add_u32 v{VXF+4+s_}, {2*SL2}, v{VXF+s_}")
        a(f"v_bfe_u32 v{t0}, v1, 2, 2")
        a(f"v_lshl_add_u32 v{t1}, v{t1}, 3, v{t0}")
        a(f"v_lshlrev_b32 v{t1}, 8, v{t1}")
        a(f"v_bfe_u32 v{t2}, v1, 4, 1")
        a(f"v_lshl_add_u32 v{t1}, v{t2}, 5, v{t1}")
        a(f"v_and_b32 v{t2}, 3, v1")
        a(f"v_lshl_add_u32 v{t1}, v{t2}, 3, v{t1}")
        a(f"s_and_b32 s{T0}, s{S_LW}, 2")
        for ft in range(2):
            a(f"s_or_b32 s{T1}, s{T0}, {ft}")
            a(f"v_xor_b32 v{t2}, s{T1}, v{t0}")
            a(f"v_lshl_add_u32 v{VWF+ft}, v{t2}, 6, v{t1}")
            a(f"v_add_u32 v{VWF+2+ft}, {2*SL2}, v{VWF+ft}")
    def rd_b(st, tau, u, tt):
        sl = slot(tau)
        a(f"ds_read_b128 {vr(FB[st]+4*tt,4)}, v{VXF + u + (4 if sl >= 2 else 0)} offset:{(SL2 if sl & 1 else 0) + tt*4096}", tag=('f', tau, u, 'b', tt))
    def rd_a(st, tau, u, F, rd):
        sl = slot(tau)
        a(f"ds_read_b64_tr_b16 {vr(FB[st]+8+4*F+2*rd,2)}, v{VWF + F + (2 if sl >= 2 else 0)} offset:{(SL2 if sl & 1 else 0) + 16384 + u*4096 + rd*1024}", tag=('f', tau, u, 'a', F))
    def reads(st, tau, u):
        return [lambda: rd_b(st, tau, u, 0), lambda: rd_a(st, tau, u, 0, 0), lambda: rd_a(st, tau, u, 0, 1),
                lambda: rd_b(st, tau, u, 1), lambda: rd_a(st, tau, u, 1, 0), lambda: rd_a(st, tau, u, 1, 1)]
    def compute(t0_, hook_bar, hook_step):
        for b in range(10):
            tau = t0_ + b
            for u in range(4):
                s_ = 4*b + u; st = s_ & 1
                last = (b == 9 and u == 3)
                side = []
                if u == 3:
                    a("s_waitcnt lgkmcnt(0)")
                    hook_bar(tau)
                    a("s_barrier")
                    side = hook_step(tau, 'bar') or []
                rs = [] if (last or OPT.get('x_noreads')) else reads(st ^ 1, *((tau, u + 1) if u < 3 else (tau + 1, 0)))
                plan = {-1: rs[0:2], 0: rs[2:5], 1: rs[5:6]}
                for r in plan[-1]: r()
                for k, (tt, F) in enumerate([(0, 0), (1, 0), (0, 1), (1, 1)]):
                    a.wait_lg([('f', tau, u, 'b', tt), ('f', tau, u, 'a', F)])
                    d = vr(ACC+16*(2*tt+F), 16)
                    if not OPT.get('x_nomfma'):
                        a(f"v_mfma_f32_32x32x16_bf16 {d}, {vr(FB[st]+8+4*F,4)}, {vr(FB[st]+4*tt,4)}, {'0' if s_ == 0 else d}")
                    for r in plan.get(k, []): r()
                    for _ in range(2):
                        if side: side.pop(0)()
                for f in side: f()
                hook_step(tau, u)
    a("s_waitcnt lgkmcnt(0)")
    srd(a, SRD_A, P_AX, SIZES['AX'])
    srd(a, SRD_B, P_WQKV, SIZES['WQKV'])
    NI = OPT.get('init', 2)
    a(f"s_cmp_lt_u32 s{S_W}, 4")
    a(f"s_cbranch_scc1 {lbl}_nodma")
    for tau in range(NI): dma_block(tau)
    g1_vm = list(a.vm)
    a.label(f"{lbl}_nodma")
    a.vm = []
    srd(a, SRD_E, P_W1, SIZES['W1'])
    prologue_rest(a)
    attn_coords(a)
    final_coords(a)
    a(f"s_lshl_b32 s{T0}, s{S_RB}, 7")
    a(f"s_lshl_b32 s{T1}, s{S_CJ}, 2")
    a(f"s_add_u32 s{T0}, s{T0}, s{T1}")
    a(f"s_add_u32 s{S_FQ}, s{T0}, {WS_FLAG + FQ}")
    a(f"s_add_u32 s{S_FH}, s{T0}, {WS_FLAG + FH}")
    a(f"s_cmp_lt_u32 s{S_CJ}, 14")
    a(f"s_cselect_b32 s{S_FHO}, s{S_FH}, 0x7fff0000")
    a(f"s_cmp_lt_u32 s{S_W}, 4")
    a(f"s_cbranch_scc1 {lbl}_g0")
    a.vm = list(g1_vm)
    if OPT.get('lprio', 1): a(f"s_setprio {OPT.get('lprio', 1)}")
    mark4(a, first=True)
    pre_address(a, lbl + "_pa", rows=False)
    frag_bases()
    a.wait_vm(('B', 0))
    mark4(a)
    a("s_barrier")
    for tau in range(NI, 4): dma_block(tau)
    for tau in range(0, 9):
        a.wait_vm(('B', tau + 1))
        if tau == 8: a.wait_vm('pst')
        a("s_barrier")
        dma_block(tau + 4)
        if tau == 0: pre_issue(a, rows=False)
        if tau == 1 and OPT.get('pfw1', 0):
            a(f"s_and_b32 s{T0}, s{S_I}, 7")
            a(f"s_mul_i32 s{T0}, s{T0}, 80")
            a(f"s_mul_i32 s{T1}, s{S_LW}, 20")
            a(f"s_add_u32 s{T0}, s{T0}, s{T1}")
            a(f"v_lshrrev_b32 v{t0}, 1, v1")
            a(f"v_add_u32 v{t0}, s{T0}, v{t0}")
            a(f"s_movk_i32 s{T1}, 3456")
            a(f"v_mul_lo_u32 v{t0}, v{t0}, s{T1}")
            a(f"v_and_b32 v{t1}, 1, v1")
            a(f"v_lshl_add_u32 v{t0}, v{t1}, 7, v{t0}")
            a(f"s_lshl_b32 s{T0}, s{S_CJ}, 8")
            a(f"v_add_u32 v{t0}, s{T0}, v{t0}")
            a(f"v_mov_b32 v{t1}, 0x7ffffff0")
            a(f"v_cmp_gt_u32 s[{T4}:{T4+1}], 40, v1")
            a(f"v_cndmask_b32 v{t0}, v{t1}, v{t0}, s[{T4}:{T4+1}]")
            a(f"buffer_load_dword v251, v{t0}, s[{SRD_E}:{SRD_E+3}], 0 offen", tag='touch')
        if tau == OPT.get('trp', 5):
            a.wait_vm('pl')
            repack_finish(a)
        if tau == 7: nonce_issue(a, 252)
    nonce_check(a, 252)
    a.wait_vm(('B', 10))
    a("s_barrier")
    if OPT.get('lprio', 1): a(f"s_setprio {OPT.get('cprio', 3)}")
    mark4(a)
    for r in reads(0, 10, 0): r()
    def g1_bar(tau):
        if tau in (10, 11): a.wait_vm(('B', tau + 1))
    def g1_step(tau, u):
        return None
    compute(10, g1_bar, g1_step)
    mark4(a)
    C0, C1, VY, ONE = 2, 3, 4, 6
    TU, TE = 32, 40
    a(f"v_mov_b32 v{ONE}, 1.0")
    a(f"v_mov_b32 v{C0}, 0xc0135761")
    a(f"v_mov_b32 v{C1}, 0xbdd2d3e8")
    a(f"v_lshlrev_b32 v{VY}, 4, v1")
    a(f"s_lshl_b32 s{T0}, s{S_CJ}, 3")
    a(f"s_lshr_b32 s{T1}, s{S_LW}, 1")
    a(f"s_lshl_b32 s{T1}, s{T1}, 2")
    a(f"s_add_u32 s{S_ACT}, s{T0}, s{T1}")
    a(f"s_lshl_b32 s{T0}, s{S_RB}, 2")
    a(f"s_and_b32 s{T1}, s{S_LW}, 1")
    a(f"s_lshl_b32 s{T1}, s{T1}, 1")
    a(f"s_add_u32 s{T0}, s{T0}, s{T1}")
    a(f"s_mul_i32 s{T0}, s{T0}, 108")
    a(f"s_add_u32 s{T0}, s{T0}, s{S_ACT}")
    a(f"s_lshl_b32 s{T0}, s{T0}, 10")
    a(f"s_add_u32 s{S_HB}, s{T0}, {WS_H}")
    a(f"s_cmp_lt_u32 s{S_ACT}, 108")
    a(f"s_cselect_b32 s{S_HB}, s{S_HB}, 0x7fff0000")
    a(f"v_and_b32 v{t0}, 31, v1")
    a(f"v_lshlrev_b32 v{t0}, 4, v{t0}")
    a(f"s_and_b32 s{T0}, s{S_LW}, 1")
    a(f"s_lshl_b32 s{T0}, s{T0}, 9")
    a(f"v_add_u32 v{t0}, s{T0}, v{t0}")
    a(f"ds_read_b128 {vr(ST,4)}, v{t0}")
    a(f"v_lshrrev_b32 v{t0}, 5, v1")
    a(f"v_lshlrev_b32 v{t0}, 4, v{t0}")
    a(f"s_lshr_b32 s{T0}, s{S_LW}, 1")
    a(f"s_lshl_b32 s{T0}, s{T0}, 8")
    a(f"v_add_u32 v{t0}, s{T0}, v{t0}")
    for ft in range(2):
        for j in range(4):
            a(f"ds_read_b128 {vr(CSR+16*ft+4*j,4)}, v{t0} offset:{1024 + 128*ft + 32*j}")
            a(f"ds_read_b128 {vr(B1R+16*ft+4*j,4)}, v{t0} offset:{1536 + 128*ft + 32*j}")
    a("s_waitcnt lgkmcnt(0)")
    mark4(a)
    P = lambda b, e: vr(b + 2*e, 2)
    for tt in range(2):
        nmp = vr(ST + 2*tt, 2)
        if tt == 1: a(f"s_add_u32 s{S_HB}, s{S_HB}, {108*1024}")
        for ft in range(2):
            for jj in range(2):
                x = ACC + 16*(2*tt+ft) + 8*jj
                for e in range(4):
                    j, i = 2*jj + (e >> 1), 2*(e & 1)
                    a(f"v_pk_fma_f32 {P(TU,e)}, {nmp}, {vr(CSR+16*ft+4*j+i,2)}, {vr(B1R+16*ft+4*j+i,2)} op_sel_hi:[0,1,1]")
                for e in range(4): a(f"v_pk_fma_f32 {P(x,e)}, {nmp}, {P(x,e)}, {P(TU,e)} op_sel:[1,0,0] op_sel_hi:[1,1,1]")
                for e in range(4): a(f"v_pk_mul_f32 {P(TU,e)}, {P(x,e)}, {P(x,e)}")
                for e in range(4): a(f"v_pk_fma_f32 {P(TU,e)}, {P(TU,e)}, {vr(C0,2)}, {vr(C0,2)} op_sel:[0,1,0] op_sel_hi:[1,1,0]")
                for e in range(4): a(f"v_pk_mul_f32 {P(TU,e)}, {P(TU,e)}, {P(x,e)}")
                for e in range(8): a(f"v_exp_f32 v{TE+e}, v{TU+e}")
                for e in range(4): a(f"v_pk_add_f32 {P(TE,e)}, {P(TE,e)}, {vr(ONE,2)} op_sel_hi:[1,0]")
                for e in range(8): a(f"v_rcp_f32 v{TE+e}, v{TE+e}")
                for e in range(4): a(f"v_pk_mul_f32 {P(TE,e)}, {P(TE,e)}, {P(x,e)}")
                d = TD + 4*(4*tt + 2*ft + jj)
                for e in range(4): a(f"v_cvt_pk_bf16_f32 v{d+e}, v{TE+2*e}, v{TE+2*e+1}")
                if not OPT.get('late_h', 0):
                    a(f"buffer_store_dwordx4 {vr(d,4)}, v{VY}, s[{SRD_WS}:{SRD_WS+3}], s{S_HB} offen offset:{(2*ft+jj)*1024} sc1", tag='hst')
    if OPT.get('late_h', 0):
        a(f"s_sub_u32 s{S_HB}, s{S_HB}, {108*1024}")
        for tt in range(2):
            if tt == 1: a(f"s_add_u32 s{S_HB}, s{S_HB}, {108*1024}")
            for ft in range(2):
                for jj in range(2):
                    d = TD + 4*(4*tt + 2*ft + jj)
                    a(f"buffer_store_dwordx4 {vr(d,4)}, v{VY}, s[{SRD_WS}:{SRD_WS+3}], s{S_HB} offen offset:{(2*ft+jj)*1024} sc1", tag='hst')
    mark4(a)
    a(f"s_branch {lbl}_join")
    a.label(f"{lbl}_g0")
    a.reset_counters()
    first.update({'x': True, 'q': True, '1': True})
    if OPT.get('pfs1', 0):
        a(f"s_lshl_b32 s{T0}, s{S_RB}, 7")
        a(f"s_lshr_b32 s{T1}, s{S_I}, 3")
        a(f"s_lshl_b32 s{T1}, s{T1}, 5")
        a(f"s_add_u32 s{T0}, s{T0}, s{T1}")
        a(f"s_lshl_b32 s{T1}, s{S_LW}, 3")
        a(f"s_add_u32 s{T0}, s{T0}, s{T1}")
        a(f"v_lshrrev_b32 v{t0}, 3, v1")
        a(f"v_add_u32 v{t0}, s{T0}, v{t0}")
        a(f"s_movk_i32 s{T1}, 1280")
        a(f"v_mul_lo_u32 v{t0}, v{t0}, s{T1}")
        a(f"v_and_b32 v{t1}, 7, v1")
        a(f"v_lshl_add_u32 v{t2}, v{t1}, 7, v{t0}")
        a(f"buffer_load_dword v251, v{t2}, s[{SRD_A}:{SRD_A+3}], 0 offen", tag='touch')
        a(f"v_and_b32 v{t1}, 1, v1")
        a(f"v_lshl_add_u32 v{t2}, v{t1}, 7, v{t0}")
        a(f"v_mov_b32 v{t3}, 0x7ffffff0")
        a(f"v_bfe_u32 v{t1}, v1, 1, 2")
        a(f"v_cmp_eq_u32 s[{T4}:{T4+1}], 0, v{t1}")
        a(f"v_cndmask_b32 v{t2}, v{t3}, v{t2}, s[{T4}:{T4+1}]")
        a(f"buffer_load_dword v251, v{t2}, s[{SRD_A}:{SRD_A+3}], 0 offen offset:1024", tag='touch')
        a(f"s_and_b32 s{T0}, s{S_I}, 7")
        a(f"s_mul_i32 s{T0}, s{T0}, 80")
        a(f"s_mul_i32 s{T1}, s{S_LW}, 20")
        a(f"s_add_u32 s{T0}, s{T0}, s{T1}")
        a(f"v_lshrrev_b32 v{t0}, 1, v1")
        a(f"v_add_u32 v{t0}, s{T0}, v{t0}")
        a(f"s_movk_i32 s{T1}, 3840")
        a(f"v_mul_lo_u32 v{t0}, v{t0}, s{T1}")
        a(f"v_and_b32 v{t1}, 1, v1")
        a(f"v_lshl_add_u32 v{t0}, v{t1}, 7, v{t0}")
        a(f"s_lshl_b32 s{T0}, s{S_CJ}, 8")
        a(f"v_add_u32 v{t0}, s{T0}, v{t0}")
        a(f"v_cmp_gt_u32 s[{T4}:{T4+1}], 40, v1")
        a(f"v_cndmask_b32 v{t0}, v{t3}, v{t0}, s[{T4}:{T4+1}]")
        a(f"buffer_load_dword v251, v{t0}, s[{SRD_B}:{SRD_B+3}], 0 offen", tag='touch')
    frag_bases()
    if OPT.get('cprio', 3): a(f"s_setprio {OPT.get('cprio', 3)}")
    mark(a)
    a("s_barrier")
    for r in reads(0, 0, 0): r()
    def g0_step(tau, u):
        if OPT.get('fine3') == 1 and u == 'bar' and tau in (0, 2, 4, 6, 8): mark(a)
        if u == 'bar' and tau == 9: return dma_list(13)
        if u == 1 and tau == 2: nonce_issue(a, 252)
        if u == 1 and tau == 4: nonce_check(a, 252)
        if u == 'bar' and tau == 8:
            pre_flags(a, t3, stats=False)
        return None
    compute(0, lambda tau: None, g0_step)
    mark(a)
    if OPT.get('lprio', 1): a(f"s_setprio {OPT.get('lprio', 1)}")
    def qkv_epilogue(a):
        a(f"v_lshrrev_b32 v{t0}, 5, v1")
        a(f"s_lshr_b32 s{T0}, s{S_LW}, 1")
        a(f"s_lshl_b32 s{T0}, s{T0}, 4")
        a(f"v_add_u32 v{t0}, s{T0}, v{t0}")
        a(f"v_lshlrev_b32 v{t0}, 14, v{t0}")
        a(f"s_and_b32 s{T0}, s{S_LW}, 1")
        a(f"s_lshl_b32 s{T0}, s{T0}, 9")
        a(f"v_and_b32 v{t1}, 31, v1")
        a(f"v_lshl_add_u32 v{t0}, v{t1}, 4, v{t0}")
        a(f"v_add_u32 v{t0}, s{T0}, v{t0}")
        a(f"s_lshl_b32 s{T0}, s{S_CJ}, 19")
        a(f"s_lshl_b32 s{T1}, s{S_RB}, 10")
        a(f"s_add_u32 s{T0}, s{T0}, s{T1}")
        a(f"s_add_u32 s{T0}, s{T0}, {WS_QKV}")
        a(f"s_cmp_lt_u32 s{S_CJ}, 5")
        a(f"s_cselect_b32 s{T2}, 0x3ea52b5c, 1.0")
        a(f"v_mov_b32 v30, s{T2}")
        for r in range(0, 64, 2):
            a(f"v_pk_mul_f32 {vr(ACC+r,2)}, {vr(ACC+r,2)}, v[30:31] op_sel_hi:[1,0]")
        k = 0
        for ft in range(2):
            for j in range(4):
                a(f"s_add_u32 s{T1}, s{T0}, {(8*ft + 2*j)*16384}")
                d = 32 + 4*(k % 8); k += 1
                for tt in range(2):
                    base = ACC + 16*(2*tt+ft) + 4*j
                    a(f"v_cvt_pk_bf16_f32 v{d+2*tt}, v{base}, v{base+1}")
                    a(f"v_cvt_pk_bf16_f32 v{d+2*tt+1}, v{base+2}, v{base+3}")
                a(f"buffer_store_dwordx4 {vr(d,4)}, v{t0}, s[{SRD_WS}:{SRD_WS+3}], s{T1} offen sc1", tag='qst')
        fq_poll_offsets(a, VP, t3)
    class Rec:
        def __init__(self): self.l = []
        def __call__(self, text, tag=None): self.l.append((text, tag))
    rec = Rec(); qkv_epilogue(rec)
    EPI = []
    for tx, tg in rec.l:
        if tx.startswith("s_cselect") and EPI: EPI[-1].append((tx, tg))
        else: EPI.append([(tx, tg)])
    def emit_groups(gs):
        for g_ in gs:
            for tx, tg in g_: a(tx, tag=tg)
    if not OPT.get('epi_mix', 0):
        emit_groups(EPI)
        EPI = []
    TQP = OPT.get('tqp', 13)
    for tau in range(10, 20):
        if 13 <= tau + 1 <= 19: a.wait_vm(('B', tau + 1))
        if tau == TQP: a.wait_vm('qst')
        if tau == 19: a.wait_vm('tab')
        a("s_barrier")
        if OPT.get('fine3') == 2 and tau in (10, 11, 12, 13, 14, 15, 16, 17, 18, 19): mark(a)
        if tau == TQP: flag_store(a, S_FQ, t3)
        if tau + 4 <= 19:
            dl = dma_list(tau + 4)
            if tau == 10 and EPI:
                per = -(-len(EPI) // len(dl))
                for f in dl:
                    f()
                    emit_groups(EPI[:per])
                    EPI = EPI[per:]
                emit_groups(EPI)
                EPI = []
            else:
                for f in dl: f()
        if tau == 15:
            a(f"s_lshl_b32 s{T0}, s{S_RB}, 7")
            a(f"s_add_u32 s{T0}, s{T0}, {WS_FLAG + FS}")
            a(f"v_mov_b32 v{t0}, s{T0}")
            a(f"s_min_u32 s{T1}, s{S_CJ}, 13")
            a(f"s_lshl_b32 s{T1}, s{T1}, 2")
            a(f"s_add_u32 s{T1}, s{T1}, {WS_FLAG + FC}")
            a(f"v_mov_b32 v{t1}, s{T1}")
            a(f"v_cmp_gt_u32 s[{T4}:{T4+1}], 32, v1")
            a(f"v_cndmask_b32 v234, v{t1}, v{t0}, s[{T4}:{T4+1}]")
            poll_issue(a, 234, 235, 'p1')
        if tau == 17:
            L = uid("nf")
            a(f"s_cmp_ge_u32 s{S_CJ}, 14")
            a(f"s_cbranch_scc1 {L}")
            vm0 = list(a.vm)
            poll_check(a, 234, 235, 'p1')
            a.label(L)
            a.vm = vm0
            a(f"s_lshl_b32 s{T0}, s{S_RB}, 10")
            a(f"s_add_u32 s{T0}, s{T0}, {WS_ST}")
            a(f"s_lshl_b32 s{T1}, s{S_CJ}, 9")
            a(f"s_add_u32 s{T2}, s{T1}, {WS_CS}")
            a(f"s_add_u32 s{T1}, s{T1}, {WS_B1}")
            a(f"s_cmp_eq_u32 s{S_W}, 1")
            a(f"s_cselect_b32 s{T0}, s{T2}, s{T0}")
            a(f"s_cselect_b32 s{T3}, 1024, 0")
            a(f"s_cmp_eq_u32 s{S_W}, 2")
            a(f"s_cselect_b32 s{T0}, s{T1}, s{T0}")
            a(f"s_cselect_b32 s{T3}, 1536, s{T3}")
            a(f"s_cmp_eq_u32 s{S_W}, 3")
            a(f"s_cselect_b32 s{T0}, 0x7fff0000, s{T0}")
            a(f"s_cselect_b32 s{T3}, 2048, s{T3}")
            a(f"v_lshlrev_b32 v{t0}, 4, v1")
            a(f"v_mov_b32 v{t1}, 0x7ffffff0")
            a(f"s_cmp_eq_u32 s{S_W}, 0")
            a(f"s_cselect_b32 s{T1}, 64, 32")
            a(f"v_cmp_gt_u32 s[{T4}:{T4+1}], s{T1}, v1")
            a(f"s_mov_b64 exec, s[{T4}:{T4+1}]")
            a(f"s_mov_b32 m0, s{T3}")
            a(f"buffer_load_dwordx4 v{t0}, s[{SRD_WS}:{SRD_WS+3}], s{T0} offen sc1 lds", tag='tab')
            a("s_mov_b64 exec, -1")
        if tau == 19: pass
        if tau == OPT.get('tpq', 18):
            poll_issue(a, VP, VPV, 'pq')
            fw_poll_offsets(a, VP+202)
            poll_issue(a, VP+202, VPV+202, 'pw')
    if OPT.get('fine4'): mark(a)
    poll_check(a, VP, VPV, 'pq')
    if OPT.get('fine4'): mark(a)
    attn_stage_q(a, 3)
    attn_stage_kv(a, t0, t1, t2, 2)
    poll_check(a, VP+202, VPV+202, 'pw')
    if OPT.get('earlyw', 0): wf_first_slots(a, 3)
    mark(a)
    a.wait_vm(('kv', 0))
    if OPT.get('fine4'): mark(a)
    a(f"s_branch {lbl}_join")
    a.label(f"{lbl}_idle")
    a.reset_counters()
    a("s_waitcnt lgkmcnt(0)")
    prologue_rest(a)
    attn_coords(a)
    final_coords(a)
    srd(a, SRD_A, P_AX, SIZES['AX'])
    rowstats_issue(a)
    colsum_issue(a)
    nonce_issue(a, 252)
    rowstats_compute(a)
    colsum_compute(a, lbl + "_cs")
    nonce_check(a, 252)
    a("s_waitcnt vmcnt(0)")
    a("s_barrier")
    a(f"s_lshl_b32 s{T0}, s{S_RB}, 7")
    a(f"s_add_u32 s{T0}, s{T0}, {WS_FLAG + FS}")
    flag_store(a, T0, t3)
    a(f"s_lshl_b32 s{T0}, s{S_RB}, 2")
    a(f"s_add_u32 s{T0}, s{T0}, {WS_FLAG + FC}")
    flag_store(a, T0, t3)
    pre_address(a, lbl + "_pai", rows=False)
    pre_issue(a, rows=False)
    a.wait_vm('pl')
    repack_finish(a)
    a("s_waitcnt vmcnt(0)")
    a("s_barrier")
    pre_flags(a, t3, stats=False)
    a(f"s_mov_b32 s{S_FHO}, 0x7fff0000")
    fq_poll_offsets(a, VP, t3)
    a(f"s_mov_b64 s[{T4}:{T4+1}], -1")
    wait_flags(a, VP, VPV, T4)
    Li = uid("ik")
    a(f"s_cmp_ge_u32 s{S_W}, 4")
    a(f"s_cbranch_scc1 {Li}")
    attn_stage_q(a, 3)
    attn_stage_kv(a, t0, t1, t2, 2)
    fw_poll_offsets(a, VP+202)
    poll_issue(a, VP+202, VPV+202, 'pw')
    poll_check(a, VP+202, VPV+202, 'pw')
    if OPT.get('earlyw', 0): wf_first_slots(a, 3)
    a.label(Li)
    a("s_waitcnt vmcnt(0)")
    a.label(f"{lbl}_join")
    if OPT.get('lprio', 1) or OPT.get('cprio', 3): a("s_setprio 0")
    a.reset_counters()

SLOT = 49152
def stage1f(a, lbl):
    SRD_E, S_M = 64, 68
    VXD, VQD, V1D = 2, 4, 6
    VXF, VWF = 8, 16
    t0, t1, t2, t3 = 20, 21, 22, 23
    VP, VPV = 24, 25
    FB = [32, 48]
    ACC = 64
    ST, CSR, B1R, TD = 192, 128, 160, 196
    S_FQ, S_FH, S_ACT, S_HB = 69, 70, 71, 72
    attn_coords(a)
    final_coords(a)
    a(f"s_and_b32 s{S_LW}, s{S_W}, 3")
    a(f"s_cmp_ge_u32 s{S_CJ}, 15")
    a(f"s_cbranch_scc1 {lbl}_idle")
    srd(a, SRD_A, P_AX, SIZES['AX'])
    srd(a, SRD_B, P_WQKV, SIZES['WQKV'])
    srd(a, SRD_E, P_W1, SIZES['W1'])
    a(f"s_lshl_b32 s{T0}, s{S_RB}, 7")
    a(f"s_lshr_b32 s{T1}, s{S_W}, 2")
    a(f"s_lshl_b32 s{T1}, s{T1}, 6")
    a(f"s_add_u32 s{T0}, s{T0}, s{T1}")
    a(f"s_and_b32 s{T1}, s{S_W}, 1")
    a(f"s_lshl_b32 s{T1}, s{T1}, 5")
    a(f"s_add_u32 s{T0}, s{T0}, s{T1}")
    a(f"s_bfe_u32 s{T1}, s{S_W}, 0x10001")
    a(f"s_add_u32 s{T0}, s{T0}, s{T1}")
    a(f"v_lshrrev_b32 v{t0}, 3, v1")
    a(f"v_lshlrev_b32 v{t0}, 1, v{t0}")
    a(f"v_add_u32 v{t0}, s{T0}, v{t0}")
    a(f"s_movk_i32 s{T2}, 1280")
    a(f"v_mul_lo_u32 v{t0}, v{t0}, s{T2}")
    a(f"v_lshrrev_b32 v{t1}, 4, v1")
    a(f"v_and_b32 v{t2}, 7, v1")
    a(f"v_xor_b32 v{t2}, v{t2}, v{t1}")
    a(f"v_xor_b32 v{t3}, 4, v{t2}")
    a(f"v_lshl_add_u32 v{VXD}, v{t2}, 4, v{t0}")
    a(f"v_lshl_add_u32 v{VXD+1}, v{t3}, 4, v{t0}")
    a(f"v_add_u32 v{VXD+1}, {16*1280-1024}, v{VXD+1}")
    a(f"s_lshl_b32 s{T0}, s{S_W}, 3")
    a(f"v_lshrrev_b32 v{t0}, 4, v1")
    a(f"v_add_u32 v{t1}, s{T0}, v{t0}")
    a(f"v_bfe_u32 v{t2}, v1, 2, 2")
    a(f"v_xor_b32 v{t2}, v{t2}, v{t0}")
    a(f"v_and_b32 v{t3}, 3, v1")
    a(f"v_lshl_add_u32 v{t2}, v{t2}, 2, v{t3}")
    a(f"v_lshlrev_b32 v{t2}, 4, v{t2}")
    a(f"s_lshl_b32 s{T0}, s{S_CJ}, 8")
    a(f"v_add_u32 v{t2}, s{T0}, v{t2}")
    for vd, pitch in ((VQD, 3840), (V1D, 3456)):
        a(f"s_movk_i32 s{T2}, {pitch}")
        a(f"v_mul_lo_u32 v{t3}, v{t1}, s{T2}")
        a(f"v_add_u32 v{vd}, v{t3}, v{t2}")
        a(f"v_add_u32 v{vd+1}, {4*pitch-1024}, v{vd}")
    a(f"s_lshl_b32 s{S_M}, s{S_W}, 11")
    if OPT.get('rot', 1):
        a(f"s_lshr_b32 s{T0}, s{S_I}, 3")
        a(f"s_mul_i32 s{T0}, s{T0}, 10")
        a(f"s_and_b32 s{T1}, s{S_I}, 7")
        a(f"s_mul_i32 s{T1}, s{T1}, 5")
        a(f"s_add_u32 s{T0}, s{T0}, s{T1}")
        a(f"s_lshr_b32 s{T0}, s{T0}, 2")
        a(f"s_sub_u32 s{T1}, s{T0}, 10")
        a(f"s_cmp_ge_u32 s{T0}, 10")
        a(f"s_cselect_b32 s{T0}, s{T1}, s{T0}")
    else:
        a(f"s_mov_b32 s{T0}, 0")
    a(f"s_lshl_b32 s{S_KX}, s{T0}, 7")
    a(f"s_mul_i32 s{S_KQ}, s{T0}, {64*3840}")
    a(f"s_mul_i32 s{S_K1}, s{T0}, {64*3456}")
    def adv(sreg, step, wrap):
        a(f"s_add_u32 s{sreg}, s{sreg}, {step}")
        a(f"s_cmp_eq_u32 s{sreg}, {wrap}")
        a(f"s_cselect_b32 s{sreg}, 0, s{sreg}")
    parts = ((VXD, SRD_A, S_KX, 0, 128, 1280), (VQD, SRD_B, S_KQ, 16384, 64*3840, 640*3840), (V1D, SRD_E, S_K1, 32768, 64*3456, 640*3456))
    def dma(b, part, i):
        vd, sr, sk, off, step, wrap = parts[part]
        if i == 0:
            a(f"s_add_u32 m0, s{S_M}, {(b % 3)*SLOT + off}")
            if b > 0: adv(sk, step, wrap)
        a(f"buffer_load_dwordx4 v{vd+i}, s[{sr}:{sr+3}], s{sk} offen offset:{i*1024} lds", tag=('B', b))
    def dma_block(b):
        for part in range(3):
            for i in range(2): dma(b, part, i)
    NI = OPT.get('finit', 2)
    for b in range(NI): dma_block(b)
    pre_address(a, lbl + "_pa", rows=False)
    a(f"s_and_b32 s{T0}, s{S_W}, 1")
    a(f"s_lshl_b32 s{T0}, s{T0}, 13")
    a(f"v_and_b32 v{t0}, 31, v1")
    a(f"v_lshrrev_b32 v{t1}, 5, v1")
    a(f"v_bfe_u32 v{t2}, v1, 1, 3")
    a(f"v_lshlrev_b32 v{t0}, 7, v{t0}")
    a(f"v_add_u32 v{t0}, s{T0}, v{t0}")
    for s_ in range(4):
        a(f"v_or_b32 v{t3}, {2*s_}, v{t1}")
        a(f"v_xor_b32 v{t3}, v{t3}, v{t2}")
        a(f"v_lshl_add_u32 v{VXF+s_}, v{t3}, 4, v{t0}")
        a(f"v_add_u32 v{VXF+4+s_}, {2*SLOT}, v{VXF+s_}")
    a(f"v_bfe_u32 v{t0}, v1, 2, 2")
    a(f"v_lshl_add_u32 v{t1}, v{t1}, 3, v{t0}")
    a(f"v_lshlrev_b32 v{t1}, 8, v{t1}")
    a(f"v_bfe_u32 v{t2}, v1, 4, 1")
    a(f"v_lshl_add_u32 v{t1}, v{t2}, 5, v{t1}")
    a(f"v_and_b32 v{t2}, 3, v1")
    a(f"v_lshl_add_u32 v{t1}, v{t2}, 3, v{t1}")
    a(f"s_lshr_b32 s{T0}, s{S_W}, 1")
    a(f"v_xor_b32 v{t2}, s{T0}, v{t0}")
    a(f"v_lshl_add_u32 v{VWF}, v{t2}, 6, v{t1}")
    a(f"v_add_u32 v{VWF+1}, {SLOT}, v{VWF}")
    a(f"v_add_u32 v{VWF+2}, {2*SLOT}, v{VWF}")
    a(f"s_lshl_b32 s{T0}, s{S_RB}, 7")
    a(f"s_add_u32 s{T0}, s{T0}, {WS_FLAG + FS}")
    a(f"v_mov_b32 v{t0}, s{T0}")
    a(f"s_min_u32 s{T1}, s{S_CJ}, 13")
    a(f"s_lshl_b32 s{T1}, s{T1}, 2")
    a(f"s_add_u32 s{T1}, s{T1}, {WS_FLAG + FC}")
    a(f"v_mov_b32 v{t1}, s{T1}")
    a(f"v_cmp_gt_u32 s[{T4}:{T4+1}], 32, v1")
    a(f"v_cndmask_b32 v{VP}, v{t1}, v{t0}, s[{T4}:{T4+1}]")
    a(f"s_lshl_b32 s{T0}, s{S_RB}, 7")
    a(f"s_lshl_b32 s{T1}, s{S_CJ}, 2")
    a(f"s_add_u32 s{T0}, s{T0}, s{T1}")
    a(f"s_add_u32 s{S_FQ}, s{T0}, {WS_FLAG + FQ}")
    a(f"s_add_u32 s{S_FH}, s{T0}, {WS_FLAG + FH}")
    a(f"s_cmp_lt_u32 s{S_CJ}, 14")
    a(f"s_cselect_b32 s{S_FHO}, s{S_FH}, 0x7fff0000")
    def rd_b(st, b, u, tt):
        sl = b % 3
        a(f"ds_read_b128 {vr(FB[st]+4*tt,4)}, v{VXF + u + (4 if sl == 2 else 0)} offset:{(SLOT if sl == 1 else 0) + tt*4096}", tag=('f', b, u, 'b', tt))
    def rd_a(st, b, u, F, rd):
        a(f"ds_read_b64_tr_b16 {vr(FB[st]+8+4*F+2*rd,2)}, v{VWF + b % 3} offset:{16384*(F+1) + u*4096 + rd*1024}", tag=('f', b, u, 'a', F))
    def reads(st, b, u):
        return [lambda: rd_b(st, b, u, 0), lambda: rd_a(st, b, u, 0, 0), lambda: rd_a(st, b, u, 0, 1),
                lambda: rd_b(st, b, u, 1), lambda: rd_a(st, b, u, 1, 0), lambda: rd_a(st, b, u, 1, 1)]
    mark(a)
    a.wait_vm(('B', 0))
    a("s_barrier")
    for r in reads(0, 0, 0): r()
    NB = 10
    pend = [(b, p, i) for b in range(NI, 3) for p in range(3) for i in range(2)]
    for b in range(NB):
        for u in range(4):
            s_ = 4*b + u; st = s_ & 1
            last = (b == NB-1 and u == 3)
            if u == 3 and b + 1 < NB:
                while pend: dma(*pend.pop(0))
                a("s_waitcnt lgkmcnt(0)")
                a.wait_vm(('B', b + 1))
                a("s_barrier")
                if b == 3:
                    a.wait_vm('pl')
                    repack_finish(a)
                if b == 6: pre_flags(a, t3, stats=False)
                if b + 3 < NB: pend = [(b + 3, p, i) for p in range(3) for i in range(2)]
            nb, nu = (b, u + 1) if u < 3 else (b + 1, 0)
            rs = [] if last else reads(st ^ 1, nb, nu)
            plan = {-1: rs[0:2], 0: rs[2:5], 1: rs[5:6]}
            for r in plan[-1]: r()
            for k, (tt, F) in enumerate([(0, 0), (1, 0), (0, 1), (1, 1)]):
                a.wait_lg([('f', b, u, 'b', tt), ('f', b, u, 'a', F)])
                d = vr(ACC+16*(2*tt+F), 16)
                a(f"v_mfma_f32_32x32x16_bf16 {d}, {vr(FB[st]+8+4*F,4)}, {vr(FB[st]+4*tt,4)}, {'0' if s_ == 0 else d}")
                for r in plan.get(k, []): r()
                if pend and k in (1, 3): dma(*pend.pop(0))
            if b == 1 and u == 0: pre_issue(a, rows=False)
            if b == 1 and u == 1: nonce_issue(a, 252)
            if b == 3 and u == 1: nonce_check(a, 252)
            if b == 6 and u == 0: poll_issue(a, VP, VPV, 'p1')
            if b == 8 and u == 0:
                L = uid("nf")
                a(f"s_cmp_ge_u32 s{S_CJ}, 14")
                a(f"s_cbranch_scc1 {L}")
                vm0 = list(a.vm)
                poll_check(a, VP, VPV, 'p1')
                a.label(L)
                a.vm = vm0
                a(f"s_lshl_b32 s{T0}, s{S_RB}, 10")
                a(f"s_and_b32 s{T1}, s{S_W}, 1")
                a(f"s_lshl_b32 s{T1}, s{T1}, 9")
                a(f"s_add_u32 s{T0}, s{T0}, s{T1}")
                a(f"s_add_u32 s{T0}, s{T0}, {WS_ST}")
                a(f"v_and_b32 v{t0}, 31, v1")
                a(f"v_lshlrev_b32 v{t0}, 4, v{t0}")
                a(f"buffer_load_dwordx4 {vr(ST,4)}, v{t0}, s[{SRD_WS}:{SRD_WS+3}], s{T0} offen sc1", tag='tab')
                a(f"v_lshrrev_b32 v{t0}, 5, v1")
                a(f"v_lshlrev_b32 v{t0}, 4, v{t0}")
                a(f"s_lshl_b32 s{T0}, s{S_CJ}, 9")
                a(f"s_lshr_b32 s{T1}, s{S_W}, 1")
                a(f"s_lshl_b32 s{T1}, s{T1}, 7")
                a(f"s_add_u32 s{T0}, s{T0}, s{T1}")
                a(f"s_add_u32 s{T1}, s{T0}, {WS_B1}")
                a(f"s_add_u32 s{T0}, s{T0}, {WS_CS}")
                for j in range(4):
                    a(f"buffer_load_dwordx4 {vr(CSR+4*j,4)}, v{t0}, s[{SRD_WS}:{SRD_WS+3}], s{T0} offen offset:{32*j} sc1", tag='tab')
                    a(f"buffer_load_dwordx4 {vr(B1R+4*j,4)}, v{t0}, s[{SRD_WS}:{SRD_WS+3}], s{T1} offen offset:{32*j} sc1", tag='tab')
    mark(a)
    a(f"v_lshrrev_b32 v{t0}, 5, v1")
    a(f"s_lshr_b32 s{T0}, s{S_W}, 1")
    a(f"s_lshl_b32 s{T0}, s{T0}, 3")
    a(f"v_add_u32 v{t0}, s{T0}, v{t0}")
    a(f"v_lshlrev_b32 v{t0}, 14, v{t0}")
    a(f"s_and_b32 s{T0}, s{S_W}, 1")
    a(f"s_lshl_b32 s{T0}, s{T0}, 9")
    a(f"v_and_b32 v{t1}, 31, v1")
    a(f"v_lshl_add_u32 v{t0}, v{t1}, 4, v{t0}")
    a(f"v_add_u32 v{t0}, s{T0}, v{t0}")
    a(f"s_lshl_b32 s{T0}, s{S_CJ}, 19")
    a(f"s_lshl_b32 s{T1}, s{S_RB}, 10")
    a(f"s_add_u32 s{T0}, s{T0}, s{T1}")
    a(f"s_add_u32 s{T0}, s{T0}, {WS_QKV}")
    a(f"s_cmp_lt_u32 s{S_CJ}, 5")
    a(f"s_cselect_b32 s{T2}, 0x3ea52b5c, 1.0")
    a(f"v_mov_b32 v30, s{T2}")
    for tt in range(2):
        for r in range(0, 16, 2):
            a(f"v_pk_mul_f32 {vr(ACC+32*tt+r,2)}, {vr(ACC+32*tt+r,2)}, v[30:31] op_sel_hi:[1,0]")
    for j in range(4):
        a(f"s_add_u32 s{T1}, s{T0}, {2*j*16384}")
        d = FB[0] + 4*j
        for tt in range(2):
            base = ACC + 32*tt + 4*j
            a(f"v_cvt_pk_bf16_f32 v{d+2*tt}, v{base}, v{base+1}")
            a(f"v_cvt_pk_bf16_f32 v{d+2*tt+1}, v{base+2}, v{base+3}")
        a(f"buffer_store_dwordx4 {vr(d,4)}, v{t0}, s[{SRD_WS}:{SRD_WS+3}], s{T1} offen sc1", tag='qst')
    C0, C1, VY, ONE = 2, 3, 4, 6
    TU, TE = 48, 56
    a(f"v_mov_b32 v{ONE}, 1.0")
    a(f"v_mov_b32 v{C0}, 0xc0135761")
    a(f"v_mov_b32 v{C1}, 0xbdd2d3e8")
    a(f"v_lshlrev_b32 v{VY}, 4, v1")
    a(f"s_lshl_b32 s{T0}, s{S_CJ}, 3")
    a(f"s_lshr_b32 s{T1}, s{S_W}, 1")
    a(f"s_lshl_b32 s{T1}, s{T1}, 1")
    a(f"s_add_u32 s{S_ACT}, s{T0}, s{T1}")
    a(f"s_lshl_b32 s{T0}, s{S_RB}, 2")
    a(f"s_and_b32 s{T1}, s{S_W}, 1")
    a(f"s_lshl_b32 s{T1}, s{T1}, 1")
    a(f"s_add_u32 s{T0}, s{T0}, s{T1}")
    a(f"s_mul_i32 s{T0}, s{T0}, 108")
    a(f"s_add_u32 s{T0}, s{T0}, s{S_ACT}")
    a(f"s_lshl_b32 s{T0}, s{T0}, 10")
    a(f"s_add_u32 s{S_HB}, s{T0}, {WS_H}")
    a(f"s_cmp_lt_u32 s{S_ACT}, 108")
    a(f"s_cselect_b32 s{S_HB}, s{S_HB}, 0x7fff0000")
    a.wait_vm('tab')
    P = lambda b, e: vr(b + 2*e, 2)
    for tt in range(2):
        nmp = vr(ST + 2*tt, 2)
        for jj in range(2):
            x = ACC + 16*(2*tt+1) + 8*jj
            for e in range(4):
                j, i = 2*jj + (e >> 1), 2*(e & 1)
                a(f"v_pk_fma_f32 {P(TU,e)}, {nmp}, {vr(CSR+4*j+i,2)}, {vr(B1R+4*j+i,2)} op_sel_hi:[0,1,1]")
            for e in range(4): a(f"v_pk_fma_f32 {P(x,e)}, {nmp}, {P(x,e)}, {P(TU,e)} op_sel:[1,0,0] op_sel_hi:[1,1,1]")
            for e in range(4): a(f"v_pk_mul_f32 {P(TU,e)}, {P(x,e)}, {P(x,e)}")
            for e in range(4): a(f"v_pk_fma_f32 {P(TU,e)}, {P(TU,e)}, {vr(C0,2)}, {vr(C0,2)} op_sel:[0,1,0] op_sel_hi:[1,1,0]")
            for e in range(4): a(f"v_pk_mul_f32 {P(TU,e)}, {P(TU,e)}, {P(x,e)}")
            for e in range(8): a(f"v_exp_f32 v{TE+e}, v{TU+e}")
            for e in range(4): a(f"v_pk_add_f32 {P(TE,e)}, {P(TE,e)}, {vr(ONE,2)} op_sel_hi:[1,0]")
            for e in range(8): a(f"v_rcp_f32 v{TE+e}, v{TE+e}")
            for e in range(4): a(f"v_pk_mul_f32 {P(TE,e)}, {P(TE,e)}, {P(x,e)}")
            d = TD + 4*(2*tt + jj)
            for e in range(4): a(f"v_cvt_pk_bf16_f32 v{d+e}, v{TE+2*e}, v{TE+2*e+1}")
    fq_poll_offsets(a, VP, t3)
    a.wait_vm('qst')
    a("s_barrier")
    flag_store(a, S_FQ, t3)
    mark(a)
    for tt in range(2):
        if tt == 1: a(f"s_add_u32 s{S_HB}, s{S_HB}, {108*1024}")
        for jj in range(2):
            d = TD + 4*(2*tt + jj)
            a(f"buffer_store_dwordx4 {vr(d,4)}, v{VY}, s[{SRD_WS}:{SRD_WS+3}], s{S_HB} offen offset:{jj*1024} sc1", tag='hst')
    a(f"s_branch {lbl}_stage")
    a.label(f"{lbl}_idle")
    a.reset_counters()
    t3i = t3
    srd(a, SRD_A, P_AX, SIZES['AX'])
    rowstats_issue(a)
    colsum_issue(a)
    nonce_issue(a, 252)
    rowstats_compute(a)
    colsum_compute(a, lbl + "_cs")
    nonce_check(a, 252)
    a("s_waitcnt vmcnt(0)")
    a("s_barrier")
    a(f"s_lshl_b32 s{T0}, s{S_RB}, 7")
    a(f"s_add_u32 s{T0}, s{T0}, {WS_FLAG + FS}")
    flag_store(a, T0, t3)
    a(f"s_lshl_b32 s{T0}, s{S_RB}, 2")
    a(f"s_add_u32 s{T0}, s{T0}, {WS_FLAG + FC}")
    flag_store(a, T0, t3)
    pre_address(a, lbl + "_pai", rows=False)
    pre_issue(a, rows=False)
    a.wait_vm('pl')
    repack_finish(a)
    a("s_waitcnt vmcnt(0)")
    a("s_barrier")
    pre_flags(a, t3, stats=False)
    a(f"s_mov_b32 s{S_FHO}, 0x7fff0000")
    fq_poll_offsets(a, VP, t3)
    a.label(f"{lbl}_stage")
    a.reset_counters()
    a(f"s_mov_b64 s[{T4}:{T4+1}], -1")
    wait_flags(a, VP, VPV, T4)
    mark(a)
    Li = uid("ik")
    a(f"s_cmp_ge_u32 s{S_W}, 4")
    a(f"s_cbranch_scc1 {Li}")
    attn_stage_q(a, 3)
    attn_stage_kv(a, t0, t1, t2, 2)
    a.wait_vm(('kv', 0))
    a.label(Li)
    a.reset_counters()

def stage_attn(a, lbl):
    HP, S_HH, S_QW = S_AHP, 78, 79
    VD, VK, VV, VKX, VW = 2, 3, 4, 5, 10
    t0, t1, t2, t3, t4 = 6, 7, 8, 9, 11
    MK = 12
    Q0, Q1 = 20, 24
    KF = [28, 36]
    VF = [44, 48, 52, 56]
    PF = [60, 64, 68, 72]
    OA = 76
    CS, NM, MX = 96, 97, 98
    S = 104
    VPQ, VPH = 92, 94
    a(f"v_and_b32 v{t0}, 31, v1")
    a(f"v_and_b32 v{VPH}, 15, v1")
    a(f"v_min_u32 v{VPH}, 13, v{VPH}")
    a(f"v_lshlrev_b32 v{VPH}, 2, v{VPH}")
    a(f"s_lshr_b32 s{T1}, s{S_FRB}, 1")
    a(f"s_lshl_b32 s{T1}, s{T1}, 7")
    a(f"s_add_u32 s{T1}, s{T1}, {WS_FLAG + FH}")
    a(f"v_add_u32 v{VPH}, s{T1}, v{VPH}")
    a(f"v_lshrrev_b32 v{t1}, 5, v1")
    for r in range(4): a(f"v_mov_b32 v{KF[0]+r}, 0x3f803f80")
    a(f"v_lshlrev_b32 v{t4}, 4, v0")
    a(f"v_add_u32 v{t4}, {LONES}, v{t4}")
    a(f"v_mov_b32 v{KF[1]}, 208")
    a(f"v_cmp_gt_u32 vcc, v{KF[1]}, v0")
    L = uid("on")
    a(f"s_and_saveexec_b64 s[{T4}:{T4+1}], vcc")
    a(f"s_cbranch_execz {L}")
    a(f"ds_write_b128 v{t4}, {vr(KF[0],4)}")
    a.label(L)
    a(f"s_mov_b64 exec, s[{T4}:{T4+1}]")
    SM = 98
    a(f"v_lshlrev_b32 v{t2}, 2, v{t1}")
    a(f"v_sub_u32 v{t2}, v{t0}, v{t2}")
    VM = 248
    a(f"v_mov_b32 v{VM}, v{t2}")
    a(f"v_mov_b32 v{t3}, 0xffff")
    a(f"v_mov_b32 v{t4}, 0xffff0000")
    for q in range(8):
        r0, r1 = 2*q, 2*q + 1
        a(f"v_cmp_le_i32 s[98:99], {8*(r0 >> 2) + (r0 & 3)}, v{VM}")
        a(f"v_cmp_le_i32 s[100:101], {8*(r1 >> 2) + (r1 & 3)}, v{VM}")
        a(f"v_cndmask_b32 v{MK+q}, 0, v{t3}, s[98:99]")
        a(f"v_cndmask_b32 v{KF[1]}, 0, v{t4}, s[100:101]")
        a(f"v_or_b32 v{MK+q}, v{MK+q}, v{KF[1]}")
    a(f"s_lshl_b32 s{T0}, s{S_QW}, 8")
    a(f"s_mul_i32 s{T3}, s{S_HH}, {5*PST}")
    a(f"s_add_u32 s{T2}, s{T0}, s{T3}")
    a(f"s_add_u32 s{T2}, s{T2}, {LK}")
    a(f"v_lshlrev_b32 v{t2}, 3, v{t0}")
    a(f"v_add_u32 v{t2}, s{T2}, v{t2}")
    a(f"s_movk_i32 s{T1}, {2*PST}")
    a(f"v_mul_lo_u32 v{t3}, v{t1}, s{T1}")
    a(f"v_add_u32 v{VK}, v{t2}, v{t3}")
    a(f"v_add_u32 v{VKX}, {4*PST}, v{t2}")
    a(f"v_bfe_u32 v{t2}, v1, 4, 1")
    a(f"v_and_b32 v{t3}, 3, v1")
    a(f"v_lshl_add_u32 v{t2}, v{t2}, 2, v{t3}")
    a(f"v_bfe_u32 v{t3}, v1, 2, 2")
    a(f"v_lshl_add_u32 v{t3}, v{t1}, 2, v{t3}")
    a(f"v_lshlrev_b32 v{t3}, 3, v{t3}")
    a(f"v_add_u32 v{t3}, s{T0}, v{t3}")
    a(f"s_movk_i32 s{T1}, {PST}")
    a(f"v_mul_lo_u32 v{t4}, v{t2}, s{T1}")
    a(f"v_cmp_gt_u32 s[{T4}:{T4+1}], 5, v{t2}")
    a(f"s_add_u32 s{T3}, s{T3}, {LV}")
    a(f"s_sub_u32 s{T2}, s{T3}, {LONES}")
    a(f"v_lshlrev_b32 v{KF[0]}, 5, v{t2}")
    a(f"v_add_u32 v{KF[0]}, s{T2}, v{KF[0]}")
    a(f"v_and_b32 v{KF[0]}, 255, v{KF[0]}")
    a(f"v_add_u32 v{KF[0]}, {LONES}, v{KF[0]}")
    a(f"v_add_u32 v{KF[0]+1}, s{T3}, v{t4}")
    a(f"v_cndmask_b32 v{KF[0]}, v{KF[0]}, v{KF[0]+1}, s[{T4}:{T4+1}]")
    a(f"v_add_u32 v{VV}, v{KF[0]}, v{t3}")
    a(f"v_mov_b32 v{CS}, 0x3ea52b5c")
    for st in range(2):
        a(f"v_mov_b32 v{KF[st]+6}, 0"); a(f"v_mov_b32 v{KF[st]+7}, 0")
    a(f"v_mov_b32 v{Q1+2}, 0"); a(f"v_mov_b32 v{Q1+3}, 0")
    a(f"v_lshlrev_b32 v{VW}, 4, v1")
    a(f"s_lshl_b32 s{T0}, s{S_ARB}, 2")
    a(f"s_add_u32 s{S_QB}, s{T0}, s{S_QW}")
    a(f"s_mul_i32 s{T0}, s{S_HH}, 5120")
    a(f"s_lshl_b32 s{T1}, s{S_QW}, 8")
    a(f"s_add_u32 s{T0}, s{T0}, s{T1}")
    a(f"s_add_u32 s{T0}, s{T0}, {QL}")
    a(f"v_lshlrev_b32 v{t2}, 3, v{t0}")
    a(f"v_add_u32 v{t2}, s{T0}, v{t2}")
    a(f"v_lshl_add_u32 v{t3}, v{t1}, 11, v{t2}")
    a("s_waitcnt lgkmcnt(0)")
    a("s_barrier")
    a(f"ds_read_b64 {vr(Q0,2)}, v{t3}")
    a(f"ds_read_b64 {vr(Q0+2,2)}, v{t3} offset:1024")
    a(f"ds_read_b64 {vr(Q1,2)}, v{t2} offset:4096")
    a(f"v_cmp_gt_u32 s[{T4}:{T4+1}], 32, v1")
    a("s_waitcnt lgkmcnt(0)")
    for q in (Q1, Q1+1):
        a(f"v_cndmask_b32 v{q}, 0, v{q}, s[{T4}:{T4+1}]")
    mark(a)
    SB = [100, 116, 132]; NM16 = 148
    order = [0, 8, 1, 2, 3, 4, 5, 6, 7]
    a(f"v_mov_b32 v{Q1+2}, 0x3f80")
    a(f"v_cndmask_b32 v{Q1+2}, 0, v{Q1+2}, s[{T4}:{T4+1}]")
    kn = [0]
    def rd_k(tl):
        st = KF[kn[0] % 2]; kn[0] += 1
        a(f"ds_read_b64 {vr(st,2)}, v{VK} offset:{tl*256}", tag=('k', tl))
        a(f"ds_read_b64 {vr(st+2,2)}, v{VK} offset:{PST + tl*256}", tag=('k', tl))
        a(f"ds_read_b64 {vr(st+4,2)}, v{VKX} offset:{tl*256}", tag=('k', tl))
        if tl < 8:
            a(f"s_cmp_lt_u32 s{S_QB}, {8-tl}")
            a(f"s_cselect_b32 s{T0}, 0xf149, 0")
            a(f"v_mov_b32 v{st+6}, s{T0}")
        else:
            a(f"v_mov_b32 v{st+6}, 0")
        return st
    def qk(tl, st, buf, c):
        a.wait_lg(('k', tl))
        d = vr(buf, 16)
        a(f"v_mfma_f32_32x32x16_bf16 {d}, {vr(st,4)}, {vr(Q0,4)}, {c}")
        a(f"v_mfma_f32_32x32x16_bf16 {d}, {vr(st+4,4)}, {vr(Q1,4)}, {d}")
    def merge():
        for r in range(0, 16, 2):
            a(f"v_cmp_le_i32 s[98:99], {8*(r >> 2) + (r & 3)}, v{VM}")
            a(f"v_cmp_le_i32 s[100:101], {8*((r+1) >> 2) + ((r+1) & 3)}, v{VM}")
            a(f"v_cndmask_b32 v{SB[0]+r}, v{SB[0]+r}, v{SB[1]+r}, s[98:99]")
            a(f"v_cndmask_b32 v{SB[0]+r+1}, v{SB[0]+r+1}, v{SB[1]+r+1}, s[100:101]")
    bufs = {0: SB[0], 8: SB[1]}
    for n, tl in enumerate(range(1, 8)): bufs[tl] = SB[(2 - n) % 3]
    def tmax(buf, first):
        for h in range(2):
            m = MX + h
            a(f"v_max3_f32 v{m}, v{buf+8*h}, v{buf+8*h+1}, {'v%d' % (buf+8*h+2) if first else 'v%d' % m}")
            ks = range(3, 8) if first else range(2, 8)
            ks = list(ks)
            while ks:
                if len(ks) >= 2:
                    a(f"v_max3_f32 v{m}, v{m}, v{buf+8*h+ks[0]}, v{buf+8*h+ks[1]}"); ks = ks[2:]
                else:
                    a(f"v_max_f32 v{m}, v{m}, v{buf+8*h+ks[0]}"); ks = ks[1:]
    st = rd_k(0); st2 = rd_k(8)
    qk(0, st, bufs[0], "0")
    st = rd_k(1)
    qk(8, st2, bufs[8], "0")
    st2 = rd_k(2)
    qk(1, st, bufs[1], "0")
    merge()
    tmax(SB[0], True)
    cur = st2
    for tl in range(2, 8):
        nxt = rd_k(tl + 1) if tl + 1 < 8 else None
        qk(tl, cur, bufs[tl], "0")
        tmax(bufs[tl-1], False)
        cur = nxt
    tmax(bufs[7], False)
    a(f"v_max_f32 v{MX}, v{MX}, v{MX+1}")
    a(f"v_mov_b32 v{MX+1}, v{MX}")
    a(f"v_permlane32_swap_b32 v{MX}, v{MX+1}")
    a(f"v_max_f32 v{MX}, v{MX}, v{MX+1}")
    a(f"v_sub_f32 v{NM16}, 0, v{MX}")
    for r in range(1, 16): a(f"v_mov_b32 v{NM16+r}, v{NM16}")
    if OPT.get('fine5'): mark(a)
    st = rd_k(0); st2 = rd_k(8)
    Lv = uid("vb")
    a(f"s_cmp_ge_u32 s{S_W}, 4")
    a(f"s_cbranch_scc1 {Lv}_1")
    a("s_waitcnt vmcnt(0)")
    a.label(f"{Lv}_1")
    if OPT.get('thp', -1) < 0: a("s_waitcnt vmcnt(0)")
    a.vm = []
    a("s_barrier")
    if OPT.get('thp', -1) < 0: flag_store(a, S_FHO, t3)
    dma_wf(a, 0, VW); dma_wf(a, 1, VW)
    mark(a)
    nv = [0]; ps = [0]
    for r in range(16): a(f"v_mov_b32 v{OA+r}, 0")
    def rd_v(tl, kk):
        slot = nv[0] % 4; nv[0] += 1
        for rd in range(2):
            a(f"ds_read_b64_tr_b16 {vr(VF[slot]+2*rd,2)}, v{VV} offset:{tl*256 + kk*128 + rd*64}", tag=('v', tl, kk))
        return slot
    def frag(src):
        p = PF[ps[0] % 4]; ps[0] += 1
        for e in range(8): a(f"v_exp_f32 v{src+e}, v{src+e}")
        for e in range(4): a(f"v_cvt_pk_bf16_f32 v{p+e}, v{src+2*e}, v{src+2*e+1}")
        return p
    def pv(p, slot, tag):
        a.wait_lg(tag)
        a(f"v_mfma_f32_32x32x16_bf16 {vr(OA,16)}, {vr(VF[slot],4)}, {vr(p,4)}, {vr(OA,16)}")
    C = vr(NM16, 16)
    qk(0, st, bufs[0], C)
    st = rd_k(1)
    qk(8, st2, bufs[8], C)
    st2 = rd_k(2)
    qk(1, st, bufs[1], C)
    merge()
    fin = None; ntok = [0]
    for kk in range(2):
        s0 = rd_v(0, kk); s8 = rd_v(8, kk)
        p = frag(SB[0] + 8*kk)
        p8 = PF[ps[0] % 4]; ps[0] += 1
        for e in range(4): a(f"v_and_b32 v{p8+e}, v{p+e}, v{MK+4*kk+e}")
        for e in range(4): a(f"v_xor_b32 v{p+e}, v{p+e}, v{p8+e}")
        pv(p, s0, ('v', 0, kk))
        pv(p8, s8, ('v', 8, kk))
    def publish_h():
        a("s_waitcnt vmcnt(10)")
        a("s_barrier")
        flag_store(a, S_FHO, t3)
    if OPT.get('thp', -1) == 0: publish_h()
    cur = st2
    for tl in range(1, 8):
        if tl + 1 < 8:
            nxt = rd_k(tl + 2) if tl + 2 < 8 else None
            qk(tl + 1, cur, bufs[tl+1], C)
            cur = nxt
        for kk in range(2):
            slot = rd_v(tl, kk)
            p = frag(bufs[tl] + 8*kk)
            pv(p, slot, ('v', tl, kk))
            if fin is not None and OPT.get('spread_t', 1):
                left = OPT.get('td1', 16) - ntok[0]
                nfr = 2*(7 - tl) + (1 - kk) + 1
                for _ in range(-(-left // nfr)):
                    fin(ntok[0]); ntok[0] += 1
        if tl == OPT.get('thp', -1): publish_h()
        if tl == OPT.get('tpoll', 2): poll_issue(a, VPH, VPH+1, 'ph')
        if tl == OPT.get('ttok', 4):
            if OPT.get('fine5'): mark(a)
            fin = final_setup(a, VPH)
            if OPT.get('fine5'): mark(a)
    a(f"v_and_b32 v{t0}, 1, v1")
    a(f"v_mul_u32_u24 v{t0}, {40*1024}, v{t0}")
    a(f"v_bfe_u32 v{t1}, v1, 1, 4")
    a(f"v_lshl_add_u32 v{t0}, v{t1}, 4, v{t0}")
    a(f"s_and_b32 s{T0}, s{S_QB}, 1")
    a(f"s_lshl_b32 s{T0}, s{T0}, 8")
    a(f"s_lshr_b32 s{T1}, s{S_QB}, 1")
    a(f"s_mul_i32 s{T1}, s{T1}, {80*1024}")
    a(f"s_add_u32 s{T0}, s{T0}, s{T1}")
    a(f"s_add_u32 s{T0}, s{T0}, {WS_O}")
    a(f"v_lshrrev_b32 v{t1}, 5, v1")
    a(f"v_lshl_add_u32 v{t2}, v{t1}, 9, v{t0}")
    a(f"v_rcp_f32 v{NM}, v{OA+12}")
    for r in range(12): a(f"v_mul_f32 v{OA+r}, v{OA+r}, v{NM}")
    for e in range(4): a(f"v_cvt_pk_bf16_f32 v{PF[0]+e}, v{OA+2*e}, v{OA+2*e+1}")
    a(f"v_cvt_pk_bf16_f32 v{PF[1]}, v{OA+8}, v{OA+9}")
    a(f"v_cvt_pk_bf16_f32 v{PF[1]+1}, v{OA+10}, v{OA+11}")
    a(f"s_lshl_b32 s{T1}, s{HP}, 1")
    a(f"s_add_u32 s{T1}, s{T1}, s{S_HH}")
    a(f"s_lshl_b32 s{T1}, s{T1}, 10")
    a(f"s_add_u32 s{T1}, s{T1}, s{T0}")
    a(f"buffer_store_dwordx4 {vr(PF[0],4)}, v{t2}, s[{SRD_WS}:{SRD_WS+3}], s{T1} offen sc1", tag='ost')
    a(f"s_lshr_b32 s{T1}, s{HP}, 1")
    a(f"s_add_u32 s{T1}, s{T1}, 32")
    a(f"s_lshl_b32 s{T1}, s{T1}, 10")
    a(f"s_and_b32 s{T2}, s{HP}, 1")
    a(f"s_lshl_b32 s{T2}, s{T2}, 9")
    a(f"s_add_u32 s{T1}, s{T1}, s{T2}")
    a(f"s_lshl_b32 s{T2}, s{S_HH}, 3")
    a(f"s_add_u32 s{T1}, s{T1}, s{T2}")
    a(f"s_add_u32 s{T1}, s{T1}, s{T0}")
    a("s_mov_b32 exec_hi, 0")
    a(f"buffer_store_dwordx2 {vr(PF[1],2)}, v{t0}, s[{SRD_WS}:{SRD_WS+3}], s{T1} offen sc1", tag='ost')
    a("s_mov_b32 exec_hi, -1")
    S_FO = 78
    a(f"s_lshl_b32 s{T0}, s{S_ARB}, 7")
    a(f"s_lshl_b32 s{T1}, s{HP}, 2")
    a(f"s_add_u32 s{T0}, s{T0}, s{T1}")
    a(f"s_add_u32 s{S_FO}, s{T0}, {WS_FLAG + FO}")
    mark(a)
    return dict(VPH=VPH, VW=VW, S_FO=S_FO, fin=fin)

TR, NT, HM, NM_ = 164, 20, 27, 37
F_HB, F_OB, F_TG, F_KG = 70, 71, 72, 81
F_VB = 11
def final_setup(a, VPH):
    TD = OPT.get('td', 16)
    t1, t2, t3 = 6, 7, 8
    a(f"s_and_b32 s{F_TG}, s{S_W}, 3")
    a(f"s_lshr_b32 s{F_KG}, s{S_W}, 2")
    poll_check(a, VPH, VPH+1, 'ph')
    if OPT.get('pfh', 0): touch_h(a, t1, t2)
    a(f"v_lshrrev_b32 v{t1}, 5, v1")
    a(f"v_bfe_u32 v{t2}, v1, 4, 1")
    a(f"v_lshlrev_b32 v{t1}, 10, v{t1}")
    a(f"v_lshl_add_u32 v{t1}, v{t2}, 9, v{t1}")
    a(f"v_and_b32 v{t2}, 15, v1")
    a(f"s_and_b32 s{T0}, s{F_TG}, 1")
    a(f"s_lshl_b32 s{T0}, s{T0}, 4")
    a(f"v_add_u32 v{t3}, s{T0}, v{t2}")
    a(f"v_lshl_add_u32 v{F_VB}, v{t3}, 4, v{t1}")
    a(f"s_lshl_b32 s{T0}, s{S_FRB}, 1")
    a(f"s_lshr_b32 s{T1}, s{F_TG}, 1")
    a(f"s_add_u32 s{T0}, s{T0}, s{T1}")
    a(f"s_lshl_b32 s{T2}, s{F_KG}, 11")
    a(f"s_mul_i32 s{T1}, s{T0}, {108*1024}")
    a(f"s_add_u32 s{T1}, s{T1}, s{T2}")
    a(f"s_add_u32 s{F_HB}, s{T1}, {WS_H}")
    a(f"s_mul_i32 s{T1}, s{T0}, {40*1024}")
    a(f"s_add_u32 s{T1}, s{T1}, s{T2}")
    a(f"s_add_u32 s{F_OB}, s{T1}, {WS_O}")
    def ld_t(m):
        sb, k = (F_HB, m) if m < HM else (F_OB, m - HM)
        if k > 0 and not OPT.get('hotft'): a(f"s_add_u32 s{sb}, s{sb}, 4096")
        a(f"buffer_load_dwordx4 {vr(TR+4*(m % NT),4)}, v{F_VB}, s[{SRD_WS}:{SRD_WS+3}], s{sb} offen sc1", tag=('T', m))
    if not OPT.get('spread_t', 1):
        for m in range(OPT.get('td1', 16)): ld_t(m)
    return ld_t

def stage_final(a, lbl, st):
    VPH, S_FO = st['VPH'], st['S_FO']
    VW = st['VW']; ld_t = st['fin']
    VG, VO, VF = 3, 4, 6
    VA = 12
    t0, t1, t2, t3 = 16, 17, 18, 19
    AS = [20, 40, 60]
    ACB, ACA, BI = 100, 120, 80
    TD = OPT.get('td', 16)
    NM = NM_
    S_TG, S_KG = F_TG, F_KG
    srd(a, SRD_A, P_B2, SIZES['B2'])
    srd(a, SRD_B, P_OUT, SIZES['OUT'])
    a(f"s_mul_i32 s{T0}, s{S_KG}, 5120")
    a(f"v_lshlrev_b32 v{t1}, 4, v1")
    a(f"v_add_u32 v{t1}, s{T0}, v{t1}")
    for k in range(4): a(f"v_add_u32 v{VA+k}, {RING[k]}, v{t1}")
    def rd_a(m, F):
        g, u = m >> 2, m & 3
        a(f"ds_read_b128 {vr(AS[m % 3]+4*F,4)}, v{VA + g % 4} offset:{u*10240 + F*1024}", tag=('A', m, F))
    a.wait_vm(('W', 0))
    a("s_barrier")
    for m in range(2):
        for F in range(5): rd_a(m, F)
    def late_setup():
        a(f"s_lshl_b32 s{T0}, s{S_FRB}, 6")
        a(f"s_lshr_b32 s{T1}, s{S_TG}, 1")
        a(f"s_add_u32 s{T0}, s{T0}, s{T1}")
        a(f"s_and_b32 s{T1}, s{S_TG}, 1")
        a(f"s_lshl_b32 s{T1}, s{T1}, 5")
        a(f"s_add_u32 s{T0}, s{T0}, s{T1}")
        a(f"v_and_b32 v{t3}, 15, v1")
        a(f"v_lshlrev_b32 v{t3}, 1, v{t3}")
        a(f"v_add_u32 v{t3}, s{T0}, v{t3}")
        a(f"v_lshlrev_b32 v{t1}, 2, v{t3}")
        a(f"v_add_u32 v{t1}, {WS_G}, v{t1}")
        a(f"buffer_load_dword v{VG}, v{t1}, s[{SRD_WS}:{SRD_WS+3}], 0 offen sc1", tag='g')
        a(f"v_lshrrev_b32 v{t0}, 4, v1")
        a(f"s_movk_i32 s{T1}, 1280")
        a(f"v_mul_lo_u32 v{t3}, v{t3}, s{T1}")
        a(f"s_mul_i32 s{T0}, s{S_FCJ}, 160")
        a(f"v_lshl_add_u32 v{t3}, v{t0}, 3, v{t3}")
        a(f"v_add_u32 v{VO}, s{T0}, v{t3}")
        a(f"v_lshlrev_b32 v{t1}, 3, v{t0}")
        a(f"v_add_u32 v{t1}, s{T0}, v{t1}")
        for F in range(5):
            a(f"buffer_load_dwordx2 {vr(BI+2*F,2)}, v{t1}, s[{SRD_A}:{SRD_A+3}], 0 offen offset:{32*F}", tag='g')
    if not OPT.get('latef', 1):
        dma_wf(a, 2, VW); late_setup()
    a(f"s_lshr_b32 s{T0}, s{S_FRB}, 1")
    a(f"s_lshl_b32 s{T0}, s{T0}, 7")
    a(f"s_add_u32 s{T0}, s{T0}, {WS_FLAG + FO}")
    a(f"v_and_b32 v{VF}, 15, v1")
    a(f"v_lshlrev_b32 v{VF}, 2, v{VF}")
    a(f"v_add_u32 v{VF}, s{T0}, v{VF}")
    mark(a)
    NG = 10
    MO = OPT.get('mo', 16)
    POLL = MO - 4
    nxt = [OPT.get('td1', 16)]
    for m in range(NM):
        g, u = m >> 2, m & 3
        if m == HM: mark(a)
        if u == 2 and g + 1 < NG:
            if g == 0: a.wait_vm(['ost', ('W', 1)])
            else: a.wait_vm(('W', g + 1))
            a("s_barrier")
            if g == 0:
                flag_store(a, S_FO, t1)
                dma_wf(a, 3, VW)
            elif g + 3 < NG and not OPT.get('f_nodma'): dma_wf(a, g + 3, VW)
        if m == POLL: poll_issue(a, VF, VF+1, 'fo')
        if m == MO:
            if OPT.get('fine6'): mark(a)
            poll_check(a, VF, VF+1, 'fo')
            if OPT.get('fine6'): mark(a)
        a.wait_vm(('T', m))
        for F in range(5):
            a.wait_lg(('A', m, F))
            acc = (ACB if m < HM else ACA) + 4*F
            d = vr(acc, 4)
            a(f"v_mfma_f32_16x16x32_bf16 {d}, {vr(AS[m % 3]+4*F,4)}, {vr(TR+4*(m % NT),4)}, {'0' if m in (0, HM) else d}")
            if m + 2 < NM and not OPT.get('f_nolds'):
                rd_a(m + 2, F)
            if F in (1, 3) and not OPT.get('f_notok'):
                lim = min(m + TD, NM - 1)
                if m < MO: lim = min(lim, HM - 1)
                if nxt[0] <= lim and (F == 1 or nxt[0] < lim or OPT.get('td1', 16) < TD or MO > HM - TD):
                    ld_t(nxt[0]); nxt[0] += 1
        if m == 0 and OPT.get('latef', 1): dma_wf(a, 2, VW)
        if m == 8 and OPT.get('latef', 1): late_setup()
    mark(a)
    a.wait_vm('g')
    a(f"v_sub_f32 v{t0}, 1.0, v{VG}")
    Lb = uid("bi")
    a(f"s_cmp_lg_u32 s{S_KG}, 0")
    a(f"s_cbranch_scc1 {Lb}")
    for F in range(5):
        for e in range(2):
            a(f"v_lshlrev_b32 v{t2}, 16, v{BI+2*F+e}")
            a(f"v_and_b32 v{t3}, 0xffff0000, v{BI+2*F+e}")
            a(f"v_add_f32 v{ACB+4*F+2*e}, v{ACB+4*F+2*e}, v{t2}")
            a(f"v_add_f32 v{ACB+4*F+2*e+1}, v{ACB+4*F+2*e+1}, v{t3}")
    a.label(Lb)
    for r in range(20): a(f"v_mul_f32 v{ACB+r}, v{ACB+r}, v{t0}")
    for r in range(20): a(f"v_fmac_f32 v{ACB+r}, v{ACA+r}, v{VG}")
    a(f"v_lshlrev_b32 v{t1}, 4, v1")
    a(f"s_mul_i32 s{T0}, s{S_TG}, 5120")
    a(f"s_add_u32 s{T0}, s{T0}, {RING[2]}")
    a(f"v_add_u32 v{t1}, s{T0}, v{t1}")
    L = uid("rd")
    def finish(own, other):
        for F in other:
            a(f"ds_write_b128 v{t1}, {vr(ACB+4*F,4)} offset:{F*1024}")
        a("s_waitcnt lgkmcnt(0)")
        a("s_barrier")
        for F in own:
            a(f"ds_read_b128 {vr(ACA+4*F,4)}, v{t1} offset:{F*1024}", tag=('r', F))
        for F in own:
            a.wait_lg(('r', F))
            for r in range(4): a(f"v_add_f32 v{ACB+4*F+r}, v{ACB+4*F+r}, v{ACA+4*F+r}")
            d = AS[0] + 2*F
            a(f"v_cvt_pk_bf16_f32 v{d}, v{ACB+4*F}, v{ACB+4*F+1}")
            a(f"v_cvt_pk_bf16_f32 v{d+1}, v{ACB+4*F+2}, v{ACB+4*F+3}")
            a(f"buffer_store_dwordx2 {vr(d,2)}, v{VO}, s[{SRD_B}:{SRD_B+3}], 0 offen offset:{32*F} {['', 'sc1', 'nt', 'sc0 sc1'][OPT.get('outsc', 0)]}".rstrip())
    a(f"s_cmp_eq_u32 s{S_KG}, 0")
    a(f"s_cbranch_scc1 {L}")
    finish((3, 4), (0, 1, 2))
    if G.STAMPS: a("s_waitcnt vmcnt(0)")
    a("s_endpgm")
    a.label(L)
    a.reset_counters()
    finish((0, 1, 2), (3, 4))
    a.reset_counters()

def code_prefetch(a):
    L = uid("cp")
    a(f"s_cmp_lg_u32 s{S_W}, 3")
    a(f"s_cbranch_scc1 {L}_skip")
    a(f"s_getpc_b64 s[{T4}:{T4+1}]")
    a.label(L)
    a(f"s_and_b32 s{T0}, s{S_I}, 7")
    a(f"s_lshl_b32 s{T0}, s{T0}, 13")
    a("v_lshlrev_b32 v251, 7, v1")
    a(f"v_add_u32 v251, s{T0}, v251")
    a(f"v_min_u32 v251, L_end-{L}-4, v251")
    vm = list(a.vm)
    a(f"global_load_dword v251, v251, s[{T4}:{T4+1}]")
    a.vm = vm
    a.label(f"{L}_skip")

def build():
    if OPT.get('fine2'):
        G_mark = G.mark
    OPT['mega'] = True
    LDS = 163840
    name = NAME + "_kernel"
    a = Asm()
    if G.STAMPS: a("s_memrealtime s[94:95]")
    a("s_cmp_ge_u32 s2, 256")
    a("s_cbranch_scc1 L_end")
    prologue_ids(a)
    CTX['k'] = 0; CTX['slot'] = 0
    stage1g(a, "s1"); mark(a)
    st = stage_attn(a, "attn")
    stage_final(a, "fin", st)
    if G.STAMPS: a("s_waitcnt vmcnt(0)")
    mark(a)
    a.label("L_end")
    return [(name, a.text())], LDS

def emit(ks, LDS):
    s = "\n".join(G.header_comment()) + "\n"
    s += f"; @launch grid=(256,1,1) block=(512,1,1) lds={LDS}\n"
    s += '.amdgcn_target "amdgcn-amd-amdhsa--gfx950"\n.text\n'
    for name, body in ks:
        s += G.kernel_text(name, body, 256, LDS)
    s += '.section .rodata,"a"\n'
    for name, _ in ks:
        s += ".p2align 6\n" + G.descriptor(name)
    return s

if __name__ == "__main__":
    if "stamps" in sys.argv: G.STAMPS = True
    for arg in sys.argv[1:]:
        if "=" in arg:
            k, v = arg.split("="); OPT[k] = int(v)
    ks, LDS = build()
    sys.stdout.write(emit(ks, LDS))
```

```python
import sys
import gen as G
from gen import mark4
from gen import (Asm, NAME, SIZES, srd, vr, uid, OPT, mark, stamp, CTX, dpp_sum16, WF_TILE,
                 P_AX, P_WQKV, P_WO, P_W1, P_B1, P_W2, P_B2, P_GW, P_OUT, P_DBG, P_WS,
                 SRD_A, SRD_B, SRD_WS, SRD_C, S_W, S_IDX, S_X, S_I, T0, T1, T2, T3, T4, T5, T6, T7,
                 S_RB, S_CJ, S_MASK, S_NONCE, nonce_post, nonce_get, publish, wait_flags)

WS_ST   = 0x0000000
WS_CS   = 0x0010000
WS_B1   = 0x0012000
WS_G    = G.WS_G
WS_QKV  = G.WS_QKV
WS_H, WS_O, WS_WF, WS_FLAG = G.WS_H, G.WS_O, G.WS_WF, G.WS_FLAG
FS, FW, FQ, FH, FO, FC = 0, 2048, 3072, 5120, 7168, 9216
PST = 3104
LB = 98304
LK, LV, LONES = LB, LB + 10*PST, LB + 20*PST
RING = [0, 40960, 81920, 122880]
WSLOT = 40960
SRD_D = 60
S_KX, S_KQ, S_K1 = 58, 59, 80
S_QB = 61
S_FHO, S_HBO = 86, 87
S_ARB, S_AHP, S_LW = 88, 89, 90

V_FLG = 250
def flag_setup(a):
    a(f"v_mov_b32 v{V_FLG}, 0x7ffffff0")
    a(f"v_cmp_eq_u32 s[{T4}:{T4+1}], 0, v0")
    a(f"v_cndmask_b32 v{V_FLG}, v{V_FLG}, 0, s[{T4}:{T4+1}]")

def flag_store(a, sflag, v):
    a(f"v_mov_b32 v{v}, s{S_NONCE}")
    a(f"buffer_store_dword v{v}, v{V_FLG}, s[{SRD_WS}:{SRD_WS+3}], s{sflag} offen sc1", tag='flag')

def poll_issue(a, voff, vval, tag):
    a(f"buffer_load_dword v{vval}, v{voff}, s[{SRD_WS}:{SRD_WS+3}], 0 offen sc1", tag=tag)

def poll_check(a, voff, vval, tag):
    L = uid("pc")
    a.wait_vm(tag)
    keep = list(a.vm)
    a(f"v_cmp_ne_u32 vcc, s{S_NONCE}, v{vval}")
    a("s_nop 4")
    a(f"s_cbranch_vccz {L}_ok")
    if OPT.get('fastpoll', 0):
        vs = [vval, 244, 245]
        ld = lambda v: a(f"buffer_load_dword v{v}, v{voff}, s[{SRD_WS}:{SRD_WS+3}], 0 offen sc1")
        for v in vs:
            ld(v); a("s_sleep 2")
        a.label(L)
        for v in vs:
            a("s_waitcnt vmcnt(2)")
            a(f"v_cmp_ne_u32 vcc, s{S_NONCE}, v{v}")
            a("s_nop 4")
            a(f"s_cbranch_vccz {L}_dr")
            ld(v)
            a("s_sleep 2")
        a(f"s_branch {L}")
        a.label(f"{L}_dr")
    else:
        a.label(L)
        a("s_sleep 1")
        a(f"buffer_load_dword v{vval}, v{voff}, s[{SRD_WS}:{SRD_WS+3}], 0 offen sc1")
        a("s_waitcnt vmcnt(0)")
        a(f"v_cmp_ne_u32 vcc, s{S_NONCE}, v{vval}")
        a("s_nop 4")
        a(f"s_cbranch_vccnz {L}")
    a.label(f"{L}_ok")
    a.vm = keep

def poll_recheck(a, voff, vval):
    L = uid("pr")
    keep = list(a.vm)
    a.label(L)
    a(f"v_cmp_ne_u32 vcc, s{S_NONCE}, v{vval}")
    a("s_nop 4")
    a(f"s_cbranch_vccz {L}_ok")
    a("s_sleep 1")
    a(f"buffer_load_dword v{vval}, v{voff}, s[{SRD_WS}:{SRD_WS+3}], 0 offen sc1")
    a("s_waitcnt vmcnt(0)")
    a(f"s_branch {L}")
    a.label(f"{L}_ok")
    a.vm = keep

def prologue_ids(a):
    a("s_load_dwordx16 s[4:19], s[0:1], 0")
    a("s_load_dwordx8 s[20:27], s[0:1], 64")
    a("v_lshrrev_b32 v2, 6, v0")
    a("v_and_b32 v1, 63, v0")
    a(f"v_readfirstlane_b32 s{S_W}, v2")
    a(f"s_and_b32 s{S_X}, s2, 7")
    a(f"s_lshr_b32 s{S_I}, s2, 3")
    if OPT.get('cpf', 2) >= 2: code_prefetch(a)
    a(f"s_lshr_b32 s{T0}, s{S_X}, 2")
    a(f"s_lshl_b32 s{T0}, s{T0}, 3")
    a(f"s_and_b32 s{T1}, s{S_I}, 7")
    a(f"s_add_u32 s{S_RB}, s{T0}, s{T1}")
    a(f"s_and_b32 s{T0}, s{S_X}, 3")
    a(f"s_lshl_b32 s{T0}, s{T0}, 2")
    a(f"s_lshr_b32 s{T1}, s{S_I}, 3")
    a(f"s_add_u32 s{S_CJ}, s{T0}, s{T1}")

def prologue_rest(a):
    srd(a, SRD_WS, P_WS, G.WS_SIZE)
    flag_setup(a)
    nonce_post(a)
    if OPT.get('cpf', 2) == 1: code_prefetch(a)
    stamp(a, 0, 0)
    if G.STAMPS:
        a("s_lshl_b32 s97, s2, 7")
        a(f"s_add_u32 s97, s97, {G.WS_STAMP + 15*4}")
        a("v_mov_b32 v254, s94")
        a(f"buffer_store_dword v254, off, s[{SRD_WS}:{SRD_WS+3}], s97")
        a.vm.pop()

RX, RG, RT, RO = 160, 168, 176, 186
VS = 128
S_ST, S_RPO, S_RPM = 82, 83, 84

def pre_address(a, lbl, two=False, rows=True):
    t0, t1, t2, t3, t4, t5 = range(RT, RT+6)
    if rows: row_address(a, two)
    repack_address(a, lbl)

def row_address(a, two):
    t0, t1, t2, t3, t4, t5 = range(RT, RT+6)
    srd(a, SRD_D, P_GW, SIZES['GW'])
    a(f"s_lshl_b32 s{T0}, s{S_RB}, 7")
    a(f"s_lshl_b32 s{T1}, s{S_CJ}, 3")
    a(f"s_add_u32 s{T0}, s{T0}, s{T1}")
    a(f"s_add_u32 s{T0}, s{T0}, s{S_W}")
    if two: a(f"s_sub_u32 s{T0}, s{T0}, 4")
    a(f"s_mul_i32 s{T1}, s{T0}, 1280")
    a(f"v_lshlrev_b32 v{RO+1}, 4, v1")
    a(f"v_add_u32 v{RO}, s{T1}, v{RO+1}")
    a(f"v_mov_b32 v{t0}, 0x7ffffff0")
    a(f"v_cmp_gt_u32 s[{T4}:{T4+1}], 16, v1")
    a(f"v_add_u32 v{t1}, 1024, v{RO}")
    a(f"v_cndmask_b32 v{RO+2}, v{t0}, v{t1}, s[{T4}:{T4+1}]")
    a(f"v_add_u32 v{t1}, 1024, v{RO+1}")
    a(f"v_cndmask_b32 v{RO+3}, v{t0}, v{t1}, s[{T4}:{T4+1}]")
    a(f"s_mov_b32 s85, s{T0}")

def repack_address(a, lbl):
    t0, t1, t2, t3, t4, t5 = range(RT, RT+6)
    a(f"s_mul_i32 s{T0}, s{S_I}, 3")
    a(f"s_lshl_b32 s{T1}, s{S_I}, 1")
    a(f"s_add_u32 s{T1}, s{T1}, 10")
    a(f"s_cmp_lt_u32 s{S_I}, 10")
    a(f"s_cselect_b32 s{T0}, s{T0}, s{T1}")
    a(f"s_cselect_b32 s{T1}, 3, 2")
    a(f"s_sub_u32 s{T2}, s{S_W}, 4")
    a(f"s_add_u32 s{S_ST}, s{T0}, s{T2}")
    a(f"s_cmp_lt_u32 s{T2}, s{T1}")
    a(f"s_cselect_b32 s{S_ST}, s{S_ST}, 0x100")
    a(f"s_cselect_b32 s{S_RPO}, 0, 0x7fff0000")
    a(f"s_mul_i32 s{T2}, s{T2}, 5120")
    a(f"s_add_u32 s{T2}, s{T2}, {RPL}")
    a(f"s_cselect_b32 s{S_RPM}, s{T2}, s{T2}") if False else None
    a(f"s_cmp_lt_u32 s{S_ST}, 74")
    a(f"s_cselect_b32 s{S_RPM}, s{T2}, {163840}")
    for n in range(5): a(f"v_mov_b32 v{VS+n}, 0")
    srd(a, SRD_C, P_W2, SIZES['W2'])
    a(f"s_cmp_ge_u32 s{S_ST}, 74")
    a(f"s_cbranch_scc1 {lbl}_go")
    a(f"s_movk_i32 s{T6}, 6554")
    a(f"s_movk_i32 s{T7}, 1280")
    a(f"s_mul_i32 s{T2}, s{S_X}, 160")
    a(f"s_cmp_ge_u32 s{S_ST}, 54")
    a(f"s_cbranch_scc1 {lbl}_wo")
    a(f"s_lshl_b32 s{T3}, s{S_ST}, 5")
    for n in range(5):
        a(f"v_add_u32 v{t0}, {64*n}, v1")
        a(f"v_mul_u32_u24 v{t1}, s{T6}, v{t0}")
        a(f"v_lshrrev_b32 v{t1}, 16, v{t1}")
        a(f"v_mul_u32_u24 v{t2}, 10, v{t1}")
        a(f"v_sub_u32 v{t2}, v{t0}, v{t2}")
        a(f"v_add_u32 v{t1}, s{T3}, v{t1}")
        a(f"v_mul_lo_u32 v{t1}, v{t1}, s{T7}")
        a(f"v_lshl_add_u32 v{t1}, v{t2}, 4, v{t1}")
        a(f"v_add_u32 v{VS+n}, s{T2}, v{t1}")
    a(f"s_branch {lbl}_go")
    a.label(f"{lbl}_wo")
    srd(a, SRD_C, P_WO, SIZES['WO'])
    a(f"s_sub_u32 s{T3}, s{S_ST}, 54")
    a(f"s_lshl_b32 s{T3}, s{T3}, 1")
    for n in range(5):
        a(f"v_add_u32 v{t0}, {64*n}, v1")
        a(f"v_mul_u32_u24 v{t1}, s{T6}, v{t0}")
        a(f"v_lshrrev_b32 v{t1}, 16, v{t1}")
        a(f"v_mul_u32_u24 v{t2}, 10, v{t1}")
        a(f"v_sub_u32 v{t2}, v{t0}, v{t2}")
        a(f"v_lshrrev_b32 v{t3}, 4, v{t1}")
        a(f"v_add_u32 v{t3}, s{T3}, v{t3}")
        a(f"v_and_b32 v{t1}, 15, v{t1}")
        a(f"v_mul_u32_u24 v{t4}, 20, v{t3}")
        a(f"v_add_u32 v{t4}, v{t4}, v{t1}")
        a(f"v_cmp_gt_u32 s[98:99], 32, v{t3}")
        a(f"v_subrev_u32 v{t3}, 32, v{t3}")
        a(f"v_lshlrev_b32 v{t3}, 2, v{t3}")
        a(f"v_bfe_u32 v{t5}, v{t1}, 2, 1")
        a(f"v_lshl_add_u32 v{t3}, v{t5}, 1, v{t3}")
        a(f"v_lshrrev_b32 v{t5}, 3, v{t1}")
        a(f"v_add_u32 v{t3}, v{t3}, v{t5}")
        a(f"v_mul_u32_u24 v{t3}, 20, v{t3}")
        a(f"v_and_b32 v{t1}, 3, v{t1}")
        a(f"v_add3_u32 v{t3}, v{t3}, v{t1}, 16")
        a(f"v_cndmask_b32 v{t1}, v{t3}, v{t4}, s[98:99]")
        a(f"v_mul_lo_u32 v{t1}, v{t1}, s{T7}")
        a(f"v_lshl_add_u32 v{t1}, v{t2}, 4, v{t1}")
        a(f"v_add_u32 v{VS+n}, s{T2}, v{t1}")
    a.label(f"{lbl}_go")

def row_issue2(a):
    a(f"v_add_u32 v{RO}, {4*1280}, v{RO}")
    a(f"v_mov_b32 v{RT}, 0x7ffffff0")
    a(f"v_add_u32 v{RT+1}, 1024, v{RO}")
    a(f"v_cmp_gt_u32 s[100:101], 16, v1")
    a(f"v_cndmask_b32 v{RO+2}, v{RT}, v{RT+1}, s[100:101]")
    a(f"buffer_load_dwordx4 {vr(RX2,4)}, v{RO}, s[{SRD_A}:{SRD_A+3}], 0 offen", tag='pl2')
    a(f"buffer_load_dwordx4 {vr(RX2+4,4)}, v{RO+2}, s[{SRD_A}:{SRD_A+3}], 0 offen", tag='pl2')

RX2 = 192
def pre_issue(a, rows=True):
    if rows:
        a(f"buffer_load_dwordx4 {vr(RX,4)}, v{RO}, s[{SRD_A}:{SRD_A+3}], 0 offen", tag='pl')
        a(f"buffer_load_dwordx4 {vr(RX+4,4)}, v{RO+2}, s[{SRD_A}:{SRD_A+3}], 0 offen", tag='pl')
        a(f"buffer_load_dwordx4 {vr(RG,4)}, v{RO+1}, s[{SRD_D}:{SRD_D+3}], 0 offen", tag='pl')
        a(f"buffer_load_dwordx4 {vr(RG+4,4)}, v{RO+3}, s[{SRD_D}:{SRD_D+3}], 0 offen", tag='pl')
    for n in range(5):
        a(f"s_add_u32 m0, s{S_RPM}, {n*1024}")
        a(f"buffer_load_dwordx4 v{VS+n}, s[{SRD_C}:{SRD_C+3}], s{S_RPO} offen lds", tag='pl')

def pre_thunks(a, RX=RX, tag='pl', VO=RO):
    su, sq, dt, one, t0, t1, t2 = range(RT, RT+7)
    T = []
    I = lambda txt: T.append(lambda: a(txt))
    T.append(lambda: a.wait_vm(tag))
    I(f"v_mov_b32 v{one}, 0x3f803f80")
    I(f"v_mov_b32 v{su}, 0"); I(f"v_mov_b32 v{sq}, 0"); I(f"v_mov_b32 v{dt}, 0")
    for d in range(8):
        I(f"v_dot2c_f32_bf16 v{su}, v{RX+d}, v{one}")
        I(f"v_dot2c_f32_bf16 v{sq}, v{RX+d}, v{RX+d}")
        I(f"v_dot2c_f32_bf16 v{dt}, v{RX+d}, v{RG+d}")
    for r in (8, 4, 2, 1):
        for v in (su, sq, dt):
            I(f"v_add_f32_dpp v{v}, v{v}, v{v} row_ror:{r} row_mask:0xf bank_mask:0xf")
    for op in ("v_permlane16_swap_b32", "v_permlane32_swap_b32"):
        for v, t in ((su, t0), (sq, t1), (dt, t2)): I(f"v_mov_b32 v{t}, v{v}")
        for v, t in ((su, t0), (sq, t1), (dt, t2)): I(f"{op} v{v}, v{t}")
        for v, t in ((su, t0), (sq, t1), (dt, t2)): I(f"v_add_f32 v{v}, v{v}, v{t}")
    I(f"v_mul_f32 v{su}, 0x3acccccd, v{su}")
    I(f"v_mul_f32 v{sq}, 0x3acccccd, v{sq}")
    I(f"v_mul_f32 v{dt}, 0xbfb8aa3b, v{dt}")
    I(f"v_fma_f32 v{sq}, -v{su}, v{su}, v{sq}")
    I(f"v_exp_f32 v{dt}, v{dt}")
    I(f"v_add_f32 v{sq}, 0x3727c5ac, v{sq}")
    I(f"v_add_f32 v{dt}, 1.0, v{dt}")
    I(f"v_rsq_f32 v{t1}, v{sq}")
    I(f"v_rcp_f32 v{dt}, v{dt}")
    I(f"v_mul_f32 v{t0}, v{su}, v{t1}")
    I(f"v_sub_f32 v{t0}, 0, v{t0}")
    I(f"v_mov_b32 v{VO}, 0x7ffffff0")
    I(f"v_cmp_eq_u32 s[100:101], 0, v1")
    I(f"v_cndmask_b32 v{VO}, v{VO}, 0, s[100:101]")
    I(f"s_lshl_b32 s98, s85, 3")
    I(f"s_add_u32 s98, s98, {WS_ST}")
    T.append(lambda: a(f"buffer_store_dwordx2 {vr(t0,2)}, v{VO}, s[{SRD_WS}:{SRD_WS+3}], s98 offen sc1", tag='pst'))
    I(f"s_lshl_b32 s98, s85, 2")
    I(f"s_add_u32 s98, s98, {WS_G}")
    T.append(lambda: a(f"buffer_store_dword v{dt}, v{VO}, s[{SRD_WS}:{SRD_WS+3}], s98 offen sc1", tag='pst'))
    return T

def rowstats_issue(a):
    XB, GW, o0, o1, t0 = 128, 108, 96, 97, 98
    srd(a, SRD_D, P_GW, SIZES['GW'])
    a(f"s_lshl_b32 s{T0}, s{S_RB}, 7")
    a(f"s_lshl_b32 s{T1}, s{S_W}, 4")
    a(f"s_add_u32 s85, s{T0}, s{T1}")
    a(f"v_lshrrev_b32 v{t0}, 4, v1")
    a(f"v_add_u32 v{t0}, s85, v{t0}")
    a(f"s_movk_i32 s{T1}, 1280")
    a(f"v_mul_lo_u32 v{o0}, v{t0}, s{T1}")
    a(f"v_and_b32 v{o1}, 15, v1")
    a(f"v_lshlrev_b32 v{o1}, 4, v{o1}")
    a(f"v_add_u32 v{o0}, v{o0}, v{o1}")
    for i in range(5):
        a(f"buffer_load_dwordx4 {vr(GW+4*i,4)}, v{o1}, s[{SRD_D}:{SRD_D+3}], 0 offen offset:{256*i}", tag='gw')
    for q in range(4):
        a(f"s_movk_i32 s{T2}, {q*4*1280}")
        for i in range(5):
            a(f"buffer_load_dwordx4 {vr(XB+20*q+4*i,4)}, v{o0}, s[{SRD_A}:{SRD_A+3}], s{T2} offen offset:{256*i}", tag=('x', q))

def rowstats_compute(a):
    XB, GW = 128, 108
    su, sq, dt, one, t0, t1, t2 = 98, 99, 100, 101, 102, 103, 104
    NMv, RSv, GV = 106, 107, 105
    a(f"v_mov_b32 v{one}, 0x3f803f80")
    a(f"v_and_b32 v{t2}, 15, v1")
    for q in range(4):
        a.wait_vm(('x', q))
        a(f"v_mov_b32 v{su}, 0"); a(f"v_mov_b32 v{sq}, 0"); a(f"v_mov_b32 v{dt}, 0")
        for d in range(20):
            x = XB + 20*q + d
            a(f"v_dot2c_f32_bf16 v{su}, v{x}, v{one}")
            a(f"v_dot2c_f32_bf16 v{sq}, v{x}, v{x}")
            a(f"v_dot2c_f32_bf16 v{dt}, v{x}, v{GW+d}")
        for k in (8, 4, 2, 1):
            for v in (su, sq, dt):
                a(f"v_add_f32_dpp v{v}, v{v}, v{v} row_ror:{k} row_mask:0xf bank_mask:0xf")
        a(f"v_mul_f32 v{su}, 0x3acccccd, v{su}")
        a(f"v_mul_f32 v{sq}, 0x3acccccd, v{sq}")
        a(f"v_mul_f32 v{dt}, 0xbfb8aa3b, v{dt}")
        a(f"v_fma_f32 v{sq}, -v{su}, v{su}, v{sq}")
        a(f"v_exp_f32 v{dt}, v{dt}")
        a(f"v_max_f32 v{sq}, 0, v{sq}")
        a(f"v_add_f32 v{sq}, 0x3727c5ac, v{sq}")
        a(f"v_add_f32 v{dt}, 1.0, v{dt}")
        a(f"v_rsq_f32 v{t1}, v{sq}")
        a(f"v_rcp_f32 v{dt}, v{dt}")
        a(f"v_mul_f32 v{t0}, v{su}, v{t1}")
        a(f"v_sub_f32 v{t0}, 0, v{t0}")
        a(f"v_cmp_eq_u32 s[{T4}:{T4+1}], {q}, v{t2}")
        a(f"v_cndmask_b32 v{NMv}, v{NMv}, v{t0}, s[{T4}:{T4+1}]")
        a(f"v_cndmask_b32 v{RSv}, v{RSv}, v{t1}, s[{T4}:{T4+1}]")
        a(f"v_cndmask_b32 v{GV}, v{GV}, v{dt}, s[{T4}:{T4+1}]")
    a(f"v_lshrrev_b32 v{t0}, 4, v1")
    a(f"v_lshl_add_u32 v{t0}, v{t2}, 2, v{t0}")
    a(f"v_add_u32 v{t0}, s85, v{t0}")
    a(f"v_mov_b32 v{su}, 0x7ffffff0")
    a(f"v_cmp_gt_u32 s[{T4}:{T4+1}], 4, v{t2}")
    a(f"v_lshlrev_b32 v{t1}, 3, v{t0}")
    a(f"v_cndmask_b32 v{t1}, v{su}, v{t1}, s[{T4}:{T4+1}]")
    a(f"v_lshlrev_b32 v{t0}, 2, v{t0}")
    a(f"v_cndmask_b32 v{t0}, v{su}, v{t0}, s[{T4}:{T4+1}]")
    a(f"s_mov_b32 s{T0}, {WS_ST}")
    a(f"buffer_store_dwordx2 {vr(NMv,2)}, v{t1}, s[{SRD_WS}:{SRD_WS+3}], s{T0} offen sc1", tag='pst')
    a(f"s_mov_b32 s{T0}, {WS_G}")
    a(f"buffer_store_dword v{GV}, v{t0}, s[{SRD_WS}:{SRD_WS+3}], s{T0} offen sc1", tag='pst')

RPL = 147456
def repack_finish(a):
    D, VA, VD = 136, 134, 135
    L = uid("rf")
    a(f"v_mov_b32 v{VD}, 0x7ffffff0")
    a(f"s_cmp_ge_u32 s82, 74")
    a(f"s_cbranch_scc1 {L}")
    a(f"s_mul_i32 s{T0}, s{S_X}, {WF_TILE}")
    a(f"s_mul_i32 s{T1}, s82, 5120")
    a(f"s_add_u32 s{T0}, s{T0}, s{T1}")
    a(f"s_add_u32 s{T0}, s{T0}, {WS_WF}")
    a(f"v_lshlrev_b32 v{VD}, 4, v1")
    a(f"v_add_u32 v{VD}, s{T0}, v{VD}")
    a(f"v_lshrrev_b32 v{VA}, 5, v1")
    a(f"v_bfe_u32 v{D}, v1, 4, 1")
    a(f"v_lshlrev_b32 v{VA}, 4, v{VA}")
    a(f"v_lshl_add_u32 v{VA}, v{D}, 2, v{VA}")
    a(f"v_bfe_u32 v{D}, v1, 2, 2")
    a(f"v_add_u32 v{VA}, v{VA}, v{D}")
    a(f"v_mul_u32_u24 v{VA}, 160, v{VA}")
    a(f"v_and_b32 v{D}, 3, v1")
    a(f"v_lshl_add_u32 v{VA}, v{D}, 3, v{VA}")
    a(f"v_add_u32 v{VA}, s{S_RPM}, v{VA}")
    lg = list(a.lg)
    for F in range(5):
        for rd in range(2):
            a(f"ds_read_b64_tr_b16 {vr(D+4*F+2*rd,2)}, v{VA} offset:{rd*1280 + F*32}")
    a("s_waitcnt lgkmcnt(0)")
    a.lg = lg
    a.label(L)
    for F in range(5):
        a(f"s_movk_i32 s{T1}, {F*1024}")
        a(f"buffer_store_dwordx4 {vr(D+4*F,4)}, v{VD}, s[{SRD_WS}:{SRD_WS+3}], s{T1} offen sc1", tag='pst')

def nonce_issue(a, v):
    a(f"v_mov_b32 v{v+1}, 0")
    a(f"global_load_dword v{v}, v{v+1}, s[{P_DBG}:{P_DBG+1}] sc1", tag='nonce')

def nonce_check(a, v):
    L = uid("ng")
    a.wait_vm('nonce')
    keep = list(a.vm)
    a.label(L)
    a(f"v_readfirstlane_b32 s{S_NONCE}, v{v}")
    a(f"s_cmp_lg_u32 s{S_NONCE}, 0")
    a(f"s_cbranch_scc1 {L}_ok")
    a("s_sleep 2")
    a(f"global_load_dword v{v}, v{v+1}, s[{P_DBG}:{P_DBG+1}] sc1")
    a("s_waitcnt vmcnt(0)")
    a(f"s_branch {L}")
    a.label(f"{L}_ok")
    a.vm = keep

def pre_flags(a, v, stats=True):
    if stats:
        a(f"s_lshl_b32 s{T0}, s{S_RB}, 7")
        a(f"s_add_u32 s{T0}, s{T0}, {WS_FLAG + FS}")
        flag_store(a, T0, v)
    a(f"s_lshl_b32 s{T0}, s{S_X}, 7")
    a(f"s_lshl_b32 s{T1}, s{S_I}, 2")
    a(f"s_add_u32 s{T0}, s{T0}, s{T1}")
    a(f"s_add_u32 s{T0}, s{T0}, {WS_FLAG + FW}")
    flag_store(a, T0, v)

CD = 16
def colsum_issue(a):
    srd(a, SRD_B, P_W1, SIZES['W1'])
    srd(a, SRD_C, P_B1, SIZES['B1']) if False else None
    t0, t1, VO = 2, 3, 5
    a(f"v_lshrrev_b32 v{t0}, 4, v0")
    a(f"s_movk_i32 s{T0}, 3456")
    a(f"v_mul_lo_u32 v{t0}, v{t0}, s{T0}")
    a(f"v_and_b32 v{t1}, 15, v0")
    a(f"v_lshl_add_u32 v{t0}, v{t1}, 4, v{t0}")
    a(f"s_lshl_b32 s{T1}, s{S_RB}, 8")
    a(f"v_add_u32 v{VO}, s{T1}, v{t0}")
    a(f"s_cmp_lt_u32 s{S_RB}, 14")
    a(f"s_cselect_b32 s{T3}, 0, 0x7fff0000")
    for p in range(20):
        a(f"s_add_u32 s{T2}, s{T3}, {p*32*3456}")
        a(f"buffer_load_dwordx4 {vr(CD+4*p,4)}, v{VO}, s[{SRD_B}:{SRD_B+3}], s{T2} offen", tag=('cs', p))

def colsum_compute(a, lbl):
    t0, t1, t2 = 2, 3, 4
    ACC, LO, HI = 8, 6, 7
    srd(a, SRD_B, P_B1, SIZES['B1'])
    a(f"s_lshl_b32 s{T1}, s{S_RB}, 8")
    a(f"v_lshlrev_b32 v{t2}, 1, v0")
    a(f"v_add_u32 v{t2}, s{T1}, v{t2}")
    a(f"buffer_load_ushort v{t2}, v{t2}, s[{SRD_B}:{SRD_B+3}], 0 offen", tag='b1')
    a(f"v_mov_b32 v{LO}, 0x00003f80")
    a(f"v_mov_b32 v{HI}, 0x3f800000")
    for e in range(8): a(f"v_mov_b32 v{ACC+e}, 0")
    for p in range(20):
        a.wait_vm(('cs', p))
        for d in range(4):
            a(f"v_dot2c_f32_bf16 v{ACC+2*d}, v{CD+4*p+d}, v{LO}")
            a(f"v_dot2c_f32_bf16 v{ACC+2*d+1}, v{CD+4*p+d}, v{HI}")
    a(f"v_lshrrev_b32 v{t0}, 4, v0")
    a(f"v_lshlrev_b32 v{t0}, 9, v{t0}")
    a(f"v_and_b32 v{t1}, 15, v0")
    a(f"v_lshl_add_u32 v{t0}, v{t1}, 5, v{t0}")
    a(f"ds_write_b128 v{t0}, {vr(ACC,4)}")
    a(f"ds_write_b128 v{t0}, {vr(ACC+4,4)} offset:16")
    a("s_waitcnt lgkmcnt(0)")
    a("s_barrier")
    a(f"v_and_b32 v{t0}, 127, v0")
    a(f"v_lshlrev_b32 v{t0}, 2, v{t0}")
    for g in range(32):
        a(f"ds_read_b32 v{CD+g}, v{t0} offset:{g*512}")
    a("s_waitcnt lgkmcnt(0)")
    for g in range(0, 32, 2): a(f"v_add_f32 v{CD+g}, v{CD+g}, v{CD+g+1}")
    for g in range(2, 32, 2): a(f"v_add_f32 v{CD}, v{CD}, v{CD+g}")
    a.wait_vm('b1')
    a(f"v_lshlrev_b32 v{t2}, 16, v{t2}")
    a(f"s_lshl_b32 s{T1}, s{S_RB}, 9")
    a(f"v_add_u32 v{t0}, s{T1}, v{t0}")
    a(f"v_mov_b32 v{t1}, 0x7ffffff0")
    a(f"v_mov_b32 v{LO}, 128")
    a(f"v_cmp_gt_u32 s[{T4}:{T4+1}], v{LO}, v0")
    a(f"v_cndmask_b32 v{t0}, v{t1}, v{t0}, s[{T4}:{T4+1}]")
    a(f"s_mov_b32 s{T0}, 0x7fff0000")
    a(f"s_cmp_lt_u32 s{S_RB}, 14")
    a(f"s_cselect_b32 s{T2}, {WS_CS}, s{T0}")
    a(f"s_cselect_b32 s{T3}, {WS_B1}, s{T0}")
    a(f"buffer_store_dword v{CD}, v{t0}, s[{SRD_WS}:{SRD_WS+3}], s{T2} offen sc1", tag='pst')
    a(f"buffer_store_dword v{t2}, v{t0}, s[{SRD_WS}:{SRD_WS+3}], s{T3} offen sc1", tag='pst')

S_FRB, S_FCJ = 73, 74
S_WM, S_WG = 75, 76

def final_coords(a):
    a(f"s_lshr_b32 s{T0}, s{S_X}, 1")
    a(f"s_lshl_b32 s{T0}, s{T0}, 3")
    a(f"s_and_b32 s{T1}, s{S_I}, 7")
    a(f"s_add_u32 s{S_FRB}, s{T0}, s{T1}")
    a(f"s_and_b32 s{T0}, s{S_X}, 1")
    a(f"s_lshl_b32 s{T0}, s{T0}, 2")
    a(f"s_lshr_b32 s{T1}, s{S_I}, 3")
    a(f"s_add_u32 s{S_FCJ}, s{T0}, s{T1}")
    a(f"s_mul_i32 s{S_WM}, s{S_W}, 5120")
    a(f"s_mul_i32 s{T0}, s{S_FCJ}, {WF_TILE}")
    a(f"s_add_u32 s{T0}, s{T0}, s{S_WM}")
    a(f"s_add_u32 s{S_WG}, s{T0}, {WS_WF}")

def dma_wf(a, g, vw):
    S_KW = 77
    a(f"s_add_u32 m0, s{S_WM}, {RING[g % 4]}")
    a(f"s_add_u32 s{S_KW}, s{S_WG}, {0 if OPT.get('hotfw') else g*WSLOT}")
    if g == 9:
        a(f"s_cmp_ge_u32 s{S_W}, 2")
        a(f"s_cselect_b32 s{S_KW}, 0x7fff0000, s{S_KW}")
    for n in range(4):
        a(f"buffer_load_dwordx4 v{vw}, s[{SRD_WS}:{SRD_WS+3}], s{S_KW} offen offset:{n*1024} sc1 lds", tag=('W', g))
    a(f"s_add_u32 m0, m0, 4096")
    a(f"s_add_u32 s{S_KW}, s{S_KW}, 4096")
    a(f"buffer_load_dwordx4 v{vw}, s[{SRD_WS}:{SRD_WS+3}], s{S_KW} offen sc1 lds", tag=('W', g))

SL2 = 32768
def attn_coords(a):
    a(f"s_lshl_b32 s{T0}, s{S_X}, 1")
    a(f"s_and_b32 s{T1}, s{S_I}, 1")
    a(f"s_add_u32 s{S_AHP}, s{T0}, s{T1}")
    a(f"s_lshr_b32 s{S_ARB}, s{S_I}, 1")
    a(f"s_lshr_b32 s78, s{S_W}, 2")
    a(f"s_and_b32 s79, s{S_W}, 3")

def fq_poll_offsets(a, vo, vt):
    a(f"v_lshrrev_b32 v{vo}, 4, v1")
    a(f"s_sub_u32 s{T0}, s{S_ARB}, 2")
    a(f"v_add_u32 v{vo}, s{T0}, v{vo}")
    a(f"v_and_b32 v{vt}, 15, v1")
    a(f"v_cmp_le_i32 s[{T4}:{T4+1}], 0, v{vo}")
    a(f"v_cmp_gt_u32 s[{T2}:{T2+1}], 15, v{vt}")
    a(f"s_and_b64 s[{T4}:{T4+1}], s[{T4}:{T4+1}], s[{T2}:{T2+1}]")
    a(f"s_mov_b32 s{T2}, -1")
    a(f"s_mov_b32 s{T2+1}, 0xffff")
    a(f"s_and_b64 s[{T4}:{T4+1}], s[{T4}:{T4+1}], s[{T2}:{T2+1}]")
    a(f"v_lshlrev_b32 v{vo}, 7, v{vo}")
    a(f"v_lshl_add_u32 v{vo}, v{vt}, 2, v{vo}")
    a(f"s_lshl_b32 s{T0}, s{S_ARB}, 7")
    a(f"v_mov_b32 v{vt}, s{T0}")
    a(f"v_cndmask_b32 v{vo}, v{vt}, v{vo}, s[{T4}:{T4+1}]")
    a(f"v_add_u32 v{vo}, {WS_FLAG + FQ}, v{vo}")

def attn_q_loads(a, t0, t1, t2, t3, AQ0=20, AQ1=24):
    a(f"s_lshl_b32 s{T0}, s{S_ARB}, 2")
    a(f"s_add_u32 s{S_QB}, s{T0}, s79")
    a(f"v_and_b32 v{t0}, 31, v1")
    a(f"v_lshrrev_b32 v{t1}, 5, v1")
    a(f"s_lshl_b32 s{T1}, s{S_QB}, 8")
    a(f"v_lshlrev_b32 v{t2}, 3, v{t0}")
    a(f"v_add_u32 v{t2}, s{T1}, v{t2}")
    a(f"v_lshl_add_u32 v{t3}, v{t1}, 15, v{t2}")
    a(f"s_lshl_b32 s{T2}, s{S_AHP}, 1")
    a(f"s_add_u32 s{T2}, s{T2}, s78")
    a(f"s_mul_i32 s{T2}, s{T2}, {5*16384}")
    a(f"s_add_u32 s{T1}, s{T2}, {WS_QKV}")
    a(f"buffer_load_dwordx2 {vr(AQ0,2)}, v{t3}, s[{SRD_WS}:{SRD_WS+3}], s{T1} offen sc1", tag='q')
    a(f"s_add_u32 s{T1}, s{T1}, 16384")
    a(f"buffer_load_dwordx2 {vr(AQ0+2,2)}, v{t3}, s[{SRD_WS}:{SRD_WS+3}], s{T1} offen sc1", tag='q')
    a(f"s_add_u32 s{T1}, s{T1}, {3*16384}")
    a(f"buffer_load_dwordx2 {vr(AQ1,2)}, v{t2}, s[{SRD_WS}:{SRD_WS+3}], s{T1} offen sc1", tag='q')

def fw_poll_offsets(a, vo):
    a(f"v_and_b32 v{vo}, 31, v1")
    a(f"v_lshlrev_b32 v{vo}, 2, v{vo}")
    a(f"s_lshl_b32 s{T1}, s{S_FCJ}, 7")
    a(f"s_add_u32 s{T1}, s{T1}, {WS_FLAG + FW}")
    a(f"v_add_u32 v{vo}, s{T1}, v{vo}")

def wf_first_slots(a, vw):
    a(f"v_lshlrev_b32 v{vw}, 4, v1")
    a(f"s_mul_i32 s{T0}, s{S_W}, 10240")
    a(f"s_mul_i32 s{T1}, s{S_FCJ}, {WF_TILE}")
    a(f"s_add_u32 s{T1}, s{T1}, s{T0}")
    a(f"s_add_u32 s{T1}, s{T1}, {WS_WF}")
    for g in range(2):
        for part in range(3):
            a(f"s_add_u32 m0, s{T0}, {RING[g] + part*4096}")
            a(f"s_add_u32 s{T2}, s{T1}, {g*WSLOT + part*4096}")
            for n in range(4 if part < 2 else 2):
                a(f"buffer_load_dwordx4 v{vw}, s[{SRD_WS}:{SRD_WS+3}], s{T2} offen offset:{n*1024} sc1 lds", tag=('W', g))

QL = 81920
def attn_stage_q(a, vd):
    a(f"v_lshlrev_b32 v{vd}, 4, v1")
    a(f"s_mul_i32 s{T2}, s{S_AHP}, {10*16384}")
    a(f"s_lshl_b32 s{T0}, s{S_ARB}, 10")
    a(f"s_add_u32 s{T2}, s{T2}, s{T0}")
    a(f"s_add_u32 s{T2}, s{T2}, {WS_QKV}")
    for k in range(3):
        a(f"s_add_u32 s{T0}, s{S_W}, {4*k}")
        a(f"s_lshl_b32 s{T1}, s{T0}, 14")
        a(f"s_add_u32 s{T1}, s{T1}, s{T2}")
        a(f"s_lshl_b32 s{T3}, s{T0}, 10")
        a(f"s_add_u32 s{T3}, s{T3}, {QL}")
        if k == 2:
            a(f"s_cmp_lt_u32 s{T0}, 10")
            a(f"s_cselect_b32 s{T1}, s{T1}, 0x7fff0000")
        a(f"s_mov_b32 m0, s{T3}")
        a(f"buffer_load_dwordx4 v{vd}, s[{SRD_WS}:{SRD_WS+3}], s{T1} offen sc1 lds", tag='q')

def touch_wf(a, v0_, v1_):
    a(f"s_and_b32 s{T0}, s{S_I}, 7")
    a(f"s_mul_i32 s{T0}, s{T0}, {370*128}")
    a(f"s_mul_i32 s{T1}, s{S_FCJ}, {WF_TILE}")
    a(f"s_add_u32 s{T0}, s{T0}, s{T1}")
    a(f"s_add_u32 s{T0}, s{T0}, {WS_WF}")
    a(f"v_lshlrev_b32 v{v0_}, 7, v0")
    a(f"v_mov_b32 v{v1_}, 370")
    a(f"v_cmp_gt_u32 s[{T4}:{T4+1}], v{v1_}, v0")
    a(f"v_mov_b32 v{v1_}, 0x7ffffff0")
    a(f"v_cndmask_b32 v{v0_}, v{v1_}, v{v0_}, s[{T4}:{T4+1}]")
    a(f"buffer_load_dword v251, v{v0_}, s[{SRD_WS}:{SRD_WS+3}], s{T0} offen sc1", tag='touch')

def touch_h(a, v0_, v1_):
    a(f"s_lshl_b32 s{T0}, s{S_FRB}, 1")
    a(f"s_mul_i32 s{T0}, s{T0}, {108*1024}")
    a(f"s_lshr_b32 s{T1}, s{S_I}, 3")
    a(f"s_mul_i32 s{T1}, s{T1}, {432*128}")
    a(f"s_add_u32 s{T0}, s{T0}, s{T1}")
    a(f"s_add_u32 s{T0}, s{T0}, {WS_H}")
    a(f"v_lshlrev_b32 v{v0_}, 7, v0")
    a(f"v_mov_b32 v{v1_}, 432")
    a(f"v_cmp_gt_u32 s[{T4}:{T4+1}], v{v1_}, v0")
    a(f"v_mov_b32 v{v1_}, 0x7ffffff0")
    a(f"v_cndmask_b32 v{v0_}, v{v1_}, v{v0_}, s[{T4}:{T4+1}]")
    a(f"buffer_load_dword v251, v{v0_}, s[{SRD_WS}:{SRD_WS+3}], s{T0} offen sc1", tag='touch')

def attn_stage_kv(a, t0, t1, t2, vd, parts=(0, 1)):
    a(f"s_sub_u32 s{T0}, s{S_ARB}, 2")
    a(f"s_lshl_b32 s{T0}, s{T0}, 7")
    a(f"s_mul_i32 s{T1}, s{S_W}, 96")
    a(f"s_add_u32 s{T0}, s{T0}, s{T1}")
    a(f"v_lshlrev_b32 v{t0}, 1, v1")
    a(f"v_add_u32 v{t0}, s{T0}, v{t0}")
    a(f"v_lshlrev_b32 v{t1}, 3, v{t0}")
    a(f"v_mov_b32 v{t2}, 0x7ffffff0")
    a(f"v_cmp_le_i32 s[{T4}:{T4+1}], 0, v{t0}")
    a(f"v_cndmask_b32 v{vd}, v{t2}, v{t1}, s[{T4}:{T4+1}]")
    a(f"s_mul_i32 s{T2}, s{S_AHP}, {10*16384}")
    a(f"s_add_u32 s{T2}, s{T2}, {WS_QKV + 160*16384}")
    a(f"s_mul_i32 s{T3}, s{S_W}, 768")
    a("s_mov_b32 exec_hi, 0xffff")
    for ty in parts:
        for p in range(10):
            a(f"s_add_u32 m0, s{T3}, {(LK if ty == 0 else LV) + p*PST}")
            a(f"s_add_u32 s{T6}, s{T2}, {(ty*160 + p)*16384}")
            a(f"buffer_load_dwordx4 v{vd}, s[{SRD_WS}:{SRD_WS+3}], s{T6} offen sc1 lds", tag=('kv', ty))
    a("s_mov_b32 exec_hi, -1")

def stage1g(a, lbl):
    SRD_E, S_M = 64, 68
    VXD, VWD, VW2 = 2, 6, 10
    VXF, VWF = 14, 22
    t0, t1, t2, t3 = 26, 27, 28, 29
    VP, VPV = 30, 31
    FB = [32, 48]
    ACC = 64
    CSR, B1R, ST, TD = 128, 160, 192, 196
    S_FQ, S_FH, S_ACT, S_HB = 69, 70, 71, 72
    a(f"s_and_b32 s{S_LW}, s{S_W}, 3")
    a(f"s_cmp_ge_u32 s{S_CJ}, 15")
    a(f"s_cbranch_scc1 {lbl}_idle")
    a(f"s_lshl_b32 s{T0}, s{S_RB}, 7")
    a(f"s_lshr_b32 s{T1}, s{S_LW}, 1")
    a(f"s_lshl_b32 s{T1}, s{T1}, 6")
    a(f"s_add_u32 s{T0}, s{T0}, s{T1}")
    a(f"s_and_b32 s{T1}, s{S_LW}, 1")
    a(f"s_add_u32 s{T0}, s{T0}, s{T1}")
    a(f"v_lshrrev_b32 v{t0}, 3, v1")
    a(f"v_lshlrev_b32 v{t0}, 1, v{t0}")
    a(f"v_add_u32 v{t0}, s{T0}, v{t0}")
    a(f"s_movk_i32 s{T2}, 1280")
    a(f"v_mul_lo_u32 v{t0}, v{t0}, s{T2}")
    a(f"v_lshrrev_b32 v{t1}, 4, v1")
    a(f"v_and_b32 v{t2}, 7, v1")
    a(f"v_xor_b32 v{t2}, v{t2}, v{t1}")
    a(f"v_xor_b32 v{t3}, 4, v{t2}")
    for i in range(4):
        a(f"v_lshl_add_u32 v{VXD+i}, v{t2 if i % 2 == 0 else t3}, 4, v{t0}")
        if i: a(f"v_add_u32 v{VXD+i}, {i*(16*1280-1024)}, v{VXD+i}")
    a(f"s_lshl_b32 s{T0}, s{S_LW}, 4")
    a(f"v_lshrrev_b32 v{t0}, 4, v1")
    a(f"v_add_u32 v{t1}, s{T0}, v{t0}")
    a(f"v_bfe_u32 v{t2}, v1, 2, 2")
    a(f"v_xor_b32 v{t2}, v{t2}, v{t0}")
    a(f"v_and_b32 v{t3}, 3, v1")
    a(f"v_lshl_add_u32 v{t2}, v{t2}, 2, v{t3}")
    a(f"v_lshlrev_b32 v{t2}, 4, v{t2}")
    a(f"s_lshl_b32 s{T0}, s{S_CJ}, 8")
    a(f"v_add_u32 v{t2}, s{T0}, v{t2}")
    def w_offsets(vd, pitch):
        a(f"s_movk_i32 s{T2}, {pitch}")
        a(f"v_mul_lo_u32 v{t3}, v{t1}, s{T2}")
        a(f"v_add_u32 v{vd}, v{t3}, v{t2}")
        for i in range(1, 4): a(f"v_add_u32 v{vd+i}, {i*(4*pitch-1024)}, v{vd}")
    w_offsets(VWD, 3840)
    w_offsets(VW2, 3456)
    a(f"s_lshl_b32 s{S_M}, s{S_LW}, 12")
    if OPT.get('rot', 1):
        a(f"s_lshr_b32 s{T0}, s{S_I}, 3")
        a(f"s_mul_i32 s{T0}, s{T0}, 10")
        a(f"s_and_b32 s{T1}, s{S_I}, 7")
        a(f"s_mul_i32 s{T1}, s{T1}, 5")
        a(f"s_add_u32 s{T0}, s{T0}, s{T1}")
        a(f"s_lshr_b32 s{T0}, s{T0}, 2")
        a(f"s_sub_u32 s{T1}, s{T0}, 10")
        a(f"s_cmp_ge_u32 s{T0}, 10")
        a(f"s_cselect_b32 s{T0}, s{T1}, s{T0}")
    else:
        a(f"s_mov_b32 s{T0}, 0")
    def addmod(dst, src, k):
        a(f"s_add_u32 s{dst}, s{src}, {k}")
        a(f"s_sub_u32 s{T2}, s{dst}, 10")
        a(f"s_cmp_ge_u32 s{dst}, 10")
        a(f"s_cselect_b32 s{dst}, s{T2}, s{dst}")
    REUSE = OPT.get('xreuse', 1)
    if REUSE:
        addmod(T1, T0, 9)
        addmod(T3, T0, 6)
        a(f"s_cmp_ge_u32 s{S_W}, 4")
        a(f"s_cselect_b32 s{T1}, s{T3}, s{T1}")
        a(f"s_mul_i32 s{S_K1}, s{T1}, {64*3456}")
        a(f"s_lshl_b32 s{S_KX}, s{T0}, 7")
        a(f"s_mul_i32 s{S_KQ}, s{T0}, {64*3840}")
    else:
        addmod(T1, T0, 3)
        a(f"s_cmp_ge_u32 s{S_W}, 4")
        a(f"s_cselect_b32 s{T0}, s{T0}, s{T1}")
        a(f"s_lshl_b32 s{S_KX}, s{T0}, 7")
        a(f"s_mul_i32 s{S_KQ}, s{T0}, {64*3840}")
        a(f"s_mul_i32 s{S_K1}, s{T0}, {64*3456}")
    def adv(sreg, step, wrap):
        if OPT.get('hot'): return
        a(f"s_add_u32 s{sreg}, s{sreg}, {step}")
        a(f"s_cmp_eq_u32 s{sreg}, {wrap}")
        a(f"s_cselect_b32 s{sreg}, 0, s{sreg}")
    first = {'x': True, 'q': True, '1': True}
    slot = lambda tau: (tau + 3) % 4
    def dma_list(tau):
        out = []
        if OPT.get('g_nodma') and tau >= 4: return out
        if OPT.get('nodma1') and tau >= 13: return out
        def mk(kind, i):
            def f():
                if kind == 'x': vd, sr, sk, off, step, wrap = VXD, SRD_A, S_KX, 0, 128, 1280
                elif kind == 'q': vd, sr, sk, off, step, wrap = VWD, SRD_B, S_KQ, 16384, 64*3840, 640*3840
                else: vd, sr, sk, off, step, wrap = VW2, SRD_E, S_K1, 16384, 64*3456, 640*3456
                if i == 0:
                    a(f"s_add_u32 m0, s{S_M}, {slot(tau)*SL2 + off}")
                    if not first[kind] and not (OPT.get('hot1') and tau >= 10) and not (OPT.get('hotx') and kind == 'x' and tau >= 10) and not (OPT.get('hotw') and kind == '1'): adv(sk, step, wrap)
                    first[kind] = False
                a(f"buffer_load_dwordx4 v{vd+i}, s[{sr}:{sr+3}], s{sk} offen offset:{i*1024} lds", tag=('B', tau))
            return f
        if not (REUSE and 10 <= tau <= 13):
            for i in range(4): out.append(mk('x', i))
        for i in range(4): out.append(mk('q' if tau < 10 else '1', i))
        return out
    def dma_block(tau):
        for f in dma_list(tau): f()
    def frag_bases():
        a(f"s_and_b32 s{T0}, s{S_LW}, 1")
        a(f"s_lshl_b32 s{T0}, s{T0}, 13")
        a(f"v_and_b32 v{t0}, 31, v1")
        a(f"v_lshrrev_b32 v{t1}, 5, v1")
        a(f"v_bfe_u32 v{t2}, v1, 1, 3")
        a(f"v_lshlrev_b32 v{t0}, 7, v{t0}")
        a(f"v_add_u32 v{t0}, s{T0}, v{t0}")
        for s_ in range(4):
            a(f"v_or_b32 v{t3}, {2*s_}, v{t1}")
            a(f"v_xor_b32 v{t3}, v{t3}, v{t2}")
            a(f"v_lshl_add_u32 v{VXF+s_}, v{t3}, 4, v{t0}")
            a(f"v_add_u32 v{VXF+4+s_}, {2*SL2}, v{VXF+s_}")
        a(f"v_bfe_u32 v{t0}, v1, 2, 2")
        a(f"v_lshl_add_u32 v{t1}, v{t1}, 3, v{t0}")
        a(f"v_lshlrev_b32 v{t1}, 8, v{t1}")
        a(f"v_bfe_u32 v{t2}, v1, 4, 1")
        a(f"v_lshl_add_u32 v{t1}, v{t2}, 5, v{t1}")
        a(f"v_and_b32 v{t2}, 3, v1")
        a(f"v_lshl_add_u32 v{t1}, v{t2}, 3, v{t1}")
        a(f"s_and_b32 s{T0}, s{S_LW}, 2")
        for ft in range(2):
            a(f"s_or_b32 s{T1}, s{T0}, {ft}")
            a(f"v_xor_b32 v{t2}, s{T1}, v{t0}")
            a(f"v_lshl_add_u32 v{VWF+ft}, v{t2}, 6, v{t1}")
            a(f"v_add_u32 v{VWF+2+ft}, {2*SL2}, v{VWF+ft}")
    def rd_b(st, tau, u, tt):
        sl = slot(tau)
        a(f"ds_read_b128 {vr(FB[st]+4*tt,4)}, v{VXF + u + (4 if sl >= 2 else 0)} offset:{(SL2 if sl & 1 else 0) + tt*4096}", tag=('f', tau, u, 'b', tt))
    def rd_a(st, tau, u, F, rd):
        sl = slot(tau)
        a(f"ds_read_b64_tr_b16 {vr(FB[st]+8+4*F+2*rd,2)}, v{VWF + F + (2 if sl >= 2 else 0)} offset:{(SL2 if sl & 1 else 0) + 16384 + u*4096 + rd*1024}", tag=('f', tau, u, 'a', F))
    def reads(st, tau, u):
        return [lambda: rd_b(st, tau, u, 0), lambda: rd_a(st, tau, u, 0, 0), lambda: rd_a(st, tau, u, 0, 1),
                lambda: rd_b(st, tau, u, 1), lambda: rd_a(st, tau, u, 1, 0), lambda: rd_a(st, tau, u, 1, 1)]
    def compute(t0_, hook_bar, hook_step):
        for b in range(10):
            tau = t0_ + b
            for u in range(4):
                s_ = 4*b + u; st = s_ & 1
                last = (b == 9 and u == 3)
                side = []
                if u == 3:
                    a("s_waitcnt lgkmcnt(0)")
                    hook_bar(tau)
                    a("s_barrier")
                    side = hook_step(tau, 'bar') or []
                rs = [] if (last or OPT.get('x_noreads')) else reads(st ^ 1, *((tau, u + 1) if u < 3 else (tau + 1, 0)))
                plan = {-1: rs[0:2], 0: rs[2:5], 1: rs[5:6]}
                for r in plan[-1]: r()
                for k, (tt, F) in enumerate([(0, 0), (1, 0), (0, 1), (1, 1)]):
                    a.wait_lg([('f', tau, u, 'b', tt), ('f', tau, u, 'a', F)])
                    d = vr(ACC+16*(2*tt+F), 16)
                    if not OPT.get('x_nomfma'):
                        a(f"v_mfma_f32_32x32x16_bf16 {d}, {vr(FB[st]+8+4*F,4)}, {vr(FB[st]+4*tt,4)}, {'0' if s_ == 0 else d}")
                    for r in plan.get(k, []): r()
                    for _ in range(2):
                        if side: side.pop(0)()
                for f in side: f()
                hook_step(tau, u)
    a("s_waitcnt lgkmcnt(0)")
    srd(a, SRD_A, P_AX, SIZES['AX'])
    srd(a, SRD_B, P_WQKV, SIZES['WQKV'])
    NI = OPT.get('init', 2)
    a(f"s_cmp_lt_u32 s{S_W}, 4")
    a(f"s_cbranch_scc1 {lbl}_nodma")
    for tau in range(NI): dma_block(tau)
    g1_vm = list(a.vm)
    a.label(f"{lbl}_nodma")
    a.vm = []
    srd(a, SRD_E, P_W1, SIZES['W1'])
    prologue_rest(a)
    attn_coords(a)
    final_coords(a)
    a(f"s_lshl_b32 s{T0}, s{S_RB}, 7")
    a(f"s_lshl_b32 s{T1}, s{S_CJ}, 2")
    a(f"s_add_u32 s{T0}, s{T0}, s{T1}")
    a(f"s_add_u32 s{S_FQ}, s{T0}, {WS_FLAG + FQ}")
    a(f"s_add_u32 s{S_FH}, s{T0}, {WS_FLAG + FH}")
    a(f"s_cmp_lt_u32 s{S_CJ}, 14")
    a(f"s_cselect_b32 s{S_FHO}, s{S_FH}, 0x7fff0000")
    a(f"s_cmp_lt_u32 s{S_W}, 4")
    a(f"s_cbranch_scc1 {lbl}_g0")
    a.vm = list(g1_vm)
    if OPT.get('lprio', 1): a(f"s_setprio {OPT.get('lprio', 1)}")
    mark4(a, first=True)
    pre_address(a, lbl + "_pa", rows=False)
    frag_bases()
    a.wait_vm(('B', 0))
    mark4(a)
    a("s_barrier")
    for tau in range(NI, 4): dma_block(tau)
    for tau in range(0, 9):
        a.wait_vm(('B', tau + 1))
        if tau == 8: a.wait_vm('pst')
        a("s_barrier")
        dma_block(tau + 4)
        if tau == 0: pre_issue(a, rows=False)
        if tau == 1 and OPT.get('pfw1', 0):
            a(f"s_and_b32 s{T0}, s{S_I}, 7")
            a(f"s_mul_i32 s{T0}, s{T0}, 80")
            a(f"s_mul_i32 s{T1}, s{S_LW}, 20")
            a(f"s_add_u32 s{T0}, s{T0}, s{T1}")
            a(f"v_lshrrev_b32 v{t0}, 1, v1")
            a(f"v_add_u32 v{t0}, s{T0}, v{t0}")
            a(f"s_movk_i32 s{T1}, 3456")
            a(f"v_mul_lo_u32 v{t0}, v{t0}, s{T1}")
            a(f"v_and_b32 v{t1}, 1, v1")
            a(f"v_lshl_add_u32 v{t0}, v{t1}, 7, v{t0}")
            a(f"s_lshl_b32 s{T0}, s{S_CJ}, 8")
            a(f"v_add_u32 v{t0}, s{T0}, v{t0}")
            a(f"v_mov_b32 v{t1}, 0x7ffffff0")
            a(f"v_cmp_gt_u32 s[{T4}:{T4+1}], 40, v1")
            a(f"v_cndmask_b32 v{t0}, v{t1}, v{t0}, s[{T4}:{T4+1}]")
            a(f"buffer_load_dword v251, v{t0}, s[{SRD_E}:{SRD_E+3}], 0 offen", tag='touch')
        if tau == OPT.get('trp', 5):
            a.wait_vm('pl')
            repack_finish(a)
        if tau == 7: nonce_issue(a, 252)
    nonce_check(a, 252)
    a.wait_vm(('B', 10))
    a("s_barrier")
    if OPT.get('lprio', 1): a(f"s_setprio {OPT.get('cprio', 3)}")
    mark4(a)
    for r in reads(0, 10, 0): r()
    def g1_bar(tau):
        if tau in (10, 11): a.wait_vm(('B', tau + 1))
    def g1_step(tau, u):
        return None
    compute(10, g1_bar, g1_step)
    mark4(a)
    C0, C1, VY, ONE = 2, 3, 4, 6
    TU, TE = 32, 40
    a(f"v_mov_b32 v{ONE}, 1.0")
    a(f"v_mov_b32 v{C0}, 0xc0135761")
    a(f"v_mov_b32 v{C1}, 0xbdd2d3e8")
    a(f"v_lshlrev_b32 v{VY}, 4, v1")
    a(f"s_lshl_b32 s{T0}, s{S_CJ}, 3")
    a(f"s_lshr_b32 s{T1}, s{S_LW}, 1")
    a(f"s_lshl_b32 s{T1}, s{T1}, 2")
    a(f"s_add_u32 s{S_ACT}, s{T0}, s{T1}")
    a(f"s_lshl_b32 s{T0}, s{S_RB}, 2")
    a(f"s_and_b32 s{T1}, s{S_LW}, 1")
    a(f"s_lshl_b32 s{T1}, s{T1}, 1")
    a(f"s_add_u32 s{T0}, s{T0}, s{T1}")
    a(f"s_mul_i32 s{T0}, s{T0}, 108")
    a(f"s_add_u32 s{T0}, s{T0}, s{S_ACT}")
    a(f"s_lshl_b32 s{T0}, s{T0}, 10")
    a(f"s_add_u32 s{S_HB}, s{T0}, {WS_H}")
    a(f"s_cmp_lt_u32 s{S_ACT}, 108")
    a(f"s_cselect_b32 s{S_HB}, s{S_HB}, 0x7fff0000")
    a(f"v_and_b32 v{t0}, 31, v1")
    a(f"v_lshlrev_b32 v{t0}, 4, v{t0}")
    a(f"s_and_b32 s{T0}, s{S_LW}, 1")
    a(f"s_lshl_b32 s{T0}, s{T0}, 9")
    a(f"v_add_u32 v{t0}, s{T0}, v{t0}")
    a(f"ds_read_b128 {vr(ST,4)}, v{t0}")
    a(f"v_lshrrev_b32 v{t0}, 5, v1")
    a(f"v_lshlrev_b32 v{t0}, 4, v{t0}")
    a(f"s_lshr_b32 s{T0}, s{S_LW}, 1")
    a(f"s_lshl_b32 s{T0}, s{T0}, 8")
    a(f"v_add_u32 v{t0}, s{T0}, v{t0}")
    for ft in range(2):
        for j in range(4):
            a(f"ds_read_b128 {vr(CSR+16*ft+4*j,4)}, v{t0} offset:{1024 + 128*ft + 32*j}")
            a(f"ds_read_b128 {vr(B1R+16*ft+4*j,4)}, v{t0} offset:{1536 + 128*ft + 32*j}")
    a("s_waitcnt lgkmcnt(0)")
    mark4(a)
    P = lambda b, e: vr(b + 2*e, 2)
    for tt in range(2):
        nmp = vr(ST + 2*tt, 2)
        if tt == 1: a(f"s_add_u32 s{S_HB}, s{S_HB}, {108*1024}")
        for ft in range(2):
            for jj in range(2):
                x = ACC + 16*(2*tt+ft) + 8*jj
                for e in range(4):
                    j, i = 2*jj + (e >> 1), 2*(e & 1)
                    a(f"v_pk_fma_f32 {P(TU,e)}, {nmp}, {vr(CSR+16*ft+4*j+i,2)}, {vr(B1R+16*ft+4*j+i,2)} op_sel_hi:[0,1,1]")
                for e in range(4): a(f"v_pk_fma_f32 {P(x,e)}, {nmp}, {P(x,e)}, {P(TU,e)} op_sel:[1,0,0] op_sel_hi:[1,1,1]")
                for e in range(4): a(f"v_pk_mul_f32 {P(TU,e)}, {P(x,e)}, {P(x,e)}")
                for e in range(4): a(f"v_pk_fma_f32 {P(TU,e)}, {P(TU,e)}, {vr(C0,2)}, {vr(C0,2)} op_sel:[0,1,0] op_sel_hi:[1,1,0]")
                for e in range(4): a(f"v_pk_mul_f32 {P(TU,e)}, {P(TU,e)}, {P(x,e)}")
                for e in range(8): a(f"v_exp_f32 v{TE+e}, v{TU+e}")
                for e in range(4): a(f"v_pk_add_f32 {P(TE,e)}, {P(TE,e)}, {vr(ONE,2)} op_sel_hi:[1,0]")
                for e in range(8): a(f"v_rcp_f32 v{TE+e}, v{TE+e}")
                for e in range(4): a(f"v_pk_mul_f32 {P(TE,e)}, {P(TE,e)}, {P(x,e)}")
                d = TD + 4*(4*tt + 2*ft + jj)
                for e in range(4): a(f"v_cvt_pk_bf16_f32 v{d+e}, v{TE+2*e}, v{TE+2*e+1}")
                if not OPT.get('late_h', 0):
                    a(f"buffer_store_dwordx4 {vr(d,4)}, v{VY}, s[{SRD_WS}:{SRD_WS+3}], s{S_HB} offen offset:{(2*ft+jj)*1024} sc1", tag='hst')
    if OPT.get('late_h', 0):
        a(f"s_sub_u32 s{S_HB}, s{S_HB}, {108*1024}")
        for tt in range(2):
            if tt == 1: a(f"s_add_u32 s{S_HB}, s{S_HB}, {108*1024}")
            for ft in range(2):
                for jj in range(2):
                    d = TD + 4*(4*tt + 2*ft + jj)
                    a(f"buffer_store_dwordx4 {vr(d,4)}, v{VY}, s[{SRD_WS}:{SRD_WS+3}], s{S_HB} offen offset:{(2*ft+jj)*1024} sc1", tag='hst')
    mark4(a)
    a(f"s_branch {lbl}_join")
    a.label(f"{lbl}_g0")
    a.reset_counters()
    first.update({'x': True, 'q': True, '1': True})
    if OPT.get('pfs1', 0):
        a(f"s_lshl_b32 s{T0}, s{S_RB}, 7")
        a(f"s_lshr_b32 s{T1}, s{S_I}, 3")
        a(f"s_lshl_b32 s{T1}, s{T1}, 5")
        a(f"s_add_u32 s{T0}, s{T0}, s{T1}")
        a(f"s_lshl_b32 s{T1}, s{S_LW}, 3")
        a(f"s_add_u32 s{T0}, s{T0}, s{T1}")
        a(f"v_lshrrev_b32 v{t0}, 3, v1")
        a(f"v_add_u32 v{t0}, s{T0}, v{t0}")
        a(f"s_movk_i32 s{T1}, 1280")
        a(f"v_mul_lo_u32 v{t0}, v{t0}, s{T1}")
        a(f"v_and_b32 v{t1}, 7, v1")
        a(f"v_lshl_add_u32 v{t2}, v{t1}, 7, v{t0}")
        a(f"buffer_load_dword v251, v{t2}, s[{SRD_A}:{SRD_A+3}], 0 offen", tag='touch')
        a(f"v_and_b32 v{t1}, 1, v1")
        a(f"v_lshl_add_u32 v{t2}, v{t1}, 7, v{t0}")
        a(f"v_mov_b32 v{t3}, 0x7ffffff0")
        a(f"v_bfe_u32 v{t1}, v1, 1, 2")
        a(f"v_cmp_eq_u32 s[{T4}:{T4+1}], 0, v{t1}")
        a(f"v_cndmask_b32 v{t2}, v{t3}, v{t2}, s[{T4}:{T4+1}]")
        a(f"buffer_load_dword v251, v{t2}, s[{SRD_A}:{SRD_A+3}], 0 offen offset:1024", tag='touch')
        a(f"s_and_b32 s{T0}, s{S_I}, 7")
        a(f"s_mul_i32 s{T0}, s{T0}, 80")
        a(f"s_mul_i32 s{T1}, s{S_LW}, 20")
        a(f"s_add_u32 s{T0}, s{T0}, s{T1}")
        a(f"v_lshrrev_b32 v{t0}, 1, v1")
        a(f"v_add_u32 v{t0}, s{T0}, v{t0}")
        a(f"s_movk_i32 s{T1}, 3840")
        a(f"v_mul_lo_u32 v{t0}, v{t0}, s{T1}")
        a(f"v_and_b32 v{t1}, 1, v1")
        a(f"v_lshl_add_u32 v{t0}, v{t1}, 7, v{t0}")
        a(f"s_lshl_b32 s{T0}, s{S_CJ}, 8")
        a(f"v_add_u32 v{t0}, s{T0}, v{t0}")
        a(f"v_cmp_gt_u32 s[{T4}:{T4+1}], 40, v1")
        a(f"v_cndmask_b32 v{t0}, v{t3}, v{t0}, s[{T4}:{T4+1}]")
        a(f"buffer_load_dword v251, v{t0}, s[{SRD_B}:{SRD_B+3}], 0 offen", tag='touch')
    frag_bases()
    if OPT.get('cprio', 3): a(f"s_setprio {OPT.get('cprio', 3)}")
    mark(a)
    a("s_barrier")
    for r in reads(0, 0, 0): r()
    def g0_step(tau, u):
        if OPT.get('fine3') == 1 and u == 'bar' and tau in (0, 2, 4, 6, 8): mark(a)
        if u == 'bar' and tau == 9: return dma_list(13)
        if u == 1 and tau == 2: nonce_issue(a, 252)
        if u == 1 and tau == 4: nonce_check(a, 252)
        if u == 'bar' and tau == 8:
            pre_flags(a, t3, stats=False)
        return None
    compute(0, lambda tau: None, g0_step)
    mark(a)
    if OPT.get('lprio', 1): a(f"s_setprio {OPT.get('lprio', 1)}")
    def qkv_epilogue(a):
        a(f"v_lshrrev_b32 v{t0}, 5, v1")
        a(f"s_lshr_b32 s{T0}, s{S_LW}, 1")
        a(f"s_lshl_b32 s{T0}, s{T0}, 4")
        a(f"v_add_u32 v{t0}, s{T0}, v{t0}")
        a(f"v_lshlrev_b32 v{t0}, 14, v{t0}")
        a(f"s_and_b32 s{T0}, s{S_LW}, 1")
        a(f"s_lshl_b32 s{T0}, s{T0}, 9")
        a(f"v_and_b32 v{t1}, 31, v1")
        a(f"v_lshl_add_u32 v{t0}, v{t1}, 4, v{t0}")
        a(f"v_add_u32 v{t0}, s{T0}, v{t0}")
        a(f"s_lshl_b32 s{T0}, s{S_CJ}, 19")
        a(f"s_lshl_b32 s{T1}, s{S_RB}, 10")
        a(f"s_add_u32 s{T0}, s{T0}, s{T1}")
        a(f"s_add_u32 s{T0}, s{T0}, {WS_QKV}")
        a(f"s_cmp_lt_u32 s{S_CJ}, 5")
        a(f"s_cselect_b32 s{T2}, 0x3ea52b5c, 1.0")
        a(f"v_mov_b32 v30, s{T2}")
        for r in range(0, 64, 2):
            a(f"v_pk_mul_f32 {vr(ACC+r,2)}, {vr(ACC+r,2)}, v[30:31] op_sel_hi:[1,0]")
        k = 0
        for ft in range(2):
            for j in range(4):
                a(f"s_add_u32 s{T1}, s{T0}, {(8*ft + 2*j)*16384}")
                d = 32 + 4*(k % 8); k += 1
                for tt in range(2):
                    base = ACC + 16*(2*tt+ft) + 4*j
                    a(f"v_cvt_pk_bf16_f32 v{d+2*tt}, v{base}, v{base+1}")
                    a(f"v_cvt_pk_bf16_f32 v{d+2*tt+1}, v{base+2}, v{base+3}")
                a(f"buffer_store_dwordx4 {vr(d,4)}, v{t0}, s[{SRD_WS}:{SRD_WS+3}], s{T1} offen sc1", tag='qst')
        fq_poll_offsets(a, VP, t3)
    class Rec:
        def __init__(self): self.l = []
        def __call__(self, text, tag=None): self.l.append((text, tag))
    rec = Rec(); qkv_epilogue(rec)
    EPI = []
    for tx, tg in rec.l:
        if tx.startswith("s_cselect") and EPI: EPI[-1].append((tx, tg))
        else: EPI.append([(tx, tg)])
    def emit_groups(gs):
        for g_ in gs:
            for tx, tg in g_: a(tx, tag=tg)
    if not OPT.get('epi_mix', 0):
        emit_groups(EPI)
        EPI = []
    TQP = OPT.get('tqp', 13)
    for tau in range(10, 20):
        if 13 <= tau + 1 <= 19: a.wait_vm(('B', tau + 1))
        if tau == TQP: a.wait_vm('qst')
        if tau == 19: a.wait_vm('tab')
        a("s_barrier")
        if OPT.get('fine3') == 2 and tau in (10, 11, 12, 13, 14, 15, 16, 17, 18, 19): mark(a)
        if tau == TQP: flag_store(a, S_FQ, t3)
        if tau + 4 <= 19:
            dl = dma_list(tau + 4)
            if tau == 10 and EPI:
                per = -(-len(EPI) // len(dl))
                for f in dl:
                    f()
                    emit_groups(EPI[:per])
                    EPI = EPI[per:]
                emit_groups(EPI)
                EPI = []
            else:
                for f in dl: f()
        if tau == 15:
            a(f"s_lshl_b32 s{T0}, s{S_RB}, 7")
            a(f"s_add_u32 s{T0}, s{T0}, {WS_FLAG + FS}")
            a(f"v_mov_b32 v{t0}, s{T0}")
            a(f"s_min_u32 s{T1}, s{S_CJ}, 13")
            a(f"s_lshl_b32 s{T1}, s{T1}, 2")
            a(f"s_add_u32 s{T1}, s{T1}, {WS_FLAG + FC}")
            a(f"v_mov_b32 v{t1}, s{T1}")
            a(f"v_cmp_gt_u32 s[{T4}:{T4+1}], 32, v1")
            a(f"v_cndmask_b32 v234, v{t1}, v{t0}, s[{T4}:{T4+1}]")
            poll_issue(a, 234, 235, 'p1')
        if tau == 17:
            L = uid("nf")
            a(f"s_cmp_ge_u32 s{S_CJ}, 14")
            a(f"s_cbranch_scc1 {L}")
            vm0 = list(a.vm)
            poll_check(a, 234, 235, 'p1')
            a.label(L)
            a.vm = vm0
            a(f"s_lshl_b32 s{T0}, s{S_RB}, 10")
            a(f"s_add_u32 s{T0}, s{T0}, {WS_ST}")
            a(f"s_lshl_b32 s{T1}, s{S_CJ}, 9")
            a(f"s_add_u32 s{T2}, s{T1}, {WS_CS}")
            a(f"s_add_u32 s{T1}, s{T1}, {WS_B1}")
            a(f"s_cmp_eq_u32 s{S_W}, 1")
            a(f"s_cselect_b32 s{T0}, s{T2}, s{T0}")
            a(f"s_cselect_b32 s{T3}, 1024, 0")
            a(f"s_cmp_eq_u32 s{S_W}, 2")
            a(f"s_cselect_b32 s{T0}, s{T1}, s{T0}")
            a(f"s_cselect_b32 s{T3}, 1536, s{T3}")
            a(f"s_cmp_eq_u32 s{S_W}, 3")
            a(f"s_cselect_b32 s{T0}, 0x7fff0000, s{T0}")
            a(f"s_cselect_b32 s{T3}, 2048, s{T3}")
            a(f"v_lshlrev_b32 v{t0}, 4, v1")
            a(f"v_mov_b32 v{t1}, 0x7ffffff0")
            a(f"s_cmp_eq_u32 s{S_W}, 0")
            a(f"s_cselect_b32 s{T1}, 64, 32")
            a(f"v_cmp_gt_u32 s[{T4}:{T4+1}], s{T1}, v1")
            a(f"s_mov_b64 exec, s[{T4}:{T4+1}]")
            a(f"s_mov_b32 m0, s{T3}")
            a(f"buffer_load_dwordx4 v{t0}, s[{SRD_WS}:{SRD_WS+3}], s{T0} offen sc1 lds", tag='tab')
            a("s_mov_b64 exec, -1")
        if tau == 19: pass
        if tau == OPT.get('tpq', 18):
            poll_issue(a, VP, VPV, 'pq')
            fw_poll_offsets(a, VP+202)
            poll_issue(a, VP+202, VPV+202, 'pw')
    if OPT.get('fine4'): mark(a)
    poll_check(a, VP, VPV, 'pq')
    if OPT.get('fine4'): mark(a)
    attn_stage_q(a, 3)
    attn_stage_kv(a, t0, t1, t2, 2, (0,) if OPT.get('latev') else (0, 1))
    poll_check(a, VP+202, VPV+202, 'pw')
    if OPT.get('earlyw', 0): wf_first_slots(a, 3)
    mark(a)
    a.wait_vm(('kv', 0))
    if OPT.get('fine4'): mark(a)
    a(f"s_branch {lbl}_join")
    a.label(f"{lbl}_idle")
    a.reset_counters()
    a("s_waitcnt lgkmcnt(0)")
    prologue_rest(a)
    attn_coords(a)
    final_coords(a)
    srd(a, SRD_A, P_AX, SIZES['AX'])
    rowstats_issue(a)
    colsum_issue(a)
    nonce_issue(a, 252)
    rowstats_compute(a)
    colsum_compute(a, lbl + "_cs")
    nonce_check(a, 252)
    a("s_waitcnt vmcnt(0)")
    a("s_barrier")
    a(f"s_lshl_b32 s{T0}, s{S_RB}, 7")
    a(f"s_add_u32 s{T0}, s{T0}, {WS_FLAG + FS}")
    flag_store(a, T0, t3)
    a(f"s_lshl_b32 s{T0}, s{S_RB}, 2")
    a(f"s_add_u32 s{T0}, s{T0}, {WS_FLAG + FC}")
    flag_store(a, T0, t3)
    pre_address(a, lbl + "_pai", rows=False)
    pre_issue(a, rows=False)
    a.wait_vm('pl')
    repack_finish(a)
    a("s_waitcnt vmcnt(0)")
    a("s_barrier")
    pre_flags(a, t3, stats=False)
    a(f"s_mov_b32 s{S_FHO}, 0x7fff0000")
    fq_poll_offsets(a, VP, t3)
    a(f"s_mov_b64 s[{T4}:{T4+1}], -1")
    wait_flags(a, VP, VPV, T4)
    Li = uid("ik")
    a(f"s_cmp_ge_u32 s{S_W}, 4")
    a(f"s_cbranch_scc1 {Li}")
    attn_stage_q(a, 3)
    attn_stage_kv(a, t0, t1, t2, 2, (0,) if OPT.get('latev') else (0, 1))
    fw_poll_offsets(a, VP+202)
    poll_issue(a, VP+202, VPV+202, 'pw')
    poll_check(a, VP+202, VPV+202, 'pw')
    if OPT.get('earlyw', 0): wf_first_slots(a, 3)
    a.label(Li)
    a("s_waitcnt vmcnt(0)")
    a.label(f"{lbl}_join")
    if OPT.get('lprio', 1) or OPT.get('cprio', 3): a("s_setprio 0")
    a.reset_counters()

SLOT = 49152
def stage1f(a, lbl):
    SRD_E, S_M = 64, 68
    VXD, VQD, V1D = 2, 4, 6
    VXF, VWF = 8, 16
    t0, t1, t2, t3 = 20, 21, 22, 23
    VP, VPV = 24, 25
    FB = [32, 48]
    ACC = 64
    ST, CSR, B1R, TD = 192, 128, 160, 196
    S_FQ, S_FH, S_ACT, S_HB = 69, 70, 71, 72
    attn_coords(a)
    final_coords(a)
    a(f"s_and_b32 s{S_LW}, s{S_W}, 3")
    a(f"s_cmp_ge_u32 s{S_CJ}, 15")
    a(f"s_cbranch_scc1 {lbl}_idle")
    srd(a, SRD_A, P_AX, SIZES['AX'])
    srd(a, SRD_B, P_WQKV, SIZES['WQKV'])
    srd(a, SRD_E, P_W1, SIZES['W1'])
    a(f"s_lshl_b32 s{T0}, s{S_RB}, 7")
    a(f"s_lshr_b32 s{T1}, s{S_W}, 2")
    a(f"s_lshl_b32 s{T1}, s{T1}, 6")
    a(f"s_add_u32 s{T0}, s{T0}, s{T1}")
    a(f"s_and_b32 s{T1}, s{S_W}, 1")
    a(f"s_lshl_b32 s{T1}, s{T1}, 5")
    a(f"s_add_u32 s{T0}, s{T0}, s{T1}")
    a(f"s_bfe_u32 s{T1}, s{S_W}, 0x10001")
    a(f"s_add_u32 s{T0}, s{T0}, s{T1}")
    a(f"v_lshrrev_b32 v{t0}, 3, v1")
    a(f"v_lshlrev_b32 v{t0}, 1, v{t0}")
    a(f"v_add_u32 v{t0}, s{T0}, v{t0}")
    a(f"s_movk_i32 s{T2}, 1280")
    a(f"v_mul_lo_u32 v{t0}, v{t0}, s{T2}")
    a(f"v_lshrrev_b32 v{t1}, 4, v1")
    a(f"v_and_b32 v{t2}, 7, v1")
    a(f"v_xor_b32 v{t2}, v{t2}, v{t1}")
    a(f"v_xor_b32 v{t3}, 4, v{t2}")
    a(f"v_lshl_add_u32 v{VXD}, v{t2}, 4, v{t0}")
    a(f"v_lshl_add_u32 v{VXD+1}, v{t3}, 4, v{t0}")
    a(f"v_add_u32 v{VXD+1}, {16*1280-1024}, v{VXD+1}")
    a(f"s_lshl_b32 s{T0}, s{S_W}, 3")
    a(f"v_lshrrev_b32 v{t0}, 4, v1")
    a(f"v_add_u32 v{t1}, s{T0}, v{t0}")
    a(f"v_bfe_u32 v{t2}, v1, 2, 2")
    a(f"v_xor_b32 v{t2}, v{t2}, v{t0}")
    a(f"v_and_b32 v{t3}, 3, v1")
    a(f"v_lshl_add_u32 v{t2}, v{t2}, 2, v{t3}")
    a(f"v_lshlrev_b32 v{t2}, 4, v{t2}")
    a(f"s_lshl_b32 s{T0}, s{S_CJ}, 8")
    a(f"v_add_u32 v{t2}, s{T0}, v{t2}")
    for vd, pitch in ((VQD, 3840), (V1D, 3456)):
        a(f"s_movk_i32 s{T2}, {pitch}")
        a(f"v_mul_lo_u32 v{t3}, v{t1}, s{T2}")
        a(f"v_add_u32 v{vd}, v{t3}, v{t2}")
        a(f"v_add_u32 v{vd+1}, {4*pitch-1024}, v{vd}")
    a(f"s_lshl_b32 s{S_M}, s{S_W}, 11")
    if OPT.get('rot', 1):
        a(f"s_lshr_b32 s{T0}, s{S_I}, 3")
        a(f"s_mul_i32 s{T0}, s{T0}, 10")
        a(f"s_and_b32 s{T1}, s{S_I}, 7")
        a(f"s_mul_i32 s{T1}, s{T1}, 5")
        a(f"s_add_u32 s{T0}, s{T0}, s{T1}")
        a(f"s_lshr_b32 s{T0}, s{T0}, 2")
        a(f"s_sub_u32 s{T1}, s{T0}, 10")
        a(f"s_cmp_ge_u32 s{T0}, 10")
        a(f"s_cselect_b32 s{T0}, s{T1}, s{T0}")
    else:
        a(f"s_mov_b32 s{T0}, 0")
    a(f"s_lshl_b32 s{S_KX}, s{T0}, 7")
    a(f"s_mul_i32 s{S_KQ}, s{T0}, {64*3840}")
    a(f"s_mul_i32 s{S_K1}, s{T0}, {64*3456}")
    def adv(sreg, step, wrap):
        a(f"s_add_u32 s{sreg}, s{sreg}, {step}")
        a(f"s_cmp_eq_u32 s{sreg}, {wrap}")
        a(f"s_cselect_b32 s{sreg}, 0, s{sreg}")
    parts = ((VXD, SRD_A, S_KX, 0, 128, 1280), (VQD, SRD_B, S_KQ, 16384, 64*3840, 640*3840), (V1D, SRD_E, S_K1, 32768, 64*3456, 640*3456))
    def dma(b, part, i):
        vd, sr, sk, off, step, wrap = parts[part]
        if i == 0:
            a(f"s_add_u32 m0, s{S_M}, {(b % 3)*SLOT + off}")
            if b > 0: adv(sk, step, wrap)
        a(f"buffer_load_dwordx4 v{vd+i}, s[{sr}:{sr+3}], s{sk} offen offset:{i*1024} lds", tag=('B', b))
    def dma_block(b):
        for part in range(3):
            for i in range(2): dma(b, part, i)
    NI = OPT.get('finit', 2)
    for b in range(NI): dma_block(b)
    pre_address(a, lbl + "_pa", rows=False)
    a(f"s_and_b32 s{T0}, s{S_W}, 1")
    a(f"s_lshl_b32 s{T0}, s{T0}, 13")
    a(f"v_and_b32 v{t0}, 31, v1")
    a(f"v_lshrrev_b32 v{t1}, 5, v1")
    a(f"v_bfe_u32 v{t2}, v1, 1, 3")
    a(f"v_lshlrev_b32 v{t0}, 7, v{t0}")
    a(f"v_add_u32 v{t0}, s{T0}, v{t0}")
    for s_ in range(4):
        a(f"v_or_b32 v{t3}, {2*s_}, v{t1}")
        a(f"v_xor_b32 v{t3}, v{t3}, v{t2}")
        a(f"v_lshl_add_u32 v{VXF+s_}, v{t3}, 4, v{t0}")
        a(f"v_add_u32 v{VXF+4+s_}, {2*SLOT}, v{VXF+s_}")
    a(f"v_bfe_u32 v{t0}, v1, 2, 2")
    a(f"v_lshl_add_u32 v{t1}, v{t1}, 3, v{t0}")
    a(f"v_lshlrev_b32 v{t1}, 8, v{t1}")
    a(f"v_bfe_u32 v{t2}, v1, 4, 1")
    a(f"v_lshl_add_u32 v{t1}, v{t2}, 5, v{t1}")
    a(f"v_and_b32 v{t2}, 3, v1")
    a(f"v_lshl_add_u32 v{t1}, v{t2}, 3, v{t1}")
    a(f"s_lshr_b32 s{T0}, s{S_W}, 1")
    a(f"v_xor_b32 v{t2}, s{T0}, v{t0}")
    a(f"v_lshl_add_u32 v{VWF}, v{t2}, 6, v{t1}")
    a(f"v_add_u32 v{VWF+1}, {SLOT}, v{VWF}")
    a(f"v_add_u32 v{VWF+2}, {2*SLOT}, v{VWF}")
    a(f"s_lshl_b32 s{T0}, s{S_RB}, 7")
    a(f"s_add_u32 s{T0}, s{T0}, {WS_FLAG + FS}")
    a(f"v_mov_b32 v{t0}, s{T0}")
    a(f"s_min_u32 s{T1}, s{S_CJ}, 13")
    a(f"s_lshl_b32 s{T1}, s{T1}, 2")
    a(f"s_add_u32 s{T1}, s{T1}, {WS_FLAG + FC}")
    a(f"v_mov_b32 v{t1}, s{T1}")
    a(f"v_cmp_gt_u32 s[{T4}:{T4+1}], 32, v1")
    a(f"v_cndmask_b32 v{VP}, v{t1}, v{t0}, s[{T4}:{T4+1}]")
    a(f"s_lshl_b32 s{T0}, s{S_RB}, 7")
    a(f"s_lshl_b32 s{T1}, s{S_CJ}, 2")
    a(f"s_add_u32 s{T0}, s{T0}, s{T1}")
    a(f"s_add_u32 s{S_FQ}, s{T0}, {WS_FLAG + FQ}")
    a(f"s_add_u32 s{S_FH}, s{T0}, {WS_FLAG + FH}")
    a(f"s_cmp_lt_u32 s{S_CJ}, 14")
    a(f"s_cselect_b32 s{S_FHO}, s{S_FH}, 0x7fff0000")
    def rd_b(st, b, u, tt):
        sl = b % 3
        a(f"ds_read_b128 {vr(FB[st]+4*tt,4)}, v{VXF + u + (4 if sl == 2 else 0)} offset:{(SLOT if sl == 1 else 0) + tt*4096}", tag=('f', b, u, 'b', tt))
    def rd_a(st, b, u, F, rd):
        a(f"ds_read_b64_tr_b16 {vr(FB[st]+8+4*F+2*rd,2)}, v{VWF + b % 3} offset:{16384*(F+1) + u*4096 + rd*1024}", tag=('f', b, u, 'a', F))
    def reads(st, b, u):
        return [lambda: rd_b(st, b, u, 0), lambda: rd_a(st, b, u, 0, 0), lambda: rd_a(st, b, u, 0, 1),
                lambda: rd_b(st, b, u, 1), lambda: rd_a(st, b, u, 1, 0), lambda: rd_a(st, b, u, 1, 1)]
    mark(a)
    a.wait_vm(('B', 0))
    a("s_barrier")
    for r in reads(0, 0, 0): r()
    NB = 10
    pend = [(b, p, i) for b in range(NI, 3) for p in range(3) for i in range(2)]
    for b in range(NB):
        for u in range(4):
            s_ = 4*b + u; st = s_ & 1
            last = (b == NB-1 and u == 3)
            if u == 3 and b + 1 < NB:
                while pend: dma(*pend.pop(0))
                a("s_waitcnt lgkmcnt(0)")
                a.wait_vm(('B', b + 1))
                a("s_barrier")
                if b == 3:
                    a.wait_vm('pl')
                    repack_finish(a)
                if b == 6: pre_flags(a, t3, stats=False)
                if b + 3 < NB: pend = [(b + 3, p, i) for p in range(3) for i in range(2)]
            nb, nu = (b, u + 1) if u < 3 else (b + 1, 0)
            rs = [] if last else reads(st ^ 1, nb, nu)
            plan = {-1: rs[0:2], 0: rs[2:5], 1: rs[5:6]}
            for r in plan[-1]: r()
            for k, (tt, F) in enumerate([(0, 0), (1, 0), (0, 1), (1, 1)]):
                a.wait_lg([('f', b, u, 'b', tt), ('f', b, u, 'a', F)])
                d = vr(ACC+16*(2*tt+F), 16)
                a(f"v_mfma_f32_32x32x16_bf16 {d}, {vr(FB[st]+8+4*F,4)}, {vr(FB[st]+4*tt,4)}, {'0' if s_ == 0 else d}")
                for r in plan.get(k, []): r()
                if pend and k in (1, 3): dma(*pend.pop(0))
            if b == 1 and u == 0: pre_issue(a, rows=False)
            if b == 1 and u == 1: nonce_issue(a, 252)
            if b == 3 and u == 1: nonce_check(a, 252)
            if b == 6 and u == 0: poll_issue(a, VP, VPV, 'p1')
            if b == 8 and u == 0:
                L = uid("nf")
                a(f"s_cmp_ge_u32 s{S_CJ}, 14")
                a(f"s_cbranch_scc1 {L}")
                vm0 = list(a.vm)
                poll_check(a, VP, VPV, 'p1')
                a.label(L)
                a.vm = vm0
                a(f"s_lshl_b32 s{T0}, s{S_RB}, 10")
                a(f"s_and_b32 s{T1}, s{S_W}, 1")
                a(f"s_lshl_b32 s{T1}, s{T1}, 9")
                a(f"s_add_u32 s{T0}, s{T0}, s{T1}")
                a(f"s_add_u32 s{T0}, s{T0}, {WS_ST}")
                a(f"v_and_b32 v{t0}, 31, v1")
                a(f"v_lshlrev_b32 v{t0}, 4, v{t0}")
                a(f"buffer_load_dwordx4 {vr(ST,4)}, v{t0}, s[{SRD_WS}:{SRD_WS+3}], s{T0} offen sc1", tag='tab')
                a(f"v_lshrrev_b32 v{t0}, 5, v1")
                a(f"v_lshlrev_b32 v{t0}, 4, v{t0}")
                a(f"s_lshl_b32 s{T0}, s{S_CJ}, 9")
                a(f"s_lshr_b32 s{T1}, s{S_W}, 1")
                a(f"s_lshl_b32 s{T1}, s{T1}, 7")
                a(f"s_add_u32 s{T0}, s{T0}, s{T1}")
                a(f"s_add_u32 s{T1}, s{T0}, {WS_B1}")
                a(f"s_add_u32 s{T0}, s{T0}, {WS_CS}")
                for j in range(4):
                    a(f"buffer_load_dwordx4 {vr(CSR+4*j,4)}, v{t0}, s[{SRD_WS}:{SRD_WS+3}], s{T0} offen offset:{32*j} sc1", tag='tab')
                    a(f"buffer_load_dwordx4 {vr(B1R+4*j,4)}, v{t0}, s[{SRD_WS}:{SRD_WS+3}], s{T1} offen offset:{32*j} sc1", tag='tab')
    mark(a)
    a(f"v_lshrrev_b32 v{t0}, 5, v1")
    a(f"s_lshr_b32 s{T0}, s{S_W}, 1")
    a(f"s_lshl_b32 s{T0}, s{T0}, 3")
    a(f"v_add_u32 v{t0}, s{T0}, v{t0}")
    a(f"v_lshlrev_b32 v{t0}, 14, v{t0}")
    a(f"s_and_b32 s{T0}, s{S_W}, 1")
    a(f"s_lshl_b32 s{T0}, s{T0}, 9")
    a(f"v_and_b32 v{t1}, 31, v1")
    a(f"v_lshl_add_u32 v{t0}, v{t1}, 4, v{t0}")
    a(f"v_add_u32 v{t0}, s{T0}, v{t0}")
    a(f"s_lshl_b32 s{T0}, s{S_CJ}, 19")
    a(f"s_lshl_b32 s{T1}, s{S_RB}, 10")
    a(f"s_add_u32 s{T0}, s{T0}, s{T1}")
    a(f"s_add_u32 s{T0}, s{T0}, {WS_QKV}")
    a(f"s_cmp_lt_u32 s{S_CJ}, 5")
    a(f"s_cselect_b32 s{T2}, 0x3ea52b5c, 1.0")
    a(f"v_mov_b32 v30, s{T2}")
    for tt in range(2):
        for r in range(0, 16, 2):
            a(f"v_pk_mul_f32 {vr(ACC+32*tt+r,2)}, {vr(ACC+32*tt+r,2)}, v[30:31] op_sel_hi:[1,0]")
    for j in range(4):
        a(f"s_add_u32 s{T1}, s{T0}, {2*j*16384}")
        d = FB[0] + 4*j
        for tt in range(2):
            base = ACC + 32*tt + 4*j
            a(f"v_cvt_pk_bf16_f32 v{d+2*tt}, v{base}, v{base+1}")
            a(f"v_cvt_pk_bf16_f32 v{d+2*tt+1}, v{base+2}, v{base+3}")
        a(f"buffer_store_dwordx4 {vr(d,4)}, v{t0}, s[{SRD_WS}:{SRD_WS+3}], s{T1} offen sc1", tag='qst')
    C0, C1, VY, ONE = 2, 3, 4, 6
    TU, TE = 48, 56
    a(f"v_mov_b32 v{ONE}, 1.0")
    a(f"v_mov_b32 v{C0}, 0xc0135761")
    a(f"v_mov_b32 v{C1}, 0xbdd2d3e8")
    a(f"v_lshlrev_b32 v{VY}, 4, v1")
    a(f"s_lshl_b32 s{T0}, s{S_CJ}, 3")
    a(f"s_lshr_b32 s{T1}, s{S_W}, 1")
    a(f"s_lshl_b32 s{T1}, s{T1}, 1")
    a(f"s_add_u32 s{S_ACT}, s{T0}, s{T1}")
    a(f"s_lshl_b32 s{T0}, s{S_RB}, 2")
    a(f"s_and_b32 s{T1}, s{S_W}, 1")
    a(f"s_lshl_b32 s{T1}, s{T1}, 1")
    a(f"s_add_u32 s{T0}, s{T0}, s{T1}")
    a(f"s_mul_i32 s{T0}, s{T0}, 108")
    a(f"s_add_u32 s{T0}, s{T0}, s{S_ACT}")
    a(f"s_lshl_b32 s{T0}, s{T0}, 10")
    a(f"s_add_u32 s{S_HB}, s{T0}, {WS_H}")
    a(f"s_cmp_lt_u32 s{S_ACT}, 108")
    a(f"s_cselect_b32 s{S_HB}, s{S_HB}, 0x7fff0000")
    a.wait_vm('tab')
    P = lambda b, e: vr(b + 2*e, 2)
    for tt in range(2):
        nmp = vr(ST + 2*tt, 2)
        for jj in range(2):
            x = ACC + 16*(2*tt+1) + 8*jj
            for e in range(4):
                j, i = 2*jj + (e >> 1), 2*(e & 1)
                a(f"v_pk_fma_f32 {P(TU,e)}, {nmp}, {vr(CSR+4*j+i,2)}, {vr(B1R+4*j+i,2)} op_sel_hi:[0,1,1]")
            for e in range(4): a(f"v_pk_fma_f32 {P(x,e)}, {nmp}, {P(x,e)}, {P(TU,e)} op_sel:[1,0,0] op_sel_hi:[1,1,1]")
            for e in range(4): a(f"v_pk_mul_f32 {P(TU,e)}, {P(x,e)}, {P(x,e)}")
            for e in range(4): a(f"v_pk_fma_f32 {P(TU,e)}, {P(TU,e)}, {vr(C0,2)}, {vr(C0,2)} op_sel:[0,1,0] op_sel_hi:[1,1,0]")
            for e in range(4): a(f"v_pk_mul_f32 {P(TU,e)}, {P(TU,e)}, {P(x,e)}")
            for e in range(8): a(f"v_exp_f32 v{TE+e}, v{TU+e}")
            for e in range(4): a(f"v_pk_add_f32 {P(TE,e)}, {P(TE,e)}, {vr(ONE,2)} op_sel_hi:[1,0]")
            for e in range(8): a(f"v_rcp_f32 v{TE+e}, v{TE+e}")
            for e in range(4): a(f"v_pk_mul_f32 {P(TE,e)}, {P(TE,e)}, {P(x,e)}")
            d = TD + 4*(2*tt + jj)
            for e in range(4): a(f"v_cvt_pk_bf16_f32 v{d+e}, v{TE+2*e}, v{TE+2*e+1}")
    fq_poll_offsets(a, VP, t3)
    a.wait_vm('qst')
    a("s_barrier")
    flag_store(a, S_FQ, t3)
    mark(a)
    for tt in range(2):
        if tt == 1: a(f"s_add_u32 s{S_HB}, s{S_HB}, {108*1024}")
        for jj in range(2):
            d = TD + 4*(2*tt + jj)
            a(f"buffer_store_dwordx4 {vr(d,4)}, v{VY}, s[{SRD_WS}:{SRD_WS+3}], s{S_HB} offen offset:{jj*1024} sc1", tag='hst')
    a(f"s_branch {lbl}_stage")
    a.label(f"{lbl}_idle")
    a.reset_counters()
    t3i = t3
    srd(a, SRD_A, P_AX, SIZES['AX'])
    rowstats_issue(a)
    colsum_issue(a)
    nonce_issue(a, 252)
    rowstats_compute(a)
    colsum_compute(a, lbl + "_cs")
    nonce_check(a, 252)
    a("s_waitcnt vmcnt(0)")
    a("s_barrier")
    a(f"s_lshl_b32 s{T0}, s{S_RB}, 7")
    a(f"s_add_u32 s{T0}, s{T0}, {WS_FLAG + FS}")
    flag_store(a, T0, t3)
    a(f"s_lshl_b32 s{T0}, s{S_RB}, 2")
    a(f"s_add_u32 s{T0}, s{T0}, {WS_FLAG + FC}")
    flag_store(a, T0, t3)
    pre_address(a, lbl + "_pai", rows=False)
    pre_issue(a, rows=False)
    a.wait_vm('pl')
    repack_finish(a)
    a("s_waitcnt vmcnt(0)")
    a("s_barrier")
    pre_flags(a, t3, stats=False)
    a(f"s_mov_b32 s{S_FHO}, 0x7fff0000")
    fq_poll_offsets(a, VP, t3)
    a.label(f"{lbl}_stage")
    a.reset_counters()
    a(f"s_mov_b64 s[{T4}:{T4+1}], -1")
    wait_flags(a, VP, VPV, T4)
    mark(a)
    Li = uid("ik")
    a(f"s_cmp_ge_u32 s{S_W}, 4")
    a(f"s_cbranch_scc1 {Li}")
    attn_stage_q(a, 3)
    attn_stage_kv(a, t0, t1, t2, 2)
    a.wait_vm(('kv', 0))
    a.label(Li)
    a.reset_counters()

def stage_attn(a, lbl):
    HP, S_HH, S_QW = S_AHP, 78, 79
    VD, VK, VV, VKX, VW = 2, 3, 4, 5, 10
    t0, t1, t2, t3, t4 = 6, 7, 8, 9, 11
    MK = 12
    Q0, Q1 = 20, 24
    KF = [28, 36]
    VF = [44, 48, 52, 56]
    PF = [60, 64, 68, 72]
    OA = 76
    CS, NM, MX = 96, 97, 98
    S = 104
    VPQ, VPH = 92, 94
    a(f"v_and_b32 v{t0}, 31, v1")
    a(f"v_and_b32 v{VPH}, 15, v1")
    a(f"v_min_u32 v{VPH}, 13, v{VPH}")
    a(f"v_lshlrev_b32 v{VPH}, 2, v{VPH}")
    a(f"s_lshr_b32 s{T1}, s{S_FRB}, 1")
    a(f"s_lshl_b32 s{T1}, s{T1}, 7")
    a(f"s_add_u32 s{T1}, s{T1}, {WS_FLAG + FH}")
    a(f"v_add_u32 v{VPH}, s{T1}, v{VPH}")
    a(f"v_lshrrev_b32 v{t1}, 5, v1")
    for r in range(4): a(f"v_mov_b32 v{KF[0]+r}, 0x3f803f80")
    a(f"v_lshlrev_b32 v{t4}, 4, v0")
    a(f"v_add_u32 v{t4}, {LONES}, v{t4}")
    a(f"v_mov_b32 v{KF[1]}, 208")
    a(f"v_cmp_gt_u32 vcc, v{KF[1]}, v0")
    L = uid("on")
    a(f"s_and_saveexec_b64 s[{T4}:{T4+1}], vcc")
    a(f"s_cbranch_execz {L}")
    a(f"ds_write_b128 v{t4}, {vr(KF[0],4)}")
    a.label(L)
    a(f"s_mov_b64 exec, s[{T4}:{T4+1}]")
    SM = 98
    a(f"v_lshlrev_b32 v{t2}, 2, v{t1}")
    a(f"v_sub_u32 v{t2}, v{t0}, v{t2}")
    VM = 248
    a(f"v_mov_b32 v{VM}, v{t2}")
    a(f"v_mov_b32 v{t3}, 0xffff")
    a(f"v_mov_b32 v{t4}, 0xffff0000")
    for q in range(8):
        r0, r1 = 2*q, 2*q + 1
        a(f"v_cmp_le_i32 s[98:99], {8*(r0 >> 2) + (r0 & 3)}, v{VM}")
        a(f"v_cmp_le_i32 s[100:101], {8*(r1 >> 2) + (r1 & 3)}, v{VM}")
        a(f"v_cndmask_b32 v{MK+q}, 0, v{t3}, s[98:99]")
        a(f"v_cndmask_b32 v{KF[1]}, 0, v{t4}, s[100:101]")
        a(f"v_or_b32 v{MK+q}, v{MK+q}, v{KF[1]}")
    a(f"s_lshl_b32 s{T0}, s{S_QW}, 8")
    a(f"s_mul_i32 s{T3}, s{S_HH}, {5*PST}")
    a(f"s_add_u32 s{T2}, s{T0}, s{T3}")
    a(f"s_add_u32 s{T2}, s{T2}, {LK}")
    a(f"v_lshlrev_b32 v{t2}, 3, v{t0}")
    a(f"v_add_u32 v{t2}, s{T2}, v{t2}")
    a(f"s_movk_i32 s{T1}, {2*PST}")
    a(f"v_mul_lo_u32 v{t3}, v{t1}, s{T1}")
    a(f"v_add_u32 v{VK}, v{t2}, v{t3}")
    a(f"v_add_u32 v{VKX}, {4*PST}, v{t2}")
    a(f"v_bfe_u32 v{t2}, v1, 4, 1")
    a(f"v_and_b32 v{t3}, 3, v1")
    a(f"v_lshl_add_u32 v{t2}, v{t2}, 2, v{t3}")
    a(f"v_bfe_u32 v{t3}, v1, 2, 2")
    a(f"v_lshl_add_u32 v{t3}, v{t1}, 2, v{t3}")
    a(f"v_lshlrev_b32 v{t3}, 3, v{t3}")
    a(f"v_add_u32 v{t3}, s{T0}, v{t3}")
    a(f"s_movk_i32 s{T1}, {PST}")
    a(f"v_mul_lo_u32 v{t4}, v{t2}, s{T1}")
    a(f"v_cmp_gt_u32 s[{T4}:{T4+1}], 5, v{t2}")
    a(f"s_add_u32 s{T3}, s{T3}, {LV}")
    a(f"s_sub_u32 s{T2}, s{T3}, {LONES}")
    a(f"v_lshlrev_b32 v{KF[0]}, 5, v{t2}")
    a(f"v_add_u32 v{KF[0]}, s{T2}, v{KF[0]}")
    a(f"v_and_b32 v{KF[0]}, 255, v{KF[0]}")
    a(f"v_add_u32 v{KF[0]}, {LONES}, v{KF[0]}")
    a(f"v_add_u32 v{KF[0]+1}, s{T3}, v{t4}")
    a(f"v_cndmask_b32 v{KF[0]}, v{KF[0]}, v{KF[0]+1}, s[{T4}:{T4+1}]")
    a(f"v_add_u32 v{VV}, v{KF[0]}, v{t3}")
    a(f"v_mov_b32 v{CS}, 0x3ea52b5c")
    for st in range(2):
        a(f"v_mov_b32 v{KF[st]+6}, 0"); a(f"v_mov_b32 v{KF[st]+7}, 0")
    a(f"v_mov_b32 v{Q1+2}, 0"); a(f"v_mov_b32 v{Q1+3}, 0")
    a(f"v_lshlrev_b32 v{VW}, 4, v1")
    a(f"s_lshl_b32 s{T0}, s{S_ARB}, 2")
    a(f"s_add_u32 s{S_QB}, s{T0}, s{S_QW}")
    a(f"s_mul_i32 s{T0}, s{S_HH}, 5120")
    a(f"s_lshl_b32 s{T1}, s{S_QW}, 8")
    a(f"s_add_u32 s{T0}, s{T0}, s{T1}")
    a(f"s_add_u32 s{T0}, s{T0}, {QL}")
    a(f"v_lshlrev_b32 v{t2}, 3, v{t0}")
    a(f"v_add_u32 v{t2}, s{T0}, v{t2}")
    a(f"v_lshl_add_u32 v{t3}, v{t1}, 11, v{t2}")
    a("s_waitcnt lgkmcnt(0)")
    a("s_barrier")
    if OPT.get('latev'):
        Lw = uid("lv")
        a(f"s_cmp_ge_u32 s{S_W}, 4")
        a(f"s_cbranch_scc1 {Lw}")
        vm = list(a.vm)
        attn_stage_kv(a, 244, 245, 246, 247, (1,))
        a.vm = vm
        a.label(Lw)
    a(f"ds_read_b64 {vr(Q0,2)}, v{t3}")
    a(f"ds_read_b64 {vr(Q0+2,2)}, v{t3} offset:1024")
    a(f"ds_read_b64 {vr(Q1,2)}, v{t2} offset:4096")
    a(f"v_cmp_gt_u32 s[{T4}:{T4+1}], 32, v1")
    a("s_waitcnt lgkmcnt(0)")
    for q in (Q1, Q1+1):
        a(f"v_cndmask_b32 v{q}, 0, v{q}, s[{T4}:{T4+1}]")
    mark(a)
    SB = [100, 116, 132]; NM16 = 148
    order = [0, 8, 1, 2, 3, 4, 5, 6, 7]
    a(f"v_mov_b32 v{Q1+2}, 0x3f80")
    a(f"v_cndmask_b32 v{Q1+2}, 0, v{Q1+2}, s[{T4}:{T4+1}]")
    kn = [0]
    def rd_k(tl):
        st = KF[kn[0] % 2]; kn[0] += 1
        a(f"ds_read_b64 {vr(st,2)}, v{VK} offset:{tl*256}", tag=('k', tl))
        a(f"ds_read_b64 {vr(st+2,2)}, v{VK} offset:{PST + tl*256}", tag=('k', tl))
        a(f"ds_read_b64 {vr(st+4,2)}, v{VKX} offset:{tl*256}", tag=('k', tl))
        if tl < 8:
            a(f"s_cmp_lt_u32 s{S_QB}, {8-tl}")
            a(f"s_cselect_b32 s{T0}, 0xf149, 0")
            a(f"v_mov_b32 v{st+6}, s{T0}")
        else:
            a(f"v_mov_b32 v{st+6}, 0")
        return st
    def qk(tl, st, buf, c):
        a.wait_lg(('k', tl))
        d = vr(buf, 16)
        a(f"v_mfma_f32_32x32x16_bf16 {d}, {vr(st,4)}, {vr(Q0,4)}, {c}")
        a(f"v_mfma_f32_32x32x16_bf16 {d}, {vr(st+4,4)}, {vr(Q1,4)}, {d}")
    def merge():
        for r in range(0, 16, 2):
            a(f"v_cmp_le_i32 s[98:99], {8*(r >> 2) + (r & 3)}, v{VM}")
            a(f"v_cmp_le_i32 s[100:101], {8*((r+1) >> 2) + ((r+1) & 3)}, v{VM}")
            a(f"v_cndmask_b32 v{SB[0]+r}, v{SB[0]+r}, v{SB[1]+r}, s[98:99]")
            a(f"v_cndmask_b32 v{SB[0]+r+1}, v{SB[0]+r+1}, v{SB[1]+r+1}, s[100:101]")
    bufs = {0: SB[0], 8: SB[1]}
    for n, tl in enumerate(range(1, 8)): bufs[tl] = SB[(2 - n) % 3]
    def tmax(buf, first):
        for h in range(2):
            m = MX + h
            a(f"v_max3_f32 v{m}, v{buf+8*h}, v{buf+8*h+1}, {'v%d' % (buf+8*h+2) if first else 'v%d' % m}")
            ks = range(3, 8) if first else range(2, 8)
            ks = list(ks)
            while ks:
                if len(ks) >= 2:
                    a(f"v_max3_f32 v{m}, v{m}, v{buf+8*h+ks[0]}, v{buf+8*h+ks[1]}"); ks = ks[2:]
                else:
                    a(f"v_max_f32 v{m}, v{m}, v{buf+8*h+ks[0]}"); ks = ks[1:]
    st = rd_k(0); st2 = rd_k(8)
    qk(0, st, bufs[0], "0")
    st = rd_k(1)
    qk(8, st2, bufs[8], "0")
    st2 = rd_k(2)
    qk(1, st, bufs[1], "0")
    merge()
    tmax(SB[0], True)
    cur = st2
    for tl in range(2, 8):
        nxt = rd_k(tl + 1) if tl + 1 < 8 else None
        qk(tl, cur, bufs[tl], "0")
        tmax(bufs[tl-1], False)
        cur = nxt
    tmax(bufs[7], False)
    a(f"v_max_f32 v{MX}, v{MX}, v{MX+1}")
    a(f"v_mov_b32 v{MX+1}, v{MX}")
    a(f"v_permlane32_swap_b32 v{MX}, v{MX+1}")
    a(f"v_max_f32 v{MX}, v{MX}, v{MX+1}")
    a(f"v_sub_f32 v{NM16}, 0, v{MX}")
    for r in range(1, 16): a(f"v_mov_b32 v{NM16+r}, v{NM16}")
    if OPT.get('fine5'): mark(a)
    st = rd_k(0); st2 = rd_k(8)
    Lv = uid("vb")
    a(f"s_cmp_ge_u32 s{S_W}, 4")
    a(f"s_cbranch_scc1 {Lv}_1")
    a("s_waitcnt vmcnt(0)")
    a.label(f"{Lv}_1")
    if OPT.get('thp', -1) < 0: a("s_waitcnt vmcnt(0)")
    a.vm = []
    a("s_barrier")
    if OPT.get('thp', -1) < 0: flag_store(a, S_FHO, t3)
    dma_wf(a, 0, VW); dma_wf(a, 1, VW)
    mark(a)
    nv = [0]; ps = [0]
    for r in range(16): a(f"v_mov_b32 v{OA+r}, 0")
    def rd_v(tl, kk):
        slot = nv[0] % 4; nv[0] += 1
        for rd in range(2):
            a(f"ds_read_b64_tr_b16 {vr(VF[slot]+2*rd,2)}, v{VV} offset:{tl*256 + kk*128 + rd*64}", tag=('v', tl, kk))
        return slot
    def frag(src):
        p = PF[ps[0] % 4]; ps[0] += 1
        for e in range(8): a(f"v_exp_f32 v{src+e}, v{src+e}")
        for e in range(4): a(f"v_cvt_pk_bf16_f32 v{p+e}, v{src+2*e}, v{src+2*e+1}")
        return p
    def pv(p, slot, tag):
        a.wait_lg(tag)
        a(f"v_mfma_f32_32x32x16_bf16 {vr(OA,16)}, {vr(VF[slot],4)}, {vr(p,4)}, {vr(OA,16)}")
    C = vr(NM16, 16)
    qk(0, st, bufs[0], C)
    st = rd_k(1)
    qk(8, st2, bufs[8], C)
    st2 = rd_k(2)
    qk(1, st, bufs[1], C)
    merge()
    fin = None; ntok = [0]
    for kk in range(2):
        s0 = rd_v(0, kk); s8 = rd_v(8, kk)
        p = frag(SB[0] + 8*kk)
        p8 = PF[ps[0] % 4]; ps[0] += 1
        for e in range(4): a(f"v_and_b32 v{p8+e}, v{p+e}, v{MK+4*kk+e}")
        for e in range(4): a(f"v_xor_b32 v{p+e}, v{p+e}, v{p8+e}")
        pv(p, s0, ('v', 0, kk))
        pv(p8, s8, ('v', 8, kk))
    def publish_h():
        a("s_waitcnt vmcnt(10)")
        a("s_barrier")
        flag_store(a, S_FHO, t3)
    if OPT.get('thp', -1) == 0: publish_h()
    cur = st2
    for tl in range(1, 8):
        if tl + 1 < 8:
            nxt = rd_k(tl + 2) if tl + 2 < 8 else None
            qk(tl + 1, cur, bufs[tl+1], C)
            cur = nxt
        for kk in range(2):
            slot = rd_v(tl, kk)
            p = frag(bufs[tl] + 8*kk)
            pv(p, slot, ('v', tl, kk))
            if fin is not None and OPT.get('spread_t', 1):
                left = OPT.get('td1', 16) - ntok[0]
                nfr = 2*(7 - tl) + (1 - kk) + 1
                for _ in range(-(-left // nfr)):
                    fin(ntok[0]); ntok[0] += 1
        if tl == OPT.get('thp', -1): publish_h()
        if tl == OPT.get('tpoll', 2): poll_issue(a, VPH, VPH+1, 'ph')
        if tl == OPT.get('ttok', 4):
            if OPT.get('fine5'): mark(a)
            fin = final_setup(a, VPH)
            if OPT.get('fine5'): mark(a)
    a(f"v_and_b32 v{t0}, 1, v1")
    a(f"v_mul_u32_u24 v{t0}, {40*1024}, v{t0}")
    a(f"v_bfe_u32 v{t1}, v1, 1, 4")
    a(f"v_lshl_add_u32 v{t0}, v{t1}, 4, v{t0}")
    a(f"s_and_b32 s{T0}, s{S_QB}, 1")
    a(f"s_lshl_b32 s{T0}, s{T0}, 8")
    a(f"s_lshr_b32 s{T1}, s{S_QB}, 1")
    a(f"s_mul_i32 s{T1}, s{T1}, {80*1024}")
    a(f"s_add_u32 s{T0}, s{T0}, s{T1}")
    a(f"s_add_u32 s{T0}, s{T0}, {WS_O}")
    a(f"v_lshrrev_b32 v{t1}, 5, v1")
    a(f"v_lshl_add_u32 v{t2}, v{t1}, 9, v{t0}")
    a(f"v_rcp_f32 v{NM}, v{OA+12}")
    for r in range(12): a(f"v_mul_f32 v{OA+r}, v{OA+r}, v{NM}")
    for e in range(4): a(f"v_cvt_pk_bf16_f32 v{PF[0]+e}, v{OA+2*e}, v{OA+2*e+1}")
    a(f"v_cvt_pk_bf16_f32 v{PF[1]}, v{OA+8}, v{OA+9}")
    a(f"v_cvt_pk_bf16_f32 v{PF[1]+1}, v{OA+10}, v{OA+11}")
    a(f"s_lshl_b32 s{T1}, s{HP}, 1")
    a(f"s_add_u32 s{T1}, s{T1}, s{S_HH}")
    a(f"s_lshl_b32 s{T1}, s{T1}, 10")
    a(f"s_add_u32 s{T1}, s{T1}, s{T0}")
    a(f"buffer_store_dwordx4 {vr(PF[0],4)}, v{t2}, s[{SRD_WS}:{SRD_WS+3}], s{T1} offen sc1", tag='ost')
    a(f"s_lshr_b32 s{T1}, s{HP}, 1")
    a(f"s_add_u32 s{T1}, s{T1}, 32")
    a(f"s_lshl_b32 s{T1}, s{T1}, 10")
    a(f"s_and_b32 s{T2}, s{HP}, 1")
    a(f"s_lshl_b32 s{T2}, s{T2}, 9")
    a(f"s_add_u32 s{T1}, s{T1}, s{T2}")
    a(f"s_lshl_b32 s{T2}, s{S_HH}, 3")
    a(f"s_add_u32 s{T1}, s{T1}, s{T2}")
    a(f"s_add_u32 s{T1}, s{T1}, s{T0}")
    a("s_mov_b32 exec_hi, 0")
    a(f"buffer_store_dwordx2 {vr(PF[1],2)}, v{t0}, s[{SRD_WS}:{SRD_WS+3}], s{T1} offen sc1", tag='ost')
    a("s_mov_b32 exec_hi, -1")
    S_FO = 78
    a(f"s_lshl_b32 s{T0}, s{S_ARB}, 7")
    a(f"s_lshl_b32 s{T1}, s{HP}, 2")
    a(f"s_add_u32 s{T0}, s{T0}, s{T1}")
    a(f"s_add_u32 s{S_FO}, s{T0}, {WS_FLAG + FO}")
    mark(a)
    return dict(VPH=VPH, VW=VW, S_FO=S_FO, fin=fin)

TR, NT, HM, NM_ = 164, 20, 27, 37
F_HB, F_OB, F_TG, F_KG = 70, 71, 72, 81
F_VB = 11
def final_setup(a, VPH):
    TD = OPT.get('td', 16)
    t1, t2, t3 = 6, 7, 8
    a(f"s_and_b32 s{F_TG}, s{S_W}, 3")
    a(f"s_lshr_b32 s{F_KG}, s{S_W}, 2")
    poll_check(a, VPH, VPH+1, 'ph')
    if OPT.get('pfh', 0): touch_h(a, t1, t2)
    a(f"v_lshrrev_b32 v{t1}, 5, v1")
    a(f"v_bfe_u32 v{t2}, v1, 4, 1")
    a(f"v_lshlrev_b32 v{t1}, 10, v{t1}")
    a(f"v_lshl_add_u32 v{t1}, v{t2}, 9, v{t1}")
    a(f"v_and_b32 v{t2}, 15, v1")
    a(f"s_and_b32 s{T0}, s{F_TG}, 1")
    a(f"s_lshl_b32 s{T0}, s{T0}, 4")
    a(f"v_add_u32 v{t3}, s{T0}, v{t2}")
    a(f"v_lshl_add_u32 v{F_VB}, v{t3}, 4, v{t1}")
    a(f"s_lshl_b32 s{T0}, s{S_FRB}, 1")
    a(f"s_lshr_b32 s{T1}, s{F_TG}, 1")
    a(f"s_add_u32 s{T0}, s{T0}, s{T1}")
    a(f"s_lshl_b32 s{T2}, s{F_KG}, 11")
    a(f"s_mul_i32 s{T1}, s{T0}, {108*1024}")
    a(f"s_add_u32 s{T1}, s{T1}, s{T2}")
    a(f"s_add_u32 s{F_HB}, s{T1}, {WS_H}")
    a(f"s_mul_i32 s{T1}, s{T0}, {40*1024}")
    a(f"s_add_u32 s{T1}, s{T1}, s{T2}")
    a(f"s_add_u32 s{F_OB}, s{T1}, {WS_O}")
    def ld_t(m):
        sb, k = (F_HB, m) if m < HM else (F_OB, m - HM)
        if k > 0 and not OPT.get('hotft'): a(f"s_add_u32 s{sb}, s{sb}, 4096")
        a(f"buffer_load_dwordx4 {vr(TR+4*(m % NT),4)}, v{F_VB}, s[{SRD_WS}:{SRD_WS+3}], s{sb} offen sc1", tag=('T', m))
    if not OPT.get('spread_t', 1):
        for m in range(OPT.get('td1', 16)): ld_t(m)
    return ld_t

def stage_final(a, lbl, st):
    VPH, S_FO = st['VPH'], st['S_FO']
    VW = st['VW']; ld_t = st['fin']
    VG, VO, VF = 3, 4, 6
    VA = 12
    t0, t1, t2, t3 = 16, 17, 18, 19
    AS = [20, 40, 60]
    ACB, ACA, BI = 100, 120, 80
    TD = OPT.get('td', 16)
    NM = NM_
    S_TG, S_KG = F_TG, F_KG
    srd(a, SRD_A, P_B2, SIZES['B2'])
    srd(a, SRD_B, P_OUT, SIZES['OUT'])
    a(f"s_mul_i32 s{T0}, s{S_KG}, 5120")
    a(f"v_lshlrev_b32 v{t1}, 4, v1")
    a(f"v_add_u32 v{t1}, s{T0}, v{t1}")
    for k in range(4): a(f"v_add_u32 v{VA+k}, {RING[k]}, v{t1}")
    def rd_a(m, F):
        g, u = m >> 2, m & 3
        a(f"ds_read_b128 {vr(AS[m % 3]+4*F,4)}, v{VA + g % 4} offset:{u*10240 + F*1024}", tag=('A', m, F))
    a.wait_vm(('W', 0))
    a("s_barrier")
    for m in range(2):
        for F in range(5): rd_a(m, F)
    def late_setup():
        a(f"s_lshl_b32 s{T0}, s{S_FRB}, 6")
        a(f"s_lshr_b32 s{T1}, s{S_TG}, 1")
        a(f"s_add_u32 s{T0}, s{T0}, s{T1}")
        a(f"s_and_b32 s{T1}, s{S_TG}, 1")
        a(f"s_lshl_b32 s{T1}, s{T1}, 5")
        a(f"s_add_u32 s{T0}, s{T0}, s{T1}")
        a(f"v_and_b32 v{t3}, 15, v1")
        a(f"v_lshlrev_b32 v{t3}, 1, v{t3}")
        a(f"v_add_u32 v{t3}, s{T0}, v{t3}")
        a(f"v_lshlrev_b32 v{t1}, 2, v{t3}")
        a(f"v_add_u32 v{t1}, {WS_G}, v{t1}")
        a(f"buffer_load_dword v{VG}, v{t1}, s[{SRD_WS}:{SRD_WS+3}], 0 offen sc1", tag='g')
        a(f"v_lshrrev_b32 v{t0}, 4, v1")
        a(f"s_movk_i32 s{T1}, 1280")
        a(f"v_mul_lo_u32 v{t3}, v{t3}, s{T1}")
        a(f"s_mul_i32 s{T0}, s{S_FCJ}, 160")
        a(f"v_lshl_add_u32 v{t3}, v{t0}, 3, v{t3}")
        a(f"v_add_u32 v{VO}, s{T0}, v{t3}")
        a(f"v_lshlrev_b32 v{t1}, 3, v{t0}")
        a(f"v_add_u32 v{t1}, s{T0}, v{t1}")
        for F in range(5):
            a(f"buffer_load_dwordx2 {vr(BI+2*F,2)}, v{t1}, s[{SRD_A}:{SRD_A+3}], 0 offen offset:{32*F}", tag='g')
    if not OPT.get('latef', 1):
        dma_wf(a, 2, VW); late_setup()
    a(f"s_lshr_b32 s{T0}, s{S_FRB}, 1")
    a(f"s_lshl_b32 s{T0}, s{T0}, 7")
    a(f"s_add_u32 s{T0}, s{T0}, {WS_FLAG + FO}")
    a(f"v_and_b32 v{VF}, 15, v1")
    a(f"v_lshlrev_b32 v{VF}, 2, v{VF}")
    a(f"v_add_u32 v{VF}, s{T0}, v{VF}")
    mark(a)
    NG = 10
    MO = OPT.get('mo', 16)
    POLL = MO - 4
    nxt = [OPT.get('td1', 16)]
    for m in range(NM):
        g, u = m >> 2, m & 3
        if m == HM: mark(a)
        if u == 2 and g + 1 < NG:
            if g == 0: a.wait_vm(['ost', ('W', 1)])
            else: a.wait_vm(('W', g + 1))
            a("s_barrier")
            if g == 0:
                flag_store(a, S_FO, t1)
                dma_wf(a, 3, VW)
            elif g + 3 < NG and not OPT.get('f_nodma'): dma_wf(a, g + 3, VW)
        if m == POLL: poll_issue(a, VF, VF+1, 'fo')
        if m == MO:
            if OPT.get('fine6'): mark(a)
            poll_check(a, VF, VF+1, 'fo')
            if OPT.get('fine6'): mark(a)
        a.wait_vm(('T', m))
        for F in range(5):
            a.wait_lg(('A', m, F))
            acc = (ACB if m < HM else ACA) + 4*F
            d = vr(acc, 4)
            a(f"v_mfma_f32_16x16x32_bf16 {d}, {vr(AS[m % 3]+4*F,4)}, {vr(TR+4*(m % NT),4)}, {'0' if m in (0, HM) else d}")
            if m + 2 < NM and not OPT.get('f_nolds'):
                rd_a(m + 2, F)
            if F in (1, 3) and not OPT.get('f_notok'):
                lim = min(m + TD, NM - 1)
                if m < MO: lim = min(lim, HM - 1)
                if nxt[0] <= lim and (F == 1 or nxt[0] < lim or OPT.get('td1', 16) < TD or MO > HM - TD):
                    ld_t(nxt[0]); nxt[0] += 1
        if m == 0 and OPT.get('latef', 1): dma_wf(a, 2, VW)
        if m == 8 and OPT.get('latef', 1): late_setup()
    mark(a)
    a.wait_vm('g')
    a(f"v_sub_f32 v{t0}, 1.0, v{VG}")
    Lb = uid("bi")
    a(f"s_cmp_lg_u32 s{S_KG}, 0")
    a(f"s_cbranch_scc1 {Lb}")
    for F in range(5):
        for e in range(2):
            a(f"v_lshlrev_b32 v{t2}, 16, v{BI+2*F+e}")
            a(f"v_and_b32 v{t3}, 0xffff0000, v{BI+2*F+e}")
            a(f"v_add_f32 v{ACB+4*F+2*e}, v{ACB+4*F+2*e}, v{t2}")
            a(f"v_add_f32 v{ACB+4*F+2*e+1}, v{ACB+4*F+2*e+1}, v{t3}")
    a.label(Lb)
    for r in range(20): a(f"v_mul_f32 v{ACB+r}, v{ACB+r}, v{t0}")
    for r in range(20): a(f"v_fmac_f32 v{ACB+r}, v{ACA+r}, v{VG}")
    a(f"v_lshlrev_b32 v{t1}, 4, v1")
    a(f"s_mul_i32 s{T0}, s{S_TG}, 5120")
    a(f"s_add_u32 s{T0}, s{T0}, {RING[2]}")
    a(f"v_add_u32 v{t1}, s{T0}, v{t1}")
    L = uid("rd")
    def finish(own, other):
        for F in other:
            a(f"ds_write_b128 v{t1}, {vr(ACB+4*F,4)} offset:{F*1024}")
        a("s_waitcnt lgkmcnt(0)")
        a("s_barrier")
        for F in own:
            a(f"ds_read_b128 {vr(ACA+4*F,4)}, v{t1} offset:{F*1024}", tag=('r', F))
        for F in own:
            a.wait_lg(('r', F))
            for r in range(4): a(f"v_add_f32 v{ACB+4*F+r}, v{ACB+4*F+r}, v{ACA+4*F+r}")
            d = AS[0] + 2*F
            a(f"v_cvt_pk_bf16_f32 v{d}, v{ACB+4*F}, v{ACB+4*F+1}")
            a(f"v_cvt_pk_bf16_f32 v{d+1}, v{ACB+4*F+2}, v{ACB+4*F+3}")
            a(f"buffer_store_dwordx2 {vr(d,2)}, v{VO}, s[{SRD_B}:{SRD_B+3}], 0 offen offset:{32*F} {['', 'sc1', 'nt', 'sc0 sc1'][OPT.get('outsc', 0)]}".rstrip())
    a(f"s_cmp_eq_u32 s{S_KG}, 0")
    a(f"s_cbranch_scc1 {L}")
    finish((3, 4), (0, 1, 2))
    if G.STAMPS: a("s_waitcnt vmcnt(0)")
    a("s_endpgm")
    a.label(L)
    a.reset_counters()
    finish((0, 1, 2), (3, 4))
    a.reset_counters()

def code_prefetch(a):
    L = uid("cp")
    a(f"s_cmp_lg_u32 s{S_W}, 3")
    a(f"s_cbranch_scc1 {L}_skip")
    a(f"s_getpc_b64 s[{T4}:{T4+1}]")
    a.label(L)
    a(f"s_and_b32 s{T0}, s{S_I}, 7")
    a(f"s_lshl_b32 s{T0}, s{T0}, 13")
    a("v_lshlrev_b32 v251, 7, v1")
    a(f"v_add_u32 v251, s{T0}, v251")
    a(f"v_min_u32 v251, L_end-{L}-4, v251")
    vm = list(a.vm)
    a(f"global_load_dword v251, v251, s[{T4}:{T4+1}]")
    a.vm = vm
    a.label(f"{L}_skip")

def build():
    if OPT.get('fine2'):
        G_mark = G.mark
    OPT['mega'] = True
    LDS = 163840
    name = NAME + "_kernel"
    a = Asm()
    if G.STAMPS: a("s_memrealtime s[94:95]")
    a("s_cmp_ge_u32 s2, 256")
    a("s_cbranch_scc1 L_end")
    prologue_ids(a)
    CTX['k'] = 0; CTX['slot'] = 0
    stage1g(a, "s1"); mark(a)
    st = stage_attn(a, "attn")
    stage_final(a, "fin", st)
    if G.STAMPS: a("s_waitcnt vmcnt(0)")
    mark(a)
    a.label("L_end")
    return [(name, a.text())], LDS

def emit(ks, LDS):
    s = "\n".join(G.header_comment()) + "\n"
    s += f"; @launch grid=(256,1,1) block=(512,1,1) lds={LDS}\n"
    s += '.amdgcn_target "amdgcn-amd-amdhsa--gfx950"\n.text\n'
    for name, body in ks:
        s += G.kernel_text(name, body, 256, LDS)
    s += '.section .rodata,"a"\n'
    for name, _ in ks:
        s += ".p2align 6\n" + G.descriptor(name)
    return s

if __name__ == "__main__":
    if "stamps" in sys.argv: G.STAMPS = True
    for arg in sys.argv[1:]:
        if "=" in arg:
            k, v = arg.split("="); OPT[k] = int(v)
    ks, LDS = build()
    sys.stdout.write(emit(ks, LDS))
```

```python
import sys
import gen as G
from gen import mark4
from gen import (Asm, NAME, SIZES, srd, vr, uid, OPT, mark, stamp, CTX, dpp_sum16, WF_TILE,
                 P_AX, P_WQKV, P_WO, P_W1, P_B1, P_W2, P_B2, P_GW, P_OUT, P_DBG, P_WS,
                 SRD_A, SRD_B, SRD_WS, SRD_C, S_W, S_IDX, S_X, S_I, T0, T1, T2, T3, T4, T5, T6, T7,
                 S_RB, S_CJ, S_MASK, S_NONCE, nonce_post, nonce_get, publish, wait_flags)

WS_ST   = 0x0000000
WS_CS   = 0x0010000
WS_B1   = 0x0012000
WS_G    = G.WS_G
WS_QKV  = G.WS_QKV
WS_H, WS_O, WS_WF, WS_FLAG = G.WS_H, G.WS_O, G.WS_WF, G.WS_FLAG
FS, FW, FQ, FH, FO, FC = 0, 2048, 3072, 5120, 7168, 9216
PST = 3104
LB = 98304
LK, LV, LONES = LB, LB + 10*PST, LB + 20*PST
RING = [0, 40960, 81920, 122880]
WSLOT = 40960
SRD_D = 60
S_KX, S_KQ, S_K1 = 58, 59, 80
S_QB = 61
S_FHO, S_HBO = 86, 87
S_ARB, S_AHP, S_LW = 88, 89, 90

V_FLG = 250
def flag_setup(a):
    a(f"v_mov_b32 v{V_FLG}, 0x7ffffff0")
    a(f"v_cmp_eq_u32 s[{T4}:{T4+1}], 0, v0")
    a(f"v_cndmask_b32 v{V_FLG}, v{V_FLG}, 0, s[{T4}:{T4+1}]")

def flag_store(a, sflag, v):
    a(f"v_mov_b32 v{v}, s{S_NONCE}")
    a(f"buffer_store_dword v{v}, v{V_FLG}, s[{SRD_WS}:{SRD_WS+3}], s{sflag} offen sc1", tag='flag')

def poll_issue(a, voff, vval, tag):
    a(f"buffer_load_dword v{vval}, v{voff}, s[{SRD_WS}:{SRD_WS+3}], 0 offen sc1", tag=tag)

def poll_check(a, voff, vval, tag):
    L = uid("pc")
    a.wait_vm(tag)
    keep = list(a.vm)
    a(f"v_cmp_ne_u32 vcc, s{S_NONCE}, v{vval}")
    a("s_nop 4")
    a(f"s_cbranch_vccz {L}_ok")
    if OPT.get('fastpoll', 0):
        vs = [vval, 244, 245]
        ld = lambda v: a(f"buffer_load_dword v{v}, v{voff}, s[{SRD_WS}:{SRD_WS+3}], 0 offen sc1")
        for v in vs:
            ld(v); a("s_sleep 2")
        a.label(L)
        for v in vs:
            a("s_waitcnt vmcnt(2)")
            a(f"v_cmp_ne_u32 vcc, s{S_NONCE}, v{v}")
            a("s_nop 4")
            a(f"s_cbranch_vccz {L}_dr")
            ld(v)
            a("s_sleep 2")
        a(f"s_branch {L}")
        a.label(f"{L}_dr")
    else:
        a.label(L)
        a("s_sleep 1")
        a(f"buffer_load_dword v{vval}, v{voff}, s[{SRD_WS}:{SRD_WS+3}], 0 offen sc1")
        a("s_waitcnt vmcnt(0)")
        a(f"v_cmp_ne_u32 vcc, s{S_NONCE}, v{vval}")
        a("s_nop 4")
        a(f"s_cbranch_vccnz {L}")
    a.label(f"{L}_ok")
    a.vm = keep

def poll_recheck(a, voff, vval):
    L = uid("pr")
    keep = list(a.vm)
    a.label(L)
    a(f"v_cmp_ne_u32 vcc, s{S_NONCE}, v{vval}")
    a("s_nop 4")
    a(f"s_cbranch_vccz {L}_ok")
    a("s_sleep 1")
    a(f"buffer_load_dword v{vval}, v{voff}, s[{SRD_WS}:{SRD_WS+3}], 0 offen sc1")
    a("s_waitcnt vmcnt(0)")
    a(f"s_branch {L}")
    a.label(f"{L}_ok")
    a.vm = keep

def probe(a, n):
    if OPT.get('probe') != n: return
    a("s_memrealtime s[92:93]")
    a("s_waitcnt lgkmcnt(0)")
    a("s_sub_u32 s91, s92, s94")

def probe_spin(a):
    if not OPT.get('probe'): return
    L = uid("ps")
    a("s_cmp_lg_u32 s2, 77")
    a(f"s_cbranch_scc1 {L}_e")
    a("s_waitcnt vmcnt(0)")
    a("s_memrealtime s[92:93]")
    a("s_waitcnt lgkmcnt(0)")
    if OPT['probe'] == 9: a("s_sub_u32 s91, s92, s94")
    a("s_lshl_b32 s91, s91, 2")
    a("s_mov_b32 s95, s92")
    a.label(L)
    a("s_memrealtime s[92:93]")
    a("s_waitcnt lgkmcnt(0)")
    a("s_sub_u32 s93, s92, s95")
    a("s_cmp_lt_u32 s93, s91")
    a(f"s_cbranch_scc1 {L}")
    a.label(f"{L}_e")

def prologue_ids(a):
    a("s_load_dwordx16 s[4:19], s[0:1], 0")
    a("s_load_dwordx8 s[20:27], s[0:1], 64")
    a("v_lshrrev_b32 v2, 6, v0")
    a("v_and_b32 v1, 63, v0")
    a(f"v_readfirstlane_b32 s{S_W}, v2")
    a(f"s_and_b32 s{S_X}, s2, 7")
    a(f"s_lshr_b32 s{S_I}, s2, 3")
    if OPT.get('cpf', 2) >= 2: code_prefetch(a)
    a(f"s_lshr_b32 s{T0}, s{S_X}, 2")
    a(f"s_lshl_b32 s{T0}, s{T0}, 3")
    a(f"s_and_b32 s{T1}, s{S_I}, 7")
    a(f"s_add_u32 s{S_RB}, s{T0}, s{T1}")
    a(f"s_and_b32 s{T0}, s{S_X}, 3")
    a(f"s_lshl_b32 s{T0}, s{T0}, 2")
    a(f"s_lshr_b32 s{T1}, s{S_I}, 3")
    a(f"s_add_u32 s{S_CJ}, s{T0}, s{T1}")

def prologue_rest(a):
    srd(a, SRD_WS, P_WS, G.WS_SIZE)
    flag_setup(a)
    nonce_post(a)
    if OPT.get('cpf', 2) == 1: code_prefetch(a)
    stamp(a, 0, 0)
    if G.STAMPS:
        a("s_lshl_b32 s97, s2, 7")
        a(f"s_add_u32 s97, s97, {G.WS_STAMP + 15*4}")
        a("v_mov_b32 v254, s94")
        a(f"buffer_store_dword v254, off, s[{SRD_WS}:{SRD_WS+3}], s97")
        a.vm.pop()

RX, RG, RT, RO = 160, 168, 176, 186
VS = 128
S_ST, S_RPO, S_RPM = 82, 83, 84

def pre_address(a, lbl, two=False, rows=True):
    t0, t1, t2, t3, t4, t5 = range(RT, RT+6)
    if rows: row_address(a, two)
    repack_address(a, lbl)

def row_address(a, two):
    t0, t1, t2, t3, t4, t5 = range(RT, RT+6)
    srd(a, SRD_D, P_GW, SIZES['GW'])
    a(f"s_lshl_b32 s{T0}, s{S_RB}, 7")
    a(f"s_lshl_b32 s{T1}, s{S_CJ}, 3")
    a(f"s_add_u32 s{T0}, s{T0}, s{T1}")
    a(f"s_add_u32 s{T0}, s{T0}, s{S_W}")
    if two: a(f"s_sub_u32 s{T0}, s{T0}, 4")
    a(f"s_mul_i32 s{T1}, s{T0}, 1280")
    a(f"v_lshlrev_b32 v{RO+1}, 4, v1")
    a(f"v_add_u32 v{RO}, s{T1}, v{RO+1}")
    a(f"v_mov_b32 v{t0}, 0x7ffffff0")
    a(f"v_cmp_gt_u32 s[{T4}:{T4+1}], 16, v1")
    a(f"v_add_u32 v{t1}, 1024, v{RO}")
    a(f"v_cndmask_b32 v{RO+2}, v{t0}, v{t1}, s[{T4}:{T4+1}]")
    a(f"v_add_u32 v{t1}, 1024, v{RO+1}")
    a(f"v_cndmask_b32 v{RO+3}, v{t0}, v{t1}, s[{T4}:{T4+1}]")
    a(f"s_mov_b32 s85, s{T0}")

def repack_address(a, lbl):
    t0, t1, t2, t3, t4, t5 = range(RT, RT+6)
    a(f"s_mul_i32 s{T0}, s{S_I}, 3")
    a(f"s_lshl_b32 s{T1}, s{S_I}, 1")
    a(f"s_add_u32 s{T1}, s{T1}, 10")
    a(f"s_cmp_lt_u32 s{S_I}, 10")
    a(f"s_cselect_b32 s{T0}, s{T0}, s{T1}")
    a(f"s_cselect_b32 s{T1}, 3, 2")
    a(f"s_sub_u32 s{T2}, s{S_W}, 4")
    a(f"s_add_u32 s{S_ST}, s{T0}, s{T2}")
    a(f"s_cmp_lt_u32 s{T2}, s{T1}")
    a(f"s_cselect_b32 s{S_ST}, s{S_ST}, 0x100")
    a(f"s_cselect_b32 s{S_RPO}, 0, 0x7fff0000")
    a(f"s_mul_i32 s{T2}, s{T2}, 5120")
    a(f"s_add_u32 s{T2}, s{T2}, {RPL}")
    a(f"s_cselect_b32 s{S_RPM}, s{T2}, s{T2}") if False else None
    a(f"s_cmp_lt_u32 s{S_ST}, 74")
    a(f"s_cselect_b32 s{S_RPM}, s{T2}, {163840}")
    for n in range(5): a(f"v_mov_b32 v{VS+n}, 0")
    srd(a, SRD_C, P_W2, SIZES['W2'])
    a(f"s_cmp_ge_u32 s{S_ST}, 74")
    a(f"s_cbranch_scc1 {lbl}_go")
    a(f"s_movk_i32 s{T6}, 6554")
    a(f"s_movk_i32 s{T7}, 1280")
    a(f"s_mul_i32 s{T2}, s{S_X}, 160")
    a(f"s_cmp_ge_u32 s{S_ST}, 54")
    a(f"s_cbranch_scc1 {lbl}_wo")
    a(f"s_lshl_b32 s{T3}, s{S_ST}, 5")
    for n in range(5):
        a(f"v_add_u32 v{t0}, {64*n}, v1")
        a(f"v_mul_u32_u24 v{t1}, s{T6}, v{t0}")
        a(f"v_lshrrev_b32 v{t1}, 16, v{t1}")
        a(f"v_mul_u32_u24 v{t2}, 10, v{t1}")
        a(f"v_sub_u32 v{t2}, v{t0}, v{t2}")
        a(f"v_add_u32 v{t1}, s{T3}, v{t1}")
        a(f"v_mul_lo_u32 v{t1}, v{t1}, s{T7}")
        a(f"v_lshl_add_u32 v{t1}, v{t2}, 4, v{t1}")
        a(f"v_add_u32 v{VS+n}, s{T2}, v{t1}")
    a(f"s_branch {lbl}_go")
    a.label(f"{lbl}_wo")
    srd(a, SRD_C, P_WO, SIZES['WO'])
    a(f"s_sub_u32 s{T3}, s{S_ST}, 54")
    a(f"s_lshl_b32 s{T3}, s{T3}, 1")
    for n in range(5):
        a(f"v_add_u32 v{t0}, {64*n}, v1")
        a(f"v_mul_u32_u24 v{t1}, s{T6}, v{t0}")
        a(f"v_lshrrev_b32 v{t1}, 16, v{t1}")
        a(f"v_mul_u32_u24 v{t2}, 10, v{t1}")
        a(f"v_sub_u32 v{t2}, v{t0}, v{t2}")
        a(f"v_lshrrev_b32 v{t3}, 4, v{t1}")
        a(f"v_add_u32 v{t3}, s{T3}, v{t3}")
        a(f"v_and_b32 v{t1}, 15, v{t1}")
        a(f"v_mul_u32_u24 v{t4}, 20, v{t3}")
        a(f"v_add_u32 v{t4}, v{t4}, v{t1}")
        a(f"v_cmp_gt_u32 s[98:99], 32, v{t3}")
        a(f"v_subrev_u32 v{t3}, 32, v{t3}")
        a(f"v_lshlrev_b32 v{t3}, 2, v{t3}")
        a(f"v_bfe_u32 v{t5}, v{t1}, 2, 1")
        a(f"v_lshl_add_u32 v{t3}, v{t5}, 1, v{t3}")
        a(f"v_lshrrev_b32 v{t5}, 3, v{t1}")
        a(f"v_add_u32 v{t3}, v{t3}, v{t5}")
        a(f"v_mul_u32_u24 v{t3}, 20, v{t3}")
        a(f"v_and_b32 v{t1}, 3, v{t1}")
        a(f"v_add3_u32 v{t3}, v{t3}, v{t1}, 16")
        a(f"v_cndmask_b32 v{t1}, v{t3}, v{t4}, s[98:99]")
        a(f"v_mul_lo_u32 v{t1}, v{t1}, s{T7}")
        a(f"v_lshl_add_u32 v{t1}, v{t2}, 4, v{t1}")
        a(f"v_add_u32 v{VS+n}, s{T2}, v{t1}")
    a.label(f"{lbl}_go")

def row_issue2(a):
    a(f"v_add_u32 v{RO}, {4*1280}, v{RO}")
    a(f"v_mov_b32 v{RT}, 0x7ffffff0")
    a(f"v_add_u32 v{RT+1}, 1024, v{RO}")
    a(f"v_cmp_gt_u32 s[100:101], 16, v1")
    a(f"v_cndmask_b32 v{RO+2}, v{RT}, v{RT+1}, s[100:101]")
    a(f"buffer_load_dwordx4 {vr(RX2,4)}, v{RO}, s[{SRD_A}:{SRD_A+3}], 0 offen", tag='pl2')
    a(f"buffer_load_dwordx4 {vr(RX2+4,4)}, v{RO+2}, s[{SRD_A}:{SRD_A+3}], 0 offen", tag='pl2')

RX2 = 192
def pre_issue(a, rows=True):
    if rows:
        a(f"buffer_load_dwordx4 {vr(RX,4)}, v{RO}, s[{SRD_A}:{SRD_A+3}], 0 offen", tag='pl')
        a(f"buffer_load_dwordx4 {vr(RX+4,4)}, v{RO+2}, s[{SRD_A}:{SRD_A+3}], 0 offen", tag='pl')
        a(f"buffer_load_dwordx4 {vr(RG,4)}, v{RO+1}, s[{SRD_D}:{SRD_D+3}], 0 offen", tag='pl')
        a(f"buffer_load_dwordx4 {vr(RG+4,4)}, v{RO+3}, s[{SRD_D}:{SRD_D+3}], 0 offen", tag='pl')
    for n in range(5):
        a(f"s_add_u32 m0, s{S_RPM}, {n*1024}")
        a(f"buffer_load_dwordx4 v{VS+n}, s[{SRD_C}:{SRD_C+3}], s{S_RPO} offen lds", tag='pl')

def pre_thunks(a, RX=RX, tag='pl', VO=RO):
    su, sq, dt, one, t0, t1, t2 = range(RT, RT+7)
    T = []
    I = lambda txt: T.append(lambda: a(txt))
    T.append(lambda: a.wait_vm(tag))
    I(f"v_mov_b32 v{one}, 0x3f803f80")
    I(f"v_mov_b32 v{su}, 0"); I(f"v_mov_b32 v{sq}, 0"); I(f"v_mov_b32 v{dt}, 0")
    for d in range(8):
        I(f"v_dot2c_f32_bf16 v{su}, v{RX+d}, v{one}")
        I(f"v_dot2c_f32_bf16 v{sq}, v{RX+d}, v{RX+d}")
        I(f"v_dot2c_f32_bf16 v{dt}, v{RX+d}, v{RG+d}")
    for r in (8, 4, 2, 1):
        for v in (su, sq, dt):
            I(f"v_add_f32_dpp v{v}, v{v}, v{v} row_ror:{r} row_mask:0xf bank_mask:0xf")
    for op in ("v_permlane16_swap_b32", "v_permlane32_swap_b32"):
        for v, t in ((su, t0), (sq, t1), (dt, t2)): I(f"v_mov_b32 v{t}, v{v}")
        for v, t in ((su, t0), (sq, t1), (dt, t2)): I(f"{op} v{v}, v{t}")
        for v, t in ((su, t0), (sq, t1), (dt, t2)): I(f"v_add_f32 v{v}, v{v}, v{t}")
    I(f"v_mul_f32 v{su}, 0x3acccccd, v{su}")
    I(f"v_mul_f32 v{sq}, 0x3acccccd, v{sq}")
    I(f"v_mul_f32 v{dt}, 0xbfb8aa3b, v{dt}")
    I(f"v_fma_f32 v{sq}, -v{su}, v{su}, v{sq}")
    I(f"v_exp_f32 v{dt}, v{dt}")
    I(f"v_add_f32 v{sq}, 0x3727c5ac, v{sq}")
    I(f"v_add_f32 v{dt}, 1.0, v{dt}")
    I(f"v_rsq_f32 v{t1}, v{sq}")
    I(f"v_rcp_f32 v{dt}, v{dt}")
    I(f"v_mul_f32 v{t0}, v{su}, v{t1}")
    I(f"v_sub_f32 v{t0}, 0, v{t0}")
    I(f"v_mov_b32 v{VO}, 0x7ffffff0")
    I(f"v_cmp_eq_u32 s[100:101], 0, v1")
    I(f"v_cndmask_b32 v{VO}, v{VO}, 0, s[100:101]")
    I(f"s_lshl_b32 s98, s85, 3")
    I(f"s_add_u32 s98, s98, {WS_ST}")
    T.append(lambda: a(f"buffer_store_dwordx2 {vr(t0,2)}, v{VO}, s[{SRD_WS}:{SRD_WS+3}], s98 offen sc1", tag='pst'))
    I(f"s_lshl_b32 s98, s85, 2")
    I(f"s_add_u32 s98, s98, {WS_G}")
    T.append(lambda: a(f"buffer_store_dword v{dt}, v{VO}, s[{SRD_WS}:{SRD_WS+3}], s98 offen sc1", tag='pst'))
    return T

def rowstats_issue(a):
    XB, GW, o0, o1, t0 = 128, 108, 96, 97, 98
    srd(a, SRD_D, P_GW, SIZES['GW'])
    a(f"s_lshl_b32 s{T0}, s{S_RB}, 7")
    a(f"s_lshl_b32 s{T1}, s{S_W}, 4")
    a(f"s_add_u32 s85, s{T0}, s{T1}")
    a(f"v_lshrrev_b32 v{t0}, 4, v1")
    a(f"v_add_u32 v{t0}, s85, v{t0}")
    a(f"s_movk_i32 s{T1}, 1280")
    a(f"v_mul_lo_u32 v{o0}, v{t0}, s{T1}")
    a(f"v_and_b32 v{o1}, 15, v1")
    a(f"v_lshlrev_b32 v{o1}, 4, v{o1}")
    a(f"v_add_u32 v{o0}, v{o0}, v{o1}")
    for i in range(5):
        a(f"buffer_load_dwordx4 {vr(GW+4*i,4)}, v{o1}, s[{SRD_D}:{SRD_D+3}], 0 offen offset:{256*i}", tag='gw')
    for q in range(4):
        a(f"s_movk_i32 s{T2}, {q*4*1280}")
        for i in range(5):
            a(f"buffer_load_dwordx4 {vr(XB+20*q+4*i,4)}, v{o0}, s[{SRD_A}:{SRD_A+3}], s{T2} offen offset:{256*i}", tag=('x', q))

def rowstats_compute(a):
    XB, GW = 128, 108
    su, sq, dt, one, t0, t1, t2 = 98, 99, 100, 101, 102, 103, 104
    NMv, RSv, GV = 106, 107, 105
    a(f"v_mov_b32 v{one}, 0x3f803f80")
    a(f"v_and_b32 v{t2}, 15, v1")
    for q in range(4):
        a.wait_vm(('x', q))
        a(f"v_mov_b32 v{su}, 0"); a(f"v_mov_b32 v{sq}, 0"); a(f"v_mov_b32 v{dt}, 0")
        for d in range(20):
            x = XB + 20*q + d
            a(f"v_dot2c_f32_bf16 v{su}, v{x}, v{one}")
            a(f"v_dot2c_f32_bf16 v{sq}, v{x}, v{x}")
            a(f"v_dot2c_f32_bf16 v{dt}, v{x}, v{GW+d}")
        for k in (8, 4, 2, 1):
            for v in (su, sq, dt):
                a(f"v_add_f32_dpp v{v}, v{v}, v{v} row_ror:{k} row_mask:0xf bank_mask:0xf")
        a(f"v_mul_f32 v{su}, 0x3acccccd, v{su}")
        a(f"v_mul_f32 v{sq}, 0x3acccccd, v{sq}")
        a(f"v_mul_f32 v{dt}, 0xbfb8aa3b, v{dt}")
        a(f"v_fma_f32 v{sq}, -v{su}, v{su}, v{sq}")
        a(f"v_exp_f32 v{dt}, v{dt}")
        a(f"v_max_f32 v{sq}, 0, v{sq}")
        a(f"v_add_f32 v{sq}, 0x3727c5ac, v{sq}")
        a(f"v_add_f32 v{dt}, 1.0, v{dt}")
        a(f"v_rsq_f32 v{t1}, v{sq}")
        a(f"v_rcp_f32 v{dt}, v{dt}")
        a(f"v_mul_f32 v{t0}, v{su}, v{t1}")
        a(f"v_sub_f32 v{t0}, 0, v{t0}")
        a(f"v_cmp_eq_u32 s[{T4}:{T4+1}], {q}, v{t2}")
        a(f"v_cndmask_b32 v{NMv}, v{NMv}, v{t0}, s[{T4}:{T4+1}]")
        a(f"v_cndmask_b32 v{RSv}, v{RSv}, v{t1}, s[{T4}:{T4+1}]")
        a(f"v_cndmask_b32 v{GV}, v{GV}, v{dt}, s[{T4}:{T4+1}]")
    a(f"v_lshrrev_b32 v{t0}, 4, v1")
    a(f"v_lshl_add_u32 v{t0}, v{t2}, 2, v{t0}")
    a(f"v_add_u32 v{t0}, s85, v{t0}")
    a(f"v_mov_b32 v{su}, 0x7ffffff0")
    a(f"v_cmp_gt_u32 s[{T4}:{T4+1}], 4, v{t2}")
    a(f"v_lshlrev_b32 v{t1}, 3, v{t0}")
    a(f"v_cndmask_b32 v{t1}, v{su}, v{t1}, s[{T4}:{T4+1}]")
    a(f"v_lshlrev_b32 v{t0}, 2, v{t0}")
    a(f"v_cndmask_b32 v{t0}, v{su}, v{t0}, s[{T4}:{T4+1}]")
    a(f"s_mov_b32 s{T0}, {WS_ST}")
    a(f"buffer_store_dwordx2 {vr(NMv,2)}, v{t1}, s[{SRD_WS}:{SRD_WS+3}], s{T0} offen sc1", tag='pst')
    a(f"s_mov_b32 s{T0}, {WS_G}")
    a(f"buffer_store_dword v{GV}, v{t0}, s[{SRD_WS}:{SRD_WS+3}], s{T0} offen sc1", tag='pst')

RPL = 147456
def repack_finish(a):
    D, VA, VD = 136, 134, 135
    L = uid("rf")
    a(f"v_mov_b32 v{VD}, 0x7ffffff0")
    a(f"s_cmp_ge_u32 s82, 74")
    a(f"s_cbranch_scc1 {L}")
    a(f"s_mul_i32 s{T0}, s{S_X}, {WF_TILE}")
    a(f"s_mul_i32 s{T1}, s82, 5120")
    a(f"s_add_u32 s{T0}, s{T0}, s{T1}")
    a(f"s_add_u32 s{T0}, s{T0}, {WS_WF}")
    a(f"v_lshlrev_b32 v{VD}, 4, v1")
    a(f"v_add_u32 v{VD}, s{T0}, v{VD}")
    a(f"v_lshrrev_b32 v{VA}, 5, v1")
    a(f"v_bfe_u32 v{D}, v1, 4, 1")
    a(f"v_lshlrev_b32 v{VA}, 4, v{VA}")
    a(f"v_lshl_add_u32 v{VA}, v{D}, 2, v{VA}")
    a(f"v_bfe_u32 v{D}, v1, 2, 2")
    a(f"v_add_u32 v{VA}, v{VA}, v{D}")
    a(f"v_mul_u32_u24 v{VA}, 160, v{VA}")
    a(f"v_and_b32 v{D}, 3, v1")
    a(f"v_lshl_add_u32 v{VA}, v{D}, 3, v{VA}")
    a(f"v_add_u32 v{VA}, s{S_RPM}, v{VA}")
    lg = list(a.lg)
    for F in range(5):
        for rd in range(2):
            a(f"ds_read_b64_tr_b16 {vr(D+4*F+2*rd,2)}, v{VA} offset:{rd*1280 + F*32}")
    a("s_waitcnt lgkmcnt(0)")
    a.lg = lg
    a.label(L)
    for F in range(5):
        a(f"s_movk_i32 s{T1}, {F*1024}")
        a(f"buffer_store_dwordx4 {vr(D+4*F,4)}, v{VD}, s[{SRD_WS}:{SRD_WS+3}], s{T1} offen sc1", tag='pst')

def nonce_issue(a, v):
    a(f"v_mov_b32 v{v+1}, 0")
    a(f"global_load_dword v{v}, v{v+1}, s[{P_DBG}:{P_DBG+1}] sc1", tag='nonce')

def nonce_check(a, v):
    L = uid("ng")
    a.wait_vm('nonce')
    keep = list(a.vm)
    a.label(L)
    a(f"v_readfirstlane_b32 s{S_NONCE}, v{v}")
    a(f"s_cmp_lg_u32 s{S_NONCE}, 0")
    a(f"s_cbranch_scc1 {L}_ok")
    a("s_sleep 2")
    a(f"global_load_dword v{v}, v{v+1}, s[{P_DBG}:{P_DBG+1}] sc1")
    a("s_waitcnt vmcnt(0)")
    a(f"s_branch {L}")
    a.label(f"{L}_ok")
    a.vm = keep

def pre_flags(a, v, stats=True):
    if stats:
        a(f"s_lshl_b32 s{T0}, s{S_RB}, 7")
        a(f"s_add_u32 s{T0}, s{T0}, {WS_FLAG + FS}")
        flag_store(a, T0, v)
    a(f"s_lshl_b32 s{T0}, s{S_X}, 7")
    a(f"s_lshl_b32 s{T1}, s{S_I}, 2")
    a(f"s_add_u32 s{T0}, s{T0}, s{T1}")
    a(f"s_add_u32 s{T0}, s{T0}, {WS_FLAG + FW}")
    flag_store(a, T0, v)

CD = 16
def colsum_issue(a):
    srd(a, SRD_B, P_W1, SIZES['W1'])
    srd(a, SRD_C, P_B1, SIZES['B1']) if False else None
    t0, t1, VO = 2, 3, 5
    a(f"v_lshrrev_b32 v{t0}, 4, v0")
    a(f"s_movk_i32 s{T0}, 3456")
    a(f"v_mul_lo_u32 v{t0}, v{t0}, s{T0}")
    a(f"v_and_b32 v{t1}, 15, v0")
    a(f"v_lshl_add_u32 v{t0}, v{t1}, 4, v{t0}")
    a(f"s_lshl_b32 s{T1}, s{S_RB}, 8")
    a(f"v_add_u32 v{VO}, s{T1}, v{t0}")
    a(f"s_cmp_lt_u32 s{S_RB}, 14")
    a(f"s_cselect_b32 s{T3}, 0, 0x7fff0000")
    for p in range(20):
        a(f"s_add_u32 s{T2}, s{T3}, {p*32*3456}")
        a(f"buffer_load_dwordx4 {vr(CD+4*p,4)}, v{VO}, s[{SRD_B}:{SRD_B+3}], s{T2} offen", tag=('cs', p))

def colsum_compute(a, lbl):
    t0, t1, t2 = 2, 3, 4
    ACC, LO, HI = 8, 6, 7
    srd(a, SRD_B, P_B1, SIZES['B1'])
    a(f"s_lshl_b32 s{T1}, s{S_RB}, 8")
    a(f"v_lshlrev_b32 v{t2}, 1, v0")
    a(f"v_add_u32 v{t2}, s{T1}, v{t2}")
    a(f"buffer_load_ushort v{t2}, v{t2}, s[{SRD_B}:{SRD_B+3}], 0 offen", tag='b1')
    a(f"v_mov_b32 v{LO}, 0x00003f80")
    a(f"v_mov_b32 v{HI}, 0x3f800000")
    for e in range(8): a(f"v_mov_b32 v{ACC+e}, 0")
    for p in range(20):
        a.wait_vm(('cs', p))
        for d in range(4):
            a(f"v_dot2c_f32_bf16 v{ACC+2*d}, v{CD+4*p+d}, v{LO}")
            a(f"v_dot2c_f32_bf16 v{ACC+2*d+1}, v{CD+4*p+d}, v{HI}")
    a(f"v_lshrrev_b32 v{t0}, 4, v0")
    a(f"v_lshlrev_b32 v{t0}, 9, v{t0}")
    a(f"v_and_b32 v{t1}, 15, v0")
    a(f"v_lshl_add_u32 v{t0}, v{t1}, 5, v{t0}")
    a(f"ds_write_b128 v{t0}, {vr(ACC,4)}")
    a(f"ds_write_b128 v{t0}, {vr(ACC+4,4)} offset:16")
    a("s_waitcnt lgkmcnt(0)")
    a("s_barrier")
    a(f"v_and_b32 v{t0}, 127, v0")
    a(f"v_lshlrev_b32 v{t0}, 2, v{t0}")
    for g in range(32):
        a(f"ds_read_b32 v{CD+g}, v{t0} offset:{g*512}")
    a("s_waitcnt lgkmcnt(0)")
    for g in range(0, 32, 2): a(f"v_add_f32 v{CD+g}, v{CD+g}, v{CD+g+1}")
    for g in range(2, 32, 2): a(f"v_add_f32 v{CD}, v{CD}, v{CD+g}")
    a.wait_vm('b1')
    a(f"v_lshlrev_b32 v{t2}, 16, v{t2}")
    a(f"s_lshl_b32 s{T1}, s{S_RB}, 9")
    a(f"v_add_u32 v{t0}, s{T1}, v{t0}")
    a(f"v_mov_b32 v{t1}, 0x7ffffff0")
    a(f"v_mov_b32 v{LO}, 128")
    a(f"v_cmp_gt_u32 s[{T4}:{T4+1}], v{LO}, v0")
    a(f"v_cndmask_b32 v{t0}, v{t1}, v{t0}, s[{T4}:{T4+1}]")
    a(f"s_mov_b32 s{T0}, 0x7fff0000")
    a(f"s_cmp_lt_u32 s{S_RB}, 14")
    a(f"s_cselect_b32 s{T2}, {WS_CS}, s{T0}")
    a(f"s_cselect_b32 s{T3}, {WS_B1}, s{T0}")
    a(f"buffer_store_dword v{CD}, v{t0}, s[{SRD_WS}:{SRD_WS+3}], s{T2} offen sc1", tag='pst')
    a(f"buffer_store_dword v{t2}, v{t0}, s[{SRD_WS}:{SRD_WS+3}], s{T3} offen sc1", tag='pst')

S_FRB, S_FCJ = 73, 74
S_WM, S_WG = 75, 76

def final_coords(a):
    a(f"s_lshr_b32 s{T0}, s{S_X}, 1")
    a(f"s_lshl_b32 s{T0}, s{T0}, 3")
    a(f"s_and_b32 s{T1}, s{S_I}, 7")
    a(f"s_add_u32 s{S_FRB}, s{T0}, s{T1}")
    a(f"s_and_b32 s{T0}, s{S_X}, 1")
    a(f"s_lshl_b32 s{T0}, s{T0}, 2")
    a(f"s_lshr_b32 s{T1}, s{S_I}, 3")
    a(f"s_add_u32 s{S_FCJ}, s{T0}, s{T1}")
    a(f"s_mul_i32 s{S_WM}, s{S_W}, 5120")
    a(f"s_mul_i32 s{T0}, s{S_FCJ}, {WF_TILE}")
    a(f"s_add_u32 s{T0}, s{T0}, s{S_WM}")
    a(f"s_add_u32 s{S_WG}, s{T0}, {WS_WF}")

def dma_wf(a, g, vw):
    S_KW = 77
    a(f"s_add_u32 m0, s{S_WM}, {RING[g % 4]}")
    a(f"s_add_u32 s{S_KW}, s{S_WG}, {0 if OPT.get('hotfw') else g*WSLOT}")
    if g == 9:
        a(f"s_cmp_ge_u32 s{S_W}, 2")
        a(f"s_cselect_b32 s{S_KW}, 0x7fff0000, s{S_KW}")
    for n in range(4):
        a(f"buffer_load_dwordx4 v{vw}, s[{SRD_WS}:{SRD_WS+3}], s{S_KW} offen offset:{n*1024} sc1 lds", tag=('W', g))
    a(f"s_add_u32 m0, m0, 4096")
    a(f"s_add_u32 s{S_KW}, s{S_KW}, 4096")
    a(f"buffer_load_dwordx4 v{vw}, s[{SRD_WS}:{SRD_WS+3}], s{S_KW} offen sc1 lds", tag=('W', g))

SL2 = 32768
def attn_coords(a):
    a(f"s_lshl_b32 s{T0}, s{S_X}, 1")
    a(f"s_and_b32 s{T1}, s{S_I}, 1")
    a(f"s_add_u32 s{S_AHP}, s{T0}, s{T1}")
    a(f"s_lshr_b32 s{S_ARB}, s{S_I}, 1")
    a(f"s_lshr_b32 s78, s{S_W}, 2")
    a(f"s_and_b32 s79, s{S_W}, 3")

def fq_poll_offsets(a, vo, vt):
    a(f"v_lshrrev_b32 v{vo}, 4, v1")
    a(f"s_sub_u32 s{T0}, s{S_ARB}, 2")
    a(f"v_add_u32 v{vo}, s{T0}, v{vo}")
    a(f"v_and_b32 v{vt}, 15, v1")
    a(f"v_cmp_le_i32 s[{T4}:{T4+1}], 0, v{vo}")
    a(f"v_cmp_gt_u32 s[{T2}:{T2+1}], 15, v{vt}")
    a(f"s_and_b64 s[{T4}:{T4+1}], s[{T4}:{T4+1}], s[{T2}:{T2+1}]")
    a(f"s_mov_b32 s{T2}, -1")
    a(f"s_mov_b32 s{T2+1}, 0xffff")
    a(f"s_and_b64 s[{T4}:{T4+1}], s[{T4}:{T4+1}], s[{T2}:{T2+1}]")
    a(f"v_lshlrev_b32 v{vo}, 7, v{vo}")
    a(f"v_lshl_add_u32 v{vo}, v{vt}, 2, v{vo}")
    a(f"s_lshl_b32 s{T0}, s{S_ARB}, 7")
    a(f"v_mov_b32 v{vt}, s{T0}")
    a(f"v_cndmask_b32 v{vo}, v{vt}, v{vo}, s[{T4}:{T4+1}]")
    a(f"v_add_u32 v{vo}, {WS_FLAG + FQ}, v{vo}")

def attn_q_loads(a, t0, t1, t2, t3, AQ0=20, AQ1=24):
    a(f"s_lshl_b32 s{T0}, s{S_ARB}, 2")
    a(f"s_add_u32 s{S_QB}, s{T0}, s79")
    a(f"v_and_b32 v{t0}, 31, v1")
    a(f"v_lshrrev_b32 v{t1}, 5, v1")
    a(f"s_lshl_b32 s{T1}, s{S_QB}, 8")
    a(f"v_lshlrev_b32 v{t2}, 3, v{t0}")
    a(f"v_add_u32 v{t2}, s{T1}, v{t2}")
    a(f"v_lshl_add_u32 v{t3}, v{t1}, 15, v{t2}")
    a(f"s_lshl_b32 s{T2}, s{S_AHP}, 1")
    a(f"s_add_u32 s{T2}, s{T2}, s78")
    a(f"s_mul_i32 s{T2}, s{T2}, {5*16384}")
    a(f"s_add_u32 s{T1}, s{T2}, {WS_QKV}")
    a(f"buffer_load_dwordx2 {vr(AQ0,2)}, v{t3}, s[{SRD_WS}:{SRD_WS+3}], s{T1} offen sc1", tag='q')
    a(f"s_add_u32 s{T1}, s{T1}, 16384")
    a(f"buffer_load_dwordx2 {vr(AQ0+2,2)}, v{t3}, s[{SRD_WS}:{SRD_WS+3}], s{T1} offen sc1", tag='q')
    a(f"s_add_u32 s{T1}, s{T1}, {3*16384}")
    a(f"buffer_load_dwordx2 {vr(AQ1,2)}, v{t2}, s[{SRD_WS}:{SRD_WS+3}], s{T1} offen sc1", tag='q')

def fw_poll_offsets(a, vo):
    a(f"v_and_b32 v{vo}, 31, v1")
    a(f"v_lshlrev_b32 v{vo}, 2, v{vo}")
    a(f"s_lshl_b32 s{T1}, s{S_FCJ}, 7")
    a(f"s_add_u32 s{T1}, s{T1}, {WS_FLAG + FW}")
    a(f"v_add_u32 v{vo}, s{T1}, v{vo}")

def wf_first_slots(a, vw):
    a(f"v_lshlrev_b32 v{vw}, 4, v1")
    a(f"s_mul_i32 s{T0}, s{S_W}, 10240")
    a(f"s_mul_i32 s{T1}, s{S_FCJ}, {WF_TILE}")
    a(f"s_add_u32 s{T1}, s{T1}, s{T0}")
    a(f"s_add_u32 s{T1}, s{T1}, {WS_WF}")
    for g in range(2):
        for part in range(3):
            a(f"s_add_u32 m0, s{T0}, {RING[g] + part*4096}")
            a(f"s_add_u32 s{T2}, s{T1}, {g*WSLOT + part*4096}")
            for n in range(4 if part < 2 else 2):
                a(f"buffer_load_dwordx4 v{vw}, s[{SRD_WS}:{SRD_WS+3}], s{T2} offen offset:{n*1024} sc1 lds", tag=('W', g))

QL = 81920
def attn_stage_q(a, vd):
    a(f"v_lshlrev_b32 v{vd}, 4, v1")
    a(f"s_mul_i32 s{T2}, s{S_AHP}, {10*16384}")
    a(f"s_lshl_b32 s{T0}, s{S_ARB}, 10")
    a(f"s_add_u32 s{T2}, s{T2}, s{T0}")
    a(f"s_add_u32 s{T2}, s{T2}, {WS_QKV}")
    for k in range(3):
        a(f"s_add_u32 s{T0}, s{S_W}, {4*k}")
        a(f"s_lshl_b32 s{T1}, s{T0}, 14")
        a(f"s_add_u32 s{T1}, s{T1}, s{T2}")
        a(f"s_lshl_b32 s{T3}, s{T0}, 10")
        a(f"s_add_u32 s{T3}, s{T3}, {QL}")
        if k == 2:
            a(f"s_cmp_lt_u32 s{T0}, 10")
            a(f"s_cselect_b32 s{T1}, s{T1}, 0x7fff0000")
        a(f"s_mov_b32 m0, s{T3}")
        a(f"buffer_load_dwordx4 v{vd}, s[{SRD_WS}:{SRD_WS+3}], s{T1} offen sc1 lds", tag='q')

def touch_wf(a, v0_, v1_):
    a(f"s_and_b32 s{T0}, s{S_I}, 7")
    a(f"s_mul_i32 s{T0}, s{T0}, {370*128}")
    a(f"s_mul_i32 s{T1}, s{S_FCJ}, {WF_TILE}")
    a(f"s_add_u32 s{T0}, s{T0}, s{T1}")
    a(f"s_add_u32 s{T0}, s{T0}, {WS_WF}")
    a(f"v_lshlrev_b32 v{v0_}, 7, v0")
    a(f"v_mov_b32 v{v1_}, 370")
    a(f"v_cmp_gt_u32 s[{T4}:{T4+1}], v{v1_}, v0")
    a(f"v_mov_b32 v{v1_}, 0x7ffffff0")
    a(f"v_cndmask_b32 v{v0_}, v{v1_}, v{v0_}, s[{T4}:{T4+1}]")
    a(f"buffer_load_dword v251, v{v0_}, s[{SRD_WS}:{SRD_WS+3}], s{T0} offen sc1", tag='touch')

def touch_h(a, v0_, v1_):
    a(f"s_lshl_b32 s{T0}, s{S_FRB}, 1")
    a(f"s_mul_i32 s{T0}, s{T0}, {108*1024}")
    a(f"s_lshr_b32 s{T1}, s{S_I}, 3")
    a(f"s_mul_i32 s{T1}, s{T1}, {432*128}")
    a(f"s_add_u32 s{T0}, s{T0}, s{T1}")
    a(f"s_add_u32 s{T0}, s{T0}, {WS_H}")
    a(f"v_lshlrev_b32 v{v0_}, 7, v0")
    a(f"v_mov_b32 v{v1_}, 432")
    a(f"v_cmp_gt_u32 s[{T4}:{T4+1}], v{v1_}, v0")
    a(f"v_mov_b32 v{v1_}, 0x7ffffff0")
    a(f"v_cndmask_b32 v{v0_}, v{v1_}, v{v0_}, s[{T4}:{T4+1}]")
    a(f"buffer_load_dword v251, v{v0_}, s[{SRD_WS}:{SRD_WS+3}], s{T0} offen sc1", tag='touch')

def attn_stage_kv(a, t0, t1, t2, vd, parts=(0, 1)):
    a(f"s_sub_u32 s{T0}, s{S_ARB}, 2")
    a(f"s_lshl_b32 s{T0}, s{T0}, 7")
    a(f"s_mul_i32 s{T1}, s{S_W}, 96")
    a(f"s_add_u32 s{T0}, s{T0}, s{T1}")
    a(f"v_lshlrev_b32 v{t0}, 1, v1")
    a(f"v_add_u32 v{t0}, s{T0}, v{t0}")
    a(f"v_lshlrev_b32 v{t1}, 3, v{t0}")
    a(f"v_mov_b32 v{t2}, 0x7ffffff0")
    a(f"v_cmp_le_i32 s[{T4}:{T4+1}], 0, v{t0}")
    a(f"v_cndmask_b32 v{vd}, v{t2}, v{t1}, s[{T4}:{T4+1}]")
    a(f"s_mul_i32 s{T2}, s{S_AHP}, {10*16384}")
    a(f"s_add_u32 s{T2}, s{T2}, {WS_QKV + 160*16384}")
    a(f"s_mul_i32 s{T3}, s{S_W}, 768")
    a("s_mov_b32 exec_hi, 0xffff")
    for ty in parts:
        for p in range(10):
            a(f"s_add_u32 m0, s{T3}, {(LK if ty == 0 else LV) + p*PST}")
            a(f"s_add_u32 s{T6}, s{T2}, {(ty*160 + p)*16384}")
            a(f"buffer_load_dwordx4 v{vd}, s[{SRD_WS}:{SRD_WS+3}], s{T6} offen sc1 lds", tag=('kv', ty))
    a("s_mov_b32 exec_hi, -1")

def stage1g(a, lbl):
    SRD_E, S_M = 64, 68
    VXD, VWD, VW2 = 2, 6, 10
    VXF, VWF = 14, 22
    t0, t1, t2, t3 = 26, 27, 28, 29
    VP, VPV = 30, 31
    FB = [32, 48]
    ACC = 64
    CSR, B1R, ST, TD = 128, 160, 192, 196
    S_FQ, S_FH, S_ACT, S_HB = 69, 70, 71, 72
    a(f"s_and_b32 s{S_LW}, s{S_W}, 3")
    a(f"s_cmp_ge_u32 s{S_CJ}, 15")
    a(f"s_cbranch_scc1 {lbl}_idle")
    a(f"s_lshl_b32 s{T0}, s{S_RB}, 7")
    a(f"s_lshr_b32 s{T1}, s{S_LW}, 1")
    a(f"s_lshl_b32 s{T1}, s{T1}, 6")
    a(f"s_add_u32 s{T0}, s{T0}, s{T1}")
    a(f"s_and_b32 s{T1}, s{S_LW}, 1")
    a(f"s_add_u32 s{T0}, s{T0}, s{T1}")
    a(f"v_lshrrev_b32 v{t0}, 3, v1")
    a(f"v_lshlrev_b32 v{t0}, 1, v{t0}")
    a(f"v_add_u32 v{t0}, s{T0}, v{t0}")
    a(f"s_movk_i32 s{T2}, 1280")
    a(f"v_mul_lo_u32 v{t0}, v{t0}, s{T2}")
    a(f"v_lshrrev_b32 v{t1}, 4, v1")
    a(f"v_and_b32 v{t2}, 7, v1")
    a(f"v_xor_b32 v{t2}, v{t2}, v{t1}")
    a(f"v_xor_b32 v{t3}, 4, v{t2}")
    for i in range(4):
        a(f"v_lshl_add_u32 v{VXD+i}, v{t2 if i % 2 == 0 else t3}, 4, v{t0}")
        if i: a(f"v_add_u32 v{VXD+i}, {i*(16*1280-1024)}, v{VXD+i}")
    a(f"s_lshl_b32 s{T0}, s{S_LW}, 4")
    a(f"v_lshrrev_b32 v{t0}, 4, v1")
    a(f"v_add_u32 v{t1}, s{T0}, v{t0}")
    a(f"v_bfe_u32 v{t2}, v1, 2, 2")
    a(f"v_xor_b32 v{t2}, v{t2}, v{t0}")
    a(f"v_and_b32 v{t3}, 3, v1")
    a(f"v_lshl_add_u32 v{t2}, v{t2}, 2, v{t3}")
    a(f"v_lshlrev_b32 v{t2}, 4, v{t2}")
    a(f"s_lshl_b32 s{T0}, s{S_CJ}, 8")
    a(f"v_add_u32 v{t2}, s{T0}, v{t2}")
    def w_offsets(vd, pitch):
        a(f"s_movk_i32 s{T2}, {pitch}")
        a(f"v_mul_lo_u32 v{t3}, v{t1}, s{T2}")
        a(f"v_add_u32 v{vd}, v{t3}, v{t2}")
        for i in range(1, 4): a(f"v_add_u32 v{vd+i}, {i*(4*pitch-1024)}, v{vd}")
    w_offsets(VWD, 3840)
    w_offsets(VW2, 3456)
    a(f"s_lshl_b32 s{S_M}, s{S_LW}, 12")
    if OPT.get('rot', 1):
        a(f"s_lshr_b32 s{T0}, s{S_I}, 3")
        a(f"s_mul_i32 s{T0}, s{T0}, 10")
        a(f"s_and_b32 s{T1}, s{S_I}, 7")
        a(f"s_mul_i32 s{T1}, s{T1}, 5")
        a(f"s_add_u32 s{T0}, s{T0}, s{T1}")
        a(f"s_lshr_b32 s{T0}, s{T0}, 2")
        a(f"s_sub_u32 s{T1}, s{T0}, 10")
        a(f"s_cmp_ge_u32 s{T0}, 10")
        a(f"s_cselect_b32 s{T0}, s{T1}, s{T0}")
    else:
        a(f"s_mov_b32 s{T0}, 0")
    def addmod(dst, src, k):
        a(f"s_add_u32 s{dst}, s{src}, {k}")
        a(f"s_sub_u32 s{T2}, s{dst}, 10")
        a(f"s_cmp_ge_u32 s{dst}, 10")
        a(f"s_cselect_b32 s{dst}, s{T2}, s{dst}")
    REUSE = OPT.get('xreuse', 1)
    if REUSE:
        addmod(T1, T0, 9)
        addmod(T3, T0, 6)
        a(f"s_cmp_ge_u32 s{S_W}, 4")
        a(f"s_cselect_b32 s{T1}, s{T3}, s{T1}")
        a(f"s_mul_i32 s{S_K1}, s{T1}, {64*3456}")
        a(f"s_lshl_b32 s{S_KX}, s{T0}, 7")
        a(f"s_mul_i32 s{S_KQ}, s{T0}, {64*3840}")
    else:
        addmod(T1, T0, 3)
        a(f"s_cmp_ge_u32 s{S_W}, 4")
        a(f"s_cselect_b32 s{T0}, s{T0}, s{T1}")
        a(f"s_lshl_b32 s{S_KX}, s{T0}, 7")
        a(f"s_mul_i32 s{S_KQ}, s{T0}, {64*3840}")
        a(f"s_mul_i32 s{S_K1}, s{T0}, {64*3456}")
    def adv(sreg, step, wrap):
        if OPT.get('hot'): return
        a(f"s_add_u32 s{sreg}, s{sreg}, {step}")
        a(f"s_cmp_eq_u32 s{sreg}, {wrap}")
        a(f"s_cselect_b32 s{sreg}, 0, s{sreg}")
    first = {'x': True, 'q': True, '1': True}
    slot = lambda tau: (tau + 3) % 4
    def dma_list(tau):
        out = []
        if OPT.get('g_nodma') and tau >= 4: return out
        if OPT.get('nodma1') and tau >= 13: return out
        def mk(kind, i):
            def f():
                if kind == 'x': vd, sr, sk, off, step, wrap = VXD, SRD_A, S_KX, 0, 128, 1280
                elif kind == 'q': vd, sr, sk, off, step, wrap = VWD, SRD_B, S_KQ, 16384, 64*3840, 640*3840
                else: vd, sr, sk, off, step, wrap = VW2, SRD_E, S_K1, 16384, 64*3456, 640*3456
                if i == 0:
                    a(f"s_add_u32 m0, s{S_M}, {slot(tau)*SL2 + off}")
                    if not first[kind] and not (OPT.get('hot1') and tau >= 10) and not (OPT.get('hotx') and kind == 'x' and tau >= 10) and not (OPT.get('hotw') and kind == '1'): adv(sk, step, wrap)
                    first[kind] = False
                a(f"buffer_load_dwordx4 v{vd+i}, s[{sr}:{sr+3}], s{sk} offen offset:{i*1024} lds", tag=('B', tau))
            return f
        if not (REUSE and 10 <= tau <= 13):
            for i in range(4): out.append(mk('x', i))
        for i in range(4): out.append(mk('q' if tau < 10 else '1', i))
        return out
    def dma_block(tau):
        for f in dma_list(tau): f()
    def frag_bases():
        a(f"s_and_b32 s{T0}, s{S_LW}, 1")
        a(f"s_lshl_b32 s{T0}, s{T0}, 13")
        a(f"v_and_b32 v{t0}, 31, v1")
        a(f"v_lshrrev_b32 v{t1}, 5, v1")
        a(f"v_bfe_u32 v{t2}, v1, 1, 3")
        a(f"v_lshlrev_b32 v{t0}, 7, v{t0}")
        a(f"v_add_u32 v{t0}, s{T0}, v{t0}")
        for s_ in range(4):
            a(f"v_or_b32 v{t3}, {2*s_}, v{t1}")
            a(f"v_xor_b32 v{t3}, v{t3}, v{t2}")
            a(f"v_lshl_add_u32 v{VXF+s_}, v{t3}, 4, v{t0}")
            a(f"v_add_u32 v{VXF+4+s_}, {2*SL2}, v{VXF+s_}")
        a(f"v_bfe_u32 v{t0}, v1, 2, 2")
        a(f"v_lshl_add_u32 v{t1}, v{t1}, 3, v{t0}")
        a(f"v_lshlrev_b32 v{t1}, 8, v{t1}")
        a(f"v_bfe_u32 v{t2}, v1, 4, 1")
        a(f"v_lshl_add_u32 v{t1}, v{t2}, 5, v{t1}")
        a(f"v_and_b32 v{t2}, 3, v1")
        a(f"v_lshl_add_u32 v{t1}, v{t2}, 3, v{t1}")
        a(f"s_and_b32 s{T0}, s{S_LW}, 2")
        for ft in range(2):
            a(f"s_or_b32 s{T1}, s{T0}, {ft}")
            a(f"v_xor_b32 v{t2}, s{T1}, v{t0}")
            a(f"v_lshl_add_u32 v{VWF+ft}, v{t2}, 6, v{t1}")
            a(f"v_add_u32 v{VWF+2+ft}, {2*SL2}, v{VWF+ft}")
    def rd_b(st, tau, u, tt):
        sl = slot(tau)
        a(f"ds_read_b128 {vr(FB[st]+4*tt,4)}, v{VXF + u + (4 if sl >= 2 else 0)} offset:{(SL2 if sl & 1 else 0) + tt*4096}", tag=('f', tau, u, 'b', tt))
    def rd_a(st, tau, u, F, rd):
        sl = slot(tau)
        a(f"ds_read_b64_tr_b16 {vr(FB[st]+8+4*F+2*rd,2)}, v{VWF + F + (2 if sl >= 2 else 0)} offset:{(SL2 if sl & 1 else 0) + 16384 + u*4096 + rd*1024}", tag=('f', tau, u, 'a', F))
    def reads(st, tau, u):
        return [lambda: rd_b(st, tau, u, 0), lambda: rd_a(st, tau, u, 0, 0), lambda: rd_a(st, tau, u, 0, 1),
                lambda: rd_b(st, tau, u, 1), lambda: rd_a(st, tau, u, 1, 0), lambda: rd_a(st, tau, u, 1, 1)]
    def compute(t0_, hook_bar, hook_step):
        for b in range(10):
            tau = t0_ + b
            for u in range(4):
                s_ = 4*b + u; st = s_ & 1
                last = (b == 9 and u == 3)
                side = []
                if u == 3:
                    a("s_waitcnt lgkmcnt(0)")
                    hook_bar(tau)
                    a("s_barrier")
                    side = hook_step(tau, 'bar') or []
                rs = [] if (last or OPT.get('x_noreads')) else reads(st ^ 1, *((tau, u + 1) if u < 3 else (tau + 1, 0)))
                plan = {-1: rs[0:2], 0: rs[2:5], 1: rs[5:6]}
                for r in plan[-1]: r()
                for k, (tt, F) in enumerate([(0, 0), (1, 0), (0, 1), (1, 1)]):
                    a.wait_lg([('f', tau, u, 'b', tt), ('f', tau, u, 'a', F)])
                    d = vr(ACC+16*(2*tt+F), 16)
                    if not OPT.get('x_nomfma'):
                        a(f"v_mfma_f32_32x32x16_bf16 {d}, {vr(FB[st]+8+4*F,4)}, {vr(FB[st]+4*tt,4)}, {'0' if s_ == 0 else d}")
                    for r in plan.get(k, []): r()
                    for _ in range(2):
                        if side: side.pop(0)()
                for f in side: f()
                hook_step(tau, u)
    a("s_waitcnt lgkmcnt(0)")
    srd(a, SRD_A, P_AX, SIZES['AX'])
    srd(a, SRD_B, P_WQKV, SIZES['WQKV'])
    NI = OPT.get('init', 2)
    a(f"s_cmp_lt_u32 s{S_W}, 4")
    a(f"s_cbranch_scc1 {lbl}_nodma")
    for tau in range(NI): dma_block(tau)
    g1_vm = list(a.vm)
    a.label(f"{lbl}_nodma")
    a.vm = []
    srd(a, SRD_E, P_W1, SIZES['W1'])
    prologue_rest(a)
    attn_coords(a)
    final_coords(a)
    a(f"s_lshl_b32 s{T0}, s{S_RB}, 7")
    a(f"s_lshl_b32 s{T1}, s{S_CJ}, 2")
    a(f"s_add_u32 s{T0}, s{T0}, s{T1}")
    a(f"s_add_u32 s{S_FQ}, s{T0}, {WS_FLAG + FQ}")
    a(f"s_add_u32 s{S_FH}, s{T0}, {WS_FLAG + FH}")
    a(f"s_cmp_lt_u32 s{S_CJ}, 14")
    a(f"s_cselect_b32 s{S_FHO}, s{S_FH}, 0x7fff0000")
    a(f"s_cmp_lt_u32 s{S_W}, 4")
    a(f"s_cbranch_scc1 {lbl}_g0")
    a.vm = list(g1_vm)
    if OPT.get('lprio', 1): a(f"s_setprio {OPT.get('lprio', 1)}")
    mark4(a, first=True)
    pre_address(a, lbl + "_pa", rows=False)
    frag_bases()
    a.wait_vm(('B', 0))
    mark4(a)
    a("s_barrier")
    for tau in range(NI, 4): dma_block(tau)
    for tau in range(0, 9):
        a.wait_vm(('B', tau + 1))
        if tau == 8: a.wait_vm('pst')
        a("s_barrier")
        dma_block(tau + 4)
        if tau == 0: pre_issue(a, rows=False)
        if tau == 1 and OPT.get('pfw1', 0):
            a(f"s_and_b32 s{T0}, s{S_I}, 7")
            a(f"s_mul_i32 s{T0}, s{T0}, 80")
            a(f"s_mul_i32 s{T1}, s{S_LW}, 20")
            a(f"s_add_u32 s{T0}, s{T0}, s{T1}")
            a(f"v_lshrrev_b32 v{t0}, 1, v1")
            a(f"v_add_u32 v{t0}, s{T0}, v{t0}")
            a(f"s_movk_i32 s{T1}, 3456")
            a(f"v_mul_lo_u32 v{t0}, v{t0}, s{T1}")
            a(f"v_and_b32 v{t1}, 1, v1")
            a(f"v_lshl_add_u32 v{t0}, v{t1}, 7, v{t0}")
            a(f"s_lshl_b32 s{T0}, s{S_CJ}, 8")
            a(f"v_add_u32 v{t0}, s{T0}, v{t0}")
            a(f"v_mov_b32 v{t1}, 0x7ffffff0")
            a(f"v_cmp_gt_u32 s[{T4}:{T4+1}], 40, v1")
            a(f"v_cndmask_b32 v{t0}, v{t1}, v{t0}, s[{T4}:{T4+1}]")
            a(f"buffer_load_dword v251, v{t0}, s[{SRD_E}:{SRD_E+3}], 0 offen", tag='touch')
        if tau == OPT.get('trp', 5):
            a.wait_vm('pl')
            repack_finish(a)
        if tau == 7: nonce_issue(a, 252)
    nonce_check(a, 252)
    a.wait_vm(('B', 10))
    a("s_barrier")
    if OPT.get('lprio', 1): a(f"s_setprio {OPT.get('cprio', 3)}")
    mark4(a)
    for r in reads(0, 10, 0): r()
    def g1_bar(tau):
        if tau in (10, 11): a.wait_vm(('B', tau + 1))
    def g1_step(tau, u):
        return None
    compute(10, g1_bar, g1_step)
    mark4(a)
    C0, C1, VY, ONE = 2, 3, 4, 6
    TU, TE = 32, 40
    a(f"v_mov_b32 v{ONE}, 1.0")
    a(f"v_mov_b32 v{C0}, 0xc0135761")
    a(f"v_mov_b32 v{C1}, 0xbdd2d3e8")
    a(f"v_lshlrev_b32 v{VY}, 4, v1")
    a(f"s_lshl_b32 s{T0}, s{S_CJ}, 3")
    a(f"s_lshr_b32 s{T1}, s{S_LW}, 1")
    a(f"s_lshl_b32 s{T1}, s{T1}, 2")
    a(f"s_add_u32 s{S_ACT}, s{T0}, s{T1}")
    a(f"s_lshl_b32 s{T0}, s{S_RB}, 2")
    a(f"s_and_b32 s{T1}, s{S_LW}, 1")
    a(f"s_lshl_b32 s{T1}, s{T1}, 1")
    a(f"s_add_u32 s{T0}, s{T0}, s{T1}")
    a(f"s_mul_i32 s{T0}, s{T0}, 108")
    a(f"s_add_u32 s{T0}, s{T0}, s{S_ACT}")
    a(f"s_lshl_b32 s{T0}, s{T0}, 10")
    a(f"s_add_u32 s{S_HB}, s{T0}, {WS_H}")
    a(f"s_cmp_lt_u32 s{S_ACT}, 108")
    a(f"s_cselect_b32 s{S_HB}, s{S_HB}, 0x7fff0000")
    a(f"v_and_b32 v{t0}, 31, v1")
    a(f"v_lshlrev_b32 v{t0}, 4, v{t0}")
    a(f"s_and_b32 s{T0}, s{S_LW}, 1")
    a(f"s_lshl_b32 s{T0}, s{T0}, 9")
    a(f"v_add_u32 v{t0}, s{T0}, v{t0}")
    a(f"ds_read_b128 {vr(ST,4)}, v{t0}")
    a(f"v_lshrrev_b32 v{t0}, 5, v1")
    a(f"v_lshlrev_b32 v{t0}, 4, v{t0}")
    a(f"s_lshr_b32 s{T0}, s{S_LW}, 1")
    a(f"s_lshl_b32 s{T0}, s{T0}, 8")
    a(f"v_add_u32 v{t0}, s{T0}, v{t0}")
    for ft in range(2):
        for j in range(4):
            a(f"ds_read_b128 {vr(CSR+16*ft+4*j,4)}, v{t0} offset:{1024 + 128*ft + 32*j}")
            a(f"ds_read_b128 {vr(B1R+16*ft+4*j,4)}, v{t0} offset:{1536 + 128*ft + 32*j}")
    a("s_waitcnt lgkmcnt(0)")
    mark4(a)
    P = lambda b, e: vr(b + 2*e, 2)
    for tt in range(2):
        nmp = vr(ST + 2*tt, 2)
        if tt == 1: a(f"s_add_u32 s{S_HB}, s{S_HB}, {108*1024}")
        for ft in range(2):
            for jj in range(2):
                x = ACC + 16*(2*tt+ft) + 8*jj
                for e in range(4):
                    j, i = 2*jj + (e >> 1), 2*(e & 1)
                    a(f"v_pk_fma_f32 {P(TU,e)}, {nmp}, {vr(CSR+16*ft+4*j+i,2)}, {vr(B1R+16*ft+4*j+i,2)} op_sel_hi:[0,1,1]")
                for e in range(4): a(f"v_pk_fma_f32 {P(x,e)}, {nmp}, {P(x,e)}, {P(TU,e)} op_sel:[1,0,0] op_sel_hi:[1,1,1]")
                for e in range(4): a(f"v_pk_mul_f32 {P(TU,e)}, {P(x,e)}, {P(x,e)}")
                for e in range(4): a(f"v_pk_fma_f32 {P(TU,e)}, {P(TU,e)}, {vr(C0,2)}, {vr(C0,2)} op_sel:[0,1,0] op_sel_hi:[1,1,0]")
                for e in range(4): a(f"v_pk_mul_f32 {P(TU,e)}, {P(TU,e)}, {P(x,e)}")
                for e in range(8): a(f"v_exp_f32 v{TE+e}, v{TU+e}")
                for e in range(4): a(f"v_pk_add_f32 {P(TE,e)}, {P(TE,e)}, {vr(ONE,2)} op_sel_hi:[1,0]")
                for e in range(8): a(f"v_rcp_f32 v{TE+e}, v{TE+e}")
                for e in range(4): a(f"v_pk_mul_f32 {P(TE,e)}, {P(TE,e)}, {P(x,e)}")
                d = TD + 4*(4*tt + 2*ft + jj)
                for e in range(4): a(f"v_cvt_pk_bf16_f32 v{d+e}, v{TE+2*e}, v{TE+2*e+1}")
                if not OPT.get('late_h', 0):
                    a(f"buffer_store_dwordx4 {vr(d,4)}, v{VY}, s[{SRD_WS}:{SRD_WS+3}], s{S_HB} offen offset:{(2*ft+jj)*1024} sc1", tag='hst')
    if OPT.get('late_h', 0):
        a(f"s_sub_u32 s{S_HB}, s{S_HB}, {108*1024}")
        for tt in range(2):
            if tt == 1: a(f"s_add_u32 s{S_HB}, s{S_HB}, {108*1024}")
            for ft in range(2):
                for jj in range(2):
                    d = TD + 4*(4*tt + 2*ft + jj)
                    a(f"buffer_store_dwordx4 {vr(d,4)}, v{VY}, s[{SRD_WS}:{SRD_WS+3}], s{S_HB} offen offset:{(2*ft+jj)*1024} sc1", tag='hst')
    mark4(a)
    a(f"s_branch {lbl}_join")
    a.label(f"{lbl}_g0")
    a.reset_counters()
    first.update({'x': True, 'q': True, '1': True})
    if OPT.get('pfs1', 0):
        a(f"s_lshl_b32 s{T0}, s{S_RB}, 7")
        a(f"s_lshr_b32 s{T1}, s{S_I}, 3")
        a(f"s_lshl_b32 s{T1}, s{T1}, 5")
        a(f"s_add_u32 s{T0}, s{T0}, s{T1}")
        a(f"s_lshl_b32 s{T1}, s{S_LW}, 3")
        a(f"s_add_u32 s{T0}, s{T0}, s{T1}")
        a(f"v_lshrrev_b32 v{t0}, 3, v1")
        a(f"v_add_u32 v{t0}, s{T0}, v{t0}")
        a(f"s_movk_i32 s{T1}, 1280")
        a(f"v_mul_lo_u32 v{t0}, v{t0}, s{T1}")
        a(f"v_and_b32 v{t1}, 7, v1")
        a(f"v_lshl_add_u32 v{t2}, v{t1}, 7, v{t0}")
        a(f"buffer_load_dword v251, v{t2}, s[{SRD_A}:{SRD_A+3}], 0 offen", tag='touch')
        a(f"v_and_b32 v{t1}, 1, v1")
        a(f"v_lshl_add_u32 v{t2}, v{t1}, 7, v{t0}")
        a(f"v_mov_b32 v{t3}, 0x7ffffff0")
        a(f"v_bfe_u32 v{t1}, v1, 1, 2")
        a(f"v_cmp_eq_u32 s[{T4}:{T4+1}], 0, v{t1}")
        a(f"v_cndmask_b32 v{t2}, v{t3}, v{t2}, s[{T4}:{T4+1}]")
        a(f"buffer_load_dword v251, v{t2}, s[{SRD_A}:{SRD_A+3}], 0 offen offset:1024", tag='touch')
        a(f"s_and_b32 s{T0}, s{S_I}, 7")
        a(f"s_mul_i32 s{T0}, s{T0}, 80")
        a(f"s_mul_i32 s{T1}, s{S_LW}, 20")
        a(f"s_add_u32 s{T0}, s{T0}, s{T1}")
        a(f"v_lshrrev_b32 v{t0}, 1, v1")
        a(f"v_add_u32 v{t0}, s{T0}, v{t0}")
        a(f"s_movk_i32 s{T1}, 3840")
        a(f"v_mul_lo_u32 v{t0}, v{t0}, s{T1}")
        a(f"v_and_b32 v{t1}, 1, v1")
        a(f"v_lshl_add_u32 v{t0}, v{t1}, 7, v{t0}")
        a(f"s_lshl_b32 s{T0}, s{S_CJ}, 8")
        a(f"v_add_u32 v{t0}, s{T0}, v{t0}")
        a(f"v_cmp_gt_u32 s[{T4}:{T4+1}], 40, v1")
        a(f"v_cndmask_b32 v{t0}, v{t3}, v{t0}, s[{T4}:{T4+1}]")
        a(f"buffer_load_dword v251, v{t0}, s[{SRD_B}:{SRD_B+3}], 0 offen", tag='touch')
    frag_bases()
    if OPT.get('cprio', 3): a(f"s_setprio {OPT.get('cprio', 3)}")
    mark(a)
    a("s_barrier")
    probe(a, 1)
    for r in reads(0, 0, 0): r()
    def g0_step(tau, u):
        if u == 'bar': probe(a, 10 + tau)
        if OPT.get('fine3') == 1 and u == 'bar' and tau in (0, 2, 4, 6, 8): mark(a)
        if u == 'bar' and tau == 9: return dma_list(13)
        if u == 1 and tau == 2: nonce_issue(a, 252)
        if u == 1 and tau == 4: nonce_check(a, 252)
        if u == 'bar' and tau == 8:
            pre_flags(a, t3, stats=False)
        return None
    compute(0, lambda tau: None, g0_step)
    probe(a, 2)
    mark(a)
    if OPT.get('lprio', 1): a(f"s_setprio {OPT.get('lprio', 1)}")
    def qkv_epilogue(a):
        a(f"v_lshrrev_b32 v{t0}, 5, v1")
        a(f"s_lshr_b32 s{T0}, s{S_LW}, 1")
        a(f"s_lshl_b32 s{T0}, s{T0}, 4")
        a(f"v_add_u32 v{t0}, s{T0}, v{t0}")
        a(f"v_lshlrev_b32 v{t0}, 14, v{t0}")
        a(f"s_and_b32 s{T0}, s{S_LW}, 1")
        a(f"s_lshl_b32 s{T0}, s{T0}, 9")
        a(f"v_and_b32 v{t1}, 31, v1")
        a(f"v_lshl_add_u32 v{t0}, v{t1}, 4, v{t0}")
        a(f"v_add_u32 v{t0}, s{T0}, v{t0}")
        a(f"s_lshl_b32 s{T0}, s{S_CJ}, 19")
        a(f"s_lshl_b32 s{T1}, s{S_RB}, 10")
        a(f"s_add_u32 s{T0}, s{T0}, s{T1}")
        a(f"s_add_u32 s{T0}, s{T0}, {WS_QKV}")
        a(f"s_cmp_lt_u32 s{S_CJ}, 5")
        a(f"s_cselect_b32 s{T2}, 0x3ea52b5c, 1.0")
        a(f"v_mov_b32 v30, s{T2}")
        for r in range(0, 64, 2):
            a(f"v_pk_mul_f32 {vr(ACC+r,2)}, {vr(ACC+r,2)}, v[30:31] op_sel_hi:[1,0]")
        k = 0
        for ft in range(2):
            for j in range(4):
                a(f"s_add_u32 s{T1}, s{T0}, {(8*ft + 2*j)*16384}")
                d = 32 + 4*(k % 8); k += 1
                for tt in range(2):
                    base = ACC + 16*(2*tt+ft) + 4*j
                    a(f"v_cvt_pk_bf16_f32 v{d+2*tt}, v{base}, v{base+1}")
                    a(f"v_cvt_pk_bf16_f32 v{d+2*tt+1}, v{base+2}, v{base+3}")
                a(f"buffer_store_dwordx4 {vr(d,4)}, v{t0}, s[{SRD_WS}:{SRD_WS+3}], s{T1} offen sc1", tag='qst')
        fq_poll_offsets(a, VP, t3)
    class Rec:
        def __init__(self): self.l = []
        def __call__(self, text, tag=None): self.l.append((text, tag))
    rec = Rec(); qkv_epilogue(rec)
    EPI = []
    for tx, tg in rec.l:
        if tx.startswith("s_cselect") and EPI: EPI[-1].append((tx, tg))
        else: EPI.append([(tx, tg)])
    def emit_groups(gs):
        for g_ in gs:
            for tx, tg in g_: a(tx, tag=tg)
    if not OPT.get('epi_mix', 0):
        emit_groups(EPI)
        EPI = []
    TQP = OPT.get('tqp', 13)
    for tau in range(10, 20):
        if 13 <= tau + 1 <= 19: a.wait_vm(('B', tau + 1))
        if tau == TQP: a.wait_vm('qst')
        if tau == 19: a.wait_vm('tab')
        a("s_barrier")
        probe(a, 10 + tau)
        if OPT.get('fine3') == 2 and tau in (10, 11, 12, 13, 14, 15, 16, 17, 18, 19): mark(a)
        if tau == TQP: flag_store(a, S_FQ, t3)
        if tau + 4 <= 19:
            dl = dma_list(tau + 4)
            if tau == 10 and EPI:
                per = -(-len(EPI) // len(dl))
                for f in dl:
                    f()
                    emit_groups(EPI[:per])
                    EPI = EPI[per:]
                emit_groups(EPI)
                EPI = []
            else:
                for f in dl: f()
        if tau == 15:
            a(f"s_lshl_b32 s{T0}, s{S_RB}, 7")
            a(f"s_add_u32 s{T0}, s{T0}, {WS_FLAG + FS}")
            a(f"v_mov_b32 v{t0}, s{T0}")
            a(f"s_min_u32 s{T1}, s{S_CJ}, 13")
            a(f"s_lshl_b32 s{T1}, s{T1}, 2")
            a(f"s_add_u32 s{T1}, s{T1}, {WS_FLAG + FC}")
            a(f"v_mov_b32 v{t1}, s{T1}")
            a(f"v_cmp_gt_u32 s[{T4}:{T4+1}], 32, v1")
            a(f"v_cndmask_b32 v234, v{t1}, v{t0}, s[{T4}:{T4+1}]")
            poll_issue(a, 234, 235, 'p1')
        if tau == 17:
            L = uid("nf")
            a(f"s_cmp_ge_u32 s{S_CJ}, 14")
            a(f"s_cbranch_scc1 {L}")
            vm0 = list(a.vm)
            poll_check(a, 234, 235, 'p1')
            a.label(L)
            a.vm = vm0
            a(f"s_lshl_b32 s{T0}, s{S_RB}, 10")
            a(f"s_add_u32 s{T0}, s{T0}, {WS_ST}")
            a(f"s_lshl_b32 s{T1}, s{S_CJ}, 9")
            a(f"s_add_u32 s{T2}, s{T1}, {WS_CS}")
            a(f"s_add_u32 s{T1}, s{T1}, {WS_B1}")
            a(f"s_cmp_eq_u32 s{S_W}, 1")
            a(f"s_cselect_b32 s{T0}, s{T2}, s{T0}")
            a(f"s_cselect_b32 s{T3}, 1024, 0")
            a(f"s_cmp_eq_u32 s{S_W}, 2")
            a(f"s_cselect_b32 s{T0}, s{T1}, s{T0}")
            a(f"s_cselect_b32 s{T3}, 1536, s{T3}")
            a(f"s_cmp_eq_u32 s{S_W}, 3")
            a(f"s_cselect_b32 s{T0}, 0x7fff0000, s{T0}")
            a(f"s_cselect_b32 s{T3}, 2048, s{T3}")
            a(f"v_lshlrev_b32 v{t0}, 4, v1")
            a(f"v_mov_b32 v{t1}, 0x7ffffff0")
            a(f"s_cmp_eq_u32 s{S_W}, 0")
            a(f"s_cselect_b32 s{T1}, 64, 32")
            a(f"v_cmp_gt_u32 s[{T4}:{T4+1}], s{T1}, v1")
            a(f"s_mov_b64 exec, s[{T4}:{T4+1}]")
            a(f"s_mov_b32 m0, s{T3}")
            a(f"buffer_load_dwordx4 v{t0}, s[{SRD_WS}:{SRD_WS+3}], s{T0} offen sc1 lds", tag='tab')
            a("s_mov_b64 exec, -1")
        if tau == 19: pass
        if tau == OPT.get('tpq', 18):
            poll_issue(a, VP, VPV, 'pq')
            fw_poll_offsets(a, VP+202)
            poll_issue(a, VP+202, VPV+202, 'pw')
    probe(a, 3)
    if OPT.get('fine4'): mark(a)
    poll_check(a, VP, VPV, 'pq')
    if OPT.get('fine4'): mark(a)
    attn_stage_q(a, 3)
    attn_stage_kv(a, t0, t1, t2, 2, (0,) if OPT.get('latev') else (0, 1))
    poll_check(a, VP+202, VPV+202, 'pw')
    if OPT.get('earlyw', 0): wf_first_slots(a, 3)
    mark(a)
    a.wait_vm(('kv', 0))
    if OPT.get('fine4'): mark(a)
    a(f"s_branch {lbl}_join")
    a.label(f"{lbl}_idle")
    a.reset_counters()
    a("s_waitcnt lgkmcnt(0)")
    prologue_rest(a)
    attn_coords(a)
    final_coords(a)
    srd(a, SRD_A, P_AX, SIZES['AX'])
    rowstats_issue(a)
    colsum_issue(a)
    nonce_issue(a, 252)
    rowstats_compute(a)
    colsum_compute(a, lbl + "_cs")
    nonce_check(a, 252)
    a("s_waitcnt vmcnt(0)")
    a("s_barrier")
    a(f"s_lshl_b32 s{T0}, s{S_RB}, 7")
    a(f"s_add_u32 s{T0}, s{T0}, {WS_FLAG + FS}")
    flag_store(a, T0, t3)
    a(f"s_lshl_b32 s{T0}, s{S_RB}, 2")
    a(f"s_add_u32 s{T0}, s{T0}, {WS_FLAG + FC}")
    flag_store(a, T0, t3)
    pre_address(a, lbl + "_pai", rows=False)
    pre_issue(a, rows=False)
    a.wait_vm('pl')
    repack_finish(a)
    a("s_waitcnt vmcnt(0)")
    a("s_barrier")
    pre_flags(a, t3, stats=False)
    a(f"s_mov_b32 s{S_FHO}, 0x7fff0000")
    fq_poll_offsets(a, VP, t3)
    a(f"s_mov_b64 s[{T4}:{T4+1}], -1")
    wait_flags(a, VP, VPV, T4)
    Li = uid("ik")
    a(f"s_cmp_ge_u32 s{S_W}, 4")
    a(f"s_cbranch_scc1 {Li}")
    attn_stage_q(a, 3)
    attn_stage_kv(a, t0, t1, t2, 2, (0,) if OPT.get('latev') else (0, 1))
    fw_poll_offsets(a, VP+202)
    poll_issue(a, VP+202, VPV+202, 'pw')
    poll_check(a, VP+202, VPV+202, 'pw')
    if OPT.get('earlyw', 0): wf_first_slots(a, 3)
    a.label(Li)
    a("s_waitcnt vmcnt(0)")
    a.label(f"{lbl}_join")
    if OPT.get('lprio', 1) or OPT.get('cprio', 3): a("s_setprio 0")
    a.reset_counters()

SLOT = 49152
def stage1f(a, lbl):
    SRD_E, S_M = 64, 68
    VXD, VQD, V1D = 2, 4, 6
    VXF, VWF = 8, 16
    t0, t1, t2, t3 = 20, 21, 22, 23
    VP, VPV = 24, 25
    FB = [32, 48]
    ACC = 64
    ST, CSR, B1R, TD = 192, 128, 160, 196
    S_FQ, S_FH, S_ACT, S_HB = 69, 70, 71, 72
    attn_coords(a)
    final_coords(a)
    a(f"s_and_b32 s{S_LW}, s{S_W}, 3")
    a(f"s_cmp_ge_u32 s{S_CJ}, 15")
    a(f"s_cbranch_scc1 {lbl}_idle")
    srd(a, SRD_A, P_AX, SIZES['AX'])
    srd(a, SRD_B, P_WQKV, SIZES['WQKV'])
    srd(a, SRD_E, P_W1, SIZES['W1'])
    a(f"s_lshl_b32 s{T0}, s{S_RB}, 7")
    a(f"s_lshr_b32 s{T1}, s{S_W}, 2")
    a(f"s_lshl_b32 s{T1}, s{T1}, 6")
    a(f"s_add_u32 s{T0}, s{T0}, s{T1}")
    a(f"s_and_b32 s{T1}, s{S_W}, 1")
    a(f"s_lshl_b32 s{T1}, s{T1}, 5")
    a(f"s_add_u32 s{T0}, s{T0}, s{T1}")
    a(f"s_bfe_u32 s{T1}, s{S_W}, 0x10001")
    a(f"s_add_u32 s{T0}, s{T0}, s{T1}")
    a(f"v_lshrrev_b32 v{t0}, 3, v1")
    a(f"v_lshlrev_b32 v{t0}, 1, v{t0}")
    a(f"v_add_u32 v{t0}, s{T0}, v{t0}")
    a(f"s_movk_i32 s{T2}, 1280")
    a(f"v_mul_lo_u32 v{t0}, v{t0}, s{T2}")
    a(f"v_lshrrev_b32 v{t1}, 4, v1")
    a(f"v_and_b32 v{t2}, 7, v1")
    a(f"v_xor_b32 v{t2}, v{t2}, v{t1}")
    a(f"v_xor_b32 v{t3}, 4, v{t2}")
    a(f"v_lshl_add_u32 v{VXD}, v{t2}, 4, v{t0}")
    a(f"v_lshl_add_u32 v{VXD+1}, v{t3}, 4, v{t0}")
    a(f"v_add_u32 v{VXD+1}, {16*1280-1024}, v{VXD+1}")
    a(f"s_lshl_b32 s{T0}, s{S_W}, 3")
    a(f"v_lshrrev_b32 v{t0}, 4, v1")
    a(f"v_add_u32 v{t1}, s{T0}, v{t0}")
    a(f"v_bfe_u32 v{t2}, v1, 2, 2")
    a(f"v_xor_b32 v{t2}, v{t2}, v{t0}")
    a(f"v_and_b32 v{t3}, 3, v1")
    a(f"v_lshl_add_u32 v{t2}, v{t2}, 2, v{t3}")
    a(f"v_lshlrev_b32 v{t2}, 4, v{t2}")
    a(f"s_lshl_b32 s{T0}, s{S_CJ}, 8")
    a(f"v_add_u32 v{t2}, s{T0}, v{t2}")
    for vd, pitch in ((VQD, 3840), (V1D, 3456)):
        a(f"s_movk_i32 s{T2}, {pitch}")
        a(f"v_mul_lo_u32 v{t3}, v{t1}, s{T2}")
        a(f"v_add_u32 v{vd}, v{t3}, v{t2}")
        a(f"v_add_u32 v{vd+1}, {4*pitch-1024}, v{vd}")
    a(f"s_lshl_b32 s{S_M}, s{S_W}, 11")
    if OPT.get('rot', 1):
        a(f"s_lshr_b32 s{T0}, s{S_I}, 3")
        a(f"s_mul_i32 s{T0}, s{T0}, 10")
        a(f"s_and_b32 s{T1}, s{S_I}, 7")
        a(f"s_mul_i32 s{T1}, s{T1}, 5")
        a(f"s_add_u32 s{T0}, s{T0}, s{T1}")
        a(f"s_lshr_b32 s{T0}, s{T0}, 2")
        a(f"s_sub_u32 s{T1}, s{T0}, 10")
        a(f"s_cmp_ge_u32 s{T0}, 10")
        a(f"s_cselect_b32 s{T0}, s{T1}, s{T0}")
    else:
        a(f"s_mov_b32 s{T0}, 0")
    a(f"s_lshl_b32 s{S_KX}, s{T0}, 7")
    a(f"s_mul_i32 s{S_KQ}, s{T0}, {64*3840}")
    a(f"s_mul_i32 s{S_K1}, s{T0}, {64*3456}")
    def adv(sreg, step, wrap):
        a(f"s_add_u32 s{sreg}, s{sreg}, {step}")
        a(f"s_cmp_eq_u32 s{sreg}, {wrap}")
        a(f"s_cselect_b32 s{sreg}, 0, s{sreg}")
    parts = ((VXD, SRD_A, S_KX, 0, 128, 1280), (VQD, SRD_B, S_KQ, 16384, 64*3840, 640*3840), (V1D, SRD_E, S_K1, 32768, 64*3456, 640*3456))
    def dma(b, part, i):
        vd, sr, sk, off, step, wrap = parts[part]
        if i == 0:
            a(f"s_add_u32 m0, s{S_M}, {(b % 3)*SLOT + off}")
            if b > 0: adv(sk, step, wrap)
        a(f"buffer_load_dwordx4 v{vd+i}, s[{sr}:{sr+3}], s{sk} offen offset:{i*1024} lds", tag=('B', b))
    def dma_block(b):
        for part in range(3):
            for i in range(2): dma(b, part, i)
    NI = OPT.get('finit', 2)
    for b in range(NI): dma_block(b)
    pre_address(a, lbl + "_pa", rows=False)
    a(f"s_and_b32 s{T0}, s{S_W}, 1")
    a(f"s_lshl_b32 s{T0}, s{T0}, 13")
    a(f"v_and_b32 v{t0}, 31, v1")
    a(f"v_lshrrev_b32 v{t1}, 5, v1")
    a(f"v_bfe_u32 v{t2}, v1, 1, 3")
    a(f"v_lshlrev_b32 v{t0}, 7, v{t0}")
    a(f"v_add_u32 v{t0}, s{T0}, v{t0}")
    for s_ in range(4):
        a(f"v_or_b32 v{t3}, {2*s_}, v{t1}")
        a(f"v_xor_b32 v{t3}, v{t3}, v{t2}")
        a(f"v_lshl_add_u32 v{VXF+s_}, v{t3}, 4, v{t0}")
        a(f"v_add_u32 v{VXF+4+s_}, {2*SLOT}, v{VXF+s_}")
    a(f"v_bfe_u32 v{t0}, v1, 2, 2")
    a(f"v_lshl_add_u32 v{t1}, v{t1}, 3, v{t0}")
    a(f"v_lshlrev_b32 v{t1}, 8, v{t1}")
    a(f"v_bfe_u32 v{t2}, v1, 4, 1")
    a(f"v_lshl_add_u32 v{t1}, v{t2}, 5, v{t1}")
    a(f"v_and_b32 v{t2}, 3, v1")
    a(f"v_lshl_add_u32 v{t1}, v{t2}, 3, v{t1}")
    a(f"s_lshr_b32 s{T0}, s{S_W}, 1")
    a(f"v_xor_b32 v{t2}, s{T0}, v{t0}")
    a(f"v_lshl_add_u32 v{VWF}, v{t2}, 6, v{t1}")
    a(f"v_add_u32 v{VWF+1}, {SLOT}, v{VWF}")
    a(f"v_add_u32 v{VWF+2}, {2*SLOT}, v{VWF}")
    a(f"s_lshl_b32 s{T0}, s{S_RB}, 7")
    a(f"s_add_u32 s{T0}, s{T0}, {WS_FLAG + FS}")
    a(f"v_mov_b32 v{t0}, s{T0}")
    a(f"s_min_u32 s{T1}, s{S_CJ}, 13")
    a(f"s_lshl_b32 s{T1}, s{T1}, 2")
    a(f"s_add_u32 s{T1}, s{T1}, {WS_FLAG + FC}")
    a(f"v_mov_b32 v{t1}, s{T1}")
    a(f"v_cmp_gt_u32 s[{T4}:{T4+1}], 32, v1")
    a(f"v_cndmask_b32 v{VP}, v{t1}, v{t0}, s[{T4}:{T4+1}]")
    a(f"s_lshl_b32 s{T0}, s{S_RB}, 7")
    a(f"s_lshl_b32 s{T1}, s{S_CJ}, 2")
    a(f"s_add_u32 s{T0}, s{T0}, s{T1}")
    a(f"s_add_u32 s{S_FQ}, s{T0}, {WS_FLAG + FQ}")
    a(f"s_add_u32 s{S_FH}, s{T0}, {WS_FLAG + FH}")
    a(f"s_cmp_lt_u32 s{S_CJ}, 14")
    a(f"s_cselect_b32 s{S_FHO}, s{S_FH}, 0x7fff0000")
    def rd_b(st, b, u, tt):
        sl = b % 3
        a(f"ds_read_b128 {vr(FB[st]+4*tt,4)}, v{VXF + u + (4 if sl == 2 else 0)} offset:{(SLOT if sl == 1 else 0) + tt*4096}", tag=('f', b, u, 'b', tt))
    def rd_a(st, b, u, F, rd):
        a(f"ds_read_b64_tr_b16 {vr(FB[st]+8+4*F+2*rd,2)}, v{VWF + b % 3} offset:{16384*(F+1) + u*4096 + rd*1024}", tag=('f', b, u, 'a', F))
    def reads(st, b, u):
        return [lambda: rd_b(st, b, u, 0), lambda: rd_a(st, b, u, 0, 0), lambda: rd_a(st, b, u, 0, 1),
                lambda: rd_b(st, b, u, 1), lambda: rd_a(st, b, u, 1, 0), lambda: rd_a(st, b, u, 1, 1)]
    mark(a)
    a.wait_vm(('B', 0))
    a("s_barrier")
    for r in reads(0, 0, 0): r()
    NB = 10
    pend = [(b, p, i) for b in range(NI, 3) for p in range(3) for i in range(2)]
    for b in range(NB):
        for u in range(4):
            s_ = 4*b + u; st = s_ & 1
            last = (b == NB-1 and u == 3)
            if u == 3 and b + 1 < NB:
                while pend: dma(*pend.pop(0))
                a("s_waitcnt lgkmcnt(0)")
                a.wait_vm(('B', b + 1))
                a("s_barrier")
                if b == 3:
                    a.wait_vm('pl')
                    repack_finish(a)
                if b == 6: pre_flags(a, t3, stats=False)
                if b + 3 < NB: pend = [(b + 3, p, i) for p in range(3) for i in range(2)]
            nb, nu = (b, u + 1) if u < 3 else (b + 1, 0)
            rs = [] if last else reads(st ^ 1, nb, nu)
            plan = {-1: rs[0:2], 0: rs[2:5], 1: rs[5:6]}
            for r in plan[-1]: r()
            for k, (tt, F) in enumerate([(0, 0), (1, 0), (0, 1), (1, 1)]):
                a.wait_lg([('f', b, u, 'b', tt), ('f', b, u, 'a', F)])
                d = vr(ACC+16*(2*tt+F), 16)
                a(f"v_mfma_f32_32x32x16_bf16 {d}, {vr(FB[st]+8+4*F,4)}, {vr(FB[st]+4*tt,4)}, {'0' if s_ == 0 else d}")
                for r in plan.get(k, []): r()
                if pend and k in (1, 3): dma(*pend.pop(0))
            if b == 1 and u == 0: pre_issue(a, rows=False)
            if b == 1 and u == 1: nonce_issue(a, 252)
            if b == 3 and u == 1: nonce_check(a, 252)
            if b == 6 and u == 0: poll_issue(a, VP, VPV, 'p1')
            if b == 8 and u == 0:
                L = uid("nf")
                a(f"s_cmp_ge_u32 s{S_CJ}, 14")
                a(f"s_cbranch_scc1 {L}")
                vm0 = list(a.vm)
                poll_check(a, VP, VPV, 'p1')
                a.label(L)
                a.vm = vm0
                a(f"s_lshl_b32 s{T0}, s{S_RB}, 10")
                a(f"s_and_b32 s{T1}, s{S_W}, 1")
                a(f"s_lshl_b32 s{T1}, s{T1}, 9")
                a(f"s_add_u32 s{T0}, s{T0}, s{T1}")
                a(f"s_add_u32 s{T0}, s{T0}, {WS_ST}")
                a(f"v_and_b32 v{t0}, 31, v1")
                a(f"v_lshlrev_b32 v{t0}, 4, v{t0}")
                a(f"buffer_load_dwordx4 {vr(ST,4)}, v{t0}, s[{SRD_WS}:{SRD_WS+3}], s{T0} offen sc1", tag='tab')
                a(f"v_lshrrev_b32 v{t0}, 5, v1")
                a(f"v_lshlrev_b32 v{t0}, 4, v{t0}")
                a(f"s_lshl_b32 s{T0}, s{S_CJ}, 9")
                a(f"s_lshr_b32 s{T1}, s{S_W}, 1")
                a(f"s_lshl_b32 s{T1}, s{T1}, 7")
                a(f"s_add_u32 s{T0}, s{T0}, s{T1}")
                a(f"s_add_u32 s{T1}, s{T0}, {WS_B1}")
                a(f"s_add_u32 s{T0}, s{T0}, {WS_CS}")
                for j in range(4):
                    a(f"buffer_load_dwordx4 {vr(CSR+4*j,4)}, v{t0}, s[{SRD_WS}:{SRD_WS+3}], s{T0} offen offset:{32*j} sc1", tag='tab')
                    a(f"buffer_load_dwordx4 {vr(B1R+4*j,4)}, v{t0}, s[{SRD_WS}:{SRD_WS+3}], s{T1} offen offset:{32*j} sc1", tag='tab')
    mark(a)
    a(f"v_lshrrev_b32 v{t0}, 5, v1")
    a(f"s_lshr_b32 s{T0}, s{S_W}, 1")
    a(f"s_lshl_b32 s{T0}, s{T0}, 3")
    a(f"v_add_u32 v{t0}, s{T0}, v{t0}")
    a(f"v_lshlrev_b32 v{t0}, 14, v{t0}")
    a(f"s_and_b32 s{T0}, s{S_W}, 1")
    a(f"s_lshl_b32 s{T0}, s{T0}, 9")
    a(f"v_and_b32 v{t1}, 31, v1")
    a(f"v_lshl_add_u32 v{t0}, v{t1}, 4, v{t0}")
    a(f"v_add_u32 v{t0}, s{T0}, v{t0}")
    a(f"s_lshl_b32 s{T0}, s{S_CJ}, 19")
    a(f"s_lshl_b32 s{T1}, s{S_RB}, 10")
    a(f"s_add_u32 s{T0}, s{T0}, s{T1}")
    a(f"s_add_u32 s{T0}, s{T0}, {WS_QKV}")
    a(f"s_cmp_lt_u32 s{S_CJ}, 5")
    a(f"s_cselect_b32 s{T2}, 0x3ea52b5c, 1.0")
    a(f"v_mov_b32 v30, s{T2}")
    for tt in range(2):
        for r in range(0, 16, 2):
            a(f"v_pk_mul_f32 {vr(ACC+32*tt+r,2)}, {vr(ACC+32*tt+r,2)}, v[30:31] op_sel_hi:[1,0]")
    for j in range(4):
        a(f"s_add_u32 s{T1}, s{T0}, {2*j*16384}")
        d = FB[0] + 4*j
        for tt in range(2):
            base = ACC + 32*tt + 4*j
            a(f"v_cvt_pk_bf16_f32 v{d+2*tt}, v{base}, v{base+1}")
            a(f"v_cvt_pk_bf16_f32 v{d+2*tt+1}, v{base+2}, v{base+3}")
        a(f"buffer_store_dwordx4 {vr(d,4)}, v{t0}, s[{SRD_WS}:{SRD_WS+3}], s{T1} offen sc1", tag='qst')
    C0, C1, VY, ONE = 2, 3, 4, 6
    TU, TE = 48, 56
    a(f"v_mov_b32 v{ONE}, 1.0")
    a(f"v_mov_b32 v{C0}, 0xc0135761")
    a(f"v_mov_b32 v{C1}, 0xbdd2d3e8")
    a(f"v_lshlrev_b32 v{VY}, 4, v1")
    a(f"s_lshl_b32 s{T0}, s{S_CJ}, 3")
    a(f"s_lshr_b32 s{T1}, s{S_W}, 1")
    a(f"s_lshl_b32 s{T1}, s{T1}, 1")
    a(f"s_add_u32 s{S_ACT}, s{T0}, s{T1}")
    a(f"s_lshl_b32 s{T0}, s{S_RB}, 2")
    a(f"s_and_b32 s{T1}, s{S_W}, 1")
    a(f"s_lshl_b32 s{T1}, s{T1}, 1")
    a(f"s_add_u32 s{T0}, s{T0}, s{T1}")
    a(f"s_mul_i32 s{T0}, s{T0}, 108")
    a(f"s_add_u32 s{T0}, s{T0}, s{S_ACT}")
    a(f"s_lshl_b32 s{T0}, s{T0}, 10")
    a(f"s_add_u32 s{S_HB}, s{T0}, {WS_H}")
    a(f"s_cmp_lt_u32 s{S_ACT}, 108")
    a(f"s_cselect_b32 s{S_HB}, s{S_HB}, 0x7fff0000")
    a.wait_vm('tab')
    P = lambda b, e: vr(b + 2*e, 2)
    for tt in range(2):
        nmp = vr(ST + 2*tt, 2)
        for jj in range(2):
            x = ACC + 16*(2*tt+1) + 8*jj
            for e in range(4):
                j, i = 2*jj + (e >> 1), 2*(e & 1)
                a(f"v_pk_fma_f32 {P(TU,e)}, {nmp}, {vr(CSR+4*j+i,2)}, {vr(B1R+4*j+i,2)} op_sel_hi:[0,1,1]")
            for e in range(4): a(f"v_pk_fma_f32 {P(x,e)}, {nmp}, {P(x,e)}, {P(TU,e)} op_sel:[1,0,0] op_sel_hi:[1,1,1]")
            for e in range(4): a(f"v_pk_mul_f32 {P(TU,e)}, {P(x,e)}, {P(x,e)}")
            for e in range(4): a(f"v_pk_fma_f32 {P(TU,e)}, {P(TU,e)}, {vr(C0,2)}, {vr(C0,2)} op_sel:[0,1,0] op_sel_hi:[1,1,0]")
            for e in range(4): a(f"v_pk_mul_f32 {P(TU,e)}, {P(TU,e)}, {P(x,e)}")
            for e in range(8): a(f"v_exp_f32 v{TE+e}, v{TU+e}")
            for e in range(4): a(f"v_pk_add_f32 {P(TE,e)}, {P(TE,e)}, {vr(ONE,2)} op_sel_hi:[1,0]")
            for e in range(8): a(f"v_rcp_f32 v{TE+e}, v{TE+e}")
            for e in range(4): a(f"v_pk_mul_f32 {P(TE,e)}, {P(TE,e)}, {P(x,e)}")
            d = TD + 4*(2*tt + jj)
            for e in range(4): a(f"v_cvt_pk_bf16_f32 v{d+e}, v{TE+2*e}, v{TE+2*e+1}")
    fq_poll_offsets(a, VP, t3)
    a.wait_vm('qst')
    a("s_barrier")
    flag_store(a, S_FQ, t3)
    mark(a)
    for tt in range(2):
        if tt == 1: a(f"s_add_u32 s{S_HB}, s{S_HB}, {108*1024}")
        for jj in range(2):
            d = TD + 4*(2*tt + jj)
            a(f"buffer_store_dwordx4 {vr(d,4)}, v{VY}, s[{SRD_WS}:{SRD_WS+3}], s{S_HB} offen offset:{jj*1024} sc1", tag='hst')
    a(f"s_branch {lbl}_stage")
    a.label(f"{lbl}_idle")
    a.reset_counters()
    t3i = t3
    srd(a, SRD_A, P_AX, SIZES['AX'])
    rowstats_issue(a)
    colsum_issue(a)
    nonce_issue(a, 252)
    rowstats_compute(a)
    colsum_compute(a, lbl + "_cs")
    nonce_check(a, 252)
    a("s_waitcnt vmcnt(0)")
    a("s_barrier")
    a(f"s_lshl_b32 s{T0}, s{S_RB}, 7")
    a(f"s_add_u32 s{T0}, s{T0}, {WS_FLAG + FS}")
    flag_store(a, T0, t3)
    a(f"s_lshl_b32 s{T0}, s{S_RB}, 2")
    a(f"s_add_u32 s{T0}, s{T0}, {WS_FLAG + FC}")
    flag_store(a, T0, t3)
    pre_address(a, lbl + "_pai", rows=False)
    pre_issue(a, rows=False)
    a.wait_vm('pl')
    repack_finish(a)
    a("s_waitcnt vmcnt(0)")
    a("s_barrier")
    pre_flags(a, t3, stats=False)
    a(f"s_mov_b32 s{S_FHO}, 0x7fff0000")
    fq_poll_offsets(a, VP, t3)
    a.label(f"{lbl}_stage")
    a.reset_counters()
    a(f"s_mov_b64 s[{T4}:{T4+1}], -1")
    wait_flags(a, VP, VPV, T4)
    mark(a)
    Li = uid("ik")
    a(f"s_cmp_ge_u32 s{S_W}, 4")
    a(f"s_cbranch_scc1 {Li}")
    attn_stage_q(a, 3)
    attn_stage_kv(a, t0, t1, t2, 2)
    a.wait_vm(('kv', 0))
    a.label(Li)
    a.reset_counters()

def stage_attn(a, lbl):
    HP, S_HH, S_QW = S_AHP, 78, 79
    VD, VK, VV, VKX, VW = 2, 3, 4, 5, 10
    t0, t1, t2, t3, t4 = 6, 7, 8, 9, 11
    MK = 12
    Q0, Q1 = 20, 24
    KF = [28, 36]
    VF = [44, 48, 52, 56]
    PF = [60, 64, 68, 72]
    OA = 76
    CS, NM, MX = 96, 97, 98
    S = 104
    VPQ, VPH = 92, 94
    a(f"v_and_b32 v{t0}, 31, v1")
    a(f"v_and_b32 v{VPH}, 15, v1")
    a(f"v_min_u32 v{VPH}, 13, v{VPH}")
    a(f"v_lshlrev_b32 v{VPH}, 2, v{VPH}")
    a(f"s_lshr_b32 s{T1}, s{S_FRB}, 1")
    a(f"s_lshl_b32 s{T1}, s{T1}, 7")
    a(f"s_add_u32 s{T1}, s{T1}, {WS_FLAG + FH}")
    a(f"v_add_u32 v{VPH}, s{T1}, v{VPH}")
    a(f"v_lshrrev_b32 v{t1}, 5, v1")
    for r in range(4): a(f"v_mov_b32 v{KF[0]+r}, 0x3f803f80")
    a(f"v_lshlrev_b32 v{t4}, 4, v0")
    a(f"v_add_u32 v{t4}, {LONES}, v{t4}")
    a(f"v_mov_b32 v{KF[1]}, 208")
    a(f"v_cmp_gt_u32 vcc, v{KF[1]}, v0")
    L = uid("on")
    a(f"s_and_saveexec_b64 s[{T4}:{T4+1}], vcc")
    a(f"s_cbranch_execz {L}")
    a(f"ds_write_b128 v{t4}, {vr(KF[0],4)}")
    a.label(L)
    a(f"s_mov_b64 exec, s[{T4}:{T4+1}]")
    SM = 98
    a(f"v_lshlrev_b32 v{t2}, 2, v{t1}")
    a(f"v_sub_u32 v{t2}, v{t0}, v{t2}")
    VM = 248
    a(f"v_mov_b32 v{VM}, v{t2}")
    a(f"v_mov_b32 v{t3}, 0xffff")
    a(f"v_mov_b32 v{t4}, 0xffff0000")
    for q in range(8):
        r0, r1 = 2*q, 2*q + 1
        a(f"v_cmp_le_i32 s[98:99], {8*(r0 >> 2) + (r0 & 3)}, v{VM}")
        a(f"v_cmp_le_i32 s[100:101], {8*(r1 >> 2) + (r1 & 3)}, v{VM}")
        a(f"v_cndmask_b32 v{MK+q}, 0, v{t3}, s[98:99]")
        a(f"v_cndmask_b32 v{KF[1]}, 0, v{t4}, s[100:101]")
        a(f"v_or_b32 v{MK+q}, v{MK+q}, v{KF[1]}")
    a(f"s_lshl_b32 s{T0}, s{S_QW}, 8")
    a(f"s_mul_i32 s{T3}, s{S_HH}, {5*PST}")
    a(f"s_add_u32 s{T2}, s{T0}, s{T3}")
    a(f"s_add_u32 s{T2}, s{T2}, {LK}")
    a(f"v_lshlrev_b32 v{t2}, 3, v{t0}")
    a(f"v_add_u32 v{t2}, s{T2}, v{t2}")
    a(f"s_movk_i32 s{T1}, {2*PST}")
    a(f"v_mul_lo_u32 v{t3}, v{t1}, s{T1}")
    a(f"v_add_u32 v{VK}, v{t2}, v{t3}")
    a(f"v_add_u32 v{VKX}, {4*PST}, v{t2}")
    a(f"v_bfe_u32 v{t2}, v1, 4, 1")
    a(f"v_and_b32 v{t3}, 3, v1")
    a(f"v_lshl_add_u32 v{t2}, v{t2}, 2, v{t3}")
    a(f"v_bfe_u32 v{t3}, v1, 2, 2")
    a(f"v_lshl_add_u32 v{t3}, v{t1}, 2, v{t3}")
    a(f"v_lshlrev_b32 v{t3}, 3, v{t3}")
    a(f"v_add_u32 v{t3}, s{T0}, v{t3}")
    a(f"s_movk_i32 s{T1}, {PST}")
    a(f"v_mul_lo_u32 v{t4}, v{t2}, s{T1}")
    a(f"v_cmp_gt_u32 s[{T4}:{T4+1}], 5, v{t2}")
    a(f"s_add_u32 s{T3}, s{T3}, {LV}")
    a(f"s_sub_u32 s{T2}, s{T3}, {LONES}")
    a(f"v_lshlrev_b32 v{KF[0]}, 5, v{t2}")
    a(f"v_add_u32 v{KF[0]}, s{T2}, v{KF[0]}")
    a(f"v_and_b32 v{KF[0]}, 255, v{KF[0]}")
    a(f"v_add_u32 v{KF[0]}, {LONES}, v{KF[0]}")
    a(f"v_add_u32 v{KF[0]+1}, s{T3}, v{t4}")
    a(f"v_cndmask_b32 v{KF[0]}, v{KF[0]}, v{KF[0]+1}, s[{T4}:{T4+1}]")
    a(f"v_add_u32 v{VV}, v{KF[0]}, v{t3}")
    a(f"v_mov_b32 v{CS}, 0x3ea52b5c")
    for st in range(2):
        a(f"v_mov_b32 v{KF[st]+6}, 0"); a(f"v_mov_b32 v{KF[st]+7}, 0")
    a(f"v_mov_b32 v{Q1+2}, 0"); a(f"v_mov_b32 v{Q1+3}, 0")
    a(f"v_lshlrev_b32 v{VW}, 4, v1")
    a(f"s_lshl_b32 s{T0}, s{S_ARB}, 2")
    a(f"s_add_u32 s{S_QB}, s{T0}, s{S_QW}")
    a(f"s_mul_i32 s{T0}, s{S_HH}, 5120")
    a(f"s_lshl_b32 s{T1}, s{S_QW}, 8")
    a(f"s_add_u32 s{T0}, s{T0}, s{T1}")
    a(f"s_add_u32 s{T0}, s{T0}, {QL}")
    a(f"v_lshlrev_b32 v{t2}, 3, v{t0}")
    a(f"v_add_u32 v{t2}, s{T0}, v{t2}")
    a(f"v_lshl_add_u32 v{t3}, v{t1}, 11, v{t2}")
    a("s_waitcnt lgkmcnt(0)")
    a("s_barrier")
    if OPT.get('latev'):
        Lw = uid("lv")
        a(f"s_cmp_ge_u32 s{S_W}, 4")
        a(f"s_cbranch_scc1 {Lw}")
        vm = list(a.vm)
        attn_stage_kv(a, 244, 245, 246, 247, (1,))
        a.vm = vm
        a.label(Lw)
    probe(a, 4)
    a(f"ds_read_b64 {vr(Q0,2)}, v{t3}")
    a(f"ds_read_b64 {vr(Q0+2,2)}, v{t3} offset:1024")
    a(f"ds_read_b64 {vr(Q1,2)}, v{t2} offset:4096")
    a(f"v_cmp_gt_u32 s[{T4}:{T4+1}], 32, v1")
    a("s_waitcnt lgkmcnt(0)")
    for q in (Q1, Q1+1):
        a(f"v_cndmask_b32 v{q}, 0, v{q}, s[{T4}:{T4+1}]")
    mark(a)
    SB = [100, 116, 132]; NM16 = 148
    order = [0, 8, 1, 2, 3, 4, 5, 6, 7]
    a(f"v_mov_b32 v{Q1+2}, 0x3f80")
    a(f"v_cndmask_b32 v{Q1+2}, 0, v{Q1+2}, s[{T4}:{T4+1}]")
    kn = [0]
    def rd_k(tl):
        st = KF[kn[0] % 2]; kn[0] += 1
        a(f"ds_read_b64 {vr(st,2)}, v{VK} offset:{tl*256}", tag=('k', tl))
        a(f"ds_read_b64 {vr(st+2,2)}, v{VK} offset:{PST + tl*256}", tag=('k', tl))
        a(f"ds_read_b64 {vr(st+4,2)}, v{VKX} offset:{tl*256}", tag=('k', tl))
        if tl < 8:
            a(f"s_cmp_lt_u32 s{S_QB}, {8-tl}")
            a(f"s_cselect_b32 s{T0}, 0xf149, 0")
            a(f"v_mov_b32 v{st+6}, s{T0}")
        else:
            a(f"v_mov_b32 v{st+6}, 0")
        return st
    def qk(tl, st, buf, c):
        a.wait_lg(('k', tl))
        d = vr(buf, 16)
        a(f"v_mfma_f32_32x32x16_bf16 {d}, {vr(st,4)}, {vr(Q0,4)}, {c}")
        a(f"v_mfma_f32_32x32x16_bf16 {d}, {vr(st+4,4)}, {vr(Q1,4)}, {d}")
    def merge():
        for r in range(0, 16, 2):
            a(f"v_cmp_le_i32 s[98:99], {8*(r >> 2) + (r & 3)}, v{VM}")
            a(f"v_cmp_le_i32 s[100:101], {8*((r+1) >> 2) + ((r+1) & 3)}, v{VM}")
            a(f"v_cndmask_b32 v{SB[0]+r}, v{SB[0]+r}, v{SB[1]+r}, s[98:99]")
            a(f"v_cndmask_b32 v{SB[0]+r+1}, v{SB[0]+r+1}, v{SB[1]+r+1}, s[100:101]")
    bufs = {0: SB[0], 8: SB[1]}
    for n, tl in enumerate(range(1, 8)): bufs[tl] = SB[(2 - n) % 3]
    def tmax(buf, first):
        for h in range(2):
            m = MX + h
            a(f"v_max3_f32 v{m}, v{buf+8*h}, v{buf+8*h+1}, {'v%d' % (buf+8*h+2) if first else 'v%d' % m}")
            ks = range(3, 8) if first else range(2, 8)
            ks = list(ks)
            while ks:
                if len(ks) >= 2:
                    a(f"v_max3_f32 v{m}, v{m}, v{buf+8*h+ks[0]}, v{buf+8*h+ks[1]}"); ks = ks[2:]
                else:
                    a(f"v_max_f32 v{m}, v{m}, v{buf+8*h+ks[0]}"); ks = ks[1:]
    st = rd_k(0); st2 = rd_k(8)
    qk(0, st, bufs[0], "0")
    st = rd_k(1)
    qk(8, st2, bufs[8], "0")
    st2 = rd_k(2)
    qk(1, st, bufs[1], "0")
    merge()
    tmax(SB[0], True)
    cur = st2
    for tl in range(2, 8):
        nxt = rd_k(tl + 1) if tl + 1 < 8 else None
        qk(tl, cur, bufs[tl], "0")
        tmax(bufs[tl-1], False)
        cur = nxt
    tmax(bufs[7], False)
    a(f"v_max_f32 v{MX}, v{MX}, v{MX+1}")
    a(f"v_mov_b32 v{MX+1}, v{MX}")
    a(f"v_permlane32_swap_b32 v{MX}, v{MX+1}")
    a(f"v_max_f32 v{MX}, v{MX}, v{MX+1}")
    a(f"v_sub_f32 v{NM16}, 0, v{MX}")
    for r in range(1, 16): a(f"v_mov_b32 v{NM16+r}, v{NM16}")
    if OPT.get('fine5'): mark(a)
    st = rd_k(0); st2 = rd_k(8)
    Lv = uid("vb")
    a(f"s_cmp_ge_u32 s{S_W}, 4")
    a(f"s_cbranch_scc1 {Lv}_1")
    a("s_waitcnt vmcnt(0)")
    a.label(f"{Lv}_1")
    if OPT.get('thp', -1) < 0: a("s_waitcnt vmcnt(0)")
    a.vm = []
    a("s_barrier")
    if OPT.get('thp', -1) < 0: flag_store(a, S_FHO, t3)
    dma_wf(a, 0, VW); dma_wf(a, 1, VW)
    mark(a)
    probe(a, 5)
    nv = [0]; ps = [0]
    for r in range(16): a(f"v_mov_b32 v{OA+r}, 0")
    def rd_v(tl, kk):
        slot = nv[0] % 4; nv[0] += 1
        for rd in range(2):
            a(f"ds_read_b64_tr_b16 {vr(VF[slot]+2*rd,2)}, v{VV} offset:{tl*256 + kk*128 + rd*64}", tag=('v', tl, kk))
        return slot
    def frag(src):
        p = PF[ps[0] % 4]; ps[0] += 1
        for e in range(8): a(f"v_exp_f32 v{src+e}, v{src+e}")
        for e in range(4): a(f"v_cvt_pk_bf16_f32 v{p+e}, v{src+2*e}, v{src+2*e+1}")
        return p
    def pv(p, slot, tag):
        a.wait_lg(tag)
        a(f"v_mfma_f32_32x32x16_bf16 {vr(OA,16)}, {vr(VF[slot],4)}, {vr(p,4)}, {vr(OA,16)}")
    C = vr(NM16, 16)
    qk(0, st, bufs[0], C)
    st = rd_k(1)
    qk(8, st2, bufs[8], C)
    st2 = rd_k(2)
    qk(1, st, bufs[1], C)
    merge()
    fin = None; ntok = [0]
    for kk in range(2):
        s0 = rd_v(0, kk); s8 = rd_v(8, kk)
        p = frag(SB[0] + 8*kk)
        p8 = PF[ps[0] % 4]; ps[0] += 1
        for e in range(4): a(f"v_and_b32 v{p8+e}, v{p+e}, v{MK+4*kk+e}")
        for e in range(4): a(f"v_xor_b32 v{p+e}, v{p+e}, v{p8+e}")
        pv(p, s0, ('v', 0, kk))
        pv(p8, s8, ('v', 8, kk))
    def publish_h():
        a("s_waitcnt vmcnt(10)")
        a("s_barrier")
        flag_store(a, S_FHO, t3)
    if OPT.get('thp', -1) == 0: publish_h()
    cur = st2
    for tl in range(1, 8):
        if tl + 1 < 8:
            nxt = rd_k(tl + 2) if tl + 2 < 8 else None
            qk(tl + 1, cur, bufs[tl+1], C)
            cur = nxt
        for kk in range(2):
            slot = rd_v(tl, kk)
            p = frag(bufs[tl] + 8*kk)
            pv(p, slot, ('v', tl, kk))
            if fin is not None and OPT.get('spread_t', 1):
                left = OPT.get('td1', 16) - ntok[0]
                nfr = 2*(7 - tl) + (1 - kk) + 1
                for _ in range(-(-left // nfr)):
                    fin(ntok[0]); ntok[0] += 1
        if tl == OPT.get('thp', -1): publish_h()
        if tl == OPT.get('tpoll', 2): poll_issue(a, VPH, VPH+1, 'ph')
        if tl == OPT.get('ttok', 4):
            if OPT.get('fine5'): mark(a)
            fin = final_setup(a, VPH)
            if OPT.get('fine5'): mark(a)
    a(f"v_and_b32 v{t0}, 1, v1")
    a(f"v_mul_u32_u24 v{t0}, {40*1024}, v{t0}")
    a(f"v_bfe_u32 v{t1}, v1, 1, 4")
    a(f"v_lshl_add_u32 v{t0}, v{t1}, 4, v{t0}")
    a(f"s_and_b32 s{T0}, s{S_QB}, 1")
    a(f"s_lshl_b32 s{T0}, s{T0}, 8")
    a(f"s_lshr_b32 s{T1}, s{S_QB}, 1")
    a(f"s_mul_i32 s{T1}, s{T1}, {80*1024}")
    a(f"s_add_u32 s{T0}, s{T0}, s{T1}")
    a(f"s_add_u32 s{T0}, s{T0}, {WS_O}")
    a(f"v_lshrrev_b32 v{t1}, 5, v1")
    a(f"v_lshl_add_u32 v{t2}, v{t1}, 9, v{t0}")
    a(f"v_rcp_f32 v{NM}, v{OA+12}")
    for r in range(12): a(f"v_mul_f32 v{OA+r}, v{OA+r}, v{NM}")
    for e in range(4): a(f"v_cvt_pk_bf16_f32 v{PF[0]+e}, v{OA+2*e}, v{OA+2*e+1}")
    a(f"v_cvt_pk_bf16_f32 v{PF[1]}, v{OA+8}, v{OA+9}")
    a(f"v_cvt_pk_bf16_f32 v{PF[1]+1}, v{OA+10}, v{OA+11}")
    a(f"s_lshl_b32 s{T1}, s{HP}, 1")
    a(f"s_add_u32 s{T1}, s{T1}, s{S_HH}")
    a(f"s_lshl_b32 s{T1}, s{T1}, 10")
    a(f"s_add_u32 s{T1}, s{T1}, s{T0}")
    a(f"buffer_store_dwordx4 {vr(PF[0],4)}, v{t2}, s[{SRD_WS}:{SRD_WS+3}], s{T1} offen sc1", tag='ost')
    a(f"s_lshr_b32 s{T1}, s{HP}, 1")
    a(f"s_add_u32 s{T1}, s{T1}, 32")
    a(f"s_lshl_b32 s{T1}, s{T1}, 10")
    a(f"s_and_b32 s{T2}, s{HP}, 1")
    a(f"s_lshl_b32 s{T2}, s{T2}, 9")
    a(f"s_add_u32 s{T1}, s{T1}, s{T2}")
    a(f"s_lshl_b32 s{T2}, s{S_HH}, 3")
    a(f"s_add_u32 s{T1}, s{T1}, s{T2}")
    a(f"s_add_u32 s{T1}, s{T1}, s{T0}")
    a("s_mov_b32 exec_hi, 0")
    a(f"buffer_store_dwordx2 {vr(PF[1],2)}, v{t0}, s[{SRD_WS}:{SRD_WS+3}], s{T1} offen sc1", tag='ost')
    a("s_mov_b32 exec_hi, -1")
    S_FO = 78
    a(f"s_lshl_b32 s{T0}, s{S_ARB}, 7")
    a(f"s_lshl_b32 s{T1}, s{HP}, 2")
    a(f"s_add_u32 s{T0}, s{T0}, s{T1}")
    a(f"s_add_u32 s{S_FO}, s{T0}, {WS_FLAG + FO}")
    mark(a)
    return dict(VPH=VPH, VW=VW, S_FO=S_FO, fin=fin)

TR, NT, HM, NM_ = 164, 20, 27, 37
F_HB, F_OB, F_TG, F_KG = 70, 71, 72, 81
F_VB = 11
def final_setup(a, VPH):
    TD = OPT.get('td', 16)
    t1, t2, t3 = 6, 7, 8
    a(f"s_and_b32 s{F_TG}, s{S_W}, 3")
    a(f"s_lshr_b32 s{F_KG}, s{S_W}, 2")
    poll_check(a, VPH, VPH+1, 'ph')
    if OPT.get('pfh', 0): touch_h(a, t1, t2)
    a(f"v_lshrrev_b32 v{t1}, 5, v1")
    a(f"v_bfe_u32 v{t2}, v1, 4, 1")
    a(f"v_lshlrev_b32 v{t1}, 10, v{t1}")
    a(f"v_lshl_add_u32 v{t1}, v{t2}, 9, v{t1}")
    a(f"v_and_b32 v{t2}, 15, v1")
    a(f"s_and_b32 s{T0}, s{F_TG}, 1")
    a(f"s_lshl_b32 s{T0}, s{T0}, 4")
    a(f"v_add_u32 v{t3}, s{T0}, v{t2}")
    a(f"v_lshl_add_u32 v{F_VB}, v{t3}, 4, v{t1}")
    a(f"s_lshl_b32 s{T0}, s{S_FRB}, 1")
    a(f"s_lshr_b32 s{T1}, s{F_TG}, 1")
    a(f"s_add_u32 s{T0}, s{T0}, s{T1}")
    a(f"s_lshl_b32 s{T2}, s{F_KG}, 11")
    a(f"s_mul_i32 s{T1}, s{T0}, {108*1024}")
    a(f"s_add_u32 s{T1}, s{T1}, s{T2}")
    a(f"s_add_u32 s{F_HB}, s{T1}, {WS_H}")
    a(f"s_mul_i32 s{T1}, s{T0}, {40*1024}")
    a(f"s_add_u32 s{T1}, s{T1}, s{T2}")
    a(f"s_add_u32 s{F_OB}, s{T1}, {WS_O}")
    def ld_t(m):
        sb, k = (F_HB, m) if m < HM else (F_OB, m - HM)
        if k > 0 and not OPT.get('hotft'): a(f"s_add_u32 s{sb}, s{sb}, 4096")
        a(f"buffer_load_dwordx4 {vr(TR+4*(m % NT),4)}, v{F_VB}, s[{SRD_WS}:{SRD_WS+3}], s{sb} offen sc1", tag=('T', m))
    if not OPT.get('spread_t', 1):
        for m in range(OPT.get('td1', 16)): ld_t(m)
    return ld_t

def stage_final(a, lbl, st):
    VPH, S_FO = st['VPH'], st['S_FO']
    VW = st['VW']; ld_t = st['fin']
    VG, VO, VF = 3, 4, 6
    VA = 12
    t0, t1, t2, t3 = 16, 17, 18, 19
    AS = [20, 40, 60]
    ACB, ACA, BI = 100, 120, 80
    TD = OPT.get('td', 16)
    NM = NM_
    S_TG, S_KG = F_TG, F_KG
    srd(a, SRD_A, P_B2, SIZES['B2'])
    srd(a, SRD_B, P_OUT, SIZES['OUT'])
    a(f"s_mul_i32 s{T0}, s{S_KG}, 5120")
    a(f"v_lshlrev_b32 v{t1}, 4, v1")
    a(f"v_add_u32 v{t1}, s{T0}, v{t1}")
    for k in range(4): a(f"v_add_u32 v{VA+k}, {RING[k]}, v{t1}")
    def rd_a(m, F):
        g, u = m >> 2, m & 3
        a(f"ds_read_b128 {vr(AS[m % 3]+4*F,4)}, v{VA + g % 4} offset:{u*10240 + F*1024}", tag=('A', m, F))
    a.wait_vm(('W', 0))
    a("s_barrier")
    for m in range(2):
        for F in range(5): rd_a(m, F)
    def late_setup():
        a(f"s_lshl_b32 s{T0}, s{S_FRB}, 6")
        a(f"s_lshr_b32 s{T1}, s{S_TG}, 1")
        a(f"s_add_u32 s{T0}, s{T0}, s{T1}")
        a(f"s_and_b32 s{T1}, s{S_TG}, 1")
        a(f"s_lshl_b32 s{T1}, s{T1}, 5")
        a(f"s_add_u32 s{T0}, s{T0}, s{T1}")
        a(f"v_and_b32 v{t3}, 15, v1")
        a(f"v_lshlrev_b32 v{t3}, 1, v{t3}")
        a(f"v_add_u32 v{t3}, s{T0}, v{t3}")
        a(f"v_lshlrev_b32 v{t1}, 2, v{t3}")
        a(f"v_add_u32 v{t1}, {WS_G}, v{t1}")
        a(f"buffer_load_dword v{VG}, v{t1}, s[{SRD_WS}:{SRD_WS+3}], 0 offen sc1", tag='g')
        a(f"v_lshrrev_b32 v{t0}, 4, v1")
        a(f"s_movk_i32 s{T1}, 1280")
        a(f"v_mul_lo_u32 v{t3}, v{t3}, s{T1}")
        a(f"s_mul_i32 s{T0}, s{S_FCJ}, 160")
        a(f"v_lshl_add_u32 v{t3}, v{t0}, 3, v{t3}")
        a(f"v_add_u32 v{VO}, s{T0}, v{t3}")
        a(f"v_lshlrev_b32 v{t1}, 3, v{t0}")
        a(f"v_add_u32 v{t1}, s{T0}, v{t1}")
        for F in range(5):
            a(f"buffer_load_dwordx2 {vr(BI+2*F,2)}, v{t1}, s[{SRD_A}:{SRD_A+3}], 0 offen offset:{32*F}", tag='g')
    if not OPT.get('latef', 1):
        dma_wf(a, 2, VW); late_setup()
    a(f"s_lshr_b32 s{T0}, s{S_FRB}, 1")
    a(f"s_lshl_b32 s{T0}, s{T0}, 7")
    a(f"s_add_u32 s{T0}, s{T0}, {WS_FLAG + FO}")
    a(f"v_and_b32 v{VF}, 15, v1")
    a(f"v_lshlrev_b32 v{VF}, 2, v{VF}")
    a(f"v_add_u32 v{VF}, s{T0}, v{VF}")
    mark(a)
    probe(a, 6)
    NG = 10
    MO = OPT.get('mo', 16)
    POLL = MO - 4
    nxt = [OPT.get('td1', 16)]
    for m in range(NM):
        g, u = m >> 2, m & 3
        if m == HM: probe(a, 7)
        if m == HM: mark(a)
        if u == 2 and g + 1 < NG:
            if g == 0: a.wait_vm(['ost', ('W', 1)])
            else: a.wait_vm(('W', g + 1))
            a("s_barrier")
            if g == 0:
                flag_store(a, S_FO, t1)
                dma_wf(a, 3, VW)
            elif g + 3 < NG and not OPT.get('f_nodma'): dma_wf(a, g + 3, VW)
        if m == POLL: poll_issue(a, VF, VF+1, 'fo')
        if m == MO:
            if OPT.get('fine6'): mark(a)
            poll_check(a, VF, VF+1, 'fo')
            if OPT.get('fine6'): mark(a)
        a.wait_vm(('T', m))
        for F in range(5):
            a.wait_lg(('A', m, F))
            acc = (ACB if m < HM else ACA) + 4*F
            d = vr(acc, 4)
            a(f"v_mfma_f32_16x16x32_bf16 {d}, {vr(AS[m % 3]+4*F,4)}, {vr(TR+4*(m % NT),4)}, {'0' if m in (0, HM) else d}")
            if m + 2 < NM and not OPT.get('f_nolds'):
                rd_a(m + 2, F)
            if F in (1, 3) and not OPT.get('f_notok'):
                lim = min(m + TD, NM - 1)
                if m < MO: lim = min(lim, HM - 1)
                if nxt[0] <= lim and (F == 1 or nxt[0] < lim or OPT.get('td1', 16) < TD or MO > HM - TD):
                    ld_t(nxt[0]); nxt[0] += 1
        if m == 0 and OPT.get('latef', 1): dma_wf(a, 2, VW)
        if m == 8 and OPT.get('latef', 1): late_setup()
    mark(a)
    a.wait_vm('g')
    a(f"v_sub_f32 v{t0}, 1.0, v{VG}")
    Lb = uid("bi")
    a(f"s_cmp_lg_u32 s{S_KG}, 0")
    a(f"s_cbranch_scc1 {Lb}")
    for F in range(5):
        for e in range(2):
            a(f"v_lshlrev_b32 v{t2}, 16, v{BI+2*F+e}")
            a(f"v_and_b32 v{t3}, 0xffff0000, v{BI+2*F+e}")
            a(f"v_add_f32 v{ACB+4*F+2*e}, v{ACB+4*F+2*e}, v{t2}")
            a(f"v_add_f32 v{ACB+4*F+2*e+1}, v{ACB+4*F+2*e+1}, v{t3}")
    a.label(Lb)
    for r in range(20): a(f"v_mul_f32 v{ACB+r}, v{ACB+r}, v{t0}")
    for r in range(20): a(f"v_fmac_f32 v{ACB+r}, v{ACA+r}, v{VG}")
    a(f"v_lshlrev_b32 v{t1}, 4, v1")
    a(f"s_mul_i32 s{T0}, s{S_TG}, 5120")
    a(f"s_add_u32 s{T0}, s{T0}, {RING[2]}")
    a(f"v_add_u32 v{t1}, s{T0}, v{t1}")
    L = uid("rd")
    def finish(own, other):
        for F in other:
            a(f"ds_write_b128 v{t1}, {vr(ACB+4*F,4)} offset:{F*1024}")
        a("s_waitcnt lgkmcnt(0)")
        a("s_barrier")
        for F in own:
            a(f"ds_read_b128 {vr(ACA+4*F,4)}, v{t1} offset:{F*1024}", tag=('r', F))
        for F in own:
            a.wait_lg(('r', F))
            for r in range(4): a(f"v_add_f32 v{ACB+4*F+r}, v{ACB+4*F+r}, v{ACA+4*F+r}")
            d = AS[0] + 2*F
            a(f"v_cvt_pk_bf16_f32 v{d}, v{ACB+4*F}, v{ACB+4*F+1}")
            a(f"v_cvt_pk_bf16_f32 v{d+1}, v{ACB+4*F+2}, v{ACB+4*F+3}")
            a(f"buffer_store_dwordx2 {vr(d,2)}, v{VO}, s[{SRD_B}:{SRD_B+3}], 0 offen offset:{32*F} {['', 'sc1', 'nt', 'sc0 sc1'][OPT.get('outsc', 0)]}".rstrip())
    a(f"s_cmp_eq_u32 s{S_KG}, 0")
    a(f"s_cbranch_scc1 {L}")
    finish((3, 4), (0, 1, 2))
    if G.STAMPS: a("s_waitcnt vmcnt(0)")
    a("s_endpgm")
    a.label(L)
    a.reset_counters()
    finish((0, 1, 2), (3, 4))
    probe_spin(a)
    a.reset_counters()

def code_prefetch(a):
    L = uid("cp")
    a(f"s_cmp_lg_u32 s{S_W}, 3")
    a(f"s_cbranch_scc1 {L}_skip")
    a(f"s_getpc_b64 s[{T4}:{T4+1}]")
    a.label(L)
    a(f"s_and_b32 s{T0}, s{S_I}, 7")
    a(f"s_lshl_b32 s{T0}, s{T0}, 13")
    a("v_lshlrev_b32 v251, 7, v1")
    a(f"v_add_u32 v251, s{T0}, v251")
    a(f"v_min_u32 v251, L_end-{L}-4, v251")
    vm = list(a.vm)
    a(f"global_load_dword v251, v251, s[{T4}:{T4+1}]")
    a.vm = vm
    a.label(f"{L}_skip")

def build():
    if OPT.get('fine2'):
        G_mark = G.mark
    OPT['mega'] = True
    LDS = 163840
    name = NAME + "_kernel"
    a = Asm()
    if G.STAMPS or OPT.get('probe'): a("s_memrealtime s[94:95]")
    a("s_cmp_ge_u32 s2, 256")
    a("s_cbranch_scc1 L_end")
    prologue_ids(a)
    CTX['k'] = 0; CTX['slot'] = 0
    stage1g(a, "s1"); mark(a)
    st = stage_attn(a, "attn")
    stage_final(a, "fin", st)
    if G.STAMPS: a("s_waitcnt vmcnt(0)")
    mark(a)
    a.label("L_end")
    return [(name, a.text())], LDS

DESCRIPTION = """;
; Hand-offs between workgroups go through d_ws: sc1 stores, drained, workgroup barrier, then an sc1 flag holding a
"""

def emit(ks, LDS):
    s = "\n".join(G.header_comment()) + "\n"
    s += f"; @launch grid=(256,1,1) block=(512,1,1) lds={LDS}\n"
    s += DESCRIPTION
    s += '.amdgcn_target "amdgcn-amd-amdhsa--gfx950"\n.text\n'
    for name, body in ks:
        s += G.kernel_text(name, body, 256, LDS)
    s += '.section .rodata,"a"\n'
    for name, _ in ks:
        s += ".p2align 6\n" + G.descriptor(name)
    return s

if __name__ == "__main__":
    if "stamps" in sys.argv: G.STAMPS = True
    for arg in sys.argv[1:]:
        if "=" in arg:
            k, v = arg.split("="); OPT[k] = int(v)
    ks, LDS = build()
    sys.stdout.write(emit(ks, LDS))
```

```python
import sys
import gen as G
from gen import mark4
from gen import (Asm, NAME, SIZES, srd, vr, uid, OPT, mark, stamp, CTX, dpp_sum16, WF_TILE,
                 P_AX, P_WQKV, P_WO, P_W1, P_B1, P_W2, P_B2, P_GW, P_OUT, P_DBG, P_WS,
                 SRD_A, SRD_B, SRD_WS, SRD_C, S_W, S_IDX, S_X, S_I, T0, T1, T2, T3, T4, T5, T6, T7,
                 S_RB, S_CJ, S_MASK, S_NONCE, nonce_post, nonce_get, publish, wait_flags)

WS_ST   = 0x0000000
WS_CS   = 0x0010000
WS_B1   = 0x0012000
WS_G    = G.WS_G
WS_QKV  = G.WS_QKV
WS_H, WS_O, WS_WF, WS_FLAG = G.WS_H, G.WS_O, G.WS_WF, G.WS_FLAG
FS, FW, FQ, FH, FO, FC = 0, 2048, 3072, 5120, 7168, 9216
PST = 3104
LB = 98304
LK, LV, LONES = LB, LB + 10*PST, LB + 20*PST
RING = [0, 40960, 81920, 122880]
WSLOT = 40960
SRD_D = 60
S_KX, S_KQ, S_K1 = 58, 59, 80
S_QB = 61
S_FHO, S_HBO = 86, 87
S_ARB, S_AHP, S_LW = 88, 89, 90

V_FLG = 250
def flag_setup(a):
    a(f"v_mov_b32 v{V_FLG}, 0x7ffffff0")
    a(f"v_cmp_eq_u32 s[{T4}:{T4+1}], 0, v0")
    a(f"v_cndmask_b32 v{V_FLG}, v{V_FLG}, 0, s[{T4}:{T4+1}]")

def flag_store(a, sflag, v):
    a(f"v_mov_b32 v{v}, s{S_NONCE}")
    a(f"buffer_store_dword v{v}, v{V_FLG}, s[{SRD_WS}:{SRD_WS+3}], s{sflag} offen sc1", tag='flag')

def poll_issue(a, voff, vval, tag):
    a(f"buffer_load_dword v{vval}, v{voff}, s[{SRD_WS}:{SRD_WS+3}], 0 offen sc1", tag=tag)

def poll_check(a, voff, vval, tag):
    L = uid("pc")
    a.wait_vm(tag)
    keep = list(a.vm)
    a(f"v_cmp_ne_u32 vcc, s{S_NONCE}, v{vval}")
    a("s_nop 4")
    a(f"s_cbranch_vccz {L}_ok")
    if OPT.get('fastpoll', 0):
        vs = [vval, 244, 245]
        ld = lambda v: a(f"buffer_load_dword v{v}, v{voff}, s[{SRD_WS}:{SRD_WS+3}], 0 offen sc1")
        for v in vs:
            ld(v); a("s_sleep 2")
        a.label(L)
        for v in vs:
            a("s_waitcnt vmcnt(2)")
            a(f"v_cmp_ne_u32 vcc, s{S_NONCE}, v{v}")
            a("s_nop 4")
            a(f"s_cbranch_vccz {L}_dr")
            ld(v)
            a("s_sleep 2")
        a(f"s_branch {L}")
        a.label(f"{L}_dr")
    else:
        a.label(L)
        a("s_sleep 1")
        a(f"buffer_load_dword v{vval}, v{voff}, s[{SRD_WS}:{SRD_WS+3}], 0 offen sc1")
        a("s_waitcnt vmcnt(0)")
        a(f"v_cmp_ne_u32 vcc, s{S_NONCE}, v{vval}")
        a("s_nop 4")
        a(f"s_cbranch_vccnz {L}")
    a.label(f"{L}_ok")
    a.vm = keep

def poll_recheck(a, voff, vval):
    L = uid("pr")
    keep = list(a.vm)
    a.label(L)
    a(f"v_cmp_ne_u32 vcc, s{S_NONCE}, v{vval}")
    a("s_nop 4")
    a(f"s_cbranch_vccz {L}_ok")
    a("s_sleep 1")
    a(f"buffer_load_dword v{vval}, v{voff}, s[{SRD_WS}:{SRD_WS+3}], 0 offen sc1")
    a("s_waitcnt vmcnt(0)")
    a(f"s_branch {L}")
    a.label(f"{L}_ok")
    a.vm = keep

def probe(a, n):
    if OPT.get('probe') != n: return
    a("s_memrealtime s[92:93]")
    a("s_waitcnt lgkmcnt(0)")
    a("s_sub_u32 s91, s92, s94")

def probe_spin(a):
    if not OPT.get('probe'): return
    L = uid("ps")
    a("s_cmp_lg_u32 s2, 77")
    a(f"s_cbranch_scc1 {L}_e")
    a("s_waitcnt vmcnt(0)")
    a("s_memrealtime s[92:93]")
    a("s_waitcnt lgkmcnt(0)")
    if OPT['probe'] == 9: a("s_sub_u32 s91, s92, s94")
    a("s_lshl_b32 s91, s91, 2")
    a("s_mov_b32 s95, s92")
    a.label(L)
    a("s_memrealtime s[92:93]")
    a("s_waitcnt lgkmcnt(0)")
    a("s_sub_u32 s93, s92, s95")
    a("s_cmp_lt_u32 s93, s91")
    a(f"s_cbranch_scc1 {L}")
    a.label(f"{L}_e")

def prologue_ids(a):
    a("s_load_dwordx16 s[4:19], s[0:1], 0")
    a("s_load_dwordx8 s[20:27], s[0:1], 64")
    a("v_lshrrev_b32 v2, 6, v0")
    a("v_and_b32 v1, 63, v0")
    a(f"v_readfirstlane_b32 s{S_W}, v2")
    a(f"s_and_b32 s{S_X}, s2, 7")
    a(f"s_lshr_b32 s{S_I}, s2, 3")
    if OPT.get('cpf', 2) >= 2: code_prefetch(a)
    a(f"s_lshr_b32 s{T0}, s{S_X}, 2")
    a(f"s_lshl_b32 s{T0}, s{T0}, 3")
    a(f"s_and_b32 s{T1}, s{S_I}, 7")
    a(f"s_add_u32 s{S_RB}, s{T0}, s{T1}")
    a(f"s_and_b32 s{T0}, s{S_X}, 3")
    a(f"s_lshl_b32 s{T0}, s{T0}, 2")
    a(f"s_lshr_b32 s{T1}, s{S_I}, 3")
    a(f"s_add_u32 s{S_CJ}, s{T0}, s{T1}")

def prologue_rest(a):
    srd(a, SRD_WS, P_WS, G.WS_SIZE)
    flag_setup(a)
    nonce_post(a)
    if OPT.get('cpf', 2) == 1: code_prefetch(a)
    stamp(a, 0, 0)
    if G.STAMPS:
        a("s_lshl_b32 s97, s2, 7")
        a(f"s_add_u32 s97, s97, {G.WS_STAMP + 15*4}")
        a("v_mov_b32 v254, s94")
        a(f"buffer_store_dword v254, off, s[{SRD_WS}:{SRD_WS+3}], s97")
        a.vm.pop()

RX, RG, RT, RO = 160, 168, 176, 186
VS = 128
S_ST, S_RPO, S_RPM = 82, 83, 84

def pre_address(a, lbl, two=False, rows=True):
    t0, t1, t2, t3, t4, t5 = range(RT, RT+6)
    if rows: row_address(a, two)
    repack_address(a, lbl)

def row_address(a, two):
    t0, t1, t2, t3, t4, t5 = range(RT, RT+6)
    srd(a, SRD_D, P_GW, SIZES['GW'])
    a(f"s_lshl_b32 s{T0}, s{S_RB}, 7")
    a(f"s_lshl_b32 s{T1}, s{S_CJ}, 3")
    a(f"s_add_u32 s{T0}, s{T0}, s{T1}")
    a(f"s_add_u32 s{T0}, s{T0}, s{S_W}")
    if two: a(f"s_sub_u32 s{T0}, s{T0}, 4")
    a(f"s_mul_i32 s{T1}, s{T0}, 1280")
    a(f"v_lshlrev_b32 v{RO+1}, 4, v1")
    a(f"v_add_u32 v{RO}, s{T1}, v{RO+1}")
    a(f"v_mov_b32 v{t0}, 0x7ffffff0")
    a(f"v_cmp_gt_u32 s[{T4}:{T4+1}], 16, v1")
    a(f"v_add_u32 v{t1}, 1024, v{RO}")
    a(f"v_cndmask_b32 v{RO+2}, v{t0}, v{t1}, s[{T4}:{T4+1}]")
    a(f"v_add_u32 v{t1}, 1024, v{RO+1}")
    a(f"v_cndmask_b32 v{RO+3}, v{t0}, v{t1}, s[{T4}:{T4+1}]")
    a(f"s_mov_b32 s85, s{T0}")

def repack_address(a, lbl):
    t0, t1, t2, t3, t4, t5 = range(RT, RT+6)
    a(f"s_mul_i32 s{T0}, s{S_I}, 3")
    a(f"s_lshl_b32 s{T1}, s{S_I}, 1")
    a(f"s_add_u32 s{T1}, s{T1}, 10")
    a(f"s_cmp_lt_u32 s{S_I}, 10")
    a(f"s_cselect_b32 s{T0}, s{T0}, s{T1}")
    a(f"s_cselect_b32 s{T1}, 3, 2")
    a(f"s_sub_u32 s{T2}, s{S_W}, 4")
    a(f"s_add_u32 s{S_ST}, s{T0}, s{T2}")
    a(f"s_cmp_lt_u32 s{T2}, s{T1}")
    a(f"s_cselect_b32 s{S_ST}, s{S_ST}, 0x100")
    a(f"s_cselect_b32 s{S_RPO}, 0, 0x7fff0000")
    a(f"s_mul_i32 s{T2}, s{T2}, 5120")
    a(f"s_add_u32 s{T2}, s{T2}, {RPL}")
    a(f"s_cselect_b32 s{S_RPM}, s{T2}, s{T2}") if False else None
    a(f"s_cmp_lt_u32 s{S_ST}, 74")
    a(f"s_cselect_b32 s{S_RPM}, s{T2}, {163840}")
    for n in range(5): a(f"v_mov_b32 v{VS+n}, 0")
    srd(a, SRD_C, P_W2, SIZES['W2'])
    a(f"s_cmp_ge_u32 s{S_ST}, 74")
    a(f"s_cbranch_scc1 {lbl}_go")
    a(f"s_movk_i32 s{T6}, 6554")
    a(f"s_movk_i32 s{T7}, 1280")
    a(f"s_mul_i32 s{T2}, s{S_X}, 160")
    a(f"s_cmp_ge_u32 s{S_ST}, 54")
    a(f"s_cbranch_scc1 {lbl}_wo")
    a(f"s_lshl_b32 s{T3}, s{S_ST}, 5")
    for n in range(5):
        a(f"v_add_u32 v{t0}, {64*n}, v1")
        a(f"v_mul_u32_u24 v{t1}, s{T6}, v{t0}")
        a(f"v_lshrrev_b32 v{t1}, 16, v{t1}")
        a(f"v_mul_u32_u24 v{t2}, 10, v{t1}")
        a(f"v_sub_u32 v{t2}, v{t0}, v{t2}")
        a(f"v_add_u32 v{t1}, s{T3}, v{t1}")
        a(f"v_mul_lo_u32 v{t1}, v{t1}, s{T7}")
        a(f"v_lshl_add_u32 v{t1}, v{t2}, 4, v{t1}")
        a(f"v_add_u32 v{VS+n}, s{T2}, v{t1}")
    a(f"s_branch {lbl}_go")
    a.label(f"{lbl}_wo")
    srd(a, SRD_C, P_WO, SIZES['WO'])
    a(f"s_sub_u32 s{T3}, s{S_ST}, 54")
    a(f"s_lshl_b32 s{T3}, s{T3}, 1")
    for n in range(5):
        a(f"v_add_u32 v{t0}, {64*n}, v1")
        a(f"v_mul_u32_u24 v{t1}, s{T6}, v{t0}")
        a(f"v_lshrrev_b32 v{t1}, 16, v{t1}")
        a(f"v_mul_u32_u24 v{t2}, 10, v{t1}")
        a(f"v_sub_u32 v{t2}, v{t0}, v{t2}")
        a(f"v_lshrrev_b32 v{t3}, 4, v{t1}")
        a(f"v_add_u32 v{t3}, s{T3}, v{t3}")
        a(f"v_and_b32 v{t1}, 15, v{t1}")
        a(f"v_mul_u32_u24 v{t4}, 20, v{t3}")
        a(f"v_add_u32 v{t4}, v{t4}, v{t1}")
        a(f"v_cmp_gt_u32 s[98:99], 32, v{t3}")
        a(f"v_subrev_u32 v{t3}, 32, v{t3}")
        a(f"v_lshlrev_b32 v{t3}, 2, v{t3}")
        a(f"v_bfe_u32 v{t5}, v{t1}, 2, 1")
        a(f"v_lshl_add_u32 v{t3}, v{t5}, 1, v{t3}")
        a(f"v_lshrrev_b32 v{t5}, 3, v{t1}")
        a(f"v_add_u32 v{t3}, v{t3}, v{t5}")
        a(f"v_mul_u32_u24 v{t3}, 20, v{t3}")
        a(f"v_and_b32 v{t1}, 3, v{t1}")
        a(f"v_add3_u32 v{t3}, v{t3}, v{t1}, 16")
        a(f"v_cndmask_b32 v{t1}, v{t3}, v{t4}, s[98:99]")
        a(f"v_mul_lo_u32 v{t1}, v{t1}, s{T7}")
        a(f"v_lshl_add_u32 v{t1}, v{t2}, 4, v{t1}")
        a(f"v_add_u32 v{VS+n}, s{T2}, v{t1}")
    a.label(f"{lbl}_go")

def row_issue2(a):
    a(f"v_add_u32 v{RO}, {4*1280}, v{RO}")
    a(f"v_mov_b32 v{RT}, 0x7ffffff0")
    a(f"v_add_u32 v{RT+1}, 1024, v{RO}")
    a(f"v_cmp_gt_u32 s[100:101], 16, v1")
    a(f"v_cndmask_b32 v{RO+2}, v{RT}, v{RT+1}, s[100:101]")
    a(f"buffer_load_dwordx4 {vr(RX2,4)}, v{RO}, s[{SRD_A}:{SRD_A+3}], 0 offen", tag='pl2')
    a(f"buffer_load_dwordx4 {vr(RX2+4,4)}, v{RO+2}, s[{SRD_A}:{SRD_A+3}], 0 offen", tag='pl2')

RX2 = 192
def pre_issue(a, rows=True):
    if rows:
        a(f"buffer_load_dwordx4 {vr(RX,4)}, v{RO}, s[{SRD_A}:{SRD_A+3}], 0 offen", tag='pl')
        a(f"buffer_load_dwordx4 {vr(RX+4,4)}, v{RO+2}, s[{SRD_A}:{SRD_A+3}], 0 offen", tag='pl')
        a(f"buffer_load_dwordx4 {vr(RG,4)}, v{RO+1}, s[{SRD_D}:{SRD_D+3}], 0 offen", tag='pl')
        a(f"buffer_load_dwordx4 {vr(RG+4,4)}, v{RO+3}, s[{SRD_D}:{SRD_D+3}], 0 offen", tag='pl')
    for n in range(5):
        a(f"s_add_u32 m0, s{S_RPM}, {n*1024}")
        a(f"buffer_load_dwordx4 v{VS+n}, s[{SRD_C}:{SRD_C+3}], s{S_RPO} offen lds", tag='pl')

def pre_thunks(a, RX=RX, tag='pl', VO=RO):
    su, sq, dt, one, t0, t1, t2 = range(RT, RT+7)
    T = []
    I = lambda txt: T.append(lambda: a(txt))
    T.append(lambda: a.wait_vm(tag))
    I(f"v_mov_b32 v{one}, 0x3f803f80")
    I(f"v_mov_b32 v{su}, 0"); I(f"v_mov_b32 v{sq}, 0"); I(f"v_mov_b32 v{dt}, 0")
    for d in range(8):
        I(f"v_dot2c_f32_bf16 v{su}, v{RX+d}, v{one}")
        I(f"v_dot2c_f32_bf16 v{sq}, v{RX+d}, v{RX+d}")
        I(f"v_dot2c_f32_bf16 v{dt}, v{RX+d}, v{RG+d}")
    for r in (8, 4, 2, 1):
        for v in (su, sq, dt):
            I(f"v_add_f32_dpp v{v}, v{v}, v{v} row_ror:{r} row_mask:0xf bank_mask:0xf")
    for op in ("v_permlane16_swap_b32", "v_permlane32_swap_b32"):
        for v, t in ((su, t0), (sq, t1), (dt, t2)): I(f"v_mov_b32 v{t}, v{v}")
        for v, t in ((su, t0), (sq, t1), (dt, t2)): I(f"{op} v{v}, v{t}")
        for v, t in ((su, t0), (sq, t1), (dt, t2)): I(f"v_add_f32 v{v}, v{v}, v{t}")
    I(f"v_mul_f32 v{su}, 0x3acccccd, v{su}")
    I(f"v_mul_f32 v{sq}, 0x3acccccd, v{sq}")
    I(f"v_mul_f32 v{dt}, 0xbfb8aa3b, v{dt}")
    I(f"v_fma_f32 v{sq}, -v{su}, v{su}, v{sq}")
    I(f"v_exp_f32 v{dt}, v{dt}")
    I(f"v_add_f32 v{sq}, 0x3727c5ac, v{sq}")
    I(f"v_add_f32 v{dt}, 1.0, v{dt}")
    I(f"v_rsq_f32 v{t1}, v{sq}")
    I(f"v_rcp_f32 v{dt}, v{dt}")
    I(f"v_mul_f32 v{t0}, v{su}, v{t1}")
    I(f"v_sub_f32 v{t0}, 0, v{t0}")
    I(f"v_mov_b32 v{VO}, 0x7ffffff0")
    I(f"v_cmp_eq_u32 s[100:101], 0, v1")
    I(f"v_cndmask_b32 v{VO}, v{VO}, 0, s[100:101]")
    I(f"s_lshl_b32 s98, s85, 3")
    I(f"s_add_u32 s98, s98, {WS_ST}")
    T.append(lambda: a(f"buffer_store_dwordx2 {vr(t0,2)}, v{VO}, s[{SRD_WS}:{SRD_WS+3}], s98 offen sc1", tag='pst'))
    I(f"s_lshl_b32 s98, s85, 2")
    I(f"s_add_u32 s98, s98, {WS_G}")
    T.append(lambda: a(f"buffer_store_dword v{dt}, v{VO}, s[{SRD_WS}:{SRD_WS+3}], s98 offen sc1", tag='pst'))
    return T

def rowstats_issue(a):
    XB, GW, o0, o1, t0 = 128, 108, 96, 97, 98
    srd(a, SRD_D, P_GW, SIZES['GW'])
    a(f"s_lshl_b32 s{T0}, s{S_RB}, 7")
    a(f"s_lshl_b32 s{T1}, s{S_W}, 4")
    a(f"s_add_u32 s85, s{T0}, s{T1}")
    a(f"v_lshrrev_b32 v{t0}, 4, v1")
    a(f"v_add_u32 v{t0}, s85, v{t0}")
    a(f"s_movk_i32 s{T1}, 1280")
    a(f"v_mul_lo_u32 v{o0}, v{t0}, s{T1}")
    a(f"v_and_b32 v{o1}, 15, v1")
    a(f"v_lshlrev_b32 v{o1}, 4, v{o1}")
    a(f"v_add_u32 v{o0}, v{o0}, v{o1}")
    for i in range(5):
        a(f"buffer_load_dwordx4 {vr(GW+4*i,4)}, v{o1}, s[{SRD_D}:{SRD_D+3}], 0 offen offset:{256*i}", tag='gw')
    for q in range(4):
        a(f"s_movk_i32 s{T2}, {q*4*1280}")
        for i in range(5):
            a(f"buffer_load_dwordx4 {vr(XB+20*q+4*i,4)}, v{o0}, s[{SRD_A}:{SRD_A+3}], s{T2} offen offset:{256*i}", tag=('x', q))

def rowstats_compute(a):
    XB, GW = 128, 108
    su, sq, dt, one, t0, t1, t2 = 98, 99, 100, 101, 102, 103, 104
    NMv, RSv, GV = 106, 107, 105
    a(f"v_mov_b32 v{one}, 0x3f803f80")
    a(f"v_and_b32 v{t2}, 15, v1")
    for q in range(4):
        a.wait_vm(('x', q))
        a(f"v_mov_b32 v{su}, 0"); a(f"v_mov_b32 v{sq}, 0"); a(f"v_mov_b32 v{dt}, 0")
        for d in range(20):
            x = XB + 20*q + d
            a(f"v_dot2c_f32_bf16 v{su}, v{x}, v{one}")
            a(f"v_dot2c_f32_bf16 v{sq}, v{x}, v{x}")
            a(f"v_dot2c_f32_bf16 v{dt}, v{x}, v{GW+d}")
        for k in (8, 4, 2, 1):
            for v in (su, sq, dt):
                a(f"v_add_f32_dpp v{v}, v{v}, v{v} row_ror:{k} row_mask:0xf bank_mask:0xf")
        a(f"v_mul_f32 v{su}, 0x3acccccd, v{su}")
        a(f"v_mul_f32 v{sq}, 0x3acccccd, v{sq}")
        a(f"v_mul_f32 v{dt}, 0xbfb8aa3b, v{dt}")
        a(f"v_fma_f32 v{sq}, -v{su}, v{su}, v{sq}")
        a(f"v_exp_f32 v{dt}, v{dt}")
        a(f"v_max_f32 v{sq}, 0, v{sq}")
        a(f"v_add_f32 v{sq}, 0x3727c5ac, v{sq}")
        a(f"v_add_f32 v{dt}, 1.0, v{dt}")
        a(f"v_rsq_f32 v{t1}, v{sq}")
        a(f"v_rcp_f32 v{dt}, v{dt}")
        a(f"v_mul_f32 v{t0}, v{su}, v{t1}")
        a(f"v_sub_f32 v{t0}, 0, v{t0}")
        a(f"v_cmp_eq_u32 s[{T4}:{T4+1}], {q}, v{t2}")
        a(f"v_cndmask_b32 v{NMv}, v{NMv}, v{t0}, s[{T4}:{T4+1}]")
        a(f"v_cndmask_b32 v{RSv}, v{RSv}, v{t1}, s[{T4}:{T4+1}]")
        a(f"v_cndmask_b32 v{GV}, v{GV}, v{dt}, s[{T4}:{T4+1}]")
    a(f"v_lshrrev_b32 v{t0}, 4, v1")
    a(f"v_lshl_add_u32 v{t0}, v{t2}, 2, v{t0}")
    a(f"v_add_u32 v{t0}, s85, v{t0}")
    a(f"v_mov_b32 v{su}, 0x7ffffff0")
    a(f"v_cmp_gt_u32 s[{T4}:{T4+1}], 4, v{t2}")
    a(f"v_lshlrev_b32 v{t1}, 3, v{t0}")
    a(f"v_cndmask_b32 v{t1}, v{su}, v{t1}, s[{T4}:{T4+1}]")
    a(f"v_lshlrev_b32 v{t0}, 2, v{t0}")
    a(f"v_cndmask_b32 v{t0}, v{su}, v{t0}, s[{T4}:{T4+1}]")
    a(f"s_mov_b32 s{T0}, {WS_ST}")
    a(f"buffer_store_dwordx2 {vr(NMv,2)}, v{t1}, s[{SRD_WS}:{SRD_WS+3}], s{T0} offen sc1", tag='pst')
    a(f"s_mov_b32 s{T0}, {WS_G}")
    a(f"buffer_store_dword v{GV}, v{t0}, s[{SRD_WS}:{SRD_WS+3}], s{T0} offen sc1", tag='pst')

RPL = 147456
def repack_finish(a):
    D, VA, VD = 136, 134, 135
    L = uid("rf")
    a(f"v_mov_b32 v{VD}, 0x7ffffff0")
    a(f"s_cmp_ge_u32 s82, 74")
    a(f"s_cbranch_scc1 {L}")
    a(f"s_mul_i32 s{T0}, s{S_X}, {WF_TILE}")
    a(f"s_mul_i32 s{T1}, s82, 5120")
    a(f"s_add_u32 s{T0}, s{T0}, s{T1}")
    a(f"s_add_u32 s{T0}, s{T0}, {WS_WF}")
    a(f"v_lshlrev_b32 v{VD}, 4, v1")
    a(f"v_add_u32 v{VD}, s{T0}, v{VD}")
    a(f"v_lshrrev_b32 v{VA}, 5, v1")
    a(f"v_bfe_u32 v{D}, v1, 4, 1")
    a(f"v_lshlrev_b32 v{VA}, 4, v{VA}")
    a(f"v_lshl_add_u32 v{VA}, v{D}, 2, v{VA}")
    a(f"v_bfe_u32 v{D}, v1, 2, 2")
    a(f"v_add_u32 v{VA}, v{VA}, v{D}")
    a(f"v_mul_u32_u24 v{VA}, 160, v{VA}")
    a(f"v_and_b32 v{D}, 3, v1")
    a(f"v_lshl_add_u32 v{VA}, v{D}, 3, v{VA}")
    a(f"v_add_u32 v{VA}, s{S_RPM}, v{VA}")
    lg = list(a.lg)
    for F in range(5):
        for rd in range(2):
            a(f"ds_read_b64_tr_b16 {vr(D+4*F+2*rd,2)}, v{VA} offset:{rd*1280 + F*32}")
    a("s_waitcnt lgkmcnt(0)")
    a.lg = lg
    a.label(L)
    for F in range(5):
        a(f"s_movk_i32 s{T1}, {F*1024}")
        a(f"buffer_store_dwordx4 {vr(D+4*F,4)}, v{VD}, s[{SRD_WS}:{SRD_WS+3}], s{T1} offen sc1", tag='pst')

def nonce_issue(a, v):
    a(f"v_mov_b32 v{v+1}, 0")
    a(f"global_load_dword v{v}, v{v+1}, s[{P_DBG}:{P_DBG+1}] sc1", tag='nonce')

def nonce_check(a, v):
    L = uid("ng")
    a.wait_vm('nonce')
    keep = list(a.vm)
    a.label(L)
    a(f"v_readfirstlane_b32 s{S_NONCE}, v{v}")
    a(f"s_cmp_lg_u32 s{S_NONCE}, 0")
    a(f"s_cbranch_scc1 {L}_ok")
    a("s_sleep 2")
    a(f"global_load_dword v{v}, v{v+1}, s[{P_DBG}:{P_DBG+1}] sc1")
    a("s_waitcnt vmcnt(0)")
    a(f"s_branch {L}")
    a.label(f"{L}_ok")
    a.vm = keep

def pre_flags(a, v, stats=True):
    if stats:
        a(f"s_lshl_b32 s{T0}, s{S_RB}, 7")
        a(f"s_add_u32 s{T0}, s{T0}, {WS_FLAG + FS}")
        flag_store(a, T0, v)
    a(f"s_lshl_b32 s{T0}, s{S_X}, 7")
    a(f"s_lshl_b32 s{T1}, s{S_I}, 2")
    a(f"s_add_u32 s{T0}, s{T0}, s{T1}")
    a(f"s_add_u32 s{T0}, s{T0}, {WS_FLAG + FW}")
    flag_store(a, T0, v)

CD = 16
def colsum_issue(a):
    srd(a, SRD_B, P_W1, SIZES['W1'])
    srd(a, SRD_C, P_B1, SIZES['B1']) if False else None
    t0, t1, VO = 2, 3, 5
    a(f"v_lshrrev_b32 v{t0}, 4, v0")
    a(f"s_movk_i32 s{T0}, 3456")
    a(f"v_mul_lo_u32 v{t0}, v{t0}, s{T0}")
    a(f"v_and_b32 v{t1}, 15, v0")
    a(f"v_lshl_add_u32 v{t0}, v{t1}, 4, v{t0}")
    a(f"s_lshl_b32 s{T1}, s{S_RB}, 8")
    a(f"v_add_u32 v{VO}, s{T1}, v{t0}")
    a(f"s_cmp_lt_u32 s{S_RB}, 14")
    a(f"s_cselect_b32 s{T3}, 0, 0x7fff0000")
    for p in range(20):
        a(f"s_add_u32 s{T2}, s{T3}, {p*32*3456}")
        a(f"buffer_load_dwordx4 {vr(CD+4*p,4)}, v{VO}, s[{SRD_B}:{SRD_B+3}], s{T2} offen", tag=('cs', p))

def colsum_compute(a, lbl):
    t0, t1, t2 = 2, 3, 4
    ACC, LO, HI = 8, 6, 7
    srd(a, SRD_B, P_B1, SIZES['B1'])
    a(f"s_lshl_b32 s{T1}, s{S_RB}, 8")
    a(f"v_lshlrev_b32 v{t2}, 1, v0")
    a(f"v_add_u32 v{t2}, s{T1}, v{t2}")
    a(f"buffer_load_ushort v{t2}, v{t2}, s[{SRD_B}:{SRD_B+3}], 0 offen", tag='b1')
    a(f"v_mov_b32 v{LO}, 0x00003f80")
    a(f"v_mov_b32 v{HI}, 0x3f800000")
    for e in range(8): a(f"v_mov_b32 v{ACC+e}, 0")
    for p in range(20):
        a.wait_vm(('cs', p))
        for d in range(4):
            a(f"v_dot2c_f32_bf16 v{ACC+2*d}, v{CD+4*p+d}, v{LO}")
            a(f"v_dot2c_f32_bf16 v{ACC+2*d+1}, v{CD+4*p+d}, v{HI}")
    a(f"v_lshrrev_b32 v{t0}, 4, v0")
    a(f"v_lshlrev_b32 v{t0}, 9, v{t0}")
    a(f"v_and_b32 v{t1}, 15, v0")
    a(f"v_lshl_add_u32 v{t0}, v{t1}, 5, v{t0}")
    a(f"ds_write_b128 v{t0}, {vr(ACC,4)}")
    a(f"ds_write_b128 v{t0}, {vr(ACC+4,4)} offset:16")
    a("s_waitcnt lgkmcnt(0)")
    a("s_barrier")
    a(f"v_and_b32 v{t0}, 127, v0")
    a(f"v_lshlrev_b32 v{t0}, 2, v{t0}")
    for g in range(32):
        a(f"ds_read_b32 v{CD+g}, v{t0} offset:{g*512}")
    a("s_waitcnt lgkmcnt(0)")
    for g in range(0, 32, 2): a(f"v_add_f32 v{CD+g}, v{CD+g}, v{CD+g+1}")
    for g in range(2, 32, 2): a(f"v_add_f32 v{CD}, v{CD}, v{CD+g}")
    a.wait_vm('b1')
    a(f"v_lshlrev_b32 v{t2}, 16, v{t2}")
    a(f"s_lshl_b32 s{T1}, s{S_RB}, 9")
    a(f"v_add_u32 v{t0}, s{T1}, v{t0}")
    a(f"v_mov_b32 v{t1}, 0x7ffffff0")
    a(f"v_mov_b32 v{LO}, 128")
    a(f"v_cmp_gt_u32 s[{T4}:{T4+1}], v{LO}, v0")
    a(f"v_cndmask_b32 v{t0}, v{t1}, v{t0}, s[{T4}:{T4+1}]")
    a(f"s_mov_b32 s{T0}, 0x7fff0000")
    a(f"s_cmp_lt_u32 s{S_RB}, 14")
    a(f"s_cselect_b32 s{T2}, {WS_CS}, s{T0}")
    a(f"s_cselect_b32 s{T3}, {WS_B1}, s{T0}")
    a(f"buffer_store_dword v{CD}, v{t0}, s[{SRD_WS}:{SRD_WS+3}], s{T2} offen sc1", tag='pst')
    a(f"buffer_store_dword v{t2}, v{t0}, s[{SRD_WS}:{SRD_WS+3}], s{T3} offen sc1", tag='pst')

S_FRB, S_FCJ = 73, 74
S_WM, S_WG = 75, 76

def final_coords(a):
    a(f"s_lshr_b32 s{T0}, s{S_X}, 1")
    a(f"s_lshl_b32 s{T0}, s{T0}, 3")
    a(f"s_and_b32 s{T1}, s{S_I}, 7")
    a(f"s_add_u32 s{S_FRB}, s{T0}, s{T1}")
    a(f"s_and_b32 s{T0}, s{S_X}, 1")
    a(f"s_lshl_b32 s{T0}, s{T0}, 2")
    a(f"s_lshr_b32 s{T1}, s{S_I}, 3")
    a(f"s_add_u32 s{S_FCJ}, s{T0}, s{T1}")
    a(f"s_mul_i32 s{S_WM}, s{S_W}, 5120")
    a(f"s_mul_i32 s{T0}, s{S_FCJ}, {WF_TILE}")
    a(f"s_add_u32 s{T0}, s{T0}, s{S_WM}")
    a(f"s_add_u32 s{S_WG}, s{T0}, {WS_WF}")

def dma_wf(a, g, vw):
    S_KW = 77
    a(f"s_add_u32 m0, s{S_WM}, {RING[g % 4]}")
    a(f"s_add_u32 s{S_KW}, s{S_WG}, {0 if OPT.get('hotfw') else g*WSLOT}")
    if g == 9:
        a(f"s_cmp_ge_u32 s{S_W}, 2")
        a(f"s_cselect_b32 s{S_KW}, 0x7fff0000, s{S_KW}")
    for n in range(4):
        a(f"buffer_load_dwordx4 v{vw}, s[{SRD_WS}:{SRD_WS+3}], s{S_KW} offen offset:{n*1024} sc1 lds", tag=('W', g))
    a(f"s_add_u32 m0, m0, 4096")
    a(f"s_add_u32 s{S_KW}, s{S_KW}, 4096")
    a(f"buffer_load_dwordx4 v{vw}, s[{SRD_WS}:{SRD_WS+3}], s{S_KW} offen sc1 lds", tag=('W', g))

SL2 = 32768
def attn_coords(a):
    a(f"s_lshl_b32 s{T0}, s{S_X}, 1")
    a(f"s_and_b32 s{T1}, s{S_I}, 1")
    a(f"s_add_u32 s{S_AHP}, s{T0}, s{T1}")
    a(f"s_lshr_b32 s{S_ARB}, s{S_I}, 1")
    a(f"s_lshr_b32 s78, s{S_W}, 2")
    a(f"s_and_b32 s79, s{S_W}, 3")

def fq_poll_offsets(a, vo, vt):
    a(f"v_lshrrev_b32 v{vo}, 4, v1")
    a(f"s_sub_u32 s{T0}, s{S_ARB}, 2")
    a(f"v_add_u32 v{vo}, s{T0}, v{vo}")
    a(f"v_and_b32 v{vt}, 15, v1")
    a(f"v_cmp_le_i32 s[{T4}:{T4+1}], 0, v{vo}")
    a(f"v_cmp_gt_u32 s[{T2}:{T2+1}], 15, v{vt}")
    a(f"s_and_b64 s[{T4}:{T4+1}], s[{T4}:{T4+1}], s[{T2}:{T2+1}]")
    a(f"s_mov_b32 s{T2}, -1")
    a(f"s_mov_b32 s{T2+1}, 0xffff")
    a(f"s_and_b64 s[{T4}:{T4+1}], s[{T4}:{T4+1}], s[{T2}:{T2+1}]")
    a(f"v_lshlrev_b32 v{vo}, 7, v{vo}")
    a(f"v_lshl_add_u32 v{vo}, v{vt}, 2, v{vo}")
    a(f"s_lshl_b32 s{T0}, s{S_ARB}, 7")
    a(f"v_mov_b32 v{vt}, s{T0}")
    a(f"v_cndmask_b32 v{vo}, v{vt}, v{vo}, s[{T4}:{T4+1}]")
    a(f"v_add_u32 v{vo}, {WS_FLAG + FQ}, v{vo}")

def attn_q_loads(a, t0, t1, t2, t3, AQ0=20, AQ1=24):
    a(f"s_lshl_b32 s{T0}, s{S_ARB}, 2")
    a(f"s_add_u32 s{S_QB}, s{T0}, s79")
    a(f"v_and_b32 v{t0}, 31, v1")
    a(f"v_lshrrev_b32 v{t1}, 5, v1")
    a(f"s_lshl_b32 s{T1}, s{S_QB}, 8")
    a(f"v_lshlrev_b32 v{t2}, 3, v{t0}")
    a(f"v_add_u32 v{t2}, s{T1}, v{t2}")
    a(f"v_lshl_add_u32 v{t3}, v{t1}, 15, v{t2}")
    a(f"s_lshl_b32 s{T2}, s{S_AHP}, 1")
    a(f"s_add_u32 s{T2}, s{T2}, s78")
    a(f"s_mul_i32 s{T2}, s{T2}, {5*16384}")
    a(f"s_add_u32 s{T1}, s{T2}, {WS_QKV}")
    a(f"buffer_load_dwordx2 {vr(AQ0,2)}, v{t3}, s[{SRD_WS}:{SRD_WS+3}], s{T1} offen sc1", tag='q')
    a(f"s_add_u32 s{T1}, s{T1}, 16384")
    a(f"buffer_load_dwordx2 {vr(AQ0+2,2)}, v{t3}, s[{SRD_WS}:{SRD_WS+3}], s{T1} offen sc1", tag='q')
    a(f"s_add_u32 s{T1}, s{T1}, {3*16384}")
    a(f"buffer_load_dwordx2 {vr(AQ1,2)}, v{t2}, s[{SRD_WS}:{SRD_WS+3}], s{T1} offen sc1", tag='q')

def fw_poll_offsets(a, vo):
    a(f"v_and_b32 v{vo}, 31, v1")
    a(f"v_lshlrev_b32 v{vo}, 2, v{vo}")
    a(f"s_lshl_b32 s{T1}, s{S_FCJ}, 7")
    a(f"s_add_u32 s{T1}, s{T1}, {WS_FLAG + FW}")
    a(f"v_add_u32 v{vo}, s{T1}, v{vo}")

def wf_first_slots(a, vw):
    a(f"v_lshlrev_b32 v{vw}, 4, v1")
    a(f"s_mul_i32 s{T0}, s{S_W}, 10240")
    a(f"s_mul_i32 s{T1}, s{S_FCJ}, {WF_TILE}")
    a(f"s_add_u32 s{T1}, s{T1}, s{T0}")
    a(f"s_add_u32 s{T1}, s{T1}, {WS_WF}")
    for g in range(2):
        for part in range(3):
            a(f"s_add_u32 m0, s{T0}, {RING[g] + part*4096}")
            a(f"s_add_u32 s{T2}, s{T1}, {g*WSLOT + part*4096}")
            for n in range(4 if part < 2 else 2):
                a(f"buffer_load_dwordx4 v{vw}, s[{SRD_WS}:{SRD_WS+3}], s{T2} offen offset:{n*1024} sc1 lds", tag=('W', g))

QL = 81920
def attn_stage_q(a, vd):
    a(f"v_lshlrev_b32 v{vd}, 4, v1")
    a(f"s_mul_i32 s{T2}, s{S_AHP}, {10*16384}")
    a(f"s_lshl_b32 s{T0}, s{S_ARB}, 10")
    a(f"s_add_u32 s{T2}, s{T2}, s{T0}")
    a(f"s_add_u32 s{T2}, s{T2}, {WS_QKV}")
    for k in range(3):
        a(f"s_add_u32 s{T0}, s{S_W}, {4*k}")
        a(f"s_lshl_b32 s{T1}, s{T0}, 14")
        a(f"s_add_u32 s{T1}, s{T1}, s{T2}")
        a(f"s_lshl_b32 s{T3}, s{T0}, 10")
        a(f"s_add_u32 s{T3}, s{T3}, {QL}")
        if k == 2:
            a(f"s_cmp_lt_u32 s{T0}, 10")
            a(f"s_cselect_b32 s{T1}, s{T1}, 0x7fff0000")
        a(f"s_mov_b32 m0, s{T3}")
        a(f"buffer_load_dwordx4 v{vd}, s[{SRD_WS}:{SRD_WS+3}], s{T1} offen sc1 lds", tag='q')

def touch_wf(a, v0_, v1_):
    a(f"s_and_b32 s{T0}, s{S_I}, 7")
    a(f"s_mul_i32 s{T0}, s{T0}, {370*128}")
    a(f"s_mul_i32 s{T1}, s{S_FCJ}, {WF_TILE}")
    a(f"s_add_u32 s{T0}, s{T0}, s{T1}")
    a(f"s_add_u32 s{T0}, s{T0}, {WS_WF}")
    a(f"v_lshlrev_b32 v{v0_}, 7, v0")
    a(f"v_mov_b32 v{v1_}, 370")
    a(f"v_cmp_gt_u32 s[{T4}:{T4+1}], v{v1_}, v0")
    a(f"v_mov_b32 v{v1_}, 0x7ffffff0")
    a(f"v_cndmask_b32 v{v0_}, v{v1_}, v{v0_}, s[{T4}:{T4+1}]")
    a(f"buffer_load_dword v251, v{v0_}, s[{SRD_WS}:{SRD_WS+3}], s{T0} offen sc1", tag='touch')

def touch_h(a, v0_, v1_):
    a(f"s_lshl_b32 s{T0}, s{S_FRB}, 1")
    a(f"s_mul_i32 s{T0}, s{T0}, {108*1024}")
    a(f"s_lshr_b32 s{T1}, s{S_I}, 3")
    a(f"s_mul_i32 s{T1}, s{T1}, {432*128}")
    a(f"s_add_u32 s{T0}, s{T0}, s{T1}")
    a(f"s_add_u32 s{T0}, s{T0}, {WS_H}")
    a(f"v_lshlrev_b32 v{v0_}, 7, v0")
    a(f"v_mov_b32 v{v1_}, 432")
    a(f"v_cmp_gt_u32 s[{T4}:{T4+1}], v{v1_}, v0")
    a(f"v_mov_b32 v{v1_}, 0x7ffffff0")
    a(f"v_cndmask_b32 v{v0_}, v{v1_}, v{v0_}, s[{T4}:{T4+1}]")
    a(f"buffer_load_dword v251, v{v0_}, s[{SRD_WS}:{SRD_WS+3}], s{T0} offen sc1", tag='touch')

def attn_stage_kv(a, t0, t1, t2, vd, parts=(0, 1)):
    a(f"s_sub_u32 s{T0}, s{S_ARB}, 2")
    a(f"s_lshl_b32 s{T0}, s{T0}, 7")
    a(f"s_mul_i32 s{T1}, s{S_W}, 96")
    a(f"s_add_u32 s{T0}, s{T0}, s{T1}")
    a(f"v_lshlrev_b32 v{t0}, 1, v1")
    a(f"v_add_u32 v{t0}, s{T0}, v{t0}")
    a(f"v_lshlrev_b32 v{t1}, 3, v{t0}")
    a(f"v_mov_b32 v{t2}, 0x7ffffff0")
    a(f"v_cmp_le_i32 s[{T4}:{T4+1}], 0, v{t0}")
    a(f"v_cndmask_b32 v{vd}, v{t2}, v{t1}, s[{T4}:{T4+1}]")
    a(f"s_mul_i32 s{T2}, s{S_AHP}, {10*16384}")
    a(f"s_add_u32 s{T2}, s{T2}, {WS_QKV + 160*16384}")
    a(f"s_mul_i32 s{T3}, s{S_W}, 768")
    a("s_mov_b32 exec_hi, 0xffff")
    for ty in parts:
        for p in range(10):
            a(f"s_add_u32 m0, s{T3}, {(LK if ty == 0 else LV) + p*PST}")
            a(f"s_add_u32 s{T6}, s{T2}, {(ty*160 + p)*16384}")
            a(f"buffer_load_dwordx4 v{vd}, s[{SRD_WS}:{SRD_WS+3}], s{T6} offen sc1 lds", tag=('kv', ty))
    a("s_mov_b32 exec_hi, -1")

def stage1g(a, lbl):
    SRD_E, S_M = 64, 68
    VXD, VWD, VW2 = 2, 6, 10
    VXF, VWF = 14, 22
    t0, t1, t2, t3 = 26, 27, 28, 29
    VP, VPV = 30, 31
    FB = [32, 48]
    ACC = 64
    CSR, B1R, ST, TD = 128, 160, 192, 196
    S_FQ, S_FH, S_ACT, S_HB = 69, 70, 71, 72
    a(f"s_and_b32 s{S_LW}, s{S_W}, 3")
    a(f"s_cmp_ge_u32 s{S_CJ}, 15")
    a(f"s_cbranch_scc1 {lbl}_idle")
    a(f"s_lshl_b32 s{T0}, s{S_RB}, 7")
    a(f"s_lshr_b32 s{T1}, s{S_LW}, 1")
    a(f"s_lshl_b32 s{T1}, s{T1}, 6")
    a(f"s_add_u32 s{T0}, s{T0}, s{T1}")
    a(f"s_and_b32 s{T1}, s{S_LW}, 1")
    a(f"s_add_u32 s{T0}, s{T0}, s{T1}")
    a(f"v_lshrrev_b32 v{t0}, 3, v1")
    a(f"v_lshlrev_b32 v{t0}, 1, v{t0}")
    a(f"v_add_u32 v{t0}, s{T0}, v{t0}")
    a(f"s_movk_i32 s{T2}, 1280")
    a(f"v_mul_lo_u32 v{t0}, v{t0}, s{T2}")
    a(f"v_lshrrev_b32 v{t1}, 4, v1")
    a(f"v_and_b32 v{t2}, 7, v1")
    a(f"v_xor_b32 v{t2}, v{t2}, v{t1}")
    a(f"v_xor_b32 v{t3}, 4, v{t2}")
    for i in range(4):
        a(f"v_lshl_add_u32 v{VXD+i}, v{t2 if i % 2 == 0 else t3}, 4, v{t0}")
        if i: a(f"v_add_u32 v{VXD+i}, {i*(16*1280-1024)}, v{VXD+i}")
    a(f"s_lshl_b32 s{T0}, s{S_LW}, 4")
    a(f"v_lshrrev_b32 v{t0}, 4, v1")
    a(f"v_add_u32 v{t1}, s{T0}, v{t0}")
    a(f"v_bfe_u32 v{t2}, v1, 2, 2")
    a(f"v_xor_b32 v{t2}, v{t2}, v{t0}")
    a(f"v_and_b32 v{t3}, 3, v1")
    a(f"v_lshl_add_u32 v{t2}, v{t2}, 2, v{t3}")
    a(f"v_lshlrev_b32 v{t2}, 4, v{t2}")
    a(f"s_lshl_b32 s{T0}, s{S_CJ}, 8")
    a(f"v_add_u32 v{t2}, s{T0}, v{t2}")
    def w_offsets(vd, pitch):
        a(f"s_movk_i32 s{T2}, {pitch}")
        a(f"v_mul_lo_u32 v{t3}, v{t1}, s{T2}")
        a(f"v_add_u32 v{vd}, v{t3}, v{t2}")
        for i in range(1, 4): a(f"v_add_u32 v{vd+i}, {i*(4*pitch-1024)}, v{vd}")
    w_offsets(VWD, 3840)
    w_offsets(VW2, 3456)
    a(f"s_lshl_b32 s{S_M}, s{S_LW}, 12")
    if OPT.get('rot', 1):
        a(f"s_lshr_b32 s{T0}, s{S_I}, 3")
        a(f"s_mul_i32 s{T0}, s{T0}, 10")
        a(f"s_and_b32 s{T1}, s{S_I}, 7")
        a(f"s_mul_i32 s{T1}, s{T1}, 5")
        a(f"s_add_u32 s{T0}, s{T0}, s{T1}")
        a(f"s_lshr_b32 s{T0}, s{T0}, 2")
        a(f"s_sub_u32 s{T1}, s{T0}, 10")
        a(f"s_cmp_ge_u32 s{T0}, 10")
        a(f"s_cselect_b32 s{T0}, s{T1}, s{T0}")
    else:
        a(f"s_mov_b32 s{T0}, 0")
    def addmod(dst, src, k):
        a(f"s_add_u32 s{dst}, s{src}, {k}")
        a(f"s_sub_u32 s{T2}, s{dst}, 10")
        a(f"s_cmp_ge_u32 s{dst}, 10")
        a(f"s_cselect_b32 s{dst}, s{T2}, s{dst}")
    REUSE = OPT.get('xreuse', 1)
    if REUSE:
        addmod(T1, T0, 9)
        addmod(T3, T0, 6)
        a(f"s_cmp_ge_u32 s{S_W}, 4")
        a(f"s_cselect_b32 s{T1}, s{T3}, s{T1}")
        a(f"s_mul_i32 s{S_K1}, s{T1}, {64*3456}")
        a(f"s_lshl_b32 s{S_KX}, s{T0}, 7")
        a(f"s_mul_i32 s{S_KQ}, s{T0}, {64*3840}")
    else:
        addmod(T1, T0, 3)
        a(f"s_cmp_ge_u32 s{S_W}, 4")
        a(f"s_cselect_b32 s{T0}, s{T0}, s{T1}")
        a(f"s_lshl_b32 s{S_KX}, s{T0}, 7")
        a(f"s_mul_i32 s{S_KQ}, s{T0}, {64*3840}")
        a(f"s_mul_i32 s{S_K1}, s{T0}, {64*3456}")
    def adv(sreg, step, wrap):
        if OPT.get('hot'): return
        a(f"s_add_u32 s{sreg}, s{sreg}, {step}")
        a(f"s_cmp_eq_u32 s{sreg}, {wrap}")
        a(f"s_cselect_b32 s{sreg}, 0, s{sreg}")
    first = {'x': True, 'q': True, '1': True}
    slot = lambda tau: (tau + 3) % 4
    def dma_list(tau):
        out = []
        if OPT.get('g_nodma') and tau >= 4: return out
        if OPT.get('nodma1') and tau >= 13: return out
        def mk(kind, i):
            def f():
                if kind == 'x': vd, sr, sk, off, step, wrap = VXD, SRD_A, S_KX, 0, 128, 1280
                elif kind == 'q': vd, sr, sk, off, step, wrap = VWD, SRD_B, S_KQ, 16384, 64*3840, 640*3840
                else: vd, sr, sk, off, step, wrap = VW2, SRD_E, S_K1, 16384, 64*3456, 640*3456
                if i == 0:
                    a(f"s_add_u32 m0, s{S_M}, {slot(tau)*SL2 + off}")
                    if not first[kind] and not (OPT.get('hot1') and tau >= 10) and not (OPT.get('hotx') and kind == 'x' and tau >= 10) and not (OPT.get('hotw') and kind == '1'): adv(sk, step, wrap)
                    first[kind] = False
                a(f"buffer_load_dwordx4 v{vd+i}, s[{sr}:{sr+3}], s{sk} offen offset:{i*1024} lds", tag=('B', tau))
            return f
        if not (REUSE and 10 <= tau <= 13):
            for i in range(4): out.append(mk('x', i))
        for i in range(4): out.append(mk('q' if tau < 10 else '1', i))
        return out
    def dma_block(tau):
        for f in dma_list(tau): f()
    def frag_bases():
        a(f"s_and_b32 s{T0}, s{S_LW}, 1")
        a(f"s_lshl_b32 s{T0}, s{T0}, 13")
        a(f"v_and_b32 v{t0}, 31, v1")
        a(f"v_lshrrev_b32 v{t1}, 5, v1")
        a(f"v_bfe_u32 v{t2}, v1, 1, 3")
        a(f"v_lshlrev_b32 v{t0}, 7, v{t0}")
        a(f"v_add_u32 v{t0}, s{T0}, v{t0}")
        for s_ in range(4):
            a(f"v_or_b32 v{t3}, {2*s_}, v{t1}")
            a(f"v_xor_b32 v{t3}, v{t3}, v{t2}")
            a(f"v_lshl_add_u32 v{VXF+s_}, v{t3}, 4, v{t0}")
            a(f"v_add_u32 v{VXF+4+s_}, {2*SL2}, v{VXF+s_}")
        a(f"v_bfe_u32 v{t0}, v1, 2, 2")
        a(f"v_lshl_add_u32 v{t1}, v{t1}, 3, v{t0}")
        a(f"v_lshlrev_b32 v{t1}, 8, v{t1}")
        a(f"v_bfe_u32 v{t2}, v1, 4, 1")
        a(f"v_lshl_add_u32 v{t1}, v{t2}, 5, v{t1}")
        a(f"v_and_b32 v{t2}, 3, v1")
        a(f"v_lshl_add_u32 v{t1}, v{t2}, 3, v{t1}")
        a(f"s_and_b32 s{T0}, s{S_LW}, 2")
        for ft in range(2):
            a(f"s_or_b32 s{T1}, s{T0}, {ft}")
            a(f"v_xor_b32 v{t2}, s{T1}, v{t0}")
            a(f"v_lshl_add_u32 v{VWF+ft}, v{t2}, 6, v{t1}")
            a(f"v_add_u32 v{VWF+2+ft}, {2*SL2}, v{VWF+ft}")
    def rd_b(st, tau, u, tt):
        sl = slot(tau)
        a(f"ds_read_b128 {vr(FB[st]+4*tt,4)}, v{VXF + u + (4 if sl >= 2 else 0)} offset:{(SL2 if sl & 1 else 0) + tt*4096}", tag=('f', tau, u, 'b', tt))
    def rd_a(st, tau, u, F, rd):
        sl = slot(tau)
        a(f"ds_read_b64_tr_b16 {vr(FB[st]+8+4*F+2*rd,2)}, v{VWF + F + (2 if sl >= 2 else 0)} offset:{(SL2 if sl & 1 else 0) + 16384 + u*4096 + rd*1024}", tag=('f', tau, u, 'a', F))
    def reads(st, tau, u):
        return [lambda: rd_b(st, tau, u, 0), lambda: rd_a(st, tau, u, 0, 0), lambda: rd_a(st, tau, u, 0, 1),
                lambda: rd_b(st, tau, u, 1), lambda: rd_a(st, tau, u, 1, 0), lambda: rd_a(st, tau, u, 1, 1)]
    def compute(t0_, hook_bar, hook_step):
        for b in range(10):
            tau = t0_ + b
            for u in range(4):
                s_ = 4*b + u; st = s_ & 1
                last = (b == 9 and u == 3)
                side = []
                if u == 3:
                    a("s_waitcnt lgkmcnt(0)")
                    hook_bar(tau)
                    a("s_barrier")
                    side = hook_step(tau, 'bar') or []
                rs = [] if (last or OPT.get('x_noreads')) else reads(st ^ 1, *((tau, u + 1) if u < 3 else (tau + 1, 0)))
                plan = {-1: rs[0:2], 0: rs[2:5], 1: rs[5:6]}
                for r in plan[-1]: r()
                for k, (tt, F) in enumerate([(0, 0), (1, 0), (0, 1), (1, 1)]):
                    a.wait_lg([('f', tau, u, 'b', tt), ('f', tau, u, 'a', F)])
                    d = vr(ACC+16*(2*tt+F), 16)
                    if not OPT.get('x_nomfma'):
                        a(f"v_mfma_f32_32x32x16_bf16 {d}, {vr(FB[st]+8+4*F,4)}, {vr(FB[st]+4*tt,4)}, {'0' if s_ == 0 else d}")
                    for r in plan.get(k, []): r()
                    for _ in range(2):
                        if side: side.pop(0)()
                for f in side: f()
                hook_step(tau, u)
    a("s_waitcnt lgkmcnt(0)")
    srd(a, SRD_A, P_AX, SIZES['AX'])
    srd(a, SRD_B, P_WQKV, SIZES['WQKV'])
    NI = OPT.get('init', 2)
    a(f"s_cmp_lt_u32 s{S_W}, 4")
    a(f"s_cbranch_scc1 {lbl}_nodma")
    for tau in range(NI): dma_block(tau)
    g1_vm = list(a.vm)
    a.label(f"{lbl}_nodma")
    a.vm = []
    srd(a, SRD_E, P_W1, SIZES['W1'])
    prologue_rest(a)
    attn_coords(a)
    final_coords(a)
    a(f"s_lshl_b32 s{T0}, s{S_RB}, 7")
    a(f"s_lshl_b32 s{T1}, s{S_CJ}, 2")
    a(f"s_add_u32 s{T0}, s{T0}, s{T1}")
    a(f"s_add_u32 s{S_FQ}, s{T0}, {WS_FLAG + FQ}")
    a(f"s_add_u32 s{S_FH}, s{T0}, {WS_FLAG + FH}")
    a(f"s_cmp_lt_u32 s{S_CJ}, 14")
    a(f"s_cselect_b32 s{S_FHO}, s{S_FH}, 0x7fff0000")
    a(f"s_cmp_lt_u32 s{S_W}, 4")
    a(f"s_cbranch_scc1 {lbl}_g0")
    a.vm = list(g1_vm)
    if OPT.get('lprio', 1): a(f"s_setprio {OPT.get('lprio', 1)}")
    mark4(a, first=True)
    pre_address(a, lbl + "_pa", rows=False)
    frag_bases()
    a.wait_vm(('B', 0))
    mark4(a)
    a("s_barrier")
    for tau in range(NI, 4): dma_block(tau)
    for tau in range(0, 9):
        a.wait_vm(('B', tau + 1))
        if tau == 8: a.wait_vm('pst')
        a("s_barrier")
        dma_block(tau + 4)
        if tau == 0: pre_issue(a, rows=False)
        if tau == 1 and OPT.get('pfw1', 0):
            a(f"s_and_b32 s{T0}, s{S_I}, 7")
            a(f"s_mul_i32 s{T0}, s{T0}, 80")
            a(f"s_mul_i32 s{T1}, s{S_LW}, 20")
            a(f"s_add_u32 s{T0}, s{T0}, s{T1}")
            a(f"v_lshrrev_b32 v{t0}, 1, v1")
            a(f"v_add_u32 v{t0}, s{T0}, v{t0}")
            a(f"s_movk_i32 s{T1}, 3456")
            a(f"v_mul_lo_u32 v{t0}, v{t0}, s{T1}")
            a(f"v_and_b32 v{t1}, 1, v1")
            a(f"v_lshl_add_u32 v{t0}, v{t1}, 7, v{t0}")
            a(f"s_lshl_b32 s{T0}, s{S_CJ}, 8")
            a(f"v_add_u32 v{t0}, s{T0}, v{t0}")
            a(f"v_mov_b32 v{t1}, 0x7ffffff0")
            a(f"v_cmp_gt_u32 s[{T4}:{T4+1}], 40, v1")
            a(f"v_cndmask_b32 v{t0}, v{t1}, v{t0}, s[{T4}:{T4+1}]")
            a(f"buffer_load_dword v251, v{t0}, s[{SRD_E}:{SRD_E+3}], 0 offen", tag='touch')
        if tau == OPT.get('trp', 5):
            a.wait_vm('pl')
            repack_finish(a)
        if tau == 7: nonce_issue(a, 252)
    nonce_check(a, 252)
    a.wait_vm(('B', 10))
    a("s_barrier")
    if OPT.get('lprio', 1): a(f"s_setprio {OPT.get('cprio', 3)}")
    mark4(a)
    for r in reads(0, 10, 0): r()
    def g1_bar(tau):
        if tau in (10, 11): a.wait_vm(('B', tau + 1))
    def g1_step(tau, u):
        return None
    compute(10, g1_bar, g1_step)
    mark4(a)
    C0, C1, VY, ONE = 2, 3, 4, 6
    TU, TE = 32, 40
    a(f"v_mov_b32 v{ONE}, 1.0")
    a(f"v_mov_b32 v{C0}, 0xc0135761")
    a(f"v_mov_b32 v{C1}, 0xbdd2d3e8")
    a(f"v_lshlrev_b32 v{VY}, 4, v1")
    a(f"s_lshl_b32 s{T0}, s{S_CJ}, 3")
    a(f"s_lshr_b32 s{T1}, s{S_LW}, 1")
    a(f"s_lshl_b32 s{T1}, s{T1}, 2")
    a(f"s_add_u32 s{S_ACT}, s{T0}, s{T1}")
    a(f"s_lshl_b32 s{T0}, s{S_RB}, 2")
    a(f"s_and_b32 s{T1}, s{S_LW}, 1")
    a(f"s_lshl_b32 s{T1}, s{T1}, 1")
    a(f"s_add_u32 s{T0}, s{T0}, s{T1}")
    a(f"s_mul_i32 s{T0}, s{T0}, 108")
    a(f"s_add_u32 s{T0}, s{T0}, s{S_ACT}")
    a(f"s_lshl_b32 s{T0}, s{T0}, 10")
    a(f"s_add_u32 s{S_HB}, s{T0}, {WS_H}")
    a(f"s_cmp_lt_u32 s{S_ACT}, 108")
    a(f"s_cselect_b32 s{S_HB}, s{S_HB}, 0x7fff0000")
    a(f"v_and_b32 v{t0}, 31, v1")
    a(f"v_lshlrev_b32 v{t0}, 4, v{t0}")
    a(f"s_and_b32 s{T0}, s{S_LW}, 1")
    a(f"s_lshl_b32 s{T0}, s{T0}, 9")
    a(f"v_add_u32 v{t0}, s{T0}, v{t0}")
    a(f"ds_read_b128 {vr(ST,4)}, v{t0}")
    a(f"v_lshrrev_b32 v{t0}, 5, v1")
    a(f"v_lshlrev_b32 v{t0}, 4, v{t0}")
    a(f"s_lshr_b32 s{T0}, s{S_LW}, 1")
    a(f"s_lshl_b32 s{T0}, s{T0}, 8")
    a(f"v_add_u32 v{t0}, s{T0}, v{t0}")
    for ft in range(2):
        for j in range(4):
            a(f"ds_read_b128 {vr(CSR+16*ft+4*j,4)}, v{t0} offset:{1024 + 128*ft + 32*j}")
            a(f"ds_read_b128 {vr(B1R+16*ft+4*j,4)}, v{t0} offset:{1536 + 128*ft + 32*j}")
    a("s_waitcnt lgkmcnt(0)")
    mark4(a)
    P = lambda b, e: vr(b + 2*e, 2)
    for tt in range(2):
        nmp = vr(ST + 2*tt, 2)
        if tt == 1: a(f"s_add_u32 s{S_HB}, s{S_HB}, {108*1024}")
        for ft in range(2):
            for jj in range(2):
                x = ACC + 16*(2*tt+ft) + 8*jj
                for e in range(4):
                    j, i = 2*jj + (e >> 1), 2*(e & 1)
                    a(f"v_pk_fma_f32 {P(TU,e)}, {nmp}, {vr(CSR+16*ft+4*j+i,2)}, {vr(B1R+16*ft+4*j+i,2)} op_sel_hi:[0,1,1]")
                for e in range(4): a(f"v_pk_fma_f32 {P(x,e)}, {nmp}, {P(x,e)}, {P(TU,e)} op_sel:[1,0,0] op_sel_hi:[1,1,1]")
                for e in range(4): a(f"v_pk_mul_f32 {P(TU,e)}, {P(x,e)}, {P(x,e)}")
                for e in range(4): a(f"v_pk_fma_f32 {P(TU,e)}, {P(TU,e)}, {vr(C0,2)}, {vr(C0,2)} op_sel:[0,1,0] op_sel_hi:[1,1,0]")
                for e in range(4): a(f"v_pk_mul_f32 {P(TU,e)}, {P(TU,e)}, {P(x,e)}")
                for e in range(8): a(f"v_exp_f32 v{TE+e}, v{TU+e}")
                for e in range(4): a(f"v_pk_add_f32 {P(TE,e)}, {P(TE,e)}, {vr(ONE,2)} op_sel_hi:[1,0]")
                for e in range(8): a(f"v_rcp_f32 v{TE+e}, v{TE+e}")
                for e in range(4): a(f"v_pk_mul_f32 {P(TE,e)}, {P(TE,e)}, {P(x,e)}")
                d = TD + 4*(4*tt + 2*ft + jj)
                for e in range(4): a(f"v_cvt_pk_bf16_f32 v{d+e}, v{TE+2*e}, v{TE+2*e+1}")
                if not OPT.get('late_h', 0):
                    a(f"buffer_store_dwordx4 {vr(d,4)}, v{VY}, s[{SRD_WS}:{SRD_WS+3}], s{S_HB} offen offset:{(2*ft+jj)*1024} sc1", tag='hst')
    if OPT.get('late_h', 0):
        a(f"s_sub_u32 s{S_HB}, s{S_HB}, {108*1024}")
        for tt in range(2):
            if tt == 1: a(f"s_add_u32 s{S_HB}, s{S_HB}, {108*1024}")
            for ft in range(2):
                for jj in range(2):
                    d = TD + 4*(4*tt + 2*ft + jj)
                    a(f"buffer_store_dwordx4 {vr(d,4)}, v{VY}, s[{SRD_WS}:{SRD_WS+3}], s{S_HB} offen offset:{(2*ft+jj)*1024} sc1", tag='hst')
    mark4(a)
    a(f"s_branch {lbl}_join")
    a.label(f"{lbl}_g0")
    a.reset_counters()
    first.update({'x': True, 'q': True, '1': True})
    if OPT.get('pfs1', 0):
        a(f"s_lshl_b32 s{T0}, s{S_RB}, 7")
        a(f"s_lshr_b32 s{T1}, s{S_I}, 3")
        a(f"s_lshl_b32 s{T1}, s{T1}, 5")
        a(f"s_add_u32 s{T0}, s{T0}, s{T1}")
        a(f"s_lshl_b32 s{T1}, s{S_LW}, 3")
        a(f"s_add_u32 s{T0}, s{T0}, s{T1}")
        a(f"v_lshrrev_b32 v{t0}, 3, v1")
        a(f"v_add_u32 v{t0}, s{T0}, v{t0}")
        a(f"s_movk_i32 s{T1}, 1280")
        a(f"v_mul_lo_u32 v{t0}, v{t0}, s{T1}")
        a(f"v_and_b32 v{t1}, 7, v1")
        a(f"v_lshl_add_u32 v{t2}, v{t1}, 7, v{t0}")
        a(f"buffer_load_dword v251, v{t2}, s[{SRD_A}:{SRD_A+3}], 0 offen", tag='touch')
        a(f"v_and_b32 v{t1}, 1, v1")
        a(f"v_lshl_add_u32 v{t2}, v{t1}, 7, v{t0}")
        a(f"v_mov_b32 v{t3}, 0x7ffffff0")
        a(f"v_bfe_u32 v{t1}, v1, 1, 2")
        a(f"v_cmp_eq_u32 s[{T4}:{T4+1}], 0, v{t1}")
        a(f"v_cndmask_b32 v{t2}, v{t3}, v{t2}, s[{T4}:{T4+1}]")
        a(f"buffer_load_dword v251, v{t2}, s[{SRD_A}:{SRD_A+3}], 0 offen offset:1024", tag='touch')
        a(f"s_and_b32 s{T0}, s{S_I}, 7")
        a(f"s_mul_i32 s{T0}, s{T0}, 80")
        a(f"s_mul_i32 s{T1}, s{S_LW}, 20")
        a(f"s_add_u32 s{T0}, s{T0}, s{T1}")
        a(f"v_lshrrev_b32 v{t0}, 1, v1")
        a(f"v_add_u32 v{t0}, s{T0}, v{t0}")
        a(f"s_movk_i32 s{T1}, 3840")
        a(f"v_mul_lo_u32 v{t0}, v{t0}, s{T1}")
        a(f"v_and_b32 v{t1}, 1, v1")
        a(f"v_lshl_add_u32 v{t0}, v{t1}, 7, v{t0}")
        a(f"s_lshl_b32 s{T0}, s{S_CJ}, 8")
        a(f"v_add_u32 v{t0}, s{T0}, v{t0}")
        a(f"v_cmp_gt_u32 s[{T4}:{T4+1}], 40, v1")
        a(f"v_cndmask_b32 v{t0}, v{t3}, v{t0}, s[{T4}:{T4+1}]")
        a(f"buffer_load_dword v251, v{t0}, s[{SRD_B}:{SRD_B+3}], 0 offen", tag='touch')
    frag_bases()
    if OPT.get('cprio', 3): a(f"s_setprio {OPT.get('cprio', 3)}")
    mark(a)
    a("s_barrier")
    probe(a, 1)
    for r in reads(0, 0, 0): r()
    def g0_step(tau, u):
        if u == 'bar': probe(a, 10 + tau)
        if OPT.get('fine3') == 1 and u == 'bar' and tau in (0, 2, 4, 6, 8): mark(a)
        if u == 'bar' and tau == 9: return dma_list(13)
        if u == 1 and tau == 2: nonce_issue(a, 252)
        if u == 1 and tau == 4: nonce_check(a, 252)
        if u == 'bar' and tau == 8:
            pre_flags(a, t3, stats=False)
        return None
    compute(0, lambda tau: None, g0_step)
    probe(a, 2)
    mark(a)
    if OPT.get('lprio', 1): a(f"s_setprio {OPT.get('lprio', 1)}")
    def qkv_epilogue(a):
        a(f"v_lshrrev_b32 v{t0}, 5, v1")
        a(f"s_lshr_b32 s{T0}, s{S_LW}, 1")
        a(f"s_lshl_b32 s{T0}, s{T0}, 4")
        a(f"v_add_u32 v{t0}, s{T0}, v{t0}")
        a(f"v_lshlrev_b32 v{t0}, 14, v{t0}")
        a(f"s_and_b32 s{T0}, s{S_LW}, 1")
        a(f"s_lshl_b32 s{T0}, s{T0}, 9")
        a(f"v_and_b32 v{t1}, 31, v1")
        a(f"v_lshl_add_u32 v{t0}, v{t1}, 4, v{t0}")
        a(f"v_add_u32 v{t0}, s{T0}, v{t0}")
        a(f"s_lshl_b32 s{T0}, s{S_CJ}, 19")
        a(f"s_lshl_b32 s{T1}, s{S_RB}, 10")
        a(f"s_add_u32 s{T0}, s{T0}, s{T1}")
        a(f"s_add_u32 s{T0}, s{T0}, {WS_QKV}")
        a(f"s_cmp_lt_u32 s{S_CJ}, 5")
        a(f"s_cselect_b32 s{T2}, 0x3ea52b5c, 1.0")
        a(f"v_mov_b32 v30, s{T2}")
        for r in range(0, 64, 2):
            a(f"v_pk_mul_f32 {vr(ACC+r,2)}, {vr(ACC+r,2)}, v[30:31] op_sel_hi:[1,0]")
        k = 0
        for ft in range(2):
            for j in range(4):
                a(f"s_add_u32 s{T1}, s{T0}, {(8*ft + 2*j)*16384}")
                d = 32 + 4*(k % 8); k += 1
                for tt in range(2):
                    base = ACC + 16*(2*tt+ft) + 4*j
                    a(f"v_cvt_pk_bf16_f32 v{d+2*tt}, v{base}, v{base+1}")
                    a(f"v_cvt_pk_bf16_f32 v{d+2*tt+1}, v{base+2}, v{base+3}")
                a(f"buffer_store_dwordx4 {vr(d,4)}, v{t0}, s[{SRD_WS}:{SRD_WS+3}], s{T1} offen sc1", tag='qst')
        fq_poll_offsets(a, VP, t3)
    class Rec:
        def __init__(self): self.l = []
        def __call__(self, text, tag=None): self.l.append((text, tag))
    rec = Rec(); qkv_epilogue(rec)
    EPI = []
    for tx, tg in rec.l:
        if tx.startswith("s_cselect") and EPI: EPI[-1].append((tx, tg))
        else: EPI.append([(tx, tg)])
    def emit_groups(gs):
        for g_ in gs:
            for tx, tg in g_: a(tx, tag=tg)
    if not OPT.get('epi_mix', 0):
        emit_groups(EPI)
        EPI = []
    TQP = OPT.get('tqp', 13)
    for tau in range(10, 20):
        if 13 <= tau + 1 <= 19: a.wait_vm(('B', tau + 1))
        if tau == TQP: a.wait_vm('qst')
        if tau == 19: a.wait_vm('tab')
        a("s_barrier")
        probe(a, 10 + tau)
        if OPT.get('fine3') == 2 and tau in (10, 11, 12, 13, 14, 15, 16, 17, 18, 19): mark(a)
        if tau == TQP: flag_store(a, S_FQ, t3)
        if tau + 4 <= 19:
            dl = dma_list(tau + 4)
            if tau == 10 and EPI:
                per = -(-len(EPI) // len(dl))
                for f in dl:
                    f()
                    emit_groups(EPI[:per])
                    EPI = EPI[per:]
                emit_groups(EPI)
                EPI = []
            else:
                for f in dl: f()
        if tau == 15:
            a(f"s_lshl_b32 s{T0}, s{S_RB}, 7")
            a(f"s_add_u32 s{T0}, s{T0}, {WS_FLAG + FS}")
            a(f"v_mov_b32 v{t0}, s{T0}")
            a(f"s_min_u32 s{T1}, s{S_CJ}, 13")
            a(f"s_lshl_b32 s{T1}, s{T1}, 2")
            a(f"s_add_u32 s{T1}, s{T1}, {WS_FLAG + FC}")
            a(f"v_mov_b32 v{t1}, s{T1}")
            a(f"v_cmp_gt_u32 s[{T4}:{T4+1}], 32, v1")
            a(f"v_cndmask_b32 v234, v{t1}, v{t0}, s[{T4}:{T4+1}]")
            poll_issue(a, 234, 235, 'p1')
        if tau == 17:
            L = uid("nf")
            a(f"s_cmp_ge_u32 s{S_CJ}, 14")
            a(f"s_cbranch_scc1 {L}")
            vm0 = list(a.vm)
            poll_check(a, 234, 235, 'p1')
            a.label(L)
            a.vm = vm0
            a(f"s_lshl_b32 s{T0}, s{S_RB}, 10")
            a(f"s_add_u32 s{T0}, s{T0}, {WS_ST}")
            a(f"s_lshl_b32 s{T1}, s{S_CJ}, 9")
            a(f"s_add_u32 s{T2}, s{T1}, {WS_CS}")
            a(f"s_add_u32 s{T1}, s{T1}, {WS_B1}")
            a(f"s_cmp_eq_u32 s{S_W}, 1")
            a(f"s_cselect_b32 s{T0}, s{T2}, s{T0}")
            a(f"s_cselect_b32 s{T3}, 1024, 0")
            a(f"s_cmp_eq_u32 s{S_W}, 2")
            a(f"s_cselect_b32 s{T0}, s{T1}, s{T0}")
            a(f"s_cselect_b32 s{T3}, 1536, s{T3}")
            a(f"s_cmp_eq_u32 s{S_W}, 3")
            a(f"s_cselect_b32 s{T0}, 0x7fff0000, s{T0}")
            a(f"s_cselect_b32 s{T3}, 2048, s{T3}")
            a(f"v_lshlrev_b32 v{t0}, 4, v1")
            a(f"v_mov_b32 v{t1}, 0x7ffffff0")
            a(f"s_cmp_eq_u32 s{S_W}, 0")
            a(f"s_cselect_b32 s{T1}, 64, 32")
            a(f"v_cmp_gt_u32 s[{T4}:{T4+1}], s{T1}, v1")
            a(f"s_mov_b64 exec, s[{T4}:{T4+1}]")
            a(f"s_mov_b32 m0, s{T3}")
            a(f"buffer_load_dwordx4 v{t0}, s[{SRD_WS}:{SRD_WS+3}], s{T0} offen sc1 lds", tag='tab')
            a("s_mov_b64 exec, -1")
        if tau == 19: pass
        if tau == OPT.get('tpq', 18):
            poll_issue(a, VP, VPV, 'pq')
            fw_poll_offsets(a, VP+202)
            poll_issue(a, VP+202, VPV+202, 'pw')
    probe(a, 3)
    if OPT.get('fine4'): mark(a)
    poll_check(a, VP, VPV, 'pq')
    if OPT.get('fine4'): mark(a)
    attn_stage_q(a, 3)
    attn_stage_kv(a, t0, t1, t2, 2, (0,) if OPT.get('latev') else (0, 1))
    poll_check(a, VP+202, VPV+202, 'pw')
    if OPT.get('earlyw', 0): wf_first_slots(a, 3)
    mark(a)
    a.wait_vm(('kv', 0))
    if OPT.get('fine4'): mark(a)
    a(f"s_branch {lbl}_join")
    a.label(f"{lbl}_idle")
    a.reset_counters()
    a("s_waitcnt lgkmcnt(0)")
    prologue_rest(a)
    attn_coords(a)
    final_coords(a)
    srd(a, SRD_A, P_AX, SIZES['AX'])
    if OPT.get('pfq'):
        srd(a, SRD_C, P_WQKV, SIZES['WQKV'])
        a(f"s_mul_i32 s{T0}, s{S_RB}, 1200")
        a(f"s_mul_i32 s{T1}, s{S_W}, 150")
        a(f"s_add_u32 s{T0}, s{T0}, s{T1}")
        a(f"v_add_u32 v240, s{T0}, v1")
        a(f"v_lshlrev_b32 v240, 7, v240")
        for k in range(3):
            if k == 2:
                a(f"v_mov_b32 v241, 0x7ffffff0")
                a(f"v_cmp_gt_u32 s[{T4}:{T4+1}], 22, v1")
                a(f"v_cndmask_b32 v240, v241, v240, s[{T4}:{T4+1}]")
            a(f"buffer_load_dword v242, v240, s[{SRD_C}:{SRD_C+3}], 0 offen", tag='touch')
            if k < 2: a(f"v_add_u32 v240, 8192, v240")
    rowstats_issue(a)
    colsum_issue(a)
    nonce_issue(a, 252)
    rowstats_compute(a)
    colsum_compute(a, lbl + "_cs")
    nonce_check(a, 252)
    a("s_waitcnt vmcnt(0)")
    a("s_barrier")
    a(f"s_lshl_b32 s{T0}, s{S_RB}, 7")
    a(f"s_add_u32 s{T0}, s{T0}, {WS_FLAG + FS}")
    flag_store(a, T0, t3)
    a(f"s_lshl_b32 s{T0}, s{S_RB}, 2")
    a(f"s_add_u32 s{T0}, s{T0}, {WS_FLAG + FC}")
    flag_store(a, T0, t3)
    pre_address(a, lbl + "_pai", rows=False)
    pre_issue(a, rows=False)
    a.wait_vm('pl')
    repack_finish(a)
    a("s_waitcnt vmcnt(0)")
    a("s_barrier")
    pre_flags(a, t3, stats=False)
    a(f"s_mov_b32 s{S_FHO}, 0x7fff0000")
    fq_poll_offsets(a, VP, t3)
    a(f"s_mov_b64 s[{T4}:{T4+1}], -1")
    wait_flags(a, VP, VPV, T4)
    Li = uid("ik")
    a(f"s_cmp_ge_u32 s{S_W}, 4")
    a(f"s_cbranch_scc1 {Li}")
    attn_stage_q(a, 3)
    attn_stage_kv(a, t0, t1, t2, 2, (0,) if OPT.get('latev') else (0, 1))
    fw_poll_offsets(a, VP+202)
    poll_issue(a, VP+202, VPV+202, 'pw')
    poll_check(a, VP+202, VPV+202, 'pw')
    if OPT.get('earlyw', 0): wf_first_slots(a, 3)
    a.label(Li)
    a("s_waitcnt vmcnt(0)")
    a.label(f"{lbl}_join")
    if OPT.get('lprio', 1) or OPT.get('cprio', 3): a("s_setprio 0")
    a.reset_counters()

SLOT = 49152
def stage1f(a, lbl):
    SRD_E, S_M = 64, 68
    VXD, VQD, V1D = 2, 4, 6
    VXF, VWF = 8, 16
    t0, t1, t2, t3 = 20, 21, 22, 23
    VP, VPV = 24, 25
    FB = [32, 48]
    ACC = 64
    ST, CSR, B1R, TD = 192, 128, 160, 196
    S_FQ, S_FH, S_ACT, S_HB = 69, 70, 71, 72
    attn_coords(a)
    final_coords(a)
    a(f"s_and_b32 s{S_LW}, s{S_W}, 3")
    a(f"s_cmp_ge_u32 s{S_CJ}, 15")
    a(f"s_cbranch_scc1 {lbl}_idle")
    srd(a, SRD_A, P_AX, SIZES['AX'])
    srd(a, SRD_B, P_WQKV, SIZES['WQKV'])
    srd(a, SRD_E, P_W1, SIZES['W1'])
    a(f"s_lshl_b32 s{T0}, s{S_RB}, 7")
    a(f"s_lshr_b32 s{T1}, s{S_W}, 2")
    a(f"s_lshl_b32 s{T1}, s{T1}, 6")
    a(f"s_add_u32 s{T0}, s{T0}, s{T1}")
    a(f"s_and_b32 s{T1}, s{S_W}, 1")
    a(f"s_lshl_b32 s{T1}, s{T1}, 5")
    a(f"s_add_u32 s{T0}, s{T0}, s{T1}")
    a(f"s_bfe_u32 s{T1}, s{S_W}, 0x10001")
    a(f"s_add_u32 s{T0}, s{T0}, s{T1}")
    a(f"v_lshrrev_b32 v{t0}, 3, v1")
    a(f"v_lshlrev_b32 v{t0}, 1, v{t0}")
    a(f"v_add_u32 v{t0}, s{T0}, v{t0}")
    a(f"s_movk_i32 s{T2}, 1280")
    a(f"v_mul_lo_u32 v{t0}, v{t0}, s{T2}")
    a(f"v_lshrrev_b32 v{t1}, 4, v1")
    a(f"v_and_b32 v{t2}, 7, v1")
    a(f"v_xor_b32 v{t2}, v{t2}, v{t1}")
    a(f"v_xor_b32 v{t3}, 4, v{t2}")
    a(f"v_lshl_add_u32 v{VXD}, v{t2}, 4, v{t0}")
    a(f"v_lshl_add_u32 v{VXD+1}, v{t3}, 4, v{t0}")
    a(f"v_add_u32 v{VXD+1}, {16*1280-1024}, v{VXD+1}")
    a(f"s_lshl_b32 s{T0}, s{S_W}, 3")
    a(f"v_lshrrev_b32 v{t0}, 4, v1")
    a(f"v_add_u32 v{t1}, s{T0}, v{t0}")
    a(f"v_bfe_u32 v{t2}, v1, 2, 2")
    a(f"v_xor_b32 v{t2}, v{t2}, v{t0}")
    a(f"v_and_b32 v{t3}, 3, v1")
    a(f"v_lshl_add_u32 v{t2}, v{t2}, 2, v{t3}")
    a(f"v_lshlrev_b32 v{t2}, 4, v{t2}")
    a(f"s_lshl_b32 s{T0}, s{S_CJ}, 8")
    a(f"v_add_u32 v{t2}, s{T0}, v{t2}")
    for vd, pitch in ((VQD, 3840), (V1D, 3456)):
        a(f"s_movk_i32 s{T2}, {pitch}")
        a(f"v_mul_lo_u32 v{t3}, v{t1}, s{T2}")
        a(f"v_add_u32 v{vd}, v{t3}, v{t2}")
        a(f"v_add_u32 v{vd+1}, {4*pitch-1024}, v{vd}")
    a(f"s_lshl_b32 s{S_M}, s{S_W}, 11")
    if OPT.get('rot', 1):
        a(f"s_lshr_b32 s{T0}, s{S_I}, 3")
        a(f"s_mul_i32 s{T0}, s{T0}, 10")
        a(f"s_and_b32 s{T1}, s{S_I}, 7")
        a(f"s_mul_i32 s{T1}, s{T1}, 5")
        a(f"s_add_u32 s{T0}, s{T0}, s{T1}")
        a(f"s_lshr_b32 s{T0}, s{T0}, 2")
        a(f"s_sub_u32 s{T1}, s{T0}, 10")
        a(f"s_cmp_ge_u32 s{T0}, 10")
        a(f"s_cselect_b32 s{T0}, s{T1}, s{T0}")
    else:
        a(f"s_mov_b32 s{T0}, 0")
    a(f"s_lshl_b32 s{S_KX}, s{T0}, 7")
    a(f"s_mul_i32 s{S_KQ}, s{T0}, {64*3840}")
    a(f"s_mul_i32 s{S_K1}, s{T0}, {64*3456}")
    def adv(sreg, step, wrap):
        a(f"s_add_u32 s{sreg}, s{sreg}, {step}")
        a(f"s_cmp_eq_u32 s{sreg}, {wrap}")
        a(f"s_cselect_b32 s{sreg}, 0, s{sreg}")
    parts = ((VXD, SRD_A, S_KX, 0, 128, 1280), (VQD, SRD_B, S_KQ, 16384, 64*3840, 640*3840), (V1D, SRD_E, S_K1, 32768, 64*3456, 640*3456))
    def dma(b, part, i):
        vd, sr, sk, off, step, wrap = parts[part]
        if i == 0:
            a(f"s_add_u32 m0, s{S_M}, {(b % 3)*SLOT + off}")
            if b > 0: adv(sk, step, wrap)
        a(f"buffer_load_dwordx4 v{vd+i}, s[{sr}:{sr+3}], s{sk} offen offset:{i*1024} lds", tag=('B', b))
    def dma_block(b):
        for part in range(3):
            for i in range(2): dma(b, part, i)
    NI = OPT.get('finit', 2)
    for b in range(NI): dma_block(b)
    pre_address(a, lbl + "_pa", rows=False)
    a(f"s_and_b32 s{T0}, s{S_W}, 1")
    a(f"s_lshl_b32 s{T0}, s{T0}, 13")
    a(f"v_and_b32 v{t0}, 31, v1")
    a(f"v_lshrrev_b32 v{t1}, 5, v1")
    a(f"v_bfe_u32 v{t2}, v1, 1, 3")
    a(f"v_lshlrev_b32 v{t0}, 7, v{t0}")
    a(f"v_add_u32 v{t0}, s{T0}, v{t0}")
    for s_ in range(4):
        a(f"v_or_b32 v{t3}, {2*s_}, v{t1}")
        a(f"v_xor_b32 v{t3}, v{t3}, v{t2}")
        a(f"v_lshl_add_u32 v{VXF+s_}, v{t3}, 4, v{t0}")
        a(f"v_add_u32 v{VXF+4+s_}, {2*SLOT}, v{VXF+s_}")
    a(f"v_bfe_u32 v{t0}, v1, 2, 2")
    a(f"v_lshl_add_u32 v{t1}, v{t1}, 3, v{t0}")
    a(f"v_lshlrev_b32 v{t1}, 8, v{t1}")
    a(f"v_bfe_u32 v{t2}, v1, 4, 1")
    a(f"v_lshl_add_u32 v{t1}, v{t2}, 5, v{t1}")
    a(f"v_and_b32 v{t2}, 3, v1")
    a(f"v_lshl_add_u32 v{t1}, v{t2}, 3, v{t1}")
    a(f"s_lshr_b32 s{T0}, s{S_W}, 1")
    a(f"v_xor_b32 v{t2}, s{T0}, v{t0}")
    a(f"v_lshl_add_u32 v{VWF}, v{t2}, 6, v{t1}")
    a(f"v_add_u32 v{VWF+1}, {SLOT}, v{VWF}")
    a(f"v_add_u32 v{VWF+2}, {2*SLOT}, v{VWF}")
    a(f"s_lshl_b32 s{T0}, s{S_RB}, 7")
    a(f"s_add_u32 s{T0}, s{T0}, {WS_FLAG + FS}")
    a(f"v_mov_b32 v{t0}, s{T0}")
    a(f"s_min_u32 s{T1}, s{S_CJ}, 13")
    a(f"s_lshl_b32 s{T1}, s{T1}, 2")
    a(f"s_add_u32 s{T1}, s{T1}, {WS_FLAG + FC}")
    a(f"v_mov_b32 v{t1}, s{T1}")
    a(f"v_cmp_gt_u32 s[{T4}:{T4+1}], 32, v1")
    a(f"v_cndmask_b32 v{VP}, v{t1}, v{t0}, s[{T4}:{T4+1}]")
    a(f"s_lshl_b32 s{T0}, s{S_RB}, 7")
    a(f"s_lshl_b32 s{T1}, s{S_CJ}, 2")
    a(f"s_add_u32 s{T0}, s{T0}, s{T1}")
    a(f"s_add_u32 s{S_FQ}, s{T0}, {WS_FLAG + FQ}")
    a(f"s_add_u32 s{S_FH}, s{T0}, {WS_FLAG + FH}")
    a(f"s_cmp_lt_u32 s{S_CJ}, 14")
    a(f"s_cselect_b32 s{S_FHO}, s{S_FH}, 0x7fff0000")
    def rd_b(st, b, u, tt):
        sl = b % 3
        a(f"ds_read_b128 {vr(FB[st]+4*tt,4)}, v{VXF + u + (4 if sl == 2 else 0)} offset:{(SLOT if sl == 1 else 0) + tt*4096}", tag=('f', b, u, 'b', tt))
    def rd_a(st, b, u, F, rd):
        a(f"ds_read_b64_tr_b16 {vr(FB[st]+8+4*F+2*rd,2)}, v{VWF + b % 3} offset:{16384*(F+1) + u*4096 + rd*1024}", tag=('f', b, u, 'a', F))
    def reads(st, b, u):
        return [lambda: rd_b(st, b, u, 0), lambda: rd_a(st, b, u, 0, 0), lambda: rd_a(st, b, u, 0, 1),
                lambda: rd_b(st, b, u, 1), lambda: rd_a(st, b, u, 1, 0), lambda: rd_a(st, b, u, 1, 1)]
    mark(a)
    a.wait_vm(('B', 0))
    a("s_barrier")
    for r in reads(0, 0, 0): r()
    NB = 10
    pend = [(b, p, i) for b in range(NI, 3) for p in range(3) for i in range(2)]
    for b in range(NB):
        for u in range(4):
            s_ = 4*b + u; st = s_ & 1
            last = (b == NB-1 and u == 3)
            if u == 3 and b + 1 < NB:
                while pend: dma(*pend.pop(0))
                a("s_waitcnt lgkmcnt(0)")
                a.wait_vm(('B', b + 1))
                a("s_barrier")
                if b == 3:
                    a.wait_vm('pl')
                    repack_finish(a)
                if b == 6: pre_flags(a, t3, stats=False)
                if b + 3 < NB: pend = [(b + 3, p, i) for p in range(3) for i in range(2)]
            nb, nu = (b, u + 1) if u < 3 else (b + 1, 0)
            rs = [] if last else reads(st ^ 1, nb, nu)
            plan = {-1: rs[0:2], 0: rs[2:5], 1: rs[5:6]}
            for r in plan[-1]: r()
            for k, (tt, F) in enumerate([(0, 0), (1, 0), (0, 1), (1, 1)]):
                a.wait_lg([('f', b, u, 'b', tt), ('f', b, u, 'a', F)])
                d = vr(ACC+16*(2*tt+F), 16)
                a(f"v_mfma_f32_32x32x16_bf16 {d}, {vr(FB[st]+8+4*F,4)}, {vr(FB[st]+4*tt,4)}, {'0' if s_ == 0 else d}")
                for r in plan.get(k, []): r()
                if pend and k in (1, 3): dma(*pend.pop(0))
            if b == 1 and u == 0: pre_issue(a, rows=False)
            if b == 1 and u == 1: nonce_issue(a, 252)
            if b == 3 and u == 1: nonce_check(a, 252)
            if b == 6 and u == 0: poll_issue(a, VP, VPV, 'p1')
            if b == 8 and u == 0:
                L = uid("nf")
                a(f"s_cmp_ge_u32 s{S_CJ}, 14")
                a(f"s_cbranch_scc1 {L}")
                vm0 = list(a.vm)
                poll_check(a, VP, VPV, 'p1')
                a.label(L)
                a.vm = vm0
                a(f"s_lshl_b32 s{T0}, s{S_RB}, 10")
                a(f"s_and_b32 s{T1}, s{S_W}, 1")
                a(f"s_lshl_b32 s{T1}, s{T1}, 9")
                a(f"s_add_u32 s{T0}, s{T0}, s{T1}")
                a(f"s_add_u32 s{T0}, s{T0}, {WS_ST}")
                a(f"v_and_b32 v{t0}, 31, v1")
                a(f"v_lshlrev_b32 v{t0}, 4, v{t0}")
                a(f"buffer_load_dwordx4 {vr(ST,4)}, v{t0}, s[{SRD_WS}:{SRD_WS+3}], s{T0} offen sc1", tag='tab')
                a(f"v_lshrrev_b32 v{t0}, 5, v1")
                a(f"v_lshlrev_b32 v{t0}, 4, v{t0}")
                a(f"s_lshl_b32 s{T0}, s{S_CJ}, 9")
                a(f"s_lshr_b32 s{T1}, s{S_W}, 1")
                a(f"s_lshl_b32 s{T1}, s{T1}, 7")
                a(f"s_add_u32 s{T0}, s{T0}, s{T1}")
                a(f"s_add_u32 s{T1}, s{T0}, {WS_B1}")
                a(f"s_add_u32 s{T0}, s{T0}, {WS_CS}")
                for j in range(4):
                    a(f"buffer_load_dwordx4 {vr(CSR+4*j,4)}, v{t0}, s[{SRD_WS}:{SRD_WS+3}], s{T0} offen offset:{32*j} sc1", tag='tab')
                    a(f"buffer_load_dwordx4 {vr(B1R+4*j,4)}, v{t0}, s[{SRD_WS}:{SRD_WS+3}], s{T1} offen offset:{32*j} sc1", tag='tab')
    mark(a)
    a(f"v_lshrrev_b32 v{t0}, 5, v1")
    a(f"s_lshr_b32 s{T0}, s{S_W}, 1")
    a(f"s_lshl_b32 s{T0}, s{T0}, 3")
    a(f"v_add_u32 v{t0}, s{T0}, v{t0}")
    a(f"v_lshlrev_b32 v{t0}, 14, v{t0}")
    a(f"s_and_b32 s{T0}, s{S_W}, 1")
    a(f"s_lshl_b32 s{T0}, s{T0}, 9")
    a(f"v_and_b32 v{t1}, 31, v1")
    a(f"v_lshl_add_u32 v{t0}, v{t1}, 4, v{t0}")
    a(f"v_add_u32 v{t0}, s{T0}, v{t0}")
    a(f"s_lshl_b32 s{T0}, s{S_CJ}, 19")
    a(f"s_lshl_b32 s{T1}, s{S_RB}, 10")
    a(f"s_add_u32 s{T0}, s{T0}, s{T1}")
    a(f"s_add_u32 s{T0}, s{T0}, {WS_QKV}")
    a(f"s_cmp_lt_u32 s{S_CJ}, 5")
    a(f"s_cselect_b32 s{T2}, 0x3ea52b5c, 1.0")
    a(f"v_mov_b32 v30, s{T2}")
    for tt in range(2):
        for r in range(0, 16, 2):
            a(f"v_pk_mul_f32 {vr(ACC+32*tt+r,2)}, {vr(ACC+32*tt+r,2)}, v[30:31] op_sel_hi:[1,0]")
    for j in range(4):
        a(f"s_add_u32 s{T1}, s{T0}, {2*j*16384}")
        d = FB[0] + 4*j
        for tt in range(2):
            base = ACC + 32*tt + 4*j
            a(f"v_cvt_pk_bf16_f32 v{d+2*tt}, v{base}, v{base+1}")
            a(f"v_cvt_pk_bf16_f32 v{d+2*tt+1}, v{base+2}, v{base+3}")
        a(f"buffer_store_dwordx4 {vr(d,4)}, v{t0}, s[{SRD_WS}:{SRD_WS+3}], s{T1} offen sc1", tag='qst')
    C0, C1, VY, ONE = 2, 3, 4, 6
    TU, TE = 48, 56
    a(f"v_mov_b32 v{ONE}, 1.0")
    a(f"v_mov_b32 v{C0}, 0xc0135761")
    a(f"v_mov_b32 v{C1}, 0xbdd2d3e8")
    a(f"v_lshlrev_b32 v{VY}, 4, v1")
    a(f"s_lshl_b32 s{T0}, s{S_CJ}, 3")
    a(f"s_lshr_b32 s{T1}, s{S_W}, 1")
    a(f"s_lshl_b32 s{T1}, s{T1}, 1")
    a(f"s_add_u32 s{S_ACT}, s{T0}, s{T1}")
    a(f"s_lshl_b32 s{T0}, s{S_RB}, 2")
    a(f"s_and_b32 s{T1}, s{S_W}, 1")
    a(f"s_lshl_b32 s{T1}, s{T1}, 1")
    a(f"s_add_u32 s{T0}, s{T0}, s{T1}")
    a(f"s_mul_i32 s{T0}, s{T0}, 108")
    a(f"s_add_u32 s{T0}, s{T0}, s{S_ACT}")
    a(f"s_lshl_b32 s{T0}, s{T0}, 10")
    a(f"s_add_u32 s{S_HB}, s{T0}, {WS_H}")
    a(f"s_cmp_lt_u32 s{S_ACT}, 108")
    a(f"s_cselect_b32 s{S_HB}, s{S_HB}, 0x7fff0000")
    a.wait_vm('tab')
    P = lambda b, e: vr(b + 2*e, 2)
    for tt in range(2):
        nmp = vr(ST + 2*tt, 2)
        for jj in range(2):
            x = ACC + 16*(2*tt+1) + 8*jj
            for e in range(4):
                j, i = 2*jj + (e >> 1), 2*(e & 1)
                a(f"v_pk_fma_f32 {P(TU,e)}, {nmp}, {vr(CSR+4*j+i,2)}, {vr(B1R+4*j+i,2)} op_sel_hi:[0,1,1]")
            for e in range(4): a(f"v_pk_fma_f32 {P(x,e)}, {nmp}, {P(x,e)}, {P(TU,e)} op_sel:[1,0,0] op_sel_hi:[1,1,1]")
            for e in range(4): a(f"v_pk_mul_f32 {P(TU,e)}, {P(x,e)}, {P(x,e)}")
            for e in range(4): a(f"v_pk_fma_f32 {P(TU,e)}, {P(TU,e)}, {vr(C0,2)}, {vr(C0,2)} op_sel:[0,1,0] op_sel_hi:[1,1,0]")
            for e in range(4): a(f"v_pk_mul_f32 {P(TU,e)}, {P(TU,e)}, {P(x,e)}")
            for e in range(8): a(f"v_exp_f32 v{TE+e}, v{TU+e}")
            for e in range(4): a(f"v_pk_add_f32 {P(TE,e)}, {P(TE,e)}, {vr(ONE,2)} op_sel_hi:[1,0]")
            for e in range(8): a(f"v_rcp_f32 v{TE+e}, v{TE+e}")
            for e in range(4): a(f"v_pk_mul_f32 {P(TE,e)}, {P(TE,e)}, {P(x,e)}")
            d = TD + 4*(2*tt + jj)
            for e in range(4): a(f"v_cvt_pk_bf16_f32 v{d+e}, v{TE+2*e}, v{TE+2*e+1}")
    fq_poll_offsets(a, VP, t3)
    a.wait_vm('qst')
    a("s_barrier")
    flag_store(a, S_FQ, t3)
    mark(a)
    for tt in range(2):
        if tt == 1: a(f"s_add_u32 s{S_HB}, s{S_HB}, {108*1024}")
        for jj in range(2):
            d = TD + 4*(2*tt + jj)
            a(f"buffer_store_dwordx4 {vr(d,4)}, v{VY}, s[{SRD_WS}:{SRD_WS+3}], s{S_HB} offen offset:{jj*1024} sc1", tag='hst')
    a(f"s_branch {lbl}_stage")
    a.label(f"{lbl}_idle")
    a.reset_counters()
    t3i = t3
    srd(a, SRD_A, P_AX, SIZES['AX'])
    rowstats_issue(a)
    colsum_issue(a)
    nonce_issue(a, 252)
    rowstats_compute(a)
    colsum_compute(a, lbl + "_cs")
    nonce_check(a, 252)
    a("s_waitcnt vmcnt(0)")
    a("s_barrier")
    a(f"s_lshl_b32 s{T0}, s{S_RB}, 7")
    a(f"s_add_u32 s{T0}, s{T0}, {WS_FLAG + FS}")
    flag_store(a, T0, t3)
    a(f"s_lshl_b32 s{T0}, s{S_RB}, 2")
    a(f"s_add_u32 s{T0}, s{T0}, {WS_FLAG + FC}")
    flag_store(a, T0, t3)
    pre_address(a, lbl + "_pai", rows=False)
    pre_issue(a, rows=False)
    a.wait_vm('pl')
    repack_finish(a)
    a("s_waitcnt vmcnt(0)")
    a("s_barrier")
    pre_flags(a, t3, stats=False)
    a(f"s_mov_b32 s{S_FHO}, 0x7fff0000")
    fq_poll_offsets(a, VP, t3)
    a.label(f"{lbl}_stage")
    a.reset_counters()
    a(f"s_mov_b64 s[{T4}:{T4+1}], -1")
    wait_flags(a, VP, VPV, T4)
    mark(a)
    Li = uid("ik")
    a(f"s_cmp_ge_u32 s{S_W}, 4")
    a(f"s_cbranch_scc1 {Li}")
    attn_stage_q(a, 3)
    attn_stage_kv(a, t0, t1, t2, 2)
    a.wait_vm(('kv', 0))
    a.label(Li)
    a.reset_counters()

def stage_attn(a, lbl):
    HP, S_HH, S_QW = S_AHP, 78, 79
    VD, VK, VV, VKX, VW = 2, 3, 4, 5, 10
    t0, t1, t2, t3, t4 = 6, 7, 8, 9, 11
    MK = 12
    Q0, Q1 = 20, 24
    KF = [28, 36]
    VF = [44, 48, 52, 56]
    PF = [60, 64, 68, 72]
    OA = 76
    CS, NM, MX = 96, 97, 98
    S = 104
    VPQ, VPH = 92, 94
    a(f"v_and_b32 v{t0}, 31, v1")
    a(f"v_and_b32 v{VPH}, 15, v1")
    a(f"v_min_u32 v{VPH}, 13, v{VPH}")
    a(f"v_lshlrev_b32 v{VPH}, 2, v{VPH}")
    a(f"s_lshr_b32 s{T1}, s{S_FRB}, 1")
    a(f"s_lshl_b32 s{T1}, s{T1}, 7")
    a(f"s_add_u32 s{T1}, s{T1}, {WS_FLAG + FH}")
    a(f"v_add_u32 v{VPH}, s{T1}, v{VPH}")
    a(f"v_lshrrev_b32 v{t1}, 5, v1")
    for r in range(4): a(f"v_mov_b32 v{KF[0]+r}, 0x3f803f80")
    a(f"v_lshlrev_b32 v{t4}, 4, v0")
    a(f"v_add_u32 v{t4}, {LONES}, v{t4}")
    a(f"v_mov_b32 v{KF[1]}, 208")
    a(f"v_cmp_gt_u32 vcc, v{KF[1]}, v0")
    L = uid("on")
    a(f"s_and_saveexec_b64 s[{T4}:{T4+1}], vcc")
    a(f"s_cbranch_execz {L}")
    a(f"ds_write_b128 v{t4}, {vr(KF[0],4)}")
    a.label(L)
    a(f"s_mov_b64 exec, s[{T4}:{T4+1}]")
    SM = 98
    a(f"v_lshlrev_b32 v{t2}, 2, v{t1}")
    a(f"v_sub_u32 v{t2}, v{t0}, v{t2}")
    VM = 248
    a(f"v_mov_b32 v{VM}, v{t2}")
    a(f"v_mov_b32 v{t3}, 0xffff")
    a(f"v_mov_b32 v{t4}, 0xffff0000")
    for q in range(8):
        r0, r1 = 2*q, 2*q + 1
        a(f"v_cmp_le_i32 s[98:99], {8*(r0 >> 2) + (r0 & 3)}, v{VM}")
        a(f"v_cmp_le_i32 s[100:101], {8*(r1 >> 2) + (r1 & 3)}, v{VM}")
        a(f"v_cndmask_b32 v{MK+q}, 0, v{t3}, s[98:99]")
        a(f"v_cndmask_b32 v{KF[1]}, 0, v{t4}, s[100:101]")
        a(f"v_or_b32 v{MK+q}, v{MK+q}, v{KF[1]}")
    a(f"s_lshl_b32 s{T0}, s{S_QW}, 8")
    a(f"s_mul_i32 s{T3}, s{S_HH}, {5*PST}")
    a(f"s_add_u32 s{T2}, s{T0}, s{T3}")
    a(f"s_add_u32 s{T2}, s{T2}, {LK}")
    a(f"v_lshlrev_b32 v{t2}, 3, v{t0}")
    a(f"v_add_u32 v{t2}, s{T2}, v{t2}")
    a(f"s_movk_i32 s{T1}, {2*PST}")
    a(f"v_mul_lo_u32 v{t3}, v{t1}, s{T1}")
    a(f"v_add_u32 v{VK}, v{t2}, v{t3}")
    a(f"v_add_u32 v{VKX}, {4*PST}, v{t2}")
    a(f"v_bfe_u32 v{t2}, v1, 4, 1")
    a(f"v_and_b32 v{t3}, 3, v1")
    a(f"v_lshl_add_u32 v{t2}, v{t2}, 2, v{t3}")
    a(f"v_bfe_u32 v{t3}, v1, 2, 2")
    a(f"v_lshl_add_u32 v{t3}, v{t1}, 2, v{t3}")
    a(f"v_lshlrev_b32 v{t3}, 3, v{t3}")
    a(f"v_add_u32 v{t3}, s{T0}, v{t3}")
    a(f"s_movk_i32 s{T1}, {PST}")
    a(f"v_mul_lo_u32 v{t4}, v{t2}, s{T1}")
    a(f"v_cmp_gt_u32 s[{T4}:{T4+1}], 5, v{t2}")
    a(f"s_add_u32 s{T3}, s{T3}, {LV}")
    a(f"s_sub_u32 s{T2}, s{T3}, {LONES}")
    a(f"v_lshlrev_b32 v{KF[0]}, 5, v{t2}")
    a(f"v_add_u32 v{KF[0]}, s{T2}, v{KF[0]}")
    a(f"v_and_b32 v{KF[0]}, 255, v{KF[0]}")
    a(f"v_add_u32 v{KF[0]}, {LONES}, v{KF[0]}")
    a(f"v_add_u32 v{KF[0]+1}, s{T3}, v{t4}")
    a(f"v_cndmask_b32 v{KF[0]}, v{KF[0]}, v{KF[0]+1}, s[{T4}:{T4+1}]")
    a(f"v_add_u32 v{VV}, v{KF[0]}, v{t3}")
    a(f"v_mov_b32 v{CS}, 0x3ea52b5c")
    for st in range(2):
        a(f"v_mov_b32 v{KF[st]+6}, 0"); a(f"v_mov_b32 v{KF[st]+7}, 0")
    a(f"v_mov_b32 v{Q1+2}, 0"); a(f"v_mov_b32 v{Q1+3}, 0")
    a(f"v_lshlrev_b32 v{VW}, 4, v1")
    a(f"s_lshl_b32 s{T0}, s{S_ARB}, 2")
    a(f"s_add_u32 s{S_QB}, s{T0}, s{S_QW}")
    a(f"s_mul_i32 s{T0}, s{S_HH}, 5120")
    a(f"s_lshl_b32 s{T1}, s{S_QW}, 8")
    a(f"s_add_u32 s{T0}, s{T0}, s{T1}")
    a(f"s_add_u32 s{T0}, s{T0}, {QL}")
    a(f"v_lshlrev_b32 v{t2}, 3, v{t0}")
    a(f"v_add_u32 v{t2}, s{T0}, v{t2}")
    a(f"v_lshl_add_u32 v{t3}, v{t1}, 11, v{t2}")
    a("s_waitcnt lgkmcnt(0)")
    a("s_barrier")
    if OPT.get('latev'):
        Lw = uid("lv")
        a(f"s_cmp_ge_u32 s{S_W}, 4")
        a(f"s_cbranch_scc1 {Lw}")
        vm = list(a.vm)
        attn_stage_kv(a, 244, 245, 246, 247, (1,))
        a.vm = vm
        a.label(Lw)
    probe(a, 4)
    a(f"ds_read_b64 {vr(Q0,2)}, v{t3}")
    a(f"ds_read_b64 {vr(Q0+2,2)}, v{t3} offset:1024")
    a(f"ds_read_b64 {vr(Q1,2)}, v{t2} offset:4096")
    a(f"v_cmp_gt_u32 s[{T4}:{T4+1}], 32, v1")
    a("s_waitcnt lgkmcnt(0)")
    for q in (Q1, Q1+1):
        a(f"v_cndmask_b32 v{q}, 0, v{q}, s[{T4}:{T4+1}]")
    mark(a)
    SB = [100, 116, 132]; NM16 = 148
    order = [0, 8, 1, 2, 3, 4, 5, 6, 7]
    a(f"v_mov_b32 v{Q1+2}, 0x3f80")
    a(f"v_cndmask_b32 v{Q1+2}, 0, v{Q1+2}, s[{T4}:{T4+1}]")
    kn = [0]
    def rd_k(tl):
        st = KF[kn[0] % 2]; kn[0] += 1
        a(f"ds_read_b64 {vr(st,2)}, v{VK} offset:{tl*256}", tag=('k', tl))
        a(f"ds_read_b64 {vr(st+2,2)}, v{VK} offset:{PST + tl*256}", tag=('k', tl))
        a(f"ds_read_b64 {vr(st+4,2)}, v{VKX} offset:{tl*256}", tag=('k', tl))
        if tl < 8:
            a(f"s_cmp_lt_u32 s{S_QB}, {8-tl}")
            a(f"s_cselect_b32 s{T0}, 0xf149, 0")
            a(f"v_mov_b32 v{st+6}, s{T0}")
        else:
            a(f"v_mov_b32 v{st+6}, 0")
        return st
    def qk(tl, st, buf, c):
        a.wait_lg(('k', tl))
        d = vr(buf, 16)
        a(f"v_mfma_f32_32x32x16_bf16 {d}, {vr(st,4)}, {vr(Q0,4)}, {c}")
        a(f"v_mfma_f32_32x32x16_bf16 {d}, {vr(st+4,4)}, {vr(Q1,4)}, {d}")
    def merge():
        for r in range(0, 16, 2):
            a(f"v_cmp_le_i32 s[98:99], {8*(r >> 2) + (r & 3)}, v{VM}")
            a(f"v_cmp_le_i32 s[100:101], {8*((r+1) >> 2) + ((r+1) & 3)}, v{VM}")
            a(f"v_cndmask_b32 v{SB[0]+r}, v{SB[0]+r}, v{SB[1]+r}, s[98:99]")
            a(f"v_cndmask_b32 v{SB[0]+r+1}, v{SB[0]+r+1}, v{SB[1]+r+1}, s[100:101]")
    bufs = {0: SB[0], 8: SB[1]}
    for n, tl in enumerate(range(1, 8)): bufs[tl] = SB[(2 - n) % 3]
    def tmax(buf, first):
        for h in range(2):
            m = MX + h
            a(f"v_max3_f32 v{m}, v{buf+8*h}, v{buf+8*h+1}, {'v%d' % (buf+8*h+2) if first else 'v%d' % m}")
            ks = range(3, 8) if first else range(2, 8)
            ks = list(ks)
            while ks:
                if len(ks) >= 2:
                    a(f"v_max3_f32 v{m}, v{m}, v{buf+8*h+ks[0]}, v{buf+8*h+ks[1]}"); ks = ks[2:]
                else:
                    a(f"v_max_f32 v{m}, v{m}, v{buf+8*h+ks[0]}"); ks = ks[1:]
    st = rd_k(0); st2 = rd_k(8)
    qk(0, st, bufs[0], "0")
    st = rd_k(1)
    qk(8, st2, bufs[8], "0")
    st2 = rd_k(2)
    qk(1, st, bufs[1], "0")
    merge()
    tmax(SB[0], True)
    cur = st2
    for tl in range(2, 8):
        nxt = rd_k(tl + 1) if tl + 1 < 8 else None
        qk(tl, cur, bufs[tl], "0")
        tmax(bufs[tl-1], False)
        cur = nxt
    tmax(bufs[7], False)
    a(f"v_max_f32 v{MX}, v{MX}, v{MX+1}")
    a(f"v_mov_b32 v{MX+1}, v{MX}")
    a(f"v_permlane32_swap_b32 v{MX}, v{MX+1}")
    a(f"v_max_f32 v{MX}, v{MX}, v{MX+1}")
    a(f"v_sub_f32 v{NM16}, 0, v{MX}")
    for r in range(1, 16): a(f"v_mov_b32 v{NM16+r}, v{NM16}")
    if OPT.get('fine5'): mark(a)
    st = rd_k(0); st2 = rd_k(8)
    Lv = uid("vb")
    a(f"s_cmp_ge_u32 s{S_W}, 4")
    a(f"s_cbranch_scc1 {Lv}_1")
    a("s_waitcnt vmcnt(0)")
    a.label(f"{Lv}_1")
    if OPT.get('thp', -1) < 0: a("s_waitcnt vmcnt(0)")
    a.vm = []
    a("s_barrier")
    if OPT.get('thp', -1) < 0: flag_store(a, S_FHO, t3)
    dma_wf(a, 0, VW); dma_wf(a, 1, VW)
    mark(a)
    probe(a, 5)
    nv = [0]; ps = [0]
    for r in range(16): a(f"v_mov_b32 v{OA+r}, 0")
    def rd_v(tl, kk):
        slot = nv[0] % 4; nv[0] += 1
        for rd in range(2):
            a(f"ds_read_b64_tr_b16 {vr(VF[slot]+2*rd,2)}, v{VV} offset:{tl*256 + kk*128 + rd*64}", tag=('v', tl, kk))
        return slot
    def frag(src):
        p = PF[ps[0] % 4]; ps[0] += 1
        for e in range(8): a(f"v_exp_f32 v{src+e}, v{src+e}")
        for e in range(4): a(f"v_cvt_pk_bf16_f32 v{p+e}, v{src+2*e}, v{src+2*e+1}")
        return p
    def pv(p, slot, tag):
        a.wait_lg(tag)
        a(f"v_mfma_f32_32x32x16_bf16 {vr(OA,16)}, {vr(VF[slot],4)}, {vr(p,4)}, {vr(OA,16)}")
    C = vr(NM16, 16)
    qk(0, st, bufs[0], C)
    st = rd_k(1)
    qk(8, st2, bufs[8], C)
    st2 = rd_k(2)
    qk(1, st, bufs[1], C)
    merge()
    fin = None; ntok = [0]
    for kk in range(2):
        s0 = rd_v(0, kk); s8 = rd_v(8, kk)
        p = frag(SB[0] + 8*kk)
        p8 = PF[ps[0] % 4]; ps[0] += 1
        for e in range(4): a(f"v_and_b32 v{p8+e}, v{p+e}, v{MK+4*kk+e}")
        for e in range(4): a(f"v_xor_b32 v{p+e}, v{p+e}, v{p8+e}")
        pv(p, s0, ('v', 0, kk))
        pv(p8, s8, ('v', 8, kk))
    def publish_h():
        a("s_waitcnt vmcnt(10)")
        a("s_barrier")
        flag_store(a, S_FHO, t3)
    if OPT.get('thp', -1) == 0: publish_h()
    cur = st2
    for tl in range(1, 8):
        if tl + 1 < 8:
            nxt = rd_k(tl + 2) if tl + 2 < 8 else None
            qk(tl + 1, cur, bufs[tl+1], C)
            cur = nxt
        for kk in range(2):
            slot = rd_v(tl, kk)
            p = frag(bufs[tl] + 8*kk)
            pv(p, slot, ('v', tl, kk))
            if fin is not None and OPT.get('spread_t', 1):
                left = OPT.get('td1', 16) - ntok[0]
                nfr = 2*(7 - tl) + (1 - kk) + 1
                for _ in range(-(-left // nfr)):
                    fin(ntok[0]); ntok[0] += 1
        if tl == OPT.get('thp', -1): publish_h()
        if tl == OPT.get('tpoll', 2): poll_issue(a, VPH, VPH+1, 'ph')
        if tl == OPT.get('ttok', 4):
            if OPT.get('fine5'): mark(a)
            fin = final_setup(a, VPH)
            if OPT.get('fine5'): mark(a)
    a(f"v_and_b32 v{t0}, 1, v1")
    a(f"v_mul_u32_u24 v{t0}, {40*1024}, v{t0}")
    a(f"v_bfe_u32 v{t1}, v1, 1, 4")
    a(f"v_lshl_add_u32 v{t0}, v{t1}, 4, v{t0}")
    a(f"s_and_b32 s{T0}, s{S_QB}, 1")
    a(f"s_lshl_b32 s{T0}, s{T0}, 8")
    a(f"s_lshr_b32 s{T1}, s{S_QB}, 1")
    a(f"s_mul_i32 s{T1}, s{T1}, {80*1024}")
    a(f"s_add_u32 s{T0}, s{T0}, s{T1}")
    a(f"s_add_u32 s{T0}, s{T0}, {WS_O}")
    a(f"v_lshrrev_b32 v{t1}, 5, v1")
    a(f"v_lshl_add_u32 v{t2}, v{t1}, 9, v{t0}")
    a(f"v_rcp_f32 v{NM}, v{OA+12}")
    for r in range(12): a(f"v_mul_f32 v{OA+r}, v{OA+r}, v{NM}")
    for e in range(4): a(f"v_cvt_pk_bf16_f32 v{PF[0]+e}, v{OA+2*e}, v{OA+2*e+1}")
    a(f"v_cvt_pk_bf16_f32 v{PF[1]}, v{OA+8}, v{OA+9}")
    a(f"v_cvt_pk_bf16_f32 v{PF[1]+1}, v{OA+10}, v{OA+11}")
    a(f"s_lshl_b32 s{T1}, s{HP}, 1")
    a(f"s_add_u32 s{T1}, s{T1}, s{S_HH}")
    a(f"s_lshl_b32 s{T1}, s{T1}, 10")
    a(f"s_add_u32 s{T1}, s{T1}, s{T0}")
    a(f"buffer_store_dwordx4 {vr(PF[0],4)}, v{t2}, s[{SRD_WS}:{SRD_WS+3}], s{T1} offen sc1", tag='ost')
    a(f"s_lshr_b32 s{T1}, s{HP}, 1")
    a(f"s_add_u32 s{T1}, s{T1}, 32")
    a(f"s_lshl_b32 s{T1}, s{T1}, 10")
    a(f"s_and_b32 s{T2}, s{HP}, 1")
    a(f"s_lshl_b32 s{T2}, s{T2}, 9")
    a(f"s_add_u32 s{T1}, s{T1}, s{T2}")
    a(f"s_lshl_b32 s{T2}, s{S_HH}, 3")
    a(f"s_add_u32 s{T1}, s{T1}, s{T2}")
    a(f"s_add_u32 s{T1}, s{T1}, s{T0}")
    a("s_mov_b32 exec_hi, 0")
    a(f"buffer_store_dwordx2 {vr(PF[1],2)}, v{t0}, s[{SRD_WS}:{SRD_WS+3}], s{T1} offen sc1", tag='ost')
    a("s_mov_b32 exec_hi, -1")
    S_FO = 78
    a(f"s_lshl_b32 s{T0}, s{S_ARB}, 7")
    a(f"s_lshl_b32 s{T1}, s{HP}, 2")
    a(f"s_add_u32 s{T0}, s{T0}, s{T1}")
    a(f"s_add_u32 s{S_FO}, s{T0}, {WS_FLAG + FO}")
    mark(a)
    return dict(VPH=VPH, VW=VW, S_FO=S_FO, fin=fin)

TR, NT, HM, NM_ = 164, 20, 27, 37
F_HB, F_OB, F_TG, F_KG = 70, 71, 72, 81
F_VB = 11
def final_setup(a, VPH):
    TD = OPT.get('td', 16)
    t1, t2, t3 = 6, 7, 8
    a(f"s_and_b32 s{F_TG}, s{S_W}, 3")
    a(f"s_lshr_b32 s{F_KG}, s{S_W}, 2")
    poll_check(a, VPH, VPH+1, 'ph')
    if OPT.get('pfh', 0): touch_h(a, t1, t2)
    a(f"v_lshrrev_b32 v{t1}, 5, v1")
    a(f"v_bfe_u32 v{t2}, v1, 4, 1")
    a(f"v_lshlrev_b32 v{t1}, 10, v{t1}")
    a(f"v_lshl_add_u32 v{t1}, v{t2}, 9, v{t1}")
    a(f"v_and_b32 v{t2}, 15, v1")
    a(f"s_and_b32 s{T0}, s{F_TG}, 1")
    a(f"s_lshl_b32 s{T0}, s{T0}, 4")
    a(f"v_add_u32 v{t3}, s{T0}, v{t2}")
    a(f"v_lshl_add_u32 v{F_VB}, v{t3}, 4, v{t1}")
    a(f"s_lshl_b32 s{T0}, s{S_FRB}, 1")
    a(f"s_lshr_b32 s{T1}, s{F_TG}, 1")
    a(f"s_add_u32 s{T0}, s{T0}, s{T1}")
    a(f"s_lshl_b32 s{T2}, s{F_KG}, 11")
    a(f"s_mul_i32 s{T1}, s{T0}, {108*1024}")
    a(f"s_add_u32 s{T1}, s{T1}, s{T2}")
    a(f"s_add_u32 s{F_HB}, s{T1}, {WS_H}")
    a(f"s_mul_i32 s{T1}, s{T0}, {40*1024}")
    a(f"s_add_u32 s{T1}, s{T1}, s{T2}")
    a(f"s_add_u32 s{F_OB}, s{T1}, {WS_O}")
    def ld_t(m):
        sb, k = (F_HB, m) if m < HM else (F_OB, m - HM)
        if k > 0 and not OPT.get('hotft'): a(f"s_add_u32 s{sb}, s{sb}, 4096")
        a(f"buffer_load_dwordx4 {vr(TR+4*(m % NT),4)}, v{F_VB}, s[{SRD_WS}:{SRD_WS+3}], s{sb} offen sc1", tag=('T', m))
    if not OPT.get('spread_t', 1):
        for m in range(OPT.get('td1', 16)): ld_t(m)
    return ld_t

def stage_final(a, lbl, st):
    VPH, S_FO = st['VPH'], st['S_FO']
    VW = st['VW']; ld_t = st['fin']
    VG, VO, VF = 3, 4, 6
    VA = 12
    t0, t1, t2, t3 = 16, 17, 18, 19
    AS = [20, 40, 60]
    ACB, ACA, BI = 100, 120, 80
    TD = OPT.get('td', 16)
    NM = NM_
    S_TG, S_KG = F_TG, F_KG
    srd(a, SRD_A, P_B2, SIZES['B2'])
    srd(a, SRD_B, P_OUT, SIZES['OUT'])
    a(f"s_mul_i32 s{T0}, s{S_KG}, 5120")
    a(f"v_lshlrev_b32 v{t1}, 4, v1")
    a(f"v_add_u32 v{t1}, s{T0}, v{t1}")
    for k in range(4): a(f"v_add_u32 v{VA+k}, {RING[k]}, v{t1}")
    def rd_a(m, F):
        g, u = m >> 2, m & 3
        a(f"ds_read_b128 {vr(AS[m % 3]+4*F,4)}, v{VA + g % 4} offset:{u*10240 + F*1024}", tag=('A', m, F))
    a.wait_vm(('W', 0))
    a("s_barrier")
    for m in range(2):
        for F in range(5): rd_a(m, F)
    def late_setup():
        a(f"s_lshl_b32 s{T0}, s{S_FRB}, 6")
        a(f"s_lshr_b32 s{T1}, s{S_TG}, 1")
        a(f"s_add_u32 s{T0}, s{T0}, s{T1}")
        a(f"s_and_b32 s{T1}, s{S_TG}, 1")
        a(f"s_lshl_b32 s{T1}, s{T1}, 5")
        a(f"s_add_u32 s{T0}, s{T0}, s{T1}")
        a(f"v_and_b32 v{t3}, 15, v1")
        a(f"v_lshlrev_b32 v{t3}, 1, v{t3}")
        a(f"v_add_u32 v{t3}, s{T0}, v{t3}")
        a(f"v_lshlrev_b32 v{t1}, 2, v{t3}")
        a(f"v_add_u32 v{t1}, {WS_G}, v{t1}")
        a(f"buffer_load_dword v{VG}, v{t1}, s[{SRD_WS}:{SRD_WS+3}], 0 offen sc1", tag='g')
        a(f"v_lshrrev_b32 v{t0}, 4, v1")
        a(f"s_movk_i32 s{T1}, 1280")
        a(f"v_mul_lo_u32 v{t3}, v{t3}, s{T1}")
        a(f"s_mul_i32 s{T0}, s{S_FCJ}, 160")
        a(f"v_lshl_add_u32 v{t3}, v{t0}, 3, v{t3}")
        a(f"v_add_u32 v{VO}, s{T0}, v{t3}")
        a(f"v_lshlrev_b32 v{t1}, 3, v{t0}")
        a(f"v_add_u32 v{t1}, s{T0}, v{t1}")
        for F in range(5):
            a(f"buffer_load_dwordx2 {vr(BI+2*F,2)}, v{t1}, s[{SRD_A}:{SRD_A+3}], 0 offen offset:{32*F}", tag='g')
    if not OPT.get('latef', 1):
        dma_wf(a, 2, VW); late_setup()
    a(f"s_lshr_b32 s{T0}, s{S_FRB}, 1")
    a(f"s_lshl_b32 s{T0}, s{T0}, 7")
    a(f"s_add_u32 s{T0}, s{T0}, {WS_FLAG + FO}")
    a(f"v_and_b32 v{VF}, 15, v1")
    a(f"v_lshlrev_b32 v{VF}, 2, v{VF}")
    a(f"v_add_u32 v{VF}, s{T0}, v{VF}")
    mark(a)
    probe(a, 6)
    NG = 10
    MO = OPT.get('mo', 16)
    POLL = MO - 4
    nxt = [OPT.get('td1', 16)]
    for m in range(NM):
        g, u = m >> 2, m & 3
        if m == HM: probe(a, 7)
        if m == HM: mark(a)
        if u == 2 and g + 1 < NG:
            if g == 0: a.wait_vm(['ost', ('W', 1)])
            else: a.wait_vm(('W', g + 1))
            a("s_barrier")
            if g == 0:
                flag_store(a, S_FO, t1)
                dma_wf(a, 3, VW)
            elif g + 3 < NG and not OPT.get('f_nodma'): dma_wf(a, g + 3, VW)
        if m == POLL: poll_issue(a, VF, VF+1, 'fo')
        if m == MO:
            if OPT.get('fine6'): mark(a)
            poll_check(a, VF, VF+1, 'fo')
            if OPT.get('fine6'): mark(a)
        a.wait_vm(('T', m))
        for F in range(5):
            a.wait_lg(('A', m, F))
            acc = (ACB if m < HM else ACA) + 4*F
            d = vr(acc, 4)
            a(f"v_mfma_f32_16x16x32_bf16 {d}, {vr(AS[m % 3]+4*F,4)}, {vr(TR+4*(m % NT),4)}, {'0' if m in (0, HM) else d}")
            if m + 2 < NM and not OPT.get('f_nolds'):
                rd_a(m + 2, F)
            if F in (1, 3) and not OPT.get('f_notok'):
                lim = min(m + TD, NM - 1)
                if m < MO: lim = min(lim, HM - 1)
                if nxt[0] <= lim and (F == 1 or nxt[0] < lim or OPT.get('td1', 16) < TD or MO > HM - TD):
                    ld_t(nxt[0]); nxt[0] += 1
        if m == 0 and OPT.get('latef', 1): dma_wf(a, 2, VW)
        if m == 8 and OPT.get('latef', 1): late_setup()
    mark(a)
    a.wait_vm('g')
    a(f"v_sub_f32 v{t0}, 1.0, v{VG}")
    Lb = uid("bi")
    a(f"s_cmp_lg_u32 s{S_KG}, 0")
    a(f"s_cbranch_scc1 {Lb}")
    for F in range(5):
        for e in range(2):
            a(f"v_lshlrev_b32 v{t2}, 16, v{BI+2*F+e}")
            a(f"v_and_b32 v{t3}, 0xffff0000, v{BI+2*F+e}")
            a(f"v_add_f32 v{ACB+4*F+2*e}, v{ACB+4*F+2*e}, v{t2}")
            a(f"v_add_f32 v{ACB+4*F+2*e+1}, v{ACB+4*F+2*e+1}, v{t3}")
    a.label(Lb)
    for r in range(20): a(f"v_mul_f32 v{ACB+r}, v{ACB+r}, v{t0}")
    for r in range(20): a(f"v_fmac_f32 v{ACB+r}, v{ACA+r}, v{VG}")
    a(f"v_lshlrev_b32 v{t1}, 4, v1")
    a(f"s_mul_i32 s{T0}, s{S_TG}, 5120")
    a(f"s_add_u32 s{T0}, s{T0}, {RING[2]}")
    a(f"v_add_u32 v{t1}, s{T0}, v{t1}")
    L = uid("rd")
    def finish(own, other):
        for F in other:
            a(f"ds_write_b128 v{t1}, {vr(ACB+4*F,4)} offset:{F*1024}")
        a("s_waitcnt lgkmcnt(0)")
        a("s_barrier")
        for F in own:
            a(f"ds_read_b128 {vr(ACA+4*F,4)}, v{t1} offset:{F*1024}", tag=('r', F))
        for F in own:
            a.wait_lg(('r', F))
            for r in range(4): a(f"v_add_f32 v{ACB+4*F+r}, v{ACB+4*F+r}, v{ACA+4*F+r}")
            d = AS[0] + 2*F
            a(f"v_cvt_pk_bf16_f32 v{d}, v{ACB+4*F}, v{ACB+4*F+1}")
            a(f"v_cvt_pk_bf16_f32 v{d+1}, v{ACB+4*F+2}, v{ACB+4*F+3}")
            a(f"buffer_store_dwordx2 {vr(d,2)}, v{VO}, s[{SRD_B}:{SRD_B+3}], 0 offen offset:{32*F} {['', 'sc1', 'nt', 'sc0 sc1'][OPT.get('outsc', 0)]}".rstrip())
    a(f"s_cmp_eq_u32 s{S_KG}, 0")
    a(f"s_cbranch_scc1 {L}")
    finish((3, 4), (0, 1, 2))
    if G.STAMPS: a("s_waitcnt vmcnt(0)")
    a("s_endpgm")
    a.label(L)
    a.reset_counters()
    finish((0, 1, 2), (3, 4))
    probe_spin(a)
    a.reset_counters()

def code_prefetch(a):
    L = uid("cp")
    a(f"s_cmp_lg_u32 s{S_W}, 3")
    a(f"s_cbranch_scc1 {L}_skip")
    a(f"s_getpc_b64 s[{T4}:{T4+1}]")
    a.label(L)
    a(f"s_and_b32 s{T0}, s{S_I}, 7")
    a(f"s_lshl_b32 s{T0}, s{T0}, 13")
    a("v_lshlrev_b32 v251, 7, v1")
    a(f"v_add_u32 v251, s{T0}, v251")
    a(f"v_min_u32 v251, L_end-{L}-4, v251")
    vm = list(a.vm)
    a(f"global_load_dword v251, v251, s[{T4}:{T4+1}]")
    a.vm = vm
    a.label(f"{L}_skip")

def build():
    if OPT.get('fine2'):
        G_mark = G.mark
    OPT['mega'] = True
    LDS = 163840
    name = NAME + "_kernel"
    a = Asm()
    if G.STAMPS or OPT.get('probe'): a("s_memrealtime s[94:95]")
    a("s_cmp_ge_u32 s2, 256")
    a("s_cbranch_scc1 L_end")
    prologue_ids(a)
    CTX['k'] = 0; CTX['slot'] = 0
    stage1g(a, "s1"); mark(a)
    st = stage_attn(a, "attn")
    stage_final(a, "fin", st)
    if G.STAMPS: a("s_waitcnt vmcnt(0)")
    mark(a)
    a.label("L_end")
    return [(name, a.text())], LDS

DESCRIPTION = """;
; Hand-offs between workgroups go through d_ws: sc1 stores, drained, workgroup barrier, then an sc1 flag holding a
"""

def emit(ks, LDS):
    s = "\n".join(G.header_comment()) + "\n"
    s += f"; @launch grid=(256,1,1) block=(512,1,1) lds={LDS}\n"
    s += DESCRIPTION
    s += '.amdgcn_target "amdgcn-amd-amdhsa--gfx950"\n.text\n'
    for name, body in ks:
        s += G.kernel_text(name, body, 256, LDS)
    s += '.section .rodata,"a"\n'
    for name, _ in ks:
        s += ".p2align 6\n" + G.descriptor(name)
    return s

if __name__ == "__main__":
    if "stamps" in sys.argv: G.STAMPS = True
    for arg in sys.argv[1:]:
        if "=" in arg:
            k, v = arg.split("="); OPT[k] = int(v)
    ks, LDS = build()
    sys.stdout.write(emit(ks, LDS))
```

```python
import sys
import gen as G
from gen import mark4
from gen import (Asm, NAME, SIZES, srd, vr, uid, OPT, mark, stamp, CTX, dpp_sum16, WF_TILE,
                 P_AX, P_WQKV, P_WO, P_W1, P_B1, P_W2, P_B2, P_GW, P_OUT, P_DBG, P_WS,
                 SRD_A, SRD_B, SRD_WS, SRD_C, S_W, S_IDX, S_X, S_I, T0, T1, T2, T3, T4, T5, T6, T7,
                 S_RB, S_CJ, S_MASK, S_NONCE, nonce_post, nonce_get, publish, wait_flags)

WS_ST   = 0x0000000
WS_CS   = 0x0010000
WS_B1   = 0x0012000
WS_G    = G.WS_G
WS_QKV  = G.WS_QKV
WS_H, WS_O, WS_WF, WS_FLAG = G.WS_H, G.WS_O, G.WS_WF, G.WS_FLAG
FS, FW, FQ, FH, FO, FC = 0, 2048, 3072, 5120, 7168, 9216
PST = 3104
LB = 98304
LK, LV, LONES = LB, LB + 10*PST, LB + 20*PST
RING = [0, 40960, 81920, 122880]
WSLOT = 40960
SRD_D = 60
S_KX, S_KQ, S_K1 = 58, 59, 80
S_QB = 61
S_FHO, S_HBO = 86, 87
S_ARB, S_AHP, S_LW = 88, 89, 90

V_FLG = 250
def flag_setup(a):
    a(f"v_mov_b32 v{V_FLG}, 0x7ffffff0")
    a(f"v_cmp_eq_u32 s[{T4}:{T4+1}], 0, v0")
    a(f"v_cndmask_b32 v{V_FLG}, v{V_FLG}, 0, s[{T4}:{T4+1}]")

def flag_store(a, sflag, v):
    a(f"v_mov_b32 v{v}, s{S_NONCE}")
    a(f"buffer_store_dword v{v}, v{V_FLG}, s[{SRD_WS}:{SRD_WS+3}], s{sflag} offen sc1", tag='flag')

def poll_issue(a, voff, vval, tag):
    a(f"buffer_load_dword v{vval}, v{voff}, s[{SRD_WS}:{SRD_WS+3}], 0 offen sc1", tag=tag)

def poll_check(a, voff, vval, tag):
    L = uid("pc")
    a.wait_vm(tag)
    keep = list(a.vm)
    a(f"v_cmp_ne_u32 vcc, s{S_NONCE}, v{vval}")
    a("s_nop 4")
    a(f"s_cbranch_vccz {L}_ok")
    if OPT.get('fastpoll', 0):
        vs = [vval, 244, 245]
        ld = lambda v: a(f"buffer_load_dword v{v}, v{voff}, s[{SRD_WS}:{SRD_WS+3}], 0 offen sc1")
        for v in vs:
            ld(v); a("s_sleep 2")
        a.label(L)
        for v in vs:
            a("s_waitcnt vmcnt(2)")
            a(f"v_cmp_ne_u32 vcc, s{S_NONCE}, v{v}")
            a("s_nop 4")
            a(f"s_cbranch_vccz {L}_dr")
            ld(v)
            a("s_sleep 2")
        a(f"s_branch {L}")
        a.label(f"{L}_dr")
    else:
        a.label(L)
        a("s_sleep 1")
        a(f"buffer_load_dword v{vval}, v{voff}, s[{SRD_WS}:{SRD_WS+3}], 0 offen sc1")
        a("s_waitcnt vmcnt(0)")
        a(f"v_cmp_ne_u32 vcc, s{S_NONCE}, v{vval}")
        a("s_nop 4")
        a(f"s_cbranch_vccnz {L}")
    a.label(f"{L}_ok")
    a.vm = keep

def poll_recheck(a, voff, vval):
    L = uid("pr")
    keep = list(a.vm)
    a.label(L)
    a(f"v_cmp_ne_u32 vcc, s{S_NONCE}, v{vval}")
    a("s_nop 4")
    a(f"s_cbranch_vccz {L}_ok")
    a("s_sleep 1")
    a(f"buffer_load_dword v{vval}, v{voff}, s[{SRD_WS}:{SRD_WS+3}], 0 offen sc1")
    a("s_waitcnt vmcnt(0)")
    a(f"s_branch {L}")
    a.label(f"{L}_ok")
    a.vm = keep

def probe(a, n):
    if OPT.get('probe') != n: return
    a("s_memrealtime s[92:93]")
    a("s_waitcnt lgkmcnt(0)")
    a("s_sub_u32 s91, s92, s94")

def probe_spin(a):
    if not OPT.get('probe'): return
    L = uid("ps")
    a("s_cmp_lg_u32 s2, 77")
    a(f"s_cbranch_scc1 {L}_e")
    a("s_waitcnt vmcnt(0)")
    a("s_memrealtime s[92:93]")
    a("s_waitcnt lgkmcnt(0)")
    if OPT['probe'] == 9: a("s_sub_u32 s91, s92, s94")
    a("s_lshl_b32 s91, s91, 2")
    a("s_mov_b32 s95, s92")
    a.label(L)
    a("s_memrealtime s[92:93]")
    a("s_waitcnt lgkmcnt(0)")
    a("s_sub_u32 s93, s92, s95")
    a("s_cmp_lt_u32 s93, s91")
    a(f"s_cbranch_scc1 {L}")
    a.label(f"{L}_e")

def prologue_ids(a):
    a("s_load_dwordx16 s[4:19], s[0:1], 0")
    a("s_load_dwordx8 s[20:27], s[0:1], 64")
    a("v_lshrrev_b32 v2, 6, v0")
    a("v_and_b32 v1, 63, v0")
    a(f"v_readfirstlane_b32 s{S_W}, v2")
    a(f"s_and_b32 s{S_X}, s2, 7")
    a(f"s_lshr_b32 s{S_I}, s2, 3")
    if OPT.get('cpf', 2) >= 2: code_prefetch(a)
    a(f"s_lshr_b32 s{T0}, s{S_X}, 2")
    a(f"s_lshl_b32 s{T0}, s{T0}, 3")
    a(f"s_and_b32 s{T1}, s{S_I}, 7")
    a(f"s_add_u32 s{S_RB}, s{T0}, s{T1}")
    a(f"s_and_b32 s{T0}, s{S_X}, 3")
    a(f"s_lshl_b32 s{T0}, s{T0}, 2")
    a(f"s_lshr_b32 s{T1}, s{S_I}, 3")
    a(f"s_add_u32 s{S_CJ}, s{T0}, s{T1}")

def prologue_rest(a):
    srd(a, SRD_WS, P_WS, G.WS_SIZE)
    flag_setup(a)
    nonce_post(a)
    if OPT.get('cpf', 2) == 1: code_prefetch(a)
    stamp(a, 0, 0)
    if G.STAMPS:
        a("s_lshl_b32 s97, s2, 7")
        a(f"s_add_u32 s97, s97, {G.WS_STAMP + 15*4}")
        a("v_mov_b32 v254, s94")
        a(f"buffer_store_dword v254, off, s[{SRD_WS}:{SRD_WS+3}], s97")
        a.vm.pop()

RX, RG, RT, RO = 160, 168, 176, 186
VS = 128
S_ST, S_RPO, S_RPM = 82, 83, 84

def pre_address(a, lbl, two=False, rows=True):
    t0, t1, t2, t3, t4, t5 = range(RT, RT+6)
    if rows: row_address(a, two)
    repack_address(a, lbl)

def row_address(a, two):
    t0, t1, t2, t3, t4, t5 = range(RT, RT+6)
    srd(a, SRD_D, P_GW, SIZES['GW'])
    a(f"s_lshl_b32 s{T0}, s{S_RB}, 7")
    a(f"s_lshl_b32 s{T1}, s{S_CJ}, 3")
    a(f"s_add_u32 s{T0}, s{T0}, s{T1}")
    a(f"s_add_u32 s{T0}, s{T0}, s{S_W}")
    if two: a(f"s_sub_u32 s{T0}, s{T0}, 4")
    a(f"s_mul_i32 s{T1}, s{T0}, 1280")
    a(f"v_lshlrev_b32 v{RO+1}, 4, v1")
    a(f"v_add_u32 v{RO}, s{T1}, v{RO+1}")
    a(f"v_mov_b32 v{t0}, 0x7ffffff0")
    a(f"v_cmp_gt_u32 s[{T4}:{T4+1}], 16, v1")
    a(f"v_add_u32 v{t1}, 1024, v{RO}")
    a(f"v_cndmask_b32 v{RO+2}, v{t0}, v{t1}, s[{T4}:{T4+1}]")
    a(f"v_add_u32 v{t1}, 1024, v{RO+1}")
    a(f"v_cndmask_b32 v{RO+3}, v{t0}, v{t1}, s[{T4}:{T4+1}]")
    a(f"s_mov_b32 s85, s{T0}")

def repack_address(a, lbl):
    t0, t1, t2, t3, t4, t5 = range(RT, RT+6)
    a(f"s_mul_i32 s{T0}, s{S_I}, 3")
    a(f"s_lshl_b32 s{T1}, s{S_I}, 1")
    a(f"s_add_u32 s{T1}, s{T1}, 10")
    a(f"s_cmp_lt_u32 s{S_I}, 10")
    a(f"s_cselect_b32 s{T0}, s{T0}, s{T1}")
    a(f"s_cselect_b32 s{T1}, 3, 2")
    a(f"s_sub_u32 s{T2}, s{S_W}, 4")
    a(f"s_add_u32 s{S_ST}, s{T0}, s{T2}")
    a(f"s_cmp_lt_u32 s{T2}, s{T1}")
    a(f"s_cselect_b32 s{S_ST}, s{S_ST}, 0x100")
    a(f"s_cselect_b32 s{S_RPO}, 0, 0x7fff0000")
    a(f"s_mul_i32 s{T2}, s{T2}, 5120")
    a(f"s_add_u32 s{T2}, s{T2}, {RPL}")
    a(f"s_cselect_b32 s{S_RPM}, s{T2}, s{T2}") if False else None
    a(f"s_cmp_lt_u32 s{S_ST}, 74")
    a(f"s_cselect_b32 s{S_RPM}, s{T2}, {163840}")
    for n in range(5): a(f"v_mov_b32 v{VS+n}, 0")
    srd(a, SRD_C, P_W2, SIZES['W2'])
    a(f"s_cmp_ge_u32 s{S_ST}, 74")
    a(f"s_cbranch_scc1 {lbl}_go")
    a(f"s_movk_i32 s{T6}, 6554")
    a(f"s_movk_i32 s{T7}, 1280")
    a(f"s_mul_i32 s{T2}, s{S_X}, 160")
    a(f"s_cmp_ge_u32 s{S_ST}, 54")
    a(f"s_cbranch_scc1 {lbl}_wo")
    a(f"s_lshl_b32 s{T3}, s{S_ST}, 5")
    for n in range(5):
        a(f"v_add_u32 v{t0}, {64*n}, v1")
        a(f"v_mul_u32_u24 v{t1}, s{T6}, v{t0}")
        a(f"v_lshrrev_b32 v{t1}, 16, v{t1}")
        a(f"v_mul_u32_u24 v{t2}, 10, v{t1}")
        a(f"v_sub_u32 v{t2}, v{t0}, v{t2}")
        a(f"v_add_u32 v{t1}, s{T3}, v{t1}")
        a(f"v_mul_lo_u32 v{t1}, v{t1}, s{T7}")
        a(f"v_lshl_add_u32 v{t1}, v{t2}, 4, v{t1}")
        a(f"v_add_u32 v{VS+n}, s{T2}, v{t1}")
    a(f"s_branch {lbl}_go")
    a.label(f"{lbl}_wo")
    srd(a, SRD_C, P_WO, SIZES['WO'])
    a(f"s_sub_u32 s{T3}, s{S_ST}, 54")
    a(f"s_lshl_b32 s{T3}, s{T3}, 1")
    for n in range(5):
        a(f"v_add_u32 v{t0}, {64*n}, v1")
        a(f"v_mul_u32_u24 v{t1}, s{T6}, v{t0}")
        a(f"v_lshrrev_b32 v{t1}, 16, v{t1}")
        a(f"v_mul_u32_u24 v{t2}, 10, v{t1}")
        a(f"v_sub_u32 v{t2}, v{t0}, v{t2}")
        a(f"v_lshrrev_b32 v{t3}, 4, v{t1}")
        a(f"v_add_u32 v{t3}, s{T3}, v{t3}")
        a(f"v_and_b32 v{t1}, 15, v{t1}")
        a(f"v_mul_u32_u24 v{t4}, 20, v{t3}")
        a(f"v_add_u32 v{t4}, v{t4}, v{t1}")
        a(f"v_cmp_gt_u32 s[98:99], 32, v{t3}")
        a(f"v_subrev_u32 v{t3}, 32, v{t3}")
        a(f"v_lshlrev_b32 v{t3}, 2, v{t3}")
        a(f"v_bfe_u32 v{t5}, v{t1}, 2, 1")
        a(f"v_lshl_add_u32 v{t3}, v{t5}, 1, v{t3}")
        a(f"v_lshrrev_b32 v{t5}, 3, v{t1}")
        a(f"v_add_u32 v{t3}, v{t3}, v{t5}")
        a(f"v_mul_u32_u24 v{t3}, 20, v{t3}")
        a(f"v_and_b32 v{t1}, 3, v{t1}")
        a(f"v_add3_u32 v{t3}, v{t3}, v{t1}, 16")
        a(f"v_cndmask_b32 v{t1}, v{t3}, v{t4}, s[98:99]")
        a(f"v_mul_lo_u32 v{t1}, v{t1}, s{T7}")
        a(f"v_lshl_add_u32 v{t1}, v{t2}, 4, v{t1}")
        a(f"v_add_u32 v{VS+n}, s{T2}, v{t1}")
    a.label(f"{lbl}_go")

def row_issue2(a):
    a(f"v_add_u32 v{RO}, {4*1280}, v{RO}")
    a(f"v_mov_b32 v{RT}, 0x7ffffff0")
    a(f"v_add_u32 v{RT+1}, 1024, v{RO}")
    a(f"v_cmp_gt_u32 s[100:101], 16, v1")
    a(f"v_cndmask_b32 v{RO+2}, v{RT}, v{RT+1}, s[100:101]")
    a(f"buffer_load_dwordx4 {vr(RX2,4)}, v{RO}, s[{SRD_A}:{SRD_A+3}], 0 offen", tag='pl2')
    a(f"buffer_load_dwordx4 {vr(RX2+4,4)}, v{RO+2}, s[{SRD_A}:{SRD_A+3}], 0 offen", tag='pl2')

RX2 = 192
def pre_issue(a, rows=True):
    if rows:
        a(f"buffer_load_dwordx4 {vr(RX,4)}, v{RO}, s[{SRD_A}:{SRD_A+3}], 0 offen", tag='pl')
        a(f"buffer_load_dwordx4 {vr(RX+4,4)}, v{RO+2}, s[{SRD_A}:{SRD_A+3}], 0 offen", tag='pl')
        a(f"buffer_load_dwordx4 {vr(RG,4)}, v{RO+1}, s[{SRD_D}:{SRD_D+3}], 0 offen", tag='pl')
        a(f"buffer_load_dwordx4 {vr(RG+4,4)}, v{RO+3}, s[{SRD_D}:{SRD_D+3}], 0 offen", tag='pl')
    for n in range(5):
        a(f"s_add_u32 m0, s{S_RPM}, {n*1024}")
        a(f"buffer_load_dwordx4 v{VS+n}, s[{SRD_C}:{SRD_C+3}], s{S_RPO} offen lds", tag='pl')

def pre_thunks(a, RX=RX, tag='pl', VO=RO):
    su, sq, dt, one, t0, t1, t2 = range(RT, RT+7)
    T = []
    I = lambda txt: T.append(lambda: a(txt))
    T.append(lambda: a.wait_vm(tag))
    I(f"v_mov_b32 v{one}, 0x3f803f80")
    I(f"v_mov_b32 v{su}, 0"); I(f"v_mov_b32 v{sq}, 0"); I(f"v_mov_b32 v{dt}, 0")
    for d in range(8):
        I(f"v_dot2c_f32_bf16 v{su}, v{RX+d}, v{one}")
        I(f"v_dot2c_f32_bf16 v{sq}, v{RX+d}, v{RX+d}")
        I(f"v_dot2c_f32_bf16 v{dt}, v{RX+d}, v{RG+d}")
    for r in (8, 4, 2, 1):
        for v in (su, sq, dt):
            I(f"v_add_f32_dpp v{v}, v{v}, v{v} row_ror:{r} row_mask:0xf bank_mask:0xf")
    for op in ("v_permlane16_swap_b32", "v_permlane32_swap_b32"):
        for v, t in ((su, t0), (sq, t1), (dt, t2)): I(f"v_mov_b32 v{t}, v{v}")
        for v, t in ((su, t0), (sq, t1), (dt, t2)): I(f"{op} v{v}, v{t}")
        for v, t in ((su, t0), (sq, t1), (dt, t2)): I(f"v_add_f32 v{v}, v{v}, v{t}")
    I(f"v_mul_f32 v{su}, 0x3acccccd, v{su}")
    I(f"v_mul_f32 v{sq}, 0x3acccccd, v{sq}")
    I(f"v_mul_f32 v{dt}, 0xbfb8aa3b, v{dt}")
    I(f"v_fma_f32 v{sq}, -v{su}, v{su}, v{sq}")
    I(f"v_exp_f32 v{dt}, v{dt}")
    I(f"v_add_f32 v{sq}, 0x3727c5ac, v{sq}")
    I(f"v_add_f32 v{dt}, 1.0, v{dt}")
    I(f"v_rsq_f32 v{t1}, v{sq}")
    I(f"v_rcp_f32 v{dt}, v{dt}")
    I(f"v_mul_f32 v{t0}, v{su}, v{t1}")
    I(f"v_sub_f32 v{t0}, 0, v{t0}")
    I(f"v_mov_b32 v{VO}, 0x7ffffff0")
    I(f"v_cmp_eq_u32 s[100:101], 0, v1")
    I(f"v_cndmask_b32 v{VO}, v{VO}, 0, s[100:101]")
    I(f"s_lshl_b32 s98, s85, 3")
    I(f"s_add_u32 s98, s98, {WS_ST}")
    T.append(lambda: a(f"buffer_store_dwordx2 {vr(t0,2)}, v{VO}, s[{SRD_WS}:{SRD_WS+3}], s98 offen sc1", tag='pst'))
    I(f"s_lshl_b32 s98, s85, 2")
    I(f"s_add_u32 s98, s98, {WS_G}")
    T.append(lambda: a(f"buffer_store_dword v{dt}, v{VO}, s[{SRD_WS}:{SRD_WS+3}], s98 offen sc1", tag='pst'))
    return T

def rowstats_issue(a):
    XB, GW, o0, o1, t0 = 128, 108, 96, 97, 98
    srd(a, SRD_D, P_GW, SIZES['GW'])
    a(f"s_lshl_b32 s{T0}, s{S_RB}, 7")
    a(f"s_lshl_b32 s{T1}, s{S_W}, 4")
    a(f"s_add_u32 s85, s{T0}, s{T1}")
    a(f"v_lshrrev_b32 v{t0}, 4, v1")
    a(f"v_add_u32 v{t0}, s85, v{t0}")
    a(f"s_movk_i32 s{T1}, 1280")
    a(f"v_mul_lo_u32 v{o0}, v{t0}, s{T1}")
    a(f"v_and_b32 v{o1}, 15, v1")
    a(f"v_lshlrev_b32 v{o1}, 4, v{o1}")
    a(f"v_add_u32 v{o0}, v{o0}, v{o1}")
    for i in range(5):
        a(f"buffer_load_dwordx4 {vr(GW+4*i,4)}, v{o1}, s[{SRD_D}:{SRD_D+3}], 0 offen offset:{256*i}", tag='gw')
    for q in range(4):
        a(f"s_movk_i32 s{T2}, {q*4*1280}")
        for i in range(5):
            a(f"buffer_load_dwordx4 {vr(XB+20*q+4*i,4)}, v{o0}, s[{SRD_A}:{SRD_A+3}], s{T2} offen offset:{256*i}", tag=('x', q))

def rowstats_compute(a):
    XB, GW = 128, 108
    su, sq, dt, one, t0, t1, t2 = 98, 99, 100, 101, 102, 103, 104
    NMv, RSv, GV = 106, 107, 105
    a(f"v_mov_b32 v{one}, 0x3f803f80")
    a(f"v_and_b32 v{t2}, 15, v1")
    for q in range(4):
        a.wait_vm(('x', q))
        a(f"v_mov_b32 v{su}, 0"); a(f"v_mov_b32 v{sq}, 0"); a(f"v_mov_b32 v{dt}, 0")
        for d in range(20):
            x = XB + 20*q + d
            a(f"v_dot2c_f32_bf16 v{su}, v{x}, v{one}")
            a(f"v_dot2c_f32_bf16 v{sq}, v{x}, v{x}")
            a(f"v_dot2c_f32_bf16 v{dt}, v{x}, v{GW+d}")
        for k in (8, 4, 2, 1):
            for v in (su, sq, dt):
                a(f"v_add_f32_dpp v{v}, v{v}, v{v} row_ror:{k} row_mask:0xf bank_mask:0xf")
        a(f"v_mul_f32 v{su}, 0x3acccccd, v{su}")
        a(f"v_mul_f32 v{sq}, 0x3acccccd, v{sq}")
        a(f"v_mul_f32 v{dt}, 0xbfb8aa3b, v{dt}")
        a(f"v_fma_f32 v{sq}, -v{su}, v{su}, v{sq}")
        a(f"v_exp_f32 v{dt}, v{dt}")
        a(f"v_max_f32 v{sq}, 0, v{sq}")
        a(f"v_add_f32 v{sq}, 0x3727c5ac, v{sq}")
        a(f"v_add_f32 v{dt}, 1.0, v{dt}")
        a(f"v_rsq_f32 v{t1}, v{sq}")
        a(f"v_rcp_f32 v{dt}, v{dt}")
        a(f"v_mul_f32 v{t0}, v{su}, v{t1}")
        a(f"v_sub_f32 v{t0}, 0, v{t0}")
        a(f"v_cmp_eq_u32 s[{T4}:{T4+1}], {q}, v{t2}")
        a(f"v_cndmask_b32 v{NMv}, v{NMv}, v{t0}, s[{T4}:{T4+1}]")
        a(f"v_cndmask_b32 v{RSv}, v{RSv}, v{t1}, s[{T4}:{T4+1}]")
        a(f"v_cndmask_b32 v{GV}, v{GV}, v{dt}, s[{T4}:{T4+1}]")
    a(f"v_lshrrev_b32 v{t0}, 4, v1")
    a(f"v_lshl_add_u32 v{t0}, v{t2}, 2, v{t0}")
    a(f"v_add_u32 v{t0}, s85, v{t0}")
    a(f"v_mov_b32 v{su}, 0x7ffffff0")
    a(f"v_cmp_gt_u32 s[{T4}:{T4+1}], 4, v{t2}")
    a(f"v_lshlrev_b32 v{t1}, 3, v{t0}")
    a(f"v_cndmask_b32 v{t1}, v{su}, v{t1}, s[{T4}:{T4+1}]")
    a(f"v_lshlrev_b32 v{t0}, 2, v{t0}")
    a(f"v_cndmask_b32 v{t0}, v{su}, v{t0}, s[{T4}:{T4+1}]")
    a(f"s_mov_b32 s{T0}, {WS_ST}")
    a(f"buffer_store_dwordx2 {vr(NMv,2)}, v{t1}, s[{SRD_WS}:{SRD_WS+3}], s{T0} offen sc1", tag='pst')
    a(f"s_mov_b32 s{T0}, {WS_G}")
    a(f"buffer_store_dword v{GV}, v{t0}, s[{SRD_WS}:{SRD_WS+3}], s{T0} offen sc1", tag='pst')

RPL = 147456
def repack_finish(a):
    D, VA, VD = 136, 134, 135
    L = uid("rf")
    a(f"v_mov_b32 v{VD}, 0x7ffffff0")
    a(f"s_cmp_ge_u32 s82, 74")
    a(f"s_cbranch_scc1 {L}")
    a(f"s_mul_i32 s{T0}, s{S_X}, {WF_TILE}")
    a(f"s_mul_i32 s{T1}, s82, 5120")
    a(f"s_add_u32 s{T0}, s{T0}, s{T1}")
    a(f"s_add_u32 s{T0}, s{T0}, {WS_WF}")
    a(f"v_lshlrev_b32 v{VD}, 4, v1")
    a(f"v_add_u32 v{VD}, s{T0}, v{VD}")
    a(f"v_lshrrev_b32 v{VA}, 5, v1")
    a(f"v_bfe_u32 v{D}, v1, 4, 1")
    a(f"v_lshlrev_b32 v{VA}, 4, v{VA}")
    a(f"v_lshl_add_u32 v{VA}, v{D}, 2, v{VA}")
    a(f"v_bfe_u32 v{D}, v1, 2, 2")
    a(f"v_add_u32 v{VA}, v{VA}, v{D}")
    a(f"v_mul_u32_u24 v{VA}, 160, v{VA}")
    a(f"v_and_b32 v{D}, 3, v1")
    a(f"v_lshl_add_u32 v{VA}, v{D}, 3, v{VA}")
    a(f"v_add_u32 v{VA}, s{S_RPM}, v{VA}")
    lg = list(a.lg)
    for F in range(5):
        for rd in range(2):
            a(f"ds_read_b64_tr_b16 {vr(D+4*F+2*rd,2)}, v{VA} offset:{rd*1280 + F*32}")
    a("s_waitcnt lgkmcnt(0)")
    a.lg = lg
    a.label(L)
    for F in range(5):
        a(f"s_movk_i32 s{T1}, {F*1024}")
        a(f"buffer_store_dwordx4 {vr(D+4*F,4)}, v{VD}, s[{SRD_WS}:{SRD_WS+3}], s{T1} offen sc1", tag='pst')

def nonce_issue(a, v):
    a(f"v_mov_b32 v{v+1}, 0")
    a(f"global_load_dword v{v}, v{v+1}, s[{P_DBG}:{P_DBG+1}] sc1", tag='nonce')

def nonce_check(a, v):
    L = uid("ng")
    a.wait_vm('nonce')
    keep = list(a.vm)
    a.label(L)
    a(f"v_readfirstlane_b32 s{S_NONCE}, v{v}")
    a(f"s_cmp_lg_u32 s{S_NONCE}, 0")
    a(f"s_cbranch_scc1 {L}_ok")
    a("s_sleep 2")
    a(f"global_load_dword v{v}, v{v+1}, s[{P_DBG}:{P_DBG+1}] sc1")
    a("s_waitcnt vmcnt(0)")
    a(f"s_branch {L}")
    a.label(f"{L}_ok")
    a.vm = keep

def pre_flags(a, v, stats=True):
    if stats:
        a(f"s_lshl_b32 s{T0}, s{S_RB}, 7")
        a(f"s_add_u32 s{T0}, s{T0}, {WS_FLAG + FS}")
        flag_store(a, T0, v)
    a(f"s_lshl_b32 s{T0}, s{S_X}, 7")
    a(f"s_lshl_b32 s{T1}, s{S_I}, 2")
    a(f"s_add_u32 s{T0}, s{T0}, s{T1}")
    a(f"s_add_u32 s{T0}, s{T0}, {WS_FLAG + FW}")
    flag_store(a, T0, v)

CD = 16
def colsum_issue(a):
    srd(a, SRD_B, P_W1, SIZES['W1'])
    srd(a, SRD_C, P_B1, SIZES['B1']) if False else None
    t0, t1, VO = 2, 3, 5
    a(f"v_lshrrev_b32 v{t0}, 4, v0")
    a(f"s_movk_i32 s{T0}, 3456")
    a(f"v_mul_lo_u32 v{t0}, v{t0}, s{T0}")
    a(f"v_and_b32 v{t1}, 15, v0")
    a(f"v_lshl_add_u32 v{t0}, v{t1}, 4, v{t0}")
    a(f"s_lshl_b32 s{T1}, s{S_RB}, 8")
    a(f"v_add_u32 v{VO}, s{T1}, v{t0}")
    a(f"s_cmp_lt_u32 s{S_RB}, 14")
    a(f"s_cselect_b32 s{T3}, 0, 0x7fff0000")
    for p in range(20):
        a(f"s_add_u32 s{T2}, s{T3}, {p*32*3456}")
        a(f"buffer_load_dwordx4 {vr(CD+4*p,4)}, v{VO}, s[{SRD_B}:{SRD_B+3}], s{T2} offen", tag=('cs', p))

def colsum_compute(a, lbl):
    t0, t1, t2 = 2, 3, 4
    ACC, LO, HI = 8, 6, 7
    srd(a, SRD_B, P_B1, SIZES['B1'])
    a(f"s_lshl_b32 s{T1}, s{S_RB}, 8")
    a(f"v_lshlrev_b32 v{t2}, 1, v0")
    a(f"v_add_u32 v{t2}, s{T1}, v{t2}")
    a(f"buffer_load_ushort v{t2}, v{t2}, s[{SRD_B}:{SRD_B+3}], 0 offen", tag='b1')
    a(f"v_mov_b32 v{LO}, 0x00003f80")
    a(f"v_mov_b32 v{HI}, 0x3f800000")
    for e in range(8): a(f"v_mov_b32 v{ACC+e}, 0")
    for p in range(20):
        a.wait_vm(('cs', p))
        for d in range(4):
            a(f"v_dot2c_f32_bf16 v{ACC+2*d}, v{CD+4*p+d}, v{LO}")
            a(f"v_dot2c_f32_bf16 v{ACC+2*d+1}, v{CD+4*p+d}, v{HI}")
    a(f"v_lshrrev_b32 v{t0}, 4, v0")
    a(f"v_lshlrev_b32 v{t0}, 9, v{t0}")
    a(f"v_and_b32 v{t1}, 15, v0")
    a(f"v_lshl_add_u32 v{t0}, v{t1}, 5, v{t0}")
    a(f"ds_write_b128 v{t0}, {vr(ACC,4)}")
    a(f"ds_write_b128 v{t0}, {vr(ACC+4,4)} offset:16")
    a("s_waitcnt lgkmcnt(0)")
    a("s_barrier")
    a(f"v_and_b32 v{t0}, 127, v0")
    a(f"v_lshlrev_b32 v{t0}, 2, v{t0}")
    for g in range(32):
        a(f"ds_read_b32 v{CD+g}, v{t0} offset:{g*512}")
    a("s_waitcnt lgkmcnt(0)")
    for g in range(0, 32, 2): a(f"v_add_f32 v{CD+g}, v{CD+g}, v{CD+g+1}")
    for g in range(2, 32, 2): a(f"v_add_f32 v{CD}, v{CD}, v{CD+g}")
    a.wait_vm('b1')
    a(f"v_lshlrev_b32 v{t2}, 16, v{t2}")
    a(f"s_lshl_b32 s{T1}, s{S_RB}, 9")
    a(f"v_add_u32 v{t0}, s{T1}, v{t0}")
    a(f"v_mov_b32 v{t1}, 0x7ffffff0")
    a(f"v_mov_b32 v{LO}, 128")
    a(f"v_cmp_gt_u32 s[{T4}:{T4+1}], v{LO}, v0")
    a(f"v_cndmask_b32 v{t0}, v{t1}, v{t0}, s[{T4}:{T4+1}]")
    a(f"s_mov_b32 s{T0}, 0x7fff0000")
    a(f"s_cmp_lt_u32 s{S_RB}, 14")
    a(f"s_cselect_b32 s{T2}, {WS_CS}, s{T0}")
    a(f"s_cselect_b32 s{T3}, {WS_B1}, s{T0}")
    a(f"buffer_store_dword v{CD}, v{t0}, s[{SRD_WS}:{SRD_WS+3}], s{T2} offen sc1", tag='pst')
    a(f"buffer_store_dword v{t2}, v{t0}, s[{SRD_WS}:{SRD_WS+3}], s{T3} offen sc1", tag='pst')

S_FRB, S_FCJ = 73, 74
S_WM, S_WG = 75, 76

def final_coords(a):
    a(f"s_lshr_b32 s{T0}, s{S_X}, 1")
    a(f"s_lshl_b32 s{T0}, s{T0}, 3")
    a(f"s_and_b32 s{T1}, s{S_I}, 7")
    a(f"s_add_u32 s{S_FRB}, s{T0}, s{T1}")
    a(f"s_and_b32 s{T0}, s{S_X}, 1")
    a(f"s_lshl_b32 s{T0}, s{T0}, 2")
    a(f"s_lshr_b32 s{T1}, s{S_I}, 3")
    a(f"s_add_u32 s{S_FCJ}, s{T0}, s{T1}")
    a(f"s_mul_i32 s{S_WM}, s{S_W}, 5120")
    a(f"s_mul_i32 s{T0}, s{S_FCJ}, {WF_TILE}")
    a(f"s_add_u32 s{T0}, s{T0}, s{S_WM}")
    a(f"s_add_u32 s{S_WG}, s{T0}, {WS_WF}")

def dma_wf(a, g, vw):
    S_KW = 77
    a(f"s_add_u32 m0, s{S_WM}, {RING[g % 4]}")
    a(f"s_add_u32 s{S_KW}, s{S_WG}, {0 if OPT.get('hotfw') else g*WSLOT}")
    if g == 9:
        a(f"s_cmp_ge_u32 s{S_W}, 2")
        a(f"s_cselect_b32 s{S_KW}, 0x7fff0000, s{S_KW}")
    for n in range(4):
        a(f"buffer_load_dwordx4 v{vw}, s[{SRD_WS}:{SRD_WS+3}], s{S_KW} offen offset:{n*1024} sc1 lds", tag=('W', g))
    a(f"s_add_u32 m0, m0, 4096")
    a(f"s_add_u32 s{S_KW}, s{S_KW}, 4096")
    a(f"buffer_load_dwordx4 v{vw}, s[{SRD_WS}:{SRD_WS+3}], s{S_KW} offen sc1 lds", tag=('W', g))

SL2 = 32768
def attn_coords(a):
    a(f"s_lshl_b32 s{T0}, s{S_X}, 1")
    a(f"s_and_b32 s{T1}, s{S_I}, 1")
    a(f"s_add_u32 s{S_AHP}, s{T0}, s{T1}")
    a(f"s_lshr_b32 s{S_ARB}, s{S_I}, 1")
    a(f"s_lshr_b32 s78, s{S_W}, 2")
    a(f"s_and_b32 s79, s{S_W}, 3")

def fq_poll_offsets(a, vo, vt):
    a(f"v_lshrrev_b32 v{vo}, 4, v1")
    a(f"s_sub_u32 s{T0}, s{S_ARB}, 2")
    a(f"v_add_u32 v{vo}, s{T0}, v{vo}")
    a(f"v_and_b32 v{vt}, 15, v1")
    a(f"v_cmp_le_i32 s[{T4}:{T4+1}], 0, v{vo}")
    a(f"v_cmp_gt_u32 s[{T2}:{T2+1}], 15, v{vt}")
    a(f"s_and_b64 s[{T4}:{T4+1}], s[{T4}:{T4+1}], s[{T2}:{T2+1}]")
    a(f"s_mov_b32 s{T2}, -1")
    a(f"s_mov_b32 s{T2+1}, 0xffff")
    a(f"s_and_b64 s[{T4}:{T4+1}], s[{T4}:{T4+1}], s[{T2}:{T2+1}]")
    a(f"v_lshlrev_b32 v{vo}, 7, v{vo}")
    a(f"v_lshl_add_u32 v{vo}, v{vt}, 2, v{vo}")
    a(f"s_lshl_b32 s{T0}, s{S_ARB}, 7")
    a(f"v_mov_b32 v{vt}, s{T0}")
    a(f"v_cndmask_b32 v{vo}, v{vt}, v{vo}, s[{T4}:{T4+1}]")
    a(f"v_add_u32 v{vo}, {WS_FLAG + FQ}, v{vo}")

def attn_q_loads(a, t0, t1, t2, t3, AQ0=20, AQ1=24):
    a(f"s_lshl_b32 s{T0}, s{S_ARB}, 2")
    a(f"s_add_u32 s{S_QB}, s{T0}, s79")
    a(f"v_and_b32 v{t0}, 31, v1")
    a(f"v_lshrrev_b32 v{t1}, 5, v1")
    a(f"s_lshl_b32 s{T1}, s{S_QB}, 8")
    a(f"v_lshlrev_b32 v{t2}, 3, v{t0}")
    a(f"v_add_u32 v{t2}, s{T1}, v{t2}")
    a(f"v_lshl_add_u32 v{t3}, v{t1}, 15, v{t2}")
    a(f"s_lshl_b32 s{T2}, s{S_AHP}, 1")
    a(f"s_add_u32 s{T2}, s{T2}, s78")
    a(f"s_mul_i32 s{T2}, s{T2}, {5*16384}")
    a(f"s_add_u32 s{T1}, s{T2}, {WS_QKV}")
    a(f"buffer_load_dwordx2 {vr(AQ0,2)}, v{t3}, s[{SRD_WS}:{SRD_WS+3}], s{T1} offen sc1", tag='q')
    a(f"s_add_u32 s{T1}, s{T1}, 16384")
    a(f"buffer_load_dwordx2 {vr(AQ0+2,2)}, v{t3}, s[{SRD_WS}:{SRD_WS+3}], s{T1} offen sc1", tag='q')
    a(f"s_add_u32 s{T1}, s{T1}, {3*16384}")
    a(f"buffer_load_dwordx2 {vr(AQ1,2)}, v{t2}, s[{SRD_WS}:{SRD_WS+3}], s{T1} offen sc1", tag='q')

def fw_poll_offsets(a, vo):
    a(f"v_and_b32 v{vo}, 31, v1")
    a(f"v_lshlrev_b32 v{vo}, 2, v{vo}")
    a(f"s_lshl_b32 s{T1}, s{S_FCJ}, 7")
    a(f"s_add_u32 s{T1}, s{T1}, {WS_FLAG + FW}")
    a(f"v_add_u32 v{vo}, s{T1}, v{vo}")

def wf_first_slots(a, vw):
    a(f"v_lshlrev_b32 v{vw}, 4, v1")
    a(f"s_mul_i32 s{T0}, s{S_W}, 10240")
    a(f"s_mul_i32 s{T1}, s{S_FCJ}, {WF_TILE}")
    a(f"s_add_u32 s{T1}, s{T1}, s{T0}")
    a(f"s_add_u32 s{T1}, s{T1}, {WS_WF}")
    for g in range(2):
        for part in range(3):
            a(f"s_add_u32 m0, s{T0}, {RING[g] + part*4096}")
            a(f"s_add_u32 s{T2}, s{T1}, {g*WSLOT + part*4096}")
            for n in range(4 if part < 2 else 2):
                a(f"buffer_load_dwordx4 v{vw}, s[{SRD_WS}:{SRD_WS+3}], s{T2} offen offset:{n*1024} sc1 lds", tag=('W', g))

QL = 81920
def attn_stage_q(a, vd):
    a(f"v_lshlrev_b32 v{vd}, 4, v1")
    a(f"s_mul_i32 s{T2}, s{S_AHP}, {10*16384}")
    a(f"s_lshl_b32 s{T0}, s{S_ARB}, 10")
    a(f"s_add_u32 s{T2}, s{T2}, s{T0}")
    a(f"s_add_u32 s{T2}, s{T2}, {WS_QKV}")
    for k in range(3):
        a(f"s_add_u32 s{T0}, s{S_W}, {4*k}")
        a(f"s_lshl_b32 s{T1}, s{T0}, 14")
        a(f"s_add_u32 s{T1}, s{T1}, s{T2}")
        a(f"s_lshl_b32 s{T3}, s{T0}, 10")
        a(f"s_add_u32 s{T3}, s{T3}, {QL}")
        if k == 2:
            a(f"s_cmp_lt_u32 s{T0}, 10")
            a(f"s_cselect_b32 s{T1}, s{T1}, 0x7fff0000")
        a(f"s_mov_b32 m0, s{T3}")
        a(f"buffer_load_dwordx4 v{vd}, s[{SRD_WS}:{SRD_WS+3}], s{T1} offen sc1 lds", tag='q')

def touch_wf(a, v0_, v1_):
    a(f"s_and_b32 s{T0}, s{S_I}, 7")
    a(f"s_mul_i32 s{T0}, s{T0}, {370*128}")
    a(f"s_mul_i32 s{T1}, s{S_FCJ}, {WF_TILE}")
    a(f"s_add_u32 s{T0}, s{T0}, s{T1}")
    a(f"s_add_u32 s{T0}, s{T0}, {WS_WF}")
    a(f"v_lshlrev_b32 v{v0_}, 7, v0")
    a(f"v_mov_b32 v{v1_}, 370")
    a(f"v_cmp_gt_u32 s[{T4}:{T4+1}], v{v1_}, v0")
    a(f"v_mov_b32 v{v1_}, 0x7ffffff0")
    a(f"v_cndmask_b32 v{v0_}, v{v1_}, v{v0_}, s[{T4}:{T4+1}]")
    a(f"buffer_load_dword v251, v{v0_}, s[{SRD_WS}:{SRD_WS+3}], s{T0} offen sc1", tag='touch')

def touch_h(a, v0_, v1_):
    a(f"s_lshl_b32 s{T0}, s{S_FRB}, 1")
    a(f"s_mul_i32 s{T0}, s{T0}, {108*1024}")
    a(f"s_lshr_b32 s{T1}, s{S_I}, 3")
    a(f"s_mul_i32 s{T1}, s{T1}, {432*128}")
    a(f"s_add_u32 s{T0}, s{T0}, s{T1}")
    a(f"s_add_u32 s{T0}, s{T0}, {WS_H}")
    a(f"v_lshlrev_b32 v{v0_}, 7, v0")
    a(f"v_mov_b32 v{v1_}, 432")
    a(f"v_cmp_gt_u32 s[{T4}:{T4+1}], v{v1_}, v0")
    a(f"v_mov_b32 v{v1_}, 0x7ffffff0")
    a(f"v_cndmask_b32 v{v0_}, v{v1_}, v{v0_}, s[{T4}:{T4+1}]")
    a(f"buffer_load_dword v251, v{v0_}, s[{SRD_WS}:{SRD_WS+3}], s{T0} offen sc1", tag='touch')

def attn_stage_kv(a, t0, t1, t2, vd, parts=(0, 1)):
    a(f"s_sub_u32 s{T0}, s{S_ARB}, 2")
    a(f"s_lshl_b32 s{T0}, s{T0}, 7")
    a(f"s_mul_i32 s{T1}, s{S_W}, 96")
    a(f"s_add_u32 s{T0}, s{T0}, s{T1}")
    a(f"v_lshlrev_b32 v{t0}, 1, v1")
    a(f"v_add_u32 v{t0}, s{T0}, v{t0}")
    a(f"v_lshlrev_b32 v{t1}, 3, v{t0}")
    a(f"v_mov_b32 v{t2}, 0x7ffffff0")
    a(f"v_cmp_le_i32 s[{T4}:{T4+1}], 0, v{t0}")
    a(f"v_cndmask_b32 v{vd}, v{t2}, v{t1}, s[{T4}:{T4+1}]")
    a(f"s_mul_i32 s{T2}, s{S_AHP}, {10*16384}")
    a(f"s_add_u32 s{T2}, s{T2}, {WS_QKV + 160*16384}")
    a(f"s_mul_i32 s{T3}, s{S_W}, 768")
    a("s_mov_b32 exec_hi, 0xffff")
    for ty in parts:
        for p in range(10):
            a(f"s_add_u32 m0, s{T3}, {(LK if ty == 0 else LV) + p*PST}")
            a(f"s_add_u32 s{T6}, s{T2}, {(ty*160 + p)*16384}")
            a(f"buffer_load_dwordx4 v{vd}, s[{SRD_WS}:{SRD_WS+3}], s{T6} offen sc1 lds", tag=('kv', ty))
    a("s_mov_b32 exec_hi, -1")

def stage1g(a, lbl):
    SRD_E, S_M = 64, 68
    VXD, VWD, VW2 = 2, 6, 10
    VXF, VWF = 14, 22
    t0, t1, t2, t3 = 26, 27, 28, 29
    VP, VPV = 30, 31
    FB = [32, 48]
    ACC = 64
    CSR, B1R, ST, TD = 128, 160, 192, 196
    S_FQ, S_FH, S_ACT, S_HB = 69, 70, 71, 72
    a(f"s_and_b32 s{S_LW}, s{S_W}, 3")
    a(f"s_cmp_ge_u32 s{S_CJ}, 15")
    a(f"s_cbranch_scc1 {lbl}_idle")
    a(f"s_lshl_b32 s{T0}, s{S_RB}, 7")
    a(f"s_lshr_b32 s{T1}, s{S_LW}, 1")
    a(f"s_lshl_b32 s{T1}, s{T1}, 6")
    a(f"s_add_u32 s{T0}, s{T0}, s{T1}")
    a(f"s_and_b32 s{T1}, s{S_LW}, 1")
    a(f"s_add_u32 s{T0}, s{T0}, s{T1}")
    a(f"v_lshrrev_b32 v{t0}, 3, v1")
    a(f"v_lshlrev_b32 v{t0}, 1, v{t0}")
    a(f"v_add_u32 v{t0}, s{T0}, v{t0}")
    a(f"s_movk_i32 s{T2}, 1280")
    a(f"v_mul_lo_u32 v{t0}, v{t0}, s{T2}")
    a(f"v_lshrrev_b32 v{t1}, 4, v1")
    a(f"v_and_b32 v{t2}, 7, v1")
    a(f"v_xor_b32 v{t2}, v{t2}, v{t1}")
    a(f"v_xor_b32 v{t3}, 4, v{t2}")
    for i in range(4):
        a(f"v_lshl_add_u32 v{VXD+i}, v{t2 if i % 2 == 0 else t3}, 4, v{t0}")
        if i: a(f"v_add_u32 v{VXD+i}, {i*(16*1280-1024)}, v{VXD+i}")
    a(f"s_lshl_b32 s{T0}, s{S_LW}, 4")
    a(f"v_lshrrev_b32 v{t0}, 4, v1")
    a(f"v_add_u32 v{t1}, s{T0}, v{t0}")
    a(f"v_bfe_u32 v{t2}, v1, 2, 2")
    a(f"v_xor_b32 v{t2}, v{t2}, v{t0}")
    a(f"v_and_b32 v{t3}, 3, v1")
    a(f"v_lshl_add_u32 v{t2}, v{t2}, 2, v{t3}")
    a(f"v_lshlrev_b32 v{t2}, 4, v{t2}")
    a(f"s_lshl_b32 s{T0}, s{S_CJ}, 8")
    a(f"v_add_u32 v{t2}, s{T0}, v{t2}")
    def w_offsets(vd, pitch):
        a(f"s_movk_i32 s{T2}, {pitch}")
        a(f"v_mul_lo_u32 v{t3}, v{t1}, s{T2}")
        a(f"v_add_u32 v{vd}, v{t3}, v{t2}")
        for i in range(1, 4): a(f"v_add_u32 v{vd+i}, {i*(4*pitch-1024)}, v{vd}")
    w_offsets(VWD, 3840)
    w_offsets(VW2, 3456)
    a(f"s_lshl_b32 s{S_M}, s{S_LW}, 12")
    if OPT.get('rot', 1):
        a(f"s_lshr_b32 s{T0}, s{S_I}, 3")
        a(f"s_mul_i32 s{T0}, s{T0}, 10")
        a(f"s_and_b32 s{T1}, s{S_I}, 7")
        a(f"s_mul_i32 s{T1}, s{T1}, 5")
        a(f"s_add_u32 s{T0}, s{T0}, s{T1}")
        a(f"s_lshr_b32 s{T0}, s{T0}, 2")
        a(f"s_sub_u32 s{T1}, s{T0}, 10")
        a(f"s_cmp_ge_u32 s{T0}, 10")
        a(f"s_cselect_b32 s{T0}, s{T1}, s{T0}")
    else:
        a(f"s_mov_b32 s{T0}, 0")
    def addmod(dst, src, k):
        a(f"s_add_u32 s{dst}, s{src}, {k}")
        a(f"s_sub_u32 s{T2}, s{dst}, 10")
        a(f"s_cmp_ge_u32 s{dst}, 10")
        a(f"s_cselect_b32 s{dst}, s{T2}, s{dst}")
    REUSE = OPT.get('xreuse', 1)
    if REUSE:
        addmod(T1, T0, 9)
        addmod(T3, T0, 6)
        a(f"s_cmp_ge_u32 s{S_W}, 4")
        a(f"s_cselect_b32 s{T1}, s{T3}, s{T1}")
        a(f"s_mul_i32 s{S_K1}, s{T1}, {64*3456}")
        a(f"s_lshl_b32 s{S_KX}, s{T0}, 7")
        a(f"s_mul_i32 s{S_KQ}, s{T0}, {64*3840}")
    else:
        addmod(T1, T0, 3)
        a(f"s_cmp_ge_u32 s{S_W}, 4")
        a(f"s_cselect_b32 s{T0}, s{T0}, s{T1}")
        a(f"s_lshl_b32 s{S_KX}, s{T0}, 7")
        a(f"s_mul_i32 s{S_KQ}, s{T0}, {64*3840}")
        a(f"s_mul_i32 s{S_K1}, s{T0}, {64*3456}")
    def adv(sreg, step, wrap):
        if OPT.get('hot'): return
        a(f"s_add_u32 s{sreg}, s{sreg}, {step}")
        a(f"s_cmp_eq_u32 s{sreg}, {wrap}")
        a(f"s_cselect_b32 s{sreg}, 0, s{sreg}")
    first = {'x': True, 'q': True, '1': True}
    slot = lambda tau: (tau + 3) % 4
    def dma_list(tau):
        out = []
        if OPT.get('g_nodma') and tau >= 4: return out
        if OPT.get('nodma1') and tau >= 13: return out
        def mk(kind, i):
            def f():
                if kind == 'x': vd, sr, sk, off, step, wrap = VXD, SRD_A, S_KX, 0, 128, 1280
                elif kind == 'q': vd, sr, sk, off, step, wrap = VWD, SRD_B, S_KQ, 16384, 64*3840, 640*3840
                else: vd, sr, sk, off, step, wrap = VW2, SRD_E, S_K1, 16384, 64*3456, 640*3456
                if i == 0:
                    a(f"s_add_u32 m0, s{S_M}, {slot(tau)*SL2 + off}")
                    if not first[kind] and not (OPT.get('hot1') and tau >= 10) and not (OPT.get('hotx') and kind == 'x' and tau >= 10) and not (OPT.get('hotw') and kind == '1'): adv(sk, step, wrap)
                    first[kind] = False
                a(f"buffer_load_dwordx4 v{vd+i}, s[{sr}:{sr+3}], s{sk} offen offset:{i*1024} lds", tag=('B', tau))
            return f
        if not (REUSE and 10 <= tau <= 13):
            for i in range(4): out.append(mk('x', i))
        for i in range(4): out.append(mk('q' if tau < 10 else '1', i))
        return out
    def dma_block(tau):
        for f in dma_list(tau): f()
    def frag_bases():
        a(f"s_and_b32 s{T0}, s{S_LW}, 1")
        a(f"s_lshl_b32 s{T0}, s{T0}, 13")
        a(f"v_and_b32 v{t0}, 31, v1")
        a(f"v_lshrrev_b32 v{t1}, 5, v1")
        a(f"v_bfe_u32 v{t2}, v1, 1, 3")
        a(f"v_lshlrev_b32 v{t0}, 7, v{t0}")
        a(f"v_add_u32 v{t0}, s{T0}, v{t0}")
        for s_ in range(4):
            a(f"v_or_b32 v{t3}, {2*s_}, v{t1}")
            a(f"v_xor_b32 v{t3}, v{t3}, v{t2}")
            a(f"v_lshl_add_u32 v{VXF+s_}, v{t3}, 4, v{t0}")
            a(f"v_add_u32 v{VXF+4+s_}, {2*SL2}, v{VXF+s_}")
        a(f"v_bfe_u32 v{t0}, v1, 2, 2")
        a(f"v_lshl_add_u32 v{t1}, v{t1}, 3, v{t0}")
        a(f"v_lshlrev_b32 v{t1}, 8, v{t1}")
        a(f"v_bfe_u32 v{t2}, v1, 4, 1")
        a(f"v_lshl_add_u32 v{t1}, v{t2}, 5, v{t1}")
        a(f"v_and_b32 v{t2}, 3, v1")
        a(f"v_lshl_add_u32 v{t1}, v{t2}, 3, v{t1}")
        a(f"s_and_b32 s{T0}, s{S_LW}, 2")
        for ft in range(2):
            a(f"s_or_b32 s{T1}, s{T0}, {ft}")
            a(f"v_xor_b32 v{t2}, s{T1}, v{t0}")
            a(f"v_lshl_add_u32 v{VWF+ft}, v{t2}, 6, v{t1}")
            a(f"v_add_u32 v{VWF+2+ft}, {2*SL2}, v{VWF+ft}")
    def rd_b(st, tau, u, tt):
        sl = slot(tau)
        a(f"ds_read_b128 {vr(FB[st]+4*tt,4)}, v{VXF + u + (4 if sl >= 2 else 0)} offset:{(SL2 if sl & 1 else 0) + tt*4096}", tag=('f', tau, u, 'b', tt))
    def rd_a(st, tau, u, F, rd):
        sl = slot(tau)
        a(f"ds_read_b64_tr_b16 {vr(FB[st]+8+4*F+2*rd,2)}, v{VWF + F + (2 if sl >= 2 else 0)} offset:{(SL2 if sl & 1 else 0) + 16384 + u*4096 + rd*1024}", tag=('f', tau, u, 'a', F))
    def reads(st, tau, u):
        return [lambda: rd_b(st, tau, u, 0), lambda: rd_a(st, tau, u, 0, 0), lambda: rd_a(st, tau, u, 0, 1),
                lambda: rd_b(st, tau, u, 1), lambda: rd_a(st, tau, u, 1, 0), lambda: rd_a(st, tau, u, 1, 1)]
    def compute(t0_, hook_bar, hook_step):
        for b in range(10):
            tau = t0_ + b
            for u in range(4):
                s_ = 4*b + u; st = s_ & 1
                last = (b == 9 and u == 3)
                side = []
                if u == 3:
                    a("s_waitcnt lgkmcnt(0)")
                    hook_bar(tau)
                    a("s_barrier")
                    side = hook_step(tau, 'bar') or []
                rs = [] if (last or OPT.get('x_noreads')) else reads(st ^ 1, *((tau, u + 1) if u < 3 else (tau + 1, 0)))
                plan = {-1: rs[0:2], 0: rs[2:5], 1: rs[5:6]}
                for r in plan[-1]: r()
                for k, (tt, F) in enumerate([(0, 0), (1, 0), (0, 1), (1, 1)]):
                    a.wait_lg([('f', tau, u, 'b', tt), ('f', tau, u, 'a', F)])
                    d = vr(ACC+16*(2*tt+F), 16)
                    if not OPT.get('x_nomfma'):
                        a(f"v_mfma_f32_32x32x16_bf16 {d}, {vr(FB[st]+8+4*F,4)}, {vr(FB[st]+4*tt,4)}, {'0' if s_ == 0 else d}")
                    for r in plan.get(k, []): r()
                    for _ in range(2):
                        if side: side.pop(0)()
                for f in side: f()
                hook_step(tau, u)
    a("s_waitcnt lgkmcnt(0)")
    srd(a, SRD_A, P_AX, SIZES['AX'])
    srd(a, SRD_B, P_WQKV, SIZES['WQKV'])
    NI = OPT.get('init', 2)
    a(f"s_cmp_lt_u32 s{S_W}, 4")
    a(f"s_cbranch_scc1 {lbl}_nodma")
    for tau in range(NI): dma_block(tau)
    g1_vm = list(a.vm)
    a.label(f"{lbl}_nodma")
    a.vm = []
    srd(a, SRD_E, P_W1, SIZES['W1'])
    prologue_rest(a)
    attn_coords(a)
    final_coords(a)
    a(f"s_lshl_b32 s{T0}, s{S_RB}, 7")
    a(f"s_lshl_b32 s{T1}, s{S_CJ}, 2")
    a(f"s_add_u32 s{T0}, s{T0}, s{T1}")
    a(f"s_add_u32 s{S_FQ}, s{T0}, {WS_FLAG + FQ}")
    a(f"s_add_u32 s{S_FH}, s{T0}, {WS_FLAG + FH}")
    a(f"s_cmp_lt_u32 s{S_CJ}, 14")
    a(f"s_cselect_b32 s{S_FHO}, s{S_FH}, 0x7fff0000")
    a(f"s_cmp_lt_u32 s{S_W}, 4")
    a(f"s_cbranch_scc1 {lbl}_g0")
    a.vm = list(g1_vm)
    if OPT.get('lprio', 1): a(f"s_setprio {OPT.get('lprio', 1)}")
    mark4(a, first=True)
    pre_address(a, lbl + "_pa", rows=False)
    frag_bases()
    a.wait_vm(('B', 0))
    mark4(a)
    a("s_barrier")
    for tau in range(NI, 4): dma_block(tau)
    for tau in range(0, 9):
        a.wait_vm(('B', tau + 1))
        if tau == 8: a.wait_vm('pst')
        a("s_barrier")
        dma_block(tau + 4)
        if tau == 0: pre_issue(a, rows=False)
        if tau == 1 and OPT.get('pfw1', 0):
            a(f"s_and_b32 s{T0}, s{S_I}, 7")
            a(f"s_mul_i32 s{T0}, s{T0}, 80")
            a(f"s_mul_i32 s{T1}, s{S_LW}, 20")
            a(f"s_add_u32 s{T0}, s{T0}, s{T1}")
            a(f"v_lshrrev_b32 v{t0}, 1, v1")
            a(f"v_add_u32 v{t0}, s{T0}, v{t0}")
            a(f"s_movk_i32 s{T1}, 3456")
            a(f"v_mul_lo_u32 v{t0}, v{t0}, s{T1}")
            a(f"v_and_b32 v{t1}, 1, v1")
            a(f"v_lshl_add_u32 v{t0}, v{t1}, 7, v{t0}")
            a(f"s_lshl_b32 s{T0}, s{S_CJ}, 8")
            a(f"v_add_u32 v{t0}, s{T0}, v{t0}")
            a(f"v_mov_b32 v{t1}, 0x7ffffff0")
            a(f"v_cmp_gt_u32 s[{T4}:{T4+1}], 40, v1")
            a(f"v_cndmask_b32 v{t0}, v{t1}, v{t0}, s[{T4}:{T4+1}]")
            a(f"buffer_load_dword v251, v{t0}, s[{SRD_E}:{SRD_E+3}], 0 offen", tag='touch')
        if tau == OPT.get('trp', 5):
            a.wait_vm('pl')
            repack_finish(a)
        if tau == 7: nonce_issue(a, 252)
    nonce_check(a, 252)
    a.wait_vm(('B', 10))
    a("s_barrier")
    if OPT.get('lprio', 1): a(f"s_setprio {OPT.get('cprio', 3)}")
    mark4(a)
    for r in reads(0, 10, 0): r()
    def g1_bar(tau):
        if tau in (10, 11): a.wait_vm(('B', tau + 1))
    def g1_step(tau, u):
        return None
    compute(10, g1_bar, g1_step)
    mark4(a)
    C0, C1, VY, ONE = 2, 3, 4, 6
    TU, TE = 32, 40
    a(f"v_mov_b32 v{ONE}, 1.0")
    a(f"v_mov_b32 v{C0}, 0xc0135761")
    a(f"v_mov_b32 v{C1}, 0xbdd2d3e8")
    a(f"v_lshlrev_b32 v{VY}, 4, v1")
    a(f"s_lshl_b32 s{T0}, s{S_CJ}, 3")
    a(f"s_lshr_b32 s{T1}, s{S_LW}, 1")
    a(f"s_lshl_b32 s{T1}, s{T1}, 2")
    a(f"s_add_u32 s{S_ACT}, s{T0}, s{T1}")
    a(f"s_lshl_b32 s{T0}, s{S_RB}, 2")
    a(f"s_and_b32 s{T1}, s{S_LW}, 1")
    a(f"s_lshl_b32 s{T1}, s{T1}, 1")
    a(f"s_add_u32 s{T0}, s{T0}, s{T1}")
    a(f"s_mul_i32 s{T0}, s{T0}, 108")
    a(f"s_add_u32 s{T0}, s{T0}, s{S_ACT}")
    a(f"s_lshl_b32 s{T0}, s{T0}, 10")
    a(f"s_add_u32 s{S_HB}, s{T0}, {WS_H}")
    a(f"s_cmp_lt_u32 s{S_ACT}, 108")
    a(f"s_cselect_b32 s{S_HB}, s{S_HB}, 0x7fff0000")
    a(f"v_and_b32 v{t0}, 31, v1")
    a(f"v_lshlrev_b32 v{t0}, 4, v{t0}")
    a(f"s_and_b32 s{T0}, s{S_LW}, 1")
    a(f"s_lshl_b32 s{T0}, s{T0}, 9")
    a(f"v_add_u32 v{t0}, s{T0}, v{t0}")
    a(f"ds_read_b128 {vr(ST,4)}, v{t0}")
    a(f"v_lshrrev_b32 v{t0}, 5, v1")
    a(f"v_lshlrev_b32 v{t0}, 4, v{t0}")
    a(f"s_lshr_b32 s{T0}, s{S_LW}, 1")
    a(f"s_lshl_b32 s{T0}, s{T0}, 8")
    a(f"v_add_u32 v{t0}, s{T0}, v{t0}")
    for ft in range(2):
        for j in range(4):
            a(f"ds_read_b128 {vr(CSR+16*ft+4*j,4)}, v{t0} offset:{1024 + 128*ft + 32*j}")
            a(f"ds_read_b128 {vr(B1R+16*ft+4*j,4)}, v{t0} offset:{1536 + 128*ft + 32*j}")
    a("s_waitcnt lgkmcnt(0)")
    mark4(a)
    P = lambda b, e: vr(b + 2*e, 2)
    for tt in range(2):
        nmp = vr(ST + 2*tt, 2)
        if tt == 1: a(f"s_add_u32 s{S_HB}, s{S_HB}, {108*1024}")
        for ft in range(2):
            for jj in range(2):
                x = ACC + 16*(2*tt+ft) + 8*jj
                for e in range(4):
                    j, i = 2*jj + (e >> 1), 2*(e & 1)
                    a(f"v_pk_fma_f32 {P(TU,e)}, {nmp}, {vr(CSR+16*ft+4*j+i,2)}, {vr(B1R+16*ft+4*j+i,2)} op_sel_hi:[0,1,1]")
                for e in range(4): a(f"v_pk_fma_f32 {P(x,e)}, {nmp}, {P(x,e)}, {P(TU,e)} op_sel:[1,0,0] op_sel_hi:[1,1,1]")
                for e in range(4): a(f"v_pk_mul_f32 {P(TU,e)}, {P(x,e)}, {P(x,e)}")
                for e in range(4): a(f"v_pk_fma_f32 {P(TU,e)}, {P(TU,e)}, {vr(C0,2)}, {vr(C0,2)} op_sel:[0,1,0] op_sel_hi:[1,1,0]")
                for e in range(4): a(f"v_pk_mul_f32 {P(TU,e)}, {P(TU,e)}, {P(x,e)}")
                for e in range(8): a(f"v_exp_f32 v{TE+e}, v{TU+e}")
                for e in range(4): a(f"v_pk_add_f32 {P(TE,e)}, {P(TE,e)}, {vr(ONE,2)} op_sel_hi:[1,0]")
                for e in range(8): a(f"v_rcp_f32 v{TE+e}, v{TE+e}")
                for e in range(4): a(f"v_pk_mul_f32 {P(TE,e)}, {P(TE,e)}, {P(x,e)}")
                d = TD + 4*(4*tt + 2*ft + jj)
                for e in range(4): a(f"v_cvt_pk_bf16_f32 v{d+e}, v{TE+2*e}, v{TE+2*e+1}")
                if not OPT.get('late_h', 0):
                    a(f"buffer_store_dwordx4 {vr(d,4)}, v{VY}, s[{SRD_WS}:{SRD_WS+3}], s{S_HB} offen offset:{(2*ft+jj)*1024} sc1", tag='hst')
    if OPT.get('late_h', 0):
        a(f"s_sub_u32 s{S_HB}, s{S_HB}, {108*1024}")
        for tt in range(2):
            if tt == 1: a(f"s_add_u32 s{S_HB}, s{S_HB}, {108*1024}")
            for ft in range(2):
                for jj in range(2):
                    d = TD + 4*(4*tt + 2*ft + jj)
                    a(f"buffer_store_dwordx4 {vr(d,4)}, v{VY}, s[{SRD_WS}:{SRD_WS+3}], s{S_HB} offen offset:{(2*ft+jj)*1024} sc1", tag='hst')
    mark4(a)
    a(f"s_branch {lbl}_join")
    a.label(f"{lbl}_g0")
    a.reset_counters()
    first.update({'x': True, 'q': True, '1': True})
    if OPT.get('pfs1', 0):
        a(f"s_lshl_b32 s{T0}, s{S_RB}, 7")
        a(f"s_lshr_b32 s{T1}, s{S_I}, 3")
        a(f"s_lshl_b32 s{T1}, s{T1}, 5")
        a(f"s_add_u32 s{T0}, s{T0}, s{T1}")
        a(f"s_lshl_b32 s{T1}, s{S_LW}, 3")
        a(f"s_add_u32 s{T0}, s{T0}, s{T1}")
        a(f"v_lshrrev_b32 v{t0}, 3, v1")
        a(f"v_add_u32 v{t0}, s{T0}, v{t0}")
        a(f"s_movk_i32 s{T1}, 1280")
        a(f"v_mul_lo_u32 v{t0}, v{t0}, s{T1}")
        a(f"v_and_b32 v{t1}, 7, v1")
        a(f"v_lshl_add_u32 v{t2}, v{t1}, 7, v{t0}")
        a(f"buffer_load_dword v251, v{t2}, s[{SRD_A}:{SRD_A+3}], 0 offen", tag='touch')
        a(f"v_and_b32 v{t1}, 1, v1")
        a(f"v_lshl_add_u32 v{t2}, v{t1}, 7, v{t0}")
        a(f"v_mov_b32 v{t3}, 0x7ffffff0")
        a(f"v_bfe_u32 v{t1}, v1, 1, 2")
        a(f"v_cmp_eq_u32 s[{T4}:{T4+1}], 0, v{t1}")
        a(f"v_cndmask_b32 v{t2}, v{t3}, v{t2}, s[{T4}:{T4+1}]")
        a(f"buffer_load_dword v251, v{t2}, s[{SRD_A}:{SRD_A+3}], 0 offen offset:1024", tag='touch')
        a(f"s_and_b32 s{T0}, s{S_I}, 7")
        a(f"s_mul_i32 s{T0}, s{T0}, 80")
        a(f"s_mul_i32 s{T1}, s{S_LW}, 20")
        a(f"s_add_u32 s{T0}, s{T0}, s{T1}")
        a(f"v_lshrrev_b32 v{t0}, 1, v1")
        a(f"v_add_u32 v{t0}, s{T0}, v{t0}")
        a(f"s_movk_i32 s{T1}, 3840")
        a(f"v_mul_lo_u32 v{t0}, v{t0}, s{T1}")
        a(f"v_and_b32 v{t1}, 1, v1")
        a(f"v_lshl_add_u32 v{t0}, v{t1}, 7, v{t0}")
        a(f"s_lshl_b32 s{T0}, s{S_CJ}, 8")
        a(f"v_add_u32 v{t0}, s{T0}, v{t0}")
        a(f"v_cmp_gt_u32 s[{T4}:{T4+1}], 40, v1")
        a(f"v_cndmask_b32 v{t0}, v{t3}, v{t0}, s[{T4}:{T4+1}]")
        a(f"buffer_load_dword v251, v{t0}, s[{SRD_B}:{SRD_B+3}], 0 offen", tag='touch')
    frag_bases()
    if OPT.get('cprio', 3): a(f"s_setprio {OPT.get('cprio', 3)}")
    mark(a)
    a("s_barrier")
    probe(a, 1)
    for r in reads(0, 0, 0): r()
    def g0_step(tau, u):
        if u == 'bar': probe(a, 10 + tau)
        if OPT.get('fine3') == 1 and u == 'bar' and tau in (0, 2, 4, 6, 8): mark(a)
        if u == 'bar' and tau == 9: return dma_list(13)
        if u == 1 and tau == 2: nonce_issue(a, 252)
        if u == 1 and tau == 4: nonce_check(a, 252)
        if u == 'bar' and tau == 8:
            pre_flags(a, t3, stats=False)
        return None
    compute(0, lambda tau: None, g0_step)
    probe(a, 2)
    mark(a)
    if OPT.get('lprio', 1): a(f"s_setprio {OPT.get('lprio', 1)}")
    def qkv_epilogue(a):
        a(f"v_lshrrev_b32 v{t0}, 5, v1")
        a(f"s_lshr_b32 s{T0}, s{S_LW}, 1")
        a(f"s_lshl_b32 s{T0}, s{T0}, 4")
        a(f"v_add_u32 v{t0}, s{T0}, v{t0}")
        a(f"v_lshlrev_b32 v{t0}, 14, v{t0}")
        a(f"s_and_b32 s{T0}, s{S_LW}, 1")
        a(f"s_lshl_b32 s{T0}, s{T0}, 9")
        a(f"v_and_b32 v{t1}, 31, v1")
        a(f"v_lshl_add_u32 v{t0}, v{t1}, 4, v{t0}")
        a(f"v_add_u32 v{t0}, s{T0}, v{t0}")
        a(f"s_lshl_b32 s{T0}, s{S_CJ}, 19")
        a(f"s_lshl_b32 s{T1}, s{S_RB}, 10")
        a(f"s_add_u32 s{T0}, s{T0}, s{T1}")
        a(f"s_add_u32 s{T0}, s{T0}, {WS_QKV}")
        a(f"s_cmp_lt_u32 s{S_CJ}, 5")
        a(f"s_cselect_b32 s{T2}, 0x3ea52b5c, 1.0")
        a(f"v_mov_b32 v30, s{T2}")
        for r in range(0, 64, 2):
            a(f"v_pk_mul_f32 {vr(ACC+r,2)}, {vr(ACC+r,2)}, v[30:31] op_sel_hi:[1,0]")
        k = 0
        for ft in range(2):
            for j in range(4):
                a(f"s_add_u32 s{T1}, s{T0}, {(8*ft + 2*j)*16384}")
                d = 32 + 4*(k % 8); k += 1
                for tt in range(2):
                    base = ACC + 16*(2*tt+ft) + 4*j
                    a(f"v_cvt_pk_bf16_f32 v{d+2*tt}, v{base}, v{base+1}")
                    a(f"v_cvt_pk_bf16_f32 v{d+2*tt+1}, v{base+2}, v{base+3}")
                a(f"buffer_store_dwordx4 {vr(d,4)}, v{t0}, s[{SRD_WS}:{SRD_WS+3}], s{T1} offen sc1", tag='qst')
        fq_poll_offsets(a, VP, t3)
    class Rec:
        def __init__(self): self.l = []
        def __call__(self, text, tag=None): self.l.append((text, tag))
    rec = Rec(); qkv_epilogue(rec)
    EPI = []
    for tx, tg in rec.l:
        if tx.startswith("s_cselect") and EPI: EPI[-1].append((tx, tg))
        else: EPI.append([(tx, tg)])
    def emit_groups(gs):
        for g_ in gs:
            for tx, tg in g_: a(tx, tag=tg)
    if not OPT.get('epi_mix', 0):
        emit_groups(EPI)
        EPI = []
    TQP = OPT.get('tqp', 13)
    for tau in range(10, 20):
        if 13 <= tau + 1 <= 19: a.wait_vm(('B', tau + 1))
        if tau == TQP: a.wait_vm('qst')
        if tau == 19: a.wait_vm('tab')
        a("s_barrier")
        probe(a, 10 + tau)
        if OPT.get('fine3') == 2 and tau in (10, 11, 12, 13, 14, 15, 16, 17, 18, 19): mark(a)
        if tau == TQP: flag_store(a, S_FQ, t3)
        if tau + 4 <= 19:
            dl = dma_list(tau + 4)
            if tau == 10 and EPI:
                per = -(-len(EPI) // len(dl))
                for f in dl:
                    f()
                    emit_groups(EPI[:per])
                    EPI = EPI[per:]
                emit_groups(EPI)
                EPI = []
            else:
                for f in dl: f()
        if tau == 15:
            a(f"s_lshl_b32 s{T0}, s{S_RB}, 7")
            a(f"s_add_u32 s{T0}, s{T0}, {WS_FLAG + FS}")
            a(f"v_mov_b32 v{t0}, s{T0}")
            a(f"s_min_u32 s{T1}, s{S_CJ}, 13")
            a(f"s_lshl_b32 s{T1}, s{T1}, 2")
            a(f"s_add_u32 s{T1}, s{T1}, {WS_FLAG + FC}")
            a(f"v_mov_b32 v{t1}, s{T1}")
            a(f"v_cmp_gt_u32 s[{T4}:{T4+1}], 32, v1")
            a(f"v_cndmask_b32 v234, v{t1}, v{t0}, s[{T4}:{T4+1}]")
            poll_issue(a, 234, 235, 'p1')
        if tau == 17:
            L = uid("nf")
            a(f"s_cmp_ge_u32 s{S_CJ}, 14")
            a(f"s_cbranch_scc1 {L}")
            vm0 = list(a.vm)
            probe(a, 40)
            poll_check(a, 234, 235, 'p1')
            probe(a, 41)
            a.label(L)
            a.vm = vm0
            a(f"s_lshl_b32 s{T0}, s{S_RB}, 10")
            a(f"s_add_u32 s{T0}, s{T0}, {WS_ST}")
            a(f"s_lshl_b32 s{T1}, s{S_CJ}, 9")
            a(f"s_add_u32 s{T2}, s{T1}, {WS_CS}")
            a(f"s_add_u32 s{T1}, s{T1}, {WS_B1}")
            a(f"s_cmp_eq_u32 s{S_W}, 1")
            a(f"s_cselect_b32 s{T0}, s{T2}, s{T0}")
            a(f"s_cselect_b32 s{T3}, 1024, 0")
            a(f"s_cmp_eq_u32 s{S_W}, 2")
            a(f"s_cselect_b32 s{T0}, s{T1}, s{T0}")
            a(f"s_cselect_b32 s{T3}, 1536, s{T3}")
            a(f"s_cmp_eq_u32 s{S_W}, 3")
            a(f"s_cselect_b32 s{T0}, 0x7fff0000, s{T0}")
            a(f"s_cselect_b32 s{T3}, 2048, s{T3}")
            a(f"v_lshlrev_b32 v{t0}, 4, v1")
            a(f"v_mov_b32 v{t1}, 0x7ffffff0")
            a(f"s_cmp_eq_u32 s{S_W}, 0")
            a(f"s_cselect_b32 s{T1}, 64, 32")
            a(f"v_cmp_gt_u32 s[{T4}:{T4+1}], s{T1}, v1")
            a(f"s_mov_b64 exec, s[{T4}:{T4+1}]")
            a(f"s_mov_b32 m0, s{T3}")
            a(f"buffer_load_dwordx4 v{t0}, s[{SRD_WS}:{SRD_WS+3}], s{T0} offen sc1 lds", tag='tab')
            a("s_mov_b64 exec, -1")
        if tau == 19: pass
        if tau == OPT.get('tpq', 18):
            poll_issue(a, VP, VPV, 'pq')
            fw_poll_offsets(a, VP+202)
            poll_issue(a, VP+202, VPV+202, 'pw')
    probe(a, 3)
    if OPT.get('fine4'): mark(a)
    poll_check(a, VP, VPV, 'pq')
    probe(a, 42)
    if OPT.get('fine4'): mark(a)
    attn_stage_q(a, 3)
    attn_stage_kv(a, t0, t1, t2, 2, (0,) if OPT.get('latev') else (0, 1))
    poll_check(a, VP+202, VPV+202, 'pw')
    if OPT.get('earlyw', 0): wf_first_slots(a, 3)
    mark(a)
    a.wait_vm(('kv', 0))
    if OPT.get('fine4'): mark(a)
    a(f"s_branch {lbl}_join")
    a.label(f"{lbl}_idle")
    a.reset_counters()
    a("s_waitcnt lgkmcnt(0)")
    prologue_rest(a)
    attn_coords(a)
    final_coords(a)
    srd(a, SRD_A, P_AX, SIZES['AX'])
    if OPT.get('pfq'):
        srd(a, SRD_C, P_WQKV, SIZES['WQKV'])
        a(f"s_mul_i32 s{T0}, s{S_RB}, 1200")
        a(f"s_mul_i32 s{T1}, s{S_W}, 150")
        a(f"s_add_u32 s{T0}, s{T0}, s{T1}")
        a(f"v_add_u32 v240, s{T0}, v1")
        a(f"v_lshlrev_b32 v240, 7, v240")
        for k in range(3):
            if k == 2:
                a(f"v_mov_b32 v241, 0x7ffffff0")
                a(f"v_cmp_gt_u32 s[{T4}:{T4+1}], 22, v1")
                a(f"v_cndmask_b32 v240, v241, v240, s[{T4}:{T4+1}]")
            a(f"buffer_load_dword v242, v240, s[{SRD_C}:{SRD_C+3}], 0 offen", tag='touch')
            if k < 2: a(f"v_add_u32 v240, 8192, v240")
    rowstats_issue(a)
    colsum_issue(a)
    nonce_issue(a, 252)
    rowstats_compute(a)
    colsum_compute(a, lbl + "_cs")
    nonce_check(a, 252)
    a("s_waitcnt vmcnt(0)")
    a("s_barrier")
    a(f"s_lshl_b32 s{T0}, s{S_RB}, 7")
    a(f"s_add_u32 s{T0}, s{T0}, {WS_FLAG + FS}")
    flag_store(a, T0, t3)
    a(f"s_lshl_b32 s{T0}, s{S_RB}, 2")
    a(f"s_add_u32 s{T0}, s{T0}, {WS_FLAG + FC}")
    flag_store(a, T0, t3)
    pre_address(a, lbl + "_pai", rows=False)
    pre_issue(a, rows=False)
    a.wait_vm('pl')
    repack_finish(a)
    a("s_waitcnt vmcnt(0)")
    a("s_barrier")
    pre_flags(a, t3, stats=False)
    a(f"s_mov_b32 s{S_FHO}, 0x7fff0000")
    fq_poll_offsets(a, VP, t3)
    a(f"s_mov_b64 s[{T4}:{T4+1}], -1")
    wait_flags(a, VP, VPV, T4)
    Li = uid("ik")
    a(f"s_cmp_ge_u32 s{S_W}, 4")
    a(f"s_cbranch_scc1 {Li}")
    attn_stage_q(a, 3)
    attn_stage_kv(a, t0, t1, t2, 2, (0,) if OPT.get('latev') else (0, 1))
    fw_poll_offsets(a, VP+202)
    poll_issue(a, VP+202, VPV+202, 'pw')
    poll_check(a, VP+202, VPV+202, 'pw')
    if OPT.get('earlyw', 0): wf_first_slots(a, 3)
    a.label(Li)
    a("s_waitcnt vmcnt(0)")
    a.label(f"{lbl}_join")
    if OPT.get('lprio', 1) or OPT.get('cprio', 3): a("s_setprio 0")
    a.reset_counters()

SLOT = 49152
def stage1f(a, lbl):
    SRD_E, S_M = 64, 68
    VXD, VQD, V1D = 2, 4, 6
    VXF, VWF = 8, 16
    t0, t1, t2, t3 = 20, 21, 22, 23
    VP, VPV = 24, 25
    FB = [32, 48]
    ACC = 64
    ST, CSR, B1R, TD = 192, 128, 160, 196
    S_FQ, S_FH, S_ACT, S_HB = 69, 70, 71, 72
    attn_coords(a)
    final_coords(a)
    a(f"s_and_b32 s{S_LW}, s{S_W}, 3")
    a(f"s_cmp_ge_u32 s{S_CJ}, 15")
    a(f"s_cbranch_scc1 {lbl}_idle")
    srd(a, SRD_A, P_AX, SIZES['AX'])
    srd(a, SRD_B, P_WQKV, SIZES['WQKV'])
    srd(a, SRD_E, P_W1, SIZES['W1'])
    a(f"s_lshl_b32 s{T0}, s{S_RB}, 7")
    a(f"s_lshr_b32 s{T1}, s{S_W}, 2")
    a(f"s_lshl_b32 s{T1}, s{T1}, 6")
    a(f"s_add_u32 s{T0}, s{T0}, s{T1}")
    a(f"s_and_b32 s{T1}, s{S_W}, 1")
    a(f"s_lshl_b32 s{T1}, s{T1}, 5")
    a(f"s_add_u32 s{T0}, s{T0}, s{T1}")
    a(f"s_bfe_u32 s{T1}, s{S_W}, 0x10001")
    a(f"s_add_u32 s{T0}, s{T0}, s{T1}")
    a(f"v_lshrrev_b32 v{t0}, 3, v1")
    a(f"v_lshlrev_b32 v{t0}, 1, v{t0}")
    a(f"v_add_u32 v{t0}, s{T0}, v{t0}")
    a(f"s_movk_i32 s{T2}, 1280")
    a(f"v_mul_lo_u32 v{t0}, v{t0}, s{T2}")
    a(f"v_lshrrev_b32 v{t1}, 4, v1")
    a(f"v_and_b32 v{t2}, 7, v1")
    a(f"v_xor_b32 v{t2}, v{t2}, v{t1}")
    a(f"v_xor_b32 v{t3}, 4, v{t2}")
    a(f"v_lshl_add_u32 v{VXD}, v{t2}, 4, v{t0}")
    a(f"v_lshl_add_u32 v{VXD+1}, v{t3}, 4, v{t0}")
    a(f"v_add_u32 v{VXD+1}, {16*1280-1024}, v{VXD+1}")
    a(f"s_lshl_b32 s{T0}, s{S_W}, 3")
    a(f"v_lshrrev_b32 v{t0}, 4, v1")
    a(f"v_add_u32 v{t1}, s{T0}, v{t0}")
    a(f"v_bfe_u32 v{t2}, v1, 2, 2")
    a(f"v_xor_b32 v{t2}, v{t2}, v{t0}")
    a(f"v_and_b32 v{t3}, 3, v1")
    a(f"v_lshl_add_u32 v{t2}, v{t2}, 2, v{t3}")
    a(f"v_lshlrev_b32 v{t2}, 4, v{t2}")
    a(f"s_lshl_b32 s{T0}, s{S_CJ}, 8")
    a(f"v_add_u32 v{t2}, s{T0}, v{t2}")
    for vd, pitch in ((VQD, 3840), (V1D, 3456)):
        a(f"s_movk_i32 s{T2}, {pitch}")
        a(f"v_mul_lo_u32 v{t3}, v{t1}, s{T2}")
        a(f"v_add_u32 v{vd}, v{t3}, v{t2}")
        a(f"v_add_u32 v{vd+1}, {4*pitch-1024}, v{vd}")
    a(f"s_lshl_b32 s{S_M}, s{S_W}, 11")
    if OPT.get('rot', 1):
        a(f"s_lshr_b32 s{T0}, s{S_I}, 3")
        a(f"s_mul_i32 s{T0}, s{T0}, 10")
        a(f"s_and_b32 s{T1}, s{S_I}, 7")
        a(f"s_mul_i32 s{T1}, s{T1}, 5")
        a(f"s_add_u32 s{T0}, s{T0}, s{T1}")
        a(f"s_lshr_b32 s{T0}, s{T0}, 2")
        a(f"s_sub_u32 s{T1}, s{T0}, 10")
        a(f"s_cmp_ge_u32 s{T0}, 10")
        a(f"s_cselect_b32 s{T0}, s{T1}, s{T0}")
    else:
        a(f"s_mov_b32 s{T0}, 0")
    a(f"s_lshl_b32 s{S_KX}, s{T0}, 7")
    a(f"s_mul_i32 s{S_KQ}, s{T0}, {64*3840}")
    a(f"s_mul_i32 s{S_K1}, s{T0}, {64*3456}")
    def adv(sreg, step, wrap):
        a(f"s_add_u32 s{sreg}, s{sreg}, {step}")
        a(f"s_cmp_eq_u32 s{sreg}, {wrap}")
        a(f"s_cselect_b32 s{sreg}, 0, s{sreg}")
    parts = ((VXD, SRD_A, S_KX, 0, 128, 1280), (VQD, SRD_B, S_KQ, 16384, 64*3840, 640*3840), (V1D, SRD_E, S_K1, 32768, 64*3456, 640*3456))
    def dma(b, part, i):
        vd, sr, sk, off, step, wrap = parts[part]
        if i == 0:
            a(f"s_add_u32 m0, s{S_M}, {(b % 3)*SLOT + off}")
            if b > 0: adv(sk, step, wrap)
        a(f"buffer_load_dwordx4 v{vd+i}, s[{sr}:{sr+3}], s{sk} offen offset:{i*1024} lds", tag=('B', b))
    def dma_block(b):
        for part in range(3):
            for i in range(2): dma(b, part, i)
    NI = OPT.get('finit', 2)
    for b in range(NI): dma_block(b)
    pre_address(a, lbl + "_pa", rows=False)
    a(f"s_and_b32 s{T0}, s{S_W}, 1")
    a(f"s_lshl_b32 s{T0}, s{T0}, 13")
    a(f"v_and_b32 v{t0}, 31, v1")
    a(f"v_lshrrev_b32 v{t1}, 5, v1")
    a(f"v_bfe_u32 v{t2}, v1, 1, 3")
    a(f"v_lshlrev_b32 v{t0}, 7, v{t0}")
    a(f"v_add_u32 v{t0}, s{T0}, v{t0}")
    for s_ in range(4):
        a(f"v_or_b32 v{t3}, {2*s_}, v{t1}")
        a(f"v_xor_b32 v{t3}, v{t3}, v{t2}")
        a(f"v_lshl_add_u32 v{VXF+s_}, v{t3}, 4, v{t0}")
        a(f"v_add_u32 v{VXF+4+s_}, {2*SLOT}, v{VXF+s_}")
    a(f"v_bfe_u32 v{t0}, v1, 2, 2")
    a(f"v_lshl_add_u32 v{t1}, v{t1}, 3, v{t0}")
    a(f"v_lshlrev_b32 v{t1}, 8, v{t1}")
    a(f"v_bfe_u32 v{t2}, v1, 4, 1")
    a(f"v_lshl_add_u32 v{t1}, v{t2}, 5, v{t1}")
    a(f"v_and_b32 v{t2}, 3, v1")
    a(f"v_lshl_add_u32 v{t1}, v{t2}, 3, v{t1}")
    a(f"s_lshr_b32 s{T0}, s{S_W}, 1")
    a(f"v_xor_b32 v{t2}, s{T0}, v{t0}")
    a(f"v_lshl_add_u32 v{VWF}, v{t2}, 6, v{t1}")
    a(f"v_add_u32 v{VWF+1}, {SLOT}, v{VWF}")
    a(f"v_add_u32 v{VWF+2}, {2*SLOT}, v{VWF}")
    a(f"s_lshl_b32 s{T0}, s{S_RB}, 7")
    a(f"s_add_u32 s{T0}, s{T0}, {WS_FLAG + FS}")
    a(f"v_mov_b32 v{t0}, s{T0}")
    a(f"s_min_u32 s{T1}, s{S_CJ}, 13")
    a(f"s_lshl_b32 s{T1}, s{T1}, 2")
    a(f"s_add_u32 s{T1}, s{T1}, {WS_FLAG + FC}")
    a(f"v_mov_b32 v{t1}, s{T1}")
    a(f"v_cmp_gt_u32 s[{T4}:{T4+1}], 32, v1")
    a(f"v_cndmask_b32 v{VP}, v{t1}, v{t0}, s[{T4}:{T4+1}]")
    a(f"s_lshl_b32 s{T0}, s{S_RB}, 7")
    a(f"s_lshl_b32 s{T1}, s{S_CJ}, 2")
    a(f"s_add_u32 s{T0}, s{T0}, s{T1}")
    a(f"s_add_u32 s{S_FQ}, s{T0}, {WS_FLAG + FQ}")
    a(f"s_add_u32 s{S_FH}, s{T0}, {WS_FLAG + FH}")
    a(f"s_cmp_lt_u32 s{S_CJ}, 14")
    a(f"s_cselect_b32 s{S_FHO}, s{S_FH}, 0x7fff0000")
    def rd_b(st, b, u, tt):
        sl = b % 3
        a(f"ds_read_b128 {vr(FB[st]+4*tt,4)}, v{VXF + u + (4 if sl == 2 else 0)} offset:{(SLOT if sl == 1 else 0) + tt*4096}", tag=('f', b, u, 'b', tt))
    def rd_a(st, b, u, F, rd):
        a(f"ds_read_b64_tr_b16 {vr(FB[st]+8+4*F+2*rd,2)}, v{VWF + b % 3} offset:{16384*(F+1) + u*4096 + rd*1024}", tag=('f', b, u, 'a', F))
    def reads(st, b, u):
        return [lambda: rd_b(st, b, u, 0), lambda: rd_a(st, b, u, 0, 0), lambda: rd_a(st, b, u, 0, 1),
                lambda: rd_b(st, b, u, 1), lambda: rd_a(st, b, u, 1, 0), lambda: rd_a(st, b, u, 1, 1)]
    mark(a)
    a.wait_vm(('B', 0))
    a("s_barrier")
    for r in reads(0, 0, 0): r()
    NB = 10
    pend = [(b, p, i) for b in range(NI, 3) for p in range(3) for i in range(2)]
    for b in range(NB):
        for u in range(4):
            s_ = 4*b + u; st = s_ & 1
            last = (b == NB-1 and u == 3)
            if u == 3 and b + 1 < NB:
                while pend: dma(*pend.pop(0))
                a("s_waitcnt lgkmcnt(0)")
                a.wait_vm(('B', b + 1))
                a("s_barrier")
                if b == 3:
                    a.wait_vm('pl')
                    repack_finish(a)
                if b == 6: pre_flags(a, t3, stats=False)
                if b + 3 < NB: pend = [(b + 3, p, i) for p in range(3) for i in range(2)]
            nb, nu = (b, u + 1) if u < 3 else (b + 1, 0)
            rs = [] if last else reads(st ^ 1, nb, nu)
            plan = {-1: rs[0:2], 0: rs[2:5], 1: rs[5:6]}
            for r in plan[-1]: r()
            for k, (tt, F) in enumerate([(0, 0), (1, 0), (0, 1), (1, 1)]):
                a.wait_lg([('f', b, u, 'b', tt), ('f', b, u, 'a', F)])
                d = vr(ACC+16*(2*tt+F), 16)
                a(f"v_mfma_f32_32x32x16_bf16 {d}, {vr(FB[st]+8+4*F,4)}, {vr(FB[st]+4*tt,4)}, {'0' if s_ == 0 else d}")
                for r in plan.get(k, []): r()
                if pend and k in (1, 3): dma(*pend.pop(0))
            if b == 1 and u == 0: pre_issue(a, rows=False)
            if b == 1 and u == 1: nonce_issue(a, 252)
            if b == 3 and u == 1: nonce_check(a, 252)
            if b == 6 and u == 0: poll_issue(a, VP, VPV, 'p1')
            if b == 8 and u == 0:
                L = uid("nf")
                a(f"s_cmp_ge_u32 s{S_CJ}, 14")
                a(f"s_cbranch_scc1 {L}")
                vm0 = list(a.vm)
                poll_check(a, VP, VPV, 'p1')
                a.label(L)
                a.vm = vm0
                a(f"s_lshl_b32 s{T0}, s{S_RB}, 10")
                a(f"s_and_b32 s{T1}, s{S_W}, 1")
                a(f"s_lshl_b32 s{T1}, s{T1}, 9")
                a(f"s_add_u32 s{T0}, s{T0}, s{T1}")
                a(f"s_add_u32 s{T0}, s{T0}, {WS_ST}")
                a(f"v_and_b32 v{t0}, 31, v1")
                a(f"v_lshlrev_b32 v{t0}, 4, v{t0}")
                a(f"buffer_load_dwordx4 {vr(ST,4)}, v{t0}, s[{SRD_WS}:{SRD_WS+3}], s{T0} offen sc1", tag='tab')
                a(f"v_lshrrev_b32 v{t0}, 5, v1")
                a(f"v_lshlrev_b32 v{t0}, 4, v{t0}")
                a(f"s_lshl_b32 s{T0}, s{S_CJ}, 9")
                a(f"s_lshr_b32 s{T1}, s{S_W}, 1")
                a(f"s_lshl_b32 s{T1}, s{T1}, 7")
                a(f"s_add_u32 s{T0}, s{T0}, s{T1}")
                a(f"s_add_u32 s{T1}, s{T0}, {WS_B1}")
                a(f"s_add_u32 s{T0}, s{T0}, {WS_CS}")
                for j in range(4):
                    a(f"buffer_load_dwordx4 {vr(CSR+4*j,4)}, v{t0}, s[{SRD_WS}:{SRD_WS+3}], s{T0} offen offset:{32*j} sc1", tag='tab')
                    a(f"buffer_load_dwordx4 {vr(B1R+4*j,4)}, v{t0}, s[{SRD_WS}:{SRD_WS+3}], s{T1} offen offset:{32*j} sc1", tag='tab')
    mark(a)
    a(f"v_lshrrev_b32 v{t0}, 5, v1")
    a(f"s_lshr_b32 s{T0}, s{S_W}, 1")
    a(f"s_lshl_b32 s{T0}, s{T0}, 3")
    a(f"v_add_u32 v{t0}, s{T0}, v{t0}")
    a(f"v_lshlrev_b32 v{t0}, 14, v{t0}")
    a(f"s_and_b32 s{T0}, s{S_W}, 1")
    a(f"s_lshl_b32 s{T0}, s{T0}, 9")
    a(f"v_and_b32 v{t1}, 31, v1")
    a(f"v_lshl_add_u32 v{t0}, v{t1}, 4, v{t0}")
    a(f"v_add_u32 v{t0}, s{T0}, v{t0}")
    a(f"s_lshl_b32 s{T0}, s{S_CJ}, 19")
    a(f"s_lshl_b32 s{T1}, s{S_RB}, 10")
    a(f"s_add_u32 s{T0}, s{T0}, s{T1}")
    a(f"s_add_u32 s{T0}, s{T0}, {WS_QKV}")
    a(f"s_cmp_lt_u32 s{S_CJ}, 5")
    a(f"s_cselect_b32 s{T2}, 0x3ea52b5c, 1.0")
    a(f"v_mov_b32 v30, s{T2}")
    for tt in range(2):
        for r in range(0, 16, 2):
            a(f"v_pk_mul_f32 {vr(ACC+32*tt+r,2)}, {vr(ACC+32*tt+r,2)}, v[30:31] op_sel_hi:[1,0]")
    for j in range(4):
        a(f"s_add_u32 s{T1}, s{T0}, {2*j*16384}")
        d = FB[0] + 4*j
        for tt in range(2):
            base = ACC + 32*tt + 4*j
            a(f"v_cvt_pk_bf16_f32 v{d+2*tt}, v{base}, v{base+1}")
            a(f"v_cvt_pk_bf16_f32 v{d+2*tt+1}, v{base+2}, v{base+3}")
        a(f"buffer_store_dwordx4 {vr(d,4)}, v{t0}, s[{SRD_WS}:{SRD_WS+3}], s{T1} offen sc1", tag='qst')
    C0, C1, VY, ONE = 2, 3, 4, 6
    TU, TE = 48, 56
    a(f"v_mov_b32 v{ONE}, 1.0")
    a(f"v_mov_b32 v{C0}, 0xc0135761")
    a(f"v_mov_b32 v{C1}, 0xbdd2d3e8")
    a(f"v_lshlrev_b32 v{VY}, 4, v1")
    a(f"s_lshl_b32 s{T0}, s{S_CJ}, 3")
    a(f"s_lshr_b32 s{T1}, s{S_W}, 1")
    a(f"s_lshl_b32 s{T1}, s{T1}, 1")
    a(f"s_add_u32 s{S_ACT}, s{T0}, s{T1}")
    a(f"s_lshl_b32 s{T0}, s{S_RB}, 2")
    a(f"s_and_b32 s{T1}, s{S_W}, 1")
    a(f"s_lshl_b32 s{T1}, s{T1}, 1")
    a(f"s_add_u32 s{T0}, s{T0}, s{T1}")
    a(f"s_mul_i32 s{T0}, s{T0}, 108")
    a(f"s_add_u32 s{T0}, s{T0}, s{S_ACT}")
    a(f"s_lshl_b32 s{T0}, s{T0}, 10")
    a(f"s_add_u32 s{S_HB}, s{T0}, {WS_H}")
    a(f"s_cmp_lt_u32 s{S_ACT}, 108")
    a(f"s_cselect_b32 s{S_HB}, s{S_HB}, 0x7fff0000")
    a.wait_vm('tab')
    P = lambda b, e: vr(b + 2*e, 2)
    for tt in range(2):
        nmp = vr(ST + 2*tt, 2)
        for jj in range(2):
            x = ACC + 16*(2*tt+1) + 8*jj
            for e in range(4):
                j, i = 2*jj + (e >> 1), 2*(e & 1)
                a(f"v_pk_fma_f32 {P(TU,e)}, {nmp}, {vr(CSR+4*j+i,2)}, {vr(B1R+4*j+i,2)} op_sel_hi:[0,1,1]")
            for e in range(4): a(f"v_pk_fma_f32 {P(x,e)}, {nmp}, {P(x,e)}, {P(TU,e)} op_sel:[1,0,0] op_sel_hi:[1,1,1]")
            for e in range(4): a(f"v_pk_mul_f32 {P(TU,e)}, {P(x,e)}, {P(x,e)}")
            for e in range(4): a(f"v_pk_fma_f32 {P(TU,e)}, {P(TU,e)}, {vr(C0,2)}, {vr(C0,2)} op_sel:[0,1,0] op_sel_hi:[1,1,0]")
            for e in range(4): a(f"v_pk_mul_f32 {P(TU,e)}, {P(TU,e)}, {P(x,e)}")
            for e in range(8): a(f"v_exp_f32 v{TE+e}, v{TU+e}")
            for e in range(4): a(f"v_pk_add_f32 {P(TE,e)}, {P(TE,e)}, {vr(ONE,2)} op_sel_hi:[1,0]")
            for e in range(8): a(f"v_rcp_f32 v{TE+e}, v{TE+e}")
            for e in range(4): a(f"v_pk_mul_f32 {P(TE,e)}, {P(TE,e)}, {P(x,e)}")
            d = TD + 4*(2*tt + jj)
            for e in range(4): a(f"v_cvt_pk_bf16_f32 v{d+e}, v{TE+2*e}, v{TE+2*e+1}")
    fq_poll_offsets(a, VP, t3)
    a.wait_vm('qst')
    a("s_barrier")
    flag_store(a, S_FQ, t3)
    mark(a)
    for tt in range(2):
        if tt == 1: a(f"s_add_u32 s{S_HB}, s{S_HB}, {108*1024}")
        for jj in range(2):
            d = TD + 4*(2*tt + jj)
            a(f"buffer_store_dwordx4 {vr(d,4)}, v{VY}, s[{SRD_WS}:{SRD_WS+3}], s{S_HB} offen offset:{jj*1024} sc1", tag='hst')
    a(f"s_branch {lbl}_stage")
    a.label(f"{lbl}_idle")
    a.reset_counters()
    t3i = t3
    srd(a, SRD_A, P_AX, SIZES['AX'])
    rowstats_issue(a)
    colsum_issue(a)
    nonce_issue(a, 252)
    rowstats_compute(a)
    colsum_compute(a, lbl + "_cs")
    nonce_check(a, 252)
    a("s_waitcnt vmcnt(0)")
    a("s_barrier")
    a(f"s_lshl_b32 s{T0}, s{S_RB}, 7")
    a(f"s_add_u32 s{T0}, s{T0}, {WS_FLAG + FS}")
    flag_store(a, T0, t3)
    a(f"s_lshl_b32 s{T0}, s{S_RB}, 2")
    a(f"s_add_u32 s{T0}, s{T0}, {WS_FLAG + FC}")
    flag_store(a, T0, t3)
    pre_address(a, lbl + "_pai", rows=False)
    pre_issue(a, rows=False)
    a.wait_vm('pl')
    repack_finish(a)
    a("s_waitcnt vmcnt(0)")
    a("s_barrier")
    pre_flags(a, t3, stats=False)
    a(f"s_mov_b32 s{S_FHO}, 0x7fff0000")
    fq_poll_offsets(a, VP, t3)
    a.label(f"{lbl}_stage")
    a.reset_counters()
    a(f"s_mov_b64 s[{T4}:{T4+1}], -1")
    wait_flags(a, VP, VPV, T4)
    mark(a)
    Li = uid("ik")
    a(f"s_cmp_ge_u32 s{S_W}, 4")
    a(f"s_cbranch_scc1 {Li}")
    attn_stage_q(a, 3)
    attn_stage_kv(a, t0, t1, t2, 2)
    a.wait_vm(('kv', 0))
    a.label(Li)
    a.reset_counters()

def stage_attn(a, lbl):
    HP, S_HH, S_QW = S_AHP, 78, 79
    VD, VK, VV, VKX, VW = 2, 3, 4, 5, 10
    t0, t1, t2, t3, t4 = 6, 7, 8, 9, 11
    MK = 12
    Q0, Q1 = 20, 24
    KF = [28, 36]
    VF = [44, 48, 52, 56]
    PF = [60, 64, 68, 72]
    OA = 76
    CS, NM, MX = 96, 97, 98
    S = 104
    VPQ, VPH = 92, 94
    a(f"v_and_b32 v{t0}, 31, v1")
    a(f"v_and_b32 v{VPH}, 15, v1")
    a(f"v_min_u32 v{VPH}, 13, v{VPH}")
    a(f"v_lshlrev_b32 v{VPH}, 2, v{VPH}")
    a(f"s_lshr_b32 s{T1}, s{S_FRB}, 1")
    a(f"s_lshl_b32 s{T1}, s{T1}, 7")
    a(f"s_add_u32 s{T1}, s{T1}, {WS_FLAG + FH}")
    a(f"v_add_u32 v{VPH}, s{T1}, v{VPH}")
    a(f"v_lshrrev_b32 v{t1}, 5, v1")
    for r in range(4): a(f"v_mov_b32 v{KF[0]+r}, 0x3f803f80")
    a(f"v_lshlrev_b32 v{t4}, 4, v0")
    a(f"v_add_u32 v{t4}, {LONES}, v{t4}")
    a(f"v_mov_b32 v{KF[1]}, 208")
    a(f"v_cmp_gt_u32 vcc, v{KF[1]}, v0")
    L = uid("on")
    a(f"s_and_saveexec_b64 s[{T4}:{T4+1}], vcc")
    a(f"s_cbranch_execz {L}")
    a(f"ds_write_b128 v{t4}, {vr(KF[0],4)}")
    a.label(L)
    a(f"s_mov_b64 exec, s[{T4}:{T4+1}]")
    SM = 98
    a(f"v_lshlrev_b32 v{t2}, 2, v{t1}")
    a(f"v_sub_u32 v{t2}, v{t0}, v{t2}")
    VM = 248
    a(f"v_mov_b32 v{VM}, v{t2}")
    a(f"v_mov_b32 v{t3}, 0xffff")
    a(f"v_mov_b32 v{t4}, 0xffff0000")
    for q in range(8):
        r0, r1 = 2*q, 2*q + 1
        a(f"v_cmp_le_i32 s[98:99], {8*(r0 >> 2) + (r0 & 3)}, v{VM}")
        a(f"v_cmp_le_i32 s[100:101], {8*(r1 >> 2) + (r1 & 3)}, v{VM}")
        a(f"v_cndmask_b32 v{MK+q}, 0, v{t3}, s[98:99]")
        a(f"v_cndmask_b32 v{KF[1]}, 0, v{t4}, s[100:101]")
        a(f"v_or_b32 v{MK+q}, v{MK+q}, v{KF[1]}")
    a(f"s_lshl_b32 s{T0}, s{S_QW}, 8")
    a(f"s_mul_i32 s{T3}, s{S_HH}, {5*PST}")
    a(f"s_add_u32 s{T2}, s{T0}, s{T3}")
    a(f"s_add_u32 s{T2}, s{T2}, {LK}")
    a(f"v_lshlrev_b32 v{t2}, 3, v{t0}")
    a(f"v_add_u32 v{t2}, s{T2}, v{t2}")
    a(f"s_movk_i32 s{T1}, {2*PST}")
    a(f"v_mul_lo_u32 v{t3}, v{t1}, s{T1}")
    a(f"v_add_u32 v{VK}, v{t2}, v{t3}")
    a(f"v_add_u32 v{VKX}, {4*PST}, v{t2}")
    a(f"v_bfe_u32 v{t2}, v1, 4, 1")
    a(f"v_and_b32 v{t3}, 3, v1")
    a(f"v_lshl_add_u32 v{t2}, v{t2}, 2, v{t3}")
    a(f"v_bfe_u32 v{t3}, v1, 2, 2")
    a(f"v_lshl_add_u32 v{t3}, v{t1}, 2, v{t3}")
    a(f"v_lshlrev_b32 v{t3}, 3, v{t3}")
    a(f"v_add_u32 v{t3}, s{T0}, v{t3}")
    a(f"s_movk_i32 s{T1}, {PST}")
    a(f"v_mul_lo_u32 v{t4}, v{t2}, s{T1}")
    a(f"v_cmp_gt_u32 s[{T4}:{T4+1}], 5, v{t2}")
    a(f"s_add_u32 s{T3}, s{T3}, {LV}")
    a(f"s_sub_u32 s{T2}, s{T3}, {LONES}")
    a(f"v_lshlrev_b32 v{KF[0]}, 5, v{t2}")
    a(f"v_add_u32 v{KF[0]}, s{T2}, v{KF[0]}")
    a(f"v_and_b32 v{KF[0]}, 255, v{KF[0]}")
    a(f"v_add_u32 v{KF[0]}, {LONES}, v{KF[0]}")
    a(f"v_add_u32 v{KF[0]+1}, s{T3}, v{t4}")
    a(f"v_cndmask_b32 v{KF[0]}, v{KF[0]}, v{KF[0]+1}, s[{T4}:{T4+1}]")
    a(f"v_add_u32 v{VV}, v{KF[0]}, v{t3}")
    a(f"v_mov_b32 v{CS}, 0x3ea52b5c")
    for st in range(2):
        a(f"v_mov_b32 v{KF[st]+6}, 0"); a(f"v_mov_b32 v{KF[st]+7}, 0")
    a(f"v_mov_b32 v{Q1+2}, 0"); a(f"v_mov_b32 v{Q1+3}, 0")
    a(f"v_lshlrev_b32 v{VW}, 4, v1")
    a(f"s_lshl_b32 s{T0}, s{S_ARB}, 2")
    a(f"s_add_u32 s{S_QB}, s{T0}, s{S_QW}")
    a(f"s_mul_i32 s{T0}, s{S_HH}, 5120")
    a(f"s_lshl_b32 s{T1}, s{S_QW}, 8")
    a(f"s_add_u32 s{T0}, s{T0}, s{T1}")
    a(f"s_add_u32 s{T0}, s{T0}, {QL}")
    a(f"v_lshlrev_b32 v{t2}, 3, v{t0}")
    a(f"v_add_u32 v{t2}, s{T0}, v{t2}")
    a(f"v_lshl_add_u32 v{t3}, v{t1}, 11, v{t2}")
    a("s_waitcnt lgkmcnt(0)")
    a("s_barrier")
    if OPT.get('latev'):
        Lw = uid("lv")
        a(f"s_cmp_ge_u32 s{S_W}, 4")
        a(f"s_cbranch_scc1 {Lw}")
        vm = list(a.vm)
        attn_stage_kv(a, 244, 245, 246, 247, (1,))
        a.vm = vm
        a.label(Lw)
    probe(a, 4)
    a(f"ds_read_b64 {vr(Q0,2)}, v{t3}")
    a(f"ds_read_b64 {vr(Q0+2,2)}, v{t3} offset:1024")
    a(f"ds_read_b64 {vr(Q1,2)}, v{t2} offset:4096")
    a(f"v_cmp_gt_u32 s[{T4}:{T4+1}], 32, v1")
    a("s_waitcnt lgkmcnt(0)")
    for q in (Q1, Q1+1):
        a(f"v_cndmask_b32 v{q}, 0, v{q}, s[{T4}:{T4+1}]")
    mark(a)
    SB = [100, 116, 132]; NM16 = 148
    order = [0, 8, 1, 2, 3, 4, 5, 6, 7]
    a(f"v_mov_b32 v{Q1+2}, 0x3f80")
    a(f"v_cndmask_b32 v{Q1+2}, 0, v{Q1+2}, s[{T4}:{T4+1}]")
    kn = [0]
    def rd_k(tl):
        st = KF[kn[0] % 2]; kn[0] += 1
        a(f"ds_read_b64 {vr(st,2)}, v{VK} offset:{tl*256}", tag=('k', tl))
        a(f"ds_read_b64 {vr(st+2,2)}, v{VK} offset:{PST + tl*256}", tag=('k', tl))
        a(f"ds_read_b64 {vr(st+4,2)}, v{VKX} offset:{tl*256}", tag=('k', tl))
        if tl < 8:
            a(f"s_cmp_lt_u32 s{S_QB}, {8-tl}")
            a(f"s_cselect_b32 s{T0}, 0xf149, 0")
            a(f"v_mov_b32 v{st+6}, s{T0}")
        else:
            a(f"v_mov_b32 v{st+6}, 0")
        return st
    def qk(tl, st, buf, c):
        a.wait_lg(('k', tl))
        d = vr(buf, 16)
        a(f"v_mfma_f32_32x32x16_bf16 {d}, {vr(st,4)}, {vr(Q0,4)}, {c}")
        a(f"v_mfma_f32_32x32x16_bf16 {d}, {vr(st+4,4)}, {vr(Q1,4)}, {d}")
    def merge():
        for r in range(0, 16, 2):
            a(f"v_cmp_le_i32 s[98:99], {8*(r >> 2) + (r & 3)}, v{VM}")
            a(f"v_cmp_le_i32 s[100:101], {8*((r+1) >> 2) + ((r+1) & 3)}, v{VM}")
            a(f"v_cndmask_b32 v{SB[0]+r}, v{SB[0]+r}, v{SB[1]+r}, s[98:99]")
            a(f"v_cndmask_b32 v{SB[0]+r+1}, v{SB[0]+r+1}, v{SB[1]+r+1}, s[100:101]")
    bufs = {0: SB[0], 8: SB[1]}
    for n, tl in enumerate(range(1, 8)): bufs[tl] = SB[(2 - n) % 3]
    def tmax(buf, first):
        for h in range(2):
            m = MX + h
            a(f"v_max3_f32 v{m}, v{buf+8*h}, v{buf+8*h+1}, {'v%d' % (buf+8*h+2) if first else 'v%d' % m}")
            ks = range(3, 8) if first else range(2, 8)
            ks = list(ks)
            while ks:
                if len(ks) >= 2:
                    a(f"v_max3_f32 v{m}, v{m}, v{buf+8*h+ks[0]}, v{buf+8*h+ks[1]}"); ks = ks[2:]
                else:
                    a(f"v_max_f32 v{m}, v{m}, v{buf+8*h+ks[0]}"); ks = ks[1:]
    st = rd_k(0); st2 = rd_k(8)
    qk(0, st, bufs[0], "0")
    st = rd_k(1)
    qk(8, st2, bufs[8], "0")
    st2 = rd_k(2)
    qk(1, st, bufs[1], "0")
    merge()
    tmax(SB[0], True)
    cur = st2
    for tl in range(2, 8):
        nxt = rd_k(tl + 1) if tl + 1 < 8 else None
        qk(tl, cur, bufs[tl], "0")
        tmax(bufs[tl-1], False)
        cur = nxt
    tmax(bufs[7], False)
    a(f"v_max_f32 v{MX}, v{MX}, v{MX+1}")
    a(f"v_mov_b32 v{MX+1}, v{MX}")
    a(f"v_permlane32_swap_b32 v{MX}, v{MX+1}")
    a(f"v_max_f32 v{MX}, v{MX}, v{MX+1}")
    a(f"v_sub_f32 v{NM16}, 0, v{MX}")
    for r in range(1, 16): a(f"v_mov_b32 v{NM16+r}, v{NM16}")
    if OPT.get('fine5'): mark(a)
    st = rd_k(0); st2 = rd_k(8)
    Lv = uid("vb")
    a(f"s_cmp_ge_u32 s{S_W}, 4")
    a(f"s_cbranch_scc1 {Lv}_1")
    a("s_waitcnt vmcnt(0)")
    a.label(f"{Lv}_1")
    if OPT.get('thp', -1) < 0: a("s_waitcnt vmcnt(0)")
    a.vm = []
    a("s_barrier")
    if OPT.get('thp', -1) < 0: flag_store(a, S_FHO, t3)
    dma_wf(a, 0, VW); dma_wf(a, 1, VW)
    mark(a)
    probe(a, 5)
    nv = [0]; ps = [0]
    for r in range(16): a(f"v_mov_b32 v{OA+r}, 0")
    def rd_v(tl, kk):
        slot = nv[0] % 4; nv[0] += 1
        for rd in range(2):
            a(f"ds_read_b64_tr_b16 {vr(VF[slot]+2*rd,2)}, v{VV} offset:{tl*256 + kk*128 + rd*64}", tag=('v', tl, kk))
        return slot
    def frag(src):
        p = PF[ps[0] % 4]; ps[0] += 1
        for e in range(8): a(f"v_exp_f32 v{src+e}, v{src+e}")
        for e in range(4): a(f"v_cvt_pk_bf16_f32 v{p+e}, v{src+2*e}, v{src+2*e+1}")
        return p
    def pv(p, slot, tag):
        a.wait_lg(tag)
        a(f"v_mfma_f32_32x32x16_bf16 {vr(OA,16)}, {vr(VF[slot],4)}, {vr(p,4)}, {vr(OA,16)}")
    C = vr(NM16, 16)
    qk(0, st, bufs[0], C)
    st = rd_k(1)
    qk(8, st2, bufs[8], C)
    st2 = rd_k(2)
    qk(1, st, bufs[1], C)
    merge()
    fin = None; ntok = [0]
    for kk in range(2):
        s0 = rd_v(0, kk); s8 = rd_v(8, kk)
        p = frag(SB[0] + 8*kk)
        p8 = PF[ps[0] % 4]; ps[0] += 1
        for e in range(4): a(f"v_and_b32 v{p8+e}, v{p+e}, v{MK+4*kk+e}")
        for e in range(4): a(f"v_xor_b32 v{p+e}, v{p+e}, v{p8+e}")
        pv(p, s0, ('v', 0, kk))
        pv(p8, s8, ('v', 8, kk))
    def publish_h():
        a("s_waitcnt vmcnt(10)")
        a("s_barrier")
        flag_store(a, S_FHO, t3)
    if OPT.get('thp', -1) == 0: publish_h()
    cur = st2
    for tl in range(1, 8):
        if tl + 1 < 8:
            nxt = rd_k(tl + 2) if tl + 2 < 8 else None
            qk(tl + 1, cur, bufs[tl+1], C)
            cur = nxt
        for kk in range(2):
            slot = rd_v(tl, kk)
            p = frag(bufs[tl] + 8*kk)
            pv(p, slot, ('v', tl, kk))
            if fin is not None and OPT.get('spread_t', 1):
                left = OPT.get('td1', 16) - ntok[0]
                nfr = 2*(7 - tl) + (1 - kk) + 1
                for _ in range(-(-left // nfr)):
                    fin(ntok[0]); ntok[0] += 1
        if tl == OPT.get('thp', -1): publish_h()
        if tl == OPT.get('tpoll', 2): poll_issue(a, VPH, VPH+1, 'ph')
        if tl == OPT.get('ttok', 4):
            if OPT.get('fine5'): mark(a)
            fin = final_setup(a, VPH)
            if OPT.get('fine5'): mark(a)
    a(f"v_and_b32 v{t0}, 1, v1")
    a(f"v_mul_u32_u24 v{t0}, {40*1024}, v{t0}")
    a(f"v_bfe_u32 v{t1}, v1, 1, 4")
    a(f"v_lshl_add_u32 v{t0}, v{t1}, 4, v{t0}")
    a(f"s_and_b32 s{T0}, s{S_QB}, 1")
    a(f"s_lshl_b32 s{T0}, s{T0}, 8")
    a(f"s_lshr_b32 s{T1}, s{S_QB}, 1")
    a(f"s_mul_i32 s{T1}, s{T1}, {80*1024}")
    a(f"s_add_u32 s{T0}, s{T0}, s{T1}")
    a(f"s_add_u32 s{T0}, s{T0}, {WS_O}")
    a(f"v_lshrrev_b32 v{t1}, 5, v1")
    a(f"v_lshl_add_u32 v{t2}, v{t1}, 9, v{t0}")
    a(f"v_rcp_f32 v{NM}, v{OA+12}")
    for r in range(12): a(f"v_mul_f32 v{OA+r}, v{OA+r}, v{NM}")
    for e in range(4): a(f"v_cvt_pk_bf16_f32 v{PF[0]+e}, v{OA+2*e}, v{OA+2*e+1}")
    a(f"v_cvt_pk_bf16_f32 v{PF[1]}, v{OA+8}, v{OA+9}")
    a(f"v_cvt_pk_bf16_f32 v{PF[1]+1}, v{OA+10}, v{OA+11}")
    a(f"s_lshl_b32 s{T1}, s{HP}, 1")
    a(f"s_add_u32 s{T1}, s{T1}, s{S_HH}")
    a(f"s_lshl_b32 s{T1}, s{T1}, 10")
    a(f"s_add_u32 s{T1}, s{T1}, s{T0}")
    a(f"buffer_store_dwordx4 {vr(PF[0],4)}, v{t2}, s[{SRD_WS}:{SRD_WS+3}], s{T1} offen sc1", tag='ost')
    a(f"s_lshr_b32 s{T1}, s{HP}, 1")
    a(f"s_add_u32 s{T1}, s{T1}, 32")
    a(f"s_lshl_b32 s{T1}, s{T1}, 10")
    a(f"s_and_b32 s{T2}, s{HP}, 1")
    a(f"s_lshl_b32 s{T2}, s{T2}, 9")
    a(f"s_add_u32 s{T1}, s{T1}, s{T2}")
    a(f"s_lshl_b32 s{T2}, s{S_HH}, 3")
    a(f"s_add_u32 s{T1}, s{T1}, s{T2}")
    a(f"s_add_u32 s{T1}, s{T1}, s{T0}")
    a("s_mov_b32 exec_hi, 0")
    a(f"buffer_store_dwordx2 {vr(PF[1],2)}, v{t0}, s[{SRD_WS}:{SRD_WS+3}], s{T1} offen sc1", tag='ost')
    a("s_mov_b32 exec_hi, -1")
    S_FO = 78
    a(f"s_lshl_b32 s{T0}, s{S_ARB}, 7")
    a(f"s_lshl_b32 s{T1}, s{HP}, 2")
    a(f"s_add_u32 s{T0}, s{T0}, s{T1}")
    a(f"s_add_u32 s{S_FO}, s{T0}, {WS_FLAG + FO}")
    mark(a)
    return dict(VPH=VPH, VW=VW, S_FO=S_FO, fin=fin)

TR, NT, HM, NM_ = 164, 20, 27, 37
F_HB, F_OB, F_TG, F_KG = 70, 71, 72, 81
F_VB = 11
def final_setup(a, VPH):
    TD = OPT.get('td', 16)
    t1, t2, t3 = 6, 7, 8
    a(f"s_and_b32 s{F_TG}, s{S_W}, 3")
    a(f"s_lshr_b32 s{F_KG}, s{S_W}, 2")
    probe(a, 43)
    poll_check(a, VPH, VPH+1, 'ph')
    probe(a, 44)
    if OPT.get('pfh', 0): touch_h(a, t1, t2)
    a(f"v_lshrrev_b32 v{t1}, 5, v1")
    a(f"v_bfe_u32 v{t2}, v1, 4, 1")
    a(f"v_lshlrev_b32 v{t1}, 10, v{t1}")
    a(f"v_lshl_add_u32 v{t1}, v{t2}, 9, v{t1}")
    a(f"v_and_b32 v{t2}, 15, v1")
    a(f"s_and_b32 s{T0}, s{F_TG}, 1")
    a(f"s_lshl_b32 s{T0}, s{T0}, 4")
    a(f"v_add_u32 v{t3}, s{T0}, v{t2}")
    a(f"v_lshl_add_u32 v{F_VB}, v{t3}, 4, v{t1}")
    a(f"s_lshl_b32 s{T0}, s{S_FRB}, 1")
    a(f"s_lshr_b32 s{T1}, s{F_TG}, 1")
    a(f"s_add_u32 s{T0}, s{T0}, s{T1}")
    a(f"s_lshl_b32 s{T2}, s{F_KG}, 11")
    a(f"s_mul_i32 s{T1}, s{T0}, {108*1024}")
    a(f"s_add_u32 s{T1}, s{T1}, s{T2}")
    a(f"s_add_u32 s{F_HB}, s{T1}, {WS_H}")
    a(f"s_mul_i32 s{T1}, s{T0}, {40*1024}")
    a(f"s_add_u32 s{T1}, s{T1}, s{T2}")
    a(f"s_add_u32 s{F_OB}, s{T1}, {WS_O}")
    def ld_t(m):
        sb, k = (F_HB, m) if m < HM else (F_OB, m - HM)
        if k > 0 and not OPT.get('hotft'): a(f"s_add_u32 s{sb}, s{sb}, 4096")
        a(f"buffer_load_dwordx4 {vr(TR+4*(m % NT),4)}, v{F_VB}, s[{SRD_WS}:{SRD_WS+3}], s{sb} offen sc1", tag=('T', m))
    if not OPT.get('spread_t', 1):
        for m in range(OPT.get('td1', 16)): ld_t(m)
    return ld_t

def stage_final(a, lbl, st):
    VPH, S_FO = st['VPH'], st['S_FO']
    VW = st['VW']; ld_t = st['fin']
    VG, VO, VF = 3, 4, 6
    VA = 12
    t0, t1, t2, t3 = 16, 17, 18, 19
    AS = [20, 40, 60]
    ACB, ACA, BI = 100, 120, 80
    TD = OPT.get('td', 16)
    NM = NM_
    S_TG, S_KG = F_TG, F_KG
    srd(a, SRD_A, P_B2, SIZES['B2'])
    srd(a, SRD_B, P_OUT, SIZES['OUT'])
    a(f"s_mul_i32 s{T0}, s{S_KG}, 5120")
    a(f"v_lshlrev_b32 v{t1}, 4, v1")
    a(f"v_add_u32 v{t1}, s{T0}, v{t1}")
    for k in range(4): a(f"v_add_u32 v{VA+k}, {RING[k]}, v{t1}")
    def rd_a(m, F):
        g, u = m >> 2, m & 3
        a(f"ds_read_b128 {vr(AS[m % 3]+4*F,4)}, v{VA + g % 4} offset:{u*10240 + F*1024}", tag=('A', m, F))
    a.wait_vm(('W', 0))
    a("s_barrier")
    for m in range(2):
        for F in range(5): rd_a(m, F)
    def late_setup():
        a(f"s_lshl_b32 s{T0}, s{S_FRB}, 6")
        a(f"s_lshr_b32 s{T1}, s{S_TG}, 1")
        a(f"s_add_u32 s{T0}, s{T0}, s{T1}")
        a(f"s_and_b32 s{T1}, s{S_TG}, 1")
        a(f"s_lshl_b32 s{T1}, s{T1}, 5")
        a(f"s_add_u32 s{T0}, s{T0}, s{T1}")
        a(f"v_and_b32 v{t3}, 15, v1")
        a(f"v_lshlrev_b32 v{t3}, 1, v{t3}")
        a(f"v_add_u32 v{t3}, s{T0}, v{t3}")
        a(f"v_lshlrev_b32 v{t1}, 2, v{t3}")
        a(f"v_add_u32 v{t1}, {WS_G}, v{t1}")
        a(f"buffer_load_dword v{VG}, v{t1}, s[{SRD_WS}:{SRD_WS+3}], 0 offen sc1", tag='g')
        a(f"v_lshrrev_b32 v{t0}, 4, v1")
        a(f"s_movk_i32 s{T1}, 1280")
        a(f"v_mul_lo_u32 v{t3}, v{t3}, s{T1}")
        a(f"s_mul_i32 s{T0}, s{S_FCJ}, 160")
        a(f"v_lshl_add_u32 v{t3}, v{t0}, 3, v{t3}")
        a(f"v_add_u32 v{VO}, s{T0}, v{t3}")
        a(f"v_lshlrev_b32 v{t1}, 3, v{t0}")
        a(f"v_add_u32 v{t1}, s{T0}, v{t1}")
        for F in range(5):
            a(f"buffer_load_dwordx2 {vr(BI+2*F,2)}, v{t1}, s[{SRD_A}:{SRD_A+3}], 0 offen offset:{32*F}", tag='g')
    if not OPT.get('latef', 1):
        dma_wf(a, 2, VW); late_setup()
    a(f"s_lshr_b32 s{T0}, s{S_FRB}, 1")
    a(f"s_lshl_b32 s{T0}, s{T0}, 7")
    a(f"s_add_u32 s{T0}, s{T0}, {WS_FLAG + FO}")
    a(f"v_and_b32 v{VF}, 15, v1")
    a(f"v_lshlrev_b32 v{VF}, 2, v{VF}")
    a(f"v_add_u32 v{VF}, s{T0}, v{VF}")
    mark(a)
    probe(a, 6)
    NG = 10
    MO = OPT.get('mo', 16)
    POLL = MO - 4
    nxt = [OPT.get('td1', 16)]
    for m in range(NM):
        g, u = m >> 2, m & 3
        if m == HM: probe(a, 7)
        if m == HM: mark(a)
        if u == 2 and g + 1 < NG:
            if g == 0: a.wait_vm(['ost', ('W', 1)])
            else: a.wait_vm(('W', g + 1))
            a("s_barrier")
            if g == 0:
                flag_store(a, S_FO, t1)
                dma_wf(a, 3, VW)
            elif g + 3 < NG and not OPT.get('f_nodma'): dma_wf(a, g + 3, VW)
        if m == POLL: poll_issue(a, VF, VF+1, 'fo')
        if m == MO:
            if OPT.get('fine6'): mark(a)
            poll_check(a, VF, VF+1, 'fo')
            if OPT.get('fine6'): mark(a)
        a.wait_vm(('T', m))
        for F in range(5):
            a.wait_lg(('A', m, F))
            acc = (ACB if m < HM else ACA) + 4*F
            d = vr(acc, 4)
            a(f"v_mfma_f32_16x16x32_bf16 {d}, {vr(AS[m % 3]+4*F,4)}, {vr(TR+4*(m % NT),4)}, {'0' if m in (0, HM) else d}")
            if m + 2 < NM and not OPT.get('f_nolds'):
                rd_a(m + 2, F)
            if F in (1, 3) and not OPT.get('f_notok'):
                lim = min(m + TD, NM - 1)
                if m < MO: lim = min(lim, HM - 1)
                if nxt[0] <= lim and (F == 1 or nxt[0] < lim or OPT.get('td1', 16) < TD or MO > HM - TD):
                    ld_t(nxt[0]); nxt[0] += 1
        if m == 0 and OPT.get('latef', 1): dma_wf(a, 2, VW)
        if m == 8 and OPT.get('latef', 1): late_setup()
    mark(a)
    a.wait_vm('g')
    a(f"v_sub_f32 v{t0}, 1.0, v{VG}")
    Lb = uid("bi")
    a(f"s_cmp_lg_u32 s{S_KG}, 0")
    a(f"s_cbranch_scc1 {Lb}")
    for F in range(5):
        for e in range(2):
            a(f"v_lshlrev_b32 v{t2}, 16, v{BI+2*F+e}")
            a(f"v_and_b32 v{t3}, 0xffff0000, v{BI+2*F+e}")
            a(f"v_add_f32 v{ACB+4*F+2*e}, v{ACB+4*F+2*e}, v{t2}")
            a(f"v_add_f32 v{ACB+4*F+2*e+1}, v{ACB+4*F+2*e+1}, v{t3}")
    a.label(Lb)
    for r in range(20): a(f"v_mul_f32 v{ACB+r}, v{ACB+r}, v{t0}")
    for r in range(20): a(f"v_fmac_f32 v{ACB+r}, v{ACA+r}, v{VG}")
    a(f"v_lshlrev_b32 v{t1}, 4, v1")
    a(f"s_mul_i32 s{T0}, s{S_TG}, 5120")
    a(f"s_add_u32 s{T0}, s{T0}, {RING[2]}")
    a(f"v_add_u32 v{t1}, s{T0}, v{t1}")
    L = uid("rd")
    def finish(own, other):
        for F in other:
            a(f"ds_write_b128 v{t1}, {vr(ACB+4*F,4)} offset:{F*1024}")
        a("s_waitcnt lgkmcnt(0)")
        a("s_barrier")
        for F in own:
            a(f"ds_read_b128 {vr(ACA+4*F,4)}, v{t1} offset:{F*1024}", tag=('r', F))
        for F in own:
            a.wait_lg(('r', F))
            for r in range(4): a(f"v_add_f32 v{ACB+4*F+r}, v{ACB+4*F+r}, v{ACA+4*F+r}")
            d = AS[0] + 2*F
            a(f"v_cvt_pk_bf16_f32 v{d}, v{ACB+4*F}, v{ACB+4*F+1}")
            a(f"v_cvt_pk_bf16_f32 v{d+1}, v{ACB+4*F+2}, v{ACB+4*F+3}")
            a(f"buffer_store_dwordx2 {vr(d,2)}, v{VO}, s[{SRD_B}:{SRD_B+3}], 0 offen offset:{32*F} {['', 'sc1', 'nt', 'sc0 sc1'][OPT.get('outsc', 0)]}".rstrip())
    a(f"s_cmp_eq_u32 s{S_KG}, 0")
    a(f"s_cbranch_scc1 {L}")
    finish((3, 4), (0, 1, 2))
    if G.STAMPS: a("s_waitcnt vmcnt(0)")
    a("s_endpgm")
    a.label(L)
    a.reset_counters()
    finish((0, 1, 2), (3, 4))
    probe_spin(a)
    a.reset_counters()

def code_prefetch(a):
    L = uid("cp")
    a(f"s_cmp_lg_u32 s{S_W}, 3")
    a(f"s_cbranch_scc1 {L}_skip")
    a(f"s_getpc_b64 s[{T4}:{T4+1}]")
    a.label(L)
    a(f"s_and_b32 s{T0}, s{S_I}, 7")
    a(f"s_lshl_b32 s{T0}, s{T0}, 13")
    a("v_lshlrev_b32 v251, 7, v1")
    a(f"v_add_u32 v251, s{T0}, v251")
    a(f"v_min_u32 v251, L_end-{L}-4, v251")
    vm = list(a.vm)
    a(f"global_load_dword v251, v251, s[{T4}:{T4+1}]")
    a.vm = vm
    a.label(f"{L}_skip")

def build():
    if OPT.get('fine2'):
        G_mark = G.mark
    OPT['mega'] = True
    LDS = 163840
    name = NAME + "_kernel"
    a = Asm()
    if G.STAMPS or OPT.get('probe'): a("s_memrealtime s[94:95]")
    a("s_cmp_ge_u32 s2, 256")
    a("s_cbranch_scc1 L_end")
    prologue_ids(a)
    CTX['k'] = 0; CTX['slot'] = 0
    stage1g(a, "s1"); mark(a)
    st = stage_attn(a, "attn")
    stage_final(a, "fin", st)
    if G.STAMPS: a("s_waitcnt vmcnt(0)")
    mark(a)
    a.label("L_end")
    return [(name, a.text())], LDS

DESCRIPTION = """;
; Hand-offs between workgroups go through d_ws: sc1 stores, drained, workgroup barrier, then an sc1 flag holding a
"""

def emit(ks, LDS):
    s = "\n".join(G.header_comment()) + "\n"
    s += f"; @launch grid=(256,1,1) block=(512,1,1) lds={LDS}\n"
    s += DESCRIPTION
    s += '.amdgcn_target "amdgcn-amd-amdhsa--gfx950"\n.text\n'
    for name, body in ks:
        s += G.kernel_text(name, body, 256, LDS)
    s += '.section .rodata,"a"\n'
    for name, _ in ks:
        s += ".p2align 6\n" + G.descriptor(name)
    return s

if __name__ == "__main__":
    if "stamps" in sys.argv: G.STAMPS = True
    for arg in sys.argv[1:]:
        if "=" in arg:
            k, v = arg.split("="); OPT[k] = int(v)
    ks, LDS = build()
    sys.stdout.write(emit(ks, LDS))
```

```python
import sys
import gen as G
from gen import mark4
from gen import (Asm, NAME, SIZES, srd, vr, uid, OPT, mark, stamp, CTX, dpp_sum16, WF_TILE,
                 P_AX, P_WQKV, P_WO, P_W1, P_B1, P_W2, P_B2, P_GW, P_OUT, P_DBG, P_WS,
                 SRD_A, SRD_B, SRD_WS, SRD_C, S_W, S_IDX, S_X, S_I, T0, T1, T2, T3, T4, T5, T6, T7,
                 S_RB, S_CJ, S_MASK, S_NONCE, nonce_post, nonce_get, publish, wait_flags)

WS_ST   = 0x0000000
WS_CS   = 0x0010000
WS_B1   = 0x0012000
WS_G    = G.WS_G
WS_QKV  = G.WS_QKV
WS_H, WS_O, WS_WF, WS_FLAG = G.WS_H, G.WS_O, G.WS_WF, G.WS_FLAG
FS, FW, FQ, FH, FO, FC = 0, 2048, 3072, 5120, 7168, 9216
PST = 3104
LB = 98304
LK, LV, LONES = LB, LB + 10*PST, LB + 20*PST
RING = [0, 40960, 81920, 122880]
WSLOT = 40960
SRD_D = 60
S_KX, S_KQ, S_K1 = 58, 59, 80
S_QB = 61
S_FHO, S_HBO = 86, 87
S_ARB, S_AHP, S_LW = 88, 89, 90

V_FLG = 250
def flag_setup(a):
    a(f"v_mov_b32 v{V_FLG}, 0x7ffffff0")
    a(f"v_cmp_eq_u32 s[{T4}:{T4+1}], 0, v0")
    a(f"v_cndmask_b32 v{V_FLG}, v{V_FLG}, 0, s[{T4}:{T4+1}]")

def flag_store(a, sflag, v):
    a(f"v_mov_b32 v{v}, s{S_NONCE}")
    a(f"buffer_store_dword v{v}, v{V_FLG}, s[{SRD_WS}:{SRD_WS+3}], s{sflag} offen sc1", tag='flag')

def poll_issue(a, voff, vval, tag):
    a(f"buffer_load_dword v{vval}, v{voff}, s[{SRD_WS}:{SRD_WS+3}], 0 offen sc1", tag=tag)

def poll_check(a, voff, vval, tag):
    L = uid("pc")
    a.wait_vm(tag)
    keep = list(a.vm)
    a(f"v_cmp_ne_u32 vcc, s{S_NONCE}, v{vval}")
    a("s_nop 4")
    a(f"s_cbranch_vccz {L}_ok")
    if OPT.get('fastpoll', 0):
        vs = [vval, 244, 245]
        ld = lambda v: a(f"buffer_load_dword v{v}, v{voff}, s[{SRD_WS}:{SRD_WS+3}], 0 offen sc1")
        for v in vs:
            ld(v); a("s_sleep 2")
        a.label(L)
        for v in vs:
            a("s_waitcnt vmcnt(2)")
            a(f"v_cmp_ne_u32 vcc, s{S_NONCE}, v{v}")
            a("s_nop 4")
            a(f"s_cbranch_vccz {L}_dr")
            ld(v)
            a("s_sleep 2")
        a(f"s_branch {L}")
        a.label(f"{L}_dr")
    else:
        a.label(L)
        a("s_sleep 1")
        a(f"buffer_load_dword v{vval}, v{voff}, s[{SRD_WS}:{SRD_WS+3}], 0 offen sc1")
        a("s_waitcnt vmcnt(0)")
        a(f"v_cmp_ne_u32 vcc, s{S_NONCE}, v{vval}")
        a("s_nop 4")
        a(f"s_cbranch_vccnz {L}")
    a.label(f"{L}_ok")
    a.vm = keep

def poll_recheck(a, voff, vval):
    L = uid("pr")
    keep = list(a.vm)
    a.label(L)
    a(f"v_cmp_ne_u32 vcc, s{S_NONCE}, v{vval}")
    a("s_nop 4")
    a(f"s_cbranch_vccz {L}_ok")
    a("s_sleep 1")
    a(f"buffer_load_dword v{vval}, v{voff}, s[{SRD_WS}:{SRD_WS+3}], 0 offen sc1")
    a("s_waitcnt vmcnt(0)")
    a(f"s_branch {L}")
    a.label(f"{L}_ok")
    a.vm = keep

def prologue_ids(a):
    a("s_load_dwordx16 s[4:19], s[0:1], 0")
    a("s_load_dwordx8 s[20:27], s[0:1], 64")
    a("v_lshrrev_b32 v2, 6, v0")
    a("v_and_b32 v1, 63, v0")
    a(f"v_readfirstlane_b32 s{S_W}, v2")
    a(f"s_and_b32 s{S_X}, s2, 7")
    a(f"s_lshr_b32 s{S_I}, s2, 3")
    if OPT.get('cpf', 2) >= 2: code_prefetch(a)
    a(f"s_lshr_b32 s{T0}, s{S_X}, 2")
    a(f"s_lshl_b32 s{T0}, s{T0}, 3")
    a(f"s_and_b32 s{T1}, s{S_I}, 7")
    a(f"s_add_u32 s{S_RB}, s{T0}, s{T1}")
    a(f"s_and_b32 s{T0}, s{S_X}, 3")
    a(f"s_lshl_b32 s{T0}, s{T0}, 2")
    a(f"s_lshr_b32 s{T1}, s{S_I}, 3")
    a(f"s_add_u32 s{S_CJ}, s{T0}, s{T1}")

def prologue_rest(a):
    srd(a, SRD_WS, P_WS, G.WS_SIZE)
    flag_setup(a)
    nonce_post(a)
    if OPT.get('cpf', 2) == 1: code_prefetch(a)
    stamp(a, 0, 0)
    if G.STAMPS:
        a("s_lshl_b32 s97, s2, 7")
        a(f"s_add_u32 s97, s97, {G.WS_STAMP + 15*4}")
        a("v_mov_b32 v254, s94")
        a(f"buffer_store_dword v254, off, s[{SRD_WS}:{SRD_WS+3}], s97")
        a.vm.pop()

RX, RG, RT, RO = 160, 168, 176, 186
VS = 128
S_ST, S_RPO, S_RPM = 82, 83, 84

def pre_address(a, lbl, two=False, rows=True):
    t0, t1, t2, t3, t4, t5 = range(RT, RT+6)
    if rows: row_address(a, two)
    repack_address(a, lbl)

def row_address(a, two):
    t0, t1, t2, t3, t4, t5 = range(RT, RT+6)
    srd(a, SRD_D, P_GW, SIZES['GW'])
    a(f"s_lshl_b32 s{T0}, s{S_RB}, 7")
    a(f"s_lshl_b32 s{T1}, s{S_CJ}, 3")
    a(f"s_add_u32 s{T0}, s{T0}, s{T1}")
    a(f"s_add_u32 s{T0}, s{T0}, s{S_W}")
    if two: a(f"s_sub_u32 s{T0}, s{T0}, 4")
    a(f"s_mul_i32 s{T1}, s{T0}, 1280")
    a(f"v_lshlrev_b32 v{RO+1}, 4, v1")
    a(f"v_add_u32 v{RO}, s{T1}, v{RO+1}")
    a(f"v_mov_b32 v{t0}, 0x7ffffff0")
    a(f"v_cmp_gt_u32 s[{T4}:{T4+1}], 16, v1")
    a(f"v_add_u32 v{t1}, 1024, v{RO}")
    a(f"v_cndmask_b32 v{RO+2}, v{t0}, v{t1}, s[{T4}:{T4+1}]")
    a(f"v_add_u32 v{t1}, 1024, v{RO+1}")
    a(f"v_cndmask_b32 v{RO+3}, v{t0}, v{t1}, s[{T4}:{T4+1}]")
    a(f"s_mov_b32 s85, s{T0}")

def repack_address(a, lbl):
    t0, t1, t2, t3, t4, t5 = range(RT, RT+6)
    a(f"s_mul_i32 s{T0}, s{S_I}, 3")
    a(f"s_lshl_b32 s{T1}, s{S_I}, 1")
    a(f"s_add_u32 s{T1}, s{T1}, 10")
    a(f"s_cmp_lt_u32 s{S_I}, 10")
    a(f"s_cselect_b32 s{T0}, s{T0}, s{T1}")
    a(f"s_cselect_b32 s{T1}, 3, 2")
    a(f"s_sub_u32 s{T2}, s{S_W}, 4")
    a(f"s_add_u32 s{S_ST}, s{T0}, s{T2}")
    a(f"s_cmp_lt_u32 s{T2}, s{T1}")
    a(f"s_cselect_b32 s{S_ST}, s{S_ST}, 0x100")
    a(f"s_cselect_b32 s{S_RPO}, 0, 0x7fff0000")
    a(f"s_mul_i32 s{T2}, s{T2}, 5120")
    a(f"s_add_u32 s{T2}, s{T2}, {RPL}")
    a(f"s_cselect_b32 s{S_RPM}, s{T2}, s{T2}") if False else None
    a(f"s_cmp_lt_u32 s{S_ST}, 74")
    a(f"s_cselect_b32 s{S_RPM}, s{T2}, {163840}")
    for n in range(5): a(f"v_mov_b32 v{VS+n}, 0")
    srd(a, SRD_C, P_W2, SIZES['W2'])
    a(f"s_cmp_ge_u32 s{S_ST}, 74")
    a(f"s_cbranch_scc1 {lbl}_go")
    a(f"s_movk_i32 s{T6}, 6554")
    a(f"s_movk_i32 s{T7}, 1280")
    a(f"s_mul_i32 s{T2}, s{S_X}, 160")
    a(f"s_cmp_ge_u32 s{S_ST}, 54")
    a(f"s_cbranch_scc1 {lbl}_wo")
    a(f"s_lshl_b32 s{T3}, s{S_ST}, 5")
    for n in range(5):
        a(f"v_add_u32 v{t0}, {64*n}, v1")
        a(f"v_mul_u32_u24 v{t1}, s{T6}, v{t0}")
        a(f"v_lshrrev_b32 v{t1}, 16, v{t1}")
        a(f"v_mul_u32_u24 v{t2}, 10, v{t1}")
        a(f"v_sub_u32 v{t2}, v{t0}, v{t2}")
        a(f"v_add_u32 v{t1}, s{T3}, v{t1}")
        a(f"v_mul_lo_u32 v{t1}, v{t1}, s{T7}")
        a(f"v_lshl_add_u32 v{t1}, v{t2}, 4, v{t1}")
        a(f"v_add_u32 v{VS+n}, s{T2}, v{t1}")
    a(f"s_branch {lbl}_go")
    a.label(f"{lbl}_wo")
    srd(a, SRD_C, P_WO, SIZES['WO'])
    a(f"s_sub_u32 s{T3}, s{S_ST}, 54")
    a(f"s_lshl_b32 s{T3}, s{T3}, 1")
    for n in range(5):
        a(f"v_add_u32 v{t0}, {64*n}, v1")
        a(f"v_mul_u32_u24 v{t1}, s{T6}, v{t0}")
        a(f"v_lshrrev_b32 v{t1}, 16, v{t1}")
        a(f"v_mul_u32_u24 v{t2}, 10, v{t1}")
        a(f"v_sub_u32 v{t2}, v{t0}, v{t2}")
        a(f"v_lshrrev_b32 v{t3}, 4, v{t1}")
        a(f"v_add_u32 v{t3}, s{T3}, v{t3}")
        a(f"v_and_b32 v{t1}, 15, v{t1}")
        a(f"v_mul_u32_u24 v{t4}, 20, v{t3}")
        a(f"v_add_u32 v{t4}, v{t4}, v{t1}")
        a(f"v_cmp_gt_u32 s[98:99], 32, v{t3}")
        a(f"v_subrev_u32 v{t3}, 32, v{t3}")
        a(f"v_lshlrev_b32 v{t3}, 2, v{t3}")
        a(f"v_bfe_u32 v{t5}, v{t1}, 2, 1")
        a(f"v_lshl_add_u32 v{t3}, v{t5}, 1, v{t3}")
        a(f"v_lshrrev_b32 v{t5}, 3, v{t1}")
        a(f"v_add_u32 v{t3}, v{t3}, v{t5}")
        a(f"v_mul_u32_u24 v{t3}, 20, v{t3}")
        a(f"v_and_b32 v{t1}, 3, v{t1}")
        a(f"v_add3_u32 v{t3}, v{t3}, v{t1}, 16")
        a(f"v_cndmask_b32 v{t1}, v{t3}, v{t4}, s[98:99]")
        a(f"v_mul_lo_u32 v{t1}, v{t1}, s{T7}")
        a(f"v_lshl_add_u32 v{t1}, v{t2}, 4, v{t1}")
        a(f"v_add_u32 v{VS+n}, s{T2}, v{t1}")
    a.label(f"{lbl}_go")

def row_issue2(a):
    a(f"v_add_u32 v{RO}, {4*1280}, v{RO}")
    a(f"v_mov_b32 v{RT}, 0x7ffffff0")
    a(f"v_add_u32 v{RT+1}, 1024, v{RO}")
    a(f"v_cmp_gt_u32 s[100:101], 16, v1")
    a(f"v_cndmask_b32 v{RO+2}, v{RT}, v{RT+1}, s[100:101]")
    a(f"buffer_load_dwordx4 {vr(RX2,4)}, v{RO}, s[{SRD_A}:{SRD_A+3}], 0 offen", tag='pl2')
    a(f"buffer_load_dwordx4 {vr(RX2+4,4)}, v{RO+2}, s[{SRD_A}:{SRD_A+3}], 0 offen", tag='pl2')

RX2 = 192
def pre_issue(a, rows=True):
    if rows:
        a(f"buffer_load_dwordx4 {vr(RX,4)}, v{RO}, s[{SRD_A}:{SRD_A+3}], 0 offen", tag='pl')
        a(f"buffer_load_dwordx4 {vr(RX+4,4)}, v{RO+2}, s[{SRD_A}:{SRD_A+3}], 0 offen", tag='pl')
        a(f"buffer_load_dwordx4 {vr(RG,4)}, v{RO+1}, s[{SRD_D}:{SRD_D+3}], 0 offen", tag='pl')
        a(f"buffer_load_dwordx4 {vr(RG+4,4)}, v{RO+3}, s[{SRD_D}:{SRD_D+3}], 0 offen", tag='pl')
    for n in range(5):
        a(f"s_add_u32 m0, s{S_RPM}, {n*1024}")
        a(f"buffer_load_dwordx4 v{VS+n}, s[{SRD_C}:{SRD_C+3}], s{S_RPO} offen lds", tag='pl')

def pre_thunks(a, RX=RX, tag='pl', VO=RO):
    su, sq, dt, one, t0, t1, t2 = range(RT, RT+7)
    T = []
    I = lambda txt: T.append(lambda: a(txt))
    T.append(lambda: a.wait_vm(tag))
    I(f"v_mov_b32 v{one}, 0x3f803f80")
    I(f"v_mov_b32 v{su}, 0"); I(f"v_mov_b32 v{sq}, 0"); I(f"v_mov_b32 v{dt}, 0")
    for d in range(8):
        I(f"v_dot2c_f32_bf16 v{su}, v{RX+d}, v{one}")
        I(f"v_dot2c_f32_bf16 v{sq}, v{RX+d}, v{RX+d}")
        I(f"v_dot2c_f32_bf16 v{dt}, v{RX+d}, v{RG+d}")
    for r in (8, 4, 2, 1):
        for v in (su, sq, dt):
            I(f"v_add_f32_dpp v{v}, v{v}, v{v} row_ror:{r} row_mask:0xf bank_mask:0xf")
    for op in ("v_permlane16_swap_b32", "v_permlane32_swap_b32"):
        for v, t in ((su, t0), (sq, t1), (dt, t2)): I(f"v_mov_b32 v{t}, v{v}")
        for v, t in ((su, t0), (sq, t1), (dt, t2)): I(f"{op} v{v}, v{t}")
        for v, t in ((su, t0), (sq, t1), (dt, t2)): I(f"v_add_f32 v{v}, v{v}, v{t}")
    I(f"v_mul_f32 v{su}, 0x3acccccd, v{su}")
    I(f"v_mul_f32 v{sq}, 0x3acccccd, v{sq}")
    I(f"v_mul_f32 v{dt}, 0xbfb8aa3b, v{dt}")
    I(f"v_fma_f32 v{sq}, -v{su}, v{su}, v{sq}")
    I(f"v_exp_f32 v{dt}, v{dt}")
    I(f"v_add_f32 v{sq}, 0x3727c5ac, v{sq}")
    I(f"v_add_f32 v{dt}, 1.0, v{dt}")
    I(f"v_rsq_f32 v{t1}, v{sq}")
    I(f"v_rcp_f32 v{dt}, v{dt}")
    I(f"v_mul_f32 v{t0}, v{su}, v{t1}")
    I(f"v_sub_f32 v{t0}, 0, v{t0}")
    I(f"v_mov_b32 v{VO}, 0x7ffffff0")
    I(f"v_cmp_eq_u32 s[100:101], 0, v1")
    I(f"v_cndmask_b32 v{VO}, v{VO}, 0, s[100:101]")
    I(f"s_lshl_b32 s98, s85, 3")
    I(f"s_add_u32 s98, s98, {WS_ST}")
    T.append(lambda: a(f"buffer_store_dwordx2 {vr(t0,2)}, v{VO}, s[{SRD_WS}:{SRD_WS+3}], s98 offen sc1", tag='pst'))
    I(f"s_lshl_b32 s98, s85, 2")
    I(f"s_add_u32 s98, s98, {WS_G}")
    T.append(lambda: a(f"buffer_store_dword v{dt}, v{VO}, s[{SRD_WS}:{SRD_WS+3}], s98 offen sc1", tag='pst'))
    return T

def rowstats_issue(a):
    XB, GW, o0, o1, t0 = 128, 108, 96, 97, 98
    srd(a, SRD_D, P_GW, SIZES['GW'])
    a(f"s_lshl_b32 s{T0}, s{S_RB}, 7")
    a(f"s_lshl_b32 s{T1}, s{S_W}, 4")
    a(f"s_add_u32 s85, s{T0}, s{T1}")
    a(f"v_lshrrev_b32 v{t0}, 4, v1")
    a(f"v_add_u32 v{t0}, s85, v{t0}")
    a(f"s_movk_i32 s{T1}, 1280")
    a(f"v_mul_lo_u32 v{o0}, v{t0}, s{T1}")
    a(f"v_and_b32 v{o1}, 15, v1")
    a(f"v_lshlrev_b32 v{o1}, 4, v{o1}")
    a(f"v_add_u32 v{o0}, v{o0}, v{o1}")
    for i in range(5):
        a(f"buffer_load_dwordx4 {vr(GW+4*i,4)}, v{o1}, s[{SRD_D}:{SRD_D+3}], 0 offen offset:{256*i}", tag='gw')
    for q in range(4):
        a(f"s_movk_i32 s{T2}, {q*4*1280}")
        for i in range(5):
            a(f"buffer_load_dwordx4 {vr(XB+20*q+4*i,4)}, v{o0}, s[{SRD_A}:{SRD_A+3}], s{T2} offen offset:{256*i}", tag=('x', q))

def rowstats_compute(a):
    XB, GW = 128, 108
    su, sq, dt, one, t0, t1, t2 = 98, 99, 100, 101, 102, 103, 104
    NMv, RSv, GV = 106, 107, 105
    a(f"v_mov_b32 v{one}, 0x3f803f80")
    a(f"v_and_b32 v{t2}, 15, v1")
    for q in range(4):
        a.wait_vm(('x', q))
        a(f"v_mov_b32 v{su}, 0"); a(f"v_mov_b32 v{sq}, 0"); a(f"v_mov_b32 v{dt}, 0")
        for d in range(20):
            x = XB + 20*q + d
            a(f"v_dot2c_f32_bf16 v{su}, v{x}, v{one}")
            a(f"v_dot2c_f32_bf16 v{sq}, v{x}, v{x}")
            a(f"v_dot2c_f32_bf16 v{dt}, v{x}, v{GW+d}")
        for k in (8, 4, 2, 1):
            for v in (su, sq, dt):
                a(f"v_add_f32_dpp v{v}, v{v}, v{v} row_ror:{k} row_mask:0xf bank_mask:0xf")
        a(f"v_mul_f32 v{su}, 0x3acccccd, v{su}")
        a(f"v_mul_f32 v{sq}, 0x3acccccd, v{sq}")
        a(f"v_mul_f32 v{dt}, 0xbfb8aa3b, v{dt}")
        a(f"v_fma_f32 v{sq}, -v{su}, v{su}, v{sq}")
        a(f"v_exp_f32 v{dt}, v{dt}")
        a(f"v_max_f32 v{sq}, 0, v{sq}")
        a(f"v_add_f32 v{sq}, 0x3727c5ac, v{sq}")
        a(f"v_add_f32 v{dt}, 1.0, v{dt}")
        a(f"v_rsq_f32 v{t1}, v{sq}")
        a(f"v_rcp_f32 v{dt}, v{dt}")
        a(f"v_mul_f32 v{t0}, v{su}, v{t1}")
        a(f"v_sub_f32 v{t0}, 0, v{t0}")
        a(f"v_cmp_eq_u32 s[{T4}:{T4+1}], {q}, v{t2}")
        a(f"v_cndmask_b32 v{NMv}, v{NMv}, v{t0}, s[{T4}:{T4+1}]")
        a(f"v_cndmask_b32 v{RSv}, v{RSv}, v{t1}, s[{T4}:{T4+1}]")
        a(f"v_cndmask_b32 v{GV}, v{GV}, v{dt}, s[{T4}:{T4+1}]")
    a(f"v_lshrrev_b32 v{t0}, 4, v1")
    a(f"v_lshl_add_u32 v{t0}, v{t2}, 2, v{t0}")
    a(f"v_add_u32 v{t0}, s85, v{t0}")
    a(f"v_mov_b32 v{su}, 0x7ffffff0")
    a(f"v_cmp_gt_u32 s[{T4}:{T4+1}], 4, v{t2}")
    a(f"v_lshlrev_b32 v{t1}, 3, v{t0}")
    a(f"v_cndmask_b32 v{t1}, v{su}, v{t1}, s[{T4}:{T4+1}]")
    a(f"v_lshlrev_b32 v{t0}, 2, v{t0}")
    a(f"v_cndmask_b32 v{t0}, v{su}, v{t0}, s[{T4}:{T4+1}]")
    a(f"s_mov_b32 s{T0}, {WS_ST}")
    a(f"buffer_store_dwordx2 {vr(NMv,2)}, v{t1}, s[{SRD_WS}:{SRD_WS+3}], s{T0} offen sc1", tag='pst')
    a(f"s_mov_b32 s{T0}, {WS_G}")
    a(f"buffer_store_dword v{GV}, v{t0}, s[{SRD_WS}:{SRD_WS+3}], s{T0} offen sc1", tag='pst')

RPL = 147456
def repack_finish(a):
    D, VA, VD = 136, 134, 135
    L = uid("rf")
    a(f"v_mov_b32 v{VD}, 0x7ffffff0")
    a(f"s_cmp_ge_u32 s82, 74")
    a(f"s_cbranch_scc1 {L}")
    a(f"s_mul_i32 s{T0}, s{S_X}, {WF_TILE}")
    a(f"s_mul_i32 s{T1}, s82, 5120")
    a(f"s_add_u32 s{T0}, s{T0}, s{T1}")
    a(f"s_add_u32 s{T0}, s{T0}, {WS_WF}")
    a(f"v_lshlrev_b32 v{VD}, 4, v1")
    a(f"v_add_u32 v{VD}, s{T0}, v{VD}")
    a(f"v_lshrrev_b32 v{VA}, 5, v1")
    a(f"v_bfe_u32 v{D}, v1, 4, 1")
    a(f"v_lshlrev_b32 v{VA}, 4, v{VA}")
    a(f"v_lshl_add_u32 v{VA}, v{D}, 2, v{VA}")
    a(f"v_bfe_u32 v{D}, v1, 2, 2")
    a(f"v_add_u32 v{VA}, v{VA}, v{D}")
    a(f"v_mul_u32_u24 v{VA}, 160, v{VA}")
    a(f"v_and_b32 v{D}, 3, v1")
    a(f"v_lshl_add_u32 v{VA}, v{D}, 3, v{VA}")
    a(f"v_add_u32 v{VA}, s{S_RPM}, v{VA}")
    lg = list(a.lg)
    for F in range(5):
        for rd in range(2):
            a(f"ds_read_b64_tr_b16 {vr(D+4*F+2*rd,2)}, v{VA} offset:{rd*1280 + F*32}")
    a("s_waitcnt lgkmcnt(0)")
    a.lg = lg
    a.label(L)
    for F in range(5):
        a(f"s_movk_i32 s{T1}, {F*1024}")
        a(f"buffer_store_dwordx4 {vr(D+4*F,4)}, v{VD}, s[{SRD_WS}:{SRD_WS+3}], s{T1} offen sc1", tag='pst')

def nonce_issue(a, v):
    a(f"v_mov_b32 v{v+1}, 0")
    a(f"global_load_dword v{v}, v{v+1}, s[{P_DBG}:{P_DBG+1}] sc1", tag='nonce')

def nonce_check(a, v):
    L = uid("ng")
    a.wait_vm('nonce')
    keep = list(a.vm)
    a.label(L)
    a(f"v_readfirstlane_b32 s{S_NONCE}, v{v}")
    a(f"s_cmp_lg_u32 s{S_NONCE}, 0")
    a(f"s_cbranch_scc1 {L}_ok")
    a("s_sleep 2")
    a(f"global_load_dword v{v}, v{v+1}, s[{P_DBG}:{P_DBG+1}] sc1")
    a("s_waitcnt vmcnt(0)")
    a(f"s_branch {L}")
    a.label(f"{L}_ok")
    a.vm = keep

def pre_flags(a, v, stats=True):
    if stats:
        a(f"s_lshl_b32 s{T0}, s{S_RB}, 7")
        a(f"s_add_u32 s{T0}, s{T0}, {WS_FLAG + FS}")
        flag_store(a, T0, v)
    a(f"s_lshl_b32 s{T0}, s{S_X}, 7")
    a(f"s_lshl_b32 s{T1}, s{S_I}, 2")
    a(f"s_add_u32 s{T0}, s{T0}, s{T1}")
    a(f"s_add_u32 s{T0}, s{T0}, {WS_FLAG + FW}")
    flag_store(a, T0, v)

CD = 16
def colsum_issue(a):
    srd(a, SRD_B, P_W1, SIZES['W1'])
    srd(a, SRD_C, P_B1, SIZES['B1']) if False else None
    t0, t1, VO = 2, 3, 5
    a(f"v_lshrrev_b32 v{t0}, 4, v0")
    a(f"s_movk_i32 s{T0}, 3456")
    a(f"v_mul_lo_u32 v{t0}, v{t0}, s{T0}")
    a(f"v_and_b32 v{t1}, 15, v0")
    a(f"v_lshl_add_u32 v{t0}, v{t1}, 4, v{t0}")
    a(f"s_lshl_b32 s{T1}, s{S_RB}, 8")
    a(f"v_add_u32 v{VO}, s{T1}, v{t0}")
    a(f"s_cmp_lt_u32 s{S_RB}, 14")
    a(f"s_cselect_b32 s{T3}, 0, 0x7fff0000")
    for p in range(20):
        a(f"s_add_u32 s{T2}, s{T3}, {p*32*3456}")
        a(f"buffer_load_dwordx4 {vr(CD+4*p,4)}, v{VO}, s[{SRD_B}:{SRD_B+3}], s{T2} offen", tag=('cs', p))

def colsum_compute(a, lbl):
    t0, t1, t2 = 2, 3, 4
    ACC, LO, HI = 8, 6, 7
    srd(a, SRD_B, P_B1, SIZES['B1'])
    a(f"s_lshl_b32 s{T1}, s{S_RB}, 8")
    a(f"v_lshlrev_b32 v{t2}, 1, v0")
    a(f"v_add_u32 v{t2}, s{T1}, v{t2}")
    a(f"buffer_load_ushort v{t2}, v{t2}, s[{SRD_B}:{SRD_B+3}], 0 offen", tag='b1')
    a(f"v_mov_b32 v{LO}, 0x00003f80")
    a(f"v_mov_b32 v{HI}, 0x3f800000")
    for e in range(8): a(f"v_mov_b32 v{ACC+e}, 0")
    for p in range(20):
        a.wait_vm(('cs', p))
        for d in range(4):
            a(f"v_dot2c_f32_bf16 v{ACC+2*d}, v{CD+4*p+d}, v{LO}")
            a(f"v_dot2c_f32_bf16 v{ACC+2*d+1}, v{CD+4*p+d}, v{HI}")
    a(f"v_lshrrev_b32 v{t0}, 4, v0")
    a(f"v_lshlrev_b32 v{t0}, 9, v{t0}")
    a(f"v_and_b32 v{t1}, 15, v0")
    a(f"v_lshl_add_u32 v{t0}, v{t1}, 5, v{t0}")
    a(f"ds_write_b128 v{t0}, {vr(ACC,4)}")
    a(f"ds_write_b128 v{t0}, {vr(ACC+4,4)} offset:16")
    a("s_waitcnt lgkmcnt(0)")
    a("s_barrier")
    a(f"v_and_b32 v{t0}, 127, v0")
    a(f"v_lshlrev_b32 v{t0}, 2, v{t0}")
    for g in range(32):
        a(f"ds_read_b32 v{CD+g}, v{t0} offset:{g*512}")
    a("s_waitcnt lgkmcnt(0)")
    for g in range(0, 32, 2): a(f"v_add_f32 v{CD+g}, v{CD+g}, v{CD+g+1}")
    for g in range(2, 32, 2): a(f"v_add_f32 v{CD}, v{CD}, v{CD+g}")
    a.wait_vm('b1')
    a(f"v_lshlrev_b32 v{t2}, 16, v{t2}")
    a(f"s_lshl_b32 s{T1}, s{S_RB}, 9")
    a(f"v_add_u32 v{t0}, s{T1}, v{t0}")
    a(f"v_mov_b32 v{t1}, 0x7ffffff0")
    a(f"v_mov_b32 v{LO}, 128")
    a(f"v_cmp_gt_u32 s[{T4}:{T4+1}], v{LO}, v0")
    a(f"v_cndmask_b32 v{t0}, v{t1}, v{t0}, s[{T4}:{T4+1}]")
    a(f"s_mov_b32 s{T0}, 0x7fff0000")
    a(f"s_cmp_lt_u32 s{S_RB}, 14")
    a(f"s_cselect_b32 s{T2}, {WS_CS}, s{T0}")
    a(f"s_cselect_b32 s{T3}, {WS_B1}, s{T0}")
    a(f"buffer_store_dword v{CD}, v{t0}, s[{SRD_WS}:{SRD_WS+3}], s{T2} offen sc1", tag='pst')
    a(f"buffer_store_dword v{t2}, v{t0}, s[{SRD_WS}:{SRD_WS+3}], s{T3} offen sc1", tag='pst')

S_FRB, S_FCJ = 73, 74
S_WM, S_WG = 75, 76

def final_coords(a):
    a(f"s_lshr_b32 s{T0}, s{S_X}, 1")
    a(f"s_lshl_b32 s{T0}, s{T0}, 3")
    a(f"s_and_b32 s{T1}, s{S_I}, 7")
    a(f"s_add_u32 s{S_FRB}, s{T0}, s{T1}")
    a(f"s_and_b32 s{T0}, s{S_X}, 1")
    a(f"s_lshl_b32 s{T0}, s{T0}, 2")
    a(f"s_lshr_b32 s{T1}, s{S_I}, 3")
    a(f"s_add_u32 s{S_FCJ}, s{T0}, s{T1}")
    a(f"s_mul_i32 s{S_WM}, s{S_W}, 5120")
    a(f"s_mul_i32 s{T0}, s{S_FCJ}, {WF_TILE}")
    a(f"s_add_u32 s{T0}, s{T0}, s{S_WM}")
    a(f"s_add_u32 s{S_WG}, s{T0}, {WS_WF}")

def dma_wf(a, g, vw):
    S_KW = 77
    a(f"s_add_u32 m0, s{S_WM}, {RING[g % 4]}")
    a(f"s_add_u32 s{S_KW}, s{S_WG}, {0 if OPT.get('hotfw') else g*WSLOT}")
    if g == 9:
        a(f"s_cmp_ge_u32 s{S_W}, 2")
        a(f"s_cselect_b32 s{S_KW}, 0x7fff0000, s{S_KW}")
    for n in range(4):
        a(f"buffer_load_dwordx4 v{vw}, s[{SRD_WS}:{SRD_WS+3}], s{S_KW} offen offset:{n*1024} sc1 lds", tag=('W', g))
    a(f"s_add_u32 m0, m0, 4096")
    a(f"s_add_u32 s{S_KW}, s{S_KW}, 4096")
    a(f"buffer_load_dwordx4 v{vw}, s[{SRD_WS}:{SRD_WS+3}], s{S_KW} offen sc1 lds", tag=('W', g))

SL2 = 32768
def attn_coords(a):
    a(f"s_lshl_b32 s{T0}, s{S_X}, 1")
    a(f"s_and_b32 s{T1}, s{S_I}, 1")
    a(f"s_add_u32 s{S_AHP}, s{T0}, s{T1}")
    a(f"s_lshr_b32 s{S_ARB}, s{S_I}, 1")
    a(f"s_lshr_b32 s78, s{S_W}, 2")
    a(f"s_and_b32 s79, s{S_W}, 3")

def fq_poll_offsets(a, vo, vt):
    a(f"v_lshrrev_b32 v{vo}, 4, v1")
    a(f"s_sub_u32 s{T0}, s{S_ARB}, 2")
    a(f"v_add_u32 v{vo}, s{T0}, v{vo}")
    a(f"v_and_b32 v{vt}, 15, v1")
    a(f"v_cmp_le_i32 s[{T4}:{T4+1}], 0, v{vo}")
    a(f"v_cmp_gt_u32 s[{T2}:{T2+1}], 15, v{vt}")
    a(f"s_and_b64 s[{T4}:{T4+1}], s[{T4}:{T4+1}], s[{T2}:{T2+1}]")
    a(f"s_mov_b32 s{T2}, -1")
    a(f"s_mov_b32 s{T2+1}, 0xffff")
    a(f"s_and_b64 s[{T4}:{T4+1}], s[{T4}:{T4+1}], s[{T2}:{T2+1}]")
    a(f"v_lshlrev_b32 v{vo}, 7, v{vo}")
    a(f"v_lshl_add_u32 v{vo}, v{vt}, 2, v{vo}")
    a(f"s_lshl_b32 s{T0}, s{S_ARB}, 7")
    a(f"v_mov_b32 v{vt}, s{T0}")
    a(f"v_cndmask_b32 v{vo}, v{vt}, v{vo}, s[{T4}:{T4+1}]")
    a(f"v_add_u32 v{vo}, {WS_FLAG + FQ}, v{vo}")

def attn_q_loads(a, t0, t1, t2, t3, AQ0=20, AQ1=24):
    a(f"s_lshl_b32 s{T0}, s{S_ARB}, 2")
    a(f"s_add_u32 s{S_QB}, s{T0}, s79")
    a(f"v_and_b32 v{t0}, 31, v1")
    a(f"v_lshrrev_b32 v{t1}, 5, v1")
    a(f"s_lshl_b32 s{T1}, s{S_QB}, 8")
    a(f"v_lshlrev_b32 v{t2}, 3, v{t0}")
    a(f"v_add_u32 v{t2}, s{T1}, v{t2}")
    a(f"v_lshl_add_u32 v{t3}, v{t1}, 15, v{t2}")
    a(f"s_lshl_b32 s{T2}, s{S_AHP}, 1")
    a(f"s_add_u32 s{T2}, s{T2}, s78")
    a(f"s_mul_i32 s{T2}, s{T2}, {5*16384}")
    a(f"s_add_u32 s{T1}, s{T2}, {WS_QKV}")
    a(f"buffer_load_dwordx2 {vr(AQ0,2)}, v{t3}, s[{SRD_WS}:{SRD_WS+3}], s{T1} offen sc1", tag='q')
    a(f"s_add_u32 s{T1}, s{T1}, 16384")
    a(f"buffer_load_dwordx2 {vr(AQ0+2,2)}, v{t3}, s[{SRD_WS}:{SRD_WS+3}], s{T1} offen sc1", tag='q')
    a(f"s_add_u32 s{T1}, s{T1}, {3*16384}")
    a(f"buffer_load_dwordx2 {vr(AQ1,2)}, v{t2}, s[{SRD_WS}:{SRD_WS+3}], s{T1} offen sc1", tag='q')

def fw_poll_offsets(a, vo):
    a(f"v_and_b32 v{vo}, 31, v1")
    a(f"v_lshlrev_b32 v{vo}, 2, v{vo}")
    a(f"s_lshl_b32 s{T1}, s{S_FCJ}, 7")
    a(f"s_add_u32 s{T1}, s{T1}, {WS_FLAG + FW}")
    a(f"v_add_u32 v{vo}, s{T1}, v{vo}")

def wf_first_slots(a, vw):
    a(f"v_lshlrev_b32 v{vw}, 4, v1")
    a(f"s_mul_i32 s{T0}, s{S_W}, 10240")
    a(f"s_mul_i32 s{T1}, s{S_FCJ}, {WF_TILE}")
    a(f"s_add_u32 s{T1}, s{T1}, s{T0}")
    a(f"s_add_u32 s{T1}, s{T1}, {WS_WF}")
    for g in range(2):
        for part in range(3):
            a(f"s_add_u32 m0, s{T0}, {RING[g] + part*4096}")
            a(f"s_add_u32 s{T2}, s{T1}, {g*WSLOT + part*4096}")
            for n in range(4 if part < 2 else 2):
                a(f"buffer_load_dwordx4 v{vw}, s[{SRD_WS}:{SRD_WS+3}], s{T2} offen offset:{n*1024} sc1 lds", tag=('W', g))

QL = 81920
def attn_stage_q(a, vd):
    a(f"v_lshlrev_b32 v{vd}, 4, v1")
    a(f"s_mul_i32 s{T2}, s{S_AHP}, {10*16384}")
    a(f"s_lshl_b32 s{T0}, s{S_ARB}, 10")
    a(f"s_add_u32 s{T2}, s{T2}, s{T0}")
    a(f"s_add_u32 s{T2}, s{T2}, {WS_QKV}")
    for k in range(3):
        a(f"s_add_u32 s{T0}, s{S_W}, {4*k}")
        a(f"s_lshl_b32 s{T1}, s{T0}, 14")
        a(f"s_add_u32 s{T1}, s{T1}, s{T2}")
        a(f"s_lshl_b32 s{T3}, s{T0}, 10")
        a(f"s_add_u32 s{T3}, s{T3}, {QL}")
        if k == 2:
            a(f"s_cmp_lt_u32 s{T0}, 10")
            a(f"s_cselect_b32 s{T1}, s{T1}, 0x7fff0000")
        a(f"s_mov_b32 m0, s{T3}")
        a(f"buffer_load_dwordx4 v{vd}, s[{SRD_WS}:{SRD_WS+3}], s{T1} offen sc1 lds", tag='q')

def touch_wf(a, v0_, v1_):
    a(f"s_and_b32 s{T0}, s{S_I}, 7")
    a(f"s_mul_i32 s{T0}, s{T0}, {370*128}")
    a(f"s_mul_i32 s{T1}, s{S_FCJ}, {WF_TILE}")
    a(f"s_add_u32 s{T0}, s{T0}, s{T1}")
    a(f"s_add_u32 s{T0}, s{T0}, {WS_WF}")
    a(f"v_lshlrev_b32 v{v0_}, 7, v0")
    a(f"v_mov_b32 v{v1_}, 370")
    a(f"v_cmp_gt_u32 s[{T4}:{T4+1}], v{v1_}, v0")
    a(f"v_mov_b32 v{v1_}, 0x7ffffff0")
    a(f"v_cndmask_b32 v{v0_}, v{v1_}, v{v0_}, s[{T4}:{T4+1}]")
    a(f"buffer_load_dword v251, v{v0_}, s[{SRD_WS}:{SRD_WS+3}], s{T0} offen sc1", tag='touch')

def touch_h(a, v0_, v1_):
    a(f"s_lshl_b32 s{T0}, s{S_FRB}, 1")
    a(f"s_mul_i32 s{T0}, s{T0}, {108*1024}")
    a(f"s_lshr_b32 s{T1}, s{S_I}, 3")
    a(f"s_mul_i32 s{T1}, s{T1}, {432*128}")
    a(f"s_add_u32 s{T0}, s{T0}, s{T1}")
    a(f"s_add_u32 s{T0}, s{T0}, {WS_H}")
    a(f"v_lshlrev_b32 v{v0_}, 7, v0")
    a(f"v_mov_b32 v{v1_}, 432")
    a(f"v_cmp_gt_u32 s[{T4}:{T4+1}], v{v1_}, v0")
    a(f"v_mov_b32 v{v1_}, 0x7ffffff0")
    a(f"v_cndmask_b32 v{v0_}, v{v1_}, v{v0_}, s[{T4}:{T4+1}]")
    a(f"buffer_load_dword v251, v{v0_}, s[{SRD_WS}:{SRD_WS+3}], s{T0} offen sc1", tag='touch')

def attn_stage_kv(a, t0, t1, t2, vd, parts=(0, 1)):
    a(f"s_sub_u32 s{T0}, s{S_ARB}, 2")
    a(f"s_lshl_b32 s{T0}, s{T0}, 7")
    a(f"s_mul_i32 s{T1}, s{S_W}, 96")
    a(f"s_add_u32 s{T0}, s{T0}, s{T1}")
    a(f"v_lshlrev_b32 v{t0}, 1, v1")
    a(f"v_add_u32 v{t0}, s{T0}, v{t0}")
    a(f"v_lshlrev_b32 v{t1}, 3, v{t0}")
    a(f"v_mov_b32 v{t2}, 0x7ffffff0")
    a(f"v_cmp_le_i32 s[{T4}:{T4+1}], 0, v{t0}")
    a(f"v_cndmask_b32 v{vd}, v{t2}, v{t1}, s[{T4}:{T4+1}]")
    a(f"s_mul_i32 s{T2}, s{S_AHP}, {10*16384}")
    a(f"s_add_u32 s{T2}, s{T2}, {WS_QKV + 160*16384}")
    a(f"s_mul_i32 s{T3}, s{S_W}, 768")
    a("s_mov_b32 exec_hi, 0xffff")
    for ty in parts:
        for p in range(10):
            a(f"s_add_u32 m0, s{T3}, {(LK if ty == 0 else LV) + p*PST}")
            a(f"s_add_u32 s{T6}, s{T2}, {(ty*160 + p)*16384}")
            a(f"buffer_load_dwordx4 v{vd}, s[{SRD_WS}:{SRD_WS+3}], s{T6} offen sc1 lds", tag=('kv', ty))
    a("s_mov_b32 exec_hi, -1")

def stage1g(a, lbl):
    SRD_E, S_M = 64, 68
    VXD, VWD, VW2 = 2, 6, 10
    VXF, VWF = 14, 22
    t0, t1, t2, t3 = 26, 27, 28, 29
    VP, VPV = 30, 31
    FB = [32, 48]
    ACC = 64
    CSR, B1R, ST, TD = 128, 160, 192, 196
    S_FQ, S_FH, S_ACT, S_HB = 69, 70, 71, 72
    a(f"s_and_b32 s{S_LW}, s{S_W}, 3")
    a(f"s_cmp_ge_u32 s{S_CJ}, 15")
    a(f"s_cbranch_scc1 {lbl}_idle")
    a(f"s_lshl_b32 s{T0}, s{S_RB}, 7")
    a(f"s_lshr_b32 s{T1}, s{S_LW}, 1")
    a(f"s_lshl_b32 s{T1}, s{T1}, 6")
    a(f"s_add_u32 s{T0}, s{T0}, s{T1}")
    a(f"s_and_b32 s{T1}, s{S_LW}, 1")
    a(f"s_add_u32 s{T0}, s{T0}, s{T1}")
    a(f"v_lshrrev_b32 v{t0}, 3, v1")
    a(f"v_lshlrev_b32 v{t0}, 1, v{t0}")
    a(f"v_add_u32 v{t0}, s{T0}, v{t0}")
    a(f"s_movk_i32 s{T2}, 1280")
    a(f"v_mul_lo_u32 v{t0}, v{t0}, s{T2}")
    a(f"v_lshrrev_b32 v{t1}, 4, v1")
    a(f"v_and_b32 v{t2}, 7, v1")
    a(f"v_xor_b32 v{t2}, v{t2}, v{t1}")
    a(f"v_xor_b32 v{t3}, 4, v{t2}")
    for i in range(4):
        a(f"v_lshl_add_u32 v{VXD+i}, v{t2 if i % 2 == 0 else t3}, 4, v{t0}")
        if i: a(f"v_add_u32 v{VXD+i}, {i*(16*1280-1024)}, v{VXD+i}")
    a(f"s_lshl_b32 s{T0}, s{S_LW}, 4")
    a(f"v_lshrrev_b32 v{t0}, 4, v1")
    a(f"v_add_u32 v{t1}, s{T0}, v{t0}")
    a(f"v_bfe_u32 v{t2}, v1, 2, 2")
    a(f"v_xor_b32 v{t2}, v{t2}, v{t0}")
    a(f"v_and_b32 v{t3}, 3, v1")
    a(f"v_lshl_add_u32 v{t2}, v{t2}, 2, v{t3}")
    a(f"v_lshlrev_b32 v{t2}, 4, v{t2}")
    a(f"s_lshl_b32 s{T0}, s{S_CJ}, 8")
    a(f"v_add_u32 v{t2}, s{T0}, v{t2}")
    def w_offsets(vd, pitch):
        a(f"s_movk_i32 s{T2}, {pitch}")
        a(f"v_mul_lo_u32 v{t3}, v{t1}, s{T2}")
        a(f"v_add_u32 v{vd}, v{t3}, v{t2}")
        for i in range(1, 4): a(f"v_add_u32 v{vd+i}, {i*(4*pitch-1024)}, v{vd}")
    w_offsets(VWD, 3840)
    w_offsets(VW2, 3456)
    a(f"s_lshl_b32 s{S_M}, s{S_LW}, 12")
    if OPT.get('rot', 1):
        a(f"s_lshr_b32 s{T0}, s{S_I}, 3")
        a(f"s_mul_i32 s{T0}, s{T0}, 10")
        a(f"s_and_b32 s{T1}, s{S_I}, 7")
        a(f"s_mul_i32 s{T1}, s{T1}, 5")
        a(f"s_add_u32 s{T0}, s{T0}, s{T1}")
        a(f"s_lshr_b32 s{T0}, s{T0}, 2")
        a(f"s_sub_u32 s{T1}, s{T0}, 10")
        a(f"s_cmp_ge_u32 s{T0}, 10")
        a(f"s_cselect_b32 s{T0}, s{T1}, s{T0}")
    else:
        a(f"s_mov_b32 s{T0}, 0")
    def addmod(dst, src, k):
        a(f"s_add_u32 s{dst}, s{src}, {k}")
        a(f"s_sub_u32 s{T2}, s{dst}, 10")
        a(f"s_cmp_ge_u32 s{dst}, 10")
        a(f"s_cselect_b32 s{dst}, s{T2}, s{dst}")
    REUSE = OPT.get('xreuse', 1)
    if REUSE:
        addmod(T1, T0, 9)
        addmod(T3, T0, 6)
        a(f"s_cmp_ge_u32 s{S_W}, 4")
        a(f"s_cselect_b32 s{T1}, s{T3}, s{T1}")
        a(f"s_mul_i32 s{S_K1}, s{T1}, {64*3456}")
        a(f"s_lshl_b32 s{S_KX}, s{T0}, 7")
        a(f"s_mul_i32 s{S_KQ}, s{T0}, {64*3840}")
    else:
        addmod(T1, T0, 3)
        a(f"s_cmp_ge_u32 s{S_W}, 4")
        a(f"s_cselect_b32 s{T0}, s{T0}, s{T1}")
        a(f"s_lshl_b32 s{S_KX}, s{T0}, 7")
        a(f"s_mul_i32 s{S_KQ}, s{T0}, {64*3840}")
        a(f"s_mul_i32 s{S_K1}, s{T0}, {64*3456}")
    def adv(sreg, step, wrap):
        if OPT.get('hot'): return
        a(f"s_add_u32 s{sreg}, s{sreg}, {step}")
        a(f"s_cmp_eq_u32 s{sreg}, {wrap}")
        a(f"s_cselect_b32 s{sreg}, 0, s{sreg}")
    first = {'x': True, 'q': True, '1': True}
    slot = lambda tau: (tau + 3) % 4
    def dma_list(tau):
        out = []
        if OPT.get('g_nodma') and tau >= 4: return out
        if OPT.get('nodma1') and tau >= 13: return out
        def mk(kind, i):
            def f():
                if kind == 'x': vd, sr, sk, off, step, wrap = VXD, SRD_A, S_KX, 0, 128, 1280
                elif kind == 'q': vd, sr, sk, off, step, wrap = VWD, SRD_B, S_KQ, 16384, 64*3840, 640*3840
                else: vd, sr, sk, off, step, wrap = VW2, SRD_E, S_K1, 16384, 64*3456, 640*3456
                if i == 0:
                    a(f"s_add_u32 m0, s{S_M}, {slot(tau)*SL2 + off}")
                    if not first[kind] and not (OPT.get('hot1') and tau >= 10) and not (OPT.get('hotx') and kind == 'x' and tau >= 10) and not (OPT.get('hotw') and kind == '1'): adv(sk, step, wrap)
                    first[kind] = False
                a(f"buffer_load_dwordx4 v{vd+i}, s[{sr}:{sr+3}], s{sk} offen offset:{i*1024} lds", tag=('B', tau))
            return f
        if not (REUSE and 10 <= tau <= 13):
            for i in range(4): out.append(mk('x', i))
        for i in range(4): out.append(mk('q' if tau < 10 else '1', i))
        return out
    def dma_block(tau):
        for f in dma_list(tau): f()
    def frag_bases():
        a(f"s_and_b32 s{T0}, s{S_LW}, 1")
        a(f"s_lshl_b32 s{T0}, s{T0}, 13")
        a(f"v_and_b32 v{t0}, 31, v1")
        a(f"v_lshrrev_b32 v{t1}, 5, v1")
        a(f"v_bfe_u32 v{t2}, v1, 1, 3")
        a(f"v_lshlrev_b32 v{t0}, 7, v{t0}")
        a(f"v_add_u32 v{t0}, s{T0}, v{t0}")
        for s_ in range(4):
            a(f"v_or_b32 v{t3}, {2*s_}, v{t1}")
            a(f"v_xor_b32 v{t3}, v{t3}, v{t2}")
            a(f"v_lshl_add_u32 v{VXF+s_}, v{t3}, 4, v{t0}")
            a(f"v_add_u32 v{VXF+4+s_}, {2*SL2}, v{VXF+s_}")
        a(f"v_bfe_u32 v{t0}, v1, 2, 2")
        a(f"v_lshl_add_u32 v{t1}, v{t1}, 3, v{t0}")
        a(f"v_lshlrev_b32 v{t1}, 8, v{t1}")
        a(f"v_bfe_u32 v{t2}, v1, 4, 1")
        a(f"v_lshl_add_u32 v{t1}, v{t2}, 5, v{t1}")
        a(f"v_and_b32 v{t2}, 3, v1")
        a(f"v_lshl_add_u32 v{t1}, v{t2}, 3, v{t1}")
        a(f"s_and_b32 s{T0}, s{S_LW}, 2")
        for ft in range(2):
            a(f"s_or_b32 s{T1}, s{T0}, {ft}")
            a(f"v_xor_b32 v{t2}, s{T1}, v{t0}")
            a(f"v_lshl_add_u32 v{VWF+ft}, v{t2}, 6, v{t1}")
            a(f"v_add_u32 v{VWF+2+ft}, {2*SL2}, v{VWF+ft}")
    def rd_b(st, tau, u, tt):
        sl = slot(tau)
        a(f"ds_read_b128 {vr(FB[st]+4*tt,4)}, v{VXF + u + (4 if sl >= 2 else 0)} offset:{(SL2 if sl & 1 else 0) + tt*4096}", tag=('f', tau, u, 'b', tt))
    def rd_a(st, tau, u, F, rd):
        sl = slot(tau)
        a(f"ds_read_b64_tr_b16 {vr(FB[st]+8+4*F+2*rd,2)}, v{VWF + F + (2 if sl >= 2 else 0)} offset:{(SL2 if sl & 1 else 0) + 16384 + u*4096 + rd*1024}", tag=('f', tau, u, 'a', F))
    def reads(st, tau, u):
        return [lambda: rd_b(st, tau, u, 0), lambda: rd_a(st, tau, u, 0, 0), lambda: rd_a(st, tau, u, 0, 1),
                lambda: rd_b(st, tau, u, 1), lambda: rd_a(st, tau, u, 1, 0), lambda: rd_a(st, tau, u, 1, 1)]
    def compute(t0_, hook_bar, hook_step):
        for b in range(10):
            tau = t0_ + b
            for u in range(4):
                s_ = 4*b + u; st = s_ & 1
                last = (b == 9 and u == 3)
                side = []
                if u == 3:
                    a("s_waitcnt lgkmcnt(0)")
                    hook_bar(tau)
                    a("s_barrier")
                    side = hook_step(tau, 'bar') or []
                rs = [] if (last or OPT.get('x_noreads')) else reads(st ^ 1, *((tau, u + 1) if u < 3 else (tau + 1, 0)))
                plan = {-1: rs[0:2], 0: rs[2:5], 1: rs[5:6]}
                for r in plan[-1]: r()
                for k, (tt, F) in enumerate([(0, 0), (1, 0), (0, 1), (1, 1)]):
                    a.wait_lg([('f', tau, u, 'b', tt), ('f', tau, u, 'a', F)])
                    d = vr(ACC+16*(2*tt+F), 16)
                    if not OPT.get('x_nomfma'):
                        a(f"v_mfma_f32_32x32x16_bf16 {d}, {vr(FB[st]+8+4*F,4)}, {vr(FB[st]+4*tt,4)}, {'0' if s_ == 0 else d}")
                    for r in plan.get(k, []): r()
                    for _ in range(2):
                        if side: side.pop(0)()
                for f in side: f()
                hook_step(tau, u)
    a("s_waitcnt lgkmcnt(0)")
    srd(a, SRD_A, P_AX, SIZES['AX'])
    srd(a, SRD_B, P_WQKV, SIZES['WQKV'])
    NI = OPT.get('init', 2)
    a(f"s_cmp_lt_u32 s{S_W}, 4")
    a(f"s_cbranch_scc1 {lbl}_nodma")
    for tau in range(NI): dma_block(tau)
    g1_vm = list(a.vm)
    a.label(f"{lbl}_nodma")
    a.vm = []
    srd(a, SRD_E, P_W1, SIZES['W1'])
    prologue_rest(a)
    attn_coords(a)
    final_coords(a)
    a(f"s_lshl_b32 s{T0}, s{S_RB}, 7")
    a(f"s_lshl_b32 s{T1}, s{S_CJ}, 2")
    a(f"s_add_u32 s{T0}, s{T0}, s{T1}")
    a(f"s_add_u32 s{S_FQ}, s{T0}, {WS_FLAG + FQ}")
    a(f"s_add_u32 s{S_FH}, s{T0}, {WS_FLAG + FH}")
    a(f"s_cmp_lt_u32 s{S_CJ}, 14")
    a(f"s_cselect_b32 s{S_FHO}, s{S_FH}, 0x7fff0000")
    a(f"s_cmp_lt_u32 s{S_W}, 4")
    a(f"s_cbranch_scc1 {lbl}_g0")
    a.vm = list(g1_vm)
    if OPT.get('lprio', 1): a(f"s_setprio {OPT.get('lprio', 1)}")
    mark4(a, first=True)
    pre_address(a, lbl + "_pa", rows=False)
    frag_bases()
    a.wait_vm(('B', 0))
    mark4(a)
    a("s_barrier")
    for tau in range(NI, 4): dma_block(tau)
    for tau in range(0, 9):
        a.wait_vm(('B', tau + 1))
        if tau == 8: a.wait_vm('pst')
        a("s_barrier")
        dma_block(tau + 4)
        if tau == 0: pre_issue(a, rows=False)
        if tau == 1 and OPT.get('pfw1', 0):
            a(f"s_and_b32 s{T0}, s{S_I}, 7")
            a(f"s_mul_i32 s{T0}, s{T0}, 80")
            a(f"s_mul_i32 s{T1}, s{S_LW}, 20")
            a(f"s_add_u32 s{T0}, s{T0}, s{T1}")
            a(f"v_lshrrev_b32 v{t0}, 1, v1")
            a(f"v_add_u32 v{t0}, s{T0}, v{t0}")
            a(f"s_movk_i32 s{T1}, 3456")
            a(f"v_mul_lo_u32 v{t0}, v{t0}, s{T1}")
            a(f"v_and_b32 v{t1}, 1, v1")
            a(f"v_lshl_add_u32 v{t0}, v{t1}, 7, v{t0}")
            a(f"s_lshl_b32 s{T0}, s{S_CJ}, 8")
            a(f"v_add_u32 v{t0}, s{T0}, v{t0}")
            a(f"v_mov_b32 v{t1}, 0x7ffffff0")
            a(f"v_cmp_gt_u32 s[{T4}:{T4+1}], 40, v1")
            a(f"v_cndmask_b32 v{t0}, v{t1}, v{t0}, s[{T4}:{T4+1}]")
            a(f"buffer_load_dword v251, v{t0}, s[{SRD_E}:{SRD_E+3}], 0 offen", tag='touch')
        if tau == OPT.get('trp', 5):
            a.wait_vm('pl')
            repack_finish(a)
        if tau == 7: nonce_issue(a, 252)
    nonce_check(a, 252)
    a.wait_vm(('B', 10))
    a("s_barrier")
    if OPT.get('lprio', 1): a(f"s_setprio {OPT.get('cprio', 3)}")
    mark4(a)
    for r in reads(0, 10, 0): r()
    def g1_bar(tau):
        if tau in (10, 11): a.wait_vm(('B', tau + 1))
    def g1_step(tau, u):
        return None
    compute(10, g1_bar, g1_step)
    mark4(a)
    C0, C1, VY, ONE = 2, 3, 4, 6
    TU, TE = 32, 40
    a(f"v_mov_b32 v{ONE}, 1.0")
    a(f"v_mov_b32 v{C0}, 0xc0135761")
    a(f"v_mov_b32 v{C1}, 0xbdd2d3e8")
    a(f"v_lshlrev_b32 v{VY}, 4, v1")
    a(f"s_lshl_b32 s{T0}, s{S_CJ}, 3")
    a(f"s_lshr_b32 s{T1}, s{S_LW}, 1")
    a(f"s_lshl_b32 s{T1}, s{T1}, 2")
    a(f"s_add_u32 s{S_ACT}, s{T0}, s{T1}")
    a(f"s_lshl_b32 s{T0}, s{S_RB}, 2")
    a(f"s_and_b32 s{T1}, s{S_LW}, 1")
    a(f"s_lshl_b32 s{T1}, s{T1}, 1")
    a(f"s_add_u32 s{T0}, s{T0}, s{T1}")
    a(f"s_mul_i32 s{T0}, s{T0}, 108")
    a(f"s_add_u32 s{T0}, s{T0}, s{S_ACT}")
    a(f"s_lshl_b32 s{T0}, s{T0}, 10")
    a(f"s_add_u32 s{S_HB}, s{T0}, {WS_H}")
    a(f"s_cmp_lt_u32 s{S_ACT}, 108")
    a(f"s_cselect_b32 s{S_HB}, s{S_HB}, 0x7fff0000")
    a(f"v_and_b32 v{t0}, 31, v1")
    a(f"v_lshlrev_b32 v{t0}, 4, v{t0}")
    a(f"s_and_b32 s{T0}, s{S_LW}, 1")
    a(f"s_lshl_b32 s{T0}, s{T0}, 9")
    a(f"v_add_u32 v{t0}, s{T0}, v{t0}")
    a(f"ds_read_b128 {vr(ST,4)}, v{t0}")
    a(f"v_lshrrev_b32 v{t0}, 5, v1")
    a(f"v_lshlrev_b32 v{t0}, 4, v{t0}")
    a(f"s_lshr_b32 s{T0}, s{S_LW}, 1")
    a(f"s_lshl_b32 s{T0}, s{T0}, 8")
    a(f"v_add_u32 v{t0}, s{T0}, v{t0}")
    for ft in range(2):
        for j in range(4):
            a(f"ds_read_b128 {vr(CSR+16*ft+4*j,4)}, v{t0} offset:{1024 + 128*ft + 32*j}")
            a(f"ds_read_b128 {vr(B1R+16*ft+4*j,4)}, v{t0} offset:{1536 + 128*ft + 32*j}")
    a("s_waitcnt lgkmcnt(0)")
    mark4(a)
    P = lambda b, e: vr(b + 2*e, 2)
    for tt in range(2):
        nmp = vr(ST + 2*tt, 2)
        if tt == 1: a(f"s_add_u32 s{S_HB}, s{S_HB}, {108*1024}")
        for ft in range(2):
            for jj in range(2):
                x = ACC + 16*(2*tt+ft) + 8*jj
                for e in range(4):
                    j, i = 2*jj + (e >> 1), 2*(e & 1)
                    a(f"v_pk_fma_f32 {P(TU,e)}, {nmp}, {vr(CSR+16*ft+4*j+i,2)}, {vr(B1R+16*ft+4*j+i,2)} op_sel_hi:[0,1,1]")
                for e in range(4): a(f"v_pk_fma_f32 {P(x,e)}, {nmp}, {P(x,e)}, {P(TU,e)} op_sel:[1,0,0] op_sel_hi:[1,1,1]")
                for e in range(4): a(f"v_pk_mul_f32 {P(TU,e)}, {P(x,e)}, {P(x,e)}")
                for e in range(4): a(f"v_pk_fma_f32 {P(TU,e)}, {P(TU,e)}, {vr(C0,2)}, {vr(C0,2)} op_sel:[0,1,0] op_sel_hi:[1,1,0]")
                for e in range(4): a(f"v_pk_mul_f32 {P(TU,e)}, {P(TU,e)}, {P(x,e)}")
                for e in range(8): a(f"v_exp_f32 v{TE+e}, v{TU+e}")
                for e in range(4): a(f"v_pk_add_f32 {P(TE,e)}, {P(TE,e)}, {vr(ONE,2)} op_sel_hi:[1,0]")
                for e in range(8): a(f"v_rcp_f32 v{TE+e}, v{TE+e}")
                for e in range(4): a(f"v_pk_mul_f32 {P(TE,e)}, {P(TE,e)}, {P(x,e)}")
                d = TD + 4*(4*tt + 2*ft + jj)
                for e in range(4): a(f"v_cvt_pk_bf16_f32 v{d+e}, v{TE+2*e}, v{TE+2*e+1}")
                if not OPT.get('late_h', 0):
                    a(f"buffer_store_dwordx4 {vr(d,4)}, v{VY}, s[{SRD_WS}:{SRD_WS+3}], s{S_HB} offen offset:{(2*ft+jj)*1024} sc1", tag='hst')
    if OPT.get('late_h', 0):
        a(f"s_sub_u32 s{S_HB}, s{S_HB}, {108*1024}")
        for tt in range(2):
            if tt == 1: a(f"s_add_u32 s{S_HB}, s{S_HB}, {108*1024}")
            for ft in range(2):
                for jj in range(2):
                    d = TD + 4*(4*tt + 2*ft + jj)
                    a(f"buffer_store_dwordx4 {vr(d,4)}, v{VY}, s[{SRD_WS}:{SRD_WS+3}], s{S_HB} offen offset:{(2*ft+jj)*1024} sc1", tag='hst')
    mark4(a)
    a(f"s_branch {lbl}_join")
    a.label(f"{lbl}_g0")
    a.reset_counters()
    first.update({'x': True, 'q': True, '1': True})
    if OPT.get('pfs1', 0):
        a(f"s_lshl_b32 s{T0}, s{S_RB}, 7")
        a(f"s_lshr_b32 s{T1}, s{S_I}, 3")
        a(f"s_lshl_b32 s{T1}, s{T1}, 5")
        a(f"s_add_u32 s{T0}, s{T0}, s{T1}")
        a(f"s_lshl_b32 s{T1}, s{S_LW}, 3")
        a(f"s_add_u32 s{T0}, s{T0}, s{T1}")
        a(f"v_lshrrev_b32 v{t0}, 3, v1")
        a(f"v_add_u32 v{t0}, s{T0}, v{t0}")
        a(f"s_movk_i32 s{T1}, 1280")
        a(f"v_mul_lo_u32 v{t0}, v{t0}, s{T1}")
        a(f"v_and_b32 v{t1}, 7, v1")
        a(f"v_lshl_add_u32 v{t2}, v{t1}, 7, v{t0}")
        a(f"buffer_load_dword v251, v{t2}, s[{SRD_A}:{SRD_A+3}], 0 offen", tag='touch')
        a(f"v_and_b32 v{t1}, 1, v1")
        a(f"v_lshl_add_u32 v{t2}, v{t1}, 7, v{t0}")
        a(f"v_mov_b32 v{t3}, 0x7ffffff0")
        a(f"v_bfe_u32 v{t1}, v1, 1, 2")
        a(f"v_cmp_eq_u32 s[{T4}:{T4+1}], 0, v{t1}")
        a(f"v_cndmask_b32 v{t2}, v{t3}, v{t2}, s[{T4}:{T4+1}]")
        a(f"buffer_load_dword v251, v{t2}, s[{SRD_A}:{SRD_A+3}], 0 offen offset:1024", tag='touch')
        a(f"s_and_b32 s{T0}, s{S_I}, 7")
        a(f"s_mul_i32 s{T0}, s{T0}, 80")
        a(f"s_mul_i32 s{T1}, s{S_LW}, 20")
        a(f"s_add_u32 s{T0}, s{T0}, s{T1}")
        a(f"v_lshrrev_b32 v{t0}, 1, v1")
        a(f"v_add_u32 v{t0}, s{T0}, v{t0}")
        a(f"s_movk_i32 s{T1}, 3840")
        a(f"v_mul_lo_u32 v{t0}, v{t0}, s{T1}")
        a(f"v_and_b32 v{t1}, 1, v1")
        a(f"v_lshl_add_u32 v{t0}, v{t1}, 7, v{t0}")
        a(f"s_lshl_b32 s{T0}, s{S_CJ}, 8")
        a(f"v_add_u32 v{t0}, s{T0}, v{t0}")
        a(f"v_cmp_gt_u32 s[{T4}:{T4+1}], 40, v1")
        a(f"v_cndmask_b32 v{t0}, v{t3}, v{t0}, s[{T4}:{T4+1}]")
        a(f"buffer_load_dword v251, v{t0}, s[{SRD_B}:{SRD_B+3}], 0 offen", tag='touch')
    frag_bases()
    if OPT.get('cprio', 3): a(f"s_setprio {OPT.get('cprio', 3)}")
    mark(a)
    a("s_barrier")
    for r in reads(0, 0, 0): r()
    def g0_step(tau, u):
        if OPT.get('fine3') == 1 and u == 'bar' and tau in (0, 2, 4, 6, 8): mark(a)
        if u == 'bar' and tau == 9: return dma_list(13)
        if u == 1 and tau == 2: nonce_issue(a, 252)
        if u == 1 and tau == 4: nonce_check(a, 252)
        if u == 'bar' and tau == 8:
            pre_flags(a, t3, stats=False)
        return None
    compute(0, lambda tau: None, g0_step)
    mark(a)
    if OPT.get('lprio', 1): a(f"s_setprio {OPT.get('lprio', 1)}")
    def qkv_epilogue(a):
        a(f"v_lshrrev_b32 v{t0}, 5, v1")
        a(f"s_lshr_b32 s{T0}, s{S_LW}, 1")
        a(f"s_lshl_b32 s{T0}, s{T0}, 4")
        a(f"v_add_u32 v{t0}, s{T0}, v{t0}")
        a(f"v_lshlrev_b32 v{t0}, 14, v{t0}")
        a(f"s_and_b32 s{T0}, s{S_LW}, 1")
        a(f"s_lshl_b32 s{T0}, s{T0}, 9")
        a(f"v_and_b32 v{t1}, 31, v1")
        a(f"v_lshl_add_u32 v{t0}, v{t1}, 4, v{t0}")
        a(f"v_add_u32 v{t0}, s{T0}, v{t0}")
        a(f"s_lshl_b32 s{T0}, s{S_CJ}, 19")
        a(f"s_lshl_b32 s{T1}, s{S_RB}, 10")
        a(f"s_add_u32 s{T0}, s{T0}, s{T1}")
        a(f"s_add_u32 s{T0}, s{T0}, {WS_QKV}")
        a(f"s_cmp_lt_u32 s{S_CJ}, 5")
        a(f"s_cselect_b32 s{T2}, 0x3ea52b5c, 1.0")
        a(f"v_mov_b32 v30, s{T2}")
        for r in range(0, 64, 2):
            a(f"v_pk_mul_f32 {vr(ACC+r,2)}, {vr(ACC+r,2)}, v[30:31] op_sel_hi:[1,0]")
        k = 0
        for ft in range(2):
            for j in range(4):
                a(f"s_add_u32 s{T1}, s{T0}, {(8*ft + 2*j)*16384}")
                d = 32 + 4*(k % 8); k += 1
                for tt in range(2):
                    base = ACC + 16*(2*tt+ft) + 4*j
                    a(f"v_cvt_pk_bf16_f32 v{d+2*tt}, v{base}, v{base+1}")
                    a(f"v_cvt_pk_bf16_f32 v{d+2*tt+1}, v{base+2}, v{base+3}")
                a(f"buffer_store_dwordx4 {vr(d,4)}, v{t0}, s[{SRD_WS}:{SRD_WS+3}], s{T1} offen sc1", tag='qst')
        fq_poll_offsets(a, VP, t3)
    class Rec:
        def __init__(self): self.l = []
        def __call__(self, text, tag=None): self.l.append((text, tag))
    rec = Rec(); qkv_epilogue(rec)
    EPI = []
    for tx, tg in rec.l:
        if tx.startswith("s_cselect") and EPI: EPI[-1].append((tx, tg))
        else: EPI.append([(tx, tg)])
    def emit_groups(gs):
        for g_ in gs:
            for tx, tg in g_: a(tx, tag=tg)
    if not OPT.get('epi_mix', 0):
        emit_groups(EPI)
        EPI = []
    TQP = OPT.get('tqp', 13)
    for tau in range(10, 20):
        if 13 <= tau + 1 <= 19: a.wait_vm(('B', tau + 1))
        if tau == TQP: a.wait_vm('qst')
        if tau == 19: a.wait_vm('tab')
        a("s_barrier")
        if OPT.get('fine3') == 2 and tau in (10, 11, 12, 13, 14, 15, 16, 17, 18, 19): mark(a)
        if tau == TQP: flag_store(a, S_FQ, t3)
        if tau + 4 <= 19:
            dl = dma_list(tau + 4)
            if tau == 10 and EPI:
                per = -(-len(EPI) // len(dl))
                for f in dl:
                    f()
                    emit_groups(EPI[:per])
                    EPI = EPI[per:]
                emit_groups(EPI)
                EPI = []
            else:
                for f in dl: f()
        if tau == 15:
            a(f"s_lshl_b32 s{T0}, s{S_RB}, 7")
            a(f"s_add_u32 s{T0}, s{T0}, {WS_FLAG + FS}")
            a(f"v_mov_b32 v{t0}, s{T0}")
            a(f"s_min_u32 s{T1}, s{S_CJ}, 13")
            a(f"s_lshl_b32 s{T1}, s{T1}, 2")
            a(f"s_add_u32 s{T1}, s{T1}, {WS_FLAG + FC}")
            a(f"v_mov_b32 v{t1}, s{T1}")
            a(f"v_cmp_gt_u32 s[{T4}:{T4+1}], 32, v1")
            a(f"v_cndmask_b32 v234, v{t1}, v{t0}, s[{T4}:{T4+1}]")
            poll_issue(a, 234, 235, 'p1')
        if tau == 17:
            L = uid("nf")
            a(f"s_cmp_ge_u32 s{S_CJ}, 14")
            a(f"s_cbranch_scc1 {L}")
            vm0 = list(a.vm)
            poll_check(a, 234, 235, 'p1')
            a.label(L)
            a.vm = vm0
            a(f"s_lshl_b32 s{T0}, s{S_RB}, 10")
            a(f"s_add_u32 s{T0}, s{T0}, {WS_ST}")
            a(f"s_lshl_b32 s{T1}, s{S_CJ}, 9")
            a(f"s_add_u32 s{T2}, s{T1}, {WS_CS}")
            a(f"s_add_u32 s{T1}, s{T1}, {WS_B1}")
            a(f"s_cmp_eq_u32 s{S_W}, 1")
            a(f"s_cselect_b32 s{T0}, s{T2}, s{T0}")
            a(f"s_cselect_b32 s{T3}, 1024, 0")
            a(f"s_cmp_eq_u32 s{S_W}, 2")
            a(f"s_cselect_b32 s{T0}, s{T1}, s{T0}")
            a(f"s_cselect_b32 s{T3}, 1536, s{T3}")
            a(f"s_cmp_eq_u32 s{S_W}, 3")
            a(f"s_cselect_b32 s{T0}, 0x7fff0000, s{T0}")
            a(f"s_cselect_b32 s{T3}, 2048, s{T3}")
            a(f"v_lshlrev_b32 v{t0}, 4, v1")
            a(f"v_mov_b32 v{t1}, 0x7ffffff0")
            a(f"s_cmp_eq_u32 s{S_W}, 0")
            a(f"s_cselect_b32 s{T1}, 64, 32")
            a(f"v_cmp_gt_u32 s[{T4}:{T4+1}], s{T1}, v1")
            a(f"s_mov_b64 exec, s[{T4}:{T4+1}]")
            a(f"s_mov_b32 m0, s{T3}")
            a(f"buffer_load_dwordx4 v{t0}, s[{SRD_WS}:{SRD_WS+3}], s{T0} offen sc1 lds", tag='tab')
            a("s_mov_b64 exec, -1")
        if tau == 19: pass
        if tau == OPT.get('tpq', 18):
            poll_issue(a, VP, VPV, 'pq')
            fw_poll_offsets(a, VP+202)
            poll_issue(a, VP+202, VPV+202, 'pw')
    if OPT.get('fine4'): mark(a)
    poll_check(a, VP, VPV, 'pq')
    if OPT.get('fine4'): mark(a)
    attn_stage_q(a, 3)
    attn_stage_kv(a, t0, t1, t2, 2, (0,) if OPT.get('latev') else (0, 1))
    poll_check(a, VP+202, VPV+202, 'pw')
    if OPT.get('earlyw', 0): wf_first_slots(a, 3)
    mark(a)
    a.wait_vm(('kv', 0))
    if OPT.get('fine4'): mark(a)
    a(f"s_branch {lbl}_join")
    a.label(f"{lbl}_idle")
    a.reset_counters()
    a("s_waitcnt lgkmcnt(0)")
    prologue_rest(a)
    attn_coords(a)
    final_coords(a)
    srd(a, SRD_A, P_AX, SIZES['AX'])
    rowstats_issue(a)
    colsum_issue(a)
    nonce_issue(a, 252)
    rowstats_compute(a)
    colsum_compute(a, lbl + "_cs")
    nonce_check(a, 252)
    a("s_waitcnt vmcnt(0)")
    a("s_barrier")
    a(f"s_lshl_b32 s{T0}, s{S_RB}, 7")
    a(f"s_add_u32 s{T0}, s{T0}, {WS_FLAG + FS}")
    flag_store(a, T0, t3)
    a(f"s_lshl_b32 s{T0}, s{S_RB}, 2")
    a(f"s_add_u32 s{T0}, s{T0}, {WS_FLAG + FC}")
    flag_store(a, T0, t3)
    pre_address(a, lbl + "_pai", rows=False)
    pre_issue(a, rows=False)
    a.wait_vm('pl')
    repack_finish(a)
    a("s_waitcnt vmcnt(0)")
    a("s_barrier")
    pre_flags(a, t3, stats=False)
    a(f"s_mov_b32 s{S_FHO}, 0x7fff0000")
    fq_poll_offsets(a, VP, t3)
    a(f"s_mov_b64 s[{T4}:{T4+1}], -1")
    wait_flags(a, VP, VPV, T4)
    Li = uid("ik")
    a(f"s_cmp_ge_u32 s{S_W}, 4")
    a(f"s_cbranch_scc1 {Li}")
    attn_stage_q(a, 3)
    attn_stage_kv(a, t0, t1, t2, 2, (0,) if OPT.get('latev') else (0, 1))
    fw_poll_offsets(a, VP+202)
    poll_issue(a, VP+202, VPV+202, 'pw')
    poll_check(a, VP+202, VPV+202, 'pw')
    if OPT.get('earlyw', 0): wf_first_slots(a, 3)
    a.label(Li)
    a("s_waitcnt vmcnt(0)")
    a.label(f"{lbl}_join")
    if OPT.get('lprio', 1) or OPT.get('cprio', 3): a("s_setprio 0")
    a.reset_counters()

SLOT = 49152
def stage1f(a, lbl):
    SRD_E, S_M = 64, 68
    VXD, VQD, V1D = 2, 4, 6
    VXF, VWF = 8, 16
    t0, t1, t2, t3 = 20, 21, 22, 23
    VP, VPV = 24, 25
    FB = [32, 48]
    ACC = 64
    ST, CSR, B1R, TD = 192, 128, 160, 196
    S_FQ, S_FH, S_ACT, S_HB = 69, 70, 71, 72
    attn_coords(a)
    final_coords(a)
    a(f"s_and_b32 s{S_LW}, s{S_W}, 3")
    a(f"s_cmp_ge_u32 s{S_CJ}, 15")
    a(f"s_cbranch_scc1 {lbl}_idle")
    srd(a, SRD_A, P_AX, SIZES['AX'])
    srd(a, SRD_B, P_WQKV, SIZES['WQKV'])
    srd(a, SRD_E, P_W1, SIZES['W1'])
    a(f"s_lshl_b32 s{T0}, s{S_RB}, 7")
    a(f"s_lshr_b32 s{T1}, s{S_W}, 2")
    a(f"s_lshl_b32 s{T1}, s{T1}, 6")
    a(f"s_add_u32 s{T0}, s{T0}, s{T1}")
    a(f"s_and_b32 s{T1}, s{S_W}, 1")
    a(f"s_lshl_b32 s{T1}, s{T1}, 5")
    a(f"s_add_u32 s{T0}, s{T0}, s{T1}")
    a(f"s_bfe_u32 s{T1}, s{S_W}, 0x10001")
    a(f"s_add_u32 s{T0}, s{T0}, s{T1}")
    a(f"v_lshrrev_b32 v{t0}, 3, v1")
    a(f"v_lshlrev_b32 v{t0}, 1, v{t0}")
    a(f"v_add_u32 v{t0}, s{T0}, v{t0}")
    a(f"s_movk_i32 s{T2}, 1280")
    a(f"v_mul_lo_u32 v{t0}, v{t0}, s{T2}")
    a(f"v_lshrrev_b32 v{t1}, 4, v1")
    a(f"v_and_b32 v{t2}, 7, v1")
    a(f"v_xor_b32 v{t2}, v{t2}, v{t1}")
    a(f"v_xor_b32 v{t3}, 4, v{t2}")
    a(f"v_lshl_add_u32 v{VXD}, v{t2}, 4, v{t0}")
    a(f"v_lshl_add_u32 v{VXD+1}, v{t3}, 4, v{t0}")
    a(f"v_add_u32 v{VXD+1}, {16*1280-1024}, v{VXD+1}")
    a(f"s_lshl_b32 s{T0}, s{S_W}, 3")
    a(f"v_lshrrev_b32 v{t0}, 4, v1")
    a(f"v_add_u32 v{t1}, s{T0}, v{t0}")
    a(f"v_bfe_u32 v{t2}, v1, 2, 2")
    a(f"v_xor_b32 v{t2}, v{t2}, v{t0}")
    a(f"v_and_b32 v{t3}, 3, v1")
    a(f"v_lshl_add_u32 v{t2}, v{t2}, 2, v{t3}")
    a(f"v_lshlrev_b32 v{t2}, 4, v{t2}")
    a(f"s_lshl_b32 s{T0}, s{S_CJ}, 8")
    a(f"v_add_u32 v{t2}, s{T0}, v{t2}")
    for vd, pitch in ((VQD, 3840), (V1D, 3456)):
        a(f"s_movk_i32 s{T2}, {pitch}")
        a(f"v_mul_lo_u32 v{t3}, v{t1}, s{T2}")
        a(f"v_add_u32 v{vd}, v{t3}, v{t2}")
        a(f"v_add_u32 v{vd+1}, {4*pitch-1024}, v{vd}")
    a(f"s_lshl_b32 s{S_M}, s{S_W}, 11")
    if OPT.get('rot', 1):
        a(f"s_lshr_b32 s{T0}, s{S_I}, 3")
        a(f"s_mul_i32 s{T0}, s{T0}, 10")
        a(f"s_and_b32 s{T1}, s{S_I}, 7")
        a(f"s_mul_i32 s{T1}, s{T1}, 5")
        a(f"s_add_u32 s{T0}, s{T0}, s{T1}")
        a(f"s_lshr_b32 s{T0}, s{T0}, 2")
        a(f"s_sub_u32 s{T1}, s{T0}, 10")
        a(f"s_cmp_ge_u32 s{T0}, 10")
        a(f"s_cselect_b32 s{T0}, s{T1}, s{T0}")
    else:
        a(f"s_mov_b32 s{T0}, 0")
    a(f"s_lshl_b32 s{S_KX}, s{T0}, 7")
    a(f"s_mul_i32 s{S_KQ}, s{T0}, {64*3840}")
    a(f"s_mul_i32 s{S_K1}, s{T0}, {64*3456}")
    def adv(sreg, step, wrap):
        a(f"s_add_u32 s{sreg}, s{sreg}, {step}")
        a(f"s_cmp_eq_u32 s{sreg}, {wrap}")
        a(f"s_cselect_b32 s{sreg}, 0, s{sreg}")
    parts = ((VXD, SRD_A, S_KX, 0, 128, 1280), (VQD, SRD_B, S_KQ, 16384, 64*3840, 640*3840), (V1D, SRD_E, S_K1, 32768, 64*3456, 640*3456))
    def dma(b, part, i):
        vd, sr, sk, off, step, wrap = parts[part]
        if i == 0:
            a(f"s_add_u32 m0, s{S_M}, {(b % 3)*SLOT + off}")
            if b > 0: adv(sk, step, wrap)
        a(f"buffer_load_dwordx4 v{vd+i}, s[{sr}:{sr+3}], s{sk} offen offset:{i*1024} lds", tag=('B', b))
    def dma_block(b):
        for part in range(3):
            for i in range(2): dma(b, part, i)
    NI = OPT.get('finit', 2)
    for b in range(NI): dma_block(b)
    pre_address(a, lbl + "_pa", rows=False)
    a(f"s_and_b32 s{T0}, s{S_W}, 1")
    a(f"s_lshl_b32 s{T0}, s{T0}, 13")
    a(f"v_and_b32 v{t0}, 31, v1")
    a(f"v_lshrrev_b32 v{t1}, 5, v1")
    a(f"v_bfe_u32 v{t2}, v1, 1, 3")
    a(f"v_lshlrev_b32 v{t0}, 7, v{t0}")
    a(f"v_add_u32 v{t0}, s{T0}, v{t0}")
    for s_ in range(4):
        a(f"v_or_b32 v{t3}, {2*s_}, v{t1}")
        a(f"v_xor_b32 v{t3}, v{t3}, v{t2}")
        a(f"v_lshl_add_u32 v{VXF+s_}, v{t3}, 4, v{t0}")
        a(f"v_add_u32 v{VXF+4+s_}, {2*SLOT}, v{VXF+s_}")
    a(f"v_bfe_u32 v{t0}, v1, 2, 2")
    a(f"v_lshl_add_u32 v{t1}, v{t1}, 3, v{t0}")
    a(f"v_lshlrev_b32 v{t1}, 8, v{t1}")
    a(f"v_bfe_u32 v{t2}, v1, 4, 1")
    a(f"v_lshl_add_u32 v{t1}, v{t2}, 5, v{t1}")
    a(f"v_and_b32 v{t2}, 3, v1")
    a(f"v_lshl_add_u32 v{t1}, v{t2}, 3, v{t1}")
    a(f"s_lshr_b32 s{T0}, s{S_W}, 1")
    a(f"v_xor_b32 v{t2}, s{T0}, v{t0}")
    a(f"v_lshl_add_u32 v{VWF}, v{t2}, 6, v{t1}")
    a(f"v_add_u32 v{VWF+1}, {SLOT}, v{VWF}")
    a(f"v_add_u32 v{VWF+2}, {2*SLOT}, v{VWF}")
    a(f"s_lshl_b32 s{T0}, s{S_RB}, 7")
    a(f"s_add_u32 s{T0}, s{T0}, {WS_FLAG + FS}")
    a(f"v_mov_b32 v{t0}, s{T0}")
    a(f"s_min_u32 s{T1}, s{S_CJ}, 13")
    a(f"s_lshl_b32 s{T1}, s{T1}, 2")
    a(f"s_add_u32 s{T1}, s{T1}, {WS_FLAG + FC}")
    a(f"v_mov_b32 v{t1}, s{T1}")
    a(f"v_cmp_gt_u32 s[{T4}:{T4+1}], 32, v1")
    a(f"v_cndmask_b32 v{VP}, v{t1}, v{t0}, s[{T4}:{T4+1}]")
    a(f"s_lshl_b32 s{T0}, s{S_RB}, 7")
    a(f"s_lshl_b32 s{T1}, s{S_CJ}, 2")
    a(f"s_add_u32 s{T0}, s{T0}, s{T1}")
    a(f"s_add_u32 s{S_FQ}, s{T0}, {WS_FLAG + FQ}")
    a(f"s_add_u32 s{S_FH}, s{T0}, {WS_FLAG + FH}")
    a(f"s_cmp_lt_u32 s{S_CJ}, 14")
    a(f"s_cselect_b32 s{S_FHO}, s{S_FH}, 0x7fff0000")
    def rd_b(st, b, u, tt):
        sl = b % 3
        a(f"ds_read_b128 {vr(FB[st]+4*tt,4)}, v{VXF + u + (4 if sl == 2 else 0)} offset:{(SLOT if sl == 1 else 0) + tt*4096}", tag=('f', b, u, 'b', tt))
    def rd_a(st, b, u, F, rd):
        a(f"ds_read_b64_tr_b16 {vr(FB[st]+8+4*F+2*rd,2)}, v{VWF + b % 3} offset:{16384*(F+1) + u*4096 + rd*1024}", tag=('f', b, u, 'a', F))
    def reads(st, b, u):
        return [lambda: rd_b(st, b, u, 0), lambda: rd_a(st, b, u, 0, 0), lambda: rd_a(st, b, u, 0, 1),
                lambda: rd_b(st, b, u, 1), lambda: rd_a(st, b, u, 1, 0), lambda: rd_a(st, b, u, 1, 1)]
    mark(a)
    a.wait_vm(('B', 0))
    a("s_barrier")
    for r in reads(0, 0, 0): r()
    NB = 10
    pend = [(b, p, i) for b in range(NI, 3) for p in range(3) for i in range(2)]
    for b in range(NB):
        for u in range(4):
            s_ = 4*b + u; st = s_ & 1
            last = (b == NB-1 and u == 3)
            if u == 3 and b + 1 < NB:
                while pend: dma(*pend.pop(0))
                a("s_waitcnt lgkmcnt(0)")
                a.wait_vm(('B', b + 1))
                a("s_barrier")
                if b == 3:
                    a.wait_vm('pl')
                    repack_finish(a)
                if b == 6: pre_flags(a, t3, stats=False)
                if b + 3 < NB: pend = [(b + 3, p, i) for p in range(3) for i in range(2)]
            nb, nu = (b, u + 1) if u < 3 else (b + 1, 0)
            rs = [] if last else reads(st ^ 1, nb, nu)
            plan = {-1: rs[0:2], 0: rs[2:5], 1: rs[5:6]}
            for r in plan[-1]: r()
            for k, (tt, F) in enumerate([(0, 0), (1, 0), (0, 1), (1, 1)]):
                a.wait_lg([('f', b, u, 'b', tt), ('f', b, u, 'a', F)])
                d = vr(ACC+16*(2*tt+F), 16)
                a(f"v_mfma_f32_32x32x16_bf16 {d}, {vr(FB[st]+8+4*F,4)}, {vr(FB[st]+4*tt,4)}, {'0' if s_ == 0 else d}")
                for r in plan.get(k, []): r()
                if pend and k in (1, 3): dma(*pend.pop(0))
            if b == 1 and u == 0: pre_issue(a, rows=False)
            if b == 1 and u == 1: nonce_issue(a, 252)
            if b == 3 and u == 1: nonce_check(a, 252)
            if b == 6 and u == 0: poll_issue(a, VP, VPV, 'p1')
            if b == 8 and u == 0:
                L = uid("nf")
                a(f"s_cmp_ge_u32 s{S_CJ}, 14")
                a(f"s_cbranch_scc1 {L}")
                vm0 = list(a.vm)
                poll_check(a, VP, VPV, 'p1')
                a.label(L)
                a.vm = vm0
                a(f"s_lshl_b32 s{T0}, s{S_RB}, 10")
                a(f"s_and_b32 s{T1}, s{S_W}, 1")
                a(f"s_lshl_b32 s{T1}, s{T1}, 9")
                a(f"s_add_u32 s{T0}, s{T0}, s{T1}")
                a(f"s_add_u32 s{T0}, s{T0}, {WS_ST}")
                a(f"v_and_b32 v{t0}, 31, v1")
                a(f"v_lshlrev_b32 v{t0}, 4, v{t0}")
                a(f"buffer_load_dwordx4 {vr(ST,4)}, v{t0}, s[{SRD_WS}:{SRD_WS+3}], s{T0} offen sc1", tag='tab')
                a(f"v_lshrrev_b32 v{t0}, 5, v1")
                a(f"v_lshlrev_b32 v{t0}, 4, v{t0}")
                a(f"s_lshl_b32 s{T0}, s{S_CJ}, 9")
                a(f"s_lshr_b32 s{T1}, s{S_W}, 1")
                a(f"s_lshl_b32 s{T1}, s{T1}, 7")
                a(f"s_add_u32 s{T0}, s{T0}, s{T1}")
                a(f"s_add_u32 s{T1}, s{T0}, {WS_B1}")
                a(f"s_add_u32 s{T0}, s{T0}, {WS_CS}")
                for j in range(4):
                    a(f"buffer_load_dwordx4 {vr(CSR+4*j,4)}, v{t0}, s[{SRD_WS}:{SRD_WS+3}], s{T0} offen offset:{32*j} sc1", tag='tab')
                    a(f"buffer_load_dwordx4 {vr(B1R+4*j,4)}, v{t0}, s[{SRD_WS}:{SRD_WS+3}], s{T1} offen offset:{32*j} sc1", tag='tab')
    mark(a)
    a(f"v_lshrrev_b32 v{t0}, 5, v1")
    a(f"s_lshr_b32 s{T0}, s{S_W}, 1")
    a(f"s_lshl_b32 s{T0}, s{T0}, 3")
    a(f"v_add_u32 v{t0}, s{T0}, v{t0}")
    a(f"v_lshlrev_b32 v{t0}, 14, v{t0}")
    a(f"s_and_b32 s{T0}, s{S_W}, 1")
    a(f"s_lshl_b32 s{T0}, s{T0}, 9")
    a(f"v_and_b32 v{t1}, 31, v1")
    a(f"v_lshl_add_u32 v{t0}, v{t1}, 4, v{t0}")
    a(f"v_add_u32 v{t0}, s{T0}, v{t0}")
    a(f"s_lshl_b32 s{T0}, s{S_CJ}, 19")
    a(f"s_lshl_b32 s{T1}, s{S_RB}, 10")
    a(f"s_add_u32 s{T0}, s{T0}, s{T1}")
    a(f"s_add_u32 s{T0}, s{T0}, {WS_QKV}")
    a(f"s_cmp_lt_u32 s{S_CJ}, 5")
    a(f"s_cselect_b32 s{T2}, 0x3ea52b5c, 1.0")
    a(f"v_mov_b32 v30, s{T2}")
    for tt in range(2):
        for r in range(0, 16, 2):
            a(f"v_pk_mul_f32 {vr(ACC+32*tt+r,2)}, {vr(ACC+32*tt+r,2)}, v[30:31] op_sel_hi:[1,0]")
    for j in range(4):
        a(f"s_add_u32 s{T1}, s{T0}, {2*j*16384}")
        d = FB[0] + 4*j
        for tt in range(2):
            base = ACC + 32*tt + 4*j
            a(f"v_cvt_pk_bf16_f32 v{d+2*tt}, v{base}, v{base+1}")
            a(f"v_cvt_pk_bf16_f32 v{d+2*tt+1}, v{base+2}, v{base+3}")
        a(f"buffer_store_dwordx4 {vr(d,4)}, v{t0}, s[{SRD_WS}:{SRD_WS+3}], s{T1} offen sc1", tag='qst')
    C0, C1, VY, ONE = 2, 3, 4, 6
    TU, TE = 48, 56
    a(f"v_mov_b32 v{ONE}, 1.0")
    a(f"v_mov_b32 v{C0}, 0xc0135761")
    a(f"v_mov_b32 v{C1}, 0xbdd2d3e8")
    a(f"v_lshlrev_b32 v{VY}, 4, v1")
    a(f"s_lshl_b32 s{T0}, s{S_CJ}, 3")
    a(f"s_lshr_b32 s{T1}, s{S_W}, 1")
    a(f"s_lshl_b32 s{T1}, s{T1}, 1")
    a(f"s_add_u32 s{S_ACT}, s{T0}, s{T1}")
    a(f"s_lshl_b32 s{T0}, s{S_RB}, 2")
    a(f"s_and_b32 s{T1}, s{S_W}, 1")
    a(f"s_lshl_b32 s{T1}, s{T1}, 1")
    a(f"s_add_u32 s{T0}, s{T0}, s{T1}")
    a(f"s_mul_i32 s{T0}, s{T0}, 108")
    a(f"s_add_u32 s{T0}, s{T0}, s{S_ACT}")
    a(f"s_lshl_b32 s{T0}, s{T0}, 10")
    a(f"s_add_u32 s{S_HB}, s{T0}, {WS_H}")
    a(f"s_cmp_lt_u32 s{S_ACT}, 108")
    a(f"s_cselect_b32 s{S_HB}, s{S_HB}, 0x7fff0000")
    a.wait_vm('tab')
    P = lambda b, e: vr(b + 2*e, 2)
    for tt in range(2):
        nmp = vr(ST + 2*tt, 2)
        for jj in range(2):
            x = ACC + 16*(2*tt+1) + 8*jj
            for e in range(4):
                j, i = 2*jj + (e >> 1), 2*(e & 1)
                a(f"v_pk_fma_f32 {P(TU,e)}, {nmp}, {vr(CSR+4*j+i,2)}, {vr(B1R+4*j+i,2)} op_sel_hi:[0,1,1]")
            for e in range(4): a(f"v_pk_fma_f32 {P(x,e)}, {nmp}, {P(x,e)}, {P(TU,e)} op_sel:[1,0,0] op_sel_hi:[1,1,1]")
            for e in range(4): a(f"v_pk_mul_f32 {P(TU,e)}, {P(x,e)}, {P(x,e)}")
            for e in range(4): a(f"v_pk_fma_f32 {P(TU,e)}, {P(TU,e)}, {vr(C0,2)}, {vr(C0,2)} op_sel:[0,1,0] op_sel_hi:[1,1,0]")
            for e in range(4): a(f"v_pk_mul_f32 {P(TU,e)}, {P(TU,e)}, {P(x,e)}")
            for e in range(8): a(f"v_exp_f32 v{TE+e}, v{TU+e}")
            for e in range(4): a(f"v_pk_add_f32 {P(TE,e)}, {P(TE,e)}, {vr(ONE,2)} op_sel_hi:[1,0]")
            for e in range(8): a(f"v_rcp_f32 v{TE+e}, v{TE+e}")
            for e in range(4): a(f"v_pk_mul_f32 {P(TE,e)}, {P(TE,e)}, {P(x,e)}")
            d = TD + 4*(2*tt + jj)
            for e in range(4): a(f"v_cvt_pk_bf16_f32 v{d+e}, v{TE+2*e}, v{TE+2*e+1}")
    fq_poll_offsets(a, VP, t3)
    a.wait_vm('qst')
    a("s_barrier")
    flag_store(a, S_FQ, t3)
    mark(a)
    for tt in range(2):
        if tt == 1: a(f"s_add_u32 s{S_HB}, s{S_HB}, {108*1024}")
        for jj in range(2):
            d = TD + 4*(2*tt + jj)
            a(f"buffer_store_dwordx4 {vr(d,4)}, v{VY}, s[{SRD_WS}:{SRD_WS+3}], s{S_HB} offen offset:{jj*1024} sc1", tag='hst')
    a(f"s_branch {lbl}_stage")
    a.label(f"{lbl}_idle")
    a.reset_counters()
    t3i = t3
    srd(a, SRD_A, P_AX, SIZES['AX'])
    rowstats_issue(a)
    colsum_issue(a)
    nonce_issue(a, 252)
    rowstats_compute(a)
    colsum_compute(a, lbl + "_cs")
    nonce_check(a, 252)
    a("s_waitcnt vmcnt(0)")
    a("s_barrier")
    a(f"s_lshl_b32 s{T0}, s{S_RB}, 7")
    a(f"s_add_u32 s{T0}, s{T0}, {WS_FLAG + FS}")
    flag_store(a, T0, t3)
    a(f"s_lshl_b32 s{T0}, s{S_RB}, 2")
    a(f"s_add_u32 s{T0}, s{T0}, {WS_FLAG + FC}")
    flag_store(a, T0, t3)
    pre_address(a, lbl + "_pai", rows=False)
    pre_issue(a, rows=False)
    a.wait_vm('pl')
    repack_finish(a)
    a("s_waitcnt vmcnt(0)")
    a("s_barrier")
    pre_flags(a, t3, stats=False)
    a(f"s_mov_b32 s{S_FHO}, 0x7fff0000")
    fq_poll_offsets(a, VP, t3)
    a.label(f"{lbl}_stage")
    a.reset_counters()
    a(f"s_mov_b64 s[{T4}:{T4+1}], -1")
    wait_flags(a, VP, VPV, T4)
    mark(a)
    Li = uid("ik")
    a(f"s_cmp_ge_u32 s{S_W}, 4")
    a(f"s_cbranch_scc1 {Li}")
    attn_stage_q(a, 3)
    attn_stage_kv(a, t0, t1, t2, 2)
    a.wait_vm(('kv', 0))
    a.label(Li)
    a.reset_counters()

def stage_attn(a, lbl):
    HP, S_HH, S_QW = S_AHP, 78, 79
    VD, VK, VV, VKX, VW = 2, 3, 4, 5, 10
    t0, t1, t2, t3, t4 = 6, 7, 8, 9, 11
    MK = 12
    Q0, Q1 = 20, 24
    KF = [28, 36]
    VF = [44, 48, 52, 56]
    PF = [60, 64, 68, 72]
    OA = 76
    CS, NM, MX = 96, 97, 98
    S = 104
    VPQ, VPH = 92, 94
    a(f"v_and_b32 v{t0}, 31, v1")
    a(f"v_and_b32 v{VPH}, 15, v1")
    a(f"v_min_u32 v{VPH}, 13, v{VPH}")
    a(f"v_lshlrev_b32 v{VPH}, 2, v{VPH}")
    a(f"s_lshr_b32 s{T1}, s{S_FRB}, 1")
    a(f"s_lshl_b32 s{T1}, s{T1}, 7")
    a(f"s_add_u32 s{T1}, s{T1}, {WS_FLAG + FH}")
    a(f"v_add_u32 v{VPH}, s{T1}, v{VPH}")
    a(f"v_lshrrev_b32 v{t1}, 5, v1")
    for r in range(4): a(f"v_mov_b32 v{KF[0]+r}, 0x3f803f80")
    a(f"v_lshlrev_b32 v{t4}, 4, v0")
    a(f"v_add_u32 v{t4}, {LONES}, v{t4}")
    a(f"v_mov_b32 v{KF[1]}, 208")
    a(f"v_cmp_gt_u32 vcc, v{KF[1]}, v0")
    L = uid("on")
    a(f"s_and_saveexec_b64 s[{T4}:{T4+1}], vcc")
    a(f"s_cbranch_execz {L}")
    a(f"ds_write_b128 v{t4}, {vr(KF[0],4)}")
    a.label(L)
    a(f"s_mov_b64 exec, s[{T4}:{T4+1}]")
    SM = 98
    a(f"v_lshlrev_b32 v{t2}, 2, v{t1}")
    a(f"v_sub_u32 v{t2}, v{t0}, v{t2}")
    VM = 248
    a(f"v_mov_b32 v{VM}, v{t2}")
    a(f"v_mov_b32 v{t3}, 0xffff")
    a(f"v_mov_b32 v{t4}, 0xffff0000")
    for q in range(8):
        r0, r1 = 2*q, 2*q + 1
        a(f"v_cmp_le_i32 s[98:99], {8*(r0 >> 2) + (r0 & 3)}, v{VM}")
        a(f"v_cmp_le_i32 s[100:101], {8*(r1 >> 2) + (r1 & 3)}, v{VM}")
        a(f"v_cndmask_b32 v{MK+q}, 0, v{t3}, s[98:99]")
        a(f"v_cndmask_b32 v{KF[1]}, 0, v{t4}, s[100:101]")
        a(f"v_or_b32 v{MK+q}, v{MK+q}, v{KF[1]}")
    a(f"s_lshl_b32 s{T0}, s{S_QW}, 8")
    a(f"s_mul_i32 s{T3}, s{S_HH}, {5*PST}")
    a(f"s_add_u32 s{T2}, s{T0}, s{T3}")
    a(f"s_add_u32 s{T2}, s{T2}, {LK}")
    a(f"v_lshlrev_b32 v{t2}, 3, v{t0}")
    a(f"v_add_u32 v{t2}, s{T2}, v{t2}")
    a(f"s_movk_i32 s{T1}, {2*PST}")
    a(f"v_mul_lo_u32 v{t3}, v{t1}, s{T1}")
    a(f"v_add_u32 v{VK}, v{t2}, v{t3}")
    a(f"v_add_u32 v{VKX}, {4*PST}, v{t2}")
    a(f"v_bfe_u32 v{t2}, v1, 4, 1")
    a(f"v_and_b32 v{t3}, 3, v1")
    a(f"v_lshl_add_u32 v{t2}, v{t2}, 2, v{t3}")
    a(f"v_bfe_u32 v{t3}, v1, 2, 2")
    a(f"v_lshl_add_u32 v{t3}, v{t1}, 2, v{t3}")
    a(f"v_lshlrev_b32 v{t3}, 3, v{t3}")
    a(f"v_add_u32 v{t3}, s{T0}, v{t3}")
    a(f"s_movk_i32 s{T1}, {PST}")
    a(f"v_mul_lo_u32 v{t4}, v{t2}, s{T1}")
    a(f"v_cmp_gt_u32 s[{T4}:{T4+1}], 5, v{t2}")
    a(f"s_add_u32 s{T3}, s{T3}, {LV}")
    a(f"s_sub_u32 s{T2}, s{T3}, {LONES}")
    a(f"v_lshlrev_b32 v{KF[0]}, 5, v{t2}")
    a(f"v_add_u32 v{KF[0]}, s{T2}, v{KF[0]}")
    a(f"v_and_b32 v{KF[0]}, 255, v{KF[0]}")
    a(f"v_add_u32 v{KF[0]}, {LONES}, v{KF[0]}")
    a(f"v_add_u32 v{KF[0]+1}, s{T3}, v{t4}")
    a(f"v_cndmask_b32 v{KF[0]}, v{KF[0]}, v{KF[0]+1}, s[{T4}:{T4+1}]")
    a(f"v_add_u32 v{VV}, v{KF[0]}, v{t3}")
    a(f"v_mov_b32 v{CS}, 0x3ea52b5c")
    for st in range(2):
        a(f"v_mov_b32 v{KF[st]+6}, 0"); a(f"v_mov_b32 v{KF[st]+7}, 0")
    a(f"v_mov_b32 v{Q1+2}, 0"); a(f"v_mov_b32 v{Q1+3}, 0")
    a(f"v_lshlrev_b32 v{VW}, 4, v1")
    a(f"s_lshl_b32 s{T0}, s{S_ARB}, 2")
    a(f"s_add_u32 s{S_QB}, s{T0}, s{S_QW}")
    a(f"s_mul_i32 s{T0}, s{S_HH}, 5120")
    a(f"s_lshl_b32 s{T1}, s{S_QW}, 8")
    a(f"s_add_u32 s{T0}, s{T0}, s{T1}")
    a(f"s_add_u32 s{T0}, s{T0}, {QL}")
    a(f"v_lshlrev_b32 v{t2}, 3, v{t0}")
    a(f"v_add_u32 v{t2}, s{T0}, v{t2}")
    a(f"v_lshl_add_u32 v{t3}, v{t1}, 11, v{t2}")
    a("s_waitcnt lgkmcnt(0)")
    a("s_barrier")
    if OPT.get('latev'):
        Lw = uid("lv")
        a(f"s_cmp_ge_u32 s{S_W}, 4")
        a(f"s_cbranch_scc1 {Lw}")
        vm = list(a.vm)
        attn_stage_kv(a, 244, 245, 246, 247, (1,))
        a.vm = vm
        a.label(Lw)
    a(f"ds_read_b64 {vr(Q0,2)}, v{t3}")
    a(f"ds_read_b64 {vr(Q0+2,2)}, v{t3} offset:1024")
    a(f"ds_read_b64 {vr(Q1,2)}, v{t2} offset:4096")
    a(f"v_cmp_gt_u32 s[{T4}:{T4+1}], 32, v1")
    a("s_waitcnt lgkmcnt(0)")
    for q in (Q1, Q1+1):
        a(f"v_cndmask_b32 v{q}, 0, v{q}, s[{T4}:{T4+1}]")
    mark(a)
    SB = [100, 116, 132]; NM16 = 148
    order = [0, 8, 1, 2, 3, 4, 5, 6, 7]
    a(f"v_mov_b32 v{Q1+2}, 0x3f80")
    a(f"v_cndmask_b32 v{Q1+2}, 0, v{Q1+2}, s[{T4}:{T4+1}]")
    kn = [0]
    def rd_k(tl):
        st = KF[kn[0] % 2]; kn[0] += 1
        a(f"ds_read_b64 {vr(st,2)}, v{VK} offset:{tl*256}", tag=('k', tl))
        a(f"ds_read_b64 {vr(st+2,2)}, v{VK} offset:{PST + tl*256}", tag=('k', tl))
        a(f"ds_read_b64 {vr(st+4,2)}, v{VKX} offset:{tl*256}", tag=('k', tl))
        if tl < 8:
            a(f"s_cmp_lt_u32 s{S_QB}, {8-tl}")
            a(f"s_cselect_b32 s{T0}, 0xf149, 0")
            a(f"v_mov_b32 v{st+6}, s{T0}")
        else:
            a(f"v_mov_b32 v{st+6}, 0")
        return st
    def qk(tl, st, buf, c):
        a.wait_lg(('k', tl))
        d = vr(buf, 16)
        a(f"v_mfma_f32_32x32x16_bf16 {d}, {vr(st,4)}, {vr(Q0,4)}, {c}")
        a(f"v_mfma_f32_32x32x16_bf16 {d}, {vr(st+4,4)}, {vr(Q1,4)}, {d}")
    def merge():
        for r in range(0, 16, 2):
            a(f"v_cmp_le_i32 s[98:99], {8*(r >> 2) + (r & 3)}, v{VM}")
            a(f"v_cmp_le_i32 s[100:101], {8*((r+1) >> 2) + ((r+1) & 3)}, v{VM}")
            a(f"v_cndmask_b32 v{SB[0]+r}, v{SB[0]+r}, v{SB[1]+r}, s[98:99]")
            a(f"v_cndmask_b32 v{SB[0]+r+1}, v{SB[0]+r+1}, v{SB[1]+r+1}, s[100:101]")
    bufs = {0: SB[0], 8: SB[1]}
    for n, tl in enumerate(range(1, 8)): bufs[tl] = SB[(2 - n) % 3]
    def tmax(buf, first):
        for h in range(2):
            m = MX + h
            a(f"v_max3_f32 v{m}, v{buf+8*h}, v{buf+8*h+1}, {'v%d' % (buf+8*h+2) if first else 'v%d' % m}")
            ks = range(3, 8) if first else range(2, 8)
            ks = list(ks)
            while ks:
                if len(ks) >= 2:
                    a(f"v_max3_f32 v{m}, v{m}, v{buf+8*h+ks[0]}, v{buf+8*h+ks[1]}"); ks = ks[2:]
                else:
                    a(f"v_max_f32 v{m}, v{m}, v{buf+8*h+ks[0]}"); ks = ks[1:]
    st = rd_k(0); st2 = rd_k(8)
    qk(0, st, bufs[0], "0")
    st = rd_k(1)
    qk(8, st2, bufs[8], "0")
    st2 = rd_k(2)
    qk(1, st, bufs[1], "0")
    merge()
    tmax(SB[0], True)
    cur = st2
    for tl in range(2, 8):
        nxt = rd_k(tl + 1) if tl + 1 < 8 else None
        qk(tl, cur, bufs[tl], "0")
        tmax(bufs[tl-1], False)
        cur = nxt
    tmax(bufs[7], False)
    a(f"v_max_f32 v{MX}, v{MX}, v{MX+1}")
    a(f"v_mov_b32 v{MX+1}, v{MX}")
    a(f"v_permlane32_swap_b32 v{MX}, v{MX+1}")
    a(f"v_max_f32 v{MX}, v{MX}, v{MX+1}")
    a(f"v_sub_f32 v{NM16}, 0, v{MX}")
    for r in range(1, 16): a(f"v_mov_b32 v{NM16+r}, v{NM16}")
    if OPT.get('fine5'): mark(a)
    st = rd_k(0); st2 = rd_k(8)
    Lv = uid("vb")
    a(f"s_cmp_ge_u32 s{S_W}, 4")
    a(f"s_cbranch_scc1 {Lv}_1")
    a("s_waitcnt vmcnt(0)")
    a.label(f"{Lv}_1")
    if OPT.get('thp', -1) < 0: a("s_waitcnt vmcnt(0)")
    a.vm = []
    a("s_barrier")
    if OPT.get('thp', -1) < 0: flag_store(a, S_FHO, t3)
    dma_wf(a, 0, VW); dma_wf(a, 1, VW)
    mark(a)
    nv = [0]; ps = [0]
    for r in range(16): a(f"v_mov_b32 v{OA+r}, 0")
    def rd_v(tl, kk):
        slot = nv[0] % 4; nv[0] += 1
        for rd in range(2):
            a(f"ds_read_b64_tr_b16 {vr(VF[slot]+2*rd,2)}, v{VV} offset:{tl*256 + kk*128 + rd*64}", tag=('v', tl, kk))
        return slot
    def frag(src):
        p = PF[ps[0] % 4]; ps[0] += 1
        for e in range(8): a(f"v_exp_f32 v{src+e}, v{src+e}")
        for e in range(4): a(f"v_cvt_pk_bf16_f32 v{p+e}, v{src+2*e}, v{src+2*e+1}")
        return p
    def pv(p, slot, tag):
        a.wait_lg(tag)
        a(f"v_mfma_f32_32x32x16_bf16 {vr(OA,16)}, {vr(VF[slot],4)}, {vr(p,4)}, {vr(OA,16)}")
    C = vr(NM16, 16)
    qk(0, st, bufs[0], C)
    st = rd_k(1)
    qk(8, st2, bufs[8], C)
    st2 = rd_k(2)
    qk(1, st, bufs[1], C)
    merge()
    fin = None; ntok = [0]
    for kk in range(2):
        s0 = rd_v(0, kk); s8 = rd_v(8, kk)
        p = frag(SB[0] + 8*kk)
        p8 = PF[ps[0] % 4]; ps[0] += 1
        for e in range(4): a(f"v_and_b32 v{p8+e}, v{p+e}, v{MK+4*kk+e}")
        for e in range(4): a(f"v_xor_b32 v{p+e}, v{p+e}, v{p8+e}")
        pv(p, s0, ('v', 0, kk))
        pv(p8, s8, ('v', 8, kk))
    def publish_h():
        a("s_waitcnt vmcnt(10)")
        a("s_barrier")
        flag_store(a, S_FHO, t3)
    if OPT.get('thp', -1) == 0: publish_h()
    cur = st2
    for tl in range(1, 8):
        if tl + 1 < 8:
            nxt = rd_k(tl + 2) if tl + 2 < 8 else None
            qk(tl + 1, cur, bufs[tl+1], C)
            cur = nxt
        for kk in range(2):
            slot = rd_v(tl, kk)
            p = frag(bufs[tl] + 8*kk)
            pv(p, slot, ('v', tl, kk))
            if fin is not None and OPT.get('spread_t', 1):
                left = OPT.get('td1', 16) - ntok[0]
                nfr = 2*(7 - tl) + (1 - kk) + 1
                for _ in range(-(-left // nfr)):
                    fin(ntok[0]); ntok[0] += 1
        if tl == OPT.get('thp', -1): publish_h()
        if tl == OPT.get('tpoll', 2): poll_issue(a, VPH, VPH+1, 'ph')
        if tl == OPT.get('ttok', 4):
            if OPT.get('fine5'): mark(a)
            fin = final_setup(a, VPH)
            if OPT.get('fine5'): mark(a)
    a(f"v_and_b32 v{t0}, 1, v1")
    a(f"v_mul_u32_u24 v{t0}, {40*1024}, v{t0}")
    a(f"v_bfe_u32 v{t1}, v1, 1, 4")
    a(f"v_lshl_add_u32 v{t0}, v{t1}, 4, v{t0}")
    a(f"s_and_b32 s{T0}, s{S_QB}, 1")
    a(f"s_lshl_b32 s{T0}, s{T0}, 8")
    a(f"s_lshr_b32 s{T1}, s{S_QB}, 1")
    a(f"s_mul_i32 s{T1}, s{T1}, {80*1024}")
    a(f"s_add_u32 s{T0}, s{T0}, s{T1}")
    a(f"s_add_u32 s{T0}, s{T0}, {WS_O}")
    a(f"v_lshrrev_b32 v{t1}, 5, v1")
    a(f"v_lshl_add_u32 v{t2}, v{t1}, 9, v{t0}")
    a(f"v_rcp_f32 v{NM}, v{OA+12}")
    for r in range(12): a(f"v_mul_f32 v{OA+r}, v{OA+r}, v{NM}")
    for e in range(4): a(f"v_cvt_pk_bf16_f32 v{PF[0]+e}, v{OA+2*e}, v{OA+2*e+1}")
    a(f"v_cvt_pk_bf16_f32 v{PF[1]}, v{OA+8}, v{OA+9}")
    a(f"v_cvt_pk_bf16_f32 v{PF[1]+1}, v{OA+10}, v{OA+11}")
    a(f"s_lshl_b32 s{T1}, s{HP}, 1")
    a(f"s_add_u32 s{T1}, s{T1}, s{S_HH}")
    a(f"s_lshl_b32 s{T1}, s{T1}, 10")
    a(f"s_add_u32 s{T1}, s{T1}, s{T0}")
    a(f"buffer_store_dwordx4 {vr(PF[0],4)}, v{t2}, s[{SRD_WS}:{SRD_WS+3}], s{T1} offen sc1", tag='ost')
    a(f"s_lshr_b32 s{T1}, s{HP}, 1")
    a(f"s_add_u32 s{T1}, s{T1}, 32")
    a(f"s_lshl_b32 s{T1}, s{T1}, 10")
    a(f"s_and_b32 s{T2}, s{HP}, 1")
    a(f"s_lshl_b32 s{T2}, s{T2}, 9")
    a(f"s_add_u32 s{T1}, s{T1}, s{T2}")
    a(f"s_lshl_b32 s{T2}, s{S_HH}, 3")
    a(f"s_add_u32 s{T1}, s{T1}, s{T2}")
    a(f"s_add_u32 s{T1}, s{T1}, s{T0}")
    a("s_mov_b32 exec_hi, 0")
    a(f"buffer_store_dwordx2 {vr(PF[1],2)}, v{t0}, s[{SRD_WS}:{SRD_WS+3}], s{T1} offen sc1", tag='ost')
    a("s_mov_b32 exec_hi, -1")
    S_FO = 78
    a(f"s_lshl_b32 s{T0}, s{S_ARB}, 7")
    a(f"s_lshl_b32 s{T1}, s{HP}, 2")
    a(f"s_add_u32 s{T0}, s{T0}, s{T1}")
    a(f"s_add_u32 s{S_FO}, s{T0}, {WS_FLAG + FO}")
    mark(a)
    return dict(VPH=VPH, VW=VW, S_FO=S_FO, fin=fin)

TR, NT, HM, NM_ = 164, 20, 27, 37
F_HB, F_OB, F_TG, F_KG = 70, 71, 72, 81
F_VB = 11
def final_setup(a, VPH):
    TD = OPT.get('td', 16)
    t1, t2, t3 = 6, 7, 8
    a(f"s_and_b32 s{F_TG}, s{S_W}, 3")
    a(f"s_lshr_b32 s{F_KG}, s{S_W}, 2")
    poll_check(a, VPH, VPH+1, 'ph')
    if OPT.get('pfh', 0): touch_h(a, t1, t2)
    a(f"v_lshrrev_b32 v{t1}, 5, v1")
    a(f"v_bfe_u32 v{t2}, v1, 4, 1")
    a(f"v_lshlrev_b32 v{t1}, 10, v{t1}")
    a(f"v_lshl_add_u32 v{t1}, v{t2}, 9, v{t1}")
    a(f"v_and_b32 v{t2}, 15, v1")
    a(f"s_and_b32 s{T0}, s{F_TG}, 1")
    a(f"s_lshl_b32 s{T0}, s{T0}, 4")
    a(f"v_add_u32 v{t3}, s{T0}, v{t2}")
    a(f"v_lshl_add_u32 v{F_VB}, v{t3}, 4, v{t1}")
    a(f"s_lshl_b32 s{T0}, s{S_FRB}, 1")
    a(f"s_lshr_b32 s{T1}, s{F_TG}, 1")
    a(f"s_add_u32 s{T0}, s{T0}, s{T1}")
    a(f"s_lshl_b32 s{T2}, s{F_KG}, 11")
    a(f"s_mul_i32 s{T1}, s{T0}, {108*1024}")
    a(f"s_add_u32 s{T1}, s{T1}, s{T2}")
    a(f"s_add_u32 s{F_HB}, s{T1}, {WS_H}")
    a(f"s_mul_i32 s{T1}, s{T0}, {40*1024}")
    a(f"s_add_u32 s{T1}, s{T1}, s{T2}")
    a(f"s_add_u32 s{F_OB}, s{T1}, {WS_O}")
    def ld_t(m):
        sb, k = (F_HB, m) if m < HM else (F_OB, m - HM)
        if k > 0 and not OPT.get('hotft'): a(f"s_add_u32 s{sb}, s{sb}, 4096")
        a(f"buffer_load_dwordx4 {vr(TR+4*(m % NT),4)}, v{F_VB}, s[{SRD_WS}:{SRD_WS+3}], s{sb} offen sc1", tag=('T', m))
    if not OPT.get('spread_t', 1):
        for m in range(OPT.get('td1', 16)): ld_t(m)
    return ld_t

def stage_final(a, lbl, st):
    VPH, S_FO = st['VPH'], st['S_FO']
    VW = st['VW']; ld_t = st['fin']
    VG, VO, VF = 3, 4, 6
    VA = 12
    t0, t1, t2, t3 = 16, 17, 18, 19
    AS = [20, 40, 60]
    ACB, ACA, BI = 100, 120, 80
    TD = OPT.get('td', 16)
    NM = NM_
    S_TG, S_KG = F_TG, F_KG
    srd(a, SRD_A, P_B2, SIZES['B2'])
    srd(a, SRD_B, P_OUT, SIZES['OUT'])
    a(f"s_mul_i32 s{T0}, s{S_KG}, 5120")
    a(f"v_lshlrev_b32 v{t1}, 4, v1")
    a(f"v_add_u32 v{t1}, s{T0}, v{t1}")
    for k in range(4): a(f"v_add_u32 v{VA+k}, {RING[k]}, v{t1}")
    def rd_a(m, F):
        g, u = m >> 2, m & 3
        a(f"ds_read_b128 {vr(AS[m % 3]+4*F,4)}, v{VA + g % 4} offset:{u*10240 + F*1024}", tag=('A', m, F))
    a.wait_vm(('W', 0))
    a("s_barrier")
    for m in range(2):
        for F in range(5): rd_a(m, F)
    def late_setup():
        a(f"s_lshl_b32 s{T0}, s{S_FRB}, 6")
        a(f"s_lshr_b32 s{T1}, s{S_TG}, 1")
        a(f"s_add_u32 s{T0}, s{T0}, s{T1}")
        a(f"s_and_b32 s{T1}, s{S_TG}, 1")
        a(f"s_lshl_b32 s{T1}, s{T1}, 5")
        a(f"s_add_u32 s{T0}, s{T0}, s{T1}")
        a(f"v_and_b32 v{t3}, 15, v1")
        a(f"v_lshlrev_b32 v{t3}, 1, v{t3}")
        a(f"v_add_u32 v{t3}, s{T0}, v{t3}")
        a(f"v_lshlrev_b32 v{t1}, 2, v{t3}")
        a(f"v_add_u32 v{t1}, {WS_G}, v{t1}")
        a(f"buffer_load_dword v{VG}, v{t1}, s[{SRD_WS}:{SRD_WS+3}], 0 offen sc1", tag='g')
        a(f"v_lshrrev_b32 v{t0}, 4, v1")
        a(f"s_movk_i32 s{T1}, 1280")
        a(f"v_mul_lo_u32 v{t3}, v{t3}, s{T1}")
        a(f"s_mul_i32 s{T0}, s{S_FCJ}, 160")
        a(f"v_lshl_add_u32 v{t3}, v{t0}, 3, v{t3}")
        a(f"v_add_u32 v{VO}, s{T0}, v{t3}")
        a(f"v_lshlrev_b32 v{t1}, 3, v{t0}")
        a(f"v_add_u32 v{t1}, s{T0}, v{t1}")
        for F in range(5):
            a(f"buffer_load_dwordx2 {vr(BI+2*F,2)}, v{t1}, s[{SRD_A}:{SRD_A+3}], 0 offen offset:{32*F}", tag='g')
    if not OPT.get('latef', 1):
        dma_wf(a, 2, VW); late_setup()
    a(f"s_lshr_b32 s{T0}, s{S_FRB}, 1")
    a(f"s_lshl_b32 s{T0}, s{T0}, 7")
    a(f"s_add_u32 s{T0}, s{T0}, {WS_FLAG + FO}")
    a(f"v_and_b32 v{VF}, 15, v1")
    a(f"v_lshlrev_b32 v{VF}, 2, v{VF}")
    a(f"v_add_u32 v{VF}, s{T0}, v{VF}")
    mark(a)
    NG = 10
    MO = OPT.get('mo', 16)
    POLL = MO - 4
    nxt = [OPT.get('td1', 16)]
    for m in range(NM):
        g, u = m >> 2, m & 3
        if m == HM: mark(a)
        if u == 2 and g + 1 < NG:
            if g == 0: a.wait_vm(['ost', ('W', 1)])
            else: a.wait_vm(('W', g + 1))
            a("s_barrier")
            if g == 0:
                flag_store(a, S_FO, t1)
                dma_wf(a, 3, VW)
            elif g + 3 < NG and not OPT.get('f_nodma'): dma_wf(a, g + 3, VW)
        if m == POLL: poll_issue(a, VF, VF+1, 'fo')
        if m == MO:
            if OPT.get('fine6'): mark(a)
            poll_check(a, VF, VF+1, 'fo')
            if OPT.get('fine6'): mark(a)
        a.wait_vm(('T', m))
        for F in range(5):
            a.wait_lg(('A', m, F))
            acc = (ACB if m < HM else ACA) + 4*F
            d = vr(acc, 4)
            a(f"v_mfma_f32_16x16x32_bf16 {d}, {vr(AS[m % 3]+4*F,4)}, {vr(TR+4*(m % NT),4)}, {'0' if m in (0, HM) else d}")
            if m + 2 < NM and not OPT.get('f_nolds'):
                rd_a(m + 2, F)
            if F in (1, 3) and not OPT.get('f_notok'):
                lim = min(m + TD, NM - 1)
                if m < MO: lim = min(lim, HM - 1)
                if nxt[0] <= lim and (F == 1 or nxt[0] < lim or OPT.get('td1', 16) < TD or MO > HM - TD):
                    ld_t(nxt[0]); nxt[0] += 1
        if m == 0 and OPT.get('latef', 1): dma_wf(a, 2, VW)
        if m == 8 and OPT.get('latef', 1): late_setup()
    mark(a)
    a.wait_vm('g')
    a(f"v_sub_f32 v{t0}, 1.0, v{VG}")
    Lb = uid("bi")
    a(f"s_cmp_lg_u32 s{S_KG}, 0")
    a(f"s_cbranch_scc1 {Lb}")
    for F in range(5):
        for e in range(2):
            a(f"v_lshlrev_b32 v{t2}, 16, v{BI+2*F+e}")
            a(f"v_and_b32 v{t3}, 0xffff0000, v{BI+2*F+e}")
            a(f"v_add_f32 v{ACB+4*F+2*e}, v{ACB+4*F+2*e}, v{t2}")
            a(f"v_add_f32 v{ACB+4*F+2*e+1}, v{ACB+4*F+2*e+1}, v{t3}")
    a.label(Lb)
    for r in range(20): a(f"v_mul_f32 v{ACB+r}, v{ACB+r}, v{t0}")
    for r in range(20): a(f"v_fmac_f32 v{ACB+r}, v{ACA+r}, v{VG}")
    a(f"v_lshlrev_b32 v{t1}, 4, v1")
    a(f"s_mul_i32 s{T0}, s{S_TG}, 5120")
    a(f"s_add_u32 s{T0}, s{T0}, {RING[2]}")
    a(f"v_add_u32 v{t1}, s{T0}, v{t1}")
    L = uid("rd")
    def finish(own, other):
        for F in other:
            a(f"ds_write_b128 v{t1}, {vr(ACB+4*F,4)} offset:{F*1024}")
        a("s_waitcnt lgkmcnt(0)")
        a("s_barrier")
        for F in own:
            a(f"ds_read_b128 {vr(ACA+4*F,4)}, v{t1} offset:{F*1024}", tag=('r', F))
        for F in own:
            a.wait_lg(('r', F))
            for r in range(4): a(f"v_add_f32 v{ACB+4*F+r}, v{ACB+4*F+r}, v{ACA+4*F+r}")
            d = AS[0] + 2*F
            a(f"v_cvt_pk_bf16_f32 v{d}, v{ACB+4*F}, v{ACB+4*F+1}")
            a(f"v_cvt_pk_bf16_f32 v{d+1}, v{ACB+4*F+2}, v{ACB+4*F+3}")
            a(f"buffer_store_dwordx2 {vr(d,2)}, v{VO}, s[{SRD_B}:{SRD_B+3}], 0 offen offset:{32*F} {['', 'sc1', 'nt', 'sc0 sc1'][OPT.get('outsc', 0)]}".rstrip())
    a(f"s_cmp_eq_u32 s{S_KG}, 0")
    a(f"s_cbranch_scc1 {L}")
    finish((3, 4), (0, 1, 2))
    if G.STAMPS: a("s_waitcnt vmcnt(0)")
    a("s_endpgm")
    a.label(L)
    a.reset_counters()
    finish((0, 1, 2), (3, 4))
    a.reset_counters()

def code_prefetch(a):
    L = uid("cp")
    a(f"s_cmp_lg_u32 s{S_W}, 3")
    a(f"s_cbranch_scc1 {L}_skip")
    a(f"s_getpc_b64 s[{T4}:{T4+1}]")
    a.label(L)
    a(f"s_and_b32 s{T0}, s{S_I}, 7")
    a(f"s_lshl_b32 s{T0}, s{T0}, 13")
    a("v_lshlrev_b32 v251, 7, v1")
    a(f"v_add_u32 v251, s{T0}, v251")
    a(f"v_min_u32 v251, L_end-{L}-4, v251")
    vm = list(a.vm)
    a(f"global_load_dword v251, v251, s[{T4}:{T4+1}]")
    a.vm = vm
    a.label(f"{L}_skip")

def build():
    if OPT.get('fine2'):
        G_mark = G.mark
    OPT['mega'] = True
    LDS = 163840
    name = NAME + "_kernel"
    a = Asm()
    if G.STAMPS: a("s_memrealtime s[94:95]")
    a("s_cmp_ge_u32 s2, 256")
    a("s_cbranch_scc1 L_end")
    prologue_ids(a)
    CTX['k'] = 0; CTX['slot'] = 0
    stage1g(a, "s1"); mark(a)
    st = stage_attn(a, "attn")
    stage_final(a, "fin", st)
    if G.STAMPS: a("s_waitcnt vmcnt(0)")
    mark(a)
    a.label("L_end")
    return [(name, a.text())], LDS

DESCRIPTION = """;
; Hand-offs between workgroups go through d_ws: sc1 stores, drained, workgroup barrier, then an sc1 flag holding a
"""

def emit(ks, LDS):
    s = "\n".join(G.header_comment()) + "\n"
    s += f"; @launch grid=(256,1,1) block=(512,1,1) lds={LDS}\n"
    s += DESCRIPTION
    s += '.amdgcn_target "amdgcn-amd-amdhsa--gfx950"\n.text\n'
    for name, body in ks:
        s += G.kernel_text(name, body, 256, LDS)
    s += '.section .rodata,"a"\n'
    for name, _ in ks:
        s += ".p2align 6\n" + G.descriptor(name)
    return s

if __name__ == "__main__":
    if "stamps" in sys.argv: G.STAMPS = True
    for arg in sys.argv[1:]:
        if "=" in arg:
            k, v = arg.split("="); OPT[k] = int(v)
    ks, LDS = build()
    sys.stdout.write(emit(ks, LDS))
```
